```python
import torch

def _softmax(x, axis=-1):
    return torch.softmax(x, dim=axis)
def _gelu(x):
    return torch.nn.functional.gelu(x, approximate="tanh")
def _silu(x):
    return torch.nn.functional.silu(x)
def _sigmoid(x):
    return torch.sigmoid(x)
def _layernorm(x, axis=-1, eps=1e-5):
    m = x.mean(dim=axis, keepdim=True)
    v = x.var(dim=axis, keepdim=True, unbiased=False)
    return (x - m) / torch.sqrt(v + eps)
def _scatter_add(tgt, idx, src, axis=0):
    return tgt.clone().index_add_(axis, idx, src)
def _segment_sum(src, seg, n):
    out = torch.zeros((n,) + src.shape[1:], dtype=src.dtype)
    return out.index_add_(0, seg, src)
def _pad(x, pw):
    flat = tuple(v for pair in reversed(pw) for v in pair)
    return torch.nn.functional.pad(x, flat)

kernel_name = 'concat_heads__spectral_gfnet__softmax_full_mha__prompt'

def setup_inputs():

    _w = (lambda a: (lambda t: t.to(torch.bfloat16) if t.is_floating_point() else t)(torch.as_tensor(a)))
    def _A_setup():
        B, S, D = 1, 2048, 448
        Df = D // 2 + 1
        return {
            "x": _w((lambda *s: torch.randn(*s, dtype=torch.bfloat16) * 0.05)(B, S, D)),
            "w_r": _w((lambda *s: torch.randn(*s, dtype=torch.bfloat16) * 6.4)(S, Df) * 0.02),
            "w_i": _w((lambda *s: torch.randn(*s, dtype=torch.bfloat16) * 6.4)(S, Df) * 0.02),
        }
    _A_in = _A_setup()

    def _B_setup():
        B, S, D = 1, 2048, 448
        return {
            "x": _w((lambda *s: torch.randn(*s, dtype=torch.bfloat16) * 0.2)(B, S, D)),
            "wqkv": _w((lambda *s: torch.randn(*s, dtype=torch.bfloat16) * 0.2)(D, 3 * D)),
            "wo": _w((lambda *s: torch.randn(*s, dtype=torch.bfloat16) * 0.05)(D, D)),
        }
    _B_in = _B_setup()

    return {
        "A_x": _A_in["x"],
        "A_w_r": _A_in["w_r"],
        "A_w_i": _A_in["w_i"],
        "B_x": _B_in["x"],
        "B_wqkv": _B_in["wqkv"],
        "B_wo": _B_in["wo"],
    }

def reference(A_x, A_w_r, A_w_i, B_x, B_wqkv, B_wo):
    def _A_ref(x, w_r, w_i):
        B, S, D = x.shape
        X = (lambda x, axes=(-2,-1): torch.fft.rfft2(x.float(), dim=axes))(x, axes=(-2, -1))
        W = w_r + 1j * w_i
        X = X * W
        y = (lambda x, s, axes=(-2,-1): torch.fft.irfft2(x, s=s, dim=axes).to(torch.bfloat16))(X, (S, D), axes=(-2, -1))
        return y

    def _B_ref(x, wqkv, wo):
        B, S, D = x.shape
        H = 16; Dh = D // H
        qkv = (lambda x, *d: x.permute(*d))((x @ wqkv).reshape(B, S, 3, H, Dh), 2, 0, 3, 1, 4)
        q, k, v = qkv[0], qkv[1], qkv[2]
        scale = Dh ** -0.5
        scores = torch.einsum("bhqd,bhkd->bhqk", q, k) * scale
        p = _softmax(scores, axis=-1)
        o = torch.einsum("bhqk,bhkd->bhqd", p, v)
        return (lambda x, *d: x.permute(*d))(o, 0, 2, 1, 3).reshape(B, S, D) @ wo

    a = _A_ref(A_x, A_w_r, A_w_i)
    b = _B_ref(B_x, B_wqkv, B_wo)
    return torch.concatenate([a, b], axis=-1)
```

```python
import re

TRANS = ("v_exp_f32", "v_log_f32", "v_rcp_f32", "v_rsq_f32", "v_sqrt_f32", "v_sin_f32", "v_cos_f32")

def regs(tok):
    tok = tok.strip()
    tok = re.sub(r"^-", "", tok)
    m = re.fullmatch(r"abs\((.*)\)", tok) or re.fullmatch(r"\|(.*)\|", tok)
    if m: tok = m.group(1)
    m = re.fullmatch(r"([vs])(\d+)", tok)
    if m: return m.group(1), {int(m.group(2))}
    m = re.fullmatch(r"([vs])\[(\d+):(\d+)\]", tok)
    if m: return m.group(1), set(range(int(m.group(2)), int(m.group(3)) + 1))
    if tok == "vcc": return "s", {106, 107}
    if tok == "vcc_lo": return "s", {106}
    if tok == "vcc_hi": return "s", {107}
    if tok == "m0": return "s", {124}
    if tok == "exec": return "s", {126, 127}
    if tok == "exec_lo": return "s", {126}
    if tok == "exec_hi": return "s", {127}
    return None, set()

class Ins:
    def __init__(self, text):
        self.text = text
        t = text.split(";")[0].strip()
        self.label = None; self.op = None
        self.vd = set(); self.vs = set(); self.sd = set(); self.ss = set()
        self.kind = "other"; self.ws = 1; self.target = None
        self.A = self.B = self.C = set(); self.passes = 0; self.wide_data = set(); self.lds_dma = False
        if not t: self.ws = 0; self.kind = "none"; return
        if t.endswith(":"):
            self.label = t[:-1]; self.ws = 0; self.kind = "label"; return
        if t.startswith("."):
            self.ws = 0; self.kind = "none"; return
        parts = t.split(None, 1)
        op = self.op = parts[0]
        rest = parts[1] if len(parts) > 1 else ""
        ops = [o.strip() for o in re.split(r",(?![^\[]*\])", rest)] if rest else []
        mods = ""
        if ops:
            last = ops[-1].split(None, 1)
            ops[-1] = last[0]; mods = last[1] if len(last) > 1 else ""
        base = re.sub(r"_e(32|64)$", "", op)
        def add(tok, v, s):
            k, r = regs(tok)
            if k == "v": v |= r
            elif k == "s": s |= r
        if op == "s_nop":
            self.ws = int(ops[0], 0) + 1; self.kind = "salu"; return
        if op.startswith("s_cbranch") or op == "s_branch":
            self.target = ops[0]; self.kind = "branch"; return
        if op in ("s_endpgm",): self.kind = "end"; return
        if op.startswith("v_mfma"):
            self.kind = "mfma"
            self.vd = regs(ops[0])[1]; self.A = regs(ops[1])[1]; self.B = regs(ops[2])[1]
            k, r = regs(ops[3]); self.C = r if k == "v" else set()
            self.vs = self.A | self.B | self.C
            self.passes = 8 if "32x32" in op else 4
            return
        if op.startswith("v_"):
            self.kind = "trans" if base in TRANS else "valu"
            if base.startswith("v_cmp") or base in ("v_readfirstlane_b32", "v_readlane_b32"):
                add(ops[0], set(), self.sd)
                assert not base.startswith("v_cmpx")
                for o in ops[1:]: add(o, self.vs, self.ss)
            elif base.startswith("v_permlane") and "swap" in base:
                for o in ops[:2]: add(o, self.vd, set()); add(o, self.vs, set())
            else:
                add(ops[0], self.vd, self.sd)
                for o in ops[1:]: add(o, self.vs, self.ss)
                if base in ("v_fmac_f32", "v_writelane_b32"): self.vs |= self.vd
                assert "_co_" not in base
            return
        if op.startswith("ds_"):
            self.kind = "ds"
            if op.startswith("ds_read") or "rtn" in op or "permute" in op or "swizzle" in op:
                add(ops[0], self.vd, set()); [add(o, self.vs, set()) for o in ops[1:]]
            else:
                [add(o, self.vs, set()) for o in ops]
            return
        if op.startswith("buffer_") or op.startswith("global_"):
            self.kind = "vmem"
            if op in ("buffer_inv", "buffer_wbl2"): return
            islds = " lds" in (" " + mods)
            if islds:
                self.lds_dma = True
                [add(o, self.vs, self.ss) for o in ops]
            elif op.startswith("buffer_atomic"):
                add(ops[0], self.vd, set()); [add(o, self.vs, self.ss) for o in ops]
            elif "_load" in op:
                add(ops[0], self.vd, set()); [add(o, self.vs, self.ss) for o in ops[1:]]
                if "d16" in op: self.vs |= self.vd
            else:
                [add(o, self.vs, self.ss) for o in ops]
                if op.endswith("x4") or op.endswith("x3"):
                    self.wide_data = regs(ops[0] if op.startswith("buffer_") else ops[1])[1]
            return
        if op.startswith("s_"):
            self.kind = "salu"
            nodst = op.startswith(("s_cmp", "s_waitcnt", "s_barrier", "s_sleep", "s_setprio", "s_bitcmp"))
            if not nodst and ops: add(ops[0], set(), self.sd)
            for o in (ops if nodst else ops[1:]): add(o, set(), self.ss)
            if "saveexec" in op: self.sd |= {126, 127}
            return
        raise ValueError("unknown instruction: " + text)

def need(p, c):
    n = 0
    pv = p.kind in ("valu", "trans")
    cv = c.kind in ("valu", "trans")
    if pv and c.kind == "mfma" and p.vd & c.vs: n = max(n, 2)
    if p.kind == "mfma":
        P = p.passes
        if c.kind == "mfma":
            if p.vd & (c.A | c.B): n = max(n, {4: 8, 8: 12}[P])
            if p.vd & c.C and not (p.vd == c.C and c.passes == P): n = max(n, {4: 6, 8: 10}[P])
        elif cv or c.kind in ("vmem", "ds"):
            if p.vd & (c.vs | c.vd): n = max(n, {4: 8, 8: 12}[P])
            if cv and p.C & c.vd: n = max(n, {4: 3, 8: 7}[P])
    if p.kind == "trans" and c.kind == "valu" and p.vd & c.vs: n = max(n, 1)
    if pv and cv:
        if c.op.startswith("v_permlane") and p.vd & c.vs: n = max(n, 2)
        if c.op.startswith(("v_readfirstlane", "v_readlane")) and p.vd & c.vs: n = max(n, 1)
        if ("dpp" in c.text or "row_" in c.text or "quad_perm" in c.text) and p.vd & c.vs: n = max(n, 2)
        if p.sd & c.ss: n = max(n, 4 if c.op.startswith(("v_readlane", "v_writelane")) else 2)
        if p.sd & {106, 107} and c.op in ("v_cndmask_b32", "v_cndmask_b32_e32") and "vcc" in c.text: n = max(n, 2)
    if pv and c.kind == "vmem" and p.sd & c.ss: n = max(n, 5)
    if p.kind == "salu" and 124 in p.sd and c.lds_dma: n = max(n, 1)
    if p.wide_data and p.wide_data & c.vd: n = max(n, 2 if cv else 1)
    return n

class Asm:
    def __init__(self):
        self.L = []
        self.uid = 0
    def __call__(self, text):
        for line in text.split("\n"):
            line = line.strip()
            if line: self.L.append(Ins(line))
    def lab(self, stem):
        self.uid += 1
        return f"L_{stem}_{self.uid}"
    def pad(self, verbose=False):
        L = self.L
        total = 0
        while True:
            labels = {ins.label: i for i, ins in enumerate(L) if ins.label}
            srcs = {}
            for i, ins in enumerate(L):
                if ins.target: srcs.setdefault(labels[ins.target], []).append(i)
            fix = None
            for i, c in enumerate(L):
                if c.kind in ("none", "label", "end", "branch"): continue
                if c.kind == "salu": continue
                worst = 0
                stack = [(i, 0)]
                seen = {}
                while stack:
                    j, dist = stack.pop()
                    preds = []
                    if j > 0 and not (L[j-1].op in ("s_branch", "s_endpgm")): preds.append(j-1)
                    if L[j].label and j in srcs: preds += srcs[j]
                    for q in preds:
                        p = L[q]
                        n = need(p, c) if p.kind not in ("none", "label") else 0
                        if n > dist: worst = max(worst, n - dist)
                        d2 = dist + p.ws
                        if d2 < 14 and seen.get(q, 99) > d2:
                            seen[q] = d2; stack.append((q, d2))
                if worst:
                    fix = (i, worst); break
            if not fix: break
            i, w = fix
            if verbose: print("pad", w, "before", L[i].text)
            L.insert(i, Ins(f"s_nop {w-1}"))
            total += 1
        return total
    def text(self):
        out = []
        for ins in self.L:
            out.append(ins.text if ins.kind == "label" or ins.text.startswith(".") else "    " + ins.text)
        return "\n".join(out) + "\n"
```

```python
import sys, math, struct
from asmlib import Asm

NAME = "concat_heads__spectral_gfnet__softmax_full_mha__prompt"

class Cfg:
    nh = 8
    stamps = False
    poll_limit = 1 << 17
    noA = 0
    nbuf = 6
    a2wait = 0
    a3wait = 16
    kvwait = 0
    owait = 24
    aprio = 2
    force_fb = False
cfg = Cfg()

EPOCH = 0
KV = 0x10000; TS = 61440; VOFF = 28672
OBUF = 0x400000
TBUF = 0x600000
UBUF = 0x800000; USTR = 32768
FKV = 0xA00000; FA1 = 0xA20000; FA2 = 0xA40000; FO = 0xA60000
STAMP = 0xB00000
WS_SIZE = 0x1000000
L_W = 0; L_WQ = 57344; L_X = 86016; L_Q = 151552; L_SYNC = 159744
LDS_SIZE = 160000
L_RED = 0
L_TB = L_WQ; L_YB = L_WQ + 8192; L_UB = L_WQ + 16384
L_ZB = L_X; L_OB = L_X + 28672
sWS, sWQKV, sX, sWR, sWI, sWO, sOUT = [f"s[{i}:{i+3}]" for i in (24, 28, 32, 36, 40, 44, 48)]
S_WAVE, S_XCD, S_IDX, S_H, S_R, S_W4 = "s56", "s57", "s58", "s59", "s60", "s61"
S_NONCE = "s[62:63]"
S_TO, S_BAR = "s64", "s65"
T0, T1, T2, T3, T4, T5 = "s66", "s67", "s68", "s69", "s22", "s23"
STAMP0 = 84

def f2u(x): return struct.unpack("<I", struct.pack("<f", x))[0]
def lit(x): return "0x%08x" % f2u(x)
def V(a, n=1): return f"v{a}" if n == 1 else f"v[{a}:{a+n-1}]"

def srd(a, name, lo, size):
    i = int(name[2:name.index(":")])
    a(f"s_mov_b32 s{i}, s{lo}\ns_mov_b32 s{i+1}, s{lo+1}\ns_mov_b32 s{i+2}, {size}\ns_mov_b32 s{i+3}, 0x20000")

def stamp(a, i):
    if cfg.stamps:
        a(f"s_memtime s[100:101]\ns_waitcnt lgkmcnt(0)\ns_mov_b32 s{STAMP0+i}, s100")

def dump_stamps(a, vt):
    if not cfg.stamps: return
    a(f"s_memrealtime s[100:101]\ns_waitcnt lgkmcnt(0)\ns_mov_b32 s{STAMP0+14}, s100")
    a(f"s_lshl_b32 {T0}, s2, 3\ns_add_u32 {T0}, {T0}, {S_WAVE}\ns_lshl_b32 {T0}, {T0}, 7\ns_add_u32 {T0}, {T0}, {STAMP}")
    a(f"v_mov_b32 v{vt+4}, 0\ns_mov_b64 exec, 1")
    for q in range(4):
        for i in range(4): a(f"v_mov_b32 v{vt+i}, s{STAMP0+4*q+i}")
        a(f"buffer_store_dwordx4 {V(vt,4)}, v{vt+4}, {sWS}, {T0} offen offset:{16*q}")
    a("s_mov_b64 exec, -1")

def poll(a, vaddr, soff, vt, code, sleep=2):
    L, Dn = a.lab("poll"), a.lab("polld")
    a(f"""s_mov_b32 {S_TO}, {cfg.poll_limit}
{L}:
buffer_load_dwordx2 {V(vt,2)}, {vaddr}, {sWS}, {soff} offen sc1
s_waitcnt vmcnt(0)
v_cmp_ne_u64 vcc, {S_NONCE}, {V(vt,2)}
s_cbranch_vccz {Dn}
s_sleep {sleep}
s_sub_u32 {S_TO}, {S_TO}, 1
s_cbranch_scc0 {L}
s_mov_b32 {S_TO}, {code}
s_branch L_fail
{Dn}:""")

def flag(a, soff, vt):
    a(f"""v_mov_b32 v{vt}, s62
v_mov_b32 v{vt+1}, s63
v_mov_b32 v{vt+2}, 0
s_mov_b64 exec, 1
buffer_store_dwordx2 {V(vt,2)}, v{vt+2}, {sWS}, {soff} offen sc1
s_mov_b64 exec, -1""")

def lbar(a, vsync, vone, vt, code, sleep=0):
    L, Dn = a.lab("lb"), a.lab("lbd")
    a(f"""s_add_u32 {S_BAR}, {S_BAR}, 4
s_mov_b64 exec, 1
ds_add_u32 {vsync}, {vone}
s_mov_b64 exec, -1
s_mov_b32 {S_TO}, {cfg.poll_limit * 8}
{L}:
ds_read_b32 v{vt}, {vsync}
s_waitcnt lgkmcnt(0)
v_readfirstlane_b32 {T0}, v{vt}
s_cmp_ge_u32 {T0}, {S_BAR}
s_cbranch_scc1 {Dn}
{"s_sleep %d" % sleep if sleep else ""}
s_sub_u32 {S_TO}, {S_TO}, 1
s_cbranch_scc0 {L}
s_mov_b32 {S_TO}, {code}
s_branch L_fail
{Dn}:""")

def mfma(d, A, B, C=None):
    return f"v_mfma_f32_32x32x16_bf16 {V(d,16)}, {V(A,4)}, {V(B,4)}, {'0' if C is None else V(C,16)}"

def mod7(a, s, t):
    a(f"s_mul_i32 {t}, {s}, 9363\ns_lshr_b32 {t}, {t}, 16\ns_mul_i32 {t}, {t}, 7\ns_sub_u32 {s}, {s}, {t}")

def x_read_addrs(a, v0, vl, base_s, t):
    a(f"""v_and_b32 v{t}, 31, {vl}
v_lshrrev_b32 v{t+1}, 5, {vl}
v_bfe_u32 v{t+2}, {vl}, 1, 3
v_xor_b32 v{t+1}, v{t+1}, v{t+2}
v_lshlrev_b32 v{t}, 7, v{t}
v_add_u32 v{t}, {base_s}, v{t}""")
    for mm in range(4):
        a(f"v_xor_b32 v{t+2}, {2*mm}, v{t+1}\nv_lshl_add_u32 v{v0+mm}, v{t+2}, 4, v{t}")


S_HH, S_RR, S_J = "s52", "s53", "s54"

def prologue(a):
    nh = cfg.nh; nr = 32 // nh; xh = 16 // nh
    lg = lambda x: x.bit_length() - 1
    a(f"""s_cmp_ge_u32 s2, 256
s_cbranch_scc1 L_end
s_load_dwordx16 s[4:19], s[0:1], 0
s_load_dwordx2 s[20:21], s[0:1], 64""")
    if cfg.stamps:
        a(f"s_memrealtime s[100:101]\ns_waitcnt lgkmcnt(0)\ns_mov_b32 s{STAMP0+15}, s100")
        for i in range(15): a(f"s_mov_b32 s{STAMP0+i}, 0")
        stamp(a, 0)
    a(f"""v_lshrrev_b32 v2, 6, v0
v_and_b32 v1, 63, v0
v_readfirstlane_b32 {S_WAVE}, v2
s_and_b32 {S_XCD}, s2, 7
s_lshr_b32 {S_IDX}, s2, 3
s_and_b32 {S_W4}, {S_WAVE}, 3
s_mov_b32 {S_BAR}, 0
s_cmp_ge_u32 {S_WAVE}, 4
s_cbranch_scc1 L_roleA""")

def nonce(a):
    a(f"""s_waitcnt lgkmcnt(0)
s_mul_i32 s62, s62, 0x9E3779B1
s_add_u32 s62, s62, 0x7F4A7C15
s_mul_i32 s63, s63, 0x85EBCA6D
s_add_u32 s63, s63, 0x165667B1""")

def role_B(a):
    nh = cfg.nh; nr = 32 // nh; xh = 16 // nh
    lg = lambda x: x.bit_length() - 1
    ra = {2: 3, 4: 2, 8: 1, 16: 1}[nh]
    X = 16; ACC = 128; WB = 160; PK = 224
    SC = 70
    S_XL, S_TILE, S_I = "s77", "s78", "s79"
    TO = 36
    a(f"""s_setprio 3
s_and_b32 {S_HH}, {S_IDX}, {nh-1}
s_lshr_b32 {S_RR}, {S_IDX}, {lg(nh)}
s_and_b32 {S_H}, {S_XCD}, {xh-1}
s_lshl_b32 {S_H}, {S_H}, {lg(nh)}
s_add_u32 {S_H}, {S_H}, {S_HH}
s_lshr_b32 {S_R}, {S_XCD}, {lg(xh)}
s_lshl_b32 {S_R}, {S_R}, {lg(nr)}
s_add_u32 {S_R}, {S_R}, {S_RR}
s_cmp_ge_u32 {S_H}, 14
s_cselect_b32 {T0}, 14, 0
s_sub_u32 {S_J}, {S_H}, {T0}
s_lshl_b32 {S_TILE}, {S_R}, 2
s_add_u32 {S_TILE}, {S_TILE}, {S_W4}
v_lshrrev_b32 v8, 3, v1
v_and_b32 v9, 7, v1
v_lshrrev_b32 v10, 4, v1
v_xor_b32 v10, v9, v10
v_xor_b32 v11, 4, v10
v_mul_u32_u24 v12, 896, v8
s_mul_i32 {T0}, {S_TILE}, {32*896}
v_add_u32 v12, {T0}, v12
v_lshl_add_u32 v4, v10, 4, v12
v_lshl_add_u32 v5, v11, 4, v12
v_add_u32 v5, {8*896}, v5
v_add_u32 v6, {16*896}, v4
v_add_u32 v7, {16*896}, v5
v_mul_u32_u24 v2, 2688, v8
v_bfe_u32 v3, v1, 4, 1
v_lshlrev_b32 v3, 2, v3
v_xor_b32 v3, v9, v3
v_lshl_add_u32 v2, v3, 4, v2
s_lshl_b32 {T0}, {S_J}, 7
s_mul_i32 {T1}, {S_W4}, {8*2688}
s_add_u32 {T0}, {T0}, {T1}
s_add_u32 {T0}, {T0}, 896
v_add_u32 v2, {T0}, v2
s_mul_i32 s{SC}, {S_HH}, {ra}""")
    mod7(a, f"s{SC}", T0)
    a(f"""s_lshl_b32 s{SC}, s{SC}, 7
s_lshl_b32 {S_XL}, {S_W4}, 14
s_add_u32 {S_XL}, {S_XL}, {L_X}
s_mul_i32 {S_I}, {S_RR}, 14
s_lshr_b32 {S_I}, {S_I}, {lg(nr)}
s_lshl_b32 {T3}, {S_W4}, 10
s_waitcnt lgkmcnt(0)
s_load_dwordx2 s[62:63], s[20:21], {EPOCH}""")
    srd(a, sX, 10, 2048 * 896)
    def x_m0(i, j): return f"s_add_u32 m0, {S_XL}, {(i%4)*4096 + j*1024}"
    def x_ld(i, j): return f"buffer_load_dwordx4 v{4+j}, {sX}, s{SC+i} offen lds"
    for j in range(4): a(x_m0(0, j)); a(x_ld(0, j))
    srd(a, sWQKV, 12, 448 * 2688)
    for i in range(14):
        a(f"""s_lshl_b32 {T0}, {S_I}, 12
s_add_u32 m0, {T0}, {T3}
s_mul_i32 {T1}, {S_I}, {32*2688}
buffer_load_dwordx4 v2, {sWQKV}, {T1} offen lds
s_add_u32 {S_I}, {S_I}, 1
s_cmp_eq_u32 {S_I}, 14
s_cselect_b32 {S_I}, 0, {S_I}""")
    for i in range(1, 7):
        a(f"s_add_u32 s{SC+i}, s{SC+i-1}, 128\ns_cmp_eq_u32 s{SC+i}, 896\ns_cselect_b32 s{SC+i}, 0, s{SC+i}")
    for j in range(4): a(x_m0(1, j)); a(x_ld(1, j))
    srd(a, sWS, 20, WS_SIZE)
    x_read_addrs(a, 8, "v1", S_XL, 12)
    a(f"""v_lshrrev_b32 v12, 5, v1
v_lshlrev_b32 v12, 3, v12
v_bfe_u32 v13, v1, 2, 2
v_add_u32 v12, v12, v13
v_bfe_u32 v13, v1, 4, 1
v_lshlrev_b32 v13, 5, v13
v_and_b32 v2, 1, v1
v_bfe_u32 v3, v1, 1, 1
v_lshl_add_u32 v15, v2, 4, v13
v_lshl_add_u32 v15, v3, 3, v15
v_lshl_add_u32 v14, v2, 3, v13
v_lshl_add_u32 v14, v3, 4, v14
s_cmp_ge_u32 {S_J}, 7
s_cselect_b64 vcc, -1, 0
v_cndmask_b32 v14, v15, v14, vcc
v_lshl_add_u32 v15, v12, 6, v15
v_add_u32 v15, {L_WQ}, v15
v_bfe_u32 v13, v1, 3, 1
v_lshl_add_u32 v14, v13, 6, v14
v_lshl_add_u32 v14, v12, 7, v14
v_mov_b32 v3, 0
v_mov_b32 v2, {L_SYNC}
ds_write2_b32 v2, v3, v3 offset0:0 offset1:32""")
    nonce(a)
    def w_base(i): return f"v_lshl_add_u32 v12, s{SC+i}, 6, v14\nv_xor_b32 v13, 64, v12"
    def w_reads(i):
        out = []
        for mm in range(4):
            for ct in range(2):
                for hf in range(2):
                    d = WB + (i % 2) * 32 + mm * 8 + ct * 4 + hf * 2
                    out.append(f"ds_read_b64_tr_b16 {V(d,2)}, v{12+ct} offset:{mm*2048 + hf*512}")
        return out
    def x_reads(i):
        return [f"ds_read_b128 {V(X+16*i+4*mm,4)}, v{8+mm} offset:{(i%4)*4096}" for mm in range(4)]
    a(w_base(0))
    a("s_waitcnt vmcnt(18)")
    for s_ in x_reads(0): a(s_)
    a("s_waitcnt vmcnt(4)")
    stamp(a, 1)
    a("s_barrier")
    wr0 = w_reads(0)
    for j in range(4):
        a(x_m0(2, j)); a(wr0[4*j]); a(x_ld(2, j)); a("\n".join(wr0[4*j+1:4*j+4]))
    a(f"s_cmp_ge_u32 {S_J}, 7\ns_cbranch_scc1 L_kvV")
    for var in ("K", "V"):
        if var == "V": a("L_kvV:")
        for i in range(7):
            a("s_waitcnt lgkmcnt(0)")
            fill = [[] for _ in range(8)]
            pre = [[] for _ in range(8)]
            if i + 3 < 7:
                for j in range(4): pre[j].append(x_m0(i+3, j)); fill[j].append(x_ld(i+3, j))
            if i + 1 < 7:
                out_after = 4 * (min(6, i + 3) - (i + 1))
                wr = w_reads(i + 1)
                fill[0] += [w_base(i + 1)]
                fill[1] += wr[0:3]; fill[2] += wr[3:6]; fill[3] += wr[6:9]; fill[4] += wr[9:13]; fill[5] += wr[13:16]
                fill[5] += [f"s_waitcnt vmcnt({out_after})"]
                fill[6] += x_reads(i + 1)
            for mm in range(4):
                for ct in range(2):
                    xr = X + 16*i + 4*mm; wr_ = WB + (i % 2) * 32 + mm * 8 + ct * 4
                    c = None if (i == 0 and mm == 0) else ACC + 16*ct
                    for s_ in pre[2*mm + ct]: a(s_)
                    a(mfma(ACC + 16*ct, wr_, xr, c) if var == "K" else mfma(ACC + 16*ct, xr, wr_, c))
                    for s_ in fill[2*mm + ct]: a(s_)
                if i == 6 and mm == 0:
                    a(f"s_mul_i32 {T4}, {S_TILE}, {TS}\ns_add_u32 {T4}, {T4}, {KV}\nv_lshlrev_b32 v7, 4, v1")
                    if var == "K":
                        a(f"s_lshl_b32 {T0}, {S_J}, 12\ns_add_u32 {T4}, {T4}, {T0}")
                    else:
                        a(f"""s_sub_u32 {T0}, {S_J}, 7
s_lshl_b32 {T1}, {T0}, 6
v_and_b32 v4, 31, v1
v_add_u32 v4, {T1}, v4
v_add_u32 v5, 32, v4
v_lshrrev_b32 v3, 5, v1
v_lshlrev_b32 v3, 9, v3
v_add_u32 v3, {VOFF}, v3""")
                if i == 6 and mm == 1 and var == "V":
                    for r in (4, 5):
                        a(f"""v_mul_u32_u24 v12, 2341, v{r}
v_lshrrev_b32 v12, 16, v12
v_mul_u32_u24 v12, {2048 - 28*16}, v12
v_lshl_add_u32 v{r}, v{r}, 4, v12
v_add_u32 v{r}, v{r}, v3""")
                if i == 6 and mm == 2 and var == "V":
                    a(f"""s_lshl_b32 {T1}, {T0}, 2
s_lshr_b32 {T2}, 0xDB96420, {T1}
s_and_b32 {T2}, {T2}, 15
s_lshr_b32 {T3}, 0x3223222, {T1}
s_and_b32 {T3}, {T3}, 15
s_lshl_b32 {T3}, {T3}, 4
v_lshrrev_b32 v12, 2, v1
v_lshlrev_b32 v12, 9, v12
v_and_b32 v13, 3, v1
v_lshl_add_u32 v12, v13, 4, v12
s_lshl_b32 {T2}, {T2}, 11
s_add_u32 {T2}, {T2}, {VOFF + 28*16}""")
        if var == "V":
            a(f"""v_add_u32 v12, {T2}, v12
v_cmp_eq_u32 vcc, 0, v13
v_mov_b32 v13, 0x3f803f80
v_cndmask_b32 v240, 0, v13, vcc
v_cndmask_b32 v241, 0, v13, vcc
v_cndmask_b32 v242, 0, v13, vcc
v_cndmask_b32 v243, 0, v13, vcc
s_bfm_b64 exec, {T3}, 0
buffer_store_dwordx4 v[240:243], v12, {sWS}, {T4} offen sc1
s_mov_b64 exec, -1""")
        else:
            a(f"s_cmp_ge_u32 {S_H}, 14\ns_cbranch_scc1 L_kvdone")
        for ct in range(2):
            for j in range(2):
                for q in range(4):
                    z = 8*ct + 4*j + q
                    a(f"v_cvt_pk_bf16_f32 v{PK+z}, v{ACC+2*z}, v{ACC+2*z+1}")
                if var == "K":
                    a(f"buffer_store_dwordx4 {V(PK+8*ct+4*j,4)}, v7, {sWS}, {T4} offen offset:{ct*2048+j*1024} sc1")
                else:
                    a(f"buffer_store_dwordx4 {V(PK+8*ct+4*j,4)}, v{4+ct}, {sWS}, {T4} offen offset:{j*1024} sc1")
        if var == "K": a("s_branch L_kvdone")
    a("L_kvdone:")
    stamp(a, 2)
    S_P0 = "s55"
    a(f"""v_lshrrev_b32 v6, 2, v1
v_mul_u32_u24 v6, 2688, v6
v_and_b32 v5, 3, v1
v_lshl_add_u32 v6, v5, 4, v6
s_mul_i32 {S_P0}, {S_H}, 7
s_lshr_b32 {S_P0}, {S_P0}, 1
s_lshl_b32 {T0}, {S_P0}, 4
s_mul_i32 {T1}, {S_W4}, {16*2688}
s_add_u32 {T0}, {T0}, {T1}
s_lshl_b32 {T1}, {S_W4}, 10
s_add_u32 {T1}, {T1}, {L_WQ}""")
    for i in range(7):
        a(f"s_add_u32 m0, {T1}, {i*4096}\ns_add_u32 {T2}, {T0}, {i*64*2688}\nbuffer_load_dwordx4 v6, {sWQKV}, {T2} offen lds")
    a("s_barrier")
    a(f"""s_lshl_b32 {T0}, {S_P0}, 9
v_add_u32 v4, {T0}, v7                    ; v4 = K offset
s_lshl_b32 {T0}, {S_H}, 11
s_add_u32 {T0}, {T0}, {VOFF}
v_add_u32 v6, {T0}, v7                    ; v6 = V offset
s_lshr_b32 {T1}, {S_P0}, 3
s_add_u32 {T0}, {S_P0}, 3
s_lshr_b32 {T0}, {T0}, 3
s_sub_u32 {T0}, {T0}, {T1}
v_and_b32 v8, 1, v1
v_mul_u32_u24 v8, {T0}, v8
v_bfe_u32 v9, v1, 1, 1
v_mul_u32_u24 v9, 7, v9
v_add_u32 v8, v8, v9
v_lshrrev_b32 v9, 2, v1
v_lshl_add_u32 v8, v9, 6, v8
v_lshlrev_b32 v8, 7, v8
s_lshl_b32 {T0}, {S_W4}, 4
s_add_u32 {T0}, {T0}, {T1}
s_lshl_b32 {T0}, {T0}, 7
s_add_u32 {T5}, {T0}, {FKV}
s_mov_b32 {T0}, {S_TILE}""")
    for t in range(16):
        a(f"s_mul_i32 s{TO+t}, {T0}, {TS}\ns_add_u32 s{TO+t}, s{TO+t}, {KV}\ns_add_u32 {T0}, {T0}, 4\ns_and_b32 {T0}, {T0}, 63")
    a(f"""v_mov_b32 v2, {L_SYNC}
v_mov_b32 v3, 1
s_lshl_b32 {T0}, {S_TILE}, 4
s_add_u32 {T0}, {T0}, {S_H}
s_lshl_b32 {T0}, {T0}, 7
s_add_u32 {T0}, {T0}, {FKV}
s_waitcnt vmcnt(7)""")
    flag(a, T0, 240)
    stamp(a, 3)
    a("s_waitcnt vmcnt(1)")
    stamp(a, 4)
    lbar(a, "v2", "v3", 5, 14)
    rd = []
    for i in range(7):
        for mm in range(4):
            for hf in range(2):
                pre = f"v_lshl_add_u32 v{12+i%2}, s{SC+i}, 5, v15\n" if (mm == 0 and hf == 0) else ""
                rd.append(pre + f"ds_read_b64_tr_b16 {V(WB+(i%4)*16+mm*4+hf*2,2)}, v{12+i%2} offset:{mm*1024+hf*256}")
    for s_ in rd[:14]: a(s_)
    for m in range(28):
        iss = min(56, 14 + 2*m)
        a(f"s_waitcnt lgkmcnt({iss - (2*m + 2)})")
        a(mfma(ACC, WB + ((m // 4) % 4) * 16 + (m % 4) * 4, X + 4*m, None if m == 0 else ACC))
        for s_ in rd[iss:iss+2]: a(s_)
    stamp(a, 5)
    NB = cfg.nbuf
    Q = 16; O = 48; SA = 112; KVB = 144; P0 = KVB + 16*NB; P1 = P0 + 4
    assert P1 + 4 <= 248
    QP = 248
    a(f"s_mov_b32 {T1}, {lit(28 ** -0.5 * math.log2(math.e))}")
    if cfg.kvwait: a(f"s_sleep {cfg.kvwait}")
    poll(a, "v8", T5, 10, 1, sleep=4)
    stamp(a, 6)
    def kv_loads(t, so=None):
        b = KVB + 16 * (t % NB); so = so or f"s{TO+t}"
        return [f"buffer_load_dwordx4 {V(b+4*j,4)}, v{4 if j < 2 else 6}, {sWS}, {so} offen offset:{(j%2)*1024} sc1" for j in range(4)]
    for t in range(2):
        for s_ in kv_loads(t): a(s_)
    for q in range(16): a(f"v_mul_f32 v{ACC+q}, {T1}, v{ACC+q}")
    for q in range(8): a(f"v_cvt_pk_bf16_f32 v{QP+q}, v{ACC+2*q}, v{ACC+2*q+1}")
    a(f"""s_lshl_b32 {T0}, {S_W4}, 11
s_add_u32 {T0}, {T0}, {L_Q}
v_add_u32 v8, {T0}, v7
s_bitcmp1_b32 {S_H}, 0
s_cselect_b32 exec_lo, -1, 0
s_mov_b32 exec_hi, 0
v_mov_b32 v{QP}, 0
v_mov_b32 v{QP+1}, 0
s_cselect_b32 exec_hi, 0, -1
s_mov_b32 exec_lo, 0
v_mov_b32 v{QP+6}, 0
v_mov_b32 v{QP+7}, 0
s_mov_b64 exec, -1
ds_write_b128 v8, {V(QP,4)}
ds_write_b128 v8, {V(QP+4,4)} offset:1024""")
    lbar(a, "v2", "v3", 5, 15)
    for i in range(4):
        a(f"""s_add_u32 {T0}, {S_W4}, {i+1}
s_and_b32 {T0}, {T0}, 3
s_lshl_b32 {T1}, {T0}, 11
s_add_u32 {T1}, {T1}, {L_Q}
v_add_u32 v8, {T1}, v7
ds_read_b128 {V(Q+8*i,4)}, v8
ds_read_b128 {V(Q+8*i+4,4)}, v8 offset:1024
s_mul_i32 {T0}, {T0}, 12288
s_add_u32 {T0}, {T0}, {(i%3)*4096 + L_RED}
v_add_u32 v{10+i}, {T0}, v7""")
    stamp(a, 7)
    a("s_waitcnt vmcnt(4) lgkmcnt(0)\ns_setprio 0")
    stamp(a, 8)
    a(mfma(SA, KVB, Q)); a(mfma(SA, KVB + 4, Q + 4, SA))
    a("s_nop 10\n.p2align 3")
    issued = 2
    for t in range(16):
        for i in range(4):
            n = 4 * t + i
            cur = SA + 16 * (n % 2); nxt = SA + 16 * ((n + 1) % 2)
            tn, inx = (t, i + 1) if i < 3 else (t + 1, 0)
            tp, ip = (t, i - 1) if i > 0 else (t - 1, 3)
            kb = lambda tt: KVB + 16 * (tt % NB)
            ms = [mfma(nxt, kb(tn), Q + 8*inx), mfma(nxt, kb(tn) + 4, Q + 8*inx + 4, nxt),
                  mfma(O + 16*ip, kb(tp) + 12, P1, O + 16*ip), mfma(O + 16*i, kb(t) + 8, P0, None if t == 0 else O + 16*i)]
            if n == 63: ms[0] = ms[1] = None
            if n == 0: ms[2] = None
            side = []
            if i in (1, 2) and issued <= min(15, t + NB - 1):
                side = kv_loads(issued); issued += 1
            if t == 15 and i >= 2:
                side = [f"ds_write_b128 v{10+i-2}, {V(O+16*(i-2)+4*q,4)} offset:{q*1024}" for q in range(4)]
            for p in range(4):
                if ms[p]: a(ms[p])
                if side: a(side.pop(0))
                wait = (i == 2 and p == 3 and t < 15)
                for e in range(4):
                    if wait and e == 3:
                        a(f"s_waitcnt vmcnt({4 * (issued - (t + 2))})\nv_exp_f32_e64 v{cur+4*p+e}, v{cur+4*p+e}")
                    else:
                        a(f"v_exp_f32 v{cur+4*p+e}, v{cur+4*p+e}")
                pk = (P0, P0 + 2, P1, P1 + 2)[p]
                a(f"v_cvt_pk_bf16_f32 v{pk}, v{cur+4*p}, v{cur+4*p+1}\nv_cvt_pk_bf16_f32 v{pk+1}, v{cur+4*p+2}, v{cur+4*p+3}")
    a("s_setprio 3")
    for q in range(4): a(f"ds_write_b128 v12, {V(O+32+4*q,4)} offset:{q*1024}")
    a(mfma(O + 48, KVB + 16 * (15 % NB) + 12, P1, O + 48))
    stamp(a, 9)
    lbar(a, "v2", "v3", 5, 2)
    OO = O + 48
    for q in range(12): a(f"ds_read_b128 {V(O+4*q,4)}, v13 offset:{q*1024}")
    a(f"""s_lshl_b32 {T3}, {S_TILE}, 4
s_add_u32 {T3}, {T3}, {S_H}
s_lshl_b32 {T4}, {T3}, 11
s_add_u32 {T4}, {T4}, {OBUF}
s_lshl_b32 {T3}, {T3}, 7
s_add_u32 {T3}, {T3}, {FO}
s_mov_b32 {T0}, {lit(2.0**-40)}
s_mov_b32 {T1}, {lit(2.0**30)}
s_movk_i32 {T2}, 0x1f8""")
    for s_ in range(3):
        a(f"s_waitcnt lgkmcnt({8-4*s_})")
        for q in range(0, 16, 2): a(f"v_pk_add_f32 {V(OO+q,2)}, {V(OO+q,2)}, {V(O+16*s_+q,2)}")
    a(f"""v_mov_b32 v10, v{OO+12}
v_mov_b32 v11, v{OO+12}
v_pk_add_f32 v[12:13], {V(OO,2)}, {V(OO+2,2)}
v_pk_add_f32 v[14:15], {V(OO+4,2)}, {V(OO+6,2)}
v_permlane32_swap_b32 v10, v11
v_pk_add_f32 v[12:13], v[12:13], {V(OO+8,2)}
v_pk_add_f32 v[14:15], v[14:15], {V(OO+10,2)}
v_rcp_f32 v10, v11
v_pk_add_f32 v[12:13], v[12:13], {V(OO+12,2)}
v_pk_add_f32 v[14:15], v[14:15], {V(OO+14,2)}
v_cmp_le_f32 s[70:71], {T0}, v11
v_pk_add_f32 v[12:13], v[12:13], v[14:15]
v_cmp_ge_f32 s[72:73], {T1}, v11
v_add_f32 v12, v12, v13
v_cmp_class_f32 vcc, v12, {T2}
s_and_b64 s[70:71], s[70:71], s[72:73]
s_and_b64 vcc, vcc, s[70:71]
s_cmp_eq_u64 vcc, exec""")
    if cfg.force_fb: a("s_cmp_eq_u32 0, 1")
    a(f"s_cbranch_scc0 L_fallback\nL_fbdone:\nv_mov_b32 v11, v10")
    for hf in range(2):
        for q in range(8*hf, 8*hf+8, 2): a(f"v_pk_mul_f32 {V(OO+q,2)}, {V(OO+q,2)}, v[10:11]")
        for q in range(4*hf, 4*hf+4): a(f"v_cvt_pk_bf16_f32 v{O+q}, v{OO+2*q}, v{OO+2*q+1}")
        if hf: a(f"s_mov_b32 exec_lo, 0\nv_mov_b32 v{O+6}, 0\ns_mov_b32 exec_lo, -1")
        a(f"buffer_store_dwordx4 {V(O+4*hf,4)}, v7, {sWS}, {T4} offen offset:{1024*hf} sc1")
    stamp(a, 10)
    a("s_waitcnt vmcnt(0)")
    flag(a, T3, 240)
    stamp(a, 12)
    dump_stamps(a, 240)
    a("s_endpgm")
    a("L_fallback:")
    QO = Q + 24; KB = KVB; M = 15; S_SO = "s70"
    a(f"v_mov_b32 v{M}, 0xff800000\ns_mov_b32 {S_SO}, {KV}\nL_fb1:")
    for s_ in kv_loads(0, S_SO)[:2]: a(s_)
    a(f"s_add_u32 {S_SO}, {S_SO}, {TS}\ns_waitcnt vmcnt(0)")
    a(mfma(SA, KB, QO)); a(mfma(SA, KB + 4, QO + 4, SA))
    for q in range(0, 16, 2): a(f"v_max3_f32 v{M}, v{M}, v{SA+q}, v{SA+q+1}")
    a(f"""s_cmp_lt_u32 {S_SO}, {KV + 64*TS}
s_cbranch_scc1 L_fb1
v_mov_b32 v14, v{M}
v_permlane32_swap_b32 v14, v{M}
v_max_f32 v{M}, v14, v{M}
s_mov_b32 {S_SO}, {KV}""")
    for q in range(16): a(f"v_mov_b32 v{OO+q}, 0")
    a("L_fb2:")
    for s_ in kv_loads(0, S_SO): a(s_)
    a(f"s_add_u32 {S_SO}, {S_SO}, {TS}\ns_waitcnt vmcnt(0)")
    a(mfma(SA, KB, QO)); a(mfma(SA, KB + 4, QO + 4, SA))
    for q in range(16): a(f"v_sub_f32 v{SA+q}, v{SA+q}, v{M}")
    for q in range(16): a(f"v_exp_f32 v{SA+q}, v{SA+q}")
    for q in range(8): a(f"v_cvt_pk_bf16_f32 v{P0+q}, v{SA+2*q}, v{SA+2*q+1}")
    a(mfma(OO, KB + 8, P0, OO)); a(mfma(OO, KB + 12, P1, OO))
    a(f"""s_cmp_lt_u32 {S_SO}, {KV + 64*TS}
s_cbranch_scc1 L_fb2
v_mov_b32 v10, v{OO+12}
v_mov_b32 v11, v{OO+12}
v_permlane32_swap_b32 v10, v11
v_rcp_f32 v10, v11
s_branch L_fbdone""")

def role_A(a):
    nh = cfg.nh; xh = 16 // nh
    assert nh <= 8
    FB = 16; MS = 48; M = 72; F = 88; ACC = 200; TMP = 216; WO = 72
    S_AI, S_B, S_KT16, S_BP = "s75", "s76", "s77", "s78"
    S_CG, S_CNT, S_CB, S_DT, S_TASK, S_KT32 = "s79", "s80", "s81", "s82", "s83", "s74"
    def albar(code): lbar(a, "v14", "v15", 5, code, sleep=1)
    a("L_roleA:")
    a(f"""v_lshrrev_b32 v2, 2, v1
s_mul_i32 {T0}, {S_IDX}, 14
v_add_u32 v2, {T0}, v2
v_min_u32 v2, 447, v2
v_mul_u32_u24 v2, 2688, v2
v_and_b32 v3, 3, v1
v_lshl_add_u32 v2, v3, 7, v2
s_and_b32 {T0}, {S_XCD}, {xh-1}
s_mul_i32 {T0}, {T0}, {56*nh}
s_and_b32 {T0}, {T0}, 0xffffff80
s_lshl_b32 {T1}, {S_IDX}, 4
v_add_u32 v3, {T1}, v1
v_lshlrev_b32 v3, 7, v3
s_getpc_b64 s[70:71]
L_pc:
s_sub_u32 s70, s70, L_pc-{NAME}_kernel
s_subb_u32 s71, s71, 0
s_waitcnt lgkmcnt(0)
s_load_dwordx2 s[62:63], s[20:21], {EPOCH}""")
    srd(a, sWQKV, 12, 448 * 2688)
    srd(a, sOUT, 70, f"L_codeend-{NAME}_kernel")
    a(f"""s_cmp_eq_u32 {S_W4}, 0
s_cbranch_scc0 L_pf1
buffer_load_dword v255, v2, {sWQKV}, {T0} offen
L_pf1:
s_cmp_eq_u32 {S_W4}, 1
s_cbranch_scc0 L_pf2
s_mov_b64 exec, 0xffff
buffer_load_dword v255, v3, {sOUT}, 0 offen
s_mov_b64 exec, -1
L_pf2:
s_add_u32 {S_AI}, {S_IDX}, 28
s_and_b32 {S_AI}, {S_AI}, 31
s_mul_i32 {T0}, {S_AI}, 9363
s_lshr_b32 {T0}, {T0}, 16                 ; aidx/7
s_mul_i32 {T1}, {T0}, 7
s_sub_u32 {S_KT32}, {S_AI}, {T1}
s_lshl_b32 {S_B}, {S_XCD}, 2
s_add_u32 {S_B}, {S_B}, {T0}
s_lshl_b32 {S_B}, {S_B}, 1
s_lshr_b32 {T0}, {S_W4}, 1
s_add_u32 {S_B}, {S_B}, {T0}              ; b
s_and_b32 {S_B}, {S_B}, 63
s_lshl_b32 {S_KT16}, {S_KT32}, 1
s_and_b32 {T0}, {S_W4}, 1
s_add_u32 {S_KT16}, {S_KT16}, {T0}
s_lshl_b32 {S_BP}, {S_XCD}, 3
s_lshr_b32 {T0}, {S_IDX}, 2
s_add_u32 {S_BP}, {S_BP}, {T0}
v_and_b32 v2, 31, v1                      ; v2 = lane%32
v_lshrrev_b32 v3, 5, v1                   ; v3 = half
v_cvt_f32_u32 v4, v3""")
    A0 = TMP; A1 = TMP + 8; C2 = TMP + 16
    a(f"""v_and_b32 v5, 15, v1
s_lshl_b32 {T0}, {S_KT16}, 4
v_add_u32 v5, {T0}, v5                    ; k
v_bfe_u32 v6, v1, 4, 1
v_lshl_add_u32 v7, v5, 1, v6
v_cmp_eq_u32 vcc, 1, v7
v_mov_b32 v7, 224
v_cndmask_b32 v5, v5, v7, vcc
v_cndmask_b32 v6, v6, 0, vcc
v_cvt_f32_u32 v5, v5
v_cvt_f32_u32 v6, v6
v_mul_f32 v5, {lit(1/448)}, v5            ; kf
v_mul_f32 v6, {lit(0.25)}, v6
v_mul_f32 v7, v5, v4
v_fmamk_f32 v6, v7, {lit(8.0)}, v6
v_mul_f32 v{C2}, {lit(16.0)}, v5
v_cos_f32 v{C2}, v{C2}""")
    for j in range(16):
        a(f"v_fmamk_f32 v{A0+j}, v5, {lit(float(j % 8 + 16 * (j // 8)))}, v6")
    a(f"v_add_f32 v{C2}, v{C2}, v{C2}")
    for j in range(16): a(f"v_cos_f32 v{A0+j}, v{A0+j}")
    a(f"v_mov_b32 v{C2+1}, v{C2}\n.p2align 3")
    for m in range(28):
        cur = A0 if m % 2 == 0 else A1; oth = A1 if m % 2 == 0 else A0
        if m >= 2:
            for q in range(0, 8, 2):
                a(f"v_pk_fma_f32 {V(cur+q,2)}, {V(C2,2)}, {V(oth+q,2)}, {V(cur+q,2)} neg_lo:[0,0,1] neg_hi:[0,0,1]")
        for q in range(4): a(f"v_cvt_pk_bf16_f32 v{F+4*m+q}, v{cur+2*q}, v{cur+2*q+1}")
    nonce(a)
    stamp(a, 1)
    a("s_barrier")
    srd(a, sWS, 20, WS_SIZE)
    srd(a, sX, 4, 2048 * 896); srd(a, sWR, 6, 2048 * 450); srd(a, sWI, 8, 2048 * 450)
    srd(a, sWO, 14, 448 * 896); srd(a, sOUT, 16, 2048 * 1792)
    a(f"""v_lshrrev_b32 v6, 3, v1
v_and_b32 v7, 7, v1
v_lshrrev_b32 v8, 4, v1
v_xor_b32 v7, v7, v8
v_xor_b32 v8, 4, v7
v_mul_u32_u24 v6, {64*896}, v6
s_and_b32 {T0}, {S_W4}, 1
s_mul_i32 {T1}, {T0}, {16*64*896}
s_mul_i32 {T2}, {S_B}, 896
s_add_u32 {T1}, {T1}, {T2}
v_add_u32 v6, {T1}, v6
v_lshl_add_u32 v12, v7, 4, v6
v_lshl_add_u32 v13, v8, 4, v6
v_add_u32 v13, {8*64*896}, v13
s_lshr_b32 {T2}, {S_W4}, 1
s_mul_i32 {T2}, {T2}, 28672
s_add_u32 {T2}, {T2}, {L_X}
s_lshl_b32 {T0}, {T0}, 11
s_add_u32 {T3}, {T2}, {T0}""")
    x_read_addrs(a, 8, "v1", T2, TMP)
    a(f"v_mov_b32 v14, {L_SYNC+128}\nv_mov_b32 v15, 1")
    def angles(n, vstep, vbase, offs, dst=TMP):
        for j in range(n): a(f"v_fmamk_f32 v{dst+j}, {vstep}, {lit(float(offs[j]))}, {vbase}")
    def gen_M():
        a(f"""v_cvt_f32_u32 v5, v2
v_lshlrev_b32 v6, 8, v3
v_add_u32 v6, {S_B}, v6
v_cvt_f32_u32 v6, v6
v_mul_f32 v6, v6, v5
v_mul_f32 v6, {lit(1/2048)}, v6
v_mul_f32 v5, {lit(1/32)}, v5""")
        angles(16, "v5", "v6", [16*(j//8) + 8*((j%8)//4) + j%4 for j in range(16)])
        for j in range(16): a(f"v_sin_f32 v{TMP+16+j}, v{TMP+j}\nv_cos_f32 v{TMP+j}, v{TMP+j}")
        for q in range(8): a(f"v_cvt_pk_bf16_f32 v{M+8+q}, -v{TMP+16+2*q}, -v{TMP+16+2*q+1}")
        for q in range(8): a(f"v_cvt_pk_bf16_f32 v{M+q}, v{TMP+2*q}, v{TMP+2*q+1}")
    def gen_MS():
        a(f"""v_lshlrev_b32 v5, 6, v2
v_add_u32 v5, {S_BP}, v5
v_cvt_f32_u32 v5, v5
v_mul_f32 v5, {lit(1/2048)}, v5
v_mul_f32 v6, v5, v4
v_mul_f32 v6, 4.0, v6""")
        angles(16, "v5", "v6", [8*(j//4) + j%4 for j in range(16)])
        for j in range(16): a(f"v_sin_f32 v{TMP+16+j}, v{TMP+j}\nv_cos_f32 v{TMP+j}, v{TMP+j}")
        for m in range(4):
            for q in range(2):
                c = TMP + 4*m + 2*q; s_ = c + 16
                a(f"v_cvt_pk_bf16_f32 v{MS+6*m+2+q}, v{s_}, v{s_+1}\nv_cvt_pk_bf16_f32 v{MS+6*m+q}, v{c}, v{c+1}\nv_cvt_pk_bf16_f32 v{MS+6*m+4+q}, -v{c}, -v{c+1}")
    def gen_FB():
        a(f"""v_and_b32 v5, 15, v1
s_lshl_b32 {T0}, {S_W4}, 4
v_add_u32 v5, {T0}, v5
v_cvt_f32_u32 v5, v5
v_mul_f32 v5, {lit(1/64)}, v5
v_bfe_u32 v6, v1, 4, 1
v_cvt_f32_u32 v6, v6
v_mul_f32 v6, {lit(0.25)}, v6
v_mul_f32 v7, v5, v4
v_fmamk_f32 v6, v7, {lit(4.0)}, v6""")
        for hh in range(2):
            angles(16, "v5", "v6", [8*((16*hh+j)//4) + j%4 for j in range(16)])
            for j in range(16): a(f"v_sin_f32 v{TMP+16+j}, v{TMP+j}\nv_cos_f32 v{TMP+j}, v{TMP+j}")
            for j in range(16): a(f"v_cvt_pk_bf16_f32 v{FB+16*hh+j}, v{TMP+j}, v{TMP+16+j}")
    gen_M(); gen_MS()
    stamp(a, 2)
    a("s_barrier")
    if cfg.noA == 1:
        stamp(a, 12); dump_stamps(a, 16); a("s_endpgm")
    a(f"s_cmp_ge_u32 {S_AI}, 28\ns_cbranch_scc1 L_noxa\ns_lshl_b32 {T1}, {S_KT32}, 7")
    for c in range(7):
        a(f"""s_lshl_b32 {T2}, {T1}, 5
s_add_u32 m0, {T3}, {T2}
s_add_u32 {T2}, {T2}, 1024
buffer_load_dwordx4 v12, {sX}, {T1} offen lds
s_add_u32 m0, {T3}, {T2}
s_add_u32 {T4}, {T1}, 128
buffer_load_dwordx4 v13, {sX}, {T1} offen lds
s_cmp_eq_u32 {T4}, 896
s_cselect_b32 {T1}, 0, {T4}""")
    a("L_noxa:")
    gen_FB()
    a(f"s_waitcnt vmcnt(0)")
    stamp(a, 3)
    albar(16)
    a(f"s_setprio {cfg.aprio}\ns_cmp_ge_u32 {S_AI}, 28\ns_cbranch_scc1 L_a1done")
    def xr(m): return f"ds_read_b128 {V(TMP+4*(m%8),4)}, v{8+m%4} offset:{(m//4)*4096}"
    for m in range(8): a(xr(m))
    for m in range(28):
        a(f"s_waitcnt lgkmcnt({min(7, 27-m)})")
        a(mfma(ACC, TMP + 4*(m % 8), F + 4*m, None if m == 0 else ACC))
        if m + 8 < 28: a(xr(m + 8))
    P1 = F; P2 = F + 16; XP = TMP
    a(f"""v_lshrrev_b32 v5, 2, v2
v_lshlrev_b32 v5, 13, v5
v_lshl_add_u32 v5, v3, 6, v5
v_and_b32 v6, 3, v1
v_lshl_add_u32 v5, v6, 4, v5
s_lshl_b32 {T0}, {S_KT16}, 17
s_lshl_b32 {T1}, {S_B}, 7
s_add_u32 {T0}, {T0}, {T1}
s_add_u32 {T0}, {T0}, {TBUF}
s_add_u32 {T2}, {T0}, 65536""")
    for q in range(8): a(f"v_cvt_pk_bf16_f32 v{XP+q}, v{ACC+2*q}, v{ACC+2*q+1}")
    a(mfma(P1, XP, M)); a(mfma(P2, XP, M + 8)); a(mfma(P1, XP + 4, M + 4, P1)); a(mfma(P2, XP + 4, M + 12, P2))
    for r in range(0, 8, 2):
        a(f"v_pk_add_f32 {V(ACC+r,2)}, {V(P1+r,2)}, {V(P2+r+8,2)} neg_lo:[0,1] neg_hi:[0,1]\nv_pk_add_f32 {V(ACC+8+r,2)}, {V(P1+r+8,2)}, {V(P2+r,2)}")
    for r in range(8): a(f"v_cvt_pk_bf16_f32 v{XP+8+r}, v{ACC+r}, v{ACC+8+r}")
    a(f"""s_cmp_lg_u32 {S_KT16}, 0
s_cbranch_scc1 L_a1st
s_mov_b32 exec_hi, 0
v_cvt_pk_bf16_f32 v{XP+8}, v{P1}, v{P2}
v_cvt_pk_bf16_f32 v6, v{P1+8}, v{P2+8}
s_add_u32 {T1}, {T1}, {TBUF + 224*8192}
buffer_store_dword v6, v5, {sWS}, {T1} offen sc1
s_mov_b32 exec_hi, -1
L_a1st:
buffer_store_dwordx4 {V(XP+8,4)}, v5, {sWS}, {T0} offen sc1
buffer_store_dwordx4 {V(XP+12,4)}, v5, {sWS}, {T2} offen sc1
s_lshl_b32 {T0}, {S_KT16}, 6
s_add_u32 {T0}, {T0}, {S_B}
s_lshl_b32 {T0}, {T0}, 7
s_add_u32 {T0}, {T0}, {FA1}
s_waitcnt vmcnt(0)""")
    flag(a, T0, 10)
    a("L_a1done:")
    stamp(a, 4)
    a(f"""s_cmp_ge_u32 {S_W4}, 2
s_cbranch_scc1 L_pf3
v_bfe_u32 v5, v1, 4, 1
v_mul_u32_u24 v5, 14400, v5
v_and_b32 v6, 15, v1
v_lshl_add_u32 v5, v6, 7, v5
s_mul_i32 {T0}, {S_IDX}, 28800
s_mul_i32 {T1}, {S_XCD}, 1800
s_add_u32 {T0}, {T0}, {T1}
s_mov_b32 exec_hi, 0
s_cmp_eq_u32 {S_W4}, 0
s_cbranch_scc0 L_pf4
buffer_load_ushort v255, v5, {sWR}, {T0} offen
s_branch L_pf5
L_pf4:
buffer_load_ushort v255, v5, {sWI}, {T0} offen
s_branch L_pf5
L_pf3:
v_lshlrev_b32 v5, 7, v1
s_lshl_b32 {T0}, {S_IDX}, 1
s_add_u32 {T0}, {T0}, {S_W4}
s_sub_u32 {T0}, {T0}, 2
s_mul_i32 {T0}, {T0}, {49*128}
s_bfm_b64 exec, 49, 0
buffer_load_dword v255, v5, {sWO}, {T0} offen
L_pf5:
s_mov_b64 exec, -1""")
    a(f"""s_and_b32 {S_CG}, {S_IDX}, 3
s_cmp_ge_u32 {S_CG}, 2
s_cselect_b32 {S_CNT}, 3, 4
s_lshl_b32 {S_CB}, {S_CG}, 2
s_cmp_eq_u32 {S_CG}, 3
s_cselect_b32 {S_CB}, 11, {S_CB}
s_add_u32 {S_DT}, {S_CB}, {S_W4}
v_lshrrev_b32 v5, 4, v1
v_bfe_u32 v6, v1, 2, 2
v_xor_b32 v6, v6, v5
s_sub_u32 {T0}, {S_CNT}, 1
v_min_u32 v6, {T0}, v6
v_add_u32 v6, {S_CB}, v6
v_lshlrev_b32 v6, 6, v6
v_mul_u32_u24 v5, 896, v5
v_add_u32 v5, v5, v6
v_and_b32 v6, 3, v1
v_lshl_add_u32 v13, v6, 4, v5
s_mul_i32 {T4}, {S_W4}, {4*896}
v_add_u32 v13, {T4}, v13
v_lshlrev_b32 v7, 4, v1                   ; v7 = lane*16""")
    def wo_issue(rnd):
        a(f"s_lshl_b32 {T3}, {S_W4}, 10\ns_add_u32 {T3}, {T3}, {L_X}")
        for i in range(14):
            a(f"s_add_u32 m0, {T3}, {i*4096}\ns_mov_b32 {T1}, {(rnd*224 + i*16)*896}\nbuffer_load_dwordx4 v13, {sWO}, {T1} offen lds")
    def wo_read(rnd):
        a(f"""v_bfe_u32 v5, v1, 2, 2
v_xor_b32 v6, {S_W4}, v5
v_lshlrev_b32 v6, 6, v6
v_lshl_add_u32 v5, v5, 8, v6
v_and_b32 v6, 1, v1
v_lshl_add_u32 v5, v6, 5, v5
v_bfe_u32 v6, v1, 4, 1
v_lshl_add_u32 v5, v6, 4, v5
v_bfe_u32 v6, v1, 1, 1
v_lshl_add_u32 v5, v6, 3, v5
v_add_u32 v9, {L_X}, v5
v_lshl_add_u32 v8, v3, 10, v9
s_waitcnt vmcnt(0)""")
        albar(4)
        for hl in range(8):
            for mu in range(2):
                for sec in range(2):
                    d = WO + (rnd*8 + hl)*8 + mu*4 + sec*2
                    a(f"ds_read_b64_tr_b16 {V(d,2)}, v{9 if (mu and sec) else 8} offset:{(28*hl + 16*mu + 8*sec)*256}")
        a("s_waitcnt lgkmcnt(0)")
        albar(13)
    WW = 200; AC = 216; FR = 232; TP = 248
    a(f"""v_bfe_u32 v5, v1, 2, 2
s_lshl_b32 {T0}, {S_XCD}, 2
v_add_u32 v5, {T0}, v5                    ; c
v_bfe_u32 v6, v1, 4, 1
v_and_b32 v8, 3, v1
v_lshl_add_u32 v6, v6, 2, v8
s_lshl_b32 {T0}, {S_AI}, 3
v_add_u32 v6, {T0}, v6                    ; k
v_lshl_add_u32 v5, v3, 7, v5
s_lshl_b32 {T0}, {S_W4}, 9
v_add_u32 v5, {T0}, v5                    ; u for r=0
v_mul_u32_u24 v5, 225, v5
v_add_lshl_u32 v12, v5, v6, 1""")
    for r in range(16): a(f"v_mov_b32 v{WW+r}, 0")
    a("s_waitcnt vmcnt(0)")
    albar(3)
    a(f"s_cmp_ge_u32 {S_AI}, 29\ns_cbranch_scc1 L_now")
    for r in range(8):
        a(f"""s_mov_b32 {T0}, {14400*(8*(r//4) + r%4)}
buffer_load_short_d16_hi v{WW+r}, v12, {sWR}, {T0} offen
buffer_load_short_d16_hi v{WW+8+r}, v12, {sWI}, {T0} offen""")
    a("L_now:")
    wo_issue(0); wo_read(0)
    stamp(a, 5)
    a(f"""s_cmp_ge_u32 {S_AI}, 29
s_cbranch_scc1 L_a2done
s_lshl_b32 {S_TASK}, {S_AI}, 3
s_add_u32 {S_TASK}, {S_TASK}, {S_XCD}
s_lshr_b32 {T4}, {S_AI}, 1
s_cmp_eq_u32 {S_AI}, 28
s_cselect_b32 {T4}, 0, {T4}
v_and_b32 v6, 15, v1
v_lshlrev_b32 v6, 7, v6
s_lshl_b32 {T4}, {T4}, 13
s_lshl_b32 {T1}, {S_W4}, 11
s_add_u32 {T4}, {T4}, {T1}
s_add_u32 {T4}, {T4}, {FA1}""")
    if cfg.a2wait: a(f"s_sleep {cfg.a2wait}")
    poll(a, "v6", T4, TP, 5, sleep=16)
    stamp(a, 6)
    a(f"""v_lshlrev_b32 v5, 2, v2
v_lshl_add_u32 v5, v3, 9, v5
s_lshl_b32 {T0}, {S_TASK}, 13
s_add_u32 {T0}, {T0}, {T1}
s_add_u32 {T0}, {T0}, {TBUF}""")
    for q in range(8):
        a(f"buffer_load_dword v{FR+q}, v5, {sWS}, {T0} offen offset:{(q//4)*1024 + (q%4)*128} sc1")
    a(f"""v_add_u32 v6, {T1}, v7
s_cmp_eq_u32 {S_AI}, 28
s_cbranch_scc0 L_a2nx""")
    for r in range(8):
        a(f"v_mov_b32 v{TP}, v{WW+r}\nv_xor_b32 v{WW+r}, 0x80000000, v{WW+8+r}\nv_mov_b32 v{WW+8+r}, v{TP}")
    a(f"""L_a2nx:
s_waitcnt vmcnt(0)
ds_write_b128 v6, {V(FR,4)} offset:{L_TB}
ds_write_b128 v6, {V(FR+4,4)} offset:{L_TB+1024}""")
    albar(6)
    def dft64(vaddr, base, data_is_b):
        for m in range(4): a(f"ds_read_b128 {V(FR+4*m,4)}, {vaddr} offset:{base + m*1024}")
        for m in range(8):
            a(f"s_waitcnt lgkmcnt({min(3, 7-m)})")
            fr = FR + 4*(m % 4)
            a(mfma(AC, FB + 4*m, fr, None if m == 0 else AC) if data_is_b else mfma(AC, fr, FB + 4*m, None if m == 0 else AC))
            if m < 4: a(f"ds_read_b128 {V(fr,4)}, {vaddr} offset:{base + (m+4)*1024}")
    dft64("v7", L_TB, True)
    a(f"""v_and_b32 v5, 0x30, v1
v_and_b32 v8, 3, v1
v_lshl_add_u32 v5, v8, 2, v5
v_bfe_u32 v8, v1, 2, 2
v_add_u32 v5, v5, v8
v_lshlrev_b32 v8, 4, v5
v_add_u32 v8, {L_YB}, v8
v_add_u32 v6, {L_YB}, v6""")
    for r in range(0, 8, 2):
        a(f"""v_pk_mul_f32 {V(FR+r,2)}, {V(AC+r,2)}, {V(WW+r,2)}
v_pk_mul_f32 {V(FR+8+r,2)}, {V(AC+r,2)}, {V(WW+8+r,2)}
v_pk_fma_f32 {V(FR+r,2)}, {V(AC+8+r,2)}, {V(WW+8+r,2)}, {V(FR+r,2)} neg_lo:[1,0,0] neg_hi:[1,0,0]
v_pk_fma_f32 {V(FR+8+r,2)}, {V(AC+8+r,2)}, {V(WW+r,2)}, {V(FR+8+r,2)} neg_lo:[1,0,1] neg_hi:[1,0,1]
v_cvt_pk_bf16_f32 v{TP+r}, v{FR+r}, v{FR+8+r}
v_cvt_pk_bf16_f32 v{TP+r+1}, v{FR+r+1}, v{FR+8+r+1}""")
    a(f"ds_write_b128 v6, {V(TP,4)}\nds_write_b128 v6, {V(TP+4,4)} offset:1024")
    albar(7)
    dft64("v8", 0, False)
    a(f"""v_and_b32 v5, 15, v1
v_lshlrev_b32 v5, 7, v5
v_lshl_add_u32 v5, v3, 4, v5
v_bfe_u32 v6, v1, 4, 1
v_lshl_add_u32 v5, v6, 3, v5
s_lshl_b32 {T1}, {S_W4}, 11
s_add_u32 {T1}, {T1}, {L_UB}
v_add_u32 v5, {T1}, v5
v_add_u32 v6, {T1}, v7
v_lshrrev_b32 v8, 3, v1
v_lshlrev_b32 v8, 15, v8
v_and_b32 v9, 7, v1
v_lshl_add_u32 v8, v9, 4, v8
s_lshr_b32 {T0}, {S_AI}, 2
s_lshl_b32 {T0}, {T0}, 12
s_and_b32 {T1}, {S_AI}, 3
s_lshl_b32 {T1}, {T1}, 7
s_add_u32 {T0}, {T0}, {T1}
s_lshl_b32 {T1}, {S_XCD}, 9
s_add_u32 {T0}, {T0}, {T1}
s_add_u32 {T0}, {T0}, {UBUF}
s_lshl_b32 {T1}, {S_W4}, 19
s_add_u32 {T0}, {T0}, {T1}
s_add_u32 {T2}, {T0}, {8*USTR}""")
    for q in range(8): a(f"v_cvt_pk_bf16_f32 v{TP+q}, v{AC+2*q}, v{AC+2*q+1}")
    for g in range(4): a(f"ds_write_b64 v5, {V(TP+2*g,2)} offset:{g*32}")
    a(f"""ds_read_b128 {V(FR,4)}, v6
ds_read_b128 {V(FR+4,4)}, v6 offset:1024
s_waitcnt lgkmcnt(1)
buffer_store_dwordx4 {V(FR,4)}, v8, {sWS}, {T0} offen sc1
s_waitcnt lgkmcnt(0)
buffer_store_dwordx4 {V(FR+4,4)}, v8, {sWS}, {T2} offen sc1
s_lshl_b32 {T0}, {S_W4}, 8
s_add_u32 {T0}, {T0}, {S_TASK}
s_lshl_b32 {T0}, {T0}, 7
s_add_u32 {T0}, {T0}, {FA2}
s_waitcnt vmcnt(0)""")
    flag(a, T0, 10)
    a("L_a2done:")
    stamp(a, 7)
    wo_issue(1); wo_read(1)
    U0 = 16; U1 = 32; AR = 200; AI = 216; UE = 232
    S_K1 = "s74"
    a(f"""s_add_u32 {S_K1}, {S_W4}, 3
s_cmp_eq_u32 {S_W4}, 0
s_cselect_b32 {S_K1}, 7, {S_K1}
s_sub_u32 {T0}, {S_K1}, {S_W4}
v_mul_u32_u24 v5, {T0}, v3
v_add_u32 v5, {S_W4}, v5
v_lshl_add_u32 v5, v5, 5, v2
v_min_u32 v5, 231, v5
v_lshlrev_b32 v5, 7, v5
s_lshr_b32 {T4}, {S_BP}, 4
s_lshl_b32 {T4}, {T4}, 15
s_add_u32 {T4}, {T4}, {FA2}""")
    if cfg.a3wait: a(f"s_sleep {cfg.a3wait}")
    poll(a, "v5", T4, 248, 8, sleep=16)
    stamp(a, 8)
    a(f"""s_lshl_b32 {T0}, {S_BP}, 15
s_add_u32 {T0}, {T0}, {UBUF}
s_lshl_b32 {T1}, {S_W4}, 12
s_lshl_b32 {T3}, {S_K1}, 12
s_add_u32 {T2}, {T0}, {T3}
s_add_u32 {T0}, {T0}, {T1}""")
    for m in range(4): a(f"buffer_load_dwordx4 {V(U0+4*m,4)}, v7, {sWS}, {T0} offen offset:{m*1024} sc1")
    for m in range(4): a(f"buffer_load_dwordx4 {V(U1+4*m,4)}, v7, {sWS}, {T2} offen offset:{m*1024} sc1")
    a(f"""v_add_u32 v8, {L_ZB}, v7
v_add_u32 v6, {T1}, v8
v_add_u32 v9, {T3}, v8""")
    def step6(ur, ui, va):
        for m in range(4):
            a(mfma(AR, ur + 4*m, MS + 6*m, None if m == 0 else AR)); a(mfma(AI, ui + 4*m, MS + 6*m + 2, None if m == 0 else AI))
        for q in range(16): a(f"v_cvt_pk_bf16_f32 v{UE+q}, v{AR+2*q}, v{AR+2*q+1}")
        for q in range(4): a(f"ds_write_b128 {va}, {V(UE+4*q,4)} offset:{q*1024}")
    a(f"s_cmp_eq_u32 {S_W4}, 0\ns_cbranch_scc1 L_a3w0\ns_waitcnt vmcnt(4)")
    step6(U0, U0, "v6")
    a("s_waitcnt vmcnt(0)")
    step6(U1, U1, "v9")
    a("s_branch L_a3z\nL_a3w0:\ns_waitcnt vmcnt(0)\ns_mov_b32 exec_lo, -2\ns_mov_b32 exec_hi, -2")
    for q in range(16): a(f"v_mov_b32 v{U1+q}, v{U0+q}")
    a("s_mov_b64 exec, -1")
    step6(U0, U1, "v6")
    a("L_a3z:")
    albar(10)
    stamp(a, 9)
    L, Dn = a.lab("we"), a.lab("wed")
    a(f"""s_setprio 0
v_mov_b32 v6, {L_SYNC}
s_mov_b32 {S_TO}, {cfg.poll_limit * 8}
{L}:
ds_read_b32 v5, v6
s_waitcnt lgkmcnt(0)
v_readfirstlane_b32 {T0}, v5
s_cmp_ge_u32 {T0}, 12
s_cbranch_scc1 {Dn}
s_sleep 3
s_sub_u32 {S_TO}, {S_TO}, 1
s_cbranch_scc0 {L}
s_mov_b32 {S_TO}, 17
s_branch L_fail
{Dn}:""")
    stamp(a, 10)
    ZR = 216; GS = 16; GP = 48; GC = 64
    sc = 1.0 / (2048 * 448)
    def zr(s_, va="v8"): return f"ds_read_b128 {V(ZR+4*(s_%8),4)}, {va} offset:{s_*1024}"
    order = [4*(q//4) + 2*(q % 2) + ((q//2) % 2) for q in range(28)]
    for q in range(8): a(f"ds_read_b128 {V(ZR+4*q,4)}, v8 offset:{order[q]*1024}")
    a(f"""v_bfe_u32 v5, v1, 2, 1
v_lshlrev_b32 v5, 4, v5
v_bfe_u32 v6, v1, 3, 2
v_lshl_add_u32 v5, v6, 2, v5
v_and_b32 v6, 3, v1
v_add_u32 v5, v5, v6
s_lshl_b32 {T0}, {S_DT}, 5
v_add_u32 v5, {T0}, v5                    ; d
v_lshlrev_b32 v9, 31, v5
v_xor_b32 v9, {lit(sc)}, v9               ; sc*(-1)^d
v_cvt_f32_u32 v5, v5
v_mul_f32 v5, {lit(1/448)}, v5
v_mul_f32 v6, v5, v4
v_mul_f32 v6, 4.0, v6
v_mul_f32 v{GC}, {lit(16.0)}, v5
v_cos_f32 v{GC}, v{GC}
v_mov_b32 v10, {lit(2*sc)}
v_mov_b32 v11, {lit(2*sc)}
v_mov_b32 v12, {lit(sc)}""")
    angles(16, "v5", "v6", [16*(j//8) + 8*((j%8)//4) + j%4 for j in range(16)], GS)
    a(f"v_add_f32 v{GC}, v{GC}, v{GC}")
    for j in range(16): a(f"v_sin_f32 v{GS+16+j}, v{GS+j}\nv_cos_f32 v{GS+j}, v{GS+j}")
    a(f"v_mov_b32 v{GC+1}, v{GC}\n.p2align 3")
    for j in range(0, 16, 2):
        a(f"v_pk_mul_f32 {V(GS+j,2)}, {V(GS+j,2)}, v[10:11]\nv_pk_mul_f32 {V(GS+16+j,2)}, {V(GS+16+j,2)}, v[10:11] neg_lo:[1,0] neg_hi:[1,0]")
    for q in range(28):
        rho = q % 2; st = q // 2
        cur = GS + 16*rho + 8*(st % 2); oth = GS + 16*rho + 8*((st + 1) % 2); gp = GP + 4*(q % 4)
        if st >= 2:
            for z in range(0, 8, 2):
                a(f"v_pk_fma_f32 {V(cur+z,2)}, {V(GC,2)}, {V(oth+z,2)}, {V(cur+z,2)} neg_lo:[0,0,1] neg_hi:[0,0,1]")
        for z in range(4): a(f"v_cvt_pk_bf16_f32 v{gp+z}, v{cur+2*z}, v{cur+2*z+1}")
        if st == 0:
            a(f"s_mov_b32 exec_hi, 0\nv_cvt_pk_bf16_f32 v{gp}, v{9 if rho else 12}, v{cur+1}\ns_mov_b32 exec_hi, -1")
        if q >= 1:
            p = q - 1
            a(f"s_waitcnt lgkmcnt({min(7, 27-p)})")
            a(mfma(AR, GP + 4*(p % 4), ZR + 4*(p % 8), None if p == 0 else AR))
            if p + 8 < 28: a(f"ds_read_b128 {V(ZR+4*(p%8),4)}, v8 offset:{order[p+8]*1024}")
    a("s_waitcnt lgkmcnt(0)")
    a(mfma(AR, GP + 4*(27 % 4), ZR + 4*(27 % 8), AR))
    def out_store(rowmul, colbase, skip):
        a(f"""v_mul_u32_u24 v5, {rowmul}, v2
v_lshl_add_u32 v5, v3, 5, v5
s_lshl_b32 {T1}, {S_DT}, 6
s_add_u32 {T0}, {T0}, {T1}
s_add_u32 {T0}, {T0}, {colbase}
s_cmp_ge_u32 {S_W4}, {S_CNT}
s_cbranch_scc1 {skip}""")
        for q in range(4): a(f"v_cvt_pk_bf16_f32 v{248+q}, v{AR+2*q}, v{AR+2*q+1}")
        a(f"buffer_store_dwordx4 v[248:251], v5, {sOUT}, {T0} offen")
        for q in range(4, 8): a(f"v_cvt_pk_bf16_f32 v{248+q}, v{AR+2*q}, v{AR+2*q+1}")
        a(f"buffer_store_dwordx4 v[252:255], v5, {sOUT}, {T0} offen offset:16\n{skip}:")
    a(f"s_mul_i32 {T0}, {S_BP}, 1792")
    out_store(64 * 1792, 0, "L_a3done")
    stamp(a, 11)
    a(f"""v_and_b32 v5, 3, v1
v_lshlrev_b32 v5, 7, v5
s_lshl_b32 {T4}, {S_BP}, 2
s_add_u32 {T4}, {T4}, {S_W4}
s_lshl_b32 {T3}, {T4}, 13
s_add_u32 {T3}, {T3}, {OBUF}
s_add_u32 {T2}, {T3}, 4096
s_lshl_b32 {T4}, {T4}, 9
s_add_u32 {T4}, {T4}, {FO}""")
    if cfg.owait: a(f"s_sleep {cfg.owait}")
    poll(a, "v5", T4, 246, 11, sleep=2)
    stamp(a, 13)
    for q in range(8):
        a(f"buffer_load_dwordx4 {V(16+4*q,4)}, v7, {sWS}, {T3 if q < 4 else T2} offen offset:{(q%4)*1024} sc1")
    a(f"""s_lshl_b32 {T1}, {S_W4}, 13
s_add_u32 {T1}, {T1}, {L_OB}
v_add_u32 v9, {T1}, v7
v_add_u32 v6, {L_OB}, v7""")
    for q in range(8):
        a(f"s_waitcnt vmcnt({7-q})\nds_write_b128 v9, {V(16+4*q,4)} offset:{q*1024}")
    lbar(a, "v14", "v15", 5, 12)
    for s_ in range(8): a(zr(s_, "v6"))
    for s_ in range(32):
        a(f"s_waitcnt lgkmcnt({min(7, 31-s_)})")
        a(mfma(AR, WO + 4*s_, ZR + 4*(s_ % 8), None if s_ == 0 else AR))
        if s_ + 8 < 32: a(zr(s_ + 8, "v6"))
    a(f"s_mul_i32 {T0}, {S_BP}, {32*1792}")
    out_store(1792, 896, "L_b3done")
    a(f"""s_lshl_b32 {T0}, s2, 2
s_add_u32 {T0}, {T0}, {S_W4}
s_cmp_lg_u32 {T0}, 0
s_cbranch_scc1 L_noep
s_mov_b32 {T0}, {EPOCH}""")
    flag(a, T0, 10)
    a("L_noep:")
    stamp(a, 12)
    dump_stamps(a, 16)
    a("s_endpgm")

def build():
    nh = cfg.nh; xh = 16 // nh
    for wg in range(256):
        xcd, idx = wg & 7, wg >> 3
        h = (xcd % xh) * nh + idx % nh
        assert ((idx + 28) & 31) < 28 or h < 14
    a = Asm()
    prologue(a); role_B(a); role_A(a)
    a(f"""L_fail:
v_mov_b32 v0, 0
v_mov_b32 v1, {S_TO}
global_store_dword v0, v1, s[18:19]
L_end:
s_endpgm
L_codeend:""")
    a.pad()
    hdr = open("cdna_kernels/" + NAME + ".s.ref").read().split("; Override launch")[0]
    s = hdr + f"; @launch grid=(256,1,1) block=(512,1,1) lds={LDS_SIZE}\n"
    s += f""".amdgcn_target "amdgcn-amd-amdhsa--gfx950"
.text
.globl {NAME}_kernel
.p2align 8
.type {NAME}_kernel,@function
{NAME}_kernel:
""" + a.text() + f""".section .rodata,"a"
.p2align 6
.amdhsa_kernel {NAME}_kernel
  .amdhsa_next_free_vgpr 256
  .amdhsa_next_free_sgpr 102
  .amdhsa_accum_offset 256
  .amdhsa_group_segment_fixed_size 0
  .amdhsa_kernarg_size 72
  .amdhsa_user_sgpr_count 2
  .amdhsa_user_sgpr_kernarg_segment_ptr 1
  .amdhsa_system_sgpr_workgroup_id_x 1
.end_amdhsa_kernel
"""
    return s

if __name__ == "__main__":
    out = sys.argv[1]
    for kv in sys.argv[2:]:
        k, v = kv.split("=")
        setattr(cfg, k, type(getattr(cfg, k))(int(v)))
    open(out, "w").write(build())
```

```python
import sys, math, struct
from asmlib import Asm

NAME = "concat_heads__spectral_gfnet__softmax_full_mha__prompt"

class Cfg:
    nh = 8
    stamps = False
    poll_limit = 1 << 17
    noA = 0
    dbgwave = -1
    nbuf = 6
    a2wait = 0
    a3wait = 16
    kvwait = 0
    owait = 24
    aprio = 2
    force_fb = False
cfg = Cfg()

EPOCH = 0
KV = 0x10000; TS = 61440; VOFF = 28672
OBUF = 0x400000
TBUF = 0x600000
UBUF = 0x800000; USTR = 32768
FKV = 0xA00000; FA1 = 0xA20000; FA2 = 0xA40000; FO = 0xA60000
STAMP = 0xB00000
WS_SIZE = 0x1000000
L_W = 0; L_WQ = 57344; L_X = 86016; L_Q = 151552; L_SYNC = 159744
LDS_SIZE = 160000
L_RED = 0
L_TB = L_WQ; L_YB = L_WQ + 8192; L_UB = L_WQ + 16384
L_ZB = L_X; L_OB = L_X + 28672
sWS, sWQKV, sX, sWR, sWI, sWO, sOUT = [f"s[{i}:{i+3}]" for i in (24, 28, 32, 36, 40, 44, 48)]
S_WAVE, S_XCD, S_IDX, S_H, S_R, S_W4 = "s56", "s57", "s58", "s59", "s60", "s61"
S_NONCE = "s[62:63]"
S_TO, S_BAR = "s64", "s65"
T0, T1, T2, T3, T4, T5 = "s66", "s67", "s68", "s69", "s22", "s23"
STAMP0 = 84

def f2u(x): return struct.unpack("<I", struct.pack("<f", x))[0]
def lit(x): return "0x%08x" % f2u(x)
def V(a, n=1): return f"v{a}" if n == 1 else f"v[{a}:{a+n-1}]"

def srd(a, name, lo, size):
    i = int(name[2:name.index(":")])
    a(f"s_mov_b32 s{i}, s{lo}\ns_mov_b32 s{i+1}, s{lo+1}\ns_mov_b32 s{i+2}, {size}\ns_mov_b32 s{i+3}, 0x20000")

def stamp(a, i):
    if cfg.stamps:
        a(f"s_memtime s[100:101]\ns_waitcnt lgkmcnt(0)\ns_mov_b32 s{STAMP0+i}, s100")

def dump_stamps(a, vt):
    if not cfg.stamps: return
    a(f"s_memrealtime s[100:101]\ns_waitcnt lgkmcnt(0)\ns_mov_b32 s{STAMP0+14}, s100")
    if cfg.dbgwave >= 0:
        L = a.lab("nodbg")
        a(f"s_lshl_b32 {T0}, s2, 3\ns_add_u32 {T0}, {T0}, {S_WAVE}\ns_cmp_lg_u32 {T0}, {cfg.dbgwave}\ns_cbranch_scc1 {L}")
        a(f"v_mov_b32 v{vt+4}, 0\ns_mov_b64 exec, 1")
        for i in range(1, 16):
            a(f"s_sub_u32 {T1}, s{STAMP0+i}, s{STAMP0 + (15 if i >= 14 else 0)}\nv_mov_b32 v{vt}, {T1}\nglobal_store_dword v{vt+4}, v{vt}, s[18:19] offset:{4*i}")
        a(f"s_mov_b64 exec, -1\n{L}:")
    a(f"s_lshl_b32 {T0}, s2, 3\ns_add_u32 {T0}, {T0}, {S_WAVE}\ns_lshl_b32 {T0}, {T0}, 7\ns_add_u32 {T0}, {T0}, {STAMP}")
    a(f"v_mov_b32 v{vt+4}, 0\ns_mov_b64 exec, 1")
    for q in range(4):
        for i in range(4): a(f"v_mov_b32 v{vt+i}, s{STAMP0+4*q+i}")
        a(f"buffer_store_dwordx4 {V(vt,4)}, v{vt+4}, {sWS}, {T0} offen offset:{16*q}")
    a("s_mov_b64 exec, -1")

def poll(a, vaddr, soff, vt, code, sleep=2):
    L, Dn = a.lab("poll"), a.lab("polld")
    a(f"""s_mov_b32 {S_TO}, {cfg.poll_limit}
{L}:
buffer_load_dwordx2 {V(vt,2)}, {vaddr}, {sWS}, {soff} offen sc1
s_waitcnt vmcnt(0)
v_cmp_ne_u64 vcc, {S_NONCE}, {V(vt,2)}
s_cbranch_vccz {Dn}
s_sleep {sleep}
s_sub_u32 {S_TO}, {S_TO}, 1
s_cbranch_scc0 {L}
s_mov_b32 {S_TO}, {code}
s_branch L_fail
{Dn}:""")

def flag(a, soff, vt):
    a(f"""v_mov_b32 v{vt}, s62
v_mov_b32 v{vt+1}, s63
v_mov_b32 v{vt+2}, 0
s_mov_b64 exec, 1
buffer_store_dwordx2 {V(vt,2)}, v{vt+2}, {sWS}, {soff} offen sc1
s_mov_b64 exec, -1""")

def lbar(a, vsync, vone, vt, code, sleep=0):
    L, Dn = a.lab("lb"), a.lab("lbd")
    a(f"""s_add_u32 {S_BAR}, {S_BAR}, 4
s_mov_b64 exec, 1
ds_add_u32 {vsync}, {vone}
s_mov_b64 exec, -1
s_mov_b32 {S_TO}, {cfg.poll_limit * 8}
{L}:
ds_read_b32 v{vt}, {vsync}
s_waitcnt lgkmcnt(0)
v_readfirstlane_b32 {T0}, v{vt}
s_cmp_ge_u32 {T0}, {S_BAR}
s_cbranch_scc1 {Dn}
{"s_sleep %d" % sleep if sleep else ""}
s_sub_u32 {S_TO}, {S_TO}, 1
s_cbranch_scc0 {L}
s_mov_b32 {S_TO}, {code}
s_branch L_fail
{Dn}:""")

def mfma(d, A, B, C=None):
    return f"v_mfma_f32_32x32x16_bf16 {V(d,16)}, {V(A,4)}, {V(B,4)}, {'0' if C is None else V(C,16)}"

def mod7(a, s, t):
    a(f"s_mul_i32 {t}, {s}, 9363\ns_lshr_b32 {t}, {t}, 16\ns_mul_i32 {t}, {t}, 7\ns_sub_u32 {s}, {s}, {t}")

def x_read_addrs(a, v0, vl, base_s, t):
    a(f"""v_and_b32 v{t}, 31, {vl}
v_lshrrev_b32 v{t+1}, 5, {vl}
v_bfe_u32 v{t+2}, {vl}, 1, 3
v_xor_b32 v{t+1}, v{t+1}, v{t+2}
v_lshlrev_b32 v{t}, 7, v{t}
v_add_u32 v{t}, {base_s}, v{t}""")
    for mm in range(4):
        a(f"v_xor_b32 v{t+2}, {2*mm}, v{t+1}\nv_lshl_add_u32 v{v0+mm}, v{t+2}, 4, v{t}")


S_HH, S_RR, S_J = "s52", "s53", "s54"

def prologue(a):
    nh = cfg.nh; nr = 32 // nh; xh = 16 // nh
    lg = lambda x: x.bit_length() - 1
    a(f"""s_cmp_ge_u32 s2, 256
s_cbranch_scc1 L_end
s_load_dwordx16 s[4:19], s[0:1], 0
s_load_dwordx2 s[20:21], s[0:1], 64""")
    if cfg.stamps:
        a(f"s_memrealtime s[100:101]\ns_waitcnt lgkmcnt(0)\ns_mov_b32 s{STAMP0+15}, s100")
        for i in range(15): a(f"s_mov_b32 s{STAMP0+i}, 0")
        stamp(a, 0)
    a(f"""v_lshrrev_b32 v2, 6, v0
v_and_b32 v1, 63, v0
v_readfirstlane_b32 {S_WAVE}, v2
s_and_b32 {S_XCD}, s2, 7
s_lshr_b32 {S_IDX}, s2, 3
s_and_b32 {S_W4}, {S_WAVE}, 3
s_mov_b32 {S_BAR}, 0
s_cmp_ge_u32 {S_WAVE}, 4
s_cbranch_scc1 L_roleA""")

def nonce(a):
    a(f"""s_waitcnt lgkmcnt(0)
s_mul_i32 s62, s62, 0x9E3779B1
s_add_u32 s62, s62, 0x7F4A7C15
s_mul_i32 s63, s63, 0x85EBCA6D
s_add_u32 s63, s63, 0x165667B1""")

def role_B(a):
    nh = cfg.nh; nr = 32 // nh; xh = 16 // nh
    lg = lambda x: x.bit_length() - 1
    ra = {2: 3, 4: 2, 8: 1, 16: 1}[nh]
    X = 16; ACC = 128; WB = 160; PK = 224
    SC = 70
    S_XL, S_TILE, S_I = "s77", "s78", "s79"
    TO = 36
    a(f"""s_setprio 3
s_and_b32 {S_HH}, {S_IDX}, {nh-1}
s_lshr_b32 {S_RR}, {S_IDX}, {lg(nh)}
s_and_b32 {S_H}, {S_XCD}, {xh-1}
s_lshl_b32 {S_H}, {S_H}, {lg(nh)}
s_add_u32 {S_H}, {S_H}, {S_HH}
s_lshr_b32 {S_R}, {S_XCD}, {lg(xh)}
s_lshl_b32 {S_R}, {S_R}, {lg(nr)}
s_add_u32 {S_R}, {S_R}, {S_RR}
s_cmp_ge_u32 {S_H}, 14
s_cselect_b32 {T0}, 14, 0
s_sub_u32 {S_J}, {S_H}, {T0}
s_lshl_b32 {S_TILE}, {S_R}, 2
s_add_u32 {S_TILE}, {S_TILE}, {S_W4}
v_lshrrev_b32 v8, 3, v1
v_and_b32 v9, 7, v1
v_lshrrev_b32 v10, 4, v1
v_xor_b32 v10, v9, v10
v_xor_b32 v11, 4, v10
v_mul_u32_u24 v12, 896, v8
s_mul_i32 {T0}, {S_TILE}, {32*896}
v_add_u32 v12, {T0}, v12
v_lshl_add_u32 v4, v10, 4, v12
v_lshl_add_u32 v5, v11, 4, v12
v_add_u32 v5, {8*896}, v5
v_add_u32 v6, {16*896}, v4
v_add_u32 v7, {16*896}, v5
v_mul_u32_u24 v2, 2688, v8
v_bfe_u32 v3, v1, 4, 1
v_lshlrev_b32 v3, 2, v3
v_xor_b32 v3, v9, v3
v_lshl_add_u32 v2, v3, 4, v2
s_lshl_b32 {T0}, {S_J}, 7
s_mul_i32 {T1}, {S_W4}, {8*2688}
s_add_u32 {T0}, {T0}, {T1}
s_add_u32 {T0}, {T0}, 896
v_add_u32 v2, {T0}, v2
s_mul_i32 s{SC}, {S_HH}, {ra}""")
    mod7(a, f"s{SC}", T0)
    a(f"""s_lshl_b32 s{SC}, s{SC}, 7
s_lshl_b32 {S_XL}, {S_W4}, 14
s_add_u32 {S_XL}, {S_XL}, {L_X}
s_mul_i32 {S_I}, {S_RR}, 14
s_lshr_b32 {S_I}, {S_I}, {lg(nr)}
s_lshl_b32 {T3}, {S_W4}, 10
s_waitcnt lgkmcnt(0)
s_load_dwordx2 s[62:63], s[20:21], {EPOCH}""")
    srd(a, sX, 10, 2048 * 896)
    def x_m0(i, j): return f"s_add_u32 m0, {S_XL}, {(i%4)*4096 + j*1024}"
    def x_ld(i, j): return f"buffer_load_dwordx4 v{4+j}, {sX}, s{SC+i} offen lds"
    for j in range(4): a(x_m0(0, j)); a(x_ld(0, j))
    srd(a, sWQKV, 12, 448 * 2688)
    for i in range(14):
        a(f"""s_lshl_b32 {T0}, {S_I}, 12
s_add_u32 m0, {T0}, {T3}
s_mul_i32 {T1}, {S_I}, {32*2688}
buffer_load_dwordx4 v2, {sWQKV}, {T1} offen lds
s_add_u32 {S_I}, {S_I}, 1
s_cmp_eq_u32 {S_I}, 14
s_cselect_b32 {S_I}, 0, {S_I}""")
    for i in range(1, 7):
        a(f"s_add_u32 s{SC+i}, s{SC+i-1}, 128\ns_cmp_eq_u32 s{SC+i}, 896\ns_cselect_b32 s{SC+i}, 0, s{SC+i}")
    for j in range(4): a(x_m0(1, j)); a(x_ld(1, j))
    srd(a, sWS, 20, WS_SIZE)
    x_read_addrs(a, 8, "v1", S_XL, 12)
    a(f"""v_lshrrev_b32 v12, 5, v1
v_lshlrev_b32 v12, 3, v12
v_bfe_u32 v13, v1, 2, 2
v_add_u32 v12, v12, v13
v_bfe_u32 v13, v1, 4, 1
v_lshlrev_b32 v13, 5, v13
v_and_b32 v2, 1, v1
v_bfe_u32 v3, v1, 1, 1
v_lshl_add_u32 v15, v2, 4, v13
v_lshl_add_u32 v15, v3, 3, v15
v_lshl_add_u32 v14, v2, 3, v13
v_lshl_add_u32 v14, v3, 4, v14
s_cmp_ge_u32 {S_J}, 7
s_cselect_b64 vcc, -1, 0
v_cndmask_b32 v14, v15, v14, vcc
v_lshl_add_u32 v15, v12, 6, v15
v_add_u32 v15, {L_WQ}, v15
v_bfe_u32 v13, v1, 3, 1
v_lshl_add_u32 v14, v13, 6, v14
v_lshl_add_u32 v14, v12, 7, v14
v_mov_b32 v3, 0
v_mov_b32 v2, {L_SYNC}
ds_write2_b32 v2, v3, v3 offset0:0 offset1:32""")
    nonce(a)
    def w_base(i): return f"v_lshl_add_u32 v12, s{SC+i}, 6, v14\nv_xor_b32 v13, 64, v12"
    def w_reads(i):
        out = []
        for mm in range(4):
            for ct in range(2):
                for hf in range(2):
                    d = WB + (i % 2) * 32 + mm * 8 + ct * 4 + hf * 2
                    out.append(f"ds_read_b64_tr_b16 {V(d,2)}, v{12+ct} offset:{mm*2048 + hf*512}")
        return out
    def x_reads(i):
        return [f"ds_read_b128 {V(X+16*i+4*mm,4)}, v{8+mm} offset:{(i%4)*4096}" for mm in range(4)]
    a(w_base(0))
    a("s_waitcnt vmcnt(18)")
    for s_ in x_reads(0): a(s_)
    a("s_waitcnt vmcnt(4)")
    stamp(a, 1)
    a("s_barrier")
    wr0 = w_reads(0)
    for j in range(4):
        a(x_m0(2, j)); a(wr0[4*j]); a(x_ld(2, j)); a("\n".join(wr0[4*j+1:4*j+4]))
    a(f"s_cmp_ge_u32 {S_J}, 7\ns_cbranch_scc1 L_kvV")
    for var in ("K", "V"):
        if var == "V": a("L_kvV:")
        for i in range(7):
            a("s_waitcnt lgkmcnt(0)")
            fill = [[] for _ in range(8)]
            pre = [[] for _ in range(8)]
            if i + 3 < 7:
                for j in range(4): pre[j].append(x_m0(i+3, j)); fill[j].append(x_ld(i+3, j))
            if i + 1 < 7:
                out_after = 4 * (min(6, i + 3) - (i + 1))
                wr = w_reads(i + 1)
                fill[0] += [w_base(i + 1)]
                fill[1] += wr[0:3]; fill[2] += wr[3:6]; fill[3] += wr[6:9]; fill[4] += wr[9:13]; fill[5] += wr[13:16]
                fill[5] += [f"s_waitcnt vmcnt({out_after})"]
                fill[6] += x_reads(i + 1)
            for mm in range(4):
                for ct in range(2):
                    xr = X + 16*i + 4*mm; wr_ = WB + (i % 2) * 32 + mm * 8 + ct * 4
                    c = None if (i == 0 and mm == 0) else ACC + 16*ct
                    for s_ in pre[2*mm + ct]: a(s_)
                    a(mfma(ACC + 16*ct, wr_, xr, c) if var == "K" else mfma(ACC + 16*ct, xr, wr_, c))
                    for s_ in fill[2*mm + ct]: a(s_)
                if i == 6 and mm == 0:
                    a(f"s_mul_i32 {T4}, {S_TILE}, {TS}\ns_add_u32 {T4}, {T4}, {KV}\nv_lshlrev_b32 v7, 4, v1")
                    if var == "K":
                        a(f"s_lshl_b32 {T0}, {S_J}, 12\ns_add_u32 {T4}, {T4}, {T0}")
                    else:
                        a(f"""s_sub_u32 {T0}, {S_J}, 7
s_lshl_b32 {T1}, {T0}, 6
v_and_b32 v4, 31, v1
v_add_u32 v4, {T1}, v4
v_add_u32 v5, 32, v4
v_lshrrev_b32 v3, 5, v1
v_lshlrev_b32 v3, 9, v3
v_add_u32 v3, {VOFF}, v3""")
                if i == 6 and mm == 1 and var == "V":
                    for r in (4, 5):
                        a(f"""v_mul_u32_u24 v12, 2341, v{r}
v_lshrrev_b32 v12, 16, v12
v_mul_u32_u24 v12, {2048 - 28*16}, v12
v_lshl_add_u32 v{r}, v{r}, 4, v12
v_add_u32 v{r}, v{r}, v3""")
                if i == 6 and mm == 2 and var == "V":
                    a(f"""s_lshl_b32 {T1}, {T0}, 2
s_lshr_b32 {T2}, 0xDB96420, {T1}
s_and_b32 {T2}, {T2}, 15
s_lshr_b32 {T3}, 0x3223222, {T1}
s_and_b32 {T3}, {T3}, 15
s_lshl_b32 {T3}, {T3}, 4
v_lshrrev_b32 v12, 2, v1
v_lshlrev_b32 v12, 9, v12
v_and_b32 v13, 3, v1
v_lshl_add_u32 v12, v13, 4, v12
s_lshl_b32 {T2}, {T2}, 11
s_add_u32 {T2}, {T2}, {VOFF + 28*16}""")
        if var == "V":
            a(f"""v_add_u32 v12, {T2}, v12
v_cmp_eq_u32 vcc, 0, v13
v_mov_b32 v13, 0x3f803f80
v_cndmask_b32 v240, 0, v13, vcc
v_cndmask_b32 v241, 0, v13, vcc
v_cndmask_b32 v242, 0, v13, vcc
v_cndmask_b32 v243, 0, v13, vcc
s_bfm_b64 exec, {T3}, 0
buffer_store_dwordx4 v[240:243], v12, {sWS}, {T4} offen sc1
s_mov_b64 exec, -1""")
        else:
            a(f"s_cmp_ge_u32 {S_H}, 14\ns_cbranch_scc1 L_kvdone")
        for ct in range(2):
            for j in range(2):
                for q in range(4):
                    z = 8*ct + 4*j + q
                    a(f"v_cvt_pk_bf16_f32 v{PK+z}, v{ACC+2*z}, v{ACC+2*z+1}")
                if var == "K":
                    a(f"buffer_store_dwordx4 {V(PK+8*ct+4*j,4)}, v7, {sWS}, {T4} offen offset:{ct*2048+j*1024} sc1")
                else:
                    a(f"buffer_store_dwordx4 {V(PK+8*ct+4*j,4)}, v{4+ct}, {sWS}, {T4} offen offset:{j*1024} sc1")
        if var == "K": a("s_branch L_kvdone")
    a("L_kvdone:")
    stamp(a, 2)
    S_P0 = "s55"
    a(f"""v_lshrrev_b32 v6, 2, v1
v_mul_u32_u24 v6, 2688, v6
v_and_b32 v5, 3, v1
v_lshl_add_u32 v6, v5, 4, v6
s_mul_i32 {S_P0}, {S_H}, 7
s_lshr_b32 {S_P0}, {S_P0}, 1
s_lshl_b32 {T0}, {S_P0}, 4
s_mul_i32 {T1}, {S_W4}, {16*2688}
s_add_u32 {T0}, {T0}, {T1}
s_lshl_b32 {T1}, {S_W4}, 10
s_add_u32 {T1}, {T1}, {L_WQ}""")
    for i in range(7):
        a(f"s_add_u32 m0, {T1}, {i*4096}\ns_add_u32 {T2}, {T0}, {i*64*2688}\nbuffer_load_dwordx4 v6, {sWQKV}, {T2} offen lds")
    a("s_barrier")
    a(f"""s_lshl_b32 {T0}, {S_P0}, 9
v_add_u32 v4, {T0}, v7                    ; v4 = K offset
s_lshl_b32 {T0}, {S_H}, 11
s_add_u32 {T0}, {T0}, {VOFF}
v_add_u32 v6, {T0}, v7                    ; v6 = V offset
s_lshr_b32 {T1}, {S_P0}, 3
s_add_u32 {T0}, {S_P0}, 3
s_lshr_b32 {T0}, {T0}, 3
s_sub_u32 {T0}, {T0}, {T1}
v_and_b32 v8, 1, v1
v_mul_u32_u24 v8, {T0}, v8
v_bfe_u32 v9, v1, 1, 1
v_mul_u32_u24 v9, 7, v9
v_add_u32 v8, v8, v9
v_lshrrev_b32 v9, 2, v1
v_lshl_add_u32 v8, v9, 6, v8
v_lshlrev_b32 v8, 7, v8
s_lshl_b32 {T0}, {S_W4}, 4
s_add_u32 {T0}, {T0}, {T1}
s_lshl_b32 {T0}, {T0}, 7
s_add_u32 {T5}, {T0}, {FKV}
s_mov_b32 {T0}, {S_TILE}""")
    for t in range(16):
        a(f"s_mul_i32 s{TO+t}, {T0}, {TS}\ns_add_u32 s{TO+t}, s{TO+t}, {KV}\ns_add_u32 {T0}, {T0}, 4\ns_and_b32 {T0}, {T0}, 63")
    a(f"""v_mov_b32 v2, {L_SYNC}
v_mov_b32 v3, 1
s_lshl_b32 {T0}, {S_TILE}, 4
s_add_u32 {T0}, {T0}, {S_H}
s_lshl_b32 {T0}, {T0}, 7
s_add_u32 {T0}, {T0}, {FKV}
s_waitcnt vmcnt(7)""")
    flag(a, T0, 240)
    stamp(a, 3)
    a("s_waitcnt vmcnt(1)")
    stamp(a, 4)
    lbar(a, "v2", "v3", 5, 14)
    rd = []
    for i in range(7):
        for mm in range(4):
            for hf in range(2):
                pre = f"v_lshl_add_u32 v{12+i%2}, s{SC+i}, 5, v15\n" if (mm == 0 and hf == 0) else ""
                rd.append(pre + f"ds_read_b64_tr_b16 {V(WB+(i%4)*16+mm*4+hf*2,2)}, v{12+i%2} offset:{mm*1024+hf*256}")
    for s_ in rd[:14]: a(s_)
    for m in range(28):
        iss = min(56, 14 + 2*m)
        a(f"s_waitcnt lgkmcnt({iss - (2*m + 2)})")
        a(mfma(ACC, WB + ((m // 4) % 4) * 16 + (m % 4) * 4, X + 4*m, None if m == 0 else ACC))
        for s_ in rd[iss:iss+2]: a(s_)
    stamp(a, 5)
    NB = cfg.nbuf
    Q = 16; O = 48; SA = 112; KVB = 144; P0 = KVB + 16*NB; P1 = P0 + 4
    assert P1 + 4 <= 248
    QP = 248
    a(f"s_mov_b32 {T1}, {lit(28 ** -0.5 * math.log2(math.e))}")
    if cfg.kvwait: a(f"s_sleep {cfg.kvwait}")
    poll(a, "v8", T5, 10, 1, sleep=4)
    stamp(a, 6)
    def kv_loads(t, so=None):
        b = KVB + 16 * (t % NB); so = so or f"s{TO+t}"
        return [f"buffer_load_dwordx4 {V(b+4*j,4)}, v{4 if j < 2 else 6}, {sWS}, {so} offen offset:{(j%2)*1024} sc1" for j in range(4)]
    for t in range(2):
        for s_ in kv_loads(t): a(s_)
    for q in range(16): a(f"v_mul_f32 v{ACC+q}, {T1}, v{ACC+q}")
    for q in range(8): a(f"v_cvt_pk_bf16_f32 v{QP+q}, v{ACC+2*q}, v{ACC+2*q+1}")
    a(f"""s_lshl_b32 {T0}, {S_W4}, 11
s_add_u32 {T0}, {T0}, {L_Q}
v_add_u32 v8, {T0}, v7
s_bitcmp1_b32 {S_H}, 0
s_cselect_b32 exec_lo, -1, 0
s_mov_b32 exec_hi, 0
v_mov_b32 v{QP}, 0
v_mov_b32 v{QP+1}, 0
s_cselect_b32 exec_hi, 0, -1
s_mov_b32 exec_lo, 0
v_mov_b32 v{QP+6}, 0
v_mov_b32 v{QP+7}, 0
s_mov_b64 exec, -1
ds_write_b128 v8, {V(QP,4)}
ds_write_b128 v8, {V(QP+4,4)} offset:1024""")
    lbar(a, "v2", "v3", 5, 15)
    for i in range(4):
        a(f"""s_add_u32 {T0}, {S_W4}, {i+1}
s_and_b32 {T0}, {T0}, 3
s_lshl_b32 {T1}, {T0}, 11
s_add_u32 {T1}, {T1}, {L_Q}
v_add_u32 v8, {T1}, v7
ds_read_b128 {V(Q+8*i,4)}, v8
ds_read_b128 {V(Q+8*i+4,4)}, v8 offset:1024
s_mul_i32 {T0}, {T0}, 12288
s_add_u32 {T0}, {T0}, {(i%3)*4096 + L_RED}
v_add_u32 v{10+i}, {T0}, v7""")
    stamp(a, 7)
    a("s_waitcnt vmcnt(4) lgkmcnt(0)\ns_setprio 0")
    stamp(a, 8)
    a(mfma(SA, KVB, Q)); a(mfma(SA, KVB + 4, Q + 4, SA))
    a("s_nop 10\n.p2align 3")
    issued = 2
    for t in range(16):
        for i in range(4):
            n = 4 * t + i
            cur = SA + 16 * (n % 2); nxt = SA + 16 * ((n + 1) % 2)
            tn, inx = (t, i + 1) if i < 3 else (t + 1, 0)
            tp, ip = (t, i - 1) if i > 0 else (t - 1, 3)
            kb = lambda tt: KVB + 16 * (tt % NB)
            ms = [mfma(nxt, kb(tn), Q + 8*inx), mfma(nxt, kb(tn) + 4, Q + 8*inx + 4, nxt),
                  mfma(O + 16*ip, kb(tp) + 12, P1, O + 16*ip), mfma(O + 16*i, kb(t) + 8, P0, None if t == 0 else O + 16*i)]
            if n == 63: ms[0] = ms[1] = None
            if n == 0: ms[2] = None
            side = []
            if i in (1, 2) and issued <= min(15, t + NB - 1):
                side = kv_loads(issued); issued += 1
            if t == 15 and i >= 2:
                side = [f"ds_write_b128 v{10+i-2}, {V(O+16*(i-2)+4*q,4)} offset:{q*1024}" for q in range(4)]
            for p in range(4):
                if ms[p]: a(ms[p])
                if side: a(side.pop(0))
                wait = (i == 2 and p == 3 and t < 15)
                for e in range(4):
                    if wait and e == 3:
                        a(f"s_waitcnt vmcnt({4 * (issued - (t + 2))})\nv_exp_f32_e64 v{cur+4*p+e}, v{cur+4*p+e}")
                    else:
                        a(f"v_exp_f32 v{cur+4*p+e}, v{cur+4*p+e}")
                pk = (P0, P0 + 2, P1, P1 + 2)[p]
                a(f"v_cvt_pk_bf16_f32 v{pk}, v{cur+4*p}, v{cur+4*p+1}\nv_cvt_pk_bf16_f32 v{pk+1}, v{cur+4*p+2}, v{cur+4*p+3}")
    a("s_setprio 3")
    for q in range(4): a(f"ds_write_b128 v12, {V(O+32+4*q,4)} offset:{q*1024}")
    a(mfma(O + 48, KVB + 16 * (15 % NB) + 12, P1, O + 48))
    stamp(a, 9)
    lbar(a, "v2", "v3", 5, 2)
    OO = O + 48
    for q in range(12): a(f"ds_read_b128 {V(O+4*q,4)}, v13 offset:{q*1024}")
    a(f"""s_lshl_b32 {T3}, {S_TILE}, 4
s_add_u32 {T3}, {T3}, {S_H}
s_lshl_b32 {T4}, {T3}, 11
s_add_u32 {T4}, {T4}, {OBUF}
s_lshl_b32 {T3}, {T3}, 7
s_add_u32 {T3}, {T3}, {FO}
s_mov_b32 {T0}, {lit(2.0**-40)}
s_mov_b32 {T1}, {lit(2.0**30)}
s_movk_i32 {T2}, 0x1f8""")
    for s_ in range(3):
        a(f"s_waitcnt lgkmcnt({8-4*s_})")
        for q in range(0, 16, 2): a(f"v_pk_add_f32 {V(OO+q,2)}, {V(OO+q,2)}, {V(O+16*s_+q,2)}")
    a(f"""v_mov_b32 v10, v{OO+12}
v_mov_b32 v11, v{OO+12}
v_pk_add_f32 v[12:13], {V(OO,2)}, {V(OO+2,2)}
v_pk_add_f32 v[14:15], {V(OO+4,2)}, {V(OO+6,2)}
v_permlane32_swap_b32 v10, v11
v_pk_add_f32 v[12:13], v[12:13], {V(OO+8,2)}
v_pk_add_f32 v[14:15], v[14:15], {V(OO+10,2)}
v_rcp_f32 v10, v11
v_pk_add_f32 v[12:13], v[12:13], {V(OO+12,2)}
v_pk_add_f32 v[14:15], v[14:15], {V(OO+14,2)}
v_cmp_le_f32 s[70:71], {T0}, v11
v_pk_add_f32 v[12:13], v[12:13], v[14:15]
v_cmp_ge_f32 s[72:73], {T1}, v11
v_add_f32 v12, v12, v13
v_cmp_class_f32 vcc, v12, {T2}
s_and_b64 s[70:71], s[70:71], s[72:73]
s_and_b64 vcc, vcc, s[70:71]
s_cmp_eq_u64 vcc, exec""")
    if cfg.force_fb: a("s_cmp_eq_u32 0, 1")
    a(f"s_cbranch_scc0 L_fallback\nL_fbdone:\nv_mov_b32 v11, v10")
    for hf in range(2):
        for q in range(8*hf, 8*hf+8, 2): a(f"v_pk_mul_f32 {V(OO+q,2)}, {V(OO+q,2)}, v[10:11]")
        for q in range(4*hf, 4*hf+4): a(f"v_cvt_pk_bf16_f32 v{O+q}, v{OO+2*q}, v{OO+2*q+1}")
        if hf: a(f"s_mov_b32 exec_lo, 0\nv_mov_b32 v{O+6}, 0\ns_mov_b32 exec_lo, -1")
        a(f"buffer_store_dwordx4 {V(O+4*hf,4)}, v7, {sWS}, {T4} offen offset:{1024*hf} sc1")
    stamp(a, 10)
    a("s_waitcnt vmcnt(0)")
    flag(a, T3, 240)
    stamp(a, 12)
    dump_stamps(a, 240)
    a("s_endpgm")
    a("L_fallback:")
    QO = Q + 24; KB = KVB; M = 15; S_SO = "s70"
    a(f"v_mov_b32 v{M}, 0xff800000\ns_mov_b32 {S_SO}, {KV}\nL_fb1:")
    for s_ in kv_loads(0, S_SO)[:2]: a(s_)
    a(f"s_add_u32 {S_SO}, {S_SO}, {TS}\ns_waitcnt vmcnt(0)")
    a(mfma(SA, KB, QO)); a(mfma(SA, KB + 4, QO + 4, SA))
    for q in range(0, 16, 2): a(f"v_max3_f32 v{M}, v{M}, v{SA+q}, v{SA+q+1}")
    a(f"""s_cmp_lt_u32 {S_SO}, {KV + 64*TS}
s_cbranch_scc1 L_fb1
v_mov_b32 v14, v{M}
v_permlane32_swap_b32 v14, v{M}
v_max_f32 v{M}, v14, v{M}
s_mov_b32 {S_SO}, {KV}""")
    for q in range(16): a(f"v_mov_b32 v{OO+q}, 0")
    a("L_fb2:")
    for s_ in kv_loads(0, S_SO): a(s_)
    a(f"s_add_u32 {S_SO}, {S_SO}, {TS}\ns_waitcnt vmcnt(0)")
    a(mfma(SA, KB, QO)); a(mfma(SA, KB + 4, QO + 4, SA))
    for q in range(16): a(f"v_sub_f32 v{SA+q}, v{SA+q}, v{M}")
    for q in range(16): a(f"v_exp_f32 v{SA+q}, v{SA+q}")
    for q in range(8): a(f"v_cvt_pk_bf16_f32 v{P0+q}, v{SA+2*q}, v{SA+2*q+1}")
    a(mfma(OO, KB + 8, P0, OO)); a(mfma(OO, KB + 12, P1, OO))
    a(f"""s_cmp_lt_u32 {S_SO}, {KV + 64*TS}
s_cbranch_scc1 L_fb2
v_mov_b32 v10, v{OO+12}
v_mov_b32 v11, v{OO+12}
v_permlane32_swap_b32 v10, v11
v_rcp_f32 v10, v11
s_branch L_fbdone""")

def role_A(a):
    nh = cfg.nh; xh = 16 // nh
    assert nh <= 8
    FB = 16; MS = 48; M = 72; F = 88; ACC = 200; TMP = 216; WO = 72
    S_AI, S_B, S_KT16, S_BP = "s75", "s76", "s77", "s78"
    S_CG, S_CNT, S_CB, S_DT, S_TASK, S_KT32 = "s79", "s80", "s81", "s82", "s83", "s74"
    def albar(code): lbar(a, "v14", "v15", 5, code, sleep=1)
    a("L_roleA:")
    a(f"""v_lshrrev_b32 v2, 2, v1
s_mul_i32 {T0}, {S_IDX}, 14
v_add_u32 v2, {T0}, v2
v_min_u32 v2, 447, v2
v_mul_u32_u24 v2, 2688, v2
v_and_b32 v3, 3, v1
v_lshl_add_u32 v2, v3, 7, v2
s_and_b32 {T0}, {S_XCD}, {xh-1}
s_mul_i32 {T0}, {T0}, {56*nh}
s_and_b32 {T0}, {T0}, 0xffffff80
s_lshl_b32 {T1}, {S_IDX}, 4
v_add_u32 v3, {T1}, v1
v_lshlrev_b32 v3, 7, v3
s_getpc_b64 s[70:71]
L_pc:
s_sub_u32 s70, s70, L_pc-{NAME}_kernel
s_subb_u32 s71, s71, 0
s_waitcnt lgkmcnt(0)
s_load_dwordx2 s[62:63], s[20:21], {EPOCH}""")
    srd(a, sWQKV, 12, 448 * 2688)
    srd(a, sOUT, 70, f"L_codeend-{NAME}_kernel")
    a(f"""s_cmp_eq_u32 {S_W4}, 0
s_cbranch_scc0 L_pf1
buffer_load_dword v255, v2, {sWQKV}, {T0} offen
L_pf1:
s_cmp_eq_u32 {S_W4}, 1
s_cbranch_scc0 L_pf2
s_mov_b64 exec, 0xffff
buffer_load_dword v255, v3, {sOUT}, 0 offen
s_mov_b64 exec, -1
L_pf2:
s_add_u32 {S_AI}, {S_IDX}, 28
s_and_b32 {S_AI}, {S_AI}, 31
s_mul_i32 {T0}, {S_AI}, 9363
s_lshr_b32 {T0}, {T0}, 16                 ; aidx/7
s_mul_i32 {T1}, {T0}, 7
s_sub_u32 {S_KT32}, {S_AI}, {T1}
s_lshl_b32 {S_B}, {S_XCD}, 2
s_add_u32 {S_B}, {S_B}, {T0}
s_lshl_b32 {S_B}, {S_B}, 1
s_lshr_b32 {T0}, {S_W4}, 1
s_add_u32 {S_B}, {S_B}, {T0}              ; b
s_and_b32 {S_B}, {S_B}, 63
s_lshl_b32 {S_KT16}, {S_KT32}, 1
s_and_b32 {T0}, {S_W4}, 1
s_add_u32 {S_KT16}, {S_KT16}, {T0}
s_lshl_b32 {S_BP}, {S_XCD}, 3
s_lshr_b32 {T0}, {S_IDX}, 2
s_add_u32 {S_BP}, {S_BP}, {T0}
v_and_b32 v2, 31, v1                      ; v2 = lane%32
v_lshrrev_b32 v3, 5, v1                   ; v3 = half
v_cvt_f32_u32 v4, v3""")
    A0 = TMP; A1 = TMP + 8; C2 = TMP + 16
    a(f"""v_and_b32 v5, 15, v1
s_lshl_b32 {T0}, {S_KT16}, 4
v_add_u32 v5, {T0}, v5                    ; k
v_bfe_u32 v6, v1, 4, 1
v_lshl_add_u32 v7, v5, 1, v6
v_cmp_eq_u32 vcc, 1, v7
v_mov_b32 v7, 224
v_cndmask_b32 v5, v5, v7, vcc
v_cndmask_b32 v6, v6, 0, vcc
v_cvt_f32_u32 v5, v5
v_cvt_f32_u32 v6, v6
v_mul_f32 v5, {lit(1/448)}, v5            ; kf
v_mul_f32 v6, {lit(0.25)}, v6
v_mul_f32 v7, v5, v4
v_fmamk_f32 v6, v7, {lit(8.0)}, v6
v_mul_f32 v{C2}, {lit(16.0)}, v5
v_cos_f32 v{C2}, v{C2}""")
    for j in range(16):
        a(f"v_fmamk_f32 v{A0+j}, v5, {lit(float(j % 8 + 16 * (j // 8)))}, v6")
    a(f"v_add_f32 v{C2}, v{C2}, v{C2}")
    for j in range(16): a(f"v_cos_f32 v{A0+j}, v{A0+j}")
    a(f"v_mov_b32 v{C2+1}, v{C2}\n.p2align 3")
    for m in range(28):
        cur = A0 if m % 2 == 0 else A1; oth = A1 if m % 2 == 0 else A0
        if m >= 2:
            for q in range(0, 8, 2):
                a(f"v_pk_fma_f32 {V(cur+q,2)}, {V(C2,2)}, {V(oth+q,2)}, {V(cur+q,2)} neg_lo:[0,0,1] neg_hi:[0,0,1]")
        for q in range(4): a(f"v_cvt_pk_bf16_f32 v{F+4*m+q}, v{cur+2*q}, v{cur+2*q+1}")
    nonce(a)
    stamp(a, 1)
    a("s_barrier")
    srd(a, sWS, 20, WS_SIZE)
    srd(a, sX, 4, 2048 * 896); srd(a, sWR, 6, 2048 * 450); srd(a, sWI, 8, 2048 * 450)
    srd(a, sWO, 14, 448 * 896); srd(a, sOUT, 16, 2048 * 1792)
    a(f"""v_lshrrev_b32 v6, 3, v1
v_and_b32 v7, 7, v1
v_lshrrev_b32 v8, 4, v1
v_xor_b32 v7, v7, v8
v_xor_b32 v8, 4, v7
v_mul_u32_u24 v6, {64*896}, v6
s_and_b32 {T0}, {S_W4}, 1
s_mul_i32 {T1}, {T0}, {16*64*896}
s_mul_i32 {T2}, {S_B}, 896
s_add_u32 {T1}, {T1}, {T2}
v_add_u32 v6, {T1}, v6
v_lshl_add_u32 v12, v7, 4, v6
v_lshl_add_u32 v13, v8, 4, v6
v_add_u32 v13, {8*64*896}, v13
s_lshr_b32 {T2}, {S_W4}, 1
s_mul_i32 {T2}, {T2}, 28672
s_add_u32 {T2}, {T2}, {L_X}
s_lshl_b32 {T0}, {T0}, 11
s_add_u32 {T3}, {T2}, {T0}""")
    x_read_addrs(a, 8, "v1", T2, TMP)
    a(f"v_mov_b32 v14, {L_SYNC+128}\nv_mov_b32 v15, 1")
    def angles(n, vstep, vbase, offs, dst=TMP):
        for j in range(n): a(f"v_fmamk_f32 v{dst+j}, {vstep}, {lit(float(offs[j]))}, {vbase}")
    def gen_M():
        a(f"""v_cvt_f32_u32 v5, v2
v_lshlrev_b32 v6, 8, v3
v_add_u32 v6, {S_B}, v6
v_cvt_f32_u32 v6, v6
v_mul_f32 v6, v6, v5
v_mul_f32 v6, {lit(1/2048)}, v6
v_mul_f32 v5, {lit(1/32)}, v5""")
        angles(16, "v5", "v6", [16*(j//8) + 8*((j%8)//4) + j%4 for j in range(16)])
        for j in range(16): a(f"v_sin_f32 v{TMP+16+j}, v{TMP+j}\nv_cos_f32 v{TMP+j}, v{TMP+j}")
        for q in range(8): a(f"v_cvt_pk_bf16_f32 v{M+8+q}, -v{TMP+16+2*q}, -v{TMP+16+2*q+1}")
        for q in range(8): a(f"v_cvt_pk_bf16_f32 v{M+q}, v{TMP+2*q}, v{TMP+2*q+1}")
    def gen_MS():
        a(f"""v_lshlrev_b32 v5, 6, v2
v_add_u32 v5, {S_BP}, v5
v_cvt_f32_u32 v5, v5
v_mul_f32 v5, {lit(1/2048)}, v5
v_mul_f32 v6, v5, v4
v_mul_f32 v6, 4.0, v6""")
        angles(16, "v5", "v6", [8*(j//4) + j%4 for j in range(16)])
        for j in range(16): a(f"v_sin_f32 v{TMP+16+j}, v{TMP+j}\nv_cos_f32 v{TMP+j}, v{TMP+j}")
        for m in range(4):
            for q in range(2):
                c = TMP + 4*m + 2*q; s_ = c + 16
                a(f"v_cvt_pk_bf16_f32 v{MS+6*m+2+q}, v{s_}, v{s_+1}\nv_cvt_pk_bf16_f32 v{MS+6*m+q}, v{c}, v{c+1}\nv_cvt_pk_bf16_f32 v{MS+6*m+4+q}, -v{c}, -v{c+1}")
    def gen_FB():
        a(f"""v_and_b32 v5, 15, v1
s_lshl_b32 {T0}, {S_W4}, 4
v_add_u32 v5, {T0}, v5
v_cvt_f32_u32 v5, v5
v_mul_f32 v5, {lit(1/64)}, v5
v_bfe_u32 v6, v1, 4, 1
v_cvt_f32_u32 v6, v6
v_mul_f32 v6, {lit(0.25)}, v6
v_mul_f32 v7, v5, v4
v_fmamk_f32 v6, v7, {lit(4.0)}, v6""")
        for hh in range(2):
            angles(16, "v5", "v6", [8*((16*hh+j)//4) + j%4 for j in range(16)])
            for j in range(16): a(f"v_sin_f32 v{TMP+16+j}, v{TMP+j}\nv_cos_f32 v{TMP+j}, v{TMP+j}")
            for j in range(16): a(f"v_cvt_pk_bf16_f32 v{FB+16*hh+j}, v{TMP+j}, v{TMP+16+j}")
    gen_M(); gen_MS()
    stamp(a, 2)
    a("s_barrier")
    if cfg.noA == 1:
        stamp(a, 12); dump_stamps(a, 16); a("s_endpgm")
    a(f"s_cmp_ge_u32 {S_AI}, 28\ns_cbranch_scc1 L_noxa\ns_lshl_b32 {T1}, {S_KT32}, 7")
    for c in range(7):
        a(f"""s_lshl_b32 {T2}, {T1}, 5
s_add_u32 m0, {T3}, {T2}
s_add_u32 {T2}, {T2}, 1024
buffer_load_dwordx4 v12, {sX}, {T1} offen lds
s_add_u32 m0, {T3}, {T2}
s_add_u32 {T4}, {T1}, 128
buffer_load_dwordx4 v13, {sX}, {T1} offen lds
s_cmp_eq_u32 {T4}, 896
s_cselect_b32 {T1}, 0, {T4}""")
    a("L_noxa:")
    gen_FB()
    a(f"s_waitcnt vmcnt(0)")
    stamp(a, 3)
    albar(16)
    a(f"s_setprio {cfg.aprio}\ns_cmp_ge_u32 {S_AI}, 28\ns_cbranch_scc1 L_a1done")
    def xr(m): return f"ds_read_b128 {V(TMP+4*(m%8),4)}, v{8+m%4} offset:{(m//4)*4096}"
    for m in range(8): a(xr(m))
    for m in range(28):
        a(f"s_waitcnt lgkmcnt({min(7, 27-m)})")
        a(mfma(ACC, TMP + 4*(m % 8), F + 4*m, None if m == 0 else ACC))
        if m + 8 < 28: a(xr(m + 8))
    P1 = F; P2 = F + 16; XP = TMP
    a(f"""v_lshrrev_b32 v5, 2, v2
v_lshlrev_b32 v5, 13, v5
v_lshl_add_u32 v5, v3, 6, v5
v_and_b32 v6, 3, v1
v_lshl_add_u32 v5, v6, 4, v5
s_lshl_b32 {T0}, {S_KT16}, 17
s_lshl_b32 {T1}, {S_B}, 7
s_add_u32 {T0}, {T0}, {T1}
s_add_u32 {T0}, {T0}, {TBUF}
s_add_u32 {T2}, {T0}, 65536""")
    for q in range(8): a(f"v_cvt_pk_bf16_f32 v{XP+q}, v{ACC+2*q}, v{ACC+2*q+1}")
    a(mfma(P1, XP, M)); a(mfma(P2, XP, M + 8)); a(mfma(P1, XP + 4, M + 4, P1)); a(mfma(P2, XP + 4, M + 12, P2))
    for r in range(0, 8, 2):
        a(f"v_pk_add_f32 {V(ACC+r,2)}, {V(P1+r,2)}, {V(P2+r+8,2)} neg_lo:[0,1] neg_hi:[0,1]\nv_pk_add_f32 {V(ACC+8+r,2)}, {V(P1+r+8,2)}, {V(P2+r,2)}")
    for r in range(8): a(f"v_cvt_pk_bf16_f32 v{XP+8+r}, v{ACC+r}, v{ACC+8+r}")
    a(f"""s_cmp_lg_u32 {S_KT16}, 0
s_cbranch_scc1 L_a1st
s_mov_b32 exec_hi, 0
v_cvt_pk_bf16_f32 v{XP+8}, v{P1}, v{P2}
v_cvt_pk_bf16_f32 v6, v{P1+8}, v{P2+8}
s_add_u32 {T1}, {T1}, {TBUF + 224*8192}
buffer_store_dword v6, v5, {sWS}, {T1} offen sc1
s_mov_b32 exec_hi, -1
L_a1st:
buffer_store_dwordx4 {V(XP+8,4)}, v5, {sWS}, {T0} offen sc1
buffer_store_dwordx4 {V(XP+12,4)}, v5, {sWS}, {T2} offen sc1
s_lshl_b32 {T0}, {S_KT16}, 6
s_add_u32 {T0}, {T0}, {S_B}
s_lshl_b32 {T0}, {T0}, 7
s_add_u32 {T0}, {T0}, {FA1}
s_waitcnt vmcnt(0)""")
    flag(a, T0, 10)
    a("L_a1done:")
    stamp(a, 4)
    a(f"""s_cmp_ge_u32 {S_W4}, 2
s_cbranch_scc1 L_pf3
v_bfe_u32 v5, v1, 4, 1
v_mul_u32_u24 v5, 14400, v5
v_and_b32 v6, 15, v1
v_lshl_add_u32 v5, v6, 7, v5
s_mul_i32 {T0}, {S_IDX}, 28800
s_mul_i32 {T1}, {S_XCD}, 1800
s_add_u32 {T0}, {T0}, {T1}
s_mov_b32 exec_hi, 0
s_cmp_eq_u32 {S_W4}, 0
s_cbranch_scc0 L_pf4
buffer_load_ushort v255, v5, {sWR}, {T0} offen
s_branch L_pf5
L_pf4:
buffer_load_ushort v255, v5, {sWI}, {T0} offen
s_branch L_pf5
L_pf3:
v_lshlrev_b32 v5, 7, v1
s_lshl_b32 {T0}, {S_IDX}, 1
s_add_u32 {T0}, {T0}, {S_W4}
s_sub_u32 {T0}, {T0}, 2
s_mul_i32 {T0}, {T0}, {49*128}
s_bfm_b64 exec, 49, 0
buffer_load_dword v255, v5, {sWO}, {T0} offen
L_pf5:
s_mov_b64 exec, -1""")
    a(f"""s_and_b32 {S_CG}, {S_IDX}, 3
s_cmp_ge_u32 {S_CG}, 2
s_cselect_b32 {S_CNT}, 3, 4
s_lshl_b32 {S_CB}, {S_CG}, 2
s_cmp_eq_u32 {S_CG}, 3
s_cselect_b32 {S_CB}, 11, {S_CB}
s_add_u32 {S_DT}, {S_CB}, {S_W4}
v_lshrrev_b32 v5, 4, v1
v_bfe_u32 v6, v1, 2, 2
v_xor_b32 v6, v6, v5
s_sub_u32 {T0}, {S_CNT}, 1
v_min_u32 v6, {T0}, v6
v_add_u32 v6, {S_CB}, v6
v_lshlrev_b32 v6, 6, v6
v_mul_u32_u24 v5, 896, v5
v_add_u32 v5, v5, v6
v_and_b32 v6, 3, v1
v_lshl_add_u32 v13, v6, 4, v5
s_mul_i32 {T4}, {S_W4}, {4*896}
v_add_u32 v13, {T4}, v13
v_lshlrev_b32 v7, 4, v1                   ; v7 = lane*16""")
    def wo_issue(rnd):
        a(f"s_lshl_b32 {T3}, {S_W4}, 10\ns_add_u32 {T3}, {T3}, {L_X}")
        for i in range(14):
            a(f"s_add_u32 m0, {T3}, {i*4096}\ns_mov_b32 {T1}, {(rnd*224 + i*16)*896}\nbuffer_load_dwordx4 v13, {sWO}, {T1} offen lds")
    def wo_read(rnd):
        a(f"""v_bfe_u32 v5, v1, 2, 2
v_xor_b32 v6, {S_W4}, v5
v_lshlrev_b32 v6, 6, v6
v_lshl_add_u32 v5, v5, 8, v6
v_and_b32 v6, 1, v1
v_lshl_add_u32 v5, v6, 5, v5
v_bfe_u32 v6, v1, 4, 1
v_lshl_add_u32 v5, v6, 4, v5
v_bfe_u32 v6, v1, 1, 1
v_lshl_add_u32 v5, v6, 3, v5
v_add_u32 v9, {L_X}, v5
v_lshl_add_u32 v8, v3, 10, v9
s_waitcnt vmcnt(0)""")
        albar(4)
        for hl in range(8):
            for mu in range(2):
                for sec in range(2):
                    d = WO + (rnd*8 + hl)*8 + mu*4 + sec*2
                    a(f"ds_read_b64_tr_b16 {V(d,2)}, v{9 if (mu and sec) else 8} offset:{(28*hl + 16*mu + 8*sec)*256}")
        a("s_waitcnt lgkmcnt(0)")
        albar(13)
    WW = 200; AC = 216; FR = 232; TP = 248
    a(f"""v_bfe_u32 v5, v1, 2, 2
s_lshl_b32 {T0}, {S_XCD}, 2
v_add_u32 v5, {T0}, v5                    ; c
v_bfe_u32 v6, v1, 4, 1
v_and_b32 v8, 3, v1
v_lshl_add_u32 v6, v6, 2, v8
s_lshl_b32 {T0}, {S_AI}, 3
v_add_u32 v6, {T0}, v6                    ; k
v_lshl_add_u32 v5, v3, 7, v5
s_lshl_b32 {T0}, {S_W4}, 9
v_add_u32 v5, {T0}, v5                    ; u for r=0
v_mul_u32_u24 v5, 225, v5
v_add_lshl_u32 v12, v5, v6, 1""")
    for r in range(16): a(f"v_mov_b32 v{WW+r}, 0")
    a("s_waitcnt vmcnt(0)")
    albar(3)
    a(f"s_cmp_ge_u32 {S_AI}, 29\ns_cbranch_scc1 L_now")
    for r in range(8):
        a(f"""s_mov_b32 {T0}, {14400*(8*(r//4) + r%4)}
buffer_load_short_d16_hi v{WW+r}, v12, {sWR}, {T0} offen
buffer_load_short_d16_hi v{WW+8+r}, v12, {sWI}, {T0} offen""")
    a("L_now:")
    wo_issue(0); wo_read(0)
    stamp(a, 5)
    a(f"""s_cmp_ge_u32 {S_AI}, 29
s_cbranch_scc1 L_a2done
s_lshl_b32 {S_TASK}, {S_AI}, 3
s_add_u32 {S_TASK}, {S_TASK}, {S_XCD}
s_lshr_b32 {T4}, {S_AI}, 1
s_cmp_eq_u32 {S_AI}, 28
s_cselect_b32 {T4}, 0, {T4}
v_and_b32 v6, 15, v1
v_lshlrev_b32 v6, 7, v6
s_lshl_b32 {T4}, {T4}, 13
s_lshl_b32 {T1}, {S_W4}, 11
s_add_u32 {T4}, {T4}, {T1}
s_add_u32 {T4}, {T4}, {FA1}""")
    if cfg.a2wait: a(f"s_sleep {cfg.a2wait}")
    poll(a, "v6", T4, TP, 5, sleep=16)
    stamp(a, 6)
    a(f"""v_lshlrev_b32 v5, 2, v2
v_lshl_add_u32 v5, v3, 9, v5
s_lshl_b32 {T0}, {S_TASK}, 13
s_add_u32 {T0}, {T0}, {T1}
s_add_u32 {T0}, {T0}, {TBUF}""")
    for q in range(8):
        a(f"buffer_load_dword v{FR+q}, v5, {sWS}, {T0} offen offset:{(q//4)*1024 + (q%4)*128} sc1")
    a(f"""v_add_u32 v6, {T1}, v7
s_cmp_eq_u32 {S_AI}, 28
s_cbranch_scc0 L_a2nx""")
    for r in range(8):
        a(f"v_mov_b32 v{TP}, v{WW+r}\nv_xor_b32 v{WW+r}, 0x80000000, v{WW+8+r}\nv_mov_b32 v{WW+8+r}, v{TP}")
    a(f"""L_a2nx:
s_waitcnt vmcnt(0)
ds_write_b128 v6, {V(FR,4)} offset:{L_TB}
ds_write_b128 v6, {V(FR+4,4)} offset:{L_TB+1024}""")
    albar(6)
    def dft64(vaddr, base, data_is_b):
        for m in range(4): a(f"ds_read_b128 {V(FR+4*m,4)}, {vaddr} offset:{base + m*1024}")
        for m in range(8):
            a(f"s_waitcnt lgkmcnt({min(3, 7-m)})")
            fr = FR + 4*(m % 4)
            a(mfma(AC, FB + 4*m, fr, None if m == 0 else AC) if data_is_b else mfma(AC, fr, FB + 4*m, None if m == 0 else AC))
            if m < 4: a(f"ds_read_b128 {V(fr,4)}, {vaddr} offset:{base + (m+4)*1024}")
    dft64("v7", L_TB, True)
    a(f"""v_and_b32 v5, 0x30, v1
v_and_b32 v8, 3, v1
v_lshl_add_u32 v5, v8, 2, v5
v_bfe_u32 v8, v1, 2, 2
v_add_u32 v5, v5, v8
v_lshlrev_b32 v8, 4, v5
v_add_u32 v8, {L_YB}, v8
v_add_u32 v6, {L_YB}, v6""")
    for r in range(0, 8, 2):
        a(f"""v_pk_mul_f32 {V(FR+r,2)}, {V(AC+r,2)}, {V(WW+r,2)}
v_pk_mul_f32 {V(FR+8+r,2)}, {V(AC+r,2)}, {V(WW+8+r,2)}
v_pk_fma_f32 {V(FR+r,2)}, {V(AC+8+r,2)}, {V(WW+8+r,2)}, {V(FR+r,2)} neg_lo:[1,0,0] neg_hi:[1,0,0]
v_pk_fma_f32 {V(FR+8+r,2)}, {V(AC+8+r,2)}, {V(WW+r,2)}, {V(FR+8+r,2)} neg_lo:[1,0,1] neg_hi:[1,0,1]
v_cvt_pk_bf16_f32 v{TP+r}, v{FR+r}, v{FR+8+r}
v_cvt_pk_bf16_f32 v{TP+r+1}, v{FR+r+1}, v{FR+8+r+1}""")
    a(f"ds_write_b128 v6, {V(TP,4)}\nds_write_b128 v6, {V(TP+4,4)} offset:1024")
    albar(7)
    dft64("v8", 0, False)
    a(f"""v_and_b32 v5, 15, v1
v_lshlrev_b32 v5, 7, v5
v_lshl_add_u32 v5, v3, 4, v5
v_bfe_u32 v6, v1, 4, 1
v_lshl_add_u32 v5, v6, 3, v5
s_lshl_b32 {T1}, {S_W4}, 11
s_add_u32 {T1}, {T1}, {L_UB}
v_add_u32 v5, {T1}, v5
v_add_u32 v6, {T1}, v7
v_lshrrev_b32 v8, 3, v1
v_lshlrev_b32 v8, 15, v8
v_and_b32 v9, 7, v1
v_lshl_add_u32 v8, v9, 4, v8
s_lshr_b32 {T0}, {S_AI}, 2
s_lshl_b32 {T0}, {T0}, 12
s_and_b32 {T1}, {S_AI}, 3
s_lshl_b32 {T1}, {T1}, 7
s_add_u32 {T0}, {T0}, {T1}
s_lshl_b32 {T1}, {S_XCD}, 9
s_add_u32 {T0}, {T0}, {T1}
s_add_u32 {T0}, {T0}, {UBUF}
s_lshl_b32 {T1}, {S_W4}, 19
s_add_u32 {T0}, {T0}, {T1}
s_add_u32 {T2}, {T0}, {8*USTR}""")
    for q in range(8): a(f"v_cvt_pk_bf16_f32 v{TP+q}, v{AC+2*q}, v{AC+2*q+1}")
    for g in range(4): a(f"ds_write_b64 v5, {V(TP+2*g,2)} offset:{g*32}")
    a(f"""ds_read_b128 {V(FR,4)}, v6
ds_read_b128 {V(FR+4,4)}, v6 offset:1024
s_waitcnt lgkmcnt(1)
buffer_store_dwordx4 {V(FR,4)}, v8, {sWS}, {T0} offen sc1
s_waitcnt lgkmcnt(0)
buffer_store_dwordx4 {V(FR+4,4)}, v8, {sWS}, {T2} offen sc1
s_lshl_b32 {T0}, {S_W4}, 8
s_add_u32 {T0}, {T0}, {S_TASK}
s_lshl_b32 {T0}, {T0}, 7
s_add_u32 {T0}, {T0}, {FA2}
s_waitcnt vmcnt(0)""")
    flag(a, T0, 10)
    a("L_a2done:")
    stamp(a, 7)
    wo_issue(1); wo_read(1)
    U0 = 16; U1 = 32; AR = 200; AI = 216; UE = 232
    S_K1 = "s74"
    a(f"""s_add_u32 {S_K1}, {S_W4}, 3
s_cmp_eq_u32 {S_W4}, 0
s_cselect_b32 {S_K1}, 7, {S_K1}
s_sub_u32 {T0}, {S_K1}, {S_W4}
v_mul_u32_u24 v5, {T0}, v3
v_add_u32 v5, {S_W4}, v5
v_lshl_add_u32 v5, v5, 5, v2
v_min_u32 v5, 231, v5
v_lshlrev_b32 v5, 7, v5
s_lshr_b32 {T4}, {S_BP}, 4
s_lshl_b32 {T4}, {T4}, 15
s_add_u32 {T4}, {T4}, {FA2}""")
    if cfg.a3wait: a(f"s_sleep {cfg.a3wait}")
    poll(a, "v5", T4, 248, 8, sleep=16)
    stamp(a, 8)
    a(f"""s_lshl_b32 {T0}, {S_BP}, 15
s_add_u32 {T0}, {T0}, {UBUF}
s_lshl_b32 {T1}, {S_W4}, 12
s_lshl_b32 {T3}, {S_K1}, 12
s_add_u32 {T2}, {T0}, {T3}
s_add_u32 {T0}, {T0}, {T1}""")
    for m in range(4): a(f"buffer_load_dwordx4 {V(U0+4*m,4)}, v7, {sWS}, {T0} offen offset:{m*1024} sc1")
    for m in range(4): a(f"buffer_load_dwordx4 {V(U1+4*m,4)}, v7, {sWS}, {T2} offen offset:{m*1024} sc1")
    a(f"""v_add_u32 v8, {L_ZB}, v7
v_add_u32 v6, {T1}, v8
v_add_u32 v9, {T3}, v8""")
    def step6(ur, ui, va):
        for m in range(4):
            a(mfma(AR, ur + 4*m, MS + 6*m, None if m == 0 else AR)); a(mfma(AI, ui + 4*m, MS + 6*m + 2, None if m == 0 else AI))
        for q in range(16): a(f"v_cvt_pk_bf16_f32 v{UE+q}, v{AR+2*q}, v{AR+2*q+1}")
        for q in range(4): a(f"ds_write_b128 {va}, {V(UE+4*q,4)} offset:{q*1024}")
    a(f"s_cmp_eq_u32 {S_W4}, 0\ns_cbranch_scc1 L_a3w0\ns_waitcnt vmcnt(4)")
    step6(U0, U0, "v6")
    a("s_waitcnt vmcnt(0)")
    step6(U1, U1, "v9")
    a("s_branch L_a3z\nL_a3w0:\ns_waitcnt vmcnt(0)\ns_mov_b32 exec_lo, -2\ns_mov_b32 exec_hi, -2")
    for q in range(16): a(f"v_mov_b32 v{U1+q}, v{U0+q}")
    a("s_mov_b64 exec, -1")
    step6(U0, U1, "v6")
    a("L_a3z:")
    albar(10)
    stamp(a, 9)
    L, Dn = a.lab("we"), a.lab("wed")
    a(f"""s_setprio 0
v_mov_b32 v6, {L_SYNC}
s_mov_b32 {S_TO}, {cfg.poll_limit * 8}
{L}:
ds_read_b32 v5, v6
s_waitcnt lgkmcnt(0)
v_readfirstlane_b32 {T0}, v5
s_cmp_ge_u32 {T0}, 12
s_cbranch_scc1 {Dn}
s_sleep 3
s_sub_u32 {S_TO}, {S_TO}, 1
s_cbranch_scc0 {L}
s_mov_b32 {S_TO}, 17
s_branch L_fail
{Dn}:""")
    stamp(a, 10)
    ZR = 216; GS = 16; GP = 48; GC = 64
    sc = 1.0 / (2048 * 448)
    def zr(s_, va="v8"): return f"ds_read_b128 {V(ZR+4*(s_%8),4)}, {va} offset:{s_*1024}"
    order = [4*(q//4) + 2*(q % 2) + ((q//2) % 2) for q in range(28)]
    for q in range(8): a(f"ds_read_b128 {V(ZR+4*q,4)}, v8 offset:{order[q]*1024}")
    a(f"""v_bfe_u32 v5, v1, 2, 1
v_lshlrev_b32 v5, 4, v5
v_bfe_u32 v6, v1, 3, 2
v_lshl_add_u32 v5, v6, 2, v5
v_and_b32 v6, 3, v1
v_add_u32 v5, v5, v6
s_lshl_b32 {T0}, {S_DT}, 5
v_add_u32 v5, {T0}, v5                    ; d
v_lshlrev_b32 v9, 31, v5
v_xor_b32 v9, {lit(sc)}, v9               ; sc*(-1)^d
v_cvt_f32_u32 v5, v5
v_mul_f32 v5, {lit(1/448)}, v5
v_mul_f32 v6, v5, v4
v_mul_f32 v6, 4.0, v6
v_mul_f32 v{GC}, {lit(16.0)}, v5
v_cos_f32 v{GC}, v{GC}
v_mov_b32 v10, {lit(2*sc)}
v_mov_b32 v11, {lit(2*sc)}
v_mov_b32 v12, {lit(sc)}""")
    angles(16, "v5", "v6", [16*(j//8) + 8*((j%8)//4) + j%4 for j in range(16)], GS)
    a(f"v_add_f32 v{GC}, v{GC}, v{GC}")
    for j in range(16): a(f"v_sin_f32 v{GS+16+j}, v{GS+j}\nv_cos_f32 v{GS+j}, v{GS+j}")
    a(f"v_mov_b32 v{GC+1}, v{GC}\n.p2align 3")
    for j in range(0, 16, 2):
        a(f"v_pk_mul_f32 {V(GS+j,2)}, {V(GS+j,2)}, v[10:11]\nv_pk_mul_f32 {V(GS+16+j,2)}, {V(GS+16+j,2)}, v[10:11] neg_lo:[1,0] neg_hi:[1,0]")
    for q in range(28):
        rho = q % 2; st = q // 2
        cur = GS + 16*rho + 8*(st % 2); oth = GS + 16*rho + 8*((st + 1) % 2); gp = GP + 4*(q % 4)
        if st >= 2:
            for z in range(0, 8, 2):
                a(f"v_pk_fma_f32 {V(cur+z,2)}, {V(GC,2)}, {V(oth+z,2)}, {V(cur+z,2)} neg_lo:[0,0,1] neg_hi:[0,0,1]")
        for z in range(4): a(f"v_cvt_pk_bf16_f32 v{gp+z}, v{cur+2*z}, v{cur+2*z+1}")
        if st == 0:
            a(f"s_mov_b32 exec_hi, 0\nv_cvt_pk_bf16_f32 v{gp}, v{9 if rho else 12}, v{cur+1}\ns_mov_b32 exec_hi, -1")
        if q >= 1:
            p = q - 1
            a(f"s_waitcnt lgkmcnt({min(7, 27-p)})")
            a(mfma(AR, GP + 4*(p % 4), ZR + 4*(p % 8), None if p == 0 else AR))
            if p + 8 < 28: a(f"ds_read_b128 {V(ZR+4*(p%8),4)}, v8 offset:{order[p+8]*1024}")
    a("s_waitcnt lgkmcnt(0)")
    a(mfma(AR, GP + 4*(27 % 4), ZR + 4*(27 % 8), AR))
    def out_store(rowmul, colbase, skip):
        a(f"""v_mul_u32_u24 v5, {rowmul}, v2
v_lshl_add_u32 v5, v3, 5, v5
s_lshl_b32 {T1}, {S_DT}, 6
s_add_u32 {T0}, {T0}, {T1}
s_add_u32 {T0}, {T0}, {colbase}
s_cmp_ge_u32 {S_W4}, {S_CNT}
s_cbranch_scc1 {skip}""")
        for q in range(4): a(f"v_cvt_pk_bf16_f32 v{248+q}, v{AR+2*q}, v{AR+2*q+1}")
        a(f"buffer_store_dwordx4 v[248:251], v5, {sOUT}, {T0} offen")
        for q in range(4, 8): a(f"v_cvt_pk_bf16_f32 v{248+q}, v{AR+2*q}, v{AR+2*q+1}")
        a(f"buffer_store_dwordx4 v[252:255], v5, {sOUT}, {T0} offen offset:16\n{skip}:")
    a(f"s_mul_i32 {T0}, {S_BP}, 1792")
    out_store(64 * 1792, 0, "L_a3done")
    stamp(a, 11)
    a(f"""v_and_b32 v5, 3, v1
v_lshlrev_b32 v5, 7, v5
s_lshl_b32 {T4}, {S_BP}, 2
s_add_u32 {T4}, {T4}, {S_W4}
s_lshl_b32 {T3}, {T4}, 13
s_add_u32 {T3}, {T3}, {OBUF}
s_add_u32 {T2}, {T3}, 4096
s_lshl_b32 {T4}, {T4}, 9
s_add_u32 {T4}, {T4}, {FO}""")
    if cfg.owait: a(f"s_sleep {cfg.owait}")
    poll(a, "v5", T4, 246, 11, sleep=2)
    stamp(a, 13)
    for q in range(8):
        a(f"buffer_load_dwordx4 {V(16+4*q,4)}, v7, {sWS}, {T3 if q < 4 else T2} offen offset:{(q%4)*1024} sc1")
    a(f"""s_lshl_b32 {T1}, {S_W4}, 13
s_add_u32 {T1}, {T1}, {L_OB}
v_add_u32 v9, {T1}, v7
v_add_u32 v6, {L_OB}, v7""")
    for q in range(8):
        a(f"s_waitcnt vmcnt({7-q})\nds_write_b128 v9, {V(16+4*q,4)} offset:{q*1024}")
    lbar(a, "v14", "v15", 5, 12)
    for s_ in range(8): a(zr(s_, "v6"))
    for s_ in range(32):
        a(f"s_waitcnt lgkmcnt({min(7, 31-s_)})")
        a(mfma(AR, WO + 4*s_, ZR + 4*(s_ % 8), None if s_ == 0 else AR))
        if s_ + 8 < 32: a(zr(s_ + 8, "v6"))
    a(f"s_mul_i32 {T0}, {S_BP}, {32*1792}")
    out_store(1792, 896, "L_b3done")
    a(f"""s_lshl_b32 {T0}, s2, 2
s_add_u32 {T0}, {T0}, {S_W4}
s_cmp_lg_u32 {T0}, 0
s_cbranch_scc1 L_noep
s_mov_b32 {T0}, {EPOCH}""")
    flag(a, T0, 10)
    a("L_noep:")
    stamp(a, 12)
    dump_stamps(a, 16)
    a("s_endpgm")

def build():
    nh = cfg.nh; xh = 16 // nh
    for wg in range(256):
        xcd, idx = wg & 7, wg >> 3
        h = (xcd % xh) * nh + idx % nh
        assert ((idx + 28) & 31) < 28 or h < 14
    a = Asm()
    prologue(a); role_B(a); role_A(a)
    a(f"""L_fail:
v_mov_b32 v0, 0
v_mov_b32 v1, {S_TO}
global_store_dword v0, v1, s[18:19]
L_end:
s_endpgm
L_codeend:""")
    a.pad()
    hdr = open("cdna_kernels/" + NAME + ".s.ref").read().split("; Override launch")[0]
    s = hdr + f"; @launch grid=(256,1,1) block=(512,1,1) lds={LDS_SIZE}\n"
    s += f""".amdgcn_target "amdgcn-amd-amdhsa--gfx950"
.text
.globl {NAME}_kernel
.p2align 8
.type {NAME}_kernel,@function
{NAME}_kernel:
""" + a.text() + f""".section .rodata,"a"
.p2align 6
.amdhsa_kernel {NAME}_kernel
  .amdhsa_next_free_vgpr 256
  .amdhsa_next_free_sgpr 102
  .amdhsa_accum_offset 256
  .amdhsa_group_segment_fixed_size 0
  .amdhsa_kernarg_size 72
  .amdhsa_user_sgpr_count 2
  .amdhsa_user_sgpr_kernarg_segment_ptr 1
  .amdhsa_system_sgpr_workgroup_id_x 1
.end_amdhsa_kernel
"""
    return s

if __name__ == "__main__":
    out = sys.argv[1]
    for kv in sys.argv[2:]:
        k, v = kv.split("=")
        setattr(cfg, k, type(getattr(cfg, k))(int(v)))
    open(out, "w").write(build())
```

```python
import sys, math, struct
from asmlib import Asm

NAME = "concat_heads__spectral_gfnet__softmax_full_mha__prompt"

class Cfg:
    nh = 8
    stamps = False
    poll_limit = 1 << 17
    noA = 0
    padend = 0
    padmid = 0
    dbgwave = -1
    nbuf = 6
    a2wait = 0
    a3wait = 16
    kvwait = 0
    owait = 24
    aprio = 2
    force_fb = False
cfg = Cfg()

EPOCH = 0
KV = 0x10000; TS = 61440; VOFF = 28672
OBUF = 0x400000
TBUF = 0x600000
UBUF = 0x800000; USTR = 32768
FKV = 0xA00000; FA1 = 0xA20000; FA2 = 0xA40000; FO = 0xA60000
STAMP = 0xB00000
WS_SIZE = 0x1000000
L_W = 0; L_WQ = 57344; L_X = 86016; L_Q = 151552; L_SYNC = 159744
LDS_SIZE = 160000
L_RED = 0
L_TB = L_WQ; L_YB = L_WQ + 8192; L_UB = L_WQ + 16384
L_ZB = L_X; L_OB = L_X + 28672
sWS, sWQKV, sX, sWR, sWI, sWO, sOUT = [f"s[{i}:{i+3}]" for i in (24, 28, 32, 36, 40, 44, 48)]
S_WAVE, S_XCD, S_IDX, S_H, S_R, S_W4 = "s56", "s57", "s58", "s59", "s60", "s61"
S_NONCE = "s[62:63]"
S_TO, S_BAR = "s64", "s65"
T0, T1, T2, T3, T4, T5 = "s66", "s67", "s68", "s69", "s22", "s23"
STAMP0 = 84

def f2u(x): return struct.unpack("<I", struct.pack("<f", x))[0]
def lit(x): return "0x%08x" % f2u(x)
def V(a, n=1): return f"v{a}" if n == 1 else f"v[{a}:{a+n-1}]"

def srd(a, name, lo, size):
    i = int(name[2:name.index(":")])
    a(f"s_mov_b32 s{i}, s{lo}\ns_mov_b32 s{i+1}, s{lo+1}\ns_mov_b32 s{i+2}, {size}\ns_mov_b32 s{i+3}, 0x20000")

def stamp(a, i):
    if cfg.stamps:
        a(f"s_memtime s[100:101]\ns_waitcnt lgkmcnt(0)\ns_mov_b32 s{STAMP0+i}, s100")

def dump_stamps(a, vt):
    if not cfg.stamps: return
    a(f"s_memrealtime s[100:101]\ns_waitcnt lgkmcnt(0)\ns_mov_b32 s{STAMP0+14}, s100")
    if cfg.dbgwave >= 0:
        L = a.lab("nodbg")
        a(f"s_lshl_b32 {T0}, s2, 3\ns_add_u32 {T0}, {T0}, {S_WAVE}\ns_cmp_lg_u32 {T0}, {cfg.dbgwave}\ns_cbranch_scc1 {L}")
        a(f"v_mov_b32 v{vt+4}, 0\ns_mov_b64 exec, 1")
        for i in range(1, 16):
            a(f"s_sub_u32 {T1}, s{STAMP0+i}, s{STAMP0 + (15 if i >= 14 else 0)}\nv_mov_b32 v{vt}, {T1}\nglobal_store_dword v{vt+4}, v{vt}, s[18:19] offset:{4*i}")
        a(f"s_mov_b64 exec, -1\n{L}:")
    a(f"s_lshl_b32 {T0}, s2, 3\ns_add_u32 {T0}, {T0}, {S_WAVE}\ns_lshl_b32 {T0}, {T0}, 7\ns_add_u32 {T0}, {T0}, {STAMP}")
    a(f"v_mov_b32 v{vt+4}, 0\ns_mov_b64 exec, 1")
    for q in range(4):
        for i in range(4): a(f"v_mov_b32 v{vt+i}, s{STAMP0+4*q+i}")
        a(f"buffer_store_dwordx4 {V(vt,4)}, v{vt+4}, {sWS}, {T0} offen offset:{16*q}")
    a("s_mov_b64 exec, -1")

def padto(a, ticks):
    L = a.lab("pad")
    a(f"{L}:\ns_memrealtime s[100:101]\ns_waitcnt lgkmcnt(0)\ns_sub_u32 s100, s100, s{STAMP0+15}\ns_cmp_lt_u32 s100, {ticks}\ns_cbranch_scc1 {L}")

def poll(a, vaddr, soff, vt, code, sleep=2):
    L, Dn = a.lab("poll"), a.lab("polld")
    a(f"""s_mov_b32 {S_TO}, {cfg.poll_limit}
{L}:
buffer_load_dwordx2 {V(vt,2)}, {vaddr}, {sWS}, {soff} offen sc1
s_waitcnt vmcnt(0)
v_cmp_ne_u64 vcc, {S_NONCE}, {V(vt,2)}
s_cbranch_vccz {Dn}
s_sleep {sleep}
s_sub_u32 {S_TO}, {S_TO}, 1
s_cbranch_scc0 {L}
s_mov_b32 {S_TO}, {code}
s_branch L_fail
{Dn}:""")

def flag(a, soff, vt):
    a(f"""v_mov_b32 v{vt}, s62
v_mov_b32 v{vt+1}, s63
v_mov_b32 v{vt+2}, 0
s_mov_b64 exec, 1
buffer_store_dwordx2 {V(vt,2)}, v{vt+2}, {sWS}, {soff} offen sc1
s_mov_b64 exec, -1""")

def lbar(a, vsync, vone, vt, code, sleep=0):
    L, Dn = a.lab("lb"), a.lab("lbd")
    a(f"""s_add_u32 {S_BAR}, {S_BAR}, 4
s_mov_b64 exec, 1
ds_add_u32 {vsync}, {vone}
s_mov_b64 exec, -1
s_mov_b32 {S_TO}, {cfg.poll_limit * 8}
{L}:
ds_read_b32 v{vt}, {vsync}
s_waitcnt lgkmcnt(0)
v_readfirstlane_b32 {T0}, v{vt}
s_cmp_ge_u32 {T0}, {S_BAR}
s_cbranch_scc1 {Dn}
{"s_sleep %d" % sleep if sleep else ""}
s_sub_u32 {S_TO}, {S_TO}, 1
s_cbranch_scc0 {L}
s_mov_b32 {S_TO}, {code}
s_branch L_fail
{Dn}:""")

def mfma(d, A, B, C=None):
    return f"v_mfma_f32_32x32x16_bf16 {V(d,16)}, {V(A,4)}, {V(B,4)}, {'0' if C is None else V(C,16)}"

def mod7(a, s, t):
    a(f"s_mul_i32 {t}, {s}, 9363\ns_lshr_b32 {t}, {t}, 16\ns_mul_i32 {t}, {t}, 7\ns_sub_u32 {s}, {s}, {t}")

def x_read_addrs(a, v0, vl, base_s, t):
    a(f"""v_and_b32 v{t}, 31, {vl}
v_lshrrev_b32 v{t+1}, 5, {vl}
v_bfe_u32 v{t+2}, {vl}, 1, 3
v_xor_b32 v{t+1}, v{t+1}, v{t+2}
v_lshlrev_b32 v{t}, 7, v{t}
v_add_u32 v{t}, {base_s}, v{t}""")
    for mm in range(4):
        a(f"v_xor_b32 v{t+2}, {2*mm}, v{t+1}\nv_lshl_add_u32 v{v0+mm}, v{t+2}, 4, v{t}")


S_HH, S_RR, S_J = "s52", "s53", "s54"

def prologue(a):
    nh = cfg.nh; nr = 32 // nh; xh = 16 // nh
    lg = lambda x: x.bit_length() - 1
    a(f"""s_cmp_ge_u32 s2, 256
s_cbranch_scc1 L_end
s_load_dwordx16 s[4:19], s[0:1], 0
s_load_dwordx2 s[20:21], s[0:1], 64""")
    if cfg.stamps:
        a(f"s_memrealtime s[100:101]\ns_waitcnt lgkmcnt(0)\ns_mov_b32 s{STAMP0+15}, s100")
        for i in range(15): a(f"s_mov_b32 s{STAMP0+i}, 0")
        stamp(a, 0)
    a(f"""v_lshrrev_b32 v2, 6, v0
v_and_b32 v1, 63, v0
v_readfirstlane_b32 {S_WAVE}, v2
s_and_b32 {S_XCD}, s2, 7
s_lshr_b32 {S_IDX}, s2, 3
s_and_b32 {S_W4}, {S_WAVE}, 3
s_mov_b32 {S_BAR}, 0
s_cmp_ge_u32 {S_WAVE}, 4
s_cbranch_scc1 L_roleA""")

def nonce(a):
    a(f"""s_waitcnt lgkmcnt(0)
s_mul_i32 s62, s62, 0x9E3779B1
s_add_u32 s62, s62, 0x7F4A7C15
s_mul_i32 s63, s63, 0x85EBCA6D
s_add_u32 s63, s63, 0x165667B1""")

def role_B(a):
    nh = cfg.nh; nr = 32 // nh; xh = 16 // nh
    lg = lambda x: x.bit_length() - 1
    ra = {2: 3, 4: 2, 8: 1, 16: 1}[nh]
    X = 16; ACC = 128; WB = 160; PK = 224
    SC = 70
    S_XL, S_TILE, S_I = "s77", "s78", "s79"
    TO = 36
    a(f"""s_setprio 3
s_and_b32 {S_HH}, {S_IDX}, {nh-1}
s_lshr_b32 {S_RR}, {S_IDX}, {lg(nh)}
s_and_b32 {S_H}, {S_XCD}, {xh-1}
s_lshl_b32 {S_H}, {S_H}, {lg(nh)}
s_add_u32 {S_H}, {S_H}, {S_HH}
s_lshr_b32 {S_R}, {S_XCD}, {lg(xh)}
s_lshl_b32 {S_R}, {S_R}, {lg(nr)}
s_add_u32 {S_R}, {S_R}, {S_RR}
s_cmp_ge_u32 {S_H}, 14
s_cselect_b32 {T0}, 14, 0
s_sub_u32 {S_J}, {S_H}, {T0}
s_lshl_b32 {S_TILE}, {S_R}, 2
s_add_u32 {S_TILE}, {S_TILE}, {S_W4}
v_lshrrev_b32 v8, 3, v1
v_and_b32 v9, 7, v1
v_lshrrev_b32 v10, 4, v1
v_xor_b32 v10, v9, v10
v_xor_b32 v11, 4, v10
v_mul_u32_u24 v12, 896, v8
s_mul_i32 {T0}, {S_TILE}, {32*896}
v_add_u32 v12, {T0}, v12
v_lshl_add_u32 v4, v10, 4, v12
v_lshl_add_u32 v5, v11, 4, v12
v_add_u32 v5, {8*896}, v5
v_add_u32 v6, {16*896}, v4
v_add_u32 v7, {16*896}, v5
v_mul_u32_u24 v2, 2688, v8
v_bfe_u32 v3, v1, 4, 1
v_lshlrev_b32 v3, 2, v3
v_xor_b32 v3, v9, v3
v_lshl_add_u32 v2, v3, 4, v2
s_lshl_b32 {T0}, {S_J}, 7
s_mul_i32 {T1}, {S_W4}, {8*2688}
s_add_u32 {T0}, {T0}, {T1}
s_add_u32 {T0}, {T0}, 896
v_add_u32 v2, {T0}, v2
s_mul_i32 s{SC}, {S_HH}, {ra}""")
    mod7(a, f"s{SC}", T0)
    a(f"""s_lshl_b32 s{SC}, s{SC}, 7
s_lshl_b32 {S_XL}, {S_W4}, 14
s_add_u32 {S_XL}, {S_XL}, {L_X}
s_mul_i32 {S_I}, {S_RR}, 14
s_lshr_b32 {S_I}, {S_I}, {lg(nr)}
s_lshl_b32 {T3}, {S_W4}, 10
s_waitcnt lgkmcnt(0)
s_load_dwordx2 s[62:63], s[20:21], {EPOCH}""")
    srd(a, sX, 10, 2048 * 896)
    def x_m0(i, j): return f"s_add_u32 m0, {S_XL}, {(i%4)*4096 + j*1024}"
    def x_ld(i, j): return f"buffer_load_dwordx4 v{4+j}, {sX}, s{SC+i} offen lds"
    for j in range(4): a(x_m0(0, j)); a(x_ld(0, j))
    srd(a, sWQKV, 12, 448 * 2688)
    for i in range(14):
        a(f"""s_lshl_b32 {T0}, {S_I}, 12
s_add_u32 m0, {T0}, {T3}
s_mul_i32 {T1}, {S_I}, {32*2688}
buffer_load_dwordx4 v2, {sWQKV}, {T1} offen lds
s_add_u32 {S_I}, {S_I}, 1
s_cmp_eq_u32 {S_I}, 14
s_cselect_b32 {S_I}, 0, {S_I}""")
    for i in range(1, 7):
        a(f"s_add_u32 s{SC+i}, s{SC+i-1}, 128\ns_cmp_eq_u32 s{SC+i}, 896\ns_cselect_b32 s{SC+i}, 0, s{SC+i}")
    for j in range(4): a(x_m0(1, j)); a(x_ld(1, j))
    srd(a, sWS, 20, WS_SIZE)
    x_read_addrs(a, 8, "v1", S_XL, 12)
    a(f"""v_lshrrev_b32 v12, 5, v1
v_lshlrev_b32 v12, 3, v12
v_bfe_u32 v13, v1, 2, 2
v_add_u32 v12, v12, v13
v_bfe_u32 v13, v1, 4, 1
v_lshlrev_b32 v13, 5, v13
v_and_b32 v2, 1, v1
v_bfe_u32 v3, v1, 1, 1
v_lshl_add_u32 v15, v2, 4, v13
v_lshl_add_u32 v15, v3, 3, v15
v_lshl_add_u32 v14, v2, 3, v13
v_lshl_add_u32 v14, v3, 4, v14
s_cmp_ge_u32 {S_J}, 7
s_cselect_b64 vcc, -1, 0
v_cndmask_b32 v14, v15, v14, vcc
v_lshl_add_u32 v15, v12, 6, v15
v_add_u32 v15, {L_WQ}, v15
v_bfe_u32 v13, v1, 3, 1
v_lshl_add_u32 v14, v13, 6, v14
v_lshl_add_u32 v14, v12, 7, v14
v_mov_b32 v3, 0
v_mov_b32 v2, {L_SYNC}
ds_write2_b32 v2, v3, v3 offset0:0 offset1:32""")
    nonce(a)
    def w_base(i): return f"v_lshl_add_u32 v12, s{SC+i}, 6, v14\nv_xor_b32 v13, 64, v12"
    def w_reads(i):
        out = []
        for mm in range(4):
            for ct in range(2):
                for hf in range(2):
                    d = WB + (i % 2) * 32 + mm * 8 + ct * 4 + hf * 2
                    out.append(f"ds_read_b64_tr_b16 {V(d,2)}, v{12+ct} offset:{mm*2048 + hf*512}")
        return out
    def x_reads(i):
        return [f"ds_read_b128 {V(X+16*i+4*mm,4)}, v{8+mm} offset:{(i%4)*4096}" for mm in range(4)]
    a(w_base(0))
    a("s_waitcnt vmcnt(18)")
    for s_ in x_reads(0): a(s_)
    a("s_waitcnt vmcnt(4)")
    stamp(a, 1)
    a("s_barrier")
    wr0 = w_reads(0)
    for j in range(4):
        a(x_m0(2, j)); a(wr0[4*j]); a(x_ld(2, j)); a("\n".join(wr0[4*j+1:4*j+4]))
    a(f"s_cmp_ge_u32 {S_J}, 7\ns_cbranch_scc1 L_kvV")
    for var in ("K", "V"):
        if var == "V": a("L_kvV:")
        for i in range(7):
            a("s_waitcnt lgkmcnt(0)")
            fill = [[] for _ in range(8)]
            pre = [[] for _ in range(8)]
            if i + 3 < 7:
                for j in range(4): pre[j].append(x_m0(i+3, j)); fill[j].append(x_ld(i+3, j))
            if i + 1 < 7:
                out_after = 4 * (min(6, i + 3) - (i + 1))
                wr = w_reads(i + 1)
                fill[0] += [w_base(i + 1)]
                fill[1] += wr[0:3]; fill[2] += wr[3:6]; fill[3] += wr[6:9]; fill[4] += wr[9:13]; fill[5] += wr[13:16]
                fill[5] += [f"s_waitcnt vmcnt({out_after})"]
                fill[6] += x_reads(i + 1)
            for mm in range(4):
                for ct in range(2):
                    xr = X + 16*i + 4*mm; wr_ = WB + (i % 2) * 32 + mm * 8 + ct * 4
                    c = None if (i == 0 and mm == 0) else ACC + 16*ct
                    for s_ in pre[2*mm + ct]: a(s_)
                    a(mfma(ACC + 16*ct, wr_, xr, c) if var == "K" else mfma(ACC + 16*ct, xr, wr_, c))
                    for s_ in fill[2*mm + ct]: a(s_)
                if i == 6 and mm == 0:
                    a(f"s_mul_i32 {T4}, {S_TILE}, {TS}\ns_add_u32 {T4}, {T4}, {KV}\nv_lshlrev_b32 v7, 4, v1")
                    if var == "K":
                        a(f"s_lshl_b32 {T0}, {S_J}, 12\ns_add_u32 {T4}, {T4}, {T0}")
                    else:
                        a(f"""s_sub_u32 {T0}, {S_J}, 7
s_lshl_b32 {T1}, {T0}, 6
v_and_b32 v4, 31, v1
v_add_u32 v4, {T1}, v4
v_add_u32 v5, 32, v4
v_lshrrev_b32 v3, 5, v1
v_lshlrev_b32 v3, 9, v3
v_add_u32 v3, {VOFF}, v3""")
                if i == 6 and mm == 1 and var == "V":
                    for r in (4, 5):
                        a(f"""v_mul_u32_u24 v12, 2341, v{r}
v_lshrrev_b32 v12, 16, v12
v_mul_u32_u24 v12, {2048 - 28*16}, v12
v_lshl_add_u32 v{r}, v{r}, 4, v12
v_add_u32 v{r}, v{r}, v3""")
                if i == 6 and mm == 2 and var == "V":
                    a(f"""s_lshl_b32 {T1}, {T0}, 2
s_lshr_b32 {T2}, 0xDB96420, {T1}
s_and_b32 {T2}, {T2}, 15
s_lshr_b32 {T3}, 0x3223222, {T1}
s_and_b32 {T3}, {T3}, 15
s_lshl_b32 {T3}, {T3}, 4
v_lshrrev_b32 v12, 2, v1
v_lshlrev_b32 v12, 9, v12
v_and_b32 v13, 3, v1
v_lshl_add_u32 v12, v13, 4, v12
s_lshl_b32 {T2}, {T2}, 11
s_add_u32 {T2}, {T2}, {VOFF + 28*16}""")
        if var == "V":
            a(f"""v_add_u32 v12, {T2}, v12
v_cmp_eq_u32 vcc, 0, v13
v_mov_b32 v13, 0x3f803f80
v_cndmask_b32 v240, 0, v13, vcc
v_cndmask_b32 v241, 0, v13, vcc
v_cndmask_b32 v242, 0, v13, vcc
v_cndmask_b32 v243, 0, v13, vcc
s_bfm_b64 exec, {T3}, 0
buffer_store_dwordx4 v[240:243], v12, {sWS}, {T4} offen sc1
s_mov_b64 exec, -1""")
        else:
            a(f"s_cmp_ge_u32 {S_H}, 14\ns_cbranch_scc1 L_kvdone")
        for ct in range(2):
            for j in range(2):
                for q in range(4):
                    z = 8*ct + 4*j + q
                    a(f"v_cvt_pk_bf16_f32 v{PK+z}, v{ACC+2*z}, v{ACC+2*z+1}")
                if var == "K":
                    a(f"buffer_store_dwordx4 {V(PK+8*ct+4*j,4)}, v7, {sWS}, {T4} offen offset:{ct*2048+j*1024} sc1")
                else:
                    a(f"buffer_store_dwordx4 {V(PK+8*ct+4*j,4)}, v{4+ct}, {sWS}, {T4} offen offset:{j*1024} sc1")
        if var == "K": a("s_branch L_kvdone")
    a("L_kvdone:")
    stamp(a, 2)
    S_P0 = "s55"
    a(f"""v_lshrrev_b32 v6, 2, v1
v_mul_u32_u24 v6, 2688, v6
v_and_b32 v5, 3, v1
v_lshl_add_u32 v6, v5, 4, v6
s_mul_i32 {S_P0}, {S_H}, 7
s_lshr_b32 {S_P0}, {S_P0}, 1
s_lshl_b32 {T0}, {S_P0}, 4
s_mul_i32 {T1}, {S_W4}, {16*2688}
s_add_u32 {T0}, {T0}, {T1}
s_lshl_b32 {T1}, {S_W4}, 10
s_add_u32 {T1}, {T1}, {L_WQ}""")
    for i in range(7):
        a(f"s_add_u32 m0, {T1}, {i*4096}\ns_add_u32 {T2}, {T0}, {i*64*2688}\nbuffer_load_dwordx4 v6, {sWQKV}, {T2} offen lds")
    a("s_barrier")
    a(f"""s_lshl_b32 {T0}, {S_P0}, 9
v_add_u32 v4, {T0}, v7                    ; v4 = K offset
s_lshl_b32 {T0}, {S_H}, 11
s_add_u32 {T0}, {T0}, {VOFF}
v_add_u32 v6, {T0}, v7                    ; v6 = V offset
s_lshr_b32 {T1}, {S_P0}, 3
s_add_u32 {T0}, {S_P0}, 3
s_lshr_b32 {T0}, {T0}, 3
s_sub_u32 {T0}, {T0}, {T1}
v_and_b32 v8, 1, v1
v_mul_u32_u24 v8, {T0}, v8
v_bfe_u32 v9, v1, 1, 1
v_mul_u32_u24 v9, 7, v9
v_add_u32 v8, v8, v9
v_lshrrev_b32 v9, 2, v1
v_lshl_add_u32 v8, v9, 6, v8
v_lshlrev_b32 v8, 7, v8
s_lshl_b32 {T0}, {S_W4}, 4
s_add_u32 {T0}, {T0}, {T1}
s_lshl_b32 {T0}, {T0}, 7
s_add_u32 {T5}, {T0}, {FKV}
s_mov_b32 {T0}, {S_TILE}""")
    for t in range(16):
        a(f"s_mul_i32 s{TO+t}, {T0}, {TS}\ns_add_u32 s{TO+t}, s{TO+t}, {KV}\ns_add_u32 {T0}, {T0}, 4\ns_and_b32 {T0}, {T0}, 63")
    a(f"""v_mov_b32 v2, {L_SYNC}
v_mov_b32 v3, 1
s_lshl_b32 {T0}, {S_TILE}, 4
s_add_u32 {T0}, {T0}, {S_H}
s_lshl_b32 {T0}, {T0}, 7
s_add_u32 {T0}, {T0}, {FKV}
s_waitcnt vmcnt(7)""")
    flag(a, T0, 240)
    stamp(a, 3)
    a("s_waitcnt vmcnt(1)")
    stamp(a, 4)
    lbar(a, "v2", "v3", 5, 14)
    rd = []
    for i in range(7):
        for mm in range(4):
            for hf in range(2):
                pre = f"v_lshl_add_u32 v{12+i%2}, s{SC+i}, 5, v15\n" if (mm == 0 and hf == 0) else ""
                rd.append(pre + f"ds_read_b64_tr_b16 {V(WB+(i%4)*16+mm*4+hf*2,2)}, v{12+i%2} offset:{mm*1024+hf*256}")
    for s_ in rd[:14]: a(s_)
    for m in range(28):
        iss = min(56, 14 + 2*m)
        a(f"s_waitcnt lgkmcnt({iss - (2*m + 2)})")
        a(mfma(ACC, WB + ((m // 4) % 4) * 16 + (m % 4) * 4, X + 4*m, None if m == 0 else ACC))
        for s_ in rd[iss:iss+2]: a(s_)
    stamp(a, 5)
    NB = cfg.nbuf
    Q = 16; O = 48; SA = 112; KVB = 144; P0 = KVB + 16*NB; P1 = P0 + 4
    assert P1 + 4 <= 248
    QP = 248
    a(f"s_mov_b32 {T1}, {lit(28 ** -0.5 * math.log2(math.e))}")
    if cfg.kvwait: a(f"s_sleep {cfg.kvwait}")
    poll(a, "v8", T5, 10, 1, sleep=4)
    stamp(a, 6)
    def kv_loads(t, so=None):
        b = KVB + 16 * (t % NB); so = so or f"s{TO+t}"
        return [f"buffer_load_dwordx4 {V(b+4*j,4)}, v{4 if j < 2 else 6}, {sWS}, {so} offen offset:{(j%2)*1024} sc1" for j in range(4)]
    for t in range(2):
        for s_ in kv_loads(t): a(s_)
    for q in range(16): a(f"v_mul_f32 v{ACC+q}, {T1}, v{ACC+q}")
    for q in range(8): a(f"v_cvt_pk_bf16_f32 v{QP+q}, v{ACC+2*q}, v{ACC+2*q+1}")
    a(f"""s_lshl_b32 {T0}, {S_W4}, 11
s_add_u32 {T0}, {T0}, {L_Q}
v_add_u32 v8, {T0}, v7
s_bitcmp1_b32 {S_H}, 0
s_cselect_b32 exec_lo, -1, 0
s_mov_b32 exec_hi, 0
v_mov_b32 v{QP}, 0
v_mov_b32 v{QP+1}, 0
s_cselect_b32 exec_hi, 0, -1
s_mov_b32 exec_lo, 0
v_mov_b32 v{QP+6}, 0
v_mov_b32 v{QP+7}, 0
s_mov_b64 exec, -1
ds_write_b128 v8, {V(QP,4)}
ds_write_b128 v8, {V(QP+4,4)} offset:1024""")
    lbar(a, "v2", "v3", 5, 15)
    for i in range(4):
        a(f"""s_add_u32 {T0}, {S_W4}, {i+1}
s_and_b32 {T0}, {T0}, 3
s_lshl_b32 {T1}, {T0}, 11
s_add_u32 {T1}, {T1}, {L_Q}
v_add_u32 v8, {T1}, v7
ds_read_b128 {V(Q+8*i,4)}, v8
ds_read_b128 {V(Q+8*i+4,4)}, v8 offset:1024
s_mul_i32 {T0}, {T0}, 12288
s_add_u32 {T0}, {T0}, {(i%3)*4096 + L_RED}
v_add_u32 v{10+i}, {T0}, v7""")
    stamp(a, 7)
    a("s_waitcnt vmcnt(4) lgkmcnt(0)\ns_setprio 0")
    if cfg.padmid: padto(a, cfg.padmid)
    stamp(a, 8)
    a(mfma(SA, KVB, Q)); a(mfma(SA, KVB + 4, Q + 4, SA))
    a("s_nop 10\n.p2align 3")
    issued = 2
    for t in range(16):
        for i in range(4):
            n = 4 * t + i
            cur = SA + 16 * (n % 2); nxt = SA + 16 * ((n + 1) % 2)
            tn, inx = (t, i + 1) if i < 3 else (t + 1, 0)
            tp, ip = (t, i - 1) if i > 0 else (t - 1, 3)
            kb = lambda tt: KVB + 16 * (tt % NB)
            ms = [mfma(nxt, kb(tn), Q + 8*inx), mfma(nxt, kb(tn) + 4, Q + 8*inx + 4, nxt),
                  mfma(O + 16*ip, kb(tp) + 12, P1, O + 16*ip), mfma(O + 16*i, kb(t) + 8, P0, None if t == 0 else O + 16*i)]
            if n == 63: ms[0] = ms[1] = None
            if n == 0: ms[2] = None
            side = []
            if i in (1, 2) and issued <= min(15, t + NB - 1):
                side = kv_loads(issued); issued += 1
            if t == 15 and i >= 2:
                side = [f"ds_write_b128 v{10+i-2}, {V(O+16*(i-2)+4*q,4)} offset:{q*1024}" for q in range(4)]
            for p in range(4):
                if ms[p]: a(ms[p])
                if side: a(side.pop(0))
                wait = (i == 2 and p == 3 and t < 15)
                for e in range(4):
                    if wait and e == 3:
                        a(f"s_waitcnt vmcnt({4 * (issued - (t + 2))})\nv_exp_f32_e64 v{cur+4*p+e}, v{cur+4*p+e}")
                    else:
                        a(f"v_exp_f32 v{cur+4*p+e}, v{cur+4*p+e}")
                pk = (P0, P0 + 2, P1, P1 + 2)[p]
                a(f"v_cvt_pk_bf16_f32 v{pk}, v{cur+4*p}, v{cur+4*p+1}\nv_cvt_pk_bf16_f32 v{pk+1}, v{cur+4*p+2}, v{cur+4*p+3}")
    a("s_setprio 3")
    for q in range(4): a(f"ds_write_b128 v12, {V(O+32+4*q,4)} offset:{q*1024}")
    a(mfma(O + 48, KVB + 16 * (15 % NB) + 12, P1, O + 48))
    stamp(a, 9)
    lbar(a, "v2", "v3", 5, 2)
    OO = O + 48
    for q in range(12): a(f"ds_read_b128 {V(O+4*q,4)}, v13 offset:{q*1024}")
    a(f"""s_lshl_b32 {T3}, {S_TILE}, 4
s_add_u32 {T3}, {T3}, {S_H}
s_lshl_b32 {T4}, {T3}, 11
s_add_u32 {T4}, {T4}, {OBUF}
s_lshl_b32 {T3}, {T3}, 7
s_add_u32 {T3}, {T3}, {FO}
s_mov_b32 {T0}, {lit(2.0**-40)}
s_mov_b32 {T1}, {lit(2.0**30)}
s_movk_i32 {T2}, 0x1f8""")
    for s_ in range(3):
        a(f"s_waitcnt lgkmcnt({8-4*s_})")
        for q in range(0, 16, 2): a(f"v_pk_add_f32 {V(OO+q,2)}, {V(OO+q,2)}, {V(O+16*s_+q,2)}")
    a(f"""v_mov_b32 v10, v{OO+12}
v_mov_b32 v11, v{OO+12}
v_pk_add_f32 v[12:13], {V(OO,2)}, {V(OO+2,2)}
v_pk_add_f32 v[14:15], {V(OO+4,2)}, {V(OO+6,2)}
v_permlane32_swap_b32 v10, v11
v_pk_add_f32 v[12:13], v[12:13], {V(OO+8,2)}
v_pk_add_f32 v[14:15], v[14:15], {V(OO+10,2)}
v_rcp_f32 v10, v11
v_pk_add_f32 v[12:13], v[12:13], {V(OO+12,2)}
v_pk_add_f32 v[14:15], v[14:15], {V(OO+14,2)}
v_cmp_le_f32 s[70:71], {T0}, v11
v_pk_add_f32 v[12:13], v[12:13], v[14:15]
v_cmp_ge_f32 s[72:73], {T1}, v11
v_add_f32 v12, v12, v13
v_cmp_class_f32 vcc, v12, {T2}
s_and_b64 s[70:71], s[70:71], s[72:73]
s_and_b64 vcc, vcc, s[70:71]
s_cmp_eq_u64 vcc, exec""")
    if cfg.force_fb: a("s_cmp_eq_u32 0, 1")
    a(f"s_cbranch_scc0 L_fallback\nL_fbdone:\nv_mov_b32 v11, v10")
    for hf in range(2):
        for q in range(8*hf, 8*hf+8, 2): a(f"v_pk_mul_f32 {V(OO+q,2)}, {V(OO+q,2)}, v[10:11]")
        for q in range(4*hf, 4*hf+4): a(f"v_cvt_pk_bf16_f32 v{O+q}, v{OO+2*q}, v{OO+2*q+1}")
        if hf: a(f"s_mov_b32 exec_lo, 0\nv_mov_b32 v{O+6}, 0\ns_mov_b32 exec_lo, -1")
        a(f"buffer_store_dwordx4 {V(O+4*hf,4)}, v7, {sWS}, {T4} offen offset:{1024*hf} sc1")
    stamp(a, 10)
    a("s_waitcnt vmcnt(0)")
    flag(a, T3, 240)
    stamp(a, 12)
    dump_stamps(a, 240)
    a("s_endpgm")
    a("L_fallback:")
    QO = Q + 24; KB = KVB; M = 15; S_SO = "s70"
    a(f"v_mov_b32 v{M}, 0xff800000\ns_mov_b32 {S_SO}, {KV}\nL_fb1:")
    for s_ in kv_loads(0, S_SO)[:2]: a(s_)
    a(f"s_add_u32 {S_SO}, {S_SO}, {TS}\ns_waitcnt vmcnt(0)")
    a(mfma(SA, KB, QO)); a(mfma(SA, KB + 4, QO + 4, SA))
    for q in range(0, 16, 2): a(f"v_max3_f32 v{M}, v{M}, v{SA+q}, v{SA+q+1}")
    a(f"""s_cmp_lt_u32 {S_SO}, {KV + 64*TS}
s_cbranch_scc1 L_fb1
v_mov_b32 v14, v{M}
v_permlane32_swap_b32 v14, v{M}
v_max_f32 v{M}, v14, v{M}
s_mov_b32 {S_SO}, {KV}""")
    for q in range(16): a(f"v_mov_b32 v{OO+q}, 0")
    a("L_fb2:")
    for s_ in kv_loads(0, S_SO): a(s_)
    a(f"s_add_u32 {S_SO}, {S_SO}, {TS}\ns_waitcnt vmcnt(0)")
    a(mfma(SA, KB, QO)); a(mfma(SA, KB + 4, QO + 4, SA))
    for q in range(16): a(f"v_sub_f32 v{SA+q}, v{SA+q}, v{M}")
    for q in range(16): a(f"v_exp_f32 v{SA+q}, v{SA+q}")
    for q in range(8): a(f"v_cvt_pk_bf16_f32 v{P0+q}, v{SA+2*q}, v{SA+2*q+1}")
    a(mfma(OO, KB + 8, P0, OO)); a(mfma(OO, KB + 12, P1, OO))
    a(f"""s_cmp_lt_u32 {S_SO}, {KV + 64*TS}
s_cbranch_scc1 L_fb2
v_mov_b32 v10, v{OO+12}
v_mov_b32 v11, v{OO+12}
v_permlane32_swap_b32 v10, v11
v_rcp_f32 v10, v11
s_branch L_fbdone""")

def role_A(a):
    nh = cfg.nh; xh = 16 // nh
    assert nh <= 8
    FB = 16; MS = 48; M = 72; F = 88; ACC = 200; TMP = 216; WO = 72
    S_AI, S_B, S_KT16, S_BP = "s75", "s76", "s77", "s78"
    S_CG, S_CNT, S_CB, S_DT, S_TASK, S_KT32 = "s79", "s80", "s81", "s82", "s83", "s74"
    def albar(code): lbar(a, "v14", "v15", 5, code, sleep=1)
    a("L_roleA:")
    a(f"""v_lshrrev_b32 v2, 2, v1
s_mul_i32 {T0}, {S_IDX}, 14
v_add_u32 v2, {T0}, v2
v_min_u32 v2, 447, v2
v_mul_u32_u24 v2, 2688, v2
v_and_b32 v3, 3, v1
v_lshl_add_u32 v2, v3, 7, v2
s_and_b32 {T0}, {S_XCD}, {xh-1}
s_mul_i32 {T0}, {T0}, {56*nh}
s_and_b32 {T0}, {T0}, 0xffffff80
s_lshl_b32 {T1}, {S_IDX}, 4
v_add_u32 v3, {T1}, v1
v_lshlrev_b32 v3, 7, v3
s_getpc_b64 s[70:71]
L_pc:
s_sub_u32 s70, s70, L_pc-{NAME}_kernel
s_subb_u32 s71, s71, 0
s_waitcnt lgkmcnt(0)
s_load_dwordx2 s[62:63], s[20:21], {EPOCH}""")
    srd(a, sWQKV, 12, 448 * 2688)
    srd(a, sOUT, 70, f"L_codeend-{NAME}_kernel")
    a(f"""s_cmp_eq_u32 {S_W4}, 0
s_cbranch_scc0 L_pf1
buffer_load_dword v255, v2, {sWQKV}, {T0} offen
L_pf1:
s_cmp_eq_u32 {S_W4}, 1
s_cbranch_scc0 L_pf2
s_mov_b64 exec, 0xffff
buffer_load_dword v255, v3, {sOUT}, 0 offen
s_mov_b64 exec, -1
L_pf2:
s_add_u32 {S_AI}, {S_IDX}, 28
s_and_b32 {S_AI}, {S_AI}, 31
s_mul_i32 {T0}, {S_AI}, 9363
s_lshr_b32 {T0}, {T0}, 16                 ; aidx/7
s_mul_i32 {T1}, {T0}, 7
s_sub_u32 {S_KT32}, {S_AI}, {T1}
s_lshl_b32 {S_B}, {S_XCD}, 2
s_add_u32 {S_B}, {S_B}, {T0}
s_lshl_b32 {S_B}, {S_B}, 1
s_lshr_b32 {T0}, {S_W4}, 1
s_add_u32 {S_B}, {S_B}, {T0}              ; b
s_and_b32 {S_B}, {S_B}, 63
s_lshl_b32 {S_KT16}, {S_KT32}, 1
s_and_b32 {T0}, {S_W4}, 1
s_add_u32 {S_KT16}, {S_KT16}, {T0}
s_lshl_b32 {S_BP}, {S_XCD}, 3
s_lshr_b32 {T0}, {S_IDX}, 2
s_add_u32 {S_BP}, {S_BP}, {T0}
v_and_b32 v2, 31, v1                      ; v2 = lane%32
v_lshrrev_b32 v3, 5, v1                   ; v3 = half
v_cvt_f32_u32 v4, v3""")
    A0 = TMP; A1 = TMP + 8; C2 = TMP + 16
    a(f"""v_and_b32 v5, 15, v1
s_lshl_b32 {T0}, {S_KT16}, 4
v_add_u32 v5, {T0}, v5                    ; k
v_bfe_u32 v6, v1, 4, 1
v_lshl_add_u32 v7, v5, 1, v6
v_cmp_eq_u32 vcc, 1, v7
v_mov_b32 v7, 224
v_cndmask_b32 v5, v5, v7, vcc
v_cndmask_b32 v6, v6, 0, vcc
v_cvt_f32_u32 v5, v5
v_cvt_f32_u32 v6, v6
v_mul_f32 v5, {lit(1/448)}, v5            ; kf
v_mul_f32 v6, {lit(0.25)}, v6
v_mul_f32 v7, v5, v4
v_fmamk_f32 v6, v7, {lit(8.0)}, v6
v_mul_f32 v{C2}, {lit(16.0)}, v5
v_cos_f32 v{C2}, v{C2}""")
    for j in range(16):
        a(f"v_fmamk_f32 v{A0+j}, v5, {lit(float(j % 8 + 16 * (j // 8)))}, v6")
    a(f"v_add_f32 v{C2}, v{C2}, v{C2}")
    for j in range(16): a(f"v_cos_f32 v{A0+j}, v{A0+j}")
    a(f"v_mov_b32 v{C2+1}, v{C2}\n.p2align 3")
    for m in range(28):
        cur = A0 if m % 2 == 0 else A1; oth = A1 if m % 2 == 0 else A0
        if m >= 2:
            for q in range(0, 8, 2):
                a(f"v_pk_fma_f32 {V(cur+q,2)}, {V(C2,2)}, {V(oth+q,2)}, {V(cur+q,2)} neg_lo:[0,0,1] neg_hi:[0,0,1]")
        for q in range(4): a(f"v_cvt_pk_bf16_f32 v{F+4*m+q}, v{cur+2*q}, v{cur+2*q+1}")
    nonce(a)
    stamp(a, 1)
    a("s_barrier")
    srd(a, sWS, 20, WS_SIZE)
    srd(a, sX, 4, 2048 * 896); srd(a, sWR, 6, 2048 * 450); srd(a, sWI, 8, 2048 * 450)
    srd(a, sWO, 14, 448 * 896); srd(a, sOUT, 16, 2048 * 1792)
    a(f"""v_lshrrev_b32 v6, 3, v1
v_and_b32 v7, 7, v1
v_lshrrev_b32 v8, 4, v1
v_xor_b32 v7, v7, v8
v_xor_b32 v8, 4, v7
v_mul_u32_u24 v6, {64*896}, v6
s_and_b32 {T0}, {S_W4}, 1
s_mul_i32 {T1}, {T0}, {16*64*896}
s_mul_i32 {T2}, {S_B}, 896
s_add_u32 {T1}, {T1}, {T2}
v_add_u32 v6, {T1}, v6
v_lshl_add_u32 v12, v7, 4, v6
v_lshl_add_u32 v13, v8, 4, v6
v_add_u32 v13, {8*64*896}, v13
s_lshr_b32 {T2}, {S_W4}, 1
s_mul_i32 {T2}, {T2}, 28672
s_add_u32 {T2}, {T2}, {L_X}
s_lshl_b32 {T0}, {T0}, 11
s_add_u32 {T3}, {T2}, {T0}""")
    x_read_addrs(a, 8, "v1", T2, TMP)
    a(f"v_mov_b32 v14, {L_SYNC+128}\nv_mov_b32 v15, 1")
    def angles(n, vstep, vbase, offs, dst=TMP):
        for j in range(n): a(f"v_fmamk_f32 v{dst+j}, {vstep}, {lit(float(offs[j]))}, {vbase}")
    def gen_M():
        a(f"""v_cvt_f32_u32 v5, v2
v_lshlrev_b32 v6, 8, v3
v_add_u32 v6, {S_B}, v6
v_cvt_f32_u32 v6, v6
v_mul_f32 v6, v6, v5
v_mul_f32 v6, {lit(1/2048)}, v6
v_mul_f32 v5, {lit(1/32)}, v5""")
        angles(16, "v5", "v6", [16*(j//8) + 8*((j%8)//4) + j%4 for j in range(16)])
        for j in range(16): a(f"v_sin_f32 v{TMP+16+j}, v{TMP+j}\nv_cos_f32 v{TMP+j}, v{TMP+j}")
        for q in range(8): a(f"v_cvt_pk_bf16_f32 v{M+8+q}, -v{TMP+16+2*q}, -v{TMP+16+2*q+1}")
        for q in range(8): a(f"v_cvt_pk_bf16_f32 v{M+q}, v{TMP+2*q}, v{TMP+2*q+1}")
    def gen_MS():
        a(f"""v_lshlrev_b32 v5, 6, v2
v_add_u32 v5, {S_BP}, v5
v_cvt_f32_u32 v5, v5
v_mul_f32 v5, {lit(1/2048)}, v5
v_mul_f32 v6, v5, v4
v_mul_f32 v6, 4.0, v6""")
        angles(16, "v5", "v6", [8*(j//4) + j%4 for j in range(16)])
        for j in range(16): a(f"v_sin_f32 v{TMP+16+j}, v{TMP+j}\nv_cos_f32 v{TMP+j}, v{TMP+j}")
        for m in range(4):
            for q in range(2):
                c = TMP + 4*m + 2*q; s_ = c + 16
                a(f"v_cvt_pk_bf16_f32 v{MS+6*m+2+q}, v{s_}, v{s_+1}\nv_cvt_pk_bf16_f32 v{MS+6*m+q}, v{c}, v{c+1}\nv_cvt_pk_bf16_f32 v{MS+6*m+4+q}, -v{c}, -v{c+1}")
    def gen_FB():
        a(f"""v_and_b32 v5, 15, v1
s_lshl_b32 {T0}, {S_W4}, 4
v_add_u32 v5, {T0}, v5
v_cvt_f32_u32 v5, v5
v_mul_f32 v5, {lit(1/64)}, v5
v_bfe_u32 v6, v1, 4, 1
v_cvt_f32_u32 v6, v6
v_mul_f32 v6, {lit(0.25)}, v6
v_mul_f32 v7, v5, v4
v_fmamk_f32 v6, v7, {lit(4.0)}, v6""")
        for hh in range(2):
            angles(16, "v5", "v6", [8*((16*hh+j)//4) + j%4 for j in range(16)])
            for j in range(16): a(f"v_sin_f32 v{TMP+16+j}, v{TMP+j}\nv_cos_f32 v{TMP+j}, v{TMP+j}")
            for j in range(16): a(f"v_cvt_pk_bf16_f32 v{FB+16*hh+j}, v{TMP+j}, v{TMP+16+j}")
    gen_M(); gen_MS()
    stamp(a, 2)
    a("s_barrier")
    if cfg.noA == 1:
        stamp(a, 12); dump_stamps(a, 16); a("s_endpgm")
    a(f"s_cmp_ge_u32 {S_AI}, 28\ns_cbranch_scc1 L_noxa\ns_lshl_b32 {T1}, {S_KT32}, 7")
    for c in range(7):
        a(f"""s_lshl_b32 {T2}, {T1}, 5
s_add_u32 m0, {T3}, {T2}
s_add_u32 {T2}, {T2}, 1024
buffer_load_dwordx4 v12, {sX}, {T1} offen lds
s_add_u32 m0, {T3}, {T2}
s_add_u32 {T4}, {T1}, 128
buffer_load_dwordx4 v13, {sX}, {T1} offen lds
s_cmp_eq_u32 {T4}, 896
s_cselect_b32 {T1}, 0, {T4}""")
    a("L_noxa:")
    gen_FB()
    a(f"s_waitcnt vmcnt(0)")
    stamp(a, 3)
    albar(16)
    a(f"s_setprio {cfg.aprio}\ns_cmp_ge_u32 {S_AI}, 28\ns_cbranch_scc1 L_a1done")
    def xr(m): return f"ds_read_b128 {V(TMP+4*(m%8),4)}, v{8+m%4} offset:{(m//4)*4096}"
    for m in range(8): a(xr(m))
    for m in range(28):
        a(f"s_waitcnt lgkmcnt({min(7, 27-m)})")
        a(mfma(ACC, TMP + 4*(m % 8), F + 4*m, None if m == 0 else ACC))
        if m + 8 < 28: a(xr(m + 8))
    P1 = F; P2 = F + 16; XP = TMP
    a(f"""v_lshrrev_b32 v5, 2, v2
v_lshlrev_b32 v5, 13, v5
v_lshl_add_u32 v5, v3, 6, v5
v_and_b32 v6, 3, v1
v_lshl_add_u32 v5, v6, 4, v5
s_lshl_b32 {T0}, {S_KT16}, 17
s_lshl_b32 {T1}, {S_B}, 7
s_add_u32 {T0}, {T0}, {T1}
s_add_u32 {T0}, {T0}, {TBUF}
s_add_u32 {T2}, {T0}, 65536""")
    for q in range(8): a(f"v_cvt_pk_bf16_f32 v{XP+q}, v{ACC+2*q}, v{ACC+2*q+1}")
    a(mfma(P1, XP, M)); a(mfma(P2, XP, M + 8)); a(mfma(P1, XP + 4, M + 4, P1)); a(mfma(P2, XP + 4, M + 12, P2))
    for r in range(0, 8, 2):
        a(f"v_pk_add_f32 {V(ACC+r,2)}, {V(P1+r,2)}, {V(P2+r+8,2)} neg_lo:[0,1] neg_hi:[0,1]\nv_pk_add_f32 {V(ACC+8+r,2)}, {V(P1+r+8,2)}, {V(P2+r,2)}")
    for r in range(8): a(f"v_cvt_pk_bf16_f32 v{XP+8+r}, v{ACC+r}, v{ACC+8+r}")
    a(f"""s_cmp_lg_u32 {S_KT16}, 0
s_cbranch_scc1 L_a1st
s_mov_b32 exec_hi, 0
v_cvt_pk_bf16_f32 v{XP+8}, v{P1}, v{P2}
v_cvt_pk_bf16_f32 v6, v{P1+8}, v{P2+8}
s_add_u32 {T1}, {T1}, {TBUF + 224*8192}
buffer_store_dword v6, v5, {sWS}, {T1} offen sc1
s_mov_b32 exec_hi, -1
L_a1st:
buffer_store_dwordx4 {V(XP+8,4)}, v5, {sWS}, {T0} offen sc1
buffer_store_dwordx4 {V(XP+12,4)}, v5, {sWS}, {T2} offen sc1
s_lshl_b32 {T0}, {S_KT16}, 6
s_add_u32 {T0}, {T0}, {S_B}
s_lshl_b32 {T0}, {T0}, 7
s_add_u32 {T0}, {T0}, {FA1}
s_waitcnt vmcnt(0)""")
    flag(a, T0, 10)
    a("L_a1done:")
    stamp(a, 4)
    a(f"""s_cmp_ge_u32 {S_W4}, 2
s_cbranch_scc1 L_pf3
v_bfe_u32 v5, v1, 4, 1
v_mul_u32_u24 v5, 14400, v5
v_and_b32 v6, 15, v1
v_lshl_add_u32 v5, v6, 7, v5
s_mul_i32 {T0}, {S_IDX}, 28800
s_mul_i32 {T1}, {S_XCD}, 1800
s_add_u32 {T0}, {T0}, {T1}
s_mov_b32 exec_hi, 0
s_cmp_eq_u32 {S_W4}, 0
s_cbranch_scc0 L_pf4
buffer_load_ushort v255, v5, {sWR}, {T0} offen
s_branch L_pf5
L_pf4:
buffer_load_ushort v255, v5, {sWI}, {T0} offen
s_branch L_pf5
L_pf3:
v_lshlrev_b32 v5, 7, v1
s_lshl_b32 {T0}, {S_IDX}, 1
s_add_u32 {T0}, {T0}, {S_W4}
s_sub_u32 {T0}, {T0}, 2
s_mul_i32 {T0}, {T0}, {49*128}
s_bfm_b64 exec, 49, 0
buffer_load_dword v255, v5, {sWO}, {T0} offen
L_pf5:
s_mov_b64 exec, -1""")
    a(f"""s_and_b32 {S_CG}, {S_IDX}, 3
s_cmp_ge_u32 {S_CG}, 2
s_cselect_b32 {S_CNT}, 3, 4
s_lshl_b32 {S_CB}, {S_CG}, 2
s_cmp_eq_u32 {S_CG}, 3
s_cselect_b32 {S_CB}, 11, {S_CB}
s_add_u32 {S_DT}, {S_CB}, {S_W4}
v_lshrrev_b32 v5, 4, v1
v_bfe_u32 v6, v1, 2, 2
v_xor_b32 v6, v6, v5
s_sub_u32 {T0}, {S_CNT}, 1
v_min_u32 v6, {T0}, v6
v_add_u32 v6, {S_CB}, v6
v_lshlrev_b32 v6, 6, v6
v_mul_u32_u24 v5, 896, v5
v_add_u32 v5, v5, v6
v_and_b32 v6, 3, v1
v_lshl_add_u32 v13, v6, 4, v5
s_mul_i32 {T4}, {S_W4}, {4*896}
v_add_u32 v13, {T4}, v13
v_lshlrev_b32 v7, 4, v1                   ; v7 = lane*16""")
    def wo_issue(rnd):
        a(f"s_lshl_b32 {T3}, {S_W4}, 10\ns_add_u32 {T3}, {T3}, {L_X}")
        for i in range(14):
            a(f"s_add_u32 m0, {T3}, {i*4096}\ns_mov_b32 {T1}, {(rnd*224 + i*16)*896}\nbuffer_load_dwordx4 v13, {sWO}, {T1} offen lds")
    def wo_read(rnd):
        a(f"""v_bfe_u32 v5, v1, 2, 2
v_xor_b32 v6, {S_W4}, v5
v_lshlrev_b32 v6, 6, v6
v_lshl_add_u32 v5, v5, 8, v6
v_and_b32 v6, 1, v1
v_lshl_add_u32 v5, v6, 5, v5
v_bfe_u32 v6, v1, 4, 1
v_lshl_add_u32 v5, v6, 4, v5
v_bfe_u32 v6, v1, 1, 1
v_lshl_add_u32 v5, v6, 3, v5
v_add_u32 v9, {L_X}, v5
v_lshl_add_u32 v8, v3, 10, v9
s_waitcnt vmcnt(0)""")
        albar(4)
        for hl in range(8):
            for mu in range(2):
                for sec in range(2):
                    d = WO + (rnd*8 + hl)*8 + mu*4 + sec*2
                    a(f"ds_read_b64_tr_b16 {V(d,2)}, v{9 if (mu and sec) else 8} offset:{(28*hl + 16*mu + 8*sec)*256}")
        a("s_waitcnt lgkmcnt(0)")
        albar(13)
    WW = 200; AC = 216; FR = 232; TP = 248
    a(f"""v_bfe_u32 v5, v1, 2, 2
s_lshl_b32 {T0}, {S_XCD}, 2
v_add_u32 v5, {T0}, v5                    ; c
v_bfe_u32 v6, v1, 4, 1
v_and_b32 v8, 3, v1
v_lshl_add_u32 v6, v6, 2, v8
s_lshl_b32 {T0}, {S_AI}, 3
v_add_u32 v6, {T0}, v6                    ; k
v_lshl_add_u32 v5, v3, 7, v5
s_lshl_b32 {T0}, {S_W4}, 9
v_add_u32 v5, {T0}, v5                    ; u for r=0
v_mul_u32_u24 v5, 225, v5
v_add_lshl_u32 v12, v5, v6, 1""")
    for r in range(16): a(f"v_mov_b32 v{WW+r}, 0")
    a("s_waitcnt vmcnt(0)")
    albar(3)
    a(f"s_cmp_ge_u32 {S_AI}, 29\ns_cbranch_scc1 L_now")
    for r in range(8):
        a(f"""s_mov_b32 {T0}, {14400*(8*(r//4) + r%4)}
buffer_load_short_d16_hi v{WW+r}, v12, {sWR}, {T0} offen
buffer_load_short_d16_hi v{WW+8+r}, v12, {sWI}, {T0} offen""")
    a("L_now:")
    wo_issue(0); wo_read(0)
    stamp(a, 5)
    a(f"""s_cmp_ge_u32 {S_AI}, 29
s_cbranch_scc1 L_a2done
s_lshl_b32 {S_TASK}, {S_AI}, 3
s_add_u32 {S_TASK}, {S_TASK}, {S_XCD}
s_lshr_b32 {T4}, {S_AI}, 1
s_cmp_eq_u32 {S_AI}, 28
s_cselect_b32 {T4}, 0, {T4}
v_and_b32 v6, 15, v1
v_lshlrev_b32 v6, 7, v6
s_lshl_b32 {T4}, {T4}, 13
s_lshl_b32 {T1}, {S_W4}, 11
s_add_u32 {T4}, {T4}, {T1}
s_add_u32 {T4}, {T4}, {FA1}""")
    if cfg.a2wait: a(f"s_sleep {cfg.a2wait}")
    poll(a, "v6", T4, TP, 5, sleep=16)
    stamp(a, 6)
    a(f"""v_lshlrev_b32 v5, 2, v2
v_lshl_add_u32 v5, v3, 9, v5
s_lshl_b32 {T0}, {S_TASK}, 13
s_add_u32 {T0}, {T0}, {T1}
s_add_u32 {T0}, {T0}, {TBUF}""")
    for q in range(8):
        a(f"buffer_load_dword v{FR+q}, v5, {sWS}, {T0} offen offset:{(q//4)*1024 + (q%4)*128} sc1")
    a(f"""v_add_u32 v6, {T1}, v7
s_cmp_eq_u32 {S_AI}, 28
s_cbranch_scc0 L_a2nx""")
    for r in range(8):
        a(f"v_mov_b32 v{TP}, v{WW+r}\nv_xor_b32 v{WW+r}, 0x80000000, v{WW+8+r}\nv_mov_b32 v{WW+8+r}, v{TP}")
    a(f"""L_a2nx:
s_waitcnt vmcnt(0)
ds_write_b128 v6, {V(FR,4)} offset:{L_TB}
ds_write_b128 v6, {V(FR+4,4)} offset:{L_TB+1024}""")
    albar(6)
    def dft64(vaddr, base, data_is_b):
        for m in range(4): a(f"ds_read_b128 {V(FR+4*m,4)}, {vaddr} offset:{base + m*1024}")
        for m in range(8):
            a(f"s_waitcnt lgkmcnt({min(3, 7-m)})")
            fr = FR + 4*(m % 4)
            a(mfma(AC, FB + 4*m, fr, None if m == 0 else AC) if data_is_b else mfma(AC, fr, FB + 4*m, None if m == 0 else AC))
            if m < 4: a(f"ds_read_b128 {V(fr,4)}, {vaddr} offset:{base + (m+4)*1024}")
    dft64("v7", L_TB, True)
    a(f"""v_and_b32 v5, 0x30, v1
v_and_b32 v8, 3, v1
v_lshl_add_u32 v5, v8, 2, v5
v_bfe_u32 v8, v1, 2, 2
v_add_u32 v5, v5, v8
v_lshlrev_b32 v8, 4, v5
v_add_u32 v8, {L_YB}, v8
v_add_u32 v6, {L_YB}, v6""")
    for r in range(0, 8, 2):
        a(f"""v_pk_mul_f32 {V(FR+r,2)}, {V(AC+r,2)}, {V(WW+r,2)}
v_pk_mul_f32 {V(FR+8+r,2)}, {V(AC+r,2)}, {V(WW+8+r,2)}
v_pk_fma_f32 {V(FR+r,2)}, {V(AC+8+r,2)}, {V(WW+8+r,2)}, {V(FR+r,2)} neg_lo:[1,0,0] neg_hi:[1,0,0]
v_pk_fma_f32 {V(FR+8+r,2)}, {V(AC+8+r,2)}, {V(WW+r,2)}, {V(FR+8+r,2)} neg_lo:[1,0,1] neg_hi:[1,0,1]
v_cvt_pk_bf16_f32 v{TP+r}, v{FR+r}, v{FR+8+r}
v_cvt_pk_bf16_f32 v{TP+r+1}, v{FR+r+1}, v{FR+8+r+1}""")
    a(f"ds_write_b128 v6, {V(TP,4)}\nds_write_b128 v6, {V(TP+4,4)} offset:1024")
    albar(7)
    dft64("v8", 0, False)
    a(f"""v_and_b32 v5, 15, v1
v_lshlrev_b32 v5, 7, v5
v_lshl_add_u32 v5, v3, 4, v5
v_bfe_u32 v6, v1, 4, 1
v_lshl_add_u32 v5, v6, 3, v5
s_lshl_b32 {T1}, {S_W4}, 11
s_add_u32 {T1}, {T1}, {L_UB}
v_add_u32 v5, {T1}, v5
v_add_u32 v6, {T1}, v7
v_lshrrev_b32 v8, 3, v1
v_lshlrev_b32 v8, 15, v8
v_and_b32 v9, 7, v1
v_lshl_add_u32 v8, v9, 4, v8
s_lshr_b32 {T0}, {S_AI}, 2
s_lshl_b32 {T0}, {T0}, 12
s_and_b32 {T1}, {S_AI}, 3
s_lshl_b32 {T1}, {T1}, 7
s_add_u32 {T0}, {T0}, {T1}
s_lshl_b32 {T1}, {S_XCD}, 9
s_add_u32 {T0}, {T0}, {T1}
s_add_u32 {T0}, {T0}, {UBUF}
s_lshl_b32 {T1}, {S_W4}, 19
s_add_u32 {T0}, {T0}, {T1}
s_add_u32 {T2}, {T0}, {8*USTR}""")
    for q in range(8): a(f"v_cvt_pk_bf16_f32 v{TP+q}, v{AC+2*q}, v{AC+2*q+1}")
    for g in range(4): a(f"ds_write_b64 v5, {V(TP+2*g,2)} offset:{g*32}")
    a(f"""ds_read_b128 {V(FR,4)}, v6
ds_read_b128 {V(FR+4,4)}, v6 offset:1024
s_waitcnt lgkmcnt(1)
buffer_store_dwordx4 {V(FR,4)}, v8, {sWS}, {T0} offen sc1
s_waitcnt lgkmcnt(0)
buffer_store_dwordx4 {V(FR+4,4)}, v8, {sWS}, {T2} offen sc1
s_lshl_b32 {T0}, {S_W4}, 8
s_add_u32 {T0}, {T0}, {S_TASK}
s_lshl_b32 {T0}, {T0}, 7
s_add_u32 {T0}, {T0}, {FA2}
s_waitcnt vmcnt(0)""")
    flag(a, T0, 10)
    a("L_a2done:")
    stamp(a, 7)
    wo_issue(1); wo_read(1)
    U0 = 16; U1 = 32; AR = 200; AI = 216; UE = 232
    S_K1 = "s74"
    a(f"""s_add_u32 {S_K1}, {S_W4}, 3
s_cmp_eq_u32 {S_W4}, 0
s_cselect_b32 {S_K1}, 7, {S_K1}
s_sub_u32 {T0}, {S_K1}, {S_W4}
v_mul_u32_u24 v5, {T0}, v3
v_add_u32 v5, {S_W4}, v5
v_lshl_add_u32 v5, v5, 5, v2
v_min_u32 v5, 231, v5
v_lshlrev_b32 v5, 7, v5
s_lshr_b32 {T4}, {S_BP}, 4
s_lshl_b32 {T4}, {T4}, 15
s_add_u32 {T4}, {T4}, {FA2}""")
    if cfg.a3wait: a(f"s_sleep {cfg.a3wait}")
    poll(a, "v5", T4, 248, 8, sleep=16)
    stamp(a, 8)
    a(f"""s_lshl_b32 {T0}, {S_BP}, 15
s_add_u32 {T0}, {T0}, {UBUF}
s_lshl_b32 {T1}, {S_W4}, 12
s_lshl_b32 {T3}, {S_K1}, 12
s_add_u32 {T2}, {T0}, {T3}
s_add_u32 {T0}, {T0}, {T1}""")
    for m in range(4): a(f"buffer_load_dwordx4 {V(U0+4*m,4)}, v7, {sWS}, {T0} offen offset:{m*1024} sc1")
    for m in range(4): a(f"buffer_load_dwordx4 {V(U1+4*m,4)}, v7, {sWS}, {T2} offen offset:{m*1024} sc1")
    a(f"""v_add_u32 v8, {L_ZB}, v7
v_add_u32 v6, {T1}, v8
v_add_u32 v9, {T3}, v8""")
    def step6(ur, ui, va):
        for m in range(4):
            a(mfma(AR, ur + 4*m, MS + 6*m, None if m == 0 else AR)); a(mfma(AI, ui + 4*m, MS + 6*m + 2, None if m == 0 else AI))
        for q in range(16): a(f"v_cvt_pk_bf16_f32 v{UE+q}, v{AR+2*q}, v{AR+2*q+1}")
        for q in range(4): a(f"ds_write_b128 {va}, {V(UE+4*q,4)} offset:{q*1024}")
    a(f"s_cmp_eq_u32 {S_W4}, 0\ns_cbranch_scc1 L_a3w0\ns_waitcnt vmcnt(4)")
    step6(U0, U0, "v6")
    a("s_waitcnt vmcnt(0)")
    step6(U1, U1, "v9")
    a("s_branch L_a3z\nL_a3w0:\ns_waitcnt vmcnt(0)\ns_mov_b32 exec_lo, -2\ns_mov_b32 exec_hi, -2")
    for q in range(16): a(f"v_mov_b32 v{U1+q}, v{U0+q}")
    a("s_mov_b64 exec, -1")
    step6(U0, U1, "v6")
    a("L_a3z:")
    albar(10)
    stamp(a, 9)
    L, Dn = a.lab("we"), a.lab("wed")
    a(f"""s_setprio 0
v_mov_b32 v6, {L_SYNC}
s_mov_b32 {S_TO}, {cfg.poll_limit * 8}
{L}:
ds_read_b32 v5, v6
s_waitcnt lgkmcnt(0)
v_readfirstlane_b32 {T0}, v5
s_cmp_ge_u32 {T0}, 12
s_cbranch_scc1 {Dn}
s_sleep 3
s_sub_u32 {S_TO}, {S_TO}, 1
s_cbranch_scc0 {L}
s_mov_b32 {S_TO}, 17
s_branch L_fail
{Dn}:""")
    stamp(a, 10)
    ZR = 216; GS = 16; GP = 48; GC = 64
    sc = 1.0 / (2048 * 448)
    def zr(s_, va="v8"): return f"ds_read_b128 {V(ZR+4*(s_%8),4)}, {va} offset:{s_*1024}"
    order = [4*(q//4) + 2*(q % 2) + ((q//2) % 2) for q in range(28)]
    for q in range(8): a(f"ds_read_b128 {V(ZR+4*q,4)}, v8 offset:{order[q]*1024}")
    a(f"""v_bfe_u32 v5, v1, 2, 1
v_lshlrev_b32 v5, 4, v5
v_bfe_u32 v6, v1, 3, 2
v_lshl_add_u32 v5, v6, 2, v5
v_and_b32 v6, 3, v1
v_add_u32 v5, v5, v6
s_lshl_b32 {T0}, {S_DT}, 5
v_add_u32 v5, {T0}, v5                    ; d
v_lshlrev_b32 v9, 31, v5
v_xor_b32 v9, {lit(sc)}, v9               ; sc*(-1)^d
v_cvt_f32_u32 v5, v5
v_mul_f32 v5, {lit(1/448)}, v5
v_mul_f32 v6, v5, v4
v_mul_f32 v6, 4.0, v6
v_mul_f32 v{GC}, {lit(16.0)}, v5
v_cos_f32 v{GC}, v{GC}
v_mov_b32 v10, {lit(2*sc)}
v_mov_b32 v11, {lit(2*sc)}
v_mov_b32 v12, {lit(sc)}""")
    angles(16, "v5", "v6", [16*(j//8) + 8*((j%8)//4) + j%4 for j in range(16)], GS)
    a(f"v_add_f32 v{GC}, v{GC}, v{GC}")
    for j in range(16): a(f"v_sin_f32 v{GS+16+j}, v{GS+j}\nv_cos_f32 v{GS+j}, v{GS+j}")
    a(f"v_mov_b32 v{GC+1}, v{GC}\n.p2align 3")
    for j in range(0, 16, 2):
        a(f"v_pk_mul_f32 {V(GS+j,2)}, {V(GS+j,2)}, v[10:11]\nv_pk_mul_f32 {V(GS+16+j,2)}, {V(GS+16+j,2)}, v[10:11] neg_lo:[1,0] neg_hi:[1,0]")
    for q in range(28):
        rho = q % 2; st = q // 2
        cur = GS + 16*rho + 8*(st % 2); oth = GS + 16*rho + 8*((st + 1) % 2); gp = GP + 4*(q % 4)
        if st >= 2:
            for z in range(0, 8, 2):
                a(f"v_pk_fma_f32 {V(cur+z,2)}, {V(GC,2)}, {V(oth+z,2)}, {V(cur+z,2)} neg_lo:[0,0,1] neg_hi:[0,0,1]")
        for z in range(4): a(f"v_cvt_pk_bf16_f32 v{gp+z}, v{cur+2*z}, v{cur+2*z+1}")
        if st == 0:
            a(f"s_mov_b32 exec_hi, 0\nv_cvt_pk_bf16_f32 v{gp}, v{9 if rho else 12}, v{cur+1}\ns_mov_b32 exec_hi, -1")
        if q >= 1:
            p = q - 1
            a(f"s_waitcnt lgkmcnt({min(7, 27-p)})")
            a(mfma(AR, GP + 4*(p % 4), ZR + 4*(p % 8), None if p == 0 else AR))
            if p + 8 < 28: a(f"ds_read_b128 {V(ZR+4*(p%8),4)}, v8 offset:{order[p+8]*1024}")
    a("s_waitcnt lgkmcnt(0)")
    a(mfma(AR, GP + 4*(27 % 4), ZR + 4*(27 % 8), AR))
    def out_store(rowmul, colbase, skip):
        a(f"""v_mul_u32_u24 v5, {rowmul}, v2
v_lshl_add_u32 v5, v3, 5, v5
s_lshl_b32 {T1}, {S_DT}, 6
s_add_u32 {T0}, {T0}, {T1}
s_add_u32 {T0}, {T0}, {colbase}
s_cmp_ge_u32 {S_W4}, {S_CNT}
s_cbranch_scc1 {skip}""")
        for q in range(4): a(f"v_cvt_pk_bf16_f32 v{248+q}, v{AR+2*q}, v{AR+2*q+1}")
        a(f"buffer_store_dwordx4 v[248:251], v5, {sOUT}, {T0} offen")
        for q in range(4, 8): a(f"v_cvt_pk_bf16_f32 v{248+q}, v{AR+2*q}, v{AR+2*q+1}")
        a(f"buffer_store_dwordx4 v[252:255], v5, {sOUT}, {T0} offen offset:16\n{skip}:")
    a(f"s_mul_i32 {T0}, {S_BP}, 1792")
    out_store(64 * 1792, 0, "L_a3done")
    stamp(a, 11)
    a(f"""v_and_b32 v5, 3, v1
v_lshlrev_b32 v5, 7, v5
s_lshl_b32 {T4}, {S_BP}, 2
s_add_u32 {T4}, {T4}, {S_W4}
s_lshl_b32 {T3}, {T4}, 13
s_add_u32 {T3}, {T3}, {OBUF}
s_add_u32 {T2}, {T3}, 4096
s_lshl_b32 {T4}, {T4}, 9
s_add_u32 {T4}, {T4}, {FO}""")
    if cfg.owait: a(f"s_sleep {cfg.owait}")
    poll(a, "v5", T4, 246, 11, sleep=2)
    stamp(a, 13)
    for q in range(8):
        a(f"buffer_load_dwordx4 {V(16+4*q,4)}, v7, {sWS}, {T3 if q < 4 else T2} offen offset:{(q%4)*1024} sc1")
    a(f"""s_lshl_b32 {T1}, {S_W4}, 13
s_add_u32 {T1}, {T1}, {L_OB}
v_add_u32 v9, {T1}, v7
v_add_u32 v6, {L_OB}, v7""")
    for q in range(8):
        a(f"s_waitcnt vmcnt({7-q})\nds_write_b128 v9, {V(16+4*q,4)} offset:{q*1024}")
    lbar(a, "v14", "v15", 5, 12)
    for s_ in range(8): a(zr(s_, "v6"))
    for s_ in range(32):
        a(f"s_waitcnt lgkmcnt({min(7, 31-s_)})")
        a(mfma(AR, WO + 4*s_, ZR + 4*(s_ % 8), None if s_ == 0 else AR))
        if s_ + 8 < 32: a(zr(s_ + 8, "v6"))
    a(f"s_mul_i32 {T0}, {S_BP}, {32*1792}")
    out_store(1792, 896, "L_b3done")
    a(f"""s_lshl_b32 {T0}, s2, 2
s_add_u32 {T0}, {T0}, {S_W4}
s_cmp_lg_u32 {T0}, 0
s_cbranch_scc1 L_noep
s_mov_b32 {T0}, {EPOCH}""")
    flag(a, T0, 10)
    a("L_noep:")
    if cfg.padend: padto(a, cfg.padend)
    stamp(a, 12)
    dump_stamps(a, 16)
    a("s_endpgm")

def build():
    nh = cfg.nh; xh = 16 // nh
    for wg in range(256):
        xcd, idx = wg & 7, wg >> 3
        h = (xcd % xh) * nh + idx % nh
        assert ((idx + 28) & 31) < 28 or h < 14
    a = Asm()
    prologue(a); role_B(a); role_A(a)
    a(f"""L_fail:
v_mov_b32 v0, 0
v_mov_b32 v1, {S_TO}
global_store_dword v0, v1, s[18:19]
L_end:
s_endpgm
L_codeend:""")
    a.pad()
    hdr = open("cdna_kernels/" + NAME + ".s.ref").read().split("; Override launch")[0]
    s = hdr + f"; @launch grid=(256,1,1) block=(512,1,1) lds={LDS_SIZE}\n"
    s += f""".amdgcn_target "amdgcn-amd-amdhsa--gfx950"
.text
.globl {NAME}_kernel
.p2align 8
.type {NAME}_kernel,@function
{NAME}_kernel:
""" + a.text() + f""".section .rodata,"a"
.p2align 6
.amdhsa_kernel {NAME}_kernel
  .amdhsa_next_free_vgpr 256
  .amdhsa_next_free_sgpr 102
  .amdhsa_accum_offset 256
  .amdhsa_group_segment_fixed_size 0
  .amdhsa_kernarg_size 72
  .amdhsa_user_sgpr_count 2
  .amdhsa_user_sgpr_kernarg_segment_ptr 1
  .amdhsa_system_sgpr_workgroup_id_x 1
.end_amdhsa_kernel
"""
    return s

if __name__ == "__main__":
    out = sys.argv[1]
    for kv in sys.argv[2:]:
        k, v = kv.split("=")
        setattr(cfg, k, type(getattr(cfg, k))(int(v)))
    open(out, "w").write(build())
```

```python
import sys, math, struct
from asmlib import Asm

NAME = "concat_heads__spectral_gfnet__softmax_full_mha__prompt"

class Cfg:
    nh = 8
    stamps = False
    poll_limit = 1 << 17
    noA = 0
    span = 0
    fine = 0
    padend = 0
    padmid = 0
    dbgwave = -1
    nbuf = 4
    a2wait = 16
    a3wait = 16
    kvwait = 8
    kvrot = 3
    m1 = 14
    ramp = 2
    gate = 2
    wqe = 3
    wqp = 7
    tdefer = 1
    m2 = 10
    xas = 0
    qst = 0x133
    wopf = 1
    kvp = 1
    owait = 16
    xrot = 0x06543210
    wrot = 1
    pace = 1
    xadefer = 0
    wpf = 0
    outsc = 0
    wqwarm = 1
    th_wo = 3
    th_u = 20
    th_wq = 2
    wqearly = 1
    th_w = 17
    th_xa = 4
    wfair = 8
    xearly = 14
    pre = 5
    aprio = 2
    force_fb = False
cfg = Cfg()

EPOCH = 0
KV = 0x10000; TS = 61440; VOFF = 28672
OBUF = 0x400000
TBUF = 0x600000
UBUF = 0x800000; USTR = 32768
FKV = 0xA00000; FA1 = 0xA20000; FA2 = 0xA40000; FO = 0xA60000
STAMP = 0xB00000
WS_SIZE = 0x1000000
L_W = 0; L_WQ = 57344; L_X = 86016; L_Q = 151552; L_SYNC = 159744
LDS_SIZE = 160000
L_RED = 0
L_TB = L_WQ; L_YB = L_WQ + 8192; L_MS = 49152; L_TT = L_X + 4096; L_M = L_X + 61440
L_ZB = L_WQ; L_OB = 0
sWS, sWQKV, sX, sWR, sWI, sWO, sOUT = [f"s[{i}:{i+3}]" for i in (24, 28, 32, 36, 40, 44, 48)]
S_WAVE, S_XCD, S_IDX, S_H, S_R, S_W4 = "s56", "s57", "s58", "s59", "s60", "s61"
S_NONCE = "s[62:63]"
S_TO, S_BAR = "s64", "s65"
T0, T1, T2, T3, T4, T5 = "s66", "s67", "s68", "s69", "s22", "s23"
STAMP0 = 84

ZREADY = 24

def f2u(x): return struct.unpack("<I", struct.pack("<f", x))[0]
def lit(x): return "0x%08x" % f2u(x)
def V(a, n=1): return f"v{a}" if n == 1 else f"v[{a}:{a+n-1}]"

def srd(a, name, lo, size):
    i = int(name[2:name.index(":")])
    a(f"s_mov_b32 s{i}, s{lo}\ns_mov_b32 s{i+1}, s{lo+1}\ns_mov_b32 s{i+2}, {size}\ns_mov_b32 s{i+3}, 0x20000")

def stamp(a, i, fine=0):
    if cfg.fine in (1, 2) and not fine and 3 <= i <= 11: return
    if cfg.fine == 4 and not fine and i in (1, 2, 3, 4, 5, 10, 11, 13): return
    if fine and cfg.fine != fine: return
    if cfg.stamps:
        a(f"s_memtime s[100:101]\ns_waitcnt lgkmcnt(0)\ns_mov_b32 s{STAMP0+i}, s100")

def st0():
    return f"s_mov_b32 s{STAMP0+15}, s100\ns_mov_b32 s{STAMP0}, s38" if cfg.stamps else ""

def dump_stamps(a, vt):
    if cfg.span:
        a(f"s_memrealtime s[98:99]\ns_lshl_b32 {T0}, s2, 3\ns_add_u32 {T0}, {T0}, {S_WAVE}\ns_lshl_b32 {T0}, {T0}, 3\ns_add_u32 {T0}, {T0}, {STAMP}\ns_waitcnt lgkmcnt(0)")
        a(f"v_mov_b32 v{vt}, s100\nv_mov_b32 v{vt+1}, s98\nv_mov_b32 v{vt+2}, 0\ns_mov_b64 exec, 1\nbuffer_store_dwordx2 {V(vt,2)}, v{vt+2}, {sWS}, {T0} offen\ns_mov_b64 exec, -1")
    if not cfg.stamps: return
    a(f"s_memrealtime s[100:101]\ns_waitcnt lgkmcnt(0)\ns_mov_b32 s{STAMP0+14}, s100")
    if cfg.dbgwave >= 0:
        L = a.lab("nodbg")
        a(f"s_lshl_b32 {T0}, s2, 3\ns_add_u32 {T0}, {T0}, {S_WAVE}\ns_cmp_lg_u32 {T0}, {cfg.dbgwave}\ns_cbranch_scc1 {L}")
        a(f"v_mov_b32 v{vt+4}, 0\ns_mov_b64 exec, 1")
        for i in range(1, 16):
            a(f"s_sub_u32 {T1}, s{STAMP0+i}, s{STAMP0 + (15 if i >= 14 else 0)}\nv_mov_b32 v{vt}, {T1}\nglobal_store_dword v{vt+4}, v{vt}, s[18:19] offset:{4*i}")
        a(f"s_mov_b64 exec, -1\n{L}:")
    a(f"s_lshl_b32 {T0}, s2, 3\ns_add_u32 {T0}, {T0}, {S_WAVE}\ns_lshl_b32 {T0}, {T0}, 7\ns_add_u32 {T0}, {T0}, {STAMP}")
    a(f"v_mov_b32 v{vt+4}, 0\ns_mov_b64 exec, 1")
    for q in range(4):
        for i in range(4): a(f"v_mov_b32 v{vt+i}, s{STAMP0+4*q+i}")
        a(f"buffer_store_dwordx4 {V(vt,4)}, v{vt+4}, {sWS}, {T0} offen offset:{16*q}")
    a("s_mov_b64 exec, -1")

def padto(a, ticks):
    L = a.lab("pad")
    a(f"{L}:\ns_memrealtime s[100:101]\ns_waitcnt lgkmcnt(0)\ns_sub_u32 s100, s100, s{STAMP0+15}\ns_cmp_lt_u32 s100, {ticks}\ns_cbranch_scc1 {L}")

def poll_issue(vaddr, soff, vt, n):
    return f"""v_mov_b32 v{vt}, 0
v_mov_b32 v{vt+1}, 0
s_bfm_b64 exec, {n}, 0
buffer_atomic_or_x2 {V(vt,2)}, {vaddr}, {sWS}, {soff} offen sc0 sc1
s_mov_b64 exec, -1"""

def poll_check(vt, n):
    return f"v_cmp_ne_u64 vcc, {S_NONCE}, {V(vt,2)}\ns_and_b32 vcc_lo, vcc_lo, {hex((1 << n) - 1)}"

def poll(a, vaddr, soff, vt, n, code, sleep=2):
    L, Dn = a.lab("poll"), a.lab("polld")
    a(f"""s_mov_b32 {S_TO}, {cfg.poll_limit}
{L}:
{poll_issue(vaddr, soff, vt, n)}
s_waitcnt vmcnt(0)
{poll_check(vt, n)}
s_cbranch_scc0 {Dn}
s_sleep {sleep}
s_sub_u32 {S_TO}, {S_TO}, 1
s_cbranch_scc0 {L}
s_mov_b32 {S_TO}, {code}
s_branch L_fail
{Dn}:""")

def publish_wg(a, vsync, vone, off, vt, soff, vn, last=3):
    L = a.lab("pub")
    a(f"""s_mov_b64 exec, 1
ds_add_rtn_u32 v{vt}, {vsync}, {vone} offset:{off}
s_waitcnt lgkmcnt(0)
v_readfirstlane_b32 {T0}, v{vt}
s_cmp_eq_u32 {T0}, {last}
s_cselect_b64 exec, 1, 0
buffer_store_dwordx2 {V(vn,2)}, v{vn+2}, {sWS}, {soff} offen sc1
s_mov_b64 exec, -1""")

def flag(a, soff, vt):
    a(f"""v_mov_b32 v{vt}, s62
v_mov_b32 v{vt+1}, s63
v_mov_b32 v{vt+2}, 0
s_mov_b64 exec, 1
buffer_store_dwordx2 {V(vt,2)}, v{vt+2}, {sWS}, {soff} offen sc1
s_mov_b64 exec, -1""")

def flag2(a, soff, vn):
    a(f"s_mov_b64 exec, 1\nbuffer_store_dwordx2 {V(vn,2)}, v{vn+2}, {sWS}, {soff} offen sc1\ns_mov_b64 exec, -1")

def lwait(a, vsync, vt, target, code, sleep=0, off=0):
    L, Dn = a.lab("lw"), a.lab("lwd")
    a(f"""s_mov_b32 {S_TO}, {cfg.poll_limit * 8}
{L}:
ds_read_b32 v{vt}, {vsync} offset:{off}
s_waitcnt lgkmcnt(0)
v_readfirstlane_b32 {T0}, v{vt}
s_cmp_ge_u32 {T0}, {target}
s_cbranch_scc1 {Dn}
{"s_sleep %d" % sleep if sleep else ""}
s_sub_u32 {S_TO}, {S_TO}, 1
s_cbranch_scc0 {L}
s_mov_b32 {S_TO}, {code}
s_branch L_fail
{Dn}:""")

def lbar(a, vsync, vone, vt, code, sleep=0):
    L, Dn = a.lab("lb"), a.lab("lbd")
    a(f"""s_add_u32 {S_BAR}, {S_BAR}, 4
s_mov_b64 exec, 1
ds_add_u32 {vsync}, {vone}
s_mov_b64 exec, -1
s_mov_b32 {S_TO}, {cfg.poll_limit * 8}
{L}:
ds_read_b32 v{vt}, {vsync}
s_waitcnt lgkmcnt(0)
v_readfirstlane_b32 {T0}, v{vt}
s_cmp_ge_u32 {T0}, {S_BAR}
s_cbranch_scc1 {Dn}
{"s_sleep %d" % sleep if sleep else ""}
s_sub_u32 {S_TO}, {S_TO}, 1
s_cbranch_scc0 {L}
s_mov_b32 {S_TO}, {code}
s_branch L_fail
{Dn}:""")

def mfma(d, A, B, C=None):
    return f"v_mfma_f32_32x32x16_bf16 {V(d,16)}, {V(A,4)}, {V(B,4)}, {'0' if C is None else V(C,16)}"

def mod7(a, s, t):
    a(f"s_mul_i32 {t}, {s}, 9363\ns_lshr_b32 {t}, {t}, 16\ns_mul_i32 {t}, {t}, 7\ns_sub_u32 {s}, {s}, {t}")

def x_read_addrs(a, v0, vl, base_s, t):
    a(f"""v_and_b32 v{t}, 31, {vl}
v_lshrrev_b32 v{t+1}, 5, {vl}
v_bfe_u32 v{t+2}, {vl}, 1, 3
v_xor_b32 v{t+1}, v{t+1}, v{t+2}
v_lshlrev_b32 v{t}, 7, v{t}
v_add_u32 v{t}, {base_s}, v{t}""")
    for mm in range(4):
        a(f"v_xor_b32 v{t+2}, {2*mm}, v{t+1}\nv_lshl_add_u32 v{v0+mm}, v{t+2}, 4, v{t}")


S_HH, S_RR, S_J, S_P0, S_LC = "s52", "s53", "s54", "s55", "s3"

def prologue(a):
    a(f"""s_cmp_ge_u32 s2, 256
s_cbranch_scc1 L_end
s_load_dwordx16 s[4:19], s[0:1], 0
s_load_dwordx2 s[20:21], s[0:1], 64""")
    if cfg.span: a("s_memrealtime s[100:101]")
    if cfg.stamps:
        a(f"s_memtime s[38:39]\ns_memrealtime s[100:101]")
        for i in range(1, 15): a(f"s_mov_b32 s{STAMP0+i}, 0")
    a(f"""s_lshr_b32 {S_IDX}, s2, 3
s_getpc_b64 s[70:71]
L_pc:
v_lshrrev_b32 v3, 5, v0
v_lshl_add_u32 v3, {S_IDX}, 4, v3
v_lshlrev_b32 v3, 7, v3
v_min_u32 v3, L_codeend-L_pc-4, v3
global_load_dword v255, v3, s[70:71]
v_lshrrev_b32 v2, 6, v0
v_and_b32 v1, 63, v0
v_readfirstlane_b32 {S_WAVE}, v2
s_and_b32 {S_XCD}, s2, 7
s_and_b32 {S_HH}, {S_IDX}, 7
s_lshr_b32 {S_RR}, {S_IDX}, 3
s_and_b32 {T5}, {S_XCD}, 1
s_lshl_b32 {S_H}, {T5}, 3
s_add_u32 {S_H}, {S_H}, {S_HH}
s_lshl_b32 {T0}, {S_HH}, 2
s_cmp_eq_u32 {T5}, 0
s_cselect_b32 {S_LC}, 0x67543210, s2
s_cselect_b32 {S_LC}, {S_LC}, 0x65432170
s_lshr_b32 {S_LC}, {S_LC}, {T0}
s_and_b32 {S_LC}, {S_LC}, 7
s_and_b32 {S_W4}, {S_WAVE}, 3
s_cmp_ge_u32 {S_WAVE}, 4
s_cbranch_scc1 L_roleA""")

def nonce(a):
    a(f"""s_waitcnt lgkmcnt(0)
s_mul_i32 s62, s62, 0x9E3779B1
s_add_u32 s62, s62, 0x7F4A7C15
s_mul_i32 s63, s63, 0x85EBCA6D
s_add_u32 s63, s63, 0x165667B1""")

def role_B(a):
    X = 16; ACC = 128; WB = 160; PK = 224
    SC = 70
    S_XL, S_TILE, S_I = "s77", "s78", "s79"
    TO = 36
    S_WM, S_WO, S_DM, S_DO = "s80", "s81", "s82", "s83"
    a(f"""s_setprio 3
s_mul_i32 {S_J}, {T5}, 7
s_add_u32 {S_J}, {S_J}, {S_LC}
v_lshrrev_b32 v8, 3, v1
v_and_b32 v9, 7, v1
v_mul_u32_u24 v2, 2688, v8
v_bfe_u32 v3, v1, 4, 1
v_lshlrev_b32 v3, 2, v3
v_xor_b32 v3, v9, v3
v_lshl_add_u32 v2, v3, 4, v2
s_lshl_b32 {T0}, {S_J}, 7
s_mul_i32 {T1}, {S_W4}, {8*2688}
s_add_u32 {T0}, {T0}, {T1}
s_add_u32 {T0}, {T0}, 896
v_add_u32 v2, {T0}, v2
s_lshl_b32 {T2}, {S_RR}, 3
s_lshr_b32 {T0}, {0xD66D0770 if cfg.wrot else 0x70707070}, {T2}
s_bfe_u32 {T1}, {T0}, 0x40004
s_and_b32 {T0}, {T0}, 15
s_lshl_b32 {T3}, {S_W4}, 10
s_lshl_b32 {T2}, {T0}, 12
s_add_u32 m0, {T2}, {T3}
s_mul_i32 {S_I}, {T0}, {32*2688}
s_lshl_b32 {T2}, {T1}, 12
s_add_u32 {S_WM}, {T2}, {T3}
s_mul_i32 {S_WO}, {T1}, {32*2688}
s_cmp_ge_u32 {S_RR}, {2 if cfg.wrot else 4}
s_cselect_b32 {T0}, -1, 1
s_lshl_b32 {S_DM}, {T0}, 12
s_mul_i32 {S_DO}, {T0}, {32*2688}
s_cmp_eq_u32 {S_LC}, 7
s_cselect_b32 s30, 0, {448 * 2688}
s_mov_b32 s31, 0x20000
s_waitcnt lgkmcnt(0)
{st0()}
s_mov_b64 s[28:29], s[12:13]""")
    def x_m0(i, j): return f"s_add_u32 m0, {S_XL}, {(i%4)*4096 + j*1024}"
    def x_ld(i, j): return f"buffer_load_dwordx4 v{4+j}, {sX}, s{SC+i} offen lds"
    def sc_next(i): return f"s_add_u32 s{SC+i}, s{SC+i-1}, 128\ns_cmp_eq_u32 s{SC+i}, 896\ns_cselect_b32 s{SC+i}, 0, s{SC+i}"
    def w_base(i): return f"v_lshl_add_u32 v12, s{SC+i}, 6, v14\nv_xor_b32 v13, 64, v12"
    def setup2():
        a(f"""s_mov_b32 s34, {2048*896}
s_mov_b32 s35, 0x20000
s_lshr_b32 {S_R}, {S_XCD}, 1
s_lshl_b32 {S_R}, {S_R}, 2
s_add_u32 {S_R}, {S_R}, {S_RR}
s_lshl_b32 {S_TILE}, {S_R}, 2
s_add_u32 {S_TILE}, {S_TILE}, {S_W4}
v_lshrrev_b32 v10, 4, v1
v_xor_b32 v10, v9, v10
v_xor_b32 v11, 4, v10
v_mul_u32_u24 v12, 896, v8
s_mul_i32 {T2}, {S_TILE}, {32*896}
v_add_u32 v12, {T2}, v12
v_lshl_add_u32 v4, v10, 4, v12
v_lshl_add_u32 v5, v11, 4, v12
v_add_u32 v5, {8*896}, v5
v_add_u32 v6, {16*896}, v4
v_add_u32 v7, {16*896}, v5
s_lshl_b32 {T2}, {S_HH}, 2
s_lshr_b32 s{SC}, {cfg.xrot}, {T2}
s_and_b32 s{SC}, s{SC}, 7
s_lshl_b32 s{SC}, s{SC}, 7
s_lshl_b32 {S_XL}, {S_W4}, 14
s_add_u32 {S_XL}, {S_XL}, {L_X}""")
        for i in range(1, 7): a(sc_next(i))
        x_read_addrs(a, 8, "v1", S_XL, 12)
        srd(a, sWS, 20, WS_SIZE)
        a(f"""v_lshrrev_b32 v12, 5, v1
v_lshlrev_b32 v12, 3, v12
v_bfe_u32 v13, v1, 2, 2
v_add_u32 v12, v12, v13
v_bfe_u32 v13, v1, 4, 1
v_lshlrev_b32 v13, 5, v13
v_and_b32 v18, 1, v1
v_bfe_u32 v19, v1, 1, 1
v_lshl_add_u32 v15, v18, 4, v13
v_lshl_add_u32 v15, v19, 3, v15
v_lshl_add_u32 v14, v18, 3, v13
v_lshl_add_u32 v14, v19, 4, v14
s_cmp_eq_u32 {T5}, 1
s_cselect_b64 vcc, -1, 0
v_cndmask_b32 v14, v15, v14, vcc
v_lshl_add_u32 v15, v12, 6, v15
v_add_u32 v15, {L_WQ}, v15
v_bfe_u32 v13, v1, 3, 1
v_lshl_add_u32 v14, v13, 6, v14
v_lshl_add_u32 v14, v12, 7, v14""")
        a(f"""v_lshrrev_b32 v253, 2, v1
v_mul_u32_u24 v253, 2688, v253
v_and_b32 v254, 3, v1
v_lshl_add_u32 v253, v254, 4, v253
s_mul_i32 {S_P0}, {S_H}, 7
s_lshr_b32 {S_P0}, {S_P0}, 1
s_lshl_b32 s80, {S_P0}, 4
s_mul_i32 s81, {S_W4}, {16*2688}
s_add_u32 s80, s80, s81
v_add_u32 v253, s80, v253
s_lshl_b32 s80, {S_W4}, 10
s_add_u32 s80, s80, {L_WQ}
s_and_b32 s81, {S_P0}, 7
s_cmp_gt_u32 s81, 4
s_cselect_b32 s81, 1, 0
s_nop 0""")
        a(w_base(0))
        a(f"v_mov_b32 v250, {L_SYNC}\nv_mov_b32 v251, 1\nv_mov_b32 v246, 0\ns_mov_b32 {S_BAR}, 0")
    VK, VV, VF, VL = 240, 241, 242, 243
    PG = ["s4", "s5", "s6", "s7"]; S_FL = "s8"
    def setup3():
        a(f"""v_lshlrev_b32 v{VL}, 4, v1
s_lshl_b32 {T0}, {S_P0}, 9
v_add_u32 v{VK}, {T0}, v{VL}
s_lshl_b32 {T0}, {S_H}, 11
s_add_u32 {T0}, {T0}, {VOFF}
v_add_u32 v{VV}, {T0}, v{VL}
s_lshr_b32 {T1}, {S_P0}, 3
s_add_u32 {T0}, {S_P0}, 3
s_lshr_b32 {T0}, {T0}, 3
s_sub_u32 {T0}, {T0}, {T1}
v_and_b32 v{VF}, 1, v1
v_mul_u32_u24 v{VF}, {T0}, v{VF}
v_bfe_u32 v18, v1, 1, 1
v_mul_u32_u24 v18, 7, v18
v_add_u32 v{VF}, v{VF}, v18
v_lshlrev_b32 v{VF}, 7, v{VF}
s_and_b32 {T0}, {S_R}, 12
s_add_u32 {T0}, {T0}, {S_W4}
s_lshl_b32 {T0}, {T0}, 4
s_add_u32 {T0}, {T0}, {T1}
s_lshl_b32 {T0}, {T0}, 7""")
        for g in range(4):
            a(f"s_add_u32 {PG[g]}, {T0}, {FKV}")
            if g < 3: a(f"s_add_u32 {T0}, {T0}, 8192\ns_and_b32 {T0}, {T0}, 32767")
        a(f"s_lshr_b32 {T2}, {S_R}, 2\ns_mul_i32 {T1}, {S_W4}, {4*TS}\ns_add_u32 {T1}, {T1}, {KV}")
        for p in range(4): a(f"s_add_u32 {T0}, {S_RR}, {p}\ns_and_b32 {T0}, {T0}, 3\ns_mul_i32 s{TO+12+p}, {T0}, {TS}")
        for g in range(4):
            a(f"s_mul_i32 {T0}, {T2}, {16*TS}\ns_add_u32 {T0}, {T0}, {T1}\ns_add_u32 {T2}, {T2}, 1\ns_and_b32 {T2}, {T2}, 3")
            for p in range(4):
                a(f"s_add_u32 s{TO+4*g+p}, {T0}, " + (f"{p*TS}" if (g == 0 or cfg.kvrot == 0) else f"s{TO+12+p}"))
        a(f"""s_cmp_eq_u32 {S_LC}, 7
s_cselect_b32 {T1}, 15, {S_J}
s_lshl_b32 {T0}, {S_R}, 4
s_add_u32 {T0}, {T0}, {T1}
s_lshl_b32 {T0}, {T0}, 7
s_add_u32 {S_FL}, {T0}, {FKV}""")
    stamp(a, 3, 2)
    for i in range(14):
        a(f"buffer_load_dwordx4 v2, {sWQKV}, {S_I} offen lds")
        if i == 6: a(f"s_mov_b32 m0, {S_WM}\ns_mov_b32 {S_I}, {S_WO}")
        elif i < 13: a(f"s_add_u32 m0, m0, {S_DM}\ns_add_u32 {S_I}, {S_I}, {S_DO}")
        if i == 10:
            keep = a.L[-2:]; del a.L[-2:]
            stamp(a, 4, 2)
            a("s_barrier\ns_mov_b64 s[32:33], s[10:11]")
            if cfg.fine != 2: a(f"s_load_dwordx2 s[62:63], s[20:21], {EPOCH}")
            stamp(a, 5, 2)
            setup2()
            stamp(a, 6, 2)
            a.L += keep
    stamp(a, 8, 2)
    a(f"s_waitcnt vmcnt({cfg.wfair})")
    stamp(a, 10, 2)
    for c in range(2):
        for j in range(4): a(x_m0(c, j)); a("s_nop 0"); a(x_ld(c, j))
    stamp(a, 11, 2)
    setup3()
    if cfg.fine == 2: a(f"s_load_dwordx2 s[62:63], s[20:21], {EPOCH}")
    nonce(a)
    a("v_mov_b32 v244, s62\nv_mov_b32 v245, s63\nds_write_b64 v250, v[244:245] offset:64")
    def w_base(i): return f"v_lshl_add_u32 v12, s{SC+i}, 6, v14\nv_xor_b32 v13, 64, v12"
    def wq(i): return f"s_add_u32 m0, s80, {i*4096}\ns_mul_i32 s82, s{SC+i}, {64*21}\nbuffer_load_dwordx4 v253, {sWQKV}, s82 offen lds"
    a(f"s_mov_b32 s30, {448 * 2688}")
    def w_reads(i):
        out = []
        for mm in range(4):
            for ct in range(2):
                for hf in range(2):
                    d = WB + (i % 2) * 32 + mm * 8 + ct * 4 + hf * 2
                    out.append(f"ds_read_b64_tr_b16 {V(d,2)}, v{12+ct} offset:{mm*2048 + hf*512}")
        return out
    def x_reads(i):
        return [f"ds_read_b128 {V(X+16*i+4*mm,4)}, v{8+mm} offset:{(i%4)*4096}" for mm in range(4)]
    a(f"""s_waitcnt vmcnt(8)""")
    stamp(a, 1)
    a(f"s_mov_b64 exec, 1\nds_add_u32 v250, v251\ns_mov_b64 exec, -1")
    for j in range(2): a(x_m0(2, j)); a("s_nop 0"); a(x_ld(2, j))
    lwait(a, "v250", 252, 4, 19)
    stamp(a, 3, 1)
    wr0 = w_reads(0)
    for s_ in wr0[:8]: a(s_)
    a("s_waitcnt vmcnt(6)")
    for s_ in x_reads(0) + wr0[8:]: a(s_)
    a(f"s_cmp_eq_u32 {T5}, 1\ns_cbranch_scc1 L_kvV")
    for var in ("K", "V"):
        if var == "V": a("L_kvV:")
        late = [f"s_mul_i32 {T4}, {S_TILE}, {TS}", f"s_add_u32 {T4}, {T4}, {KV}", "v_lshlrev_b32 v7, 4, v1"]
        if var == "K":
            late += [f"s_lshl_b32 {T0}, {S_LC}, 12", f"s_add_u32 {T4}, {T4}, {T0}"]
        else:
            late += f"""s_lshl_b32 {T1}, {S_LC}, 6
v_and_b32 v4, 31, v1
v_add_u32 v4, {T1}, v4                    ; col (ct0)
v_add_u32 v5, 32, v4
v_lshrrev_b32 v3, 5, v1
v_lshlrev_b32 v3, 9, v3
v_add_u32 v3, {VOFF}, v3""".split("\n")
            for r in (4, 5):
                late += f"""v_mul_u32_u24 v2, 2341, v{r}
v_lshrrev_b32 v2, 16, v2
v_mul_u32_u24 v2, {2048 - 28*16}, v2
v_lshl_add_u32 v{r}, v{r}, 4, v2
v_add_u32 v{r}, v{r}, v3""".split("\n")
            late += f"""s_lshl_b32 {T1}, {S_LC}, 2
s_lshr_b32 {T2}, 0xDB96420, {T1}
s_and_b32 {T2}, {T2}, 15                  ; first head that ends in this line-column
s_lshr_b32 {T3}, 0x3223222, {T1}
s_and_b32 {T3}, {T3}, 15
s_lshl_b32 {T3}, {T3}, 4
v_lshrrev_b32 v6, 2, v1
v_lshlrev_b32 v6, 9, v6
v_and_b32 v2, 3, v1
v_lshl_add_u32 v6, v2, 4, v6
s_lshl_b32 {T2}, {T2}, 11
s_add_u32 {T2}, {T2}, {VOFF + 28*16}
v_add_u32 v6, {T2}, v6
v_cmp_eq_u32 vcc, 0, v2
v_mov_b32 v2, 0x3f803f80
s_nop 0
v_cndmask_b32 v236, 0, v2, vcc
v_cndmask_b32 v237, 0, v2, vcc
v_cndmask_b32 v238, 0, v2, vcc
v_cndmask_b32 v239, 0, v2, vcc""".split("\n")
        for i in range(7):
            a("s_waitcnt lgkmcnt(0)")
            stamp(a, 4 + i, 1)
            fill = [[] for _ in range(8)]
            pre = [[] for _ in range(8)]
            if i == 0:
                dq = [(c, j) for c in range(2, 7) for j in range(4)][2:]
                issued_q = [(1, j) for j in range(4)] + [(2, 0), (2, 1)]
            def take(g):
                if dq and dq[0][0] <= i + 4:
                    e = dq.pop(0); issued_q.append(e)
                    pre[g].append(x_m0(*e)); fill[g].insert(0, x_ld(*e))
            had = bool(dq)
            if i + 1 < 7:
                wr = w_reads(i + 1)
                fill[0] += [w_base(i + 1)] + wr[0:3]
                fill[1] += wr[3:8]; fill[2] += wr[8:12]; fill[3] += wr[12:16]
                for g in ((0, 1, 2, 3, 4) if i == 0 else (0,)): take(g)
                if i == 4:
                    fill[1].append("s_cmp_eq_u32 s81, 1\ns_cselect_b64 exec, -1, 0\n" + "\n".join(wq(q) for q in range(cfg.wqe)) + "\ns_mov_b64 exec, -1")
                    issued_q += [(99, q) for q in range(cfg.wqe)]
                last = max(q for q, e in enumerate(issued_q) if e[0] == i + 1)
                fill[4] += [f"s_waitcnt vmcnt({len(issued_q) - 1 - last})"] + x_reads(i + 1)
            for g in range(5, 8): take(g)
            if i == 4:
                assert not had
                fill[0].insert(0, "s_mov_b64 exec, 1\nds_add_u32 v250, v251 offset:8\ns_mov_b64 exec, -1")
            if not had:
                for g in range(5 if i < 6 else 0, 8):
                    for q in range(6):
                        if late: fill[g].append(late.pop(0))
            for mm in range(4):
                for ct in range(2):
                    xr = X + 16*i + 4*mm; wr_ = WB + (i % 2) * 32 + mm * 8 + ct * 4
                    c = None if (i == 0 and mm == 0) else ACC + 16*ct
                    for s_ in pre[2*mm + ct]: a(s_)
                    a(mfma(ACC + 16*ct, wr_, xr, c) if var == "K" else mfma(ACC + 16*ct, xr, wr_, c))
                    for s_ in fill[2*mm + ct]: a(s_)
        assert not late
        stamp(a, 11, 1)
        a(f"s_cmp_eq_u32 {S_LC}, 7\ns_cbranch_scc1 L_kvnone")
        if var == "V":
            a(f"s_bfm_b64 exec, {T3}, 0\nbuffer_store_dwordx4 v[236:239], v6, {sWS}, {T4} offen sc1\ns_mov_b64 exec, -1")
        for ct in range(2):
            for j in range(2):
                for q in range(4):
                    z = 8*ct + 4*j + q
                    a(f"v_cvt_pk_bf16_f32 v{PK+z}, v{ACC+2*z}, v{ACC+2*z+1}")
                if var == "K":
                    a(f"buffer_store_dwordx4 {V(PK+8*ct+4*j,4)}, v7, {sWS}, {T4} offen offset:{ct*2048+j*1024} sc1")
                else:
                    a(f"buffer_store_dwordx4 {V(PK+8*ct+4*j,4)}, v{4+ct}, {sWS}, {T4} offen offset:{j*1024} sc1")
        if var == "K": a("s_branch L_kvdone\nL_kvnone:\ns_waitcnt vmcnt(0)\ns_branch L_kvdone")
    a("L_kvdone:\ns_mov_b64 exec, 1\nds_add_u32 v250, v251\ns_mov_b64 exec, -1")
    stamp(a, 2)
    NB = cfg.nbuf
    Q = 16; O = 48; SA = 112; KVB = 144; P0 = KVB + 16*NB; P1 = P0 + 4
    assert P1 + 4 <= 240
    QP = 224
    S_LD = "s9"
    def kv_loads(t, so=None):
        b = KVB + 16 * (t % NB); so = so or f"s{TO+t}"
        return [f"buffer_load_dwordx4 {V(b+4*j,4)}, v{VK if j < 2 else VV}, {sWS}, {so} offen offset:{(j%2)*1024} sc1" for j in range(4)]
    pl = poll_issue(f"v{VF}", PG[0], 10, 4)
    QW = 176
    def qsync(target):
        a("s_mov_b64 exec, 1\nds_add_u32 v250, v251 offset:4\ns_mov_b64 exec, -1")
        lwait(a, "v250", 5, target, 14, off=4)
    def qmma(c0, c1, check):
        rd = [f"ds_read_b64_tr_b16 {V(QW+(i%3)*16+mm*4+hf*2,2)}, v15 offset:{i*4096+mm*1024+hf*256}" for i in range(c0, c1) for mm in range(4) for hf in range(2)]
        iss = min(len(rd), 12)
        for s_ in rd[:iss]: a(s_)
        for m in range(4 * (c1 - c0)):
            a(f"s_waitcnt lgkmcnt({iss - (2*m + 2)})")
            a(mfma(ACC, QW + ((c0 + m // 4) % 3) * 16 + 4*(m % 4), X + 16*c0 + 4*m, None if c0 + m == 0 else ACC))
            for s_ in rd[iss:iss+2]: a(s_)
            iss = min(len(rd), iss + 2)
            if m == check:
                Lf, Lg = a.lab("pf"), a.lab("pg")
                a(f"s_waitcnt vmcnt(0)\n{poll_check(10, 4)}\ns_cbranch_scc1 {Lf}\ns_mov_b32 {S_LD}, 1")
                for t in range(2):
                    for s_ in kv_loads(t): a(s_)
                a(f"s_branch {Lg}\n{Lf}:\n{pl}\n{Lg}:")
    def publish(n):
        a(f"s_waitcnt vmcnt({n})")
        publish_wg(a, "v250", "v251", 16, 5, S_FL, 244)
        stamp(a, 3)
        a(f"s_sleep {cfg.kvwait}\n{pl}\ns_waitcnt vmcnt(2)")
    E = cfg.wqe
    a(f"s_mov_b32 {S_LD}, 0\ns_cmp_eq_u32 s81, 1\ns_cbranch_scc1 L_qtwo")
    for i in range(7): a(wq(i))
    publish(7)
    qsync(4)
    stamp(a, 4)
    qmma(0, 7, cfg.m2)
    a("s_branch L_qdone\nL_qtwo:\ns_waitcnt vmcnt(4)")
    qsync(4)
    for i in range(E, 7): a(wq(i))
    qmma(0, E, -1)
    publish(7 - E)
    qsync(8)
    stamp(a, 4)
    qmma(E, 7, min(cfg.m2, 6))
    a("L_qdone:")
    stamp(a, 5)
    a(f"""v_mov_b32 v12, {lit(28 ** -0.5 * math.log2(math.e))}
v_mov_b32 v13, v12
s_lshl_b32 {T0}, {S_W4}, 11
s_add_u32 {T0}, {T0}, {L_Q}
v_add_u32 v9, {T0}, v{VL}
v_mov_b32 v2, v250
v_mov_b32 v3, 1
v_mov_b32 v7, v{VL}
s_bitcmp1_b32 {S_H}, 0""")
    for hf in range(2):
        for q in range(8*hf, 8*hf+8, 2): a(f"v_pk_mul_f32 {V(ACC+q,2)}, {V(ACC+q,2)}, v[12:13]")
        for q in range(4*hf, 4*hf+4): a(f"v_cvt_pk_bf16_f32 v{QP+q}, v{ACC+2*q}, v{ACC+2*q+1}")
        if hf == 0: a(f"s_cselect_b32 exec_lo, -1, 0\ns_mov_b32 exec_hi, 0\nv_mov_b32 v{QP}, 0\nv_mov_b32 v{QP+1}, 0\ns_mov_b64 exec, -1")
        else: a(f"s_cselect_b32 exec_hi, 0, -1\ns_mov_b32 exec_lo, 0\nv_mov_b32 v{QP+6}, 0\nv_mov_b32 v{QP+7}, 0\ns_mov_b64 exec, -1")
        a(f"ds_write_b128 v9, {V(QP+4*hf,4)} offset:{1024*hf}")
    a(f"""s_mov_b64 exec, 1
ds_add_u32 v2, v3
s_mov_b64 exec, -1
s_cmp_eq_u32 {S_LD}, 1
s_cbranch_scc1 L_kvloaded
s_waitcnt vmcnt(0)
{poll_check(10, 4)}
s_cbranch_scc0 L_kvready""")
    poll(a, f"v{VF}", PG[0], 10, 4, 1, sleep=2)
    a("L_kvready:")
    for t in range(2):
        for s_ in kv_loads(t): a(s_)
    a("L_kvloaded:\ns_mov_b64 exec, 1\nds_add_u32 v2, v3 offset:12\ns_mov_b64 exec, -1")
    for i in range(4):
        a(f"""s_add_u32 {T0}, {S_W4}, {i+1}
s_and_b32 {T0}, {T0}, 3
s_lshl_b32 {T1}, {T0}, 11
s_add_u32 {T1}, {T1}, {L_Q}
v_add_u32 v{232+i}, {T1}, v7
s_mul_i32 {T0}, {T0}, 12288
s_add_u32 {T0}, {T0}, {(i%3)*4096 + L_RED}
v_add_u32 v{10+i}, {T0}, v7""")
    stamp(a, 6)
    lwait(a, "v2", 5, 12, 15)
    a(f"s_mov_b32 {S_BAR}, 12")
    for i in range(4):
        a(f"ds_read_b128 {V(Q+8*i,4)}, v{232+i}\nds_read_b128 {V(Q+8*i+4,4)}, v{232+i} offset:1024")
    stamp(a, 7)
    a("s_waitcnt vmcnt(6) lgkmcnt(6)\ns_setprio 0")
    if cfg.padmid: padto(a, cfg.padmid)
    stamp(a, 8)
    a(mfma(SA, KVB, Q)); a(mfma(SA, KVB + 4, Q + 4, SA))
    a("s_waitcnt vmcnt(4) lgkmcnt(0)\ns_nop 9\n.p2align 3")
    sched = {}
    issued = 2
    for t in range(16):
        for i in (1, 2):
            if (i == 1 or t % cfg.ramp == 0) and issued <= min(15, t + NB - 1):
                sched[(t, i)] = issued; issued += 1
    first = {g: min(k for k, v in sched.items() if v == 4*g) for g in (1, 2, 3)}
    pollat = {(k[0] - 1, 0): g for g, k in first.items()}
    vq = [("t", 1)] * 4
    def after(tag): return len(vq) - 1 - max(q for q, e in enumerate(vq) if e == tag)
    for t in range(16):
        for i in range(4):
            n = 4 * t + i
            if i == 0 and t % 2 == 0 and t > 0: stamp(a, t // 2, 3)
            cur = SA + 16 * (n % 2); nxt = SA + 16 * ((n + 1) % 2)
            tn, inx = (t, i + 1) if i < 3 else (t + 1, 0)
            tp, ip = (t, i - 1) if i > 0 else (t - 1, 3)
            kb = lambda tt: KVB + 16 * (tt % NB)
            ms = [mfma(nxt, kb(tn), Q + 8*inx), mfma(nxt, kb(tn) + 4, Q + 8*inx + 4, nxt),
                  mfma(O + 16*ip, kb(tp) + 12, P1, O + 16*ip), mfma(O + 16*i, kb(t) + 8, P0, None if t == 0 else O + 16*i)]
            if n == 63: ms[0] = ms[1] = None
            if n == 0: ms[2] = None
            side = []
            if (t, i) in sched:
                tl = sched[(t, i)]
                if tl % 4 == 0:
                    g = tl // 4
                    a(f"s_waitcnt vmcnt({after(('p', g))})\nv_cmp_ne_u64 vcc, {S_NONCE}, v[14:15]\ns_cbranch_vccnz L_gate{g}\nL_gated{g}:\ns_nop 0")
                side = kv_loads(tl); vq += [("t", tl)] * 4
            if (t, i) in pollat:
                g = pollat[(t, i)]
                side = [f"buffer_load_dwordx2 v[14:15], v{VF}, {sWS}, {PG[g]} offen sc1"]; vq.append(("p", g))
            if t == 15 and i >= 2:
                side = [f"ds_write_b128 v{10+i-2}, {V(O+16*(i-2)+4*q,4)} offset:{q*1024}" for q in range(4)]
            for p in range(4):
                if ms[p]: a(ms[p])
                if side: a(side.pop(0))
                wait = (i == 2 and p == 3 and t < 15)
                for e in range(4):
                    if wait and e == 3:
                        a(f"s_waitcnt vmcnt({after(('t', t + 1))})\nv_exp_f32_e64 v{cur+4*p+e}, v{cur+4*p+e}")
                    else:
                        a(f"v_exp_f32 v{cur+4*p+e}, v{cur+4*p+e}")
                pk = (P0, P0 + 2, P1, P1 + 2)[p]
                a(f"v_cvt_pk_bf16_f32 v{pk}, v{cur+4*p}, v{cur+4*p+1}\nv_cvt_pk_bf16_f32 v{pk+1}, v{cur+4*p+2}, v{cur+4*p+3}")
    a("s_setprio 3")
    for q in range(4): a(f"ds_write_b128 v12, {V(O+32+4*q,4)} offset:{q*1024}")
    a(mfma(O + 48, KVB + 16 * (15 % NB) + 12, P1, O + 48))
    stamp(a, 9)
    lbar(a, "v2", "v3", 5, 2)
    OO = O + 48
    for q in range(12): a(f"ds_read_b128 {V(O+4*q,4)}, v13 offset:{q*1024}")
    a("s_mov_b64 exec, 1\nds_add_u32 v2, v3\ns_mov_b64 exec, -1")
    a(f"""s_lshl_b32 {T3}, {S_TILE}, 4
s_add_u32 {T3}, {T3}, {S_H}
s_lshl_b32 {T4}, {T3}, 11
s_add_u32 {T4}, {T4}, {OBUF}
s_lshl_b32 {T3}, {S_R}, 4
s_add_u32 {T3}, {T3}, {S_H}
s_lshl_b32 {T3}, {T3}, 7
s_add_u32 {T3}, {T3}, {FO}
s_mov_b32 {T0}, {lit(2.0**-40)}
s_mov_b32 {T1}, {lit(2.0**30)}
s_movk_i32 {T2}, 0x1f8""")
    for s_ in range(3):
        a(f"s_waitcnt lgkmcnt({9-4*s_})")
        for q in range(0, 16, 2): a(f"v_pk_add_f32 {V(OO+q,2)}, {V(OO+q,2)}, {V(O+16*s_+q,2)}")
    a(f"""v_mov_b32 v10, v{OO+12}
v_mov_b32 v11, v{OO+12}
v_pk_add_f32 v[12:13], {V(OO,2)}, {V(OO+2,2)}
v_pk_add_f32 v[14:15], {V(OO+4,2)}, {V(OO+6,2)}
v_permlane32_swap_b32 v10, v11
v_pk_add_f32 v[12:13], v[12:13], {V(OO+8,2)}
v_pk_add_f32 v[14:15], v[14:15], {V(OO+10,2)}
v_rcp_f32 v10, v11
v_pk_add_f32 v[12:13], v[12:13], {V(OO+12,2)}
v_pk_add_f32 v[14:15], v[14:15], {V(OO+14,2)}
v_cmp_le_f32 s[70:71], {T0}, v11
v_pk_add_f32 v[12:13], v[12:13], v[14:15]
v_cmp_ge_f32 s[72:73], {T1}, v11
v_add_f32 v12, v12, v13
v_cmp_class_f32 vcc, v12, {T2}
s_and_b64 s[70:71], s[70:71], s[72:73]
s_and_b64 vcc, vcc, s[70:71]
s_cmp_eq_u64 vcc, exec""")
    if cfg.force_fb: a("s_cmp_eq_u32 0, 1")
    a(f"s_cbranch_scc0 L_fallback\nL_fbdone:\nv_mov_b32 v11, v10")
    for hf in range(2):
        for q in range(8*hf, 8*hf+8, 2): a(f"v_pk_mul_f32 {V(OO+q,2)}, {V(OO+q,2)}, v[10:11]")
        for q in range(4*hf, 4*hf+4): a(f"v_cvt_pk_bf16_f32 v{O+q}, v{OO+2*q}, v{OO+2*q+1}")
        if hf: a(f"s_mov_b32 exec_lo, 0\nv_mov_b32 v{O+6}, 0\ns_mov_b32 exec_lo, -1")
        a(f"buffer_store_dwordx4 {V(O+4*hf,4)}, v7, {sWS}, {T4} offen offset:{1024*hf} sc1")
    stamp(a, 10)
    S_BP, S_CNT, S_DT = "s70", "s71", "s72"
    GS = 144; GC = 176; GP = 180; ZR = 196; AR = 112
    a(f"""s_lshl_b32 {S_BP}, {S_XCD}, 3
s_lshr_b32 {T0}, {S_IDX}, 2
s_add_u32 {S_BP}, {S_BP}, {T0}
s_and_b32 {T1}, {S_IDX}, 3
s_cmp_ge_u32 {T1}, 2
s_cselect_b32 {S_CNT}, 3, 4
s_lshl_b32 {S_DT}, {T1}, 2
s_cmp_eq_u32 {T1}, 3
s_cselect_b32 {S_DT}, 11, {S_DT}
s_add_u32 {S_DT}, {S_DT}, {S_W4}
v_bfe_u32 v5, v1, 2, 1
v_lshlrev_b32 v5, 4, v5
v_bfe_u32 v6, v1, 3, 2
v_lshl_add_u32 v5, v6, 2, v5
v_and_b32 v6, 3, v1
v_add_u32 v5, v5, v6
s_lshl_b32 {T0}, {S_DT}, 5
v_add_u32 v5, {T0}, v5                    ; d
v_lshlrev_b32 v9, 31, v5
v_xor_b32 v9, 0.5, v9                     ; 0.5*(-1)^d
v_cvt_f32_u32 v5, v5
v_mul_f32 v5, {lit(1/448)}, v5
v_lshrrev_b32 v4, 5, v1
v_cvt_f32_u32 v6, v4
v_mul_f32 v6, v5, v6
v_mul_f32 v6, 4.0, v6
v_mul_f32 v{GC}, {lit(16.0)}, v5
v_cos_f32 v{GC}, v{GC}""")
    for j in range(16): a(f"v_fmamk_f32 v{GS+j}, v5, {lit(float(16*(j//8) + 8*((j%8)//4) + j%4))}, v6")
    a(f"v_add_f32 v{GC}, v{GC}, v{GC}")
    for j in range(16): a(f"v_sin_f32_e64 v{GS+16+j}, -v{GS+j}\nv_cos_f32 v{GS+j}, v{GS+j}")
    a(f"v_mov_b32 v{GC+1}, v{GC}\nv_mov_b32 v240, s62\nv_mov_b32 v241, s63\nv_mov_b32 v242, 0\ns_waitcnt vmcnt(0)")
    publish_wg(a, "v2", "v3", 20, 5, T3, 240)
    stamp(a, 11)
    a(f"s_setprio 0\ns_cmp_ge_u32 {S_W4}, {S_CNT}\ns_cbranch_scc1 L_bend")
    srd(a, sOUT, 16, 2048 * 1792)
    a(f"""v_add_u32 v8, {L_ZB}, v7
v_and_b32 v6, 31, v1
v_mul_u32_u24 v6, {64*1792}, v6
v_lshl_add_u32 v6, v4, 5, v6
s_mul_i32 {T4}, {S_BP}, 1792
s_lshl_b32 {T1}, {S_DT}, 6
s_add_u32 {T4}, {T4}, {T1}""")
    lwait(a, "v2", 5, 4, 17, sleep=1, off=132)
    stamp(a, 13)
    order = [4*(q//4) + 2*(q % 2) + ((q//2) % 2) for q in range(28)]
    for q in range(8): a(f"ds_read_b128 {V(ZR+4*q,4)}, v8 offset:{order[q]*1024}")
    a(".p2align 3")
    for q in range(28):
        rho = q % 2; st = q // 2
        cur = GS + 16*rho + 8*(st % 2); oth = GS + 16*rho + 8*((st + 1) % 2); gp = GP + 4*(q % 4)
        if st >= 2:
            for z in range(0, 8, 2):
                a(f"v_pk_fma_f32 {V(cur+z,2)}, {V(GC,2)}, {V(oth+z,2)}, {V(cur+z,2)} neg_lo:[0,0,1] neg_hi:[0,0,1]")
        for z in range(4): a(f"v_cvt_pk_bf16_f32 v{gp+z}, v{cur+2*z}, v{cur+2*z+1}")
        if st == 0:
            a(f"s_mov_b32 exec_hi, 0\nv_cvt_pk_bf16_f32 v{gp}, {'v9' if rho else '0.5'}, v{cur+1}\ns_mov_b32 exec_hi, -1")
        if q >= 1:
            p = q - 1
            if p % 4 == 0: a(f"s_waitcnt lgkmcnt({max(0, min(4, 24-p))})\ns_nop 0")
            a(mfma(AR, GP + 4*(p % 4), ZR + 4*(p % 8), None if p == 0 else AR))
            if p + 8 < 28: a(f"ds_read_b128 {V(ZR+4*(p%8),4)}, v8 offset:{order[p+8]*1024}")
    a(mfma(AR, GP + 4*(27 % 4), ZR + 4*(27 % 8), AR))
    osc = ("", " sc1", " nt", " sc0 sc1")[cfg.outsc]
    for hf in range(2):
        for q in range(4*hf, 4*hf+4): a(f"v_cvt_pk_bf16_f32 v{GS+q}, v{AR+2*q}, v{AR+2*q+1}")
        a(f"buffer_store_dwordx4 {V(GS+4*hf,4)}, v6, {sOUT}, {T4} offen offset:{16*hf}{osc}")
    a("L_bend:")
    stamp(a, 12)
    dump_stamps(a, 240)
    a("s_endpgm")
    for g in (1, 2, 3):
        a(f"L_gate{g}:")
        poll(a, f"v{VF}", PG[g], 14, 4, 25, sleep=2)
        a(f"s_branch L_gated{g}")
    a("L_fallback:")
    QO = Q + 24; KB = KVB; M = 15; S_SO = "s70"
    a(f"v_mov_b32 v{M}, 0xff800000\ns_mov_b32 {S_SO}, {KV}\nL_fb1:")
    for s_ in kv_loads(0, S_SO)[:2]: a(s_)
    a(f"s_add_u32 {S_SO}, {S_SO}, {TS}\ns_waitcnt vmcnt(0)")
    a(mfma(SA, KB, QO)); a(mfma(SA, KB + 4, QO + 4, SA))
    for q in range(0, 16, 2): a(f"v_max3_f32 v{M}, v{M}, v{SA+q}, v{SA+q+1}")
    a(f"""s_cmp_lt_u32 {S_SO}, {KV + 64*TS}
s_cbranch_scc1 L_fb1
v_mov_b32 v14, v{M}
v_permlane32_swap_b32 v14, v{M}
v_max_f32 v{M}, v14, v{M}
s_mov_b32 {S_SO}, {KV}""")
    for q in range(16): a(f"v_mov_b32 v{OO+q}, 0")
    a("L_fb2:")
    for s_ in kv_loads(0, S_SO): a(s_)
    a(f"s_add_u32 {S_SO}, {S_SO}, {TS}\ns_waitcnt vmcnt(0)")
    a(mfma(SA, KB, QO)); a(mfma(SA, KB + 4, QO + 4, SA))
    for q in range(16): a(f"v_sub_f32 v{SA+q}, v{SA+q}, v{M}")
    for q in range(16): a(f"v_exp_f32 v{SA+q}, v{SA+q}")
    for q in range(8): a(f"v_cvt_pk_bf16_f32 v{P0+q}, v{SA+2*q}, v{SA+2*q+1}")
    a(mfma(OO, KB + 8, P0, OO)); a(mfma(OO, KB + 12, P1, OO))
    a(f"""s_cmp_lt_u32 {S_SO}, {KV + 64*TS}
s_cbranch_scc1 L_fb2
v_mov_b32 v10, v{OO+12}
v_mov_b32 v11, v{OO+12}
v_permlane32_swap_b32 v10, v11
v_rcp_f32 v10, v11
s_branch L_fbdone""")

def role_A(a):
    FB = 16; GS0 = 48; M = 72; F = 88; ACC = 200; TMP = 216
    S_BP = "s78"
    S_CG, S_CNT, S_CB, S_DT, S_TASK, S_K1 = "s79", "s80", "s81", "s82", "s83", "s73"
    S_B, S_KT16 = S_BP, S_DT
    (PN, _, _, P_TST, P_W, P_F1, P_TLD, P_TBW, P_TBR, P_TTW, P_TTR, P_UST, P_F2, P_WOD, P_WOR, P_WOR2,
     P_ZW0, P_ZW1, P_PF, P_BC, P_PS, _, P_LS, P_DUM) = range(232, 256)
    sc = 1.0 / (2048 * 448)
    def albar(code): lbar(a, "v14", "v15", P_LS, code, sleep=1)
    def burst(items, th):
        a("s_setprio 0")
        for q, it in enumerate(items):
            if q >= th: a(f"s_waitcnt vmcnt({th-1})")
            a(it)
        a(f"s_setprio {cfg.aprio}")
    def stage_arrive(FA, k):
        a(f"s_lshl_b32 {T3}, {S_XCD}, 5\ns_add_u32 {T3}, {T3}, {S_IDX}\ns_lshl_b32 {T3}, {T3}, 7\ns_add_u32 {T3}, {T3}, {FA}\ns_waitcnt vmcnt(0)")
        publish_wg(a, "v14", "v15", 8, P_LS, T3, PN, last=4*k+3)
    def stage_wait(FA, k, agg, pre):
        L1, L2, L3 = a.lab("sw"), a.lab("sw"), a.lab("sw")
        a(f"s_cmp_eq_u32 {S_W4}, 1\ns_cbranch_scc0 {L1}\ns_cmp_eq_u32 {S_IDX}, {agg}\ns_cbranch_scc0 {L2}")
        a(f"s_lshl_b32 {T4}, {S_XCD}, 12\ns_add_u32 {T4}, {T4}, {FA}")
        poll(a, f"v{P_PF}", T4, P_PS, 32, 31, sleep=2)
        a(f"""s_lshl_b32 {T4}, {S_XCD}, 7
s_add_u32 {T4}, {T4}, {FA + 32768}
s_mov_b64 exec, 0xffff
buffer_store_dwordx2 {V(PN,2)}, v{P_F1}, {sWS}, {T4} offen sc1
s_mov_b64 exec, -1
s_branch {L2}
{L1}:
s_cmp_eq_u32 {S_W4}, 0
s_cbranch_scc0 {L2}
s_and_b32 {T4}, s2, 15
s_lshl_b32 {T4}, {T4}, 10
s_add_u32 {T4}, {T4}, {FA + 32768}
s_sleep {pre}""")
        poll(a, f"v{P_PF}", T4, P_PS, 8, 32, sleep=4)
        a(f"s_mov_b64 exec, 1\nds_add_u32 v14, v15 offset:12\ns_mov_b64 exec, -1\ns_branch {L3}\n{L2}:")
        lwait(a, "v14", P_LS, k + 1, 33, sleep=2, off=12)
        a(f"{L3}:")
    def pace():
        if cfg.pace: a(f"s_sleep {cfg.pace}")
    a(f"""L_roleA:
v_mov_b32 v3, 0
v_mov_b32 v2, {L_SYNC}
ds_write2_b32 v2, v3, v3 offset0:0 offset1:32
ds_write2_b32 v2, v3, v3 offset0:1 offset1:2
ds_write2_b32 v2, v3, v3 offset0:3 offset1:33
ds_write2_b32 v2, v3, v3 offset0:4 offset1:34
ds_write2_b32 v2, v3, v3 offset0:5 offset1:35
s_setprio {cfg.aprio}
s_mov_b32 {S_BAR}, 0
s_lshl_b32 {S_BP}, {S_XCD}, 3
s_lshr_b32 {T0}, {S_IDX}, 2
s_add_u32 {S_BP}, {S_BP}, {T0}
s_and_b32 {S_CG}, {S_IDX}, 3
s_cmp_ge_u32 {S_CG}, 2
s_cselect_b32 {S_CNT}, 3, 4
s_lshl_b32 {S_CB}, {S_CG}, 2
s_cmp_eq_u32 {S_CG}, 3
s_cselect_b32 {S_CB}, 11, {S_CB}
s_add_u32 {S_DT}, {S_CB}, {S_W4}
v_and_b32 v2, 31, v1                      ; v2 = lane%32
v_lshrrev_b32 v3, 5, v1                   ; v3 = half
v_cvt_f32_u32 v4, v3""")
    def angles(n, vstep, vbase, offs, dst=TMP):
        for j in range(n): a(f"v_fmamk_f32 v{dst+j}, {vstep}, {lit(float(offs[j]))}, {vbase}")
    def gen_F():
        A0 = TMP; A1 = TMP + 8; C2 = TMP + 16
        a(f"""v_and_b32 v5, 15, v1
s_lshl_b32 {T0}, {S_KT16}, 4
v_add_u32 v5, {T0}, v5                    ; k
v_bfe_u32 v6, v1, 4, 1
v_lshl_add_u32 v7, v5, 1, v6
v_cmp_eq_u32 vcc, 1, v7
v_mov_b32 v7, 224
v_cndmask_b32 v5, v5, v7, vcc
v_cndmask_b32 v6, v6, 0, vcc
v_cvt_f32_u32 v5, v5
v_cvt_f32_u32 v6, v6
v_mul_f32 v5, {lit(1/448)}, v5            ; kf
v_mul_f32 v6, {lit(0.25)}, v6
v_mul_f32 v7, v5, v4
v_fmamk_f32 v6, v7, {lit(8.0)}, v6
v_mul_f32 v{C2}, {lit(16.0)}, v5
v_cos_f32 v{C2}, v{C2}""")
        angles(16, "v5", "v6", [j % 8 + 16 * (j // 8) for j in range(16)])
        a(f"v_add_f32 v{C2}, v{C2}, v{C2}")
        for j in range(16): a(f"v_cos_f32 v{A0+j}, v{A0+j}")
        a(f"v_mov_b32 v{C2+1}, v{C2}\ns_waitcnt lgkmcnt(0)\n{st0()}\ns_barrier\n.p2align 3")
        for m in range(28):
            cur = A0 if m % 2 == 0 else A1; oth = A1 if m % 2 == 0 else A0
            if m >= 2:
                for q in range(0, 8, 2):
                    a(f"v_pk_fma_f32 {V(cur+q,2)}, {V(C2,2)}, {V(oth+q,2)}, {V(cur+q,2)} neg_lo:[0,0,1] neg_hi:[0,0,1]")
            for q in range(4): a(f"v_cvt_pk_bf16_f32 v{F+4*m+q}, v{cur+2*q}, v{cur+2*q+1}")
    def gen_M():
        a(f"""v_cvt_f32_u32 v5, v2
s_and_b32 {T0}, {S_W4}, 1
s_lshl_b32 {T0}, {T0}, 10
s_add_u32 {T0}, {T0}, {S_B}
v_lshl_add_u32 v6, v3, 8, {T0}
v_cvt_f32_u32 v6, v6
v_mul_f32 v6, v6, v5
s_cmp_ge_u32 {S_W4}, 2
s_cselect_b32 {T0}, {lit(0.25)}, 0
v_mov_b32 v7, {T0}
v_fmamk_f32 v6, v6, {lit(1/2048)}, v7
v_mul_f32 v5, {lit(1/32)}, v5""")
        angles(8, "v5", "v6", [8*(j//4) + j%4 for j in range(8)])
        for j in range(8): a(f"v_cos_f32 v{TMP+j}, v{TMP+j}")
        for q in range(4): a(f"v_cvt_pk_bf16_f32 v{ACC+8+q}, v{TMP+2*q}, v{TMP+2*q+1}")
    def gen_MS():
        a(f"""v_lshlrev_b32 v5, 6, v2
v_add_u32 v5, {S_BP}, v5
v_cvt_f32_u32 v5, v5
v_mul_f32 v5, {lit(1/2048)}, v5
s_lshl_b32 {T0}, {S_W4}, 3
v_lshl_add_u32 v6, v3, 2, {T0}
v_cvt_f32_u32 v6, v6
v_mul_f32 v6, v5, v6""")
        angles(4, "v5", "v6", range(4), TMP + 8)
        for j in range(4): a(f"v_cos_f32 v{TMP+2*j}, v{TMP+8+j}\nv_sin_f32 v{TMP+2*j+1}, v{TMP+8+j}")
        a(f"v_mov_b32 v6, {lit(2*sc)}\nv_mov_b32 v7, v6")
        for j in range(4): a(f"v_pk_mul_f32 {V(TMP+2*j,2)}, {V(TMP+2*j,2)}, v[6:7]")
        for j in range(4):
            a(f"v_cvt_pk_bf16_f32 v{48+j}, v{TMP+2*j}, v{TMP+2*j+1}\nv_cvt_pk_bf16_f32 v{52+j}, v{TMP+2*j+1}, -v{TMP+2*j}")
    def gen_FB():
        a(f"""v_and_b32 v5, 15, v1
s_lshl_b32 {T0}, {S_W4}, 4
v_add_u32 v5, {T0}, v5
v_cvt_f32_u32 v5, v5
v_mul_f32 v5, {lit(1/64)}, v5
v_bfe_u32 v6, v1, 4, 1
v_cvt_f32_u32 v6, v6
v_mul_f32 v6, {lit(0.25)}, v6
v_mul_f32 v7, v5, v4
v_fmamk_f32 v6, v7, {lit(4.0)}, v6""")
        C2 = TMP + 16
        a(f"v_mul_f32 v{C2}, {lit(8.0)}, v5\nv_cos_f32 v{C2}, v{C2}")
        angles(8, "v5", "v6", [8*(j//4) + j%4 for j in range(8)], TMP + 20)
        a(f"v_add_f32 v{C2}, v{C2}, v{C2}")
        for j in range(8): a(f"v_cos_f32 v{TMP+2*j}, v{TMP+20+j}\nv_sin_f32 v{TMP+2*j+1}, v{TMP+20+j}")
        a(f"v_mov_b32 v{C2+1}, v{C2}")
        for m in range(8):
            cur = TMP + 8*(m % 2); oth = TMP + 8*((m + 1) % 2)
            if m >= 2:
                for q in range(0, 8, 2):
                    a(f"v_pk_fma_f32 {V(cur+q,2)}, {V(C2,2)}, {V(oth+q,2)}, {V(cur+q,2)} neg_lo:[0,0,1] neg_hi:[0,0,1]")
            for q in range(4): a(f"v_cvt_pk_bf16_f32 v{FB+4*m+q}, v{cur+2*q}, v{cur+2*q+1}")
    def gen_addr():
        a(f"""v_mov_b32 v{PN+2}, 0
v_lshlrev_b32 v7, 4, v1                   ; v7 = lane*16
v_and_b32 v6, 3, v1
v_lshrrev_b32 v5, 2, v1
v_lshlrev_b32 v5, 16, v5
v_lshl_add_u32 v{P_TST}, v6, 4, v5
s_lshl_b32 {T1}, {S_W4}, 11
s_add_u32 {T0}, {T1}, {L_TT}
v_add_u32 v{P_TTR}, {T0}, v7
v_lshlrev_b32 v5, 6, v2
v_lshl_add_u32 v5, v3, 4, v5
v_add_u32 v{P_TTW}, {T0}, v5
s_lshl_b32 {S_TASK}, {S_XCD}, 5
s_add_u32 {S_TASK}, {S_TASK}, {S_IDX}
s_lshr_b32 {T0}, {S_TASK}, 3
s_lshl_b32 {T2}, {S_W4}, 9
s_add_u32 {T0}, {T0}, {T2}
s_mul_i32 {T0}, {T0}, 225
s_lshl_b32 {T2}, {S_HH}, 5
s_add_u32 {T0}, {T0}, {T2}
v_mul_u32_u24 v5, {128*225}, v3
v_add3_u32 v5, v5, v2, {T0}
v_lshlrev_b32 v{P_W}, 1, v5
v_bfe_u32 v12, v1, 4, 1
v_lshlrev_b32 v{P_F1}, 10, v1
v_lshlrev_b32 v5, 2, v2
v_lshl_add_u32 v{P_TLD}, v3, 9, v5
v_lshl_add_u32 v{P_UST}, v3, 17, v5
v_add_u32 v{P_TBR}, {L_TB}, v7
v_add_u32 v{P_TBW}, {T1}, v{P_TBR}
s_add_u32 {S_K1}, {S_W4}, 3
s_cmp_eq_u32 {S_W4}, 0
s_cselect_b32 {S_K1}, 7, {S_K1}
s_lshl_b32 {T0}, {S_W4}, 12
v_add_u32 v{P_ZW0}, {T0}, v{P_TBR}
s_lshl_b32 {T0}, {S_K1}, 12
v_add_u32 v{P_ZW1}, {T0}, v{P_TBR}
v_bfe_u32 v13, v1, 2, 2
v_lshrrev_b32 v5, 4, v1
v_xor_b32 v{P_WOD}, v13, v5
s_sub_u32 {T0}, {S_CNT}, 1
v_min_u32 v{P_WOD}, {T0}, v{P_WOD}
v_add_u32 v{P_WOD}, {S_CB}, v{P_WOD}
v_lshlrev_b32 v{P_WOD}, 6, v{P_WOD}
v_mul_u32_u24 v5, 896, v5
v_add_u32 v5, v5, v{P_WOD}
v_lshl_add_u32 v5, v6, 4, v5
s_mul_i32 {T0}, {S_W4}, {4*896}
v_add_u32 v{P_WOD}, {T0}, v5
v_xor_b32 v5, {S_W4}, v13
v_lshlrev_b32 v5, 6, v5
v_lshl_add_u32 v5, v13, 8, v5
v_and_b32 v6, 1, v1
v_lshl_add_u32 v5, v6, 5, v5
v_lshl_add_u32 v5, v12, 4, v5
v_bfe_u32 v6, v1, 1, 1
v_lshl_add_u32 v5, v6, 3, v5
v_add_u32 v{P_WOR2}, {L_X}, v5
v_lshl_add_u32 v{P_WOR}, v3, 10, v{P_WOR2}""")
    pieces = [gen_F, gen_FB, gen_M, gen_MS, gen_addr]
    assert cfg.pre >= 1
    def wq_warm():
        a(f"""s_cmp_eq_u32 {S_LC}, 7
s_cbranch_scc0 L_pf1
v_mul_u32_u24 v5, 2688, v1
s_mul_i32 {T0}, {T5}, 3
s_add_u32 {T0}, {T0}, {S_RR}
s_lshl_b32 {T0}, {T0}, 7
s_mul_i32 {T1}, {S_W4}, {128*2688}
s_add_u32 {T0}, {T0}, {T1}
s_add_u32 {T1}, {T0}, {64*2688}
buffer_load_dword v{P_DUM}, v5, {sWQKV}, {T0} offen
buffer_load_dword v{P_DUM}, v5, {sWQKV}, {T1} offen
L_pf1:""")
    for q in range(cfg.pre):
        pieces.pop(0)()
        if q == 0: srd(a, sWQKV, 12, 448 * 2688)
        if cfg.wqwarm == q + 1: wq_warm()
    stamp(a, 1)
    srd(a, sWS, 20, WS_SIZE)
    srd(a, sX, 4, 2048 * 896); srd(a, sWR, 6, 2048 * 450); srd(a, sWI, 8, 2048 * 450)
    srd(a, sWO, 14, 448 * 896); srd(a, sOUT, 16, 2048 * 1792)
    S_XA, S_WQL, S_WQG = "s70", "s71", "s72"
    XD = 70
    a(f"""v_lshrrev_b32 v6, 3, v1
v_and_b32 v5, 7, v1
v_lshrrev_b32 v8, 4, v1
v_xor_b32 v5, v5, v8
s_and_b32 {T0}, {S_W4}, 1
s_lshl_b32 {T0}, {T0}, 2
v_xor_b32 v5, {T0}, v5
v_mul_u32_u24 v6, {64*896}, v6
s_mul_i32 {T1}, {S_W4}, {8*64*896}
s_mul_i32 {T2}, {S_B}, 896
s_add_u32 {T1}, {T1}, {T2}
v_add_u32 v6, {T1}, v6
v_lshl_add_u32 v{XD}, v5, 4, v6
s_lshl_b32 {T0}, {S_W4}, 10
s_add_u32 {S_XA}, {T0}, {L_X}
s_mov_b32 {T2}, {L_X}""")
    x_read_addrs(a, 8, "v1", T2, TMP)
    a(f"""v_mov_b32 v14, {L_SYNC+128}
v_mov_b32 v15, 1
v_mov_b32 v{P_BC}, {L_SYNC}
s_lshl_b32 {T1}, {S_CG}, 1""")
    stamp(a, 2)
    lwait(a, f"v{P_BC}", P_LS, 4, 20, sleep=1, off=8)
    if cfg.xas:
        a(f"s_mul_i32 {T2}, {S_H}, 7\ns_bfe_u32 {T2}, {T2}, 0x30001\ns_cmp_gt_u32 {T2}, 4\ns_cbranch_scc0 L_xago")
        lwait(a, f"v{P_BC}", P_LS, 4 * cfg.xas, 30, sleep=1, off=4)
        a("L_xago:")
    for c in range(7):
        a(f"""s_add_u32 {T2}, {T1}, 1
s_lshr_b32 {T3}, {T2}, 1
s_lshl_b32 {T3}, {T3}, 14
s_and_b32 {T4}, {T1}, 1
s_lshl_b32 {T4}, {T4}, 12
s_sub_u32 {T3}, {T3}, {T4}
s_add_u32 m0, {S_XA}, {T3}
s_lshl_b32 {T4}, {T1}, 7
buffer_load_dwordx4 v{XD}, {sX}, {T4} offen lds
s_cmp_eq_u32 {T2}, 7
s_cselect_b32 {T1}, 0, {T2}""")
    for p_ in pieces: p_()
    a(f"""ds_read_b64 {V(PN,2)}, v{P_BC} offset:64
v_lshlrev_b32 v{P_PF}, 7, v1
v_add_u32 v13, {L_M}, v7
s_lshl_b32 {T0}, {S_W4}, 10
v_add_u32 v5, {T0}, v13
ds_write_b128 v5, {V(ACC+8,4)}
s_waitcnt lgkmcnt(0)
v_readfirstlane_b32 s62, v{PN}
v_readfirstlane_b32 s63, v{PN+1}""")
    WW = 72; AC = 152; FR = 168; TP = 200
    wl = []
    for r in range(8):
        wl.append(f"s_mov_b32 {T0}, {14400*(8*(r//4) + r%4)}\nbuffer_load_short_d16_hi v{WW+r}, v{P_W}, {sWR}, {T0} offen")
        wl.append(f"buffer_load_short_d16_hi v{WW+8+r}, v{P_W}, {sWI}, {T0} offen")
    a("s_waitcnt vmcnt(0)")
    stamp(a, 3)
    if cfg.noA == 1:
        a(f"s_mov_b64 exec, 1\nds_add_u32 v14, v15 offset:4\ns_mov_b64 exec, -1")
        stamp(a, 12); dump_stamps(a, 16); a("s_endpgm")
    albar(16)
    def xreg(m): return TMP + 4*m if m < 4 else F + 4*(m - 4)
    def xr(m): return f"ds_read_b128 {V(xreg(m),4)}, v{8+m%4} offset:{((m//4+1)>>1)*16384 - ((m//4)&1)*4096}"
    for m in range(4): a(xr(m))
    P1 = F; P2 = F + 16; XP = TMP; M = F + 32
    for m in range(28):
        a(f"s_waitcnt lgkmcnt(3)")
        a(mfma(ACC, xreg(m), F + 4*m, None if m == 0 else ACC))
        if m + 4 < 28: a(xr(m + 4))
        else: a(f"ds_read_b128 {V(M+4*(m-24),4)}, v13 offset:{(m-24)*1024}")
    lwait(a, f"v{P_BC}", P_LS, 8, 27, sleep=1)
    a(f"""s_lshl_b32 {T0}, {S_W4}, 11
s_add_u32 {T0}, {T0}, {L_MS}
v_add_u32 v5, {T0}, v7
ds_write_b128 v5, v[48:51]
ds_write_b128 v5, v[52:55] offset:1024
s_lshr_b32 {T0}, {S_KT16}, 1
s_lshl_b32 {T0}, {T0}, 13
s_lshl_b32 {T1}, {S_B}, 7
s_add_u32 {T1}, {T1}, {TBUF}
s_add_u32 {T0}, {T0}, {T1}
s_and_b32 {T2}, {S_KT16}, 1
s_lshl_b32 {T2}, {T2}, 6
s_add_u32 {T0}, {T0}, {T2}
s_add_u32 {T2}, {T0}, {16*65536}
s_cmp_ge_u32 {S_W4}, {S_CNT}
s_cbranch_scc1 L_a1done
s_waitcnt lgkmcnt(0)""")
    for q in range(8): a(f"v_cvt_pk_bf16_f32 v{XP+q}, v{ACC+2*q}, v{ACC+2*q+1}")
    a(mfma(P1, XP, M)); a(mfma(P2, XP, M + 8)); a(mfma(P1, XP + 4, M + 4, P1)); a(mfma(P2, XP + 4, M + 12, P2))
    for r in range(0, 8, 2):
        a(f"v_pk_add_f32 {V(ACC+r,2)}, {V(P1+r,2)}, {V(P2+r+8,2)} neg_lo:[0,1] neg_hi:[0,1]\nv_pk_add_f32 {V(ACC+8+r,2)}, {V(P1+r+8,2)}, {V(P2+r,2)}")
    for r in range(8): a(f"v_cvt_pk_bf16_f32 v{XP+8+r}, v{ACC+r}, v{ACC+8+r}")
    a(f"""s_cmp_lg_u32 {S_KT16}, 0
s_cbranch_scc1 L_a1st
s_mov_b32 exec_hi, 0
v_cvt_pk_bf16_f32 v{XP+8}, v{P1}, v{P2}
v_cvt_pk_bf16_f32 v6, v{P1+8}, v{P2+8}
v_lshlrev_b32 v5, 16, v2
s_mov_b32 exec_hi, -1
L_a1st:
ds_write_b128 v{P_TTW}, {V(XP+8,4)}
ds_write_b128 v{P_TTW}, {V(XP+12,4)} offset:32
ds_read_b128 {V(XP,4)}, v{P_TTR}
ds_read_b128 {V(XP+4,4)}, v{P_TTR} offset:1024
s_mov_b32 {T4}, {T0}
s_waitcnt lgkmcnt(0)""")
    stamp(a, 1, 5)
    if cfg.tdefer: lwait(a, f"v{P_BC}", P_LS, 4, 28, sleep=1, off=12)
    a(f"""s_cmp_lg_u32 {S_KT16}, 0
s_cbranch_scc1 L_a1st2
s_mov_b32 exec_hi, 0
s_add_u32 {T1}, {T1}, {7*8192}
buffer_store_dword v6, v5, {sWS}, {T1} offen sc1
s_mov_b32 exec_hi, -1
L_a1st2:
buffer_store_dwordx4 {V(XP,4)}, v{P_TST}, {sWS}, {T4} offen sc1
buffer_store_dwordx4 {V(XP+4,4)}, v{P_TST}, {sWS}, {T2} offen sc1
L_a1done:""")
    stage_arrive(FA1, 0)
    stamp(a, 4)
    lwait(a, f"v{P_BC}", P_LS, 4, 29, sleep=1, off=12)
    burst(wl, cfg.th_w)
    if cfg.wopf:
        burst([f"""s_lshl_b32 {T0}, {S_IDX}, 2
s_add_u32 {T0}, {T0}, {S_W4}
s_mul_i32 {T0}, {T0}, {25*128}
s_bfm_b64 exec, 25, 0
buffer_load_dword v{P_DUM}, v{P_PF}, {sWO}, {T0} offen
s_mov_b64 exec, -1"""], 1)
    WO = 72
    S_WOL = "s70"
    a(f"s_lshl_b32 {S_WOL}, {S_W4}, 10\ns_add_u32 {S_WOL}, {S_WOL}, {L_X}")
    def wo_list(rnd):
        return [f"s_add_u32 m0, {S_WOL}, {i*4096}\ns_mov_b32 s71, {(rnd*224 + i*16)*896}\nbuffer_load_dwordx4 v{P_WOD}, {sWO}, s71 offen lds" for i in range(14)]
    def ride(q, n=1):
        it = [q.pop(0) for _ in range(min(n, len(q)))]
        if it: burst(it, n)
        pace()
    def wo_rd(f, d, r1, r2):
        hl, mu = f // 2, f % 2
        return [f"ds_read_b64_tr_b16 {V(d+2*sec,2)}, v{r2 if (mu and sec) else r1} offset:{(28*hl + 16*mu + 8*sec)*256}" for sec in range(2)]
    stamp(a, 5)
    stage_wait(FA1, 0, 0, cfg.a2wait)
    a(f"s_lshl_b32 {T1}, {S_W4}, 11")
    stamp(a, 6)
    a(f"""s_lshl_b32 {T0}, {S_TASK}, 13
s_add_u32 {T0}, {T0}, {T1}
s_add_u32 {T0}, {T0}, {TBUF}""")
    burst([f"buffer_load_dword v{FR+q}, v{P_TLD}, {sWS}, {T0} offen offset:{(q//4)*1024 + (q%4)*128} sc1" for q in range(8)], 8)
    a(f"s_cmp_eq_u32 {S_HH}, 7\ns_cbranch_scc0 L_a2nx\ns_waitcnt vmcnt(8)")
    for r in range(8):
        a(f"v_mov_b32 v{TP}, v{WW+r}\nv_xor_b32 v{WW+r}, 0x80000000, v{WW+8+r}\nv_mov_b32 v{WW+8+r}, v{TP}")
    a(f"""L_a2nx:
s_waitcnt vmcnt(0)
ds_write_b128 v{P_TBW}, {V(FR,4)}
ds_write_b128 v{P_TBW}, {V(FR+4,4)} offset:1024""")
    stamp(a, 1, 4)
    albar(6)
    stamp(a, 2, 4)
    def dft64(base):
        for m in range(8): a(f"ds_read_b128 {V(FR+4*m,4)}, v{P_TBR} offset:{base + m*1024}")
        for m in range(8):
            a(f"s_waitcnt lgkmcnt({7-m})")
            a(mfma(AC, FB + 4*m, FR + 4*m, None if m == 0 else AC))
            ride(woq)
    woq = wo_list(0)
    dft64(0)
    for r in range(0, 8, 2):
        a(f"""v_pk_mul_f32 {V(FR+r,2)}, {V(AC+r,2)}, {V(WW+r,2)}
v_pk_mul_f32 {V(FR+8+r,2)}, {V(AC+r,2)}, {V(WW+8+r,2)}
v_pk_fma_f32 {V(FR+r,2)}, {V(AC+8+r,2)}, {V(WW+8+r,2)}, {V(FR+r,2)} neg_lo:[1,0,0] neg_hi:[1,0,0]
v_pk_fma_f32 {V(FR+8+r,2)}, {V(AC+8+r,2)}, {V(WW+r,2)}, {V(FR+8+r,2)} neg_lo:[1,0,1] neg_hi:[1,0,1]
v_cvt_pk_bf16_f32 v{TP+r}, v{FR+r}, v{FR+8+r}
v_cvt_pk_bf16_f32 v{TP+r+1}, v{FR+r+1}, v{FR+8+r+1}""")
    a(f"ds_write_b128 v{P_TBW}, {V(TP,4)} offset:8192\nds_write_b128 v{P_TBW}, {V(TP+4,4)} offset:9216")
    stamp(a, 3, 4)
    albar(7)
    stamp(a, 4, 4)
    dft64(8192)
    a(f"""s_lshl_b32 {T0}, {S_HH}, 12
s_lshr_b32 {T1}, {S_TASK}, 3
s_lshl_b32 {T1}, {T1}, 7
s_add_u32 {T0}, {T0}, {T1}
s_add_u32 {T0}, {T0}, {UBUF}
s_lshl_b32 {T1}, {S_W4}, 19
s_add_u32 {T0}, {T0}, {T1}""")
    for r in range(8): a(f"v_cvt_pk_bf16_f32 v{TP+r}, v{AC+r}, v{AC+8+r}")
    stamp(a, 5, 4)
    burst([f"s_add_u32 {T1}, {T0}, {(8*(r//4) + r%4) * USTR}\nbuffer_store_dword v{TP+r}, v{P_UST}, {sWS}, {T1} offen sc1" for r in range(8)], 8)
    stage_arrive(FA2, 1)
    stamp(a, 7)
    albar(4)
    for f in range(16):
        for s_ in wo_rd(f, WO + 4*f, P_WOR, P_WOR2): a(s_)
    U0 = 16; U1 = 32; AR = 200; AI = 216; MS = 136; UE = 168
    for q in range(8): a(f"ds_read_b128 {V(MS+4*q,4)}, v7 offset:{L_MS + q*1024}")
    stage_wait(FA2, 1, 8, cfg.a3wait)
    stamp(a, 8)
    a(f"""s_lshl_b32 {T0}, {S_BP}, 15
s_add_u32 {T0}, {T0}, {UBUF}
s_lshl_b32 {T1}, {S_W4}, 12
s_lshl_b32 {T3}, {S_K1}, 12
s_add_u32 {T2}, {T0}, {T3}
s_add_u32 {T1}, {T0}, {T1}""")
    burst([f"buffer_load_dword v{U0+q}, v{P_TLD}, {sWS}, {T1 if q < 16 else T2} offen offset:{((q%16)//4)*1024 + (q%4)*128} sc1" for q in range(32)], cfg.th_u)
    stamp(a, 10, 4)
    albar(24)
    stamp(a, 11, 4)
    def step6(ur, ui, va, q_, n):
        for m in range(4):
            a(mfma(AR, ur + 4*m, MS + 8*m, None if m == 0 else AR)); ride(q_, n)
            a(mfma(AI, ui + 4*m, MS + 8*m + 4, None if m == 0 else AI)); ride(q_, n)
        for q in range(16): a(f"v_cvt_pk_bf16_f32 v{UE+q}, v{AR+2*q}, v{AR+2*q+1}")
        for q in range(4): a(f"ds_write_b128 v{va}, {V(UE+4*q,4)} offset:{q*1024}")
    a(f"s_cmp_eq_u32 {S_W4}, 0\ns_cbranch_scc1 L_a3w0\ns_waitcnt vmcnt(16)")
    woq = wo_list(1)
    step6(U0, U0, P_ZW0, woq, 1)
    a("s_waitcnt vmcnt(8)")
    step6(U1, U1, P_ZW1, woq, 1)
    a("s_branch L_a3z\nL_a3w0:\ns_waitcnt vmcnt(0)\ns_mov_b32 exec_lo, -2\ns_mov_b32 exec_hi, -2")
    for q in range(16): a(f"v_mov_b32 v{U1+q}, v{U0+q}")
    a("s_mov_b64 exec, -1")
    step6(U0, U1, P_ZW0, wo_list(1), 2)
    a("L_a3z:")
    stamp(a, 13, 4)
    a(f"s_mov_b64 exec, 1\nds_add_u32 v14, v15 offset:4\ns_mov_b64 exec, -1\ns_waitcnt vmcnt(0)")
    albar(10)
    stamp(a, 9)
    for f in range(16):
        for s_ in wo_rd(f, WO + 64 + 4*f, P_WOR, P_WOR2): a(s_)
    osc = ("", " sc1", " nt", " sc0 sc1")[cfg.outsc]
    def out_store(rowmul, colbase, skip):
        a(f"""v_mul_u32_u24 v5, {rowmul}, v2
v_lshl_add_u32 v5, v3, 5, v5
s_lshl_b32 {T1}, {S_DT}, 6
s_add_u32 {T0}, {T0}, {T1}
s_add_u32 {T0}, {T0}, {colbase}
s_cmp_ge_u32 {S_W4}, {S_CNT}
s_cbranch_scc1 {skip}""")
        for q in range(4): a(f"v_cvt_pk_bf16_f32 v{64+q}, v{AR+2*q}, v{AR+2*q+1}")
        a(f"buffer_store_dwordx4 v[64:67], v5, {sOUT}, {T0} offen{osc}")
        for q in range(4, 8): a(f"v_cvt_pk_bf16_f32 v{64+q}, v{AR+2*q}, v{AR+2*q+1}")
        a(f"buffer_store_dwordx4 v[68:71], v5, {sOUT}, {T0} offen offset:16{osc}\n{skip}:")
    a(f"""s_lshl_b32 {T4}, {S_BP}, 2
s_add_u32 {T4}, {T4}, {S_W4}
s_lshl_b32 {T3}, {T4}, 13
s_add_u32 {T3}, {T3}, {OBUF}
s_add_u32 {T2}, {T3}, 4096
s_and_b32 {T4}, {S_BP}, 60
s_add_u32 {T4}, {T4}, {S_W4}
s_lshl_b32 {T4}, {T4}, 9
s_add_u32 {T4}, {T4}, {FO}""")
    lwait(a, f"v{P_BC}", P_LS, 20, 21, sleep=3)
    stamp(a, 10)
    if cfg.owait: a(f"s_sleep {cfg.owait}")
    poll(a, f"v{P_PF}", T4, P_PS, 4, 11, sleep=2)
    stamp(a, 13)
    for q in range(8):
        a(f"buffer_load_dwordx4 {V(16+4*q,4)}, v7, {sWS}, {T3 if q < 4 else T2} offen offset:{(q%4)*1024} sc1")
    a(f"s_lshl_b32 {T1}, {S_W4}, 13\nv_add_u32 v9, {T1}, v7")
    for q in range(8):
        a(f"s_waitcnt vmcnt({7-q})\nds_write_b128 v9, {V(16+4*q,4)} offset:{L_OB + q*1024}")
    lbar(a, "v14", "v15", P_LS, 12)
    OR = 216
    def zr(s_): return f"ds_read_b128 {V(OR+4*(s_%8),4)}, v7 offset:{L_OB + s_*1024}"
    for s_ in range(8): a(zr(s_))
    for s_ in range(32):
        a(f"s_waitcnt lgkmcnt({min(7, 31-s_)})")
        a(mfma(AR, WO + 4*s_, OR + 4*(s_ % 8), None if s_ == 0 else AR))
        if s_ + 8 < 32: a(zr(s_ + 8))
    a(f"s_mul_i32 {T0}, {S_BP}, {32*1792}")
    out_store(1792, 896, "L_b3done")
    a(f"""s_lshl_b32 {T0}, s2, 2
s_add_u32 {T0}, {T0}, {S_W4}
s_cmp_lg_u32 {T0}, 0
s_cbranch_scc1 L_noep
s_mov_b32 {T0}, {EPOCH}""")
    flag(a, T0, 10)
    a("L_noep:")
    if cfg.padend: padto(a, cfg.padend)
    stamp(a, 12)
    dump_stamps(a, 16)
    a("s_endpgm")

def build():
    nh = cfg.nh; xh = 16 // nh
    for wg in range(256):
        xcd, idx = wg & 7, wg >> 3
        h = (xcd % xh) * nh + idx % nh
        assert nh == 8
    a = Asm()
    prologue(a); role_B(a); role_A(a)
    a(f"""L_fail:
v_mov_b32 v0, 0
v_mov_b32 v1, {S_TO}
global_store_dword v0, v1, s[18:19]
L_end:
s_endpgm
L_codeend:""")
    a.pad()
    import os
    ref = "cdna_kernels/" + NAME + ".s.ref"
    hdr = open(ref).read().split("; Override launch")[0] if os.path.exists(ref) else ""
    s = hdr + f"; @launch grid=(256,1,1) block=(512,1,1) lds={LDS_SIZE}\n"
    s += f""".amdgcn_target "amdgcn-amd-amdhsa--gfx950"
.text
.globl {NAME}_kernel
.p2align 8
.type {NAME}_kernel,@function
{NAME}_kernel:
""" + a.text() + f""".section .rodata,"a"
.p2align 6
.amdhsa_kernel {NAME}_kernel
  .amdhsa_next_free_vgpr 256
  .amdhsa_next_free_sgpr 102
  .amdhsa_accum_offset 256
  .amdhsa_group_segment_fixed_size 0
  .amdhsa_kernarg_size 72
  .amdhsa_user_sgpr_count 2
  .amdhsa_user_sgpr_kernarg_segment_ptr 1
  .amdhsa_system_sgpr_workgroup_id_x 1
.end_amdhsa_kernel
"""
    return s

if __name__ == "__main__":
    out = sys.argv[1]
    for kv in sys.argv[2:]:
        k, v = kv.split("=")
        setattr(cfg, k, type(getattr(cfg, k))(int(v)))
    open(out, "w").write(build())
```

```python
import sys, math, struct
from asmlib import Asm

NAME = "concat_heads__spectral_gfnet__softmax_full_mha__prompt"

class Cfg:
    nh = 8
    stamps = False
    poll_limit = 1 << 17
    noA = 0
    probe = -1
    span = 0
    fine = 0
    padend = 0
    padmid = 0
    dbgwave = -1
    nbuf = 5
    wearly = 0
    wdelay = 24
    tdelay = 0
    s6late = 1
    lsl = 4
    odefer = 1
    a2wait = 8
    a3wait = 8
    kvwait = 8
    kvrot = 3
    m1 = 14
    ramp = 1
    gate = 2
    wqe = 3
    wqp = 7
    tdefer = 1
    m2 = 10
    xas = 0
    bsleep = 4
    qst = 0x133
    wopf = 1
    kvp = 1
    owait = 4
    xrot = 0x06543210
    wrot = 1
    pace = 1
    xadefer = 0
    wpf = 0
    outsc = 0
    wqwarm = 1
    th_wo = 5
    th_u = 20
    th_wq = 2
    wqearly = 1
    th_w = 17
    th_xa = 4
    wfair = 8
    xearly = 14
    pre = 5
    aprio = 2
    force_fb = False
cfg = Cfg()

EPOCH = 0
KV = 0x10000; TS = 61440; VOFF = 28672
OBUF = 0x400000
TBUF = 0x600000
UBUF = 0x800000; USTR = 32768
FKV = 0xA00000; FA1 = 0xA20000; FA2 = 0xA40000; FO = 0xA60000
STAMP = 0xB00000
WS_SIZE = 0x1000000
L_W = 0; L_WQ = 57344; L_X = 86016; L_Q = 151552; L_SYNC = 159744
LDS_SIZE = 160000
L_RED = 0
L_TB = L_WQ; L_YB = L_WQ + 8192; L_MS = 49152; L_TT = L_X + 4096; L_M = L_X + 61440
L_ZB = L_WQ; L_OB = 0
sWS, sWQKV, sX, sWR, sWI, sWO, sOUT = [f"s[{i}:{i+3}]" for i in (24, 28, 32, 36, 40, 44, 48)]
S_WAVE, S_XCD, S_IDX, S_H, S_R, S_W4 = "s56", "s57", "s58", "s59", "s60", "s61"
S_NONCE = "s[62:63]"
S_TO, S_BAR = "s64", "s65"
T0, T1, T2, T3, T4, T5 = "s66", "s67", "s68", "s69", "s22", "s23"
STAMP0 = 84

ZREADY = 24

def f2u(x): return struct.unpack("<I", struct.pack("<f", x))[0]
def lit(x): return "0x%08x" % f2u(x)
def V(a, n=1): return f"v{a}" if n == 1 else f"v[{a}:{a+n-1}]"

def srd(a, name, lo, size):
    i = int(name[2:name.index(":")])
    a(f"s_mov_b32 s{i}, s{lo}\ns_mov_b32 s{i+1}, s{lo+1}\ns_mov_b32 s{i+2}, {size}\ns_mov_b32 s{i+3}, 0x20000")

ROLE = [0]
def stamp(a, i, fine=0):
    if cfg.probe >= 0:
        if not fine and cfg.probe == ROLE[0] * 100 + i:
            a("s_memrealtime s[96:97]\ns_waitcnt lgkmcnt(0)")
        return
    if cfg.fine in (1, 2) and not fine and 3 <= i <= 11: return
    if cfg.fine == 4 and not fine and i in (1, 2, 3, 4, 5, 10, 11, 13): return
    if fine and cfg.fine != fine: return
    if cfg.stamps:
        a(f"s_memtime s[100:101]\ns_waitcnt lgkmcnt(0)\ns_mov_b32 s{STAMP0+i}, s100")

def st0():
    return f"s_mov_b32 s{STAMP0+15}, s100\ns_mov_b32 s{STAMP0}, s38" if cfg.stamps else ""

def dump_stamps(a, vt):
    if cfg.probe >= 0:
        if cfg.probe // 100 == ROLE[0]:
            L = a.lab("pr")
            a(f"s_sub_u32 s96, s96, s100\ns_add_u32 s96, s96, 2600\n{L}:\ns_memrealtime s[98:99]\ns_waitcnt lgkmcnt(0)\ns_sub_u32 s98, s98, s100\ns_cmp_lt_u32 s98, s96\ns_cbranch_scc1 {L}")
        return
    if cfg.span:
        a(f"s_memrealtime s[98:99]\ns_lshl_b32 {T0}, s2, 3\ns_add_u32 {T0}, {T0}, {S_WAVE}\ns_lshl_b32 {T0}, {T0}, 3\ns_add_u32 {T0}, {T0}, {STAMP}\ns_waitcnt lgkmcnt(0)")
        a(f"v_mov_b32 v{vt}, s100\nv_mov_b32 v{vt+1}, s98\nv_mov_b32 v{vt+2}, 0\ns_mov_b64 exec, 1\nbuffer_store_dwordx2 {V(vt,2)}, v{vt+2}, {sWS}, {T0} offen\ns_mov_b64 exec, -1")
    if not cfg.stamps: return
    a(f"s_memrealtime s[100:101]\ns_waitcnt lgkmcnt(0)\ns_mov_b32 s{STAMP0+14}, s100")
    if cfg.dbgwave >= 0:
        L = a.lab("nodbg")
        a(f"s_lshl_b32 {T0}, s2, 3\ns_add_u32 {T0}, {T0}, {S_WAVE}\ns_cmp_lg_u32 {T0}, {cfg.dbgwave}\ns_cbranch_scc1 {L}")
        a(f"v_mov_b32 v{vt+4}, 0\ns_mov_b64 exec, 1")
        for i in range(1, 16):
            a(f"s_sub_u32 {T1}, s{STAMP0+i}, s{STAMP0 + (15 if i >= 14 else 0)}\nv_mov_b32 v{vt}, {T1}\nglobal_store_dword v{vt+4}, v{vt}, s[18:19] offset:{4*i}")
        a(f"s_mov_b64 exec, -1\n{L}:")
    a(f"s_lshl_b32 {T0}, s2, 3\ns_add_u32 {T0}, {T0}, {S_WAVE}\ns_lshl_b32 {T0}, {T0}, 7\ns_add_u32 {T0}, {T0}, {STAMP}")
    a(f"v_mov_b32 v{vt+4}, 0\ns_mov_b64 exec, 1")
    for q in range(4):
        for i in range(4): a(f"v_mov_b32 v{vt+i}, s{STAMP0+4*q+i}")
        a(f"buffer_store_dwordx4 {V(vt,4)}, v{vt+4}, {sWS}, {T0} offen offset:{16*q}")
    a("s_mov_b64 exec, -1")

def padto(a, ticks):
    L = a.lab("pad")
    a(f"{L}:\ns_memrealtime s[100:101]\ns_waitcnt lgkmcnt(0)\ns_sub_u32 s100, s100, s{STAMP0+15}\ns_cmp_lt_u32 s100, {ticks}\ns_cbranch_scc1 {L}")

def poll_issue(vaddr, soff, vt, n):
    return f"""v_mov_b32 v{vt}, 0
v_mov_b32 v{vt+1}, 0
s_bfm_b64 exec, {n}, 0
buffer_atomic_or_x2 {V(vt,2)}, {vaddr}, {sWS}, {soff} offen sc0 sc1
s_mov_b64 exec, -1"""

def poll_check(vt, n):
    return f"v_cmp_ne_u64 vcc, {S_NONCE}, {V(vt,2)}\ns_and_b32 vcc_lo, vcc_lo, {hex((1 << n) - 1)}"

def poll(a, vaddr, soff, vt, n, code, sleep=2):
    L, Dn = a.lab("poll"), a.lab("polld")
    a(f"""s_mov_b32 {S_TO}, {cfg.poll_limit}
{L}:
{poll_issue(vaddr, soff, vt, n)}
s_waitcnt vmcnt(0)
{poll_check(vt, n)}
s_cbranch_scc0 {Dn}
s_sleep {sleep}
s_sub_u32 {S_TO}, {S_TO}, 1
s_cbranch_scc0 {L}
s_mov_b32 {S_TO}, {code}
s_branch L_fail
{Dn}:""")

def publish_wg(a, vsync, vone, off, vt, soff, vn, last=3):
    L = a.lab("pub")
    a(f"""s_mov_b64 exec, 1
ds_add_rtn_u32 v{vt}, {vsync}, {vone} offset:{off}
s_waitcnt lgkmcnt(0)
v_readfirstlane_b32 {T0}, v{vt}
s_cmp_eq_u32 {T0}, {last}
s_cselect_b64 exec, 1, 0
buffer_store_dwordx2 {V(vn,2)}, v{vn+2}, {sWS}, {soff} offen sc1
s_mov_b64 exec, -1""")

def flag(a, soff, vt):
    a(f"""v_mov_b32 v{vt}, s62
v_mov_b32 v{vt+1}, s63
v_mov_b32 v{vt+2}, 0
s_mov_b64 exec, 1
buffer_store_dwordx2 {V(vt,2)}, v{vt+2}, {sWS}, {soff} offen sc1
s_mov_b64 exec, -1""")

def flag2(a, soff, vn):
    a(f"s_mov_b64 exec, 1\nbuffer_store_dwordx2 {V(vn,2)}, v{vn+2}, {sWS}, {soff} offen sc1\ns_mov_b64 exec, -1")

def lwait(a, vsync, vt, target, code, sleep=0, off=0):
    L, Dn = a.lab("lw"), a.lab("lwd")
    a(f"""s_mov_b32 {S_TO}, {cfg.poll_limit * 8}
{L}:
ds_read_b32 v{vt}, {vsync} offset:{off}
s_waitcnt lgkmcnt(0)
v_readfirstlane_b32 {T0}, v{vt}
s_cmp_ge_u32 {T0}, {target}
s_cbranch_scc1 {Dn}
{"s_sleep %d" % sleep if sleep else ""}
s_sub_u32 {S_TO}, {S_TO}, 1
s_cbranch_scc0 {L}
s_mov_b32 {S_TO}, {code}
s_branch L_fail
{Dn}:""")

def lbar(a, vsync, vone, vt, code, sleep=0):
    L, Dn = a.lab("lb"), a.lab("lbd")
    a(f"""s_add_u32 {S_BAR}, {S_BAR}, 4
s_mov_b64 exec, 1
ds_add_u32 {vsync}, {vone}
s_mov_b64 exec, -1
s_mov_b32 {S_TO}, {cfg.poll_limit * 8}
{L}:
ds_read_b32 v{vt}, {vsync}
s_waitcnt lgkmcnt(0)
v_readfirstlane_b32 {T0}, v{vt}
s_cmp_ge_u32 {T0}, {S_BAR}
s_cbranch_scc1 {Dn}
{"s_sleep %d" % sleep if sleep else ""}
s_sub_u32 {S_TO}, {S_TO}, 1
s_cbranch_scc0 {L}
s_mov_b32 {S_TO}, {code}
s_branch L_fail
{Dn}:""")

def mfma(d, A, B, C=None):
    return f"v_mfma_f32_32x32x16_bf16 {V(d,16)}, {V(A,4)}, {V(B,4)}, {'0' if C is None else V(C,16)}"

def mod7(a, s, t):
    a(f"s_mul_i32 {t}, {s}, 9363\ns_lshr_b32 {t}, {t}, 16\ns_mul_i32 {t}, {t}, 7\ns_sub_u32 {s}, {s}, {t}")

def x_read_addrs(a, v0, vl, base_s, t):
    a(f"""v_and_b32 v{t}, 31, {vl}
v_lshrrev_b32 v{t+1}, 5, {vl}
v_bfe_u32 v{t+2}, {vl}, 1, 3
v_xor_b32 v{t+1}, v{t+1}, v{t+2}
v_lshlrev_b32 v{t}, 7, v{t}
v_add_u32 v{t}, {base_s}, v{t}""")
    for mm in range(4):
        a(f"v_xor_b32 v{t+2}, {2*mm}, v{t+1}\nv_lshl_add_u32 v{v0+mm}, v{t+2}, 4, v{t}")


S_HH, S_RR, S_J, S_P0, S_LC = "s52", "s53", "s54", "s55", "s3"

def prologue(a):
    a(f"""s_cmp_ge_u32 s2, 256
s_cbranch_scc1 L_end
s_load_dwordx16 s[4:19], s[0:1], 0
s_load_dwordx2 s[20:21], s[0:1], 64""")
    if cfg.span or cfg.probe >= 0: a("s_memrealtime s[100:101]")
    if cfg.stamps:
        a(f"s_memtime s[38:39]\ns_memrealtime s[100:101]")
        for i in range(1, 15): a(f"s_mov_b32 s{STAMP0+i}, 0")
    a(f"""s_lshr_b32 {S_IDX}, s2, 3
s_getpc_b64 s[70:71]
L_pc:
v_lshrrev_b32 v3, 5, v0
v_lshl_add_u32 v3, {S_IDX}, 4, v3
v_lshlrev_b32 v3, 7, v3
v_min_u32 v3, L_codeend-L_pc-4, v3
global_load_dword v255, v3, s[70:71]
v_lshrrev_b32 v2, 6, v0
v_and_b32 v1, 63, v0
v_readfirstlane_b32 {S_WAVE}, v2
s_and_b32 {S_XCD}, s2, 7
s_and_b32 {S_HH}, {S_IDX}, 7
s_lshr_b32 {S_RR}, {S_IDX}, 3
s_and_b32 {T5}, {S_XCD}, 1
s_lshl_b32 {S_H}, {T5}, 3
s_add_u32 {S_H}, {S_H}, {S_HH}
s_lshl_b32 {T0}, {S_HH}, 2
s_cmp_eq_u32 {T5}, 0
s_cselect_b32 {S_LC}, 0x67543210, s2
s_cselect_b32 {S_LC}, {S_LC}, 0x65432170
s_lshr_b32 {S_LC}, {S_LC}, {T0}
s_and_b32 {S_LC}, {S_LC}, 7
s_and_b32 {S_W4}, {S_WAVE}, 3
s_cmp_ge_u32 {S_WAVE}, 4
s_cbranch_scc1 L_roleA""")

def nonce(a):
    a(f"""s_waitcnt lgkmcnt(0)
s_mul_i32 s62, s62, 0x9E3779B1
s_add_u32 s62, s62, 0x7F4A7C15
s_mul_i32 s63, s63, 0x85EBCA6D
s_add_u32 s63, s63, 0x165667B1""")

def role_B(a):
    X = 16; ACC = 128; WB = 160; PK = 224
    SC = 70
    S_XL, S_TILE, S_I = "s77", "s78", "s79"
    TO = 36
    S_WM, S_WO, S_DM, S_DO = "s80", "s81", "s82", "s83"
    a(f"""s_setprio 3
s_mul_i32 {S_J}, {T5}, 7
s_add_u32 {S_J}, {S_J}, {S_LC}
v_lshrrev_b32 v8, 3, v1
v_and_b32 v9, 7, v1
v_mul_u32_u24 v2, 2688, v8
v_bfe_u32 v3, v1, 4, 1
v_lshlrev_b32 v3, 2, v3
v_xor_b32 v3, v9, v3
v_lshl_add_u32 v2, v3, 4, v2
s_lshl_b32 {T0}, {S_J}, 7
s_mul_i32 {T1}, {S_W4}, {8*2688}
s_add_u32 {T0}, {T0}, {T1}
s_add_u32 {T0}, {T0}, 896
v_add_u32 v2, {T0}, v2
s_lshl_b32 {T2}, {S_RR}, 3
s_lshr_b32 {T0}, {0xD66D0770 if cfg.wrot else 0x70707070}, {T2}
s_bfe_u32 {T1}, {T0}, 0x40004
s_and_b32 {T0}, {T0}, 15
s_lshl_b32 {T3}, {S_W4}, 10
s_lshl_b32 {T2}, {T0}, 12
s_add_u32 m0, {T2}, {T3}
s_mul_i32 {S_I}, {T0}, {32*2688}
s_lshl_b32 {T2}, {T1}, 12
s_add_u32 {S_WM}, {T2}, {T3}
s_mul_i32 {S_WO}, {T1}, {32*2688}
s_cmp_ge_u32 {S_RR}, {2 if cfg.wrot else 4}
s_cselect_b32 {T0}, -1, 1
s_lshl_b32 {S_DM}, {T0}, 12
s_mul_i32 {S_DO}, {T0}, {32*2688}
s_cmp_eq_u32 {S_LC}, 7
s_cselect_b32 s30, 0, {448 * 2688}
s_mov_b32 s31, 0x20000
s_waitcnt lgkmcnt(0)
{st0()}
s_mov_b64 s[28:29], s[12:13]""")
    def x_m0(i, j): return f"s_add_u32 m0, {S_XL}, {(i%4)*4096 + j*1024}"
    def x_ld(i, j): return f"buffer_load_dwordx4 v{4+j}, {sX}, s{SC+i} offen lds"
    def sc_next(i): return f"s_add_u32 s{SC+i}, s{SC+i-1}, 128\ns_cmp_eq_u32 s{SC+i}, 896\ns_cselect_b32 s{SC+i}, 0, s{SC+i}"
    def w_base(i): return f"v_lshl_add_u32 v12, s{SC+i}, 6, v14\nv_xor_b32 v13, 64, v12"
    def setup2():
        a(f"""s_mov_b32 s34, {2048*896}
s_mov_b32 s35, 0x20000
s_lshr_b32 {S_R}, {S_XCD}, 1
s_lshl_b32 {S_R}, {S_R}, 2
s_add_u32 {S_R}, {S_R}, {S_RR}
s_lshl_b32 {S_TILE}, {S_R}, 2
s_add_u32 {S_TILE}, {S_TILE}, {S_W4}
v_lshrrev_b32 v10, 4, v1
v_xor_b32 v10, v9, v10
v_xor_b32 v11, 4, v10
v_mul_u32_u24 v12, 896, v8
s_mul_i32 {T2}, {S_TILE}, {32*896}
v_add_u32 v12, {T2}, v12
v_lshl_add_u32 v4, v10, 4, v12
v_lshl_add_u32 v5, v11, 4, v12
v_add_u32 v5, {8*896}, v5
v_add_u32 v6, {16*896}, v4
v_add_u32 v7, {16*896}, v5
s_lshl_b32 {T2}, {S_HH}, 2
s_lshr_b32 s{SC}, {cfg.xrot}, {T2}
s_and_b32 s{SC}, s{SC}, 7
s_lshl_b32 s{SC}, s{SC}, 7
s_lshl_b32 {S_XL}, {S_W4}, 14
s_add_u32 {S_XL}, {S_XL}, {L_X}""")
        for i in range(1, 7): a(sc_next(i))
        x_read_addrs(a, 8, "v1", S_XL, 12)
        srd(a, sWS, 20, WS_SIZE)
        a(f"""v_lshrrev_b32 v12, 5, v1
v_lshlrev_b32 v12, 3, v12
v_bfe_u32 v13, v1, 2, 2
v_add_u32 v12, v12, v13
v_bfe_u32 v13, v1, 4, 1
v_lshlrev_b32 v13, 5, v13
v_and_b32 v18, 1, v1
v_bfe_u32 v19, v1, 1, 1
v_lshl_add_u32 v15, v18, 4, v13
v_lshl_add_u32 v15, v19, 3, v15
v_lshl_add_u32 v14, v18, 3, v13
v_lshl_add_u32 v14, v19, 4, v14
s_cmp_eq_u32 {T5}, 1
s_cselect_b64 vcc, -1, 0
v_cndmask_b32 v14, v15, v14, vcc
v_lshl_add_u32 v15, v12, 6, v15
v_add_u32 v15, {L_WQ}, v15
v_bfe_u32 v13, v1, 3, 1
v_lshl_add_u32 v14, v13, 6, v14
v_lshl_add_u32 v14, v12, 7, v14""")
        a(f"""v_lshrrev_b32 v253, 2, v1
v_mul_u32_u24 v253, 2688, v253
v_and_b32 v254, 3, v1
v_lshl_add_u32 v253, v254, 4, v253
s_mul_i32 {S_P0}, {S_H}, 7
s_lshr_b32 {S_P0}, {S_P0}, 1
s_lshl_b32 s80, {S_P0}, 4
s_mul_i32 s81, {S_W4}, {16*2688}
s_add_u32 s80, s80, s81
v_add_u32 v253, s80, v253
s_lshl_b32 s80, {S_W4}, 10
s_add_u32 s80, s80, {L_WQ}
s_and_b32 s81, {S_P0}, 7
s_cmp_gt_u32 s81, 4
s_cselect_b32 s81, 1, 0
s_nop 0""")
        a(w_base(0))
        a(f"v_mov_b32 v250, {L_SYNC}\nv_mov_b32 v251, 1\nv_mov_b32 v246, 0\ns_mov_b32 {S_BAR}, 0")
    VK, VV, VF, VL = 240, 241, 242, 243
    PG = ["s4", "s5", "s6", "s7"]; S_FL = "s8"
    def setup3():
        a(f"""v_lshlrev_b32 v{VL}, 4, v1
s_lshl_b32 {T0}, {S_P0}, 9
v_add_u32 v{VK}, {T0}, v{VL}
s_lshl_b32 {T0}, {S_H}, 11
s_add_u32 {T0}, {T0}, {VOFF}
v_add_u32 v{VV}, {T0}, v{VL}
s_lshr_b32 {T1}, {S_P0}, 3
s_add_u32 {T0}, {S_P0}, 3
s_lshr_b32 {T0}, {T0}, 3
s_sub_u32 {T0}, {T0}, {T1}
v_and_b32 v{VF}, 1, v1
v_mul_u32_u24 v{VF}, {T0}, v{VF}
v_bfe_u32 v18, v1, 1, 1
v_mul_u32_u24 v18, 7, v18
v_add_u32 v{VF}, v{VF}, v18
v_lshlrev_b32 v{VF}, 7, v{VF}
s_and_b32 {T0}, {S_R}, 12
s_add_u32 {T0}, {T0}, {S_W4}
s_lshl_b32 {T0}, {T0}, 4
s_add_u32 {T0}, {T0}, {T1}
s_lshl_b32 {T0}, {T0}, 7""")
        for g in range(4):
            a(f"s_add_u32 {PG[g]}, {T0}, {FKV}")
            if g < 3: a(f"s_add_u32 {T0}, {T0}, 8192\ns_and_b32 {T0}, {T0}, 32767")
        a(f"s_lshr_b32 {T2}, {S_R}, 2\ns_mul_i32 {T1}, {S_W4}, {4*TS}\ns_add_u32 {T1}, {T1}, {KV}")
        for p in range(4): a(f"s_add_u32 {T0}, {S_RR}, {p}\ns_and_b32 {T0}, {T0}, 3\ns_mul_i32 s{TO+12+p}, {T0}, {TS}")
        for g in range(4):
            a(f"s_mul_i32 {T0}, {T2}, {16*TS}\ns_add_u32 {T0}, {T0}, {T1}\ns_add_u32 {T2}, {T2}, 1\ns_and_b32 {T2}, {T2}, 3")
            for p in range(4):
                a(f"s_add_u32 s{TO+4*g+p}, {T0}, " + (f"{p*TS}" if (g == 0 or cfg.kvrot == 0) else f"s{TO+12+p}"))
        a(f"""s_cmp_eq_u32 {S_LC}, 7
s_cselect_b32 {T1}, 15, {S_J}
s_lshl_b32 {T0}, {S_R}, 4
s_add_u32 {T0}, {T0}, {T1}
s_lshl_b32 {T0}, {T0}, 7
s_add_u32 {S_FL}, {T0}, {FKV}""")
    stamp(a, 3, 2)
    for i in range(14):
        a(f"buffer_load_dwordx4 v2, {sWQKV}, {S_I} offen lds")
        if i == 6: a(f"s_mov_b32 m0, {S_WM}\ns_mov_b32 {S_I}, {S_WO}")
        elif i < 13: a(f"s_add_u32 m0, m0, {S_DM}\ns_add_u32 {S_I}, {S_I}, {S_DO}")
        if i == 10:
            keep = a.L[-2:]; del a.L[-2:]
            stamp(a, 4, 2)
            a("s_barrier\ns_mov_b64 s[32:33], s[10:11]")
            if cfg.fine != 2: a(f"s_load_dwordx2 s[62:63], s[20:21], {EPOCH}")
            stamp(a, 5, 2)
            setup2()
            stamp(a, 6, 2)
            a.L += keep
    stamp(a, 8, 2)
    a(f"s_waitcnt vmcnt({cfg.wfair})")
    stamp(a, 10, 2)
    for c in range(2):
        for j in range(4): a(x_m0(c, j)); a("s_nop 0"); a(x_ld(c, j))
    stamp(a, 11, 2)
    setup3()
    if cfg.fine == 2: a(f"s_load_dwordx2 s[62:63], s[20:21], {EPOCH}")
    nonce(a)
    a("v_mov_b32 v244, s62\nv_mov_b32 v245, s63\nds_write_b64 v250, v[244:245] offset:64")
    def w_base(i): return f"v_lshl_add_u32 v12, s{SC+i}, 6, v14\nv_xor_b32 v13, 64, v12"
    def wq(i): return f"s_add_u32 m0, s80, {i*4096}\ns_mul_i32 s82, s{SC+i}, {64*21}\nbuffer_load_dwordx4 v253, {sWQKV}, s82 offen lds"
    a(f"s_mov_b32 s30, {448 * 2688}")
    def w_reads(i):
        out = []
        for mm in range(4):
            for ct in range(2):
                for hf in range(2):
                    d = WB + (i % 2) * 32 + mm * 8 + ct * 4 + hf * 2
                    out.append(f"ds_read_b64_tr_b16 {V(d,2)}, v{12+ct} offset:{mm*2048 + hf*512}")
        return out
    def x_reads(i):
        return [f"ds_read_b128 {V(X+16*i+4*mm,4)}, v{8+mm} offset:{(i%4)*4096}" for mm in range(4)]
    a(f"""s_waitcnt vmcnt(8)""")
    stamp(a, 1)
    a(f"s_mov_b64 exec, 1\nds_add_u32 v250, v251\ns_mov_b64 exec, -1")
    for j in range(2): a(x_m0(2, j)); a("s_nop 0"); a(x_ld(2, j))
    lwait(a, "v250", 252, 4, 19)
    stamp(a, 3, 1)
    wr0 = w_reads(0)
    for s_ in wr0[:8]: a(s_)
    a("s_waitcnt vmcnt(6)")
    for s_ in x_reads(0) + wr0[8:]: a(s_)
    a(f"s_cmp_eq_u32 {T5}, 1\ns_cbranch_scc1 L_kvV")
    for var in ("K", "V"):
        if var == "V": a("L_kvV:")
        late = [f"s_mul_i32 {T4}, {S_TILE}, {TS}", f"s_add_u32 {T4}, {T4}, {KV}", "v_lshlrev_b32 v7, 4, v1"]
        if var == "K":
            late += [f"s_lshl_b32 {T0}, {S_LC}, 12", f"s_add_u32 {T4}, {T4}, {T0}"]
        else:
            late += f"""s_lshl_b32 {T1}, {S_LC}, 6
v_and_b32 v4, 31, v1
v_add_u32 v4, {T1}, v4                    ; col (ct0)
v_add_u32 v5, 32, v4
v_lshrrev_b32 v3, 5, v1
v_lshlrev_b32 v3, 9, v3
v_add_u32 v3, {VOFF}, v3""".split("\n")
            for r in (4, 5):
                late += f"""v_mul_u32_u24 v2, 2341, v{r}
v_lshrrev_b32 v2, 16, v2
v_mul_u32_u24 v2, {2048 - 28*16}, v2
v_lshl_add_u32 v{r}, v{r}, 4, v2
v_add_u32 v{r}, v{r}, v3""".split("\n")
            late += f"""s_lshl_b32 {T1}, {S_LC}, 2
s_lshr_b32 {T2}, 0xDB96420, {T1}
s_and_b32 {T2}, {T2}, 15                  ; first head that ends in this line-column
s_lshr_b32 {T3}, 0x3223222, {T1}
s_and_b32 {T3}, {T3}, 15
s_lshl_b32 {T3}, {T3}, 4
v_lshrrev_b32 v6, 2, v1
v_lshlrev_b32 v6, 9, v6
v_and_b32 v2, 3, v1
v_lshl_add_u32 v6, v2, 4, v6
s_lshl_b32 {T2}, {T2}, 11
s_add_u32 {T2}, {T2}, {VOFF + 28*16}
v_add_u32 v6, {T2}, v6
v_cmp_eq_u32 vcc, 0, v2
v_mov_b32 v2, 0x3f803f80
s_nop 0
v_cndmask_b32 v236, 0, v2, vcc
v_cndmask_b32 v237, 0, v2, vcc
v_cndmask_b32 v238, 0, v2, vcc
v_cndmask_b32 v239, 0, v2, vcc""".split("\n")
        for i in range(7):
            a("s_waitcnt lgkmcnt(0)")
            stamp(a, 4 + i, 1)
            fill = [[] for _ in range(8)]
            pre = [[] for _ in range(8)]
            if i == 0:
                dq = [(c, j) for c in range(2, 7) for j in range(4)][2:]
                issued_q = [(1, j) for j in range(4)] + [(2, 0), (2, 1)]
            def take(g):
                if dq and dq[0][0] <= i + 4:
                    e = dq.pop(0); issued_q.append(e)
                    pre[g].append(x_m0(*e)); fill[g].insert(0, x_ld(*e))
            had = bool(dq)
            if i + 1 < 7:
                wr = w_reads(i + 1)
                fill[0] += [w_base(i + 1)] + wr[0:3]
                fill[1] += wr[3:8]; fill[2] += wr[8:12]; fill[3] += wr[12:16]
                for g in ((0, 1, 2, 3, 4) if i == 0 else (0,)): take(g)
                if i == 4:
                    fill[1].append("s_cmp_eq_u32 s81, 1\ns_cselect_b64 exec, -1, 0\n" + "\n".join(wq(q) for q in range(cfg.wqe)) + "\ns_mov_b64 exec, -1")
                    issued_q += [(99, q) for q in range(cfg.wqe)]
                last = max(q for q, e in enumerate(issued_q) if e[0] == i + 1)
                fill[4] += [f"s_waitcnt vmcnt({len(issued_q) - 1 - last})"] + x_reads(i + 1)
            for g in range(5, 8): take(g)
            if i == 4:
                assert not had
                fill[0].insert(0, "s_mov_b64 exec, 1\nds_add_u32 v250, v251 offset:8\ns_mov_b64 exec, -1")
            if not had:
                for g in range(5 if i < 6 else 0, 8):
                    for q in range(6):
                        if late: fill[g].append(late.pop(0))
            for mm in range(4):
                for ct in range(2):
                    xr = X + 16*i + 4*mm; wr_ = WB + (i % 2) * 32 + mm * 8 + ct * 4
                    c = None if (i == 0 and mm == 0) else ACC + 16*ct
                    for s_ in pre[2*mm + ct]: a(s_)
                    a(mfma(ACC + 16*ct, wr_, xr, c) if var == "K" else mfma(ACC + 16*ct, xr, wr_, c))
                    for s_ in fill[2*mm + ct]: a(s_)
        assert not late
        stamp(a, 11, 1)
        a(f"s_cmp_eq_u32 {S_LC}, 7\ns_cbranch_scc1 L_kvnone")
        if var == "V":
            a(f"s_bfm_b64 exec, {T3}, 0\nbuffer_store_dwordx4 v[236:239], v6, {sWS}, {T4} offen sc1\ns_mov_b64 exec, -1")
        for ct in range(2):
            for j in range(2):
                for q in range(4):
                    z = 8*ct + 4*j + q
                    a(f"v_cvt_pk_bf16_f32 v{PK+z}, v{ACC+2*z}, v{ACC+2*z+1}")
                if var == "K":
                    a(f"buffer_store_dwordx4 {V(PK+8*ct+4*j,4)}, v7, {sWS}, {T4} offen offset:{ct*2048+j*1024} sc1")
                else:
                    a(f"buffer_store_dwordx4 {V(PK+8*ct+4*j,4)}, v{4+ct}, {sWS}, {T4} offen offset:{j*1024} sc1")
        if var == "K": a("s_branch L_kvdone\nL_kvnone:\ns_waitcnt vmcnt(0)\ns_branch L_kvdone")
    a("L_kvdone:\ns_mov_b64 exec, 1\nds_add_u32 v250, v251\ns_mov_b64 exec, -1")
    stamp(a, 2)
    NB = cfg.nbuf
    Q = 16; O = 48; SA = 112; KVB = 144; P0 = KVB + 16*NB; P1 = P0 + 4
    assert P1 + 4 <= 240
    QP = 224
    S_LD = "s9"
    def kv_loads(t, so=None):
        b = KVB + 16 * (t % NB); so = so or f"s{TO+t}"
        return [f"buffer_load_dwordx4 {V(b+4*j,4)}, v{VK if j < 2 else VV}, {sWS}, {so} offen offset:{(j%2)*1024} sc1" for j in range(4)]
    pl = poll_issue(f"v{VF}", PG[0], 10, 4)
    QW = 176
    def qsync(target):
        a("s_mov_b64 exec, 1\nds_add_u32 v250, v251 offset:4\ns_mov_b64 exec, -1")
        lwait(a, "v250", 5, target, 14, off=4)
    def qmma(c0, c1, check):
        rd = [f"ds_read_b64_tr_b16 {V(QW+(i%3)*16+mm*4+hf*2,2)}, v15 offset:{i*4096+mm*1024+hf*256}" for i in range(c0, c1) for mm in range(4) for hf in range(2)]
        iss = min(len(rd), 12)
        for s_ in rd[:iss]: a(s_)
        for m in range(4 * (c1 - c0)):
            a(f"s_waitcnt lgkmcnt({iss - (2*m + 2)})")
            a(mfma(ACC, QW + ((c0 + m // 4) % 3) * 16 + 4*(m % 4), X + 16*c0 + 4*m, None if c0 + m == 0 else ACC))
            for s_ in rd[iss:iss+2]: a(s_)
            iss = min(len(rd), iss + 2)
            if m == check:
                Lf, Lg = a.lab("pf"), a.lab("pg")
                a(f"s_waitcnt vmcnt(0)\n{poll_check(10, 4)}\ns_cbranch_scc1 {Lf}\ns_mov_b32 {S_LD}, 1")
                for t in range(2):
                    for s_ in kv_loads(t): a(s_)
                a(f"s_branch {Lg}\n{Lf}:\n{pl}\n{Lg}:")
    def publish(n):
        a(f"s_waitcnt vmcnt({n})")
        publish_wg(a, "v250", "v251", 16, 5, S_FL, 244)
        stamp(a, 3)
        a(f"s_sleep {cfg.kvwait}\n{pl}\ns_waitcnt vmcnt(2)")
    E = cfg.wqe
    a(f"s_mov_b32 {S_LD}, 0\ns_cmp_eq_u32 s81, 1\ns_cbranch_scc1 L_qtwo")
    for i in range(7): a(wq(i))
    publish(7)
    qsync(4)
    stamp(a, 4)
    qmma(0, 7, cfg.m2)
    a("s_branch L_qdone\nL_qtwo:\ns_waitcnt vmcnt(4)")
    qsync(4)
    for i in range(E, 7): a(wq(i))
    qmma(0, E, -1)
    publish(7 - E)
    qsync(8)
    stamp(a, 4)
    qmma(E, 7, min(cfg.m2, 6))
    a("L_qdone:")
    stamp(a, 5)
    a(f"""v_mov_b32 v12, {lit(28 ** -0.5 * math.log2(math.e))}
v_mov_b32 v13, v12
s_lshl_b32 {T0}, {S_W4}, 11
s_add_u32 {T0}, {T0}, {L_Q}
v_add_u32 v9, {T0}, v{VL}
v_mov_b32 v2, v250
v_mov_b32 v3, 1
v_mov_b32 v7, v{VL}
s_bitcmp1_b32 {S_H}, 0""")
    for hf in range(2):
        for q in range(8*hf, 8*hf+8, 2): a(f"v_pk_mul_f32 {V(ACC+q,2)}, {V(ACC+q,2)}, v[12:13]")
        for q in range(4*hf, 4*hf+4): a(f"v_cvt_pk_bf16_f32 v{QP+q}, v{ACC+2*q}, v{ACC+2*q+1}")
        if hf == 0: a(f"s_cselect_b32 exec_lo, -1, 0\ns_mov_b32 exec_hi, 0\nv_mov_b32 v{QP}, 0\nv_mov_b32 v{QP+1}, 0\ns_mov_b64 exec, -1")
        else: a(f"s_cselect_b32 exec_hi, 0, -1\ns_mov_b32 exec_lo, 0\nv_mov_b32 v{QP+6}, 0\nv_mov_b32 v{QP+7}, 0\ns_mov_b64 exec, -1")
        a(f"ds_write_b128 v9, {V(QP+4*hf,4)} offset:{1024*hf}")
    a(f"""s_mov_b64 exec, 1
ds_add_u32 v2, v3
s_mov_b64 exec, -1
s_cmp_eq_u32 {S_LD}, 1
s_cbranch_scc1 L_kvloaded
s_waitcnt vmcnt(0)
{poll_check(10, 4)}
s_cbranch_scc0 L_kvready""")
    poll(a, f"v{VF}", PG[0], 10, 4, 1, sleep=2)
    a("L_kvready:")
    for t in range(2):
        for s_ in kv_loads(t): a(s_)
    a("L_kvloaded:\ns_mov_b64 exec, 1\nds_add_u32 v2, v3 offset:12\ns_mov_b64 exec, -1")
    for i in range(4):
        a(f"""s_add_u32 {T0}, {S_W4}, {i+1}
s_and_b32 {T0}, {T0}, 3
s_lshl_b32 {T1}, {T0}, 11
s_add_u32 {T1}, {T1}, {L_Q}
v_add_u32 v{232+i}, {T1}, v7
s_mul_i32 {T0}, {T0}, 12288
s_add_u32 {T0}, {T0}, {(i%3)*4096 + L_RED}
v_add_u32 v{10+i}, {T0}, v7""")
    stamp(a, 6)
    lwait(a, "v2", 5, 12, 15)
    a(f"s_mov_b32 {S_BAR}, 12")
    for i in range(4):
        a(f"ds_read_b128 {V(Q+8*i,4)}, v{232+i}\nds_read_b128 {V(Q+8*i+4,4)}, v{232+i} offset:1024")
    stamp(a, 7)
    a("s_waitcnt vmcnt(6) lgkmcnt(6)\ns_setprio 0")
    if cfg.padmid: padto(a, cfg.padmid)
    stamp(a, 8)
    a(mfma(SA, KVB, Q)); a(mfma(SA, KVB + 4, Q + 4, SA))
    a("s_waitcnt vmcnt(4) lgkmcnt(0)\ns_nop 9\n.p2align 3")
    sched = {}
    issued = 2
    for t in range(16):
        for i in (1, 2):
            if (i == 1 or t % cfg.ramp == 0) and issued <= min(15, t + NB - 1):
                sched[(t, i)] = issued; issued += 1
    first = {g: min(k for k, v in sched.items() if v == 4*g) for g in (1, 2, 3)}
    pollat = {(k[0] - 1, 0): g for g, k in first.items()}
    vq = [("t", 1)] * 4
    def after(tag): return len(vq) - 1 - max(q for q, e in enumerate(vq) if e == tag)
    assert NB >= 5
    units = [(t, i) for t in range(12) for i in range(4)] + [(t, i) for i in range(4) for t in range(12, 16)]
    firstuse = {}
    for n, (t, i) in enumerate(units): firstuse.setdefault(t, n)
    waitat = {n - 2: t for t, n in firstuse.items() if t > 0}
    kb = lambda tt: KVB + 16 * (tt % NB)
    redw = lambda i, q: f"ds_write_b128 v{10+i}, {V(O+16*i+4*q,4)} offset:{q*1024}"
    for n, (t, i) in enumerate(units):
        if n % 8 == 0 and n: stamp(a, n // 8, 3)
        cur = SA + 16 * (n % 2); nxt = SA + 16 * ((n + 1) % 2)
        ms = [None] * 4
        if n < 63:
            tn, inx = units[n + 1]
            ms[0] = mfma(nxt, kb(tn), Q + 8*inx); ms[1] = mfma(nxt, kb(tn) + 4, Q + 8*inx + 4, nxt)
        if n > 0:
            tp, ip = units[n - 1]
            ms[2] = mfma(O + 16*ip, kb(tp) + 12, P1, O + 16*ip)
        ms[3] = mfma(O + 16*i, kb(t) + 8, P0, None if t == 0 else O + 16*i)
        side = [None] * 4
        key = (n // 4, n % 4)
        if key in sched:
            assert n < 48
            tl = sched[key]
            if tl % 4 == 0:
                g = tl // 4
                a(f"s_waitcnt vmcnt({after(('p', g))})\nv_cmp_ne_u64 vcc, {S_NONCE}, v[14:15]\ns_cbranch_vccnz L_gate{g}\nL_gated{g}:\ns_nop 0")
            side = kv_loads(tl); vq += [("t", tl)] * 4
        if key in pollat:
            g = pollat[key]
            side[0] = f"buffer_load_dwordx2 v[14:15], v{VF}, {sWS}, {PG[g]} offen sc1"; vq.append(("p", g))
        sig = "\ns_mov_b64 exec, 1\nds_add_u32 v2, v3\ns_mov_b64 exec, -1"
        rdr = lambda q: f"ds_read_b128 {V(O+4*q,4)}, v13 offset:{q*1024}"
        if n == 56: side[0] = "s_setprio 3\ns_nop 0"
        if 53 <= n <= 56: side[1] = redw(0, n - 53)
        if n in (57, 58): side[1] = redw(1, 2*(n - 57)); side[3] = redw(1, 2*(n - 57) + 1) + (sig if n == 58 else "")
        if n == 60: side[1] = "ds_read_b32 v5, v2"
        if n == 61:
            a(f"s_waitcnt lgkmcnt(0)\nv_readfirstlane_b32 {T0}, v5\ns_cmp_ge_u32 {T0}, 16\ns_cbranch_scc0 L_redw\nL_redd:")
        if n in (61, 62):
            k_ = n - 61
            side = [redw(2, 2*k_), rdr(4*k_) + "\n" + rdr(4*k_+1), redw(2, 2*k_+1) + (sig if k_ else ""), rdr(4*k_+2) + "\n" + rdr(4*k_+3)]
        if n == 63: side[2] = "ds_read_b32 v5, v2"
        for p in range(4):
            if ms[p]: a(ms[p])
            if side[p]: a(side[p])
            for e in range(4):
                if n in waitat and p == 3 and e == 3:
                    a(f"s_waitcnt vmcnt({after(('t', waitat[n]))})\nv_exp_f32_e64 v{cur+4*p+e}, v{cur+4*p+e}")
                else:
                    a(f"v_exp_f32 v{cur+4*p+e}, v{cur+4*p+e}")
            pk = (P0, P0 + 2, P1, P1 + 2)[p]
            a(f"v_cvt_pk_bf16_f32 v{pk}, v{cur+4*p}, v{cur+4*p+1}\nv_cvt_pk_bf16_f32 v{pk+1}, v{cur+4*p+2}, v{cur+4*p+3}")
    a(f"s_waitcnt lgkmcnt(0)\nv_readfirstlane_b32 {T0}, v5")
    a(mfma(O + 48, kb(15) + 12, P1, O + 48))
    a(f"s_cmp_ge_u32 {T0}, 20\ns_cbranch_scc0 L_redw2\nL_redd2:")
    for q in range(8, 12): a(f"ds_read_b128 {V(O+4*q,4)}, v13 offset:{q*1024}")
    a("s_mov_b64 exec, 1\nds_add_u32 v2, v3\ns_mov_b64 exec, -1")
    stamp(a, 9)
    OO = O + 48
    a(f"""s_lshl_b32 {T3}, {S_TILE}, 4
s_add_u32 {T3}, {T3}, {S_H}
s_lshl_b32 {T4}, {T3}, 11
s_add_u32 {T4}, {T4}, {OBUF}
s_lshl_b32 {T3}, {S_R}, 4
s_add_u32 {T3}, {T3}, {S_H}
s_lshl_b32 {T3}, {T3}, 7
s_add_u32 {T3}, {T3}, {FO}
s_mov_b32 {T0}, {lit(2.0**-40)}
s_mov_b32 {T1}, {lit(2.0**30)}
s_movk_i32 {T2}, 0x1f8""")
    for q in range(0, 16, 2): a(f"v_pk_add_f32 {V(O+q,2)}, {V(O+q,2)}, {V(O+16+q,2)}")
    for q in range(0, 16, 2): a(f"v_pk_add_f32 {V(OO+q,2)}, {V(OO+q,2)}, {V(O+q,2)}")
    a("s_waitcnt lgkmcnt(1)")
    for q in (12, 0, 2, 4, 6, 8, 10, 14): a(f"v_pk_add_f32 {V(OO+q,2)}, {V(OO+q,2)}, {V(O+32+q,2)}")
    a(f"""v_mov_b32 v10, v{OO+12}
v_mov_b32 v11, v{OO+12}
v_pk_add_f32 v[12:13], {V(OO,2)}, {V(OO+2,2)}
v_pk_add_f32 v[14:15], {V(OO+4,2)}, {V(OO+6,2)}
v_permlane32_swap_b32 v10, v11
v_pk_add_f32 v[12:13], v[12:13], {V(OO+8,2)}
v_pk_add_f32 v[14:15], v[14:15], {V(OO+10,2)}
v_rcp_f32 v10, v11
v_pk_add_f32 v[12:13], v[12:13], {V(OO+12,2)}
v_pk_add_f32 v[14:15], v[14:15], {V(OO+14,2)}
v_cmp_le_f32 s[70:71], {T0}, v11
v_pk_add_f32 v[12:13], v[12:13], v[14:15]
v_cmp_ge_f32 s[72:73], {T1}, v11
v_add_f32 v12, v12, v13
v_cmp_class_f32 vcc, v12, {T2}
s_and_b64 s[70:71], s[70:71], s[72:73]
s_and_b64 vcc, vcc, s[70:71]
s_cmp_eq_u64 vcc, exec""")
    if cfg.force_fb: a("s_cmp_eq_u32 0, 1")
    a(f"s_cbranch_scc0 L_fallback\nL_fbdone:\nv_mov_b32 v11, v10")
    for hf in range(2):
        for q in range(8*hf, 8*hf+8, 2): a(f"v_pk_mul_f32 {V(OO+q,2)}, {V(OO+q,2)}, v[10:11]")
        for q in range(4*hf, 4*hf+4): a(f"v_cvt_pk_bf16_f32 v{O+q}, v{OO+2*q}, v{OO+2*q+1}")
        if hf: a(f"s_mov_b32 exec_lo, 0\nv_mov_b32 v{O+6}, 0\ns_mov_b32 exec_lo, -1")
        a(f"buffer_store_dwordx4 {V(O+4*hf,4)}, v7, {sWS}, {T4} offen offset:{1024*hf} sc1")
    stamp(a, 10)
    S_BP, S_CNT, S_DT = "s70", "s71", "s72"
    GS = 144; GC = 176; GP = 180; ZR = 196; AR = 112
    a(f"""s_lshl_b32 {S_BP}, {S_XCD}, 3
s_lshr_b32 {T0}, {S_IDX}, 2
s_add_u32 {S_BP}, {S_BP}, {T0}
s_and_b32 {T1}, {S_IDX}, 3
s_cmp_ge_u32 {T1}, 2
s_cselect_b32 {S_CNT}, 3, 4
s_lshl_b32 {S_DT}, {T1}, 2
s_cmp_eq_u32 {T1}, 3
s_cselect_b32 {S_DT}, 11, {S_DT}
s_add_u32 {S_DT}, {S_DT}, {S_W4}
v_bfe_u32 v5, v1, 2, 1
v_lshlrev_b32 v5, 4, v5
v_bfe_u32 v6, v1, 3, 2
v_lshl_add_u32 v5, v6, 2, v5
v_and_b32 v6, 3, v1
v_add_u32 v5, v5, v6
s_lshl_b32 {T0}, {S_DT}, 5
v_add_u32 v5, {T0}, v5                    ; d
v_lshlrev_b32 v9, 31, v5
v_xor_b32 v9, 0.5, v9                     ; 0.5*(-1)^d
v_cvt_f32_u32 v5, v5
v_mul_f32 v5, {lit(1/448)}, v5
v_lshrrev_b32 v4, 5, v1
v_cvt_f32_u32 v6, v4
v_mul_f32 v6, v5, v6
v_mul_f32 v6, 4.0, v6
v_mul_f32 v{GC}, {lit(16.0)}, v5
v_cos_f32 v{GC}, v{GC}""")
    for j in range(16): a(f"v_fmamk_f32 v{GS+j}, v5, {lit(float(16*(j//8) + 8*((j%8)//4) + j%4))}, v6")
    a(f"v_add_f32 v{GC}, v{GC}, v{GC}")
    for j in range(16): a(f"v_sin_f32_e64 v{GS+16+j}, -v{GS+j}\nv_cos_f32 v{GS+j}, v{GS+j}")
    a(f"v_mov_b32 v{GC+1}, v{GC}\nv_mov_b32 v240, s62\nv_mov_b32 v241, s63\nv_mov_b32 v242, 0\ns_waitcnt vmcnt(0)")
    publish_wg(a, "v2", "v3", 20, 5, T3, 240)
    stamp(a, 11)
    a(f"s_setprio 0\ns_cmp_ge_u32 {S_W4}, {S_CNT}\ns_cbranch_scc1 L_bend")
    srd(a, sOUT, 16, 2048 * 1792)
    a(f"""v_add_u32 v8, {L_ZB}, v7
v_and_b32 v6, 31, v1
v_mul_u32_u24 v6, {64*1792}, v6
v_lshl_add_u32 v6, v4, 5, v6
s_mul_i32 {T4}, {S_BP}, 1792
s_lshl_b32 {T1}, {S_DT}, 6
s_add_u32 {T4}, {T4}, {T1}""")
    lwait(a, "v2", 5, 4, 17, sleep=1, off=132)
    stamp(a, 13)
    order = [4*(q//4) + 2*(q % 2) + ((q//2) % 2) for q in range(28)]
    for q in range(8): a(f"ds_read_b128 {V(ZR+4*q,4)}, v8 offset:{order[q]*1024}")
    a(".p2align 3")
    for q in range(28):
        rho = q % 2; st = q // 2
        cur = GS + 16*rho + 8*(st % 2); oth = GS + 16*rho + 8*((st + 1) % 2); gp = GP + 4*(q % 4)
        if st >= 2:
            for z in range(0, 8, 2):
                a(f"v_pk_fma_f32 {V(cur+z,2)}, {V(GC,2)}, {V(oth+z,2)}, {V(cur+z,2)} neg_lo:[0,0,1] neg_hi:[0,0,1]")
        for z in range(4): a(f"v_cvt_pk_bf16_f32 v{gp+z}, v{cur+2*z}, v{cur+2*z+1}")
        if st == 0:
            a(f"s_mov_b32 exec_hi, 0\nv_cvt_pk_bf16_f32 v{gp}, {'v9' if rho else '0.5'}, v{cur+1}\ns_mov_b32 exec_hi, -1")
        if q >= 1:
            p = q - 1
            if p % 4 == 0: a(f"s_waitcnt lgkmcnt({max(0, min(4, 24-p))})\ns_nop 0")
            a(mfma(AR, GP + 4*(p % 4), ZR + 4*(p % 8), None if p == 0 else AR))
            if p + 8 < 28: a(f"ds_read_b128 {V(ZR+4*(p%8),4)}, v8 offset:{order[p+8]*1024}")
    a(mfma(AR, GP + 4*(27 % 4), ZR + 4*(27 % 8), AR))
    osc = ("", " sc1", " nt", " sc0 sc1")[cfg.outsc]
    if cfg.odefer and not cfg.noA: lwait(a, "v2", 5, 8, 36, sleep=2, off=132)
    for hf in range(2):
        for q in range(4*hf, 4*hf+4): a(f"v_cvt_pk_bf16_f32 v{GS+q}, v{AR+2*q}, v{AR+2*q+1}")
        a(f"buffer_store_dwordx4 {V(GS+4*hf,4)}, v6, {sOUT}, {T4} offen offset:{16*hf}{osc}")
    a("L_bend:")
    stamp(a, 12)
    dump_stamps(a, 240)
    a("s_endpgm")
    a("L_redw:")
    lwait(a, "v2", 5, 16, 2)
    a("s_branch L_redd\nL_redw2:")
    lwait(a, "v2", 5, 20, 2)
    a("s_branch L_redd2")
    for g in (1, 2, 3):
        a(f"L_gate{g}:")
        poll(a, f"v{VF}", PG[g], 14, 4, 25, sleep=2)
        a(f"s_branch L_gated{g}")
    a("L_fallback:")
    QO = Q + 24; KB = KVB; M = 15; S_SO = "s70"
    a(f"v_mov_b32 v{M}, 0xff800000\ns_mov_b32 {S_SO}, {KV}\nL_fb1:")
    for s_ in kv_loads(0, S_SO)[:2]: a(s_)
    a(f"s_add_u32 {S_SO}, {S_SO}, {TS}\ns_waitcnt vmcnt(0)")
    a(mfma(SA, KB, QO)); a(mfma(SA, KB + 4, QO + 4, SA))
    for q in range(0, 16, 2): a(f"v_max3_f32 v{M}, v{M}, v{SA+q}, v{SA+q+1}")
    a(f"""s_cmp_lt_u32 {S_SO}, {KV + 64*TS}
s_cbranch_scc1 L_fb1
v_mov_b32 v14, v{M}
v_permlane32_swap_b32 v14, v{M}
v_max_f32 v{M}, v14, v{M}
s_mov_b32 {S_SO}, {KV}""")
    for q in range(16): a(f"v_mov_b32 v{OO+q}, 0")
    a("L_fb2:")
    for s_ in kv_loads(0, S_SO): a(s_)
    a(f"s_add_u32 {S_SO}, {S_SO}, {TS}\ns_waitcnt vmcnt(0)")
    a(mfma(SA, KB, QO)); a(mfma(SA, KB + 4, QO + 4, SA))
    for q in range(16): a(f"v_sub_f32 v{SA+q}, v{SA+q}, v{M}")
    for q in range(16): a(f"v_exp_f32 v{SA+q}, v{SA+q}")
    for q in range(8): a(f"v_cvt_pk_bf16_f32 v{P0+q}, v{SA+2*q}, v{SA+2*q+1}")
    a(mfma(OO, KB + 8, P0, OO)); a(mfma(OO, KB + 12, P1, OO))
    a(f"""s_cmp_lt_u32 {S_SO}, {KV + 64*TS}
s_cbranch_scc1 L_fb2
v_mov_b32 v10, v{OO+12}
v_mov_b32 v11, v{OO+12}
v_permlane32_swap_b32 v10, v11
v_rcp_f32 v10, v11
s_branch L_fbdone""")

def role_A(a):
    FB = 16; GS0 = 48; M = 72; F = 88; ACC = 200; TMP = 216
    S_BP = "s78"
    S_CG, S_CNT, S_CB, S_DT, S_TASK, S_K1 = "s79", "s80", "s81", "s82", "s83", "s73"
    S_B, S_KT16 = S_BP, S_DT
    (PN, _, _, P_TST, P_W, P_F1, P_TLD, P_TBW, P_TBR, P_TTW, P_TTR, P_UST, P_F2, P_WOD, P_WOR, P_WOR2,
     P_ZW0, P_ZW1, P_PF, P_BC, P_PS, _, P_LS, P_DUM) = range(232, 256)
    sc = 1.0 / (2048 * 448)
    def albar(code): lbar(a, "v14", "v15", P_LS, code, sleep=1)
    def burst(items, th):
        a("s_setprio 0")
        for q, it in enumerate(items):
            if q >= th: a(f"s_waitcnt vmcnt({th-1})")
            a(it)
        a(f"s_setprio {cfg.aprio}")
    SB = "s[74:75]"
    def stage_arrive(k):
        L = a.lab("arr")
        a(f"""s_waitcnt vmcnt(0)
s_mov_b64 exec, 1
ds_add_rtn_u32 v{P_LS}, v14, v15 offset:8
s_mov_b64 exec, -1
s_waitcnt lgkmcnt(0)
v_readfirstlane_b32 {T0}, v{P_LS}
s_cmp_eq_u32 {T0}, {4*k+3}
s_cbranch_scc0 {L}
s_mov_b32 {T0}, 1
s_lshl_b32 {T1}, {S_XCD}, 7
s_add_u32 {T1}, {T1}, {k*1024}
s_atomic_add {T0}, {SB}, {T1} glc
s_waitcnt lgkmcnt(0)
s_sub_u32 {T0}, {T0}, s62
s_cmp_eq_u32 {T0}, 31
s_cbranch_scc0 {L}
s_mov_b32 {T1}, {FA1 + 2048 + k*2048}
s_mov_b64 exec, 0xffff
buffer_atomic_add v15, v{P_PF}, {sWS}, {T1} offen sc1
s_mov_b64 exec, -1
{L}:""")
    def stage_wait(k, pre):
        L, L2, L3 = a.lab("sw"), a.lab("sw"), a.lab("sw")
        a(f"""s_cmp_eq_u32 {S_W4}, 0
s_cbranch_scc0 {L2}
s_and_b32 {T1}, s2, 15
s_lshl_b32 {T1}, {T1}, 7
s_add_u32 {T1}, {T1}, {2048 + k*2048}
s_add_u32 {T2}, s62, 8
s_mov_b32 {S_TO}, {cfg.poll_limit}
s_waitcnt lgkmcnt(0)
s_sleep {pre}
{L}:
s_mov_b32 {T0}, 0
s_atomic_or {T0}, {SB}, {T1} glc
s_waitcnt lgkmcnt(0)
s_cmp_eq_u32 {T0}, {T2}
s_cbranch_scc1 {L}d
s_sleep {cfg.bsleep}
s_sub_u32 {S_TO}, {S_TO}, 1
s_cbranch_scc0 {L}
s_mov_b32 {S_TO}, 32
s_branch L_fail
{L}d:
s_mov_b64 exec, 1
ds_add_u32 v14, v15 offset:12
s_mov_b64 exec, -1
s_branch {L3}
{L2}:""")
        lwait(a, "v14", P_LS, k + 1, 33, sleep=cfg.lsl, off=12)
        a(f"{L3}:")
    def pace():
        if cfg.pace: a(f"s_sleep {cfg.pace}")
    a(f"""L_roleA:
v_mov_b32 v3, 0
v_mov_b32 v2, {L_SYNC}
ds_write2_b32 v2, v3, v3 offset0:0 offset1:32
ds_write2_b32 v2, v3, v3 offset0:1 offset1:2
ds_write2_b32 v2, v3, v3 offset0:3 offset1:33
ds_write2_b32 v2, v3, v3 offset0:4 offset1:34
ds_write2_b32 v2, v3, v3 offset0:5 offset1:35
s_setprio {cfg.aprio}
s_mov_b32 {S_BAR}, 0
s_lshl_b32 {S_BP}, {S_XCD}, 3
s_lshr_b32 {T0}, {S_IDX}, 2
s_add_u32 {S_BP}, {S_BP}, {T0}
s_and_b32 {S_CG}, {S_IDX}, 3
s_cmp_ge_u32 {S_CG}, 2
s_cselect_b32 {S_CNT}, 3, 4
s_lshl_b32 {S_CB}, {S_CG}, 2
s_cmp_eq_u32 {S_CG}, 3
s_cselect_b32 {S_CB}, 11, {S_CB}
s_add_u32 {S_DT}, {S_CB}, {S_W4}
v_and_b32 v2, 31, v1                      ; v2 = lane%32
v_lshrrev_b32 v3, 5, v1                   ; v3 = half
v_cvt_f32_u32 v4, v3""")
    def angles(n, vstep, vbase, offs, dst=TMP):
        for j in range(n): a(f"v_fmamk_f32 v{dst+j}, {vstep}, {lit(float(offs[j]))}, {vbase}")
    def gen_F():
        A0 = TMP; A1 = TMP + 8; C2 = TMP + 16
        a(f"""v_and_b32 v5, 15, v1
s_lshl_b32 {T0}, {S_KT16}, 4
v_add_u32 v5, {T0}, v5                    ; k
v_bfe_u32 v6, v1, 4, 1
v_lshl_add_u32 v7, v5, 1, v6
v_cmp_eq_u32 vcc, 1, v7
v_mov_b32 v7, 224
v_cndmask_b32 v5, v5, v7, vcc
v_cndmask_b32 v6, v6, 0, vcc
v_cvt_f32_u32 v5, v5
v_cvt_f32_u32 v6, v6
v_mul_f32 v5, {lit(1/448)}, v5            ; kf
v_mul_f32 v6, {lit(0.25)}, v6
v_mul_f32 v7, v5, v4
v_fmamk_f32 v6, v7, {lit(8.0)}, v6
v_mul_f32 v{C2}, {lit(16.0)}, v5
v_cos_f32 v{C2}, v{C2}""")
        angles(16, "v5", "v6", [j % 8 + 16 * (j // 8) for j in range(16)])
        a(f"v_add_f32 v{C2}, v{C2}, v{C2}")
        for j in range(16): a(f"v_cos_f32 v{A0+j}, v{A0+j}")
        a(f"v_mov_b32 v{C2+1}, v{C2}\ns_waitcnt lgkmcnt(0)\n{st0()}\ns_barrier\n.p2align 3")
        for m in range(28):
            cur = A0 if m % 2 == 0 else A1; oth = A1 if m % 2 == 0 else A0
            if m >= 2:
                for q in range(0, 8, 2):
                    a(f"v_pk_fma_f32 {V(cur+q,2)}, {V(C2,2)}, {V(oth+q,2)}, {V(cur+q,2)} neg_lo:[0,0,1] neg_hi:[0,0,1]")
            for q in range(4): a(f"v_cvt_pk_bf16_f32 v{F+4*m+q}, v{cur+2*q}, v{cur+2*q+1}")
    def gen_M():
        a(f"""v_cvt_f32_u32 v5, v2
s_and_b32 {T0}, {S_W4}, 1
s_lshl_b32 {T0}, {T0}, 10
s_add_u32 {T0}, {T0}, {S_B}
v_lshl_add_u32 v6, v3, 8, {T0}
v_cvt_f32_u32 v6, v6
v_mul_f32 v6, v6, v5
s_cmp_ge_u32 {S_W4}, 2
s_cselect_b32 {T0}, {lit(0.25)}, 0
v_mov_b32 v7, {T0}
v_fmamk_f32 v6, v6, {lit(1/2048)}, v7
v_mul_f32 v5, {lit(1/32)}, v5""")
        angles(8, "v5", "v6", [8*(j//4) + j%4 for j in range(8)])
        for j in range(8): a(f"v_cos_f32 v{TMP+j}, v{TMP+j}")
        for q in range(4): a(f"v_cvt_pk_bf16_f32 v{ACC+8+q}, v{TMP+2*q}, v{TMP+2*q+1}")
    def gen_MS():
        a(f"""v_lshlrev_b32 v5, 6, v2
v_add_u32 v5, {S_BP}, v5
v_cvt_f32_u32 v5, v5
v_mul_f32 v5, {lit(1/2048)}, v5
s_lshl_b32 {T0}, {S_W4}, 3
v_lshl_add_u32 v6, v3, 2, {T0}
v_cvt_f32_u32 v6, v6
v_mul_f32 v6, v5, v6""")
        angles(4, "v5", "v6", range(4), TMP + 8)
        for j in range(4): a(f"v_cos_f32 v{TMP+2*j}, v{TMP+8+j}\nv_sin_f32 v{TMP+2*j+1}, v{TMP+8+j}")
        a(f"v_mov_b32 v6, {lit(2*sc)}\nv_mov_b32 v7, v6")
        for j in range(4): a(f"v_pk_mul_f32 {V(TMP+2*j,2)}, {V(TMP+2*j,2)}, v[6:7]")
        for j in range(4):
            a(f"v_cvt_pk_bf16_f32 v{48+j}, v{TMP+2*j}, v{TMP+2*j+1}\nv_cvt_pk_bf16_f32 v{52+j}, v{TMP+2*j+1}, -v{TMP+2*j}")
    def gen_FB():
        a(f"""v_and_b32 v5, 15, v1
s_lshl_b32 {T0}, {S_W4}, 4
v_add_u32 v5, {T0}, v5
v_cvt_f32_u32 v5, v5
v_mul_f32 v5, {lit(1/64)}, v5
v_bfe_u32 v6, v1, 4, 1
v_cvt_f32_u32 v6, v6
v_mul_f32 v6, {lit(0.25)}, v6
v_mul_f32 v7, v5, v4
v_fmamk_f32 v6, v7, {lit(4.0)}, v6""")
        C2 = TMP + 16
        a(f"v_mul_f32 v{C2}, {lit(8.0)}, v5\nv_cos_f32 v{C2}, v{C2}")
        angles(8, "v5", "v6", [8*(j//4) + j%4 for j in range(8)], TMP + 20)
        a(f"v_add_f32 v{C2}, v{C2}, v{C2}")
        for j in range(8): a(f"v_cos_f32 v{TMP+2*j}, v{TMP+20+j}\nv_sin_f32 v{TMP+2*j+1}, v{TMP+20+j}")
        a(f"v_mov_b32 v{C2+1}, v{C2}")
        for m in range(8):
            cur = TMP + 8*(m % 2); oth = TMP + 8*((m + 1) % 2)
            if m >= 2:
                for q in range(0, 8, 2):
                    a(f"v_pk_fma_f32 {V(cur+q,2)}, {V(C2,2)}, {V(oth+q,2)}, {V(cur+q,2)} neg_lo:[0,0,1] neg_hi:[0,0,1]")
            for q in range(4): a(f"v_cvt_pk_bf16_f32 v{FB+4*m+q}, v{cur+2*q}, v{cur+2*q+1}")
    def gen_addr():
        a(f"""v_mov_b32 v{PN+2}, 0
v_lshlrev_b32 v7, 4, v1                   ; v7 = lane*16
v_and_b32 v6, 3, v1
v_lshrrev_b32 v5, 2, v1
v_lshlrev_b32 v5, 16, v5
v_lshl_add_u32 v{P_TST}, v6, 4, v5
s_lshl_b32 {T1}, {S_W4}, 11
s_add_u32 {T0}, {T1}, {L_TT}
v_add_u32 v{P_TTR}, {T0}, v7
v_lshlrev_b32 v5, 6, v2
v_lshl_add_u32 v5, v3, 4, v5
v_add_u32 v{P_TTW}, {T0}, v5
s_lshl_b32 {S_TASK}, {S_XCD}, 5
s_add_u32 {S_TASK}, {S_TASK}, {S_IDX}
s_lshr_b32 {T0}, {S_TASK}, 3
s_lshl_b32 {T2}, {S_W4}, 9
s_add_u32 {T0}, {T0}, {T2}
s_mul_i32 {T0}, {T0}, 225
s_lshl_b32 {T2}, {S_HH}, 5
s_add_u32 {T0}, {T0}, {T2}
v_mul_u32_u24 v5, {128*225}, v3
v_add3_u32 v5, v5, v2, {T0}
v_lshlrev_b32 v{P_W}, 1, v5
v_bfe_u32 v12, v1, 4, 1
v_lshlrev_b32 v5, 2, v2
v_lshl_add_u32 v{P_TLD}, v3, 9, v5
v_lshl_add_u32 v{P_UST}, v3, 17, v5
v_add_u32 v{P_TBR}, {L_TB}, v7
v_add_u32 v{P_TBW}, {T1}, v{P_TBR}
s_add_u32 {S_K1}, {S_W4}, 3
s_cmp_eq_u32 {S_W4}, 0
s_cselect_b32 {S_K1}, 7, {S_K1}
s_lshl_b32 {T0}, {S_W4}, 12
v_add_u32 v{P_ZW0}, {T0}, v{P_TBR}
s_lshl_b32 {T0}, {S_K1}, 12
v_add_u32 v{P_ZW1}, {T0}, v{P_TBR}
v_bfe_u32 v13, v1, 2, 2
v_lshrrev_b32 v5, 4, v1
v_xor_b32 v{P_WOD}, v13, v5
s_sub_u32 {T0}, {S_CNT}, 1
v_min_u32 v{P_WOD}, {T0}, v{P_WOD}
v_add_u32 v{P_WOD}, {S_CB}, v{P_WOD}
v_lshlrev_b32 v{P_WOD}, 6, v{P_WOD}
v_mul_u32_u24 v5, 896, v5
v_add_u32 v5, v5, v{P_WOD}
v_lshl_add_u32 v5, v6, 4, v5
s_mul_i32 {T0}, {S_W4}, {4*896}
v_add_u32 v{P_WOD}, {T0}, v5
v_xor_b32 v5, {S_W4}, v13
v_lshlrev_b32 v5, 6, v5
v_lshl_add_u32 v5, v13, 8, v5
v_and_b32 v6, 1, v1
v_lshl_add_u32 v5, v6, 5, v5
v_lshl_add_u32 v5, v12, 4, v5
v_bfe_u32 v6, v1, 1, 1
v_lshl_add_u32 v5, v6, 3, v5
v_add_u32 v{P_WOR2}, {L_X}, v5
v_lshl_add_u32 v{P_WOR}, v3, 10, v{P_WOR2}""")
    pieces = [gen_F, gen_FB, gen_M, gen_MS, gen_addr]
    assert cfg.pre >= 1
    def wq_warm():
        a(f"""s_cmp_eq_u32 {S_LC}, 7
s_cbranch_scc0 L_pf1
v_mul_u32_u24 v5, 2688, v1
s_mul_i32 {T0}, {T5}, 3
s_add_u32 {T0}, {T0}, {S_RR}
s_lshl_b32 {T0}, {T0}, 7
s_mul_i32 {T1}, {S_W4}, {128*2688}
s_add_u32 {T0}, {T0}, {T1}
s_add_u32 {T1}, {T0}, {64*2688}
buffer_load_dword v{P_DUM}, v5, {sWQKV}, {T0} offen
buffer_load_dword v{P_DUM}, v5, {sWQKV}, {T1} offen
L_pf1:""")
    for q in range(cfg.pre):
        pieces.pop(0)()
        if q == 0: srd(a, sWQKV, 12, 448 * 2688)
        if cfg.wqwarm == q + 1: wq_warm()
    stamp(a, 1)
    srd(a, sWS, 20, WS_SIZE)
    srd(a, sX, 4, 2048 * 896); srd(a, sWR, 6, 2048 * 450); srd(a, sWI, 8, 2048 * 450)
    srd(a, sWO, 14, 448 * 896); srd(a, sOUT, 16, 2048 * 1792)
    S_XA, S_WQL, S_WQG = "s70", "s71", "s72"
    XD = 70
    a(f"""v_lshrrev_b32 v6, 3, v1
v_and_b32 v5, 7, v1
v_lshrrev_b32 v8, 4, v1
v_xor_b32 v5, v5, v8
s_and_b32 {T0}, {S_W4}, 1
s_lshl_b32 {T0}, {T0}, 2
v_xor_b32 v5, {T0}, v5
v_mul_u32_u24 v6, {64*896}, v6
s_mul_i32 {T1}, {S_W4}, {8*64*896}
s_mul_i32 {T2}, {S_B}, 896
s_add_u32 {T1}, {T1}, {T2}
v_add_u32 v6, {T1}, v6
v_lshl_add_u32 v{XD}, v5, 4, v6
s_lshl_b32 {T0}, {S_W4}, 10
s_add_u32 {S_XA}, {T0}, {L_X}
s_mov_b32 {T2}, {L_X}""")
    x_read_addrs(a, 8, "v1", T2, TMP)
    a(f"""v_mov_b32 v14, {L_SYNC+128}
v_mov_b32 v15, 1
v_mov_b32 v{P_BC}, {L_SYNC}
s_lshl_b32 {T1}, {S_CG}, 1""")
    lwait(a, f"v{P_BC}", P_LS, 4, 34, sleep=1)
    a(f"""ds_read_b64 {V(PN,2)}, v{P_BC} offset:64
v_lshlrev_b32 v{P_PF}, 7, v1
s_add_u32 s74, s20, {FA1}
s_addc_u32 s75, s21, 0
s_waitcnt lgkmcnt(0)
v_readfirstlane_b32 s62, v{PN}
v_readfirstlane_b32 s63, v{PN+1}
s_lshl_b32 {T0}, s2, 2
s_add_u32 {T0}, {T0}, {S_W4}
s_cmp_lg_u32 {T0}, 0
s_cbranch_scc1 L_noinit
s_mov_b32 {T0}, {FA1}
s_bfm_b64 exec, 40, 8
buffer_store_dwordx2 {V(PN,2)}, v{P_PF}, {sWS}, {T0} offen sc1
s_waitcnt vmcnt(0)
s_mov_b64 exec, 0xff
buffer_store_dwordx2 {V(PN,2)}, v{P_PF}, {sWS}, {T0} offen sc1
s_mov_b64 exec, -1
L_noinit:""")
    stamp(a, 2)
    lwait(a, f"v{P_BC}", P_LS, 4, 20, sleep=1, off=8)
    if cfg.xas:
        a(f"s_mul_i32 {T2}, {S_H}, 7\ns_bfe_u32 {T2}, {T2}, 0x30001\ns_cmp_gt_u32 {T2}, 4\ns_cbranch_scc0 L_xago")
        lwait(a, f"v{P_BC}", P_LS, 4 * cfg.xas, 30, sleep=1, off=4)
        a("L_xago:")
    for c in range(7):
        a(f"""s_add_u32 {T2}, {T1}, 1
s_lshr_b32 {T3}, {T2}, 1
s_lshl_b32 {T3}, {T3}, 14
s_and_b32 {T4}, {T1}, 1
s_lshl_b32 {T4}, {T4}, 12
s_sub_u32 {T3}, {T3}, {T4}
s_add_u32 m0, {S_XA}, {T3}
s_lshl_b32 {T4}, {T1}, 7
buffer_load_dwordx4 v{XD}, {sX}, {T4} offen lds
s_cmp_eq_u32 {T2}, 7
s_cselect_b32 {T1}, 0, {T2}""")
    for p_ in pieces: p_()
    pieces = []
    assert not pieces
    a(f"""v_add_u32 v13, {L_M}, v7
s_lshl_b32 {T0}, {S_W4}, 10
v_add_u32 v5, {T0}, v13
ds_write_b128 v5, {V(ACC+8,4)}
s_cmp_eq_u32 {S_W4}, 0
s_cbranch_scc0 L_chkd
s_lshl_b32 {T1}, {S_XCD}, 7
s_mov_b32 {S_TO}, {cfg.poll_limit}
L_chk:
s_load_dwordx2 s[76:77], {SB}, {T1} glc
s_waitcnt lgkmcnt(0)
s_sub_u32 s76, s76, s62
s_lshr_b32 s76, s76, 5
s_xor_b32 s77, s77, s63
s_or_b32 s76, s76, s77
s_cbranch_scc0 L_chkd
s_sleep 4
s_sub_u32 {S_TO}, {S_TO}, 1
s_cbranch_scc0 L_chk
s_mov_b32 {S_TO}, 35
s_branch L_fail
L_chkd:""")
    WW = 72; AC = 152; FR = 168; TP = 200
    wl = []
    for r in range(8):
        wl.append(f"s_mov_b32 {T0}, {14400*(8*(r//4) + r%4)}\nbuffer_load_short_d16_hi v{WW+r}, v{P_W}, {sWR}, {T0} offen")
        wl.append(f"buffer_load_short_d16_hi v{WW+8+r}, v{P_W}, {sWI}, {T0} offen")
    if cfg.wearly:
        for s_ in wl: a(s_)
        a("s_waitcnt vmcnt(16)")
    else: a("s_waitcnt vmcnt(0)")
    stamp(a, 3)
    if cfg.noA == 1:
        a(f"s_mov_b64 exec, 1\nds_add_u32 v14, v15 offset:4\ns_mov_b64 exec, -1")
        stamp(a, 12); dump_stamps(a, 16); a("s_endpgm")
    albar(16)
    def xreg(m): return TMP + 4*m if m < 4 else F + 4*(m - 4)
    def xr(m): return f"ds_read_b128 {V(xreg(m),4)}, v{8+m%4} offset:{((m//4+1)>>1)*16384 - ((m//4)&1)*4096}"
    for m in range(4): a(xr(m))
    P1 = F; P2 = F + 16; XP = TMP; M = F + 32
    for m in range(28):
        a(f"s_waitcnt lgkmcnt(3)")
        a(mfma(ACC, xreg(m), F + 4*m, None if m == 0 else ACC))
        if m + 4 < 28: a(xr(m + 4))
        else: a(f"ds_read_b128 {V(M+4*(m-24),4)}, v13 offset:{(m-24)*1024}")
    lwait(a, f"v{P_BC}", P_LS, 8, 27, sleep=1)
    a(f"""s_lshl_b32 {T0}, {S_W4}, 11
s_add_u32 {T0}, {T0}, {L_MS}
v_add_u32 v5, {T0}, v7
ds_write_b128 v5, v[48:51]
ds_write_b128 v5, v[52:55] offset:1024
s_lshr_b32 {T0}, {S_KT16}, 1
s_lshl_b32 {T0}, {T0}, 13
s_lshl_b32 {T1}, {S_B}, 7
s_add_u32 {T1}, {T1}, {TBUF}
s_add_u32 {T0}, {T0}, {T1}
s_and_b32 {T2}, {S_KT16}, 1
s_lshl_b32 {T2}, {T2}, 6
s_add_u32 {T0}, {T0}, {T2}
s_add_u32 {T2}, {T0}, {16*65536}
s_cmp_ge_u32 {S_W4}, {S_CNT}
s_cbranch_scc1 L_a1done
s_waitcnt lgkmcnt(0)""")
    for q in range(8): a(f"v_cvt_pk_bf16_f32 v{XP+q}, v{ACC+2*q}, v{ACC+2*q+1}")
    a(mfma(P1, XP, M)); a(mfma(P2, XP, M + 8)); a(mfma(P1, XP + 4, M + 4, P1)); a(mfma(P2, XP + 4, M + 12, P2))
    for r in range(0, 8, 2):
        a(f"v_pk_add_f32 {V(ACC+r,2)}, {V(P1+r,2)}, {V(P2+r+8,2)} neg_lo:[0,1] neg_hi:[0,1]\nv_pk_add_f32 {V(ACC+8+r,2)}, {V(P1+r+8,2)}, {V(P2+r,2)}")
    for r in range(8): a(f"v_cvt_pk_bf16_f32 v{XP+8+r}, v{ACC+r}, v{ACC+8+r}")
    a(f"""s_cmp_lg_u32 {S_KT16}, 0
s_cbranch_scc1 L_a1st
s_mov_b32 exec_hi, 0
v_cvt_pk_bf16_f32 v{XP+8}, v{P1}, v{P2}
v_cvt_pk_bf16_f32 v6, v{P1+8}, v{P2+8}
v_lshlrev_b32 v5, 16, v2
s_mov_b32 exec_hi, -1
L_a1st:
ds_write_b128 v{P_TTW}, {V(XP+8,4)}
ds_write_b128 v{P_TTW}, {V(XP+12,4)} offset:32
ds_read_b128 {V(XP,4)}, v{P_TTR}
ds_read_b128 {V(XP+4,4)}, v{P_TTR} offset:1024
s_mov_b32 {T4}, {T0}
s_waitcnt lgkmcnt(0)""")
    stamp(a, 1, 5)
    if cfg.tdefer: lwait(a, f"v{P_BC}", P_LS, 4, 28, sleep=1, off=12)
    if cfg.tdelay: a(f"s_sleep {cfg.tdelay}")
    a(f"""s_cmp_lg_u32 {S_KT16}, 0
s_cbranch_scc1 L_a1st2
s_mov_b32 exec_hi, 0
s_add_u32 {T1}, {T1}, {7*8192}
buffer_store_dword v6, v5, {sWS}, {T1} offen sc1
s_mov_b32 exec_hi, -1
L_a1st2:
buffer_store_dwordx4 {V(XP,4)}, v{P_TST}, {sWS}, {T4} offen sc1
buffer_store_dwordx4 {V(XP+4,4)}, v{P_TST}, {sWS}, {T2} offen sc1
L_a1done:""")
    stage_arrive(0)
    stamp(a, 4)
    lwait(a, f"v{P_BC}", P_LS, 4, 29, sleep=1, off=12)
    if cfg.wdelay: a(f"s_sleep {cfg.wdelay}")
    if not cfg.wearly: burst(wl, cfg.th_w)
    if cfg.wopf:
        burst([f"""s_lshl_b32 {T0}, {S_IDX}, 2
s_add_u32 {T0}, {T0}, {S_W4}
s_mul_i32 {T0}, {T0}, {25*128}
s_bfm_b64 exec, 25, 0
buffer_load_dword v{P_DUM}, v{P_PF}, {sWO}, {T0} offen
s_mov_b64 exec, -1"""], 1)
    WO = 72
    S_WOL = "s70"
    a(f"s_lshl_b32 {S_WOL}, {S_W4}, 10\ns_add_u32 {S_WOL}, {S_WOL}, {L_X}")
    def wo_list(rnd):
        return [f"s_add_u32 m0, {S_WOL}, {i*4096}\ns_mov_b32 s71, {(rnd*224 + i*16)*896}\nbuffer_load_dwordx4 v{P_WOD}, {sWO}, s71 offen lds" for i in range(14)]
    def ride(q, n=1):
        it = [q.pop(0) for _ in range(min(n, len(q)))]
        if it: burst(it, n)
        pace()
    def wo_rd(f, d, r1, r2):
        hl, mu = f // 2, f % 2
        return [f"ds_read_b64_tr_b16 {V(d+2*sec,2)}, v{r2 if (mu and sec) else r1} offset:{(28*hl + 16*mu + 8*sec)*256}" for sec in range(2)]
    stamp(a, 5)
    stage_wait(0, cfg.a2wait)
    a(f"s_lshl_b32 {T1}, {S_W4}, 11")
    stamp(a, 6)
    a(f"""s_lshl_b32 {T0}, {S_TASK}, 13
s_add_u32 {T0}, {T0}, {T1}
s_add_u32 {T0}, {T0}, {TBUF}""")
    burst([f"buffer_load_dword v{FR+q}, v{P_TLD}, {sWS}, {T0} offen offset:{(q//4)*1024 + (q%4)*128} sc1" for q in range(8)], 8)
    a(f"s_cmp_eq_u32 {S_HH}, 7\ns_cbranch_scc0 L_a2nx\ns_waitcnt vmcnt(8)")
    for r in range(8):
        a(f"v_mov_b32 v{TP}, v{WW+r}\nv_xor_b32 v{WW+r}, 0x80000000, v{WW+8+r}\nv_mov_b32 v{WW+8+r}, v{TP}")
    a(f"""L_a2nx:
s_waitcnt vmcnt(0)
ds_write_b128 v{P_TBW}, {V(FR,4)}
ds_write_b128 v{P_TBW}, {V(FR+4,4)} offset:1024""")
    stamp(a, 1, 4)
    albar(6)
    stamp(a, 2, 4)
    def dft64(base):
        for m in range(8): a(f"ds_read_b128 {V(FR+4*m,4)}, v{P_TBR} offset:{base + m*1024}")
        for m in range(8):
            a(f"s_waitcnt lgkmcnt({7-m})")
            a(mfma(AC, FB + 4*m, FR + 4*m, None if m == 0 else AC))
            ride(woq)
    woq = wo_list(0)
    dft64(0)
    for r in range(0, 8, 2):
        a(f"""v_pk_mul_f32 {V(FR+r,2)}, {V(AC+r,2)}, {V(WW+r,2)}
v_pk_mul_f32 {V(FR+8+r,2)}, {V(AC+r,2)}, {V(WW+8+r,2)}
v_pk_fma_f32 {V(FR+r,2)}, {V(AC+8+r,2)}, {V(WW+8+r,2)}, {V(FR+r,2)} neg_lo:[1,0,0] neg_hi:[1,0,0]
v_pk_fma_f32 {V(FR+8+r,2)}, {V(AC+8+r,2)}, {V(WW+r,2)}, {V(FR+8+r,2)} neg_lo:[1,0,1] neg_hi:[1,0,1]
v_cvt_pk_bf16_f32 v{TP+r}, v{FR+r}, v{FR+8+r}
v_cvt_pk_bf16_f32 v{TP+r+1}, v{FR+r+1}, v{FR+8+r+1}""")
    a(f"ds_write_b128 v{P_TBW}, {V(TP,4)} offset:8192\nds_write_b128 v{P_TBW}, {V(TP+4,4)} offset:9216")
    stamp(a, 3, 4)
    albar(7)
    stamp(a, 4, 4)
    dft64(8192)
    a(f"""s_lshl_b32 {T0}, {S_HH}, 12
s_lshr_b32 {T1}, {S_TASK}, 3
s_lshl_b32 {T1}, {T1}, 7
s_add_u32 {T0}, {T0}, {T1}
s_add_u32 {T0}, {T0}, {UBUF}
s_lshl_b32 {T1}, {S_W4}, 19
s_add_u32 {T0}, {T0}, {T1}""")
    for r in range(8): a(f"v_cvt_pk_bf16_f32 v{TP+r}, v{AC+r}, v{AC+8+r}")
    stamp(a, 5, 4)
    burst([f"s_add_u32 {T1}, {T0}, {(8*(r//4) + r%4) * USTR}\nbuffer_store_dword v{TP+r}, v{P_UST}, {sWS}, {T1} offen sc1" for r in range(8)], 8)
    stage_arrive(1)
    stamp(a, 7)
    albar(4)
    for f in range(16):
        for s_ in wo_rd(f, WO + 4*f, P_WOR, P_WOR2): a(s_)
    U0 = 16; U1 = 32; AR = 200; AI = 216; MS = 136; UE = 168
    for q in range(8): a(f"ds_read_b128 {V(MS+4*q,4)}, v7 offset:{L_MS + q*1024}")
    stage_wait(1, cfg.a3wait)
    stamp(a, 8)
    a(f"""s_lshl_b32 {T0}, {S_BP}, 15
s_add_u32 {T0}, {T0}, {UBUF}
s_lshl_b32 {T1}, {S_W4}, 12
s_lshl_b32 {T3}, {S_K1}, 12
s_add_u32 {T2}, {T0}, {T3}
s_add_u32 {T1}, {T0}, {T1}""")
    burst([f"buffer_load_dword v{U0+q}, v{P_TLD}, {sWS}, {T1 if q < 16 else T2} offen offset:{((q%16)//4)*1024 + (q%4)*128} sc1" for q in range(32)], cfg.th_u)
    stamp(a, 10, 4)
    albar(24)
    stamp(a, 11, 4)
    def step6(ur, ui, va, q_, n):
        for m in range(4):
            a(mfma(AR, ur + 4*m, MS + 8*m, None if m == 0 else AR))
            if not cfg.s6late: ride(q_, n)
            a(mfma(AI, ui + 4*m, MS + 8*m + 4, None if m == 0 else AI))
            if not cfg.s6late: ride(q_, n)
        for q in range(16): a(f"v_cvt_pk_bf16_f32 v{UE+q}, v{AR+2*q}, v{AR+2*q+1}")
        for q in range(4): a(f"ds_write_b128 v{va}, {V(UE+4*q,4)} offset:{q*1024}")
    if cfg.s6late:
        burst(wo_list(1), cfg.th_wo)
        lwait(a, f"v{P_BC}", P_LS, 20, 37, sleep=2)
    a(f"s_cmp_eq_u32 {S_W4}, 0\ns_cbranch_scc1 L_a3w0\ns_waitcnt vmcnt({14 if cfg.s6late else 16})")
    woq = wo_list(1)
    step6(U0, U0, P_ZW0, woq, 1)
    if not cfg.s6late: a("s_waitcnt vmcnt(8)")
    step6(U1, U1, P_ZW1, woq, 1)
    a(f"s_branch L_a3z\nL_a3w0:\ns_waitcnt vmcnt({14 if cfg.s6late else 0})\ns_mov_b32 exec_lo, -2\ns_mov_b32 exec_hi, -2")
    for q in range(16): a(f"v_mov_b32 v{U1+q}, v{U0+q}")
    a("s_mov_b64 exec, -1")
    step6(U0, U1, P_ZW0, wo_list(1), 2)
    a("L_a3z:")
    stamp(a, 13, 4)
    a(f"s_mov_b64 exec, 1\nds_add_u32 v14, v15 offset:4\ns_mov_b64 exec, -1\ns_waitcnt vmcnt(0)")
    albar(10)
    stamp(a, 9)
    for f in range(16):
        for s_ in wo_rd(f, WO + 64 + 4*f, P_WOR, P_WOR2): a(s_)
    osc = ("", " sc1", " nt", " sc0 sc1")[cfg.outsc]
    def out_store(rowmul, colbase, skip):
        a(f"""v_mul_u32_u24 v5, {rowmul}, v2
v_lshl_add_u32 v5, v3, 5, v5
s_lshl_b32 {T1}, {S_DT}, 6
s_add_u32 {T0}, {T0}, {T1}
s_add_u32 {T0}, {T0}, {colbase}
s_cmp_ge_u32 {S_W4}, {S_CNT}
s_cbranch_scc1 {skip}""")
        for q in range(4): a(f"v_cvt_pk_bf16_f32 v{64+q}, v{AR+2*q}, v{AR+2*q+1}")
        a(f"buffer_store_dwordx4 v[64:67], v5, {sOUT}, {T0} offen{osc}")
        for q in range(4, 8): a(f"v_cvt_pk_bf16_f32 v{64+q}, v{AR+2*q}, v{AR+2*q+1}")
        a(f"buffer_store_dwordx4 v[68:71], v5, {sOUT}, {T0} offen offset:16{osc}\n{skip}:")
    a(f"""s_lshl_b32 {T4}, {S_BP}, 2
s_add_u32 {T4}, {T4}, {S_W4}
s_lshl_b32 {T3}, {T4}, 13
s_add_u32 {T3}, {T3}, {OBUF}
s_add_u32 {T2}, {T3}, 4096
s_and_b32 {T4}, {S_BP}, 60
s_add_u32 {T4}, {T4}, {S_W4}
s_lshl_b32 {T4}, {T4}, 9
s_add_u32 {T4}, {T4}, {FO}""")
    lwait(a, f"v{P_BC}", P_LS, 24, 21, sleep=1)
    stamp(a, 10)
    if cfg.owait: a(f"s_sleep {cfg.owait}")
    poll(a, f"v{P_PF}", T4, P_PS, 4, 11, sleep=2)
    stamp(a, 13)
    for q in range(8):
        a(f"buffer_load_dwordx4 {V(16+4*q,4)}, v7, {sWS}, {T3 if q < 4 else T2} offen offset:{(q%4)*1024} sc1")
    a(f"s_mov_b64 exec, 1\nds_add_u32 v14, v15 offset:4\ns_mov_b64 exec, -1\ns_lshl_b32 {T1}, {S_W4}, 13\nv_add_u32 v9, {T1}, v7")
    for q in range(8):
        a(f"s_waitcnt vmcnt({7-q})\nds_write_b128 v9, {V(16+4*q,4)} offset:{L_OB + q*1024}")
    lbar(a, "v14", "v15", P_LS, 12)
    OR = 216
    def zr(s_): return f"ds_read_b128 {V(OR+4*(s_%8),4)}, v7 offset:{L_OB + s_*1024}"
    for s_ in range(8): a(zr(s_))
    for s_ in range(32):
        a(f"s_waitcnt lgkmcnt({min(7, 31-s_)})")
        a(mfma(AR, WO + 4*s_, OR + 4*(s_ % 8), None if s_ == 0 else AR))
        if s_ + 8 < 32: a(zr(s_ + 8))
    a(f"s_mul_i32 {T0}, {S_BP}, {32*1792}")
    out_store(1792, 896, "L_b3done")
    a(f"""s_lshl_b32 {T0}, s2, 2
s_add_u32 {T0}, {T0}, {S_W4}
s_cmp_lg_u32 {T0}, 0
s_cbranch_scc1 L_noep
s_mov_b32 {T0}, {EPOCH}""")
    flag(a, T0, 10)
    a("L_noep:")
    if cfg.padend: padto(a, cfg.padend)
    stamp(a, 12)
    dump_stamps(a, 16)
    a("s_endpgm")

def build():
    nh = cfg.nh; xh = 16 // nh
    for wg in range(256):
        xcd, idx = wg & 7, wg >> 3
        h = (xcd % xh) * nh + idx % nh
        assert nh == 8
    a = Asm()
    prologue(a); role_B(a); ROLE[0] = 1; role_A(a)
    a(f"""L_fail:
v_mov_b32 v0, 0
v_mov_b32 v1, {S_TO}
global_store_dword v0, v1, s[18:19]
L_end:
s_endpgm
L_codeend:""")
    a.pad()
    import os
    ref = "cdna_kernels/" + NAME + ".s.ref"
    hdr = open(ref).read().split("; Override launch")[0] if os.path.exists(ref) else ""
    s = hdr + f"; @launch grid=(256,1,1) block=(512,1,1) lds={LDS_SIZE}\n"
    s += f""".amdgcn_target "amdgcn-amd-amdhsa--gfx950"
.text
.globl {NAME}_kernel
.p2align 8
.type {NAME}_kernel,@function
{NAME}_kernel:
""" + a.text() + f""".section .rodata,"a"
.p2align 6
.amdhsa_kernel {NAME}_kernel
  .amdhsa_next_free_vgpr 256
  .amdhsa_next_free_sgpr 102
  .amdhsa_accum_offset 256
  .amdhsa_group_segment_fixed_size 0
  .amdhsa_kernarg_size 72
  .amdhsa_user_sgpr_count 2
  .amdhsa_user_sgpr_kernarg_segment_ptr 1
  .amdhsa_system_sgpr_workgroup_id_x 1
.end_amdhsa_kernel
"""
    return s

if __name__ == "__main__":
    out = sys.argv[1]
    for kv in sys.argv[2:]:
        k, v = kv.split("=")
        setattr(cfg, k, type(getattr(cfg, k))(int(v)))
    open(out, "w").write(build())
```

```python
import sys, math, struct
from asmlib import Asm

NAME = "concat_heads__spectral_gfnet__softmax_full_mha__prompt"

class Cfg:
    nh = 8
    stamps = False
    poll_limit = 1 << 17
    noA = 0
    probe = -1
    span = 0
    fine = 0
    padend = 0
    padmid = 0
    dbgwave = -1
    nbuf = 5
    wearly = 0
    touch = 1
    wdelay = 24
    tdelay = 0
    s6late = 1
    lsl = 4
    odefer = 1
    a2wait = 8
    a3wait = 8
    kvwait = 8
    kvrot = 3
    m1 = 14
    ramp = 1
    gate = 2
    wqe = 3
    wqp = 7
    tdefer = 1
    m2 = 10
    xas = 0
    bsleep = 4
    qst = 0x133
    wopf = 1
    kvp = 1
    owait = 4
    xrot = 0x06543210
    wrot = 1
    pace = 1
    xadefer = 0
    wpf = 0
    outsc = 0
    wqwarm = 1
    th_wo = 5
    th_u = 20
    th_wq = 2
    wqearly = 1
    th_w = 17
    th_xa = 4
    wfair = 8
    xearly = 14
    pre = 5
    aprio = 2
    force_fb = False
cfg = Cfg()

EPOCH = 0
KV = 0x20000; TS = 61440; VOFF = 28672
OBUF = 0x400000
TBUF = 0x600000
UBUF = 0x800000; USTR = 32768
FKV = 0x8000; FA1 = 0x1000; FO = 0x10000
STAMP = 0xB00000
WS_SIZE = 0x1000000
L_W = 0; L_WQ = 57344; L_X = 86016; L_Q = 151552; L_SYNC = 159744
LDS_SIZE = 160000
L_RED = 0
L_TB = L_WQ; L_YB = L_WQ + 8192; L_MS = 49152; L_TT = L_X + 4096; L_M = L_X + 61440
L_ZB = L_WQ; L_OB = 0
sWS, sWQKV, sX, sWR, sWI, sWO, sOUT = [f"s[{i}:{i+3}]" for i in (24, 28, 32, 36, 40, 44, 48)]
S_WAVE, S_XCD, S_IDX, S_H, S_R, S_W4 = "s56", "s57", "s58", "s59", "s60", "s61"
S_NONCE = "s[62:63]"
S_TO, S_BAR = "s64", "s65"
T0, T1, T2, T3, T4, T5 = "s66", "s67", "s68", "s69", "s22", "s23"
STAMP0 = 84

ZREADY = 24

def f2u(x): return struct.unpack("<I", struct.pack("<f", x))[0]
def lit(x): return "0x%08x" % f2u(x)
def V(a, n=1): return f"v{a}" if n == 1 else f"v[{a}:{a+n-1}]"

def srd(a, name, lo, size):
    i = int(name[2:name.index(":")])
    a(f"s_mov_b32 s{i}, s{lo}\ns_mov_b32 s{i+1}, s{lo+1}\ns_mov_b32 s{i+2}, {size}\ns_mov_b32 s{i+3}, 0x20000")

ROLE = [0]
def stamp(a, i, fine=0):
    if cfg.probe >= 0:
        if not fine and cfg.probe == ROLE[0] * 100 + i:
            a("s_memrealtime s[96:97]\ns_waitcnt lgkmcnt(0)")
        return
    if cfg.fine in (1, 2) and not fine and 3 <= i <= 11: return
    if cfg.fine == 4 and not fine and i in (1, 2, 3, 4, 5, 10, 11, 13): return
    if fine and cfg.fine != fine: return
    if cfg.stamps:
        a(f"s_memtime s[100:101]\ns_waitcnt lgkmcnt(0)\ns_mov_b32 s{STAMP0+i}, s100")

def st0():
    return f"s_mov_b32 s{STAMP0+15}, s100\ns_mov_b32 s{STAMP0}, s38" if cfg.stamps else ""

def dump_stamps(a, vt):
    if cfg.probe >= 0:
        if cfg.probe // 100 == ROLE[0]:
            L = a.lab("pr")
            a(f"s_sub_u32 s96, s96, s100\ns_add_u32 s96, s96, 2600\n{L}:\ns_memrealtime s[98:99]\ns_waitcnt lgkmcnt(0)\ns_sub_u32 s98, s98, s100\ns_cmp_lt_u32 s98, s96\ns_cbranch_scc1 {L}")
        return
    if cfg.span:
        a(f"s_memrealtime s[98:99]\ns_lshl_b32 {T0}, s2, 3\ns_add_u32 {T0}, {T0}, {S_WAVE}\ns_lshl_b32 {T0}, {T0}, 3\ns_add_u32 {T0}, {T0}, {STAMP}\ns_waitcnt lgkmcnt(0)")
        a(f"v_mov_b32 v{vt}, s100\nv_mov_b32 v{vt+1}, s98\nv_mov_b32 v{vt+2}, 0\ns_mov_b64 exec, 1\nbuffer_store_dwordx2 {V(vt,2)}, v{vt+2}, {sWS}, {T0} offen\ns_mov_b64 exec, -1")
    if not cfg.stamps: return
    a(f"s_memrealtime s[100:101]\ns_waitcnt lgkmcnt(0)\ns_mov_b32 s{STAMP0+14}, s100")
    if cfg.dbgwave >= 0:
        L = a.lab("nodbg")
        a(f"s_lshl_b32 {T0}, s2, 3\ns_add_u32 {T0}, {T0}, {S_WAVE}\ns_cmp_lg_u32 {T0}, {cfg.dbgwave}\ns_cbranch_scc1 {L}")
        a(f"v_mov_b32 v{vt+4}, 0\ns_mov_b64 exec, 1")
        for i in range(1, 16):
            a(f"s_sub_u32 {T1}, s{STAMP0+i}, s{STAMP0 + (15 if i >= 14 else 0)}\nv_mov_b32 v{vt}, {T1}\nglobal_store_dword v{vt+4}, v{vt}, s[18:19] offset:{4*i}")
        a(f"s_mov_b64 exec, -1\n{L}:")
    a(f"s_lshl_b32 {T0}, s2, 3\ns_add_u32 {T0}, {T0}, {S_WAVE}\ns_lshl_b32 {T0}, {T0}, 7\ns_add_u32 {T0}, {T0}, {STAMP}")
    a(f"v_mov_b32 v{vt+4}, 0\ns_mov_b64 exec, 1")
    for q in range(4):
        for i in range(4): a(f"v_mov_b32 v{vt+i}, s{STAMP0+4*q+i}")
        a(f"buffer_store_dwordx4 {V(vt,4)}, v{vt+4}, {sWS}, {T0} offen offset:{16*q}")
    a("s_mov_b64 exec, -1")

def padto(a, ticks):
    L = a.lab("pad")
    a(f"{L}:\ns_memrealtime s[100:101]\ns_waitcnt lgkmcnt(0)\ns_sub_u32 s100, s100, s{STAMP0+15}\ns_cmp_lt_u32 s100, {ticks}\ns_cbranch_scc1 {L}")

def poll_issue(vaddr, soff, vt, n):
    return f"""v_mov_b32 v{vt}, 0
v_mov_b32 v{vt+1}, 0
s_bfm_b64 exec, {n}, 0
buffer_atomic_or_x2 {V(vt,2)}, {vaddr}, {sWS}, {soff} offen sc0 sc1
s_mov_b64 exec, -1"""

def poll_check(vt, n):
    return f"v_cmp_ne_u64 vcc, {S_NONCE}, {V(vt,2)}\ns_and_b32 vcc_lo, vcc_lo, {hex((1 << n) - 1)}"

def poll(a, vaddr, soff, vt, n, code, sleep=2):
    L, Dn = a.lab("poll"), a.lab("polld")
    a(f"""s_mov_b32 {S_TO}, {cfg.poll_limit}
{L}:
{poll_issue(vaddr, soff, vt, n)}
s_waitcnt vmcnt(0)
{poll_check(vt, n)}
s_cbranch_scc0 {Dn}
s_sleep {sleep}
s_sub_u32 {S_TO}, {S_TO}, 1
s_cbranch_scc0 {L}
s_mov_b32 {S_TO}, {code}
s_branch L_fail
{Dn}:""")

def publish_wg(a, vsync, vone, off, vt, soff, vn, last=3):
    L = a.lab("pub")
    a(f"""s_mov_b64 exec, 1
ds_add_rtn_u32 v{vt}, {vsync}, {vone} offset:{off}
s_waitcnt lgkmcnt(0)
v_readfirstlane_b32 {T0}, v{vt}
s_cmp_eq_u32 {T0}, {last}
s_cselect_b64 exec, 1, 0
buffer_store_dwordx2 {V(vn,2)}, v{vn+2}, {sWS}, {soff} offen sc1
s_mov_b64 exec, -1""")

def flag(a, soff, vt):
    a(f"""v_mov_b32 v{vt}, s62
v_mov_b32 v{vt+1}, s63
v_mov_b32 v{vt+2}, 0
s_mov_b64 exec, 1
buffer_store_dwordx2 {V(vt,2)}, v{vt+2}, {sWS}, {soff} offen sc1
s_mov_b64 exec, -1""")

def flag2(a, soff, vn):
    a(f"s_mov_b64 exec, 1\nbuffer_store_dwordx2 {V(vn,2)}, v{vn+2}, {sWS}, {soff} offen sc1\ns_mov_b64 exec, -1")

def lwait(a, vsync, vt, target, code, sleep=0, off=0):
    L, Dn = a.lab("lw"), a.lab("lwd")
    a(f"""s_mov_b32 {S_TO}, {cfg.poll_limit * 8}
{L}:
ds_read_b32 v{vt}, {vsync} offset:{off}
s_waitcnt lgkmcnt(0)
v_readfirstlane_b32 {T0}, v{vt}
s_cmp_ge_u32 {T0}, {target}
s_cbranch_scc1 {Dn}
{"s_sleep %d" % sleep if sleep else ""}
s_sub_u32 {S_TO}, {S_TO}, 1
s_cbranch_scc0 {L}
s_mov_b32 {S_TO}, {code}
s_branch L_fail
{Dn}:""")

def lbar(a, vsync, vone, vt, code, sleep=0):
    L, Dn = a.lab("lb"), a.lab("lbd")
    a(f"""s_add_u32 {S_BAR}, {S_BAR}, 4
s_mov_b64 exec, 1
ds_add_u32 {vsync}, {vone}
s_mov_b64 exec, -1
s_mov_b32 {S_TO}, {cfg.poll_limit * 8}
{L}:
ds_read_b32 v{vt}, {vsync}
s_waitcnt lgkmcnt(0)
v_readfirstlane_b32 {T0}, v{vt}
s_cmp_ge_u32 {T0}, {S_BAR}
s_cbranch_scc1 {Dn}
{"s_sleep %d" % sleep if sleep else ""}
s_sub_u32 {S_TO}, {S_TO}, 1
s_cbranch_scc0 {L}
s_mov_b32 {S_TO}, {code}
s_branch L_fail
{Dn}:""")

def mfma(d, A, B, C=None):
    return f"v_mfma_f32_32x32x16_bf16 {V(d,16)}, {V(A,4)}, {V(B,4)}, {'0' if C is None else V(C,16)}"

def mod7(a, s, t):
    a(f"s_mul_i32 {t}, {s}, 9363\ns_lshr_b32 {t}, {t}, 16\ns_mul_i32 {t}, {t}, 7\ns_sub_u32 {s}, {s}, {t}")

def x_read_addrs(a, v0, vl, base_s, t):
    a(f"""v_and_b32 v{t}, 31, {vl}
v_lshrrev_b32 v{t+1}, 5, {vl}
v_bfe_u32 v{t+2}, {vl}, 1, 3
v_xor_b32 v{t+1}, v{t+1}, v{t+2}
v_lshlrev_b32 v{t}, 7, v{t}
v_add_u32 v{t}, {base_s}, v{t}""")
    for mm in range(4):
        a(f"v_xor_b32 v{t+2}, {2*mm}, v{t+1}\nv_lshl_add_u32 v{v0+mm}, v{t+2}, 4, v{t}")


S_HH, S_RR, S_J, S_P0, S_LC = "s52", "s53", "s54", "s55", "s3"

def prologue(a):
    a(f"""s_cmp_ge_u32 s2, 256
s_cbranch_scc1 L_end
s_load_dwordx16 s[4:19], s[0:1], 0
s_load_dwordx2 s[20:21], s[0:1], 64""")
    if cfg.span or cfg.probe >= 0: a("s_memrealtime s[100:101]")
    if cfg.stamps:
        a(f"s_memtime s[38:39]\ns_memrealtime s[100:101]")
        for i in range(1, 15): a(f"s_mov_b32 s{STAMP0+i}, 0")
    a(f"""s_lshr_b32 {S_IDX}, s2, 3
s_getpc_b64 s[70:71]
L_pc:
v_lshrrev_b32 v3, 5, v0
v_lshl_add_u32 v3, {S_IDX}, 4, v3
v_lshlrev_b32 v3, 7, v3
v_min_u32 v3, L_codeend-L_pc-4, v3
global_load_dword v255, v3, s[70:71]
v_lshrrev_b32 v2, 6, v0
v_and_b32 v1, 63, v0
v_readfirstlane_b32 {S_WAVE}, v2
s_and_b32 {S_XCD}, s2, 7
s_and_b32 {S_HH}, {S_IDX}, 7
s_lshr_b32 {S_RR}, {S_IDX}, 3
s_and_b32 {T5}, {S_XCD}, 1
s_lshl_b32 {S_H}, {T5}, 3
s_add_u32 {S_H}, {S_H}, {S_HH}
s_lshl_b32 {T0}, {S_HH}, 2
s_cmp_eq_u32 {T5}, 0
s_cselect_b32 {S_LC}, 0x67543210, s2
s_cselect_b32 {S_LC}, {S_LC}, 0x65432170
s_lshr_b32 {S_LC}, {S_LC}, {T0}
s_and_b32 {S_LC}, {S_LC}, 7
s_and_b32 {S_W4}, {S_WAVE}, 3
s_cmp_ge_u32 {S_WAVE}, 4
s_cbranch_scc1 L_roleA""")

def nonce(a):
    a(f"""s_waitcnt lgkmcnt(0)
s_mul_i32 s62, s62, 0x9E3779B1
s_add_u32 s62, s62, 0x7F4A7C15
s_mul_i32 s63, s63, 0x85EBCA6D
s_add_u32 s63, s63, 0x165667B1""")

def role_B(a):
    X = 16; ACC = 128; WB = 160; PK = 224
    SC = 70
    S_XL, S_TILE, S_I = "s77", "s78", "s79"
    TO = 36
    S_WM, S_WO, S_DM, S_DO = "s80", "s81", "s82", "s83"
    a(f"""s_setprio 3
s_mul_i32 {S_J}, {T5}, 7
s_add_u32 {S_J}, {S_J}, {S_LC}
v_lshrrev_b32 v8, 3, v1
v_and_b32 v9, 7, v1
v_mul_u32_u24 v2, 2688, v8
v_bfe_u32 v3, v1, 4, 1
v_lshlrev_b32 v3, 2, v3
v_xor_b32 v3, v9, v3
v_lshl_add_u32 v2, v3, 4, v2
s_lshl_b32 {T0}, {S_J}, 7
s_mul_i32 {T1}, {S_W4}, {8*2688}
s_add_u32 {T0}, {T0}, {T1}
s_add_u32 {T0}, {T0}, 896
v_add_u32 v2, {T0}, v2
s_lshl_b32 {T2}, {S_RR}, 3
s_lshr_b32 {T0}, {0xD66D0770 if cfg.wrot else 0x70707070}, {T2}
s_bfe_u32 {T1}, {T0}, 0x40004
s_and_b32 {T0}, {T0}, 15
s_lshl_b32 {T3}, {S_W4}, 10
s_lshl_b32 {T2}, {T0}, 12
s_add_u32 m0, {T2}, {T3}
s_mul_i32 {S_I}, {T0}, {32*2688}
s_lshl_b32 {T2}, {T1}, 12
s_add_u32 {S_WM}, {T2}, {T3}
s_mul_i32 {S_WO}, {T1}, {32*2688}
s_cmp_ge_u32 {S_RR}, {2 if cfg.wrot else 4}
s_cselect_b32 {T0}, -1, 1
s_lshl_b32 {S_DM}, {T0}, 12
s_mul_i32 {S_DO}, {T0}, {32*2688}
s_cmp_eq_u32 {S_LC}, 7
s_cselect_b32 s30, 0, {448 * 2688}
s_mov_b32 s31, 0x20000
s_waitcnt lgkmcnt(0)
{st0()}
s_mov_b64 s[28:29], s[12:13]""")
    def x_m0(i, j): return f"s_add_u32 m0, {S_XL}, {(i%4)*4096 + j*1024}"
    def x_ld(i, j): return f"buffer_load_dwordx4 v{4+j}, {sX}, s{SC+i} offen lds"
    def sc_next(i): return f"s_add_u32 s{SC+i}, s{SC+i-1}, 128\ns_cmp_eq_u32 s{SC+i}, 896\ns_cselect_b32 s{SC+i}, 0, s{SC+i}"
    def w_base(i): return f"v_lshl_add_u32 v12, s{SC+i}, 6, v14\nv_xor_b32 v13, 64, v12"
    def setup2():
        a(f"""s_mov_b32 s34, {2048*896}
s_mov_b32 s35, 0x20000
s_lshr_b32 {S_R}, {S_XCD}, 1
s_lshl_b32 {S_R}, {S_R}, 2
s_add_u32 {S_R}, {S_R}, {S_RR}
s_lshl_b32 {S_TILE}, {S_R}, 2
s_add_u32 {S_TILE}, {S_TILE}, {S_W4}
v_lshrrev_b32 v10, 4, v1
v_xor_b32 v10, v9, v10
v_xor_b32 v11, 4, v10
v_mul_u32_u24 v12, 896, v8
s_mul_i32 {T2}, {S_TILE}, {32*896}
v_add_u32 v12, {T2}, v12
v_lshl_add_u32 v4, v10, 4, v12
v_lshl_add_u32 v5, v11, 4, v12
v_add_u32 v5, {8*896}, v5
v_add_u32 v6, {16*896}, v4
v_add_u32 v7, {16*896}, v5
s_lshl_b32 {T2}, {S_HH}, 2
s_lshr_b32 s{SC}, {cfg.xrot}, {T2}
s_and_b32 s{SC}, s{SC}, 7
s_lshl_b32 s{SC}, s{SC}, 7
s_lshl_b32 {S_XL}, {S_W4}, 14
s_add_u32 {S_XL}, {S_XL}, {L_X}""")
        for i in range(1, 7): a(sc_next(i))
        x_read_addrs(a, 8, "v1", S_XL, 12)
        srd(a, sWS, 20, WS_SIZE)
        a(f"""v_lshrrev_b32 v12, 5, v1
v_lshlrev_b32 v12, 3, v12
v_bfe_u32 v13, v1, 2, 2
v_add_u32 v12, v12, v13
v_bfe_u32 v13, v1, 4, 1
v_lshlrev_b32 v13, 5, v13
v_and_b32 v18, 1, v1
v_bfe_u32 v19, v1, 1, 1
v_lshl_add_u32 v15, v18, 4, v13
v_lshl_add_u32 v15, v19, 3, v15
v_lshl_add_u32 v14, v18, 3, v13
v_lshl_add_u32 v14, v19, 4, v14
s_cmp_eq_u32 {T5}, 1
s_cselect_b64 vcc, -1, 0
v_cndmask_b32 v14, v15, v14, vcc
v_lshl_add_u32 v15, v12, 6, v15
v_add_u32 v15, {L_WQ}, v15
v_bfe_u32 v13, v1, 3, 1
v_lshl_add_u32 v14, v13, 6, v14
v_lshl_add_u32 v14, v12, 7, v14""")
        a(f"""v_lshrrev_b32 v253, 2, v1
v_mul_u32_u24 v253, 2688, v253
v_and_b32 v254, 3, v1
v_lshl_add_u32 v253, v254, 4, v253
s_mul_i32 {S_P0}, {S_H}, 7
s_lshr_b32 {S_P0}, {S_P0}, 1
s_lshl_b32 s80, {S_P0}, 4
s_mul_i32 s81, {S_W4}, {16*2688}
s_add_u32 s80, s80, s81
v_add_u32 v253, s80, v253
s_lshl_b32 s80, {S_W4}, 10
s_add_u32 s80, s80, {L_WQ}
s_and_b32 s81, {S_P0}, 7
s_cmp_gt_u32 s81, 4
s_cselect_b32 s81, 1, 0
s_nop 0""")
        a(w_base(0))
        a(f"v_mov_b32 v250, {L_SYNC}\nv_mov_b32 v251, 1\nv_mov_b32 v246, 0\ns_mov_b32 {S_BAR}, 0")
    VK, VV, VF, VL = 240, 241, 242, 243
    PG = ["s4", "s5", "s6", "s7"]; S_FL = "s8"
    def setup3():
        a(f"""v_lshlrev_b32 v{VL}, 4, v1
s_lshl_b32 {T0}, {S_P0}, 9
v_add_u32 v{VK}, {T0}, v{VL}
s_lshl_b32 {T0}, {S_H}, 11
s_add_u32 {T0}, {T0}, {VOFF}
v_add_u32 v{VV}, {T0}, v{VL}
s_lshr_b32 {T1}, {S_P0}, 3
s_add_u32 {T0}, {S_P0}, 3
s_lshr_b32 {T0}, {T0}, 3
s_sub_u32 {T0}, {T0}, {T1}
v_and_b32 v{VF}, 1, v1
v_mul_u32_u24 v{VF}, {T0}, v{VF}
v_bfe_u32 v18, v1, 1, 1
v_mul_u32_u24 v18, 7, v18
v_add_u32 v{VF}, v{VF}, v18
v_lshlrev_b32 v{VF}, 7, v{VF}
s_and_b32 {T0}, {S_R}, 12
s_add_u32 {T0}, {T0}, {S_W4}
s_lshl_b32 {T0}, {T0}, 4
s_add_u32 {T0}, {T0}, {T1}
s_lshl_b32 {T0}, {T0}, 7""")
        for g in range(4):
            a(f"s_add_u32 {PG[g]}, {T0}, {FKV}")
            if g < 3: a(f"s_add_u32 {T0}, {T0}, 8192\ns_and_b32 {T0}, {T0}, 32767")
        a(f"s_lshr_b32 {T2}, {S_R}, 2\ns_mul_i32 {T1}, {S_W4}, {4*TS}\ns_add_u32 {T1}, {T1}, {KV}")
        for p in range(4): a(f"s_add_u32 {T0}, {S_RR}, {p}\ns_and_b32 {T0}, {T0}, 3\ns_mul_i32 s{TO+12+p}, {T0}, {TS}")
        for g in range(4):
            a(f"s_mul_i32 {T0}, {T2}, {16*TS}\ns_add_u32 {T0}, {T0}, {T1}\ns_add_u32 {T2}, {T2}, 1\ns_and_b32 {T2}, {T2}, 3")
            for p in range(4):
                a(f"s_add_u32 s{TO+4*g+p}, {T0}, " + (f"{p*TS}" if (g == 0 or cfg.kvrot == 0) else f"s{TO+12+p}"))
        a(f"""s_cmp_eq_u32 {S_LC}, 7
s_cselect_b32 {T1}, 15, {S_J}
s_lshl_b32 {T0}, {S_R}, 4
s_add_u32 {T0}, {T0}, {T1}
s_lshl_b32 {T0}, {T0}, 7
s_add_u32 {S_FL}, {T0}, {FKV}""")
    stamp(a, 3, 2)
    for i in range(14):
        a(f"buffer_load_dwordx4 v2, {sWQKV}, {S_I} offen lds")
        if i == 6: a(f"s_mov_b32 m0, {S_WM}\ns_mov_b32 {S_I}, {S_WO}")
        elif i < 13: a(f"s_add_u32 m0, m0, {S_DM}\ns_add_u32 {S_I}, {S_I}, {S_DO}")
        if i == 10:
            keep = a.L[-2:]; del a.L[-2:]
            stamp(a, 4, 2)
            a("s_barrier\ns_mov_b64 s[32:33], s[10:11]")
            if cfg.fine != 2: a(f"s_load_dwordx2 s[62:63], s[20:21], {EPOCH}")
            stamp(a, 5, 2)
            setup2()
            stamp(a, 6, 2)
            a.L += keep
    stamp(a, 8, 2)
    a(f"s_waitcnt vmcnt({cfg.wfair})")
    stamp(a, 10, 2)
    for c in range(2):
        for j in range(4): a(x_m0(c, j)); a("s_nop 0"); a(x_ld(c, j))
    stamp(a, 11, 2)
    setup3()
    if cfg.fine == 2: a(f"s_load_dwordx2 s[62:63], s[20:21], {EPOCH}")
    nonce(a)
    a("v_mov_b32 v244, s62\nv_mov_b32 v245, s63\nds_write_b64 v250, v[244:245] offset:64")
    def w_base(i): return f"v_lshl_add_u32 v12, s{SC+i}, 6, v14\nv_xor_b32 v13, 64, v12"
    def wq(i): return f"s_add_u32 m0, s80, {i*4096}\ns_mul_i32 s82, s{SC+i}, {64*21}\nbuffer_load_dwordx4 v253, {sWQKV}, s82 offen lds"
    a(f"s_mov_b32 s30, {448 * 2688}")
    def w_reads(i):
        out = []
        for mm in range(4):
            for ct in range(2):
                for hf in range(2):
                    d = WB + (i % 2) * 32 + mm * 8 + ct * 4 + hf * 2
                    out.append(f"ds_read_b64_tr_b16 {V(d,2)}, v{12+ct} offset:{mm*2048 + hf*512}")
        return out
    def x_reads(i):
        return [f"ds_read_b128 {V(X+16*i+4*mm,4)}, v{8+mm} offset:{(i%4)*4096}" for mm in range(4)]
    a(f"""s_waitcnt vmcnt(8)""")
    stamp(a, 1)
    a(f"s_mov_b64 exec, 1\nds_add_u32 v250, v251\ns_mov_b64 exec, -1")
    for j in range(2): a(x_m0(2, j)); a("s_nop 0"); a(x_ld(2, j))
    lwait(a, "v250", 252, 4, 19)
    stamp(a, 3, 1)
    wr0 = w_reads(0)
    for s_ in wr0[:8]: a(s_)
    a("s_waitcnt vmcnt(6)")
    for s_ in x_reads(0) + wr0[8:]: a(s_)
    a(f"s_cmp_eq_u32 {T5}, 1\ns_cbranch_scc1 L_kvV")
    for var in ("K", "V"):
        if var == "V": a("L_kvV:")
        late = [f"s_mul_i32 {T4}, {S_TILE}, {TS}", f"s_add_u32 {T4}, {T4}, {KV}", "v_lshlrev_b32 v7, 4, v1"]
        if var == "K":
            late += [f"s_lshl_b32 {T0}, {S_LC}, 12", f"s_add_u32 {T4}, {T4}, {T0}"]
        else:
            late += f"""s_lshl_b32 {T1}, {S_LC}, 6
v_and_b32 v4, 31, v1
v_add_u32 v4, {T1}, v4                    ; col (ct0)
v_add_u32 v5, 32, v4
v_lshrrev_b32 v3, 5, v1
v_lshlrev_b32 v3, 9, v3
v_add_u32 v3, {VOFF}, v3""".split("\n")
            for r in (4, 5):
                late += f"""v_mul_u32_u24 v2, 2341, v{r}
v_lshrrev_b32 v2, 16, v2
v_mul_u32_u24 v2, {2048 - 28*16}, v2
v_lshl_add_u32 v{r}, v{r}, 4, v2
v_add_u32 v{r}, v{r}, v3""".split("\n")
            late += f"""s_lshl_b32 {T1}, {S_LC}, 2
s_lshr_b32 {T2}, 0xDB96420, {T1}
s_and_b32 {T2}, {T2}, 15                  ; first head that ends in this line-column
s_lshr_b32 {T3}, 0x3223222, {T1}
s_and_b32 {T3}, {T3}, 15
s_lshl_b32 {T3}, {T3}, 4
v_lshrrev_b32 v6, 2, v1
v_lshlrev_b32 v6, 9, v6
v_and_b32 v2, 3, v1
v_lshl_add_u32 v6, v2, 4, v6
s_lshl_b32 {T2}, {T2}, 11
s_add_u32 {T2}, {T2}, {VOFF + 28*16}
v_add_u32 v6, {T2}, v6
v_cmp_eq_u32 vcc, 0, v2
v_mov_b32 v2, 0x3f803f80
s_nop 0
v_cndmask_b32 v236, 0, v2, vcc
v_cndmask_b32 v237, 0, v2, vcc
v_cndmask_b32 v238, 0, v2, vcc
v_cndmask_b32 v239, 0, v2, vcc""".split("\n")
        for i in range(7):
            a("s_waitcnt lgkmcnt(0)")
            stamp(a, 4 + i, 1)
            fill = [[] for _ in range(8)]
            pre = [[] for _ in range(8)]
            if i == 0:
                dq = [(c, j) for c in range(2, 7) for j in range(4)][2:]
                issued_q = [(1, j) for j in range(4)] + [(2, 0), (2, 1)]
            def take(g):
                if dq and dq[0][0] <= i + 4:
                    e = dq.pop(0); issued_q.append(e)
                    pre[g].append(x_m0(*e)); fill[g].insert(0, x_ld(*e))
            had = bool(dq)
            if i + 1 < 7:
                wr = w_reads(i + 1)
                fill[0] += [w_base(i + 1)] + wr[0:3]
                fill[1] += wr[3:8]; fill[2] += wr[8:12]; fill[3] += wr[12:16]
                for g in ((0, 1, 2, 3, 4) if i == 0 else (0,)): take(g)
                if i == 4:
                    fill[1].append("s_cmp_eq_u32 s81, 1\ns_cselect_b64 exec, -1, 0\n" + "\n".join(wq(q) for q in range(cfg.wqe)) + "\ns_mov_b64 exec, -1")
                    issued_q += [(99, q) for q in range(cfg.wqe)]
                last = max(q for q, e in enumerate(issued_q) if e[0] == i + 1)
                fill[4] += [f"s_waitcnt vmcnt({len(issued_q) - 1 - last})"] + x_reads(i + 1)
            for g in range(5, 8): take(g)
            if i == 4:
                assert not had
                fill[0].insert(0, "s_mov_b64 exec, 1\nds_add_u32 v250, v251 offset:8\ns_mov_b64 exec, -1")
            if not had:
                for g in range(5 if i < 6 else 0, 8):
                    for q in range(6):
                        if late: fill[g].append(late.pop(0))
            for mm in range(4):
                for ct in range(2):
                    xr = X + 16*i + 4*mm; wr_ = WB + (i % 2) * 32 + mm * 8 + ct * 4
                    c = None if (i == 0 and mm == 0) else ACC + 16*ct
                    for s_ in pre[2*mm + ct]: a(s_)
                    a(mfma(ACC + 16*ct, wr_, xr, c) if var == "K" else mfma(ACC + 16*ct, xr, wr_, c))
                    for s_ in fill[2*mm + ct]: a(s_)
        assert not late
        stamp(a, 11, 1)
        a(f"s_cmp_eq_u32 {S_LC}, 7\ns_cbranch_scc1 L_kvnone")
        if var == "V":
            a(f"s_bfm_b64 exec, {T3}, 0\nbuffer_store_dwordx4 v[236:239], v6, {sWS}, {T4} offen sc1\ns_mov_b64 exec, -1")
        for ct in range(2):
            for j in range(2):
                for q in range(4):
                    z = 8*ct + 4*j + q
                    a(f"v_cvt_pk_bf16_f32 v{PK+z}, v{ACC+2*z}, v{ACC+2*z+1}")
                if var == "K":
                    a(f"buffer_store_dwordx4 {V(PK+8*ct+4*j,4)}, v7, {sWS}, {T4} offen offset:{ct*2048+j*1024} sc1")
                else:
                    a(f"buffer_store_dwordx4 {V(PK+8*ct+4*j,4)}, v{4+ct}, {sWS}, {T4} offen offset:{j*1024} sc1")
        if var == "K": a("s_branch L_kvdone\nL_kvnone:\ns_waitcnt vmcnt(0)\ns_branch L_kvdone")
    a("L_kvdone:\ns_mov_b64 exec, 1\nds_add_u32 v250, v251\ns_mov_b64 exec, -1")
    stamp(a, 2)
    NB = cfg.nbuf
    Q = 16; O = 48; SA = 112; KVB = 144; P0 = KVB + 16*NB; P1 = P0 + 4
    assert P1 + 4 <= 240
    QP = 224
    S_LD = "s9"
    def kv_loads(t, so=None):
        b = KVB + 16 * (t % NB); so = so or f"s{TO+t}"
        return [f"buffer_load_dwordx4 {V(b+4*j,4)}, v{VK if j < 2 else VV}, {sWS}, {so} offen offset:{(j%2)*1024} sc1" for j in range(4)]
    pl = poll_issue(f"v{VF}", PG[0], 10, 4)
    QW = 176
    def qsync(target):
        a("s_mov_b64 exec, 1\nds_add_u32 v250, v251 offset:4\ns_mov_b64 exec, -1")
        lwait(a, "v250", 5, target, 14, off=4)
    def qmma(c0, c1, check):
        rd = [f"ds_read_b64_tr_b16 {V(QW+(i%3)*16+mm*4+hf*2,2)}, v15 offset:{i*4096+mm*1024+hf*256}" for i in range(c0, c1) for mm in range(4) for hf in range(2)]
        iss = min(len(rd), 12)
        for s_ in rd[:iss]: a(s_)
        for m in range(4 * (c1 - c0)):
            a(f"s_waitcnt lgkmcnt({iss - (2*m + 2)})")
            a(mfma(ACC, QW + ((c0 + m // 4) % 3) * 16 + 4*(m % 4), X + 16*c0 + 4*m, None if c0 + m == 0 else ACC))
            for s_ in rd[iss:iss+2]: a(s_)
            iss = min(len(rd), iss + 2)
            if m == check:
                Lf, Lg = a.lab("pf"), a.lab("pg")
                a(f"s_waitcnt vmcnt(0)\n{poll_check(10, 4)}\ns_cbranch_scc1 {Lf}\ns_mov_b32 {S_LD}, 1")
                for t in range(2):
                    for s_ in kv_loads(t): a(s_)
                a(f"s_branch {Lg}\n{Lf}:\n{pl}\n{Lg}:")
    def publish(n):
        a(f"s_waitcnt vmcnt({n})")
        publish_wg(a, "v250", "v251", 16, 5, S_FL, 244)
        stamp(a, 3)
        a(f"s_sleep {cfg.kvwait}\n{pl}\ns_waitcnt vmcnt(2)")
    E = cfg.wqe
    a(f"s_mov_b32 {S_LD}, 0\ns_cmp_eq_u32 s81, 1\ns_cbranch_scc1 L_qtwo")
    for i in range(7): a(wq(i))
    publish(7)
    qsync(4)
    stamp(a, 4)
    qmma(0, 7, cfg.m2)
    a("s_branch L_qdone\nL_qtwo:\ns_waitcnt vmcnt(4)")
    qsync(4)
    for i in range(E, 7): a(wq(i))
    qmma(0, E, -1)
    publish(7 - E)
    qsync(8)
    stamp(a, 4)
    qmma(E, 7, min(cfg.m2, 6))
    a("L_qdone:")
    stamp(a, 5)
    a(f"""v_mov_b32 v12, {lit(28 ** -0.5 * math.log2(math.e))}
v_mov_b32 v13, v12
s_lshl_b32 {T0}, {S_W4}, 11
s_add_u32 {T0}, {T0}, {L_Q}
v_add_u32 v9, {T0}, v{VL}
v_mov_b32 v2, v250
v_mov_b32 v3, 1
v_mov_b32 v7, v{VL}
s_bitcmp1_b32 {S_H}, 0""")
    for hf in range(2):
        for q in range(8*hf, 8*hf+8, 2): a(f"v_pk_mul_f32 {V(ACC+q,2)}, {V(ACC+q,2)}, v[12:13]")
        for q in range(4*hf, 4*hf+4): a(f"v_cvt_pk_bf16_f32 v{QP+q}, v{ACC+2*q}, v{ACC+2*q+1}")
        if hf == 0: a(f"s_cselect_b32 exec_lo, -1, 0\ns_mov_b32 exec_hi, 0\nv_mov_b32 v{QP}, 0\nv_mov_b32 v{QP+1}, 0\ns_mov_b64 exec, -1")
        else: a(f"s_cselect_b32 exec_hi, 0, -1\ns_mov_b32 exec_lo, 0\nv_mov_b32 v{QP+6}, 0\nv_mov_b32 v{QP+7}, 0\ns_mov_b64 exec, -1")
        a(f"ds_write_b128 v9, {V(QP+4*hf,4)} offset:{1024*hf}")
    a(f"""s_mov_b64 exec, 1
ds_add_u32 v2, v3
s_mov_b64 exec, -1
s_cmp_eq_u32 {S_LD}, 1
s_cbranch_scc1 L_kvloaded
s_waitcnt vmcnt(0)
{poll_check(10, 4)}
s_cbranch_scc0 L_kvready""")
    poll(a, f"v{VF}", PG[0], 10, 4, 1, sleep=2)
    a("L_kvready:")
    for t in range(2):
        for s_ in kv_loads(t): a(s_)
    a("L_kvloaded:\ns_mov_b64 exec, 1\nds_add_u32 v2, v3 offset:12\ns_mov_b64 exec, -1")
    for i in range(4):
        a(f"""s_add_u32 {T0}, {S_W4}, {i+1}
s_and_b32 {T0}, {T0}, 3
s_lshl_b32 {T1}, {T0}, 11
s_add_u32 {T1}, {T1}, {L_Q}
v_add_u32 v{232+i}, {T1}, v7
s_mul_i32 {T0}, {T0}, 12288
s_add_u32 {T0}, {T0}, {(i%3)*4096 + L_RED}
v_add_u32 v{10+i}, {T0}, v7""")
    stamp(a, 6)
    lwait(a, "v2", 5, 12, 15)
    a(f"s_mov_b32 {S_BAR}, 12")
    for i in range(4):
        a(f"ds_read_b128 {V(Q+8*i,4)}, v{232+i}\nds_read_b128 {V(Q+8*i+4,4)}, v{232+i} offset:1024")
    stamp(a, 7)
    a("s_waitcnt vmcnt(6) lgkmcnt(6)\ns_setprio 0")
    if cfg.padmid: padto(a, cfg.padmid)
    stamp(a, 8)
    a(mfma(SA, KVB, Q)); a(mfma(SA, KVB + 4, Q + 4, SA))
    a("s_waitcnt vmcnt(4) lgkmcnt(0)\ns_nop 9\n.p2align 3")
    sched = {}
    issued = 2
    for t in range(16):
        for i in (1, 2):
            if (i == 1 or t % cfg.ramp == 0) and issued <= min(15, t + NB - 1):
                sched[(t, i)] = issued; issued += 1
    first = {g: min(k for k, v in sched.items() if v == 4*g) for g in (1, 2, 3)}
    pollat = {(k[0] - 1, 0): g for g, k in first.items()}
    vq = [("t", 1)] * 4
    def after(tag): return len(vq) - 1 - max(q for q, e in enumerate(vq) if e == tag)
    assert NB >= 5
    units = [(t, i) for t in range(12) for i in range(4)] + [(t, i) for i in range(4) for t in range(12, 16)]
    firstuse = {}
    for n, (t, i) in enumerate(units): firstuse.setdefault(t, n)
    waitat = {n - 2: t for t, n in firstuse.items() if t > 0}
    kb = lambda tt: KVB + 16 * (tt % NB)
    redw = lambda i, q: f"ds_write_b128 v{10+i}, {V(O+16*i+4*q,4)} offset:{q*1024}"
    for n, (t, i) in enumerate(units):
        if n % 8 == 0 and n: stamp(a, n // 8, 3)
        cur = SA + 16 * (n % 2); nxt = SA + 16 * ((n + 1) % 2)
        ms = [None] * 4
        if n < 63:
            tn, inx = units[n + 1]
            ms[0] = mfma(nxt, kb(tn), Q + 8*inx); ms[1] = mfma(nxt, kb(tn) + 4, Q + 8*inx + 4, nxt)
        if n > 0:
            tp, ip = units[n - 1]
            ms[2] = mfma(O + 16*ip, kb(tp) + 12, P1, O + 16*ip)
        ms[3] = mfma(O + 16*i, kb(t) + 8, P0, None if t == 0 else O + 16*i)
        side = [None] * 4
        key = (n // 4, n % 4)
        if key in sched:
            assert n < 48
            tl = sched[key]
            if tl % 4 == 0:
                g = tl // 4
                a(f"s_waitcnt vmcnt({after(('p', g))})\nv_cmp_ne_u64 vcc, {S_NONCE}, v[14:15]\ns_cbranch_vccnz L_gate{g}\nL_gated{g}:\ns_nop 0")
            side = kv_loads(tl); vq += [("t", tl)] * 4
        if key in pollat:
            g = pollat[key]
            side[0] = f"buffer_load_dwordx2 v[14:15], v{VF}, {sWS}, {PG[g]} offen sc1"; vq.append(("p", g))
        sig = "\ns_mov_b64 exec, 1\nds_add_u32 v2, v3\ns_mov_b64 exec, -1"
        rdr = lambda q: f"ds_read_b128 {V(O+4*q,4)}, v13 offset:{q*1024}"
        if n == 56: side[0] = "s_setprio 3\ns_nop 0"
        if 53 <= n <= 56: side[1] = redw(0, n - 53)
        if n in (57, 58): side[1] = redw(1, 2*(n - 57)); side[3] = redw(1, 2*(n - 57) + 1) + (sig if n == 58 else "")
        if n == 60: side[1] = "ds_read_b32 v5, v2"
        if n == 61:
            a(f"s_waitcnt lgkmcnt(0)\nv_readfirstlane_b32 {T0}, v5\ns_cmp_ge_u32 {T0}, 16\ns_cbranch_scc0 L_redw\nL_redd:")
        if n in (61, 62):
            k_ = n - 61
            side = [redw(2, 2*k_), rdr(4*k_) + "\n" + rdr(4*k_+1), redw(2, 2*k_+1) + (sig if k_ else ""), rdr(4*k_+2) + "\n" + rdr(4*k_+3)]
        if n == 63: side[2] = "ds_read_b32 v5, v2"
        for p in range(4):
            if ms[p]: a(ms[p])
            if side[p]: a(side[p])
            for e in range(4):
                if n in waitat and p == 3 and e == 3:
                    a(f"s_waitcnt vmcnt({after(('t', waitat[n]))})\nv_exp_f32_e64 v{cur+4*p+e}, v{cur+4*p+e}")
                else:
                    a(f"v_exp_f32 v{cur+4*p+e}, v{cur+4*p+e}")
            pk = (P0, P0 + 2, P1, P1 + 2)[p]
            a(f"v_cvt_pk_bf16_f32 v{pk}, v{cur+4*p}, v{cur+4*p+1}\nv_cvt_pk_bf16_f32 v{pk+1}, v{cur+4*p+2}, v{cur+4*p+3}")
    a(f"s_waitcnt lgkmcnt(0)\nv_readfirstlane_b32 {T0}, v5")
    a(mfma(O + 48, kb(15) + 12, P1, O + 48))
    a(f"s_cmp_ge_u32 {T0}, 20\ns_cbranch_scc0 L_redw2\nL_redd2:")
    for q in range(8, 12): a(f"ds_read_b128 {V(O+4*q,4)}, v13 offset:{q*1024}")
    a("s_mov_b64 exec, 1\nds_add_u32 v2, v3\ns_mov_b64 exec, -1")
    stamp(a, 9)
    OO = O + 48
    a(f"""s_lshl_b32 {T3}, {S_TILE}, 4
s_add_u32 {T3}, {T3}, {S_H}
s_lshl_b32 {T4}, {T3}, 11
s_add_u32 {T4}, {T4}, {OBUF}
s_lshl_b32 {T3}, {S_R}, 4
s_add_u32 {T3}, {T3}, {S_H}
s_lshl_b32 {T3}, {T3}, 7
s_add_u32 {T3}, {T3}, {FO}
s_mov_b32 {T0}, {lit(2.0**-40)}
s_mov_b32 {T1}, {lit(2.0**30)}
s_movk_i32 {T2}, 0x1f8""")
    for q in range(0, 16, 2): a(f"v_pk_add_f32 {V(O+q,2)}, {V(O+q,2)}, {V(O+16+q,2)}")
    for q in range(0, 16, 2): a(f"v_pk_add_f32 {V(OO+q,2)}, {V(OO+q,2)}, {V(O+q,2)}")
    a("s_waitcnt lgkmcnt(1)")
    for q in (12, 0, 2, 4, 6, 8, 10, 14): a(f"v_pk_add_f32 {V(OO+q,2)}, {V(OO+q,2)}, {V(O+32+q,2)}")
    a(f"""v_mov_b32 v10, v{OO+12}
v_mov_b32 v11, v{OO+12}
v_pk_add_f32 v[12:13], {V(OO,2)}, {V(OO+2,2)}
v_pk_add_f32 v[14:15], {V(OO+4,2)}, {V(OO+6,2)}
v_permlane32_swap_b32 v10, v11
v_pk_add_f32 v[12:13], v[12:13], {V(OO+8,2)}
v_pk_add_f32 v[14:15], v[14:15], {V(OO+10,2)}
v_rcp_f32 v10, v11
v_pk_add_f32 v[12:13], v[12:13], {V(OO+12,2)}
v_pk_add_f32 v[14:15], v[14:15], {V(OO+14,2)}
v_cmp_le_f32 s[70:71], {T0}, v11
v_pk_add_f32 v[12:13], v[12:13], v[14:15]
v_cmp_ge_f32 s[72:73], {T1}, v11
v_add_f32 v12, v12, v13
v_cmp_class_f32 vcc, v12, {T2}
s_and_b64 s[70:71], s[70:71], s[72:73]
s_and_b64 vcc, vcc, s[70:71]
s_cmp_eq_u64 vcc, exec""")
    if cfg.force_fb: a("s_cmp_eq_u32 0, 1")
    a(f"s_cbranch_scc0 L_fallback\nL_fbdone:\nv_mov_b32 v11, v10")
    for hf in range(2):
        for q in range(8*hf, 8*hf+8, 2): a(f"v_pk_mul_f32 {V(OO+q,2)}, {V(OO+q,2)}, v[10:11]")
        for q in range(4*hf, 4*hf+4): a(f"v_cvt_pk_bf16_f32 v{O+q}, v{OO+2*q}, v{OO+2*q+1}")
        if hf: a(f"s_mov_b32 exec_lo, 0\nv_mov_b32 v{O+6}, 0\ns_mov_b32 exec_lo, -1")
        a(f"buffer_store_dwordx4 {V(O+4*hf,4)}, v7, {sWS}, {T4} offen offset:{1024*hf} sc1")
    stamp(a, 10)
    S_BP, S_CNT, S_DT = "s70", "s71", "s72"
    GS = 144; GC = 176; GP = 180; ZR = 196; AR = 112
    a(f"""s_lshl_b32 {S_BP}, {S_XCD}, 3
s_lshr_b32 {T0}, {S_IDX}, 2
s_add_u32 {S_BP}, {S_BP}, {T0}
s_and_b32 {T1}, {S_IDX}, 3
s_cmp_ge_u32 {T1}, 2
s_cselect_b32 {S_CNT}, 3, 4
s_lshl_b32 {S_DT}, {T1}, 2
s_cmp_eq_u32 {T1}, 3
s_cselect_b32 {S_DT}, 11, {S_DT}
s_add_u32 {S_DT}, {S_DT}, {S_W4}
v_bfe_u32 v5, v1, 2, 1
v_lshlrev_b32 v5, 4, v5
v_bfe_u32 v6, v1, 3, 2
v_lshl_add_u32 v5, v6, 2, v5
v_and_b32 v6, 3, v1
v_add_u32 v5, v5, v6
s_lshl_b32 {T0}, {S_DT}, 5
v_add_u32 v5, {T0}, v5                    ; d
v_lshlrev_b32 v9, 31, v5
v_xor_b32 v9, 0.5, v9                     ; 0.5*(-1)^d
v_cvt_f32_u32 v5, v5
v_mul_f32 v5, {lit(1/448)}, v5
v_lshrrev_b32 v4, 5, v1
v_cvt_f32_u32 v6, v4
v_mul_f32 v6, v5, v6
v_mul_f32 v6, 4.0, v6
v_mul_f32 v{GC}, {lit(16.0)}, v5
v_cos_f32 v{GC}, v{GC}""")
    for j in range(16): a(f"v_fmamk_f32 v{GS+j}, v5, {lit(float(16*(j//8) + 8*((j%8)//4) + j%4))}, v6")
    a(f"v_add_f32 v{GC}, v{GC}, v{GC}")
    for j in range(16): a(f"v_sin_f32_e64 v{GS+16+j}, -v{GS+j}\nv_cos_f32 v{GS+j}, v{GS+j}")
    a(f"v_mov_b32 v{GC+1}, v{GC}\nv_mov_b32 v240, s62\nv_mov_b32 v241, s63\nv_mov_b32 v242, 0\ns_waitcnt vmcnt(0)")
    publish_wg(a, "v2", "v3", 20, 5, T3, 240)
    stamp(a, 11)
    a(f"s_setprio 0\ns_cmp_ge_u32 {S_W4}, {S_CNT}\ns_cbranch_scc1 L_bend")
    srd(a, sOUT, 16, 2048 * 1792)
    a(f"""v_add_u32 v8, {L_ZB}, v7
v_and_b32 v6, 31, v1
v_mul_u32_u24 v6, {64*1792}, v6
v_lshl_add_u32 v6, v4, 5, v6
s_mul_i32 {T4}, {S_BP}, 1792
s_lshl_b32 {T1}, {S_DT}, 6
s_add_u32 {T4}, {T4}, {T1}""")
    lwait(a, "v2", 5, 4, 17, sleep=1, off=132)
    stamp(a, 13)
    order = [4*(q//4) + 2*(q % 2) + ((q//2) % 2) for q in range(28)]
    for q in range(8): a(f"ds_read_b128 {V(ZR+4*q,4)}, v8 offset:{order[q]*1024}")
    a(".p2align 3")
    for q in range(28):
        rho = q % 2; st = q // 2
        cur = GS + 16*rho + 8*(st % 2); oth = GS + 16*rho + 8*((st + 1) % 2); gp = GP + 4*(q % 4)
        if st >= 2:
            for z in range(0, 8, 2):
                a(f"v_pk_fma_f32 {V(cur+z,2)}, {V(GC,2)}, {V(oth+z,2)}, {V(cur+z,2)} neg_lo:[0,0,1] neg_hi:[0,0,1]")
        for z in range(4): a(f"v_cvt_pk_bf16_f32 v{gp+z}, v{cur+2*z}, v{cur+2*z+1}")
        if st == 0:
            a(f"s_mov_b32 exec_hi, 0\nv_cvt_pk_bf16_f32 v{gp}, {'v9' if rho else '0.5'}, v{cur+1}\ns_mov_b32 exec_hi, -1")
        if q >= 1:
            p = q - 1
            if p % 4 == 0: a(f"s_waitcnt lgkmcnt({max(0, min(4, 24-p))})\ns_nop 0")
            a(mfma(AR, GP + 4*(p % 4), ZR + 4*(p % 8), None if p == 0 else AR))
            if p + 8 < 28: a(f"ds_read_b128 {V(ZR+4*(p%8),4)}, v8 offset:{order[p+8]*1024}")
    a(mfma(AR, GP + 4*(27 % 4), ZR + 4*(27 % 8), AR))
    osc = ("", " sc1", " nt", " sc0 sc1")[cfg.outsc]
    if cfg.odefer and not cfg.noA: lwait(a, "v2", 5, 8, 36, sleep=2, off=132)
    for hf in range(2):
        for q in range(4*hf, 4*hf+4): a(f"v_cvt_pk_bf16_f32 v{GS+q}, v{AR+2*q}, v{AR+2*q+1}")
        a(f"buffer_store_dwordx4 {V(GS+4*hf,4)}, v6, {sOUT}, {T4} offen offset:{16*hf}{osc}")
    a("L_bend:")
    stamp(a, 12)
    dump_stamps(a, 240)
    a("s_endpgm")
    a("L_redw:")
    lwait(a, "v2", 5, 16, 2)
    a("s_branch L_redd\nL_redw2:")
    lwait(a, "v2", 5, 20, 2)
    a("s_branch L_redd2")
    for g in (1, 2, 3):
        a(f"L_gate{g}:")
        poll(a, f"v{VF}", PG[g], 14, 4, 25, sleep=2)
        a(f"s_branch L_gated{g}")
    a("L_fallback:")
    QO = Q + 24; KB = KVB; M = 15; S_SO = "s70"
    a(f"v_mov_b32 v{M}, 0xff800000\ns_mov_b32 {S_SO}, {KV}\nL_fb1:")
    for s_ in kv_loads(0, S_SO)[:2]: a(s_)
    a(f"s_add_u32 {S_SO}, {S_SO}, {TS}\ns_waitcnt vmcnt(0)")
    a(mfma(SA, KB, QO)); a(mfma(SA, KB + 4, QO + 4, SA))
    for q in range(0, 16, 2): a(f"v_max3_f32 v{M}, v{M}, v{SA+q}, v{SA+q+1}")
    a(f"""s_cmp_lt_u32 {S_SO}, {KV + 64*TS}
s_cbranch_scc1 L_fb1
v_mov_b32 v14, v{M}
v_permlane32_swap_b32 v14, v{M}
v_max_f32 v{M}, v14, v{M}
s_mov_b32 {S_SO}, {KV}""")
    for q in range(16): a(f"v_mov_b32 v{OO+q}, 0")
    a("L_fb2:")
    for s_ in kv_loads(0, S_SO): a(s_)
    a(f"s_add_u32 {S_SO}, {S_SO}, {TS}\ns_waitcnt vmcnt(0)")
    a(mfma(SA, KB, QO)); a(mfma(SA, KB + 4, QO + 4, SA))
    for q in range(16): a(f"v_sub_f32 v{SA+q}, v{SA+q}, v{M}")
    for q in range(16): a(f"v_exp_f32 v{SA+q}, v{SA+q}")
    for q in range(8): a(f"v_cvt_pk_bf16_f32 v{P0+q}, v{SA+2*q}, v{SA+2*q+1}")
    a(mfma(OO, KB + 8, P0, OO)); a(mfma(OO, KB + 12, P1, OO))
    a(f"""s_cmp_lt_u32 {S_SO}, {KV + 64*TS}
s_cbranch_scc1 L_fb2
v_mov_b32 v10, v{OO+12}
v_mov_b32 v11, v{OO+12}
v_permlane32_swap_b32 v10, v11
v_rcp_f32 v10, v11
s_branch L_fbdone""")

def role_A(a):
    FB = 16; GS0 = 48; M = 72; F = 88; ACC = 200; TMP = 216
    S_BP = "s78"
    S_CG, S_CNT, S_CB, S_DT, S_TASK, S_K1 = "s79", "s80", "s81", "s82", "s83", "s73"
    S_B, S_KT16 = S_BP, S_DT
    (PN, _, _, P_TST, P_W, P_F1, P_TLD, P_TBW, P_TBR, P_TTW, P_TTR, P_UST, P_F2, P_WOD, P_WOR, P_WOR2,
     P_ZW0, P_ZW1, P_PF, P_BC, P_PS, _, P_LS, P_DUM) = range(232, 256)
    sc = 1.0 / (2048 * 448)
    def albar(code): lbar(a, "v14", "v15", P_LS, code, sleep=1)
    def burst(items, th):
        a("s_setprio 0")
        for q, it in enumerate(items):
            if q >= th: a(f"s_waitcnt vmcnt({th-1})")
            a(it)
        a(f"s_setprio {cfg.aprio}")
    SB = "s[74:75]"
    def stage_arrive(k):
        L = a.lab("arr")
        a(f"""s_waitcnt vmcnt(0)
s_mov_b64 exec, 1
ds_add_rtn_u32 v{P_LS}, v14, v15 offset:8
s_mov_b64 exec, -1
s_waitcnt lgkmcnt(0)
v_readfirstlane_b32 {T0}, v{P_LS}
s_cmp_eq_u32 {T0}, {4*k+3}
s_cbranch_scc0 {L}
s_mov_b32 {T0}, 1
s_lshl_b32 {T1}, {S_XCD}, 7
s_add_u32 {T1}, {T1}, {k*1024}
s_atomic_add {T0}, {SB}, {T1} glc
s_waitcnt lgkmcnt(0)
s_sub_u32 {T0}, {T0}, s62
s_cmp_eq_u32 {T0}, 31
s_cbranch_scc0 {L}
s_mov_b32 {T1}, {FA1 + 2048 + k*2048}
s_mov_b64 exec, 0xffff
buffer_atomic_add v15, v{P_PF}, {sWS}, {T1} offen sc1
s_mov_b64 exec, -1
{L}:""")
    def stage_wait(k, pre):
        L, L2, L3 = a.lab("sw"), a.lab("sw"), a.lab("sw")
        a(f"""s_cmp_eq_u32 {S_W4}, 0
s_cbranch_scc0 {L2}
s_and_b32 {T1}, s2, 15
s_lshl_b32 {T1}, {T1}, 7
s_add_u32 {T1}, {T1}, {2048 + k*2048}
s_add_u32 {T2}, s62, 8
s_mov_b32 {S_TO}, {cfg.poll_limit}
s_waitcnt lgkmcnt(0)
s_sleep {pre}
{L}:
s_mov_b32 {T0}, 0
s_atomic_or {T0}, {SB}, {T1} glc
s_waitcnt lgkmcnt(0)
s_cmp_eq_u32 {T0}, {T2}
s_cbranch_scc1 {L}d
s_sleep {cfg.bsleep}
s_sub_u32 {S_TO}, {S_TO}, 1
s_cbranch_scc0 {L}
s_mov_b32 {S_TO}, 32
s_branch L_fail
{L}d:
s_mov_b64 exec, 1
ds_add_u32 v14, v15 offset:12
s_mov_b64 exec, -1
s_branch {L3}
{L2}:""")
        lwait(a, "v14", P_LS, k + 1, 33, sleep=cfg.lsl, off=12)
        a(f"{L3}:")
    def pace():
        if cfg.pace: a(f"s_sleep {cfg.pace}")
    a(f"""L_roleA:
v_mov_b32 v3, 0
v_mov_b32 v2, {L_SYNC}
ds_write2_b32 v2, v3, v3 offset0:0 offset1:32
ds_write2_b32 v2, v3, v3 offset0:1 offset1:2
ds_write2_b32 v2, v3, v3 offset0:3 offset1:33
ds_write2_b32 v2, v3, v3 offset0:4 offset1:34
ds_write2_b32 v2, v3, v3 offset0:5 offset1:35
s_setprio {cfg.aprio}
s_mov_b32 {S_BAR}, 0
s_lshl_b32 {S_BP}, {S_XCD}, 3
s_lshr_b32 {T0}, {S_IDX}, 2
s_add_u32 {S_BP}, {S_BP}, {T0}
s_and_b32 {S_CG}, {S_IDX}, 3
s_cmp_ge_u32 {S_CG}, 2
s_cselect_b32 {S_CNT}, 3, 4
s_lshl_b32 {S_CB}, {S_CG}, 2
s_cmp_eq_u32 {S_CG}, 3
s_cselect_b32 {S_CB}, 11, {S_CB}
s_add_u32 {S_DT}, {S_CB}, {S_W4}
v_and_b32 v2, 31, v1                      ; v2 = lane%32
v_lshrrev_b32 v3, 5, v1                   ; v3 = half
v_cvt_f32_u32 v4, v3
s_waitcnt lgkmcnt(0)
{st0()}""")
    if cfg.touch:
        tl = [["s[10:11], 0", "s[4:5], 0", "s[6:7], 0"], ["s[20:21], s76", "s[8:9], 0", "s[14:15], 0"],
              ["s[20:21], s77", "s[16:17], 0", "s[16:17], s76"], ["s[20:21], s74", "s[20:21], s75"]]
        a(f"s_cmp_ge_u32 {S_IDX}, {cfg.touch}\ns_cbranch_scc1 L_tch\ns_mov_b32 s76, 0x200000\ns_mov_b32 s77, 0x600000\ns_mov_b32 s74, 0x400000\ns_mov_b32 s75, 0x800000")
        for w in range(4):
            a(f"s_cmp_lg_u32 {S_W4}, {w}\ns_cbranch_scc1 L_tch{w}")
            for t_ in tl[w]: a(f"s_load_dword s72, {t_}")
            a(f"L_tch{w}:")
        a("L_tch:")
    def angles(n, vstep, vbase, offs, dst=TMP):
        for j in range(n): a(f"v_fmamk_f32 v{dst+j}, {vstep}, {lit(float(offs[j]))}, {vbase}")
    def gen_F():
        A0 = TMP; A1 = TMP + 8; C2 = TMP + 16
        a(f"""v_and_b32 v5, 15, v1
s_lshl_b32 {T0}, {S_KT16}, 4
v_add_u32 v5, {T0}, v5                    ; k
v_bfe_u32 v6, v1, 4, 1
v_lshl_add_u32 v7, v5, 1, v6
v_cmp_eq_u32 vcc, 1, v7
v_mov_b32 v7, 224
v_cndmask_b32 v5, v5, v7, vcc
v_cndmask_b32 v6, v6, 0, vcc
v_cvt_f32_u32 v5, v5
v_cvt_f32_u32 v6, v6
v_mul_f32 v5, {lit(1/448)}, v5            ; kf
v_mul_f32 v6, {lit(0.25)}, v6
v_mul_f32 v7, v5, v4
v_fmamk_f32 v6, v7, {lit(8.0)}, v6
v_mul_f32 v{C2}, {lit(16.0)}, v5
v_cos_f32 v{C2}, v{C2}""")
        angles(16, "v5", "v6", [j % 8 + 16 * (j // 8) for j in range(16)])
        a(f"v_add_f32 v{C2}, v{C2}, v{C2}")
        for j in range(16): a(f"v_cos_f32 v{A0+j}, v{A0+j}")
        a(f"v_mov_b32 v{C2+1}, v{C2}\ns_barrier\n.p2align 3")
        for m in range(28):
            cur = A0 if m % 2 == 0 else A1; oth = A1 if m % 2 == 0 else A0
            if m >= 2:
                for q in range(0, 8, 2):
                    a(f"v_pk_fma_f32 {V(cur+q,2)}, {V(C2,2)}, {V(oth+q,2)}, {V(cur+q,2)} neg_lo:[0,0,1] neg_hi:[0,0,1]")
            for q in range(4): a(f"v_cvt_pk_bf16_f32 v{F+4*m+q}, v{cur+2*q}, v{cur+2*q+1}")
    def gen_M():
        a(f"""v_cvt_f32_u32 v5, v2
s_and_b32 {T0}, {S_W4}, 1
s_lshl_b32 {T0}, {T0}, 10
s_add_u32 {T0}, {T0}, {S_B}
v_lshl_add_u32 v6, v3, 8, {T0}
v_cvt_f32_u32 v6, v6
v_mul_f32 v6, v6, v5
s_cmp_ge_u32 {S_W4}, 2
s_cselect_b32 {T0}, {lit(0.25)}, 0
v_mov_b32 v7, {T0}
v_fmamk_f32 v6, v6, {lit(1/2048)}, v7
v_mul_f32 v5, {lit(1/32)}, v5""")
        angles(8, "v5", "v6", [8*(j//4) + j%4 for j in range(8)])
        for j in range(8): a(f"v_cos_f32 v{TMP+j}, v{TMP+j}")
        for q in range(4): a(f"v_cvt_pk_bf16_f32 v{ACC+8+q}, v{TMP+2*q}, v{TMP+2*q+1}")
    def gen_MS():
        a(f"""v_lshlrev_b32 v5, 6, v2
v_add_u32 v5, {S_BP}, v5
v_cvt_f32_u32 v5, v5
v_mul_f32 v5, {lit(1/2048)}, v5
s_lshl_b32 {T0}, {S_W4}, 3
v_lshl_add_u32 v6, v3, 2, {T0}
v_cvt_f32_u32 v6, v6
v_mul_f32 v6, v5, v6""")
        angles(4, "v5", "v6", range(4), TMP + 8)
        for j in range(4): a(f"v_cos_f32 v{TMP+2*j}, v{TMP+8+j}\nv_sin_f32 v{TMP+2*j+1}, v{TMP+8+j}")
        a(f"v_mov_b32 v6, {lit(2*sc)}\nv_mov_b32 v7, v6")
        for j in range(4): a(f"v_pk_mul_f32 {V(TMP+2*j,2)}, {V(TMP+2*j,2)}, v[6:7]")
        for j in range(4):
            a(f"v_cvt_pk_bf16_f32 v{48+j}, v{TMP+2*j}, v{TMP+2*j+1}\nv_cvt_pk_bf16_f32 v{52+j}, v{TMP+2*j+1}, -v{TMP+2*j}")
    def gen_FB():
        a(f"""v_and_b32 v5, 15, v1
s_lshl_b32 {T0}, {S_W4}, 4
v_add_u32 v5, {T0}, v5
v_cvt_f32_u32 v5, v5
v_mul_f32 v5, {lit(1/64)}, v5
v_bfe_u32 v6, v1, 4, 1
v_cvt_f32_u32 v6, v6
v_mul_f32 v6, {lit(0.25)}, v6
v_mul_f32 v7, v5, v4
v_fmamk_f32 v6, v7, {lit(4.0)}, v6""")
        C2 = TMP + 16
        a(f"v_mul_f32 v{C2}, {lit(8.0)}, v5\nv_cos_f32 v{C2}, v{C2}")
        angles(8, "v5", "v6", [8*(j//4) + j%4 for j in range(8)], TMP + 20)
        a(f"v_add_f32 v{C2}, v{C2}, v{C2}")
        for j in range(8): a(f"v_cos_f32 v{TMP+2*j}, v{TMP+20+j}\nv_sin_f32 v{TMP+2*j+1}, v{TMP+20+j}")
        a(f"v_mov_b32 v{C2+1}, v{C2}")
        for m in range(8):
            cur = TMP + 8*(m % 2); oth = TMP + 8*((m + 1) % 2)
            if m >= 2:
                for q in range(0, 8, 2):
                    a(f"v_pk_fma_f32 {V(cur+q,2)}, {V(C2,2)}, {V(oth+q,2)}, {V(cur+q,2)} neg_lo:[0,0,1] neg_hi:[0,0,1]")
            for q in range(4): a(f"v_cvt_pk_bf16_f32 v{FB+4*m+q}, v{cur+2*q}, v{cur+2*q+1}")
    def gen_addr():
        a(f"""v_mov_b32 v{PN+2}, 0
v_lshlrev_b32 v7, 4, v1                   ; v7 = lane*16
v_and_b32 v6, 3, v1
v_lshrrev_b32 v5, 2, v1
v_lshlrev_b32 v5, 16, v5
v_lshl_add_u32 v{P_TST}, v6, 4, v5
s_lshl_b32 {T1}, {S_W4}, 11
s_add_u32 {T0}, {T1}, {L_TT}
v_add_u32 v{P_TTR}, {T0}, v7
v_lshlrev_b32 v5, 6, v2
v_lshl_add_u32 v5, v3, 4, v5
v_add_u32 v{P_TTW}, {T0}, v5
s_lshl_b32 {S_TASK}, {S_XCD}, 5
s_add_u32 {S_TASK}, {S_TASK}, {S_IDX}
s_lshr_b32 {T0}, {S_TASK}, 3
s_lshl_b32 {T2}, {S_W4}, 9
s_add_u32 {T0}, {T0}, {T2}
s_mul_i32 {T0}, {T0}, 225
s_lshl_b32 {T2}, {S_HH}, 5
s_add_u32 {T0}, {T0}, {T2}
v_mul_u32_u24 v5, {128*225}, v3
v_add3_u32 v5, v5, v2, {T0}
v_lshlrev_b32 v{P_W}, 1, v5
v_bfe_u32 v12, v1, 4, 1
v_lshlrev_b32 v5, 2, v2
v_lshl_add_u32 v{P_TLD}, v3, 9, v5
v_lshl_add_u32 v{P_UST}, v3, 17, v5
v_add_u32 v{P_TBR}, {L_TB}, v7
v_add_u32 v{P_TBW}, {T1}, v{P_TBR}
s_add_u32 {S_K1}, {S_W4}, 3
s_cmp_eq_u32 {S_W4}, 0
s_cselect_b32 {S_K1}, 7, {S_K1}
s_lshl_b32 {T0}, {S_W4}, 12
v_add_u32 v{P_ZW0}, {T0}, v{P_TBR}
s_lshl_b32 {T0}, {S_K1}, 12
v_add_u32 v{P_ZW1}, {T0}, v{P_TBR}
v_bfe_u32 v13, v1, 2, 2
v_lshrrev_b32 v5, 4, v1
v_xor_b32 v{P_WOD}, v13, v5
s_sub_u32 {T0}, {S_CNT}, 1
v_min_u32 v{P_WOD}, {T0}, v{P_WOD}
v_add_u32 v{P_WOD}, {S_CB}, v{P_WOD}
v_lshlrev_b32 v{P_WOD}, 6, v{P_WOD}
v_mul_u32_u24 v5, 896, v5
v_add_u32 v5, v5, v{P_WOD}
v_lshl_add_u32 v5, v6, 4, v5
s_mul_i32 {T0}, {S_W4}, {4*896}
v_add_u32 v{P_WOD}, {T0}, v5
v_xor_b32 v5, {S_W4}, v13
v_lshlrev_b32 v5, 6, v5
v_lshl_add_u32 v5, v13, 8, v5
v_and_b32 v6, 1, v1
v_lshl_add_u32 v5, v6, 5, v5
v_lshl_add_u32 v5, v12, 4, v5
v_bfe_u32 v6, v1, 1, 1
v_lshl_add_u32 v5, v6, 3, v5
v_add_u32 v{P_WOR2}, {L_X}, v5
v_lshl_add_u32 v{P_WOR}, v3, 10, v{P_WOR2}""")
    pieces = [gen_F, gen_FB, gen_M, gen_MS, gen_addr]
    assert cfg.pre >= 1
    def wq_warm():
        a(f"""s_cmp_eq_u32 {S_LC}, 7
s_cbranch_scc0 L_pf1
v_mul_u32_u24 v5, 2688, v1
s_mul_i32 {T0}, {T5}, 3
s_add_u32 {T0}, {T0}, {S_RR}
s_lshl_b32 {T0}, {T0}, 7
s_mul_i32 {T1}, {S_W4}, {128*2688}
s_add_u32 {T0}, {T0}, {T1}
s_add_u32 {T1}, {T0}, {64*2688}
buffer_load_dword v{P_DUM}, v5, {sWQKV}, {T0} offen
buffer_load_dword v{P_DUM}, v5, {sWQKV}, {T1} offen
L_pf1:""")
    for q in range(cfg.pre):
        pieces.pop(0)()
        if q == 0: srd(a, sWQKV, 12, 448 * 2688)
        if cfg.wqwarm == q + 1: wq_warm()
    stamp(a, 1)
    srd(a, sWS, 20, WS_SIZE)
    srd(a, sX, 4, 2048 * 896); srd(a, sWR, 6, 2048 * 450); srd(a, sWI, 8, 2048 * 450)
    srd(a, sWO, 14, 448 * 896); srd(a, sOUT, 16, 2048 * 1792)
    S_XA, S_WQL, S_WQG = "s70", "s71", "s72"
    XD = 70
    a(f"""v_lshrrev_b32 v6, 3, v1
v_and_b32 v5, 7, v1
v_lshrrev_b32 v8, 4, v1
v_xor_b32 v5, v5, v8
s_and_b32 {T0}, {S_W4}, 1
s_lshl_b32 {T0}, {T0}, 2
v_xor_b32 v5, {T0}, v5
v_mul_u32_u24 v6, {64*896}, v6
s_mul_i32 {T1}, {S_W4}, {8*64*896}
s_mul_i32 {T2}, {S_B}, 896
s_add_u32 {T1}, {T1}, {T2}
v_add_u32 v6, {T1}, v6
v_lshl_add_u32 v{XD}, v5, 4, v6
s_lshl_b32 {T0}, {S_W4}, 10
s_add_u32 {S_XA}, {T0}, {L_X}
s_mov_b32 {T2}, {L_X}""")
    x_read_addrs(a, 8, "v1", T2, TMP)
    a(f"""v_mov_b32 v14, {L_SYNC+128}
v_mov_b32 v15, 1
v_mov_b32 v{P_BC}, {L_SYNC}
s_lshl_b32 {T1}, {S_CG}, 1""")
    lwait(a, f"v{P_BC}", P_LS, 4, 34, sleep=1)
    a(f"""ds_read_b64 {V(PN,2)}, v{P_BC} offset:64
v_lshlrev_b32 v{P_PF}, 7, v1
s_add_u32 s74, s20, {FA1}
s_addc_u32 s75, s21, 0
s_waitcnt lgkmcnt(0)
v_readfirstlane_b32 s62, v{PN}
v_readfirstlane_b32 s63, v{PN+1}
s_lshl_b32 {T0}, s2, 2
s_add_u32 {T0}, {T0}, {S_W4}
s_cmp_lg_u32 {T0}, 0
s_cbranch_scc1 L_noinit
s_mov_b32 {T0}, {FA1}
s_bfm_b64 exec, 40, 8
buffer_store_dwordx2 {V(PN,2)}, v{P_PF}, {sWS}, {T0} offen sc1
s_waitcnt vmcnt(0)
s_mov_b64 exec, 0xff
buffer_store_dwordx2 {V(PN,2)}, v{P_PF}, {sWS}, {T0} offen sc1
s_mov_b64 exec, -1
L_noinit:""")
    stamp(a, 2)
    lwait(a, f"v{P_BC}", P_LS, 4, 20, sleep=1, off=8)
    if cfg.xas:
        a(f"s_mul_i32 {T2}, {S_H}, 7\ns_bfe_u32 {T2}, {T2}, 0x30001\ns_cmp_gt_u32 {T2}, 4\ns_cbranch_scc0 L_xago")
        lwait(a, f"v{P_BC}", P_LS, 4 * cfg.xas, 30, sleep=1, off=4)
        a("L_xago:")
    for c in range(7):
        a(f"""s_add_u32 {T2}, {T1}, 1
s_lshr_b32 {T3}, {T2}, 1
s_lshl_b32 {T3}, {T3}, 14
s_and_b32 {T4}, {T1}, 1
s_lshl_b32 {T4}, {T4}, 12
s_sub_u32 {T3}, {T3}, {T4}
s_add_u32 m0, {S_XA}, {T3}
s_lshl_b32 {T4}, {T1}, 7
buffer_load_dwordx4 v{XD}, {sX}, {T4} offen lds
s_cmp_eq_u32 {T2}, 7
s_cselect_b32 {T1}, 0, {T2}""")
    for p_ in pieces: p_()
    pieces = []
    assert not pieces
    a(f"""v_add_u32 v13, {L_M}, v7
s_lshl_b32 {T0}, {S_W4}, 10
v_add_u32 v5, {T0}, v13
ds_write_b128 v5, {V(ACC+8,4)}
s_cmp_eq_u32 {S_W4}, 0
s_cbranch_scc0 L_chkd
s_lshl_b32 {T1}, {S_XCD}, 7
s_mov_b32 {S_TO}, {cfg.poll_limit}
L_chk:
s_load_dwordx2 s[76:77], {SB}, {T1} glc
s_waitcnt lgkmcnt(0)
s_sub_u32 s76, s76, s62
s_lshr_b32 s76, s76, 5
s_xor_b32 s77, s77, s63
s_or_b32 s76, s76, s77
s_cbranch_scc0 L_chkd
s_sleep 4
s_sub_u32 {S_TO}, {S_TO}, 1
s_cbranch_scc0 L_chk
s_mov_b32 {S_TO}, 35
s_branch L_fail
L_chkd:""")
    WW = 72; AC = 152; FR = 168; TP = 200
    wl = []
    for r in range(8):
        wl.append(f"s_mov_b32 {T0}, {14400*(8*(r//4) + r%4)}\nbuffer_load_short_d16_hi v{WW+r}, v{P_W}, {sWR}, {T0} offen")
        wl.append(f"buffer_load_short_d16_hi v{WW+8+r}, v{P_W}, {sWI}, {T0} offen")
    if cfg.wearly:
        for s_ in wl: a(s_)
        a("s_waitcnt vmcnt(16)")
    else: a("s_waitcnt vmcnt(0)")
    stamp(a, 3)
    if cfg.noA == 1:
        a(f"s_mov_b64 exec, 1\nds_add_u32 v14, v15 offset:4\ns_mov_b64 exec, -1")
        stamp(a, 12); dump_stamps(a, 16); a("s_endpgm")
    albar(16)
    def xreg(m): return TMP + 4*m if m < 4 else F + 4*(m - 4)
    def xr(m): return f"ds_read_b128 {V(xreg(m),4)}, v{8+m%4} offset:{((m//4+1)>>1)*16384 - ((m//4)&1)*4096}"
    for m in range(4): a(xr(m))
    P1 = F; P2 = F + 16; XP = TMP; M = F + 32
    for m in range(28):
        a(f"s_waitcnt lgkmcnt(3)")
        a(mfma(ACC, xreg(m), F + 4*m, None if m == 0 else ACC))
        if m + 4 < 28: a(xr(m + 4))
        else: a(f"ds_read_b128 {V(M+4*(m-24),4)}, v13 offset:{(m-24)*1024}")
    lwait(a, f"v{P_BC}", P_LS, 8, 27, sleep=1)
    a(f"""s_lshl_b32 {T0}, {S_W4}, 11
s_add_u32 {T0}, {T0}, {L_MS}
v_add_u32 v5, {T0}, v7
ds_write_b128 v5, v[48:51]
ds_write_b128 v5, v[52:55] offset:1024
s_lshr_b32 {T0}, {S_KT16}, 1
s_lshl_b32 {T0}, {T0}, 13
s_lshl_b32 {T1}, {S_B}, 7
s_add_u32 {T1}, {T1}, {TBUF}
s_add_u32 {T0}, {T0}, {T1}
s_and_b32 {T2}, {S_KT16}, 1
s_lshl_b32 {T2}, {T2}, 6
s_add_u32 {T0}, {T0}, {T2}
s_add_u32 {T2}, {T0}, {16*65536}
s_cmp_ge_u32 {S_W4}, {S_CNT}
s_cbranch_scc1 L_a1done
s_waitcnt lgkmcnt(0)""")
    for q in range(8): a(f"v_cvt_pk_bf16_f32 v{XP+q}, v{ACC+2*q}, v{ACC+2*q+1}")
    a(mfma(P1, XP, M)); a(mfma(P2, XP, M + 8)); a(mfma(P1, XP + 4, M + 4, P1)); a(mfma(P2, XP + 4, M + 12, P2))
    for r in range(0, 8, 2):
        a(f"v_pk_add_f32 {V(ACC+r,2)}, {V(P1+r,2)}, {V(P2+r+8,2)} neg_lo:[0,1] neg_hi:[0,1]\nv_pk_add_f32 {V(ACC+8+r,2)}, {V(P1+r+8,2)}, {V(P2+r,2)}")
    for r in range(8): a(f"v_cvt_pk_bf16_f32 v{XP+8+r}, v{ACC+r}, v{ACC+8+r}")
    a(f"""s_cmp_lg_u32 {S_KT16}, 0
s_cbranch_scc1 L_a1st
s_mov_b32 exec_hi, 0
v_cvt_pk_bf16_f32 v{XP+8}, v{P1}, v{P2}
v_cvt_pk_bf16_f32 v6, v{P1+8}, v{P2+8}
v_lshlrev_b32 v5, 16, v2
s_mov_b32 exec_hi, -1
L_a1st:
ds_write_b128 v{P_TTW}, {V(XP+8,4)}
ds_write_b128 v{P_TTW}, {V(XP+12,4)} offset:32
ds_read_b128 {V(XP,4)}, v{P_TTR}
ds_read_b128 {V(XP+4,4)}, v{P_TTR} offset:1024
s_mov_b32 {T4}, {T0}
s_waitcnt lgkmcnt(0)""")
    stamp(a, 1, 5)
    if cfg.tdefer: lwait(a, f"v{P_BC}", P_LS, 4, 28, sleep=1, off=12)
    if cfg.tdelay: a(f"s_sleep {cfg.tdelay}")
    a(f"""s_cmp_lg_u32 {S_KT16}, 0
s_cbranch_scc1 L_a1st2
s_mov_b32 exec_hi, 0
s_add_u32 {T1}, {T1}, {7*8192}
buffer_store_dword v6, v5, {sWS}, {T1} offen sc1
s_mov_b32 exec_hi, -1
L_a1st2:
buffer_store_dwordx4 {V(XP,4)}, v{P_TST}, {sWS}, {T4} offen sc1
buffer_store_dwordx4 {V(XP+4,4)}, v{P_TST}, {sWS}, {T2} offen sc1
L_a1done:""")
    stage_arrive(0)
    stamp(a, 4)
    lwait(a, f"v{P_BC}", P_LS, 4, 29, sleep=1, off=12)
    if cfg.wdelay: a(f"s_sleep {cfg.wdelay}")
    if not cfg.wearly: burst(wl, cfg.th_w)
    if cfg.wopf:
        burst([f"""s_lshl_b32 {T0}, {S_IDX}, 2
s_add_u32 {T0}, {T0}, {S_W4}
s_mul_i32 {T0}, {T0}, {25*128}
s_bfm_b64 exec, 25, 0
buffer_load_dword v{P_DUM}, v{P_PF}, {sWO}, {T0} offen
s_mov_b64 exec, -1"""], 1)
    WO = 72
    S_WOL = "s70"
    a(f"s_lshl_b32 {S_WOL}, {S_W4}, 10\ns_add_u32 {S_WOL}, {S_WOL}, {L_X}")
    def wo_list(rnd):
        return [f"s_add_u32 m0, {S_WOL}, {i*4096}\ns_mov_b32 s71, {(rnd*224 + i*16)*896}\nbuffer_load_dwordx4 v{P_WOD}, {sWO}, s71 offen lds" for i in range(14)]
    def ride(q, n=1):
        it = [q.pop(0) for _ in range(min(n, len(q)))]
        if it: burst(it, n)
        pace()
    def wo_rd(f, d, r1, r2):
        hl, mu = f // 2, f % 2
        return [f"ds_read_b64_tr_b16 {V(d+2*sec,2)}, v{r2 if (mu and sec) else r1} offset:{(28*hl + 16*mu + 8*sec)*256}" for sec in range(2)]
    stamp(a, 5)
    stage_wait(0, cfg.a2wait)
    a(f"s_lshl_b32 {T1}, {S_W4}, 11")
    stamp(a, 6)
    a(f"""s_lshl_b32 {T0}, {S_TASK}, 13
s_add_u32 {T0}, {T0}, {T1}
s_add_u32 {T0}, {T0}, {TBUF}""")
    burst([f"buffer_load_dword v{FR+q}, v{P_TLD}, {sWS}, {T0} offen offset:{(q//4)*1024 + (q%4)*128} sc1" for q in range(8)], 8)
    a(f"s_cmp_eq_u32 {S_HH}, 7\ns_cbranch_scc0 L_a2nx\ns_waitcnt vmcnt(8)")
    for r in range(8):
        a(f"v_mov_b32 v{TP}, v{WW+r}\nv_xor_b32 v{WW+r}, 0x80000000, v{WW+8+r}\nv_mov_b32 v{WW+8+r}, v{TP}")
    a(f"""L_a2nx:
s_waitcnt vmcnt(0)
ds_write_b128 v{P_TBW}, {V(FR,4)}
ds_write_b128 v{P_TBW}, {V(FR+4,4)} offset:1024""")
    stamp(a, 1, 4)
    albar(6)
    stamp(a, 2, 4)
    def dft64(base):
        for m in range(8): a(f"ds_read_b128 {V(FR+4*m,4)}, v{P_TBR} offset:{base + m*1024}")
        for m in range(8):
            a(f"s_waitcnt lgkmcnt({7-m})")
            a(mfma(AC, FB + 4*m, FR + 4*m, None if m == 0 else AC))
            ride(woq)
    woq = wo_list(0)
    dft64(0)
    for r in range(0, 8, 2):
        a(f"""v_pk_mul_f32 {V(FR+r,2)}, {V(AC+r,2)}, {V(WW+r,2)}
v_pk_mul_f32 {V(FR+8+r,2)}, {V(AC+r,2)}, {V(WW+8+r,2)}
v_pk_fma_f32 {V(FR+r,2)}, {V(AC+8+r,2)}, {V(WW+8+r,2)}, {V(FR+r,2)} neg_lo:[1,0,0] neg_hi:[1,0,0]
v_pk_fma_f32 {V(FR+8+r,2)}, {V(AC+8+r,2)}, {V(WW+r,2)}, {V(FR+8+r,2)} neg_lo:[1,0,1] neg_hi:[1,0,1]
v_cvt_pk_bf16_f32 v{TP+r}, v{FR+r}, v{FR+8+r}
v_cvt_pk_bf16_f32 v{TP+r+1}, v{FR+r+1}, v{FR+8+r+1}""")
    a(f"ds_write_b128 v{P_TBW}, {V(TP,4)} offset:8192\nds_write_b128 v{P_TBW}, {V(TP+4,4)} offset:9216")
    stamp(a, 3, 4)
    albar(7)
    stamp(a, 4, 4)
    dft64(8192)
    a(f"""s_lshl_b32 {T0}, {S_HH}, 12
s_lshr_b32 {T1}, {S_TASK}, 3
s_lshl_b32 {T1}, {T1}, 7
s_add_u32 {T0}, {T0}, {T1}
s_add_u32 {T0}, {T0}, {UBUF}
s_lshl_b32 {T1}, {S_W4}, 19
s_add_u32 {T0}, {T0}, {T1}""")
    for r in range(8): a(f"v_cvt_pk_bf16_f32 v{TP+r}, v{AC+r}, v{AC+8+r}")
    stamp(a, 5, 4)
    burst([f"s_add_u32 {T1}, {T0}, {(8*(r//4) + r%4) * USTR}\nbuffer_store_dword v{TP+r}, v{P_UST}, {sWS}, {T1} offen sc1" for r in range(8)], 8)
    stage_arrive(1)
    stamp(a, 7)
    albar(4)
    for f in range(16):
        for s_ in wo_rd(f, WO + 4*f, P_WOR, P_WOR2): a(s_)
    U0 = 16; U1 = 32; AR = 200; AI = 216; MS = 136; UE = 168
    for q in range(8): a(f"ds_read_b128 {V(MS+4*q,4)}, v7 offset:{L_MS + q*1024}")
    stage_wait(1, cfg.a3wait)
    stamp(a, 8)
    a(f"""s_lshl_b32 {T0}, {S_BP}, 15
s_add_u32 {T0}, {T0}, {UBUF}
s_lshl_b32 {T1}, {S_W4}, 12
s_lshl_b32 {T3}, {S_K1}, 12
s_add_u32 {T2}, {T0}, {T3}
s_add_u32 {T1}, {T0}, {T1}""")
    burst([f"buffer_load_dword v{U0+q}, v{P_TLD}, {sWS}, {T1 if q < 16 else T2} offen offset:{((q%16)//4)*1024 + (q%4)*128} sc1" for q in range(32)], cfg.th_u)
    stamp(a, 10, 4)
    albar(24)
    stamp(a, 11, 4)
    def step6(ur, ui, va, q_, n):
        for m in range(4):
            a(mfma(AR, ur + 4*m, MS + 8*m, None if m == 0 else AR))
            if not cfg.s6late: ride(q_, n)
            a(mfma(AI, ui + 4*m, MS + 8*m + 4, None if m == 0 else AI))
            if not cfg.s6late: ride(q_, n)
        for q in range(16): a(f"v_cvt_pk_bf16_f32 v{UE+q}, v{AR+2*q}, v{AR+2*q+1}")
        for q in range(4): a(f"ds_write_b128 v{va}, {V(UE+4*q,4)} offset:{q*1024}")
    if cfg.s6late:
        burst(wo_list(1), cfg.th_wo)
        lwait(a, f"v{P_BC}", P_LS, 20, 37, sleep=2)
    a(f"s_cmp_eq_u32 {S_W4}, 0\ns_cbranch_scc1 L_a3w0\ns_waitcnt vmcnt({14 if cfg.s6late else 16})")
    woq = wo_list(1)
    step6(U0, U0, P_ZW0, woq, 1)
    if not cfg.s6late: a("s_waitcnt vmcnt(8)")
    step6(U1, U1, P_ZW1, woq, 1)
    a(f"s_branch L_a3z\nL_a3w0:\ns_waitcnt vmcnt({14 if cfg.s6late else 0})\ns_mov_b32 exec_lo, -2\ns_mov_b32 exec_hi, -2")
    for q in range(16): a(f"v_mov_b32 v{U1+q}, v{U0+q}")
    a("s_mov_b64 exec, -1")
    step6(U0, U1, P_ZW0, wo_list(1), 2)
    a("L_a3z:")
    stamp(a, 13, 4)
    a(f"s_mov_b64 exec, 1\nds_add_u32 v14, v15 offset:4\ns_mov_b64 exec, -1\ns_waitcnt vmcnt(0)")
    albar(10)
    stamp(a, 9)
    for f in range(16):
        for s_ in wo_rd(f, WO + 64 + 4*f, P_WOR, P_WOR2): a(s_)
    osc = ("", " sc1", " nt", " sc0 sc1")[cfg.outsc]
    def out_store(rowmul, colbase, skip):
        a(f"""v_mul_u32_u24 v5, {rowmul}, v2
v_lshl_add_u32 v5, v3, 5, v5
s_lshl_b32 {T1}, {S_DT}, 6
s_add_u32 {T0}, {T0}, {T1}
s_add_u32 {T0}, {T0}, {colbase}
s_cmp_ge_u32 {S_W4}, {S_CNT}
s_cbranch_scc1 {skip}""")
        for q in range(4): a(f"v_cvt_pk_bf16_f32 v{64+q}, v{AR+2*q}, v{AR+2*q+1}")
        a(f"buffer_store_dwordx4 v[64:67], v5, {sOUT}, {T0} offen{osc}")
        for q in range(4, 8): a(f"v_cvt_pk_bf16_f32 v{64+q}, v{AR+2*q}, v{AR+2*q+1}")
        a(f"buffer_store_dwordx4 v[68:71], v5, {sOUT}, {T0} offen offset:16{osc}\n{skip}:")
    a(f"""s_lshl_b32 {T4}, {S_BP}, 2
s_add_u32 {T4}, {T4}, {S_W4}
s_lshl_b32 {T3}, {T4}, 13
s_add_u32 {T3}, {T3}, {OBUF}
s_add_u32 {T2}, {T3}, 4096
s_and_b32 {T4}, {S_BP}, 60
s_add_u32 {T4}, {T4}, {S_W4}
s_lshl_b32 {T4}, {T4}, 9
s_add_u32 {T4}, {T4}, {FO}""")
    lwait(a, f"v{P_BC}", P_LS, 24, 21, sleep=1)
    stamp(a, 10)
    if cfg.owait: a(f"s_sleep {cfg.owait}")
    poll(a, f"v{P_PF}", T4, P_PS, 4, 11, sleep=2)
    stamp(a, 13)
    for q in range(8):
        a(f"buffer_load_dwordx4 {V(16+4*q,4)}, v7, {sWS}, {T3 if q < 4 else T2} offen offset:{(q%4)*1024} sc1")
    a(f"s_mov_b64 exec, 1\nds_add_u32 v14, v15 offset:4\ns_mov_b64 exec, -1\ns_lshl_b32 {T1}, {S_W4}, 13\nv_add_u32 v9, {T1}, v7")
    for q in range(8):
        a(f"s_waitcnt vmcnt({7-q})\nds_write_b128 v9, {V(16+4*q,4)} offset:{L_OB + q*1024}")
    lbar(a, "v14", "v15", P_LS, 12)
    OR = 216
    def zr(s_): return f"ds_read_b128 {V(OR+4*(s_%8),4)}, v7 offset:{L_OB + s_*1024}"
    for s_ in range(8): a(zr(s_))
    for s_ in range(32):
        a(f"s_waitcnt lgkmcnt({min(7, 31-s_)})")
        a(mfma(AR, WO + 4*s_, OR + 4*(s_ % 8), None if s_ == 0 else AR))
        if s_ + 8 < 32: a(zr(s_ + 8))
    a(f"s_mul_i32 {T0}, {S_BP}, {32*1792}")
    out_store(1792, 896, "L_b3done")
    a(f"""s_lshl_b32 {T0}, s2, 2
s_add_u32 {T0}, {T0}, {S_W4}
s_cmp_lg_u32 {T0}, 0
s_cbranch_scc1 L_noep
s_mov_b32 {T0}, {EPOCH}""")
    flag(a, T0, 10)
    a("L_noep:")
    if cfg.padend: padto(a, cfg.padend)
    stamp(a, 12)
    dump_stamps(a, 16)
    a("s_endpgm")

def build():
    nh = cfg.nh; xh = 16 // nh
    for wg in range(256):
        xcd, idx = wg & 7, wg >> 3
        h = (xcd % xh) * nh + idx % nh
        assert nh == 8
    a = Asm()
    prologue(a); role_B(a); ROLE[0] = 1; role_A(a)
    a(f"""L_fail:
v_mov_b32 v0, 0
v_mov_b32 v1, {S_TO}
global_store_dword v0, v1, s[18:19]
L_end:
s_endpgm
L_codeend:""")
    a.pad()
    import os
    ref = "cdna_kernels/" + NAME + ".s.ref"
    hdr = open(ref).read().split("; Override launch")[0] if os.path.exists(ref) else ""
    s = hdr + f"; @launch grid=(256,1,1) block=(512,1,1) lds={LDS_SIZE}\n"
    s += f""".amdgcn_target "amdgcn-amd-amdhsa--gfx950"
.text
.globl {NAME}_kernel
.p2align 8
.type {NAME}_kernel,@function
{NAME}_kernel:
""" + a.text() + f""".section .rodata,"a"
.p2align 6
.amdhsa_kernel {NAME}_kernel
  .amdhsa_next_free_vgpr 256
  .amdhsa_next_free_sgpr 102
  .amdhsa_accum_offset 256
  .amdhsa_group_segment_fixed_size 0
  .amdhsa_kernarg_size 72
  .amdhsa_user_sgpr_count 2
  .amdhsa_user_sgpr_kernarg_segment_ptr 1
  .amdhsa_system_sgpr_workgroup_id_x 1
.end_amdhsa_kernel
"""
    return s

if __name__ == "__main__":
    out = sys.argv[1]
    for kv in sys.argv[2:]:
        k, v = kv.split("=")
        setattr(cfg, k, type(getattr(cfg, k))(int(v)))
    open(out, "w").write(build())
```

```python
import sys, math, struct
from asmlib import Asm

NAME = "concat_heads__spectral_gfnet__softmax_full_mha__prompt"

class Cfg:
    nh = 8
    stamps = False
    poll_limit = 1 << 17
    noA = 0
    probe = -1
    span = 0
    fine = 0
    padend = 0
    padmid = 0
    dbgwave = -1
    nbuf = 5
    wearly = 0
    touch = 0
    wdelay = 12
    tdelay = 0
    s6late = 0
    lsl = 4
    odefer = 1
    a2wait = 8
    a3wait = 8
    kvwait = 8
    kvrot = 3
    m1 = 12
    ramp = 1
    gate = 2
    wqe = 3
    wqp = 7
    tdefer = 1
    m2 = 27
    xas = 0
    xae = 2
    bhi = 56
    ohint = 1
    wlate = 1
    allpoll = 1
    otry = 1
    nta = 0
    ntw = 0
    ntb = 0
    bsleep = 4
    qst = 0x133
    wopf = 1
    kvp = 1
    owait = 4
    xrot = 0x06543210
    wrot = 1
    pace = 1
    xadefer = 0
    wpf = 0
    outsc = 0
    wqwarm = 1
    th_wo = 5
    th_u = 20
    th_wq = 2
    wqearly = 1
    th_w = 17
    th_xa = 4
    wfair = 8
    xearly = 1
    spf = 0
    spf0 = 150
    pre = 5
    aprio = 2
    force_fb = False
cfg = Cfg()

EPOCH = 0
KV = 0x20000; TS = 61440; VOFF = 28672
OBUF = 0x400000
TBUF = 0x600000
UBUF = 0x800000; USTR = 32768
FKV = 0x8000; FA1 = 0x1000; FO = 0x10000
STAMP = 0xB00000
WS_SIZE = 0x1000000
L_W = 0; L_WQ = 57344; L_X = 86016; L_Q = 151552; L_SYNC = 159744
LDS_SIZE = 160000
L_RED = 0
L_TB = L_WQ; L_YB = L_WQ + 8192; L_MS = 49152; L_TT = L_X + 4096; L_M = L_X + 61440
L_ZB = L_WQ; L_OB = 0
sWS, sWQKV, sX, sWR, sWI, sWO, sOUT = [f"s[{i}:{i+3}]" for i in (24, 28, 32, 36, 40, 44, 48)]
S_WAVE, S_XCD, S_IDX, S_H, S_R, S_W4 = "s56", "s57", "s58", "s59", "s60", "s61"
S_NONCE = "s[62:63]"
S_TO, S_BAR = "s64", "s65"
T0, T1, T2, T3, T4, T5 = "s66", "s67", "s68", "s69", "s22", "s23"
STAMP0 = 84

ZREADY = 24

def f2u(x): return struct.unpack("<I", struct.pack("<f", x))[0]
def lit(x): return "0x%08x" % f2u(x)
def V(a, n=1): return f"v{a}" if n == 1 else f"v[{a}:{a+n-1}]"

def srd(a, name, lo, size):
    i = int(name[2:name.index(":")])
    a(f"s_mov_b32 s{i}, s{lo}\ns_mov_b32 s{i+1}, s{lo+1}\ns_mov_b32 s{i+2}, {size}\ns_mov_b32 s{i+3}, 0x20000")

ROLE = [0]
def stamp(a, i, fine=0):
    if cfg.probe >= 0:
        if not fine and cfg.probe == ROLE[0] * 100 + i:
            a("s_memrealtime s[96:97]\ns_waitcnt lgkmcnt(0)")
        return
    if cfg.fine in (1, 2) and not fine and 3 <= i <= 11: return
    if cfg.fine == 4 and not fine and i in (1, 2, 3, 4, 5, 10, 11, 13): return
    if fine and cfg.fine != fine: return
    if cfg.stamps:
        a(f"s_memtime s[100:101]\ns_waitcnt lgkmcnt(0)\ns_mov_b32 s{STAMP0+i}, s100")

def st0():
    return f"s_mov_b32 s{STAMP0+15}, s100\ns_mov_b32 s{STAMP0}, s38" if cfg.stamps else ""

def dump_stamps(a, vt):
    if cfg.probe >= 0:
        if cfg.probe // 100 == ROLE[0]:
            L = a.lab("pr")
            a(f"s_sub_u32 s96, s96, s100\ns_add_u32 s96, s96, 2600\n{L}:\ns_memrealtime s[98:99]\ns_waitcnt lgkmcnt(0)\ns_sub_u32 s98, s98, s100\ns_cmp_lt_u32 s98, s96\ns_cbranch_scc1 {L}")
        return
    if cfg.span:
        a(f"s_memrealtime s[98:99]\ns_lshl_b32 {T0}, s2, 3\ns_add_u32 {T0}, {T0}, {S_WAVE}\ns_lshl_b32 {T0}, {T0}, 3\ns_add_u32 {T0}, {T0}, {STAMP}\ns_waitcnt lgkmcnt(0)")
        a(f"v_mov_b32 v{vt}, s100\nv_mov_b32 v{vt+1}, s98\nv_mov_b32 v{vt+2}, 0\ns_mov_b64 exec, 1\nbuffer_store_dwordx2 {V(vt,2)}, v{vt+2}, {sWS}, {T0} offen\ns_mov_b64 exec, -1")
    if not cfg.stamps: return
    a(f"s_memrealtime s[100:101]\ns_waitcnt lgkmcnt(0)\ns_mov_b32 s{STAMP0+14}, s100")
    if cfg.dbgwave >= 0:
        L = a.lab("nodbg")
        a(f"s_lshl_b32 {T0}, s2, 3\ns_add_u32 {T0}, {T0}, {S_WAVE}\ns_cmp_lg_u32 {T0}, {cfg.dbgwave}\ns_cbranch_scc1 {L}")
        a(f"v_mov_b32 v{vt+4}, 0\ns_mov_b64 exec, 1")
        for i in range(1, 16):
            a(f"s_sub_u32 {T1}, s{STAMP0+i}, s{STAMP0 + (15 if i >= 14 else 0)}\nv_mov_b32 v{vt}, {T1}\nglobal_store_dword v{vt+4}, v{vt}, s[18:19] offset:{4*i}")
        a(f"s_mov_b64 exec, -1\n{L}:")
    a(f"s_lshl_b32 {T0}, s2, 3\ns_add_u32 {T0}, {T0}, {S_WAVE}\ns_lshl_b32 {T0}, {T0}, 7\ns_add_u32 {T0}, {T0}, {STAMP}")
    a(f"v_mov_b32 v{vt+4}, 0\ns_mov_b64 exec, 1")
    for q in range(4):
        for i in range(4): a(f"v_mov_b32 v{vt+i}, s{STAMP0+4*q+i}")
        a(f"buffer_store_dwordx4 {V(vt,4)}, v{vt+4}, {sWS}, {T0} offen offset:{16*q}")
    a("s_mov_b64 exec, -1")

def padto(a, ticks):
    L = a.lab("pad")
    a(f"{L}:\ns_memrealtime s[100:101]\ns_waitcnt lgkmcnt(0)\ns_sub_u32 s100, s100, s{STAMP0+15}\ns_cmp_lt_u32 s100, {ticks}\ns_cbranch_scc1 {L}")

def poll_issue(vaddr, soff, vt, n):
    return f"""v_mov_b32 v{vt}, 0
v_mov_b32 v{vt+1}, 0
s_bfm_b64 exec, {n}, 0
buffer_atomic_or_x2 {V(vt,2)}, {vaddr}, {sWS}, {soff} offen sc0 sc1
s_mov_b64 exec, -1"""

def poll_check(vt, n):
    return f"v_cmp_ne_u64 vcc, {S_NONCE}, {V(vt,2)}\ns_and_b32 vcc_lo, vcc_lo, {hex((1 << n) - 1)}"

def poll(a, vaddr, soff, vt, n, code, sleep=2):
    L, Dn = a.lab("poll"), a.lab("polld")
    a(f"""s_mov_b32 {S_TO}, {cfg.poll_limit}
{L}:
{poll_issue(vaddr, soff, vt, n)}
s_waitcnt vmcnt(0)
{poll_check(vt, n)}
s_cbranch_scc0 {Dn}
s_sleep {sleep}
s_sub_u32 {S_TO}, {S_TO}, 1
s_cbranch_scc0 {L}
s_mov_b32 {S_TO}, {code}
s_branch L_fail
{Dn}:""")

def publish_wg(a, vsync, vone, off, vt, soff, vn, last=3):
    L = a.lab("pub")
    a(f"""s_mov_b64 exec, 1
ds_add_rtn_u32 v{vt}, {vsync}, {vone} offset:{off}
s_waitcnt lgkmcnt(0)
v_readfirstlane_b32 {T0}, v{vt}
s_cmp_eq_u32 {T0}, {last}
s_cselect_b64 exec, 1, 0
buffer_store_dwordx2 {V(vn,2)}, v{vn+2}, {sWS}, {soff} offen sc1
s_mov_b64 exec, -1""")

def flag(a, soff, vt):
    a(f"""v_mov_b32 v{vt}, s62
v_mov_b32 v{vt+1}, s63
v_mov_b32 v{vt+2}, 0
s_mov_b64 exec, 1
buffer_store_dwordx2 {V(vt,2)}, v{vt+2}, {sWS}, {soff} offen sc1
s_mov_b64 exec, -1""")

def flag2(a, soff, vn):
    a(f"s_mov_b64 exec, 1\nbuffer_store_dwordx2 {V(vn,2)}, v{vn+2}, {sWS}, {soff} offen sc1\ns_mov_b64 exec, -1")

def lwait(a, vsync, vt, target, code, sleep=0, off=0):
    L, Dn = a.lab("lw"), a.lab("lwd")
    a(f"""s_mov_b32 {S_TO}, {cfg.poll_limit * 8}
{L}:
ds_read_b32 v{vt}, {vsync} offset:{off}
s_waitcnt lgkmcnt(0)
v_readfirstlane_b32 {T0}, v{vt}
s_cmp_ge_u32 {T0}, {target}
s_cbranch_scc1 {Dn}
{"s_sleep %d" % sleep if sleep else ""}
s_sub_u32 {S_TO}, {S_TO}, 1
s_cbranch_scc0 {L}
s_mov_b32 {S_TO}, {code}
s_branch L_fail
{Dn}:""")

def lbar(a, vsync, vone, vt, code, sleep=0):
    L, Dn = a.lab("lb"), a.lab("lbd")
    a(f"""s_add_u32 {S_BAR}, {S_BAR}, 4
s_mov_b64 exec, 1
ds_add_u32 {vsync}, {vone}
s_mov_b64 exec, -1
s_mov_b32 {S_TO}, {cfg.poll_limit * 8}
{L}:
ds_read_b32 v{vt}, {vsync}
s_waitcnt lgkmcnt(0)
v_readfirstlane_b32 {T0}, v{vt}
s_cmp_ge_u32 {T0}, {S_BAR}
s_cbranch_scc1 {Dn}
{"s_sleep %d" % sleep if sleep else ""}
s_sub_u32 {S_TO}, {S_TO}, 1
s_cbranch_scc0 {L}
s_mov_b32 {S_TO}, {code}
s_branch L_fail
{Dn}:""")

def mfma(d, A, B, C=None):
    return f"v_mfma_f32_32x32x16_bf16 {V(d,16)}, {V(A,4)}, {V(B,4)}, {'0' if C is None else V(C,16)}"

def mod7(a, s, t):
    a(f"s_mul_i32 {t}, {s}, 9363\ns_lshr_b32 {t}, {t}, 16\ns_mul_i32 {t}, {t}, 7\ns_sub_u32 {s}, {s}, {t}")

def x_read_addrs(a, v0, vl, base_s, t):
    a(f"""v_and_b32 v{t}, 31, {vl}
v_lshrrev_b32 v{t+1}, 5, {vl}
v_bfe_u32 v{t+2}, {vl}, 1, 3
v_xor_b32 v{t+1}, v{t+1}, v{t+2}
v_lshlrev_b32 v{t}, 7, v{t}
v_add_u32 v{t}, {base_s}, v{t}""")
    for mm in range(4):
        a(f"v_xor_b32 v{t+2}, {2*mm}, v{t+1}\nv_lshl_add_u32 v{v0+mm}, v{t+2}, 4, v{t}")


S_HH, S_RR, S_J, S_P0, S_LC = "s52", "s53", "s54", "s55", "s3"

def prologue(a):
    a(f"""s_cmp_ge_u32 s2, 256
s_cbranch_scc1 L_end
s_load_dwordx16 s[4:19], s[0:1], 0
s_load_dwordx2 s[20:21], s[0:1], 64""")
    if cfg.span or cfg.probe >= 0: a("s_memrealtime s[100:101]")
    if cfg.stamps:
        a(f"s_memtime s[38:39]\ns_memrealtime s[100:101]")
        for i in range(1, 15): a(f"s_mov_b32 s{STAMP0+i}, 0")
    a(f"""s_lshr_b32 {S_IDX}, s2, 3
s_getpc_b64 s[70:71]
L_pc:
v_lshrrev_b32 v3, 5, v0
v_lshl_add_u32 v3, {S_IDX}, 4, v3
v_lshlrev_b32 v3, 7, v3
v_min_u32 v3, L_codeend-L_pc-4, v3
global_load_dword v255, v3, s[70:71]
v_lshrrev_b32 v2, 6, v0
v_and_b32 v1, 63, v0
v_readfirstlane_b32 {S_WAVE}, v2
s_and_b32 {S_XCD}, s2, 7
s_and_b32 {S_HH}, {S_IDX}, 7
s_lshr_b32 {S_RR}, {S_IDX}, 3
s_and_b32 {T5}, {S_XCD}, 1
s_lshl_b32 {S_H}, {T5}, 3
s_add_u32 {S_H}, {S_H}, {S_HH}
s_lshl_b32 {T0}, {S_HH}, 2
s_cmp_eq_u32 {T5}, 0
s_cselect_b32 {S_LC}, 0x67543210, s2
s_cselect_b32 {S_LC}, {S_LC}, 0x65432170
s_lshr_b32 {S_LC}, {S_LC}, {T0}
s_and_b32 {S_LC}, {S_LC}, 7
s_and_b32 {S_W4}, {S_WAVE}, 3
s_cmp_ge_u32 {S_WAVE}, 4
s_cbranch_scc1 L_roleA""")

def nonce(a):
    a(f"""s_waitcnt lgkmcnt(0)
s_mul_i32 s62, s62, 0x9E3779B1
s_add_u32 s62, s62, 0x7F4A7C15
s_mul_i32 s63, s63, 0x85EBCA6D
s_add_u32 s63, s63, 0x165667B1""")

def role_B(a):
    X = 16; ACC = 128; WB = 160; PK = 224
    SC = 70
    S_XL, S_TILE, S_I = "s77", "s78", "s79"
    TO = 36
    S_WM, S_WO, S_DM, S_DO = "s80", "s81", "s82", "s83"
    a(f"""s_setprio 3
s_mul_i32 {S_J}, {T5}, 7
s_add_u32 {S_J}, {S_J}, {S_LC}
v_lshrrev_b32 v8, 3, v1
v_and_b32 v9, 7, v1
v_mul_u32_u24 v2, 2688, v8
v_bfe_u32 v3, v1, 4, 1
v_lshlrev_b32 v3, 2, v3
v_xor_b32 v3, v9, v3
v_lshl_add_u32 v2, v3, 4, v2
s_lshl_b32 {T0}, {S_J}, 7
s_mul_i32 {T1}, {S_W4}, {8*2688}
s_add_u32 {T0}, {T0}, {T1}
s_add_u32 {T0}, {T0}, 896
v_add_u32 v2, {T0}, v2
s_lshl_b32 {T2}, {S_RR}, 3
s_lshr_b32 {T0}, {0xD66D0770 if cfg.wrot else 0x70707070}, {T2}
s_bfe_u32 {T1}, {T0}, 0x40004
s_and_b32 {T0}, {T0}, 15
s_lshl_b32 {T3}, {S_W4}, 10
s_lshl_b32 {T2}, {T0}, 12
s_add_u32 m0, {T2}, {T3}
s_mul_i32 {S_I}, {T0}, {32*2688}
s_lshl_b32 {T2}, {T1}, 12
s_add_u32 {S_WM}, {T2}, {T3}
s_mul_i32 {S_WO}, {T1}, {32*2688}
s_cmp_ge_u32 {S_RR}, {2 if cfg.wrot else 4}
s_cselect_b32 {T0}, -1, 1
s_lshl_b32 {S_DM}, {T0}, 12
s_mul_i32 {S_DO}, {T0}, {32*2688}
s_cmp_eq_u32 {S_LC}, 7
s_cselect_b32 s30, 0, {448 * 2688}
s_mov_b32 s31, 0x20000
s_waitcnt lgkmcnt(0)
{st0()}
s_mov_b64 s[28:29], s[12:13]""")
    def x_m0(i, j): return f"s_add_u32 m0, {S_XL}, {(i%4)*4096 + j*1024}"
    def x_ld(i, j): return f"buffer_load_dwordx4 v{4+j}, {sX}, s{SC+i} offen{' nt' if cfg.ntb else ''} lds"
    def sc_next(i): return f"s_add_u32 s{SC+i}, s{SC+i-1}, 128\ns_cmp_eq_u32 s{SC+i}, 896\ns_cselect_b32 s{SC+i}, 0, s{SC+i}"
    def w_base(i): return f"v_lshl_add_u32 v12, s{SC+i}, 6, v14\nv_xor_b32 v13, 64, v12"
    def setup_x():
        a(f"""s_mov_b32 s34, {2048*896}
s_mov_b32 s35, 0x20000
s_lshr_b32 {S_R}, {S_XCD}, 1
s_lshl_b32 {S_R}, {S_R}, 2
s_add_u32 {S_R}, {S_R}, {S_RR}
s_lshl_b32 {S_TILE}, {S_R}, 2
s_add_u32 {S_TILE}, {S_TILE}, {S_W4}
v_lshrrev_b32 v10, 4, v1
v_xor_b32 v10, v9, v10
v_xor_b32 v11, 4, v10
v_mul_u32_u24 v12, 896, v8
s_mul_i32 {T2}, {S_TILE}, {32*896}
v_add_u32 v12, {T2}, v12
v_lshl_add_u32 v4, v10, 4, v12
v_lshl_add_u32 v5, v11, 4, v12
v_add_u32 v5, {8*896}, v5
v_add_u32 v6, {16*896}, v4
v_add_u32 v7, {16*896}, v5
s_lshl_b32 {T2}, {S_HH}, 2
s_lshr_b32 s{SC}, {cfg.xrot}, {T2}
s_and_b32 s{SC}, s{SC}, 7
s_lshl_b32 s{SC}, s{SC}, 7
s_lshl_b32 {S_XL}, {S_W4}, 14
s_add_u32 {S_XL}, {S_XL}, {L_X}""")
        a("s_mov_b64 s[32:33], s[10:11]")
    def setup2():
        for i in range(1, 7): a(sc_next(i))
        x_read_addrs(a, 8, "v1", S_XL, 12)
        srd(a, sWS, 20, WS_SIZE)
        a(f"""v_lshrrev_b32 v12, 5, v1
v_lshlrev_b32 v12, 3, v12
v_bfe_u32 v13, v1, 2, 2
v_add_u32 v12, v12, v13
v_bfe_u32 v13, v1, 4, 1
v_lshlrev_b32 v13, 5, v13
v_and_b32 v18, 1, v1
v_bfe_u32 v19, v1, 1, 1
v_lshl_add_u32 v15, v18, 4, v13
v_lshl_add_u32 v15, v19, 3, v15
v_lshl_add_u32 v14, v18, 3, v13
v_lshl_add_u32 v14, v19, 4, v14
s_cmp_eq_u32 {T5}, 1
s_cselect_b64 vcc, -1, 0
v_cndmask_b32 v14, v15, v14, vcc
v_lshl_add_u32 v15, v12, 6, v15
v_add_u32 v15, {L_WQ}, v15
v_bfe_u32 v13, v1, 3, 1
v_lshl_add_u32 v14, v13, 6, v14
v_lshl_add_u32 v14, v12, 7, v14""")
        a(f"""v_lshrrev_b32 v253, 2, v1
v_mul_u32_u24 v253, 2688, v253
v_and_b32 v254, 3, v1
v_lshl_add_u32 v253, v254, 4, v253
s_mul_i32 {S_P0}, {S_H}, 7
s_lshr_b32 {S_P0}, {S_P0}, 1
s_lshl_b32 s80, {S_P0}, 4
s_mul_i32 s81, {S_W4}, {16*2688}
s_add_u32 s80, s80, s81
v_add_u32 v253, s80, v253
s_lshl_b32 s80, {S_W4}, 10
s_add_u32 s80, s80, {L_WQ}
s_and_b32 s81, {S_P0}, 7
s_cmp_gt_u32 s81, 4
s_cselect_b32 s81, 1, 0
s_nop 0""")
        a(w_base(0))
        a(f"v_mov_b32 v250, {L_SYNC}\nv_mov_b32 v251, 1\nv_mov_b32 v246, 0\ns_mov_b32 {S_BAR}, 0")
    VK, VV, VF, VL = 240, 241, 242, 243
    PG = ["s4", "s5", "s6", "s7"]; S_FL = "s8"
    def setup3():
        a(f"""v_lshlrev_b32 v{VL}, 4, v1
s_lshl_b32 {T0}, {S_P0}, 9
v_add_u32 v{VK}, {T0}, v{VL}
s_lshl_b32 {T0}, {S_H}, 11
s_add_u32 {T0}, {T0}, {VOFF}
v_add_u32 v{VV}, {T0}, v{VL}
s_lshr_b32 {T1}, {S_P0}, 3
s_add_u32 {T0}, {S_P0}, 3
s_lshr_b32 {T0}, {T0}, 3
s_sub_u32 {T0}, {T0}, {T1}
v_and_b32 v{VF}, 1, v1
v_mul_u32_u24 v{VF}, {T0}, v{VF}
v_bfe_u32 v18, v1, 1, 1
v_mul_u32_u24 v18, 7, v18
v_add_u32 v{VF}, v{VF}, v18
v_lshlrev_b32 v{VF}, 7, v{VF}
s_and_b32 {T0}, {S_R}, 12
s_add_u32 {T0}, {T0}, {S_W4}
s_lshl_b32 {T0}, {T0}, 4
s_add_u32 {T0}, {T0}, {T1}
s_lshl_b32 {T0}, {T0}, 7""")
        for g in range(4):
            a(f"s_add_u32 {PG[g]}, {T0}, {FKV}")
            if g < 3: a(f"s_add_u32 {T0}, {T0}, 8192\ns_and_b32 {T0}, {T0}, 32767")
        a(f"s_lshr_b32 {T2}, {S_R}, 2\ns_mul_i32 {T1}, {S_W4}, {4*TS}\ns_add_u32 {T1}, {T1}, {KV}")
        for p in range(4): a(f"s_add_u32 {T0}, {S_RR}, {p}\ns_and_b32 {T0}, {T0}, 3\ns_mul_i32 s{TO+12+p}, {T0}, {TS}")
        for g in range(4):
            a(f"s_mul_i32 {T0}, {T2}, {16*TS}\ns_add_u32 {T0}, {T0}, {T1}\ns_add_u32 {T2}, {T2}, 1\ns_and_b32 {T2}, {T2}, 3")
            for p in range(4):
                a(f"s_add_u32 s{TO+4*g+p}, {T0}, " + (f"{p*TS}" if (g == 0 or cfg.kvrot == 0) else f"s{TO+12+p}"))
        a(f"""s_cmp_eq_u32 {S_LC}, 7
s_cselect_b32 {T1}, 15, {S_J}
s_lshl_b32 {T0}, {S_R}, 4
s_add_u32 {T0}, {T0}, {T1}
s_lshl_b32 {T0}, {T0}, 7
s_add_u32 {S_FL}, {T0}, {FKV}""")
    stamp(a, 3, 2)
    XE = cfg.xearly
    def mid():
        stamp(a, 4, 2)
        a("s_barrier")
        if cfg.fine != 2: a(f"s_load_dwordx2 s[62:63], s[20:21], {EPOCH}")
        stamp(a, 5, 2)
    for i in range(14):
        a(f"buffer_load_dwordx4 v2, {sWQKV}, {S_I} offen lds")
        if i == 6:
            if XE:
                setup_x()
                for j in range(4): a(x_m0(0, j)); a("s_nop 0"); a(x_ld(0, j))
                mid()
            a(f"s_mov_b32 m0, {S_WM}\ns_mov_b32 {S_I}, {S_WO}")
            if XE: setup2(); setup3()
        elif i < 13: a(f"s_add_u32 m0, m0, {S_DM}\ns_add_u32 {S_I}, {S_I}, {S_DO}")
        if i == 10 and not XE:
            mid(); setup_x(); setup2(); setup3()
    stamp(a, 8, 2)
    a(f"s_waitcnt vmcnt({cfg.wfair})")
    stamp(a, 10, 2)
    for c in range(XE, 2 + XE):
        for j in range(4): a(x_m0(c, j)); a("s_nop 0"); a(x_ld(c, j))
    stamp(a, 11, 2)
    if cfg.fine == 2: a(f"s_load_dwordx2 s[62:63], s[20:21], {EPOCH}")
    nonce(a)
    a("v_mov_b32 v244, s62\nv_mov_b32 v245, s63\nds_write_b64 v250, v[244:245] offset:64")
    def w_base(i): return f"v_lshl_add_u32 v12, s{SC+i}, 6, v14\nv_xor_b32 v13, 64, v12"
    def wq(i): return f"s_add_u32 m0, s80, {i*4096}\ns_mul_i32 s82, s{SC+i}, {64*21}\nbuffer_load_dwordx4 v253, {sWQKV}, s82 offen lds"
    a(f"s_mov_b32 s30, {448 * 2688}")
    def w_reads(i):
        out = []
        for mm in range(4):
            for ct in range(2):
                for hf in range(2):
                    d = WB + (i % 2) * 32 + mm * 8 + ct * 4 + hf * 2
                    out.append(f"ds_read_b64_tr_b16 {V(d,2)}, v{12+ct} offset:{mm*2048 + hf*512}")
        return out
    def x_reads(i):
        return [f"ds_read_b128 {V(X+16*i+4*mm,4)}, v{8+mm} offset:{(i%4)*4096}" for mm in range(4)]
    a(f"""s_waitcnt vmcnt(8)""")
    stamp(a, 1)
    a(f"s_mov_b64 exec, 1\nds_add_u32 v250, v251\ns_mov_b64 exec, -1")
    for j in range(2): a(x_m0(2 + XE, j)); a("s_nop 0"); a(x_ld(2 + XE, j))
    lwait(a, "v250", 252, 4, 19)
    stamp(a, 3, 1)
    wr0 = w_reads(0)
    for s_ in wr0[:8]: a(s_)
    if not XE: a("s_waitcnt vmcnt(6)")
    for s_ in x_reads(0) + wr0[8:]: a(s_)
    a(f"s_cmp_eq_u32 {T5}, 1\ns_cbranch_scc1 L_kvV")
    for var in ("K", "V"):
        if var == "V": a("L_kvV:")
        late = [f"s_mul_i32 {T4}, {S_TILE}, {TS}", f"s_add_u32 {T4}, {T4}, {KV}", "v_lshlrev_b32 v7, 4, v1"]
        if var == "K":
            late += [f"s_lshl_b32 {T0}, {S_LC}, 12", f"s_add_u32 {T4}, {T4}, {T0}"]
        else:
            late += f"""s_lshl_b32 {T1}, {S_LC}, 6
v_and_b32 v4, 31, v1
v_add_u32 v4, {T1}, v4                    ; col (ct0)
v_add_u32 v5, 32, v4
v_lshrrev_b32 v3, 5, v1
v_lshlrev_b32 v3, 9, v3
v_add_u32 v3, {VOFF}, v3""".split("\n")
            for r in (4, 5):
                late += f"""v_mul_u32_u24 v2, 2341, v{r}
v_lshrrev_b32 v2, 16, v2
v_mul_u32_u24 v2, {2048 - 28*16}, v2
v_lshl_add_u32 v{r}, v{r}, 4, v2
v_add_u32 v{r}, v{r}, v3""".split("\n")
            late += f"""s_lshl_b32 {T1}, {S_LC}, 2
s_lshr_b32 {T2}, 0xDB96420, {T1}
s_and_b32 {T2}, {T2}, 15                  ; first head that ends in this line-column
s_lshr_b32 {T3}, 0x3223222, {T1}
s_and_b32 {T3}, {T3}, 15
s_lshl_b32 {T3}, {T3}, 4
v_lshrrev_b32 v6, 2, v1
v_lshlrev_b32 v6, 9, v6
v_and_b32 v2, 3, v1
v_lshl_add_u32 v6, v2, 4, v6
s_lshl_b32 {T2}, {T2}, 11
s_add_u32 {T2}, {T2}, {VOFF + 28*16}
v_add_u32 v6, {T2}, v6
v_cmp_eq_u32 vcc, 0, v2
v_mov_b32 v2, 0x3f803f80
s_nop 0
v_cndmask_b32 v236, 0, v2, vcc
v_cndmask_b32 v237, 0, v2, vcc
v_cndmask_b32 v238, 0, v2, vcc
v_cndmask_b32 v239, 0, v2, vcc""".split("\n")
        for i in range(7):
            a("s_waitcnt lgkmcnt(0)")
            stamp(a, 4 + i, 1)
            fill = [[] for _ in range(8)]
            pre = [[] for _ in range(8)]
            if i == 0:
                dq = [(c, j) for c in range(1, 7) for j in range(4)]
                issued_q = dq[:6 + 4*XE]; dq = dq[6 + 4*XE:]
            def take(g):
                if dq and dq[0][0] <= i + 4:
                    e = dq.pop(0); issued_q.append(e)
                    pre[g].append(x_m0(*e)); fill[g].insert(0, x_ld(*e))
            had = bool(dq)
            if i + 1 < 7:
                wr = w_reads(i + 1)
                fill[0] += [w_base(i + 1)] + wr[0:3]
                fill[1] += wr[3:8]; fill[2] += wr[8:12]; fill[3] += wr[12:16]
                for g in ((0, 1, 2, 3, 4) if i == 0 and not XE else (0,)): take(g)
                if i == 4:
                    fill[1].append("s_cmp_eq_u32 s81, 1\ns_cselect_b64 exec, -1, 0\n" + "\n".join(wq(q) for q in range(cfg.wqe)) + "\ns_mov_b64 exec, -1")
                    issued_q += [(99, q) for q in range(cfg.wqe)]
                last = max(q for q, e in enumerate(issued_q) if e[0] == i + 1)
                fill[4] += [f"s_waitcnt vmcnt({len(issued_q) - 1 - last})"] + x_reads(i + 1)
            for g in range(5, 8): take(g)
            if i == 4:
                assert not had
                fill[0].insert(0, "s_mov_b64 exec, 1\nds_add_u32 v250, v251 offset:8\ns_mov_b64 exec, -1")
            if not had:
                for g in range(5 if i < 6 else 0, 8):
                    for q in range(6):
                        if late: fill[g].append(late.pop(0))
            for mm in range(4):
                for ct in range(2):
                    xr = X + 16*i + 4*mm; wr_ = WB + (i % 2) * 32 + mm * 8 + ct * 4
                    c = None if (i == 0 and mm == 0) else ACC + 16*ct
                    for s_ in pre[2*mm + ct]: a(s_)
                    a(mfma(ACC + 16*ct, wr_, xr, c) if var == "K" else mfma(ACC + 16*ct, xr, wr_, c))
                    for s_ in fill[2*mm + ct]: a(s_)
        assert not late
        stamp(a, 11, 1)
        a(f"s_cmp_eq_u32 {S_LC}, 7\ns_cbranch_scc1 L_kvnone")
        if var == "V":
            a(f"s_bfm_b64 exec, {T3}, 0\nbuffer_store_dwordx4 v[236:239], v6, {sWS}, {T4} offen sc1\ns_mov_b64 exec, -1")
        for ct in range(2):
            for j in range(2):
                for q in range(4):
                    z = 8*ct + 4*j + q
                    a(f"v_cvt_pk_bf16_f32 v{PK+z}, v{ACC+2*z}, v{ACC+2*z+1}")
                if var == "K":
                    a(f"buffer_store_dwordx4 {V(PK+8*ct+4*j,4)}, v7, {sWS}, {T4} offen offset:{ct*2048+j*1024} sc1")
                else:
                    a(f"buffer_store_dwordx4 {V(PK+8*ct+4*j,4)}, v{4+ct}, {sWS}, {T4} offen offset:{j*1024} sc1")
        if var == "K": a("s_branch L_kvdone\nL_kvnone:\ns_waitcnt vmcnt(0)\ns_branch L_kvdone")
    a("L_kvdone:\ns_mov_b64 exec, 1\nds_add_u32 v250, v251\ns_mov_b64 exec, -1")
    stamp(a, 2)
    NB = cfg.nbuf
    Q = 16; O = 48; SA = 112; KVB = 144; P0 = KVB + 16*NB; P1 = P0 + 4
    assert P1 + 4 <= 240
    QP = 224
    S_LD = "s9"
    def kv_loads(t, so=None):
        b = KVB + 16 * (t % NB); so = so or f"s{TO+t}"
        return [f"buffer_load_dwordx4 {V(b+4*j,4)}, v{VK if j < 2 else VV}, {sWS}, {so} offen offset:{(j%2)*1024} sc1" for j in range(4)]
    PV = 254; QA = (4, 6, 8, 9)
    pl = poll_issue(f"v{VF}", PG[0], PV, 4)
    QW = 176
    def qsync(target):
        a("s_mov_b64 exec, 1\nds_add_u32 v250, v251 offset:4\ns_mov_b64 exec, -1")
        lwait(a, "v250", 5, target, 14, off=4)
    def qmma(c0, c1, issue, check):
        rd = [f"ds_read_b64_tr_b16 {V(QW+(i%3)*16+mm*4+hf*2,2)}, v15 offset:{i*4096+mm*1024+hf*256}" for i in range(c0, c1) for mm in range(4) for hf in range(2)]
        iss = min(len(rd), 12)
        for s_ in rd[:iss]: a(s_)
        for m in range(4 * (c1 - c0)):
            a(f"s_waitcnt lgkmcnt({iss - (2*m + 2)})")
            a(mfma(ACC, QW + ((c0 + m // 4) % 3) * 16 + 4*(m % 4), X + 16*c0 + 4*m, None if c0 + m == 0 else ACC))
            for s_ in rd[iss:iss+2]: a(s_)
            iss = min(len(rd), iss + 2)
            if m == issue: a(pl)
            if m == check:
                Lf, Lg = a.lab("pf"), a.lab("pg")
                a(f"s_waitcnt vmcnt(0)\n{poll_check(PV, 4)}\ns_cbranch_scc1 {Lf}\ns_mov_b32 {S_LD}, 1")
                for t in range(2):
                    for s_ in kv_loads(t): a(s_)
                a(f"s_branch {Lg}\n{Lf}:\n{pl}\n{Lg}:")
    S_OB, S_FO, S_LO, S_HI, S_CL, S_M0 = "s10", "s11", "s12", "s13", "s14", "s[76:77]"
    def addrs():
        a(f"""s_lshl_b32 {S_OB}, {S_TILE}, 4
s_add_u32 {S_OB}, {S_OB}, {S_H}
s_lshl_b32 {S_OB}, {S_OB}, 11
s_add_u32 {S_OB}, {S_OB}, {OBUF}
s_lshl_b32 {S_FO}, {S_R}, 4
s_add_u32 {S_FO}, {S_FO}, {S_H}
s_lshl_b32 {S_FO}, {S_FO}, 7
s_add_u32 {S_FO}, {S_FO}, {FO}
s_mov_b32 {S_LO}, {lit(2.0**-40)}
s_mov_b32 {S_HI}, {lit(2.0**30)}
s_movk_i32 {S_CL}, 0x1f8
s_cmp_eq_u32 {S_W4}, 0
s_cselect_b64 {S_M0}, 1, 0
v_mov_b32 v2, v250
v_mov_b32 v3, 1
v_mov_b32 v7, v{VL}
v_mov_b32 v248, {lit(28 ** -0.5 * math.log2(math.e))}
v_mov_b32 v249, v248""")
        for i in range(4):
            a(f"""s_add_u32 {T0}, {S_W4}, {i+1}
s_and_b32 {T0}, {T0}, 3
s_lshl_b32 {T1}, {T0}, 11
s_add_u32 {T1}, {T1}, {L_Q}
v_add_u32 v{QA[i]}, {T1}, v7
s_mul_i32 {T0}, {T0}, 12288
s_add_u32 {T0}, {T0}, {(i%3)*4096 + L_RED}
v_add_u32 v{10+i}, {T0}, v7""")
    def publish(n):
        a(f"s_waitcnt vmcnt({n})")
        publish_wg(a, "v250", "v251", 16, 5, S_FL, 244)
        stamp(a, 3)
        a("s_waitcnt vmcnt(1)")
    E = cfg.wqe
    a(f"s_mov_b32 {S_LD}, 0\ns_cmp_eq_u32 s81, 1\ns_cbranch_scc1 L_qtwo")
    for i in range(7): a(wq(i))
    addrs()
    publish(7)
    qsync(4)
    stamp(a, 4)
    qmma(0, 7, cfg.m1, cfg.m2)
    a("s_branch L_qdone\nL_qtwo:\ns_waitcnt vmcnt(4)")
    qsync(4)
    for i in range(E, 7): a(wq(i))
    qmma(0, E, -1, -1)
    addrs()
    publish(7 - E)
    qsync(8)
    stamp(a, 4)
    qmma(E, 7, 0, 4 * (7 - E) - 1)
    a("L_qdone:")
    stamp(a, 5)
    a(f"s_bitcmp1_b32 {S_H}, 0")
    for hf in range(2):
        for q in range(8*hf, 8*hf+8, 2): a(f"v_pk_mul_f32 {V(ACC+q,2)}, {V(ACC+q,2)}, v[248:249]")
        for q in range(4*hf, 4*hf+4): a(f"v_cvt_pk_bf16_f32 v{QP+q}, v{ACC+2*q}, v{ACC+2*q+1}")
        if hf == 0: a(f"s_cselect_b32 exec_lo, -1, 0\ns_mov_b32 exec_hi, 0\nv_mov_b32 v{QP}, 0\nv_mov_b32 v{QP+1}, 0\ns_mov_b64 exec, -1")
        else: a(f"s_cselect_b32 exec_hi, 0, -1\ns_mov_b32 exec_lo, 0\nv_mov_b32 v{QP+6}, 0\nv_mov_b32 v{QP+7}, 0\ns_mov_b64 exec, -1")
        a(f"ds_write_b128 v9, {V(QP+4*hf,4)} offset:{1024*hf}")
    a(f"""s_mov_b64 exec, 1
ds_add_u32 v2, v3
s_mov_b64 exec, -1
s_cmp_eq_u32 {S_LD}, 1
s_cbranch_scc1 L_kvloaded
s_waitcnt vmcnt(0)
{poll_check(PV, 4)}
s_cbranch_scc0 L_kvready""")
    poll(a, f"v{VF}", PG[0], PV, 4, 1, sleep=2)
    a("L_kvready:")
    for t in range(2):
        for s_ in kv_loads(t): a(s_)
    a("L_kvloaded:\ns_mov_b64 exec, 1\nds_add_u32 v2, v3 offset:12\ns_mov_b64 exec, -1")
    stamp(a, 6)
    lwait(a, "v2", 5, 12, 15)
    a(f"s_mov_b32 {S_BAR}, 12")
    for i in range(4):
        a(f"ds_read_b128 {V(Q+8*i,4)}, v{QA[i]}\nds_read_b128 {V(Q+8*i+4,4)}, v{QA[i]} offset:1024")
    stamp(a, 7)
    a("s_waitcnt vmcnt(6) lgkmcnt(6)\ns_setprio 0")
    if cfg.padmid: padto(a, cfg.padmid)
    stamp(a, 8)
    a(mfma(SA, KVB, Q)); a(mfma(SA, KVB + 4, Q + 4, SA))
    a("s_waitcnt vmcnt(4) lgkmcnt(0)\ns_nop 9\n.p2align 3")
    sched = {}
    issued = 2
    for t in range(16):
        for i in (1, 2):
            if (i == 1 or t % cfg.ramp == 0) and issued <= min(15, t + NB - 1):
                sched[(t, i)] = issued; issued += 1
    first = {g: min(k for k, v in sched.items() if v == 4*g) for g in (1, 2, 3)}
    pollat = {(k[0] - 1, 0): g for g, k in first.items()}
    vq = [("t", 1)] * 4
    def after(tag): return len(vq) - 1 - max(q for q, e in enumerate(vq) if e == tag)
    assert NB >= 5
    units = [(t, i) for t in range(12) for i in range(4)] + [(t, i) for i in range(4) for t in range(12, 16)]
    firstuse = {}
    for n, (t, i) in enumerate(units): firstuse.setdefault(t, n)
    waitat = {n - 2: t for t, n in firstuse.items() if t > 0}
    kb = lambda tt: KVB + 16 * (tt % NB)
    redw = lambda i, q: f"ds_write_b128 v{10+i}, {V(O+16*i+4*q,4)} offset:{q*1024}"
    for n, (t, i) in enumerate(units):
        if n % 8 == 0 and n: stamp(a, n // 8, 3)
        cur = SA + 16 * (n % 2); nxt = SA + 16 * ((n + 1) % 2)
        ms = [None] * 4
        if n < 63:
            tn, inx = units[n + 1]
            ms[0] = mfma(nxt, kb(tn), Q + 8*inx); ms[1] = mfma(nxt, kb(tn) + 4, Q + 8*inx + 4, nxt)
        if n > 0:
            tp, ip = units[n - 1]
            ms[2] = mfma(O + 16*ip, kb(tp) + 12, P1, O + 16*ip)
        ms[3] = mfma(O + 16*i, kb(t) + 8, P0, None if t == 0 else O + 16*i)
        side = [None] * 4
        key = (n // 4, n % 4)
        if key in sched:
            assert n < 48
            tl = sched[key]
            if tl % 4 == 0:
                g = tl // 4
                a(f"s_waitcnt vmcnt({after(('p', g))})\nv_cmp_ne_u64 vcc, {S_NONCE}, v[14:15]\ns_cbranch_vccnz L_gate{g}\nL_gated{g}:\ns_nop 0")
            side = kv_loads(tl); vq += [("t", tl)] * 4
        if key in pollat:
            g = pollat[key]
            side[0] = f"buffer_load_dwordx2 v[14:15], v{VF}, {sWS}, {PG[g]} offen sc1"; vq.append(("p", g))
        sig = "\ns_mov_b64 exec, 1\nds_add_u32 v2, v3\ns_mov_b64 exec, -1"
        rdr = lambda q: f"ds_read_b128 {V(O+4*q,4)}, v13 offset:{q*1024}"
        if 53 <= n <= 56: side[1] = redw(0, n - 53)
        if n in (57, 58): side[1] = redw(1, 2*(n - 57)); side[3] = redw(1, 2*(n - 57) + 1) + (sig if n == 58 else "")
        if n == 60: side[1] = "ds_read_b32 v5, v2"
        if n == 61:
            a(f"s_waitcnt lgkmcnt(0)\nv_readfirstlane_b32 {T0}, v5\ns_cmp_ge_u32 {T0}, 16\ns_cbranch_scc0 L_redw\nL_redd:")
        if n in (61, 62):
            k_ = n - 61
            side = [redw(2, 2*k_), rdr(4*k_) + "\n" + rdr(4*k_+1), redw(2, 2*k_+1) + (sig if k_ else ""), rdr(4*k_+2) + "\n" + rdr(4*k_+3)]
        if n == 63: side[2] = "ds_read2_b32 v[4:5], v2 offset0:34 offset1:0"
        if n == cfg.bhi: side[0] = "s_setprio 3\ns_nop 0" + ("\n" + side[0] if side[0] else "")
        for p in range(4):
            if ms[p]: a(ms[p])
            if side[p]: a(side[p])
            for e in range(4):
                if n in waitat and p == 3 and e == 3:
                    a(f"s_waitcnt vmcnt({after(('t', waitat[n]))})\nv_exp_f32_e64 v{cur+4*p+e}, v{cur+4*p+e}")
                else:
                    a(f"v_exp_f32 v{cur+4*p+e}, v{cur+4*p+e}")
            pk = (P0, P0 + 2, P1, P1 + 2)[p]
            a(f"v_cvt_pk_bf16_f32 v{pk}, v{cur+4*p}, v{cur+4*p+1}\nv_cvt_pk_bf16_f32 v{pk+1}, v{cur+4*p+2}, v{cur+4*p+3}")
    a(f"s_waitcnt lgkmcnt(0)\nv_readfirstlane_b32 {T0}, v5\nv_readfirstlane_b32 {T1}, v4")
    a(mfma(O + 48, kb(15) + 12, P1, O + 48))
    a(f"s_add_u32 {T1}, {T1}, {12 if cfg.ohint and not cfg.noA else 20}\ns_min_u32 {T0}, {T0}, {T1}\ns_cmp_ge_u32 {T0}, 20\ns_cbranch_scc0 L_redw2\nL_redd2:")
    for q in range(8, 12): a(f"ds_read_b128 {V(O+4*q,4)}, v13 offset:{q*1024}")
    a("s_mov_b64 exec, 1\nds_add_u32 v2, v3")
    if cfg.ohint: a(f"s_mov_b64 exec, {S_M0}\nbuffer_store_dwordx2 v[244:245], v246, {sWS}, {S_FO} offen sc1")
    a("s_mov_b64 exec, -1")
    stamp(a, 9)
    OO = O + 48
    for q in range(0, 16, 2): a(f"v_pk_add_f32 {V(O+q,2)}, {V(O+q,2)}, {V(O+16+q,2)}")
    for q in range(0, 16, 2): a(f"v_pk_add_f32 {V(OO+q,2)}, {V(OO+q,2)}, {V(O+q,2)}")
    a("s_waitcnt lgkmcnt(1)")
    for q in (12, 0, 2, 4, 6, 8, 10, 14): a(f"v_pk_add_f32 {V(OO+q,2)}, {V(OO+q,2)}, {V(O+32+q,2)}")
    a(f"""v_mov_b32 v10, v{OO+12}
v_mov_b32 v11, v{OO+12}
v_pk_add_f32 v[12:13], {V(OO,2)}, {V(OO+2,2)}
v_pk_add_f32 v[14:15], {V(OO+4,2)}, {V(OO+6,2)}
v_permlane32_swap_b32 v10, v11
v_pk_add_f32 v[12:13], v[12:13], {V(OO+8,2)}
v_pk_add_f32 v[14:15], v[14:15], {V(OO+10,2)}
v_rcp_f32 v10, v11
v_pk_add_f32 v[12:13], v[12:13], {V(OO+12,2)}
v_pk_add_f32 v[14:15], v[14:15], {V(OO+14,2)}
v_cmp_le_f32 s[70:71], {S_LO}, v11
v_pk_add_f32 v[12:13], v[12:13], v[14:15]
v_cmp_ge_f32 s[72:73], {S_HI}, v11
v_add_f32 v12, v12, v13
v_cmp_class_f32 vcc, v12, {S_CL}
s_and_b64 s[70:71], s[70:71], s[72:73]
s_and_b64 vcc, vcc, s[70:71]
s_cmp_eq_u64 vcc, exec""")
    if cfg.force_fb: a("s_cmp_eq_u32 0, 1")
    a(f"s_cbranch_scc0 L_fallback\nL_fbdone:\nv_mov_b32 v11, v10")
    for hf in range(2):
        for q in range(8*hf, 8*hf+8, 2): a(f"v_pk_mul_f32 {V(OO+q,2)}, {V(OO+q,2)}, v[10:11]")
        for q in range(4*hf, 4*hf+4): a(f"v_cvt_pk_bf16_f32 v{O+q}, v{OO+2*q}, v{OO+2*q+1}")
        if hf: a(f"s_mov_b32 exec_lo, 0\nv_mov_b32 v{O+6}, 0\ns_mov_b32 exec_lo, -1")
        if cfg.ohint: a(f"v_min_u32 v{O+4*hf}, -2, v{O+4*hf}")
        a(f"buffer_store_dwordx4 {V(O+4*hf,4)}, v7, {sWS}, {S_OB} offen offset:{1024*hf} sc1")
    stamp(a, 10)
    if cfg.ohint: a("s_setprio 0")
    S_BP, S_CNT, S_DT = "s70", "s71", "s72"
    GS = 144; GC = 176; GP = 180; ZR = 196; AR = 112
    a(f"""s_lshl_b32 {S_BP}, {S_XCD}, 3
s_lshr_b32 {T0}, {S_IDX}, 2
s_add_u32 {S_BP}, {S_BP}, {T0}
s_and_b32 {T1}, {S_IDX}, 3
s_cmp_ge_u32 {T1}, 2
s_cselect_b32 {S_CNT}, 3, 4
s_lshl_b32 {S_DT}, {T1}, 2
s_cmp_eq_u32 {T1}, 3
s_cselect_b32 {S_DT}, 11, {S_DT}
s_add_u32 {S_DT}, {S_DT}, {S_W4}
v_bfe_u32 v5, v1, 2, 1
v_lshlrev_b32 v5, 4, v5
v_bfe_u32 v6, v1, 3, 2
v_lshl_add_u32 v5, v6, 2, v5
v_and_b32 v6, 3, v1
v_add_u32 v5, v5, v6
s_lshl_b32 {T0}, {S_DT}, 5
v_add_u32 v5, {T0}, v5                    ; d
v_lshlrev_b32 v9, 31, v5
v_xor_b32 v9, 0.5, v9                     ; 0.5*(-1)^d
v_cvt_f32_u32 v5, v5
v_mul_f32 v5, {lit(1/448)}, v5
v_lshrrev_b32 v4, 5, v1
v_cvt_f32_u32 v6, v4
v_mul_f32 v6, v5, v6
v_mul_f32 v6, 4.0, v6
v_mul_f32 v{GC}, {lit(16.0)}, v5
v_cos_f32 v{GC}, v{GC}""")
    for j in range(16): a(f"v_fmamk_f32 v{GS+j}, v5, {lit(float(16*(j//8) + 8*((j%8)//4) + j%4))}, v6")
    a(f"v_add_f32 v{GC}, v{GC}, v{GC}")
    for j in range(16): a(f"v_sin_f32_e64 v{GS+16+j}, -v{GS+j}\nv_cos_f32 v{GS+j}, v{GS+j}")
    a(f"v_mov_b32 v{GC+1}, v{GC}")
    if not cfg.ohint:
        a("s_waitcnt vmcnt(0)")
        publish_wg(a, "v2", "v3", 20, 5, S_FO, 244)
    stamp(a, 11)
    a(f"s_setprio 0\ns_cmp_ge_u32 {S_W4}, {S_CNT}\ns_cbranch_scc1 L_bend")
    srd(a, sOUT, 16, 2048 * 1792)
    a(f"""v_add_u32 v8, {L_ZB}, v7
v_and_b32 v6, 31, v1
v_mul_u32_u24 v6, {64*1792}, v6
v_lshl_add_u32 v6, v4, 5, v6
s_mul_i32 {T4}, {S_BP}, 1792
s_lshl_b32 {T1}, {S_DT}, 6
s_add_u32 {T4}, {T4}, {T1}""")
    lwait(a, "v2", 5, 4, 17, sleep=1, off=132)
    stamp(a, 13)
    order = [4*(q//4) + 2*(q % 2) + ((q//2) % 2) for q in range(28)]
    for q in range(8): a(f"ds_read_b128 {V(ZR+4*q,4)}, v8 offset:{order[q]*1024}")
    a(".p2align 3")
    for q in range(28):
        rho = q % 2; st = q // 2
        cur = GS + 16*rho + 8*(st % 2); oth = GS + 16*rho + 8*((st + 1) % 2); gp = GP + 4*(q % 4)
        if st >= 2:
            for z in range(0, 8, 2):
                a(f"v_pk_fma_f32 {V(cur+z,2)}, {V(GC,2)}, {V(oth+z,2)}, {V(cur+z,2)} neg_lo:[0,0,1] neg_hi:[0,0,1]")
        for z in range(4): a(f"v_cvt_pk_bf16_f32 v{gp+z}, v{cur+2*z}, v{cur+2*z+1}")
        if st == 0:
            a(f"s_mov_b32 exec_hi, 0\nv_cvt_pk_bf16_f32 v{gp}, {'v9' if rho else '0.5'}, v{cur+1}\ns_mov_b32 exec_hi, -1")
        if q >= 1:
            p = q - 1
            if p % 4 == 0: a(f"s_waitcnt lgkmcnt({max(0, min(4, 24-p))})\ns_nop 0")
            a(mfma(AR, GP + 4*(p % 4), ZR + 4*(p % 8), None if p == 0 else AR))
            if p + 8 < 28: a(f"ds_read_b128 {V(ZR+4*(p%8),4)}, v8 offset:{order[p+8]*1024}")
    a(mfma(AR, GP + 4*(27 % 4), ZR + 4*(27 % 8), AR))
    osc = ("", " sc1", " nt", " sc0 sc1")[cfg.outsc]
    if cfg.odefer and not cfg.noA: lwait(a, "v2", 5, 8, 36, sleep=2, off=132)
    for hf in range(2):
        for q in range(4*hf, 4*hf+4): a(f"v_cvt_pk_bf16_f32 v{GS+q}, v{AR+2*q}, v{AR+2*q+1}")
        a(f"buffer_store_dwordx4 {V(GS+4*hf,4)}, v6, {sOUT}, {T4} offen offset:{16*hf}{osc}")
    a("L_bend:")
    stamp(a, 12)
    dump_stamps(a, 240)
    a("s_endpgm")
    a("L_redw:")
    lwait(a, "v2", 5, 16, 2)
    a("s_branch L_redd\nL_redw2:")
    lwait(a, "v2", 5, 20, 2)
    if cfg.ohint and not cfg.noA: lwait(a, "v2", 5, 8, 39, sleep=1, off=136)
    a("s_branch L_redd2")
    for g in (1, 2, 3):
        a(f"L_gate{g}:")
        poll(a, f"v{VF}", PG[g], 14, 4, 25, sleep=2)
        a(f"s_branch L_gated{g}")
    a("L_fallback:")
    QO = Q + 24; KB = KVB; M = 15; S_SO = "s70"
    a(f"v_mov_b32 v{M}, 0xff800000\ns_mov_b32 {S_SO}, {KV}\nL_fb1:")
    for s_ in kv_loads(0, S_SO)[:2]: a(s_)
    a(f"s_add_u32 {S_SO}, {S_SO}, {TS}\ns_waitcnt vmcnt(0)")
    a(mfma(SA, KB, QO)); a(mfma(SA, KB + 4, QO + 4, SA))
    for q in range(0, 16, 2): a(f"v_max3_f32 v{M}, v{M}, v{SA+q}, v{SA+q+1}")
    a(f"""s_cmp_lt_u32 {S_SO}, {KV + 64*TS}
s_cbranch_scc1 L_fb1
v_mov_b32 v14, v{M}
v_permlane32_swap_b32 v14, v{M}
v_max_f32 v{M}, v14, v{M}
s_mov_b32 {S_SO}, {KV}""")
    for q in range(16): a(f"v_mov_b32 v{OO+q}, 0")
    a("L_fb2:")
    for s_ in kv_loads(0, S_SO): a(s_)
    a(f"s_add_u32 {S_SO}, {S_SO}, {TS}\ns_waitcnt vmcnt(0)")
    a(mfma(SA, KB, QO)); a(mfma(SA, KB + 4, QO + 4, SA))
    for q in range(16): a(f"v_sub_f32 v{SA+q}, v{SA+q}, v{M}")
    for q in range(16): a(f"v_exp_f32 v{SA+q}, v{SA+q}")
    for q in range(8): a(f"v_cvt_pk_bf16_f32 v{P0+q}, v{SA+2*q}, v{SA+2*q+1}")
    a(mfma(OO, KB + 8, P0, OO)); a(mfma(OO, KB + 12, P1, OO))
    a(f"""s_cmp_lt_u32 {S_SO}, {KV + 64*TS}
s_cbranch_scc1 L_fb2
v_mov_b32 v10, v{OO+12}
v_mov_b32 v11, v{OO+12}
v_permlane32_swap_b32 v10, v11
v_rcp_f32 v10, v11
s_branch L_fbdone""")

def role_A(a):
    FB = 16; GS0 = 48; M = 72; F = 88; ACC = 200; TMP = 216
    S_BP = "s78"
    S_CG, S_CNT, S_CB, S_DT, S_TASK, S_K1 = "s79", "s80", "s81", "s82", "s83", "s73"
    S_B, S_KT16 = S_BP, S_DT
    (PN, _, _, P_TST, P_W, P_F1, P_TLD, P_TBW, P_TBR, P_TTW, P_TTR, P_UST, P_F2, P_WOD, P_WOR, P_WOR2,
     P_ZW0, P_ZW1, P_PF, P_BC, P_PS, _, P_LS, P_DUM) = range(232, 256)
    sc = 1.0 / (2048 * 448)
    def albar(code): lbar(a, "v14", "v15", P_LS, code, sleep=1)
    def burst(items, th):
        a("s_setprio 0")
        for q, it in enumerate(items):
            if q >= th: a(f"s_waitcnt vmcnt({th-1})")
            a(it)
        a(f"s_setprio {cfg.aprio}")
    SB = "s[74:75]"
    def stage_arrive(k):
        L = a.lab("arr")
        a(f"""s_waitcnt vmcnt(0)
s_mov_b64 exec, 1
ds_add_rtn_u32 v{P_LS}, v14, v15 offset:8
s_mov_b64 exec, -1
s_waitcnt lgkmcnt(0)
v_readfirstlane_b32 {T0}, v{P_LS}
s_cmp_eq_u32 {T0}, {4*k+3}
s_cbranch_scc0 {L}
s_mov_b32 {T0}, 1
s_lshl_b32 {T1}, {S_XCD}, 7
s_add_u32 {T1}, {T1}, {k*1024}
s_atomic_add {T0}, {SB}, {T1} glc
s_waitcnt lgkmcnt(0)
s_sub_u32 {T0}, {T0}, s62
s_cmp_eq_u32 {T0}, 31
s_cbranch_scc0 {L}
s_mov_b32 {T1}, {FA1 + 2048 + k*8192}
s_mov_b64 exec, {-1 if cfg.allpoll else 0xffff}
buffer_atomic_add v15, v{P_PF}, {sWS}, {T1} offen sc1
s_mov_b64 exec, -1
{L}:""")
    def stage_wait(k, pre):
        L, L2, L3 = a.lab("sw"), a.lab("sw"), a.lab("sw")
        if not cfg.allpoll: a(f"s_cmp_eq_u32 {S_W4}, 0\ns_cbranch_scc0 {L2}")
        a(f"""s_and_b32 {T1}, s2, 15
s_lshl_b32 {T2}, {S_W4}, 4
s_add_u32 {T1}, {T1}, {T2}
s_lshl_b32 {T1}, {T1}, 7
s_add_u32 {T1}, {T1}, {2048 + k*8192}
s_add_u32 {T2}, s62, 8
s_mov_b32 {S_TO}, {cfg.poll_limit}
s_waitcnt lgkmcnt(0)
s_sleep {pre}
{L}:
s_mov_b32 {T0}, 0
s_atomic_or {T0}, {SB}, {T1} glc
s_waitcnt lgkmcnt(0)
s_cmp_eq_u32 {T0}, {T2}
s_cbranch_scc1 {L}d
s_sleep {cfg.bsleep}
s_sub_u32 {S_TO}, {S_TO}, 1
s_cbranch_scc0 {L}
s_mov_b32 {S_TO}, 32
s_branch L_fail
{L}d:""")
        if cfg.allpoll: return
        a(f"s_mov_b64 exec, 1\nds_add_u32 v14, v15 offset:12\ns_mov_b64 exec, -1\ns_branch {L3}\n{L2}:")
        lwait(a, "v14", P_LS, k + 1, 33, sleep=cfg.lsl, off=12)
        a(f"{L3}:")
    def pace():
        if cfg.pace: a(f"s_sleep {cfg.pace}")
    a(f"""L_roleA:
v_mov_b32 v3, 0
v_mov_b32 v2, {L_SYNC}
ds_write2_b32 v2, v3, v3 offset0:0 offset1:32
ds_write2_b32 v2, v3, v3 offset0:1 offset1:2
ds_write2_b32 v2, v3, v3 offset0:3 offset1:33
ds_write2_b32 v2, v3, v3 offset0:4 offset1:34
ds_write2_b32 v2, v3, v3 offset0:5 offset1:35
s_setprio {cfg.aprio}
s_mov_b32 {S_BAR}, 0
s_lshl_b32 {S_BP}, {S_XCD}, 3
s_lshr_b32 {T0}, {S_IDX}, 2
s_add_u32 {S_BP}, {S_BP}, {T0}
s_and_b32 {S_CG}, {S_IDX}, 3
s_cmp_ge_u32 {S_CG}, 2
s_cselect_b32 {S_CNT}, 3, 4
s_lshl_b32 {S_CB}, {S_CG}, 2
s_cmp_eq_u32 {S_CG}, 3
s_cselect_b32 {S_CB}, 11, {S_CB}
s_add_u32 {S_DT}, {S_CB}, {S_W4}
v_and_b32 v2, 31, v1                      ; v2 = lane%32
v_lshrrev_b32 v3, 5, v1                   ; v3 = half
v_cvt_f32_u32 v4, v3
s_waitcnt lgkmcnt(0)
{st0()}""")
    if cfg.touch:
        tl = [["s[10:11], 0", "s[4:5], 0", "s[6:7], 0"], ["s[20:21], s76", "s[8:9], 0", "s[14:15], 0"],
              ["s[20:21], s77", "s[16:17], 0", "s[16:17], s76"], ["s[20:21], s74", "s[20:21], s75"]]
        a(f"s_cmp_ge_u32 {S_IDX}, {cfg.touch}\ns_cbranch_scc1 L_tch\ns_mov_b32 s76, 0x200000\ns_mov_b32 s77, 0x600000\ns_mov_b32 s74, 0x400000\ns_mov_b32 s75, 0x800000")
        for w in range(4):
            a(f"s_cmp_lg_u32 {S_W4}, {w}\ns_cbranch_scc1 L_tch{w}")
            for t_ in tl[w]: a(f"s_load_dword s72, {t_}")
            a(f"L_tch{w}:")
        a("L_tch:")
    def angles(n, vstep, vbase, offs, dst=TMP):
        for j in range(n): a(f"v_fmamk_f32 v{dst+j}, {vstep}, {lit(float(offs[j]))}, {vbase}")
    def gen_F():
        A0 = TMP; A1 = TMP + 8; C2 = TMP + 16
        a(f"""v_and_b32 v5, 15, v1
s_lshl_b32 {T0}, {S_KT16}, 4
v_add_u32 v5, {T0}, v5                    ; k
v_bfe_u32 v6, v1, 4, 1
v_lshl_add_u32 v7, v5, 1, v6
v_cmp_eq_u32 vcc, 1, v7
v_mov_b32 v7, 224
v_cndmask_b32 v5, v5, v7, vcc
v_cndmask_b32 v6, v6, 0, vcc
v_cvt_f32_u32 v5, v5
v_cvt_f32_u32 v6, v6
v_mul_f32 v5, {lit(1/448)}, v5            ; kf
v_mul_f32 v6, {lit(0.25)}, v6
v_mul_f32 v7, v5, v4
v_fmamk_f32 v6, v7, {lit(8.0)}, v6
v_mul_f32 v{C2}, {lit(16.0)}, v5
v_cos_f32 v{C2}, v{C2}""")
        angles(16, "v5", "v6", [j % 8 + 16 * (j // 8) for j in range(16)])
        a(f"v_add_f32 v{C2}, v{C2}, v{C2}")
        for j in range(16): a(f"v_cos_f32 v{A0+j}, v{A0+j}")
        a(f"v_mov_b32 v{C2+1}, v{C2}\ns_barrier\n.p2align 3")
        for m in range(28):
            cur = A0 if m % 2 == 0 else A1; oth = A1 if m % 2 == 0 else A0
            if m >= 2:
                for q in range(0, 8, 2):
                    a(f"v_pk_fma_f32 {V(cur+q,2)}, {V(C2,2)}, {V(oth+q,2)}, {V(cur+q,2)} neg_lo:[0,0,1] neg_hi:[0,0,1]")
            for q in range(4): a(f"v_cvt_pk_bf16_f32 v{F+4*m+q}, v{cur+2*q}, v{cur+2*q+1}")
    def gen_M():
        a(f"""v_cvt_f32_u32 v5, v2
s_and_b32 {T0}, {S_W4}, 1
s_lshl_b32 {T0}, {T0}, 10
s_add_u32 {T0}, {T0}, {S_B}
v_lshl_add_u32 v6, v3, 8, {T0}
v_cvt_f32_u32 v6, v6
v_mul_f32 v6, v6, v5
s_cmp_ge_u32 {S_W4}, 2
s_cselect_b32 {T0}, {lit(0.25)}, 0
v_mov_b32 v7, {T0}
v_fmamk_f32 v6, v6, {lit(1/2048)}, v7
v_mul_f32 v5, {lit(1/32)}, v5""")
        angles(8, "v5", "v6", [8*(j//4) + j%4 for j in range(8)])
        for j in range(8): a(f"v_cos_f32 v{TMP+j}, v{TMP+j}")
        for q in range(4): a(f"v_cvt_pk_bf16_f32 v{ACC+8+q}, v{TMP+2*q}, v{TMP+2*q+1}")
    def gen_MS():
        a(f"""v_lshlrev_b32 v5, 6, v2
v_add_u32 v5, {S_BP}, v5
v_cvt_f32_u32 v5, v5
v_mul_f32 v5, {lit(1/2048)}, v5
s_lshl_b32 {T0}, {S_W4}, 3
v_lshl_add_u32 v6, v3, 2, {T0}
v_cvt_f32_u32 v6, v6
v_mul_f32 v6, v5, v6""")
        angles(4, "v5", "v6", range(4), TMP + 8)
        for j in range(4): a(f"v_cos_f32 v{TMP+2*j}, v{TMP+8+j}\nv_sin_f32 v{TMP+2*j+1}, v{TMP+8+j}")
        a(f"v_mov_b32 v6, {lit(2*sc)}\nv_mov_b32 v7, v6")
        for j in range(4): a(f"v_pk_mul_f32 {V(TMP+2*j,2)}, {V(TMP+2*j,2)}, v[6:7]")
        for j in range(4):
            a(f"v_cvt_pk_bf16_f32 v{48+j}, v{TMP+2*j}, v{TMP+2*j+1}\nv_cvt_pk_bf16_f32 v{52+j}, v{TMP+2*j+1}, -v{TMP+2*j}")
    def gen_FB():
        a(f"""v_and_b32 v5, 15, v1
s_lshl_b32 {T0}, {S_W4}, 4
v_add_u32 v5, {T0}, v5
v_cvt_f32_u32 v5, v5
v_mul_f32 v5, {lit(1/64)}, v5
v_bfe_u32 v6, v1, 4, 1
v_cvt_f32_u32 v6, v6
v_mul_f32 v6, {lit(0.25)}, v6
v_mul_f32 v7, v5, v4
v_fmamk_f32 v6, v7, {lit(4.0)}, v6""")
        C2 = TMP + 16
        a(f"v_mul_f32 v{C2}, {lit(8.0)}, v5\nv_cos_f32 v{C2}, v{C2}")
        angles(8, "v5", "v6", [8*(j//4) + j%4 for j in range(8)], TMP + 20)
        a(f"v_add_f32 v{C2}, v{C2}, v{C2}")
        for j in range(8): a(f"v_cos_f32 v{TMP+2*j}, v{TMP+20+j}\nv_sin_f32 v{TMP+2*j+1}, v{TMP+20+j}")
        a(f"v_mov_b32 v{C2+1}, v{C2}")
        for m in range(8):
            cur = TMP + 8*(m % 2); oth = TMP + 8*((m + 1) % 2)
            if m >= 2:
                for q in range(0, 8, 2):
                    a(f"v_pk_fma_f32 {V(cur+q,2)}, {V(C2,2)}, {V(oth+q,2)}, {V(cur+q,2)} neg_lo:[0,0,1] neg_hi:[0,0,1]")
            for q in range(4): a(f"v_cvt_pk_bf16_f32 v{FB+4*m+q}, v{cur+2*q}, v{cur+2*q+1}")
    def gen_addr():
        a(f"""v_mov_b32 v{PN+2}, 0
v_lshlrev_b32 v7, 4, v1                   ; v7 = lane*16
v_and_b32 v6, 3, v1
v_lshrrev_b32 v5, 2, v1
v_lshlrev_b32 v5, 16, v5
v_lshl_add_u32 v{P_TST}, v6, 4, v5
s_lshl_b32 {T1}, {S_W4}, 11
s_add_u32 {T0}, {T1}, {L_TT}
v_add_u32 v{P_TTR}, {T0}, v7
v_lshlrev_b32 v5, 6, v2
v_lshl_add_u32 v5, v3, 4, v5
v_add_u32 v{P_TTW}, {T0}, v5
s_lshl_b32 {S_TASK}, {S_XCD}, 5
s_add_u32 {S_TASK}, {S_TASK}, {S_IDX}
s_lshr_b32 {T0}, {S_TASK}, 3
s_lshl_b32 {T2}, {S_W4}, 9
s_add_u32 {T0}, {T0}, {T2}
s_mul_i32 {T0}, {T0}, 225
s_lshl_b32 {T2}, {S_HH}, 5
s_add_u32 {T0}, {T0}, {T2}
v_mul_u32_u24 v5, {128*225}, v3
v_add3_u32 v5, v5, v2, {T0}
v_lshlrev_b32 v{P_W}, 1, v5
v_bfe_u32 v12, v1, 4, 1
v_lshlrev_b32 v5, 2, v2
v_lshl_add_u32 v{P_TLD}, v3, 9, v5
v_lshl_add_u32 v{P_UST}, v3, 17, v5
v_add_u32 v{P_TBR}, {L_TB}, v7
v_add_u32 v{P_TBW}, {T1}, v{P_TBR}
s_add_u32 {S_K1}, {S_W4}, 3
s_cmp_eq_u32 {S_W4}, 0
s_cselect_b32 {S_K1}, 7, {S_K1}
s_lshl_b32 {T0}, {S_W4}, 12
v_add_u32 v{P_ZW0}, {T0}, v{P_TBR}
s_lshl_b32 {T0}, {S_K1}, 12
v_add_u32 v{P_ZW1}, {T0}, v{P_TBR}
v_bfe_u32 v13, v1, 2, 2
v_lshrrev_b32 v5, 4, v1
v_xor_b32 v{P_WOD}, v13, v5
s_sub_u32 {T0}, {S_CNT}, 1
v_min_u32 v{P_WOD}, {T0}, v{P_WOD}
v_add_u32 v{P_WOD}, {S_CB}, v{P_WOD}
v_lshlrev_b32 v{P_WOD}, 6, v{P_WOD}
v_mul_u32_u24 v5, 896, v5
v_add_u32 v5, v5, v{P_WOD}
v_lshl_add_u32 v5, v6, 4, v5
s_mul_i32 {T0}, {S_W4}, {4*896}
v_add_u32 v{P_WOD}, {T0}, v5
v_xor_b32 v5, {S_W4}, v13
v_lshlrev_b32 v5, 6, v5
v_lshl_add_u32 v5, v13, 8, v5
v_and_b32 v6, 1, v1
v_lshl_add_u32 v5, v6, 5, v5
v_lshl_add_u32 v5, v12, 4, v5
v_bfe_u32 v6, v1, 1, 1
v_lshl_add_u32 v5, v6, 3, v5
v_add_u32 v{P_WOR2}, {L_X}, v5
v_lshl_add_u32 v{P_WOR}, v3, 10, v{P_WOR2}""")
    pieces = [gen_F, gen_FB, gen_M, gen_MS, gen_addr]
    assert cfg.pre >= 1
    def wq_warm():
        a(f"""s_cmp_eq_u32 {S_LC}, 7
s_cbranch_scc0 L_pf1
v_mul_u32_u24 v5, 2688, v1
s_mul_i32 {T0}, {T5}, 3
s_add_u32 {T0}, {T0}, {S_RR}
s_lshl_b32 {T0}, {T0}, 7
s_mul_i32 {T1}, {S_W4}, {128*2688}
s_add_u32 {T0}, {T0}, {T1}
s_add_u32 {T1}, {T0}, {64*2688}
buffer_load_dword v{P_DUM}, v5, {sWQKV}, {T0} offen
buffer_load_dword v{P_DUM}, v5, {sWQKV}, {T1} offen
L_pf1:""")
    if cfg.spf:
        a(f"""s_lshl_b32 {T0}, s2, 2
s_add_u32 {T0}, {T0}, {S_W4}
s_mul_i32 {T1}, {T0}, {14*128}
s_add_u32 s76, s4, {T1}
s_addc_u32 s77, s5, 0
s_mul_i32 {T1}, {T0}, 900
s_add_u32 s70, s6, {T1}
s_addc_u32 s71, s7, 0
s_add_u32 s74, s8, {T1}
s_addc_u32 s75, s9, 0""")
    n0 = len(a.L)
    for q in range(cfg.pre):
        pieces.pop(0)()
        if q == 0: srd(a, sWQKV, 12, 448 * 2688)
        if cfg.wqwarm == q + 1: wq_warm()
    if cfg.spf:
        from asmlib import Ins
        pf = [f"s_load_dword s72, s[76:77], {q*128}" for q in range(14)]
        if cfg.spf >= 2: pf += [f"s_load_dword s72, s[{b}:{b+1}], {q*128}" for q in range(7) for b in (70, 74)]
        lo = n0 + cfg.spf0; hi = len(a.L)
        for q in reversed(range(len(pf))): a.L.insert(lo + (hi - lo) * q // len(pf), Ins(pf[q]))
    stamp(a, 1)
    srd(a, sWS, 20, WS_SIZE)
    srd(a, sX, 4, 2048 * 896); srd(a, sWR, 6, 2048 * 450); srd(a, sWI, 8, 2048 * 450)
    srd(a, sWO, 14, 448 * 896); srd(a, sOUT, 16, 2048 * 1792)
    S_XA, S_WQL, S_WQG = "s70", "s71", "s72"
    XD = 70
    a(f"""v_lshrrev_b32 v6, 3, v1
v_and_b32 v5, 7, v1
v_lshrrev_b32 v8, 4, v1
v_xor_b32 v5, v5, v8
s_and_b32 {T0}, {S_W4}, 1
s_lshl_b32 {T0}, {T0}, 2
v_xor_b32 v5, {T0}, v5
v_mul_u32_u24 v6, {64*896}, v6
s_mul_i32 {T1}, {S_W4}, {8*64*896}
s_mul_i32 {T2}, {S_B}, 896
s_add_u32 {T1}, {T1}, {T2}
v_add_u32 v6, {T1}, v6
v_lshl_add_u32 v{XD}, v5, 4, v6
s_lshl_b32 {T0}, {S_W4}, 10
s_add_u32 {S_XA}, {T0}, {L_X}
s_mov_b32 {T2}, {L_X}""")
    x_read_addrs(a, 8, "v1", T2, TMP)
    a(f"""v_mov_b32 v14, {L_SYNC+128}
v_mov_b32 v15, 1
v_mov_b32 v{P_BC}, {L_SYNC}
s_lshl_b32 {T1}, {S_CG}, 1""")
    lwait(a, f"v{P_BC}", P_LS, 4, 34, sleep=1)
    a(f"""ds_read_b64 {V(PN,2)}, v{P_BC} offset:64
v_lshlrev_b32 v{P_PF}, 7, v1
s_add_u32 s74, s20, {FA1}
s_addc_u32 s75, s21, 0
s_waitcnt lgkmcnt(0)
v_readfirstlane_b32 s62, v{PN}
v_readfirstlane_b32 s63, v{PN+1}
s_lshl_b32 {T0}, s2, 2
s_add_u32 {T0}, {T0}, {S_W4}
s_cmp_lg_u32 {T0}, 0
s_cbranch_scc1 L_noinit
s_mov_b32 {T0}, {FA1}
buffer_store_dwordx2 {V(PN,2)}, v{P_PF}, {sWS}, {T0} offen offset:2048 sc1
s_mov_b32 {T2}, {FA1 + 8192}
buffer_store_dwordx2 {V(PN,2)}, v{P_PF}, {sWS}, {T2} offen offset:2048 sc1
s_mov_b64 exec, 0xff00
buffer_store_dwordx2 {V(PN,2)}, v{P_PF}, {sWS}, {T0} offen sc1
s_waitcnt vmcnt(0)
s_mov_b64 exec, 0xff
buffer_store_dwordx2 {V(PN,2)}, v{P_PF}, {sWS}, {T0} offen sc1
s_mov_b64 exec, -1
L_noinit:""")
    def wpull():
        L1, L2 = a.lab("wp"), a.lab("wp")
        a(f"""s_lshl_b32 {T2}, {S_IDX}, 1
s_lshr_b32 {T3}, {S_W4}, 1
s_add_u32 {T2}, {T2}, {T3}
s_mul_i32 {T2}, {T2}, 14400
s_mul_i32 {T3}, {S_XCD}, 1800
s_add_u32 {T2}, {T2}, {T3}
s_mov_b64 exec, 0x7fff
s_bitcmp1_b32 {S_W4}, 0
s_cbranch_scc1 {L1}
buffer_load_ushort v{P_DUM}, v{P_PF}, {sWR}, {T2} offen
s_branch {L2}
{L1}:
buffer_load_ushort v{P_DUM}, v{P_PF}, {sWI}, {T2} offen
{L2}:
s_mov_b64 exec, -1""")
    stamp(a, 2)
    if cfg.wpf == 2: wpull()
    lwait(a, f"v{P_BC}", P_LS, 4, 20, sleep=1, off=8)
    if cfg.xas:
        a(f"s_mul_i32 {T2}, {S_H}, 7\ns_bfe_u32 {T2}, {T2}, 0x30001\ns_cmp_gt_u32 {T2}, 4\ns_cbranch_scc0 L_xago")
        lwait(a, f"v{P_BC}", P_LS, 4 * cfg.xas, 30, sleep=1, off=4)
        a("L_xago:")
    for c in range(7):
        if c == cfg.xae:
            if cfg.wpf == 1: wpull()
            lwait(a, f"v{P_BC}", P_LS, 4, 38, sleep=1, off=16)
        a(f"""s_add_u32 {T2}, {T1}, 1
s_lshr_b32 {T3}, {T2}, 1
s_lshl_b32 {T3}, {T3}, 14
s_and_b32 {T4}, {T1}, 1
s_lshl_b32 {T4}, {T4}, 12
s_sub_u32 {T3}, {T3}, {T4}
s_add_u32 m0, {S_XA}, {T3}
s_lshl_b32 {T4}, {T1}, 7
buffer_load_dwordx4 v{XD}, {sX}, {T4} offen{' nt' if cfg.nta else ''} lds
s_cmp_eq_u32 {T2}, 7
s_cselect_b32 {T1}, 0, {T2}""")
    for p_ in pieces: p_()
    pieces = []
    assert not pieces
    a(f"""v_add_u32 v13, {L_M}, v7
s_lshl_b32 {T0}, {S_W4}, 10
v_add_u32 v5, {T0}, v13
ds_write_b128 v5, {V(ACC+8,4)}
s_cmp_eq_u32 {S_W4}, 0
s_cbranch_scc0 L_chkd
s_lshl_b32 {T1}, {S_XCD}, 7
s_mov_b32 {S_TO}, {cfg.poll_limit}
L_chk:
s_load_dwordx2 s[76:77], {SB}, {T1} glc
s_waitcnt lgkmcnt(0)
s_sub_u32 s76, s76, s62
s_lshr_b32 s76, s76, 5
s_xor_b32 s77, s77, s63
s_or_b32 s76, s76, s77
s_cbranch_scc0 L_chkd
s_sleep 4
s_sub_u32 {S_TO}, {S_TO}, 1
s_cbranch_scc0 L_chk
s_mov_b32 {S_TO}, 35
s_branch L_fail
L_chkd:""")
    WW = 72; AC = 152; FR = 168; TP = 200
    wl = []
    for r in range(8):
        wl.append(f"s_mov_b32 {T0}, {14400*(8*(r//4) + r%4)}\nbuffer_load_short_d16_hi v{WW+r}, v{P_W}, {sWR}, {T0} offen{' nt' if cfg.ntw else ''}")
        wl.append(f"buffer_load_short_d16_hi v{WW+8+r}, v{P_W}, {sWI}, {T0} offen{' nt' if cfg.ntw else ''}")
    if cfg.wearly:
        for s_ in wl: a(s_)
        a("s_waitcnt vmcnt(16)")
    else: a("s_waitcnt vmcnt(0)")
    stamp(a, 3)
    if cfg.noA == 1:
        a(f"s_mov_b64 exec, 1\nds_add_u32 v14, v15 offset:4\ns_mov_b64 exec, -1")
        stamp(a, 12); dump_stamps(a, 16); a("s_endpgm")
    albar(16)
    def xreg(m): return TMP + 4*m if m < 4 else F + 4*(m - 4)
    def xr(m): return f"ds_read_b128 {V(xreg(m),4)}, v{8+m%4} offset:{((m//4+1)>>1)*16384 - ((m//4)&1)*4096}"
    for m in range(4): a(xr(m))
    P1 = F; P2 = F + 16; XP = TMP; M = F + 32
    for m in range(28):
        a(f"s_waitcnt lgkmcnt(3)")
        a(mfma(ACC, xreg(m), F + 4*m, None if m == 0 else ACC))
        if m + 4 < 28: a(xr(m + 4))
        else: a(f"ds_read_b128 {V(M+4*(m-24),4)}, v13 offset:{(m-24)*1024}")
    lwait(a, f"v{P_BC}", P_LS, 8, 27, sleep=1)
    a(f"""s_lshl_b32 {T0}, {S_W4}, 11
s_add_u32 {T0}, {T0}, {L_MS}
v_add_u32 v5, {T0}, v7
ds_write_b128 v5, v[48:51]
ds_write_b128 v5, v[52:55] offset:1024
s_lshr_b32 {T0}, {S_KT16}, 1
s_lshl_b32 {T0}, {T0}, 13
s_lshl_b32 {T1}, {S_B}, 7
s_add_u32 {T1}, {T1}, {TBUF}
s_add_u32 {T0}, {T0}, {T1}
s_and_b32 {T2}, {S_KT16}, 1
s_lshl_b32 {T2}, {T2}, 6
s_add_u32 {T0}, {T0}, {T2}
s_add_u32 {T2}, {T0}, {16*65536}
s_cmp_ge_u32 {S_W4}, {S_CNT}
s_cbranch_scc1 L_a1done
s_waitcnt lgkmcnt(0)""")
    for q in range(8): a(f"v_cvt_pk_bf16_f32 v{XP+q}, v{ACC+2*q}, v{ACC+2*q+1}")
    a(mfma(P1, XP, M)); a(mfma(P2, XP, M + 8)); a(mfma(P1, XP + 4, M + 4, P1)); a(mfma(P2, XP + 4, M + 12, P2))
    for r in range(0, 8, 2):
        a(f"v_pk_add_f32 {V(ACC+r,2)}, {V(P1+r,2)}, {V(P2+r+8,2)} neg_lo:[0,1] neg_hi:[0,1]\nv_pk_add_f32 {V(ACC+8+r,2)}, {V(P1+r+8,2)}, {V(P2+r,2)}")
    for r in range(8): a(f"v_cvt_pk_bf16_f32 v{XP+8+r}, v{ACC+r}, v{ACC+8+r}")
    a(f"""s_cmp_lg_u32 {S_KT16}, 0
s_cbranch_scc1 L_a1st
s_mov_b32 exec_hi, 0
v_cvt_pk_bf16_f32 v{XP+8}, v{P1}, v{P2}
v_cvt_pk_bf16_f32 v6, v{P1+8}, v{P2+8}
v_lshlrev_b32 v5, 16, v2
s_mov_b32 exec_hi, -1
L_a1st:
ds_write_b128 v{P_TTW}, {V(XP+8,4)}
ds_write_b128 v{P_TTW}, {V(XP+12,4)} offset:32
ds_read_b128 {V(XP,4)}, v{P_TTR}
ds_read_b128 {V(XP+4,4)}, v{P_TTR} offset:1024
s_mov_b32 {T4}, {T0}
s_waitcnt lgkmcnt(0)""")
    stamp(a, 1, 5)
    if cfg.tdefer: lwait(a, f"v{P_BC}", P_LS, 4, 28, sleep=1, off=12)
    if cfg.tdelay: a(f"s_sleep {cfg.tdelay}")
    a(f"""s_cmp_lg_u32 {S_KT16}, 0
s_cbranch_scc1 L_a1st2
s_mov_b32 exec_hi, 0
s_add_u32 {T1}, {T1}, {7*8192}
buffer_store_dword v6, v5, {sWS}, {T1} offen sc1
s_mov_b32 exec_hi, -1
L_a1st2:
buffer_store_dwordx4 {V(XP,4)}, v{P_TST}, {sWS}, {T4} offen sc1
buffer_store_dwordx4 {V(XP+4,4)}, v{P_TST}, {sWS}, {T2} offen sc1
L_a1done:""")
    stage_arrive(0)
    stamp(a, 4)
    lwait(a, f"v{P_BC}", P_LS, 4, 29, sleep=1, off=12)
    if cfg.wdelay: a(f"s_sleep {cfg.wdelay}")
    if cfg.wpf == 3: wpull()
    if not cfg.wearly and not cfg.wlate: burst(wl, cfg.th_w)
    if cfg.wopf:
        burst([f"""s_lshl_b32 {T0}, {S_IDX}, 2
s_add_u32 {T0}, {T0}, {S_W4}
s_mul_i32 {T0}, {T0}, {25*128}
s_bfm_b64 exec, 25, 0
buffer_load_dword v{P_DUM}, v{P_PF}, {sWO}, {T0} offen
s_mov_b64 exec, -1"""], 1)
    if cfg.ohint:
        for q in range(4): a(f"v_mov_b32 v{TP+q}, -1")
        a(f"""s_lshr_b32 {T0}, {S_XCD}, 1
s_lshl_b32 {T0}, {T0}, 2
s_add_u32 {T0}, {T0}, {S_RR}
s_lshl_b32 {T0}, {T0}, 2
s_add_u32 {T0}, {T0}, {S_W4}
s_lshl_b32 {T0}, {T0}, 4
s_add_u32 {T0}, {T0}, {S_H}
s_lshl_b32 {T0}, {T0}, 11
s_add_u32 {T0}, {T0}, {OBUF}""")
        burst([f"buffer_store_dwordx4 {V(TP,4)}, v7, {sWS}, {T0} offen offset:{1024*q} sc1" for q in range(2)], 2)
    WO = 72
    S_WOL = "s70"
    a(f"s_lshl_b32 {S_WOL}, {S_W4}, 10\ns_add_u32 {S_WOL}, {S_WOL}, {L_X}")
    def wo_list(rnd):
        return [f"s_add_u32 m0, {S_WOL}, {i*4096}\ns_mov_b32 s71, {(rnd*224 + i*16)*896}\nbuffer_load_dwordx4 v{P_WOD}, {sWO}, s71 offen lds" for i in range(14)]
    def ride(q, n=1):
        it = [q.pop(0) for _ in range(min(n, len(q)))]
        if it: burst(it, n)
        pace()
    def wo_rd(f, d, r1, r2):
        hl, mu = f // 2, f % 2
        return [f"ds_read_b64_tr_b16 {V(d+2*sec,2)}, v{r2 if (mu and sec) else r1} offset:{(28*hl + 16*mu + 8*sec)*256}" for sec in range(2)]
    stamp(a, 5)
    stage_wait(0, cfg.a2wait)
    a(f"s_lshl_b32 {T1}, {S_W4}, 11")
    stamp(a, 6)
    a(f"""s_lshl_b32 {T0}, {S_TASK}, 13
s_add_u32 {T0}, {T0}, {T1}
s_add_u32 {T0}, {T0}, {TBUF}""")
    burst([f"buffer_load_dword v{FR+q}, v{P_TLD}, {sWS}, {T0} offen offset:{(q//4)*1024 + (q%4)*128} sc1" for q in range(8)], 8)
    a(f"s_waitcnt vmcnt(0)\nds_write_b128 v{P_TBW}, {V(FR,4)}\nds_write_b128 v{P_TBW}, {V(FR+4,4)} offset:1024" if not cfg.wlate else "")
    if cfg.wlate:
        burst(wl, 24)
        a(f"s_waitcnt vmcnt(16)\nds_write_b128 v{P_TBW}, {V(FR,4)}\nds_write_b128 v{P_TBW}, {V(FR+4,4)} offset:1024")
    stamp(a, 1, 4)
    albar(6)
    stamp(a, 2, 4)
    def dft64(base):
        for m in range(8): a(f"ds_read_b128 {V(FR+4*m,4)}, v{P_TBR} offset:{base + m*1024}")
        for m in range(8):
            a(f"s_waitcnt lgkmcnt({7-m})")
            a(mfma(AC, FB + 4*m, FR + 4*m, None if m == 0 else AC))
            ride(woq)
    woq = wo_list(0)
    dft64(0)
    a(f"s_waitcnt vmcnt(8)\ns_cmp_eq_u32 {S_HH}, 7\ns_cbranch_scc0 L_a2nx")
    for r in range(8):
        a(f"v_mov_b32 v{TP}, v{WW+r}\nv_xor_b32 v{WW+r}, 0x80000000, v{WW+8+r}\nv_mov_b32 v{WW+8+r}, v{TP}")
    a("L_a2nx:")
    for r in range(0, 8, 2):
        a(f"""v_pk_mul_f32 {V(FR+r,2)}, {V(AC+r,2)}, {V(WW+r,2)}
v_pk_mul_f32 {V(FR+8+r,2)}, {V(AC+r,2)}, {V(WW+8+r,2)}
v_pk_fma_f32 {V(FR+r,2)}, {V(AC+8+r,2)}, {V(WW+8+r,2)}, {V(FR+r,2)} neg_lo:[1,0,0] neg_hi:[1,0,0]
v_pk_fma_f32 {V(FR+8+r,2)}, {V(AC+8+r,2)}, {V(WW+r,2)}, {V(FR+8+r,2)} neg_lo:[1,0,1] neg_hi:[1,0,1]
v_cvt_pk_bf16_f32 v{TP+r}, v{FR+r}, v{FR+8+r}
v_cvt_pk_bf16_f32 v{TP+r+1}, v{FR+r+1}, v{FR+8+r+1}""")
    a(f"ds_write_b128 v{P_TBW}, {V(TP,4)} offset:8192\nds_write_b128 v{P_TBW}, {V(TP+4,4)} offset:9216")
    stamp(a, 3, 4)
    albar(7)
    stamp(a, 4, 4)
    dft64(8192)
    a(f"""s_lshl_b32 {T0}, {S_HH}, 12
s_lshr_b32 {T1}, {S_TASK}, 3
s_lshl_b32 {T1}, {T1}, 7
s_add_u32 {T0}, {T0}, {T1}
s_add_u32 {T0}, {T0}, {UBUF}
s_lshl_b32 {T1}, {S_W4}, 19
s_add_u32 {T0}, {T0}, {T1}""")
    for r in range(8): a(f"v_cvt_pk_bf16_f32 v{TP+r}, v{AC+r}, v{AC+8+r}")
    stamp(a, 5, 4)
    burst([f"s_add_u32 {T1}, {T0}, {(8*(r//4) + r%4) * USTR}\nbuffer_store_dword v{TP+r}, v{P_UST}, {sWS}, {T1} offen sc1" for r in range(8)], 8)
    stage_arrive(1)
    stamp(a, 7)
    albar(4)
    for f in range(16):
        for s_ in wo_rd(f, WO + 4*f, P_WOR, P_WOR2): a(s_)
    U0 = 16; U1 = 32; AR = 200; AI = 216; MS = 136; UE = 168
    for q in range(8): a(f"ds_read_b128 {V(MS+4*q,4)}, v7 offset:{L_MS + q*1024}")
    stage_wait(1, cfg.a3wait)
    stamp(a, 8)
    a(f"""s_lshl_b32 {T0}, {S_BP}, 15
s_add_u32 {T0}, {T0}, {UBUF}
s_lshl_b32 {T1}, {S_W4}, 12
s_lshl_b32 {T3}, {S_K1}, 12
s_add_u32 {T2}, {T0}, {T3}
s_add_u32 {T1}, {T0}, {T1}""")
    burst([f"buffer_load_dword v{U0+q}, v{P_TLD}, {sWS}, {T1 if q < 16 else T2} offen offset:{((q%16)//4)*1024 + (q%4)*128} sc1" for q in range(32)], cfg.th_u)
    stamp(a, 10, 4)
    albar(24)
    stamp(a, 11, 4)
    def step6(ur, ui, va, q_, n):
        for m in range(4):
            a(mfma(AR, ur + 4*m, MS + 8*m, None if m == 0 else AR))
            if not cfg.s6late: ride(q_, n)
            a(mfma(AI, ui + 4*m, MS + 8*m + 4, None if m == 0 else AI))
            if not cfg.s6late: ride(q_, n)
        for q in range(16): a(f"v_cvt_pk_bf16_f32 v{UE+q}, v{AR+2*q}, v{AR+2*q+1}")
        for q in range(4): a(f"ds_write_b128 v{va}, {V(UE+4*q,4)} offset:{q*1024}")
    if cfg.s6late:
        burst(wo_list(1), cfg.th_wo)
        lwait(a, f"v{P_BC}", P_LS, 20, 37, sleep=2)
    a(f"s_cmp_eq_u32 {S_W4}, 0\ns_cbranch_scc1 L_a3w0\ns_waitcnt vmcnt({14 if cfg.s6late else 16})")
    woq = wo_list(1)
    step6(U0, U0, P_ZW0, woq, 1)
    if not cfg.s6late: a("s_waitcnt vmcnt(8)")
    step6(U1, U1, P_ZW1, woq, 1)
    a(f"s_branch L_a3z\nL_a3w0:\ns_waitcnt vmcnt({14 if cfg.s6late else 0})\ns_mov_b32 exec_lo, -2\ns_mov_b32 exec_hi, -2")
    for q in range(16): a(f"v_mov_b32 v{U1+q}, v{U0+q}")
    a("s_mov_b64 exec, -1")
    step6(U0, U1, P_ZW0, wo_list(1), 2)
    a("L_a3z:")
    stamp(a, 13, 4)
    S_TRY = "s72"
    def oloads():
        for q in range(8):
            a(f"buffer_load_dwordx4 {V(16+4*q,4)}, v7, {sWS}, {T3 if q < 4 else T2} offen offset:{(q%4)*1024} sc1")
    a(f"""s_mov_b64 exec, 1
ds_add_u32 v14, v15 offset:4
s_mov_b64 exec, -1
ds_read_b32 v{P_LS}, v{P_BC}
s_lshl_b32 {T4}, {S_BP}, 2
s_add_u32 {T4}, {T4}, {S_W4}
s_lshl_b32 {T3}, {T4}, 13
s_add_u32 {T3}, {T3}, {OBUF}
s_add_u32 {T2}, {T3}, 4096
s_and_b32 {T4}, {S_BP}, 60
s_add_u32 {T4}, {T4}, {S_W4}
s_lshl_b32 {T4}, {T4}, 9
s_add_u32 {T4}, {T4}, {FO}
s_lshl_b32 {T1}, {S_W4}, 13
v_add_u32 v9, {T1}, v7
s_waitcnt vmcnt(0) lgkmcnt(0)
v_readfirstlane_b32 {S_TRY}, v{P_LS}""")
    if cfg.otry:
        a(f"s_cmp_ge_u32 {S_TRY}, 24\ns_cbranch_scc0 L_notry\n{poll_issue(f'v{P_PF}', T4, P_PS, 4)}\nL_notry:")
    albar(10)
    stamp(a, 9)
    for f in range(16):
        for s_ in wo_rd(f, WO + 64 + 4*f, P_WOR, P_WOR2): a(s_)
    osc = ("", " sc1", " nt", " sc0 sc1")[cfg.outsc]
    def out_store(rowmul, colbase, skip):
        a(f"""v_mul_u32_u24 v5, {rowmul}, v2
v_lshl_add_u32 v5, v3, 5, v5
s_lshl_b32 {T1}, {S_DT}, 6
s_add_u32 {T0}, {T0}, {T1}
s_add_u32 {T0}, {T0}, {colbase}
s_cmp_ge_u32 {S_W4}, {S_CNT}
s_cbranch_scc1 {skip}""")
        for q in range(4): a(f"v_cvt_pk_bf16_f32 v{64+q}, v{AR+2*q}, v{AR+2*q+1}")
        a(f"buffer_store_dwordx4 v[64:67], v5, {sOUT}, {T0} offen{osc}")
        for q in range(4, 8): a(f"v_cvt_pk_bf16_f32 v{64+q}, v{AR+2*q}, v{AR+2*q+1}")
        a(f"buffer_store_dwordx4 v[68:71], v5, {sOUT}, {T0} offen offset:16{osc}\n{skip}:")
    a(f"s_mov_b32 s71, {cfg.poll_limit}")
    if cfg.otry:
        a(f"s_cmp_ge_u32 {S_TRY}, 24\ns_cbranch_scc0 L_notry2\ns_waitcnt vmcnt(0)\n{poll_check(P_PS, 4)}\ns_cbranch_scc0 L_ohave\ns_branch L_oload\nL_notry2:")
    lwait(a, f"v{P_BC}", P_LS, 24, 21, sleep=1)
    stamp(a, 10)
    if cfg.owait: a(f"s_sleep {cfg.owait}")
    a("L_oload:")
    poll(a, f"v{P_PF}", T4, P_PS, 4, 11, sleep=2)
    a("L_ohave:")
    stamp(a, 13)
    oloads()
    for q in range(8):
        a(f"s_waitcnt vmcnt({7-q})\nds_write_b128 v9, {V(16+4*q,4)} offset:{L_OB + q*1024}")
        if cfg.ohint and q == 2: a("v_max3_u32 v5, v16, v20, v24")
        if cfg.ohint and q in (4, 6): a(f"v_max3_u32 v5, v5, v{12+4*q}, v{16+4*q}")
    if cfg.ohint:
        a(f"""v_max_u32 v5, v5, v44
v_cmp_eq_u32 vcc, -1, v5
s_cbranch_vccz L_ogot
s_sub_u32 s71, s71, 1
s_cbranch_scc0 L_oload
s_mov_b32 {S_TO}, 40
s_branch L_fail
L_ogot:""")
    a("s_mov_b64 exec, 1\nds_add_u32 v14, v15 offset:4\ns_mov_b64 exec, -1")
    stamp(a, 11)
    lbar(a, "v14", "v15", P_LS, 12)
    OR = 216
    def zr(s_): return f"ds_read_b128 {V(OR+4*(s_%8),4)}, v7 offset:{L_OB + s_*1024}"
    for s_ in range(8): a(zr(s_))
    for s_ in range(32):
        a(f"s_waitcnt lgkmcnt({min(7, 31-s_)})")
        a(mfma(AR, WO + 4*s_, OR + 4*(s_ % 8), None if s_ == 0 else AR))
        if s_ + 8 < 32: a(zr(s_ + 8))
    a(f"s_mul_i32 {T0}, {S_BP}, {32*1792}")
    out_store(1792, 896, "L_b3done")
    a(f"""s_lshl_b32 {T0}, s2, 2
s_add_u32 {T0}, {T0}, {S_W4}
s_cmp_lg_u32 {T0}, 0
s_cbranch_scc1 L_noep
s_mov_b32 {T0}, {EPOCH}""")
    flag(a, T0, 10)
    a("L_noep:")
    if cfg.padend: padto(a, cfg.padend)
    stamp(a, 12)
    dump_stamps(a, 16)
    a("s_endpgm")

def build():
    nh = cfg.nh; xh = 16 // nh
    for wg in range(256):
        xcd, idx = wg & 7, wg >> 3
        h = (xcd % xh) * nh + idx % nh
        assert nh == 8
    a = Asm()
    prologue(a); role_B(a); ROLE[0] = 1; role_A(a)
    a(f"""L_fail:
v_mov_b32 v0, 0
v_mov_b32 v1, {S_TO}
global_store_dword v0, v1, s[18:19]
L_end:
s_endpgm
L_codeend:""")
    a.pad()
    import os
    ref = "cdna_kernels/" + NAME + ".s.ref"
    hdr = open(ref).read().split("; Override launch")[0] if os.path.exists(ref) else ""
    s = hdr + f"; @launch grid=(256,1,1) block=(512,1,1) lds={LDS_SIZE}\n"
    s += f""".amdgcn_target "amdgcn-amd-amdhsa--gfx950"
.text
.globl {NAME}_kernel
.p2align 8
.type {NAME}_kernel,@function
{NAME}_kernel:
""" + a.text() + f""".section .rodata,"a"
.p2align 6
.amdhsa_kernel {NAME}_kernel
  .amdhsa_next_free_vgpr 256
  .amdhsa_next_free_sgpr 102
  .amdhsa_accum_offset 256
  .amdhsa_group_segment_fixed_size 0
  .amdhsa_kernarg_size 72
  .amdhsa_user_sgpr_count 2
  .amdhsa_user_sgpr_kernarg_segment_ptr 1
  .amdhsa_system_sgpr_workgroup_id_x 1
.end_amdhsa_kernel
"""
    return s

if __name__ == "__main__":
    out = sys.argv[1]
    for kv in sys.argv[2:]:
        k, v = kv.split("=")
        setattr(cfg, k, type(getattr(cfg, k))(int(v)))
    open(out, "w").write(build())
```

```python
import sys, math, struct
from asmlib import Asm

NAME = "concat_heads__spectral_gfnet__softmax_full_mha__prompt"

class Cfg:
    nh = 8
    stamps = False
    poll_limit = 1 << 17
    noA = 0
    probe = -1
    span = 0
    fine = 0
    padend = 0
    padmid = 0
    dbgwave = -1
    nbuf = 5
    wearly = 0
    touch = 0
    wdelay = 12
    tdelay = 0
    s6late = 0
    lsl = 4
    odefer = 0
    a2wait = 8
    a3wait = 8
    kvwait = 8
    kvrot = 3
    m1 = 12
    ramp = 1
    gate = 2
    wqe = 3
    wqp = 7
    tdefer = 1
    m2 = 27
    xas = 0
    xae = 2
    bhi = 56
    ohint = 1
    wlate = 1
    allpoll = 1
    otry = 1
    gsplit = 8
    claim = 1
    btry = 0
    pace6 = 0
    wolate = 0
    wsoff = 0
    mprio = 0
    apoll = 1
    osleep = 2
    fprio = 0
    nta = 0
    ntw = 0
    ntb = 0
    bsleep = 4
    qst = 0x133
    wopf = 1
    kvp = 1
    owait = 4
    xrot = 0x06543210
    wrot = 1
    pace = 1
    xadefer = 0
    wpf = 0
    outsc = 0
    wqwarm = 1
    th_wo = 5
    th_u = 20
    th_wq = 2
    wqearly = 1
    th_w = 17
    th_xa = 4
    wfair = 8
    xearly = 1
    spf = 0
    spf0 = 150
    pre = 5
    aprio = 2
    force_fb = False
cfg = Cfg()

EPOCH = 0
KV = 0x20000; TS = 61440; VOFF = 28672
OBUF = 0x400000
TBUF = 0x600000
UBUF = 0x800000; USTR = 32768
FKV = 0x8000; FA1 = 0x1000; FO = 0x10000
STAMP = 0xB00000
WS_SIZE = 0x1000000
L_W = 0; L_WQ = 57344; L_X = 86016; L_Q = 151552; L_SYNC = 159744
LDS_SIZE = 160000
L_RED = 0
L_TB = L_WQ; L_YB = L_WQ + 8192; L_MS = 49152; L_TT = L_X + 4096; L_M = L_X + 61440
L_ZB = L_WQ; L_OB = 0
sWS, sWQKV, sX, sWR, sWI, sWO, sOUT = [f"s[{i}:{i+3}]" for i in (24, 28, 32, 36, 40, 44, 48)]
S_WAVE, S_XCD, S_IDX, S_H, S_R, S_W4 = "s56", "s57", "s58", "s59", "s60", "s61"
S_NONCE = "s[62:63]"
S_TO, S_BAR = "s64", "s65"
T0, T1, T2, T3, T4, T5 = "s66", "s67", "s68", "s69", "s22", "s23"
STAMP0 = 84

ZREADY = 24

def f2u(x): return struct.unpack("<I", struct.pack("<f", x))[0]
def lit(x): return "0x%08x" % f2u(x)
def V(a, n=1): return f"v{a}" if n == 1 else f"v[{a}:{a+n-1}]"

def srd(a, name, lo, size):
    i = int(name[2:name.index(":")])
    a(f"s_mov_b32 s{i}, s{lo}\ns_mov_b32 s{i+1}, s{lo+1}\ns_mov_b32 s{i+2}, {size}\ns_mov_b32 s{i+3}, 0x20000")

ROLE = [0]
def stamp(a, i, fine=0):
    if cfg.probe >= 0:
        if not fine and cfg.probe == ROLE[0] * 100 + i:
            a("s_memrealtime s[96:97]\ns_waitcnt lgkmcnt(0)")
        return
    if cfg.fine in (1, 2) and not fine and 3 <= i <= 11: return
    if cfg.fine == 4 and not fine and i in (1, 2, 3, 4, 5, 10, 11, 13): return
    if fine and cfg.fine != fine: return
    if cfg.stamps:
        a(f"s_memtime s[100:101]\ns_waitcnt lgkmcnt(0)\ns_mov_b32 s{STAMP0+i}, s100")

def st0():
    o = f"s_add_u32 s20, s20, {cfg.wsoff << 20}\ns_addc_u32 s21, s21, 0\n" if cfg.wsoff else ""
    return o + (f"s_mov_b32 s{STAMP0+15}, s100\ns_mov_b32 s{STAMP0}, s38" if cfg.stamps else "")

def dump_stamps(a, vt):
    if cfg.probe >= 0:
        if cfg.probe // 100 == ROLE[0]:
            L = a.lab("pr")
            a(f"s_sub_u32 s96, s96, s100\ns_add_u32 s96, s96, 2600\n{L}:\ns_memrealtime s[98:99]\ns_waitcnt lgkmcnt(0)\ns_sub_u32 s98, s98, s100\ns_cmp_lt_u32 s98, s96\ns_cbranch_scc1 {L}")
        return
    if cfg.span:
        a(f"s_memrealtime s[98:99]\ns_lshl_b32 {T0}, s2, 3\ns_add_u32 {T0}, {T0}, {S_WAVE}\ns_lshl_b32 {T0}, {T0}, 3\ns_add_u32 {T0}, {T0}, {STAMP}\ns_waitcnt lgkmcnt(0)")
        a(f"v_mov_b32 v{vt}, s100\nv_mov_b32 v{vt+1}, s98\nv_mov_b32 v{vt+2}, 0\ns_mov_b64 exec, 1\nbuffer_store_dwordx2 {V(vt,2)}, v{vt+2}, {sWS}, {T0} offen\ns_mov_b64 exec, -1")
    if not cfg.stamps: return
    a(f"s_memrealtime s[100:101]\ns_waitcnt lgkmcnt(0)\ns_mov_b32 s{STAMP0+14}, s100")
    if cfg.dbgwave >= 0:
        L = a.lab("nodbg")
        a(f"s_lshl_b32 {T0}, s2, 3\ns_add_u32 {T0}, {T0}, {S_WAVE}\ns_cmp_lg_u32 {T0}, {cfg.dbgwave}\ns_cbranch_scc1 {L}")
        a(f"v_mov_b32 v{vt+4}, 0\ns_mov_b64 exec, 1")
        for i in range(1, 16):
            a(f"s_sub_u32 {T1}, s{STAMP0+i}, s{STAMP0 + (15 if i >= 14 else 0)}\nv_mov_b32 v{vt}, {T1}\nglobal_store_dword v{vt+4}, v{vt}, s[18:19] offset:{4*i}")
        a(f"s_mov_b64 exec, -1\n{L}:")
    a(f"s_lshl_b32 {T0}, s2, 3\ns_add_u32 {T0}, {T0}, {S_WAVE}\ns_lshl_b32 {T0}, {T0}, 7\ns_add_u32 {T0}, {T0}, {STAMP}")
    a(f"v_mov_b32 v{vt+4}, 0\ns_mov_b64 exec, 1")
    for q in range(4):
        for i in range(4): a(f"v_mov_b32 v{vt+i}, s{STAMP0+4*q+i}")
        a(f"buffer_store_dwordx4 {V(vt,4)}, v{vt+4}, {sWS}, {T0} offen offset:{16*q}")
    a("s_mov_b64 exec, -1")

def padto(a, ticks):
    L = a.lab("pad")
    a(f"{L}:\ns_memrealtime s[100:101]\ns_waitcnt lgkmcnt(0)\ns_sub_u32 s100, s100, s{STAMP0+15}\ns_cmp_lt_u32 s100, {ticks}\ns_cbranch_scc1 {L}")

def poll_issue(vaddr, soff, vt, n):
    return f"""v_mov_b32 v{vt}, 0
v_mov_b32 v{vt+1}, 0
s_bfm_b64 exec, {n}, 0
buffer_atomic_or_x2 {V(vt,2)}, {vaddr}, {sWS}, {soff} offen sc0 sc1
s_mov_b64 exec, -1"""

def poll_check(vt, n):
    return f"v_cmp_ne_u64 vcc, {S_NONCE}, {V(vt,2)}\ns_and_b32 vcc_lo, vcc_lo, {hex((1 << n) - 1)}"

def poll(a, vaddr, soff, vt, n, code, sleep=2):
    L, Dn = a.lab("poll"), a.lab("polld")
    a(f"""s_mov_b32 {S_TO}, {cfg.poll_limit}
{L}:
{poll_issue(vaddr, soff, vt, n)}
s_waitcnt vmcnt(0)
{poll_check(vt, n)}
s_cbranch_scc0 {Dn}
s_sleep {sleep}
s_sub_u32 {S_TO}, {S_TO}, 1
s_cbranch_scc0 {L}
s_mov_b32 {S_TO}, {code}
s_branch L_fail
{Dn}:""")

def publish_wg(a, vsync, vone, off, vt, soff, vn, last=3):
    L = a.lab("pub")
    a(f"""s_mov_b64 exec, 1
ds_add_rtn_u32 v{vt}, {vsync}, {vone} offset:{off}
s_waitcnt lgkmcnt(0)
v_readfirstlane_b32 {T0}, v{vt}
s_cmp_eq_u32 {T0}, {last}
s_cselect_b64 exec, 1, 0
buffer_store_dwordx2 {V(vn,2)}, v{vn+2}, {sWS}, {soff} offen sc1
s_mov_b64 exec, -1""")

def flag(a, soff, vt):
    a(f"""v_mov_b32 v{vt}, s62
v_mov_b32 v{vt+1}, s63
v_mov_b32 v{vt+2}, 0
s_mov_b64 exec, 1
buffer_store_dwordx2 {V(vt,2)}, v{vt+2}, {sWS}, {soff} offen sc1
s_mov_b64 exec, -1""")

def flag2(a, soff, vn):
    a(f"s_mov_b64 exec, 1\nbuffer_store_dwordx2 {V(vn,2)}, v{vn+2}, {sWS}, {soff} offen sc1\ns_mov_b64 exec, -1")

def lwait(a, vsync, vt, target, code, sleep=0, off=0):
    L, Dn = a.lab("lw"), a.lab("lwd")
    a(f"""s_mov_b32 {S_TO}, {cfg.poll_limit * 8}
{L}:
ds_read_b32 v{vt}, {vsync} offset:{off}
s_waitcnt lgkmcnt(0)
v_readfirstlane_b32 {T0}, v{vt}
s_cmp_ge_u32 {T0}, {target}
s_cbranch_scc1 {Dn}
{"s_sleep %d" % sleep if sleep else ""}
s_sub_u32 {S_TO}, {S_TO}, 1
s_cbranch_scc0 {L}
s_mov_b32 {S_TO}, {code}
s_branch L_fail
{Dn}:""")

def lbar(a, vsync, vone, vt, code, sleep=0):
    L, Dn = a.lab("lb"), a.lab("lbd")
    a(f"""s_add_u32 {S_BAR}, {S_BAR}, 4
s_mov_b64 exec, 1
ds_add_u32 {vsync}, {vone}
s_mov_b64 exec, -1
s_mov_b32 {S_TO}, {cfg.poll_limit * 8}
{L}:
ds_read_b32 v{vt}, {vsync}
s_waitcnt lgkmcnt(0)
v_readfirstlane_b32 {T0}, v{vt}
s_cmp_ge_u32 {T0}, {S_BAR}
s_cbranch_scc1 {Dn}
{"s_sleep %d" % sleep if sleep else ""}
s_sub_u32 {S_TO}, {S_TO}, 1
s_cbranch_scc0 {L}
s_mov_b32 {S_TO}, {code}
s_branch L_fail
{Dn}:""")

def mfma(d, A, B, C=None):
    return f"v_mfma_f32_32x32x16_bf16 {V(d,16)}, {V(A,4)}, {V(B,4)}, {'0' if C is None else V(C,16)}"

def mod7(a, s, t):
    a(f"s_mul_i32 {t}, {s}, 9363\ns_lshr_b32 {t}, {t}, 16\ns_mul_i32 {t}, {t}, 7\ns_sub_u32 {s}, {s}, {t}")

def x_read_addrs(a, v0, vl, base_s, t):
    a(f"""v_and_b32 v{t}, 31, {vl}
v_lshrrev_b32 v{t+1}, 5, {vl}
v_bfe_u32 v{t+2}, {vl}, 1, 3
v_xor_b32 v{t+1}, v{t+1}, v{t+2}
v_lshlrev_b32 v{t}, 7, v{t}
v_add_u32 v{t}, {base_s}, v{t}""")
    for mm in range(4):
        a(f"v_xor_b32 v{t+2}, {2*mm}, v{t+1}\nv_lshl_add_u32 v{v0+mm}, v{t+2}, 4, v{t}")


S_HH, S_RR, S_J, S_P0, S_LC = "s52", "s53", "s54", "s55", "s3"

def prologue(a):
    a(f"""s_cmp_ge_u32 s2, 256
s_cbranch_scc1 L_end
s_load_dwordx16 s[4:19], s[0:1], 0
s_load_dwordx2 s[20:21], s[0:1], 64""")
    if cfg.span or cfg.probe >= 0: a("s_memrealtime s[100:101]")
    if cfg.stamps:
        a(f"s_memtime s[38:39]\ns_memrealtime s[100:101]")
        for i in range(1, 15): a(f"s_mov_b32 s{STAMP0+i}, 0")
    a(f"""s_lshr_b32 {S_IDX}, s2, 3
s_getpc_b64 s[70:71]
L_pc:
v_lshrrev_b32 v3, 5, v0
v_lshl_add_u32 v3, {S_IDX}, 4, v3
v_lshlrev_b32 v3, 7, v3
v_min_u32 v3, L_codeend-L_pc-4, v3
global_load_dword v255, v3, s[70:71]
v_lshrrev_b32 v2, 6, v0
v_and_b32 v1, 63, v0
v_readfirstlane_b32 {S_WAVE}, v2
s_and_b32 {S_XCD}, s2, 7
s_and_b32 {S_HH}, {S_IDX}, 7
s_lshr_b32 {S_RR}, {S_IDX}, 3
s_and_b32 {T5}, {S_XCD}, 1
s_lshl_b32 {S_H}, {T5}, 3
s_add_u32 {S_H}, {S_H}, {S_HH}
s_lshl_b32 {T0}, {S_HH}, 2
s_cmp_eq_u32 {T5}, 0
s_cselect_b32 {S_LC}, 0x67543210, s2
s_cselect_b32 {S_LC}, {S_LC}, 0x65432170
s_lshr_b32 {S_LC}, {S_LC}, {T0}
s_and_b32 {S_LC}, {S_LC}, 7
s_and_b32 {S_W4}, {S_WAVE}, 3
s_cmp_ge_u32 {S_WAVE}, 4
s_cbranch_scc1 L_roleA""")

def nonce(a):
    a(f"""s_waitcnt lgkmcnt(0)
s_mul_i32 s62, s62, 0x9E3779B1
s_add_u32 s62, s62, 0x7F4A7C15
s_mul_i32 s63, s63, 0x85EBCA6D
s_add_u32 s63, s63, 0x165667B1""")

def role_B(a):
    X = 16; ACC = 128; WB = 160; PK = 224
    SC = 70
    S_XL, S_TILE, S_I = "s77", "s78", "s79"
    TO = 36
    S_WM, S_WO, S_DM, S_DO = "s80", "s81", "s82", "s83"
    a(f"""s_setprio 3
s_mul_i32 {S_J}, {T5}, 7
s_add_u32 {S_J}, {S_J}, {S_LC}
v_lshrrev_b32 v8, 3, v1
v_and_b32 v9, 7, v1
v_mul_u32_u24 v2, 2688, v8
v_bfe_u32 v3, v1, 4, 1
v_lshlrev_b32 v3, 2, v3
v_xor_b32 v3, v9, v3
v_lshl_add_u32 v2, v3, 4, v2
s_lshl_b32 {T0}, {S_J}, 7
s_mul_i32 {T1}, {S_W4}, {8*2688}
s_add_u32 {T0}, {T0}, {T1}
s_add_u32 {T0}, {T0}, 896
v_add_u32 v2, {T0}, v2
s_lshl_b32 {T2}, {S_RR}, 3
s_lshr_b32 {T0}, {0xD66D0770 if cfg.wrot else 0x70707070}, {T2}
s_bfe_u32 {T1}, {T0}, 0x40004
s_and_b32 {T0}, {T0}, 15
s_lshl_b32 {T3}, {S_W4}, 10
s_lshl_b32 {T2}, {T0}, 12
s_add_u32 m0, {T2}, {T3}
s_mul_i32 {S_I}, {T0}, {32*2688}
s_lshl_b32 {T2}, {T1}, 12
s_add_u32 {S_WM}, {T2}, {T3}
s_mul_i32 {S_WO}, {T1}, {32*2688}
s_cmp_ge_u32 {S_RR}, {2 if cfg.wrot else 4}
s_cselect_b32 {T0}, -1, 1
s_lshl_b32 {S_DM}, {T0}, 12
s_mul_i32 {S_DO}, {T0}, {32*2688}
s_cmp_eq_u32 {S_LC}, 7
s_cselect_b32 s30, 0, {448 * 2688}
s_mov_b32 s31, 0x20000
s_waitcnt lgkmcnt(0)
{st0()}
s_mov_b64 s[28:29], s[12:13]""")
    def x_m0(i, j): return f"s_add_u32 m0, {S_XL}, {(i%4)*4096 + j*1024}"
    def x_ld(i, j): return f"buffer_load_dwordx4 v{4+j}, {sX}, s{SC+i} offen{' nt' if cfg.ntb else ''} lds"
    def sc_next(i): return f"s_add_u32 s{SC+i}, s{SC+i-1}, 128\ns_cmp_eq_u32 s{SC+i}, 896\ns_cselect_b32 s{SC+i}, 0, s{SC+i}"
    def w_base(i): return f"v_lshl_add_u32 v12, s{SC+i}, 6, v14\nv_xor_b32 v13, 64, v12"
    def setup_x():
        a(f"""s_mov_b32 s34, {2048*896}
s_mov_b32 s35, 0x20000
s_lshr_b32 {S_R}, {S_XCD}, 1
s_lshl_b32 {S_R}, {S_R}, 2
s_add_u32 {S_R}, {S_R}, {S_RR}
s_lshl_b32 {S_TILE}, {S_R}, 2
s_add_u32 {S_TILE}, {S_TILE}, {S_W4}
v_lshrrev_b32 v10, 4, v1
v_xor_b32 v10, v9, v10
v_xor_b32 v11, 4, v10
v_mul_u32_u24 v12, 896, v8
s_mul_i32 {T2}, {S_TILE}, {32*896}
v_add_u32 v12, {T2}, v12
v_lshl_add_u32 v4, v10, 4, v12
v_lshl_add_u32 v5, v11, 4, v12
v_add_u32 v5, {8*896}, v5
v_add_u32 v6, {16*896}, v4
v_add_u32 v7, {16*896}, v5
s_lshl_b32 {T2}, {S_HH}, 2
s_lshr_b32 s{SC}, {cfg.xrot}, {T2}
s_and_b32 s{SC}, s{SC}, 7
s_lshl_b32 s{SC}, s{SC}, 7
s_lshl_b32 {S_XL}, {S_W4}, 14
s_add_u32 {S_XL}, {S_XL}, {L_X}""")
        a("s_mov_b64 s[32:33], s[10:11]")
    def setup2():
        for i in range(1, 7): a(sc_next(i))
        x_read_addrs(a, 8, "v1", S_XL, 12)
        srd(a, sWS, 20, WS_SIZE)
        a(f"""v_lshrrev_b32 v12, 5, v1
v_lshlrev_b32 v12, 3, v12
v_bfe_u32 v13, v1, 2, 2
v_add_u32 v12, v12, v13
v_bfe_u32 v13, v1, 4, 1
v_lshlrev_b32 v13, 5, v13
v_and_b32 v18, 1, v1
v_bfe_u32 v19, v1, 1, 1
v_lshl_add_u32 v15, v18, 4, v13
v_lshl_add_u32 v15, v19, 3, v15
v_lshl_add_u32 v14, v18, 3, v13
v_lshl_add_u32 v14, v19, 4, v14
s_cmp_eq_u32 {T5}, 1
s_cselect_b64 vcc, -1, 0
v_cndmask_b32 v14, v15, v14, vcc
v_lshl_add_u32 v15, v12, 6, v15
v_add_u32 v15, {L_WQ}, v15
v_bfe_u32 v13, v1, 3, 1
v_lshl_add_u32 v14, v13, 6, v14
v_lshl_add_u32 v14, v12, 7, v14""")
        a(f"""v_lshrrev_b32 v253, 2, v1
v_mul_u32_u24 v253, 2688, v253
v_and_b32 v254, 3, v1
v_lshl_add_u32 v253, v254, 4, v253
s_mul_i32 {S_P0}, {S_H}, 7
s_lshr_b32 {S_P0}, {S_P0}, 1
s_lshl_b32 s80, {S_P0}, 4
s_mul_i32 s81, {S_W4}, {16*2688}
s_add_u32 s80, s80, s81
v_add_u32 v253, s80, v253
s_lshl_b32 s80, {S_W4}, 10
s_add_u32 s80, s80, {L_WQ}
s_and_b32 s81, {S_P0}, 7
s_cmp_gt_u32 s81, 4
s_cselect_b32 s81, 1, 0
s_nop 0""")
        a(w_base(0))
        a(f"v_mov_b32 v250, {L_SYNC}\nv_mov_b32 v251, 1\nv_mov_b32 v246, 0\ns_mov_b32 {S_BAR}, 0")
    VK, VV, VF, VL = 240, 241, 242, 243
    PG = ["s4", "s5", "s6", "s7"]; S_FL = "s8"
    def setup3():
        a(f"""v_lshlrev_b32 v{VL}, 4, v1
s_lshl_b32 {T0}, {S_P0}, 9
v_add_u32 v{VK}, {T0}, v{VL}
s_lshl_b32 {T0}, {S_H}, 11
s_add_u32 {T0}, {T0}, {VOFF}
v_add_u32 v{VV}, {T0}, v{VL}
s_lshr_b32 {T1}, {S_P0}, 3
s_add_u32 {T0}, {S_P0}, 3
s_lshr_b32 {T0}, {T0}, 3
s_sub_u32 {T0}, {T0}, {T1}
v_and_b32 v{VF}, 1, v1
v_mul_u32_u24 v{VF}, {T0}, v{VF}
v_bfe_u32 v18, v1, 1, 1
v_mul_u32_u24 v18, 7, v18
v_add_u32 v{VF}, v{VF}, v18
v_lshlrev_b32 v{VF}, 7, v{VF}
s_and_b32 {T0}, {S_R}, 12
s_add_u32 {T0}, {T0}, {S_W4}
s_lshl_b32 {T0}, {T0}, 4
s_add_u32 {T0}, {T0}, {T1}
s_lshl_b32 {T0}, {T0}, 7""")
        for g in range(4):
            a(f"s_add_u32 {PG[g]}, {T0}, {FKV}")
            if g < 3: a(f"s_add_u32 {T0}, {T0}, 8192\ns_and_b32 {T0}, {T0}, 32767")
        a(f"s_lshr_b32 {T2}, {S_R}, 2\ns_mul_i32 {T1}, {S_W4}, {4*TS}\ns_add_u32 {T1}, {T1}, {KV}")
        for p in range(4): a(f"s_add_u32 {T0}, {S_RR}, {p}\ns_and_b32 {T0}, {T0}, 3\ns_mul_i32 s{TO+12+p}, {T0}, {TS}")
        for g in range(4):
            a(f"s_mul_i32 {T0}, {T2}, {16*TS}\ns_add_u32 {T0}, {T0}, {T1}\ns_add_u32 {T2}, {T2}, 1\ns_and_b32 {T2}, {T2}, 3")
            for p in range(4):
                a(f"s_add_u32 s{TO+4*g+p}, {T0}, " + (f"{p*TS}" if (g == 0 or cfg.kvrot == 0) else f"s{TO+12+p}"))
        a(f"""s_cmp_eq_u32 {S_LC}, 7
s_cselect_b32 {T1}, 15, {S_J}
s_lshl_b32 {T0}, {S_R}, 4
s_add_u32 {T0}, {T0}, {T1}
s_lshl_b32 {T0}, {T0}, 7
s_add_u32 {S_FL}, {T0}, {FKV}""")
    stamp(a, 3, 2)
    XE = cfg.xearly
    def mid():
        stamp(a, 4, 2)
        a("s_barrier")
        if cfg.fine != 2: a(f"s_load_dwordx2 s[62:63], s[20:21], {EPOCH}")
        stamp(a, 5, 2)
    for i in range(14):
        a(f"buffer_load_dwordx4 v2, {sWQKV}, {S_I} offen lds")
        if i == 6:
            if XE:
                setup_x()
                for j in range(4): a(x_m0(0, j)); a("s_nop 0"); a(x_ld(0, j))
                mid()
            a(f"s_mov_b32 m0, {S_WM}\ns_mov_b32 {S_I}, {S_WO}")
            if XE: setup2(); setup3()
        elif i < 13: a(f"s_add_u32 m0, m0, {S_DM}\ns_add_u32 {S_I}, {S_I}, {S_DO}")
        if i == 10 and not XE:
            mid(); setup_x(); setup2(); setup3()
    stamp(a, 8, 2)
    a(f"s_waitcnt vmcnt({cfg.wfair})")
    stamp(a, 10, 2)
    for c in range(XE, 2 + XE):
        for j in range(4): a(x_m0(c, j)); a("s_nop 0"); a(x_ld(c, j))
    stamp(a, 11, 2)
    if cfg.fine == 2: a(f"s_load_dwordx2 s[62:63], s[20:21], {EPOCH}")
    nonce(a)
    a("v_mov_b32 v244, s62\nv_mov_b32 v245, s63\nds_write_b64 v250, v[244:245] offset:64")
    def w_base(i): return f"v_lshl_add_u32 v12, s{SC+i}, 6, v14\nv_xor_b32 v13, 64, v12"
    def wq(i): return f"s_add_u32 m0, s80, {i*4096}\ns_mul_i32 s82, s{SC+i}, {64*21}\nbuffer_load_dwordx4 v253, {sWQKV}, s82 offen lds"
    a(f"s_mov_b32 s30, {448 * 2688}")
    def w_reads(i):
        out = []
        for mm in range(4):
            for ct in range(2):
                for hf in range(2):
                    d = WB + (i % 2) * 32 + mm * 8 + ct * 4 + hf * 2
                    out.append(f"ds_read_b64_tr_b16 {V(d,2)}, v{12+ct} offset:{mm*2048 + hf*512}")
        return out
    def x_reads(i):
        return [f"ds_read_b128 {V(X+16*i+4*mm,4)}, v{8+mm} offset:{(i%4)*4096}" for mm in range(4)]
    a(f"""s_waitcnt vmcnt(8)""")
    stamp(a, 1)
    a(f"s_mov_b64 exec, 1\nds_add_u32 v250, v251\ns_mov_b64 exec, -1")
    for j in range(2): a(x_m0(2 + XE, j)); a("s_nop 0"); a(x_ld(2 + XE, j))
    lwait(a, "v250", 252, 4, 19)
    stamp(a, 3, 1)
    wr0 = w_reads(0)
    for s_ in wr0[:8]: a(s_)
    if not XE: a("s_waitcnt vmcnt(6)")
    for s_ in x_reads(0) + wr0[8:]: a(s_)
    a(f"s_cmp_eq_u32 {T5}, 1\ns_cbranch_scc1 L_kvV")
    for var in ("K", "V"):
        if var == "V": a("L_kvV:")
        late = [f"s_mul_i32 {T4}, {S_TILE}, {TS}", f"s_add_u32 {T4}, {T4}, {KV}", "v_lshlrev_b32 v7, 4, v1"]
        if var == "K":
            late += [f"s_lshl_b32 {T0}, {S_LC}, 12", f"s_add_u32 {T4}, {T4}, {T0}"]
        else:
            late += f"""s_lshl_b32 {T1}, {S_LC}, 6
v_and_b32 v4, 31, v1
v_add_u32 v4, {T1}, v4                    ; col (ct0)
v_add_u32 v5, 32, v4
v_lshrrev_b32 v3, 5, v1
v_lshlrev_b32 v3, 9, v3
v_add_u32 v3, {VOFF}, v3""".split("\n")
            for r in (4, 5):
                late += f"""v_mul_u32_u24 v2, 2341, v{r}
v_lshrrev_b32 v2, 16, v2
v_mul_u32_u24 v2, {2048 - 28*16}, v2
v_lshl_add_u32 v{r}, v{r}, 4, v2
v_add_u32 v{r}, v{r}, v3""".split("\n")
            late += f"""s_lshl_b32 {T1}, {S_LC}, 2
s_lshr_b32 {T2}, 0xDB96420, {T1}
s_and_b32 {T2}, {T2}, 15                  ; first head that ends in this line-column
s_lshr_b32 {T3}, 0x3223222, {T1}
s_and_b32 {T3}, {T3}, 15
s_lshl_b32 {T3}, {T3}, 4
v_lshrrev_b32 v6, 2, v1
v_lshlrev_b32 v6, 9, v6
v_and_b32 v2, 3, v1
v_lshl_add_u32 v6, v2, 4, v6
s_lshl_b32 {T2}, {T2}, 11
s_add_u32 {T2}, {T2}, {VOFF + 28*16}
v_add_u32 v6, {T2}, v6
v_cmp_eq_u32 vcc, 0, v2
v_mov_b32 v2, 0x3f803f80
s_nop 0
v_cndmask_b32 v236, 0, v2, vcc
v_cndmask_b32 v237, 0, v2, vcc
v_cndmask_b32 v238, 0, v2, vcc
v_cndmask_b32 v239, 0, v2, vcc""".split("\n")
        for i in range(7):
            a("s_waitcnt lgkmcnt(0)")
            stamp(a, 4 + i, 1)
            fill = [[] for _ in range(8)]
            pre = [[] for _ in range(8)]
            if i == 0:
                dq = [(c, j) for c in range(1, 7) for j in range(4)]
                issued_q = dq[:6 + 4*XE]; dq = dq[6 + 4*XE:]
            def take(g):
                if dq and dq[0][0] <= i + 4:
                    e = dq.pop(0); issued_q.append(e)
                    pre[g].append(x_m0(*e)); fill[g].insert(0, x_ld(*e))
            had = bool(dq)
            if i + 1 < 7:
                wr = w_reads(i + 1)
                fill[0] += [w_base(i + 1)] + wr[0:3]
                fill[1] += wr[3:8]; fill[2] += wr[8:12]; fill[3] += wr[12:16]
                for g in ((0, 1, 2, 3, 4) if i == 0 and not XE else (0,)): take(g)
                if i == 4:
                    fill[1].append("s_cmp_eq_u32 s81, 1\ns_cselect_b64 exec, -1, 0\n" + "\n".join(wq(q) for q in range(cfg.wqe)) + "\ns_mov_b64 exec, -1")
                    issued_q += [(99, q) for q in range(cfg.wqe)]
                last = max(q for q, e in enumerate(issued_q) if e[0] == i + 1)
                fill[4] += [f"s_waitcnt vmcnt({len(issued_q) - 1 - last})"] + x_reads(i + 1)
            for g in range(5, 8): take(g)
            if i == 4:
                assert not had
                fill[0].insert(0, "s_mov_b64 exec, 1\nds_add_u32 v250, v251 offset:8\ns_mov_b64 exec, -1")
            if not had:
                for g in range(5 if i < 6 else 0, 8):
                    for q in range(6):
                        if late: fill[g].append(late.pop(0))
            for mm in range(4):
                for ct in range(2):
                    xr = X + 16*i + 4*mm; wr_ = WB + (i % 2) * 32 + mm * 8 + ct * 4
                    c = None if (i == 0 and mm == 0) else ACC + 16*ct
                    for s_ in pre[2*mm + ct]: a(s_)
                    a(mfma(ACC + 16*ct, wr_, xr, c) if var == "K" else mfma(ACC + 16*ct, xr, wr_, c))
                    for s_ in fill[2*mm + ct]: a(s_)
        assert not late
        stamp(a, 11, 1)
        a(f"s_cmp_eq_u32 {S_LC}, 7\ns_cbranch_scc1 L_kvnone")
        if var == "V":
            a(f"s_bfm_b64 exec, {T3}, 0\nbuffer_store_dwordx4 v[236:239], v6, {sWS}, {T4} offen sc1\ns_mov_b64 exec, -1")
        for ct in range(2):
            for j in range(2):
                for q in range(4):
                    z = 8*ct + 4*j + q
                    a(f"v_cvt_pk_bf16_f32 v{PK+z}, v{ACC+2*z}, v{ACC+2*z+1}")
                if var == "K":
                    a(f"buffer_store_dwordx4 {V(PK+8*ct+4*j,4)}, v7, {sWS}, {T4} offen offset:{ct*2048+j*1024} sc1")
                else:
                    a(f"buffer_store_dwordx4 {V(PK+8*ct+4*j,4)}, v{4+ct}, {sWS}, {T4} offen offset:{j*1024} sc1")
        if var == "K": a("s_branch L_kvdone\nL_kvnone:\ns_waitcnt vmcnt(0)\ns_branch L_kvdone")
    a("L_kvdone:\ns_mov_b64 exec, 1\nds_add_u32 v250, v251\ns_mov_b64 exec, -1")
    stamp(a, 2)
    NB = cfg.nbuf
    Q = 16; O = 48; SA = 112; KVB = 144; P0 = KVB + 16*NB; P1 = P0 + 4
    assert P1 + 4 <= 240
    QP = 224
    S_LD = "s9"
    def kv_loads(t, so=None):
        b = KVB + 16 * (t % NB); so = so or f"s{TO+t}"
        return [f"buffer_load_dwordx4 {V(b+4*j,4)}, v{VK if j < 2 else VV}, {sWS}, {so} offen offset:{(j%2)*1024} sc1" for j in range(4)]
    PV = 254; QA = (4, 6, 8, 9)
    pl = poll_issue(f"v{VF}", PG[0], PV, 4)
    QW = 176
    def qsync(target):
        a("s_mov_b64 exec, 1\nds_add_u32 v250, v251 offset:4\ns_mov_b64 exec, -1")
        lwait(a, "v250", 5, target, 14, off=4)
    def qmma(c0, c1, issue, check):
        rd = [f"ds_read_b64_tr_b16 {V(QW+(i%3)*16+mm*4+hf*2,2)}, v15 offset:{i*4096+mm*1024+hf*256}" for i in range(c0, c1) for mm in range(4) for hf in range(2)]
        iss = min(len(rd), 12)
        for s_ in rd[:iss]: a(s_)
        for m in range(4 * (c1 - c0)):
            a(f"s_waitcnt lgkmcnt({iss - (2*m + 2)})")
            a(mfma(ACC, QW + ((c0 + m // 4) % 3) * 16 + 4*(m % 4), X + 16*c0 + 4*m, None if c0 + m == 0 else ACC))
            for s_ in rd[iss:iss+2]: a(s_)
            iss = min(len(rd), iss + 2)
            if m == issue: a(pl)
            if m == check:
                Lf, Lg = a.lab("pf"), a.lab("pg")
                a(f"s_waitcnt vmcnt(0)\n{poll_check(PV, 4)}\ns_cbranch_scc1 {Lf}\ns_mov_b32 {S_LD}, 1")
                for t in range(2):
                    for s_ in kv_loads(t): a(s_)
                a(f"s_branch {Lg}\n{Lf}:\n{pl}\n{Lg}:")
    S_OB, S_FO, S_LO, S_HI, S_CL, S_M0 = "s10", "s11", "s12", "s13", "s14", "s[76:77]"
    def addrs():
        a(f"""s_lshl_b32 {S_OB}, {S_TILE}, 4
s_add_u32 {S_OB}, {S_OB}, {S_H}
s_lshl_b32 {S_OB}, {S_OB}, 11
s_add_u32 {S_OB}, {S_OB}, {OBUF}
s_lshl_b32 {S_FO}, {S_R}, 4
s_add_u32 {S_FO}, {S_FO}, {S_H}
s_lshl_b32 {S_FO}, {S_FO}, 7
s_add_u32 {S_FO}, {S_FO}, {FO}
s_mov_b32 {S_LO}, {lit(2.0**-40)}
s_mov_b32 {S_HI}, {lit(2.0**30)}
s_movk_i32 {S_CL}, 0x1f8
s_cmp_eq_u32 {S_W4}, 0
s_cselect_b64 {S_M0}, 1, 0
v_mov_b32 v2, v250
v_mov_b32 v3, 1
v_mov_b32 v7, v{VL}
v_mov_b32 v248, {lit(28 ** -0.5 * math.log2(math.e))}
v_mov_b32 v249, v248""")
        for i in range(4):
            a(f"""s_add_u32 {T0}, {S_W4}, {i+1}
s_and_b32 {T0}, {T0}, 3
s_lshl_b32 {T1}, {T0}, 11
s_add_u32 {T1}, {T1}, {L_Q}
v_add_u32 v{QA[i]}, {T1}, v7
s_mul_i32 {T0}, {T0}, 12288
s_add_u32 {T0}, {T0}, {(i%3)*4096 + L_RED}
v_add_u32 v{10+i}, {T0}, v7""")
    def publish(n):
        a(f"s_waitcnt vmcnt({n})")
        publish_wg(a, "v250", "v251", 16, 5, S_FL, 244)
        stamp(a, 3)
        a("s_waitcnt vmcnt(1)")
    E = cfg.wqe
    a(f"s_mov_b32 {S_LD}, 0\ns_cmp_eq_u32 s81, 1\ns_cbranch_scc1 L_qtwo")
    for i in range(7): a(wq(i))
    addrs()
    publish(7)
    qsync(4)
    stamp(a, 4)
    qmma(0, 7, cfg.m1, cfg.m2)
    a("s_branch L_qdone\nL_qtwo:\ns_waitcnt vmcnt(4)")
    qsync(4)
    for i in range(E, 7): a(wq(i))
    qmma(0, E, -1, -1)
    addrs()
    publish(7 - E)
    qsync(8)
    stamp(a, 4)
    qmma(E, 7, 0, 4 * (7 - E) - 1)
    a("L_qdone:")
    stamp(a, 5)
    a(f"s_bitcmp1_b32 {S_H}, 0")
    for hf in range(2):
        for q in range(8*hf, 8*hf+8, 2): a(f"v_pk_mul_f32 {V(ACC+q,2)}, {V(ACC+q,2)}, v[248:249]")
        for q in range(4*hf, 4*hf+4): a(f"v_cvt_pk_bf16_f32 v{QP+q}, v{ACC+2*q}, v{ACC+2*q+1}")
        if hf == 0: a(f"s_cselect_b32 exec_lo, -1, 0\ns_mov_b32 exec_hi, 0\nv_mov_b32 v{QP}, 0\nv_mov_b32 v{QP+1}, 0\ns_mov_b64 exec, -1")
        else: a(f"s_cselect_b32 exec_hi, 0, -1\ns_mov_b32 exec_lo, 0\nv_mov_b32 v{QP+6}, 0\nv_mov_b32 v{QP+7}, 0\ns_mov_b64 exec, -1")
        a(f"ds_write_b128 v9, {V(QP+4*hf,4)} offset:{1024*hf}")
    a(f"""s_mov_b64 exec, 1
ds_add_u32 v2, v3
s_mov_b64 exec, -1
s_cmp_eq_u32 {S_LD}, 1
s_cbranch_scc1 L_kvloaded
s_waitcnt vmcnt(0)
{poll_check(PV, 4)}
s_cbranch_scc0 L_kvready""")
    poll(a, f"v{VF}", PG[0], PV, 4, 1, sleep=2)
    a("L_kvready:")
    for t in range(2):
        for s_ in kv_loads(t): a(s_)
    a("L_kvloaded:\ns_mov_b64 exec, 1\nds_add_u32 v2, v3 offset:12\ns_mov_b64 exec, -1")
    stamp(a, 6)
    lwait(a, "v2", 5, 12, 15)
    a(f"s_mov_b32 {S_BAR}, 12")
    for i in range(4):
        a(f"ds_read_b128 {V(Q+8*i,4)}, v{QA[i]}\nds_read_b128 {V(Q+8*i+4,4)}, v{QA[i]} offset:1024")
    stamp(a, 7)
    a("s_waitcnt vmcnt(6) lgkmcnt(6)\ns_setprio 0")
    if cfg.padmid: padto(a, cfg.padmid)
    stamp(a, 8)
    a(mfma(SA, KVB, Q)); a(mfma(SA, KVB + 4, Q + 4, SA))
    a("s_waitcnt vmcnt(4) lgkmcnt(0)\ns_nop 9\n.p2align 3")
    sched = {}
    issued = 2
    for t in range(16):
        for i in (1, 2):
            if (i == 1 or t % cfg.ramp == 0) and issued <= min(15, t + NB - 1):
                sched[(t, i)] = issued; issued += 1
    first = {g: min(k for k, v in sched.items() if v == 4*g) for g in (1, 2, 3)}
    pollat = {(k[0] - 1, 0): g for g, k in first.items()}
    vq = [("t", 1)] * 4
    def after(tag): return len(vq) - 1 - max(q for q, e in enumerate(vq) if e == tag)
    assert NB >= 5
    units = [(t, i) for t in range(12) for i in range(4)] + [(t, i) for i in range(4) for t in range(12, 16)]
    firstuse = {}
    for n, (t, i) in enumerate(units): firstuse.setdefault(t, n)
    waitat = {n - 2: t for t, n in firstuse.items() if t > 0}
    kb = lambda tt: KVB + 16 * (tt % NB)
    redw = lambda i, q: f"ds_write_b128 v{10+i}, {V(O+16*i+4*q,4)} offset:{q*1024}"
    for n, (t, i) in enumerate(units):
        if n % 8 == 0 and n: stamp(a, n // 8, 3)
        cur = SA + 16 * (n % 2); nxt = SA + 16 * ((n + 1) % 2)
        ms = [None] * 4
        if n < 63:
            tn, inx = units[n + 1]
            ms[0] = mfma(nxt, kb(tn), Q + 8*inx); ms[1] = mfma(nxt, kb(tn) + 4, Q + 8*inx + 4, nxt)
        if n > 0:
            tp, ip = units[n - 1]
            ms[2] = mfma(O + 16*ip, kb(tp) + 12, P1, O + 16*ip)
        ms[3] = mfma(O + 16*i, kb(t) + 8, P0, None if t == 0 else O + 16*i)
        side = [None] * 4
        key = (n // 4, n % 4)
        if key in sched:
            assert n < 48
            tl = sched[key]
            if tl % 4 == 0:
                g = tl // 4
                a(f"s_waitcnt vmcnt({after(('p', g))})\nv_cmp_ne_u64 vcc, {S_NONCE}, v[14:15]\ns_cbranch_vccnz L_gate{g}\nL_gated{g}:\ns_nop 0")
            side = kv_loads(tl); vq += [("t", tl)] * 4
        if key in pollat:
            g = pollat[key]
            side[0] = f"buffer_load_dwordx2 v[14:15], v{VF}, {sWS}, {PG[g]} offen sc1"; vq.append(("p", g))
        sig = "\ns_mov_b64 exec, 1\nds_add_u32 v2, v3\ns_mov_b64 exec, -1"
        rdr = lambda q: f"ds_read_b128 {V(O+4*q,4)}, v13 offset:{q*1024}"
        if 53 <= n <= 56: side[1] = redw(0, n - 53)
        if n in (57, 58): side[1] = redw(1, 2*(n - 57)); side[3] = redw(1, 2*(n - 57) + 1) + (sig if n == 58 else "")
        if n == 60: side[1] = "ds_read_b32 v5, v2"
        if n == 61:
            a(f"s_waitcnt lgkmcnt(0)\nv_readfirstlane_b32 {T0}, v5\ns_cmp_ge_u32 {T0}, 16\ns_cbranch_scc0 L_redw\nL_redd:")
        if n in (61, 62):
            k_ = n - 61
            side = [redw(2, 2*k_), rdr(4*k_) + "\n" + rdr(4*k_+1), redw(2, 2*k_+1) + (sig if k_ else ""), rdr(4*k_+2) + "\n" + rdr(4*k_+3)]
        if n == 63: side[2] = "ds_read2_b32 v[4:5], v2 offset0:34 offset1:0"
        if n == cfg.bhi: side[0] = "s_setprio 3\ns_nop 0" + ("\n" + side[0] if side[0] else "")
        for p in range(4):
            if ms[p]: a(ms[p])
            if side[p]: a(side[p])
            for e in range(4):
                if n in waitat and p == 3 and e == 3:
                    a(f"s_waitcnt vmcnt({after(('t', waitat[n]))})\nv_exp_f32_e64 v{cur+4*p+e}, v{cur+4*p+e}")
                else:
                    a(f"v_exp_f32 v{cur+4*p+e}, v{cur+4*p+e}")
            pk = (P0, P0 + 2, P1, P1 + 2)[p]
            a(f"v_cvt_pk_bf16_f32 v{pk}, v{cur+4*p}, v{cur+4*p+1}\nv_cvt_pk_bf16_f32 v{pk+1}, v{cur+4*p+2}, v{cur+4*p+3}")
    a(f"s_waitcnt lgkmcnt(0)\nv_readfirstlane_b32 {T0}, v5\nv_readfirstlane_b32 {T1}, v4")
    a(mfma(O + 48, kb(15) + 12, P1, O + 48))
    a(f"s_add_u32 {T1}, {T1}, {12 if cfg.ohint and not cfg.noA else 20}\ns_min_u32 {T0}, {T0}, {T1}\ns_cmp_ge_u32 {T0}, 20\ns_cbranch_scc0 L_redw2\nL_redd2:")
    for q in range(8, 12): a(f"ds_read_b128 {V(O+4*q,4)}, v13 offset:{q*1024}")
    a("s_mov_b64 exec, 1\nds_add_u32 v2, v3")
    if cfg.ohint: a(f"s_mov_b64 exec, {S_M0}\nbuffer_store_dwordx2 v[244:245], v246, {sWS}, {S_FO} offen sc1")
    a("s_mov_b64 exec, -1")
    stamp(a, 9)
    OO = O + 48
    for q in range(0, 16, 2): a(f"v_pk_add_f32 {V(O+q,2)}, {V(O+q,2)}, {V(O+16+q,2)}")
    for q in range(0, 16, 2): a(f"v_pk_add_f32 {V(OO+q,2)}, {V(OO+q,2)}, {V(O+q,2)}")
    a("s_waitcnt lgkmcnt(1)")
    for q in (12, 0, 2, 4, 6, 8, 10, 14): a(f"v_pk_add_f32 {V(OO+q,2)}, {V(OO+q,2)}, {V(O+32+q,2)}")
    a(f"""v_mov_b32 v10, v{OO+12}
v_mov_b32 v11, v{OO+12}
v_pk_add_f32 v[12:13], {V(OO,2)}, {V(OO+2,2)}
v_pk_add_f32 v[14:15], {V(OO+4,2)}, {V(OO+6,2)}
v_permlane32_swap_b32 v10, v11
v_pk_add_f32 v[12:13], v[12:13], {V(OO+8,2)}
v_pk_add_f32 v[14:15], v[14:15], {V(OO+10,2)}
v_rcp_f32 v10, v11
v_pk_add_f32 v[12:13], v[12:13], {V(OO+12,2)}
v_pk_add_f32 v[14:15], v[14:15], {V(OO+14,2)}
v_cmp_le_f32 s[70:71], {S_LO}, v11
v_pk_add_f32 v[12:13], v[12:13], v[14:15]
v_cmp_ge_f32 s[72:73], {S_HI}, v11
v_add_f32 v12, v12, v13
v_cmp_class_f32 vcc, v12, {S_CL}
s_and_b64 s[70:71], s[70:71], s[72:73]
s_and_b64 vcc, vcc, s[70:71]
s_cmp_eq_u64 vcc, exec""")
    if cfg.force_fb: a("s_cmp_eq_u32 0, 1")
    a(f"s_cbranch_scc0 L_fallback\nL_fbdone:\nv_mov_b32 v11, v10")
    for hf in range(2):
        for q in range(8*hf, 8*hf+8, 2): a(f"v_pk_mul_f32 {V(OO+q,2)}, {V(OO+q,2)}, v[10:11]")
        for q in range(4*hf, 4*hf+4): a(f"v_cvt_pk_bf16_f32 v{O+q}, v{OO+2*q}, v{OO+2*q+1}")
        if hf: a(f"s_mov_b32 exec_lo, 0\nv_mov_b32 v{O+6}, 0\ns_mov_b32 exec_lo, -1")
        if cfg.ohint: a(f"v_min_u32 v{O+4*hf}, -2, v{O+4*hf}")
        a(f"buffer_store_dwordx4 {V(O+4*hf,4)}, v7, {sWS}, {S_OB} offen offset:{1024*hf} sc1")
    stamp(a, 10)
    S_BP, S_CNT, S_DT = "s70", "s71", "s72"
    GS = 144; GC = 176; ZR = 196; G = 16; OL = 196; AR = 128
    S_O0, S_O1, S_FH, S_RT, S_CLM = "s73", "s74", "s75", "s76", "s77"
    a(f"""s_lshl_b32 {S_BP}, {S_XCD}, 3
s_lshr_b32 {T0}, {S_IDX}, 2
s_add_u32 {S_BP}, {S_BP}, {T0}
s_and_b32 {T1}, {S_IDX}, 3
s_cmp_ge_u32 {T1}, 2
s_cselect_b32 {S_CNT}, 3, 4
s_lshl_b32 {S_DT}, {T1}, 2
s_cmp_eq_u32 {T1}, 3
s_cselect_b32 {S_DT}, 11, {S_DT}
s_add_u32 {S_DT}, {S_DT}, {S_W4}
s_cmp_ge_u32 {S_W4}, {S_CNT}
s_cbranch_scc1 L_bend
s_setprio {cfg.fprio}
v_bfe_u32 v5, v1, 2, 1
v_lshlrev_b32 v5, 4, v5
v_bfe_u32 v6, v1, 3, 2
v_lshl_add_u32 v5, v6, 2, v5
v_and_b32 v6, 3, v1
v_add_u32 v5, v5, v6
s_lshl_b32 {T0}, {S_DT}, 5
v_add_u32 v5, {T0}, v5                    ; d
v_lshlrev_b32 v9, 31, v5
v_xor_b32 v9, 0.5, v9                     ; 0.5*(-1)^d
v_cvt_f32_u32 v5, v5
v_mul_f32 v5, {lit(1/448)}, v5
v_lshrrev_b32 v4, 5, v1
v_cvt_f32_u32 v6, v4
v_mul_f32 v6, v5, v6
v_mul_f32 v6, 4.0, v6
v_mul_f32 v{GC}, {lit(16.0)}, v5
v_cos_f32 v{GC}, v{GC}""")
    for j in range(16): a(f"v_fmamk_f32 v{GS+j}, v5, {lit(float(16*(j//8) + 8*((j%8)//4) + j%4))}, v6")
    a(f"v_add_f32 v{GC}, v{GC}, v{GC}")
    for j in range(16): a(f"v_sin_f32_e64 v{GS+16+j}, -v{GS+j}\nv_cos_f32 v{GS+j}, v{GS+j}")
    a(f"v_mov_b32 v{GC+1}, v{GC}")
    def ggen(q0, q1):
        a(".p2align 3")
        for q in range(q0, q1):
            rho = q % 2; st = q // 2
            cur = GS + 16*rho + 8*(st % 2); oth = GS + 16*rho + 8*((st + 1) % 2); gp = G + 4*q
            if st >= 2:
                for z in range(0, 8, 2):
                    a(f"v_pk_fma_f32 {V(cur+z,2)}, {V(GC,2)}, {V(oth+z,2)}, {V(cur+z,2)} neg_lo:[0,0,1] neg_hi:[0,0,1]")
            for z in range(4): a(f"v_cvt_pk_bf16_f32 v{gp+z}, v{cur+2*z}, v{cur+2*z+1}")
            if st == 0:
                a(f"s_mov_b32 exec_hi, 0\nv_cvt_pk_bf16_f32 v{gp}, {'v9' if rho else '0.5'}, v{cur+1}\ns_mov_b32 exec_hi, -1")
    ggen(0, 28)
    stamp(a, 11)
    srd(a, sOUT, 16, 2048 * 1792)
    a(f"""v_add_u32 v8, {L_ZB}, v7
v_and_b32 v6, 31, v1
v_mul_u32_u24 v6, {64*1792}, v6
v_lshl_add_u32 v6, v4, 5, v6
s_mul_i32 {T4}, {S_BP}, 1792
s_lshl_b32 {T1}, {S_DT}, 6
s_add_u32 {T4}, {T4}, {T1}""")
    lwait(a, "v2", 5, 4, 17, off=132)
    stamp(a, 13)
    order = [4*(q//4) + 2*(q % 2) + ((q//2) % 2) for q in range(28)]
    for q in range(8): a(f"ds_read_b128 {V(ZR+4*q,4)}, v8 offset:{order[q]*1024}")
    for p in range(28):
        a(f"s_waitcnt lgkmcnt({min(7, 27-p)})")
        a(mfma(AR, G + 4*p, ZR + 4*(p % 8), None if p == 0 else AR))
        if p + 8 < 28: a(f"ds_read_b128 {V(ZR+4*(p%8),4)}, v8 offset:{order[p+8]*1024}")
    osc = ("", " sc1", " nt", " sc0 sc1")[cfg.outsc]
    if cfg.odefer and not cfg.noA: lwait(a, "v2", 5, 4, 36, sleep=2, off=20)
    for hf in range(2):
        for q in range(4*hf, 4*hf+4): a(f"v_cvt_pk_bf16_f32 v{GS+q}, v{AR+2*q}, v{AR+2*q+1}")
        a(f"buffer_store_dwordx4 {V(GS+4*hf,4)}, v6, {sOUT}, {T4} offen offset:{16*hf}{osc}")
    a("L_bend:")
    stamp(a, 12)
    dump_stamps(a, 240)
    a("s_endpgm")
    a("L_redw:")
    lwait(a, "v2", 5, 16, 2)
    a("s_branch L_redd\nL_redw2:")
    lwait(a, "v2", 5, 20, 2)
    if cfg.ohint and not cfg.noA: lwait(a, "v2", 5, 8, 39, sleep=1, off=136)
    a("s_branch L_redd2")
    for g in (1, 2, 3):
        a(f"L_gate{g}:")
        poll(a, f"v{VF}", PG[g], 14, 4, 25, sleep=2)
        a(f"s_branch L_gated{g}")
    a("L_fallback:")
    QO = Q + 24; KB = KVB; M = 15; S_SO = "s70"
    a(f"v_mov_b32 v{M}, 0xff800000\ns_mov_b32 {S_SO}, {KV}\nL_fb1:")
    for s_ in kv_loads(0, S_SO)[:2]: a(s_)
    a(f"s_add_u32 {S_SO}, {S_SO}, {TS}\ns_waitcnt vmcnt(0)")
    a(mfma(SA, KB, QO)); a(mfma(SA, KB + 4, QO + 4, SA))
    for q in range(0, 16, 2): a(f"v_max3_f32 v{M}, v{M}, v{SA+q}, v{SA+q+1}")
    a(f"""s_cmp_lt_u32 {S_SO}, {KV + 64*TS}
s_cbranch_scc1 L_fb1
v_mov_b32 v14, v{M}
v_permlane32_swap_b32 v14, v{M}
v_max_f32 v{M}, v14, v{M}
s_mov_b32 {S_SO}, {KV}""")
    for q in range(16): a(f"v_mov_b32 v{OO+q}, 0")
    a("L_fb2:")
    for s_ in kv_loads(0, S_SO): a(s_)
    a(f"s_add_u32 {S_SO}, {S_SO}, {TS}\ns_waitcnt vmcnt(0)")
    a(mfma(SA, KB, QO)); a(mfma(SA, KB + 4, QO + 4, SA))
    for q in range(16): a(f"v_sub_f32 v{SA+q}, v{SA+q}, v{M}")
    for q in range(16): a(f"v_exp_f32 v{SA+q}, v{SA+q}")
    for q in range(8): a(f"v_cvt_pk_bf16_f32 v{P0+q}, v{SA+2*q}, v{SA+2*q+1}")
    a(mfma(OO, KB + 8, P0, OO)); a(mfma(OO, KB + 12, P1, OO))
    a(f"""s_cmp_lt_u32 {S_SO}, {KV + 64*TS}
s_cbranch_scc1 L_fb2
v_mov_b32 v10, v{OO+12}
v_mov_b32 v11, v{OO+12}
v_permlane32_swap_b32 v10, v11
v_rcp_f32 v10, v11
s_branch L_fbdone""")

def role_A(a):
    FB = 16; GS0 = 48; M = 72; F = 88; ACC = 200; TMP = 216
    S_BP = "s78"
    S_CG, S_CNT, S_CB, S_DT, S_TASK, S_K1 = "s79", "s80", "s81", "s82", "s83", "s73"
    S_B, S_KT16 = S_BP, S_DT
    (PN, _, _, P_TST, P_W, P_F1, P_TLD, P_TBW, P_TBR, P_TTW, P_TTR, P_UST, P_F2, P_WOD, P_WOR, P_WOR2,
     P_ZW0, P_ZW1, P_PF, P_BC, P_PS, _, P_LS, P_DUM) = range(232, 256)
    sc = 1.0 / (2048 * 448)
    def albar(code): lbar(a, "v14", "v15", P_LS, code, sleep=1)
    def burst(items, th):
        a("s_setprio 0")
        for q, it in enumerate(items):
            if q >= th: a(f"s_waitcnt vmcnt({th-1})")
            a(it)
        a(f"s_setprio {cfg.aprio}")
    SB = "s[74:75]"
    def stage_arrive(k):
        L = a.lab("arr")
        a(f"""s_waitcnt vmcnt(0)
s_mov_b64 exec, 1
ds_add_rtn_u32 v{P_LS}, v14, v15 offset:8
s_mov_b64 exec, -1
s_waitcnt lgkmcnt(0)
v_readfirstlane_b32 {T0}, v{P_LS}
s_cmp_eq_u32 {T0}, {4*k+3}
s_cbranch_scc0 {L}
s_mov_b32 {T0}, 1
s_lshl_b32 {T1}, {S_XCD}, 7
s_add_u32 {T1}, {T1}, {k*1024}
s_atomic_add {T0}, {SB}, {T1} glc
s_waitcnt lgkmcnt(0)
s_sub_u32 {T0}, {T0}, s62
s_cmp_eq_u32 {T0}, 31
s_cbranch_scc0 {L}
s_mov_b32 {T1}, {FA1 + 2048 + k*8192}
s_mov_b64 exec, {-1 if cfg.allpoll else 0xffff}
buffer_atomic_add v15, v{P_PF}, {sWS}, {T1} offen sc1
s_mov_b64 exec, -1
{L}:""")
    def stage_wait(k, pre):
        L, L2, L3 = a.lab("sw"), a.lab("sw"), a.lab("sw")
        if not cfg.allpoll: a(f"s_cmp_eq_u32 {S_W4}, 0\ns_cbranch_scc0 {L2}")
        a(f"""s_and_b32 {T1}, s2, 15
s_lshl_b32 {T2}, {S_W4}, 4
s_add_u32 {T1}, {T1}, {T2}
s_lshl_b32 {T1}, {T1}, 7
s_add_u32 {T1}, {T1}, {2048 + k*8192}
s_add_u32 {T2}, s62, 8
s_mov_b32 {S_TO}, {cfg.poll_limit}
s_waitcnt lgkmcnt(0)
s_sleep {pre}
{L}:
s_mov_b32 {T0}, 0
s_atomic_or {T0}, {SB}, {T1} glc
s_waitcnt lgkmcnt(0)
s_cmp_eq_u32 {T0}, {T2}
s_cbranch_scc1 {L}d
s_sleep {cfg.bsleep}
s_sub_u32 {S_TO}, {S_TO}, 1
s_cbranch_scc0 {L}
s_mov_b32 {S_TO}, 32
s_branch L_fail
{L}d:""")
        if cfg.allpoll: return
        a(f"s_mov_b64 exec, 1\nds_add_u32 v14, v15 offset:12\ns_mov_b64 exec, -1\ns_branch {L3}\n{L2}:")
        lwait(a, "v14", P_LS, k + 1, 33, sleep=cfg.lsl, off=12)
        a(f"{L3}:")
    def pace():
        if cfg.pace: a(f"s_sleep {cfg.pace}")
    a(f"""L_roleA:
v_mov_b32 v3, 0
v_mov_b32 v2, {L_SYNC}
ds_write2_b32 v2, v3, v3 offset0:0 offset1:32
ds_write2_b32 v2, v3, v3 offset0:1 offset1:2
ds_write2_b32 v2, v3, v3 offset0:3 offset1:33
ds_write2_b32 v2, v3, v3 offset0:4 offset1:34
ds_write2_b32 v2, v3, v3 offset0:5 offset1:35
ds_write2_b32 v2, v3, v3 offset0:8 offset1:9
ds_write2_b32 v2, v3, v3 offset0:10 offset1:11
s_setprio {cfg.aprio}
s_mov_b32 {S_BAR}, 0
s_lshl_b32 {S_BP}, {S_XCD}, 3
s_lshr_b32 {T0}, {S_IDX}, 2
s_add_u32 {S_BP}, {S_BP}, {T0}
s_and_b32 {S_CG}, {S_IDX}, 3
s_cmp_ge_u32 {S_CG}, 2
s_cselect_b32 {S_CNT}, 3, 4
s_lshl_b32 {S_CB}, {S_CG}, 2
s_cmp_eq_u32 {S_CG}, 3
s_cselect_b32 {S_CB}, 11, {S_CB}
s_add_u32 {S_DT}, {S_CB}, {S_W4}
v_and_b32 v2, 31, v1                      ; v2 = lane%32
v_lshrrev_b32 v3, 5, v1                   ; v3 = half
v_cvt_f32_u32 v4, v3
s_waitcnt lgkmcnt(0)
{st0()}""")
    if cfg.touch:
        tl = [["s[10:11], 0", "s[4:5], 0", "s[6:7], 0"], ["s[20:21], s76", "s[8:9], 0", "s[14:15], 0"],
              ["s[20:21], s77", "s[16:17], 0", "s[16:17], s76"], ["s[20:21], s74", "s[20:21], s75"]]
        a(f"s_cmp_ge_u32 {S_IDX}, {cfg.touch}\ns_cbranch_scc1 L_tch\ns_mov_b32 s76, 0x200000\ns_mov_b32 s77, 0x600000\ns_mov_b32 s74, 0x400000\ns_mov_b32 s75, 0x800000")
        for w in range(4):
            a(f"s_cmp_lg_u32 {S_W4}, {w}\ns_cbranch_scc1 L_tch{w}")
            for t_ in tl[w]: a(f"s_load_dword s72, {t_}")
            a(f"L_tch{w}:")
        a("L_tch:")
    def angles(n, vstep, vbase, offs, dst=TMP):
        for j in range(n): a(f"v_fmamk_f32 v{dst+j}, {vstep}, {lit(float(offs[j]))}, {vbase}")
    def gen_F():
        A0 = TMP; A1 = TMP + 8; C2 = TMP + 16
        a(f"""v_and_b32 v5, 15, v1
s_lshl_b32 {T0}, {S_KT16}, 4
v_add_u32 v5, {T0}, v5                    ; k
v_bfe_u32 v6, v1, 4, 1
v_lshl_add_u32 v7, v5, 1, v6
v_cmp_eq_u32 vcc, 1, v7
v_mov_b32 v7, 224
v_cndmask_b32 v5, v5, v7, vcc
v_cndmask_b32 v6, v6, 0, vcc
v_cvt_f32_u32 v5, v5
v_cvt_f32_u32 v6, v6
v_mul_f32 v5, {lit(1/448)}, v5            ; kf
v_mul_f32 v6, {lit(0.25)}, v6
v_mul_f32 v7, v5, v4
v_fmamk_f32 v6, v7, {lit(8.0)}, v6
v_mul_f32 v{C2}, {lit(16.0)}, v5
v_cos_f32 v{C2}, v{C2}""")
        angles(16, "v5", "v6", [j % 8 + 16 * (j // 8) for j in range(16)])
        a(f"v_add_f32 v{C2}, v{C2}, v{C2}")
        for j in range(16): a(f"v_cos_f32 v{A0+j}, v{A0+j}")
        a(f"v_mov_b32 v{C2+1}, v{C2}\ns_barrier\n.p2align 3")
        for m in range(28):
            cur = A0 if m % 2 == 0 else A1; oth = A1 if m % 2 == 0 else A0
            if m >= 2:
                for q in range(0, 8, 2):
                    a(f"v_pk_fma_f32 {V(cur+q,2)}, {V(C2,2)}, {V(oth+q,2)}, {V(cur+q,2)} neg_lo:[0,0,1] neg_hi:[0,0,1]")
            for q in range(4): a(f"v_cvt_pk_bf16_f32 v{F+4*m+q}, v{cur+2*q}, v{cur+2*q+1}")
    def gen_M():
        a(f"""v_cvt_f32_u32 v5, v2
s_and_b32 {T0}, {S_W4}, 1
s_lshl_b32 {T0}, {T0}, 10
s_add_u32 {T0}, {T0}, {S_B}
v_lshl_add_u32 v6, v3, 8, {T0}
v_cvt_f32_u32 v6, v6
v_mul_f32 v6, v6, v5
s_cmp_ge_u32 {S_W4}, 2
s_cselect_b32 {T0}, {lit(0.25)}, 0
v_mov_b32 v7, {T0}
v_fmamk_f32 v6, v6, {lit(1/2048)}, v7
v_mul_f32 v5, {lit(1/32)}, v5""")
        angles(8, "v5", "v6", [8*(j//4) + j%4 for j in range(8)])
        for j in range(8): a(f"v_cos_f32 v{TMP+j}, v{TMP+j}")
        for q in range(4): a(f"v_cvt_pk_bf16_f32 v{ACC+8+q}, v{TMP+2*q}, v{TMP+2*q+1}")
    def gen_MS():
        a(f"""v_lshlrev_b32 v5, 6, v2
v_add_u32 v5, {S_BP}, v5
v_cvt_f32_u32 v5, v5
v_mul_f32 v5, {lit(1/2048)}, v5
s_lshl_b32 {T0}, {S_W4}, 3
v_lshl_add_u32 v6, v3, 2, {T0}
v_cvt_f32_u32 v6, v6
v_mul_f32 v6, v5, v6""")
        angles(4, "v5", "v6", range(4), TMP + 8)
        for j in range(4): a(f"v_cos_f32 v{TMP+2*j}, v{TMP+8+j}\nv_sin_f32 v{TMP+2*j+1}, v{TMP+8+j}")
        a(f"v_mov_b32 v6, {lit(2*sc)}\nv_mov_b32 v7, v6")
        for j in range(4): a(f"v_pk_mul_f32 {V(TMP+2*j,2)}, {V(TMP+2*j,2)}, v[6:7]")
        for j in range(4):
            a(f"v_cvt_pk_bf16_f32 v{48+j}, v{TMP+2*j}, v{TMP+2*j+1}\nv_cvt_pk_bf16_f32 v{52+j}, v{TMP+2*j+1}, -v{TMP+2*j}")
    def gen_FB():
        a(f"""v_and_b32 v5, 15, v1
s_lshl_b32 {T0}, {S_W4}, 4
v_add_u32 v5, {T0}, v5
v_cvt_f32_u32 v5, v5
v_mul_f32 v5, {lit(1/64)}, v5
v_bfe_u32 v6, v1, 4, 1
v_cvt_f32_u32 v6, v6
v_mul_f32 v6, {lit(0.25)}, v6
v_mul_f32 v7, v5, v4
v_fmamk_f32 v6, v7, {lit(4.0)}, v6""")
        C2 = TMP + 16
        a(f"v_mul_f32 v{C2}, {lit(8.0)}, v5\nv_cos_f32 v{C2}, v{C2}")
        angles(8, "v5", "v6", [8*(j//4) + j%4 for j in range(8)], TMP + 20)
        a(f"v_add_f32 v{C2}, v{C2}, v{C2}")
        for j in range(8): a(f"v_cos_f32 v{TMP+2*j}, v{TMP+20+j}\nv_sin_f32 v{TMP+2*j+1}, v{TMP+20+j}")
        a(f"v_mov_b32 v{C2+1}, v{C2}")
        for m in range(8):
            cur = TMP + 8*(m % 2); oth = TMP + 8*((m + 1) % 2)
            if m >= 2:
                for q in range(0, 8, 2):
                    a(f"v_pk_fma_f32 {V(cur+q,2)}, {V(C2,2)}, {V(oth+q,2)}, {V(cur+q,2)} neg_lo:[0,0,1] neg_hi:[0,0,1]")
            for q in range(4): a(f"v_cvt_pk_bf16_f32 v{FB+4*m+q}, v{cur+2*q}, v{cur+2*q+1}")
    def gen_addr():
        a(f"""v_mov_b32 v{PN+2}, 0
v_lshlrev_b32 v7, 4, v1                   ; v7 = lane*16
v_and_b32 v6, 3, v1
v_lshrrev_b32 v5, 2, v1
v_lshlrev_b32 v5, 16, v5
v_lshl_add_u32 v{P_TST}, v6, 4, v5
s_lshl_b32 {T1}, {S_W4}, 11
s_add_u32 {T0}, {T1}, {L_TT}
v_add_u32 v{P_TTR}, {T0}, v7
v_lshlrev_b32 v5, 6, v2
v_lshl_add_u32 v5, v3, 4, v5
v_add_u32 v{P_TTW}, {T0}, v5
s_lshl_b32 {S_TASK}, {S_XCD}, 5
s_add_u32 {S_TASK}, {S_TASK}, {S_IDX}
s_lshr_b32 {T0}, {S_TASK}, 3
s_lshl_b32 {T2}, {S_W4}, 9
s_add_u32 {T0}, {T0}, {T2}
s_mul_i32 {T0}, {T0}, 225
s_lshl_b32 {T2}, {S_HH}, 5
s_add_u32 {T0}, {T0}, {T2}
v_mul_u32_u24 v5, {128*225}, v3
v_add3_u32 v5, v5, v2, {T0}
v_lshlrev_b32 v{P_W}, 1, v5
v_bfe_u32 v12, v1, 4, 1
v_lshlrev_b32 v5, 2, v2
v_lshl_add_u32 v{P_TLD}, v3, 9, v5
v_lshl_add_u32 v{P_UST}, v3, 17, v5
v_add_u32 v{P_TBR}, {L_TB}, v7
v_add_u32 v{P_TBW}, {T1}, v{P_TBR}
s_add_u32 {S_K1}, {S_W4}, 3
s_cmp_eq_u32 {S_W4}, 0
s_cselect_b32 {S_K1}, 7, {S_K1}
s_lshl_b32 {T0}, {S_W4}, 12
v_add_u32 v{P_ZW0}, {T0}, v{P_TBR}
s_lshl_b32 {T0}, {S_K1}, 12
v_add_u32 v{P_ZW1}, {T0}, v{P_TBR}
v_bfe_u32 v13, v1, 2, 2
v_lshrrev_b32 v5, 4, v1
v_xor_b32 v{P_WOD}, v13, v5
s_sub_u32 {T0}, {S_CNT}, 1
v_min_u32 v{P_WOD}, {T0}, v{P_WOD}
v_add_u32 v{P_WOD}, {S_CB}, v{P_WOD}
v_lshlrev_b32 v{P_WOD}, 6, v{P_WOD}
v_mul_u32_u24 v5, 896, v5
v_add_u32 v5, v5, v{P_WOD}
v_lshl_add_u32 v5, v6, 4, v5
s_mul_i32 {T0}, {S_W4}, {4*896}
v_add_u32 v{P_WOD}, {T0}, v5
v_xor_b32 v5, {S_W4}, v13
v_lshlrev_b32 v5, 6, v5
v_lshl_add_u32 v5, v13, 8, v5
v_and_b32 v6, 1, v1
v_lshl_add_u32 v5, v6, 5, v5
v_lshl_add_u32 v5, v12, 4, v5
v_bfe_u32 v6, v1, 1, 1
v_lshl_add_u32 v5, v6, 3, v5
v_add_u32 v{P_WOR2}, {L_X}, v5
v_lshl_add_u32 v{P_WOR}, v3, 10, v{P_WOR2}""")
    pieces = [gen_F, gen_FB, gen_M, gen_MS, gen_addr]
    assert cfg.pre >= 1
    def wq_warm():
        a(f"""s_cmp_eq_u32 {S_LC}, 7
s_cbranch_scc0 L_pf1
v_mul_u32_u24 v5, 2688, v1
s_mul_i32 {T0}, {T5}, 3
s_add_u32 {T0}, {T0}, {S_RR}
s_lshl_b32 {T0}, {T0}, 7
s_mul_i32 {T1}, {S_W4}, {128*2688}
s_add_u32 {T0}, {T0}, {T1}
s_add_u32 {T1}, {T0}, {64*2688}
buffer_load_dword v{P_DUM}, v5, {sWQKV}, {T0} offen
buffer_load_dword v{P_DUM}, v5, {sWQKV}, {T1} offen
L_pf1:""")
    if cfg.spf:
        a(f"""s_lshl_b32 {T0}, s2, 2
s_add_u32 {T0}, {T0}, {S_W4}
s_mul_i32 {T1}, {T0}, {14*128}
s_add_u32 s76, s4, {T1}
s_addc_u32 s77, s5, 0
s_mul_i32 {T1}, {T0}, 900
s_add_u32 s70, s6, {T1}
s_addc_u32 s71, s7, 0
s_add_u32 s74, s8, {T1}
s_addc_u32 s75, s9, 0""")
    n0 = len(a.L)
    for q in range(cfg.pre):
        pieces.pop(0)()
        if q == 0: srd(a, sWQKV, 12, 448 * 2688)
        if cfg.wqwarm == q + 1: wq_warm()
    if cfg.spf:
        from asmlib import Ins
        pf = [f"s_load_dword s72, s[76:77], {q*128}" for q in range(14)]
        if cfg.spf >= 2: pf += [f"s_load_dword s72, s[{b}:{b+1}], {q*128}" for q in range(7) for b in (70, 74)]
        lo = n0 + cfg.spf0; hi = len(a.L)
        for q in reversed(range(len(pf))): a.L.insert(lo + (hi - lo) * q // len(pf), Ins(pf[q]))
    stamp(a, 1)
    srd(a, sWS, 20, WS_SIZE)
    srd(a, sX, 4, 2048 * 896); srd(a, sWR, 6, 2048 * 450); srd(a, sWI, 8, 2048 * 450)
    srd(a, sWO, 14, 448 * 896); srd(a, sOUT, 16, 2048 * 1792)
    S_XA, S_WQL, S_WQG = "s70", "s71", "s72"
    XD = 70
    a(f"""v_lshrrev_b32 v6, 3, v1
v_and_b32 v5, 7, v1
v_lshrrev_b32 v8, 4, v1
v_xor_b32 v5, v5, v8
s_and_b32 {T0}, {S_W4}, 1
s_lshl_b32 {T0}, {T0}, 2
v_xor_b32 v5, {T0}, v5
v_mul_u32_u24 v6, {64*896}, v6
s_mul_i32 {T1}, {S_W4}, {8*64*896}
s_mul_i32 {T2}, {S_B}, 896
s_add_u32 {T1}, {T1}, {T2}
v_add_u32 v6, {T1}, v6
v_lshl_add_u32 v{XD}, v5, 4, v6
s_lshl_b32 {T0}, {S_W4}, 10
s_add_u32 {S_XA}, {T0}, {L_X}
s_mov_b32 {T2}, {L_X}""")
    x_read_addrs(a, 8, "v1", T2, TMP)
    a(f"""v_mov_b32 v14, {L_SYNC+128}
v_mov_b32 v15, 1
v_mov_b32 v{P_BC}, {L_SYNC}
s_lshl_b32 {T1}, {S_CG}, 1""")
    lwait(a, f"v{P_BC}", P_LS, 4, 34, sleep=1)
    a(f"""ds_read_b64 {V(PN,2)}, v{P_BC} offset:64
v_lshlrev_b32 v{P_PF}, 7, v1
s_add_u32 s74, s20, {FA1}
s_addc_u32 s75, s21, 0
s_waitcnt lgkmcnt(0)
v_readfirstlane_b32 s62, v{PN}
v_readfirstlane_b32 s63, v{PN+1}
s_lshl_b32 {T0}, s2, 2
s_add_u32 {T0}, {T0}, {S_W4}
s_cmp_lg_u32 {T0}, 0
s_cbranch_scc1 L_noinit
s_mov_b32 {T0}, {FA1}
buffer_store_dwordx2 {V(PN,2)}, v{P_PF}, {sWS}, {T0} offen offset:2048 sc1
s_mov_b32 {T2}, {FA1 + 8192}
buffer_store_dwordx2 {V(PN,2)}, v{P_PF}, {sWS}, {T2} offen offset:2048 sc1
s_mov_b64 exec, 0xff00
buffer_store_dwordx2 {V(PN,2)}, v{P_PF}, {sWS}, {T0} offen sc1
s_waitcnt vmcnt(0)
s_mov_b64 exec, 0xff
buffer_store_dwordx2 {V(PN,2)}, v{P_PF}, {sWS}, {T0} offen sc1
s_mov_b64 exec, -1
L_noinit:""")
    def wpull():
        L1, L2 = a.lab("wp"), a.lab("wp")
        a(f"""s_lshl_b32 {T2}, {S_IDX}, 1
s_lshr_b32 {T3}, {S_W4}, 1
s_add_u32 {T2}, {T2}, {T3}
s_mul_i32 {T2}, {T2}, 14400
s_mul_i32 {T3}, {S_XCD}, 1800
s_add_u32 {T2}, {T2}, {T3}
s_mov_b64 exec, 0x7fff
s_bitcmp1_b32 {S_W4}, 0
s_cbranch_scc1 {L1}
buffer_load_ushort v{P_DUM}, v{P_PF}, {sWR}, {T2} offen
s_branch {L2}
{L1}:
buffer_load_ushort v{P_DUM}, v{P_PF}, {sWI}, {T2} offen
{L2}:
s_mov_b64 exec, -1""")
    stamp(a, 2)
    if cfg.wpf == 2: wpull()
    lwait(a, f"v{P_BC}", P_LS, 4, 20, sleep=1, off=8)
    if cfg.xas:
        a(f"s_mul_i32 {T2}, {S_H}, 7\ns_bfe_u32 {T2}, {T2}, 0x30001\ns_cmp_gt_u32 {T2}, 4\ns_cbranch_scc0 L_xago")
        lwait(a, f"v{P_BC}", P_LS, 4 * cfg.xas, 30, sleep=1, off=4)
        a("L_xago:")
    for c in range(7):
        if c == cfg.xae:
            if cfg.wpf == 1: wpull()
            lwait(a, f"v{P_BC}", P_LS, 4, 38, sleep=1, off=16)
        a(f"""s_add_u32 {T2}, {T1}, 1
s_lshr_b32 {T3}, {T2}, 1
s_lshl_b32 {T3}, {T3}, 14
s_and_b32 {T4}, {T1}, 1
s_lshl_b32 {T4}, {T4}, 12
s_sub_u32 {T3}, {T3}, {T4}
s_add_u32 m0, {S_XA}, {T3}
s_lshl_b32 {T4}, {T1}, 7
buffer_load_dwordx4 v{XD}, {sX}, {T4} offen{' nt' if cfg.nta else ''} lds
s_cmp_eq_u32 {T2}, 7
s_cselect_b32 {T1}, 0, {T2}""")
    for p_ in pieces: p_()
    pieces = []
    assert not pieces
    a(f"""v_add_u32 v13, {L_M}, v7
s_lshl_b32 {T0}, {S_W4}, 10
v_add_u32 v5, {T0}, v13
ds_write_b128 v5, {V(ACC+8,4)}
s_cmp_eq_u32 {S_W4}, 0
s_cbranch_scc0 L_chkd
s_lshl_b32 {T1}, {S_XCD}, 7
s_mov_b32 {S_TO}, {cfg.poll_limit}
L_chk:
s_load_dwordx2 s[76:77], {SB}, {T1} glc
s_waitcnt lgkmcnt(0)
s_sub_u32 s76, s76, s62
s_lshr_b32 s76, s76, 5
s_xor_b32 s77, s77, s63
s_or_b32 s76, s76, s77
s_cbranch_scc0 L_chkd
s_sleep 4
s_sub_u32 {S_TO}, {S_TO}, 1
s_cbranch_scc0 L_chk
s_mov_b32 {S_TO}, 35
s_branch L_fail
L_chkd:""")
    WW = 72; AC = 152; FR = 168; TP = 200
    wl = []
    for r in range(8):
        wl.append(f"s_mov_b32 {T0}, {14400*(8*(r//4) + r%4)}\nbuffer_load_short_d16_hi v{WW+r}, v{P_W}, {sWR}, {T0} offen{' nt' if cfg.ntw else ''}")
        wl.append(f"buffer_load_short_d16_hi v{WW+8+r}, v{P_W}, {sWI}, {T0} offen{' nt' if cfg.ntw else ''}")
    if cfg.wearly:
        for s_ in wl: a(s_)
        a("s_waitcnt vmcnt(16)")
    else: a("s_waitcnt vmcnt(0)")
    stamp(a, 3)
    if cfg.noA == 1:
        a(f"s_mov_b64 exec, 1\nds_add_u32 v14, v15 offset:4\ns_mov_b64 exec, -1")
        stamp(a, 12); dump_stamps(a, 16); a("s_endpgm")
    albar(16)
    def xreg(m): return TMP + 4*m if m < 4 else F + 4*(m - 4)
    def xr(m): return f"ds_read_b128 {V(xreg(m),4)}, v{8+m%4} offset:{((m//4+1)>>1)*16384 - ((m//4)&1)*4096}"
    for m in range(4): a(xr(m))
    P1 = F; P2 = F + 16; XP = TMP; M = F + 32
    for m in range(28):
        a(f"s_waitcnt lgkmcnt(3)")
        a(mfma(ACC, xreg(m), F + 4*m, None if m == 0 else ACC))
        if m + 4 < 28: a(xr(m + 4))
        else: a(f"ds_read_b128 {V(M+4*(m-24),4)}, v13 offset:{(m-24)*1024}")
    lwait(a, f"v{P_BC}", P_LS, 8, 27, sleep=1)
    a(f"""s_lshl_b32 {T0}, {S_W4}, 11
s_add_u32 {T0}, {T0}, {L_MS}
v_add_u32 v5, {T0}, v7
ds_write_b128 v5, v[48:51]
ds_write_b128 v5, v[52:55] offset:1024
s_lshr_b32 {T0}, {S_KT16}, 1
s_lshl_b32 {T0}, {T0}, 13
s_lshl_b32 {T1}, {S_B}, 7
s_add_u32 {T1}, {T1}, {TBUF}
s_add_u32 {T0}, {T0}, {T1}
s_and_b32 {T2}, {S_KT16}, 1
s_lshl_b32 {T2}, {T2}, 6
s_add_u32 {T0}, {T0}, {T2}
s_add_u32 {T2}, {T0}, {16*65536}
s_cmp_ge_u32 {S_W4}, {S_CNT}
s_cbranch_scc1 L_a1done
s_waitcnt lgkmcnt(0)""")
    for q in range(8): a(f"v_cvt_pk_bf16_f32 v{XP+q}, v{ACC+2*q}, v{ACC+2*q+1}")
    a(mfma(P1, XP, M)); a(mfma(P2, XP, M + 8)); a(mfma(P1, XP + 4, M + 4, P1)); a(mfma(P2, XP + 4, M + 12, P2))
    for r in range(0, 8, 2):
        a(f"v_pk_add_f32 {V(ACC+r,2)}, {V(P1+r,2)}, {V(P2+r+8,2)} neg_lo:[0,1] neg_hi:[0,1]\nv_pk_add_f32 {V(ACC+8+r,2)}, {V(P1+r+8,2)}, {V(P2+r,2)}")
    for r in range(8): a(f"v_cvt_pk_bf16_f32 v{XP+8+r}, v{ACC+r}, v{ACC+8+r}")
    a(f"""s_cmp_lg_u32 {S_KT16}, 0
s_cbranch_scc1 L_a1st
s_mov_b32 exec_hi, 0
v_cvt_pk_bf16_f32 v{XP+8}, v{P1}, v{P2}
v_cvt_pk_bf16_f32 v6, v{P1+8}, v{P2+8}
v_lshlrev_b32 v5, 16, v2
s_mov_b32 exec_hi, -1
L_a1st:
ds_write_b128 v{P_TTW}, {V(XP+8,4)}
ds_write_b128 v{P_TTW}, {V(XP+12,4)} offset:32
ds_read_b128 {V(XP,4)}, v{P_TTR}
ds_read_b128 {V(XP+4,4)}, v{P_TTR} offset:1024
s_mov_b32 {T4}, {T0}
s_waitcnt lgkmcnt(0)""")
    stamp(a, 1, 5)
    if cfg.tdefer: lwait(a, f"v{P_BC}", P_LS, 4, 28, sleep=1, off=12)
    if cfg.tdelay: a(f"s_sleep {cfg.tdelay}")
    a(f"""s_cmp_lg_u32 {S_KT16}, 0
s_cbranch_scc1 L_a1st2
s_mov_b32 exec_hi, 0
s_add_u32 {T1}, {T1}, {7*8192}
buffer_store_dword v6, v5, {sWS}, {T1} offen sc1
s_mov_b32 exec_hi, -1
L_a1st2:
buffer_store_dwordx4 {V(XP,4)}, v{P_TST}, {sWS}, {T4} offen sc1
buffer_store_dwordx4 {V(XP+4,4)}, v{P_TST}, {sWS}, {T2} offen sc1
L_a1done:""")
    stage_arrive(0)
    stamp(a, 4)
    lwait(a, f"v{P_BC}", P_LS, 4, 29, sleep=1, off=12)
    if cfg.wdelay: a(f"s_sleep {cfg.wdelay}")
    if cfg.wpf == 3: wpull()
    if not cfg.wearly and not cfg.wlate: burst(wl, cfg.th_w)
    if cfg.wopf and not cfg.wolate:
        burst([f"""s_lshl_b32 {T0}, {S_IDX}, 2
s_add_u32 {T0}, {T0}, {S_W4}
s_mul_i32 {T0}, {T0}, {25*128}
s_bfm_b64 exec, 25, 0
buffer_load_dword v{P_DUM}, v{P_PF}, {sWO}, {T0} offen
s_mov_b64 exec, -1"""], 1)
    if cfg.ohint:
        for q in range(4): a(f"v_mov_b32 v{TP+q}, -1")
        a(f"""s_lshr_b32 {T0}, {S_XCD}, 1
s_lshl_b32 {T0}, {T0}, 2
s_add_u32 {T0}, {T0}, {S_RR}
s_lshl_b32 {T0}, {T0}, 2
s_add_u32 {T0}, {T0}, {S_W4}
s_lshl_b32 {T0}, {T0}, 4
s_add_u32 {T0}, {T0}, {S_H}
s_lshl_b32 {T0}, {T0}, 11
s_add_u32 {T0}, {T0}, {OBUF}""")
        a(f"s_mov_b32 s72, {T0}")
        marks = [f"buffer_store_dwordx4 {V(TP,4)}, v7, {sWS}, s72 offen offset:{1024*q} sc1" for q in range(2)]
        if not cfg.wolate: burst(marks, 2)
    WO = 72
    S_WOL = "s70"
    a(f"s_lshl_b32 {S_WOL}, {S_W4}, 10\ns_add_u32 {S_WOL}, {S_WOL}, {L_X}")
    def wo_list(rnd):
        return [f"s_add_u32 m0, {S_WOL}, {i*4096}\ns_mov_b32 s71, {(rnd*224 + i*16)*896}\nbuffer_load_dwordx4 v{P_WOD}, {sWO}, s71 offen lds" for i in range(14)]
    def ride(q, n=1):
        it = [q.pop(0) for _ in range(min(n, len(q)))]
        if it: burst(it, n)
        pace()
    def wo_rd(f, d, r1, r2):
        hl, mu = f // 2, f % 2
        return [f"ds_read_b64_tr_b16 {V(d+2*sec,2)}, v{r2 if (mu and sec) else r1} offset:{(28*hl + 16*mu + 8*sec)*256}" for sec in range(2)]
    stamp(a, 5)
    stage_wait(0, cfg.a2wait)
    a(f"s_lshl_b32 {T1}, {S_W4}, 11")
    stamp(a, 6)
    a(f"""s_lshl_b32 {T0}, {S_TASK}, 13
s_add_u32 {T0}, {T0}, {T1}
s_add_u32 {T0}, {T0}, {TBUF}""")
    burst([f"buffer_load_dword v{FR+q}, v{P_TLD}, {sWS}, {T0} offen offset:{(q//4)*1024 + (q%4)*128} sc1" for q in range(8)], 8)
    a(f"s_waitcnt vmcnt(0)\nds_write_b128 v{P_TBW}, {V(FR,4)}\nds_write_b128 v{P_TBW}, {V(FR+4,4)} offset:1024" if not cfg.wlate else "")
    if cfg.wlate:
        burst(wl, 24)
        a(f"s_waitcnt vmcnt(16)\nds_write_b128 v{P_TBW}, {V(FR,4)}\nds_write_b128 v{P_TBW}, {V(FR+4,4)} offset:1024")
    stamp(a, 1, 4)
    albar(6)
    stamp(a, 2, 4)
    def dft64(base):
        for m in range(8): a(f"ds_read_b128 {V(FR+4*m,4)}, v{P_TBR} offset:{base + m*1024}")
        if cfg.mprio == 0: a("s_setprio 0")
        for m in range(8):
            a(f"s_waitcnt lgkmcnt({7-m})")
            a(mfma(AC, FB + 4*m, FR + 4*m, None if m == 0 else AC))
            if cfg.mprio: ride(woq)
            elif woq: a(woq.pop(0))
        a(f"s_setprio {cfg.aprio}")
    woq = marks if cfg.wolate else wo_list(0)
    dft64(0)
    a(f"s_waitcnt vmcnt({2 if cfg.wolate else 8})\ns_cmp_eq_u32 {S_HH}, 7\ns_cbranch_scc0 L_a2nx")
    for r in range(8):
        a(f"v_mov_b32 v{TP}, v{WW+r}\nv_xor_b32 v{WW+r}, 0x80000000, v{WW+8+r}\nv_mov_b32 v{WW+8+r}, v{TP}")
    a("L_a2nx:")
    for r in range(0, 8, 2):
        a(f"""v_pk_mul_f32 {V(FR+r,2)}, {V(AC+r,2)}, {V(WW+r,2)}
v_pk_mul_f32 {V(FR+8+r,2)}, {V(AC+r,2)}, {V(WW+8+r,2)}
v_pk_fma_f32 {V(FR+r,2)}, {V(AC+8+r,2)}, {V(WW+8+r,2)}, {V(FR+r,2)} neg_lo:[1,0,0] neg_hi:[1,0,0]
v_pk_fma_f32 {V(FR+8+r,2)}, {V(AC+8+r,2)}, {V(WW+r,2)}, {V(FR+8+r,2)} neg_lo:[1,0,1] neg_hi:[1,0,1]
v_cvt_pk_bf16_f32 v{TP+r}, v{FR+r}, v{FR+8+r}
v_cvt_pk_bf16_f32 v{TP+r+1}, v{FR+r+1}, v{FR+8+r+1}""")
    a(f"ds_write_b128 v{P_TBW}, {V(TP,4)} offset:8192\nds_write_b128 v{P_TBW}, {V(TP+4,4)} offset:9216")
    stamp(a, 3, 4)
    albar(7)
    stamp(a, 4, 4)
    dft64(8192)
    a(f"""s_lshl_b32 {T0}, {S_HH}, 12
s_lshr_b32 {T1}, {S_TASK}, 3
s_lshl_b32 {T1}, {T1}, 7
s_add_u32 {T0}, {T0}, {T1}
s_add_u32 {T0}, {T0}, {UBUF}
s_lshl_b32 {T1}, {S_W4}, 19
s_add_u32 {T0}, {T0}, {T1}""")
    for r in range(8): a(f"v_cvt_pk_bf16_f32 v{TP+r}, v{AC+r}, v{AC+8+r}")
    stamp(a, 5, 4)
    burst([f"s_add_u32 {T1}, {T0}, {(8*(r//4) + r%4) * USTR}\nbuffer_store_dword v{TP+r}, v{P_UST}, {sWS}, {T1} offen sc1" for r in range(8)], 8)
    stage_arrive(1)
    stamp(a, 7)
    U0 = 16; U1 = 32; AR = 200; AI = 216
    MSR = [48, 52, 56, 60, 64, 68, 232, 240]
    def wo_reads(h):
        for f in range(16):
            for s_ in wo_rd(f, WO + 64*h + 4*f, P_WOR, P_WOR2): a(s_)
    if cfg.wolate:
        burst(wo_list(0), cfg.th_wo)
        a("s_waitcnt vmcnt(0)")
    albar(4)
    wo_reads(0)
    for q in range(8): a(f"ds_read_b128 {V(MSR[q],4)}, v7 offset:{L_MS + q*1024}")
    albar(24)
    if not cfg.wolate: burst(wo_list(1), cfg.th_wo)
    stage_wait(1, 0 if cfg.wolate else cfg.a3wait)
    stamp(a, 8)
    a(f"""s_lshl_b32 {T0}, {S_BP}, 15
s_add_u32 {T0}, {T0}, {UBUF}
s_lshl_b32 {T1}, {S_W4}, 12
s_lshl_b32 {T3}, {S_K1}, 12
s_add_u32 {T2}, {T0}, {T3}
s_add_u32 {T1}, {T0}, {T1}""")
    burst([f"buffer_load_dword v{U0+q}, v{P_TLD}, {sWS}, {T1 if q < 16 else T2} offen offset:{((q%16)//4)*1024 + (q%4)*128} sc1" for q in range(32)], cfg.th_u)
    if cfg.wolate: burst(wo_list(1), 46)
    else:
        a("s_waitcnt vmcnt(32)")
        albar(10)
        wo_reads(1)
    stamp(a, 11, 4)
    a(f"""s_lshl_b32 {T4}, {S_BP}, 2
s_add_u32 {T4}, {T4}, {S_W4}
s_lshl_b32 {T3}, {T4}, 13
s_add_u32 {T3}, {T3}, {OBUF}
s_add_u32 {T2}, {T3}, 4096
s_and_b32 {T4}, {S_BP}, 60
s_add_u32 {T4}, {T4}, {S_W4}
s_lshl_b32 {T4}, {T4}, 9
s_add_u32 {T4}, {T4}, {FO}
s_lshl_b32 {T1}, {S_W4}, 13
v_add_u32 v9, {T1}, v7""")
    def step6(ur, ui, va, last):
        if last and cfg.apoll: a(poll_issue(f"v{P_PF}", T4, P_PS, 4))
        if cfg.mprio == 0: a("s_setprio 0")
        for m in range(4):
            a(mfma(AR, ur + 4*m, MSR[2*m], None if m == 0 else AR))
            if cfg.pace6: a(f"s_sleep {cfg.pace6}")
            a(mfma(AI, ui + 4*m, MSR[2*m+1], None if m == 0 else AI))
            if cfg.pace6: a(f"s_sleep {cfg.pace6}")
        a(f"s_setprio {cfg.aprio}")
        for q in range(16):
            a(f"v_cvt_pk_bf16_f32 v{ur+q}, v{AR+2*q}, v{AR+2*q+1}")
            if q % 4 == 3: a(f"ds_write_b128 v{va}, {V(ur+q-3,4)} offset:{(q//4)*1024}")
    if cfg.s6late: lwait(a, f"v{P_BC}", P_LS, 20, 37, sleep=2)
    a(f"s_waitcnt vmcnt({14 if cfg.wolate else 0})\ns_cmp_eq_u32 {S_W4}, 0\ns_cbranch_scc1 L_a3w0")
    step6(U0, U0, P_ZW0, False)
    step6(U1, U1, P_ZW1, True)
    a(f"s_branch L_a3z\nL_a3w0:\ns_mov_b32 exec_lo, -2\ns_mov_b32 exec_hi, -2")
    for q in range(16): a(f"v_mov_b32 v{U1+q}, v{U0+q}")
    a("s_mov_b64 exec, -1")
    step6(U0, U1, P_ZW0, True)
    a("L_a3z:\ns_mov_b64 exec, 1\nds_add_u32 v14, v15 offset:4\ns_mov_b64 exec, -1")
    stamp(a, 9)
    if cfg.wolate:
        a(f"s_waitcnt vmcnt({1 if cfg.apoll else 0})")
        lbar(a, "v14", "v15", P_LS, 10)
        wo_reads(1)
    osc = ("", " sc1", " nt", " sc0 sc1")[cfg.outsc]
    def out_store(rowmul, colbase, skip):
        a(f"""v_mul_u32_u24 v5, {rowmul}, v2
v_lshl_add_u32 v5, v3, 5, v5
s_lshl_b32 {T1}, {S_DT}, 6
s_add_u32 {T0}, {T0}, {T1}
s_add_u32 {T0}, {T0}, {colbase}
s_cmp_ge_u32 {S_W4}, {S_CNT}
s_cbranch_scc1 {skip}""")
        for q in range(4): a(f"v_cvt_pk_bf16_f32 v{64+q}, v{AR+2*q}, v{AR+2*q+1}")
        a(f"buffer_store_dwordx4 v[64:67], v5, {sOUT}, {T0} offen{osc}")
        for q in range(4, 8): a(f"v_cvt_pk_bf16_f32 v{64+q}, v{AR+2*q}, v{AR+2*q+1}")
        a(f"buffer_store_dwordx4 v[68:71], v5, {sOUT}, {T0} offen offset:16{osc}\n{skip}:")
    stamp(a, 10)
    a(f"s_mov_b32 s71, {cfg.poll_limit}")
    if cfg.apoll: a(f"s_waitcnt vmcnt(0)\n{poll_check(P_PS, 4)}\ns_cbranch_scc0 L_aoload")
    poll(a, f"v{P_PF}", T4, P_PS, 4, 42, sleep=cfg.osleep)
    a("L_aoload:")
    for q in range(8):
        a(f"buffer_load_dwordx4 {V(16+4*q,4)}, v7, {sWS}, {T3 if q < 4 else T2} offen offset:{(q%4)*1024} sc1")
    stamp(a, 13)
    lwait(a, f"v{P_BC}", P_LS, 24, 43, sleep=1)
    for q in range(8):
        a(f"s_waitcnt vmcnt({7-q})\nds_write_b128 v9, {V(16+4*q,4)} offset:{L_OB + q*1024}")
        if q == 2: a("v_max3_u32 v5, v16, v20, v24")
        if q in (4, 6): a(f"v_max3_u32 v5, v5, v{12+4*q}, v{16+4*q}")
    a(f"""v_max_u32 v5, v5, v44
v_cmp_eq_u32 vcc, -1, v5
s_cbranch_vccz L_aogot
s_sleep 6
s_sub_u32 s71, s71, 1
s_cbranch_scc0 L_aoload
s_mov_b32 {S_TO}, 44
s_branch L_fail
L_aogot:
s_mov_b64 exec, 1
ds_add_u32 v{P_BC}, v15 offset:20
s_mov_b64 exec, -1""")
    lwait(a, f"v{P_BC}", P_LS, 4, 12, off=20)
    stamp(a, 11)
    OR = 216
    def zr(s_): return f"ds_read_b128 {V(OR+4*(s_%8),4)}, v7 offset:{L_OB + s_*1024}"
    for s_ in range(8): a(zr(s_))
    for s_ in range(32):
        a(f"s_waitcnt lgkmcnt({min(7, 31-s_)})")
        a(mfma(AR, WO + 4*s_, OR + 4*(s_ % 8), None if s_ == 0 else AR))
        if s_ + 8 < 32: a(zr(s_ + 8))
    a(f"s_mul_i32 {T0}, {S_BP}, {32*1792}")
    out_store(1792, 896, "L_b3done")
    a(f"""s_lshl_b32 {T0}, s2, 2
s_add_u32 {T0}, {T0}, {S_W4}
s_cmp_lg_u32 {T0}, 0
s_cbranch_scc1 L_noep
s_mov_b32 {T0}, {EPOCH}""")
    flag(a, T0, 10)
    a("L_noep:")
    if cfg.padend: padto(a, cfg.padend)
    stamp(a, 12)
    dump_stamps(a, 16)
    a("s_endpgm")

def build():
    nh = cfg.nh; xh = 16 // nh
    for wg in range(256):
        xcd, idx = wg & 7, wg >> 3
        h = (xcd % xh) * nh + idx % nh
        assert nh == 8
    a = Asm()
    prologue(a); role_B(a); ROLE[0] = 1; role_A(a)
    a(f"""L_fail:
v_mov_b32 v0, 0
v_mov_b32 v1, {S_TO}
global_store_dword v0, v1, s[18:19]
L_end:
s_endpgm
L_codeend:""")
    a.pad()
    import os
    ref = "cdna_kernels/" + NAME + ".s.ref"
    hdr = open(ref).read().split("; Override launch")[0] if os.path.exists(ref) else ""
    s = hdr + f"; @launch grid=(256,1,1) block=(512,1,1) lds={LDS_SIZE}\n"
    s += f""".amdgcn_target "amdgcn-amd-amdhsa--gfx950"
.text
.globl {NAME}_kernel
.p2align 8
.type {NAME}_kernel,@function
{NAME}_kernel:
""" + a.text() + f""".section .rodata,"a"
.p2align 6
.amdhsa_kernel {NAME}_kernel
  .amdhsa_next_free_vgpr 256
  .amdhsa_next_free_sgpr 102
  .amdhsa_accum_offset 256
  .amdhsa_group_segment_fixed_size 0
  .amdhsa_kernarg_size 72
  .amdhsa_user_sgpr_count 2
  .amdhsa_user_sgpr_kernarg_segment_ptr 1
  .amdhsa_system_sgpr_workgroup_id_x 1
.end_amdhsa_kernel
"""
    return s

if __name__ == "__main__":
    out = sys.argv[1]
    for kv in sys.argv[2:]:
        k, v = kv.split("=")
        setattr(cfg, k, type(getattr(cfg, k))(int(v)))
    open(out, "w").write(build())
```

```python
import sys, math, struct
from asmlib import Asm

NAME = "concat_heads__spectral_gfnet__softmax_full_mha__prompt"

class Cfg:
    nh = 8
    stamps = False
    poll_limit = 1 << 17
    noA = 0
    probe = -1
    span = 0
    fine = 0
    padend = 0
    padmid = 0
    dbgwave = -1
    nbuf = 5
    wearly = 0
    touch = 0
    wdelay = 30
    tdelay = 0
    s6late = 0
    lsl = 4
    odefer = 0
    a2wait = 8
    a3wait = 0
    kvwait = 8
    kvrot = 3
    m1 = 12
    ramp = 1
    gate = 2
    wqe = 3
    wqp = 7
    tdefer = 1
    m2 = 27
    xas = 0
    xae = 2
    bhi = 56
    ohint = 1
    wlate = 1
    allpoll = 1
    otry = 1
    gsplit = 8
    claim = 1
    btry = 0
    pace6 = 0
    wolate = 0
    wsoff = 0
    mprio = 0
    xawarm = 0
    wpace = 0
    tstag = 0
    xafirst = 1
    mw = 2
    mwpos = 1
    wqdel = 0
    ring = 8
    apoll = 1
    osleep = 2
    fprio = 0
    nta = 1
    ntw = 1
    ntb = 0
    bsleep = 2
    qst = 0x133
    wopf = 0
    uinp = 1
    woearly = 0
    hack = 0
    ko = 0
    xalate = 0
    nopk = 23
    gtab = 2981409204
    kvp = 1
    owait = 4
    xrot = 0x06543210
    wrot = 1
    pace = 1
    xadefer = 0
    wpf = 0
    outsc = 0
    wqwarm = 1
    th_wo = 14
    th_u = 32
    th_wq = 2
    wqearly = 1
    th_w = 17
    th_xa = 4
    wfair = 8
    xearly = 1
    spf = 0
    spf0 = 150
    pre = 5
    aprio = 2
    force_fb = False
cfg = Cfg()

EPOCH = 0
KV = 0x20000; TS = 61440; VOFF = 28672
OBUF = 0x400000
TBUF = 0x600000
UBUF = 0x800000; USTR = 32768
FKV = 0x8000; FA1 = 0x1000; FO = 0x10000
STAMP = 0xB00000
WS_SIZE = 0x1000000
L_W = 0; L_WQ = 57344; L_X = 86016; L_Q = 151552; L_SYNC = 159744
LDS_SIZE = 160000
L_RED = 0
L_TB = L_WQ; L_YB = L_WQ + 8192; L_MS = 49152; L_TT = L_X + 4096; L_M = L_X + 61440
L_ZB = L_WQ; L_OB = 0
sWS, sWQKV, sX, sWR, sWI, sWO, sOUT = [f"s[{i}:{i+3}]" for i in (24, 28, 32, 36, 40, 44, 48)]
S_WAVE, S_XCD, S_IDX, S_H, S_R, S_W4 = "s56", "s57", "s58", "s59", "s60", "s61"
S_NONCE = "s[62:63]"
S_TO, S_BAR = "s64", "s65"
T0, T1, T2, T3, T4, T5 = "s66", "s67", "s68", "s69", "s22", "s23"
STAMP0 = 84

ZREADY = 24

def f2u(x): return struct.unpack("<I", struct.pack("<f", x))[0]
def lit(x): return "0x%08x" % f2u(x)
def V(a, n=1): return f"v{a}" if n == 1 else f"v[{a}:{a+n-1}]"

def srd(a, name, lo, size):
    i = int(name[2:name.index(":")])
    a(f"s_mov_b32 s{i}, s{lo}\ns_mov_b32 s{i+1}, s{lo+1}\ns_mov_b32 s{i+2}, {size}\ns_mov_b32 s{i+3}, 0x20000")

ROLE = [0]
def stamp(a, i, fine=0):
    if cfg.probe >= 0:
        if not fine and cfg.probe == ROLE[0] * 100 + i:
            a("s_memrealtime s[96:97]\ns_waitcnt lgkmcnt(0)")
        return
    if cfg.fine in (1, 2) and not fine and 3 <= i <= 11: return
    if cfg.fine == 4 and not fine and i in (1, 2, 3, 4, 5, 10, 11, 13): return
    if fine and cfg.fine != fine: return
    if cfg.stamps:
        a(f"s_memtime s[100:101]\ns_waitcnt lgkmcnt(0)\ns_mov_b32 s{STAMP0+i}, s100")

def st0():
    o = f"s_add_u32 s20, s20, {cfg.wsoff << 20}\ns_addc_u32 s21, s21, 0\n" if cfg.wsoff else ""
    return o + (f"s_mov_b32 s{STAMP0+15}, s100\ns_mov_b32 s{STAMP0}, s38" if cfg.stamps else "")

def dump_stamps(a, vt):
    if cfg.probe >= 0:
        if cfg.probe // 100 == ROLE[0]:
            L = a.lab("pr")
            a(f"s_sub_u32 s96, s96, s100\ns_add_u32 s96, s96, 2600\n{L}:\ns_memrealtime s[98:99]\ns_waitcnt lgkmcnt(0)\ns_sub_u32 s98, s98, s100\ns_cmp_lt_u32 s98, s96\ns_cbranch_scc1 {L}")
        return
    if cfg.span:
        a(f"s_memrealtime s[98:99]\ns_lshl_b32 {T0}, s2, 3\ns_add_u32 {T0}, {T0}, {S_WAVE}\ns_lshl_b32 {T0}, {T0}, 3\ns_add_u32 {T0}, {T0}, {STAMP}\ns_waitcnt lgkmcnt(0)")
        a(f"v_mov_b32 v{vt}, s100\nv_mov_b32 v{vt+1}, s98\nv_mov_b32 v{vt+2}, 0\ns_mov_b64 exec, 1\nbuffer_store_dwordx2 {V(vt,2)}, v{vt+2}, {sWS}, {T0} offen\ns_mov_b64 exec, -1")
    if not cfg.stamps: return
    a(f"s_memrealtime s[100:101]\ns_waitcnt lgkmcnt(0)\ns_mov_b32 s{STAMP0+14}, s100")
    if cfg.dbgwave >= 0:
        L = a.lab("nodbg")
        a(f"s_lshl_b32 {T0}, s2, 3\ns_add_u32 {T0}, {T0}, {S_WAVE}\ns_cmp_lg_u32 {T0}, {cfg.dbgwave}\ns_cbranch_scc1 {L}")
        a(f"v_mov_b32 v{vt+4}, 0\ns_mov_b64 exec, 1")
        for i in range(1, 16):
            a(f"s_sub_u32 {T1}, s{STAMP0+i}, s{STAMP0 + (15 if i >= 14 else 0)}\nv_mov_b32 v{vt}, {T1}\nglobal_store_dword v{vt+4}, v{vt}, s[18:19] offset:{4*i}")
        a(f"s_mov_b64 exec, -1\n{L}:")
    a(f"s_lshl_b32 {T0}, s2, 3\ns_add_u32 {T0}, {T0}, {S_WAVE}\ns_lshl_b32 {T0}, {T0}, 7\ns_add_u32 {T0}, {T0}, {STAMP}")
    a(f"v_mov_b32 v{vt+4}, 0\ns_mov_b64 exec, 1")
    for q in range(4):
        for i in range(4): a(f"v_mov_b32 v{vt+i}, s{STAMP0+4*q+i}")
        a(f"buffer_store_dwordx4 {V(vt,4)}, v{vt+4}, {sWS}, {T0} offen offset:{16*q}")
    a("s_mov_b64 exec, -1")

def padto(a, ticks):
    L = a.lab("pad")
    a(f"{L}:\ns_memrealtime s[100:101]\ns_waitcnt lgkmcnt(0)\ns_sub_u32 s100, s100, s{STAMP0+15}\ns_cmp_lt_u32 s100, {ticks}\ns_cbranch_scc1 {L}")

def poll_issue(vaddr, soff, vt, n):
    return f"""v_mov_b32 v{vt}, 0
v_mov_b32 v{vt+1}, 0
s_bfm_b64 exec, {n}, 0
buffer_atomic_or_x2 {V(vt,2)}, {vaddr}, {sWS}, {soff} offen sc0 sc1
s_mov_b64 exec, -1"""

def poll_check(vt, n):
    return f"v_cmp_ne_u64 vcc, {S_NONCE}, {V(vt,2)}\ns_and_b32 vcc_lo, vcc_lo, {hex((1 << n) - 1)}"

def poll(a, vaddr, soff, vt, n, code, sleep=2):
    L, Dn = a.lab("poll"), a.lab("polld")
    a(f"""s_mov_b32 {S_TO}, {cfg.poll_limit}
{L}:
{poll_issue(vaddr, soff, vt, n)}
s_waitcnt vmcnt(0)
{poll_check(vt, n)}
s_cbranch_scc0 {Dn}
s_sleep {sleep}
s_sub_u32 {S_TO}, {S_TO}, 1
s_cbranch_scc0 {L}
s_mov_b32 {S_TO}, {code}
s_branch L_fail
{Dn}:""")

def publish_wg(a, vsync, vone, off, vt, soff, vn, last=3):
    L = a.lab("pub")
    a(f"""s_mov_b64 exec, 1
ds_add_rtn_u32 v{vt}, {vsync}, {vone} offset:{off}
s_waitcnt lgkmcnt(0)
v_readfirstlane_b32 {T0}, v{vt}
s_cmp_eq_u32 {T0}, {last}
s_cselect_b64 exec, 1, 0
buffer_store_dwordx2 {V(vn,2)}, v{vn+2}, {sWS}, {soff} offen sc1
s_mov_b64 exec, -1""")

def flag(a, soff, vt):
    a(f"""v_mov_b32 v{vt}, s62
v_mov_b32 v{vt+1}, s63
v_mov_b32 v{vt+2}, 0
s_mov_b64 exec, 1
buffer_store_dwordx2 {V(vt,2)}, v{vt+2}, {sWS}, {soff} offen sc1
s_mov_b64 exec, -1""")

def flag2(a, soff, vn):
    a(f"s_mov_b64 exec, 1\nbuffer_store_dwordx2 {V(vn,2)}, v{vn+2}, {sWS}, {soff} offen sc1\ns_mov_b64 exec, -1")

def lwait(a, vsync, vt, target, code, sleep=0, off=0):
    L, Dn = a.lab("lw"), a.lab("lwd")
    a(f"""s_mov_b32 {S_TO}, {cfg.poll_limit * 8}
{L}:
ds_read_b32 v{vt}, {vsync} offset:{off}
s_waitcnt lgkmcnt(0)
v_readfirstlane_b32 {T0}, v{vt}
s_cmp_ge_u32 {T0}, {target}
s_cbranch_scc1 {Dn}
{"s_sleep %d" % sleep if sleep else ""}
s_sub_u32 {S_TO}, {S_TO}, 1
s_cbranch_scc0 {L}
s_mov_b32 {S_TO}, {code}
s_branch L_fail
{Dn}:""")

def lbar(a, vsync, vone, vt, code, sleep=0):
    L, Dn = a.lab("lb"), a.lab("lbd")
    a(f"""s_add_u32 {S_BAR}, {S_BAR}, 4
s_mov_b64 exec, 1
ds_add_u32 {vsync}, {vone}
s_mov_b64 exec, -1
s_mov_b32 {S_TO}, {cfg.poll_limit * 8}
{L}:
ds_read_b32 v{vt}, {vsync}
s_waitcnt lgkmcnt(0)
v_readfirstlane_b32 {T0}, v{vt}
s_cmp_ge_u32 {T0}, {S_BAR}
s_cbranch_scc1 {Dn}
{"s_sleep %d" % sleep if sleep else ""}
s_sub_u32 {S_TO}, {S_TO}, 1
s_cbranch_scc0 {L}
s_mov_b32 {S_TO}, {code}
s_branch L_fail
{Dn}:""")

def mfma(d, A, B, C=None):
    return f"v_mfma_f32_32x32x16_bf16 {V(d,16)}, {V(A,4)}, {V(B,4)}, {'0' if C is None else V(C,16)}"

def pk2(a, op, d, x, y, z=None, neg="", scalar=False):
    srcs = [x, y] + ([z] if z is not None else [])
    if not scalar:
        m = "[" + ",".join("1" if str(i) in neg else "0" for i in range(len(srcs))) + "]"
        a(f"v_pk_{op}_f32 {V(d,2)}, " + ", ".join(V(r,2) for r in srcs) + (f" neg_lo:{m} neg_hi:{m}" if neg else ""))
        return
    for q in range(2):
        if op == "add" and neg == "1": a(f"v_sub_f32 v{d+q}, v{x+q}, v{y+q}")
        else: a(f"v_{op}_f32 v{d+q}, " + ", ".join(("-" if str(i) in neg else "") + f"v{r+q}" for i, r in enumerate(srcs)))

def mod7(a, s, t):
    a(f"s_mul_i32 {t}, {s}, 9363\ns_lshr_b32 {t}, {t}, 16\ns_mul_i32 {t}, {t}, 7\ns_sub_u32 {s}, {s}, {t}")

def x_read_addrs(a, v0, vl, base_s, t):
    a(f"""v_and_b32 v{t}, 31, {vl}
v_lshrrev_b32 v{t+1}, 5, {vl}
v_bfe_u32 v{t+2}, {vl}, 1, 3
v_xor_b32 v{t+1}, v{t+1}, v{t+2}
v_lshlrev_b32 v{t}, 7, v{t}
v_add_u32 v{t}, {base_s}, v{t}""")
    for mm in range(4):
        a(f"v_xor_b32 v{t+2}, {2*mm}, v{t+1}\nv_lshl_add_u32 v{v0+mm}, v{t+2}, 4, v{t}")


S_HH, S_RR, S_J, S_P0, S_LC = "s52", "s53", "s54", "s55", "s3"

def prologue(a):
    a(f"""s_cmp_ge_u32 s2, 256
s_cbranch_scc1 L_end
s_load_dwordx16 s[4:19], s[0:1], 0
s_load_dwordx2 s[20:21], s[0:1], 64""")
    if cfg.span or cfg.probe >= 0: a("s_memrealtime s[100:101]")
    if cfg.stamps:
        a(f"s_memtime s[38:39]\ns_memrealtime s[100:101]")
        for i in range(1, 15): a(f"s_mov_b32 s{STAMP0+i}, 0")
    a(f"""s_lshr_b32 {S_IDX}, s2, 3
s_getpc_b64 s[70:71]
L_pc:
v_lshrrev_b32 v3, 5, v0
v_lshl_add_u32 v3, {S_IDX}, 4, v3
v_lshlrev_b32 v3, 7, v3
v_min_u32 v3, L_codeend-L_pc-4, v3
global_load_dword v255, v3, s[70:71]
v_lshrrev_b32 v2, 6, v0
v_and_b32 v1, 63, v0
v_readfirstlane_b32 {S_WAVE}, v2
s_and_b32 {S_XCD}, s2, 7
s_and_b32 {S_HH}, {S_IDX}, 7
s_lshr_b32 {S_RR}, {S_IDX}, 3
s_and_b32 {T5}, {S_XCD}, 1
s_lshl_b32 {S_H}, {T5}, 3
s_add_u32 {S_H}, {S_H}, {S_HH}
s_lshl_b32 {T0}, {S_HH}, 2
s_cmp_eq_u32 {T5}, 0
s_cselect_b32 {S_LC}, 0x67543210, s2
s_cselect_b32 {S_LC}, {S_LC}, 0x65432170
s_lshr_b32 {S_LC}, {S_LC}, {T0}
s_and_b32 {S_LC}, {S_LC}, 7
s_and_b32 {S_W4}, {S_WAVE}, 3
s_cmp_ge_u32 {S_WAVE}, 4
s_cbranch_scc1 L_roleA""")

def nonce(a):
    a(f"""s_waitcnt lgkmcnt(0)
s_mul_i32 s62, s62, 0x9E3779B1
s_add_u32 s62, s62, 0x7F4A7C15
s_mul_i32 s63, s63, 0x85EBCA6D
s_add_u32 s63, s63, 0x165667B1""")

def role_B(a):
    X = 16; ACC = 128; WB = 160; PK = 224
    SC = 70
    S_XL, S_TILE, S_I = "s77", "s78", "s79"
    TO = 36
    S_WM, S_WO, S_DM, S_DO = "s80", "s81", "s82", "s83"
    a(f"""s_setprio 3
s_mul_i32 {S_J}, {T5}, 7
s_add_u32 {S_J}, {S_J}, {S_LC}
v_lshrrev_b32 v8, 3, v1
v_and_b32 v9, 7, v1
v_mul_u32_u24 v2, 2688, v8
v_bfe_u32 v3, v1, 4, 1
v_lshlrev_b32 v3, 2, v3
v_xor_b32 v3, v9, v3
v_lshl_add_u32 v2, v3, 4, v2
s_lshl_b32 {T0}, {S_J}, 7
s_mul_i32 {T1}, {S_W4}, {8*2688}
s_add_u32 {T0}, {T0}, {T1}
s_add_u32 {T0}, {T0}, 896
v_add_u32 v2, {T0}, v2
s_lshl_b32 {T2}, {S_RR}, 3
s_lshr_b32 {T0}, {0xD66D0770 if cfg.wrot else 0x70707070}, {T2}
s_bfe_u32 {T1}, {T0}, 0x40004
s_and_b32 {T0}, {T0}, 15
s_lshl_b32 {T3}, {S_W4}, 10
s_lshl_b32 {T2}, {T0}, 12
s_add_u32 m0, {T2}, {T3}
s_mul_i32 {S_I}, {T0}, {32*2688}
s_lshl_b32 {T2}, {T1}, 12
s_add_u32 {S_WM}, {T2}, {T3}
s_mul_i32 {S_WO}, {T1}, {32*2688}
s_cmp_ge_u32 {S_RR}, {2 if cfg.wrot else 4}
s_cselect_b32 {T0}, -1, 1
s_lshl_b32 {S_DM}, {T0}, 12
s_mul_i32 {S_DO}, {T0}, {32*2688}
s_cmp_eq_u32 {S_LC}, 7
s_cselect_b32 s30, 0, {448 * 2688}
s_mov_b32 s31, 0x20000
s_waitcnt lgkmcnt(0)
{st0()}
s_mov_b64 s[28:29], s[12:13]""")
    def x_m0(i, j): return f"s_add_u32 m0, {S_XL}, {(i%4)*4096 + j*1024}"
    def x_ld(i, j): return f"buffer_load_dwordx4 v{4+j}, {sX}, s{SC+i} offen{' nt' if cfg.ntb else ''} lds"
    def sc_next(i): return f"s_add_u32 s{SC+i}, s{SC+i-1}, 128\ns_cmp_eq_u32 s{SC+i}, 896\ns_cselect_b32 s{SC+i}, 0, s{SC+i}"
    def w_base(i): return f"v_lshl_add_u32 v12, s{SC+i}, 6, v14\nv_xor_b32 v13, 64, v12"
    def setup_x():
        a(f"""s_mov_b32 s34, {2048*896}
s_mov_b32 s35, 0x20000
s_lshr_b32 {S_R}, {S_XCD}, 1
s_lshl_b32 {S_R}, {S_R}, 2
s_add_u32 {S_R}, {S_R}, {S_RR}
s_lshl_b32 {S_TILE}, {S_R}, 2
s_add_u32 {S_TILE}, {S_TILE}, {S_W4}
v_lshrrev_b32 v10, 4, v1
v_xor_b32 v10, v9, v10
v_xor_b32 v11, 4, v10
v_mul_u32_u24 v12, 896, v8
s_mul_i32 {T2}, {S_TILE}, {32*896}
v_add_u32 v12, {T2}, v12
v_lshl_add_u32 v4, v10, 4, v12
v_lshl_add_u32 v5, v11, 4, v12
v_add_u32 v5, {8*896}, v5
v_add_u32 v6, {16*896}, v4
v_add_u32 v7, {16*896}, v5
s_lshl_b32 {T2}, {S_HH}, 2
s_lshr_b32 s{SC}, {cfg.xrot}, {T2}
s_and_b32 s{SC}, s{SC}, 7
s_lshl_b32 s{SC}, s{SC}, 7
s_lshl_b32 {S_XL}, {S_W4}, 14
s_add_u32 {S_XL}, {S_XL}, {L_X}""")
        a("s_mov_b64 s[32:33], s[10:11]")
    def setup2():
        for i in range(1, 7): a(sc_next(i))
        x_read_addrs(a, 8, "v1", S_XL, 12)
        srd(a, sWS, 20, WS_SIZE)
        a(f"""v_lshrrev_b32 v12, 5, v1
v_lshlrev_b32 v12, 3, v12
v_bfe_u32 v13, v1, 2, 2
v_add_u32 v12, v12, v13
v_bfe_u32 v13, v1, 4, 1
v_lshlrev_b32 v13, 5, v13
v_and_b32 v18, 1, v1
v_bfe_u32 v19, v1, 1, 1
v_lshl_add_u32 v15, v18, 4, v13
v_lshl_add_u32 v15, v19, 3, v15
v_lshl_add_u32 v14, v18, 3, v13
v_lshl_add_u32 v14, v19, 4, v14
s_cmp_eq_u32 {T5}, 1
s_cselect_b64 vcc, -1, 0
v_cndmask_b32 v14, v15, v14, vcc
v_lshl_add_u32 v15, v12, 6, v15
v_add_u32 v15, {L_WQ}, v15
v_bfe_u32 v13, v1, 3, 1
v_lshl_add_u32 v14, v13, 6, v14
v_lshl_add_u32 v14, v12, 7, v14""")
        a(f"""v_lshrrev_b32 v253, 2, v1
v_mul_u32_u24 v253, 2688, v253
v_and_b32 v254, 3, v1
v_lshl_add_u32 v253, v254, 4, v253
s_mul_i32 {S_P0}, {S_H}, 7
s_lshr_b32 {S_P0}, {S_P0}, 1
s_lshl_b32 s80, {S_P0}, 4
s_mul_i32 s81, {S_W4}, {16*2688}
s_add_u32 s80, s80, s81
v_add_u32 v253, s80, v253
s_lshl_b32 s80, {S_W4}, 10
s_add_u32 s80, s80, {L_WQ}
s_and_b32 s81, {S_P0}, 7
s_cmp_gt_u32 s81, 4
s_cselect_b32 s81, 1, 0
s_nop 0""")
        a(w_base(0))
        a(f"v_mov_b32 v250, {L_SYNC}\nv_mov_b32 v251, 1\nv_mov_b32 v246, 0\ns_mov_b32 {S_BAR}, 0")
    VK, VV, VF, VL = 240, 241, 242, 243
    PG = ["s4", "s5", "s6", "s7"]; S_FL = "s8"
    def setup3():
        a(f"""v_lshlrev_b32 v{VL}, 4, v1
s_lshl_b32 {T0}, {S_P0}, 9
v_add_u32 v{VK}, {T0}, v{VL}
s_lshl_b32 {T0}, {S_H}, 11
s_add_u32 {T0}, {T0}, {VOFF}
v_add_u32 v{VV}, {T0}, v{VL}
s_lshr_b32 {T1}, {S_P0}, 3
s_add_u32 {T0}, {S_P0}, 3
s_lshr_b32 {T0}, {T0}, 3
s_sub_u32 {T0}, {T0}, {T1}
v_and_b32 v{VF}, 1, v1
v_mul_u32_u24 v{VF}, {T0}, v{VF}
v_bfe_u32 v18, v1, 1, 1
v_mul_u32_u24 v18, 7, v18
v_add_u32 v{VF}, v{VF}, v18
v_lshlrev_b32 v{VF}, 7, v{VF}
s_lshl_b32 {T0}, {S_W4}, 4
s_add_u32 {T0}, {T0}, {T1}
s_lshl_b32 {T0}, {T0}, 7
s_add_u32 {T3}, {T0}, {FKV}
s_lshr_b32 {T2}, {S_R}, 2
s_lshl_b32 {T2}, {T2}, 3
s_lshr_b32 {T2}, {cfg.gtab if cfg.gtab > 1 else 0x934E39E4}, {T2}
s_mul_i32 {T1}, {S_W4}, {4*TS}
s_add_u32 {T1}, {T1}, {KV}""")
        for p in range(4): a(f"s_add_u32 {T0}, {S_RR}, {p}\ns_and_b32 {T0}, {T0}, 3\ns_mul_i32 s{TO+12+p}, {T0}, {TS}")
        for g in range(4):
            a(f"s_bfe_u32 {T0}, {T2}, {0x20000 + 2*g}\ns_lshl_b32 {PG[g]}, {T0}, 13\ns_add_u32 {PG[g]}, {PG[g]}, {T3}\ns_mul_i32 {T0}, {T0}, {16*TS}\ns_add_u32 {T0}, {T0}, {T1}")
            for p in range(4):
                a(f"s_add_u32 s{TO+4*g+p}, {T0}, " + (f"{p*TS}" if (g == 0 or cfg.kvrot == 0) else f"s{TO+12+p}"))
        a(f"""s_cmp_eq_u32 {S_LC}, 7
s_cselect_b32 {T1}, 15, {S_J}
s_lshl_b32 {T0}, {S_R}, 4
s_add_u32 {T0}, {T0}, {T1}
s_lshl_b32 {T0}, {T0}, 7
s_add_u32 {S_FL}, {T0}, {FKV}""")
    stamp(a, 3, 2)
    XE = cfg.xearly
    def mid():
        stamp(a, 4, 2)
        a("s_barrier")
        if cfg.fine != 2: a(f"s_load_dwordx2 s[62:63], s[20:21], {EPOCH}")
        stamp(a, 5, 2)
    for i in range(14):
        a(f"buffer_load_dwordx4 v2, {sWQKV}, {S_I} offen lds")
        if i == 6:
            if XE:
                setup_x()
                for j in range(4): a(x_m0(0, j)); a("s_nop 0"); a(x_ld(0, j))
                mid()
            a(f"s_mov_b32 m0, {S_WM}\ns_mov_b32 {S_I}, {S_WO}")
            if XE: setup2(); setup3()
        elif i < 13: a(f"s_add_u32 m0, m0, {S_DM}\ns_add_u32 {S_I}, {S_I}, {S_DO}")
        if i == 10 and not XE:
            mid(); setup_x(); setup2(); setup3()
    stamp(a, 8, 2)
    a(f"s_waitcnt vmcnt({cfg.wfair})")
    stamp(a, 10, 2)
    for c in range(XE, 2 + XE):
        for j in range(4): a(x_m0(c, j)); a("s_nop 0"); a(x_ld(c, j))
    stamp(a, 11, 2)
    if cfg.fine == 2: a(f"s_load_dwordx2 s[62:63], s[20:21], {EPOCH}")
    nonce(a)
    a("v_mov_b32 v244, s62\nv_mov_b32 v245, s63\nds_write_b64 v250, v[244:245] offset:64")
    def w_base(i): return f"v_lshl_add_u32 v12, s{SC+i}, 6, v14\nv_xor_b32 v13, 64, v12"
    def wq(i): return f"s_add_u32 m0, s80, {i*4096}\ns_mul_i32 s82, s{SC+i}, {64*21}\nbuffer_load_dwordx4 v253, {sWQKV}, s82 offen lds"
    a(f"s_mov_b32 s30, {448 * 2688}")
    def w_reads(i):
        out = []
        for mm in range(4):
            for ct in range(2):
                for hf in range(2):
                    d = WB + (i % 2) * 32 + mm * 8 + ct * 4 + hf * 2
                    out.append(f"ds_read_b64_tr_b16 {V(d,2)}, v{12+ct} offset:{mm*2048 + hf*512}")
        return out
    def x_reads(i):
        return [f"ds_read_b128 {V(X+16*i+4*mm,4)}, v{8+mm} offset:{(i%4)*4096}" for mm in range(4)]
    a(f"""s_waitcnt vmcnt(8)""")
    stamp(a, 1)
    a(f"s_mov_b64 exec, 1\nds_add_u32 v250, v251\ns_mov_b64 exec, -1")
    for j in range(2): a(x_m0(2 + XE, j)); a("s_nop 0"); a(x_ld(2 + XE, j))
    lwait(a, "v250", 252, 4, 19)
    stamp(a, 3, 1)
    wr0 = w_reads(0)
    for s_ in wr0[:8]: a(s_)
    if not XE: a("s_waitcnt vmcnt(6)")
    for s_ in x_reads(0) + wr0[8:]: a(s_)
    a(f"s_cmp_eq_u32 {T5}, 1\ns_cbranch_scc1 L_kvV")
    for var in ("K", "V"):
        if var == "V": a("L_kvV:")
        late = [f"s_mul_i32 {T4}, {S_TILE}, {TS}", f"s_add_u32 {T4}, {T4}, {KV}", "v_lshlrev_b32 v7, 4, v1"]
        if var == "K":
            late += [f"s_lshl_b32 {T0}, {S_LC}, 12", f"s_add_u32 {T4}, {T4}, {T0}"]
        else:
            late += f"""s_lshl_b32 {T1}, {S_LC}, 6
v_and_b32 v4, 31, v1
v_add_u32 v4, {T1}, v4                    ; col (ct0)
v_add_u32 v5, 32, v4
v_lshrrev_b32 v3, 5, v1
v_lshlrev_b32 v3, 9, v3
v_add_u32 v3, {VOFF}, v3""".split("\n")
            for r in (4, 5):
                late += f"""v_mul_u32_u24 v2, 2341, v{r}
v_lshrrev_b32 v2, 16, v2
v_mul_u32_u24 v2, {2048 - 28*16}, v2
v_lshl_add_u32 v{r}, v{r}, 4, v2
v_add_u32 v{r}, v{r}, v3""".split("\n")
            late += f"""s_lshl_b32 {T1}, {S_LC}, 2
s_lshr_b32 {T2}, 0xDB96420, {T1}
s_and_b32 {T2}, {T2}, 15                  ; first head that ends in this line-column
s_lshr_b32 {T3}, 0x3223222, {T1}
s_and_b32 {T3}, {T3}, 15
s_lshl_b32 {T3}, {T3}, 4
v_lshrrev_b32 v6, 2, v1
v_lshlrev_b32 v6, 9, v6
v_and_b32 v2, 3, v1
v_lshl_add_u32 v6, v2, 4, v6
s_lshl_b32 {T2}, {T2}, 11
s_add_u32 {T2}, {T2}, {VOFF + 28*16}
v_add_u32 v6, {T2}, v6
v_cmp_eq_u32 vcc, 0, v2
v_mov_b32 v2, 0x3f803f80
s_nop 0
v_cndmask_b32 v236, 0, v2, vcc
v_cndmask_b32 v237, 0, v2, vcc
v_cndmask_b32 v238, 0, v2, vcc
v_cndmask_b32 v239, 0, v2, vcc""".split("\n")
        for i in range(7):
            a("s_waitcnt lgkmcnt(0)")
            stamp(a, 4 + i, 1)
            fill = [[] for _ in range(8)]
            pre = [[] for _ in range(8)]
            if i == 0:
                dq = [(c, j) for c in range(1, 7) for j in range(4)]
                issued_q = dq[:6 + 4*XE]; dq = dq[6 + 4*XE:]
            def take(g):
                if dq and dq[0][0] <= i + 4:
                    e = dq.pop(0); issued_q.append(e)
                    pre[g].append(x_m0(*e)); fill[g].insert(0, x_ld(*e))
            had = bool(dq)
            if i + 1 < 7:
                wr = w_reads(i + 1)
                fill[0] += [w_base(i + 1)] + wr[0:3]
                fill[1] += wr[3:8]; fill[2] += wr[8:12]; fill[3] += wr[12:16]
                for g in ((0, 1, 2, 3, 4) if i == 0 and not XE else (0,)): take(g)
                if i == 4:
                    fill[1].append("s_cmp_eq_u32 s81, 1\ns_cselect_b64 exec, -1, 0\n" + "\n".join(wq(q) for q in range(cfg.wqe)) + "\ns_mov_b64 exec, -1")
                    issued_q += [(99, q) for q in range(cfg.wqe)]
                last = max(q for q, e in enumerate(issued_q) if e[0] == i + 1)
                fill[4] += [f"s_waitcnt vmcnt({len(issued_q) - 1 - last})"] + x_reads(i + 1)
            for g in range(5, 8): take(g)
            if i == 4:
                assert not had
                fill[0].insert(0, "s_mov_b64 exec, 1\nds_add_u32 v250, v251 offset:8\ns_mov_b64 exec, -1")
            if not had:
                for g in range(5 if i < 6 else 0, 8):
                    for q in range(6):
                        if late: fill[g].append(late.pop(0))
            for mm in range(4):
                for ct in range(2):
                    xr = X + 16*i + 4*mm; wr_ = WB + (i % 2) * 32 + mm * 8 + ct * 4
                    c = None if (i == 0 and mm == 0) else ACC + 16*ct
                    for s_ in pre[2*mm + ct]: a(s_)
                    a(mfma(ACC + 16*ct, wr_, xr, c) if var == "K" else mfma(ACC + 16*ct, xr, wr_, c))
                    for s_ in fill[2*mm + ct]: a(s_)
        assert not late
        stamp(a, 11, 1)
        a(f"s_cmp_eq_u32 {S_LC}, 7\ns_cbranch_scc1 L_kvnone")
        if var == "V":
            a(f"s_bfm_b64 exec, {T3}, 0\nbuffer_store_dwordx4 v[236:239], v6, {sWS}, {T4} offen sc1\ns_mov_b64 exec, -1")
        for ct in range(2):
            for j in range(2):
                for q in range(4):
                    z = 8*ct + 4*j + q
                    a(f"v_cvt_pk_bf16_f32 v{PK+z}, v{ACC+2*z}, v{ACC+2*z+1}")
                if var == "K":
                    a(f"buffer_store_dwordx4 {V(PK+8*ct+4*j,4)}, v7, {sWS}, {T4} offen offset:{ct*2048+j*1024} sc1")
                else:
                    a(f"buffer_store_dwordx4 {V(PK+8*ct+4*j,4)}, v{4+ct}, {sWS}, {T4} offen offset:{j*1024} sc1")
        if var == "K": a("s_branch L_kvdone\nL_kvnone:\ns_waitcnt vmcnt(0)\ns_branch L_kvdone")
    a("L_kvdone:\ns_mov_b64 exec, 1\nds_add_u32 v250, v251\ns_mov_b64 exec, -1")
    stamp(a, 2)
    NB = cfg.nbuf
    Q = 16; O = 48; SA = 112; KVB = 144; P0 = KVB + 16*NB; P1 = P0 + 4
    assert P1 + 4 <= 240
    QP = 224
    S_LD = "s9"
    def kv_loads(t, so=None):
        b = KVB + 16 * (t % NB); so = so or f"s{TO + (t if not cfg.hack or t < cfg.hack else t % cfg.hack)}"
        return [f"buffer_load_dwordx4 {V(b+4*j,4)}, v{VK if j < 2 else VV}, {sWS}, {so} offen offset:{(j%2)*1024} sc1" for j in range(4)]
    PV = 254; QA = (4, 6, 8, 9)
    pl = poll_issue(f"v{VF}", PG[0], PV, 4)
    QW = 176
    def qsync(target):
        a("s_mov_b64 exec, 1\nds_add_u32 v250, v251 offset:4\ns_mov_b64 exec, -1")
        lwait(a, "v250", 5, target, 14, off=4)
    def qmma(c0, c1, issue, check):
        rd = [f"ds_read_b64_tr_b16 {V(QW+(i%3)*16+mm*4+hf*2,2)}, v15 offset:{i*4096+mm*1024+hf*256}" for i in range(c0, c1) for mm in range(4) for hf in range(2)]
        iss = min(len(rd), 12)
        for s_ in rd[:iss]: a(s_)
        for m in range(4 * (c1 - c0)):
            a(f"s_waitcnt lgkmcnt({iss - (2*m + 2)})")
            a(mfma(ACC, QW + ((c0 + m // 4) % 3) * 16 + 4*(m % 4), X + 16*c0 + 4*m, None if c0 + m == 0 else ACC))
            for s_ in rd[iss:iss+2]: a(s_)
            iss = min(len(rd), iss + 2)
            if m == issue: a(pl)
            if m == check:
                Lf, Lg = a.lab("pf"), a.lab("pg")
                a(f"s_waitcnt vmcnt(0)\n{poll_check(PV, 4)}\ns_cbranch_scc1 {Lf}\ns_mov_b32 {S_LD}, 1")
                for t in range(2):
                    for s_ in kv_loads(t): a(s_)
                a(f"s_branch {Lg}\n{Lf}:\n{pl}\n{Lg}:")
    S_OB, S_FO, S_LO, S_HI, S_CL, S_M0 = "s10", "s11", "s12", "s13", "s14", "s[76:77]"
    def addrs():
        a(f"""s_lshl_b32 {S_OB}, {S_TILE}, 4
s_add_u32 {S_OB}, {S_OB}, {S_H}
s_lshl_b32 {S_OB}, {S_OB}, 11
s_add_u32 {S_OB}, {S_OB}, {OBUF}
s_lshl_b32 {S_FO}, {S_R}, 4
s_add_u32 {S_FO}, {S_FO}, {S_H}
s_lshl_b32 {S_FO}, {S_FO}, 7
s_add_u32 {S_FO}, {S_FO}, {FO}
s_mov_b32 {S_LO}, {lit(2.0**-40)}
s_mov_b32 {S_HI}, {lit(2.0**30)}
s_movk_i32 {S_CL}, 0x1f8
s_cmp_eq_u32 {S_W4}, 0
s_cselect_b64 {S_M0}, 1, 0
v_mov_b32 v2, v250
v_mov_b32 v3, 1
v_mov_b32 v7, v{VL}
v_mov_b32 v248, {lit(28 ** -0.5 * math.log2(math.e))}
v_mov_b32 v249, v248""")
        for i in range(4):
            a(f"""s_add_u32 {T0}, {S_W4}, {i+1}
s_and_b32 {T0}, {T0}, 3
s_lshl_b32 {T1}, {T0}, 11
s_add_u32 {T1}, {T1}, {L_Q}
v_add_u32 v{QA[i]}, {T1}, v7
s_mul_i32 {T0}, {T0}, 12288
s_add_u32 {T0}, {T0}, {(i%3)*4096 + L_RED}
v_add_u32 v{10+i}, {T0}, v7""")
    def publish(n):
        a(f"s_waitcnt vmcnt({n})")
        publish_wg(a, "v250", "v251", 16, 5, S_FL, 244)
        stamp(a, 3)
        a("s_waitcnt vmcnt(1)")
    E = cfg.wqe
    a(f"s_mov_b32 {S_LD}, 0\ns_cmp_eq_u32 s81, 1\ns_cbranch_scc1 L_qtwo")
    S_M0 = "s[82:83]" if cfg.xafirst else S_M0
    if cfg.xafirst:
        addrs()
        if cfg.wqdel: a(f"s_sleep {cfg.wqdel}")
        for i in range(7): a(wq(i).replace("s82", T0))
    else:
        for i in range(7): a(wq(i))
        addrs()
    publish(7)
    qsync(4)
    stamp(a, 4)
    qmma(0, 7, cfg.m1, cfg.m2)
    a("s_branch L_qdone\nL_qtwo:\ns_waitcnt vmcnt(4)")
    qsync(4)
    for i in range(E, 7): a(wq(i))
    qmma(0, E, -1, -1)
    addrs()
    publish(7 - E)
    qsync(8)
    stamp(a, 4)
    qmma(E, 7, 0, 4 * (7 - E) - 1)
    a("L_qdone:")
    stamp(a, 5)
    a(f"s_bitcmp1_b32 {S_H}, 0")
    for hf in range(2):
        for q in range(8*hf, 8*hf+8, 2): pk2(a, "mul", ACC+q, ACC+q, 248, scalar=cfg.nopk & 1)
        for q in range(4*hf, 4*hf+4): a(f"v_cvt_pk_bf16_f32 v{QP+q}, v{ACC+2*q}, v{ACC+2*q+1}")
        if hf == 0: a(f"s_cselect_b32 exec_lo, -1, 0\ns_mov_b32 exec_hi, 0\nv_mov_b32 v{QP}, 0\nv_mov_b32 v{QP+1}, 0\ns_mov_b64 exec, -1")
        else: a(f"s_cselect_b32 exec_hi, 0, -1\ns_mov_b32 exec_lo, 0\nv_mov_b32 v{QP+6}, 0\nv_mov_b32 v{QP+7}, 0\ns_mov_b64 exec, -1")
        a(f"ds_write_b128 v9, {V(QP+4*hf,4)} offset:{1024*hf}")
    a(f"""s_mov_b64 exec, 1
ds_add_u32 v2, v3
s_mov_b64 exec, -1
s_cmp_eq_u32 {S_LD}, 1
s_cbranch_scc1 L_kvloaded
s_waitcnt vmcnt(0)
{poll_check(PV, 4)}
s_cbranch_scc0 L_kvready""")
    poll(a, f"v{VF}", PG[0], PV, 4, 1, sleep=2)
    a("L_kvready:")
    for t in range(2):
        for s_ in kv_loads(t): a(s_)
    a("L_kvloaded:\ns_mov_b64 exec, 1\nds_add_u32 v2, v3 offset:12\ns_mov_b64 exec, -1")
    stamp(a, 6)
    if cfg.fine == 6:
        a(f"s_lshl_b32 {T0}, {S_LD}, 10\ns_add_u32 s{STAMP0+1}, s{STAMP0}, {T0}\ns_sub_u32 {T0}, {cfg.poll_limit}, {S_TO}\ns_cmp_gt_u32 {T0}, 100\ns_cselect_b32 {T0}, -1, {T0}\ns_add_u32 {T0}, {T0}, 1\ns_lshl_b32 {T0}, {T0}, 10\ns_add_u32 s{STAMP0+2}, s{STAMP0}, {T0}")
    lwait(a, "v2", 5, 12, 15)
    a(f"s_mov_b32 {S_BAR}, 12")
    for i in range(4):
        a(f"ds_read_b128 {V(Q+8*i,4)}, v{QA[i]}\nds_read_b128 {V(Q+8*i+4,4)}, v{QA[i]} offset:1024")
    stamp(a, 7)
    a("s_waitcnt vmcnt(6) lgkmcnt(6)\ns_setprio 0")
    if cfg.padmid: padto(a, cfg.padmid)
    stamp(a, 8)
    a(mfma(SA, KVB, Q)); a(mfma(SA, KVB + 4, Q + 4, SA))
    a("s_waitcnt vmcnt(4) lgkmcnt(0)\ns_nop 9\n.p2align 3")
    sched = {}
    issued = 2
    for t in range(16):
        for i in (1, 2):
            if (i == 1 or t % cfg.ramp == 0) and issued <= min(15, t + NB - 1):
                sched[(t, i)] = issued; issued += 1
    first = {g: min(k for k, v in sched.items() if v == 4*g) for g in (1, 2, 3)}
    pollat = {(k[0] - 1, 0): g for g, k in first.items()}
    vq = [("t", 1)] * 4
    def after(tag): return len(vq) - 1 - max(q for q, e in enumerate(vq) if e == tag)
    assert NB >= 5
    units = [(t, i) for t in range(12) for i in range(4)] + [(t, i) for i in range(4) for t in range(12, 16)]
    firstuse = {}
    for n, (t, i) in enumerate(units): firstuse.setdefault(t, n)
    waitat = {n - 2: t for t, n in firstuse.items() if t > 0}
    kb = lambda tt: KVB + 16 * (tt % NB)
    redw = lambda i, q: f"ds_write_b128 v{10+i}, {V(O+16*i+4*q,4)} offset:{q*1024}"
    for n, (t, i) in enumerate(units):
        if n % 8 == 0 and n: stamp(a, n // 8, 3)
        cur = SA + 16 * (n % 2); nxt = SA + 16 * ((n + 1) % 2)
        ms = [None] * 4
        if n < 63:
            tn, inx = units[n + 1]
            ms[0] = mfma(nxt, kb(tn), Q + 8*inx); ms[1] = mfma(nxt, kb(tn) + 4, Q + 8*inx + 4, nxt)
        if n > 0:
            tp, ip = units[n - 1]
            ms[2] = mfma(O + 16*ip, kb(tp) + 12, P1, O + 16*ip)
        ms[3] = mfma(O + 16*i, kb(t) + 8, P0, None if t == 0 else O + 16*i)
        side = [None] * 4
        key = (n // 4, n % 4)
        if key in sched:
            assert n < 48
            tl = sched[key]
            if tl % 4 == 0:
                g = tl // 4
                a(f"s_waitcnt vmcnt({after(('p', g))})\nv_cmp_ne_u64 vcc, {S_NONCE}, v[14:15]\ns_cbranch_vccnz L_gate{g}\nL_gated{g}:\ns_nop 0")
            side = kv_loads(tl); vq += [("t", tl)] * 4
        if key in pollat:
            g = pollat[key]
            side[0] = f"buffer_load_dwordx2 v[14:15], v{VF}, {sWS}, {PG[g]} offen sc1"; vq.append(("p", g))
        sig = "\ns_mov_b64 exec, 1\nds_add_u32 v2, v3\ns_mov_b64 exec, -1"
        rdr = lambda q: f"ds_read_b128 {V(O+4*q,4)}, v13 offset:{q*1024}"
        if 53 <= n <= 56: side[1] = redw(0, n - 53)
        if n in (57, 58): side[1] = redw(1, 2*(n - 57)); side[3] = redw(1, 2*(n - 57) + 1) + (sig if n == 58 else "")
        if n == 60: side[1] = "ds_read_b32 v5, v2"
        if n == 61:
            a(f"s_waitcnt lgkmcnt(0)\nv_readfirstlane_b32 {T0}, v5\ns_cmp_ge_u32 {T0}, 16\ns_cbranch_scc0 L_redw\nL_redd:")
        if n in (61, 62):
            k_ = n - 61
            side = [redw(2, 2*k_), rdr(4*k_) + "\n" + rdr(4*k_+1), redw(2, 2*k_+1) + (sig if k_ else ""), rdr(4*k_+2) + "\n" + rdr(4*k_+3)]
        if n == 63: side[2] = "ds_read2_b32 v[4:5], v2 offset0:34 offset1:0"
        if n == cfg.bhi: side[0] = "s_setprio 3\ns_nop 0" + ("\n" + side[0] if side[0] else "")
        for p in range(4):
            if ms[p]: a(ms[p])
            if side[p]: a(side[p])
            for e in range(4):
                if n in waitat and p == 3 and e == 3:
                    a(f"s_waitcnt vmcnt({after(('t', waitat[n]))})\nv_exp_f32_e64 v{cur+4*p+e}, v{cur+4*p+e}")
                else:
                    a(f"v_exp_f32 v{cur+4*p+e}, v{cur+4*p+e}")
            pk = (P0, P0 + 2, P1, P1 + 2)[p]
            a(f"v_cvt_pk_bf16_f32 v{pk}, v{cur+4*p}, v{cur+4*p+1}\nv_cvt_pk_bf16_f32 v{pk+1}, v{cur+4*p+2}, v{cur+4*p+3}")
    a(f"s_waitcnt lgkmcnt(0)\nv_readfirstlane_b32 {T0}, v5\nv_readfirstlane_b32 {T1}, v4")
    a(mfma(O + 48, kb(15) + 12, P1, O + 48))
    a(f"s_add_u32 {T1}, {T1}, {12 if cfg.ohint and not cfg.noA else 20}\ns_min_u32 {T0}, {T0}, {T1}\ns_cmp_ge_u32 {T0}, 20\ns_cbranch_scc0 L_redw2\nL_redd2:")
    for q in range(8, 12): a(f"ds_read_b128 {V(O+4*q,4)}, v13 offset:{q*1024}")
    a("s_mov_b64 exec, 1\nds_add_u32 v2, v3")
    if cfg.ohint: a(f"s_mov_b64 exec, {S_M0}\nbuffer_store_dwordx2 v[244:245], v246, {sWS}, {S_FO} offen sc1")
    a("s_mov_b64 exec, -1")
    stamp(a, 9)
    OO = O + 48
    sc_ = cfg.nopk & 2
    for q in range(0, 16, 2): pk2(a, "add", O+q, O+q, O+16+q, scalar=sc_)
    for q in range(0, 16, 2): pk2(a, "add", OO+q, OO+q, O+q, scalar=sc_)
    a("s_waitcnt lgkmcnt(1)")
    for q in (12, 0, 2, 4, 6, 8, 10, 14): pk2(a, "add", OO+q, OO+q, O+32+q, scalar=sc_)
    a(f"""v_mov_b32 v10, v{OO+12}
v_mov_b32 v11, v{OO+12}
v_mul_f32 v12, v{OO}, v{OO+1}
v_mul_f32 v13, v{OO+2}, v{OO+3}
v_permlane32_swap_b32 v10, v11
v_fma_f32 v12, v{OO+4}, v{OO+5}, v12
v_fma_f32 v13, v{OO+6}, v{OO+7}, v13
v_rcp_f32 v10, v11
v_fma_f32 v12, v{OO+8}, v{OO+9}, v12
v_fma_f32 v13, v{OO+10}, v{OO+11}, v13
v_cmp_le_f32 s[70:71], {S_LO}, v11
v_fma_f32 v12, v{OO+12}, v{OO+13}, v12
v_fma_f32 v13, v{OO+14}, v{OO+15}, v13
v_cmp_ge_f32 s[72:73], {S_HI}, v11
v_add_f32 v12, v12, v13
v_cmp_class_f32 vcc, v12, {S_CL}
s_and_b64 s[70:71], s[70:71], s[72:73]
s_and_b64 vcc, vcc, s[70:71]
s_cmp_eq_u64 vcc, exec""")
    if cfg.force_fb: a("s_cmp_eq_u32 0, 1")
    a(f"s_cbranch_scc0 L_fallback\nL_fbdone:\nv_mov_b32 v11, v10")
    for hf in range(2):
        for q in range(8*hf, 8*hf+8, 2): pk2(a, "mul", OO+q, OO+q, 10, scalar=sc_)
        for q in range(4*hf, 4*hf+4): a(f"v_cvt_pk_bf16_f32 v{O+q}, v{OO+2*q}, v{OO+2*q+1}")
        if hf: a(f"s_mov_b32 exec_lo, 0\nv_mov_b32 v{O+6}, 0\ns_mov_b32 exec_lo, -1")
        if cfg.ohint: a(f"v_min_u32 v{O+4*hf}, -2, v{O+4*hf}")
        a(f"buffer_store_dwordx4 {V(O+4*hf,4)}, v7, {sWS}, {S_OB} offen offset:{1024*hf} sc1")
    stamp(a, 10)
    S_BP, S_CNT, S_DT = "s70", "s71", "s72"
    GS = 144; GC = 176; ZR = 196; G = 16; OL = 196; AR = 128
    S_O0, S_O1, S_FH, S_RT, S_CLM = "s73", "s74", "s75", "s76", "s77"
    a(f"""s_lshl_b32 {S_BP}, {S_XCD}, 3
s_lshr_b32 {T0}, {S_IDX}, 2
s_add_u32 {S_BP}, {S_BP}, {T0}
s_and_b32 {T1}, {S_IDX}, 3
s_cmp_ge_u32 {T1}, 2
s_cselect_b32 {S_CNT}, 3, 4
s_lshl_b32 {S_DT}, {T1}, 2
s_cmp_eq_u32 {T1}, 3
s_cselect_b32 {S_DT}, 11, {S_DT}
s_add_u32 {S_DT}, {S_DT}, {S_W4}
s_cmp_ge_u32 {S_W4}, {S_CNT}
s_cbranch_scc1 L_bend
s_setprio {cfg.fprio}
v_bfe_u32 v5, v1, 2, 1
v_lshlrev_b32 v5, 4, v5
v_bfe_u32 v6, v1, 3, 2
v_lshl_add_u32 v5, v6, 2, v5
v_and_b32 v6, 3, v1
v_add_u32 v5, v5, v6
s_lshl_b32 {T0}, {S_DT}, 5
v_add_u32 v5, {T0}, v5                    ; d
v_lshlrev_b32 v9, 31, v5
v_xor_b32 v9, 0.5, v9                     ; 0.5*(-1)^d
v_cvt_f32_u32 v5, v5
v_mul_f32 v5, {lit(1/448)}, v5
v_lshrrev_b32 v4, 5, v1
v_cvt_f32_u32 v6, v4
v_mul_f32 v6, v5, v6
v_mul_f32 v6, 4.0, v6
v_mul_f32 v{GC}, {lit(16.0)}, v5
v_cos_f32 v{GC}, v{GC}""")
    for j in range(16): a(f"v_fmamk_f32 v{GS+j}, v5, {lit(float(16*(j//8) + 8*((j%8)//4) + j%4))}, v6")
    a(f"v_add_f32 v{GC}, v{GC}, v{GC}")
    for j in range(16): a(f"v_sin_f32_e64 v{GS+16+j}, -v{GS+j}\nv_cos_f32 v{GS+j}, v{GS+j}")
    a(f"v_mov_b32 v{GC+1}, v{GC}")
    def ggen(q0, q1):
        a(".p2align 3")
        for q in range(q0, q1):
            rho = q % 2; st = q // 2
            cur = GS + 16*rho + 8*(st % 2); oth = GS + 16*rho + 8*((st + 1) % 2); gp = G + 4*q
            if st >= 2:
                for z in range(0, 8, 2):
                    pk2(a, "fma", cur+z, GC, oth+z, cur+z, neg="2", scalar=cfg.nopk & 8)
            for z in range(4): a(f"v_cvt_pk_bf16_f32 v{gp+z}, v{cur+2*z}, v{cur+2*z+1}")
            if st == 0:
                a(f"s_mov_b32 exec_hi, 0\nv_cvt_pk_bf16_f32 v{gp}, {'v9' if rho else '0.5'}, v{cur+1}\ns_mov_b32 exec_hi, -1")
    ggen(0, 28)
    stamp(a, 11)
    srd(a, sOUT, 16, 2048 * 1792)
    a(f"""v_add_u32 v8, {L_ZB}, v7
v_and_b32 v6, 31, v1
v_mul_u32_u24 v6, {64*1792}, v6
v_lshl_add_u32 v6, v4, 5, v6
s_mul_i32 {T4}, {S_BP}, 1792
s_lshl_b32 {T1}, {S_DT}, 6
s_add_u32 {T4}, {T4}, {T1}""")
    lwait(a, "v2", 5, 4, 17, off=132)
    stamp(a, 13)
    order = [4*(q//4) + 2*(q % 2) + ((q//2) % 2) for q in range(28)]
    for q in range(8): a(f"ds_read_b128 {V(ZR+4*q,4)}, v8 offset:{order[q]*1024}")
    for p in range(28):
        a(f"s_waitcnt lgkmcnt({min(7, 27-p)})")
        a(mfma(AR, G + 4*p, ZR + 4*(p % 8), None if p == 0 else AR))
        if p + 8 < 28: a(f"ds_read_b128 {V(ZR+4*(p%8),4)}, v8 offset:{order[p+8]*1024}")
    osc = ("", " sc1", " nt", " sc0 sc1")[cfg.outsc]
    if cfg.odefer and not cfg.noA: lwait(a, "v2", 5, 4, 36, sleep=2, off=20)
    for hf in range(2):
        for q in range(4*hf, 4*hf+4): a(f"v_cvt_pk_bf16_f32 v{GS+q}, v{AR+2*q}, v{AR+2*q+1}")
        a(f"buffer_store_dwordx4 {V(GS+4*hf,4)}, v6, {sOUT}, {T4} offen offset:{16*hf}{osc}")
    a("L_bend:")
    stamp(a, 12)
    dump_stamps(a, 240)
    a("s_endpgm")
    a("L_redw:")
    lwait(a, "v2", 5, 16, 2)
    a("s_branch L_redd\nL_redw2:")
    lwait(a, "v2", 5, 20, 2)
    if cfg.ohint and not cfg.noA: lwait(a, "v2", 5, 8, 39, sleep=1, off=136)
    a("s_branch L_redd2")
    for g in (1, 2, 3):
        a(f"L_gate{g}:")
        poll(a, f"v{VF}", PG[g], 14, 4, 25, sleep=2)
        a(f"s_branch L_gated{g}")
    a("L_fallback:")
    QO = Q + 24; KB = KVB; M = 15; S_SO = "s70"
    a(f"v_mov_b32 v{M}, 0xff800000\ns_mov_b32 {S_SO}, {KV}\nL_fb1:")
    for s_ in kv_loads(0, S_SO)[:2]: a(s_)
    a(f"s_add_u32 {S_SO}, {S_SO}, {TS}\ns_waitcnt vmcnt(0)")
    a(mfma(SA, KB, QO)); a(mfma(SA, KB + 4, QO + 4, SA))
    for q in range(0, 16, 2): a(f"v_max3_f32 v{M}, v{M}, v{SA+q}, v{SA+q+1}")
    a(f"""s_cmp_lt_u32 {S_SO}, {KV + 64*TS}
s_cbranch_scc1 L_fb1
v_mov_b32 v14, v{M}
v_permlane32_swap_b32 v14, v{M}
v_max_f32 v{M}, v14, v{M}
s_mov_b32 {S_SO}, {KV}""")
    for q in range(16): a(f"v_mov_b32 v{OO+q}, 0")
    a("L_fb2:")
    for s_ in kv_loads(0, S_SO): a(s_)
    a(f"s_add_u32 {S_SO}, {S_SO}, {TS}\ns_waitcnt vmcnt(0)")
    a(mfma(SA, KB, QO)); a(mfma(SA, KB + 4, QO + 4, SA))
    for q in range(16): a(f"v_sub_f32 v{SA+q}, v{SA+q}, v{M}")
    for q in range(16): a(f"v_exp_f32 v{SA+q}, v{SA+q}")
    for q in range(8): a(f"v_cvt_pk_bf16_f32 v{P0+q}, v{SA+2*q}, v{SA+2*q+1}")
    a(mfma(OO, KB + 8, P0, OO)); a(mfma(OO, KB + 12, P1, OO))
    a(f"""s_cmp_lt_u32 {S_SO}, {KV + 64*TS}
s_cbranch_scc1 L_fb2
v_mov_b32 v10, v{OO+12}
v_mov_b32 v11, v{OO+12}
v_permlane32_swap_b32 v10, v11
v_rcp_f32 v10, v11
s_branch L_fbdone""")

def role_A(a):
    FB = 16; GS0 = 48; M = 72; F = 88; ACC = 200; TMP = 216
    S_BP = "s78"
    S_CG, S_CNT, S_CB, S_DT, S_TASK, S_K1 = "s79", "s80", "s81", "s82", "s83", "s73"
    S_B, S_KT16 = S_BP, S_DT
    (PN, _, _, P_TST, P_W, P_F1, P_TLD, P_TBW, P_TBR, P_TTW, P_TTR, P_UST, P_F2, P_WOD, P_WOR, P_WOR2,
     P_ZW0, P_ZW1, P_PF, P_BC, P_PS, _, P_LS, P_DUM) = range(232, 256)
    sc = 1.0 / (2048 * 448)
    def albar(code): lbar(a, "v14", "v15", P_LS, code, sleep=1)
    def burst(items, th):
        a("s_setprio 0")
        for q, it in enumerate(items):
            if q >= th: a(f"s_waitcnt vmcnt({th-1})")
            a(it)
        a(f"s_setprio {cfg.aprio}")
    SB = "s[74:75]"
    def stage_arrive(k):
        L = a.lab("arr")
        a(f"""s_waitcnt vmcnt(0)
s_mov_b64 exec, 1
ds_add_rtn_u32 v{P_LS}, v14, v15 offset:8
s_mov_b64 exec, -1
s_waitcnt lgkmcnt(0)
v_readfirstlane_b32 {T0}, v{P_LS}
s_cmp_eq_u32 {T0}, {4*k+3}
s_cbranch_scc0 {L}
s_mov_b32 {T0}, 1
s_lshl_b32 {T1}, {S_XCD}, 7
s_add_u32 {T1}, {T1}, {k*1024}
s_atomic_add {T0}, {SB}, {T1} glc
s_waitcnt lgkmcnt(0)
s_sub_u32 {T0}, {T0}, s62
s_cmp_eq_u32 {T0}, 31
s_cbranch_scc0 {L}
s_mov_b32 {T1}, {FA1 + 2048 + k*8192}
s_mov_b64 exec, {-1 if cfg.allpoll else 0xffff}
buffer_atomic_add v15, v{P_PF}, {sWS}, {T1} offen sc1
s_mov_b64 exec, -1
{L}:""")
    def stage_wait(k, pre):
        if cfg.ko & 4:
            a("s_waitcnt lgkmcnt(0)"); return
        L, L2, L3 = a.lab("sw"), a.lab("sw"), a.lab("sw")
        if not cfg.allpoll: a(f"s_cmp_eq_u32 {S_W4}, 0\ns_cbranch_scc0 {L2}")
        a(f"""s_and_b32 {T1}, s2, 15
s_lshl_b32 {T2}, {S_W4}, 4
s_add_u32 {T1}, {T1}, {T2}
s_lshl_b32 {T1}, {T1}, 7
s_add_u32 {T1}, {T1}, {2048 + k*8192}
s_add_u32 {T2}, s62, 8
s_mov_b32 {S_TO}, {cfg.poll_limit}
s_waitcnt lgkmcnt(0)
s_sleep {pre}
{L}:
s_mov_b32 {T0}, 0
s_atomic_or {T0}, {SB}, {T1} glc
s_waitcnt lgkmcnt(0)
s_cmp_eq_u32 {T0}, {T2}
s_cbranch_scc1 {L}d
s_sleep {cfg.bsleep}
s_sub_u32 {S_TO}, {S_TO}, 1
s_cbranch_scc0 {L}
s_mov_b32 {S_TO}, 32
s_branch L_fail
{L}d:""")
        if cfg.allpoll: return
        a(f"s_mov_b64 exec, 1\nds_add_u32 v14, v15 offset:12\ns_mov_b64 exec, -1\ns_branch {L3}\n{L2}:")
        lwait(a, "v14", P_LS, k + 1, 33, sleep=cfg.lsl, off=12)
        a(f"{L3}:")
    def pace():
        if cfg.pace: a(f"s_sleep {cfg.pace}")
    a(f"""L_roleA:
v_mov_b32 v3, 0
v_mov_b32 v2, {L_SYNC}
ds_write2_b32 v2, v3, v3 offset0:0 offset1:32
ds_write2_b32 v2, v3, v3 offset0:1 offset1:2
ds_write2_b32 v2, v3, v3 offset0:3 offset1:33
ds_write2_b32 v2, v3, v3 offset0:4 offset1:34
ds_write2_b32 v2, v3, v3 offset0:5 offset1:35
ds_write2_b32 v2, v3, v3 offset0:8 offset1:9
ds_write2_b32 v2, v3, v3 offset0:10 offset1:11
s_setprio {cfg.aprio}
s_mov_b32 {S_BAR}, 0
s_lshl_b32 {S_BP}, {S_XCD}, 3
s_lshr_b32 {T0}, {S_IDX}, 2
s_add_u32 {S_BP}, {S_BP}, {T0}
s_and_b32 {S_CG}, {S_IDX}, 3
s_cmp_ge_u32 {S_CG}, 2
s_cselect_b32 {S_CNT}, 3, 4
s_lshl_b32 {S_CB}, {S_CG}, 2
s_cmp_eq_u32 {S_CG}, 3
s_cselect_b32 {S_CB}, 11, {S_CB}
s_add_u32 {S_DT}, {S_CB}, {S_W4}
v_and_b32 v2, 31, v1                      ; v2 = lane%32
v_lshrrev_b32 v3, 5, v1                   ; v3 = half
v_cvt_f32_u32 v4, v3
s_waitcnt lgkmcnt(0)
{st0()}""")
    if cfg.touch:
        tl = [["s[10:11], 0", "s[4:5], 0", "s[6:7], 0"], ["s[20:21], s76", "s[8:9], 0", "s[14:15], 0"],
              ["s[20:21], s77", "s[16:17], 0", "s[16:17], s76"], ["s[20:21], s74", "s[20:21], s75"]]
        a(f"s_cmp_ge_u32 {S_IDX}, {cfg.touch}\ns_cbranch_scc1 L_tch\ns_mov_b32 s76, 0x200000\ns_mov_b32 s77, 0x600000\ns_mov_b32 s74, 0x400000\ns_mov_b32 s75, 0x800000")
        for w in range(4):
            a(f"s_cmp_lg_u32 {S_W4}, {w}\ns_cbranch_scc1 L_tch{w}")
            for t_ in tl[w]: a(f"s_load_dword s72, {t_}")
            a(f"L_tch{w}:")
        a("L_tch:")
    def angles(n, vstep, vbase, offs, dst=TMP):
        for j in range(n): a(f"v_fmamk_f32 v{dst+j}, {vstep}, {lit(float(offs[j]))}, {vbase}")
    def gen_F():
        A0 = TMP; A1 = TMP + 8; C2 = TMP + 16
        a(f"""v_and_b32 v5, 15, v1
s_lshl_b32 {T0}, {S_KT16}, 4
v_add_u32 v5, {T0}, v5                    ; k
v_bfe_u32 v6, v1, 4, 1
v_lshl_add_u32 v7, v5, 1, v6
v_cmp_eq_u32 vcc, 1, v7
v_mov_b32 v7, 224
v_cndmask_b32 v5, v5, v7, vcc
v_cndmask_b32 v6, v6, 0, vcc
v_cvt_f32_u32 v5, v5
v_cvt_f32_u32 v6, v6
v_mul_f32 v5, {lit(1/448)}, v5            ; kf
v_mul_f32 v6, {lit(0.25)}, v6
v_mul_f32 v7, v5, v4
v_fmamk_f32 v6, v7, {lit(8.0)}, v6
v_mul_f32 v{C2}, {lit(16.0)}, v5
v_cos_f32 v{C2}, v{C2}""")
        angles(16, "v5", "v6", [j % 8 + 16 * (j // 8) for j in range(16)])
        a(f"v_add_f32 v{C2}, v{C2}, v{C2}")
        for j in range(16): a(f"v_cos_f32 v{A0+j}, v{A0+j}")
        a(f"v_mov_b32 v{C2+1}, v{C2}\ns_barrier\n.p2align 3")
        for m in range(28):
            cur = A0 if m % 2 == 0 else A1; oth = A1 if m % 2 == 0 else A0
            if m >= 2:
                for q in range(0, 8, 2):
                    a(f"v_pk_fma_f32 {V(cur+q,2)}, {V(C2,2)}, {V(oth+q,2)}, {V(cur+q,2)} neg_lo:[0,0,1] neg_hi:[0,0,1]")
            for q in range(4): a(f"v_cvt_pk_bf16_f32 v{F+4*m+q}, v{cur+2*q}, v{cur+2*q+1}")
    def gen_M():
        a(f"""v_cvt_f32_u32 v5, v2
s_and_b32 {T0}, {S_W4}, 1
s_lshl_b32 {T0}, {T0}, 10
s_add_u32 {T0}, {T0}, {S_B}
v_lshl_add_u32 v6, v3, 8, {T0}
v_cvt_f32_u32 v6, v6
v_mul_f32 v6, v6, v5
s_cmp_ge_u32 {S_W4}, 2
s_cselect_b32 {T0}, {lit(0.25)}, 0
v_mov_b32 v7, {T0}
v_fmamk_f32 v6, v6, {lit(1/2048)}, v7
v_mul_f32 v5, {lit(1/32)}, v5""")
        angles(8, "v5", "v6", [8*(j//4) + j%4 for j in range(8)])
        for j in range(8): a(f"v_cos_f32 v{TMP+j}, v{TMP+j}")
        for q in range(4): a(f"v_cvt_pk_bf16_f32 v{ACC+8+q}, v{TMP+2*q}, v{TMP+2*q+1}")
    def gen_MS():
        a(f"""v_lshlrev_b32 v5, 6, v2
v_add_u32 v5, {S_BP}, v5
v_cvt_f32_u32 v5, v5
v_mul_f32 v5, {lit(1/2048)}, v5
s_lshl_b32 {T0}, {S_W4}, 3
v_lshl_add_u32 v6, v3, 2, {T0}
v_cvt_f32_u32 v6, v6
v_mul_f32 v6, v5, v6""")
        angles(4, "v5", "v6", range(4), TMP + 8)
        for j in range(4): a(f"v_cos_f32 v{TMP+2*j}, v{TMP+8+j}\nv_sin_f32 v{TMP+2*j+1}, v{TMP+8+j}")
        a(f"v_mov_b32 v6, {lit(2*sc)}\nv_mov_b32 v7, v6")
        for j in range(4): pk2(a, "mul", TMP+2*j, TMP+2*j, 6, scalar=cfg.nopk & 16)
        for j in range(4):
            a(f"v_cvt_pk_bf16_f32 v{48+j}, v{TMP+2*j}, v{TMP+2*j+1}\nv_cvt_pk_bf16_f32 v{52+j}, v{TMP+2*j+1}, -v{TMP+2*j}")
    def gen_FB():
        a(f"""v_and_b32 v5, 15, v1
s_lshl_b32 {T0}, {S_W4}, 4
v_add_u32 v5, {T0}, v5
v_cvt_f32_u32 v5, v5
v_mul_f32 v5, {lit(1/64)}, v5
v_bfe_u32 v6, v1, 4, 1
v_cvt_f32_u32 v6, v6
v_mul_f32 v6, {lit(0.25)}, v6
v_mul_f32 v7, v5, v4
v_fmamk_f32 v6, v7, {lit(4.0)}, v6""")
        C2 = TMP + 16
        a(f"v_mul_f32 v{C2}, {lit(8.0)}, v5\nv_cos_f32 v{C2}, v{C2}")
        angles(8, "v5", "v6", [8*(j//4) + j%4 for j in range(8)], TMP + 20)
        a(f"v_add_f32 v{C2}, v{C2}, v{C2}")
        for j in range(8): a(f"v_cos_f32 v{TMP+2*j}, v{TMP+20+j}\nv_sin_f32 v{TMP+2*j+1}, v{TMP+20+j}")
        a(f"v_mov_b32 v{C2+1}, v{C2}")
        for m in range(8):
            cur = TMP + 8*(m % 2); oth = TMP + 8*((m + 1) % 2)
            if m >= 2:
                for q in range(0, 8, 2):
                    pk2(a, "fma", cur+q, C2, oth+q, cur+q, neg="2", scalar=cfg.nopk & 16)
            for q in range(4): a(f"v_cvt_pk_bf16_f32 v{FB+4*m+q}, v{cur+2*q}, v{cur+2*q+1}")
    def gen_addr():
        a(f"""v_mov_b32 v{PN+2}, 0
v_lshlrev_b32 v7, 4, v1                   ; v7 = lane*16
v_and_b32 v6, 3, v1
v_lshrrev_b32 v5, 2, v1
v_lshlrev_b32 v5, 16, v5
v_lshl_add_u32 v{P_TST}, v6, 4, v5
s_lshl_b32 {T1}, {S_W4}, 11
s_add_u32 {T0}, {T1}, {L_TT}
v_add_u32 v{P_TTR}, {T0}, v7
v_lshlrev_b32 v5, 6, v2
v_lshl_add_u32 v5, v3, 4, v5
v_add_u32 v{P_TTW}, {T0}, v5
s_lshl_b32 {S_TASK}, {S_XCD}, 5
s_add_u32 {S_TASK}, {S_TASK}, {S_IDX}
s_lshr_b32 {T0}, {S_TASK}, 3
s_lshl_b32 {T2}, {S_W4}, 9
s_add_u32 {T0}, {T0}, {T2}
s_mul_i32 {T0}, {T0}, 225
s_lshl_b32 {T2}, {S_HH}, 5
s_add_u32 {T0}, {T0}, {T2}
v_mul_u32_u24 v5, {128*225}, v3
v_add3_u32 v5, v5, v2, {T0}
v_lshlrev_b32 v{P_W}, 1, v5
v_bfe_u32 v12, v1, 4, 1
v_lshlrev_b32 v5, 2, v2
v_lshl_add_u32 v{P_TLD}, v3, 9, v5
v_lshl_add_u32 v{P_UST}, v3, 17, v5
v_lshl_add_u32 v{P_F2}, v3, 18, v5
v_add_u32 v{P_TBR}, {L_TB}, v7
v_add_u32 v{P_TBW}, {T1}, v{P_TBR}
s_add_u32 {S_K1}, {S_W4}, 3
s_cmp_eq_u32 {S_W4}, 0
s_cselect_b32 {S_K1}, 7, {S_K1}
s_lshl_b32 {T0}, {S_W4}, 12
v_add_u32 v{P_ZW0}, {T0}, v{P_TBR}
s_lshl_b32 {T0}, {S_K1}, 12
v_add_u32 v{P_ZW1}, {T0}, v{P_TBR}
v_bfe_u32 v13, v1, 2, 2
v_lshrrev_b32 v5, 4, v1
v_xor_b32 v{P_WOD}, v13, v5
s_sub_u32 {T0}, {S_CNT}, 1
v_min_u32 v{P_WOD}, {T0}, v{P_WOD}
v_add_u32 v{P_WOD}, {S_CB}, v{P_WOD}
v_lshlrev_b32 v{P_WOD}, 6, v{P_WOD}
v_mul_u32_u24 v5, 896, v5
v_add_u32 v5, v5, v{P_WOD}
v_lshl_add_u32 v5, v6, 4, v5
s_mul_i32 {T0}, {S_W4}, {4*896}
v_add_u32 v{P_WOD}, {T0}, v5
v_xor_b32 v5, {S_W4}, v13
v_lshlrev_b32 v5, 6, v5
v_lshl_add_u32 v5, v13, 8, v5
v_and_b32 v6, 1, v1
v_lshl_add_u32 v5, v6, 5, v5
v_lshl_add_u32 v5, v12, 4, v5
v_bfe_u32 v6, v1, 1, 1
v_lshl_add_u32 v5, v6, 3, v5
v_add_u32 v{P_WOR2}, {L_X}, v5
v_lshl_add_u32 v{P_WOR}, v3, 10, v{P_WOR2}""")
    pieces = [gen_F, gen_FB, gen_M, gen_MS, gen_addr]
    assert cfg.pre >= 1
    def wq_warm():
        a(f"""s_cmp_eq_u32 {S_LC}, 7
s_cbranch_scc0 L_pf1
v_mul_u32_u24 v5, 2688, v1
s_mul_i32 {T0}, {T5}, 3
s_add_u32 {T0}, {T0}, {S_RR}
s_lshl_b32 {T0}, {T0}, 7
s_mul_i32 {T1}, {S_W4}, {128*2688}
s_add_u32 {T0}, {T0}, {T1}
s_add_u32 {T1}, {T0}, {64*2688}
buffer_load_dword v{P_DUM}, v5, {sWQKV}, {T0} offen
buffer_load_dword v{P_DUM}, v5, {sWQKV}, {T1} offen
L_pf1:""")
    def xa_warm():
        a(f"""s_cmp_eq_u32 {S_LC}, 7
s_cbranch_scc0 L_pf6
v_lshlrev_b32 v5, 7, v1
s_lshl_b32 {T0}, {S_RR}, 2
s_add_u32 {T0}, {T0}, {S_W4}
s_mul_i32 {T0}, {T0}, {2*64*896}
s_mul_i32 {T1}, {S_XCD}, {8*896}
s_add_u32 {T0}, {T0}, {T1}
s_add_u32 {T1}, {T0}, {64*896}
s_bfm_b64 exec, 56, 0
buffer_load_dword v{P_DUM}, v5, {sX}, {T0} offen
buffer_load_dword v{P_DUM}, v5, {sX}, {T1} offen
s_mov_b64 exec, -1
L_pf6:""")
    def mall_warm():
        a(f"""s_cmp_eq_u32 {S_LC}, 7
s_cbranch_scc0 L_pf7
s_lshl_b32 {T0}, {S_XCD}, 4
s_lshl_b32 {T1}, {S_RR}, 2
s_add_u32 {T0}, {T0}, {T1}
s_add_u32 {T0}, {T0}, {S_W4}
v_lshlrev_b32 v5, 7, v1""")
        if cfg.mw & 1:
            a(f"""v_lshrrev_b32 v6, 3, v1
v_mul_u32_u24 v6, 2688, v6
v_and_b32 v7, 7, v1
v_min_u32 v7, 6, v7
v_lshl_add_u32 v6, v7, 7, v6
s_mul_i32 {T1}, {T0}, {4*2688}
s_mov_b64 exec, 0xffffffff
buffer_load_dword v{P_DUM}, v6, {sWQKV}, {T1} offen""")
        if cfg.mw & 2: a(f"s_mul_i32 {T1}, {T0}, {25*128}\ns_bfm_b64 exec, 25, 0\nbuffer_load_dword v{P_DUM}, v5, {sWO}, {T1} offen")
        if cfg.mw & 4: a(f"s_mul_i32 {T1}, {T0}, {57*128}\ns_bfm_b64 exec, 57, 0\nbuffer_load_dword v{P_DUM}, v5, {sWR}, {T1} offen")
        if cfg.mw & 8: a(f"s_mul_i32 {T1}, {T0}, {57*128}\ns_bfm_b64 exec, 57, 0\nbuffer_load_dword v{P_DUM}, v5, {sWI}, {T1} offen")
        if cfg.mw & 16: a(f"s_mul_i32 {T1}, {T0}, {112*128}\ns_bfm_b64 exec, 56, 0\nbuffer_load_dword v{P_DUM}, v5, {sX}, {T1} offen")
        a("s_mov_b64 exec, -1\nL_pf7:")
    if cfg.spf:
        a(f"""s_lshl_b32 {T0}, s2, 2
s_add_u32 {T0}, {T0}, {S_W4}
s_mul_i32 {T1}, {T0}, {14*128}
s_add_u32 s76, s4, {T1}
s_addc_u32 s77, s5, 0
s_mul_i32 {T1}, {T0}, 900
s_add_u32 s70, s6, {T1}
s_addc_u32 s71, s7, 0
s_add_u32 s74, s8, {T1}
s_addc_u32 s75, s9, 0""")
    n0 = len(a.L)
    for q in range(cfg.pre):
        pieces.pop(0)()
        if q == 0:
            srd(a, sWQKV, 12, 448 * 2688); srd(a, sX, 4, 0 if cfg.ko & 16 else 2048 * 896)
            srd(a, sWR, 6, 0 if cfg.ko & 1 else 2048 * 450); srd(a, sWI, 8, 0 if cfg.ko & 1 else 2048 * 450); srd(a, sWO, 14, 0 if cfg.ko & 2 else 448 * 896)
        if cfg.mw and cfg.mwpos == q + 1: mall_warm()
        if cfg.xawarm == q + 1: xa_warm()
        if cfg.wqwarm == q + 1: wq_warm()
    if cfg.spf:
        from asmlib import Ins
        pf = [f"s_load_dword s72, s[76:77], {q*128}" for q in range(14)]
        if cfg.spf >= 2: pf += [f"s_load_dword s72, s[{b}:{b+1}], {q*128}" for q in range(7) for b in (70, 74)]
        lo = n0 + cfg.spf0; hi = len(a.L)
        for q in reversed(range(len(pf))): a.L.insert(lo + (hi - lo) * q // len(pf), Ins(pf[q]))
    stamp(a, 1)
    srd(a, sWS, 20, WS_SIZE)
    srd(a, sOUT, 16, 2048 * 1792)
    S_XA, S_WQL, S_WQG = "s70", "s71", "s72"
    XD = 70
    a(f"""v_lshrrev_b32 v6, 3, v1
v_and_b32 v5, 7, v1
v_lshrrev_b32 v8, 4, v1
v_xor_b32 v5, v5, v8
s_and_b32 {T0}, {S_W4}, 1
s_lshl_b32 {T0}, {T0}, 2
v_xor_b32 v5, {T0}, v5
v_mul_u32_u24 v6, {64*896}, v6
s_mul_i32 {T1}, {S_W4}, {8*64*896}
s_mul_i32 {T2}, {S_B}, 896
s_add_u32 {T1}, {T1}, {T2}
v_add_u32 v6, {T1}, v6
v_lshl_add_u32 v{XD}, v5, 4, v6
s_lshl_b32 {T0}, {S_W4}, 10
s_add_u32 {S_XA}, {T0}, {L_X}
s_mov_b32 {T2}, {L_X}""")
    x_read_addrs(a, 8, "v1", T2, TMP)
    a(f"""v_mov_b32 v14, {L_SYNC+128}
v_mov_b32 v15, 1
v_mov_b32 v{P_BC}, {L_SYNC}
s_lshl_b32 {T1}, {S_CG}, 1""")
    lwait(a, f"v{P_BC}", P_LS, 4, 34, sleep=1)
    a(f"""ds_read_b64 {V(PN,2)}, v{P_BC} offset:64
v_lshlrev_b32 v{P_PF}, 7, v1
s_add_u32 s74, s20, {FA1}
s_addc_u32 s75, s21, 0
s_waitcnt lgkmcnt(0)
v_readfirstlane_b32 s62, v{PN}
v_readfirstlane_b32 s63, v{PN+1}
s_lshl_b32 {T0}, s2, 2
s_add_u32 {T0}, {T0}, {S_W4}
s_cmp_lg_u32 {T0}, 0
s_cbranch_scc1 L_noinit
s_mov_b32 {T0}, {FA1}
buffer_store_dwordx2 {V(PN,2)}, v{P_PF}, {sWS}, {T0} offen offset:2048 sc1
s_mov_b32 {T2}, {FA1 + 8192}
buffer_store_dwordx2 {V(PN,2)}, v{P_PF}, {sWS}, {T2} offen offset:2048 sc1
s_mov_b64 exec, 0xff00
buffer_store_dwordx2 {V(PN,2)}, v{P_PF}, {sWS}, {T0} offen sc1
s_waitcnt vmcnt(0)
s_mov_b64 exec, 0xff
buffer_store_dwordx2 {V(PN,2)}, v{P_PF}, {sWS}, {T0} offen sc1
s_mov_b64 exec, -1
L_noinit:""")
    def wpull():
        L1, L2 = a.lab("wp"), a.lab("wp")
        a(f"""s_lshl_b32 {T2}, {S_IDX}, 1
s_lshr_b32 {T3}, {S_W4}, 1
s_add_u32 {T2}, {T2}, {T3}
s_mul_i32 {T2}, {T2}, 14400
s_mul_i32 {T3}, {S_XCD}, 1800
s_add_u32 {T2}, {T2}, {T3}
s_mov_b64 exec, 0x7fff
s_bitcmp1_b32 {S_W4}, 0
s_cbranch_scc1 {L1}
buffer_load_ushort v{P_DUM}, v{P_PF}, {sWR}, {T2} offen
s_branch {L2}
{L1}:
buffer_load_ushort v{P_DUM}, v{P_PF}, {sWI}, {T2} offen
{L2}:
s_mov_b64 exec, -1""")
    stamp(a, 2)
    if cfg.wpf == 2: wpull()
    lwait(a, f"v{P_BC}", P_LS, 4, 20, sleep=1, off=8)
    if cfg.xas:
        a(f"s_mul_i32 {T2}, {S_H}, 7\ns_bfe_u32 {T2}, {T2}, 0x30001\ns_cmp_gt_u32 {T2}, 4\ns_cbranch_scc0 L_xago")
        lwait(a, f"v{P_BC}", P_LS, 4 * cfg.xas, 30, sleep=1, off=4)
        a("L_xago:")
    for c in range(7):
        if c == cfg.xae:
            if cfg.wpf == 1: wpull()
            if cfg.xalate == 1: lwait(a, f"v{P_BC}", P_LS, 4, 38, sleep=1, off=12)
            elif cfg.xalate == 2: lwait(a, f"v{P_BC}", P_LS, 9, 38, sleep=1)
            elif cfg.xafirst: lwait(a, f"v{P_BC}", P_LS, 8, 38)
            else: lwait(a, f"v{P_BC}", P_LS, 4, 38, sleep=1, off=16)
        a(f"""s_add_u32 {T2}, {T1}, 1
s_lshr_b32 {T3}, {T2}, 1
s_lshl_b32 {T3}, {T3}, 14
s_and_b32 {T4}, {T1}, 1
s_lshl_b32 {T4}, {T4}, 12
s_sub_u32 {T3}, {T3}, {T4}
s_add_u32 m0, {S_XA}, {T3}
s_lshl_b32 {T4}, {T1}, 7
buffer_load_dwordx4 v{XD}, {sX}, {T4} offen{' nt' if cfg.nta else ''} lds
s_cmp_eq_u32 {T2}, 7
s_cselect_b32 {T1}, 0, {T2}""")
    for p_ in pieces: p_()
    pieces = []
    assert not pieces
    a(f"""v_add_u32 v13, {L_M}, v7
s_lshl_b32 {T0}, {S_W4}, 10
v_add_u32 v5, {T0}, v13
ds_write_b128 v5, {V(ACC+8,4)}
s_cmp_eq_u32 {S_W4}, 0
s_cbranch_scc0 L_chkd
s_lshl_b32 {T1}, {S_XCD}, 7
s_mov_b32 {S_TO}, {cfg.poll_limit}
L_chk:
s_load_dwordx2 s[76:77], {SB}, {T1} glc
s_waitcnt lgkmcnt(0)
s_sub_u32 s76, s76, s62
s_lshr_b32 s76, s76, 5
s_xor_b32 s77, s77, s63
s_or_b32 s76, s76, s77
s_cbranch_scc0 L_chkd
s_sleep 4
s_sub_u32 {S_TO}, {S_TO}, 1
s_cbranch_scc0 L_chk
s_mov_b32 {S_TO}, 35
s_branch L_fail
L_chkd:""")
    WW = 136 if cfg.woearly else 72; AC = 152; FR = 168; TP = 200
    wl = []
    for r in range(8):
        wl.append(f"s_mov_b32 {T0}, {14400*(8*(r//4) + r%4)}\nbuffer_load_short_d16_hi v{WW+r}, v{P_W}, {sWR}, {T0} offen{' nt' if cfg.ntw else ''}")
        wl.append(f"buffer_load_short_d16_hi v{WW+8+r}, v{P_W}, {sWI}, {T0} offen{' nt' if cfg.ntw else ''}")
    if cfg.wearly:
        for s_ in wl: a(s_)
        a("s_waitcnt vmcnt(16)")
    else: a("s_waitcnt vmcnt(0)")
    stamp(a, 3)
    if cfg.noA == 1:
        a(f"s_mov_b64 exec, 1\nds_add_u32 v14, v15 offset:4\ns_mov_b64 exec, -1")
        stamp(a, 12); dump_stamps(a, 16); a("s_endpgm")
    albar(16)
    RG = cfg.ring
    def xreg(m): return (TMP + 4*m if m < 4 else 72 + 4*(m - 4)) if m < RG else F + 4*(m - RG)
    def xr(m): return f"ds_read_b128 {V(xreg(m),4)}, v{8+m%4} offset:{((m//4+1)>>1)*16384 - ((m//4)&1)*4096}"
    assert not (cfg.wearly and RG > 4)
    for m in range(RG): a(xr(m))
    P1 = F; P2 = F + 16; XP = TMP; M = F + 32
    if cfg.mprio == 0: a("s_setprio 0")
    nds = RG
    for m in range(28):
        a(f"s_waitcnt lgkmcnt({nds - m - 1})")
        a(mfma(ACC, xreg(m), F + 4*m, None if m == 0 else ACC))
        if m + RG < 28: a(xr(m + RG)); nds += 1
        elif m >= 24: a(f"ds_read_b128 {V(M+4*(m-24),4)}, v13 offset:{(m-24)*1024}"); nds += 1
    a(f"s_setprio {cfg.aprio}")
    lwait(a, f"v{P_BC}", P_LS, 8, 27, sleep=1)
    a(f"""s_lshl_b32 {T0}, {S_W4}, 11
s_add_u32 {T0}, {T0}, {L_MS}
v_add_u32 v5, {T0}, v7
ds_write_b128 v5, v[48:51]
ds_write_b128 v5, v[52:55] offset:1024
s_lshr_b32 {T0}, {S_KT16}, 1
s_lshl_b32 {T0}, {T0}, 13
s_lshl_b32 {T1}, {S_B}, 7
s_add_u32 {T1}, {T1}, {TBUF}
s_add_u32 {T0}, {T0}, {T1}
s_and_b32 {T2}, {S_KT16}, 1
s_lshl_b32 {T2}, {T2}, 6
s_add_u32 {T0}, {T0}, {T2}
s_add_u32 {T2}, {T0}, {16*65536}
s_cmp_ge_u32 {S_W4}, {S_CNT}
s_cbranch_scc1 L_a1done
s_waitcnt lgkmcnt(0)""")
    for q in range(8): a(f"v_cvt_pk_bf16_f32 v{XP+q}, v{ACC+2*q}, v{ACC+2*q+1}")
    a(mfma(P1, XP, M)); a(mfma(P2, XP, M + 8)); a(mfma(P1, XP + 4, M + 4, P1)); a(mfma(P2, XP + 4, M + 12, P2))
    for r in range(0, 8, 2):
        pk2(a, "add", ACC+r, P1+r, P2+r+8, neg="1", scalar=cfg.nopk & 4); pk2(a, "add", ACC+8+r, P1+r+8, P2+r, scalar=cfg.nopk & 4)
    for r in range(8): a(f"v_cvt_pk_bf16_f32 v{XP+8+r}, v{ACC+r}, v{ACC+8+r}")
    a(f"""s_cmp_lg_u32 {S_KT16}, 0
s_cbranch_scc1 L_a1st
s_mov_b32 exec_hi, 0
v_cvt_pk_bf16_f32 v{XP+8}, v{P1}, v{P2}
v_cvt_pk_bf16_f32 v6, v{P1+8}, v{P2+8}
v_lshlrev_b32 v5, 16, v2
s_mov_b32 exec_hi, -1
L_a1st:
ds_write_b128 v{P_TTW}, {V(XP+8,4)}
ds_write_b128 v{P_TTW}, {V(XP+12,4)} offset:32
ds_read_b128 {V(XP,4)}, v{P_TTR}
ds_read_b128 {V(XP+4,4)}, v{P_TTR} offset:1024
s_mov_b32 {T4}, {T0}
s_waitcnt lgkmcnt(0)""")
    stamp(a, 1, 5)
    if cfg.tdefer: lwait(a, f"v{P_BC}", P_LS, 4, 28, sleep=1, off=12)
    if cfg.tdelay: a(f"s_sleep {cfg.tdelay}")
    if cfg.tstag:
        for q in (1, 2, 3): a(f"s_cmp_lt_u32 {S_W4}, {q}\ns_cbranch_scc1 L_tst\ns_sleep {cfg.tstag}")
        a("L_tst:")
    a(f"""s_cmp_lg_u32 {S_KT16}, 0
s_cbranch_scc1 L_a1st2
s_mov_b32 exec_hi, 0
s_add_u32 {T1}, {T1}, {7*8192}
buffer_store_dword v6, v5, {sWS}, {T1} offen sc1
s_mov_b32 exec_hi, -1
L_a1st2:
{"s_branch L_a1done" if cfg.ko & 8 else ""}
buffer_store_dwordx4 {V(XP,4)}, v{P_TST}, {sWS}, {T4} offen sc1
{"s_sleep %d" % (cfg.tstag // 2) if cfg.tstag else ""}
buffer_store_dwordx4 {V(XP+4,4)}, v{P_TST}, {sWS}, {T2} offen sc1
L_a1done:""")
    stage_arrive(0)
    stamp(a, 4)
    lwait(a, f"v{P_BC}", P_LS, 4, 29, sleep=1, off=12)
    if cfg.wdelay: a(f"s_sleep {cfg.wdelay}")
    if cfg.wpf == 3: wpull()
    if not cfg.wearly and not cfg.wlate: burst([x + (f"\ns_sleep {cfg.wpace}" if cfg.wpace else "") for x in wl], cfg.th_w)
    if cfg.wopf and not cfg.wolate:
        burst([f"""s_lshl_b32 {T0}, {S_IDX}, 2
s_add_u32 {T0}, {T0}, {S_W4}
s_mul_i32 {T0}, {T0}, {25*128}
s_bfm_b64 exec, 25, 0
buffer_load_dword v{P_DUM}, v{P_PF}, {sWO}, {T0} offen
s_mov_b64 exec, -1"""], 1)
    if cfg.ohint:
        for q in range(4): a(f"v_mov_b32 v{TP+q}, -1")
        a(f"""s_lshr_b32 {T0}, {S_XCD}, 1
s_lshl_b32 {T0}, {T0}, 2
s_add_u32 {T0}, {T0}, {S_RR}
s_lshl_b32 {T0}, {T0}, 2
s_add_u32 {T0}, {T0}, {S_W4}
s_lshl_b32 {T0}, {T0}, 4
s_add_u32 {T0}, {T0}, {S_H}
s_lshl_b32 {T0}, {T0}, 11
s_add_u32 {T0}, {T0}, {OBUF}""")
        a(f"s_mov_b32 s72, {T0}")
        marks = [f"buffer_store_dwordx4 {V(TP,4)}, v7, {sWS}, s72 offen offset:{1024*q} sc1" for q in range(2)]
        if not cfg.wolate: burst(marks, 2)
    WO = 72
    S_WOL = "s70"
    a(f"s_lshl_b32 {S_WOL}, {S_W4}, 10\ns_add_u32 {S_WOL}, {S_WOL}, {L_X}")
    def wo_list(rnd):
        return [f"s_add_u32 m0, {S_WOL}, {i*4096}\ns_mov_b32 s71, {(rnd*224 + i*16)*896}\nbuffer_load_dwordx4 v{P_WOD}, {sWO}, s71 offen lds" for i in range(14)]
    def ride(q, n=1):
        it = [q.pop(0) for _ in range(min(n, len(q)))]
        if it: burst(it, n)
        pace()
    def wo_rd(f, d, r1, r2):
        hl, mu = f // 2, f % 2
        return [f"ds_read_b64_tr_b16 {V(d+2*sec,2)}, v{r2 if (mu and sec) else r1} offset:{(28*hl + 16*mu + 8*sec)*256}" for sec in range(2)]
    def wo_reads(h):
        for f in range(16):
            for s_ in wo_rd(f, WO + 64*h + 4*f, P_WOR, P_WOR2): a(s_)
    assert cfg.allpoll
    if cfg.woearly:
        assert cfg.wlate and not cfg.wolate
        lwait(a, "v14", P_LS, 4, 45, sleep=2, off=8)
        burst(wo_list(0), cfg.th_wo)
        a("s_waitcnt vmcnt(0)")
        albar(46)
        wo_reads(0)
    stamp(a, 5)
    stage_wait(0, cfg.a2wait)
    a(f"s_lshl_b32 {T1}, {S_W4}, 11")
    stamp(a, 6)
    a(f"""s_lshl_b32 {T0}, {S_TASK}, 13
s_add_u32 {T0}, {T0}, {T1}
s_add_u32 {T0}, {T0}, {TBUF}""")
    burst([f"buffer_load_dword v{FR+q}, v{P_TLD}, {sWS}, {T0} offen offset:{(q//4)*1024 + (q%4)*128} sc1" for q in range(8)], 8)
    a(f"s_waitcnt vmcnt(0)\nds_write_b128 v{P_TBW}, {V(FR,4)}\nds_write_b128 v{P_TBW}, {V(FR+4,4)} offset:1024" if not cfg.wlate else "")
    if cfg.wlate:
        burst(wl, 24)
        a(f"s_waitcnt vmcnt(16)\nds_write_b128 v{P_TBW}, {V(FR,4)}\nds_write_b128 v{P_TBW}, {V(FR+4,4)} offset:1024")
    stamp(a, 1, 4)
    albar(6)
    stamp(a, 2, 4)
    def dft64(base):
        for m in range(8): a(f"ds_read_b128 {V(FR+4*m,4)}, v{P_TBR} offset:{base + m*1024}")
        if cfg.mprio == 0: a("s_setprio 0")
        for m in range(8):
            a(f"s_waitcnt lgkmcnt({7-m})")
            a(mfma(AC, FB + 4*m, FR + 4*m, None if m == 0 else AC))
            if cfg.mprio: ride(woq)
            elif woq: a(woq.pop(0))
        a(f"s_setprio {cfg.aprio}")
    woq = marks if cfg.wolate else wo_list(1 if cfg.woearly else 0)
    dft64(0)
    a(f"s_waitcnt vmcnt({2 if cfg.wolate else 8})\ns_cmp_eq_u32 {S_HH}, 7\ns_cbranch_scc0 L_a2nx")
    for r in range(8):
        a(f"v_mov_b32 v{TP}, v{WW+r}\nv_xor_b32 v{WW+r}, 0x80000000, v{WW+8+r}\nv_mov_b32 v{WW+8+r}, v{TP}")
    a("L_a2nx:")
    for r in range(0, 8, 2):
        a(f"""v_pk_mul_f32 {V(FR+r,2)}, {V(AC+r,2)}, {V(WW+r,2)}
v_pk_mul_f32 {V(FR+8+r,2)}, {V(AC+r,2)}, {V(WW+8+r,2)}
v_pk_fma_f32 {V(FR+r,2)}, {V(AC+8+r,2)}, {V(WW+8+r,2)}, {V(FR+r,2)} neg_lo:[1,0,0] neg_hi:[1,0,0]
v_pk_fma_f32 {V(FR+8+r,2)}, {V(AC+8+r,2)}, {V(WW+r,2)}, {V(FR+8+r,2)} neg_lo:[1,0,1] neg_hi:[1,0,1]
v_cvt_pk_bf16_f32 v{TP+r}, v{FR+r}, v{FR+8+r}
v_cvt_pk_bf16_f32 v{TP+r+1}, v{FR+r+1}, v{FR+8+r+1}""")
    a(f"ds_write_b128 v{P_TBW}, {V(TP,4)} offset:8192\nds_write_b128 v{P_TBW}, {V(TP+4,4)} offset:9216")
    stamp(a, 3, 4)
    albar(7)
    stamp(a, 4, 4)
    dft64(8192)
    if cfg.uinp:
        a(f"s_lshl_b32 {T0}, {S_TASK}, 13\ns_lshl_b32 {T1}, {S_W4}, 11\ns_add_u32 {T0}, {T0}, {T1}\ns_add_u32 {T0}, {T0}, {TBUF}")
    else:
        a(f"""s_lshl_b32 {T0}, {S_HH}, 12
s_lshr_b32 {T1}, {S_TASK}, 3
s_lshl_b32 {T1}, {T1}, 7
s_add_u32 {T0}, {T0}, {T1}
s_add_u32 {T0}, {T0}, {UBUF}
s_lshl_b32 {T1}, {S_W4}, 19
s_add_u32 {T0}, {T0}, {T1}""")
    for r in range(8): a(f"v_cvt_pk_bf16_f32 v{TP+r}, v{AC+r}, v{AC+8+r}")
    stamp(a, 5, 4)
    a(f"s_cmp_eq_u32 {S_HH}, {S_HH if cfg.ko & 8 else 7}\ns_cselect_b32 exec_lo, 1, -1\ns_cselect_b32 exec_hi, 1, -1")
    if cfg.uinp:
        burst([f"buffer_store_dword v{TP+r}, v{P_TLD}, {sWS}, {T0} offen offset:{(r//4)*1024 + (r%4)*128} sc1" for r in range(8)], 8)
    else:
        burst([f"s_add_u32 {T1}, {T0}, {(8*(r//4) + r%4) * USTR}\nbuffer_store_dword v{TP+r}, v{P_UST}, {sWS}, {T1} offen sc1" for r in range(8)], 8)
    a("s_mov_b64 exec, -1")
    stage_arrive(1)
    stamp(a, 7)
    U0 = 16; U1 = 32; AR = 200; AI = 216
    MSR = [48, 52, 56, 60, 64, 68, 232, 240]
    if cfg.wolate:
        burst(wo_list(0), cfg.th_wo)
        a("s_waitcnt vmcnt(0)")
    albar(4)
    wo_reads(1 if cfg.woearly else 0)
    for q in range(8): a(f"ds_read_b128 {V(MSR[q],4)}, v7 offset:{L_MS + q*1024}")
    if not cfg.woearly:
        albar(24)
        if not cfg.wolate: burst(wo_list(1), cfg.th_wo)
    stage_wait(1, 0 if cfg.wolate else cfg.a3wait)
    stamp(a, 8)
    if cfg.uinp:
        a(f"""s_lshl_b32 {T0}, {S_BP}, 7
s_add_u32 {T0}, {T0}, {TBUF}
s_lshl_b32 {T1}, {S_W4}, 13
s_lshl_b32 {T3}, {S_K1}, 13
s_add_u32 {T2}, {T0}, {T3}
s_add_u32 {T1}, {T0}, {T1}""")
        burst([f"s_add_u32 {T0}, {T1 if q < 16 else T2}, {(8*((q%16)//4) + q%4) * 65536}\nbuffer_load_dword v{U0+q}, v{P_F2}, {sWS}, {T0} offen sc1" for q in range(32)], cfg.th_u)
    else:
        a(f"""s_lshl_b32 {T0}, {S_BP}, 15
s_add_u32 {T0}, {T0}, {UBUF}
s_lshl_b32 {T1}, {S_W4}, 12
s_lshl_b32 {T3}, {S_K1}, 12
s_add_u32 {T2}, {T0}, {T3}
s_add_u32 {T1}, {T0}, {T1}""")
        burst([f"buffer_load_dword v{U0+q}, v{P_TLD}, {sWS}, {T1 if q < 16 else T2} offen offset:{((q%16)//4)*1024 + (q%4)*128} sc1" for q in range(32)], cfg.th_u)
    if cfg.wolate: burst(wo_list(1), 46)
    elif not cfg.woearly:
        a("s_waitcnt vmcnt(32)")
        albar(10)
        wo_reads(1)
    stamp(a, 11, 4)
    a(f"""s_lshl_b32 {T4}, {S_BP}, 2
s_add_u32 {T4}, {T4}, {S_W4}
s_lshl_b32 {T3}, {T4}, 13
s_add_u32 {T3}, {T3}, {OBUF}
s_add_u32 {T2}, {T3}, 4096
s_and_b32 {T4}, {S_BP}, 60
s_add_u32 {T4}, {T4}, {S_W4}
s_lshl_b32 {T4}, {T4}, 9
s_add_u32 {T4}, {T4}, {FO}
s_lshl_b32 {T1}, {S_W4}, 13
v_add_u32 v9, {T1}, v7""")
    def step6(ur, ui, va, last):
        if last and cfg.apoll: a(poll_issue(f"v{P_PF}", T4, P_PS, 4))
        if cfg.mprio == 0: a("s_setprio 0")
        for m in range(4):
            a(mfma(AR, ur + 4*m, MSR[2*m], None if m == 0 else AR))
            if cfg.pace6: a(f"s_sleep {cfg.pace6}")
            a(mfma(AI, ui + 4*m, MSR[2*m+1], None if m == 0 else AI))
            if cfg.pace6: a(f"s_sleep {cfg.pace6}")
        a(f"s_setprio {cfg.aprio}")
        for q in range(16):
            a(f"v_cvt_pk_bf16_f32 v{ur+q}, v{AR+2*q}, v{AR+2*q+1}")
            if q % 4 == 3: a(f"ds_write_b128 v{va}, {V(ur+q-3,4)} offset:{(q//4)*1024}")
    if cfg.s6late: lwait(a, f"v{P_BC}", P_LS, 20, 37, sleep=2)
    a(f"s_waitcnt vmcnt({14 if cfg.wolate else 0})\ns_cmp_eq_u32 {S_W4}, 0\ns_cbranch_scc1 L_a3w0")
    step6(U0, U0, P_ZW0, False)
    step6(U1, U1, P_ZW1, True)
    a(f"s_branch L_a3z\nL_a3w0:\ns_mov_b32 exec_lo, -2\ns_mov_b32 exec_hi, -2")
    for q in range(16): a(f"v_mov_b32 v{U1+q}, v{U0+q}")
    a("s_mov_b64 exec, -1")
    step6(U0, U1, P_ZW0, True)
    a("L_a3z:\ns_mov_b64 exec, 1\nds_add_u32 v14, v15 offset:4\ns_mov_b64 exec, -1")
    stamp(a, 9)
    if cfg.wolate:
        a(f"s_waitcnt vmcnt({1 if cfg.apoll else 0})")
        lbar(a, "v14", "v15", P_LS, 10)
        wo_reads(1)
    osc = ("", " sc1", " nt", " sc0 sc1")[cfg.outsc]
    def out_store(rowmul, colbase, skip):
        a(f"""v_mul_u32_u24 v5, {rowmul}, v2
v_lshl_add_u32 v5, v3, 5, v5
s_lshl_b32 {T1}, {S_DT}, 6
s_add_u32 {T0}, {T0}, {T1}
s_add_u32 {T0}, {T0}, {colbase}
s_cmp_ge_u32 {S_W4}, {S_CNT}
s_cbranch_scc1 {skip}""")
        for q in range(4): a(f"v_cvt_pk_bf16_f32 v{64+q}, v{AR+2*q}, v{AR+2*q+1}")
        a(f"buffer_store_dwordx4 v[64:67], v5, {sOUT}, {T0} offen{osc}")
        for q in range(4, 8): a(f"v_cvt_pk_bf16_f32 v{64+q}, v{AR+2*q}, v{AR+2*q+1}")
        a(f"buffer_store_dwordx4 v[68:71], v5, {sOUT}, {T0} offen offset:16{osc}\n{skip}:")
    stamp(a, 10)
    a(f"s_mov_b32 s71, {cfg.poll_limit}")
    if cfg.apoll: a(f"s_waitcnt vmcnt(0)\n{poll_check(P_PS, 4)}\ns_cbranch_scc0 L_aoload")
    poll(a, f"v{P_PF}", T4, P_PS, 4, 42, sleep=cfg.osleep)
    a("L_aoload:")
    for q in range(8):
        a(f"buffer_load_dwordx4 {V(16+4*q,4)}, v7, {sWS}, {T3 if q < 4 else T2} offen offset:{(q%4)*1024} sc1")
    stamp(a, 13)
    lwait(a, f"v{P_BC}", P_LS, 24, 43, sleep=1)
    for q in range(8):
        a(f"s_waitcnt vmcnt({7-q})\nds_write_b128 v9, {V(16+4*q,4)} offset:{L_OB + q*1024}")
        if q == 2: a("v_max3_u32 v5, v16, v20, v24")
        if q in (4, 6): a(f"v_max3_u32 v5, v5, v{12+4*q}, v{16+4*q}")
    a(f"""v_max_u32 v5, v5, v44
v_cmp_eq_u32 vcc, -1, v5
s_cbranch_vccz L_aogot
s_sleep 6
s_sub_u32 s71, s71, 1
s_cbranch_scc0 L_aoload
s_mov_b32 {S_TO}, 44
s_branch L_fail
L_aogot:
s_mov_b64 exec, 1
ds_add_u32 v{P_BC}, v15 offset:20
s_mov_b64 exec, -1""")
    lwait(a, f"v{P_BC}", P_LS, 4, 12, off=20)
    stamp(a, 11)
    OR = 216
    def zr(s_): return f"ds_read_b128 {V(OR+4*(s_%8),4)}, v7 offset:{L_OB + s_*1024}"
    for s_ in range(8): a(zr(s_))
    for s_ in range(32):
        a(f"s_waitcnt lgkmcnt({min(7, 31-s_)})")
        a(mfma(AR, WO + 4*s_, OR + 4*(s_ % 8), None if s_ == 0 else AR))
        if s_ + 8 < 32: a(zr(s_ + 8))
    a(f"s_mul_i32 {T0}, {S_BP}, {32*1792}")
    out_store(1792, 896, "L_b3done")
    a(f"""s_lshl_b32 {T0}, s2, 2
s_add_u32 {T0}, {T0}, {S_W4}
s_cmp_lg_u32 {T0}, 0
s_cbranch_scc1 L_noep
s_mov_b32 {T0}, {EPOCH}""")
    flag(a, T0, 10)
    a("L_noep:")
    if cfg.padend: padto(a, cfg.padend)
    stamp(a, 12)
    dump_stamps(a, 16)
    a("s_endpgm")

def build():
    nh = cfg.nh; xh = 16 // nh
    for wg in range(256):
        xcd, idx = wg & 7, wg >> 3
        h = (xcd % xh) * nh + idx % nh
        assert nh == 8
    a = Asm()
    prologue(a); role_B(a); ROLE[0] = 1; role_A(a)
    a(f"""L_fail:
v_mov_b32 v0, 0
v_mov_b32 v1, {S_TO}
global_store_dword v0, v1, s[18:19]
L_end:
s_endpgm
L_codeend:""")
    a.pad()
    import os
    ref = "cdna_kernels/" + NAME + ".s.ref"
    hdr = open(ref).read().split("; Override launch")[0] if os.path.exists(ref) else ""
    s = hdr + f"; @launch grid=(256,1,1) block=(512,1,1) lds={LDS_SIZE}\n"
    s += f""".amdgcn_target "amdgcn-amd-amdhsa--gfx950"
.text
.globl {NAME}_kernel
.p2align 8
.type {NAME}_kernel,@function
{NAME}_kernel:
""" + a.text() + f""".section .rodata,"a"
.p2align 6
.amdhsa_kernel {NAME}_kernel
  .amdhsa_next_free_vgpr 256
  .amdhsa_next_free_sgpr 102
  .amdhsa_accum_offset 256
  .amdhsa_group_segment_fixed_size 0
  .amdhsa_kernarg_size 72
  .amdhsa_user_sgpr_count 2
  .amdhsa_user_sgpr_kernarg_segment_ptr 1
  .amdhsa_system_sgpr_workgroup_id_x 1
.end_amdhsa_kernel
"""
    return s

if __name__ == "__main__":
    out = sys.argv[1]
    for kv in sys.argv[2:]:
        k, v = kv.split("=")
        setattr(cfg, k, type(getattr(cfg, k))(int(v)))
    open(out, "w").write(build())
```

```python
import sys, math, struct
from asmlib import Asm

NAME = "concat_heads__spectral_gfnet__softmax_full_mha__prompt"

class Cfg:
    nh = 8
    stamps = False
    poll_limit = 1 << 17
    noA = 0
    pxcd = -1
    probe = -1
    span = 0
    fine = 0
    padend = 0
    padmid = 0
    dbgwave = -1
    nbuf = 5
    wearly = 0
    touch = 0
    wdelay = 30
    tdelay = 0
    s6late = 0
    lsl = 4
    odefer = 0
    a2wait = 8
    a3wait = 0
    kvwait = 8
    kvrot = 3
    m1 = 12
    ramp = 1
    gate = 2
    wqe = 3
    wqp = 7
    tdefer = 1
    m2 = 27
    xas = 0
    xae = 2
    bhi = 56
    ohint = 1
    wlate = 1
    allpoll = 1
    otry = 1
    gsplit = 8
    claim = 1
    btry = 0
    pace6 = 0
    wolate = 0
    wsoff = 0
    mprio = 0
    xawarm = 0
    wpace = 0
    tstag = 0
    xafirst = 1
    mw = 2
    mwpos = 1
    wqdel = 0
    ring = 8
    apoll = 1
    osleep = 2
    fprio = 0
    nta = 1
    ntw = 1
    ntb = 0
    bsleep = 2
    qst = 0x133
    wopf = 0
    uinp = 1
    woearly = 0
    hack = 0
    ko = 0
    xalate = 0
    nopk = 23
    gtab = 2981409204
    kvp = 1
    owait = 4
    xrot = 0x06543210
    wrot = 1
    pace = 1
    xadefer = 0
    wpf = 0
    outsc = 0
    wqwarm = 1
    th_wo = 14
    th_u = 32
    th_wq = 2
    wqearly = 1
    th_w = 17
    th_xa = 4
    wfair = 8
    xearly = 1
    spf = 0
    spf0 = 150
    pre = 5
    aprio = 2
    force_fb = False
cfg = Cfg()

EPOCH = 0
KV = 0x20000; TS = 61440; VOFF = 28672
OBUF = 0x400000
TBUF = 0x600000
UBUF = 0x800000; USTR = 32768
FKV = 0x8000; FA1 = 0x1000; FO = 0x10000
STAMP = 0xB00000
WS_SIZE = 0x1000000
L_W = 0; L_WQ = 57344; L_X = 86016; L_Q = 151552; L_SYNC = 159744
LDS_SIZE = 160000
L_RED = 0
L_TB = L_WQ; L_YB = L_WQ + 8192; L_MS = 49152; L_TT = L_X + 4096; L_M = L_X + 61440
L_ZB = L_WQ; L_OB = 0
sWS, sWQKV, sX, sWR, sWI, sWO, sOUT = [f"s[{i}:{i+3}]" for i in (24, 28, 32, 36, 40, 44, 48)]
S_WAVE, S_XCD, S_IDX, S_H, S_R, S_W4 = "s56", "s57", "s58", "s59", "s60", "s61"
S_NONCE = "s[62:63]"
S_TO, S_BAR = "s64", "s65"
T0, T1, T2, T3, T4, T5 = "s66", "s67", "s68", "s69", "s22", "s23"
STAMP0 = 84

ZREADY = 24

def f2u(x): return struct.unpack("<I", struct.pack("<f", x))[0]
def lit(x): return "0x%08x" % f2u(x)
def V(a, n=1): return f"v{a}" if n == 1 else f"v[{a}:{a+n-1}]"

def srd(a, name, lo, size):
    i = int(name[2:name.index(":")])
    a(f"s_mov_b32 s{i}, s{lo}\ns_mov_b32 s{i+1}, s{lo+1}\ns_mov_b32 s{i+2}, {size}\ns_mov_b32 s{i+3}, 0x20000")

ROLE = [0]
def stamp(a, i, fine=0):
    if cfg.probe >= 0:
        if not fine and cfg.probe == ROLE[0] * 100 + i:
            a("s_memrealtime s[96:97]\ns_waitcnt lgkmcnt(0)")
        return
    if cfg.fine in (1, 2) and not fine and 3 <= i <= 11: return
    if cfg.fine == 4 and not fine and i in (1, 2, 3, 4, 5, 10, 11, 13): return
    if fine and cfg.fine != fine: return
    if cfg.stamps:
        a(f"s_memtime s[100:101]\ns_waitcnt lgkmcnt(0)\ns_mov_b32 s{STAMP0+i}, s100")

def st0():
    o = f"s_add_u32 s20, s20, {cfg.wsoff << 20}\ns_addc_u32 s21, s21, 0\n" if cfg.wsoff else ""
    return o + (f"s_mov_b32 s{STAMP0+15}, s100\ns_mov_b32 s{STAMP0}, s38" if cfg.stamps else "")

def dump_stamps(a, vt):
    if cfg.probe >= 0:
        if cfg.probe // 100 == ROLE[0]:
            L = a.lab("pr")
            if cfg.pxcd >= 0: a(f"s_cmp_lg_u32 {S_XCD}, {cfg.pxcd}\ns_cbranch_scc1 {L}x")
            if cfg.probe % 100 == 99: a("s_mov_b32 s96, s100")
            a(f"s_sub_u32 s96, s96, s100\ns_add_u32 s96, s96, 2600\n{L}:\ns_memrealtime s[98:99]\ns_waitcnt lgkmcnt(0)\ns_sub_u32 s98, s98, s100\ns_cmp_lt_u32 s98, s96\ns_cbranch_scc1 {L}\n{L}x:")
        return
    if cfg.span:
        a(f"s_memrealtime s[98:99]\ns_lshl_b32 {T0}, s2, 3\ns_add_u32 {T0}, {T0}, {S_WAVE}\ns_lshl_b32 {T0}, {T0}, 3\ns_add_u32 {T0}, {T0}, {STAMP}\ns_waitcnt lgkmcnt(0)")
        a(f"v_mov_b32 v{vt}, s100\nv_mov_b32 v{vt+1}, s98\nv_mov_b32 v{vt+2}, 0\ns_mov_b64 exec, 1\nbuffer_store_dwordx2 {V(vt,2)}, v{vt+2}, {sWS}, {T0} offen\ns_mov_b64 exec, -1")
    if not cfg.stamps: return
    a(f"s_memrealtime s[100:101]\ns_waitcnt lgkmcnt(0)\ns_mov_b32 s{STAMP0+14}, s100")
    if cfg.dbgwave >= 0:
        L = a.lab("nodbg")
        a(f"s_lshl_b32 {T0}, s2, 3\ns_add_u32 {T0}, {T0}, {S_WAVE}\ns_cmp_lg_u32 {T0}, {cfg.dbgwave}\ns_cbranch_scc1 {L}")
        a(f"v_mov_b32 v{vt+4}, 0\ns_mov_b64 exec, 1")
        for i in range(1, 16):
            a(f"s_sub_u32 {T1}, s{STAMP0+i}, s{STAMP0 + (15 if i >= 14 else 0)}\nv_mov_b32 v{vt}, {T1}\nglobal_store_dword v{vt+4}, v{vt}, s[18:19] offset:{4*i}")
        a(f"s_mov_b64 exec, -1\n{L}:")
    a(f"s_lshl_b32 {T0}, s2, 3\ns_add_u32 {T0}, {T0}, {S_WAVE}\ns_lshl_b32 {T0}, {T0}, 7\ns_add_u32 {T0}, {T0}, {STAMP}")
    a(f"v_mov_b32 v{vt+4}, 0\ns_mov_b64 exec, 1")
    for q in range(4):
        for i in range(4): a(f"v_mov_b32 v{vt+i}, s{STAMP0+4*q+i}")
        a(f"buffer_store_dwordx4 {V(vt,4)}, v{vt+4}, {sWS}, {T0} offen offset:{16*q}")
    a("s_mov_b64 exec, -1")

def padto(a, ticks):
    L = a.lab("pad")
    a(f"{L}:\ns_memrealtime s[100:101]\ns_waitcnt lgkmcnt(0)\ns_sub_u32 s100, s100, s{STAMP0+15}\ns_cmp_lt_u32 s100, {ticks}\ns_cbranch_scc1 {L}")

def poll_issue(vaddr, soff, vt, n):
    return f"""v_mov_b32 v{vt}, 0
v_mov_b32 v{vt+1}, 0
s_bfm_b64 exec, {n}, 0
buffer_atomic_or_x2 {V(vt,2)}, {vaddr}, {sWS}, {soff} offen sc0 sc1
s_mov_b64 exec, -1"""

def poll_check(vt, n):
    return f"v_cmp_ne_u64 vcc, {S_NONCE}, {V(vt,2)}\ns_and_b32 vcc_lo, vcc_lo, {hex((1 << n) - 1)}"

def poll(a, vaddr, soff, vt, n, code, sleep=2):
    L, Dn = a.lab("poll"), a.lab("polld")
    a(f"""s_mov_b32 {S_TO}, {cfg.poll_limit}
{L}:
{poll_issue(vaddr, soff, vt, n)}
s_waitcnt vmcnt(0)
{poll_check(vt, n)}
s_cbranch_scc0 {Dn}
s_sleep {sleep}
s_sub_u32 {S_TO}, {S_TO}, 1
s_cbranch_scc0 {L}
s_mov_b32 {S_TO}, {code}
s_branch L_fail
{Dn}:""")

def publish_wg(a, vsync, vone, off, vt, soff, vn, last=3):
    L = a.lab("pub")
    a(f"""s_mov_b64 exec, 1
ds_add_rtn_u32 v{vt}, {vsync}, {vone} offset:{off}
s_waitcnt lgkmcnt(0)
v_readfirstlane_b32 {T0}, v{vt}
s_cmp_eq_u32 {T0}, {last}
s_cselect_b64 exec, 1, 0
buffer_store_dwordx2 {V(vn,2)}, v{vn+2}, {sWS}, {soff} offen sc1
s_mov_b64 exec, -1""")

def flag(a, soff, vt):
    a(f"""v_mov_b32 v{vt}, s62
v_mov_b32 v{vt+1}, s63
v_mov_b32 v{vt+2}, 0
s_mov_b64 exec, 1
buffer_store_dwordx2 {V(vt,2)}, v{vt+2}, {sWS}, {soff} offen sc1
s_mov_b64 exec, -1""")

def flag2(a, soff, vn):
    a(f"s_mov_b64 exec, 1\nbuffer_store_dwordx2 {V(vn,2)}, v{vn+2}, {sWS}, {soff} offen sc1\ns_mov_b64 exec, -1")

def lwait(a, vsync, vt, target, code, sleep=0, off=0):
    L, Dn = a.lab("lw"), a.lab("lwd")
    a(f"""s_mov_b32 {S_TO}, {cfg.poll_limit * 8}
{L}:
ds_read_b32 v{vt}, {vsync} offset:{off}
s_waitcnt lgkmcnt(0)
v_readfirstlane_b32 {T0}, v{vt}
s_cmp_ge_u32 {T0}, {target}
s_cbranch_scc1 {Dn}
{"s_sleep %d" % sleep if sleep else ""}
s_sub_u32 {S_TO}, {S_TO}, 1
s_cbranch_scc0 {L}
s_mov_b32 {S_TO}, {code}
s_branch L_fail
{Dn}:""")

def lbar(a, vsync, vone, vt, code, sleep=0):
    L, Dn = a.lab("lb"), a.lab("lbd")
    a(f"""s_add_u32 {S_BAR}, {S_BAR}, 4
s_mov_b64 exec, 1
ds_add_u32 {vsync}, {vone}
s_mov_b64 exec, -1
s_mov_b32 {S_TO}, {cfg.poll_limit * 8}
{L}:
ds_read_b32 v{vt}, {vsync}
s_waitcnt lgkmcnt(0)
v_readfirstlane_b32 {T0}, v{vt}
s_cmp_ge_u32 {T0}, {S_BAR}
s_cbranch_scc1 {Dn}
{"s_sleep %d" % sleep if sleep else ""}
s_sub_u32 {S_TO}, {S_TO}, 1
s_cbranch_scc0 {L}
s_mov_b32 {S_TO}, {code}
s_branch L_fail
{Dn}:""")

def mfma(d, A, B, C=None):
    return f"v_mfma_f32_32x32x16_bf16 {V(d,16)}, {V(A,4)}, {V(B,4)}, {'0' if C is None else V(C,16)}"

def pk2(a, op, d, x, y, z=None, neg="", scalar=False):
    srcs = [x, y] + ([z] if z is not None else [])
    if not scalar:
        m = "[" + ",".join("1" if str(i) in neg else "0" for i in range(len(srcs))) + "]"
        a(f"v_pk_{op}_f32 {V(d,2)}, " + ", ".join(V(r,2) for r in srcs) + (f" neg_lo:{m} neg_hi:{m}" if neg else ""))
        return
    for q in range(2):
        if op == "add" and neg == "1": a(f"v_sub_f32 v{d+q}, v{x+q}, v{y+q}")
        else: a(f"v_{op}_f32 v{d+q}, " + ", ".join(("-" if str(i) in neg else "") + f"v{r+q}" for i, r in enumerate(srcs)))

def mod7(a, s, t):
    a(f"s_mul_i32 {t}, {s}, 9363\ns_lshr_b32 {t}, {t}, 16\ns_mul_i32 {t}, {t}, 7\ns_sub_u32 {s}, {s}, {t}")

def x_read_addrs(a, v0, vl, base_s, t):
    a(f"""v_and_b32 v{t}, 31, {vl}
v_lshrrev_b32 v{t+1}, 5, {vl}
v_bfe_u32 v{t+2}, {vl}, 1, 3
v_xor_b32 v{t+1}, v{t+1}, v{t+2}
v_lshlrev_b32 v{t}, 7, v{t}
v_add_u32 v{t}, {base_s}, v{t}""")
    for mm in range(4):
        a(f"v_xor_b32 v{t+2}, {2*mm}, v{t+1}\nv_lshl_add_u32 v{v0+mm}, v{t+2}, 4, v{t}")


S_HH, S_RR, S_J, S_P0, S_LC = "s52", "s53", "s54", "s55", "s3"

def prologue(a):
    a(f"""s_cmp_ge_u32 s2, 256
s_cbranch_scc1 L_end
s_load_dwordx16 s[4:19], s[0:1], 0
s_load_dwordx2 s[20:21], s[0:1], 64""")
    if cfg.span or cfg.probe >= 0: a("s_memrealtime s[100:101]")
    if cfg.stamps:
        a(f"s_memtime s[38:39]\ns_memrealtime s[100:101]")
        for i in range(1, 15): a(f"s_mov_b32 s{STAMP0+i}, 0")
    a(f"""s_lshr_b32 {S_IDX}, s2, 3
s_getpc_b64 s[70:71]
L_pc:
v_lshrrev_b32 v3, 5, v0
v_lshl_add_u32 v3, {S_IDX}, 4, v3
v_lshlrev_b32 v3, 7, v3
v_min_u32 v3, L_codeend-L_pc-4, v3
global_load_dword v255, v3, s[70:71]
v_lshrrev_b32 v2, 6, v0
v_and_b32 v1, 63, v0
v_readfirstlane_b32 {S_WAVE}, v2
s_and_b32 {S_XCD}, s2, 7
s_and_b32 {S_HH}, {S_IDX}, 7
s_lshr_b32 {S_RR}, {S_IDX}, 3
s_and_b32 {T5}, {S_XCD}, 1
s_lshl_b32 {S_H}, {T5}, 3
s_add_u32 {S_H}, {S_H}, {S_HH}
s_lshl_b32 {T0}, {S_HH}, 2
s_cmp_eq_u32 {T5}, 0
s_cselect_b32 {S_LC}, 0x67543210, s2
s_cselect_b32 {S_LC}, {S_LC}, 0x65432170
s_lshr_b32 {S_LC}, {S_LC}, {T0}
s_and_b32 {S_LC}, {S_LC}, 7
s_and_b32 {S_W4}, {S_WAVE}, 3
s_cmp_ge_u32 {S_WAVE}, 4
s_cbranch_scc1 L_roleA""")

def nonce(a):
    a(f"""s_waitcnt lgkmcnt(0)
s_mul_i32 s62, s62, 0x9E3779B1
s_add_u32 s62, s62, 0x7F4A7C15
s_mul_i32 s63, s63, 0x85EBCA6D
s_add_u32 s63, s63, 0x165667B1""")

def role_B(a):
    X = 16; ACC = 128; WB = 160; PK = 224
    SC = 70
    S_XL, S_TILE, S_I = "s77", "s78", "s79"
    TO = 36
    S_WM, S_WO, S_DM, S_DO = "s80", "s81", "s82", "s83"
    a(f"""s_setprio 3
s_mul_i32 {S_J}, {T5}, 7
s_add_u32 {S_J}, {S_J}, {S_LC}
v_lshrrev_b32 v8, 3, v1
v_and_b32 v9, 7, v1
v_mul_u32_u24 v2, 2688, v8
v_bfe_u32 v3, v1, 4, 1
v_lshlrev_b32 v3, 2, v3
v_xor_b32 v3, v9, v3
v_lshl_add_u32 v2, v3, 4, v2
s_lshl_b32 {T0}, {S_J}, 7
s_mul_i32 {T1}, {S_W4}, {8*2688}
s_add_u32 {T0}, {T0}, {T1}
s_add_u32 {T0}, {T0}, 896
v_add_u32 v2, {T0}, v2
s_lshl_b32 {T2}, {S_RR}, 3
s_lshr_b32 {T0}, {0xD66D0770 if cfg.wrot else 0x70707070}, {T2}
s_bfe_u32 {T1}, {T0}, 0x40004
s_and_b32 {T0}, {T0}, 15
s_lshl_b32 {T3}, {S_W4}, 10
s_lshl_b32 {T2}, {T0}, 12
s_add_u32 m0, {T2}, {T3}
s_mul_i32 {S_I}, {T0}, {32*2688}
s_lshl_b32 {T2}, {T1}, 12
s_add_u32 {S_WM}, {T2}, {T3}
s_mul_i32 {S_WO}, {T1}, {32*2688}
s_cmp_ge_u32 {S_RR}, {2 if cfg.wrot else 4}
s_cselect_b32 {T0}, -1, 1
s_lshl_b32 {S_DM}, {T0}, 12
s_mul_i32 {S_DO}, {T0}, {32*2688}
s_cmp_eq_u32 {S_LC}, 7
s_cselect_b32 s30, 0, {448 * 2688}
s_mov_b32 s31, 0x20000
s_waitcnt lgkmcnt(0)
{st0()}
s_mov_b64 s[28:29], s[12:13]""")
    def x_m0(i, j): return f"s_add_u32 m0, {S_XL}, {(i%4)*4096 + j*1024}"
    def x_ld(i, j): return f"buffer_load_dwordx4 v{4+j}, {sX}, s{SC+i} offen{' nt' if cfg.ntb else ''} lds"
    def sc_next(i): return f"s_add_u32 s{SC+i}, s{SC+i-1}, 128\ns_cmp_eq_u32 s{SC+i}, 896\ns_cselect_b32 s{SC+i}, 0, s{SC+i}"
    def w_base(i): return f"v_lshl_add_u32 v12, s{SC+i}, 6, v14\nv_xor_b32 v13, 64, v12"
    def setup_x():
        a(f"""s_mov_b32 s34, {2048*896}
s_mov_b32 s35, 0x20000
s_lshr_b32 {S_R}, {S_XCD}, 1
s_lshl_b32 {S_R}, {S_R}, 2
s_add_u32 {S_R}, {S_R}, {S_RR}
s_lshl_b32 {S_TILE}, {S_R}, 2
s_add_u32 {S_TILE}, {S_TILE}, {S_W4}
v_lshrrev_b32 v10, 4, v1
v_xor_b32 v10, v9, v10
v_xor_b32 v11, 4, v10
v_mul_u32_u24 v12, 896, v8
s_mul_i32 {T2}, {S_TILE}, {32*896}
v_add_u32 v12, {T2}, v12
v_lshl_add_u32 v4, v10, 4, v12
v_lshl_add_u32 v5, v11, 4, v12
v_add_u32 v5, {8*896}, v5
v_add_u32 v6, {16*896}, v4
v_add_u32 v7, {16*896}, v5
s_lshl_b32 {T2}, {S_HH}, 2
s_lshr_b32 s{SC}, {cfg.xrot}, {T2}
s_and_b32 s{SC}, s{SC}, 7
s_lshl_b32 s{SC}, s{SC}, 7
s_lshl_b32 {S_XL}, {S_W4}, 14
s_add_u32 {S_XL}, {S_XL}, {L_X}""")
        a("s_mov_b64 s[32:33], s[10:11]")
    def setup2():
        for i in range(1, 7): a(sc_next(i))
        x_read_addrs(a, 8, "v1", S_XL, 12)
        srd(a, sWS, 20, WS_SIZE)
        a(f"""v_lshrrev_b32 v12, 5, v1
v_lshlrev_b32 v12, 3, v12
v_bfe_u32 v13, v1, 2, 2
v_add_u32 v12, v12, v13
v_bfe_u32 v13, v1, 4, 1
v_lshlrev_b32 v13, 5, v13
v_and_b32 v18, 1, v1
v_bfe_u32 v19, v1, 1, 1
v_lshl_add_u32 v15, v18, 4, v13
v_lshl_add_u32 v15, v19, 3, v15
v_lshl_add_u32 v14, v18, 3, v13
v_lshl_add_u32 v14, v19, 4, v14
s_cmp_eq_u32 {T5}, 1
s_cselect_b64 vcc, -1, 0
v_cndmask_b32 v14, v15, v14, vcc
v_lshl_add_u32 v15, v12, 6, v15
v_add_u32 v15, {L_WQ}, v15
v_bfe_u32 v13, v1, 3, 1
v_lshl_add_u32 v14, v13, 6, v14
v_lshl_add_u32 v14, v12, 7, v14""")
        a(f"""v_lshrrev_b32 v253, 2, v1
v_mul_u32_u24 v253, 2688, v253
v_and_b32 v254, 3, v1
v_lshl_add_u32 v253, v254, 4, v253
s_mul_i32 {S_P0}, {S_H}, 7
s_lshr_b32 {S_P0}, {S_P0}, 1
s_lshl_b32 s80, {S_P0}, 4
s_mul_i32 s81, {S_W4}, {16*2688}
s_add_u32 s80, s80, s81
v_add_u32 v253, s80, v253
s_lshl_b32 s80, {S_W4}, 10
s_add_u32 s80, s80, {L_WQ}
s_and_b32 s81, {S_P0}, 7
s_cmp_gt_u32 s81, 4
s_cselect_b32 s81, 1, 0
s_nop 0""")
        a(w_base(0))
        a(f"v_mov_b32 v250, {L_SYNC}\nv_mov_b32 v251, 1\nv_mov_b32 v246, 0\ns_mov_b32 {S_BAR}, 0")
    VK, VV, VF, VL = 240, 241, 242, 243
    PG = ["s4", "s5", "s6", "s7"]; S_FL = "s8"
    def setup3():
        a(f"""v_lshlrev_b32 v{VL}, 4, v1
s_lshl_b32 {T0}, {S_P0}, 9
v_add_u32 v{VK}, {T0}, v{VL}
s_lshl_b32 {T0}, {S_H}, 11
s_add_u32 {T0}, {T0}, {VOFF}
v_add_u32 v{VV}, {T0}, v{VL}
s_lshr_b32 {T1}, {S_P0}, 3
s_add_u32 {T0}, {S_P0}, 3
s_lshr_b32 {T0}, {T0}, 3
s_sub_u32 {T0}, {T0}, {T1}
v_and_b32 v{VF}, 1, v1
v_mul_u32_u24 v{VF}, {T0}, v{VF}
v_bfe_u32 v18, v1, 1, 1
v_mul_u32_u24 v18, 7, v18
v_add_u32 v{VF}, v{VF}, v18
v_lshlrev_b32 v{VF}, 7, v{VF}
s_lshl_b32 {T0}, {S_W4}, 4
s_add_u32 {T0}, {T0}, {T1}
s_lshl_b32 {T0}, {T0}, 7
s_add_u32 {T3}, {T0}, {FKV}
s_lshr_b32 {T2}, {S_R}, 2
s_lshl_b32 {T2}, {T2}, 3
s_lshr_b32 {T2}, {cfg.gtab if cfg.gtab > 1 else 0x934E39E4}, {T2}
s_mul_i32 {T1}, {S_W4}, {4*TS}
s_add_u32 {T1}, {T1}, {KV}""")
        for p in range(4): a(f"s_add_u32 {T0}, {S_RR}, {p}\ns_and_b32 {T0}, {T0}, 3\ns_mul_i32 s{TO+12+p}, {T0}, {TS}")
        for g in range(4):
            a(f"s_bfe_u32 {T0}, {T2}, {0x20000 + 2*g}\ns_lshl_b32 {PG[g]}, {T0}, 13\ns_add_u32 {PG[g]}, {PG[g]}, {T3}\ns_mul_i32 {T0}, {T0}, {16*TS}\ns_add_u32 {T0}, {T0}, {T1}")
            for p in range(4):
                a(f"s_add_u32 s{TO+4*g+p}, {T0}, " + (f"{p*TS}" if (g == 0 or cfg.kvrot == 0) else f"s{TO+12+p}"))
        a(f"""s_cmp_eq_u32 {S_LC}, 7
s_cselect_b32 {T1}, 15, {S_J}
s_lshl_b32 {T0}, {S_R}, 4
s_add_u32 {T0}, {T0}, {T1}
s_lshl_b32 {T0}, {T0}, 7
s_add_u32 {S_FL}, {T0}, {FKV}""")
    stamp(a, 3, 2)
    XE = cfg.xearly
    def mid():
        stamp(a, 4, 2)
        a("s_barrier")
        if cfg.fine != 2: a(f"s_load_dwordx2 s[62:63], s[20:21], {EPOCH}")
        stamp(a, 5, 2)
    for i in range(14):
        a(f"buffer_load_dwordx4 v2, {sWQKV}, {S_I} offen lds")
        if i == 6:
            if XE:
                setup_x()
                for j in range(4): a(x_m0(0, j)); a("s_nop 0"); a(x_ld(0, j))
                mid()
            a(f"s_mov_b32 m0, {S_WM}\ns_mov_b32 {S_I}, {S_WO}")
            if XE: setup2(); setup3()
        elif i < 13: a(f"s_add_u32 m0, m0, {S_DM}\ns_add_u32 {S_I}, {S_I}, {S_DO}")
        if i == 10 and not XE:
            mid(); setup_x(); setup2(); setup3()
    stamp(a, 8, 2)
    a(f"s_waitcnt vmcnt({cfg.wfair})")
    stamp(a, 10, 2)
    for c in range(XE, 2 + XE):
        for j in range(4): a(x_m0(c, j)); a("s_nop 0"); a(x_ld(c, j))
    stamp(a, 11, 2)
    if cfg.fine == 2: a(f"s_load_dwordx2 s[62:63], s[20:21], {EPOCH}")
    nonce(a)
    a("v_mov_b32 v244, s62\nv_mov_b32 v245, s63\nds_write_b64 v250, v[244:245] offset:64")
    def w_base(i): return f"v_lshl_add_u32 v12, s{SC+i}, 6, v14\nv_xor_b32 v13, 64, v12"
    def wq(i): return f"s_add_u32 m0, s80, {i*4096}\ns_mul_i32 s82, s{SC+i}, {64*21}\nbuffer_load_dwordx4 v253, {sWQKV}, s82 offen lds"
    a(f"s_mov_b32 s30, {448 * 2688}")
    def w_reads(i):
        out = []
        for mm in range(4):
            for ct in range(2):
                for hf in range(2):
                    d = WB + (i % 2) * 32 + mm * 8 + ct * 4 + hf * 2
                    out.append(f"ds_read_b64_tr_b16 {V(d,2)}, v{12+ct} offset:{mm*2048 + hf*512}")
        return out
    def x_reads(i):
        return [f"ds_read_b128 {V(X+16*i+4*mm,4)}, v{8+mm} offset:{(i%4)*4096}" for mm in range(4)]
    a(f"""s_waitcnt vmcnt(8)""")
    stamp(a, 1)
    a(f"s_mov_b64 exec, 1\nds_add_u32 v250, v251\ns_mov_b64 exec, -1")
    for j in range(2): a(x_m0(2 + XE, j)); a("s_nop 0"); a(x_ld(2 + XE, j))
    lwait(a, "v250", 252, 4, 19)
    stamp(a, 3, 1)
    wr0 = w_reads(0)
    for s_ in wr0[:8]: a(s_)
    if not XE: a("s_waitcnt vmcnt(6)")
    for s_ in x_reads(0) + wr0[8:]: a(s_)
    a(f"s_cmp_eq_u32 {T5}, 1\ns_cbranch_scc1 L_kvV")
    for var in ("K", "V"):
        if var == "V": a("L_kvV:")
        late = [f"s_mul_i32 {T4}, {S_TILE}, {TS}", f"s_add_u32 {T4}, {T4}, {KV}", "v_lshlrev_b32 v7, 4, v1"]
        if var == "K":
            late += [f"s_lshl_b32 {T0}, {S_LC}, 12", f"s_add_u32 {T4}, {T4}, {T0}"]
        else:
            late += f"""s_lshl_b32 {T1}, {S_LC}, 6
v_and_b32 v4, 31, v1
v_add_u32 v4, {T1}, v4                    ; col (ct0)
v_add_u32 v5, 32, v4
v_lshrrev_b32 v3, 5, v1
v_lshlrev_b32 v3, 9, v3
v_add_u32 v3, {VOFF}, v3""".split("\n")
            for r in (4, 5):
                late += f"""v_mul_u32_u24 v2, 2341, v{r}
v_lshrrev_b32 v2, 16, v2
v_mul_u32_u24 v2, {2048 - 28*16}, v2
v_lshl_add_u32 v{r}, v{r}, 4, v2
v_add_u32 v{r}, v{r}, v3""".split("\n")
            late += f"""s_lshl_b32 {T1}, {S_LC}, 2
s_lshr_b32 {T2}, 0xDB96420, {T1}
s_and_b32 {T2}, {T2}, 15                  ; first head that ends in this line-column
s_lshr_b32 {T3}, 0x3223222, {T1}
s_and_b32 {T3}, {T3}, 15
s_lshl_b32 {T3}, {T3}, 4
v_lshrrev_b32 v6, 2, v1
v_lshlrev_b32 v6, 9, v6
v_and_b32 v2, 3, v1
v_lshl_add_u32 v6, v2, 4, v6
s_lshl_b32 {T2}, {T2}, 11
s_add_u32 {T2}, {T2}, {VOFF + 28*16}
v_add_u32 v6, {T2}, v6
v_cmp_eq_u32 vcc, 0, v2
v_mov_b32 v2, 0x3f803f80
s_nop 0
v_cndmask_b32 v236, 0, v2, vcc
v_cndmask_b32 v237, 0, v2, vcc
v_cndmask_b32 v238, 0, v2, vcc
v_cndmask_b32 v239, 0, v2, vcc""".split("\n")
        for i in range(7):
            a("s_waitcnt lgkmcnt(0)")
            stamp(a, 4 + i, 1)
            fill = [[] for _ in range(8)]
            pre = [[] for _ in range(8)]
            if i == 0:
                dq = [(c, j) for c in range(1, 7) for j in range(4)]
                issued_q = dq[:6 + 4*XE]; dq = dq[6 + 4*XE:]
            def take(g):
                if dq and dq[0][0] <= i + 4:
                    e = dq.pop(0); issued_q.append(e)
                    pre[g].append(x_m0(*e)); fill[g].insert(0, x_ld(*e))
            had = bool(dq)
            if i + 1 < 7:
                wr = w_reads(i + 1)
                fill[0] += [w_base(i + 1)] + wr[0:3]
                fill[1] += wr[3:8]; fill[2] += wr[8:12]; fill[3] += wr[12:16]
                for g in ((0, 1, 2, 3, 4) if i == 0 and not XE else (0,)): take(g)
                if i == 4:
                    fill[1].append("s_cmp_eq_u32 s81, 1\ns_cselect_b64 exec, -1, 0\n" + "\n".join(wq(q) for q in range(cfg.wqe)) + "\ns_mov_b64 exec, -1")
                    issued_q += [(99, q) for q in range(cfg.wqe)]
                last = max(q for q, e in enumerate(issued_q) if e[0] == i + 1)
                fill[4] += [f"s_waitcnt vmcnt({len(issued_q) - 1 - last})"] + x_reads(i + 1)
            for g in range(5, 8): take(g)
            if i == 4:
                assert not had
                fill[0].insert(0, "s_mov_b64 exec, 1\nds_add_u32 v250, v251 offset:8\ns_mov_b64 exec, -1")
            if not had:
                for g in range(5 if i < 6 else 0, 8):
                    for q in range(6):
                        if late: fill[g].append(late.pop(0))
            for mm in range(4):
                for ct in range(2):
                    xr = X + 16*i + 4*mm; wr_ = WB + (i % 2) * 32 + mm * 8 + ct * 4
                    c = None if (i == 0 and mm == 0) else ACC + 16*ct
                    for s_ in pre[2*mm + ct]: a(s_)
                    a(mfma(ACC + 16*ct, wr_, xr, c) if var == "K" else mfma(ACC + 16*ct, xr, wr_, c))
                    for s_ in fill[2*mm + ct]: a(s_)
        assert not late
        stamp(a, 11, 1)
        a(f"s_cmp_eq_u32 {S_LC}, 7\ns_cbranch_scc1 L_kvnone")
        if var == "V":
            a(f"s_bfm_b64 exec, {T3}, 0\nbuffer_store_dwordx4 v[236:239], v6, {sWS}, {T4} offen sc1\ns_mov_b64 exec, -1")
        for ct in range(2):
            for j in range(2):
                for q in range(4):
                    z = 8*ct + 4*j + q
                    a(f"v_cvt_pk_bf16_f32 v{PK+z}, v{ACC+2*z}, v{ACC+2*z+1}")
                if var == "K":
                    a(f"buffer_store_dwordx4 {V(PK+8*ct+4*j,4)}, v7, {sWS}, {T4} offen offset:{ct*2048+j*1024} sc1")
                else:
                    a(f"buffer_store_dwordx4 {V(PK+8*ct+4*j,4)}, v{4+ct}, {sWS}, {T4} offen offset:{j*1024} sc1")
        if var == "K": a("s_branch L_kvdone\nL_kvnone:\ns_waitcnt vmcnt(0)\ns_branch L_kvdone")
    a("L_kvdone:\ns_mov_b64 exec, 1\nds_add_u32 v250, v251\ns_mov_b64 exec, -1")
    stamp(a, 2)
    NB = cfg.nbuf
    Q = 16; O = 48; SA = 112; KVB = 144; P0 = KVB + 16*NB; P1 = P0 + 4
    assert P1 + 4 <= 240
    QP = 224
    S_LD = "s9"
    def kv_loads(t, so=None):
        b = KVB + 16 * (t % NB); so = so or f"s{TO + (t if not cfg.hack or t < cfg.hack else t % cfg.hack)}"
        return [f"buffer_load_dwordx4 {V(b+4*j,4)}, v{VK if j < 2 else VV}, {sWS}, {so} offen offset:{(j%2)*1024} sc1" for j in range(4)]
    PV = 254; QA = (4, 6, 8, 9)
    pl = poll_issue(f"v{VF}", PG[0], PV, 4)
    QW = 176
    def qsync(target):
        a("s_mov_b64 exec, 1\nds_add_u32 v250, v251 offset:4\ns_mov_b64 exec, -1")
        lwait(a, "v250", 5, target, 14, off=4)
    def qmma(c0, c1, issue, check):
        rd = [f"ds_read_b64_tr_b16 {V(QW+(i%3)*16+mm*4+hf*2,2)}, v15 offset:{i*4096+mm*1024+hf*256}" for i in range(c0, c1) for mm in range(4) for hf in range(2)]
        iss = min(len(rd), 12)
        for s_ in rd[:iss]: a(s_)
        for m in range(4 * (c1 - c0)):
            a(f"s_waitcnt lgkmcnt({iss - (2*m + 2)})")
            a(mfma(ACC, QW + ((c0 + m // 4) % 3) * 16 + 4*(m % 4), X + 16*c0 + 4*m, None if c0 + m == 0 else ACC))
            for s_ in rd[iss:iss+2]: a(s_)
            iss = min(len(rd), iss + 2)
            if m == issue: a(pl)
            if m == check:
                Lf, Lg = a.lab("pf"), a.lab("pg")
                a(f"s_waitcnt vmcnt(0)\n{poll_check(PV, 4)}\ns_cbranch_scc1 {Lf}\ns_mov_b32 {S_LD}, 1")
                for t in range(2):
                    for s_ in kv_loads(t): a(s_)
                a(f"s_branch {Lg}\n{Lf}:\n{pl}\n{Lg}:")
    S_OB, S_FO, S_LO, S_HI, S_CL, S_M0 = "s10", "s11", "s12", "s13", "s14", "s[76:77]"
    def addrs():
        a(f"""s_lshl_b32 {S_OB}, {S_TILE}, 4
s_add_u32 {S_OB}, {S_OB}, {S_H}
s_lshl_b32 {S_OB}, {S_OB}, 11
s_add_u32 {S_OB}, {S_OB}, {OBUF}
s_lshl_b32 {S_FO}, {S_R}, 4
s_add_u32 {S_FO}, {S_FO}, {S_H}
s_lshl_b32 {S_FO}, {S_FO}, 7
s_add_u32 {S_FO}, {S_FO}, {FO}
s_mov_b32 {S_LO}, {lit(2.0**-40)}
s_mov_b32 {S_HI}, {lit(2.0**30)}
s_movk_i32 {S_CL}, 0x1f8
s_cmp_eq_u32 {S_W4}, 0
s_cselect_b64 {S_M0}, 1, 0
v_mov_b32 v2, v250
v_mov_b32 v3, 1
v_mov_b32 v7, v{VL}
v_mov_b32 v248, {lit(28 ** -0.5 * math.log2(math.e))}
v_mov_b32 v249, v248""")
        for i in range(4):
            a(f"""s_add_u32 {T0}, {S_W4}, {i+1}
s_and_b32 {T0}, {T0}, 3
s_lshl_b32 {T1}, {T0}, 11
s_add_u32 {T1}, {T1}, {L_Q}
v_add_u32 v{QA[i]}, {T1}, v7
s_mul_i32 {T0}, {T0}, 12288
s_add_u32 {T0}, {T0}, {(i%3)*4096 + L_RED}
v_add_u32 v{10+i}, {T0}, v7""")
    def publish(n):
        a(f"s_waitcnt vmcnt({n})")
        publish_wg(a, "v250", "v251", 16, 5, S_FL, 244)
        stamp(a, 3)
        a("s_waitcnt vmcnt(1)")
    E = cfg.wqe
    a(f"s_mov_b32 {S_LD}, 0\ns_cmp_eq_u32 s81, 1\ns_cbranch_scc1 L_qtwo")
    S_M0 = "s[82:83]" if cfg.xafirst else S_M0
    if cfg.xafirst:
        addrs()
        if cfg.wqdel: a(f"s_sleep {cfg.wqdel}")
        for i in range(7): a(wq(i).replace("s82", T0))
    else:
        for i in range(7): a(wq(i))
        addrs()
    publish(7)
    qsync(4)
    stamp(a, 4)
    qmma(0, 7, cfg.m1, cfg.m2)
    a("s_branch L_qdone\nL_qtwo:\ns_waitcnt vmcnt(4)")
    qsync(4)
    for i in range(E, 7): a(wq(i))
    qmma(0, E, -1, -1)
    addrs()
    publish(7 - E)
    qsync(8)
    stamp(a, 4)
    qmma(E, 7, 0, 4 * (7 - E) - 1)
    a("L_qdone:")
    stamp(a, 5)
    a(f"s_bitcmp1_b32 {S_H}, 0")
    for hf in range(2):
        for q in range(8*hf, 8*hf+8, 2): pk2(a, "mul", ACC+q, ACC+q, 248, scalar=cfg.nopk & 1)
        for q in range(4*hf, 4*hf+4): a(f"v_cvt_pk_bf16_f32 v{QP+q}, v{ACC+2*q}, v{ACC+2*q+1}")
        if hf == 0: a(f"s_cselect_b32 exec_lo, -1, 0\ns_mov_b32 exec_hi, 0\nv_mov_b32 v{QP}, 0\nv_mov_b32 v{QP+1}, 0\ns_mov_b64 exec, -1")
        else: a(f"s_cselect_b32 exec_hi, 0, -1\ns_mov_b32 exec_lo, 0\nv_mov_b32 v{QP+6}, 0\nv_mov_b32 v{QP+7}, 0\ns_mov_b64 exec, -1")
        a(f"ds_write_b128 v9, {V(QP+4*hf,4)} offset:{1024*hf}")
    a(f"""s_mov_b64 exec, 1
ds_add_u32 v2, v3
s_mov_b64 exec, -1
s_cmp_eq_u32 {S_LD}, 1
s_cbranch_scc1 L_kvloaded
s_waitcnt vmcnt(0)
{poll_check(PV, 4)}
s_cbranch_scc0 L_kvready""")
    poll(a, f"v{VF}", PG[0], PV, 4, 1, sleep=2)
    a("L_kvready:")
    for t in range(2):
        for s_ in kv_loads(t): a(s_)
    a("L_kvloaded:\ns_mov_b64 exec, 1\nds_add_u32 v2, v3 offset:12\ns_mov_b64 exec, -1")
    stamp(a, 6)
    if cfg.fine == 6:
        a(f"s_lshl_b32 {T0}, {S_LD}, 10\ns_add_u32 s{STAMP0+1}, s{STAMP0}, {T0}\ns_sub_u32 {T0}, {cfg.poll_limit}, {S_TO}\ns_cmp_gt_u32 {T0}, 100\ns_cselect_b32 {T0}, -1, {T0}\ns_add_u32 {T0}, {T0}, 1\ns_lshl_b32 {T0}, {T0}, 10\ns_add_u32 s{STAMP0+2}, s{STAMP0}, {T0}")
    lwait(a, "v2", 5, 12, 15)
    a(f"s_mov_b32 {S_BAR}, 12")
    for i in range(4):
        a(f"ds_read_b128 {V(Q+8*i,4)}, v{QA[i]}\nds_read_b128 {V(Q+8*i+4,4)}, v{QA[i]} offset:1024")
    stamp(a, 7)
    a("s_waitcnt vmcnt(6) lgkmcnt(6)\ns_setprio 0")
    if cfg.padmid: padto(a, cfg.padmid)
    stamp(a, 8)
    a(mfma(SA, KVB, Q)); a(mfma(SA, KVB + 4, Q + 4, SA))
    a("s_waitcnt vmcnt(4) lgkmcnt(0)\ns_nop 9\n.p2align 3")
    sched = {}
    issued = 2
    for t in range(16):
        for i in (1, 2):
            if (i == 1 or t % cfg.ramp == 0) and issued <= min(15, t + NB - 1):
                sched[(t, i)] = issued; issued += 1
    first = {g: min(k for k, v in sched.items() if v == 4*g) for g in (1, 2, 3)}
    pollat = {(k[0] - 1, 0): g for g, k in first.items()}
    vq = [("t", 1)] * 4
    def after(tag): return len(vq) - 1 - max(q for q, e in enumerate(vq) if e == tag)
    assert NB >= 5
    units = [(t, i) for t in range(12) for i in range(4)] + [(t, i) for i in range(4) for t in range(12, 16)]
    firstuse = {}
    for n, (t, i) in enumerate(units): firstuse.setdefault(t, n)
    waitat = {n - 2: t for t, n in firstuse.items() if t > 0}
    kb = lambda tt: KVB + 16 * (tt % NB)
    redw = lambda i, q: f"ds_write_b128 v{10+i}, {V(O+16*i+4*q,4)} offset:{q*1024}"
    for n, (t, i) in enumerate(units):
        if n % 8 == 0 and n: stamp(a, n // 8, 3)
        cur = SA + 16 * (n % 2); nxt = SA + 16 * ((n + 1) % 2)
        ms = [None] * 4
        if n < 63:
            tn, inx = units[n + 1]
            ms[0] = mfma(nxt, kb(tn), Q + 8*inx); ms[1] = mfma(nxt, kb(tn) + 4, Q + 8*inx + 4, nxt)
        if n > 0:
            tp, ip = units[n - 1]
            ms[2] = mfma(O + 16*ip, kb(tp) + 12, P1, O + 16*ip)
        ms[3] = mfma(O + 16*i, kb(t) + 8, P0, None if t == 0 else O + 16*i)
        side = [None] * 4
        key = (n // 4, n % 4)
        if key in sched:
            assert n < 48
            tl = sched[key]
            if tl % 4 == 0:
                g = tl // 4
                a(f"s_waitcnt vmcnt({after(('p', g))})\nv_cmp_ne_u64 vcc, {S_NONCE}, v[14:15]\ns_cbranch_vccnz L_gate{g}\nL_gated{g}:\ns_nop 0")
            side = kv_loads(tl); vq += [("t", tl)] * 4
        if key in pollat:
            g = pollat[key]
            side[0] = f"buffer_load_dwordx2 v[14:15], v{VF}, {sWS}, {PG[g]} offen sc1"; vq.append(("p", g))
        sig = "\ns_mov_b64 exec, 1\nds_add_u32 v2, v3\ns_mov_b64 exec, -1"
        rdr = lambda q: f"ds_read_b128 {V(O+4*q,4)}, v13 offset:{q*1024}"
        if 53 <= n <= 56: side[1] = redw(0, n - 53)
        if n in (57, 58): side[1] = redw(1, 2*(n - 57)); side[3] = redw(1, 2*(n - 57) + 1) + (sig if n == 58 else "")
        if n == 60: side[1] = "ds_read_b32 v5, v2"
        if n == 61:
            a(f"s_waitcnt lgkmcnt(0)\nv_readfirstlane_b32 {T0}, v5\ns_cmp_ge_u32 {T0}, 16\ns_cbranch_scc0 L_redw\nL_redd:")
        if n in (61, 62):
            k_ = n - 61
            side = [redw(2, 2*k_), rdr(4*k_) + "\n" + rdr(4*k_+1), redw(2, 2*k_+1) + (sig if k_ else ""), rdr(4*k_+2) + "\n" + rdr(4*k_+3)]
        if n == 63: side[2] = "ds_read2_b32 v[4:5], v2 offset0:34 offset1:0"
        if n == cfg.bhi: side[0] = "s_setprio 3\ns_nop 0" + ("\n" + side[0] if side[0] else "")
        for p in range(4):
            if ms[p]: a(ms[p])
            if side[p]: a(side[p])
            for e in range(4):
                if n in waitat and p == 3 and e == 3:
                    a(f"s_waitcnt vmcnt({after(('t', waitat[n]))})\nv_exp_f32_e64 v{cur+4*p+e}, v{cur+4*p+e}")
                else:
                    a(f"v_exp_f32 v{cur+4*p+e}, v{cur+4*p+e}")
            pk = (P0, P0 + 2, P1, P1 + 2)[p]
            a(f"v_cvt_pk_bf16_f32 v{pk}, v{cur+4*p}, v{cur+4*p+1}\nv_cvt_pk_bf16_f32 v{pk+1}, v{cur+4*p+2}, v{cur+4*p+3}")
    a(f"s_waitcnt lgkmcnt(0)\nv_readfirstlane_b32 {T0}, v5\nv_readfirstlane_b32 {T1}, v4")
    a(mfma(O + 48, kb(15) + 12, P1, O + 48))
    a(f"s_add_u32 {T1}, {T1}, {12 if cfg.ohint and not cfg.noA else 20}\ns_min_u32 {T0}, {T0}, {T1}\ns_cmp_ge_u32 {T0}, 20\ns_cbranch_scc0 L_redw2\nL_redd2:")
    for q in range(8, 12): a(f"ds_read_b128 {V(O+4*q,4)}, v13 offset:{q*1024}")
    a("s_mov_b64 exec, 1\nds_add_u32 v2, v3")
    if cfg.ohint: a(f"s_mov_b64 exec, {S_M0}\nbuffer_store_dwordx2 v[244:245], v246, {sWS}, {S_FO} offen sc1")
    a("s_mov_b64 exec, -1")
    stamp(a, 9)
    OO = O + 48
    sc_ = cfg.nopk & 2
    for q in range(0, 16, 2): pk2(a, "add", O+q, O+q, O+16+q, scalar=sc_)
    for q in range(0, 16, 2): pk2(a, "add", OO+q, OO+q, O+q, scalar=sc_)
    a("s_waitcnt lgkmcnt(1)")
    for q in (12, 0, 2, 4, 6, 8, 10, 14): pk2(a, "add", OO+q, OO+q, O+32+q, scalar=sc_)
    a(f"""v_mov_b32 v10, v{OO+12}
v_mov_b32 v11, v{OO+12}
v_mul_f32 v12, v{OO}, v{OO+1}
v_mul_f32 v13, v{OO+2}, v{OO+3}
v_permlane32_swap_b32 v10, v11
v_fma_f32 v12, v{OO+4}, v{OO+5}, v12
v_fma_f32 v13, v{OO+6}, v{OO+7}, v13
v_rcp_f32 v10, v11
v_fma_f32 v12, v{OO+8}, v{OO+9}, v12
v_fma_f32 v13, v{OO+10}, v{OO+11}, v13
v_cmp_le_f32 s[70:71], {S_LO}, v11
v_fma_f32 v12, v{OO+12}, v{OO+13}, v12
v_fma_f32 v13, v{OO+14}, v{OO+15}, v13
v_cmp_ge_f32 s[72:73], {S_HI}, v11
v_add_f32 v12, v12, v13
v_cmp_class_f32 vcc, v12, {S_CL}
s_and_b64 s[70:71], s[70:71], s[72:73]
s_and_b64 vcc, vcc, s[70:71]
s_cmp_eq_u64 vcc, exec""")
    if cfg.force_fb: a("s_cmp_eq_u32 0, 1")
    a(f"s_cbranch_scc0 L_fallback\nL_fbdone:\nv_mov_b32 v11, v10")
    for hf in range(2):
        for q in range(8*hf, 8*hf+8, 2): pk2(a, "mul", OO+q, OO+q, 10, scalar=sc_)
        for q in range(4*hf, 4*hf+4): a(f"v_cvt_pk_bf16_f32 v{O+q}, v{OO+2*q}, v{OO+2*q+1}")
        if hf: a(f"s_mov_b32 exec_lo, 0\nv_mov_b32 v{O+6}, 0\ns_mov_b32 exec_lo, -1")
        if cfg.ohint: a(f"v_min_u32 v{O+4*hf}, -2, v{O+4*hf}")
        a(f"buffer_store_dwordx4 {V(O+4*hf,4)}, v7, {sWS}, {S_OB} offen offset:{1024*hf} sc1")
    stamp(a, 10)
    S_BP, S_CNT, S_DT = "s70", "s71", "s72"
    GS = 144; GC = 176; ZR = 196; G = 16; OL = 196; AR = 128
    S_O0, S_O1, S_FH, S_RT, S_CLM = "s73", "s74", "s75", "s76", "s77"
    a(f"""s_lshl_b32 {S_BP}, {S_XCD}, 3
s_lshr_b32 {T0}, {S_IDX}, 2
s_add_u32 {S_BP}, {S_BP}, {T0}
s_and_b32 {T1}, {S_IDX}, 3
s_cmp_ge_u32 {T1}, 2
s_cselect_b32 {S_CNT}, 3, 4
s_lshl_b32 {S_DT}, {T1}, 2
s_cmp_eq_u32 {T1}, 3
s_cselect_b32 {S_DT}, 11, {S_DT}
s_add_u32 {S_DT}, {S_DT}, {S_W4}
s_cmp_ge_u32 {S_W4}, {S_CNT}
s_cbranch_scc1 L_bend
s_setprio {cfg.fprio}
v_bfe_u32 v5, v1, 2, 1
v_lshlrev_b32 v5, 4, v5
v_bfe_u32 v6, v1, 3, 2
v_lshl_add_u32 v5, v6, 2, v5
v_and_b32 v6, 3, v1
v_add_u32 v5, v5, v6
s_lshl_b32 {T0}, {S_DT}, 5
v_add_u32 v5, {T0}, v5                    ; d
v_lshlrev_b32 v9, 31, v5
v_xor_b32 v9, 0.5, v9                     ; 0.5*(-1)^d
v_cvt_f32_u32 v5, v5
v_mul_f32 v5, {lit(1/448)}, v5
v_lshrrev_b32 v4, 5, v1
v_cvt_f32_u32 v6, v4
v_mul_f32 v6, v5, v6
v_mul_f32 v6, 4.0, v6
v_mul_f32 v{GC}, {lit(16.0)}, v5
v_cos_f32 v{GC}, v{GC}""")
    for j in range(16): a(f"v_fmamk_f32 v{GS+j}, v5, {lit(float(16*(j//8) + 8*((j%8)//4) + j%4))}, v6")
    a(f"v_add_f32 v{GC}, v{GC}, v{GC}")
    for j in range(16): a(f"v_sin_f32_e64 v{GS+16+j}, -v{GS+j}\nv_cos_f32 v{GS+j}, v{GS+j}")
    a(f"v_mov_b32 v{GC+1}, v{GC}")
    def ggen(q0, q1):
        a(".p2align 3")
        for q in range(q0, q1):
            rho = q % 2; st = q // 2
            cur = GS + 16*rho + 8*(st % 2); oth = GS + 16*rho + 8*((st + 1) % 2); gp = G + 4*q
            if st >= 2:
                for z in range(0, 8, 2):
                    pk2(a, "fma", cur+z, GC, oth+z, cur+z, neg="2", scalar=cfg.nopk & 8)
            for z in range(4): a(f"v_cvt_pk_bf16_f32 v{gp+z}, v{cur+2*z}, v{cur+2*z+1}")
            if st == 0:
                a(f"s_mov_b32 exec_hi, 0\nv_cvt_pk_bf16_f32 v{gp}, {'v9' if rho else '0.5'}, v{cur+1}\ns_mov_b32 exec_hi, -1")
    ggen(0, 28)
    stamp(a, 11)
    srd(a, sOUT, 16, 2048 * 1792)
    a(f"""v_add_u32 v8, {L_ZB}, v7
v_and_b32 v6, 31, v1
v_mul_u32_u24 v6, {64*1792}, v6
v_lshl_add_u32 v6, v4, 5, v6
s_mul_i32 {T4}, {S_BP}, 1792
s_lshl_b32 {T1}, {S_DT}, 6
s_add_u32 {T4}, {T4}, {T1}""")
    lwait(a, "v2", 5, 4, 17, off=132)
    stamp(a, 13)
    order = [4*(q//4) + 2*(q % 2) + ((q//2) % 2) for q in range(28)]
    for q in range(8): a(f"ds_read_b128 {V(ZR+4*q,4)}, v8 offset:{order[q]*1024}")
    for p in range(28):
        a(f"s_waitcnt lgkmcnt({min(7, 27-p)})")
        a(mfma(AR, G + 4*p, ZR + 4*(p % 8), None if p == 0 else AR))
        if p + 8 < 28: a(f"ds_read_b128 {V(ZR+4*(p%8),4)}, v8 offset:{order[p+8]*1024}")
    osc = ("", " sc1", " nt", " sc0 sc1")[cfg.outsc]
    if cfg.odefer and not cfg.noA: lwait(a, "v2", 5, 4, 36, sleep=2, off=20)
    for hf in range(2):
        for q in range(4*hf, 4*hf+4): a(f"v_cvt_pk_bf16_f32 v{GS+q}, v{AR+2*q}, v{AR+2*q+1}")
        a(f"buffer_store_dwordx4 {V(GS+4*hf,4)}, v6, {sOUT}, {T4} offen offset:{16*hf}{osc}")
    a("L_bend:")
    stamp(a, 12)
    dump_stamps(a, 240)
    a("s_endpgm")
    a("L_redw:")
    lwait(a, "v2", 5, 16, 2)
    a("s_branch L_redd\nL_redw2:")
    lwait(a, "v2", 5, 20, 2)
    if cfg.ohint and not cfg.noA: lwait(a, "v2", 5, 8, 39, sleep=1, off=136)
    a("s_branch L_redd2")
    for g in (1, 2, 3):
        a(f"L_gate{g}:")
        poll(a, f"v{VF}", PG[g], 14, 4, 25, sleep=2)
        a(f"s_branch L_gated{g}")
    a("L_fallback:")
    QO = Q + 24; KB = KVB; M = 15; S_SO = "s70"
    a(f"v_mov_b32 v{M}, 0xff800000\ns_mov_b32 {S_SO}, {KV}\nL_fb1:")
    for s_ in kv_loads(0, S_SO)[:2]: a(s_)
    a(f"s_add_u32 {S_SO}, {S_SO}, {TS}\ns_waitcnt vmcnt(0)")
    a(mfma(SA, KB, QO)); a(mfma(SA, KB + 4, QO + 4, SA))
    for q in range(0, 16, 2): a(f"v_max3_f32 v{M}, v{M}, v{SA+q}, v{SA+q+1}")
    a(f"""s_cmp_lt_u32 {S_SO}, {KV + 64*TS}
s_cbranch_scc1 L_fb1
v_mov_b32 v14, v{M}
v_permlane32_swap_b32 v14, v{M}
v_max_f32 v{M}, v14, v{M}
s_mov_b32 {S_SO}, {KV}""")
    for q in range(16): a(f"v_mov_b32 v{OO+q}, 0")
    a("L_fb2:")
    for s_ in kv_loads(0, S_SO): a(s_)
    a(f"s_add_u32 {S_SO}, {S_SO}, {TS}\ns_waitcnt vmcnt(0)")
    a(mfma(SA, KB, QO)); a(mfma(SA, KB + 4, QO + 4, SA))
    for q in range(16): a(f"v_sub_f32 v{SA+q}, v{SA+q}, v{M}")
    for q in range(16): a(f"v_exp_f32 v{SA+q}, v{SA+q}")
    for q in range(8): a(f"v_cvt_pk_bf16_f32 v{P0+q}, v{SA+2*q}, v{SA+2*q+1}")
    a(mfma(OO, KB + 8, P0, OO)); a(mfma(OO, KB + 12, P1, OO))
    a(f"""s_cmp_lt_u32 {S_SO}, {KV + 64*TS}
s_cbranch_scc1 L_fb2
v_mov_b32 v10, v{OO+12}
v_mov_b32 v11, v{OO+12}
v_permlane32_swap_b32 v10, v11
v_rcp_f32 v10, v11
s_branch L_fbdone""")

def role_A(a):
    FB = 16; GS0 = 48; M = 72; F = 88; ACC = 200; TMP = 216
    S_BP = "s78"
    S_CG, S_CNT, S_CB, S_DT, S_TASK, S_K1 = "s79", "s80", "s81", "s82", "s83", "s73"
    S_B, S_KT16 = S_BP, S_DT
    (PN, _, _, P_TST, P_W, P_F1, P_TLD, P_TBW, P_TBR, P_TTW, P_TTR, P_UST, P_F2, P_WOD, P_WOR, P_WOR2,
     P_ZW0, P_ZW1, P_PF, P_BC, P_PS, _, P_LS, P_DUM) = range(232, 256)
    sc = 1.0 / (2048 * 448)
    def albar(code): lbar(a, "v14", "v15", P_LS, code, sleep=1)
    def burst(items, th):
        a("s_setprio 0")
        for q, it in enumerate(items):
            if q >= th: a(f"s_waitcnt vmcnt({th-1})")
            a(it)
        a(f"s_setprio {cfg.aprio}")
    SB = "s[74:75]"
    def stage_arrive(k):
        L = a.lab("arr")
        a(f"""s_waitcnt vmcnt(0)
s_mov_b64 exec, 1
ds_add_rtn_u32 v{P_LS}, v14, v15 offset:8
s_mov_b64 exec, -1
s_waitcnt lgkmcnt(0)
v_readfirstlane_b32 {T0}, v{P_LS}
s_cmp_eq_u32 {T0}, {4*k+3}
s_cbranch_scc0 {L}
s_mov_b32 {T0}, 1
s_lshl_b32 {T1}, {S_XCD}, 7
s_add_u32 {T1}, {T1}, {k*1024}
s_atomic_add {T0}, {SB}, {T1} glc
s_waitcnt lgkmcnt(0)
s_sub_u32 {T0}, {T0}, s62
s_cmp_eq_u32 {T0}, 31
s_cbranch_scc0 {L}
s_mov_b32 {T1}, {FA1 + 2048 + k*8192}
s_mov_b64 exec, {-1 if cfg.allpoll else 0xffff}
buffer_atomic_add v15, v{P_PF}, {sWS}, {T1} offen sc1
s_mov_b64 exec, -1
{L}:""")
    def stage_wait(k, pre):
        if cfg.ko & 4:
            a("s_waitcnt lgkmcnt(0)"); return
        L, L2, L3 = a.lab("sw"), a.lab("sw"), a.lab("sw")
        if not cfg.allpoll: a(f"s_cmp_eq_u32 {S_W4}, 0\ns_cbranch_scc0 {L2}")
        a(f"""s_and_b32 {T1}, s2, 15
s_lshl_b32 {T2}, {S_W4}, 4
s_add_u32 {T1}, {T1}, {T2}
s_lshl_b32 {T1}, {T1}, 7
s_add_u32 {T1}, {T1}, {2048 + k*8192}
s_add_u32 {T2}, s62, 8
s_mov_b32 {S_TO}, {cfg.poll_limit}
s_waitcnt lgkmcnt(0)
s_sleep {pre}
{L}:
s_mov_b32 {T0}, 0
s_atomic_or {T0}, {SB}, {T1} glc
s_waitcnt lgkmcnt(0)
s_cmp_eq_u32 {T0}, {T2}
s_cbranch_scc1 {L}d
s_sleep {cfg.bsleep}
s_sub_u32 {S_TO}, {S_TO}, 1
s_cbranch_scc0 {L}
s_mov_b32 {S_TO}, 32
s_branch L_fail
{L}d:""")
        if cfg.allpoll: return
        a(f"s_mov_b64 exec, 1\nds_add_u32 v14, v15 offset:12\ns_mov_b64 exec, -1\ns_branch {L3}\n{L2}:")
        lwait(a, "v14", P_LS, k + 1, 33, sleep=cfg.lsl, off=12)
        a(f"{L3}:")
    def pace():
        if cfg.pace: a(f"s_sleep {cfg.pace}")
    a(f"""L_roleA:
v_mov_b32 v3, 0
v_mov_b32 v2, {L_SYNC}
ds_write2_b32 v2, v3, v3 offset0:0 offset1:32
ds_write2_b32 v2, v3, v3 offset0:1 offset1:2
ds_write2_b32 v2, v3, v3 offset0:3 offset1:33
ds_write2_b32 v2, v3, v3 offset0:4 offset1:34
ds_write2_b32 v2, v3, v3 offset0:5 offset1:35
ds_write2_b32 v2, v3, v3 offset0:8 offset1:9
ds_write2_b32 v2, v3, v3 offset0:10 offset1:11
s_setprio {cfg.aprio}
s_mov_b32 {S_BAR}, 0
s_lshl_b32 {S_BP}, {S_XCD}, 3
s_lshr_b32 {T0}, {S_IDX}, 2
s_add_u32 {S_BP}, {S_BP}, {T0}
s_and_b32 {S_CG}, {S_IDX}, 3
s_cmp_ge_u32 {S_CG}, 2
s_cselect_b32 {S_CNT}, 3, 4
s_lshl_b32 {S_CB}, {S_CG}, 2
s_cmp_eq_u32 {S_CG}, 3
s_cselect_b32 {S_CB}, 11, {S_CB}
s_add_u32 {S_DT}, {S_CB}, {S_W4}
v_and_b32 v2, 31, v1                      ; v2 = lane%32
v_lshrrev_b32 v3, 5, v1                   ; v3 = half
v_cvt_f32_u32 v4, v3
s_waitcnt lgkmcnt(0)
{st0()}""")
    if cfg.touch:
        tl = [["s[10:11], 0", "s[4:5], 0", "s[6:7], 0"], ["s[20:21], s76", "s[8:9], 0", "s[14:15], 0"],
              ["s[20:21], s77", "s[16:17], 0", "s[16:17], s76"], ["s[20:21], s74", "s[20:21], s75"]]
        a(f"s_cmp_ge_u32 {S_IDX}, {cfg.touch}\ns_cbranch_scc1 L_tch\ns_mov_b32 s76, 0x200000\ns_mov_b32 s77, 0x600000\ns_mov_b32 s74, 0x400000\ns_mov_b32 s75, 0x800000")
        for w in range(4):
            a(f"s_cmp_lg_u32 {S_W4}, {w}\ns_cbranch_scc1 L_tch{w}")
            for t_ in tl[w]: a(f"s_load_dword s72, {t_}")
            a(f"L_tch{w}:")
        a("L_tch:")
    def angles(n, vstep, vbase, offs, dst=TMP):
        for j in range(n): a(f"v_fmamk_f32 v{dst+j}, {vstep}, {lit(float(offs[j]))}, {vbase}")
    def gen_F():
        A0 = TMP; A1 = TMP + 8; C2 = TMP + 16
        a(f"""v_and_b32 v5, 15, v1
s_lshl_b32 {T0}, {S_KT16}, 4
v_add_u32 v5, {T0}, v5                    ; k
v_bfe_u32 v6, v1, 4, 1
v_lshl_add_u32 v7, v5, 1, v6
v_cmp_eq_u32 vcc, 1, v7
v_mov_b32 v7, 224
v_cndmask_b32 v5, v5, v7, vcc
v_cndmask_b32 v6, v6, 0, vcc
v_cvt_f32_u32 v5, v5
v_cvt_f32_u32 v6, v6
v_mul_f32 v5, {lit(1/448)}, v5            ; kf
v_mul_f32 v6, {lit(0.25)}, v6
v_mul_f32 v7, v5, v4
v_fmamk_f32 v6, v7, {lit(8.0)}, v6
v_mul_f32 v{C2}, {lit(16.0)}, v5
v_cos_f32 v{C2}, v{C2}""")
        angles(16, "v5", "v6", [j % 8 + 16 * (j // 8) for j in range(16)])
        a(f"v_add_f32 v{C2}, v{C2}, v{C2}")
        for j in range(16): a(f"v_cos_f32 v{A0+j}, v{A0+j}")
        a(f"v_mov_b32 v{C2+1}, v{C2}\ns_barrier\n.p2align 3")
        for m in range(28):
            cur = A0 if m % 2 == 0 else A1; oth = A1 if m % 2 == 0 else A0
            if m >= 2:
                for q in range(0, 8, 2):
                    a(f"v_pk_fma_f32 {V(cur+q,2)}, {V(C2,2)}, {V(oth+q,2)}, {V(cur+q,2)} neg_lo:[0,0,1] neg_hi:[0,0,1]")
            for q in range(4): a(f"v_cvt_pk_bf16_f32 v{F+4*m+q}, v{cur+2*q}, v{cur+2*q+1}")
    def gen_M():
        a(f"""v_cvt_f32_u32 v5, v2
s_and_b32 {T0}, {S_W4}, 1
s_lshl_b32 {T0}, {T0}, 10
s_add_u32 {T0}, {T0}, {S_B}
v_lshl_add_u32 v6, v3, 8, {T0}
v_cvt_f32_u32 v6, v6
v_mul_f32 v6, v6, v5
s_cmp_ge_u32 {S_W4}, 2
s_cselect_b32 {T0}, {lit(0.25)}, 0
v_mov_b32 v7, {T0}
v_fmamk_f32 v6, v6, {lit(1/2048)}, v7
v_mul_f32 v5, {lit(1/32)}, v5""")
        angles(8, "v5", "v6", [8*(j//4) + j%4 for j in range(8)])
        for j in range(8): a(f"v_cos_f32 v{TMP+j}, v{TMP+j}")
        for q in range(4): a(f"v_cvt_pk_bf16_f32 v{ACC+8+q}, v{TMP+2*q}, v{TMP+2*q+1}")
    def gen_MS():
        a(f"""v_lshlrev_b32 v5, 6, v2
v_add_u32 v5, {S_BP}, v5
v_cvt_f32_u32 v5, v5
v_mul_f32 v5, {lit(1/2048)}, v5
s_lshl_b32 {T0}, {S_W4}, 3
v_lshl_add_u32 v6, v3, 2, {T0}
v_cvt_f32_u32 v6, v6
v_mul_f32 v6, v5, v6""")
        angles(4, "v5", "v6", range(4), TMP + 8)
        for j in range(4): a(f"v_cos_f32 v{TMP+2*j}, v{TMP+8+j}\nv_sin_f32 v{TMP+2*j+1}, v{TMP+8+j}")
        a(f"v_mov_b32 v6, {lit(2*sc)}\nv_mov_b32 v7, v6")
        for j in range(4): pk2(a, "mul", TMP+2*j, TMP+2*j, 6, scalar=cfg.nopk & 16)
        for j in range(4):
            a(f"v_cvt_pk_bf16_f32 v{48+j}, v{TMP+2*j}, v{TMP+2*j+1}\nv_cvt_pk_bf16_f32 v{52+j}, v{TMP+2*j+1}, -v{TMP+2*j}")
    def gen_FB():
        a(f"""v_and_b32 v5, 15, v1
s_lshl_b32 {T0}, {S_W4}, 4
v_add_u32 v5, {T0}, v5
v_cvt_f32_u32 v5, v5
v_mul_f32 v5, {lit(1/64)}, v5
v_bfe_u32 v6, v1, 4, 1
v_cvt_f32_u32 v6, v6
v_mul_f32 v6, {lit(0.25)}, v6
v_mul_f32 v7, v5, v4
v_fmamk_f32 v6, v7, {lit(4.0)}, v6""")
        C2 = TMP + 16
        a(f"v_mul_f32 v{C2}, {lit(8.0)}, v5\nv_cos_f32 v{C2}, v{C2}")
        angles(8, "v5", "v6", [8*(j//4) + j%4 for j in range(8)], TMP + 20)
        a(f"v_add_f32 v{C2}, v{C2}, v{C2}")
        for j in range(8): a(f"v_cos_f32 v{TMP+2*j}, v{TMP+20+j}\nv_sin_f32 v{TMP+2*j+1}, v{TMP+20+j}")
        a(f"v_mov_b32 v{C2+1}, v{C2}")
        for m in range(8):
            cur = TMP + 8*(m % 2); oth = TMP + 8*((m + 1) % 2)
            if m >= 2:
                for q in range(0, 8, 2):
                    pk2(a, "fma", cur+q, C2, oth+q, cur+q, neg="2", scalar=cfg.nopk & 16)
            for q in range(4): a(f"v_cvt_pk_bf16_f32 v{FB+4*m+q}, v{cur+2*q}, v{cur+2*q+1}")
    def gen_addr():
        a(f"""v_mov_b32 v{PN+2}, 0
v_lshlrev_b32 v7, 4, v1                   ; v7 = lane*16
v_and_b32 v6, 3, v1
v_lshrrev_b32 v5, 2, v1
v_lshlrev_b32 v5, 16, v5
v_lshl_add_u32 v{P_TST}, v6, 4, v5
s_lshl_b32 {T1}, {S_W4}, 11
s_add_u32 {T0}, {T1}, {L_TT}
v_add_u32 v{P_TTR}, {T0}, v7
v_lshlrev_b32 v5, 6, v2
v_lshl_add_u32 v5, v3, 4, v5
v_add_u32 v{P_TTW}, {T0}, v5
s_lshl_b32 {S_TASK}, {S_XCD}, 5
s_add_u32 {S_TASK}, {S_TASK}, {S_IDX}
s_lshr_b32 {T0}, {S_TASK}, 3
s_lshl_b32 {T2}, {S_W4}, 9
s_add_u32 {T0}, {T0}, {T2}
s_mul_i32 {T0}, {T0}, 225
s_lshl_b32 {T2}, {S_HH}, 5
s_add_u32 {T0}, {T0}, {T2}
v_mul_u32_u24 v5, {128*225}, v3
v_add3_u32 v5, v5, v2, {T0}
v_lshlrev_b32 v{P_W}, 1, v5
v_bfe_u32 v12, v1, 4, 1
v_lshlrev_b32 v5, 2, v2
v_lshl_add_u32 v{P_TLD}, v3, 9, v5
v_lshl_add_u32 v{P_UST}, v3, 17, v5
v_lshl_add_u32 v{P_F2}, v3, 18, v5
v_add_u32 v{P_TBR}, {L_TB}, v7
v_add_u32 v{P_TBW}, {T1}, v{P_TBR}
s_add_u32 {S_K1}, {S_W4}, 3
s_cmp_eq_u32 {S_W4}, 0
s_cselect_b32 {S_K1}, 7, {S_K1}
s_lshl_b32 {T0}, {S_W4}, 12
v_add_u32 v{P_ZW0}, {T0}, v{P_TBR}
s_lshl_b32 {T0}, {S_K1}, 12
v_add_u32 v{P_ZW1}, {T0}, v{P_TBR}
v_bfe_u32 v13, v1, 2, 2
v_lshrrev_b32 v5, 4, v1
v_xor_b32 v{P_WOD}, v13, v5
s_sub_u32 {T0}, {S_CNT}, 1
v_min_u32 v{P_WOD}, {T0}, v{P_WOD}
v_add_u32 v{P_WOD}, {S_CB}, v{P_WOD}
v_lshlrev_b32 v{P_WOD}, 6, v{P_WOD}
v_mul_u32_u24 v5, 896, v5
v_add_u32 v5, v5, v{P_WOD}
v_lshl_add_u32 v5, v6, 4, v5
s_mul_i32 {T0}, {S_W4}, {4*896}
v_add_u32 v{P_WOD}, {T0}, v5
v_xor_b32 v5, {S_W4}, v13
v_lshlrev_b32 v5, 6, v5
v_lshl_add_u32 v5, v13, 8, v5
v_and_b32 v6, 1, v1
v_lshl_add_u32 v5, v6, 5, v5
v_lshl_add_u32 v5, v12, 4, v5
v_bfe_u32 v6, v1, 1, 1
v_lshl_add_u32 v5, v6, 3, v5
v_add_u32 v{P_WOR2}, {L_X}, v5
v_lshl_add_u32 v{P_WOR}, v3, 10, v{P_WOR2}""")
    pieces = [gen_F, gen_FB, gen_M, gen_MS, gen_addr]
    assert cfg.pre >= 1
    def wq_warm():
        a(f"""s_cmp_eq_u32 {S_LC}, 7
s_cbranch_scc0 L_pf1
v_mul_u32_u24 v5, 2688, v1
s_mul_i32 {T0}, {T5}, 3
s_add_u32 {T0}, {T0}, {S_RR}
s_lshl_b32 {T0}, {T0}, 7
s_mul_i32 {T1}, {S_W4}, {128*2688}
s_add_u32 {T0}, {T0}, {T1}
s_add_u32 {T1}, {T0}, {64*2688}
buffer_load_dword v{P_DUM}, v5, {sWQKV}, {T0} offen
buffer_load_dword v{P_DUM}, v5, {sWQKV}, {T1} offen
L_pf1:""")
    def xa_warm():
        a(f"""s_cmp_eq_u32 {S_LC}, 7
s_cbranch_scc0 L_pf6
v_lshlrev_b32 v5, 7, v1
s_lshl_b32 {T0}, {S_RR}, 2
s_add_u32 {T0}, {T0}, {S_W4}
s_mul_i32 {T0}, {T0}, {2*64*896}
s_mul_i32 {T1}, {S_XCD}, {8*896}
s_add_u32 {T0}, {T0}, {T1}
s_add_u32 {T1}, {T0}, {64*896}
s_bfm_b64 exec, 56, 0
buffer_load_dword v{P_DUM}, v5, {sX}, {T0} offen
buffer_load_dword v{P_DUM}, v5, {sX}, {T1} offen
s_mov_b64 exec, -1
L_pf6:""")
    def mall_warm():
        a(f"""s_cmp_eq_u32 {S_LC}, 7
s_cbranch_scc0 L_pf7
s_lshl_b32 {T0}, {S_XCD}, 4
s_lshl_b32 {T1}, {S_RR}, 2
s_add_u32 {T0}, {T0}, {T1}
s_add_u32 {T0}, {T0}, {S_W4}
v_lshlrev_b32 v5, 7, v1""")
        if cfg.mw & 1:
            a(f"""v_lshrrev_b32 v6, 3, v1
v_mul_u32_u24 v6, 2688, v6
v_and_b32 v7, 7, v1
v_min_u32 v7, 6, v7
v_lshl_add_u32 v6, v7, 7, v6
s_mul_i32 {T1}, {T0}, {4*2688}
s_mov_b64 exec, 0xffffffff
buffer_load_dword v{P_DUM}, v6, {sWQKV}, {T1} offen""")
        if cfg.mw & 2: a(f"s_mul_i32 {T1}, {T0}, {25*128}\ns_bfm_b64 exec, 25, 0\nbuffer_load_dword v{P_DUM}, v5, {sWO}, {T1} offen")
        if cfg.mw & 4: a(f"s_mul_i32 {T1}, {T0}, {57*128}\ns_bfm_b64 exec, 57, 0\nbuffer_load_dword v{P_DUM}, v5, {sWR}, {T1} offen")
        if cfg.mw & 8: a(f"s_mul_i32 {T1}, {T0}, {57*128}\ns_bfm_b64 exec, 57, 0\nbuffer_load_dword v{P_DUM}, v5, {sWI}, {T1} offen")
        if cfg.mw & 16: a(f"s_mul_i32 {T1}, {T0}, {112*128}\ns_bfm_b64 exec, 56, 0\nbuffer_load_dword v{P_DUM}, v5, {sX}, {T1} offen")
        a("s_mov_b64 exec, -1\nL_pf7:")
    if cfg.spf:
        a(f"""s_lshl_b32 {T0}, s2, 2
s_add_u32 {T0}, {T0}, {S_W4}
s_mul_i32 {T1}, {T0}, {14*128}
s_add_u32 s76, s4, {T1}
s_addc_u32 s77, s5, 0
s_mul_i32 {T1}, {T0}, 900
s_add_u32 s70, s6, {T1}
s_addc_u32 s71, s7, 0
s_add_u32 s74, s8, {T1}
s_addc_u32 s75, s9, 0""")
    n0 = len(a.L)
    for q in range(cfg.pre):
        pieces.pop(0)()
        if q == 0:
            srd(a, sWQKV, 12, 448 * 2688); srd(a, sX, 4, 0 if cfg.ko & 16 else 2048 * 896)
            srd(a, sWR, 6, 0 if cfg.ko & 1 else 2048 * 450); srd(a, sWI, 8, 0 if cfg.ko & 1 else 2048 * 450); srd(a, sWO, 14, 0 if cfg.ko & 2 else 448 * 896)
        if cfg.mw and cfg.mwpos == q + 1: mall_warm()
        if cfg.xawarm == q + 1: xa_warm()
        if cfg.wqwarm == q + 1: wq_warm()
    if cfg.spf:
        from asmlib import Ins
        pf = [f"s_load_dword s72, s[76:77], {q*128}" for q in range(14)]
        if cfg.spf >= 2: pf += [f"s_load_dword s72, s[{b}:{b+1}], {q*128}" for q in range(7) for b in (70, 74)]
        lo = n0 + cfg.spf0; hi = len(a.L)
        for q in reversed(range(len(pf))): a.L.insert(lo + (hi - lo) * q // len(pf), Ins(pf[q]))
    stamp(a, 1)
    srd(a, sWS, 20, WS_SIZE)
    srd(a, sOUT, 16, 2048 * 1792)
    S_XA, S_WQL, S_WQG = "s70", "s71", "s72"
    XD = 70
    a(f"""v_lshrrev_b32 v6, 3, v1
v_and_b32 v5, 7, v1
v_lshrrev_b32 v8, 4, v1
v_xor_b32 v5, v5, v8
s_and_b32 {T0}, {S_W4}, 1
s_lshl_b32 {T0}, {T0}, 2
v_xor_b32 v5, {T0}, v5
v_mul_u32_u24 v6, {64*896}, v6
s_mul_i32 {T1}, {S_W4}, {8*64*896}
s_mul_i32 {T2}, {S_B}, 896
s_add_u32 {T1}, {T1}, {T2}
v_add_u32 v6, {T1}, v6
v_lshl_add_u32 v{XD}, v5, 4, v6
s_lshl_b32 {T0}, {S_W4}, 10
s_add_u32 {S_XA}, {T0}, {L_X}
s_mov_b32 {T2}, {L_X}""")
    x_read_addrs(a, 8, "v1", T2, TMP)
    a(f"""v_mov_b32 v14, {L_SYNC+128}
v_mov_b32 v15, 1
v_mov_b32 v{P_BC}, {L_SYNC}
s_lshl_b32 {T1}, {S_CG}, 1""")
    lwait(a, f"v{P_BC}", P_LS, 4, 34, sleep=1)
    a(f"""ds_read_b64 {V(PN,2)}, v{P_BC} offset:64
v_lshlrev_b32 v{P_PF}, 7, v1
s_add_u32 s74, s20, {FA1}
s_addc_u32 s75, s21, 0
s_waitcnt lgkmcnt(0)
v_readfirstlane_b32 s62, v{PN}
v_readfirstlane_b32 s63, v{PN+1}
s_lshl_b32 {T0}, s2, 2
s_add_u32 {T0}, {T0}, {S_W4}
s_cmp_lg_u32 {T0}, 0
s_cbranch_scc1 L_noinit
s_mov_b32 {T0}, {FA1}
buffer_store_dwordx2 {V(PN,2)}, v{P_PF}, {sWS}, {T0} offen offset:2048 sc1
s_mov_b32 {T2}, {FA1 + 8192}
buffer_store_dwordx2 {V(PN,2)}, v{P_PF}, {sWS}, {T2} offen offset:2048 sc1
s_mov_b64 exec, 0xff00
buffer_store_dwordx2 {V(PN,2)}, v{P_PF}, {sWS}, {T0} offen sc1
s_waitcnt vmcnt(0)
s_mov_b64 exec, 0xff
buffer_store_dwordx2 {V(PN,2)}, v{P_PF}, {sWS}, {T0} offen sc1
s_mov_b64 exec, -1
L_noinit:""")
    def wpull():
        L1, L2 = a.lab("wp"), a.lab("wp")
        a(f"""s_lshl_b32 {T2}, {S_IDX}, 1
s_lshr_b32 {T3}, {S_W4}, 1
s_add_u32 {T2}, {T2}, {T3}
s_mul_i32 {T2}, {T2}, 14400
s_mul_i32 {T3}, {S_XCD}, 1800
s_add_u32 {T2}, {T2}, {T3}
s_mov_b64 exec, 0x7fff
s_bitcmp1_b32 {S_W4}, 0
s_cbranch_scc1 {L1}
buffer_load_ushort v{P_DUM}, v{P_PF}, {sWR}, {T2} offen
s_branch {L2}
{L1}:
buffer_load_ushort v{P_DUM}, v{P_PF}, {sWI}, {T2} offen
{L2}:
s_mov_b64 exec, -1""")
    stamp(a, 2)
    if cfg.wpf == 2: wpull()
    lwait(a, f"v{P_BC}", P_LS, 4, 20, sleep=1, off=8)
    if cfg.xas:
        a(f"s_mul_i32 {T2}, {S_H}, 7\ns_bfe_u32 {T2}, {T2}, 0x30001\ns_cmp_gt_u32 {T2}, 4\ns_cbranch_scc0 L_xago")
        lwait(a, f"v{P_BC}", P_LS, 4 * cfg.xas, 30, sleep=1, off=4)
        a("L_xago:")
    for c in range(7):
        if c == cfg.xae:
            if cfg.wpf == 1: wpull()
            if cfg.xalate == 1: lwait(a, f"v{P_BC}", P_LS, 4, 38, sleep=1, off=12)
            elif cfg.xalate == 2: lwait(a, f"v{P_BC}", P_LS, 9, 38, sleep=1)
            elif cfg.xafirst: lwait(a, f"v{P_BC}", P_LS, 8, 38)
            else: lwait(a, f"v{P_BC}", P_LS, 4, 38, sleep=1, off=16)
        a(f"""s_add_u32 {T2}, {T1}, 1
s_lshr_b32 {T3}, {T2}, 1
s_lshl_b32 {T3}, {T3}, 14
s_and_b32 {T4}, {T1}, 1
s_lshl_b32 {T4}, {T4}, 12
s_sub_u32 {T3}, {T3}, {T4}
s_add_u32 m0, {S_XA}, {T3}
s_lshl_b32 {T4}, {T1}, 7
buffer_load_dwordx4 v{XD}, {sX}, {T4} offen{' nt' if cfg.nta else ''} lds
s_cmp_eq_u32 {T2}, 7
s_cselect_b32 {T1}, 0, {T2}""")
    for p_ in pieces: p_()
    pieces = []
    assert not pieces
    a(f"""v_add_u32 v13, {L_M}, v7
s_lshl_b32 {T0}, {S_W4}, 10
v_add_u32 v5, {T0}, v13
ds_write_b128 v5, {V(ACC+8,4)}
s_cmp_eq_u32 {S_W4}, 0
s_cbranch_scc0 L_chkd
s_lshl_b32 {T1}, {S_XCD}, 7
s_mov_b32 {S_TO}, {cfg.poll_limit}
L_chk:
s_load_dwordx2 s[76:77], {SB}, {T1} glc
s_waitcnt lgkmcnt(0)
s_sub_u32 s76, s76, s62
s_lshr_b32 s76, s76, 5
s_xor_b32 s77, s77, s63
s_or_b32 s76, s76, s77
s_cbranch_scc0 L_chkd
s_sleep 4
s_sub_u32 {S_TO}, {S_TO}, 1
s_cbranch_scc0 L_chk
s_mov_b32 {S_TO}, 35
s_branch L_fail
L_chkd:""")
    WW = 136 if cfg.woearly else 72; AC = 152; FR = 168; TP = 200
    wl = []
    for r in range(8):
        wl.append(f"s_mov_b32 {T0}, {14400*(8*(r//4) + r%4)}\nbuffer_load_short_d16_hi v{WW+r}, v{P_W}, {sWR}, {T0} offen{' nt' if cfg.ntw else ''}")
        wl.append(f"buffer_load_short_d16_hi v{WW+8+r}, v{P_W}, {sWI}, {T0} offen{' nt' if cfg.ntw else ''}")
    if cfg.wearly:
        for s_ in wl: a(s_)
        a("s_waitcnt vmcnt(16)")
    else: a("s_waitcnt vmcnt(0)")
    stamp(a, 3)
    if cfg.noA == 1:
        a(f"s_mov_b64 exec, 1\nds_add_u32 v14, v15 offset:4\ns_mov_b64 exec, -1")
        stamp(a, 12); dump_stamps(a, 16); a("s_endpgm")
    albar(16)
    RG = cfg.ring
    def xreg(m): return (TMP + 4*m if m < 4 else 72 + 4*(m - 4)) if m < RG else F + 4*(m - RG)
    def xr(m): return f"ds_read_b128 {V(xreg(m),4)}, v{8+m%4} offset:{((m//4+1)>>1)*16384 - ((m//4)&1)*4096}"
    assert not (cfg.wearly and RG > 4)
    for m in range(RG): a(xr(m))
    P1 = F; P2 = F + 16; XP = TMP; M = F + 32
    if cfg.mprio == 0: a("s_setprio 0")
    nds = RG
    for m in range(28):
        a(f"s_waitcnt lgkmcnt({nds - m - 1})")
        a(mfma(ACC, xreg(m), F + 4*m, None if m == 0 else ACC))
        if m + RG < 28: a(xr(m + RG)); nds += 1
        elif m >= 24: a(f"ds_read_b128 {V(M+4*(m-24),4)}, v13 offset:{(m-24)*1024}"); nds += 1
    a(f"s_setprio {cfg.aprio}")
    lwait(a, f"v{P_BC}", P_LS, 8, 27, sleep=1)
    a(f"""s_lshl_b32 {T0}, {S_W4}, 11
s_add_u32 {T0}, {T0}, {L_MS}
v_add_u32 v5, {T0}, v7
ds_write_b128 v5, v[48:51]
ds_write_b128 v5, v[52:55] offset:1024
s_lshr_b32 {T0}, {S_KT16}, 1
s_lshl_b32 {T0}, {T0}, 13
s_lshl_b32 {T1}, {S_B}, 7
s_add_u32 {T1}, {T1}, {TBUF}
s_add_u32 {T0}, {T0}, {T1}
s_and_b32 {T2}, {S_KT16}, 1
s_lshl_b32 {T2}, {T2}, 6
s_add_u32 {T0}, {T0}, {T2}
s_add_u32 {T2}, {T0}, {16*65536}
s_cmp_ge_u32 {S_W4}, {S_CNT}
s_cbranch_scc1 L_a1done
s_waitcnt lgkmcnt(0)""")
    for q in range(8): a(f"v_cvt_pk_bf16_f32 v{XP+q}, v{ACC+2*q}, v{ACC+2*q+1}")
    a(mfma(P1, XP, M)); a(mfma(P2, XP, M + 8)); a(mfma(P1, XP + 4, M + 4, P1)); a(mfma(P2, XP + 4, M + 12, P2))
    for r in range(0, 8, 2):
        pk2(a, "add", ACC+r, P1+r, P2+r+8, neg="1", scalar=cfg.nopk & 4); pk2(a, "add", ACC+8+r, P1+r+8, P2+r, scalar=cfg.nopk & 4)
    for r in range(8): a(f"v_cvt_pk_bf16_f32 v{XP+8+r}, v{ACC+r}, v{ACC+8+r}")
    a(f"""s_cmp_lg_u32 {S_KT16}, 0
s_cbranch_scc1 L_a1st
s_mov_b32 exec_hi, 0
v_cvt_pk_bf16_f32 v{XP+8}, v{P1}, v{P2}
v_cvt_pk_bf16_f32 v6, v{P1+8}, v{P2+8}
v_lshlrev_b32 v5, 16, v2
s_mov_b32 exec_hi, -1
L_a1st:
ds_write_b128 v{P_TTW}, {V(XP+8,4)}
ds_write_b128 v{P_TTW}, {V(XP+12,4)} offset:32
ds_read_b128 {V(XP,4)}, v{P_TTR}
ds_read_b128 {V(XP+4,4)}, v{P_TTR} offset:1024
s_mov_b32 {T4}, {T0}
s_waitcnt lgkmcnt(0)""")
    stamp(a, 1, 5)
    if cfg.tdefer: lwait(a, f"v{P_BC}", P_LS, 4, 28, sleep=1, off=12)
    if cfg.tdelay: a(f"s_sleep {cfg.tdelay}")
    if cfg.tstag:
        for q in (1, 2, 3): a(f"s_cmp_lt_u32 {S_W4}, {q}\ns_cbranch_scc1 L_tst\ns_sleep {cfg.tstag}")
        a("L_tst:")
    a(f"""s_cmp_lg_u32 {S_KT16}, 0
s_cbranch_scc1 L_a1st2
s_mov_b32 exec_hi, 0
s_add_u32 {T1}, {T1}, {7*8192}
buffer_store_dword v6, v5, {sWS}, {T1} offen sc1
s_mov_b32 exec_hi, -1
L_a1st2:
{"s_branch L_a1done" if cfg.ko & 8 else ""}
buffer_store_dwordx4 {V(XP,4)}, v{P_TST}, {sWS}, {T4} offen sc1
{"s_sleep %d" % (cfg.tstag // 2) if cfg.tstag else ""}
buffer_store_dwordx4 {V(XP+4,4)}, v{P_TST}, {sWS}, {T2} offen sc1
L_a1done:""")
    stage_arrive(0)
    stamp(a, 4)
    lwait(a, f"v{P_BC}", P_LS, 4, 29, sleep=1, off=12)
    if cfg.wdelay: a(f"s_sleep {cfg.wdelay}")
    if cfg.wpf == 3: wpull()
    if not cfg.wearly and not cfg.wlate: burst([x + (f"\ns_sleep {cfg.wpace}" if cfg.wpace else "") for x in wl], cfg.th_w)
    if cfg.wopf and not cfg.wolate:
        burst([f"""s_lshl_b32 {T0}, {S_IDX}, 2
s_add_u32 {T0}, {T0}, {S_W4}
s_mul_i32 {T0}, {T0}, {25*128}
s_bfm_b64 exec, 25, 0
buffer_load_dword v{P_DUM}, v{P_PF}, {sWO}, {T0} offen
s_mov_b64 exec, -1"""], 1)
    if cfg.ohint:
        for q in range(4): a(f"v_mov_b32 v{TP+q}, -1")
        a(f"""s_lshr_b32 {T0}, {S_XCD}, 1
s_lshl_b32 {T0}, {T0}, 2
s_add_u32 {T0}, {T0}, {S_RR}
s_lshl_b32 {T0}, {T0}, 2
s_add_u32 {T0}, {T0}, {S_W4}
s_lshl_b32 {T0}, {T0}, 4
s_add_u32 {T0}, {T0}, {S_H}
s_lshl_b32 {T0}, {T0}, 11
s_add_u32 {T0}, {T0}, {OBUF}""")
        a(f"s_mov_b32 s72, {T0}")
        marks = [f"buffer_store_dwordx4 {V(TP,4)}, v7, {sWS}, s72 offen offset:{1024*q} sc1" for q in range(2)]
        if not cfg.wolate: burst(marks, 2)
    WO = 72
    S_WOL = "s70"
    a(f"s_lshl_b32 {S_WOL}, {S_W4}, 10\ns_add_u32 {S_WOL}, {S_WOL}, {L_X}")
    def wo_list(rnd):
        return [f"s_add_u32 m0, {S_WOL}, {i*4096}\ns_mov_b32 s71, {(rnd*224 + i*16)*896}\nbuffer_load_dwordx4 v{P_WOD}, {sWO}, s71 offen lds" for i in range(14)]
    def ride(q, n=1):
        it = [q.pop(0) for _ in range(min(n, len(q)))]
        if it: burst(it, n)
        pace()
    def wo_rd(f, d, r1, r2):
        hl, mu = f // 2, f % 2
        return [f"ds_read_b64_tr_b16 {V(d+2*sec,2)}, v{r2 if (mu and sec) else r1} offset:{(28*hl + 16*mu + 8*sec)*256}" for sec in range(2)]
    def wo_reads(h):
        for f in range(16):
            for s_ in wo_rd(f, WO + 64*h + 4*f, P_WOR, P_WOR2): a(s_)
    assert cfg.allpoll
    if cfg.woearly:
        assert cfg.wlate and not cfg.wolate
        lwait(a, "v14", P_LS, 4, 45, sleep=2, off=8)
        burst(wo_list(0), cfg.th_wo)
        a("s_waitcnt vmcnt(0)")
        albar(46)
        wo_reads(0)
    stamp(a, 5)
    stage_wait(0, cfg.a2wait)
    a(f"s_lshl_b32 {T1}, {S_W4}, 11")
    stamp(a, 6)
    a(f"""s_lshl_b32 {T0}, {S_TASK}, 13
s_add_u32 {T0}, {T0}, {T1}
s_add_u32 {T0}, {T0}, {TBUF}""")
    burst([f"buffer_load_dword v{FR+q}, v{P_TLD}, {sWS}, {T0} offen offset:{(q//4)*1024 + (q%4)*128} sc1" for q in range(8)], 8)
    a(f"s_waitcnt vmcnt(0)\nds_write_b128 v{P_TBW}, {V(FR,4)}\nds_write_b128 v{P_TBW}, {V(FR+4,4)} offset:1024" if not cfg.wlate else "")
    if cfg.wlate:
        burst(wl, 24)
        a(f"s_waitcnt vmcnt(16)\nds_write_b128 v{P_TBW}, {V(FR,4)}\nds_write_b128 v{P_TBW}, {V(FR+4,4)} offset:1024")
    stamp(a, 1, 4)
    albar(6)
    stamp(a, 2, 4)
    def dft64(base):
        for m in range(8): a(f"ds_read_b128 {V(FR+4*m,4)}, v{P_TBR} offset:{base + m*1024}")
        if cfg.mprio == 0: a("s_setprio 0")
        for m in range(8):
            a(f"s_waitcnt lgkmcnt({7-m})")
            a(mfma(AC, FB + 4*m, FR + 4*m, None if m == 0 else AC))
            if cfg.mprio: ride(woq)
            elif woq: a(woq.pop(0))
        a(f"s_setprio {cfg.aprio}")
    woq = marks if cfg.wolate else wo_list(1 if cfg.woearly else 0)
    dft64(0)
    a(f"s_waitcnt vmcnt({2 if cfg.wolate else 8})\ns_cmp_eq_u32 {S_HH}, 7\ns_cbranch_scc0 L_a2nx")
    for r in range(8):
        a(f"v_mov_b32 v{TP}, v{WW+r}\nv_xor_b32 v{WW+r}, 0x80000000, v{WW+8+r}\nv_mov_b32 v{WW+8+r}, v{TP}")
    a("L_a2nx:")
    for r in range(0, 8, 2):
        a(f"""v_pk_mul_f32 {V(FR+r,2)}, {V(AC+r,2)}, {V(WW+r,2)}
v_pk_mul_f32 {V(FR+8+r,2)}, {V(AC+r,2)}, {V(WW+8+r,2)}
v_pk_fma_f32 {V(FR+r,2)}, {V(AC+8+r,2)}, {V(WW+8+r,2)}, {V(FR+r,2)} neg_lo:[1,0,0] neg_hi:[1,0,0]
v_pk_fma_f32 {V(FR+8+r,2)}, {V(AC+8+r,2)}, {V(WW+r,2)}, {V(FR+8+r,2)} neg_lo:[1,0,1] neg_hi:[1,0,1]
v_cvt_pk_bf16_f32 v{TP+r}, v{FR+r}, v{FR+8+r}
v_cvt_pk_bf16_f32 v{TP+r+1}, v{FR+r+1}, v{FR+8+r+1}""")
    a(f"ds_write_b128 v{P_TBW}, {V(TP,4)} offset:8192\nds_write_b128 v{P_TBW}, {V(TP+4,4)} offset:9216")
    stamp(a, 3, 4)
    albar(7)
    stamp(a, 4, 4)
    dft64(8192)
    if cfg.uinp:
        a(f"s_lshl_b32 {T0}, {S_TASK}, 13\ns_lshl_b32 {T1}, {S_W4}, 11\ns_add_u32 {T0}, {T0}, {T1}\ns_add_u32 {T0}, {T0}, {TBUF}")
    else:
        a(f"""s_lshl_b32 {T0}, {S_HH}, 12
s_lshr_b32 {T1}, {S_TASK}, 3
s_lshl_b32 {T1}, {T1}, 7
s_add_u32 {T0}, {T0}, {T1}
s_add_u32 {T0}, {T0}, {UBUF}
s_lshl_b32 {T1}, {S_W4}, 19
s_add_u32 {T0}, {T0}, {T1}""")
    for r in range(8): a(f"v_cvt_pk_bf16_f32 v{TP+r}, v{AC+r}, v{AC+8+r}")
    stamp(a, 5, 4)
    a(f"s_cmp_eq_u32 {S_HH}, {S_HH if cfg.ko & 8 else 7}\ns_cselect_b32 exec_lo, 1, -1\ns_cselect_b32 exec_hi, 1, -1")
    if cfg.uinp:
        burst([f"buffer_store_dword v{TP+r}, v{P_TLD}, {sWS}, {T0} offen offset:{(r//4)*1024 + (r%4)*128} sc1" for r in range(8)], 8)
    else:
        burst([f"s_add_u32 {T1}, {T0}, {(8*(r//4) + r%4) * USTR}\nbuffer_store_dword v{TP+r}, v{P_UST}, {sWS}, {T1} offen sc1" for r in range(8)], 8)
    a("s_mov_b64 exec, -1")
    stage_arrive(1)
    stamp(a, 7)
    U0 = 16; U1 = 32; AR = 200; AI = 216
    MSR = [48, 52, 56, 60, 64, 68, 232, 240]
    if cfg.wolate:
        burst(wo_list(0), cfg.th_wo)
        a("s_waitcnt vmcnt(0)")
    albar(4)
    wo_reads(1 if cfg.woearly else 0)
    for q in range(8): a(f"ds_read_b128 {V(MSR[q],4)}, v7 offset:{L_MS + q*1024}")
    if not cfg.woearly:
        albar(24)
        if not cfg.wolate: burst(wo_list(1), cfg.th_wo)
    stage_wait(1, 0 if cfg.wolate else cfg.a3wait)
    stamp(a, 8)
    if cfg.uinp:
        a(f"""s_lshl_b32 {T0}, {S_BP}, 7
s_add_u32 {T0}, {T0}, {TBUF}
s_lshl_b32 {T1}, {S_W4}, 13
s_lshl_b32 {T3}, {S_K1}, 13
s_add_u32 {T2}, {T0}, {T3}
s_add_u32 {T1}, {T0}, {T1}""")
        burst([f"s_add_u32 {T0}, {T1 if q < 16 else T2}, {(8*((q%16)//4) + q%4) * 65536}\nbuffer_load_dword v{U0+q}, v{P_F2}, {sWS}, {T0} offen sc1" for q in range(32)], cfg.th_u)
    else:
        a(f"""s_lshl_b32 {T0}, {S_BP}, 15
s_add_u32 {T0}, {T0}, {UBUF}
s_lshl_b32 {T1}, {S_W4}, 12
s_lshl_b32 {T3}, {S_K1}, 12
s_add_u32 {T2}, {T0}, {T3}
s_add_u32 {T1}, {T0}, {T1}""")
        burst([f"buffer_load_dword v{U0+q}, v{P_TLD}, {sWS}, {T1 if q < 16 else T2} offen offset:{((q%16)//4)*1024 + (q%4)*128} sc1" for q in range(32)], cfg.th_u)
    if cfg.wolate: burst(wo_list(1), 46)
    elif not cfg.woearly:
        a("s_waitcnt vmcnt(32)")
        albar(10)
        wo_reads(1)
    stamp(a, 11, 4)
    a(f"""s_lshl_b32 {T4}, {S_BP}, 2
s_add_u32 {T4}, {T4}, {S_W4}
s_lshl_b32 {T3}, {T4}, 13
s_add_u32 {T3}, {T3}, {OBUF}
s_add_u32 {T2}, {T3}, 4096
s_and_b32 {T4}, {S_BP}, 60
s_add_u32 {T4}, {T4}, {S_W4}
s_lshl_b32 {T4}, {T4}, 9
s_add_u32 {T4}, {T4}, {FO}
s_lshl_b32 {T1}, {S_W4}, 13
v_add_u32 v9, {T1}, v7""")
    def step6(ur, ui, va, last):
        if last and cfg.apoll: a(poll_issue(f"v{P_PF}", T4, P_PS, 4))
        if cfg.mprio == 0: a("s_setprio 0")
        for m in range(4):
            a(mfma(AR, ur + 4*m, MSR[2*m], None if m == 0 else AR))
            if cfg.pace6: a(f"s_sleep {cfg.pace6}")
            a(mfma(AI, ui + 4*m, MSR[2*m+1], None if m == 0 else AI))
            if cfg.pace6: a(f"s_sleep {cfg.pace6}")
        a(f"s_setprio {cfg.aprio}")
        for q in range(16):
            a(f"v_cvt_pk_bf16_f32 v{ur+q}, v{AR+2*q}, v{AR+2*q+1}")
            if q % 4 == 3: a(f"ds_write_b128 v{va}, {V(ur+q-3,4)} offset:{(q//4)*1024}")
    if cfg.s6late: lwait(a, f"v{P_BC}", P_LS, 20, 37, sleep=2)
    a(f"s_waitcnt vmcnt({14 if cfg.wolate else 0})\ns_cmp_eq_u32 {S_W4}, 0\ns_cbranch_scc1 L_a3w0")
    step6(U0, U0, P_ZW0, False)
    step6(U1, U1, P_ZW1, True)
    a(f"s_branch L_a3z\nL_a3w0:\ns_mov_b32 exec_lo, -2\ns_mov_b32 exec_hi, -2")
    for q in range(16): a(f"v_mov_b32 v{U1+q}, v{U0+q}")
    a("s_mov_b64 exec, -1")
    step6(U0, U1, P_ZW0, True)
    a("L_a3z:\ns_mov_b64 exec, 1\nds_add_u32 v14, v15 offset:4\ns_mov_b64 exec, -1")
    stamp(a, 9)
    if cfg.wolate:
        a(f"s_waitcnt vmcnt({1 if cfg.apoll else 0})")
        lbar(a, "v14", "v15", P_LS, 10)
        wo_reads(1)
    osc = ("", " sc1", " nt", " sc0 sc1")[cfg.outsc]
    def out_store(rowmul, colbase, skip):
        a(f"""v_mul_u32_u24 v5, {rowmul}, v2
v_lshl_add_u32 v5, v3, 5, v5
s_lshl_b32 {T1}, {S_DT}, 6
s_add_u32 {T0}, {T0}, {T1}
s_add_u32 {T0}, {T0}, {colbase}
s_cmp_ge_u32 {S_W4}, {S_CNT}
s_cbranch_scc1 {skip}""")
        for q in range(4): a(f"v_cvt_pk_bf16_f32 v{64+q}, v{AR+2*q}, v{AR+2*q+1}")
        a(f"buffer_store_dwordx4 v[64:67], v5, {sOUT}, {T0} offen{osc}")
        for q in range(4, 8): a(f"v_cvt_pk_bf16_f32 v{64+q}, v{AR+2*q}, v{AR+2*q+1}")
        a(f"buffer_store_dwordx4 v[68:71], v5, {sOUT}, {T0} offen offset:16{osc}\n{skip}:")
    stamp(a, 10)
    a(f"s_mov_b32 s71, {cfg.poll_limit}")
    if cfg.apoll: a(f"s_waitcnt vmcnt(0)\n{poll_check(P_PS, 4)}\ns_cbranch_scc0 L_aoload")
    poll(a, f"v{P_PF}", T4, P_PS, 4, 42, sleep=cfg.osleep)
    a("L_aoload:")
    for q in range(8):
        a(f"buffer_load_dwordx4 {V(16+4*q,4)}, v7, {sWS}, {T3 if q < 4 else T2} offen offset:{(q%4)*1024} sc1")
    stamp(a, 13)
    lwait(a, f"v{P_BC}", P_LS, 24, 43, sleep=1)
    for q in range(8):
        a(f"s_waitcnt vmcnt({7-q})\nds_write_b128 v9, {V(16+4*q,4)} offset:{L_OB + q*1024}")
        if q == 2: a("v_max3_u32 v5, v16, v20, v24")
        if q in (4, 6): a(f"v_max3_u32 v5, v5, v{12+4*q}, v{16+4*q}")
    a(f"""v_max_u32 v5, v5, v44
v_cmp_eq_u32 vcc, -1, v5
s_cbranch_vccz L_aogot
s_sleep 6
s_sub_u32 s71, s71, 1
s_cbranch_scc0 L_aoload
s_mov_b32 {S_TO}, 44
s_branch L_fail
L_aogot:
s_mov_b64 exec, 1
ds_add_u32 v{P_BC}, v15 offset:20
s_mov_b64 exec, -1""")
    lwait(a, f"v{P_BC}", P_LS, 4, 12, off=20)
    stamp(a, 11)
    OR = 216
    def zr(s_): return f"ds_read_b128 {V(OR+4*(s_%8),4)}, v7 offset:{L_OB + s_*1024}"
    for s_ in range(8): a(zr(s_))
    for s_ in range(32):
        a(f"s_waitcnt lgkmcnt({min(7, 31-s_)})")
        a(mfma(AR, WO + 4*s_, OR + 4*(s_ % 8), None if s_ == 0 else AR))
        if s_ + 8 < 32: a(zr(s_ + 8))
    a(f"s_mul_i32 {T0}, {S_BP}, {32*1792}")
    out_store(1792, 896, "L_b3done")
    a(f"""s_lshl_b32 {T0}, s2, 2
s_add_u32 {T0}, {T0}, {S_W4}
s_cmp_lg_u32 {T0}, 0
s_cbranch_scc1 L_noep
s_mov_b32 {T0}, {EPOCH}""")
    flag(a, T0, 10)
    a("L_noep:")
    if cfg.padend: padto(a, cfg.padend)
    stamp(a, 12)
    dump_stamps(a, 16)
    a("s_endpgm")

def build():
    nh = cfg.nh; xh = 16 // nh
    for wg in range(256):
        xcd, idx = wg & 7, wg >> 3
        h = (xcd % xh) * nh + idx % nh
        assert nh == 8
    a = Asm()
    prologue(a); role_B(a); ROLE[0] = 1; role_A(a)
    a(f"""L_fail:
v_mov_b32 v0, 0
v_mov_b32 v1, {S_TO}
global_store_dword v0, v1, s[18:19]
L_end:
s_endpgm
L_codeend:""")
    a.pad()
    import os
    ref = "cdna_kernels/" + NAME + ".s.ref"
    hdr = open(ref).read().split("; Override launch")[0] if os.path.exists(ref) else ""
    s = hdr + f"; @launch grid=(256,1,1) block=(512,1,1) lds={LDS_SIZE}\n"
    s += f""".amdgcn_target "amdgcn-amd-amdhsa--gfx950"
.text
.globl {NAME}_kernel
.p2align 8
.type {NAME}_kernel,@function
{NAME}_kernel:
""" + a.text() + f""".section .rodata,"a"
.p2align 6
.amdhsa_kernel {NAME}_kernel
  .amdhsa_next_free_vgpr 256
  .amdhsa_next_free_sgpr 102
  .amdhsa_accum_offset 256
  .amdhsa_group_segment_fixed_size 0
  .amdhsa_kernarg_size 72
  .amdhsa_user_sgpr_count 2
  .amdhsa_user_sgpr_kernarg_segment_ptr 1
  .amdhsa_system_sgpr_workgroup_id_x 1
.end_amdhsa_kernel
"""
    return s

if __name__ == "__main__":
    out = sys.argv[1]
    for kv in sys.argv[2:]:
        k, v = kv.split("=")
        setattr(cfg, k, type(getattr(cfg, k))(int(v)))
    open(out, "w").write(build())
```

```python
import sys, math, struct
from asmlib import Asm

NAME = "concat_heads__spectral_gfnet__softmax_full_mha__prompt"

class Cfg:
    nh = 8
    stamps = False
    poll_limit = 1 << 17
    noA = 0
    pxcd = -1
    ptype = 0
    probe = -1
    span = 0
    fine = 0
    padend = 0
    padmid = 0
    dbgwave = -1
    nbuf = 5
    wearly = 0
    touch = 0
    wdelay = 30
    tdelay = 0
    s6late = 0
    lsl = 4
    odefer = 0
    a2wait = 8
    a3wait = 0
    kvwait = 8
    kvrot = 3
    m1 = 12
    ramp = 1
    gate = 2
    wqe = 3
    wqp = 7
    tdefer = 1
    m2 = 27
    xas = 0
    xae = 2
    bhi = 56
    ohint = 1
    wlate = 1
    allpoll = 1
    otry = 1
    gsplit = 8
    claim = 1
    btry = 0
    pace6 = 0
    wolate = 0
    wsoff = 0
    mprio = 0
    xawarm = 0
    wpace = 0
    tstag = 0
    xafirst = 1
    mw = 2
    mwpos = 1
    wqdel = 0
    ring = 8
    apoll = 1
    osleep = 2
    fprio = 0
    nta = 1
    ntw = 1
    ntb = 0
    bsleep = 2
    qst = 0x133
    wopf = 0
    uinp = 1
    woearly = 0
    hack = 0
    ko = 0
    xalate = 0
    ntp = 1
    cost = 3
    nopk = 23
    gtab = 2981409204
    kvp = 1
    owait = 4
    xrot = 0x06543210
    wrot = 1
    pace = 1
    xadefer = 0
    wpf = 0
    outsc = 3
    wqwarm = 1
    th_wo = 14
    th_u = 32
    th_wq = 2
    wqearly = 1
    th_w = 17
    th_xa = 4
    wfair = 8
    xearly = 1
    spf = 0
    spf0 = 150
    pre = 5
    aprio = 2
    force_fb = False
cfg = Cfg()

EPOCH = 0
KV = 0x20000; TS = 61440; VOFF = 28672
OBUF = 0x400000
TBUF = 0x600000
UBUF = 0x800000; USTR = 32768
FKV = 0x8000; FA1 = 0x1000; FO = 0x10000
STAMP = 0xB00000
WS_SIZE = 0x1000000
L_W = 0; L_WQ = 57344; L_X = 86016; L_Q = 151552; L_SYNC = 159744
LDS_SIZE = 160000
L_RED = 0
L_TB = L_WQ; L_YB = L_WQ + 8192; L_MS = 49152; L_TT = L_X + 4096; L_M = L_X + 61440
L_ZB = L_WQ; L_OB = 0
sWS, sWQKV, sX, sWR, sWI, sWO, sOUT = [f"s[{i}:{i+3}]" for i in (24, 28, 32, 36, 40, 44, 48)]
S_WAVE, S_XCD, S_IDX, S_H, S_R, S_W4 = "s56", "s57", "s58", "s59", "s60", "s61"
S_NONCE = "s[62:63]"
S_TO, S_BAR = "s64", "s65"
T0, T1, T2, T3, T4, T5 = "s66", "s67", "s68", "s69", "s22", "s23"
STAMP0 = 84

ZREADY = 24

def f2u(x): return struct.unpack("<I", struct.pack("<f", x))[0]
def lit(x): return "0x%08x" % f2u(x)
def V(a, n=1): return f"v{a}" if n == 1 else f"v[{a}:{a+n-1}]"

def srd(a, name, lo, size):
    i = int(name[2:name.index(":")])
    a(f"s_mov_b32 s{i}, s{lo}\ns_mov_b32 s{i+1}, s{lo+1}\ns_mov_b32 s{i+2}, {size}\ns_mov_b32 s{i+3}, 0x20000")

ROLE = [0]
def stamp(a, i, fine=0):
    if cfg.probe >= 0:
        if fine == cfg.fine and cfg.probe == ROLE[0] * 100 + i:
            a("s_memrealtime s[96:97]\ns_waitcnt lgkmcnt(0)")
        return
    if cfg.fine in (1, 2) and not fine and 3 <= i <= 11: return
    if cfg.fine == 4 and not fine and i in (1, 2, 3, 4, 5, 10, 11, 13): return
    if fine and cfg.fine != fine: return
    if cfg.stamps:
        a(f"s_memtime s[100:101]\ns_waitcnt lgkmcnt(0)\ns_mov_b32 s{STAMP0+i}, s100")

def st0():
    o = f"s_add_u32 s20, s20, {cfg.wsoff << 20}\ns_addc_u32 s21, s21, 0\n" if cfg.wsoff else ""
    return o + (f"s_mov_b32 s{STAMP0+15}, s100\ns_mov_b32 s{STAMP0}, s38" if cfg.stamps else "")

def dump_stamps(a, vt):
    if cfg.probe >= 0:
        if cfg.probe // 100 == ROLE[0]:
            L = a.lab("pr")
            if cfg.pxcd >= 0: a(f"s_cmp_lg_u32 {S_XCD}, {cfg.pxcd}\ns_cbranch_scc1 {L}x")
            if cfg.ptype: a(f"s_cmp_eq_u32 {S_LC}, 7\ns_cbranch_scc{cfg.ptype - 1} {L}x")
            if cfg.probe % 100 == 99: a("s_mov_b32 s96, s100")
            a(f"s_sub_u32 s96, s96, s100\ns_cmp_gt_u32 s96, 4000\ns_cselect_b32 s96, 0, s96\ns_add_u32 s96, s96, 2600\n{L}:\ns_memrealtime s[98:99]\ns_waitcnt lgkmcnt(0)\ns_sub_u32 s98, s98, s100\ns_cmp_lt_u32 s98, s96\ns_cbranch_scc1 {L}\n{L}x:")
        return
    if cfg.span:
        a(f"s_waitcnt vmcnt(0)\ns_memrealtime s[98:99]\ns_lshl_b32 {T0}, s2, 3\ns_add_u32 {T0}, {T0}, {S_WAVE}\ns_lshl_b32 {T0}, {T0}, 3\ns_add_u32 {T0}, {T0}, {STAMP}\ns_waitcnt lgkmcnt(0)")
        a(f"v_mov_b32 v{vt}, s100\nv_mov_b32 v{vt+1}, s98\nv_mov_b32 v{vt+2}, 0\ns_mov_b64 exec, 1\nbuffer_store_dwordx2 {V(vt,2)}, v{vt+2}, {sWS}, {T0} offen\ns_mov_b64 exec, -1")
    if not cfg.stamps: return
    a(f"s_memrealtime s[100:101]\ns_waitcnt lgkmcnt(0)\ns_mov_b32 s{STAMP0+14}, s100")
    if cfg.dbgwave >= 0:
        L = a.lab("nodbg")
        a(f"s_lshl_b32 {T0}, s2, 3\ns_add_u32 {T0}, {T0}, {S_WAVE}\ns_cmp_lg_u32 {T0}, {cfg.dbgwave}\ns_cbranch_scc1 {L}")
        a(f"v_mov_b32 v{vt+4}, 0\ns_mov_b64 exec, 1")
        for i in range(1, 16):
            a(f"s_sub_u32 {T1}, s{STAMP0+i}, s{STAMP0 + (15 if i >= 14 else 0)}\nv_mov_b32 v{vt}, {T1}\nglobal_store_dword v{vt+4}, v{vt}, s[18:19] offset:{4*i}")
        a(f"s_mov_b64 exec, -1\n{L}:")
    a(f"s_lshl_b32 {T0}, s2, 3\ns_add_u32 {T0}, {T0}, {S_WAVE}\ns_lshl_b32 {T0}, {T0}, 7\ns_add_u32 {T0}, {T0}, {STAMP}")
    a(f"v_mov_b32 v{vt+4}, 0\ns_mov_b64 exec, 1")
    for q in range(4):
        for i in range(4): a(f"v_mov_b32 v{vt+i}, s{STAMP0+4*q+i}")
        a(f"buffer_store_dwordx4 {V(vt,4)}, v{vt+4}, {sWS}, {T0} offen offset:{16*q}")
    a("s_mov_b64 exec, -1")

def padto(a, ticks):
    L = a.lab("pad")
    a(f"{L}:\ns_memrealtime s[100:101]\ns_waitcnt lgkmcnt(0)\ns_sub_u32 s100, s100, s{STAMP0+15}\ns_cmp_lt_u32 s100, {ticks}\ns_cbranch_scc1 {L}")

def poll_issue(vaddr, soff, vt, n):
    return f"""v_mov_b32 v{vt}, 0
v_mov_b32 v{vt+1}, 0
s_bfm_b64 exec, {n}, 0
buffer_atomic_or_x2 {V(vt,2)}, {vaddr}, {sWS}, {soff} offen sc0 sc1
s_mov_b64 exec, -1"""

def poll_check(vt, n):
    return f"v_cmp_ne_u64 vcc, {S_NONCE}, {V(vt,2)}\ns_and_b32 vcc_lo, vcc_lo, {hex((1 << n) - 1)}"

def poll(a, vaddr, soff, vt, n, code, sleep=2):
    L, Dn = a.lab("poll"), a.lab("polld")
    a(f"""s_mov_b32 {S_TO}, {cfg.poll_limit}
{L}:
{poll_issue(vaddr, soff, vt, n)}
s_waitcnt vmcnt(0)
{poll_check(vt, n)}
s_cbranch_scc0 {Dn}
s_sleep {sleep}
s_sub_u32 {S_TO}, {S_TO}, 1
s_cbranch_scc0 {L}
s_mov_b32 {S_TO}, {code}
s_branch L_fail
{Dn}:""")

def publish_wg(a, vsync, vone, off, vt, soff, vn, last=3):
    L = a.lab("pub")
    a(f"""s_mov_b64 exec, 1
ds_add_rtn_u32 v{vt}, {vsync}, {vone} offset:{off}
s_waitcnt lgkmcnt(0)
v_readfirstlane_b32 {T0}, v{vt}
s_cmp_eq_u32 {T0}, {last}
s_cselect_b64 exec, 1, 0
buffer_store_dwordx2 {V(vn,2)}, v{vn+2}, {sWS}, {soff} offen sc1
s_mov_b64 exec, -1""")

def flag(a, soff, vt):
    a(f"""v_mov_b32 v{vt}, s62
v_mov_b32 v{vt+1}, s63
v_mov_b32 v{vt+2}, 0
s_mov_b64 exec, 1
buffer_store_dwordx2 {V(vt,2)}, v{vt+2}, {sWS}, {soff} offen sc1
s_mov_b64 exec, -1""")

def flag2(a, soff, vn):
    a(f"s_mov_b64 exec, 1\nbuffer_store_dwordx2 {V(vn,2)}, v{vn+2}, {sWS}, {soff} offen sc1\ns_mov_b64 exec, -1")

def lwait(a, vsync, vt, target, code, sleep=0, off=0):
    L, Dn = a.lab("lw"), a.lab("lwd")
    a(f"""s_mov_b32 {S_TO}, {cfg.poll_limit * 8}
{L}:
ds_read_b32 v{vt}, {vsync} offset:{off}
s_waitcnt lgkmcnt(0)
v_readfirstlane_b32 {T0}, v{vt}
s_cmp_ge_u32 {T0}, {target}
s_cbranch_scc1 {Dn}
{"s_sleep %d" % sleep if sleep else ""}
s_sub_u32 {S_TO}, {S_TO}, 1
s_cbranch_scc0 {L}
s_mov_b32 {S_TO}, {code}
s_branch L_fail
{Dn}:""")

def lbar(a, vsync, vone, vt, code, sleep=0):
    L, Dn = a.lab("lb"), a.lab("lbd")
    a(f"""s_add_u32 {S_BAR}, {S_BAR}, 4
s_mov_b64 exec, 1
ds_add_u32 {vsync}, {vone}
s_mov_b64 exec, -1
s_mov_b32 {S_TO}, {cfg.poll_limit * 8}
{L}:
ds_read_b32 v{vt}, {vsync}
s_waitcnt lgkmcnt(0)
v_readfirstlane_b32 {T0}, v{vt}
s_cmp_ge_u32 {T0}, {S_BAR}
s_cbranch_scc1 {Dn}
{"s_sleep %d" % sleep if sleep else ""}
s_sub_u32 {S_TO}, {S_TO}, 1
s_cbranch_scc0 {L}
s_mov_b32 {S_TO}, {code}
s_branch L_fail
{Dn}:""")

def mfma(d, A, B, C=None):
    return f"v_mfma_f32_32x32x16_bf16 {V(d,16)}, {V(A,4)}, {V(B,4)}, {'0' if C is None else V(C,16)}"

def pk2(a, op, d, x, y, z=None, neg="", scalar=False):
    srcs = [x, y] + ([z] if z is not None else [])
    if not scalar:
        m = "[" + ",".join("1" if str(i) in neg else "0" for i in range(len(srcs))) + "]"
        a(f"v_pk_{op}_f32 {V(d,2)}, " + ", ".join(V(r,2) for r in srcs) + (f" neg_lo:{m} neg_hi:{m}" if neg else ""))
        return
    for q in range(2):
        if op == "add" and neg == "1": a(f"v_sub_f32 v{d+q}, v{x+q}, v{y+q}")
        else: a(f"v_{op}_f32 v{d+q}, " + ", ".join(("-" if str(i) in neg else "") + f"v{r+q}" for i, r in enumerate(srcs)))

def mod7(a, s, t):
    a(f"s_mul_i32 {t}, {s}, 9363\ns_lshr_b32 {t}, {t}, 16\ns_mul_i32 {t}, {t}, 7\ns_sub_u32 {s}, {s}, {t}")

def x_read_addrs(a, v0, vl, base_s, t):
    a(f"""v_and_b32 v{t}, 31, {vl}
v_lshrrev_b32 v{t+1}, 5, {vl}
v_bfe_u32 v{t+2}, {vl}, 1, 3
v_xor_b32 v{t+1}, v{t+1}, v{t+2}
v_lshlrev_b32 v{t}, 7, v{t}
v_add_u32 v{t}, {base_s}, v{t}""")
    for mm in range(4):
        a(f"v_xor_b32 v{t+2}, {2*mm}, v{t+1}\nv_lshl_add_u32 v{v0+mm}, v{t+2}, 4, v{t}")


S_HH, S_RR, S_J, S_P0, S_LC = "s52", "s53", "s54", "s55", "s3"

def prologue(a):
    a(f"""s_cmp_ge_u32 s2, 256
s_cbranch_scc1 L_end
s_load_dwordx16 s[4:19], s[0:1], 0
s_load_dwordx2 s[20:21], s[0:1], 64""")
    if cfg.span or cfg.probe >= 0: a("s_memrealtime s[100:101]")
    if cfg.stamps:
        a(f"s_memtime s[38:39]\ns_memrealtime s[100:101]")
        for i in range(1, 15): a(f"s_mov_b32 s{STAMP0+i}, 0")
    a(f"""s_lshr_b32 {S_IDX}, s2, 3
s_getpc_b64 s[70:71]
L_pc:
v_lshrrev_b32 v3, 5, v0
v_lshl_add_u32 v3, {S_IDX}, 4, v3
v_lshlrev_b32 v3, 7, v3
v_min_u32 v3, L_codeend-L_pc-4, v3
global_load_dword v255, v3, s[70:71]
v_lshrrev_b32 v2, 6, v0
v_and_b32 v1, 63, v0
v_readfirstlane_b32 {S_WAVE}, v2
s_and_b32 {S_XCD}, s2, 7
s_and_b32 {S_HH}, {S_IDX}, 7
s_lshr_b32 {S_RR}, {S_IDX}, 3
s_and_b32 {T5}, {S_XCD}, 1
s_lshl_b32 {S_H}, {T5}, 3
s_add_u32 {S_H}, {S_H}, {S_HH}
s_lshl_b32 {T0}, {S_HH}, 2
s_cmp_eq_u32 {T5}, 0
s_cselect_b32 {S_LC}, 0x67543210, s2
s_cselect_b32 {S_LC}, {S_LC}, 0x65432170
s_lshr_b32 {S_LC}, {S_LC}, {T0}
s_and_b32 {S_LC}, {S_LC}, 7
s_and_b32 {S_W4}, {S_WAVE}, 3
s_cmp_ge_u32 {S_WAVE}, 4
s_cbranch_scc1 L_roleA""")

def nonce(a):
    a(f"""s_waitcnt lgkmcnt(0)
s_mul_i32 s62, s62, 0x9E3779B1
s_add_u32 s62, s62, 0x7F4A7C15
s_mul_i32 s63, s63, 0x85EBCA6D
s_add_u32 s63, s63, 0x165667B1""")

def role_B(a):
    X = 16; ACC = 128; WB = 160; PK = 224
    SC = 70
    S_XL, S_TILE, S_I = "s77", "s78", "s79"
    TO = 36
    S_WM, S_WO, S_DM, S_DO = "s80", "s81", "s82", "s83"
    a(f"""s_setprio 3
s_mul_i32 {S_J}, {T5}, 7
s_add_u32 {S_J}, {S_J}, {S_LC}
v_lshrrev_b32 v8, 3, v1
v_and_b32 v9, 7, v1
v_mul_u32_u24 v2, 2688, v8
v_bfe_u32 v3, v1, 4, 1
v_lshlrev_b32 v3, 2, v3
v_xor_b32 v3, v9, v3
v_lshl_add_u32 v2, v3, 4, v2
s_lshl_b32 {T0}, {S_J}, 7
s_mul_i32 {T1}, {S_W4}, {8*2688}
s_add_u32 {T0}, {T0}, {T1}
s_add_u32 {T0}, {T0}, 896
v_add_u32 v2, {T0}, v2
s_lshl_b32 {T2}, {S_RR}, 3
s_lshr_b32 {T0}, {0xD66D0770 if cfg.wrot else 0x70707070}, {T2}
s_bfe_u32 {T1}, {T0}, 0x40004
s_and_b32 {T0}, {T0}, 15
s_lshl_b32 {T3}, {S_W4}, 10
s_lshl_b32 {T2}, {T0}, 12
s_add_u32 m0, {T2}, {T3}
s_mul_i32 {S_I}, {T0}, {32*2688}
s_lshl_b32 {T2}, {T1}, 12
s_add_u32 {S_WM}, {T2}, {T3}
s_mul_i32 {S_WO}, {T1}, {32*2688}
s_cmp_ge_u32 {S_RR}, {2 if cfg.wrot else 4}
s_cselect_b32 {T0}, -1, 1
s_lshl_b32 {S_DM}, {T0}, 12
s_mul_i32 {S_DO}, {T0}, {32*2688}
s_cmp_eq_u32 {S_LC}, 7
s_cselect_b32 s30, 0, {448 * 2688}
s_mov_b32 s31, 0x20000
s_waitcnt lgkmcnt(0)
{st0()}
s_mov_b64 s[28:29], s[12:13]""")
    def x_m0(i, j): return f"s_add_u32 m0, {S_XL}, {(i%4)*4096 + j*1024}"
    def x_ld(i, j): return f"buffer_load_dwordx4 v{4+j}, {sX}, s{SC+i} offen{' nt' if cfg.ntb else ''} lds"
    def sc_next(i): return f"s_add_u32 s{SC+i}, s{SC+i-1}, 128\ns_cmp_eq_u32 s{SC+i}, 896\ns_cselect_b32 s{SC+i}, 0, s{SC+i}"
    def w_base(i): return f"v_lshl_add_u32 v12, s{SC+i}, 6, v14\nv_xor_b32 v13, 64, v12"
    def setup_x():
        a(f"""s_mov_b32 s34, {2048*896}
s_mov_b32 s35, 0x20000
s_lshr_b32 {S_R}, {S_XCD}, 1
s_lshl_b32 {S_R}, {S_R}, 2
s_add_u32 {S_R}, {S_R}, {S_RR}
s_lshl_b32 {S_TILE}, {S_R}, 2
s_add_u32 {S_TILE}, {S_TILE}, {S_W4}
v_lshrrev_b32 v10, 4, v1
v_xor_b32 v10, v9, v10
v_xor_b32 v11, 4, v10
v_mul_u32_u24 v12, 896, v8
s_mul_i32 {T2}, {S_TILE}, {32*896}
v_add_u32 v12, {T2}, v12
v_lshl_add_u32 v4, v10, 4, v12
v_lshl_add_u32 v5, v11, 4, v12
v_add_u32 v5, {8*896}, v5
v_add_u32 v6, {16*896}, v4
v_add_u32 v7, {16*896}, v5
s_lshl_b32 {T2}, {S_HH}, 2
s_lshr_b32 s{SC}, {cfg.xrot}, {T2}
s_and_b32 s{SC}, s{SC}, 7
s_lshl_b32 s{SC}, s{SC}, 7
s_lshl_b32 {S_XL}, {S_W4}, 14
s_add_u32 {S_XL}, {S_XL}, {L_X}""")
        a("s_mov_b64 s[32:33], s[10:11]")
    def setup2():
        for i in range(1, 7): a(sc_next(i))
        x_read_addrs(a, 8, "v1", S_XL, 12)
        srd(a, sWS, 20, WS_SIZE)
        a(f"""v_lshrrev_b32 v12, 5, v1
v_lshlrev_b32 v12, 3, v12
v_bfe_u32 v13, v1, 2, 2
v_add_u32 v12, v12, v13
v_bfe_u32 v13, v1, 4, 1
v_lshlrev_b32 v13, 5, v13
v_and_b32 v18, 1, v1
v_bfe_u32 v19, v1, 1, 1
v_lshl_add_u32 v15, v18, 4, v13
v_lshl_add_u32 v15, v19, 3, v15
v_lshl_add_u32 v14, v18, 3, v13
v_lshl_add_u32 v14, v19, 4, v14
s_cmp_eq_u32 {T5}, 1
s_cselect_b64 vcc, -1, 0
v_cndmask_b32 v14, v15, v14, vcc
v_lshl_add_u32 v15, v12, 6, v15
v_add_u32 v15, {L_WQ}, v15
v_bfe_u32 v13, v1, 3, 1
v_lshl_add_u32 v14, v13, 6, v14
v_lshl_add_u32 v14, v12, 7, v14""")
        a(f"""v_lshrrev_b32 v253, 2, v1
v_mul_u32_u24 v253, 2688, v253
v_and_b32 v254, 3, v1
v_lshl_add_u32 v253, v254, 4, v253
s_mul_i32 {S_P0}, {S_H}, 7
s_lshr_b32 {S_P0}, {S_P0}, 1
s_lshl_b32 s80, {S_P0}, 4
s_mul_i32 s81, {S_W4}, {16*2688}
s_add_u32 s80, s80, s81
v_add_u32 v253, s80, v253
s_lshl_b32 s80, {S_W4}, 10
s_add_u32 s80, s80, {L_WQ}
s_and_b32 s81, {S_P0}, 7
s_cmp_gt_u32 s81, 4
s_cselect_b32 s81, 1, 0
s_nop 0""")
        a(w_base(0))
        a(f"v_mov_b32 v250, {L_SYNC}\nv_mov_b32 v251, 1\nv_mov_b32 v246, 0\ns_mov_b32 {S_BAR}, 0")
    VK, VV, VF, VL = 240, 241, 242, 243
    PG = ["s4", "s5", "s6", "s7"]; S_FL = "s8"
    def setup3():
        a(f"""v_lshlrev_b32 v{VL}, 4, v1
s_lshl_b32 {T0}, {S_P0}, 9
v_add_u32 v{VK}, {T0}, v{VL}
s_lshl_b32 {T0}, {S_H}, 11
s_add_u32 {T0}, {T0}, {VOFF}
v_add_u32 v{VV}, {T0}, v{VL}
s_lshr_b32 {T1}, {S_P0}, 3
s_add_u32 {T0}, {S_P0}, 3
s_lshr_b32 {T0}, {T0}, 3
s_sub_u32 {T0}, {T0}, {T1}
v_and_b32 v{VF}, 1, v1
v_mul_u32_u24 v{VF}, {T0}, v{VF}
v_bfe_u32 v18, v1, 1, 1
v_mul_u32_u24 v18, 7, v18
v_add_u32 v{VF}, v{VF}, v18
v_lshlrev_b32 v{VF}, 7, v{VF}
s_lshl_b32 {T0}, {S_W4}, 4
s_add_u32 {T0}, {T0}, {T1}
s_lshl_b32 {T0}, {T0}, 7
s_add_u32 {T3}, {T0}, {FKV}
s_lshr_b32 {T2}, {S_R}, 2
s_lshl_b32 {T2}, {T2}, 3
s_lshr_b32 {T2}, {cfg.gtab if cfg.gtab > 1 else 0x934E39E4}, {T2}
s_mul_i32 {T1}, {S_W4}, {4*TS}
s_add_u32 {T1}, {T1}, {KV}""")
        for p in range(4): a(f"s_add_u32 {T0}, {S_RR}, {p}\ns_and_b32 {T0}, {T0}, 3\ns_mul_i32 s{TO+12+p}, {T0}, {TS}")
        for g in range(4):
            a(f"s_bfe_u32 {T0}, {T2}, {0x20000 + 2*g}\ns_lshl_b32 {PG[g]}, {T0}, 13\ns_add_u32 {PG[g]}, {PG[g]}, {T3}\ns_mul_i32 {T0}, {T0}, {16*TS}\ns_add_u32 {T0}, {T0}, {T1}")
            for p in range(4):
                a(f"s_add_u32 s{TO+4*g+p}, {T0}, " + (f"{p*TS}" if (g == 0 or cfg.kvrot == 0) else f"s{TO+12+p}"))
        a(f"""s_cmp_eq_u32 {S_LC}, 7
s_cselect_b32 {T1}, 15, {S_J}
s_lshl_b32 {T0}, {S_R}, 4
s_add_u32 {T0}, {T0}, {T1}
s_lshl_b32 {T0}, {T0}, 7
s_add_u32 {S_FL}, {T0}, {FKV}""")
    stamp(a, 3, 2)
    XE = cfg.xearly
    def mid():
        stamp(a, 4, 2)
        a("s_barrier")
        if cfg.fine != 2: a(f"s_load_dwordx2 s[62:63], s[20:21], {EPOCH}")
        stamp(a, 5, 2)
    for i in range(14):
        a(f"buffer_load_dwordx4 v2, {sWQKV}, {S_I} offen lds")
        if i == 6:
            if XE:
                setup_x()
                for j in range(4): a(x_m0(0, j)); a("s_nop 0"); a(x_ld(0, j))
                mid()
            a(f"s_mov_b32 m0, {S_WM}\ns_mov_b32 {S_I}, {S_WO}")
            if XE: setup2(); setup3()
        elif i < 13: a(f"s_add_u32 m0, m0, {S_DM}\ns_add_u32 {S_I}, {S_I}, {S_DO}")
        if i == 10 and not XE:
            mid(); setup_x(); setup2(); setup3()
    stamp(a, 8, 2)
    a(f"s_waitcnt vmcnt({cfg.wfair})")
    stamp(a, 10, 2)
    for c in range(XE, 2 + XE):
        for j in range(4): a(x_m0(c, j)); a("s_nop 0"); a(x_ld(c, j))
    stamp(a, 11, 2)
    if cfg.fine == 2: a(f"s_load_dwordx2 s[62:63], s[20:21], {EPOCH}")
    nonce(a)
    a("v_mov_b32 v244, s62\nv_mov_b32 v245, s63\nds_write_b64 v250, v[244:245] offset:64")
    def w_base(i): return f"v_lshl_add_u32 v12, s{SC+i}, 6, v14\nv_xor_b32 v13, 64, v12"
    def wq(i): return f"s_add_u32 m0, s80, {i*4096}\ns_mul_i32 s82, s{SC+i}, {64*21}\nbuffer_load_dwordx4 v253, {sWQKV}, s82 offen lds"
    a(f"s_mov_b32 s30, {448 * 2688}")
    def w_reads(i):
        out = []
        for mm in range(4):
            for ct in range(2):
                for hf in range(2):
                    d = WB + (i % 2) * 32 + mm * 8 + ct * 4 + hf * 2
                    out.append(f"ds_read_b64_tr_b16 {V(d,2)}, v{12+ct} offset:{mm*2048 + hf*512}")
        return out
    def x_reads(i):
        return [f"ds_read_b128 {V(X+16*i+4*mm,4)}, v{8+mm} offset:{(i%4)*4096}" for mm in range(4)]
    a(f"""s_waitcnt vmcnt(8)""")
    stamp(a, 1)
    a(f"s_mov_b64 exec, 1\nds_add_u32 v250, v251\ns_mov_b64 exec, -1")
    for j in range(2): a(x_m0(2 + XE, j)); a("s_nop 0"); a(x_ld(2 + XE, j))
    lwait(a, "v250", 252, 4, 19)
    stamp(a, 3, 1)
    wr0 = w_reads(0)
    for s_ in wr0[:8]: a(s_)
    if not XE: a("s_waitcnt vmcnt(6)")
    for s_ in x_reads(0) + wr0[8:]: a(s_)
    a(f"s_cmp_eq_u32 {T5}, 1\ns_cbranch_scc1 L_kvV")
    for var in ("K", "V"):
        if var == "V": a("L_kvV:")
        late = [f"s_mul_i32 {T4}, {S_TILE}, {TS}", f"s_add_u32 {T4}, {T4}, {KV}", "v_lshlrev_b32 v7, 4, v1"]
        if var == "K":
            late += [f"s_lshl_b32 {T0}, {S_LC}, 12", f"s_add_u32 {T4}, {T4}, {T0}"]
        else:
            late += f"""s_lshl_b32 {T1}, {S_LC}, 6
v_and_b32 v4, 31, v1
v_add_u32 v4, {T1}, v4                    ; col (ct0)
v_add_u32 v5, 32, v4
v_lshrrev_b32 v3, 5, v1
v_lshlrev_b32 v3, 9, v3
v_add_u32 v3, {VOFF}, v3""".split("\n")
            for r in (4, 5):
                late += f"""v_mul_u32_u24 v2, 2341, v{r}
v_lshrrev_b32 v2, 16, v2
v_mul_u32_u24 v2, {2048 - 28*16}, v2
v_lshl_add_u32 v{r}, v{r}, 4, v2
v_add_u32 v{r}, v{r}, v3""".split("\n")
            late += f"""s_lshl_b32 {T1}, {S_LC}, 2
s_lshr_b32 {T2}, 0xDB96420, {T1}
s_and_b32 {T2}, {T2}, 15                  ; first head that ends in this line-column
s_lshr_b32 {T3}, 0x3223222, {T1}
s_and_b32 {T3}, {T3}, 15
s_lshl_b32 {T3}, {T3}, 4
v_lshrrev_b32 v6, 2, v1
v_lshlrev_b32 v6, 9, v6
v_and_b32 v2, 3, v1
v_lshl_add_u32 v6, v2, 4, v6
s_lshl_b32 {T2}, {T2}, 11
s_add_u32 {T2}, {T2}, {VOFF + 28*16}
v_add_u32 v6, {T2}, v6
v_cmp_eq_u32 vcc, 0, v2
v_mov_b32 v2, 0x3f803f80
s_nop 0
v_cndmask_b32 v236, 0, v2, vcc
v_cndmask_b32 v237, 0, v2, vcc
v_cndmask_b32 v238, 0, v2, vcc
v_cndmask_b32 v239, 0, v2, vcc""".split("\n")
        for i in range(7):
            a("s_waitcnt lgkmcnt(0)")
            stamp(a, 4 + i, 1)
            fill = [[] for _ in range(8)]
            pre = [[] for _ in range(8)]
            if i == 0:
                dq = [(c, j) for c in range(1, 7) for j in range(4)]
                issued_q = dq[:6 + 4*XE]; dq = dq[6 + 4*XE:]
            def take(g):
                if dq and dq[0][0] <= i + 4:
                    e = dq.pop(0); issued_q.append(e)
                    pre[g].append(x_m0(*e)); fill[g].insert(0, x_ld(*e))
            had = bool(dq)
            if i + 1 < 7:
                wr = w_reads(i + 1)
                fill[0] += [w_base(i + 1)] + wr[0:3]
                fill[1] += wr[3:8]; fill[2] += wr[8:12]; fill[3] += wr[12:16]
                for g in ((0, 1, 2, 3, 4) if i == 0 and not XE else (0,)): take(g)
                if i == 4:
                    fill[1].append("s_cmp_eq_u32 s81, 1\ns_cselect_b64 exec, -1, 0\n" + "\n".join(wq(q) for q in range(cfg.wqe)) + "\ns_mov_b64 exec, -1")
                    issued_q += [(99, q) for q in range(cfg.wqe)]
                last = max(q for q, e in enumerate(issued_q) if e[0] == i + 1)
                fill[4] += [f"s_waitcnt vmcnt({len(issued_q) - 1 - last})"] + x_reads(i + 1)
            for g in range(5, 8): take(g)
            if i == 4:
                assert not had
                fill[0].insert(0, "s_mov_b64 exec, 1\nds_add_u32 v250, v251 offset:8\ns_mov_b64 exec, -1")
            if not had:
                for g in range(5 if i < 6 else 0, 8):
                    for q in range(6):
                        if late: fill[g].append(late.pop(0))
            for mm in range(4):
                for ct in range(2):
                    xr = X + 16*i + 4*mm; wr_ = WB + (i % 2) * 32 + mm * 8 + ct * 4
                    c = None if (i == 0 and mm == 0) else ACC + 16*ct
                    for s_ in pre[2*mm + ct]: a(s_)
                    a(mfma(ACC + 16*ct, wr_, xr, c) if var == "K" else mfma(ACC + 16*ct, xr, wr_, c))
                    for s_ in fill[2*mm + ct]: a(s_)
        assert not late
        stamp(a, 11, 1)
        a(f"s_cmp_eq_u32 {S_LC}, 7\ns_cbranch_scc1 L_kvnone")
        if var == "V":
            a(f"s_bfm_b64 exec, {T3}, 0\nbuffer_store_dwordx4 v[236:239], v6, {sWS}, {T4} offen sc1\ns_mov_b64 exec, -1")
        for ct in range(2):
            for j in range(2):
                for q in range(4):
                    z = 8*ct + 4*j + q
                    a(f"v_cvt_pk_bf16_f32 v{PK+z}, v{ACC+2*z}, v{ACC+2*z+1}")
                if var == "K":
                    a(f"buffer_store_dwordx4 {V(PK+8*ct+4*j,4)}, v7, {sWS}, {T4} offen offset:{ct*2048+j*1024} sc1")
                else:
                    a(f"buffer_store_dwordx4 {V(PK+8*ct+4*j,4)}, v{4+ct}, {sWS}, {T4} offen offset:{j*1024} sc1")
        if var == "K": a("s_branch L_kvdone\nL_kvnone:\ns_waitcnt vmcnt(0)\ns_branch L_kvdone")
    a("L_kvdone:\ns_mov_b64 exec, 1\nds_add_u32 v250, v251\ns_mov_b64 exec, -1")
    stamp(a, 2)
    NB = cfg.nbuf
    Q = 16; O = 48; SA = 112; KVB = 144; P0 = KVB + 16*NB; P1 = P0 + 4
    assert P1 + 4 <= 240
    QP = 224
    S_LD = "s9"
    def kv_loads(t, so=None):
        b = KVB + 16 * (t % NB); so = so or f"s{TO + (t if not cfg.hack or t < cfg.hack else t % cfg.hack)}"
        return [f"buffer_load_dwordx4 {V(b+4*j,4)}, v{VK if j < 2 else VV}, {sWS}, {so} offen offset:{(j%2)*1024} sc1" for j in range(4)]
    PV = 254; QA = (4, 6, 8, 9)
    pl = poll_issue(f"v{VF}", PG[0], PV, 4)
    QW = 176
    def qsync(target):
        a("s_mov_b64 exec, 1\nds_add_u32 v250, v251 offset:4\ns_mov_b64 exec, -1")
        lwait(a, "v250", 5, target, 14, off=4)
    def qmma(c0, c1, issue, check):
        rd = [f"ds_read_b64_tr_b16 {V(QW+(i%3)*16+mm*4+hf*2,2)}, v15 offset:{i*4096+mm*1024+hf*256}" for i in range(c0, c1) for mm in range(4) for hf in range(2)]
        iss = min(len(rd), 12)
        for s_ in rd[:iss]: a(s_)
        for m in range(4 * (c1 - c0)):
            a(f"s_waitcnt lgkmcnt({iss - (2*m + 2)})")
            a(mfma(ACC, QW + ((c0 + m // 4) % 3) * 16 + 4*(m % 4), X + 16*c0 + 4*m, None if c0 + m == 0 else ACC))
            for s_ in rd[iss:iss+2]: a(s_)
            iss = min(len(rd), iss + 2)
            if m == issue: a(pl)
            if m == check:
                Lf, Lg = a.lab("pf"), a.lab("pg")
                a(f"s_waitcnt vmcnt(0)\n{poll_check(PV, 4)}\ns_cbranch_scc1 {Lf}\ns_mov_b32 {S_LD}, 1")
                for t in range(2):
                    for s_ in kv_loads(t): a(s_)
                a(f"s_branch {Lg}\n{Lf}:\n{pl}\n{Lg}:")
    S_OB, S_FO, S_LO, S_HI, S_CL, S_M0 = "s10", "s11", "s12", "s13", "s14", "s[76:77]"
    def addrs():
        a(f"""s_lshl_b32 {S_OB}, {S_TILE}, 4
s_add_u32 {S_OB}, {S_OB}, {S_H}
s_lshl_b32 {S_OB}, {S_OB}, 11
s_add_u32 {S_OB}, {S_OB}, {OBUF}
s_lshl_b32 {S_FO}, {S_R}, 4
s_add_u32 {S_FO}, {S_FO}, {S_H}
s_lshl_b32 {S_FO}, {S_FO}, 7
s_add_u32 {S_FO}, {S_FO}, {FO}
s_mov_b32 {S_LO}, {lit(2.0**-40)}
s_mov_b32 {S_HI}, {lit(2.0**30)}
s_movk_i32 {S_CL}, 0x1f8
s_cmp_eq_u32 {S_W4}, 0
s_cselect_b64 {S_M0}, 1, 0
v_mov_b32 v2, v250
v_mov_b32 v3, 1
v_mov_b32 v7, v{VL}
v_mov_b32 v248, {lit(28 ** -0.5 * math.log2(math.e))}
v_mov_b32 v249, v248""")
        for i in range(4):
            a(f"""s_add_u32 {T0}, {S_W4}, {i+1}
s_and_b32 {T0}, {T0}, 3
s_lshl_b32 {T1}, {T0}, 11
s_add_u32 {T1}, {T1}, {L_Q}
v_add_u32 v{QA[i]}, {T1}, v7
s_mul_i32 {T0}, {T0}, 12288
s_add_u32 {T0}, {T0}, {(i%3)*4096 + L_RED}
v_add_u32 v{10+i}, {T0}, v7""")
    def publish(n):
        a(f"s_waitcnt vmcnt({n})")
        publish_wg(a, "v250", "v251", 16, 5, S_FL, 244)
        stamp(a, 3)
        a("s_waitcnt vmcnt(1)")
    E = cfg.wqe
    a(f"s_mov_b32 {S_LD}, 0\ns_cmp_eq_u32 s81, 1\ns_cbranch_scc1 L_qtwo")
    S_M0 = "s[82:83]" if cfg.xafirst else S_M0
    if cfg.xafirst:
        addrs()
        if cfg.wqdel: a(f"s_sleep {cfg.wqdel}")
        for i in range(7): a(wq(i).replace("s82", T0))
    else:
        for i in range(7): a(wq(i))
        addrs()
    publish(7)
    qsync(4)
    stamp(a, 4)
    qmma(0, 7, cfg.m1, cfg.m2)
    a("s_branch L_qdone\nL_qtwo:\ns_waitcnt vmcnt(4)")
    qsync(4)
    for i in range(E, 7): a(wq(i))
    qmma(0, E, -1, -1)
    addrs()
    publish(7 - E)
    qsync(8)
    stamp(a, 4)
    qmma(E, 7, 0, 4 * (7 - E) - 1)
    a("L_qdone:")
    stamp(a, 5)
    a(f"s_bitcmp1_b32 {S_H}, 0")
    for hf in range(2):
        for q in range(8*hf, 8*hf+8, 2): pk2(a, "mul", ACC+q, ACC+q, 248, scalar=cfg.nopk & 1)
        for q in range(4*hf, 4*hf+4): a(f"v_cvt_pk_bf16_f32 v{QP+q}, v{ACC+2*q}, v{ACC+2*q+1}")
        if hf == 0: a(f"s_cselect_b32 exec_lo, -1, 0\ns_mov_b32 exec_hi, 0\nv_mov_b32 v{QP}, 0\nv_mov_b32 v{QP+1}, 0\ns_mov_b64 exec, -1")
        else: a(f"s_cselect_b32 exec_hi, 0, -1\ns_mov_b32 exec_lo, 0\nv_mov_b32 v{QP+6}, 0\nv_mov_b32 v{QP+7}, 0\ns_mov_b64 exec, -1")
        a(f"ds_write_b128 v9, {V(QP+4*hf,4)} offset:{1024*hf}")
    a(f"""s_mov_b64 exec, 1
ds_add_u32 v2, v3
s_mov_b64 exec, -1
s_cmp_eq_u32 {S_LD}, 1
s_cbranch_scc1 L_kvloaded
s_waitcnt vmcnt(0)
{poll_check(PV, 4)}
s_cbranch_scc0 L_kvready""")
    poll(a, f"v{VF}", PG[0], PV, 4, 1, sleep=2)
    a("L_kvready:")
    for t in range(2):
        for s_ in kv_loads(t): a(s_)
    a("L_kvloaded:\ns_mov_b64 exec, 1\nds_add_u32 v2, v3 offset:12\ns_mov_b64 exec, -1")
    stamp(a, 6)
    if cfg.fine == 6:
        a(f"s_lshl_b32 {T0}, {S_LD}, 10\ns_add_u32 s{STAMP0+1}, s{STAMP0}, {T0}\ns_sub_u32 {T0}, {cfg.poll_limit}, {S_TO}\ns_cmp_gt_u32 {T0}, 100\ns_cselect_b32 {T0}, -1, {T0}\ns_add_u32 {T0}, {T0}, 1\ns_lshl_b32 {T0}, {T0}, 10\ns_add_u32 s{STAMP0+2}, s{STAMP0}, {T0}")
    lwait(a, "v2", 5, 12, 15)
    a(f"s_mov_b32 {S_BAR}, 12")
    for i in range(4):
        a(f"ds_read_b128 {V(Q+8*i,4)}, v{QA[i]}\nds_read_b128 {V(Q+8*i+4,4)}, v{QA[i]} offset:1024")
    stamp(a, 7)
    a("s_waitcnt vmcnt(6) lgkmcnt(6)\ns_setprio 0")
    if cfg.padmid: padto(a, cfg.padmid)
    stamp(a, 8)
    a(mfma(SA, KVB, Q)); a(mfma(SA, KVB + 4, Q + 4, SA))
    a("s_waitcnt vmcnt(4) lgkmcnt(0)\ns_nop 9\n.p2align 3")
    sched = {}
    issued = 2
    for t in range(16):
        for i in (1, 2):
            if (i == 1 or t % cfg.ramp == 0) and issued <= min(15, t + NB - 1):
                sched[(t, i)] = issued; issued += 1
    first = {g: min(k for k, v in sched.items() if v == 4*g) for g in (1, 2, 3)}
    pollat = {(k[0] - 1, 0): g for g, k in first.items()}
    vq = [("t", 1)] * 4
    def after(tag): return len(vq) - 1 - max(q for q, e in enumerate(vq) if e == tag)
    assert NB >= 5
    units = [(t, i) for t in range(12) for i in range(4)] + [(t, i) for i in range(4) for t in range(12, 16)]
    firstuse = {}
    for n, (t, i) in enumerate(units): firstuse.setdefault(t, n)
    waitat = {n - 2: t for t, n in firstuse.items() if t > 0}
    kb = lambda tt: KVB + 16 * (tt % NB)
    redw = lambda i, q: f"ds_write_b128 v{10+i}, {V(O+16*i+4*q,4)} offset:{q*1024}"
    for n, (t, i) in enumerate(units):
        if n % 8 == 0 and n: stamp(a, n // 8, 3)
        cur = SA + 16 * (n % 2); nxt = SA + 16 * ((n + 1) % 2)
        ms = [None] * 4
        if n < 63:
            tn, inx = units[n + 1]
            ms[0] = mfma(nxt, kb(tn), Q + 8*inx); ms[1] = mfma(nxt, kb(tn) + 4, Q + 8*inx + 4, nxt)
        if n > 0:
            tp, ip = units[n - 1]
            ms[2] = mfma(O + 16*ip, kb(tp) + 12, P1, O + 16*ip)
        ms[3] = mfma(O + 16*i, kb(t) + 8, P0, None if t == 0 else O + 16*i)
        side = [None] * 4
        key = (n // 4, n % 4)
        if key in sched:
            assert n < 48
            tl = sched[key]
            if tl % 4 == 0:
                g = tl // 4
                a(f"s_waitcnt vmcnt({after(('p', g))})\nv_cmp_ne_u64 vcc, {S_NONCE}, v[14:15]\ns_cbranch_vccnz L_gate{g}\nL_gated{g}:\ns_nop 0")
            side = kv_loads(tl); vq += [("t", tl)] * 4
        if key in pollat:
            g = pollat[key]
            side[0] = f"buffer_load_dwordx2 v[14:15], v{VF}, {sWS}, {PG[g]} offen sc1"; vq.append(("p", g))
        sig = "\ns_mov_b64 exec, 1\nds_add_u32 v2, v3\ns_mov_b64 exec, -1"
        rdr = lambda q: f"ds_read_b128 {V(O+4*q,4)}, v13 offset:{q*1024}"
        if 53 <= n <= 56: side[1] = redw(0, n - 53)
        if n in (57, 58): side[1] = redw(1, 2*(n - 57)); side[3] = redw(1, 2*(n - 57) + 1) + (sig if n == 58 else "")
        if n == 60: side[1] = "ds_read_b32 v5, v2"
        if n == 61:
            a(f"s_waitcnt lgkmcnt(0)\nv_readfirstlane_b32 {T0}, v5\ns_cmp_ge_u32 {T0}, 16\ns_cbranch_scc0 L_redw\nL_redd:")
        if n in (61, 62):
            k_ = n - 61
            side = [redw(2, 2*k_), rdr(4*k_) + "\n" + rdr(4*k_+1), redw(2, 2*k_+1) + (sig if k_ else ""), rdr(4*k_+2) + "\n" + rdr(4*k_+3)]
        if n == 63: side[2] = "ds_read2_b32 v[4:5], v2 offset0:34 offset1:0"
        if n == cfg.bhi: side[0] = "s_setprio 3\ns_nop 0" + ("\n" + side[0] if side[0] else "")
        for p in range(4):
            if ms[p]: a(ms[p])
            if side[p]: a(side[p])
            for e in range(4):
                if n in waitat and p == 3 and e == 3:
                    a(f"s_waitcnt vmcnt({after(('t', waitat[n]))})\nv_exp_f32_e64 v{cur+4*p+e}, v{cur+4*p+e}")
                else:
                    a(f"v_exp_f32 v{cur+4*p+e}, v{cur+4*p+e}")
            pk = (P0, P0 + 2, P1, P1 + 2)[p]
            a(f"v_cvt_pk_bf16_f32 v{pk}, v{cur+4*p}, v{cur+4*p+1}\nv_cvt_pk_bf16_f32 v{pk+1}, v{cur+4*p+2}, v{cur+4*p+3}")
    a(f"s_waitcnt lgkmcnt(0)\nv_readfirstlane_b32 {T0}, v5\nv_readfirstlane_b32 {T1}, v4")
    a(mfma(O + 48, kb(15) + 12, P1, O + 48))
    a(f"s_add_u32 {T1}, {T1}, {12 if cfg.ohint and not cfg.noA else 20}\ns_min_u32 {T0}, {T0}, {T1}\ns_cmp_ge_u32 {T0}, 20\ns_cbranch_scc0 L_redw2\nL_redd2:")
    for q in range(8, 12): a(f"ds_read_b128 {V(O+4*q,4)}, v13 offset:{q*1024}")
    a("s_mov_b64 exec, 1\nds_add_u32 v2, v3")
    if cfg.ohint: a(f"s_mov_b64 exec, {S_M0}\nbuffer_store_dwordx2 v[244:245], v246, {sWS}, {S_FO} offen sc1")
    a("s_mov_b64 exec, -1")
    stamp(a, 9)
    OO = O + 48
    sc_ = cfg.nopk & 2
    for q in range(0, 16, 2): pk2(a, "add", O+q, O+q, O+16+q, scalar=sc_)
    for q in range(0, 16, 2): pk2(a, "add", OO+q, OO+q, O+q, scalar=sc_)
    a("s_waitcnt lgkmcnt(1)")
    for q in (12, 0, 2, 4, 6, 8, 10, 14): pk2(a, "add", OO+q, OO+q, O+32+q, scalar=sc_)
    a(f"""v_mov_b32 v10, v{OO+12}
v_mov_b32 v11, v{OO+12}
v_mul_f32 v12, v{OO}, v{OO+1}
v_mul_f32 v13, v{OO+2}, v{OO+3}
v_permlane32_swap_b32 v10, v11
v_fma_f32 v12, v{OO+4}, v{OO+5}, v12
v_fma_f32 v13, v{OO+6}, v{OO+7}, v13
v_rcp_f32 v10, v11
v_fma_f32 v12, v{OO+8}, v{OO+9}, v12
v_fma_f32 v13, v{OO+10}, v{OO+11}, v13
v_cmp_le_f32 s[70:71], {S_LO}, v11
v_fma_f32 v12, v{OO+12}, v{OO+13}, v12
v_fma_f32 v13, v{OO+14}, v{OO+15}, v13
v_cmp_ge_f32 s[72:73], {S_HI}, v11
v_add_f32 v12, v12, v13
v_cmp_class_f32 vcc, v12, {S_CL}
s_and_b64 s[70:71], s[70:71], s[72:73]
s_and_b64 vcc, vcc, s[70:71]
s_cmp_eq_u64 vcc, exec""")
    if cfg.force_fb: a("s_cmp_eq_u32 0, 1")
    a(f"s_cbranch_scc0 L_fallback\nL_fbdone:\nv_mov_b32 v11, v10")
    for hf in range(2):
        for q in range(8*hf, 8*hf+8, 2): pk2(a, "mul", OO+q, OO+q, 10, scalar=sc_)
        for q in range(4*hf, 4*hf+4): a(f"v_cvt_pk_bf16_f32 v{O+q}, v{OO+2*q}, v{OO+2*q+1}")
        if hf: a(f"s_mov_b32 exec_lo, 0\nv_mov_b32 v{O+6}, 0\ns_mov_b32 exec_lo, -1")
        if cfg.ohint: a(f"v_min_u32 v{O+4*hf}, -2, v{O+4*hf}")
        a(f"buffer_store_dwordx4 {V(O+4*hf,4)}, v7, {sWS}, {S_OB} offen offset:{1024*hf} sc1")
    stamp(a, 10)
    S_BP, S_CNT, S_DT = "s70", "s71", "s72"
    GS = 144; GC = 176; ZR = 196; G = 16; OL = 196; AR = 128
    S_O0, S_O1, S_FH, S_RT, S_CLM = "s73", "s74", "s75", "s76", "s77"
    a(f"""s_lshl_b32 {S_BP}, {S_XCD}, 3
s_lshr_b32 {T0}, {S_IDX}, 2
s_add_u32 {S_BP}, {S_BP}, {T0}
s_and_b32 {T1}, {S_IDX}, 3
s_cmp_ge_u32 {T1}, 2
s_cselect_b32 {S_CNT}, 3, 4
s_lshl_b32 {S_DT}, {T1}, 2
s_cmp_eq_u32 {T1}, 3
s_cselect_b32 {S_DT}, 11, {S_DT}
s_add_u32 {S_DT}, {S_DT}, {S_W4}
s_cmp_ge_u32 {S_W4}, {S_CNT}
s_cbranch_scc1 L_bend
s_setprio {cfg.fprio}
v_bfe_u32 v5, v1, 2, 1
v_lshlrev_b32 v5, 4, v5
v_bfe_u32 v6, v1, 3, 2
v_lshl_add_u32 v5, v6, 2, v5
v_and_b32 v6, 3, v1
v_add_u32 v5, v5, v6
s_lshl_b32 {T0}, {S_DT}, 5
v_add_u32 v5, {T0}, v5                    ; d
v_lshlrev_b32 v9, 31, v5
v_xor_b32 v9, 0.5, v9                     ; 0.5*(-1)^d
v_cvt_f32_u32 v5, v5
v_mul_f32 v5, {lit(1/448)}, v5
v_lshrrev_b32 v4, 5, v1
v_cvt_f32_u32 v6, v4
v_mul_f32 v6, v5, v6
v_mul_f32 v6, 4.0, v6
v_mul_f32 v{GC}, {lit(16.0)}, v5
v_cos_f32 v{GC}, v{GC}""")
    for j in range(16): a(f"v_fmamk_f32 v{GS+j}, v5, {lit(float(16*(j//8) + 8*((j%8)//4) + j%4))}, v6")
    a(f"v_add_f32 v{GC}, v{GC}, v{GC}")
    for j in range(16): a(f"v_sin_f32_e64 v{GS+16+j}, -v{GS+j}\nv_cos_f32 v{GS+j}, v{GS+j}")
    a(f"v_mov_b32 v{GC+1}, v{GC}")
    def ggen(q0, q1):
        a(".p2align 3")
        for q in range(q0, q1):
            rho = q % 2; st = q // 2
            cur = GS + 16*rho + 8*(st % 2); oth = GS + 16*rho + 8*((st + 1) % 2); gp = G + 4*q
            if st >= 2:
                for z in range(0, 8, 2):
                    pk2(a, "fma", cur+z, GC, oth+z, cur+z, neg="2", scalar=cfg.nopk & 8)
            for z in range(4): a(f"v_cvt_pk_bf16_f32 v{gp+z}, v{cur+2*z}, v{cur+2*z+1}")
            if st == 0:
                a(f"s_mov_b32 exec_hi, 0\nv_cvt_pk_bf16_f32 v{gp}, {'v9' if rho else '0.5'}, v{cur+1}\ns_mov_b32 exec_hi, -1")
    ggen(0, 28)
    stamp(a, 11)
    srd(a, sOUT, 16, 2048 * 1792)
    a(f"""v_add_u32 v8, {L_ZB}, v7
s_mul_i32 {T4}, {S_BP}, 1792
s_lshl_b32 {T1}, {S_DT}, 6
s_add_u32 {T4}, {T4}, {T1}""")
    if cfg.cost & 2:
        a(f"""s_lshl_b32 {T1}, {S_W4}, 11
s_add_u32 {T1}, {T1}, {L_Q}
v_and_b32 v10, 31, v1
v_lshlrev_b32 v10, 6, v10
v_lshl_add_u32 v10, v4, 5, v10
v_add_u32 v10, {T1}, v10
v_add_u32 v11, {T1}, v7
v_lshrrev_b32 v6, 2, v1
v_mul_u32_u24 v6, {64*1792}, v6
v_and_b32 v12, 3, v1
v_lshl_add_u32 v6, v12, 4, v6
s_add_u32 {T3}, {T4}, {16*64*1792}""")
    else:
        a(f"v_and_b32 v6, 31, v1\nv_mul_u32_u24 v6, {64*1792}, v6\nv_lshl_add_u32 v6, v4, 5, v6")
    lwait(a, "v2", 5, 4, 17, off=132)
    stamp(a, 13)
    order = [4*(q//4) + 2*(q % 2) + ((q//2) % 2) for q in range(28)]
    for q in range(8): a(f"ds_read_b128 {V(ZR+4*q,4)}, v8 offset:{order[q]*1024}")
    for p in range(28):
        a(f"s_waitcnt lgkmcnt({min(7, 27-p)})")
        a(mfma(AR, G + 4*p, ZR + 4*(p % 8), None if p == 0 else AR))
        if p + 8 < 28: a(f"ds_read_b128 {V(ZR+4*(p%8),4)}, v8 offset:{order[p+8]*1024}")
    osc = ("", " sc1", " nt", " sc0 sc1", " sc1 nt")[cfg.outsc]
    if cfg.odefer and not cfg.noA: lwait(a, "v2", 5, 4, 36, sleep=2, off=20)
    for hf in range(2):
        for q in range(4*hf, 4*hf+4): a(f"v_cvt_pk_bf16_f32 v{GS+q}, v{AR+2*q}, v{AR+2*q+1}")
        if cfg.cost & 2: a(f"ds_write_b128 v10, {V(GS+4*hf,4)} offset:{16*hf}")
        else: a(f"buffer_store_dwordx4 {V(GS+4*hf,4)}, v6, {sOUT}, {T4} offen offset:{16*hf}{osc}")
    if cfg.cost & 2:
        a(f"""ds_read_b128 {V(GS+8,4)}, v11
ds_read_b128 {V(GS+12,4)}, v11 offset:1024
s_waitcnt lgkmcnt(1)
buffer_store_dwordx4 {V(GS+8,4)}, v6, {sOUT}, {T4} offen{osc}
s_waitcnt lgkmcnt(0)
buffer_store_dwordx4 {V(GS+12,4)}, v6, {sOUT}, {T3} offen{osc}""")
    a("L_bend:")
    stamp(a, 12)
    dump_stamps(a, 240)
    a("s_endpgm")
    a("L_redw:")
    lwait(a, "v2", 5, 16, 2)
    a("s_branch L_redd\nL_redw2:")
    lwait(a, "v2", 5, 20, 2)
    if cfg.ohint and not cfg.noA: lwait(a, "v2", 5, 8, 39, sleep=1, off=136)
    a("s_branch L_redd2")
    for g in (1, 2, 3):
        a(f"L_gate{g}:")
        poll(a, f"v{VF}", PG[g], 14, 4, 25, sleep=2)
        a(f"s_branch L_gated{g}")
    a("L_fallback:")
    QO = Q + 24; KB = KVB; M = 15; S_SO = "s70"
    a(f"v_mov_b32 v{M}, 0xff800000\ns_mov_b32 {S_SO}, {KV}\nL_fb1:")
    for s_ in kv_loads(0, S_SO)[:2]: a(s_)
    a(f"s_add_u32 {S_SO}, {S_SO}, {TS}\ns_waitcnt vmcnt(0)")
    a(mfma(SA, KB, QO)); a(mfma(SA, KB + 4, QO + 4, SA))
    for q in range(0, 16, 2): a(f"v_max3_f32 v{M}, v{M}, v{SA+q}, v{SA+q+1}")
    a(f"""s_cmp_lt_u32 {S_SO}, {KV + 64*TS}
s_cbranch_scc1 L_fb1
v_mov_b32 v14, v{M}
v_permlane32_swap_b32 v14, v{M}
v_max_f32 v{M}, v14, v{M}
s_mov_b32 {S_SO}, {KV}""")
    for q in range(16): a(f"v_mov_b32 v{OO+q}, 0")
    a("L_fb2:")
    for s_ in kv_loads(0, S_SO): a(s_)
    a(f"s_add_u32 {S_SO}, {S_SO}, {TS}\ns_waitcnt vmcnt(0)")
    a(mfma(SA, KB, QO)); a(mfma(SA, KB + 4, QO + 4, SA))
    for q in range(16): a(f"v_sub_f32 v{SA+q}, v{SA+q}, v{M}")
    for q in range(16): a(f"v_exp_f32 v{SA+q}, v{SA+q}")
    for q in range(8): a(f"v_cvt_pk_bf16_f32 v{P0+q}, v{SA+2*q}, v{SA+2*q+1}")
    a(mfma(OO, KB + 8, P0, OO)); a(mfma(OO, KB + 12, P1, OO))
    a(f"""s_cmp_lt_u32 {S_SO}, {KV + 64*TS}
s_cbranch_scc1 L_fb2
v_mov_b32 v10, v{OO+12}
v_mov_b32 v11, v{OO+12}
v_permlane32_swap_b32 v10, v11
v_rcp_f32 v10, v11
s_branch L_fbdone""")

def role_A(a):
    FB = 16; GS0 = 48; M = 72; F = 88; ACC = 200; TMP = 216
    S_BP = "s78"
    S_CG, S_CNT, S_CB, S_DT, S_TASK, S_K1 = "s79", "s80", "s81", "s82", "s83", "s73"
    S_B, S_KT16 = S_BP, S_DT
    (PN, _, _, P_TST, P_W, P_F1, P_TLD, P_TBW, P_TBR, P_TTW, P_TTR, P_UST, P_F2, P_WOD, P_WOR, P_WOR2,
     P_ZW0, P_ZW1, P_PF, P_BC, P_PS, _, P_LS, P_DUM) = range(232, 256)
    sc = 1.0 / (2048 * 448)
    def albar(code): lbar(a, "v14", "v15", P_LS, code, sleep=1)
    def burst(items, th):
        a("s_setprio 0")
        for q, it in enumerate(items):
            if q >= th: a(f"s_waitcnt vmcnt({th-1})")
            a(it)
        a(f"s_setprio {cfg.aprio}")
    SB = "s[74:75]"
    def stage_arrive(k):
        L = a.lab("arr")
        a(f"""s_waitcnt vmcnt(0)
s_mov_b64 exec, 1
ds_add_rtn_u32 v{P_LS}, v14, v15 offset:8
s_mov_b64 exec, -1
s_waitcnt lgkmcnt(0)
v_readfirstlane_b32 {T0}, v{P_LS}
s_cmp_eq_u32 {T0}, {4*k+3}
s_cbranch_scc0 {L}
s_mov_b32 {T0}, 1
s_lshl_b32 {T1}, {S_XCD}, 7
s_add_u32 {T1}, {T1}, {k*1024}
s_atomic_add {T0}, {SB}, {T1} glc
s_waitcnt lgkmcnt(0)
s_sub_u32 {T0}, {T0}, s62
s_cmp_eq_u32 {T0}, 31
s_cbranch_scc0 {L}
s_mov_b32 {T1}, {FA1 + 2048 + k*8192}
s_mov_b64 exec, {-1 if cfg.allpoll else 0xffff}
buffer_atomic_add v15, v{P_PF}, {sWS}, {T1} offen sc1
s_mov_b64 exec, -1
{L}:""")
    def stage_wait(k, pre):
        if cfg.ko & 4:
            a("s_waitcnt lgkmcnt(0)"); return
        L, L2, L3 = a.lab("sw"), a.lab("sw"), a.lab("sw")
        if not cfg.allpoll: a(f"s_cmp_eq_u32 {S_W4}, 0\ns_cbranch_scc0 {L2}")
        a(f"""s_and_b32 {T1}, s2, 15
s_lshl_b32 {T2}, {S_W4}, 4
s_add_u32 {T1}, {T1}, {T2}
s_lshl_b32 {T1}, {T1}, 7
s_add_u32 {T1}, {T1}, {2048 + k*8192}
s_add_u32 {T2}, s62, 8
s_mov_b32 {S_TO}, {cfg.poll_limit}
s_waitcnt lgkmcnt(0)
s_sleep {pre}
{L}:
s_mov_b32 {T0}, 0
s_atomic_or {T0}, {SB}, {T1} glc
s_waitcnt lgkmcnt(0)
s_cmp_eq_u32 {T0}, {T2}
s_cbranch_scc1 {L}d
s_sleep {cfg.bsleep}
s_sub_u32 {S_TO}, {S_TO}, 1
s_cbranch_scc0 {L}
s_mov_b32 {S_TO}, 32
s_branch L_fail
{L}d:""")
        if cfg.allpoll: return
        a(f"s_mov_b64 exec, 1\nds_add_u32 v14, v15 offset:12\ns_mov_b64 exec, -1\ns_branch {L3}\n{L2}:")
        lwait(a, "v14", P_LS, k + 1, 33, sleep=cfg.lsl, off=12)
        a(f"{L3}:")
    def pace():
        if cfg.pace: a(f"s_sleep {cfg.pace}")
    a(f"""L_roleA:
v_mov_b32 v3, 0
v_mov_b32 v2, {L_SYNC}
ds_write2_b32 v2, v3, v3 offset0:0 offset1:32
ds_write2_b32 v2, v3, v3 offset0:1 offset1:2
ds_write2_b32 v2, v3, v3 offset0:3 offset1:33
ds_write2_b32 v2, v3, v3 offset0:4 offset1:34
ds_write2_b32 v2, v3, v3 offset0:5 offset1:35
ds_write2_b32 v2, v3, v3 offset0:8 offset1:9
ds_write2_b32 v2, v3, v3 offset0:10 offset1:11
s_setprio {cfg.aprio}
s_mov_b32 {S_BAR}, 0
s_lshl_b32 {S_BP}, {S_XCD}, 3
s_lshr_b32 {T0}, {S_IDX}, 2
s_add_u32 {S_BP}, {S_BP}, {T0}
s_and_b32 {S_CG}, {S_IDX}, 3
s_cmp_ge_u32 {S_CG}, 2
s_cselect_b32 {S_CNT}, 3, 4
s_lshl_b32 {S_CB}, {S_CG}, 2
s_cmp_eq_u32 {S_CG}, 3
s_cselect_b32 {S_CB}, 11, {S_CB}
s_add_u32 {S_DT}, {S_CB}, {S_W4}
v_and_b32 v2, 31, v1                      ; v2 = lane%32
v_lshrrev_b32 v3, 5, v1                   ; v3 = half
v_cvt_f32_u32 v4, v3
s_waitcnt lgkmcnt(0)
{st0()}""")
    if cfg.touch:
        tl = [["s[10:11], 0", "s[4:5], 0", "s[6:7], 0"], ["s[20:21], s76", "s[8:9], 0", "s[14:15], 0"],
              ["s[20:21], s77", "s[16:17], 0", "s[16:17], s76"], ["s[20:21], s74", "s[20:21], s75"]]
        a(f"s_cmp_ge_u32 {S_IDX}, {cfg.touch}\ns_cbranch_scc1 L_tch\ns_mov_b32 s76, 0x200000\ns_mov_b32 s77, 0x600000\ns_mov_b32 s74, 0x400000\ns_mov_b32 s75, 0x800000")
        for w in range(4):
            a(f"s_cmp_lg_u32 {S_W4}, {w}\ns_cbranch_scc1 L_tch{w}")
            for t_ in tl[w]: a(f"s_load_dword s72, {t_}")
            a(f"L_tch{w}:")
        a("L_tch:")
    def angles(n, vstep, vbase, offs, dst=TMP):
        for j in range(n): a(f"v_fmamk_f32 v{dst+j}, {vstep}, {lit(float(offs[j]))}, {vbase}")
    def gen_F():
        A0 = TMP; A1 = TMP + 8; C2 = TMP + 16
        a(f"""v_and_b32 v5, 15, v1
s_lshl_b32 {T0}, {S_KT16}, 4
v_add_u32 v5, {T0}, v5                    ; k
v_bfe_u32 v6, v1, 4, 1
v_lshl_add_u32 v7, v5, 1, v6
v_cmp_eq_u32 vcc, 1, v7
v_mov_b32 v7, 224
v_cndmask_b32 v5, v5, v7, vcc
v_cndmask_b32 v6, v6, 0, vcc
v_cvt_f32_u32 v5, v5
v_cvt_f32_u32 v6, v6
v_mul_f32 v5, {lit(1/448)}, v5            ; kf
v_mul_f32 v6, {lit(0.25)}, v6
v_mul_f32 v7, v5, v4
v_fmamk_f32 v6, v7, {lit(8.0)}, v6
v_mul_f32 v{C2}, {lit(16.0)}, v5
v_cos_f32 v{C2}, v{C2}""")
        angles(16, "v5", "v6", [j % 8 + 16 * (j // 8) for j in range(16)])
        a(f"v_add_f32 v{C2}, v{C2}, v{C2}")
        for j in range(16): a(f"v_cos_f32 v{A0+j}, v{A0+j}")
        a(f"v_mov_b32 v{C2+1}, v{C2}\ns_barrier\n.p2align 3")
        for m in range(28):
            cur = A0 if m % 2 == 0 else A1; oth = A1 if m % 2 == 0 else A0
            if m >= 2:
                for q in range(0, 8, 2):
                    a(f"v_pk_fma_f32 {V(cur+q,2)}, {V(C2,2)}, {V(oth+q,2)}, {V(cur+q,2)} neg_lo:[0,0,1] neg_hi:[0,0,1]")
            for q in range(4): a(f"v_cvt_pk_bf16_f32 v{F+4*m+q}, v{cur+2*q}, v{cur+2*q+1}")
    def gen_M():
        a(f"""v_cvt_f32_u32 v5, v2
s_and_b32 {T0}, {S_W4}, 1
s_lshl_b32 {T0}, {T0}, 10
s_add_u32 {T0}, {T0}, {S_B}
v_lshl_add_u32 v6, v3, 8, {T0}
v_cvt_f32_u32 v6, v6
v_mul_f32 v6, v6, v5
s_cmp_ge_u32 {S_W4}, 2
s_cselect_b32 {T0}, {lit(0.25)}, 0
v_mov_b32 v7, {T0}
v_fmamk_f32 v6, v6, {lit(1/2048)}, v7
v_mul_f32 v5, {lit(1/32)}, v5""")
        angles(8, "v5", "v6", [8*(j//4) + j%4 for j in range(8)])
        for j in range(8): a(f"v_cos_f32 v{TMP+j}, v{TMP+j}")
        for q in range(4): a(f"v_cvt_pk_bf16_f32 v{ACC+8+q}, v{TMP+2*q}, v{TMP+2*q+1}")
    def gen_MS():
        a(f"""v_lshlrev_b32 v5, 6, v2
v_add_u32 v5, {S_BP}, v5
v_cvt_f32_u32 v5, v5
v_mul_f32 v5, {lit(1/2048)}, v5
s_lshl_b32 {T0}, {S_W4}, 3
v_lshl_add_u32 v6, v3, 2, {T0}
v_cvt_f32_u32 v6, v6
v_mul_f32 v6, v5, v6""")
        angles(4, "v5", "v6", range(4), TMP + 8)
        for j in range(4): a(f"v_cos_f32 v{TMP+2*j}, v{TMP+8+j}\nv_sin_f32 v{TMP+2*j+1}, v{TMP+8+j}")
        a(f"v_mov_b32 v6, {lit(2*sc)}\nv_mov_b32 v7, v6")
        for j in range(4): pk2(a, "mul", TMP+2*j, TMP+2*j, 6, scalar=cfg.nopk & 16)
        for j in range(4):
            a(f"v_cvt_pk_bf16_f32 v{48+j}, v{TMP+2*j}, v{TMP+2*j+1}\nv_cvt_pk_bf16_f32 v{52+j}, v{TMP+2*j+1}, -v{TMP+2*j}")
    def gen_FB():
        a(f"""v_and_b32 v5, 15, v1
s_lshl_b32 {T0}, {S_W4}, 4
v_add_u32 v5, {T0}, v5
v_cvt_f32_u32 v5, v5
v_mul_f32 v5, {lit(1/64)}, v5
v_bfe_u32 v6, v1, 4, 1
v_cvt_f32_u32 v6, v6
v_mul_f32 v6, {lit(0.25)}, v6
v_mul_f32 v7, v5, v4
v_fmamk_f32 v6, v7, {lit(4.0)}, v6""")
        C2 = TMP + 16
        a(f"v_mul_f32 v{C2}, {lit(8.0)}, v5\nv_cos_f32 v{C2}, v{C2}")
        angles(8, "v5", "v6", [8*(j//4) + j%4 for j in range(8)], TMP + 20)
        a(f"v_add_f32 v{C2}, v{C2}, v{C2}")
        for j in range(8): a(f"v_cos_f32 v{TMP+2*j}, v{TMP+20+j}\nv_sin_f32 v{TMP+2*j+1}, v{TMP+20+j}")
        a(f"v_mov_b32 v{C2+1}, v{C2}")
        for m in range(8):
            cur = TMP + 8*(m % 2); oth = TMP + 8*((m + 1) % 2)
            if m >= 2:
                for q in range(0, 8, 2):
                    pk2(a, "fma", cur+q, C2, oth+q, cur+q, neg="2", scalar=cfg.nopk & 16)
            for q in range(4): a(f"v_cvt_pk_bf16_f32 v{FB+4*m+q}, v{cur+2*q}, v{cur+2*q+1}")
    def gen_addr():
        a(f"""v_mov_b32 v{PN+2}, 0
v_lshlrev_b32 v7, 4, v1                   ; v7 = lane*16
v_and_b32 v6, 3, v1
v_lshrrev_b32 v5, 2, v1
v_lshlrev_b32 v5, 16, v5
v_lshl_add_u32 v{P_TST}, v6, 4, v5
s_lshl_b32 {T1}, {S_W4}, 11
s_add_u32 {T0}, {T1}, {L_TT}
v_add_u32 v{P_TTR}, {T0}, v7
v_lshlrev_b32 v5, 6, v2
v_lshl_add_u32 v5, v3, 4, v5
v_add_u32 v{P_TTW}, {T0}, v5
s_lshl_b32 {S_TASK}, {S_XCD}, 5
s_add_u32 {S_TASK}, {S_TASK}, {S_IDX}
s_lshr_b32 {T0}, {S_TASK}, 3
s_lshl_b32 {T2}, {S_W4}, 9
s_add_u32 {T0}, {T0}, {T2}
s_mul_i32 {T0}, {T0}, 225
s_lshl_b32 {T2}, {S_HH}, 5
s_add_u32 {T0}, {T0}, {T2}
v_mul_u32_u24 v5, {128*225}, v3
v_add3_u32 v5, v5, v2, {T0}
v_lshlrev_b32 v{P_W}, 1, v5
v_bfe_u32 v12, v1, 4, 1
v_lshlrev_b32 v5, 2, v2
v_lshl_add_u32 v{P_TLD}, v3, 9, v5
v_lshl_add_u32 v{P_UST}, v3, 17, v5
v_lshl_add_u32 v{P_F2}, v3, 18, v5
v_add_u32 v{P_TBR}, {L_TB}, v7
v_add_u32 v{P_TBW}, {T1}, v{P_TBR}
s_add_u32 {S_K1}, {S_W4}, 3
s_cmp_eq_u32 {S_W4}, 0
s_cselect_b32 {S_K1}, 7, {S_K1}
s_lshl_b32 {T0}, {S_W4}, 12
v_add_u32 v{P_ZW0}, {T0}, v{P_TBR}
s_lshl_b32 {T0}, {S_K1}, 12
v_add_u32 v{P_ZW1}, {T0}, v{P_TBR}
v_bfe_u32 v13, v1, 2, 2
v_lshrrev_b32 v5, 4, v1
v_xor_b32 v{P_WOD}, v13, v5
s_sub_u32 {T0}, {S_CNT}, 1
v_min_u32 v{P_WOD}, {T0}, v{P_WOD}
v_add_u32 v{P_WOD}, {S_CB}, v{P_WOD}
v_lshlrev_b32 v{P_WOD}, 6, v{P_WOD}
v_mul_u32_u24 v5, 896, v5
v_add_u32 v5, v5, v{P_WOD}
v_lshl_add_u32 v5, v6, 4, v5
s_mul_i32 {T0}, {S_W4}, {4*896}
v_add_u32 v{P_WOD}, {T0}, v5
v_xor_b32 v5, {S_W4}, v13
v_lshlrev_b32 v5, 6, v5
v_lshl_add_u32 v5, v13, 8, v5
v_and_b32 v6, 1, v1
v_lshl_add_u32 v5, v6, 5, v5
v_lshl_add_u32 v5, v12, 4, v5
v_bfe_u32 v6, v1, 1, 1
v_lshl_add_u32 v5, v6, 3, v5
v_add_u32 v{P_WOR2}, {L_X}, v5
v_lshl_add_u32 v{P_WOR}, v3, 10, v{P_WOR2}""")
    pieces = [gen_F, gen_FB, gen_M, gen_MS, gen_addr]
    assert cfg.pre >= 1
    def wq_warm():
        a(f"""s_cmp_eq_u32 {S_LC}, 7
s_cbranch_scc0 L_pf1
v_mul_u32_u24 v5, 2688, v1
s_mul_i32 {T0}, {T5}, 3
s_add_u32 {T0}, {T0}, {S_RR}
s_lshl_b32 {T0}, {T0}, 7
s_mul_i32 {T1}, {S_W4}, {128*2688}
s_add_u32 {T0}, {T0}, {T1}
s_add_u32 {T1}, {T0}, {64*2688}
buffer_load_dword v{P_DUM}, v5, {sWQKV}, {T0} offen
buffer_load_dword v{P_DUM}, v5, {sWQKV}, {T1} offen
L_pf1:""")
    def xa_warm():
        a(f"""s_cmp_eq_u32 {S_LC}, 7
s_cbranch_scc0 L_pf6
v_lshlrev_b32 v5, 7, v1
s_lshl_b32 {T0}, {S_RR}, 2
s_add_u32 {T0}, {T0}, {S_W4}
s_mul_i32 {T0}, {T0}, {2*64*896}
s_mul_i32 {T1}, {S_XCD}, {8*896}
s_add_u32 {T0}, {T0}, {T1}
s_add_u32 {T1}, {T0}, {64*896}
s_bfm_b64 exec, 56, 0
buffer_load_dword v{P_DUM}, v5, {sX}, {T0} offen
buffer_load_dword v{P_DUM}, v5, {sX}, {T1} offen
s_mov_b64 exec, -1
L_pf6:""")
    def mall_warm():
        a(f"""s_cmp_eq_u32 {S_LC}, 7
s_cbranch_scc0 L_pf7
s_lshl_b32 {T0}, {S_XCD}, 4
s_lshl_b32 {T1}, {S_RR}, 2
s_add_u32 {T0}, {T0}, {T1}
s_add_u32 {T0}, {T0}, {S_W4}
v_lshlrev_b32 v5, 7, v1""")
        if cfg.mw & 1:
            a(f"""v_lshrrev_b32 v6, 3, v1
v_mul_u32_u24 v6, 2688, v6
v_and_b32 v7, 7, v1
v_min_u32 v7, 6, v7
v_lshl_add_u32 v6, v7, 7, v6
s_mul_i32 {T1}, {T0}, {4*2688}
s_mov_b64 exec, 0xffffffff
buffer_load_dword v{P_DUM}, v6, {sWQKV}, {T1} offen""")
        if cfg.mw & 2: a(f"s_mul_i32 {T1}, {T0}, {25*128}\ns_bfm_b64 exec, 25, 0\nbuffer_load_dword v{P_DUM}, v5, {sWO}, {T1} offen")
        if cfg.mw & 4: a(f"s_mul_i32 {T1}, {T0}, {57*128}\ns_bfm_b64 exec, 57, 0\nbuffer_load_dword v{P_DUM}, v5, {sWR}, {T1} offen")
        if cfg.mw & 8: a(f"s_mul_i32 {T1}, {T0}, {57*128}\ns_bfm_b64 exec, 57, 0\nbuffer_load_dword v{P_DUM}, v5, {sWI}, {T1} offen")
        if cfg.mw & 16: a(f"s_mul_i32 {T1}, {T0}, {112*128}\ns_bfm_b64 exec, 56, 0\nbuffer_load_dword v{P_DUM}, v5, {sX}, {T1} offen")
        a("s_mov_b64 exec, -1\nL_pf7:")
    if cfg.spf:
        a(f"""s_lshl_b32 {T0}, s2, 2
s_add_u32 {T0}, {T0}, {S_W4}
s_mul_i32 {T1}, {T0}, {14*128}
s_add_u32 s76, s4, {T1}
s_addc_u32 s77, s5, 0
s_mul_i32 {T1}, {T0}, 900
s_add_u32 s70, s6, {T1}
s_addc_u32 s71, s7, 0
s_add_u32 s74, s8, {T1}
s_addc_u32 s75, s9, 0""")
    n0 = len(a.L)
    for q in range(cfg.pre):
        pieces.pop(0)()
        if q == 0:
            srd(a, sWQKV, 12, 448 * 2688); srd(a, sX, 4, 0 if cfg.ko & 16 else 2048 * 896)
            srd(a, sWR, 6, 0 if cfg.ko & 1 else 2048 * 450); srd(a, sWI, 8, 0 if cfg.ko & 1 else 2048 * 450); srd(a, sWO, 14, 0 if cfg.ko & 2 else 448 * 896)
        if cfg.mw and cfg.mwpos == q + 1: mall_warm()
        if cfg.xawarm == q + 1: xa_warm()
        if cfg.wqwarm == q + 1: wq_warm()
    if cfg.spf:
        from asmlib import Ins
        pf = [f"s_load_dword s72, s[76:77], {q*128}" for q in range(14)]
        if cfg.spf >= 2: pf += [f"s_load_dword s72, s[{b}:{b+1}], {q*128}" for q in range(7) for b in (70, 74)]
        lo = n0 + cfg.spf0; hi = len(a.L)
        for q in reversed(range(len(pf))): a.L.insert(lo + (hi - lo) * q // len(pf), Ins(pf[q]))
    stamp(a, 1)
    srd(a, sWS, 20, WS_SIZE)
    srd(a, sOUT, 16, 2048 * 1792)
    S_XA, S_WQL, S_WQG = "s70", "s71", "s72"
    XD = 70
    a(f"""v_lshrrev_b32 v6, 3, v1
v_and_b32 v5, 7, v1
v_lshrrev_b32 v8, 4, v1
v_xor_b32 v5, v5, v8
s_and_b32 {T0}, {S_W4}, 1
s_lshl_b32 {T0}, {T0}, 2
v_xor_b32 v5, {T0}, v5
v_mul_u32_u24 v6, {64*896}, v6
s_mul_i32 {T1}, {S_W4}, {8*64*896}
s_mul_i32 {T2}, {S_B}, 896
s_add_u32 {T1}, {T1}, {T2}
v_add_u32 v6, {T1}, v6
v_lshl_add_u32 v{XD}, v5, 4, v6
s_lshl_b32 {T0}, {S_W4}, 10
s_add_u32 {S_XA}, {T0}, {L_X}
s_mov_b32 {T2}, {L_X}""")
    x_read_addrs(a, 8, "v1", T2, TMP)
    a(f"""v_mov_b32 v14, {L_SYNC+128}
v_mov_b32 v15, 1
v_mov_b32 v{P_BC}, {L_SYNC}
s_lshl_b32 {T1}, {S_CG}, 1""")
    lwait(a, f"v{P_BC}", P_LS, 4, 34, sleep=1)
    a(f"""ds_read_b64 {V(PN,2)}, v{P_BC} offset:64
v_lshlrev_b32 v{P_PF}, 7, v1
s_add_u32 s74, s20, {FA1}
s_addc_u32 s75, s21, 0
s_waitcnt lgkmcnt(0)
v_readfirstlane_b32 s62, v{PN}
v_readfirstlane_b32 s63, v{PN+1}
s_lshl_b32 {T0}, s2, 2
s_add_u32 {T0}, {T0}, {S_W4}
s_cmp_lg_u32 {T0}, 0
s_cbranch_scc1 L_noinit
s_mov_b32 {T0}, {FA1}
buffer_store_dwordx2 {V(PN,2)}, v{P_PF}, {sWS}, {T0} offen offset:2048 sc1
s_mov_b32 {T2}, {FA1 + 8192}
buffer_store_dwordx2 {V(PN,2)}, v{P_PF}, {sWS}, {T2} offen offset:2048 sc1
s_mov_b64 exec, 0xff00
buffer_store_dwordx2 {V(PN,2)}, v{P_PF}, {sWS}, {T0} offen sc1
s_waitcnt vmcnt(0)
s_mov_b64 exec, 0xff
buffer_store_dwordx2 {V(PN,2)}, v{P_PF}, {sWS}, {T0} offen sc1
s_mov_b64 exec, -1
L_noinit:""")
    def wpull():
        L1, L2 = a.lab("wp"), a.lab("wp")
        a(f"""s_lshl_b32 {T2}, {S_IDX}, 1
s_lshr_b32 {T3}, {S_W4}, 1
s_add_u32 {T2}, {T2}, {T3}
s_mul_i32 {T2}, {T2}, 14400
s_mul_i32 {T3}, {S_XCD}, 1800
s_add_u32 {T2}, {T2}, {T3}
s_mov_b64 exec, 0x7fff
s_bitcmp1_b32 {S_W4}, 0
s_cbranch_scc1 {L1}
buffer_load_ushort v{P_DUM}, v{P_PF}, {sWR}, {T2} offen{' nt' if cfg.ntp else ''}
s_branch {L2}
{L1}:
buffer_load_ushort v{P_DUM}, v{P_PF}, {sWI}, {T2} offen{' nt' if cfg.ntp else ''}
{L2}:
s_mov_b64 exec, -1""")
    stamp(a, 2)
    if cfg.wpf == 2: wpull()
    lwait(a, f"v{P_BC}", P_LS, 4, 20, sleep=1, off=8)
    if cfg.xas:
        a(f"s_mul_i32 {T2}, {S_H}, 7\ns_bfe_u32 {T2}, {T2}, 0x30001\ns_cmp_gt_u32 {T2}, 4\ns_cbranch_scc0 L_xago")
        lwait(a, f"v{P_BC}", P_LS, 4 * cfg.xas, 30, sleep=1, off=4)
        a("L_xago:")
    for c in range(7):
        if c == cfg.xae:
            if cfg.wpf == 1: wpull()
            if cfg.xalate == 1: lwait(a, f"v{P_BC}", P_LS, 4, 38, sleep=1, off=12)
            elif cfg.xalate == 2: lwait(a, f"v{P_BC}", P_LS, 9, 38, sleep=1)
            elif cfg.xafirst: lwait(a, f"v{P_BC}", P_LS, 8, 38)
            else: lwait(a, f"v{P_BC}", P_LS, 4, 38, sleep=1, off=16)
        a(f"""s_add_u32 {T2}, {T1}, 1
s_lshr_b32 {T3}, {T2}, 1
s_lshl_b32 {T3}, {T3}, 14
s_and_b32 {T4}, {T1}, 1
s_lshl_b32 {T4}, {T4}, 12
s_sub_u32 {T3}, {T3}, {T4}
s_add_u32 m0, {S_XA}, {T3}
s_lshl_b32 {T4}, {T1}, 7
buffer_load_dwordx4 v{XD}, {sX}, {T4} offen{' nt' if cfg.nta else ''} lds
s_cmp_eq_u32 {T2}, 7
s_cselect_b32 {T1}, 0, {T2}""")
    if cfg.wpf == 4: wpull()
    for p_ in pieces: p_()
    pieces = []
    assert not pieces
    a(f"""v_add_u32 v13, {L_M}, v7
s_lshl_b32 {T0}, {S_W4}, 10
v_add_u32 v5, {T0}, v13
ds_write_b128 v5, {V(ACC+8,4)}
s_cmp_eq_u32 {S_W4}, 0
s_cbranch_scc0 L_chkd
s_lshl_b32 {T1}, {S_XCD}, 7
s_mov_b32 {S_TO}, {cfg.poll_limit}
L_chk:
s_load_dwordx2 s[76:77], {SB}, {T1} glc
s_waitcnt lgkmcnt(0)
s_sub_u32 s76, s76, s62
s_lshr_b32 s76, s76, 5
s_xor_b32 s77, s77, s63
s_or_b32 s76, s76, s77
s_cbranch_scc0 L_chkd
s_sleep 4
s_sub_u32 {S_TO}, {S_TO}, 1
s_cbranch_scc0 L_chk
s_mov_b32 {S_TO}, 35
s_branch L_fail
L_chkd:""")
    WW = 136 if cfg.woearly else 72; AC = 152; FR = 168; TP = 200
    wl = []
    for r in range(8):
        wl.append(f"s_mov_b32 {T0}, {14400*(8*(r//4) + r%4)}\nbuffer_load_short_d16_hi v{WW+r}, v{P_W}, {sWR}, {T0} offen{' nt' if cfg.ntw else ''}")
        wl.append(f"buffer_load_short_d16_hi v{WW+8+r}, v{P_W}, {sWI}, {T0} offen{' nt' if cfg.ntw else ''}")
    if cfg.wearly:
        for s_ in wl: a(s_)
        a("s_waitcnt vmcnt(16)")
    else: a(f"s_waitcnt vmcnt({1 if cfg.wpf == 4 else 0})")
    stamp(a, 3)
    if cfg.noA == 1:
        a(f"s_mov_b64 exec, 1\nds_add_u32 v14, v15 offset:4\ns_mov_b64 exec, -1")
        stamp(a, 12); dump_stamps(a, 16); a("s_endpgm")
    albar(16)
    RG = cfg.ring
    def xreg(m): return (TMP + 4*m if m < 4 else 72 + 4*(m - 4)) if m < RG else F + 4*(m - RG)
    def xr(m): return f"ds_read_b128 {V(xreg(m),4)}, v{8+m%4} offset:{((m//4+1)>>1)*16384 - ((m//4)&1)*4096}"
    assert not (cfg.wearly and RG > 4)
    for m in range(RG): a(xr(m))
    P1 = F; P2 = F + 16; XP = TMP; M = F + 32
    if cfg.mprio == 0: a("s_setprio 0")
    nds = RG
    for m in range(28):
        a(f"s_waitcnt lgkmcnt({nds - m - 1})")
        a(mfma(ACC, xreg(m), F + 4*m, None if m == 0 else ACC))
        if m + RG < 28: a(xr(m + RG)); nds += 1
        elif m >= 24: a(f"ds_read_b128 {V(M+4*(m-24),4)}, v13 offset:{(m-24)*1024}"); nds += 1
    a(f"s_setprio {cfg.aprio}")
    lwait(a, f"v{P_BC}", P_LS, 8, 27, sleep=1)
    a(f"""s_lshl_b32 {T0}, {S_W4}, 11
s_add_u32 {T0}, {T0}, {L_MS}
v_add_u32 v5, {T0}, v7
ds_write_b128 v5, v[48:51]
ds_write_b128 v5, v[52:55] offset:1024
s_lshr_b32 {T0}, {S_KT16}, 1
s_lshl_b32 {T0}, {T0}, 13
s_lshl_b32 {T1}, {S_B}, 7
s_add_u32 {T1}, {T1}, {TBUF}
s_add_u32 {T0}, {T0}, {T1}
s_and_b32 {T2}, {S_KT16}, 1
s_lshl_b32 {T2}, {T2}, 6
s_add_u32 {T0}, {T0}, {T2}
s_add_u32 {T2}, {T0}, {16*65536}
s_cmp_ge_u32 {S_W4}, {S_CNT}
s_cbranch_scc1 L_a1done
s_waitcnt lgkmcnt(0)""")
    for q in range(8): a(f"v_cvt_pk_bf16_f32 v{XP+q}, v{ACC+2*q}, v{ACC+2*q+1}")
    a(mfma(P1, XP, M)); a(mfma(P2, XP, M + 8)); a(mfma(P1, XP + 4, M + 4, P1)); a(mfma(P2, XP + 4, M + 12, P2))
    for r in range(0, 8, 2):
        pk2(a, "add", ACC+r, P1+r, P2+r+8, neg="1", scalar=cfg.nopk & 4); pk2(a, "add", ACC+8+r, P1+r+8, P2+r, scalar=cfg.nopk & 4)
    for r in range(8): a(f"v_cvt_pk_bf16_f32 v{XP+8+r}, v{ACC+r}, v{ACC+8+r}")
    a(f"""s_cmp_lg_u32 {S_KT16}, 0
s_cbranch_scc1 L_a1st
s_mov_b32 exec_hi, 0
v_cvt_pk_bf16_f32 v{XP+8}, v{P1}, v{P2}
v_cvt_pk_bf16_f32 v6, v{P1+8}, v{P2+8}
v_lshlrev_b32 v5, 16, v2
s_mov_b32 exec_hi, -1
L_a1st:
ds_write_b128 v{P_TTW}, {V(XP+8,4)}
ds_write_b128 v{P_TTW}, {V(XP+12,4)} offset:32
ds_read_b128 {V(XP,4)}, v{P_TTR}
ds_read_b128 {V(XP+4,4)}, v{P_TTR} offset:1024
s_mov_b32 {T4}, {T0}
s_waitcnt lgkmcnt(0)""")
    stamp(a, 1, 5)
    if cfg.tdefer: lwait(a, f"v{P_BC}", P_LS, 4, 28, sleep=1, off=12)
    if cfg.tdelay: a(f"s_sleep {cfg.tdelay}")
    if cfg.tstag:
        for q in (1, 2, 3): a(f"s_cmp_lt_u32 {S_W4}, {q}\ns_cbranch_scc1 L_tst\ns_sleep {cfg.tstag}")
        a("L_tst:")
    a(f"""s_cmp_lg_u32 {S_KT16}, 0
s_cbranch_scc1 L_a1st2
s_mov_b32 exec_hi, 0
s_add_u32 {T1}, {T1}, {7*8192}
buffer_store_dword v6, v5, {sWS}, {T1} offen sc1
s_mov_b32 exec_hi, -1
L_a1st2:
{"s_branch L_a1done" if cfg.ko & 8 else ""}
buffer_store_dwordx4 {V(XP,4)}, v{P_TST}, {sWS}, {T4} offen sc1
{"s_sleep %d" % (cfg.tstag // 2) if cfg.tstag else ""}
buffer_store_dwordx4 {V(XP+4,4)}, v{P_TST}, {sWS}, {T2} offen sc1
L_a1done:""")
    stage_arrive(0)
    stamp(a, 4)
    lwait(a, f"v{P_BC}", P_LS, 4, 29, sleep=1, off=12)
    if cfg.wdelay: a(f"s_sleep {cfg.wdelay}")
    if cfg.wpf == 3: wpull()
    if not cfg.wearly and not cfg.wlate: burst([x + (f"\ns_sleep {cfg.wpace}" if cfg.wpace else "") for x in wl], cfg.th_w)
    if cfg.wopf and not cfg.wolate:
        burst([f"""s_lshl_b32 {T0}, {S_IDX}, 2
s_add_u32 {T0}, {T0}, {S_W4}
s_mul_i32 {T0}, {T0}, {25*128}
s_bfm_b64 exec, 25, 0
buffer_load_dword v{P_DUM}, v{P_PF}, {sWO}, {T0} offen
s_mov_b64 exec, -1"""], 1)
    if cfg.ohint:
        for q in range(4): a(f"v_mov_b32 v{TP+q}, -1")
        a(f"""s_lshr_b32 {T0}, {S_XCD}, 1
s_lshl_b32 {T0}, {T0}, 2
s_add_u32 {T0}, {T0}, {S_RR}
s_lshl_b32 {T0}, {T0}, 2
s_add_u32 {T0}, {T0}, {S_W4}
s_lshl_b32 {T0}, {T0}, 4
s_add_u32 {T0}, {T0}, {S_H}
s_lshl_b32 {T0}, {T0}, 11
s_add_u32 {T0}, {T0}, {OBUF}""")
        a(f"s_mov_b32 s72, {T0}")
        marks = [f"buffer_store_dwordx4 {V(TP,4)}, v7, {sWS}, s72 offen offset:{1024*q} sc1" for q in range(2)]
        if not cfg.wolate: burst(marks, 2)
    WO = 72
    S_WOL = "s70"
    a(f"s_lshl_b32 {S_WOL}, {S_W4}, 10\ns_add_u32 {S_WOL}, {S_WOL}, {L_X}")
    def wo_list(rnd):
        return [f"s_add_u32 m0, {S_WOL}, {i*4096}\ns_mov_b32 s71, {(rnd*224 + i*16)*896}\nbuffer_load_dwordx4 v{P_WOD}, {sWO}, s71 offen lds" for i in range(14)]
    def ride(q, n=1):
        it = [q.pop(0) for _ in range(min(n, len(q)))]
        if it: burst(it, n)
        pace()
    def wo_rd(f, d, r1, r2):
        hl, mu = f // 2, f % 2
        return [f"ds_read_b64_tr_b16 {V(d+2*sec,2)}, v{r2 if (mu and sec) else r1} offset:{(28*hl + 16*mu + 8*sec)*256}" for sec in range(2)]
    def wo_reads(h):
        for f in range(16):
            for s_ in wo_rd(f, WO + 64*h + 4*f, P_WOR, P_WOR2): a(s_)
    assert cfg.allpoll
    if cfg.woearly:
        assert cfg.wlate and not cfg.wolate
        lwait(a, "v14", P_LS, 4, 45, sleep=2, off=8)
        burst(wo_list(0), cfg.th_wo)
        a("s_waitcnt vmcnt(0)")
        albar(46)
        wo_reads(0)
    stamp(a, 5)
    stage_wait(0, cfg.a2wait)
    a(f"s_lshl_b32 {T1}, {S_W4}, 11")
    stamp(a, 6)
    a(f"""s_lshl_b32 {T0}, {S_TASK}, 13
s_add_u32 {T0}, {T0}, {T1}
s_add_u32 {T0}, {T0}, {TBUF}""")
    burst([f"buffer_load_dword v{FR+q}, v{P_TLD}, {sWS}, {T0} offen offset:{(q//4)*1024 + (q%4)*128} sc1" for q in range(8)], 8)
    a(f"s_waitcnt vmcnt(0)\nds_write_b128 v{P_TBW}, {V(FR,4)}\nds_write_b128 v{P_TBW}, {V(FR+4,4)} offset:1024" if not cfg.wlate else "")
    if cfg.wlate:
        burst(wl, 24)
        a(f"s_waitcnt vmcnt(16)\nds_write_b128 v{P_TBW}, {V(FR,4)}\nds_write_b128 v{P_TBW}, {V(FR+4,4)} offset:1024")
    stamp(a, 1, 4)
    albar(6)
    stamp(a, 2, 4)
    def dft64(base):
        for m in range(8): a(f"ds_read_b128 {V(FR+4*m,4)}, v{P_TBR} offset:{base + m*1024}")
        if cfg.mprio == 0: a("s_setprio 0")
        for m in range(8):
            a(f"s_waitcnt lgkmcnt({7-m})")
            a(mfma(AC, FB + 4*m, FR + 4*m, None if m == 0 else AC))
            if cfg.mprio: ride(woq)
            elif woq: a(woq.pop(0))
        a(f"s_setprio {cfg.aprio}")
    woq = marks if cfg.wolate else wo_list(1 if cfg.woearly else 0)
    dft64(0)
    a(f"s_waitcnt vmcnt({2 if cfg.wolate else 8})\ns_cmp_eq_u32 {S_HH}, 7\ns_cbranch_scc0 L_a2nx")
    for r in range(8):
        a(f"v_mov_b32 v{TP}, v{WW+r}\nv_xor_b32 v{WW+r}, 0x80000000, v{WW+8+r}\nv_mov_b32 v{WW+8+r}, v{TP}")
    a("L_a2nx:")
    for r in range(0, 8, 2):
        a(f"""v_pk_mul_f32 {V(FR+r,2)}, {V(AC+r,2)}, {V(WW+r,2)}
v_pk_mul_f32 {V(FR+8+r,2)}, {V(AC+r,2)}, {V(WW+8+r,2)}
v_pk_fma_f32 {V(FR+r,2)}, {V(AC+8+r,2)}, {V(WW+8+r,2)}, {V(FR+r,2)} neg_lo:[1,0,0] neg_hi:[1,0,0]
v_pk_fma_f32 {V(FR+8+r,2)}, {V(AC+8+r,2)}, {V(WW+r,2)}, {V(FR+8+r,2)} neg_lo:[1,0,1] neg_hi:[1,0,1]
v_cvt_pk_bf16_f32 v{TP+r}, v{FR+r}, v{FR+8+r}
v_cvt_pk_bf16_f32 v{TP+r+1}, v{FR+r+1}, v{FR+8+r+1}""")
    a(f"ds_write_b128 v{P_TBW}, {V(TP,4)} offset:8192\nds_write_b128 v{P_TBW}, {V(TP+4,4)} offset:9216")
    stamp(a, 3, 4)
    albar(7)
    stamp(a, 4, 4)
    dft64(8192)
    if cfg.uinp:
        a(f"s_lshl_b32 {T0}, {S_TASK}, 13\ns_lshl_b32 {T1}, {S_W4}, 11\ns_add_u32 {T0}, {T0}, {T1}\ns_add_u32 {T0}, {T0}, {TBUF}")
    else:
        a(f"""s_lshl_b32 {T0}, {S_HH}, 12
s_lshr_b32 {T1}, {S_TASK}, 3
s_lshl_b32 {T1}, {T1}, 7
s_add_u32 {T0}, {T0}, {T1}
s_add_u32 {T0}, {T0}, {UBUF}
s_lshl_b32 {T1}, {S_W4}, 19
s_add_u32 {T0}, {T0}, {T1}""")
    for r in range(8): a(f"v_cvt_pk_bf16_f32 v{TP+r}, v{AC+r}, v{AC+8+r}")
    stamp(a, 5, 4)
    a(f"s_cmp_eq_u32 {S_HH}, {S_HH if cfg.ko & 8 else 7}\ns_cselect_b32 exec_lo, 1, -1\ns_cselect_b32 exec_hi, 1, -1")
    if cfg.uinp:
        burst([f"buffer_store_dword v{TP+r}, v{P_TLD}, {sWS}, {T0} offen offset:{(r//4)*1024 + (r%4)*128} sc1" for r in range(8)], 8)
    else:
        burst([f"s_add_u32 {T1}, {T0}, {(8*(r//4) + r%4) * USTR}\nbuffer_store_dword v{TP+r}, v{P_UST}, {sWS}, {T1} offen sc1" for r in range(8)], 8)
    a("s_mov_b64 exec, -1")
    stage_arrive(1)
    stamp(a, 7)
    U0 = 16; U1 = 32; AR = 200; AI = 216
    MSR = [48, 52, 56, 60, 64, 68, 232, 240]
    if cfg.wolate:
        burst(wo_list(0), cfg.th_wo)
        a("s_waitcnt vmcnt(0)")
    albar(4)
    wo_reads(1 if cfg.woearly else 0)
    for q in range(8): a(f"ds_read_b128 {V(MSR[q],4)}, v7 offset:{L_MS + q*1024}")
    if not cfg.woearly:
        albar(24)
        if not cfg.wolate: burst(wo_list(1), cfg.th_wo)
    stage_wait(1, 0 if cfg.wolate else cfg.a3wait)
    stamp(a, 8)
    if cfg.uinp:
        a(f"""s_lshl_b32 {T0}, {S_BP}, 7
s_add_u32 {T0}, {T0}, {TBUF}
s_lshl_b32 {T1}, {S_W4}, 13
s_lshl_b32 {T3}, {S_K1}, 13
s_add_u32 {T2}, {T0}, {T3}
s_add_u32 {T1}, {T0}, {T1}""")
        burst([f"s_add_u32 {T0}, {T1 if q < 16 else T2}, {(8*((q%16)//4) + q%4) * 65536}\nbuffer_load_dword v{U0+q}, v{P_F2}, {sWS}, {T0} offen sc1" for q in range(32)], cfg.th_u)
    else:
        a(f"""s_lshl_b32 {T0}, {S_BP}, 15
s_add_u32 {T0}, {T0}, {UBUF}
s_lshl_b32 {T1}, {S_W4}, 12
s_lshl_b32 {T3}, {S_K1}, 12
s_add_u32 {T2}, {T0}, {T3}
s_add_u32 {T1}, {T0}, {T1}""")
        burst([f"buffer_load_dword v{U0+q}, v{P_TLD}, {sWS}, {T1 if q < 16 else T2} offen offset:{((q%16)//4)*1024 + (q%4)*128} sc1" for q in range(32)], cfg.th_u)
    if cfg.wolate: burst(wo_list(1), 46)
    elif not cfg.woearly:
        a("s_waitcnt vmcnt(32)")
        albar(10)
        wo_reads(1)
    stamp(a, 11, 4)
    a(f"""s_lshl_b32 {T4}, {S_BP}, 2
s_add_u32 {T4}, {T4}, {S_W4}
s_lshl_b32 {T3}, {T4}, 13
s_add_u32 {T3}, {T3}, {OBUF}
s_add_u32 {T2}, {T3}, 4096
s_and_b32 {T4}, {S_BP}, 60
s_add_u32 {T4}, {T4}, {S_W4}
s_lshl_b32 {T4}, {T4}, 9
s_add_u32 {T4}, {T4}, {FO}
s_lshl_b32 {T1}, {S_W4}, 13
v_add_u32 v9, {T1}, v7""")
    def step6(ur, ui, va, last):
        if last and cfg.apoll: a(poll_issue(f"v{P_PF}", T4, P_PS, 4))
        if cfg.mprio == 0: a("s_setprio 0")
        for m in range(4):
            a(mfma(AR, ur + 4*m, MSR[2*m], None if m == 0 else AR))
            if cfg.pace6: a(f"s_sleep {cfg.pace6}")
            a(mfma(AI, ui + 4*m, MSR[2*m+1], None if m == 0 else AI))
            if cfg.pace6: a(f"s_sleep {cfg.pace6}")
        a(f"s_setprio {cfg.aprio}")
        for q in range(16):
            a(f"v_cvt_pk_bf16_f32 v{ur+q}, v{AR+2*q}, v{AR+2*q+1}")
            if q % 4 == 3: a(f"ds_write_b128 v{va}, {V(ur+q-3,4)} offset:{(q//4)*1024}")
    if cfg.s6late: lwait(a, f"v{P_BC}", P_LS, 20, 37, sleep=2)
    a(f"s_waitcnt vmcnt({14 if cfg.wolate else 0})\ns_cmp_eq_u32 {S_W4}, 0\ns_cbranch_scc1 L_a3w0")
    step6(U0, U0, P_ZW0, False)
    step6(U1, U1, P_ZW1, True)
    a(f"s_branch L_a3z\nL_a3w0:\ns_mov_b32 exec_lo, -2\ns_mov_b32 exec_hi, -2")
    for q in range(16): a(f"v_mov_b32 v{U1+q}, v{U0+q}")
    a("s_mov_b64 exec, -1")
    step6(U0, U1, P_ZW0, True)
    a("L_a3z:\ns_mov_b64 exec, 1\nds_add_u32 v14, v15 offset:4\ns_mov_b64 exec, -1")
    stamp(a, 9)
    if cfg.wolate:
        a(f"s_waitcnt vmcnt({1 if cfg.apoll else 0})")
        lbar(a, "v14", "v15", P_LS, 10)
        wo_reads(1)
    osc = ("", " sc1", " nt", " sc0 sc1", " sc1 nt")[cfg.outsc]
    stamp(a, 10)
    a(f"s_mov_b32 s71, {cfg.poll_limit}")
    if cfg.apoll: a(f"s_waitcnt vmcnt(0)\n{poll_check(P_PS, 4)}\ns_cbranch_scc0 L_aoload")
    poll(a, f"v{P_PF}", T4, P_PS, 4, 42, sleep=cfg.osleep)
    a("L_aoload:")
    for q in range(8):
        a(f"buffer_load_dwordx4 {V(16+4*q,4)}, v7, {sWS}, {T3 if q < 4 else T2} offen offset:{(q%4)*1024} sc1")
    stamp(a, 13)
    lwait(a, f"v{P_BC}", P_LS, 24, 43, sleep=1)
    for q in range(8):
        a(f"s_waitcnt vmcnt({7-q})\nds_write_b128 v9, {V(16+4*q,4)} offset:{L_OB + q*1024}")
        if q == 2: a("v_max3_u32 v5, v16, v20, v24")
        if q in (4, 6): a(f"v_max3_u32 v5, v5, v{12+4*q}, v{16+4*q}")
    a(f"""v_max_u32 v5, v5, v44
v_cmp_eq_u32 vcc, -1, v5
s_cbranch_vccz L_aogot
s_sleep 6
s_sub_u32 s71, s71, 1
s_cbranch_scc0 L_aoload
s_mov_b32 {S_TO}, 44
s_branch L_fail
L_aogot:
s_mov_b64 exec, 1
ds_add_u32 v{P_BC}, v15 offset:20
s_mov_b64 exec, -1""")
    a(f"""s_mul_i32 {T4}, {S_BP}, {32*1792}
s_lshl_b32 {T1}, {S_DT}, 6
s_add_u32 {T4}, {T4}, {T1}
s_add_u32 {T4}, {T4}, 896
s_add_u32 {T3}, {T4}, {16*1792}""")
    lwait(a, f"v{P_BC}", P_LS, 4, 12, off=20)
    a(f"s_cmp_ge_u32 {S_W4}, {S_CNT}\ns_cbranch_scc1 L_b3done")
    stamp(a, 11)
    OR = 216
    def zr(s_): return f"ds_read_b128 {V(OR+4*(s_%8),4)}, v7 offset:{L_OB + s_*1024}"
    for s_ in range(8): a(zr(s_))
    if cfg.cost & 1:
        a(f"""s_lshl_b32 {T1}, {S_W4}, 11
s_add_u32 {T1}, {T1}, {L_X}
v_lshlrev_b32 v10, 6, v2
v_lshl_add_u32 v10, v3, 5, v10
v_add_u32 v10, {T1}, v10
v_add_u32 v11, {T1}, v7
v_lshrrev_b32 v5, 2, v1
v_mul_u32_u24 v5, 1792, v5
v_and_b32 v12, 3, v1
v_lshl_add_u32 v5, v12, 4, v5""")
    else:
        a("v_mul_u32_u24 v5, 1792, v2\nv_lshl_add_u32 v5, v3, 5, v5")
    for s_ in range(32):
        a(f"s_waitcnt lgkmcnt({min(7, 31-s_)})")
        a(mfma(AR, WO + 4*s_, OR + 4*(s_ % 8), None if s_ == 0 else AR))
        if s_ + 8 < 32: a(zr(s_ + 8))
    for hf in range(2):
        for q in range(4*hf, 4*hf+4): a(f"v_cvt_pk_bf16_f32 v{48+q}, v{AR+2*q}, v{AR+2*q+1}")
        if cfg.cost & 1: a(f"ds_write_b128 v10, {V(48+4*hf,4)} offset:{16*hf}")
        else: a(f"buffer_store_dwordx4 {V(48+4*hf,4)}, v5, {sOUT}, {T4} offen offset:{16*hf}{osc}")
    if cfg.cost & 1:
        a(f"""ds_read_b128 v[56:59], v11
ds_read_b128 v[60:63], v11 offset:1024
s_waitcnt lgkmcnt(1)
buffer_store_dwordx4 v[56:59], v5, {sOUT}, {T4} offen{osc}
s_waitcnt lgkmcnt(0)
buffer_store_dwordx4 v[60:63], v5, {sOUT}, {T3} offen{osc}""")
    a("L_b3done:")
    a(f"""s_lshl_b32 {T0}, s2, 2
s_add_u32 {T0}, {T0}, {S_W4}
s_cmp_lg_u32 {T0}, 0
s_cbranch_scc1 L_noep
s_mov_b32 {T0}, {EPOCH}""")
    flag(a, T0, 10)
    a("L_noep:")
    if cfg.padend: padto(a, cfg.padend)
    stamp(a, 12)
    dump_stamps(a, 16)
    a("s_endpgm")

def build():
    nh = cfg.nh; xh = 16 // nh
    for wg in range(256):
        xcd, idx = wg & 7, wg >> 3
        h = (xcd % xh) * nh + idx % nh
        assert nh == 8
    a = Asm()
    prologue(a); role_B(a); ROLE[0] = 1; role_A(a)
    a(f"""L_fail:
v_mov_b32 v0, 0
v_mov_b32 v1, {S_TO}
global_store_dword v0, v1, s[18:19]
L_end:
s_endpgm
L_codeend:""")
    a.pad()
    import os
    ref = "cdna_kernels/" + NAME + ".s.ref"
    hdr = open(ref).read().split("; Override launch")[0] if os.path.exists(ref) else ""
    s = hdr + f"; @launch grid=(256,1,1) block=(512,1,1) lds={LDS_SIZE}\n"
    s += f""".amdgcn_target "amdgcn-amd-amdhsa--gfx950"
.text
.globl {NAME}_kernel
.p2align 8
.type {NAME}_kernel,@function
{NAME}_kernel:
""" + a.text() + f""".section .rodata,"a"
.p2align 6
.amdhsa_kernel {NAME}_kernel
  .amdhsa_next_free_vgpr 256
  .amdhsa_next_free_sgpr 102
  .amdhsa_accum_offset 256
  .amdhsa_group_segment_fixed_size 0
  .amdhsa_kernarg_size 72
  .amdhsa_user_sgpr_count 2
  .amdhsa_user_sgpr_kernarg_segment_ptr 1
  .amdhsa_system_sgpr_workgroup_id_x 1
.end_amdhsa_kernel
"""
    return s

if __name__ == "__main__":
    out = sys.argv[1]
    for kv in sys.argv[2:]:
        k, v = kv.split("=")
        setattr(cfg, k, type(getattr(cfg, k))(int(v)))
    open(out, "w").write(build())
```

```python
import sys, math, struct
from asmlib import Asm

NAME = "concat_heads__spectral_gfnet__softmax_full_mha__prompt"

class Cfg:
    nh = 8
    stamps = False
    poll_limit = 1 << 17
    noA = 0
    pxcd = -1
    ptype = 0
    kvsc = 0
    probe = -1
    span = 0
    fine = 0
    padend = 0
    padmid = 0
    dbgwave = -1
    nbuf = 5
    wearly = 0
    touch = 0
    wdelay = 30
    tdelay = 0
    s6late = 0
    lsl = 4
    odefer = 0
    a2wait = 8
    a3wait = 0
    kvwait = 8
    kvrot = 3
    m1 = 12
    ramp = 1
    gate = 2
    wqe = 3
    wqp = 7
    tdefer = 1
    m2 = 27
    xas = 0
    xae = 2
    bhi = 56
    ohint = 1
    wlate = 1
    allpoll = 1
    otry = 1
    gsplit = 8
    claim = 1
    btry = 0
    pace6 = 0
    wolate = 0
    wsoff = 0
    mprio = 0
    xawarm = 0
    wpace = 0
    tstag = 0
    xafirst = 1
    mw = 2
    mwpos = 1
    wqdel = 0
    ring = 8
    apoll = 1
    osleep = 2
    fprio = 0
    nta = 1
    ntw = 1
    ntb = 0
    bsleep = 2
    qst = 0x133
    wopf = 0
    uinp = 1
    woearly = 0
    hack = 0
    ko = 0
    xalate = 0
    ntp = 1
    cost = 3
    nopk = 23
    gtab = 2981409204
    kvp = 1
    owait = 4
    xrot = 0x06543210
    wrot = 1
    pace = 1
    xadefer = 0
    wpf = 0
    outsc = 3
    wqwarm = 1
    th_wo = 14
    th_u = 32
    th_wq = 2
    wqearly = 1
    th_w = 17
    th_xa = 4
    wfair = 8
    xearly = 1
    spf = 0
    spf0 = 150
    pre = 5
    aprio = 2
    force_fb = False
cfg = Cfg()

EPOCH = 0
KV = 0x20000; TS = 61440; VOFF = 28672
OBUF = 0x400000
TBUF = 0x600000
UBUF = 0x800000; USTR = 32768
FKV = 0x8000; FA1 = 0x1000; FO = 0x10000
STAMP = 0xB00000
WS_SIZE = 0x1000000
L_W = 0; L_WQ = 57344; L_X = 86016; L_Q = 151552; L_SYNC = 159744
LDS_SIZE = 160000
L_RED = 0
L_TB = L_WQ; L_YB = L_WQ + 8192; L_MS = 49152; L_TT = L_X + 4096; L_M = L_X + 61440
L_ZB = L_WQ; L_OB = 0
sWS, sWQKV, sX, sWR, sWI, sWO, sOUT = [f"s[{i}:{i+3}]" for i in (24, 28, 32, 36, 40, 44, 48)]
S_WAVE, S_XCD, S_IDX, S_H, S_R, S_W4 = "s56", "s57", "s58", "s59", "s60", "s61"
S_NONCE = "s[62:63]"
S_TO, S_BAR = "s64", "s65"
T0, T1, T2, T3, T4, T5 = "s66", "s67", "s68", "s69", "s22", "s23"
STAMP0 = 84

ZREADY = 24

def f2u(x): return struct.unpack("<I", struct.pack("<f", x))[0]
def lit(x): return "0x%08x" % f2u(x)
def V(a, n=1): return f"v{a}" if n == 1 else f"v[{a}:{a+n-1}]"

def srd(a, name, lo, size):
    i = int(name[2:name.index(":")])
    a(f"s_mov_b32 s{i}, s{lo}\ns_mov_b32 s{i+1}, s{lo+1}\ns_mov_b32 s{i+2}, {size}\ns_mov_b32 s{i+3}, 0x20000")

ROLE = [0]
def stamp(a, i, fine=0):
    if cfg.probe >= 0:
        if fine == cfg.fine and cfg.probe == ROLE[0] * 100 + i:
            a("s_memrealtime s[96:97]\ns_waitcnt lgkmcnt(0)")
        return
    if cfg.fine in (1, 2) and not fine and 3 <= i <= 11: return
    if cfg.fine == 4 and not fine and i in (1, 2, 3, 4, 5, 10, 11, 13): return
    if fine and cfg.fine != fine: return
    if cfg.stamps:
        a(f"s_memtime s[100:101]\ns_waitcnt lgkmcnt(0)\ns_mov_b32 s{STAMP0+i}, s100")

def st0():
    o = f"s_add_u32 s20, s20, {cfg.wsoff << 20}\ns_addc_u32 s21, s21, 0\n" if cfg.wsoff else ""
    return o + (f"s_mov_b32 s{STAMP0+15}, s100\ns_mov_b32 s{STAMP0}, s38" if cfg.stamps else "")

def dump_stamps(a, vt):
    if cfg.probe >= 0:
        if cfg.probe // 100 == ROLE[0]:
            L = a.lab("pr")
            if cfg.pxcd >= 0: a(f"s_cmp_lg_u32 {S_XCD}, {cfg.pxcd}\ns_cbranch_scc1 {L}x")
            if cfg.ptype: a(f"s_cmp_eq_u32 {S_LC}, 7\ns_cbranch_scc{cfg.ptype - 1} {L}x")
            if cfg.probe % 100 == 99: a("s_mov_b32 s96, s100")
            a(f"s_sub_u32 s96, s96, s100\ns_cmp_gt_u32 s96, 4000\ns_cselect_b32 s96, 0, s96\ns_add_u32 s96, s96, 2600\n{L}:\ns_memrealtime s[98:99]\ns_waitcnt lgkmcnt(0)\ns_sub_u32 s98, s98, s100\ns_cmp_lt_u32 s98, s96\ns_cbranch_scc1 {L}\n{L}x:")
        return
    if cfg.span:
        a(f"s_waitcnt vmcnt(0)\ns_memrealtime s[98:99]\ns_lshl_b32 {T0}, s2, 3\ns_add_u32 {T0}, {T0}, {S_WAVE}\ns_lshl_b32 {T0}, {T0}, 3\ns_add_u32 {T0}, {T0}, {STAMP}\ns_waitcnt lgkmcnt(0)")
        a(f"v_mov_b32 v{vt}, s100\nv_mov_b32 v{vt+1}, s98\nv_mov_b32 v{vt+2}, 0\ns_mov_b64 exec, 1\nbuffer_store_dwordx2 {V(vt,2)}, v{vt+2}, {sWS}, {T0} offen\ns_mov_b64 exec, -1")
    if not cfg.stamps: return
    a(f"s_memrealtime s[100:101]\ns_waitcnt lgkmcnt(0)\ns_mov_b32 s{STAMP0+14}, s100")
    if cfg.dbgwave >= 0:
        L = a.lab("nodbg")
        a(f"s_lshl_b32 {T0}, s2, 3\ns_add_u32 {T0}, {T0}, {S_WAVE}\ns_cmp_lg_u32 {T0}, {cfg.dbgwave}\ns_cbranch_scc1 {L}")
        a(f"v_mov_b32 v{vt+4}, 0\ns_mov_b64 exec, 1")
        for i in range(1, 16):
            a(f"s_sub_u32 {T1}, s{STAMP0+i}, s{STAMP0 + (15 if i >= 14 else 0)}\nv_mov_b32 v{vt}, {T1}\nglobal_store_dword v{vt+4}, v{vt}, s[18:19] offset:{4*i}")
        a(f"s_mov_b64 exec, -1\n{L}:")
    a(f"s_lshl_b32 {T0}, s2, 3\ns_add_u32 {T0}, {T0}, {S_WAVE}\ns_lshl_b32 {T0}, {T0}, 7\ns_add_u32 {T0}, {T0}, {STAMP}")
    a(f"v_mov_b32 v{vt+4}, 0\ns_mov_b64 exec, 1")
    for q in range(4):
        for i in range(4): a(f"v_mov_b32 v{vt+i}, s{STAMP0+4*q+i}")
        a(f"buffer_store_dwordx4 {V(vt,4)}, v{vt+4}, {sWS}, {T0} offen offset:{16*q}")
    a("s_mov_b64 exec, -1")

def padto(a, ticks):
    L = a.lab("pad")
    a(f"{L}:\ns_memrealtime s[100:101]\ns_waitcnt lgkmcnt(0)\ns_sub_u32 s100, s100, s{STAMP0+15}\ns_cmp_lt_u32 s100, {ticks}\ns_cbranch_scc1 {L}")

def poll_issue(vaddr, soff, vt, n):
    return f"""v_mov_b32 v{vt}, 0
v_mov_b32 v{vt+1}, 0
s_bfm_b64 exec, {n}, 0
buffer_atomic_or_x2 {V(vt,2)}, {vaddr}, {sWS}, {soff} offen sc0 sc1
s_mov_b64 exec, -1"""

def poll_check(vt, n):
    return f"v_cmp_ne_u64 vcc, {S_NONCE}, {V(vt,2)}\ns_and_b32 vcc_lo, vcc_lo, {hex((1 << n) - 1)}"

def poll(a, vaddr, soff, vt, n, code, sleep=2):
    L, Dn = a.lab("poll"), a.lab("polld")
    a(f"""s_mov_b32 {S_TO}, {cfg.poll_limit}
{L}:
{poll_issue(vaddr, soff, vt, n)}
s_waitcnt vmcnt(0)
{poll_check(vt, n)}
s_cbranch_scc0 {Dn}
s_sleep {sleep}
s_sub_u32 {S_TO}, {S_TO}, 1
s_cbranch_scc0 {L}
s_mov_b32 {S_TO}, {code}
s_branch L_fail
{Dn}:""")

def publish_wg(a, vsync, vone, off, vt, soff, vn, last=3):
    L = a.lab("pub")
    a(f"""s_mov_b64 exec, 1
ds_add_rtn_u32 v{vt}, {vsync}, {vone} offset:{off}
s_waitcnt lgkmcnt(0)
v_readfirstlane_b32 {T0}, v{vt}
s_cmp_eq_u32 {T0}, {last}
s_cselect_b64 exec, 1, 0
buffer_store_dwordx2 {V(vn,2)}, v{vn+2}, {sWS}, {soff} offen sc1
s_mov_b64 exec, -1""")

def flag(a, soff, vt):
    a(f"""v_mov_b32 v{vt}, s62
v_mov_b32 v{vt+1}, s63
v_mov_b32 v{vt+2}, 0
s_mov_b64 exec, 1
buffer_store_dwordx2 {V(vt,2)}, v{vt+2}, {sWS}, {soff} offen sc1
s_mov_b64 exec, -1""")

def flag2(a, soff, vn):
    a(f"s_mov_b64 exec, 1\nbuffer_store_dwordx2 {V(vn,2)}, v{vn+2}, {sWS}, {soff} offen sc1\ns_mov_b64 exec, -1")

def lwait(a, vsync, vt, target, code, sleep=0, off=0):
    L, Dn = a.lab("lw"), a.lab("lwd")
    a(f"""s_mov_b32 {S_TO}, {cfg.poll_limit * 8}
{L}:
ds_read_b32 v{vt}, {vsync} offset:{off}
s_waitcnt lgkmcnt(0)
v_readfirstlane_b32 {T0}, v{vt}
s_cmp_ge_u32 {T0}, {target}
s_cbranch_scc1 {Dn}
{"s_sleep %d" % sleep if sleep else ""}
s_sub_u32 {S_TO}, {S_TO}, 1
s_cbranch_scc0 {L}
s_mov_b32 {S_TO}, {code}
s_branch L_fail
{Dn}:""")

def lbar(a, vsync, vone, vt, code, sleep=0):
    L, Dn = a.lab("lb"), a.lab("lbd")
    a(f"""s_add_u32 {S_BAR}, {S_BAR}, 4
s_mov_b64 exec, 1
ds_add_u32 {vsync}, {vone}
s_mov_b64 exec, -1
s_mov_b32 {S_TO}, {cfg.poll_limit * 8}
{L}:
ds_read_b32 v{vt}, {vsync}
s_waitcnt lgkmcnt(0)
v_readfirstlane_b32 {T0}, v{vt}
s_cmp_ge_u32 {T0}, {S_BAR}
s_cbranch_scc1 {Dn}
{"s_sleep %d" % sleep if sleep else ""}
s_sub_u32 {S_TO}, {S_TO}, 1
s_cbranch_scc0 {L}
s_mov_b32 {S_TO}, {code}
s_branch L_fail
{Dn}:""")

def mfma(d, A, B, C=None):
    return f"v_mfma_f32_32x32x16_bf16 {V(d,16)}, {V(A,4)}, {V(B,4)}, {'0' if C is None else V(C,16)}"

def pk2(a, op, d, x, y, z=None, neg="", scalar=False):
    srcs = [x, y] + ([z] if z is not None else [])
    if not scalar:
        m = "[" + ",".join("1" if str(i) in neg else "0" for i in range(len(srcs))) + "]"
        a(f"v_pk_{op}_f32 {V(d,2)}, " + ", ".join(V(r,2) for r in srcs) + (f" neg_lo:{m} neg_hi:{m}" if neg else ""))
        return
    for q in range(2):
        if op == "add" and neg == "1": a(f"v_sub_f32 v{d+q}, v{x+q}, v{y+q}")
        else: a(f"v_{op}_f32 v{d+q}, " + ", ".join(("-" if str(i) in neg else "") + f"v{r+q}" for i, r in enumerate(srcs)))

def mod7(a, s, t):
    a(f"s_mul_i32 {t}, {s}, 9363\ns_lshr_b32 {t}, {t}, 16\ns_mul_i32 {t}, {t}, 7\ns_sub_u32 {s}, {s}, {t}")

def x_read_addrs(a, v0, vl, base_s, t):
    a(f"""v_and_b32 v{t}, 31, {vl}
v_lshrrev_b32 v{t+1}, 5, {vl}
v_bfe_u32 v{t+2}, {vl}, 1, 3
v_xor_b32 v{t+1}, v{t+1}, v{t+2}
v_lshlrev_b32 v{t}, 7, v{t}
v_add_u32 v{t}, {base_s}, v{t}""")
    for mm in range(4):
        a(f"v_xor_b32 v{t+2}, {2*mm}, v{t+1}\nv_lshl_add_u32 v{v0+mm}, v{t+2}, 4, v{t}")


S_HH, S_RR, S_J, S_P0, S_LC = "s52", "s53", "s54", "s55", "s3"

def prologue(a):
    a(f"""s_cmp_ge_u32 s2, 256
s_cbranch_scc1 L_end
s_load_dwordx16 s[4:19], s[0:1], 0
s_load_dwordx2 s[20:21], s[0:1], 64""")
    if cfg.span or cfg.probe >= 0: a("s_memrealtime s[100:101]")
    if cfg.stamps:
        a(f"s_memtime s[38:39]\ns_memrealtime s[100:101]")
        for i in range(1, 15): a(f"s_mov_b32 s{STAMP0+i}, 0")
    a(f"""s_lshr_b32 {S_IDX}, s2, 3
s_getpc_b64 s[70:71]
L_pc:
v_lshrrev_b32 v3, 5, v0
v_lshl_add_u32 v3, {S_IDX}, 4, v3
v_lshlrev_b32 v3, 7, v3
v_min_u32 v3, L_codeend-L_pc-4, v3
global_load_dword v255, v3, s[70:71]
v_lshrrev_b32 v2, 6, v0
v_and_b32 v1, 63, v0
v_readfirstlane_b32 {S_WAVE}, v2
s_and_b32 {S_XCD}, s2, 7
s_and_b32 {S_HH}, {S_IDX}, 7
s_lshr_b32 {S_RR}, {S_IDX}, 3
s_and_b32 {T5}, {S_XCD}, 1
s_lshl_b32 {S_H}, {T5}, 3
s_add_u32 {S_H}, {S_H}, {S_HH}
s_lshl_b32 {T0}, {S_HH}, 2
s_cmp_eq_u32 {T5}, 0
s_cselect_b32 {S_LC}, 0x67543210, s2
s_cselect_b32 {S_LC}, {S_LC}, 0x65432170
s_lshr_b32 {S_LC}, {S_LC}, {T0}
s_and_b32 {S_LC}, {S_LC}, 7
s_and_b32 {S_W4}, {S_WAVE}, 3
s_cmp_ge_u32 {S_WAVE}, 4
s_cbranch_scc1 L_roleA""")

def nonce(a):
    a(f"""s_waitcnt lgkmcnt(0)
s_mul_i32 s62, s62, 0x9E3779B1
s_add_u32 s62, s62, 0x7F4A7C15
s_mul_i32 s63, s63, 0x85EBCA6D
s_add_u32 s63, s63, 0x165667B1""")

def role_B(a):
    X = 16; ACC = 128; WB = 160; PK = 224
    KVSC = ("sc1", "sc0 sc1", "sc1 nt", "sc0 sc1 nt")[cfg.kvsc]
    SC = 70
    S_XL, S_TILE, S_I = "s77", "s78", "s79"
    TO = 36
    S_WM, S_WO, S_DM, S_DO = "s80", "s81", "s82", "s83"
    a(f"""s_setprio 3
s_mul_i32 {S_J}, {T5}, 7
s_add_u32 {S_J}, {S_J}, {S_LC}
v_lshrrev_b32 v8, 3, v1
v_and_b32 v9, 7, v1
v_mul_u32_u24 v2, 2688, v8
v_bfe_u32 v3, v1, 4, 1
v_lshlrev_b32 v3, 2, v3
v_xor_b32 v3, v9, v3
v_lshl_add_u32 v2, v3, 4, v2
s_lshl_b32 {T0}, {S_J}, 7
s_mul_i32 {T1}, {S_W4}, {8*2688}
s_add_u32 {T0}, {T0}, {T1}
s_add_u32 {T0}, {T0}, 896
v_add_u32 v2, {T0}, v2
s_lshl_b32 {T2}, {S_RR}, 3
s_lshr_b32 {T0}, {0xD66D0770 if cfg.wrot else 0x70707070}, {T2}
s_bfe_u32 {T1}, {T0}, 0x40004
s_and_b32 {T0}, {T0}, 15
s_lshl_b32 {T3}, {S_W4}, 10
s_lshl_b32 {T2}, {T0}, 12
s_add_u32 m0, {T2}, {T3}
s_mul_i32 {S_I}, {T0}, {32*2688}
s_lshl_b32 {T2}, {T1}, 12
s_add_u32 {S_WM}, {T2}, {T3}
s_mul_i32 {S_WO}, {T1}, {32*2688}
s_cmp_ge_u32 {S_RR}, {2 if cfg.wrot else 4}
s_cselect_b32 {T0}, -1, 1
s_lshl_b32 {S_DM}, {T0}, 12
s_mul_i32 {S_DO}, {T0}, {32*2688}
s_cmp_eq_u32 {S_LC}, 7
s_cselect_b32 s30, 0, {448 * 2688}
s_mov_b32 s31, 0x20000
s_waitcnt lgkmcnt(0)
{st0()}
s_mov_b64 s[28:29], s[12:13]""")
    def x_m0(i, j): return f"s_add_u32 m0, {S_XL}, {(i%4)*4096 + j*1024}"
    def x_ld(i, j): return f"buffer_load_dwordx4 v{4+j}, {sX}, s{SC+i} offen{' nt' if cfg.ntb else ''} lds"
    def sc_next(i): return f"s_add_u32 s{SC+i}, s{SC+i-1}, 128\ns_cmp_eq_u32 s{SC+i}, 896\ns_cselect_b32 s{SC+i}, 0, s{SC+i}"
    def w_base(i): return f"v_lshl_add_u32 v12, s{SC+i}, 6, v14\nv_xor_b32 v13, 64, v12"
    def setup_x():
        a(f"""s_mov_b32 s34, {2048*896}
s_mov_b32 s35, 0x20000
s_lshr_b32 {S_R}, {S_XCD}, 1
s_lshl_b32 {S_R}, {S_R}, 2
s_add_u32 {S_R}, {S_R}, {S_RR}
s_lshl_b32 {S_TILE}, {S_R}, 2
s_add_u32 {S_TILE}, {S_TILE}, {S_W4}
v_lshrrev_b32 v10, 4, v1
v_xor_b32 v10, v9, v10
v_xor_b32 v11, 4, v10
v_mul_u32_u24 v12, 896, v8
s_mul_i32 {T2}, {S_TILE}, {32*896}
v_add_u32 v12, {T2}, v12
v_lshl_add_u32 v4, v10, 4, v12
v_lshl_add_u32 v5, v11, 4, v12
v_add_u32 v5, {8*896}, v5
v_add_u32 v6, {16*896}, v4
v_add_u32 v7, {16*896}, v5
s_lshl_b32 {T2}, {S_HH}, 2
s_lshr_b32 s{SC}, {cfg.xrot}, {T2}
s_and_b32 s{SC}, s{SC}, 7
s_lshl_b32 s{SC}, s{SC}, 7
s_lshl_b32 {S_XL}, {S_W4}, 14
s_add_u32 {S_XL}, {S_XL}, {L_X}""")
        a("s_mov_b64 s[32:33], s[10:11]")
    def setup2():
        for i in range(1, 7): a(sc_next(i))
        x_read_addrs(a, 8, "v1", S_XL, 12)
        srd(a, sWS, 20, WS_SIZE)
        a(f"""v_lshrrev_b32 v12, 5, v1
v_lshlrev_b32 v12, 3, v12
v_bfe_u32 v13, v1, 2, 2
v_add_u32 v12, v12, v13
v_bfe_u32 v13, v1, 4, 1
v_lshlrev_b32 v13, 5, v13
v_and_b32 v18, 1, v1
v_bfe_u32 v19, v1, 1, 1
v_lshl_add_u32 v15, v18, 4, v13
v_lshl_add_u32 v15, v19, 3, v15
v_lshl_add_u32 v14, v18, 3, v13
v_lshl_add_u32 v14, v19, 4, v14
s_cmp_eq_u32 {T5}, 1
s_cselect_b64 vcc, -1, 0
v_cndmask_b32 v14, v15, v14, vcc
v_lshl_add_u32 v15, v12, 6, v15
v_add_u32 v15, {L_WQ}, v15
v_bfe_u32 v13, v1, 3, 1
v_lshl_add_u32 v14, v13, 6, v14
v_lshl_add_u32 v14, v12, 7, v14""")
        a(f"""v_lshrrev_b32 v253, 2, v1
v_mul_u32_u24 v253, 2688, v253
v_and_b32 v254, 3, v1
v_lshl_add_u32 v253, v254, 4, v253
s_mul_i32 {S_P0}, {S_H}, 7
s_lshr_b32 {S_P0}, {S_P0}, 1
s_lshl_b32 s80, {S_P0}, 4
s_mul_i32 s81, {S_W4}, {16*2688}
s_add_u32 s80, s80, s81
v_add_u32 v253, s80, v253
s_lshl_b32 s80, {S_W4}, 10
s_add_u32 s80, s80, {L_WQ}
s_and_b32 s81, {S_P0}, 7
s_cmp_gt_u32 s81, 4
s_cselect_b32 s81, 1, 0
s_nop 0""")
        a(w_base(0))
        a(f"v_mov_b32 v250, {L_SYNC}\nv_mov_b32 v251, 1\nv_mov_b32 v246, 0\ns_mov_b32 {S_BAR}, 0")
    VK, VV, VF, VL = 240, 241, 242, 243
    PG = ["s4", "s5", "s6", "s7"]; S_FL = "s8"
    def setup3():
        a(f"""v_lshlrev_b32 v{VL}, 4, v1
s_lshl_b32 {T0}, {S_P0}, 9
v_add_u32 v{VK}, {T0}, v{VL}
s_lshl_b32 {T0}, {S_H}, 11
s_add_u32 {T0}, {T0}, {VOFF}
v_add_u32 v{VV}, {T0}, v{VL}
s_lshr_b32 {T1}, {S_P0}, 3
s_add_u32 {T0}, {S_P0}, 3
s_lshr_b32 {T0}, {T0}, 3
s_sub_u32 {T0}, {T0}, {T1}
v_and_b32 v{VF}, 1, v1
v_mul_u32_u24 v{VF}, {T0}, v{VF}
v_bfe_u32 v18, v1, 1, 1
v_mul_u32_u24 v18, 7, v18
v_add_u32 v{VF}, v{VF}, v18
v_lshlrev_b32 v{VF}, 7, v{VF}
s_lshl_b32 {T0}, {S_W4}, 4
s_add_u32 {T0}, {T0}, {T1}
s_lshl_b32 {T0}, {T0}, 7
s_add_u32 {T3}, {T0}, {FKV}
s_lshr_b32 {T2}, {S_R}, 2
s_lshl_b32 {T2}, {T2}, 3
s_lshr_b32 {T2}, {cfg.gtab if cfg.gtab > 1 else 0x934E39E4}, {T2}
s_mul_i32 {T1}, {S_W4}, {4*TS}
s_add_u32 {T1}, {T1}, {KV}""")
        for p in range(4): a(f"s_add_u32 {T0}, {S_RR}, {p}\ns_and_b32 {T0}, {T0}, 3\ns_mul_i32 s{TO+12+p}, {T0}, {TS}")
        for g in range(4):
            a(f"s_bfe_u32 {T0}, {T2}, {0x20000 + 2*g}\ns_lshl_b32 {PG[g]}, {T0}, 13\ns_add_u32 {PG[g]}, {PG[g]}, {T3}\ns_mul_i32 {T0}, {T0}, {16*TS}\ns_add_u32 {T0}, {T0}, {T1}")
            for p in range(4):
                a(f"s_add_u32 s{TO+4*g+p}, {T0}, " + (f"{p*TS}" if (g == 0 or cfg.kvrot == 0) else f"s{TO+12+p}"))
        a(f"""s_cmp_eq_u32 {S_LC}, 7
s_cselect_b32 {T1}, 15, {S_J}
s_lshl_b32 {T0}, {S_R}, 4
s_add_u32 {T0}, {T0}, {T1}
s_lshl_b32 {T0}, {T0}, 7
s_add_u32 {S_FL}, {T0}, {FKV}""")
    stamp(a, 3, 2)
    XE = cfg.xearly
    def mid():
        stamp(a, 4, 2)
        a("s_barrier")
        if cfg.fine != 2: a(f"s_load_dwordx2 s[62:63], s[20:21], {EPOCH}")
        stamp(a, 5, 2)
    for i in range(14):
        a(f"buffer_load_dwordx4 v2, {sWQKV}, {S_I} offen lds")
        if i == 6:
            if XE:
                setup_x()
                for j in range(4): a(x_m0(0, j)); a("s_nop 0"); a(x_ld(0, j))
                mid()
            a(f"s_mov_b32 m0, {S_WM}\ns_mov_b32 {S_I}, {S_WO}")
            if XE: setup2(); setup3()
        elif i < 13: a(f"s_add_u32 m0, m0, {S_DM}\ns_add_u32 {S_I}, {S_I}, {S_DO}")
        if i == 10 and not XE:
            mid(); setup_x(); setup2(); setup3()
    stamp(a, 8, 2)
    a(f"s_waitcnt vmcnt({cfg.wfair})")
    stamp(a, 10, 2)
    for c in range(XE, 2 + XE):
        for j in range(4): a(x_m0(c, j)); a("s_nop 0"); a(x_ld(c, j))
    stamp(a, 11, 2)
    if cfg.fine == 2: a(f"s_load_dwordx2 s[62:63], s[20:21], {EPOCH}")
    nonce(a)
    a("v_mov_b32 v244, s62\nv_mov_b32 v245, s63\nds_write_b64 v250, v[244:245] offset:64")
    def w_base(i): return f"v_lshl_add_u32 v12, s{SC+i}, 6, v14\nv_xor_b32 v13, 64, v12"
    def wq(i): return f"s_add_u32 m0, s80, {i*4096}\ns_mul_i32 s82, s{SC+i}, {64*21}\nbuffer_load_dwordx4 v253, {sWQKV}, s82 offen lds"
    a(f"s_mov_b32 s30, {448 * 2688}")
    def w_reads(i):
        out = []
        for mm in range(4):
            for ct in range(2):
                for hf in range(2):
                    d = WB + (i % 2) * 32 + mm * 8 + ct * 4 + hf * 2
                    out.append(f"ds_read_b64_tr_b16 {V(d,2)}, v{12+ct} offset:{mm*2048 + hf*512}")
        return out
    def x_reads(i):
        return [f"ds_read_b128 {V(X+16*i+4*mm,4)}, v{8+mm} offset:{(i%4)*4096}" for mm in range(4)]
    a(f"""s_waitcnt vmcnt(8)""")
    stamp(a, 1)
    a(f"s_mov_b64 exec, 1\nds_add_u32 v250, v251\ns_mov_b64 exec, -1")
    for j in range(2): a(x_m0(2 + XE, j)); a("s_nop 0"); a(x_ld(2 + XE, j))
    lwait(a, "v250", 252, 4, 19)
    stamp(a, 3, 1)
    wr0 = w_reads(0)
    for s_ in wr0[:8]: a(s_)
    if not XE: a("s_waitcnt vmcnt(6)")
    for s_ in x_reads(0) + wr0[8:]: a(s_)
    a(f"s_cmp_eq_u32 {T5}, 1\ns_cbranch_scc1 L_kvV")
    for var in ("K", "V"):
        if var == "V": a("L_kvV:")
        late = [f"s_mul_i32 {T4}, {S_TILE}, {TS}", f"s_add_u32 {T4}, {T4}, {KV}", "v_lshlrev_b32 v7, 4, v1"]
        if var == "K":
            late += [f"s_lshl_b32 {T0}, {S_LC}, 12", f"s_add_u32 {T4}, {T4}, {T0}"]
        else:
            late += f"""s_lshl_b32 {T1}, {S_LC}, 6
v_and_b32 v4, 31, v1
v_add_u32 v4, {T1}, v4                    ; col (ct0)
v_add_u32 v5, 32, v4
v_lshrrev_b32 v3, 5, v1
v_lshlrev_b32 v3, 9, v3
v_add_u32 v3, {VOFF}, v3""".split("\n")
            for r in (4, 5):
                late += f"""v_mul_u32_u24 v2, 2341, v{r}
v_lshrrev_b32 v2, 16, v2
v_mul_u32_u24 v2, {2048 - 28*16}, v2
v_lshl_add_u32 v{r}, v{r}, 4, v2
v_add_u32 v{r}, v{r}, v3""".split("\n")
            late += f"""s_lshl_b32 {T1}, {S_LC}, 2
s_lshr_b32 {T2}, 0xDB96420, {T1}
s_and_b32 {T2}, {T2}, 15                  ; first head that ends in this line-column
s_lshr_b32 {T3}, 0x3223222, {T1}
s_and_b32 {T3}, {T3}, 15
s_lshl_b32 {T3}, {T3}, 4
v_lshrrev_b32 v6, 2, v1
v_lshlrev_b32 v6, 9, v6
v_and_b32 v2, 3, v1
v_lshl_add_u32 v6, v2, 4, v6
s_lshl_b32 {T2}, {T2}, 11
s_add_u32 {T2}, {T2}, {VOFF + 28*16}
v_add_u32 v6, {T2}, v6
v_cmp_eq_u32 vcc, 0, v2
v_mov_b32 v2, 0x3f803f80
s_nop 0
v_cndmask_b32 v236, 0, v2, vcc
v_cndmask_b32 v237, 0, v2, vcc
v_cndmask_b32 v238, 0, v2, vcc
v_cndmask_b32 v239, 0, v2, vcc""".split("\n")
        for i in range(7):
            a("s_waitcnt lgkmcnt(0)")
            stamp(a, 4 + i, 1)
            fill = [[] for _ in range(8)]
            pre = [[] for _ in range(8)]
            if i == 0:
                dq = [(c, j) for c in range(1, 7) for j in range(4)]
                issued_q = dq[:6 + 4*XE]; dq = dq[6 + 4*XE:]
            def take(g):
                if dq and dq[0][0] <= i + 4:
                    e = dq.pop(0); issued_q.append(e)
                    pre[g].append(x_m0(*e)); fill[g].insert(0, x_ld(*e))
            had = bool(dq)
            if i + 1 < 7:
                wr = w_reads(i + 1)
                fill[0] += [w_base(i + 1)] + wr[0:3]
                fill[1] += wr[3:8]; fill[2] += wr[8:12]; fill[3] += wr[12:16]
                for g in ((0, 1, 2, 3, 4) if i == 0 and not XE else (0,)): take(g)
                if i == 4:
                    fill[1].append("s_cmp_eq_u32 s81, 1\ns_cselect_b64 exec, -1, 0\n" + "\n".join(wq(q) for q in range(cfg.wqe)) + "\ns_mov_b64 exec, -1")
                    issued_q += [(99, q) for q in range(cfg.wqe)]
                last = max(q for q, e in enumerate(issued_q) if e[0] == i + 1)
                fill[4] += [f"s_waitcnt vmcnt({len(issued_q) - 1 - last})"] + x_reads(i + 1)
            for g in range(5, 8): take(g)
            if i == 4:
                assert not had
                fill[0].insert(0, "s_mov_b64 exec, 1\nds_add_u32 v250, v251 offset:8\ns_mov_b64 exec, -1")
            if not had:
                for g in range(5 if i < 6 else 0, 8):
                    for q in range(6):
                        if late: fill[g].append(late.pop(0))
            for mm in range(4):
                for ct in range(2):
                    xr = X + 16*i + 4*mm; wr_ = WB + (i % 2) * 32 + mm * 8 + ct * 4
                    c = None if (i == 0 and mm == 0) else ACC + 16*ct
                    for s_ in pre[2*mm + ct]: a(s_)
                    a(mfma(ACC + 16*ct, wr_, xr, c) if var == "K" else mfma(ACC + 16*ct, xr, wr_, c))
                    for s_ in fill[2*mm + ct]: a(s_)
        assert not late
        stamp(a, 11, 1)
        a(f"s_cmp_eq_u32 {S_LC}, 7\ns_cbranch_scc1 L_kvnone")
        if var == "V":
            a(f"s_bfm_b64 exec, {T3}, 0\nbuffer_store_dwordx4 v[236:239], v6, {sWS}, {T4} offen sc1\ns_mov_b64 exec, -1")
        for ct in range(2):
            for j in range(2):
                for q in range(4):
                    z = 8*ct + 4*j + q
                    a(f"v_cvt_pk_bf16_f32 v{PK+z}, v{ACC+2*z}, v{ACC+2*z+1}")
                if var == "K":
                    a(f"buffer_store_dwordx4 {V(PK+8*ct+4*j,4)}, v7, {sWS}, {T4} offen offset:{ct*2048+j*1024} {KVSC}")
                else:
                    a(f"buffer_store_dwordx4 {V(PK+8*ct+4*j,4)}, v{4+ct}, {sWS}, {T4} offen offset:{j*1024} {KVSC}")
        if var == "K": a("s_branch L_kvdone\nL_kvnone:\ns_waitcnt vmcnt(0)\ns_branch L_kvdone")
    a("L_kvdone:\ns_mov_b64 exec, 1\nds_add_u32 v250, v251\ns_mov_b64 exec, -1")
    stamp(a, 2)
    NB = cfg.nbuf
    Q = 16; O = 48; SA = 112; KVB = 144; P0 = KVB + 16*NB; P1 = P0 + 4
    assert P1 + 4 <= 240
    QP = 224
    S_LD = "s9"
    def kv_loads(t, so=None):
        b = KVB + 16 * (t % NB); so = so or f"s{TO + (t if not cfg.hack or t < cfg.hack else t % cfg.hack)}"
        return [f"buffer_load_dwordx4 {V(b+4*j,4)}, v{VK if j < 2 else VV}, {sWS}, {so} offen offset:{(j%2)*1024} sc1" for j in range(4)]
    PV = 254; QA = (4, 6, 8, 9)
    pl = poll_issue(f"v{VF}", PG[0], PV, 4)
    QW = 176
    def qsync(target):
        a("s_mov_b64 exec, 1\nds_add_u32 v250, v251 offset:4\ns_mov_b64 exec, -1")
        lwait(a, "v250", 5, target, 14, off=4)
    def qmma(c0, c1, issue, check):
        rd = [f"ds_read_b64_tr_b16 {V(QW+(i%3)*16+mm*4+hf*2,2)}, v15 offset:{i*4096+mm*1024+hf*256}" for i in range(c0, c1) for mm in range(4) for hf in range(2)]
        iss = min(len(rd), 12)
        for s_ in rd[:iss]: a(s_)
        for m in range(4 * (c1 - c0)):
            a(f"s_waitcnt lgkmcnt({iss - (2*m + 2)})")
            a(mfma(ACC, QW + ((c0 + m // 4) % 3) * 16 + 4*(m % 4), X + 16*c0 + 4*m, None if c0 + m == 0 else ACC))
            for s_ in rd[iss:iss+2]: a(s_)
            iss = min(len(rd), iss + 2)
            if m == issue: a(pl)
            if m == check:
                Lf, Lg = a.lab("pf"), a.lab("pg")
                a(f"s_waitcnt vmcnt(0)\n{poll_check(PV, 4)}\ns_cbranch_scc1 {Lf}\ns_mov_b32 {S_LD}, 1")
                for t in range(2):
                    for s_ in kv_loads(t): a(s_)
                a(f"s_branch {Lg}\n{Lf}:\n{pl}\n{Lg}:")
    S_OB, S_FO, S_LO, S_HI, S_CL, S_M0 = "s10", "s11", "s12", "s13", "s14", "s[76:77]"
    def addrs():
        a(f"""s_lshl_b32 {S_OB}, {S_TILE}, 4
s_add_u32 {S_OB}, {S_OB}, {S_H}
s_lshl_b32 {S_OB}, {S_OB}, 11
s_add_u32 {S_OB}, {S_OB}, {OBUF}
s_lshl_b32 {S_FO}, {S_R}, 4
s_add_u32 {S_FO}, {S_FO}, {S_H}
s_lshl_b32 {S_FO}, {S_FO}, 7
s_add_u32 {S_FO}, {S_FO}, {FO}
s_mov_b32 {S_LO}, {lit(2.0**-40)}
s_mov_b32 {S_HI}, {lit(2.0**30)}
s_movk_i32 {S_CL}, 0x1f8
s_cmp_eq_u32 {S_W4}, 0
s_cselect_b64 {S_M0}, 1, 0
v_mov_b32 v2, v250
v_mov_b32 v3, 1
v_mov_b32 v7, v{VL}
v_mov_b32 v248, {lit(28 ** -0.5 * math.log2(math.e))}
v_mov_b32 v249, v248""")
        for i in range(4):
            a(f"""s_add_u32 {T0}, {S_W4}, {i+1}
s_and_b32 {T0}, {T0}, 3
s_lshl_b32 {T1}, {T0}, 11
s_add_u32 {T1}, {T1}, {L_Q}
v_add_u32 v{QA[i]}, {T1}, v7
s_mul_i32 {T0}, {T0}, 12288
s_add_u32 {T0}, {T0}, {(i%3)*4096 + L_RED}
v_add_u32 v{10+i}, {T0}, v7""")
    def publish(n):
        a(f"s_waitcnt vmcnt({n})")
        publish_wg(a, "v250", "v251", 16, 5, S_FL, 244)
        stamp(a, 3)
        a("s_waitcnt vmcnt(1)")
    E = cfg.wqe
    a(f"s_mov_b32 {S_LD}, 0\ns_cmp_eq_u32 s81, 1\ns_cbranch_scc1 L_qtwo")
    S_M0 = "s[82:83]" if cfg.xafirst else S_M0
    if cfg.xafirst:
        addrs()
        if cfg.wqdel: a(f"s_sleep {cfg.wqdel}")
        for i in range(7): a(wq(i).replace("s82", T0))
    else:
        for i in range(7): a(wq(i))
        addrs()
    publish(7)
    qsync(4)
    stamp(a, 4)
    qmma(0, 7, cfg.m1, cfg.m2)
    a("s_branch L_qdone\nL_qtwo:\ns_waitcnt vmcnt(4)")
    qsync(4)
    for i in range(E, 7): a(wq(i))
    qmma(0, E, -1, -1)
    addrs()
    publish(7 - E)
    qsync(8)
    stamp(a, 4)
    qmma(E, 7, 0, 4 * (7 - E) - 1)
    a("L_qdone:")
    stamp(a, 5)
    a(f"s_bitcmp1_b32 {S_H}, 0")
    for hf in range(2):
        for q in range(8*hf, 8*hf+8, 2): pk2(a, "mul", ACC+q, ACC+q, 248, scalar=cfg.nopk & 1)
        for q in range(4*hf, 4*hf+4): a(f"v_cvt_pk_bf16_f32 v{QP+q}, v{ACC+2*q}, v{ACC+2*q+1}")
        if hf == 0: a(f"s_cselect_b32 exec_lo, -1, 0\ns_mov_b32 exec_hi, 0\nv_mov_b32 v{QP}, 0\nv_mov_b32 v{QP+1}, 0\ns_mov_b64 exec, -1")
        else: a(f"s_cselect_b32 exec_hi, 0, -1\ns_mov_b32 exec_lo, 0\nv_mov_b32 v{QP+6}, 0\nv_mov_b32 v{QP+7}, 0\ns_mov_b64 exec, -1")
        a(f"ds_write_b128 v9, {V(QP+4*hf,4)} offset:{1024*hf}")
    a(f"""s_mov_b64 exec, 1
ds_add_u32 v2, v3
s_mov_b64 exec, -1
s_cmp_eq_u32 {S_LD}, 1
s_cbranch_scc1 L_kvloaded
s_waitcnt vmcnt(0)
{poll_check(PV, 4)}
s_cbranch_scc0 L_kvready""")
    poll(a, f"v{VF}", PG[0], PV, 4, 1, sleep=2)
    a("L_kvready:")
    for t in range(2):
        for s_ in kv_loads(t): a(s_)
    a("L_kvloaded:\ns_mov_b64 exec, 1\nds_add_u32 v2, v3 offset:12\ns_mov_b64 exec, -1")
    stamp(a, 6)
    if cfg.fine == 6:
        a(f"s_lshl_b32 {T0}, {S_LD}, 10\ns_add_u32 s{STAMP0+1}, s{STAMP0}, {T0}\ns_sub_u32 {T0}, {cfg.poll_limit}, {S_TO}\ns_cmp_gt_u32 {T0}, 100\ns_cselect_b32 {T0}, -1, {T0}\ns_add_u32 {T0}, {T0}, 1\ns_lshl_b32 {T0}, {T0}, 10\ns_add_u32 s{STAMP0+2}, s{STAMP0}, {T0}")
    lwait(a, "v2", 5, 12, 15)
    a(f"s_mov_b32 {S_BAR}, 12")
    for i in range(4):
        a(f"ds_read_b128 {V(Q+8*i,4)}, v{QA[i]}\nds_read_b128 {V(Q+8*i+4,4)}, v{QA[i]} offset:1024")
    stamp(a, 7)
    a("s_waitcnt vmcnt(6) lgkmcnt(6)\ns_setprio 0")
    if cfg.padmid: padto(a, cfg.padmid)
    stamp(a, 8)
    a(mfma(SA, KVB, Q)); a(mfma(SA, KVB + 4, Q + 4, SA))
    a("s_waitcnt vmcnt(4) lgkmcnt(0)\ns_nop 9\n.p2align 3")
    sched = {}
    issued = 2
    for t in range(16):
        for i in (1, 2):
            if (i == 1 or t % cfg.ramp == 0) and issued <= min(15, t + NB - 1):
                sched[(t, i)] = issued; issued += 1
    first = {g: min(k for k, v in sched.items() if v == 4*g) for g in (1, 2, 3)}
    pollat = {(k[0] - 1, 0): g for g, k in first.items()}
    vq = [("t", 1)] * 4
    def after(tag): return len(vq) - 1 - max(q for q, e in enumerate(vq) if e == tag)
    assert NB >= 5
    units = [(t, i) for t in range(12) for i in range(4)] + [(t, i) for i in range(4) for t in range(12, 16)]
    firstuse = {}
    for n, (t, i) in enumerate(units): firstuse.setdefault(t, n)
    waitat = {n - 2: t for t, n in firstuse.items() if t > 0}
    kb = lambda tt: KVB + 16 * (tt % NB)
    redw = lambda i, q: f"ds_write_b128 v{10+i}, {V(O+16*i+4*q,4)} offset:{q*1024}"
    for n, (t, i) in enumerate(units):
        if n % 8 == 0 and n: stamp(a, n // 8, 3)
        cur = SA + 16 * (n % 2); nxt = SA + 16 * ((n + 1) % 2)
        ms = [None] * 4
        if n < 63:
            tn, inx = units[n + 1]
            ms[0] = mfma(nxt, kb(tn), Q + 8*inx); ms[1] = mfma(nxt, kb(tn) + 4, Q + 8*inx + 4, nxt)
        if n > 0:
            tp, ip = units[n - 1]
            ms[2] = mfma(O + 16*ip, kb(tp) + 12, P1, O + 16*ip)
        ms[3] = mfma(O + 16*i, kb(t) + 8, P0, None if t == 0 else O + 16*i)
        side = [None] * 4
        key = (n // 4, n % 4)
        if key in sched:
            assert n < 48
            tl = sched[key]
            if tl % 4 == 0:
                g = tl // 4
                a(f"s_waitcnt vmcnt({after(('p', g))})\nv_cmp_ne_u64 vcc, {S_NONCE}, v[14:15]\ns_cbranch_vccnz L_gate{g}\nL_gated{g}:\ns_nop 0")
            side = kv_loads(tl); vq += [("t", tl)] * 4
        if key in pollat:
            g = pollat[key]
            side[0] = f"buffer_load_dwordx2 v[14:15], v{VF}, {sWS}, {PG[g]} offen sc1"; vq.append(("p", g))
        sig = "\ns_mov_b64 exec, 1\nds_add_u32 v2, v3\ns_mov_b64 exec, -1"
        rdr = lambda q: f"ds_read_b128 {V(O+4*q,4)}, v13 offset:{q*1024}"
        if 53 <= n <= 56: side[1] = redw(0, n - 53)
        if n in (57, 58): side[1] = redw(1, 2*(n - 57)); side[3] = redw(1, 2*(n - 57) + 1) + (sig if n == 58 else "")
        if n == 60: side[1] = "ds_read_b32 v5, v2"
        if n == 61:
            a(f"s_waitcnt lgkmcnt(0)\nv_readfirstlane_b32 {T0}, v5\ns_cmp_ge_u32 {T0}, 16\ns_cbranch_scc0 L_redw\nL_redd:")
        if n in (61, 62):
            k_ = n - 61
            side = [redw(2, 2*k_), rdr(4*k_) + "\n" + rdr(4*k_+1), redw(2, 2*k_+1) + (sig if k_ else ""), rdr(4*k_+2) + "\n" + rdr(4*k_+3)]
        if n == 63: side[2] = "ds_read2_b32 v[4:5], v2 offset0:34 offset1:0"
        if n == cfg.bhi: side[0] = "s_setprio 3\ns_nop 0" + ("\n" + side[0] if side[0] else "")
        for p in range(4):
            if ms[p]: a(ms[p])
            if side[p]: a(side[p])
            for e in range(4):
                if n in waitat and p == 3 and e == 3:
                    a(f"s_waitcnt vmcnt({after(('t', waitat[n]))})\nv_exp_f32_e64 v{cur+4*p+e}, v{cur+4*p+e}")
                else:
                    a(f"v_exp_f32 v{cur+4*p+e}, v{cur+4*p+e}")
            pk = (P0, P0 + 2, P1, P1 + 2)[p]
            a(f"v_cvt_pk_bf16_f32 v{pk}, v{cur+4*p}, v{cur+4*p+1}\nv_cvt_pk_bf16_f32 v{pk+1}, v{cur+4*p+2}, v{cur+4*p+3}")
    a(f"s_waitcnt lgkmcnt(0)\nv_readfirstlane_b32 {T0}, v5\nv_readfirstlane_b32 {T1}, v4")
    a(mfma(O + 48, kb(15) + 12, P1, O + 48))
    a(f"s_add_u32 {T1}, {T1}, {12 if cfg.ohint and not cfg.noA else 20}\ns_min_u32 {T0}, {T0}, {T1}\ns_cmp_ge_u32 {T0}, 20\ns_cbranch_scc0 L_redw2\nL_redd2:")
    for q in range(8, 12): a(f"ds_read_b128 {V(O+4*q,4)}, v13 offset:{q*1024}")
    a("s_mov_b64 exec, 1\nds_add_u32 v2, v3")
    if cfg.ohint: a(f"s_mov_b64 exec, {S_M0}\nbuffer_store_dwordx2 v[244:245], v246, {sWS}, {S_FO} offen sc1")
    a("s_mov_b64 exec, -1")
    stamp(a, 9)
    OO = O + 48
    sc_ = cfg.nopk & 2
    for q in range(0, 16, 2): pk2(a, "add", O+q, O+q, O+16+q, scalar=sc_)
    for q in range(0, 16, 2): pk2(a, "add", OO+q, OO+q, O+q, scalar=sc_)
    a("s_waitcnt lgkmcnt(1)")
    for q in (12, 0, 2, 4, 6, 8, 10, 14): pk2(a, "add", OO+q, OO+q, O+32+q, scalar=sc_)
    a(f"""v_mov_b32 v10, v{OO+12}
v_mov_b32 v11, v{OO+12}
v_mul_f32 v12, v{OO}, v{OO+1}
v_mul_f32 v13, v{OO+2}, v{OO+3}
v_permlane32_swap_b32 v10, v11
v_fma_f32 v12, v{OO+4}, v{OO+5}, v12
v_fma_f32 v13, v{OO+6}, v{OO+7}, v13
v_rcp_f32 v10, v11
v_fma_f32 v12, v{OO+8}, v{OO+9}, v12
v_fma_f32 v13, v{OO+10}, v{OO+11}, v13
v_cmp_le_f32 s[70:71], {S_LO}, v11
v_fma_f32 v12, v{OO+12}, v{OO+13}, v12
v_fma_f32 v13, v{OO+14}, v{OO+15}, v13
v_cmp_ge_f32 s[72:73], {S_HI}, v11
v_add_f32 v12, v12, v13
v_cmp_class_f32 vcc, v12, {S_CL}
s_and_b64 s[70:71], s[70:71], s[72:73]
s_and_b64 vcc, vcc, s[70:71]
s_cmp_eq_u64 vcc, exec""")
    if cfg.force_fb: a("s_cmp_eq_u32 0, 1")
    a(f"s_cbranch_scc0 L_fallback\nL_fbdone:\nv_mov_b32 v11, v10")
    for hf in range(2):
        for q in range(8*hf, 8*hf+8, 2): pk2(a, "mul", OO+q, OO+q, 10, scalar=sc_)
        for q in range(4*hf, 4*hf+4): a(f"v_cvt_pk_bf16_f32 v{O+q}, v{OO+2*q}, v{OO+2*q+1}")
        if hf: a(f"s_mov_b32 exec_lo, 0\nv_mov_b32 v{O+6}, 0\ns_mov_b32 exec_lo, -1")
        if cfg.ohint: a(f"v_min_u32 v{O+4*hf}, -2, v{O+4*hf}")
        a(f"buffer_store_dwordx4 {V(O+4*hf,4)}, v7, {sWS}, {S_OB} offen offset:{1024*hf} sc1")
    stamp(a, 10)
    S_BP, S_CNT, S_DT = "s70", "s71", "s72"
    GS = 144; GC = 176; ZR = 196; G = 16; OL = 196; AR = 128
    S_O0, S_O1, S_FH, S_RT, S_CLM = "s73", "s74", "s75", "s76", "s77"
    a(f"""s_lshl_b32 {S_BP}, {S_XCD}, 3
s_lshr_b32 {T0}, {S_IDX}, 2
s_add_u32 {S_BP}, {S_BP}, {T0}
s_and_b32 {T1}, {S_IDX}, 3
s_cmp_ge_u32 {T1}, 2
s_cselect_b32 {S_CNT}, 3, 4
s_lshl_b32 {S_DT}, {T1}, 2
s_cmp_eq_u32 {T1}, 3
s_cselect_b32 {S_DT}, 11, {S_DT}
s_add_u32 {S_DT}, {S_DT}, {S_W4}
s_cmp_ge_u32 {S_W4}, {S_CNT}
s_cbranch_scc1 L_bend
s_setprio {cfg.fprio}
v_bfe_u32 v5, v1, 2, 1
v_lshlrev_b32 v5, 4, v5
v_bfe_u32 v6, v1, 3, 2
v_lshl_add_u32 v5, v6, 2, v5
v_and_b32 v6, 3, v1
v_add_u32 v5, v5, v6
s_lshl_b32 {T0}, {S_DT}, 5
v_add_u32 v5, {T0}, v5                    ; d
v_lshlrev_b32 v9, 31, v5
v_xor_b32 v9, 0.5, v9                     ; 0.5*(-1)^d
v_cvt_f32_u32 v5, v5
v_mul_f32 v5, {lit(1/448)}, v5
v_lshrrev_b32 v4, 5, v1
v_cvt_f32_u32 v6, v4
v_mul_f32 v6, v5, v6
v_mul_f32 v6, 4.0, v6
v_mul_f32 v{GC}, {lit(16.0)}, v5
v_cos_f32 v{GC}, v{GC}""")
    for j in range(16): a(f"v_fmamk_f32 v{GS+j}, v5, {lit(float(16*(j//8) + 8*((j%8)//4) + j%4))}, v6")
    a(f"v_add_f32 v{GC}, v{GC}, v{GC}")
    for j in range(16): a(f"v_sin_f32_e64 v{GS+16+j}, -v{GS+j}\nv_cos_f32 v{GS+j}, v{GS+j}")
    a(f"v_mov_b32 v{GC+1}, v{GC}")
    def ggen(q0, q1):
        a(".p2align 3")
        for q in range(q0, q1):
            rho = q % 2; st = q // 2
            cur = GS + 16*rho + 8*(st % 2); oth = GS + 16*rho + 8*((st + 1) % 2); gp = G + 4*q
            if st >= 2:
                for z in range(0, 8, 2):
                    pk2(a, "fma", cur+z, GC, oth+z, cur+z, neg="2", scalar=cfg.nopk & 8)
            for z in range(4): a(f"v_cvt_pk_bf16_f32 v{gp+z}, v{cur+2*z}, v{cur+2*z+1}")
            if st == 0:
                a(f"s_mov_b32 exec_hi, 0\nv_cvt_pk_bf16_f32 v{gp}, {'v9' if rho else '0.5'}, v{cur+1}\ns_mov_b32 exec_hi, -1")
    ggen(0, 28)
    stamp(a, 11)
    srd(a, sOUT, 16, 2048 * 1792)
    a(f"""v_add_u32 v8, {L_ZB}, v7
s_mul_i32 {T4}, {S_BP}, 1792
s_lshl_b32 {T1}, {S_DT}, 6
s_add_u32 {T4}, {T4}, {T1}""")
    if cfg.cost & 2:
        a(f"""s_lshl_b32 {T1}, {S_W4}, 11
s_add_u32 {T1}, {T1}, {L_Q}
v_and_b32 v10, 31, v1
v_lshlrev_b32 v10, 6, v10
v_lshl_add_u32 v10, v4, 5, v10
v_add_u32 v10, {T1}, v10
v_add_u32 v11, {T1}, v7
v_lshrrev_b32 v6, 2, v1
v_mul_u32_u24 v6, {64*1792}, v6
v_and_b32 v12, 3, v1
v_lshl_add_u32 v6, v12, 4, v6
s_add_u32 {T3}, {T4}, {16*64*1792}""")
    else:
        a(f"v_and_b32 v6, 31, v1\nv_mul_u32_u24 v6, {64*1792}, v6\nv_lshl_add_u32 v6, v4, 5, v6")
    lwait(a, "v2", 5, 4, 17, off=132)
    stamp(a, 13)
    order = [4*(q//4) + 2*(q % 2) + ((q//2) % 2) for q in range(28)]
    for q in range(8): a(f"ds_read_b128 {V(ZR+4*q,4)}, v8 offset:{order[q]*1024}")
    for p in range(28):
        a(f"s_waitcnt lgkmcnt({min(7, 27-p)})")
        a(mfma(AR, G + 4*p, ZR + 4*(p % 8), None if p == 0 else AR))
        if p + 8 < 28: a(f"ds_read_b128 {V(ZR+4*(p%8),4)}, v8 offset:{order[p+8]*1024}")
    osc = ("", " sc1", " nt", " sc0 sc1", " sc1 nt")[cfg.outsc]
    if cfg.odefer and not cfg.noA: lwait(a, "v2", 5, 4, 36, sleep=2, off=20)
    for hf in range(2):
        for q in range(4*hf, 4*hf+4): a(f"v_cvt_pk_bf16_f32 v{GS+q}, v{AR+2*q}, v{AR+2*q+1}")
        if cfg.cost & 2: a(f"ds_write_b128 v10, {V(GS+4*hf,4)} offset:{16*hf}")
        else: a(f"buffer_store_dwordx4 {V(GS+4*hf,4)}, v6, {sOUT}, {T4} offen offset:{16*hf}{osc}")
    if cfg.cost & 2:
        a(f"""ds_read_b128 {V(GS+8,4)}, v11
ds_read_b128 {V(GS+12,4)}, v11 offset:1024
s_waitcnt lgkmcnt(1)
buffer_store_dwordx4 {V(GS+8,4)}, v6, {sOUT}, {T4} offen{osc}
s_waitcnt lgkmcnt(0)
buffer_store_dwordx4 {V(GS+12,4)}, v6, {sOUT}, {T3} offen{osc}""")
    a("L_bend:")
    stamp(a, 12)
    dump_stamps(a, 240)
    a("s_endpgm")
    a("L_redw:")
    lwait(a, "v2", 5, 16, 2)
    a("s_branch L_redd\nL_redw2:")
    lwait(a, "v2", 5, 20, 2)
    if cfg.ohint and not cfg.noA: lwait(a, "v2", 5, 8, 39, sleep=1, off=136)
    a("s_branch L_redd2")
    for g in (1, 2, 3):
        a(f"L_gate{g}:")
        poll(a, f"v{VF}", PG[g], 14, 4, 25, sleep=2)
        a(f"s_branch L_gated{g}")
    a("L_fallback:")
    QO = Q + 24; KB = KVB; M = 15; S_SO = "s70"
    a(f"v_mov_b32 v{M}, 0xff800000\ns_mov_b32 {S_SO}, {KV}\nL_fb1:")
    for s_ in kv_loads(0, S_SO)[:2]: a(s_)
    a(f"s_add_u32 {S_SO}, {S_SO}, {TS}\ns_waitcnt vmcnt(0)")
    a(mfma(SA, KB, QO)); a(mfma(SA, KB + 4, QO + 4, SA))
    for q in range(0, 16, 2): a(f"v_max3_f32 v{M}, v{M}, v{SA+q}, v{SA+q+1}")
    a(f"""s_cmp_lt_u32 {S_SO}, {KV + 64*TS}
s_cbranch_scc1 L_fb1
v_mov_b32 v14, v{M}
v_permlane32_swap_b32 v14, v{M}
v_max_f32 v{M}, v14, v{M}
s_mov_b32 {S_SO}, {KV}""")
    for q in range(16): a(f"v_mov_b32 v{OO+q}, 0")
    a("L_fb2:")
    for s_ in kv_loads(0, S_SO): a(s_)
    a(f"s_add_u32 {S_SO}, {S_SO}, {TS}\ns_waitcnt vmcnt(0)")
    a(mfma(SA, KB, QO)); a(mfma(SA, KB + 4, QO + 4, SA))
    for q in range(16): a(f"v_sub_f32 v{SA+q}, v{SA+q}, v{M}")
    for q in range(16): a(f"v_exp_f32 v{SA+q}, v{SA+q}")
    for q in range(8): a(f"v_cvt_pk_bf16_f32 v{P0+q}, v{SA+2*q}, v{SA+2*q+1}")
    a(mfma(OO, KB + 8, P0, OO)); a(mfma(OO, KB + 12, P1, OO))
    a(f"""s_cmp_lt_u32 {S_SO}, {KV + 64*TS}
s_cbranch_scc1 L_fb2
v_mov_b32 v10, v{OO+12}
v_mov_b32 v11, v{OO+12}
v_permlane32_swap_b32 v10, v11
v_rcp_f32 v10, v11
s_branch L_fbdone""")

def role_A(a):
    FB = 16; GS0 = 48; M = 72; F = 88; ACC = 200; TMP = 216
    S_BP = "s78"
    S_CG, S_CNT, S_CB, S_DT, S_TASK, S_K1 = "s79", "s80", "s81", "s82", "s83", "s73"
    S_B, S_KT16 = S_BP, S_DT
    (PN, _, _, P_TST, P_W, P_F1, P_TLD, P_TBW, P_TBR, P_TTW, P_TTR, P_UST, P_F2, P_WOD, P_WOR, P_WOR2,
     P_ZW0, P_ZW1, P_PF, P_BC, P_PS, _, P_LS, P_DUM) = range(232, 256)
    sc = 1.0 / (2048 * 448)
    def albar(code): lbar(a, "v14", "v15", P_LS, code, sleep=1)
    def burst(items, th):
        a("s_setprio 0")
        for q, it in enumerate(items):
            if q >= th: a(f"s_waitcnt vmcnt({th-1})")
            a(it)
        a(f"s_setprio {cfg.aprio}")
    SB = "s[74:75]"
    def stage_arrive(k):
        L = a.lab("arr")
        a(f"""s_waitcnt vmcnt(0)
s_mov_b64 exec, 1
ds_add_rtn_u32 v{P_LS}, v14, v15 offset:8
s_mov_b64 exec, -1
s_waitcnt lgkmcnt(0)
v_readfirstlane_b32 {T0}, v{P_LS}
s_cmp_eq_u32 {T0}, {4*k+3}
s_cbranch_scc0 {L}
s_mov_b32 {T0}, 1
s_lshl_b32 {T1}, {S_XCD}, 7
s_add_u32 {T1}, {T1}, {k*1024}
s_atomic_add {T0}, {SB}, {T1} glc
s_waitcnt lgkmcnt(0)
s_sub_u32 {T0}, {T0}, s62
s_cmp_eq_u32 {T0}, 31
s_cbranch_scc0 {L}
s_mov_b32 {T1}, {FA1 + 2048 + k*8192}
s_mov_b64 exec, {-1 if cfg.allpoll else 0xffff}
buffer_atomic_add v15, v{P_PF}, {sWS}, {T1} offen sc1
s_mov_b64 exec, -1
{L}:""")
    def stage_wait(k, pre):
        if cfg.ko & 4:
            a("s_waitcnt lgkmcnt(0)"); return
        L, L2, L3 = a.lab("sw"), a.lab("sw"), a.lab("sw")
        if not cfg.allpoll: a(f"s_cmp_eq_u32 {S_W4}, 0\ns_cbranch_scc0 {L2}")
        a(f"""s_and_b32 {T1}, s2, 15
s_lshl_b32 {T2}, {S_W4}, 4
s_add_u32 {T1}, {T1}, {T2}
s_lshl_b32 {T1}, {T1}, 7
s_add_u32 {T1}, {T1}, {2048 + k*8192}
s_add_u32 {T2}, s62, 8
s_mov_b32 {S_TO}, {cfg.poll_limit}
s_waitcnt lgkmcnt(0)
s_sleep {pre}
{L}:
s_mov_b32 {T0}, 0
s_atomic_or {T0}, {SB}, {T1} glc
s_waitcnt lgkmcnt(0)
s_cmp_eq_u32 {T0}, {T2}
s_cbranch_scc1 {L}d
s_sleep {cfg.bsleep}
s_sub_u32 {S_TO}, {S_TO}, 1
s_cbranch_scc0 {L}
s_mov_b32 {S_TO}, 32
s_branch L_fail
{L}d:""")
        if cfg.allpoll: return
        a(f"s_mov_b64 exec, 1\nds_add_u32 v14, v15 offset:12\ns_mov_b64 exec, -1\ns_branch {L3}\n{L2}:")
        lwait(a, "v14", P_LS, k + 1, 33, sleep=cfg.lsl, off=12)
        a(f"{L3}:")
    def pace():
        if cfg.pace: a(f"s_sleep {cfg.pace}")
    a(f"""L_roleA:
v_mov_b32 v3, 0
v_mov_b32 v2, {L_SYNC}
ds_write2_b32 v2, v3, v3 offset0:0 offset1:32
ds_write2_b32 v2, v3, v3 offset0:1 offset1:2
ds_write2_b32 v2, v3, v3 offset0:3 offset1:33
ds_write2_b32 v2, v3, v3 offset0:4 offset1:34
ds_write2_b32 v2, v3, v3 offset0:5 offset1:35
ds_write2_b32 v2, v3, v3 offset0:8 offset1:9
ds_write2_b32 v2, v3, v3 offset0:10 offset1:11
s_setprio {cfg.aprio}
s_mov_b32 {S_BAR}, 0
s_lshl_b32 {S_BP}, {S_XCD}, 3
s_lshr_b32 {T0}, {S_IDX}, 2
s_add_u32 {S_BP}, {S_BP}, {T0}
s_and_b32 {S_CG}, {S_IDX}, 3
s_cmp_ge_u32 {S_CG}, 2
s_cselect_b32 {S_CNT}, 3, 4
s_lshl_b32 {S_CB}, {S_CG}, 2
s_cmp_eq_u32 {S_CG}, 3
s_cselect_b32 {S_CB}, 11, {S_CB}
s_add_u32 {S_DT}, {S_CB}, {S_W4}
v_and_b32 v2, 31, v1                      ; v2 = lane%32
v_lshrrev_b32 v3, 5, v1                   ; v3 = half
v_cvt_f32_u32 v4, v3
s_waitcnt lgkmcnt(0)
{st0()}""")
    if cfg.touch:
        tl = [["s[10:11], 0", "s[4:5], 0", "s[6:7], 0"], ["s[20:21], s76", "s[8:9], 0", "s[14:15], 0"],
              ["s[20:21], s77", "s[16:17], 0", "s[16:17], s76"], ["s[20:21], s74", "s[20:21], s75"]]
        a(f"s_cmp_ge_u32 {S_IDX}, {cfg.touch}\ns_cbranch_scc1 L_tch\ns_mov_b32 s76, 0x200000\ns_mov_b32 s77, 0x600000\ns_mov_b32 s74, 0x400000\ns_mov_b32 s75, 0x800000")
        for w in range(4):
            a(f"s_cmp_lg_u32 {S_W4}, {w}\ns_cbranch_scc1 L_tch{w}")
            for t_ in tl[w]: a(f"s_load_dword s72, {t_}")
            a(f"L_tch{w}:")
        a("L_tch:")
    def angles(n, vstep, vbase, offs, dst=TMP):
        for j in range(n): a(f"v_fmamk_f32 v{dst+j}, {vstep}, {lit(float(offs[j]))}, {vbase}")
    def gen_F():
        A0 = TMP; A1 = TMP + 8; C2 = TMP + 16
        a(f"""v_and_b32 v5, 15, v1
s_lshl_b32 {T0}, {S_KT16}, 4
v_add_u32 v5, {T0}, v5                    ; k
v_bfe_u32 v6, v1, 4, 1
v_lshl_add_u32 v7, v5, 1, v6
v_cmp_eq_u32 vcc, 1, v7
v_mov_b32 v7, 224
v_cndmask_b32 v5, v5, v7, vcc
v_cndmask_b32 v6, v6, 0, vcc
v_cvt_f32_u32 v5, v5
v_cvt_f32_u32 v6, v6
v_mul_f32 v5, {lit(1/448)}, v5            ; kf
v_mul_f32 v6, {lit(0.25)}, v6
v_mul_f32 v7, v5, v4
v_fmamk_f32 v6, v7, {lit(8.0)}, v6
v_mul_f32 v{C2}, {lit(16.0)}, v5
v_cos_f32 v{C2}, v{C2}""")
        angles(16, "v5", "v6", [j % 8 + 16 * (j // 8) for j in range(16)])
        a(f"v_add_f32 v{C2}, v{C2}, v{C2}")
        for j in range(16): a(f"v_cos_f32 v{A0+j}, v{A0+j}")
        a(f"v_mov_b32 v{C2+1}, v{C2}\ns_barrier\n.p2align 3")
        for m in range(28):
            cur = A0 if m % 2 == 0 else A1; oth = A1 if m % 2 == 0 else A0
            if m >= 2:
                for q in range(0, 8, 2):
                    a(f"v_pk_fma_f32 {V(cur+q,2)}, {V(C2,2)}, {V(oth+q,2)}, {V(cur+q,2)} neg_lo:[0,0,1] neg_hi:[0,0,1]")
            for q in range(4): a(f"v_cvt_pk_bf16_f32 v{F+4*m+q}, v{cur+2*q}, v{cur+2*q+1}")
    def gen_M():
        a(f"""v_cvt_f32_u32 v5, v2
s_and_b32 {T0}, {S_W4}, 1
s_lshl_b32 {T0}, {T0}, 10
s_add_u32 {T0}, {T0}, {S_B}
v_lshl_add_u32 v6, v3, 8, {T0}
v_cvt_f32_u32 v6, v6
v_mul_f32 v6, v6, v5
s_cmp_ge_u32 {S_W4}, 2
s_cselect_b32 {T0}, {lit(0.25)}, 0
v_mov_b32 v7, {T0}
v_fmamk_f32 v6, v6, {lit(1/2048)}, v7
v_mul_f32 v5, {lit(1/32)}, v5""")
        angles(8, "v5", "v6", [8*(j//4) + j%4 for j in range(8)])
        for j in range(8): a(f"v_cos_f32 v{TMP+j}, v{TMP+j}")
        for q in range(4): a(f"v_cvt_pk_bf16_f32 v{ACC+8+q}, v{TMP+2*q}, v{TMP+2*q+1}")
    def gen_MS():
        a(f"""v_lshlrev_b32 v5, 6, v2
v_add_u32 v5, {S_BP}, v5
v_cvt_f32_u32 v5, v5
v_mul_f32 v5, {lit(1/2048)}, v5
s_lshl_b32 {T0}, {S_W4}, 3
v_lshl_add_u32 v6, v3, 2, {T0}
v_cvt_f32_u32 v6, v6
v_mul_f32 v6, v5, v6""")
        angles(4, "v5", "v6", range(4), TMP + 8)
        for j in range(4): a(f"v_cos_f32 v{TMP+2*j}, v{TMP+8+j}\nv_sin_f32 v{TMP+2*j+1}, v{TMP+8+j}")
        a(f"v_mov_b32 v6, {lit(2*sc)}\nv_mov_b32 v7, v6")
        for j in range(4): pk2(a, "mul", TMP+2*j, TMP+2*j, 6, scalar=cfg.nopk & 16)
        for j in range(4):
            a(f"v_cvt_pk_bf16_f32 v{48+j}, v{TMP+2*j}, v{TMP+2*j+1}\nv_cvt_pk_bf16_f32 v{52+j}, v{TMP+2*j+1}, -v{TMP+2*j}")
    def gen_FB():
        a(f"""v_and_b32 v5, 15, v1
s_lshl_b32 {T0}, {S_W4}, 4
v_add_u32 v5, {T0}, v5
v_cvt_f32_u32 v5, v5
v_mul_f32 v5, {lit(1/64)}, v5
v_bfe_u32 v6, v1, 4, 1
v_cvt_f32_u32 v6, v6
v_mul_f32 v6, {lit(0.25)}, v6
v_mul_f32 v7, v5, v4
v_fmamk_f32 v6, v7, {lit(4.0)}, v6""")
        C2 = TMP + 16
        a(f"v_mul_f32 v{C2}, {lit(8.0)}, v5\nv_cos_f32 v{C2}, v{C2}")
        angles(8, "v5", "v6", [8*(j//4) + j%4 for j in range(8)], TMP + 20)
        a(f"v_add_f32 v{C2}, v{C2}, v{C2}")
        for j in range(8): a(f"v_cos_f32 v{TMP+2*j}, v{TMP+20+j}\nv_sin_f32 v{TMP+2*j+1}, v{TMP+20+j}")
        a(f"v_mov_b32 v{C2+1}, v{C2}")
        for m in range(8):
            cur = TMP + 8*(m % 2); oth = TMP + 8*((m + 1) % 2)
            if m >= 2:
                for q in range(0, 8, 2):
                    pk2(a, "fma", cur+q, C2, oth+q, cur+q, neg="2", scalar=cfg.nopk & 16)
            for q in range(4): a(f"v_cvt_pk_bf16_f32 v{FB+4*m+q}, v{cur+2*q}, v{cur+2*q+1}")
    def gen_addr():
        a(f"""v_mov_b32 v{PN+2}, 0
v_lshlrev_b32 v7, 4, v1                   ; v7 = lane*16
v_and_b32 v6, 3, v1
v_lshrrev_b32 v5, 2, v1
v_lshlrev_b32 v5, 16, v5
v_lshl_add_u32 v{P_TST}, v6, 4, v5
s_lshl_b32 {T1}, {S_W4}, 11
s_add_u32 {T0}, {T1}, {L_TT}
v_add_u32 v{P_TTR}, {T0}, v7
v_lshlrev_b32 v5, 6, v2
v_lshl_add_u32 v5, v3, 4, v5
v_add_u32 v{P_TTW}, {T0}, v5
s_lshl_b32 {S_TASK}, {S_XCD}, 5
s_add_u32 {S_TASK}, {S_TASK}, {S_IDX}
s_lshr_b32 {T0}, {S_TASK}, 3
s_lshl_b32 {T2}, {S_W4}, 9
s_add_u32 {T0}, {T0}, {T2}
s_mul_i32 {T0}, {T0}, 225
s_lshl_b32 {T2}, {S_HH}, 5
s_add_u32 {T0}, {T0}, {T2}
v_mul_u32_u24 v5, {128*225}, v3
v_add3_u32 v5, v5, v2, {T0}
v_lshlrev_b32 v{P_W}, 1, v5
v_bfe_u32 v12, v1, 4, 1
v_lshlrev_b32 v5, 2, v2
v_lshl_add_u32 v{P_TLD}, v3, 9, v5
v_lshl_add_u32 v{P_UST}, v3, 17, v5
v_lshl_add_u32 v{P_F2}, v3, 18, v5
v_add_u32 v{P_TBR}, {L_TB}, v7
v_add_u32 v{P_TBW}, {T1}, v{P_TBR}
s_add_u32 {S_K1}, {S_W4}, 3
s_cmp_eq_u32 {S_W4}, 0
s_cselect_b32 {S_K1}, 7, {S_K1}
s_lshl_b32 {T0}, {S_W4}, 12
v_add_u32 v{P_ZW0}, {T0}, v{P_TBR}
s_lshl_b32 {T0}, {S_K1}, 12
v_add_u32 v{P_ZW1}, {T0}, v{P_TBR}
v_bfe_u32 v13, v1, 2, 2
v_lshrrev_b32 v5, 4, v1
v_xor_b32 v{P_WOD}, v13, v5
s_sub_u32 {T0}, {S_CNT}, 1
v_min_u32 v{P_WOD}, {T0}, v{P_WOD}
v_add_u32 v{P_WOD}, {S_CB}, v{P_WOD}
v_lshlrev_b32 v{P_WOD}, 6, v{P_WOD}
v_mul_u32_u24 v5, 896, v5
v_add_u32 v5, v5, v{P_WOD}
v_lshl_add_u32 v5, v6, 4, v5
s_mul_i32 {T0}, {S_W4}, {4*896}
v_add_u32 v{P_WOD}, {T0}, v5
v_xor_b32 v5, {S_W4}, v13
v_lshlrev_b32 v5, 6, v5
v_lshl_add_u32 v5, v13, 8, v5
v_and_b32 v6, 1, v1
v_lshl_add_u32 v5, v6, 5, v5
v_lshl_add_u32 v5, v12, 4, v5
v_bfe_u32 v6, v1, 1, 1
v_lshl_add_u32 v5, v6, 3, v5
v_add_u32 v{P_WOR2}, {L_X}, v5
v_lshl_add_u32 v{P_WOR}, v3, 10, v{P_WOR2}""")
    pieces = [gen_F, gen_FB, gen_M, gen_MS, gen_addr]
    assert cfg.pre >= 1
    def wq_warm():
        a(f"""s_cmp_eq_u32 {S_LC}, 7
s_cbranch_scc0 L_pf1
v_mul_u32_u24 v5, 2688, v1
s_mul_i32 {T0}, {T5}, 3
s_add_u32 {T0}, {T0}, {S_RR}
s_lshl_b32 {T0}, {T0}, 7
s_mul_i32 {T1}, {S_W4}, {128*2688}
s_add_u32 {T0}, {T0}, {T1}
s_add_u32 {T1}, {T0}, {64*2688}
buffer_load_dword v{P_DUM}, v5, {sWQKV}, {T0} offen
buffer_load_dword v{P_DUM}, v5, {sWQKV}, {T1} offen
L_pf1:""")
    def xa_warm():
        a(f"""s_cmp_eq_u32 {S_LC}, 7
s_cbranch_scc0 L_pf6
v_lshlrev_b32 v5, 7, v1
s_lshl_b32 {T0}, {S_RR}, 2
s_add_u32 {T0}, {T0}, {S_W4}
s_mul_i32 {T0}, {T0}, {2*64*896}
s_mul_i32 {T1}, {S_XCD}, {8*896}
s_add_u32 {T0}, {T0}, {T1}
s_add_u32 {T1}, {T0}, {64*896}
s_bfm_b64 exec, 56, 0
buffer_load_dword v{P_DUM}, v5, {sX}, {T0} offen
buffer_load_dword v{P_DUM}, v5, {sX}, {T1} offen
s_mov_b64 exec, -1
L_pf6:""")
    def mall_warm():
        a(f"""s_cmp_eq_u32 {S_LC}, 7
s_cbranch_scc0 L_pf7
s_lshl_b32 {T0}, {S_XCD}, 4
s_lshl_b32 {T1}, {S_RR}, 2
s_add_u32 {T0}, {T0}, {T1}
s_add_u32 {T0}, {T0}, {S_W4}
v_lshlrev_b32 v5, 7, v1""")
        if cfg.mw & 1:
            a(f"""v_lshrrev_b32 v6, 3, v1
v_mul_u32_u24 v6, 2688, v6
v_and_b32 v7, 7, v1
v_min_u32 v7, 6, v7
v_lshl_add_u32 v6, v7, 7, v6
s_mul_i32 {T1}, {T0}, {4*2688}
s_mov_b64 exec, 0xffffffff
buffer_load_dword v{P_DUM}, v6, {sWQKV}, {T1} offen""")
        if cfg.mw & 2: a(f"s_mul_i32 {T1}, {T0}, {25*128}\ns_bfm_b64 exec, 25, 0\nbuffer_load_dword v{P_DUM}, v5, {sWO}, {T1} offen")
        if cfg.mw & 4: a(f"s_mul_i32 {T1}, {T0}, {57*128}\ns_bfm_b64 exec, 57, 0\nbuffer_load_dword v{P_DUM}, v5, {sWR}, {T1} offen")
        if cfg.mw & 8: a(f"s_mul_i32 {T1}, {T0}, {57*128}\ns_bfm_b64 exec, 57, 0\nbuffer_load_dword v{P_DUM}, v5, {sWI}, {T1} offen")
        if cfg.mw & 16: a(f"s_mul_i32 {T1}, {T0}, {112*128}\ns_bfm_b64 exec, 56, 0\nbuffer_load_dword v{P_DUM}, v5, {sX}, {T1} offen")
        a("s_mov_b64 exec, -1\nL_pf7:")
    if cfg.spf:
        a(f"""s_lshl_b32 {T0}, s2, 2
s_add_u32 {T0}, {T0}, {S_W4}
s_mul_i32 {T1}, {T0}, {14*128}
s_add_u32 s76, s4, {T1}
s_addc_u32 s77, s5, 0
s_mul_i32 {T1}, {T0}, 900
s_add_u32 s70, s6, {T1}
s_addc_u32 s71, s7, 0
s_add_u32 s74, s8, {T1}
s_addc_u32 s75, s9, 0""")
    n0 = len(a.L)
    for q in range(cfg.pre):
        pieces.pop(0)()
        if q == 0:
            srd(a, sWQKV, 12, 448 * 2688); srd(a, sX, 4, 0 if cfg.ko & 16 else 2048 * 896)
            srd(a, sWR, 6, 0 if cfg.ko & 1 else 2048 * 450); srd(a, sWI, 8, 0 if cfg.ko & 1 else 2048 * 450); srd(a, sWO, 14, 0 if cfg.ko & 2 else 448 * 896)
        if cfg.mw and cfg.mwpos == q + 1: mall_warm()
        if cfg.xawarm == q + 1: xa_warm()
        if cfg.wqwarm == q + 1: wq_warm()
    if cfg.spf:
        from asmlib import Ins
        pf = [f"s_load_dword s72, s[76:77], {q*128}" for q in range(14)]
        if cfg.spf >= 2: pf += [f"s_load_dword s72, s[{b}:{b+1}], {q*128}" for q in range(7) for b in (70, 74)]
        lo = n0 + cfg.spf0; hi = len(a.L)
        for q in reversed(range(len(pf))): a.L.insert(lo + (hi - lo) * q // len(pf), Ins(pf[q]))
    stamp(a, 1)
    srd(a, sWS, 20, WS_SIZE)
    srd(a, sOUT, 16, 2048 * 1792)
    S_XA, S_WQL, S_WQG = "s70", "s71", "s72"
    XD = 70
    a(f"""v_lshrrev_b32 v6, 3, v1
v_and_b32 v5, 7, v1
v_lshrrev_b32 v8, 4, v1
v_xor_b32 v5, v5, v8
s_and_b32 {T0}, {S_W4}, 1
s_lshl_b32 {T0}, {T0}, 2
v_xor_b32 v5, {T0}, v5
v_mul_u32_u24 v6, {64*896}, v6
s_mul_i32 {T1}, {S_W4}, {8*64*896}
s_mul_i32 {T2}, {S_B}, 896
s_add_u32 {T1}, {T1}, {T2}
v_add_u32 v6, {T1}, v6
v_lshl_add_u32 v{XD}, v5, 4, v6
s_lshl_b32 {T0}, {S_W4}, 10
s_add_u32 {S_XA}, {T0}, {L_X}
s_mov_b32 {T2}, {L_X}""")
    x_read_addrs(a, 8, "v1", T2, TMP)
    a(f"""v_mov_b32 v14, {L_SYNC+128}
v_mov_b32 v15, 1
v_mov_b32 v{P_BC}, {L_SYNC}
s_lshl_b32 {T1}, {S_CG}, 1""")
    lwait(a, f"v{P_BC}", P_LS, 4, 34, sleep=1)
    a(f"""ds_read_b64 {V(PN,2)}, v{P_BC} offset:64
v_lshlrev_b32 v{P_PF}, 7, v1
s_add_u32 s74, s20, {FA1}
s_addc_u32 s75, s21, 0
s_waitcnt lgkmcnt(0)
v_readfirstlane_b32 s62, v{PN}
v_readfirstlane_b32 s63, v{PN+1}
s_lshl_b32 {T0}, s2, 2
s_add_u32 {T0}, {T0}, {S_W4}
s_cmp_lg_u32 {T0}, 0
s_cbranch_scc1 L_noinit
s_mov_b32 {T0}, {FA1}
buffer_store_dwordx2 {V(PN,2)}, v{P_PF}, {sWS}, {T0} offen offset:2048 sc1
s_mov_b32 {T2}, {FA1 + 8192}
buffer_store_dwordx2 {V(PN,2)}, v{P_PF}, {sWS}, {T2} offen offset:2048 sc1
s_mov_b64 exec, 0xff00
buffer_store_dwordx2 {V(PN,2)}, v{P_PF}, {sWS}, {T0} offen sc1
s_waitcnt vmcnt(0)
s_mov_b64 exec, 0xff
buffer_store_dwordx2 {V(PN,2)}, v{P_PF}, {sWS}, {T0} offen sc1
s_mov_b64 exec, -1
L_noinit:""")
    def wpull():
        L1, L2 = a.lab("wp"), a.lab("wp")
        a(f"""s_lshl_b32 {T2}, {S_IDX}, 1
s_lshr_b32 {T3}, {S_W4}, 1
s_add_u32 {T2}, {T2}, {T3}
s_mul_i32 {T2}, {T2}, 14400
s_mul_i32 {T3}, {S_XCD}, 1800
s_add_u32 {T2}, {T2}, {T3}
s_mov_b64 exec, 0x7fff
s_bitcmp1_b32 {S_W4}, 0
s_cbranch_scc1 {L1}
buffer_load_ushort v{P_DUM}, v{P_PF}, {sWR}, {T2} offen{' nt' if cfg.ntp else ''}
s_branch {L2}
{L1}:
buffer_load_ushort v{P_DUM}, v{P_PF}, {sWI}, {T2} offen{' nt' if cfg.ntp else ''}
{L2}:
s_mov_b64 exec, -1""")
    stamp(a, 2)
    if cfg.wpf == 2: wpull()
    lwait(a, f"v{P_BC}", P_LS, 4, 20, sleep=1, off=8)
    if cfg.xas:
        a(f"s_mul_i32 {T2}, {S_H}, 7\ns_bfe_u32 {T2}, {T2}, 0x30001\ns_cmp_gt_u32 {T2}, 4\ns_cbranch_scc0 L_xago")
        lwait(a, f"v{P_BC}", P_LS, 4 * cfg.xas, 30, sleep=1, off=4)
        a("L_xago:")
    for c in range(7):
        if c == cfg.xae:
            if cfg.wpf == 1: wpull()
            if cfg.xalate == 1: lwait(a, f"v{P_BC}", P_LS, 4, 38, sleep=1, off=12)
            elif cfg.xalate == 2: lwait(a, f"v{P_BC}", P_LS, 9, 38, sleep=1)
            elif cfg.xafirst: lwait(a, f"v{P_BC}", P_LS, 8, 38)
            else: lwait(a, f"v{P_BC}", P_LS, 4, 38, sleep=1, off=16)
        a(f"""s_add_u32 {T2}, {T1}, 1
s_lshr_b32 {T3}, {T2}, 1
s_lshl_b32 {T3}, {T3}, 14
s_and_b32 {T4}, {T1}, 1
s_lshl_b32 {T4}, {T4}, 12
s_sub_u32 {T3}, {T3}, {T4}
s_add_u32 m0, {S_XA}, {T3}
s_lshl_b32 {T4}, {T1}, 7
buffer_load_dwordx4 v{XD}, {sX}, {T4} offen{' nt' if cfg.nta else ''} lds
s_cmp_eq_u32 {T2}, 7
s_cselect_b32 {T1}, 0, {T2}""")
    if cfg.wpf == 4: wpull()
    for p_ in pieces: p_()
    pieces = []
    assert not pieces
    a(f"""v_add_u32 v13, {L_M}, v7
s_lshl_b32 {T0}, {S_W4}, 10
v_add_u32 v5, {T0}, v13
ds_write_b128 v5, {V(ACC+8,4)}
s_cmp_eq_u32 {S_W4}, 0
s_cbranch_scc0 L_chkd
s_lshl_b32 {T1}, {S_XCD}, 7
s_mov_b32 {S_TO}, {cfg.poll_limit}
L_chk:
s_load_dwordx2 s[76:77], {SB}, {T1} glc
s_waitcnt lgkmcnt(0)
s_sub_u32 s76, s76, s62
s_lshr_b32 s76, s76, 5
s_xor_b32 s77, s77, s63
s_or_b32 s76, s76, s77
s_cbranch_scc0 L_chkd
s_sleep 4
s_sub_u32 {S_TO}, {S_TO}, 1
s_cbranch_scc0 L_chk
s_mov_b32 {S_TO}, 35
s_branch L_fail
L_chkd:""")
    WW = 136 if cfg.woearly else 72; AC = 152; FR = 168; TP = 200
    wl = []
    for r in range(8):
        wl.append(f"s_mov_b32 {T0}, {14400*(8*(r//4) + r%4)}\nbuffer_load_short_d16_hi v{WW+r}, v{P_W}, {sWR}, {T0} offen{' nt' if cfg.ntw else ''}")
        wl.append(f"buffer_load_short_d16_hi v{WW+8+r}, v{P_W}, {sWI}, {T0} offen{' nt' if cfg.ntw else ''}")
    if cfg.wearly:
        for s_ in wl: a(s_)
        a("s_waitcnt vmcnt(16)")
    else: a(f"s_waitcnt vmcnt({1 if cfg.wpf == 4 else 0})")
    stamp(a, 3)
    if cfg.noA == 1:
        a(f"s_mov_b64 exec, 1\nds_add_u32 v14, v15 offset:4\ns_mov_b64 exec, -1")
        stamp(a, 12); dump_stamps(a, 16); a("s_endpgm")
    albar(16)
    RG = cfg.ring
    def xreg(m): return (TMP + 4*m if m < 4 else 72 + 4*(m - 4)) if m < RG else F + 4*(m - RG)
    def xr(m): return f"ds_read_b128 {V(xreg(m),4)}, v{8+m%4} offset:{((m//4+1)>>1)*16384 - ((m//4)&1)*4096}"
    assert not (cfg.wearly and RG > 4)
    for m in range(RG): a(xr(m))
    P1 = F; P2 = F + 16; XP = TMP; M = F + 32
    if cfg.mprio == 0: a("s_setprio 0")
    nds = RG
    for m in range(28):
        a(f"s_waitcnt lgkmcnt({nds - m - 1})")
        a(mfma(ACC, xreg(m), F + 4*m, None if m == 0 else ACC))
        if m + RG < 28: a(xr(m + RG)); nds += 1
        elif m >= 24: a(f"ds_read_b128 {V(M+4*(m-24),4)}, v13 offset:{(m-24)*1024}"); nds += 1
    a(f"s_setprio {cfg.aprio}")
    lwait(a, f"v{P_BC}", P_LS, 8, 27, sleep=1)
    a(f"""s_lshl_b32 {T0}, {S_W4}, 11
s_add_u32 {T0}, {T0}, {L_MS}
v_add_u32 v5, {T0}, v7
ds_write_b128 v5, v[48:51]
ds_write_b128 v5, v[52:55] offset:1024
s_lshr_b32 {T0}, {S_KT16}, 1
s_lshl_b32 {T0}, {T0}, 13
s_lshl_b32 {T1}, {S_B}, 7
s_add_u32 {T1}, {T1}, {TBUF}
s_add_u32 {T0}, {T0}, {T1}
s_and_b32 {T2}, {S_KT16}, 1
s_lshl_b32 {T2}, {T2}, 6
s_add_u32 {T0}, {T0}, {T2}
s_add_u32 {T2}, {T0}, {16*65536}
s_cmp_ge_u32 {S_W4}, {S_CNT}
s_cbranch_scc1 L_a1done
s_waitcnt lgkmcnt(0)""")
    for q in range(8): a(f"v_cvt_pk_bf16_f32 v{XP+q}, v{ACC+2*q}, v{ACC+2*q+1}")
    a(mfma(P1, XP, M)); a(mfma(P2, XP, M + 8)); a(mfma(P1, XP + 4, M + 4, P1)); a(mfma(P2, XP + 4, M + 12, P2))
    for r in range(0, 8, 2):
        pk2(a, "add", ACC+r, P1+r, P2+r+8, neg="1", scalar=cfg.nopk & 4); pk2(a, "add", ACC+8+r, P1+r+8, P2+r, scalar=cfg.nopk & 4)
    for r in range(8): a(f"v_cvt_pk_bf16_f32 v{XP+8+r}, v{ACC+r}, v{ACC+8+r}")
    a(f"""s_cmp_lg_u32 {S_KT16}, 0
s_cbranch_scc1 L_a1st
s_mov_b32 exec_hi, 0
v_cvt_pk_bf16_f32 v{XP+8}, v{P1}, v{P2}
v_cvt_pk_bf16_f32 v6, v{P1+8}, v{P2+8}
v_lshlrev_b32 v5, 16, v2
s_mov_b32 exec_hi, -1
L_a1st:
ds_write_b128 v{P_TTW}, {V(XP+8,4)}
ds_write_b128 v{P_TTW}, {V(XP+12,4)} offset:32
ds_read_b128 {V(XP,4)}, v{P_TTR}
ds_read_b128 {V(XP+4,4)}, v{P_TTR} offset:1024
s_mov_b32 {T4}, {T0}
s_waitcnt lgkmcnt(0)""")
    stamp(a, 1, 5)
    if cfg.tdefer: lwait(a, f"v{P_BC}", P_LS, 4, 28, sleep=1, off=12)
    if cfg.tdelay: a(f"s_sleep {cfg.tdelay}")
    if cfg.tstag:
        for q in (1, 2, 3): a(f"s_cmp_lt_u32 {S_W4}, {q}\ns_cbranch_scc1 L_tst\ns_sleep {cfg.tstag}")
        a("L_tst:")
    a(f"""s_cmp_lg_u32 {S_KT16}, 0
s_cbranch_scc1 L_a1st2
s_mov_b32 exec_hi, 0
s_add_u32 {T1}, {T1}, {7*8192}
buffer_store_dword v6, v5, {sWS}, {T1} offen sc1
s_mov_b32 exec_hi, -1
L_a1st2:
{"s_branch L_a1done" if cfg.ko & 8 else ""}
buffer_store_dwordx4 {V(XP,4)}, v{P_TST}, {sWS}, {T4} offen sc1
{"s_sleep %d" % (cfg.tstag // 2) if cfg.tstag else ""}
buffer_store_dwordx4 {V(XP+4,4)}, v{P_TST}, {sWS}, {T2} offen sc1
L_a1done:""")
    stage_arrive(0)
    stamp(a, 4)
    lwait(a, f"v{P_BC}", P_LS, 4, 29, sleep=1, off=12)
    if cfg.wdelay: a(f"s_sleep {cfg.wdelay}")
    if cfg.wpf == 3: wpull()
    if not cfg.wearly and not cfg.wlate: burst([x + (f"\ns_sleep {cfg.wpace}" if cfg.wpace else "") for x in wl], cfg.th_w)
    if cfg.wopf and not cfg.wolate:
        burst([f"""s_lshl_b32 {T0}, {S_IDX}, 2
s_add_u32 {T0}, {T0}, {S_W4}
s_mul_i32 {T0}, {T0}, {25*128}
s_bfm_b64 exec, 25, 0
buffer_load_dword v{P_DUM}, v{P_PF}, {sWO}, {T0} offen
s_mov_b64 exec, -1"""], 1)
    if cfg.ohint:
        for q in range(4): a(f"v_mov_b32 v{TP+q}, -1")
        a(f"""s_lshr_b32 {T0}, {S_XCD}, 1
s_lshl_b32 {T0}, {T0}, 2
s_add_u32 {T0}, {T0}, {S_RR}
s_lshl_b32 {T0}, {T0}, 2
s_add_u32 {T0}, {T0}, {S_W4}
s_lshl_b32 {T0}, {T0}, 4
s_add_u32 {T0}, {T0}, {S_H}
s_lshl_b32 {T0}, {T0}, 11
s_add_u32 {T0}, {T0}, {OBUF}""")
        a(f"s_mov_b32 s72, {T0}")
        marks = [f"buffer_store_dwordx4 {V(TP,4)}, v7, {sWS}, s72 offen offset:{1024*q} sc1" for q in range(2)]
        if not cfg.wolate: burst(marks, 2)
    WO = 72
    S_WOL = "s70"
    a(f"s_lshl_b32 {S_WOL}, {S_W4}, 10\ns_add_u32 {S_WOL}, {S_WOL}, {L_X}")
    def wo_list(rnd):
        return [f"s_add_u32 m0, {S_WOL}, {i*4096}\ns_mov_b32 s71, {(rnd*224 + i*16)*896}\nbuffer_load_dwordx4 v{P_WOD}, {sWO}, s71 offen lds" for i in range(14)]
    def ride(q, n=1):
        it = [q.pop(0) for _ in range(min(n, len(q)))]
        if it: burst(it, n)
        pace()
    def wo_rd(f, d, r1, r2):
        hl, mu = f // 2, f % 2
        return [f"ds_read_b64_tr_b16 {V(d+2*sec,2)}, v{r2 if (mu and sec) else r1} offset:{(28*hl + 16*mu + 8*sec)*256}" for sec in range(2)]
    def wo_reads(h):
        for f in range(16):
            for s_ in wo_rd(f, WO + 64*h + 4*f, P_WOR, P_WOR2): a(s_)
    assert cfg.allpoll
    if cfg.woearly:
        assert cfg.wlate and not cfg.wolate
        lwait(a, "v14", P_LS, 4, 45, sleep=2, off=8)
        burst(wo_list(0), cfg.th_wo)
        a("s_waitcnt vmcnt(0)")
        albar(46)
        wo_reads(0)
    stamp(a, 5)
    stage_wait(0, cfg.a2wait)
    a(f"s_lshl_b32 {T1}, {S_W4}, 11")
    stamp(a, 6)
    a(f"""s_lshl_b32 {T0}, {S_TASK}, 13
s_add_u32 {T0}, {T0}, {T1}
s_add_u32 {T0}, {T0}, {TBUF}""")
    burst([f"buffer_load_dword v{FR+q}, v{P_TLD}, {sWS}, {T0} offen offset:{(q//4)*1024 + (q%4)*128} sc1" for q in range(8)], 8)
    a(f"s_waitcnt vmcnt(0)\nds_write_b128 v{P_TBW}, {V(FR,4)}\nds_write_b128 v{P_TBW}, {V(FR+4,4)} offset:1024" if not cfg.wlate else "")
    if cfg.wlate:
        burst(wl, 24)
        a(f"s_waitcnt vmcnt(16)\nds_write_b128 v{P_TBW}, {V(FR,4)}\nds_write_b128 v{P_TBW}, {V(FR+4,4)} offset:1024")
    stamp(a, 1, 4)
    albar(6)
    stamp(a, 2, 4)
    def dft64(base):
        for m in range(8): a(f"ds_read_b128 {V(FR+4*m,4)}, v{P_TBR} offset:{base + m*1024}")
        if cfg.mprio == 0: a("s_setprio 0")
        for m in range(8):
            a(f"s_waitcnt lgkmcnt({7-m})")
            a(mfma(AC, FB + 4*m, FR + 4*m, None if m == 0 else AC))
            if cfg.mprio: ride(woq)
            elif woq: a(woq.pop(0))
        a(f"s_setprio {cfg.aprio}")
    woq = marks if cfg.wolate else wo_list(1 if cfg.woearly else 0)
    dft64(0)
    a(f"s_waitcnt vmcnt({2 if cfg.wolate else 8})\ns_cmp_eq_u32 {S_HH}, 7\ns_cbranch_scc0 L_a2nx")
    for r in range(8):
        a(f"v_mov_b32 v{TP}, v{WW+r}\nv_xor_b32 v{WW+r}, 0x80000000, v{WW+8+r}\nv_mov_b32 v{WW+8+r}, v{TP}")
    a("L_a2nx:")
    for r in range(0, 8, 2):
        a(f"""v_pk_mul_f32 {V(FR+r,2)}, {V(AC+r,2)}, {V(WW+r,2)}
v_pk_mul_f32 {V(FR+8+r,2)}, {V(AC+r,2)}, {V(WW+8+r,2)}
v_pk_fma_f32 {V(FR+r,2)}, {V(AC+8+r,2)}, {V(WW+8+r,2)}, {V(FR+r,2)} neg_lo:[1,0,0] neg_hi:[1,0,0]
v_pk_fma_f32 {V(FR+8+r,2)}, {V(AC+8+r,2)}, {V(WW+r,2)}, {V(FR+8+r,2)} neg_lo:[1,0,1] neg_hi:[1,0,1]
v_cvt_pk_bf16_f32 v{TP+r}, v{FR+r}, v{FR+8+r}
v_cvt_pk_bf16_f32 v{TP+r+1}, v{FR+r+1}, v{FR+8+r+1}""")
    a(f"ds_write_b128 v{P_TBW}, {V(TP,4)} offset:8192\nds_write_b128 v{P_TBW}, {V(TP+4,4)} offset:9216")
    stamp(a, 3, 4)
    albar(7)
    stamp(a, 4, 4)
    dft64(8192)
    if cfg.uinp:
        a(f"s_lshl_b32 {T0}, {S_TASK}, 13\ns_lshl_b32 {T1}, {S_W4}, 11\ns_add_u32 {T0}, {T0}, {T1}\ns_add_u32 {T0}, {T0}, {TBUF}")
    else:
        a(f"""s_lshl_b32 {T0}, {S_HH}, 12
s_lshr_b32 {T1}, {S_TASK}, 3
s_lshl_b32 {T1}, {T1}, 7
s_add_u32 {T0}, {T0}, {T1}
s_add_u32 {T0}, {T0}, {UBUF}
s_lshl_b32 {T1}, {S_W4}, 19
s_add_u32 {T0}, {T0}, {T1}""")
    for r in range(8): a(f"v_cvt_pk_bf16_f32 v{TP+r}, v{AC+r}, v{AC+8+r}")
    stamp(a, 5, 4)
    a(f"s_cmp_eq_u32 {S_HH}, {S_HH if cfg.ko & 8 else 7}\ns_cselect_b32 exec_lo, 1, -1\ns_cselect_b32 exec_hi, 1, -1")
    if cfg.uinp:
        burst([f"buffer_store_dword v{TP+r}, v{P_TLD}, {sWS}, {T0} offen offset:{(r//4)*1024 + (r%4)*128} sc1" for r in range(8)], 8)
    else:
        burst([f"s_add_u32 {T1}, {T0}, {(8*(r//4) + r%4) * USTR}\nbuffer_store_dword v{TP+r}, v{P_UST}, {sWS}, {T1} offen sc1" for r in range(8)], 8)
    a("s_mov_b64 exec, -1")
    stage_arrive(1)
    stamp(a, 7)
    U0 = 16; U1 = 32; AR = 200; AI = 216
    MSR = [48, 52, 56, 60, 64, 68, 232, 240]
    if cfg.wolate:
        burst(wo_list(0), cfg.th_wo)
        a("s_waitcnt vmcnt(0)")
    albar(4)
    wo_reads(1 if cfg.woearly else 0)
    for q in range(8): a(f"ds_read_b128 {V(MSR[q],4)}, v7 offset:{L_MS + q*1024}")
    if not cfg.woearly:
        albar(24)
        if not cfg.wolate: burst(wo_list(1), cfg.th_wo)
    stage_wait(1, 0 if cfg.wolate else cfg.a3wait)
    stamp(a, 8)
    if cfg.uinp:
        a(f"""s_lshl_b32 {T0}, {S_BP}, 7
s_add_u32 {T0}, {T0}, {TBUF}
s_lshl_b32 {T1}, {S_W4}, 13
s_lshl_b32 {T3}, {S_K1}, 13
s_add_u32 {T2}, {T0}, {T3}
s_add_u32 {T1}, {T0}, {T1}""")
        burst([f"s_add_u32 {T0}, {T1 if q < 16 else T2}, {(8*((q%16)//4) + q%4) * 65536}\nbuffer_load_dword v{U0+q}, v{P_F2}, {sWS}, {T0} offen sc1" for q in range(32)], cfg.th_u)
    else:
        a(f"""s_lshl_b32 {T0}, {S_BP}, 15
s_add_u32 {T0}, {T0}, {UBUF}
s_lshl_b32 {T1}, {S_W4}, 12
s_lshl_b32 {T3}, {S_K1}, 12
s_add_u32 {T2}, {T0}, {T3}
s_add_u32 {T1}, {T0}, {T1}""")
        burst([f"buffer_load_dword v{U0+q}, v{P_TLD}, {sWS}, {T1 if q < 16 else T2} offen offset:{((q%16)//4)*1024 + (q%4)*128} sc1" for q in range(32)], cfg.th_u)
    if cfg.wolate: burst(wo_list(1), 46)
    elif not cfg.woearly:
        a("s_waitcnt vmcnt(32)")
        albar(10)
        wo_reads(1)
    stamp(a, 11, 4)
    a(f"""s_lshl_b32 {T4}, {S_BP}, 2
s_add_u32 {T4}, {T4}, {S_W4}
s_lshl_b32 {T3}, {T4}, 13
s_add_u32 {T3}, {T3}, {OBUF}
s_add_u32 {T2}, {T3}, 4096
s_and_b32 {T4}, {S_BP}, 60
s_add_u32 {T4}, {T4}, {S_W4}
s_lshl_b32 {T4}, {T4}, 9
s_add_u32 {T4}, {T4}, {FO}
s_lshl_b32 {T1}, {S_W4}, 13
v_add_u32 v9, {T1}, v7""")
    def step6(ur, ui, va, last):
        if last and cfg.apoll: a(poll_issue(f"v{P_PF}", T4, P_PS, 4))
        if cfg.mprio == 0: a("s_setprio 0")
        for m in range(4):
            a(mfma(AR, ur + 4*m, MSR[2*m], None if m == 0 else AR))
            if cfg.pace6: a(f"s_sleep {cfg.pace6}")
            a(mfma(AI, ui + 4*m, MSR[2*m+1], None if m == 0 else AI))
            if cfg.pace6: a(f"s_sleep {cfg.pace6}")
        a(f"s_setprio {cfg.aprio}")
        for q in range(16):
            a(f"v_cvt_pk_bf16_f32 v{ur+q}, v{AR+2*q}, v{AR+2*q+1}")
            if q % 4 == 3: a(f"ds_write_b128 v{va}, {V(ur+q-3,4)} offset:{(q//4)*1024}")
    if cfg.s6late: lwait(a, f"v{P_BC}", P_LS, 20, 37, sleep=2)
    a(f"s_waitcnt vmcnt({14 if cfg.wolate else 0})\ns_cmp_eq_u32 {S_W4}, 0\ns_cbranch_scc1 L_a3w0")
    step6(U0, U0, P_ZW0, False)
    step6(U1, U1, P_ZW1, True)
    a(f"s_branch L_a3z\nL_a3w0:\ns_mov_b32 exec_lo, -2\ns_mov_b32 exec_hi, -2")
    for q in range(16): a(f"v_mov_b32 v{U1+q}, v{U0+q}")
    a("s_mov_b64 exec, -1")
    step6(U0, U1, P_ZW0, True)
    a("L_a3z:\ns_mov_b64 exec, 1\nds_add_u32 v14, v15 offset:4\ns_mov_b64 exec, -1")
    stamp(a, 9)
    if cfg.wolate:
        a(f"s_waitcnt vmcnt({1 if cfg.apoll else 0})")
        lbar(a, "v14", "v15", P_LS, 10)
        wo_reads(1)
    osc = ("", " sc1", " nt", " sc0 sc1", " sc1 nt")[cfg.outsc]
    stamp(a, 10)
    a(f"s_mov_b32 s71, {cfg.poll_limit}")
    if cfg.apoll: a(f"s_waitcnt vmcnt(0)\n{poll_check(P_PS, 4)}\ns_cbranch_scc0 L_aoload")
    poll(a, f"v{P_PF}", T4, P_PS, 4, 42, sleep=cfg.osleep)
    a("L_aoload:")
    for q in range(8):
        a(f"buffer_load_dwordx4 {V(16+4*q,4)}, v7, {sWS}, {T3 if q < 4 else T2} offen offset:{(q%4)*1024} sc1")
    stamp(a, 13)
    lwait(a, f"v{P_BC}", P_LS, 24, 43, sleep=1)
    for q in range(8):
        a(f"s_waitcnt vmcnt({7-q})\nds_write_b128 v9, {V(16+4*q,4)} offset:{L_OB + q*1024}")
        if q == 2: a("v_max3_u32 v5, v16, v20, v24")
        if q in (4, 6): a(f"v_max3_u32 v5, v5, v{12+4*q}, v{16+4*q}")
    a(f"""v_max_u32 v5, v5, v44
v_cmp_eq_u32 vcc, -1, v5
s_cbranch_vccz L_aogot
s_sleep 6
s_sub_u32 s71, s71, 1
s_cbranch_scc0 L_aoload
s_mov_b32 {S_TO}, 44
s_branch L_fail
L_aogot:
s_mov_b64 exec, 1
ds_add_u32 v{P_BC}, v15 offset:20
s_mov_b64 exec, -1""")
    a(f"""s_mul_i32 {T4}, {S_BP}, {32*1792}
s_lshl_b32 {T1}, {S_DT}, 6
s_add_u32 {T4}, {T4}, {T1}
s_add_u32 {T4}, {T4}, 896
s_add_u32 {T3}, {T4}, {16*1792}""")
    lwait(a, f"v{P_BC}", P_LS, 4, 12, off=20)
    a(f"s_cmp_ge_u32 {S_W4}, {S_CNT}\ns_cbranch_scc1 L_b3done")
    stamp(a, 11)
    OR = 216
    def zr(s_): return f"ds_read_b128 {V(OR+4*(s_%8),4)}, v7 offset:{L_OB + s_*1024}"
    for s_ in range(8): a(zr(s_))
    if cfg.cost & 1:
        a(f"""s_lshl_b32 {T1}, {S_W4}, 11
s_add_u32 {T1}, {T1}, {L_X}
v_lshlrev_b32 v10, 6, v2
v_lshl_add_u32 v10, v3, 5, v10
v_add_u32 v10, {T1}, v10
v_add_u32 v11, {T1}, v7
v_lshrrev_b32 v5, 2, v1
v_mul_u32_u24 v5, 1792, v5
v_and_b32 v12, 3, v1
v_lshl_add_u32 v5, v12, 4, v5""")
    else:
        a("v_mul_u32_u24 v5, 1792, v2\nv_lshl_add_u32 v5, v3, 5, v5")
    for s_ in range(32):
        a(f"s_waitcnt lgkmcnt({min(7, 31-s_)})")
        a(mfma(AR, WO + 4*s_, OR + 4*(s_ % 8), None if s_ == 0 else AR))
        if s_ + 8 < 32: a(zr(s_ + 8))
    for hf in range(2):
        for q in range(4*hf, 4*hf+4): a(f"v_cvt_pk_bf16_f32 v{48+q}, v{AR+2*q}, v{AR+2*q+1}")
        if cfg.cost & 1: a(f"ds_write_b128 v10, {V(48+4*hf,4)} offset:{16*hf}")
        else: a(f"buffer_store_dwordx4 {V(48+4*hf,4)}, v5, {sOUT}, {T4} offen offset:{16*hf}{osc}")
    if cfg.cost & 1:
        a(f"""ds_read_b128 v[56:59], v11
ds_read_b128 v[60:63], v11 offset:1024
s_waitcnt lgkmcnt(1)
buffer_store_dwordx4 v[56:59], v5, {sOUT}, {T4} offen{osc}
s_waitcnt lgkmcnt(0)
buffer_store_dwordx4 v[60:63], v5, {sOUT}, {T3} offen{osc}""")
    a("L_b3done:")
    a(f"""s_lshl_b32 {T0}, s2, 2
s_add_u32 {T0}, {T0}, {S_W4}
s_cmp_lg_u32 {T0}, 0
s_cbranch_scc1 L_noep
s_mov_b32 {T0}, {EPOCH}""")
    flag(a, T0, 10)
    a("L_noep:")
    if cfg.padend: padto(a, cfg.padend)
    stamp(a, 12)
    dump_stamps(a, 16)
    a("s_endpgm")

def build():
    nh = cfg.nh; xh = 16 // nh
    for wg in range(256):
        xcd, idx = wg & 7, wg >> 3
        h = (xcd % xh) * nh + idx % nh
        assert nh == 8
    a = Asm()
    prologue(a); role_B(a); ROLE[0] = 1; role_A(a)
    a(f"""L_fail:
v_mov_b32 v0, 0
v_mov_b32 v1, {S_TO}
global_store_dword v0, v1, s[18:19]
L_end:
s_endpgm
L_codeend:""")
    a.pad()
    import os
    ref = "cdna_kernels/" + NAME + ".s.ref"
    hdr = open(ref).read().split("; Override launch")[0] if os.path.exists(ref) else ""
    s = hdr + f"; @launch grid=(256,1,1) block=(512,1,1) lds={LDS_SIZE}\n"
    s += f""".amdgcn_target "amdgcn-amd-amdhsa--gfx950"
.text
.globl {NAME}_kernel
.p2align 8
.type {NAME}_kernel,@function
{NAME}_kernel:
""" + a.text() + f""".section .rodata,"a"
.p2align 6
.amdhsa_kernel {NAME}_kernel
  .amdhsa_next_free_vgpr 256
  .amdhsa_next_free_sgpr 102
  .amdhsa_accum_offset 256
  .amdhsa_group_segment_fixed_size 0
  .amdhsa_kernarg_size 72
  .amdhsa_user_sgpr_count 2
  .amdhsa_user_sgpr_kernarg_segment_ptr 1
  .amdhsa_system_sgpr_workgroup_id_x 1
.end_amdhsa_kernel
"""
    return s

if __name__ == "__main__":
    out = sys.argv[1]
    for kv in sys.argv[2:]:
        k, v = kv.split("=")
        setattr(cfg, k, type(getattr(cfg, k))(int(v)))
    open(out, "w").write(build())
```

```python
import sys, math, struct
from asmlib import Asm

NAME = "concat_heads__spectral_gfnet__softmax_full_mha__prompt"

class Cfg:
    nh = 8
    stamps = False
    poll_limit = 1 << 17
    noA = 0
    pxcd = -1
    ptype = 0
    kvsc = 1
    kvt = 0
    probe = -1
    span = 0
    fine = 0
    padend = 0
    padmid = 0
    dbgwave = -1
    nbuf = 5
    wearly = 0
    touch = 0
    wdelay = 30
    tdelay = 0
    s6late = 0
    lsl = 4
    odefer = 0
    a2wait = 8
    a3wait = 0
    kvwait = 8
    kvrot = 3
    m1 = 12
    ramp = 1
    gate = 2
    wqe = 3
    wqp = 7
    tdefer = 1
    m2 = 27
    xas = 0
    xae = 2
    bhi = 56
    ohint = 1
    wlate = 1
    allpoll = 1
    otry = 1
    gsplit = 8
    claim = 1
    btry = 0
    pace6 = 0
    wolate = 0
    wsoff = 0
    mprio = 0
    xawarm = 0
    wpace = 0
    tstag = 0
    xafirst = 1
    mw = 2
    mwpos = 1
    wqdel = 0
    ring = 8
    apoll = 1
    osleep = 2
    fprio = 0
    nta = 1
    ntw = 1
    ntb = 0
    bsleep = 2
    qst = 0x133
    wopf = 0
    uinp = 1
    woearly = 0
    hack = 0
    ko = 0
    xalate = 0
    ntp = 1
    cost = 3
    nopk = 23
    gtab = 2981409204
    kvp = 1
    owait = 4
    xrot = 0x06543210
    wrot = 1
    pace = 1
    xadefer = 0
    wpf = 0
    outsc = 3
    wqwarm = 1
    th_wo = 14
    th_u = 32
    th_wq = 2
    wqearly = 1
    th_w = 17
    th_xa = 4
    wfair = 8
    xearly = 1
    spf = 0
    spf0 = 150
    pre = 5
    aprio = 2
    force_fb = False
cfg = Cfg()

EPOCH = 0
KV = 0x20000; TS = 61440; VOFF = 28672
OBUF = 0x400000
TBUF = 0x600000
UBUF = 0x800000; USTR = 32768
FKV = 0x8000; FA1 = 0x1000; FO = 0x10000
STAMP = 0xB00000
WS_SIZE = 0x1000000
L_W = 0; L_WQ = 57344; L_X = 86016; L_Q = 151552; L_SYNC = 159744
LDS_SIZE = 160000
L_RED = 0
L_TB = L_WQ; L_YB = L_WQ + 8192; L_MS = 49152; L_TT = L_X + 4096; L_M = L_X + 61440
L_ZB = L_WQ; L_OB = 0
sWS, sWQKV, sX, sWR, sWI, sWO, sOUT = [f"s[{i}:{i+3}]" for i in (24, 28, 32, 36, 40, 44, 48)]
S_WAVE, S_XCD, S_IDX, S_H, S_R, S_W4 = "s56", "s57", "s58", "s59", "s60", "s61"
S_NONCE = "s[62:63]"
S_TO, S_BAR = "s64", "s65"
T0, T1, T2, T3, T4, T5 = "s66", "s67", "s68", "s69", "s22", "s23"
STAMP0 = 84

ZREADY = 24

def f2u(x): return struct.unpack("<I", struct.pack("<f", x))[0]
def lit(x): return "0x%08x" % f2u(x)
def V(a, n=1): return f"v{a}" if n == 1 else f"v[{a}:{a+n-1}]"

def srd(a, name, lo, size):
    i = int(name[2:name.index(":")])
    a(f"s_mov_b32 s{i}, s{lo}\ns_mov_b32 s{i+1}, s{lo+1}\ns_mov_b32 s{i+2}, {size}\ns_mov_b32 s{i+3}, 0x20000")

ROLE = [0]
def stamp(a, i, fine=0):
    if cfg.probe >= 0:
        if fine == cfg.fine and cfg.probe == ROLE[0] * 100 + i:
            a("s_memrealtime s[96:97]\ns_waitcnt lgkmcnt(0)")
        return
    if cfg.fine in (1, 2) and not fine and 3 <= i <= 11: return
    if cfg.fine == 4 and not fine and i in (1, 2, 3, 4, 5, 10, 11, 13): return
    if fine and cfg.fine != fine: return
    if cfg.stamps:
        a(f"s_memtime s[100:101]\ns_waitcnt lgkmcnt(0)\ns_mov_b32 s{STAMP0+i}, s100")

def st0():
    o = f"s_add_u32 s20, s20, {cfg.wsoff << 20}\ns_addc_u32 s21, s21, 0\n" if cfg.wsoff else ""
    return o + (f"s_mov_b32 s{STAMP0+15}, s100\ns_mov_b32 s{STAMP0}, s38" if cfg.stamps else "")

def dump_stamps(a, vt):
    if cfg.probe >= 0:
        if cfg.probe // 100 == ROLE[0]:
            L = a.lab("pr")
            if cfg.pxcd >= 0: a(f"s_cmp_lg_u32 {S_XCD}, {cfg.pxcd}\ns_cbranch_scc1 {L}x")
            if cfg.ptype: a(f"s_cmp_eq_u32 {S_LC}, 7\ns_cbranch_scc{cfg.ptype - 1} {L}x")
            if cfg.probe % 100 == 99: a("s_mov_b32 s96, s100")
            a(f"s_sub_u32 s96, s96, s100\ns_cmp_gt_u32 s96, 4000\ns_cselect_b32 s96, 0, s96\ns_add_u32 s96, s96, 2600\n{L}:\ns_memrealtime s[98:99]\ns_waitcnt lgkmcnt(0)\ns_sub_u32 s98, s98, s100\ns_cmp_lt_u32 s98, s96\ns_cbranch_scc1 {L}\n{L}x:")
        return
    if cfg.span:
        a(f"s_waitcnt vmcnt(0)\ns_memrealtime s[98:99]\ns_lshl_b32 {T0}, s2, 3\ns_add_u32 {T0}, {T0}, {S_WAVE}\ns_lshl_b32 {T0}, {T0}, 3\ns_add_u32 {T0}, {T0}, {STAMP}\ns_waitcnt lgkmcnt(0)")
        a(f"v_mov_b32 v{vt}, s100\nv_mov_b32 v{vt+1}, s98\nv_mov_b32 v{vt+2}, 0\ns_mov_b64 exec, 1\nbuffer_store_dwordx2 {V(vt,2)}, v{vt+2}, {sWS}, {T0} offen\ns_mov_b64 exec, -1")
    if not cfg.stamps: return
    a(f"s_memrealtime s[100:101]\ns_waitcnt lgkmcnt(0)\ns_mov_b32 s{STAMP0+14}, s100")
    if cfg.dbgwave >= 0:
        L = a.lab("nodbg")
        a(f"s_lshl_b32 {T0}, s2, 3\ns_add_u32 {T0}, {T0}, {S_WAVE}\ns_cmp_lg_u32 {T0}, {cfg.dbgwave}\ns_cbranch_scc1 {L}")
        a(f"v_mov_b32 v{vt+4}, 0\ns_mov_b64 exec, 1")
        for i in range(1, 16):
            a(f"s_sub_u32 {T1}, s{STAMP0+i}, s{STAMP0 + (15 if i >= 14 else 0)}\nv_mov_b32 v{vt}, {T1}\nglobal_store_dword v{vt+4}, v{vt}, s[18:19] offset:{4*i}")
        a(f"s_mov_b64 exec, -1\n{L}:")
    a(f"s_lshl_b32 {T0}, s2, 3\ns_add_u32 {T0}, {T0}, {S_WAVE}\ns_lshl_b32 {T0}, {T0}, 7\ns_add_u32 {T0}, {T0}, {STAMP}")
    a(f"v_mov_b32 v{vt+4}, 0\ns_mov_b64 exec, 1")
    for q in range(4):
        for i in range(4): a(f"v_mov_b32 v{vt+i}, s{STAMP0+4*q+i}")
        a(f"buffer_store_dwordx4 {V(vt,4)}, v{vt+4}, {sWS}, {T0} offen offset:{16*q}")
    a("s_mov_b64 exec, -1")

def padto(a, ticks):
    L = a.lab("pad")
    a(f"{L}:\ns_memrealtime s[100:101]\ns_waitcnt lgkmcnt(0)\ns_sub_u32 s100, s100, s{STAMP0+15}\ns_cmp_lt_u32 s100, {ticks}\ns_cbranch_scc1 {L}")

def poll_issue(vaddr, soff, vt, n):
    return f"""v_mov_b32 v{vt}, 0
v_mov_b32 v{vt+1}, 0
s_bfm_b64 exec, {n}, 0
buffer_atomic_or_x2 {V(vt,2)}, {vaddr}, {sWS}, {soff} offen sc0 sc1
s_mov_b64 exec, -1"""

def poll_check(vt, n):
    return f"v_cmp_ne_u64 vcc, {S_NONCE}, {V(vt,2)}\ns_and_b32 vcc_lo, vcc_lo, {hex((1 << n) - 1)}"

def poll(a, vaddr, soff, vt, n, code, sleep=2):
    L, Dn = a.lab("poll"), a.lab("polld")
    a(f"""s_mov_b32 {S_TO}, {cfg.poll_limit}
{L}:
{poll_issue(vaddr, soff, vt, n)}
s_waitcnt vmcnt(0)
{poll_check(vt, n)}
s_cbranch_scc0 {Dn}
s_sleep {sleep}
s_sub_u32 {S_TO}, {S_TO}, 1
s_cbranch_scc0 {L}
s_mov_b32 {S_TO}, {code}
s_branch L_fail
{Dn}:""")

def publish_wg(a, vsync, vone, off, vt, soff, vn, last=3):
    L = a.lab("pub")
    a(f"""s_mov_b64 exec, 1
ds_add_rtn_u32 v{vt}, {vsync}, {vone} offset:{off}
s_waitcnt lgkmcnt(0)
v_readfirstlane_b32 {T0}, v{vt}
s_cmp_eq_u32 {T0}, {last}
s_cselect_b64 exec, 1, 0
buffer_store_dwordx2 {V(vn,2)}, v{vn+2}, {sWS}, {soff} offen sc1
s_mov_b64 exec, -1""")

def flag(a, soff, vt):
    a(f"""v_mov_b32 v{vt}, s62
v_mov_b32 v{vt+1}, s63
v_mov_b32 v{vt+2}, 0
s_mov_b64 exec, 1
buffer_store_dwordx2 {V(vt,2)}, v{vt+2}, {sWS}, {soff} offen sc1
s_mov_b64 exec, -1""")

def flag2(a, soff, vn):
    a(f"s_mov_b64 exec, 1\nbuffer_store_dwordx2 {V(vn,2)}, v{vn+2}, {sWS}, {soff} offen sc1\ns_mov_b64 exec, -1")

def lwait(a, vsync, vt, target, code, sleep=0, off=0):
    L, Dn = a.lab("lw"), a.lab("lwd")
    a(f"""s_mov_b32 {S_TO}, {cfg.poll_limit * 8}
{L}:
ds_read_b32 v{vt}, {vsync} offset:{off}
s_waitcnt lgkmcnt(0)
v_readfirstlane_b32 {T0}, v{vt}
s_cmp_ge_u32 {T0}, {target}
s_cbranch_scc1 {Dn}
{"s_sleep %d" % sleep if sleep else ""}
s_sub_u32 {S_TO}, {S_TO}, 1
s_cbranch_scc0 {L}
s_mov_b32 {S_TO}, {code}
s_branch L_fail
{Dn}:""")

def lbar(a, vsync, vone, vt, code, sleep=0):
    L, Dn = a.lab("lb"), a.lab("lbd")
    a(f"""s_add_u32 {S_BAR}, {S_BAR}, 4
s_mov_b64 exec, 1
ds_add_u32 {vsync}, {vone}
s_mov_b64 exec, -1
s_mov_b32 {S_TO}, {cfg.poll_limit * 8}
{L}:
ds_read_b32 v{vt}, {vsync}
s_waitcnt lgkmcnt(0)
v_readfirstlane_b32 {T0}, v{vt}
s_cmp_ge_u32 {T0}, {S_BAR}
s_cbranch_scc1 {Dn}
{"s_sleep %d" % sleep if sleep else ""}
s_sub_u32 {S_TO}, {S_TO}, 1
s_cbranch_scc0 {L}
s_mov_b32 {S_TO}, {code}
s_branch L_fail
{Dn}:""")

def mfma(d, A, B, C=None):
    return f"v_mfma_f32_32x32x16_bf16 {V(d,16)}, {V(A,4)}, {V(B,4)}, {'0' if C is None else V(C,16)}"

def pk2(a, op, d, x, y, z=None, neg="", scalar=False):
    srcs = [x, y] + ([z] if z is not None else [])
    if not scalar:
        m = "[" + ",".join("1" if str(i) in neg else "0" for i in range(len(srcs))) + "]"
        a(f"v_pk_{op}_f32 {V(d,2)}, " + ", ".join(V(r,2) for r in srcs) + (f" neg_lo:{m} neg_hi:{m}" if neg else ""))
        return
    for q in range(2):
        if op == "add" and neg == "1": a(f"v_sub_f32 v{d+q}, v{x+q}, v{y+q}")
        else: a(f"v_{op}_f32 v{d+q}, " + ", ".join(("-" if str(i) in neg else "") + f"v{r+q}" for i, r in enumerate(srcs)))

def mod7(a, s, t):
    a(f"s_mul_i32 {t}, {s}, 9363\ns_lshr_b32 {t}, {t}, 16\ns_mul_i32 {t}, {t}, 7\ns_sub_u32 {s}, {s}, {t}")

def x_read_addrs(a, v0, vl, base_s, t):
    a(f"""v_and_b32 v{t}, 31, {vl}
v_lshrrev_b32 v{t+1}, 5, {vl}
v_bfe_u32 v{t+2}, {vl}, 1, 3
v_xor_b32 v{t+1}, v{t+1}, v{t+2}
v_lshlrev_b32 v{t}, 7, v{t}
v_add_u32 v{t}, {base_s}, v{t}""")
    for mm in range(4):
        a(f"v_xor_b32 v{t+2}, {2*mm}, v{t+1}\nv_lshl_add_u32 v{v0+mm}, v{t+2}, 4, v{t}")


S_HH, S_RR, S_J, S_P0, S_LC = "s52", "s53", "s54", "s55", "s3"

def prologue(a):
    a(f"""s_cmp_ge_u32 s2, 256
s_cbranch_scc1 L_end
s_load_dwordx16 s[4:19], s[0:1], 0
s_load_dwordx2 s[20:21], s[0:1], 64""")
    if cfg.span or cfg.probe >= 0: a("s_memrealtime s[100:101]")
    if cfg.stamps:
        a(f"s_memtime s[38:39]\ns_memrealtime s[100:101]")
        for i in range(1, 15): a(f"s_mov_b32 s{STAMP0+i}, 0")
    a(f"""s_lshr_b32 {S_IDX}, s2, 3
s_getpc_b64 s[70:71]
L_pc:
v_lshrrev_b32 v3, 5, v0
v_lshl_add_u32 v3, {S_IDX}, 4, v3
v_lshlrev_b32 v3, 7, v3
v_min_u32 v3, L_codeend-L_pc-4, v3
global_load_dword v255, v3, s[70:71]
v_lshrrev_b32 v2, 6, v0
v_and_b32 v1, 63, v0
v_readfirstlane_b32 {S_WAVE}, v2
s_and_b32 {S_XCD}, s2, 7
s_and_b32 {S_HH}, {S_IDX}, 7
s_lshr_b32 {S_RR}, {S_IDX}, 3
s_and_b32 {T5}, {S_XCD}, 1
s_lshl_b32 {S_H}, {T5}, 3
s_add_u32 {S_H}, {S_H}, {S_HH}
s_lshl_b32 {T0}, {S_HH}, 2
s_cmp_eq_u32 {T5}, 0
s_cselect_b32 {S_LC}, 0x67543210, s2
s_cselect_b32 {S_LC}, {S_LC}, 0x65432170
s_lshr_b32 {S_LC}, {S_LC}, {T0}
s_and_b32 {S_LC}, {S_LC}, 7
s_and_b32 {S_W4}, {S_WAVE}, 3
s_cmp_ge_u32 {S_WAVE}, 4
s_cbranch_scc1 L_roleA""")

def nonce(a):
    a(f"""s_waitcnt lgkmcnt(0)
s_mul_i32 s62, s62, 0x9E3779B1
s_add_u32 s62, s62, 0x7F4A7C15
s_mul_i32 s63, s63, 0x85EBCA6D
s_add_u32 s63, s63, 0x165667B1""")

def role_B(a):
    X = 16; ACC = 128; WB = 160; PK = 224
    KVSC = ("sc1", "sc0 sc1", "sc1 nt", "sc0 sc1 nt")[cfg.kvsc]
    SC = 70
    S_XL, S_TILE, S_I = "s77", "s78", "s79"
    TO = 36
    S_WM, S_WO, S_DM, S_DO = "s80", "s81", "s82", "s83"
    a(f"""s_setprio 3
s_mul_i32 {S_J}, {T5}, 7
s_add_u32 {S_J}, {S_J}, {S_LC}
v_lshrrev_b32 v8, 3, v1
v_and_b32 v9, 7, v1
v_mul_u32_u24 v2, 2688, v8
v_bfe_u32 v3, v1, 4, 1
v_lshlrev_b32 v3, 2, v3
v_xor_b32 v3, v9, v3
v_lshl_add_u32 v2, v3, 4, v2
s_lshl_b32 {T0}, {S_J}, 7
s_mul_i32 {T1}, {S_W4}, {8*2688}
s_add_u32 {T0}, {T0}, {T1}
s_add_u32 {T0}, {T0}, 896
v_add_u32 v2, {T0}, v2
s_lshl_b32 {T2}, {S_RR}, 3
s_lshr_b32 {T0}, {0xD66D0770 if cfg.wrot else 0x70707070}, {T2}
s_bfe_u32 {T1}, {T0}, 0x40004
s_and_b32 {T0}, {T0}, 15
s_lshl_b32 {T3}, {S_W4}, 10
s_lshl_b32 {T2}, {T0}, 12
s_add_u32 m0, {T2}, {T3}
s_mul_i32 {S_I}, {T0}, {32*2688}
s_lshl_b32 {T2}, {T1}, 12
s_add_u32 {S_WM}, {T2}, {T3}
s_mul_i32 {S_WO}, {T1}, {32*2688}
s_cmp_ge_u32 {S_RR}, {2 if cfg.wrot else 4}
s_cselect_b32 {T0}, -1, 1
s_lshl_b32 {S_DM}, {T0}, 12
s_mul_i32 {S_DO}, {T0}, {32*2688}
s_cmp_eq_u32 {S_LC}, 7
s_cselect_b32 s30, 0, {448 * 2688}
s_mov_b32 s31, 0x20000
s_waitcnt lgkmcnt(0)
{st0()}
s_mov_b64 s[28:29], s[12:13]""")
    def x_m0(i, j): return f"s_add_u32 m0, {S_XL}, {(i%4)*4096 + j*1024}"
    def x_ld(i, j): return f"buffer_load_dwordx4 v{4+j}, {sX}, s{SC+i} offen{' nt' if cfg.ntb else ''} lds"
    def sc_next(i): return f"s_add_u32 s{SC+i}, s{SC+i-1}, 128\ns_cmp_eq_u32 s{SC+i}, 896\ns_cselect_b32 s{SC+i}, 0, s{SC+i}"
    def w_base(i): return f"v_lshl_add_u32 v12, s{SC+i}, 6, v14\nv_xor_b32 v13, 64, v12"
    def setup_x():
        a(f"""s_mov_b32 s34, {2048*896}
s_mov_b32 s35, 0x20000
s_lshr_b32 {S_R}, {S_XCD}, 1
s_lshl_b32 {S_R}, {S_R}, 2
s_add_u32 {S_R}, {S_R}, {S_RR}
s_lshl_b32 {S_TILE}, {S_R}, 2
s_add_u32 {S_TILE}, {S_TILE}, {S_W4}
v_lshrrev_b32 v10, 4, v1
v_xor_b32 v10, v9, v10
v_xor_b32 v11, 4, v10
v_mul_u32_u24 v12, 896, v8
s_mul_i32 {T2}, {S_TILE}, {32*896}
v_add_u32 v12, {T2}, v12
v_lshl_add_u32 v4, v10, 4, v12
v_lshl_add_u32 v5, v11, 4, v12
v_add_u32 v5, {8*896}, v5
v_add_u32 v6, {16*896}, v4
v_add_u32 v7, {16*896}, v5
s_lshl_b32 {T2}, {S_HH}, 2
s_lshr_b32 s{SC}, {cfg.xrot}, {T2}
s_and_b32 s{SC}, s{SC}, 7
s_lshl_b32 s{SC}, s{SC}, 7
s_lshl_b32 {S_XL}, {S_W4}, 14
s_add_u32 {S_XL}, {S_XL}, {L_X}""")
        a("s_mov_b64 s[32:33], s[10:11]")
    def setup2():
        for i in range(1, 7): a(sc_next(i))
        x_read_addrs(a, 8, "v1", S_XL, 12)
        srd(a, sWS, 20, WS_SIZE)
        a(f"""v_lshrrev_b32 v12, 5, v1
v_lshlrev_b32 v12, 3, v12
v_bfe_u32 v13, v1, 2, 2
v_add_u32 v12, v12, v13
v_bfe_u32 v13, v1, 4, 1
v_lshlrev_b32 v13, 5, v13
v_and_b32 v18, 1, v1
v_bfe_u32 v19, v1, 1, 1
v_lshl_add_u32 v15, v18, 4, v13
v_lshl_add_u32 v15, v19, 3, v15
v_lshl_add_u32 v14, v18, 3, v13
v_lshl_add_u32 v14, v19, 4, v14
s_cmp_eq_u32 {T5}, 1
s_cselect_b64 vcc, -1, 0
v_cndmask_b32 v14, v15, v14, vcc
v_lshl_add_u32 v15, v12, 6, v15
v_add_u32 v15, {L_WQ}, v15
v_bfe_u32 v13, v1, 3, 1
v_lshl_add_u32 v14, v13, 6, v14
v_lshl_add_u32 v14, v12, 7, v14""")
        a(f"""v_lshrrev_b32 v253, 2, v1
v_mul_u32_u24 v253, 2688, v253
v_and_b32 v254, 3, v1
v_lshl_add_u32 v253, v254, 4, v253
s_mul_i32 {S_P0}, {S_H}, 7
s_lshr_b32 {S_P0}, {S_P0}, 1
s_lshl_b32 s80, {S_P0}, 4
s_mul_i32 s81, {S_W4}, {16*2688}
s_add_u32 s80, s80, s81
v_add_u32 v253, s80, v253
s_lshl_b32 s80, {S_W4}, 10
s_add_u32 s80, s80, {L_WQ}
s_and_b32 s81, {S_P0}, 7
s_cmp_gt_u32 s81, 4
s_cselect_b32 s81, 1, 0
s_nop 0""")
        a(w_base(0))
        a(f"v_mov_b32 v250, {L_SYNC}\nv_mov_b32 v251, 1\nv_mov_b32 v246, 0\ns_mov_b32 {S_BAR}, 0")
    VK, VV, VF, VL = 240, 241, 242, 243
    PG = ["s4", "s5", "s6", "s7"]; S_FL = "s8"
    def setup3():
        a(f"""v_lshlrev_b32 v{VL}, 4, v1
s_lshl_b32 {T0}, {S_P0}, 9
v_add_u32 v{VK}, {T0}, v{VL}
s_lshl_b32 {T0}, {S_H}, 11
s_add_u32 {T0}, {T0}, {VOFF}
v_add_u32 v{VV}, {T0}, v{VL}
s_lshr_b32 {T1}, {S_P0}, 3
s_add_u32 {T0}, {S_P0}, 3
s_lshr_b32 {T0}, {T0}, 3
s_sub_u32 {T0}, {T0}, {T1}
v_and_b32 v{VF}, 1, v1
v_mul_u32_u24 v{VF}, {T0}, v{VF}
v_bfe_u32 v18, v1, 1, 1
v_mul_u32_u24 v18, 7, v18
v_add_u32 v{VF}, v{VF}, v18
v_lshlrev_b32 v{VF}, 7, v{VF}
s_lshl_b32 {T0}, {S_W4}, 4
s_add_u32 {T0}, {T0}, {T1}
s_lshl_b32 {T0}, {T0}, 7
s_add_u32 {T3}, {T0}, {FKV}
s_lshr_b32 {T2}, {S_R}, 2
s_lshl_b32 {T2}, {T2}, 3
s_lshr_b32 {T2}, {cfg.gtab if cfg.gtab > 1 else 0x934E39E4}, {T2}
s_mul_i32 {T1}, {S_W4}, {4*TS}
s_add_u32 {T1}, {T1}, {KV}""")
        for p in range(4): a(f"s_add_u32 {T0}, {S_RR}, {p}\ns_and_b32 {T0}, {T0}, 3\ns_mul_i32 s{TO+12+p}, {T0}, {TS}")
        for g in range(4):
            a(f"s_bfe_u32 {T0}, {T2}, {0x20000 + 2*g}\ns_lshl_b32 {PG[g]}, {T0}, 13\ns_add_u32 {PG[g]}, {PG[g]}, {T3}\ns_mul_i32 {T0}, {T0}, {16*TS}\ns_add_u32 {T0}, {T0}, {T1}")
            for p in range(4):
                a(f"s_add_u32 s{TO+4*g+p}, {T0}, " + (f"{p*TS}" if (g == 0 or cfg.kvrot == 0) else f"s{TO+12+p}"))
        a(f"""s_cmp_eq_u32 {S_LC}, 7
s_cselect_b32 {T1}, 15, {S_J}
s_lshl_b32 {T0}, {S_R}, 4
s_add_u32 {T0}, {T0}, {T1}
s_lshl_b32 {T0}, {T0}, 7
s_add_u32 {S_FL}, {T0}, {FKV}""")
    stamp(a, 3, 2)
    XE = cfg.xearly
    def mid():
        stamp(a, 4, 2)
        a("s_barrier")
        if cfg.fine != 2: a(f"s_load_dwordx2 s[62:63], s[20:21], {EPOCH}")
        stamp(a, 5, 2)
    for i in range(14):
        a(f"buffer_load_dwordx4 v2, {sWQKV}, {S_I} offen lds")
        if i == 6:
            if XE:
                setup_x()
                for j in range(4): a(x_m0(0, j)); a("s_nop 0"); a(x_ld(0, j))
                mid()
            a(f"s_mov_b32 m0, {S_WM}\ns_mov_b32 {S_I}, {S_WO}")
            if XE: setup2(); setup3()
        elif i < 13: a(f"s_add_u32 m0, m0, {S_DM}\ns_add_u32 {S_I}, {S_I}, {S_DO}")
        if i == 10 and not XE:
            mid(); setup_x(); setup2(); setup3()
    stamp(a, 8, 2)
    a(f"s_waitcnt vmcnt({cfg.wfair})")
    stamp(a, 10, 2)
    for c in range(XE, 2 + XE):
        for j in range(4): a(x_m0(c, j)); a("s_nop 0"); a(x_ld(c, j))
    stamp(a, 11, 2)
    if cfg.fine == 2: a(f"s_load_dwordx2 s[62:63], s[20:21], {EPOCH}")
    nonce(a)
    a("v_mov_b32 v244, s62\nv_mov_b32 v245, s63\nds_write_b64 v250, v[244:245] offset:64")
    def w_base(i): return f"v_lshl_add_u32 v12, s{SC+i}, 6, v14\nv_xor_b32 v13, 64, v12"
    def wq(i): return f"s_add_u32 m0, s80, {i*4096}\ns_mul_i32 s82, s{SC+i}, {64*21}\nbuffer_load_dwordx4 v253, {sWQKV}, s82 offen lds"
    a(f"s_mov_b32 s30, {448 * 2688}")
    def w_reads(i):
        out = []
        for mm in range(4):
            for ct in range(2):
                for hf in range(2):
                    d = WB + (i % 2) * 32 + mm * 8 + ct * 4 + hf * 2
                    out.append(f"ds_read_b64_tr_b16 {V(d,2)}, v{12+ct} offset:{mm*2048 + hf*512}")
        return out
    def x_reads(i):
        return [f"ds_read_b128 {V(X+16*i+4*mm,4)}, v{8+mm} offset:{(i%4)*4096}" for mm in range(4)]
    a(f"""s_waitcnt vmcnt(8)""")
    stamp(a, 1)
    a(f"s_mov_b64 exec, 1\nds_add_u32 v250, v251\ns_mov_b64 exec, -1")
    for j in range(2): a(x_m0(2 + XE, j)); a("s_nop 0"); a(x_ld(2 + XE, j))
    lwait(a, "v250", 252, 4, 19)
    stamp(a, 3, 1)
    wr0 = w_reads(0)
    for s_ in wr0[:8]: a(s_)
    if not XE: a("s_waitcnt vmcnt(6)")
    for s_ in x_reads(0) + wr0[8:]: a(s_)
    a(f"s_cmp_eq_u32 {T5}, 1\ns_cbranch_scc1 L_kvV")
    for var in ("K", "V"):
        if var == "V": a("L_kvV:")
        late = [f"s_mul_i32 {T4}, {S_TILE}, {TS}", f"s_add_u32 {T4}, {T4}, {KV}", "v_lshlrev_b32 v7, 4, v1"]
        if var == "K":
            late += [f"s_lshl_b32 {T0}, {S_LC}, 12", f"s_add_u32 {T4}, {T4}, {T0}"]
        else:
            late += f"""s_lshl_b32 {T1}, {S_LC}, 6
v_and_b32 v4, 31, v1
v_add_u32 v4, {T1}, v4                    ; col (ct0)
v_add_u32 v5, 32, v4
v_lshrrev_b32 v3, 5, v1
v_lshlrev_b32 v3, 9, v3
v_add_u32 v3, {VOFF}, v3""".split("\n")
            for r in (4, 5):
                late += f"""v_mul_u32_u24 v2, 2341, v{r}
v_lshrrev_b32 v2, 16, v2
v_mul_u32_u24 v2, {2048 - 28*16}, v2
v_lshl_add_u32 v{r}, v{r}, 4, v2
v_add_u32 v{r}, v{r}, v3""".split("\n")
            late += f"""s_lshl_b32 {T1}, {S_LC}, 2
s_lshr_b32 {T2}, 0xDB96420, {T1}
s_and_b32 {T2}, {T2}, 15                  ; first head that ends in this line-column
s_lshr_b32 {T3}, 0x3223222, {T1}
s_and_b32 {T3}, {T3}, 15
s_lshl_b32 {T3}, {T3}, 4
v_lshrrev_b32 v6, 2, v1
v_lshlrev_b32 v6, 9, v6
v_and_b32 v2, 3, v1
v_lshl_add_u32 v6, v2, 4, v6
s_lshl_b32 {T2}, {T2}, 11
s_add_u32 {T2}, {T2}, {VOFF + 28*16}
v_add_u32 v6, {T2}, v6
v_cmp_eq_u32 vcc, 0, v2
v_mov_b32 v2, 0x3f803f80
s_nop 0
v_cndmask_b32 v236, 0, v2, vcc
v_cndmask_b32 v237, 0, v2, vcc
v_cndmask_b32 v238, 0, v2, vcc
v_cndmask_b32 v239, 0, v2, vcc""".split("\n")
        for i in range(7):
            a("s_waitcnt lgkmcnt(0)")
            stamp(a, 4 + i, 1)
            fill = [[] for _ in range(8)]
            pre = [[] for _ in range(8)]
            if i == 0:
                dq = [(c, j) for c in range(1, 7) for j in range(4)]
                issued_q = dq[:6 + 4*XE]; dq = dq[6 + 4*XE:]
            def take(g):
                if dq and dq[0][0] <= i + 4:
                    e = dq.pop(0); issued_q.append(e)
                    pre[g].append(x_m0(*e)); fill[g].insert(0, x_ld(*e))
            had = bool(dq)
            if i + 1 < 7:
                wr = w_reads(i + 1)
                fill[0] += [w_base(i + 1)] + wr[0:3]
                fill[1] += wr[3:8]; fill[2] += wr[8:12]; fill[3] += wr[12:16]
                for g in ((0, 1, 2, 3, 4) if i == 0 and not XE else (0,)): take(g)
                if i == 4:
                    fill[1].append("s_cmp_eq_u32 s81, 1\ns_cselect_b64 exec, -1, 0\n" + "\n".join(wq(q) for q in range(cfg.wqe)) + "\ns_mov_b64 exec, -1")
                    issued_q += [(99, q) for q in range(cfg.wqe)]
                last = max(q for q, e in enumerate(issued_q) if e[0] == i + 1)
                fill[4] += [f"s_waitcnt vmcnt({len(issued_q) - 1 - last})"] + x_reads(i + 1)
            for g in range(5, 8): take(g)
            if i == 4:
                assert not had
                fill[0].insert(0, "s_mov_b64 exec, 1\nds_add_u32 v250, v251 offset:8\ns_mov_b64 exec, -1")
            if not had:
                for g in range(5 if i < 6 else 0, 8):
                    for q in range(6):
                        if late: fill[g].append(late.pop(0))
            for mm in range(4):
                for ct in range(2):
                    xr = X + 16*i + 4*mm; wr_ = WB + (i % 2) * 32 + mm * 8 + ct * 4
                    c = None if (i == 0 and mm == 0) else ACC + 16*ct
                    for s_ in pre[2*mm + ct]: a(s_)
                    a(mfma(ACC + 16*ct, wr_, xr, c) if var == "K" else mfma(ACC + 16*ct, xr, wr_, c))
                    for s_ in fill[2*mm + ct]: a(s_)
        assert not late
        stamp(a, 11, 1)
        a(f"s_cmp_eq_u32 {S_LC}, 7\ns_cbranch_scc1 L_kvnone")
        if var == "V":
            a(f"s_bfm_b64 exec, {T3}, 0\nbuffer_store_dwordx4 v[236:239], v6, {sWS}, {T4} offen sc1\ns_mov_b64 exec, -1")
        for ct in range(2):
            for j in range(2):
                for q in range(4):
                    z = 8*ct + 4*j + q
                    a(f"v_cvt_pk_bf16_f32 v{PK+z}, v{ACC+2*z}, v{ACC+2*z+1}")
                if var == "K":
                    a(f"buffer_store_dwordx4 {V(PK+8*ct+4*j,4)}, v7, {sWS}, {T4} offen offset:{ct*2048+j*1024} {KVSC}")
                else:
                    a(f"buffer_store_dwordx4 {V(PK+8*ct+4*j,4)}, v{4+ct}, {sWS}, {T4} offen offset:{j*1024} {KVSC}")
        if var == "K": a("s_branch L_kvdone\nL_kvnone:\ns_waitcnt vmcnt(0)\ns_branch L_kvdone")
    a("L_kvdone:\ns_mov_b64 exec, 1\nds_add_u32 v250, v251\ns_mov_b64 exec, -1")
    stamp(a, 2)
    NB = cfg.nbuf
    Q = 16; O = 48; SA = 112; KVB = 144; P0 = KVB + 16*NB; P1 = P0 + 4
    assert P1 + 4 <= 240
    QP = 224
    S_LD = "s9"
    def kv_loads(t, so=None):
        b = KVB + 16 * (t % NB); so = so or f"s{TO + (t if not cfg.hack or t < cfg.hack else t % cfg.hack)}"
        return [f"buffer_load_dwordx4 {V(b+4*j,4)}, v{VK if j < 2 else VV}, {sWS}, {so} offen offset:{(j%2)*1024} sc1" for j in range(4)]
    PV = 254; QA = (4, 6, 8, 9)
    pl = poll_issue(f"v{VF}", PG[0], PV, 4)
    QW = 176
    def qsync(target):
        a("s_mov_b64 exec, 1\nds_add_u32 v250, v251 offset:4\ns_mov_b64 exec, -1")
        lwait(a, "v250", 5, target, 14, off=4)
    def qmma(c0, c1, issue, check):
        rd = [f"ds_read_b64_tr_b16 {V(QW+(i%3)*16+mm*4+hf*2,2)}, v15 offset:{i*4096+mm*1024+hf*256}" for i in range(c0, c1) for mm in range(4) for hf in range(2)]
        iss = min(len(rd), 12)
        for s_ in rd[:iss]: a(s_)
        for m in range(4 * (c1 - c0)):
            a(f"s_waitcnt lgkmcnt({iss - (2*m + 2)})")
            a(mfma(ACC, QW + ((c0 + m // 4) % 3) * 16 + 4*(m % 4), X + 16*c0 + 4*m, None if c0 + m == 0 else ACC))
            for s_ in rd[iss:iss+2]: a(s_)
            iss = min(len(rd), iss + 2)
            if m == issue: a(pl)
            if m == check:
                Lf, Lg = a.lab("pf"), a.lab("pg")
                a(f"s_waitcnt vmcnt(0)\n{poll_check(PV, 4)}\ns_cbranch_scc1 {Lf}\ns_mov_b32 {S_LD}, 1")
                for t in range(2):
                    for s_ in kv_loads(t): a(s_)
                a(f"s_branch {Lg}\n{Lf}:\n{pl}\n{Lg}:")
    S_OB, S_FO, S_LO, S_HI, S_CL, S_M0 = "s10", "s11", "s12", "s13", "s14", "s[76:77]"
    def addrs():
        a(f"""s_lshl_b32 {S_OB}, {S_TILE}, 4
s_add_u32 {S_OB}, {S_OB}, {S_H}
s_lshl_b32 {S_OB}, {S_OB}, 11
s_add_u32 {S_OB}, {S_OB}, {OBUF}
s_lshl_b32 {S_FO}, {S_R}, 4
s_add_u32 {S_FO}, {S_FO}, {S_H}
s_lshl_b32 {S_FO}, {S_FO}, 7
s_add_u32 {S_FO}, {S_FO}, {FO}
s_mov_b32 {S_LO}, {lit(2.0**-40)}
s_mov_b32 {S_HI}, {lit(2.0**30)}
s_movk_i32 {S_CL}, 0x1f8
s_cmp_eq_u32 {S_W4}, 0
s_cselect_b64 {S_M0}, 1, 0
v_mov_b32 v2, v250
v_mov_b32 v3, 1
v_mov_b32 v7, v{VL}
v_mov_b32 v248, {lit(28 ** -0.5 * math.log2(math.e))}
v_mov_b32 v249, v248""")
        for i in range(4):
            a(f"""s_add_u32 {T0}, {S_W4}, {i+1}
s_and_b32 {T0}, {T0}, 3
s_lshl_b32 {T1}, {T0}, 11
s_add_u32 {T1}, {T1}, {L_Q}
v_add_u32 v{QA[i]}, {T1}, v7
s_mul_i32 {T0}, {T0}, 12288
s_add_u32 {T0}, {T0}, {(i%3)*4096 + L_RED}
v_add_u32 v{10+i}, {T0}, v7""")
    def publish(n):
        a(f"s_waitcnt vmcnt({n})")
        publish_wg(a, "v250", "v251", 16, 5, S_FL, 244)
        stamp(a, 3)
        a("s_waitcnt vmcnt(1)")
    E = cfg.wqe
    a(f"s_mov_b32 {S_LD}, 0\ns_cmp_eq_u32 s81, 1\ns_cbranch_scc1 L_qtwo")
    S_M0 = "s[82:83]" if cfg.xafirst else S_M0
    if cfg.xafirst:
        addrs()
        if cfg.wqdel: a(f"s_sleep {cfg.wqdel}")
        for i in range(7): a(wq(i).replace("s82", T0))
    else:
        for i in range(7): a(wq(i))
        addrs()
    publish(7)
    qsync(4)
    stamp(a, 4)
    qmma(0, 7, cfg.m1, cfg.m2)
    a("s_branch L_qdone\nL_qtwo:\ns_waitcnt vmcnt(4)")
    qsync(4)
    for i in range(E, 7): a(wq(i))
    qmma(0, E, -1, -1)
    addrs()
    publish(7 - E)
    qsync(8)
    stamp(a, 4)
    qmma(E, 7, 0, 4 * (7 - E) - 1)
    a("L_qdone:")
    stamp(a, 5)
    a(f"s_bitcmp1_b32 {S_H}, 0")
    for hf in range(2):
        for q in range(8*hf, 8*hf+8, 2): pk2(a, "mul", ACC+q, ACC+q, 248, scalar=cfg.nopk & 1)
        for q in range(4*hf, 4*hf+4): a(f"v_cvt_pk_bf16_f32 v{QP+q}, v{ACC+2*q}, v{ACC+2*q+1}")
        if hf == 0: a(f"s_cselect_b32 exec_lo, -1, 0\ns_mov_b32 exec_hi, 0\nv_mov_b32 v{QP}, 0\nv_mov_b32 v{QP+1}, 0\ns_mov_b64 exec, -1")
        else: a(f"s_cselect_b32 exec_hi, 0, -1\ns_mov_b32 exec_lo, 0\nv_mov_b32 v{QP+6}, 0\nv_mov_b32 v{QP+7}, 0\ns_mov_b64 exec, -1")
        a(f"ds_write_b128 v9, {V(QP+4*hf,4)} offset:{1024*hf}")
    a(f"""s_mov_b64 exec, 1
ds_add_u32 v2, v3
s_mov_b64 exec, -1
s_cmp_eq_u32 {S_LD}, 1
s_cbranch_scc1 L_kvloaded
s_waitcnt vmcnt(0)
{poll_check(PV, 4)}
s_cbranch_scc0 L_kvready""")
    poll(a, f"v{VF}", PG[0], PV, 4, 1, sleep=2)
    a("L_kvready:")
    for t in range(2):
        for s_ in kv_loads(t): a(s_)
    a("L_kvloaded:\ns_mov_b64 exec, 1\nds_add_u32 v2, v3 offset:12\ns_mov_b64 exec, -1")
    stamp(a, 6)
    if cfg.fine == 6:
        a(f"s_lshl_b32 {T0}, {S_LD}, 10\ns_add_u32 s{STAMP0+1}, s{STAMP0}, {T0}\ns_sub_u32 {T0}, {cfg.poll_limit}, {S_TO}\ns_cmp_gt_u32 {T0}, 100\ns_cselect_b32 {T0}, -1, {T0}\ns_add_u32 {T0}, {T0}, 1\ns_lshl_b32 {T0}, {T0}, 10\ns_add_u32 s{STAMP0+2}, s{STAMP0}, {T0}")
    lwait(a, "v2", 5, 12, 15)
    a(f"s_mov_b32 {S_BAR}, 12")
    for i in range(4):
        a(f"ds_read_b128 {V(Q+8*i,4)}, v{QA[i]}\nds_read_b128 {V(Q+8*i+4,4)}, v{QA[i]} offset:1024")
    stamp(a, 7)
    a("s_waitcnt vmcnt(6) lgkmcnt(6)\ns_setprio 0")
    if cfg.padmid: padto(a, cfg.padmid)
    stamp(a, 8)
    a(mfma(SA, KVB, Q)); a(mfma(SA, KVB + 4, Q + 4, SA))
    a("s_waitcnt vmcnt(4) lgkmcnt(0)\ns_nop 9\n.p2align 3")
    sched = {}
    issued = 2
    for t in range(16):
        for i in (1, 2):
            if (i == 1 or t % cfg.ramp == 0) and issued <= min(15, t + NB - 1):
                sched[(t, i)] = issued; issued += 1
    first = {g: min(k for k, v in sched.items() if v == 4*g) for g in (1, 2, 3)}
    pollat = {(k[0] - 1, 0): g for g, k in first.items()}
    vq = [("t", 1)] * 4
    def after(tag): return len(vq) - 1 - max(q for q, e in enumerate(vq) if e == tag)
    assert NB >= 5
    units = [(t, i) for t in range(12) for i in range(4)] + [(t, i) for i in range(4) for t in range(12, 16)]
    firstuse = {}
    for n, (t, i) in enumerate(units): firstuse.setdefault(t, n)
    waitat = {n - 2: t for t, n in firstuse.items() if t > 0}
    kb = lambda tt: KVB + 16 * (tt % NB)
    redw = lambda i, q: f"ds_write_b128 v{10+i}, {V(O+16*i+4*q,4)} offset:{q*1024}"
    for n, (t, i) in enumerate(units):
        if n % 8 == 0 and n: stamp(a, n // 8, 3)
        cur = SA + 16 * (n % 2); nxt = SA + 16 * ((n + 1) % 2)
        ms = [None] * 4
        if n < 63:
            tn, inx = units[n + 1]
            ms[0] = mfma(nxt, kb(tn), Q + 8*inx); ms[1] = mfma(nxt, kb(tn) + 4, Q + 8*inx + 4, nxt)
        if n > 0:
            tp, ip = units[n - 1]
            ms[2] = mfma(O + 16*ip, kb(tp) + 12, P1, O + 16*ip)
        ms[3] = mfma(O + 16*i, kb(t) + 8, P0, None if t == 0 else O + 16*i)
        side = [None] * 4
        key = (n // 4, n % 4)
        if key in sched:
            assert n < 48
            tl = sched[key]
            if tl % 4 == 0:
                g = tl // 4
                a(f"s_waitcnt vmcnt({after(('p', g))})\nv_cmp_ne_u64 vcc, {S_NONCE}, v[14:15]\ns_cbranch_vccnz L_gate{g}\nL_gated{g}:\ns_nop 0")
            side = kv_loads(tl); vq += [("t", tl)] * 4
        if key in pollat:
            g = pollat[key]
            side[0] = f"buffer_load_dwordx2 v[14:15], v{VF}, {sWS}, {PG[g]} offen sc1"; vq.append(("p", g))
        sig = "\ns_mov_b64 exec, 1\nds_add_u32 v2, v3\ns_mov_b64 exec, -1"
        rdr = lambda q: f"ds_read_b128 {V(O+4*q,4)}, v13 offset:{q*1024}"
        if 53 <= n <= 56: side[1] = redw(0, n - 53)
        if n in (57, 58): side[1] = redw(1, 2*(n - 57)); side[3] = redw(1, 2*(n - 57) + 1) + (sig if n == 58 else "")
        if n == 60: side[1] = "ds_read_b32 v5, v2"
        if n == 61:
            a(f"s_waitcnt lgkmcnt(0)\nv_readfirstlane_b32 {T0}, v5\ns_cmp_ge_u32 {T0}, 16\ns_cbranch_scc0 L_redw\nL_redd:")
        if n in (61, 62):
            k_ = n - 61
            side = [redw(2, 2*k_), rdr(4*k_) + "\n" + rdr(4*k_+1), redw(2, 2*k_+1) + (sig if k_ else ""), rdr(4*k_+2) + "\n" + rdr(4*k_+3)]
        if n == 63: side[2] = "ds_read2_b32 v[4:5], v2 offset0:34 offset1:0"
        if n == cfg.bhi: side[0] = "s_setprio 3\ns_nop 0" + ("\n" + side[0] if side[0] else "")
        for p in range(4):
            if ms[p]: a(ms[p])
            if side[p]: a(side[p])
            for e in range(4):
                if n in waitat and p == 3 and e == 3:
                    a(f"s_waitcnt vmcnt({after(('t', waitat[n]))})\nv_exp_f32_e64 v{cur+4*p+e}, v{cur+4*p+e}")
                else:
                    a(f"v_exp_f32 v{cur+4*p+e}, v{cur+4*p+e}")
            pk = (P0, P0 + 2, P1, P1 + 2)[p]
            a(f"v_cvt_pk_bf16_f32 v{pk}, v{cur+4*p}, v{cur+4*p+1}\nv_cvt_pk_bf16_f32 v{pk+1}, v{cur+4*p+2}, v{cur+4*p+3}")
    a(f"s_waitcnt lgkmcnt(0)\nv_readfirstlane_b32 {T0}, v5\nv_readfirstlane_b32 {T1}, v4")
    a(mfma(O + 48, kb(15) + 12, P1, O + 48))
    a(f"s_add_u32 {T1}, {T1}, {12 if cfg.ohint and not cfg.noA else 20}\ns_min_u32 {T0}, {T0}, {T1}\ns_cmp_ge_u32 {T0}, 20\ns_cbranch_scc0 L_redw2\nL_redd2:")
    for q in range(8, 12): a(f"ds_read_b128 {V(O+4*q,4)}, v13 offset:{q*1024}")
    a("s_mov_b64 exec, 1\nds_add_u32 v2, v3")
    if cfg.ohint: a(f"s_mov_b64 exec, {S_M0}\nbuffer_store_dwordx2 v[244:245], v246, {sWS}, {S_FO} offen sc1")
    a("s_mov_b64 exec, -1")
    stamp(a, 9)
    OO = O + 48
    sc_ = cfg.nopk & 2
    for q in range(0, 16, 2): pk2(a, "add", O+q, O+q, O+16+q, scalar=sc_)
    for q in range(0, 16, 2): pk2(a, "add", OO+q, OO+q, O+q, scalar=sc_)
    a("s_waitcnt lgkmcnt(1)")
    for q in (12, 0, 2, 4, 6, 8, 10, 14): pk2(a, "add", OO+q, OO+q, O+32+q, scalar=sc_)
    a(f"""v_mov_b32 v10, v{OO+12}
v_mov_b32 v11, v{OO+12}
v_mul_f32 v12, v{OO}, v{OO+1}
v_mul_f32 v13, v{OO+2}, v{OO+3}
v_permlane32_swap_b32 v10, v11
v_fma_f32 v12, v{OO+4}, v{OO+5}, v12
v_fma_f32 v13, v{OO+6}, v{OO+7}, v13
v_rcp_f32 v10, v11
v_fma_f32 v12, v{OO+8}, v{OO+9}, v12
v_fma_f32 v13, v{OO+10}, v{OO+11}, v13
v_cmp_le_f32 s[70:71], {S_LO}, v11
v_fma_f32 v12, v{OO+12}, v{OO+13}, v12
v_fma_f32 v13, v{OO+14}, v{OO+15}, v13
v_cmp_ge_f32 s[72:73], {S_HI}, v11
v_add_f32 v12, v12, v13
v_cmp_class_f32 vcc, v12, {S_CL}
s_and_b64 s[70:71], s[70:71], s[72:73]
s_and_b64 vcc, vcc, s[70:71]
s_cmp_eq_u64 vcc, exec""")
    if cfg.force_fb: a("s_cmp_eq_u32 0, 1")
    a(f"s_cbranch_scc0 L_fallback\nL_fbdone:\nv_mov_b32 v11, v10")
    for hf in range(2):
        for q in range(8*hf, 8*hf+8, 2): pk2(a, "mul", OO+q, OO+q, 10, scalar=sc_)
        for q in range(4*hf, 4*hf+4): a(f"v_cvt_pk_bf16_f32 v{O+q}, v{OO+2*q}, v{OO+2*q+1}")
        if hf: a(f"s_mov_b32 exec_lo, 0\nv_mov_b32 v{O+6}, 0\ns_mov_b32 exec_lo, -1")
        if cfg.ohint: a(f"v_min_u32 v{O+4*hf}, -2, v{O+4*hf}")
        a(f"buffer_store_dwordx4 {V(O+4*hf,4)}, v7, {sWS}, {S_OB} offen offset:{1024*hf} sc1")
    stamp(a, 10)
    S_BP, S_CNT, S_DT = "s70", "s71", "s72"
    GS = 144; GC = 176; ZR = 196; G = 16; OL = 196; AR = 128
    S_O0, S_O1, S_FH, S_RT, S_CLM = "s73", "s74", "s75", "s76", "s77"
    a(f"""s_lshl_b32 {S_BP}, {S_XCD}, 3
s_lshr_b32 {T0}, {S_IDX}, 2
s_add_u32 {S_BP}, {S_BP}, {T0}
s_and_b32 {T1}, {S_IDX}, 3
s_cmp_ge_u32 {T1}, 2
s_cselect_b32 {S_CNT}, 3, 4
s_lshl_b32 {S_DT}, {T1}, 2
s_cmp_eq_u32 {T1}, 3
s_cselect_b32 {S_DT}, 11, {S_DT}
s_add_u32 {S_DT}, {S_DT}, {S_W4}
s_cmp_ge_u32 {S_W4}, {S_CNT}
s_cbranch_scc1 L_bend
s_setprio {cfg.fprio}
v_bfe_u32 v5, v1, 2, 1
v_lshlrev_b32 v5, 4, v5
v_bfe_u32 v6, v1, 3, 2
v_lshl_add_u32 v5, v6, 2, v5
v_and_b32 v6, 3, v1
v_add_u32 v5, v5, v6
s_lshl_b32 {T0}, {S_DT}, 5
v_add_u32 v5, {T0}, v5                    ; d
v_lshlrev_b32 v9, 31, v5
v_xor_b32 v9, 0.5, v9                     ; 0.5*(-1)^d
v_cvt_f32_u32 v5, v5
v_mul_f32 v5, {lit(1/448)}, v5
v_lshrrev_b32 v4, 5, v1
v_cvt_f32_u32 v6, v4
v_mul_f32 v6, v5, v6
v_mul_f32 v6, 4.0, v6
v_mul_f32 v{GC}, {lit(16.0)}, v5
v_cos_f32 v{GC}, v{GC}""")
    for j in range(16): a(f"v_fmamk_f32 v{GS+j}, v5, {lit(float(16*(j//8) + 8*((j%8)//4) + j%4))}, v6")
    a(f"v_add_f32 v{GC}, v{GC}, v{GC}")
    for j in range(16): a(f"v_sin_f32_e64 v{GS+16+j}, -v{GS+j}\nv_cos_f32 v{GS+j}, v{GS+j}")
    a(f"v_mov_b32 v{GC+1}, v{GC}")
    def ggen(q0, q1):
        a(".p2align 3")
        for q in range(q0, q1):
            rho = q % 2; st = q // 2
            cur = GS + 16*rho + 8*(st % 2); oth = GS + 16*rho + 8*((st + 1) % 2); gp = G + 4*q
            if st >= 2:
                for z in range(0, 8, 2):
                    pk2(a, "fma", cur+z, GC, oth+z, cur+z, neg="2", scalar=cfg.nopk & 8)
            for z in range(4): a(f"v_cvt_pk_bf16_f32 v{gp+z}, v{cur+2*z}, v{cur+2*z+1}")
            if st == 0:
                a(f"s_mov_b32 exec_hi, 0\nv_cvt_pk_bf16_f32 v{gp}, {'v9' if rho else '0.5'}, v{cur+1}\ns_mov_b32 exec_hi, -1")
    ggen(0, 28)
    stamp(a, 11)
    srd(a, sOUT, 16, 2048 * 1792)
    a(f"""v_add_u32 v8, {L_ZB}, v7
s_mul_i32 {T4}, {S_BP}, 1792
s_lshl_b32 {T1}, {S_DT}, 6
s_add_u32 {T4}, {T4}, {T1}""")
    if cfg.cost & 2:
        a(f"""s_lshl_b32 {T1}, {S_W4}, 11
s_add_u32 {T1}, {T1}, {L_Q}
v_and_b32 v10, 31, v1
v_lshlrev_b32 v10, 6, v10
v_lshl_add_u32 v10, v4, 5, v10
v_add_u32 v10, {T1}, v10
v_add_u32 v11, {T1}, v7
v_lshrrev_b32 v6, 2, v1
v_mul_u32_u24 v6, {64*1792}, v6
v_and_b32 v12, 3, v1
v_lshl_add_u32 v6, v12, 4, v6
s_add_u32 {T3}, {T4}, {16*64*1792}""")
    else:
        a(f"v_and_b32 v6, 31, v1\nv_mul_u32_u24 v6, {64*1792}, v6\nv_lshl_add_u32 v6, v4, 5, v6")
    lwait(a, "v2", 5, 4, 17, off=132)
    stamp(a, 13)
    order = [4*(q//4) + 2*(q % 2) + ((q//2) % 2) for q in range(28)]
    for q in range(8): a(f"ds_read_b128 {V(ZR+4*q,4)}, v8 offset:{order[q]*1024}")
    for p in range(28):
        a(f"s_waitcnt lgkmcnt({min(7, 27-p)})")
        a(mfma(AR, G + 4*p, ZR + 4*(p % 8), None if p == 0 else AR))
        if p + 8 < 28: a(f"ds_read_b128 {V(ZR+4*(p%8),4)}, v8 offset:{order[p+8]*1024}")
    osc = ("", " sc1", " nt", " sc0 sc1", " sc1 nt")[cfg.outsc]
    if cfg.odefer and not cfg.noA: lwait(a, "v2", 5, 4, 36, sleep=2, off=20)
    for hf in range(2):
        for q in range(4*hf, 4*hf+4): a(f"v_cvt_pk_bf16_f32 v{GS+q}, v{AR+2*q}, v{AR+2*q+1}")
        if cfg.cost & 2: a(f"ds_write_b128 v10, {V(GS+4*hf,4)} offset:{16*hf}")
        else: a(f"buffer_store_dwordx4 {V(GS+4*hf,4)}, v6, {sOUT}, {T4} offen offset:{16*hf}{osc}")
    if cfg.cost & 2:
        a(f"""ds_read_b128 {V(GS+8,4)}, v11
ds_read_b128 {V(GS+12,4)}, v11 offset:1024
s_waitcnt lgkmcnt(1)
buffer_store_dwordx4 {V(GS+8,4)}, v6, {sOUT}, {T4} offen{osc}
s_waitcnt lgkmcnt(0)
buffer_store_dwordx4 {V(GS+12,4)}, v6, {sOUT}, {T3} offen{osc}""")
    a("L_bend:")
    stamp(a, 12)
    dump_stamps(a, 240)
    a("s_endpgm")
    a("L_redw:")
    lwait(a, "v2", 5, 16, 2)
    a("s_branch L_redd\nL_redw2:")
    lwait(a, "v2", 5, 20, 2)
    if cfg.ohint and not cfg.noA: lwait(a, "v2", 5, 8, 39, sleep=1, off=136)
    a("s_branch L_redd2")
    for g in (1, 2, 3):
        a(f"L_gate{g}:")
        poll(a, f"v{VF}", PG[g], 14, 4, 25, sleep=2)
        a(f"s_branch L_gated{g}")
    a("L_fallback:")
    QO = Q + 24; KB = KVB; M = 15; S_SO = "s70"
    a(f"v_mov_b32 v{M}, 0xff800000\ns_mov_b32 {S_SO}, {KV}\nL_fb1:")
    for s_ in kv_loads(0, S_SO)[:2]: a(s_)
    a(f"s_add_u32 {S_SO}, {S_SO}, {TS}\ns_waitcnt vmcnt(0)")
    a(mfma(SA, KB, QO)); a(mfma(SA, KB + 4, QO + 4, SA))
    for q in range(0, 16, 2): a(f"v_max3_f32 v{M}, v{M}, v{SA+q}, v{SA+q+1}")
    a(f"""s_cmp_lt_u32 {S_SO}, {KV + 64*TS}
s_cbranch_scc1 L_fb1
v_mov_b32 v14, v{M}
v_permlane32_swap_b32 v14, v{M}
v_max_f32 v{M}, v14, v{M}
s_mov_b32 {S_SO}, {KV}""")
    for q in range(16): a(f"v_mov_b32 v{OO+q}, 0")
    a("L_fb2:")
    for s_ in kv_loads(0, S_SO): a(s_)
    a(f"s_add_u32 {S_SO}, {S_SO}, {TS}\ns_waitcnt vmcnt(0)")
    a(mfma(SA, KB, QO)); a(mfma(SA, KB + 4, QO + 4, SA))
    for q in range(16): a(f"v_sub_f32 v{SA+q}, v{SA+q}, v{M}")
    for q in range(16): a(f"v_exp_f32 v{SA+q}, v{SA+q}")
    for q in range(8): a(f"v_cvt_pk_bf16_f32 v{P0+q}, v{SA+2*q}, v{SA+2*q+1}")
    a(mfma(OO, KB + 8, P0, OO)); a(mfma(OO, KB + 12, P1, OO))
    a(f"""s_cmp_lt_u32 {S_SO}, {KV + 64*TS}
s_cbranch_scc1 L_fb2
v_mov_b32 v10, v{OO+12}
v_mov_b32 v11, v{OO+12}
v_permlane32_swap_b32 v10, v11
v_rcp_f32 v10, v11
s_branch L_fbdone""")

def role_A(a):
    FB = 16; GS0 = 48; M = 72; F = 88; ACC = 200; TMP = 216
    S_BP = "s78"
    S_CG, S_CNT, S_CB, S_DT, S_TASK, S_K1 = "s79", "s80", "s81", "s82", "s83", "s73"
    S_B, S_KT16 = S_BP, S_DT
    (PN, _, _, P_TST, P_W, P_F1, P_TLD, P_TBW, P_TBR, P_TTW, P_TTR, P_UST, P_F2, P_WOD, P_WOR, P_WOR2,
     P_ZW0, P_ZW1, P_PF, P_BC, P_PS, _, P_LS, P_DUM) = range(232, 256)
    sc = 1.0 / (2048 * 448)
    def albar(code): lbar(a, "v14", "v15", P_LS, code, sleep=1)
    def burst(items, th):
        a("s_setprio 0")
        for q, it in enumerate(items):
            if q >= th: a(f"s_waitcnt vmcnt({th-1})")
            a(it)
        a(f"s_setprio {cfg.aprio}")
    SB = "s[74:75]"
    def stage_arrive(k):
        L = a.lab("arr")
        a(f"""s_waitcnt vmcnt(0)
s_mov_b64 exec, 1
ds_add_rtn_u32 v{P_LS}, v14, v15 offset:8
s_mov_b64 exec, -1
s_waitcnt lgkmcnt(0)
v_readfirstlane_b32 {T0}, v{P_LS}
s_cmp_eq_u32 {T0}, {4*k+3}
s_cbranch_scc0 {L}
s_mov_b32 {T0}, 1
s_lshl_b32 {T1}, {S_XCD}, 7
s_add_u32 {T1}, {T1}, {k*1024}
s_atomic_add {T0}, {SB}, {T1} glc
s_waitcnt lgkmcnt(0)
s_sub_u32 {T0}, {T0}, s62
s_cmp_eq_u32 {T0}, 31
s_cbranch_scc0 {L}
s_mov_b32 {T1}, {FA1 + 2048 + k*8192}
s_mov_b64 exec, {-1 if cfg.allpoll else 0xffff}
buffer_atomic_add v15, v{P_PF}, {sWS}, {T1} offen sc1
s_mov_b64 exec, -1
{L}:""")
    def stage_wait(k, pre):
        if cfg.ko & 4:
            a("s_waitcnt lgkmcnt(0)"); return
        L, L2, L3 = a.lab("sw"), a.lab("sw"), a.lab("sw")
        if not cfg.allpoll: a(f"s_cmp_eq_u32 {S_W4}, 0\ns_cbranch_scc0 {L2}")
        a(f"""s_and_b32 {T1}, s2, 15
s_lshl_b32 {T2}, {S_W4}, 4
s_add_u32 {T1}, {T1}, {T2}
s_lshl_b32 {T1}, {T1}, 7
s_add_u32 {T1}, {T1}, {2048 + k*8192}
s_add_u32 {T2}, s62, 8
s_mov_b32 {S_TO}, {cfg.poll_limit}
s_waitcnt lgkmcnt(0)
s_sleep {pre}
{L}:
s_mov_b32 {T0}, 0
s_atomic_or {T0}, {SB}, {T1} glc
s_waitcnt lgkmcnt(0)
s_cmp_eq_u32 {T0}, {T2}
s_cbranch_scc1 {L}d
s_sleep {cfg.bsleep}
s_sub_u32 {S_TO}, {S_TO}, 1
s_cbranch_scc0 {L}
s_mov_b32 {S_TO}, 32
s_branch L_fail
{L}d:""")
        if cfg.allpoll: return
        a(f"s_mov_b64 exec, 1\nds_add_u32 v14, v15 offset:12\ns_mov_b64 exec, -1\ns_branch {L3}\n{L2}:")
        lwait(a, "v14", P_LS, k + 1, 33, sleep=cfg.lsl, off=12)
        a(f"{L3}:")
    def pace():
        if cfg.pace: a(f"s_sleep {cfg.pace}")
    a(f"""L_roleA:
v_mov_b32 v3, 0
v_mov_b32 v2, {L_SYNC}
ds_write2_b32 v2, v3, v3 offset0:0 offset1:32
ds_write2_b32 v2, v3, v3 offset0:1 offset1:2
ds_write2_b32 v2, v3, v3 offset0:3 offset1:33
ds_write2_b32 v2, v3, v3 offset0:4 offset1:34
ds_write2_b32 v2, v3, v3 offset0:5 offset1:35
ds_write2_b32 v2, v3, v3 offset0:8 offset1:9
ds_write2_b32 v2, v3, v3 offset0:10 offset1:11
s_setprio {cfg.aprio}
s_mov_b32 {S_BAR}, 0
s_lshl_b32 {S_BP}, {S_XCD}, 3
s_lshr_b32 {T0}, {S_IDX}, 2
s_add_u32 {S_BP}, {S_BP}, {T0}
s_and_b32 {S_CG}, {S_IDX}, 3
s_cmp_ge_u32 {S_CG}, 2
s_cselect_b32 {S_CNT}, 3, 4
s_lshl_b32 {S_CB}, {S_CG}, 2
s_cmp_eq_u32 {S_CG}, 3
s_cselect_b32 {S_CB}, 11, {S_CB}
s_add_u32 {S_DT}, {S_CB}, {S_W4}
v_and_b32 v2, 31, v1                      ; v2 = lane%32
v_lshrrev_b32 v3, 5, v1                   ; v3 = half
v_cvt_f32_u32 v4, v3
s_waitcnt lgkmcnt(0)
{st0()}""")
    if cfg.touch:
        tl = [["s[10:11], 0", "s[4:5], 0", "s[6:7], 0"], ["s[20:21], s76", "s[8:9], 0", "s[14:15], 0"],
              ["s[20:21], s77", "s[16:17], 0", "s[16:17], s76"], ["s[20:21], s74", "s[20:21], s75"]]
        a(f"s_cmp_ge_u32 {S_IDX}, {cfg.touch}\ns_cbranch_scc1 L_tch\ns_mov_b32 s76, 0x200000\ns_mov_b32 s77, 0x600000\ns_mov_b32 s74, 0x400000\ns_mov_b32 s75, 0x800000")
        for w in range(4):
            a(f"s_cmp_lg_u32 {S_W4}, {w}\ns_cbranch_scc1 L_tch{w}")
            for t_ in tl[w]: a(f"s_load_dword s72, {t_}")
            a(f"L_tch{w}:")
        a("L_tch:")
    def angles(n, vstep, vbase, offs, dst=TMP):
        for j in range(n): a(f"v_fmamk_f32 v{dst+j}, {vstep}, {lit(float(offs[j]))}, {vbase}")
    def gen_F():
        A0 = TMP; A1 = TMP + 8; C2 = TMP + 16
        a(f"""v_and_b32 v5, 15, v1
s_lshl_b32 {T0}, {S_KT16}, 4
v_add_u32 v5, {T0}, v5                    ; k
v_bfe_u32 v6, v1, 4, 1
v_lshl_add_u32 v7, v5, 1, v6
v_cmp_eq_u32 vcc, 1, v7
v_mov_b32 v7, 224
v_cndmask_b32 v5, v5, v7, vcc
v_cndmask_b32 v6, v6, 0, vcc
v_cvt_f32_u32 v5, v5
v_cvt_f32_u32 v6, v6
v_mul_f32 v5, {lit(1/448)}, v5            ; kf
v_mul_f32 v6, {lit(0.25)}, v6
v_mul_f32 v7, v5, v4
v_fmamk_f32 v6, v7, {lit(8.0)}, v6
v_mul_f32 v{C2}, {lit(16.0)}, v5
v_cos_f32 v{C2}, v{C2}""")
        angles(16, "v5", "v6", [j % 8 + 16 * (j // 8) for j in range(16)])
        a(f"v_add_f32 v{C2}, v{C2}, v{C2}")
        for j in range(16): a(f"v_cos_f32 v{A0+j}, v{A0+j}")
        a(f"v_mov_b32 v{C2+1}, v{C2}\ns_barrier\n.p2align 3")
        for m in range(28):
            cur = A0 if m % 2 == 0 else A1; oth = A1 if m % 2 == 0 else A0
            if m >= 2:
                for q in range(0, 8, 2):
                    a(f"v_pk_fma_f32 {V(cur+q,2)}, {V(C2,2)}, {V(oth+q,2)}, {V(cur+q,2)} neg_lo:[0,0,1] neg_hi:[0,0,1]")
            for q in range(4): a(f"v_cvt_pk_bf16_f32 v{F+4*m+q}, v{cur+2*q}, v{cur+2*q+1}")
    def gen_M():
        a(f"""v_cvt_f32_u32 v5, v2
s_and_b32 {T0}, {S_W4}, 1
s_lshl_b32 {T0}, {T0}, 10
s_add_u32 {T0}, {T0}, {S_B}
v_lshl_add_u32 v6, v3, 8, {T0}
v_cvt_f32_u32 v6, v6
v_mul_f32 v6, v6, v5
s_cmp_ge_u32 {S_W4}, 2
s_cselect_b32 {T0}, {lit(0.25)}, 0
v_mov_b32 v7, {T0}
v_fmamk_f32 v6, v6, {lit(1/2048)}, v7
v_mul_f32 v5, {lit(1/32)}, v5""")
        angles(8, "v5", "v6", [8*(j//4) + j%4 for j in range(8)])
        for j in range(8): a(f"v_cos_f32 v{TMP+j}, v{TMP+j}")
        for q in range(4): a(f"v_cvt_pk_bf16_f32 v{ACC+8+q}, v{TMP+2*q}, v{TMP+2*q+1}")
    def gen_MS():
        a(f"""v_lshlrev_b32 v5, 6, v2
v_add_u32 v5, {S_BP}, v5
v_cvt_f32_u32 v5, v5
v_mul_f32 v5, {lit(1/2048)}, v5
s_lshl_b32 {T0}, {S_W4}, 3
v_lshl_add_u32 v6, v3, 2, {T0}
v_cvt_f32_u32 v6, v6
v_mul_f32 v6, v5, v6""")
        angles(4, "v5", "v6", range(4), TMP + 8)
        for j in range(4): a(f"v_cos_f32 v{TMP+2*j}, v{TMP+8+j}\nv_sin_f32 v{TMP+2*j+1}, v{TMP+8+j}")
        a(f"v_mov_b32 v6, {lit(2*sc)}\nv_mov_b32 v7, v6")
        for j in range(4): pk2(a, "mul", TMP+2*j, TMP+2*j, 6, scalar=cfg.nopk & 16)
        for j in range(4):
            a(f"v_cvt_pk_bf16_f32 v{48+j}, v{TMP+2*j}, v{TMP+2*j+1}\nv_cvt_pk_bf16_f32 v{52+j}, v{TMP+2*j+1}, -v{TMP+2*j}")
    def gen_FB():
        a(f"""v_and_b32 v5, 15, v1
s_lshl_b32 {T0}, {S_W4}, 4
v_add_u32 v5, {T0}, v5
v_cvt_f32_u32 v5, v5
v_mul_f32 v5, {lit(1/64)}, v5
v_bfe_u32 v6, v1, 4, 1
v_cvt_f32_u32 v6, v6
v_mul_f32 v6, {lit(0.25)}, v6
v_mul_f32 v7, v5, v4
v_fmamk_f32 v6, v7, {lit(4.0)}, v6""")
        C2 = TMP + 16
        a(f"v_mul_f32 v{C2}, {lit(8.0)}, v5\nv_cos_f32 v{C2}, v{C2}")
        angles(8, "v5", "v6", [8*(j//4) + j%4 for j in range(8)], TMP + 20)
        a(f"v_add_f32 v{C2}, v{C2}, v{C2}")
        for j in range(8): a(f"v_cos_f32 v{TMP+2*j}, v{TMP+20+j}\nv_sin_f32 v{TMP+2*j+1}, v{TMP+20+j}")
        a(f"v_mov_b32 v{C2+1}, v{C2}")
        for m in range(8):
            cur = TMP + 8*(m % 2); oth = TMP + 8*((m + 1) % 2)
            if m >= 2:
                for q in range(0, 8, 2):
                    pk2(a, "fma", cur+q, C2, oth+q, cur+q, neg="2", scalar=cfg.nopk & 16)
            for q in range(4): a(f"v_cvt_pk_bf16_f32 v{FB+4*m+q}, v{cur+2*q}, v{cur+2*q+1}")
    def gen_addr():
        a(f"""v_mov_b32 v{PN+2}, 0
v_lshlrev_b32 v7, 4, v1                   ; v7 = lane*16
v_and_b32 v6, 3, v1
v_lshrrev_b32 v5, 2, v1
v_lshlrev_b32 v5, 16, v5
v_lshl_add_u32 v{P_TST}, v6, 4, v5
s_lshl_b32 {T1}, {S_W4}, 11
s_add_u32 {T0}, {T1}, {L_TT}
v_add_u32 v{P_TTR}, {T0}, v7
v_lshlrev_b32 v5, 6, v2
v_lshl_add_u32 v5, v3, 4, v5
v_add_u32 v{P_TTW}, {T0}, v5
s_lshl_b32 {S_TASK}, {S_XCD}, 5
s_add_u32 {S_TASK}, {S_TASK}, {S_IDX}
s_lshr_b32 {T0}, {S_TASK}, 3
s_lshl_b32 {T2}, {S_W4}, 9
s_add_u32 {T0}, {T0}, {T2}
s_mul_i32 {T0}, {T0}, 225
s_lshl_b32 {T2}, {S_HH}, 5
s_add_u32 {T0}, {T0}, {T2}
v_mul_u32_u24 v5, {128*225}, v3
v_add3_u32 v5, v5, v2, {T0}
v_lshlrev_b32 v{P_W}, 1, v5
v_bfe_u32 v12, v1, 4, 1
v_lshlrev_b32 v5, 2, v2
v_lshl_add_u32 v{P_TLD}, v3, 9, v5
v_lshl_add_u32 v{P_UST}, v3, 17, v5
v_lshl_add_u32 v{P_F2}, v3, 18, v5
v_add_u32 v{P_TBR}, {L_TB}, v7
v_add_u32 v{P_TBW}, {T1}, v{P_TBR}
s_add_u32 {S_K1}, {S_W4}, 3
s_cmp_eq_u32 {S_W4}, 0
s_cselect_b32 {S_K1}, 7, {S_K1}
s_lshl_b32 {T0}, {S_W4}, 12
v_add_u32 v{P_ZW0}, {T0}, v{P_TBR}
s_lshl_b32 {T0}, {S_K1}, 12
v_add_u32 v{P_ZW1}, {T0}, v{P_TBR}
v_bfe_u32 v13, v1, 2, 2
v_lshrrev_b32 v5, 4, v1
v_xor_b32 v{P_WOD}, v13, v5
s_sub_u32 {T0}, {S_CNT}, 1
v_min_u32 v{P_WOD}, {T0}, v{P_WOD}
v_add_u32 v{P_WOD}, {S_CB}, v{P_WOD}
v_lshlrev_b32 v{P_WOD}, 6, v{P_WOD}
v_mul_u32_u24 v5, 896, v5
v_add_u32 v5, v5, v{P_WOD}
v_lshl_add_u32 v5, v6, 4, v5
s_mul_i32 {T0}, {S_W4}, {4*896}
v_add_u32 v{P_WOD}, {T0}, v5
v_xor_b32 v5, {S_W4}, v13
v_lshlrev_b32 v5, 6, v5
v_lshl_add_u32 v5, v13, 8, v5
v_and_b32 v6, 1, v1
v_lshl_add_u32 v5, v6, 5, v5
v_lshl_add_u32 v5, v12, 4, v5
v_bfe_u32 v6, v1, 1, 1
v_lshl_add_u32 v5, v6, 3, v5
v_add_u32 v{P_WOR2}, {L_X}, v5
v_lshl_add_u32 v{P_WOR}, v3, 10, v{P_WOR2}""")
    pieces = [gen_F, gen_FB, gen_M, gen_MS, gen_addr]
    assert cfg.pre >= 1
    def wq_warm():
        a(f"""s_cmp_eq_u32 {S_LC}, 7
s_cbranch_scc0 L_pf1
v_mul_u32_u24 v5, 2688, v1
s_mul_i32 {T0}, {T5}, 3
s_add_u32 {T0}, {T0}, {S_RR}
s_lshl_b32 {T0}, {T0}, 7
s_mul_i32 {T1}, {S_W4}, {128*2688}
s_add_u32 {T0}, {T0}, {T1}
s_add_u32 {T1}, {T0}, {64*2688}
buffer_load_dword v{P_DUM}, v5, {sWQKV}, {T0} offen
buffer_load_dword v{P_DUM}, v5, {sWQKV}, {T1} offen
L_pf1:""")
    def xa_warm():
        a(f"""s_cmp_eq_u32 {S_LC}, 7
s_cbranch_scc0 L_pf6
v_lshlrev_b32 v5, 7, v1
s_lshl_b32 {T0}, {S_RR}, 2
s_add_u32 {T0}, {T0}, {S_W4}
s_mul_i32 {T0}, {T0}, {2*64*896}
s_mul_i32 {T1}, {S_XCD}, {8*896}
s_add_u32 {T0}, {T0}, {T1}
s_add_u32 {T1}, {T0}, {64*896}
s_bfm_b64 exec, 56, 0
buffer_load_dword v{P_DUM}, v5, {sX}, {T0} offen
buffer_load_dword v{P_DUM}, v5, {sX}, {T1} offen
s_mov_b64 exec, -1
L_pf6:""")
    def kv_touch():
        srd(a, sWS, 20, WS_SIZE)
        a(f"""s_lshl_b32 {T0}, s2, 2
s_add_u32 {T0}, {T0}, {S_W4}
s_mul_i32 {T0}, {T0}, {30*128}
s_add_u32 {T0}, {T0}, {KV}
v_lshlrev_b32 v5, 7, v1
v_mov_b32 v6, 0
s_bfm_b64 exec, 30, 0
buffer_atomic_or v6, v5, {sWS}, {T0} offen sc1
s_mov_b64 exec, -1""")
    if cfg.kvt == 9: kv_touch()
    def mall_warm():
        a(f"""s_cmp_eq_u32 {S_LC}, 7
s_cbranch_scc0 L_pf7
s_lshl_b32 {T0}, {S_XCD}, 4
s_lshl_b32 {T1}, {S_RR}, 2
s_add_u32 {T0}, {T0}, {T1}
s_add_u32 {T0}, {T0}, {S_W4}
v_lshlrev_b32 v5, 7, v1""")
        if cfg.mw & 1:
            a(f"""v_lshrrev_b32 v6, 3, v1
v_mul_u32_u24 v6, 2688, v6
v_and_b32 v7, 7, v1
v_min_u32 v7, 6, v7
v_lshl_add_u32 v6, v7, 7, v6
s_mul_i32 {T1}, {T0}, {4*2688}
s_mov_b64 exec, 0xffffffff
buffer_load_dword v{P_DUM}, v6, {sWQKV}, {T1} offen""")
        if cfg.mw & 2: a(f"s_mul_i32 {T1}, {T0}, {25*128}\ns_bfm_b64 exec, 25, 0\nbuffer_load_dword v{P_DUM}, v5, {sWO}, {T1} offen")
        if cfg.mw & 4: a(f"s_mul_i32 {T1}, {T0}, {57*128}\ns_bfm_b64 exec, 57, 0\nbuffer_load_dword v{P_DUM}, v5, {sWR}, {T1} offen")
        if cfg.mw & 8: a(f"s_mul_i32 {T1}, {T0}, {57*128}\ns_bfm_b64 exec, 57, 0\nbuffer_load_dword v{P_DUM}, v5, {sWI}, {T1} offen")
        if cfg.mw & 16: a(f"s_mul_i32 {T1}, {T0}, {112*128}\ns_bfm_b64 exec, 56, 0\nbuffer_load_dword v{P_DUM}, v5, {sX}, {T1} offen")
        a("s_mov_b64 exec, -1\nL_pf7:")
    if cfg.spf:
        a(f"""s_lshl_b32 {T0}, s2, 2
s_add_u32 {T0}, {T0}, {S_W4}
s_mul_i32 {T1}, {T0}, {14*128}
s_add_u32 s76, s4, {T1}
s_addc_u32 s77, s5, 0
s_mul_i32 {T1}, {T0}, 900
s_add_u32 s70, s6, {T1}
s_addc_u32 s71, s7, 0
s_add_u32 s74, s8, {T1}
s_addc_u32 s75, s9, 0""")
    n0 = len(a.L)
    for q in range(cfg.pre):
        pieces.pop(0)()
        if q == 0:
            srd(a, sWQKV, 12, 448 * 2688); srd(a, sX, 4, 0 if cfg.ko & 16 else 2048 * 896)
            srd(a, sWR, 6, 0 if cfg.ko & 1 else 2048 * 450); srd(a, sWI, 8, 0 if cfg.ko & 1 else 2048 * 450); srd(a, sWO, 14, 0 if cfg.ko & 2 else 448 * 896)
        if cfg.mw and cfg.mwpos == q + 1: mall_warm()
        if cfg.kvt == q + 1: kv_touch()
        if cfg.xawarm == q + 1: xa_warm()
        if cfg.wqwarm == q + 1: wq_warm()
    if cfg.spf:
        from asmlib import Ins
        pf = [f"s_load_dword s72, s[76:77], {q*128}" for q in range(14)]
        if cfg.spf >= 2: pf += [f"s_load_dword s72, s[{b}:{b+1}], {q*128}" for q in range(7) for b in (70, 74)]
        lo = n0 + cfg.spf0; hi = len(a.L)
        for q in reversed(range(len(pf))): a.L.insert(lo + (hi - lo) * q // len(pf), Ins(pf[q]))
    stamp(a, 1)
    srd(a, sWS, 20, WS_SIZE)
    srd(a, sOUT, 16, 2048 * 1792)
    S_XA, S_WQL, S_WQG = "s70", "s71", "s72"
    XD = 70
    a(f"""v_lshrrev_b32 v6, 3, v1
v_and_b32 v5, 7, v1
v_lshrrev_b32 v8, 4, v1
v_xor_b32 v5, v5, v8
s_and_b32 {T0}, {S_W4}, 1
s_lshl_b32 {T0}, {T0}, 2
v_xor_b32 v5, {T0}, v5
v_mul_u32_u24 v6, {64*896}, v6
s_mul_i32 {T1}, {S_W4}, {8*64*896}
s_mul_i32 {T2}, {S_B}, 896
s_add_u32 {T1}, {T1}, {T2}
v_add_u32 v6, {T1}, v6
v_lshl_add_u32 v{XD}, v5, 4, v6
s_lshl_b32 {T0}, {S_W4}, 10
s_add_u32 {S_XA}, {T0}, {L_X}
s_mov_b32 {T2}, {L_X}""")
    x_read_addrs(a, 8, "v1", T2, TMP)
    a(f"""v_mov_b32 v14, {L_SYNC+128}
v_mov_b32 v15, 1
v_mov_b32 v{P_BC}, {L_SYNC}
s_lshl_b32 {T1}, {S_CG}, 1""")
    lwait(a, f"v{P_BC}", P_LS, 4, 34, sleep=1)
    a(f"""ds_read_b64 {V(PN,2)}, v{P_BC} offset:64
v_lshlrev_b32 v{P_PF}, 7, v1
s_add_u32 s74, s20, {FA1}
s_addc_u32 s75, s21, 0
s_waitcnt lgkmcnt(0)
v_readfirstlane_b32 s62, v{PN}
v_readfirstlane_b32 s63, v{PN+1}
s_lshl_b32 {T0}, s2, 2
s_add_u32 {T0}, {T0}, {S_W4}
s_cmp_lg_u32 {T0}, 0
s_cbranch_scc1 L_noinit
s_mov_b32 {T0}, {FA1}
buffer_store_dwordx2 {V(PN,2)}, v{P_PF}, {sWS}, {T0} offen offset:2048 sc1
s_mov_b32 {T2}, {FA1 + 8192}
buffer_store_dwordx2 {V(PN,2)}, v{P_PF}, {sWS}, {T2} offen offset:2048 sc1
s_mov_b64 exec, 0xff00
buffer_store_dwordx2 {V(PN,2)}, v{P_PF}, {sWS}, {T0} offen sc1
s_waitcnt vmcnt(0)
s_mov_b64 exec, 0xff
buffer_store_dwordx2 {V(PN,2)}, v{P_PF}, {sWS}, {T0} offen sc1
s_mov_b64 exec, -1
L_noinit:""")
    def wpull():
        L1, L2 = a.lab("wp"), a.lab("wp")
        a(f"""s_lshl_b32 {T2}, {S_IDX}, 1
s_lshr_b32 {T3}, {S_W4}, 1
s_add_u32 {T2}, {T2}, {T3}
s_mul_i32 {T2}, {T2}, 14400
s_mul_i32 {T3}, {S_XCD}, 1800
s_add_u32 {T2}, {T2}, {T3}
s_mov_b64 exec, 0x7fff
s_bitcmp1_b32 {S_W4}, 0
s_cbranch_scc1 {L1}
buffer_load_ushort v{P_DUM}, v{P_PF}, {sWR}, {T2} offen{' nt' if cfg.ntp else ''}
s_branch {L2}
{L1}:
buffer_load_ushort v{P_DUM}, v{P_PF}, {sWI}, {T2} offen{' nt' if cfg.ntp else ''}
{L2}:
s_mov_b64 exec, -1""")
    stamp(a, 2)
    if cfg.wpf == 2: wpull()
    lwait(a, f"v{P_BC}", P_LS, 4, 20, sleep=1, off=8)
    if cfg.xas:
        a(f"s_mul_i32 {T2}, {S_H}, 7\ns_bfe_u32 {T2}, {T2}, 0x30001\ns_cmp_gt_u32 {T2}, 4\ns_cbranch_scc0 L_xago")
        lwait(a, f"v{P_BC}", P_LS, 4 * cfg.xas, 30, sleep=1, off=4)
        a("L_xago:")
    for c in range(7):
        if c == cfg.xae:
            if cfg.wpf == 1: wpull()
            if cfg.xalate == 1: lwait(a, f"v{P_BC}", P_LS, 4, 38, sleep=1, off=12)
            elif cfg.xalate == 2: lwait(a, f"v{P_BC}", P_LS, 9, 38, sleep=1)
            elif cfg.xafirst: lwait(a, f"v{P_BC}", P_LS, 8, 38)
            else: lwait(a, f"v{P_BC}", P_LS, 4, 38, sleep=1, off=16)
        a(f"""s_add_u32 {T2}, {T1}, 1
s_lshr_b32 {T3}, {T2}, 1
s_lshl_b32 {T3}, {T3}, 14
s_and_b32 {T4}, {T1}, 1
s_lshl_b32 {T4}, {T4}, 12
s_sub_u32 {T3}, {T3}, {T4}
s_add_u32 m0, {S_XA}, {T3}
s_lshl_b32 {T4}, {T1}, 7
buffer_load_dwordx4 v{XD}, {sX}, {T4} offen{' nt' if cfg.nta else ''} lds
s_cmp_eq_u32 {T2}, 7
s_cselect_b32 {T1}, 0, {T2}""")
    if cfg.wpf == 4: wpull()
    for p_ in pieces: p_()
    pieces = []
    assert not pieces
    a(f"""v_add_u32 v13, {L_M}, v7
s_lshl_b32 {T0}, {S_W4}, 10
v_add_u32 v5, {T0}, v13
ds_write_b128 v5, {V(ACC+8,4)}
s_cmp_eq_u32 {S_W4}, 0
s_cbranch_scc0 L_chkd
s_lshl_b32 {T1}, {S_XCD}, 7
s_mov_b32 {S_TO}, {cfg.poll_limit}
L_chk:
s_load_dwordx2 s[76:77], {SB}, {T1} glc
s_waitcnt lgkmcnt(0)
s_sub_u32 s76, s76, s62
s_lshr_b32 s76, s76, 5
s_xor_b32 s77, s77, s63
s_or_b32 s76, s76, s77
s_cbranch_scc0 L_chkd
s_sleep 4
s_sub_u32 {S_TO}, {S_TO}, 1
s_cbranch_scc0 L_chk
s_mov_b32 {S_TO}, 35
s_branch L_fail
L_chkd:""")
    WW = 136 if cfg.woearly else 72; AC = 152; FR = 168; TP = 200
    wl = []
    for r in range(8):
        wl.append(f"s_mov_b32 {T0}, {14400*(8*(r//4) + r%4)}\nbuffer_load_short_d16_hi v{WW+r}, v{P_W}, {sWR}, {T0} offen{' nt' if cfg.ntw else ''}")
        wl.append(f"buffer_load_short_d16_hi v{WW+8+r}, v{P_W}, {sWI}, {T0} offen{' nt' if cfg.ntw else ''}")
    if cfg.wearly:
        for s_ in wl: a(s_)
        a("s_waitcnt vmcnt(16)")
    else: a(f"s_waitcnt vmcnt({1 if cfg.wpf == 4 else 0})")
    stamp(a, 3)
    if cfg.noA == 1:
        a(f"s_mov_b64 exec, 1\nds_add_u32 v14, v15 offset:4\ns_mov_b64 exec, -1")
        stamp(a, 12); dump_stamps(a, 16); a("s_endpgm")
    albar(16)
    RG = cfg.ring
    def xreg(m): return (TMP + 4*m if m < 4 else 72 + 4*(m - 4)) if m < RG else F + 4*(m - RG)
    def xr(m): return f"ds_read_b128 {V(xreg(m),4)}, v{8+m%4} offset:{((m//4+1)>>1)*16384 - ((m//4)&1)*4096}"
    assert not (cfg.wearly and RG > 4)
    for m in range(RG): a(xr(m))
    P1 = F; P2 = F + 16; XP = TMP; M = F + 32
    if cfg.mprio == 0: a("s_setprio 0")
    nds = RG
    for m in range(28):
        a(f"s_waitcnt lgkmcnt({nds - m - 1})")
        a(mfma(ACC, xreg(m), F + 4*m, None if m == 0 else ACC))
        if m + RG < 28: a(xr(m + RG)); nds += 1
        elif m >= 24: a(f"ds_read_b128 {V(M+4*(m-24),4)}, v13 offset:{(m-24)*1024}"); nds += 1
    a(f"s_setprio {cfg.aprio}")
    lwait(a, f"v{P_BC}", P_LS, 8, 27, sleep=1)
    a(f"""s_lshl_b32 {T0}, {S_W4}, 11
s_add_u32 {T0}, {T0}, {L_MS}
v_add_u32 v5, {T0}, v7
ds_write_b128 v5, v[48:51]
ds_write_b128 v5, v[52:55] offset:1024
s_lshr_b32 {T0}, {S_KT16}, 1
s_lshl_b32 {T0}, {T0}, 13
s_lshl_b32 {T1}, {S_B}, 7
s_add_u32 {T1}, {T1}, {TBUF}
s_add_u32 {T0}, {T0}, {T1}
s_and_b32 {T2}, {S_KT16}, 1
s_lshl_b32 {T2}, {T2}, 6
s_add_u32 {T0}, {T0}, {T2}
s_add_u32 {T2}, {T0}, {16*65536}
s_cmp_ge_u32 {S_W4}, {S_CNT}
s_cbranch_scc1 L_a1done
s_waitcnt lgkmcnt(0)""")
    for q in range(8): a(f"v_cvt_pk_bf16_f32 v{XP+q}, v{ACC+2*q}, v{ACC+2*q+1}")
    a(mfma(P1, XP, M)); a(mfma(P2, XP, M + 8)); a(mfma(P1, XP + 4, M + 4, P1)); a(mfma(P2, XP + 4, M + 12, P2))
    for r in range(0, 8, 2):
        pk2(a, "add", ACC+r, P1+r, P2+r+8, neg="1", scalar=cfg.nopk & 4); pk2(a, "add", ACC+8+r, P1+r+8, P2+r, scalar=cfg.nopk & 4)
    for r in range(8): a(f"v_cvt_pk_bf16_f32 v{XP+8+r}, v{ACC+r}, v{ACC+8+r}")
    a(f"""s_cmp_lg_u32 {S_KT16}, 0
s_cbranch_scc1 L_a1st
s_mov_b32 exec_hi, 0
v_cvt_pk_bf16_f32 v{XP+8}, v{P1}, v{P2}
v_cvt_pk_bf16_f32 v6, v{P1+8}, v{P2+8}
v_lshlrev_b32 v5, 16, v2
s_mov_b32 exec_hi, -1
L_a1st:
ds_write_b128 v{P_TTW}, {V(XP+8,4)}
ds_write_b128 v{P_TTW}, {V(XP+12,4)} offset:32
ds_read_b128 {V(XP,4)}, v{P_TTR}
ds_read_b128 {V(XP+4,4)}, v{P_TTR} offset:1024
s_mov_b32 {T4}, {T0}
s_waitcnt lgkmcnt(0)""")
    stamp(a, 1, 5)
    if cfg.tdefer: lwait(a, f"v{P_BC}", P_LS, 4, 28, sleep=1, off=12)
    if cfg.tdelay: a(f"s_sleep {cfg.tdelay}")
    if cfg.tstag:
        for q in (1, 2, 3): a(f"s_cmp_lt_u32 {S_W4}, {q}\ns_cbranch_scc1 L_tst\ns_sleep {cfg.tstag}")
        a("L_tst:")
    a(f"""s_cmp_lg_u32 {S_KT16}, 0
s_cbranch_scc1 L_a1st2
s_mov_b32 exec_hi, 0
s_add_u32 {T1}, {T1}, {7*8192}
buffer_store_dword v6, v5, {sWS}, {T1} offen sc1
s_mov_b32 exec_hi, -1
L_a1st2:
{"s_branch L_a1done" if cfg.ko & 8 else ""}
buffer_store_dwordx4 {V(XP,4)}, v{P_TST}, {sWS}, {T4} offen sc1
{"s_sleep %d" % (cfg.tstag // 2) if cfg.tstag else ""}
buffer_store_dwordx4 {V(XP+4,4)}, v{P_TST}, {sWS}, {T2} offen sc1
L_a1done:""")
    stage_arrive(0)
    stamp(a, 4)
    lwait(a, f"v{P_BC}", P_LS, 4, 29, sleep=1, off=12)
    if cfg.wdelay: a(f"s_sleep {cfg.wdelay}")
    if cfg.wpf == 3: wpull()
    if not cfg.wearly and not cfg.wlate: burst([x + (f"\ns_sleep {cfg.wpace}" if cfg.wpace else "") for x in wl], cfg.th_w)
    if cfg.wopf and not cfg.wolate:
        burst([f"""s_lshl_b32 {T0}, {S_IDX}, 2
s_add_u32 {T0}, {T0}, {S_W4}
s_mul_i32 {T0}, {T0}, {25*128}
s_bfm_b64 exec, 25, 0
buffer_load_dword v{P_DUM}, v{P_PF}, {sWO}, {T0} offen
s_mov_b64 exec, -1"""], 1)
    if cfg.ohint:
        for q in range(4): a(f"v_mov_b32 v{TP+q}, -1")
        a(f"""s_lshr_b32 {T0}, {S_XCD}, 1
s_lshl_b32 {T0}, {T0}, 2
s_add_u32 {T0}, {T0}, {S_RR}
s_lshl_b32 {T0}, {T0}, 2
s_add_u32 {T0}, {T0}, {S_W4}
s_lshl_b32 {T0}, {T0}, 4
s_add_u32 {T0}, {T0}, {S_H}
s_lshl_b32 {T0}, {T0}, 11
s_add_u32 {T0}, {T0}, {OBUF}""")
        a(f"s_mov_b32 s72, {T0}")
        marks = [f"buffer_store_dwordx4 {V(TP,4)}, v7, {sWS}, s72 offen offset:{1024*q} sc1" for q in range(2)]
        if not cfg.wolate: burst(marks, 2)
    WO = 72
    S_WOL = "s70"
    a(f"s_lshl_b32 {S_WOL}, {S_W4}, 10\ns_add_u32 {S_WOL}, {S_WOL}, {L_X}")
    def wo_list(rnd):
        return [f"s_add_u32 m0, {S_WOL}, {i*4096}\ns_mov_b32 s71, {(rnd*224 + i*16)*896}\nbuffer_load_dwordx4 v{P_WOD}, {sWO}, s71 offen lds" for i in range(14)]
    def ride(q, n=1):
        it = [q.pop(0) for _ in range(min(n, len(q)))]
        if it: burst(it, n)
        pace()
    def wo_rd(f, d, r1, r2):
        hl, mu = f // 2, f % 2
        return [f"ds_read_b64_tr_b16 {V(d+2*sec,2)}, v{r2 if (mu and sec) else r1} offset:{(28*hl + 16*mu + 8*sec)*256}" for sec in range(2)]
    def wo_reads(h):
        for f in range(16):
            for s_ in wo_rd(f, WO + 64*h + 4*f, P_WOR, P_WOR2): a(s_)
    assert cfg.allpoll
    if cfg.woearly:
        assert cfg.wlate and not cfg.wolate
        lwait(a, "v14", P_LS, 4, 45, sleep=2, off=8)
        burst(wo_list(0), cfg.th_wo)
        a("s_waitcnt vmcnt(0)")
        albar(46)
        wo_reads(0)
    stamp(a, 5)
    stage_wait(0, cfg.a2wait)
    a(f"s_lshl_b32 {T1}, {S_W4}, 11")
    stamp(a, 6)
    a(f"""s_lshl_b32 {T0}, {S_TASK}, 13
s_add_u32 {T0}, {T0}, {T1}
s_add_u32 {T0}, {T0}, {TBUF}""")
    burst([f"buffer_load_dword v{FR+q}, v{P_TLD}, {sWS}, {T0} offen offset:{(q//4)*1024 + (q%4)*128} sc1" for q in range(8)], 8)
    a(f"s_waitcnt vmcnt(0)\nds_write_b128 v{P_TBW}, {V(FR,4)}\nds_write_b128 v{P_TBW}, {V(FR+4,4)} offset:1024" if not cfg.wlate else "")
    if cfg.wlate:
        burst(wl, 24)
        a(f"s_waitcnt vmcnt(16)\nds_write_b128 v{P_TBW}, {V(FR,4)}\nds_write_b128 v{P_TBW}, {V(FR+4,4)} offset:1024")
    stamp(a, 1, 4)
    albar(6)
    stamp(a, 2, 4)
    def dft64(base):
        for m in range(8): a(f"ds_read_b128 {V(FR+4*m,4)}, v{P_TBR} offset:{base + m*1024}")
        if cfg.mprio == 0: a("s_setprio 0")
        for m in range(8):
            a(f"s_waitcnt lgkmcnt({7-m})")
            a(mfma(AC, FB + 4*m, FR + 4*m, None if m == 0 else AC))
            if cfg.mprio: ride(woq)
            elif woq: a(woq.pop(0))
        a(f"s_setprio {cfg.aprio}")
    woq = marks if cfg.wolate else wo_list(1 if cfg.woearly else 0)
    dft64(0)
    a(f"s_waitcnt vmcnt({2 if cfg.wolate else 8})\ns_cmp_eq_u32 {S_HH}, 7\ns_cbranch_scc0 L_a2nx")
    for r in range(8):
        a(f"v_mov_b32 v{TP}, v{WW+r}\nv_xor_b32 v{WW+r}, 0x80000000, v{WW+8+r}\nv_mov_b32 v{WW+8+r}, v{TP}")
    a("L_a2nx:")
    for r in range(0, 8, 2):
        a(f"""v_pk_mul_f32 {V(FR+r,2)}, {V(AC+r,2)}, {V(WW+r,2)}
v_pk_mul_f32 {V(FR+8+r,2)}, {V(AC+r,2)}, {V(WW+8+r,2)}
v_pk_fma_f32 {V(FR+r,2)}, {V(AC+8+r,2)}, {V(WW+8+r,2)}, {V(FR+r,2)} neg_lo:[1,0,0] neg_hi:[1,0,0]
v_pk_fma_f32 {V(FR+8+r,2)}, {V(AC+8+r,2)}, {V(WW+r,2)}, {V(FR+8+r,2)} neg_lo:[1,0,1] neg_hi:[1,0,1]
v_cvt_pk_bf16_f32 v{TP+r}, v{FR+r}, v{FR+8+r}
v_cvt_pk_bf16_f32 v{TP+r+1}, v{FR+r+1}, v{FR+8+r+1}""")
    a(f"ds_write_b128 v{P_TBW}, {V(TP,4)} offset:8192\nds_write_b128 v{P_TBW}, {V(TP+4,4)} offset:9216")
    stamp(a, 3, 4)
    albar(7)
    stamp(a, 4, 4)
    dft64(8192)
    if cfg.uinp:
        a(f"s_lshl_b32 {T0}, {S_TASK}, 13\ns_lshl_b32 {T1}, {S_W4}, 11\ns_add_u32 {T0}, {T0}, {T1}\ns_add_u32 {T0}, {T0}, {TBUF}")
    else:
        a(f"""s_lshl_b32 {T0}, {S_HH}, 12
s_lshr_b32 {T1}, {S_TASK}, 3
s_lshl_b32 {T1}, {T1}, 7
s_add_u32 {T0}, {T0}, {T1}
s_add_u32 {T0}, {T0}, {UBUF}
s_lshl_b32 {T1}, {S_W4}, 19
s_add_u32 {T0}, {T0}, {T1}""")
    for r in range(8): a(f"v_cvt_pk_bf16_f32 v{TP+r}, v{AC+r}, v{AC+8+r}")
    stamp(a, 5, 4)
    a(f"s_cmp_eq_u32 {S_HH}, {S_HH if cfg.ko & 8 else 7}\ns_cselect_b32 exec_lo, 1, -1\ns_cselect_b32 exec_hi, 1, -1")
    if cfg.uinp:
        burst([f"buffer_store_dword v{TP+r}, v{P_TLD}, {sWS}, {T0} offen offset:{(r//4)*1024 + (r%4)*128} sc1" for r in range(8)], 8)
    else:
        burst([f"s_add_u32 {T1}, {T0}, {(8*(r//4) + r%4) * USTR}\nbuffer_store_dword v{TP+r}, v{P_UST}, {sWS}, {T1} offen sc1" for r in range(8)], 8)
    a("s_mov_b64 exec, -1")
    stage_arrive(1)
    stamp(a, 7)
    U0 = 16; U1 = 32; AR = 200; AI = 216
    MSR = [48, 52, 56, 60, 64, 68, 232, 240]
    if cfg.wolate:
        burst(wo_list(0), cfg.th_wo)
        a("s_waitcnt vmcnt(0)")
    albar(4)
    wo_reads(1 if cfg.woearly else 0)
    for q in range(8): a(f"ds_read_b128 {V(MSR[q],4)}, v7 offset:{L_MS + q*1024}")
    if not cfg.woearly:
        albar(24)
        if not cfg.wolate: burst(wo_list(1), cfg.th_wo)
    stage_wait(1, 0 if cfg.wolate else cfg.a3wait)
    stamp(a, 8)
    if cfg.uinp:
        a(f"""s_lshl_b32 {T0}, {S_BP}, 7
s_add_u32 {T0}, {T0}, {TBUF}
s_lshl_b32 {T1}, {S_W4}, 13
s_lshl_b32 {T3}, {S_K1}, 13
s_add_u32 {T2}, {T0}, {T3}
s_add_u32 {T1}, {T0}, {T1}""")
        burst([f"s_add_u32 {T0}, {T1 if q < 16 else T2}, {(8*((q%16)//4) + q%4) * 65536}\nbuffer_load_dword v{U0+q}, v{P_F2}, {sWS}, {T0} offen sc1" for q in range(32)], cfg.th_u)
    else:
        a(f"""s_lshl_b32 {T0}, {S_BP}, 15
s_add_u32 {T0}, {T0}, {UBUF}
s_lshl_b32 {T1}, {S_W4}, 12
s_lshl_b32 {T3}, {S_K1}, 12
s_add_u32 {T2}, {T0}, {T3}
s_add_u32 {T1}, {T0}, {T1}""")
        burst([f"buffer_load_dword v{U0+q}, v{P_TLD}, {sWS}, {T1 if q < 16 else T2} offen offset:{((q%16)//4)*1024 + (q%4)*128} sc1" for q in range(32)], cfg.th_u)
    if cfg.wolate: burst(wo_list(1), 46)
    elif not cfg.woearly:
        a("s_waitcnt vmcnt(32)")
        albar(10)
        wo_reads(1)
    stamp(a, 11, 4)
    a(f"""s_lshl_b32 {T4}, {S_BP}, 2
s_add_u32 {T4}, {T4}, {S_W4}
s_lshl_b32 {T3}, {T4}, 13
s_add_u32 {T3}, {T3}, {OBUF}
s_add_u32 {T2}, {T3}, 4096
s_and_b32 {T4}, {S_BP}, 60
s_add_u32 {T4}, {T4}, {S_W4}
s_lshl_b32 {T4}, {T4}, 9
s_add_u32 {T4}, {T4}, {FO}
s_lshl_b32 {T1}, {S_W4}, 13
v_add_u32 v9, {T1}, v7""")
    def step6(ur, ui, va, last):
        if last and cfg.apoll: a(poll_issue(f"v{P_PF}", T4, P_PS, 4))
        if cfg.mprio == 0: a("s_setprio 0")
        for m in range(4):
            a(mfma(AR, ur + 4*m, MSR[2*m], None if m == 0 else AR))
            if cfg.pace6: a(f"s_sleep {cfg.pace6}")
            a(mfma(AI, ui + 4*m, MSR[2*m+1], None if m == 0 else AI))
            if cfg.pace6: a(f"s_sleep {cfg.pace6}")
        a(f"s_setprio {cfg.aprio}")
        for q in range(16):
            a(f"v_cvt_pk_bf16_f32 v{ur+q}, v{AR+2*q}, v{AR+2*q+1}")
            if q % 4 == 3: a(f"ds_write_b128 v{va}, {V(ur+q-3,4)} offset:{(q//4)*1024}")
    if cfg.s6late: lwait(a, f"v{P_BC}", P_LS, 20, 37, sleep=2)
    a(f"s_waitcnt vmcnt({14 if cfg.wolate else 0})\ns_cmp_eq_u32 {S_W4}, 0\ns_cbranch_scc1 L_a3w0")
    step6(U0, U0, P_ZW0, False)
    step6(U1, U1, P_ZW1, True)
    a(f"s_branch L_a3z\nL_a3w0:\ns_mov_b32 exec_lo, -2\ns_mov_b32 exec_hi, -2")
    for q in range(16): a(f"v_mov_b32 v{U1+q}, v{U0+q}")
    a("s_mov_b64 exec, -1")
    step6(U0, U1, P_ZW0, True)
    a("L_a3z:\ns_mov_b64 exec, 1\nds_add_u32 v14, v15 offset:4\ns_mov_b64 exec, -1")
    stamp(a, 9)
    if cfg.wolate:
        a(f"s_waitcnt vmcnt({1 if cfg.apoll else 0})")
        lbar(a, "v14", "v15", P_LS, 10)
        wo_reads(1)
    osc = ("", " sc1", " nt", " sc0 sc1", " sc1 nt")[cfg.outsc]
    stamp(a, 10)
    a(f"s_mov_b32 s71, {cfg.poll_limit}")
    if cfg.apoll: a(f"s_waitcnt vmcnt(0)\n{poll_check(P_PS, 4)}\ns_cbranch_scc0 L_aoload")
    poll(a, f"v{P_PF}", T4, P_PS, 4, 42, sleep=cfg.osleep)
    a("L_aoload:")
    for q in range(8):
        a(f"buffer_load_dwordx4 {V(16+4*q,4)}, v7, {sWS}, {T3 if q < 4 else T2} offen offset:{(q%4)*1024} sc1")
    stamp(a, 13)
    lwait(a, f"v{P_BC}", P_LS, 24, 43, sleep=1)
    for q in range(8):
        a(f"s_waitcnt vmcnt({7-q})\nds_write_b128 v9, {V(16+4*q,4)} offset:{L_OB + q*1024}")
        if q == 2: a("v_max3_u32 v5, v16, v20, v24")
        if q in (4, 6): a(f"v_max3_u32 v5, v5, v{12+4*q}, v{16+4*q}")
    a(f"""v_max_u32 v5, v5, v44
v_cmp_eq_u32 vcc, -1, v5
s_cbranch_vccz L_aogot
s_sleep 6
s_sub_u32 s71, s71, 1
s_cbranch_scc0 L_aoload
s_mov_b32 {S_TO}, 44
s_branch L_fail
L_aogot:
s_mov_b64 exec, 1
ds_add_u32 v{P_BC}, v15 offset:20
s_mov_b64 exec, -1""")
    a(f"""s_mul_i32 {T4}, {S_BP}, {32*1792}
s_lshl_b32 {T1}, {S_DT}, 6
s_add_u32 {T4}, {T4}, {T1}
s_add_u32 {T4}, {T4}, 896
s_add_u32 {T3}, {T4}, {16*1792}""")
    lwait(a, f"v{P_BC}", P_LS, 4, 12, off=20)
    a(f"s_cmp_ge_u32 {S_W4}, {S_CNT}\ns_cbranch_scc1 L_b3done")
    stamp(a, 11)
    OR = 216
    def zr(s_): return f"ds_read_b128 {V(OR+4*(s_%8),4)}, v7 offset:{L_OB + s_*1024}"
    for s_ in range(8): a(zr(s_))
    if cfg.cost & 1:
        a(f"""s_lshl_b32 {T1}, {S_W4}, 11
s_add_u32 {T1}, {T1}, {L_X}
v_lshlrev_b32 v10, 6, v2
v_lshl_add_u32 v10, v3, 5, v10
v_add_u32 v10, {T1}, v10
v_add_u32 v11, {T1}, v7
v_lshrrev_b32 v5, 2, v1
v_mul_u32_u24 v5, 1792, v5
v_and_b32 v12, 3, v1
v_lshl_add_u32 v5, v12, 4, v5""")
    else:
        a("v_mul_u32_u24 v5, 1792, v2\nv_lshl_add_u32 v5, v3, 5, v5")
    for s_ in range(32):
        a(f"s_waitcnt lgkmcnt({min(7, 31-s_)})")
        a(mfma(AR, WO + 4*s_, OR + 4*(s_ % 8), None if s_ == 0 else AR))
        if s_ + 8 < 32: a(zr(s_ + 8))
    for hf in range(2):
        for q in range(4*hf, 4*hf+4): a(f"v_cvt_pk_bf16_f32 v{48+q}, v{AR+2*q}, v{AR+2*q+1}")
        if cfg.cost & 1: a(f"ds_write_b128 v10, {V(48+4*hf,4)} offset:{16*hf}")
        else: a(f"buffer_store_dwordx4 {V(48+4*hf,4)}, v5, {sOUT}, {T4} offen offset:{16*hf}{osc}")
    if cfg.cost & 1:
        a(f"""ds_read_b128 v[56:59], v11
ds_read_b128 v[60:63], v11 offset:1024
s_waitcnt lgkmcnt(1)
buffer_store_dwordx4 v[56:59], v5, {sOUT}, {T4} offen{osc}
s_waitcnt lgkmcnt(0)
buffer_store_dwordx4 v[60:63], v5, {sOUT}, {T3} offen{osc}""")
    a("L_b3done:")
    a(f"""s_lshl_b32 {T0}, s2, 2
s_add_u32 {T0}, {T0}, {S_W4}
s_cmp_lg_u32 {T0}, 0
s_cbranch_scc1 L_noep
s_mov_b32 {T0}, {EPOCH}""")
    flag(a, T0, 10)
    a("L_noep:")
    if cfg.padend: padto(a, cfg.padend)
    stamp(a, 12)
    dump_stamps(a, 16)
    a("s_endpgm")

def build():
    nh = cfg.nh; xh = 16 // nh
    for wg in range(256):
        xcd, idx = wg & 7, wg >> 3
        h = (xcd % xh) * nh + idx % nh
        assert nh == 8
    a = Asm()
    prologue(a); role_B(a); ROLE[0] = 1; role_A(a)
    a(f"""L_fail:
v_mov_b32 v0, 0
v_mov_b32 v1, {S_TO}
global_store_dword v0, v1, s[18:19]
L_end:
s_endpgm
L_codeend:""")
    a.pad()
    import os
    ref = "cdna_kernels/" + NAME + ".s.ref"
    hdr = open(ref).read().split("; Override launch")[0] if os.path.exists(ref) else ""
    s = hdr + f"; @launch grid=(256,1,1) block=(512,1,1) lds={LDS_SIZE}\n"
    s += f""".amdgcn_target "amdgcn-amd-amdhsa--gfx950"
.text
.globl {NAME}_kernel
.p2align 8
.type {NAME}_kernel,@function
{NAME}_kernel:
""" + a.text() + f""".section .rodata,"a"
.p2align 6
.amdhsa_kernel {NAME}_kernel
  .amdhsa_next_free_vgpr 256
  .amdhsa_next_free_sgpr 102
  .amdhsa_accum_offset 256
  .amdhsa_group_segment_fixed_size 0
  .amdhsa_kernarg_size 72
  .amdhsa_user_sgpr_count 2
  .amdhsa_user_sgpr_kernarg_segment_ptr 1
  .amdhsa_system_sgpr_workgroup_id_x 1
.end_amdhsa_kernel
"""
    return s

if __name__ == "__main__":
    out = sys.argv[1]
    for kv in sys.argv[2:]:
        k, v = kv.split("=")
        setattr(cfg, k, type(getattr(cfg, k))(int(v)))
    open(out, "w").write(build())
```

```python
import sys, math, struct
from asmlib import Asm

NAME = "concat_heads__spectral_gfnet__softmax_full_mha__prompt"

class Cfg:
    nh = 8
    stamps = False
    poll_limit = 1 << 17
    noA = 0
    pxcd = -1
    ptype = 0
    kvsc = 1
    kvt = 0
    kvt64 = 0
    probe = -1
    span = 0
    fine = 0
    padend = 0
    padmid = 0
    dbgwave = -1
    nbuf = 5
    wearly = 0
    touch = 0
    wdelay = 30
    tdelay = 0
    s6late = 0
    lsl = 4
    odefer = 0
    a2wait = 8
    a3wait = 0
    kvwait = 8
    kvrot = 3
    m1 = 12
    ramp = 1
    gate = 2
    wqe = 3
    wqp = 7
    tdefer = 1
    m2 = 27
    xas = 0
    xae = 0
    bhi = 56
    ohint = 1
    wlate = 1
    allpoll = 1
    otry = 1
    gsplit = 8
    claim = 1
    btry = 0
    pace6 = 0
    wolate = 0
    wsoff = 0
    mprio = 0
    xawarm = 0
    wpace = 0
    tstag = 0
    xafirst = 0
    mw = 3
    mwpos = 1
    wqdel = 0
    ring = 8
    apoll = 1
    osleep = 2
    fprio = 0
    nta = 1
    ntw = 1
    ntb = 0
    bsleep = 2
    qst = 0x133
    wopf = 0
    uinp = 1
    woearly = 0
    hack = 0
    ko = 0
    xalate = 0
    ntp = 1
    cost = 3
    nopk = 23
    gtab = 2981409204
    kvp = 1
    owait = 4
    xrot = 0x06543210
    wrot = 1
    pace = 1
    xadefer = 0
    wpf = 0
    outsc = 3
    wqwarm = 0
    th_wo = 14
    th_u = 32
    th_wq = 2
    wqearly = 1
    th_w = 17
    th_xa = 4
    wfair = 8
    xearly = 1
    spf = 0
    spf0 = 150
    pre = 5
    aprio = 2
    force_fb = False
cfg = Cfg()

EPOCH = 0
KV = 0x20000; TS = 61440; VOFF = 28672
OBUF = 0x400000
TBUF = 0x600000
UBUF = 0x800000; USTR = 32768
FKV = 0x8000; FA1 = 0x1000; FO = 0x10000
STAMP = 0xB00000
WS_SIZE = 0x1000000
L_W = 0; L_WQ = 57344; L_X = 86016; L_Q = 151552; L_SYNC = 159744
LDS_SIZE = 160000
L_RED = 0
L_TB = L_WQ; L_YB = L_WQ + 8192; L_MS = 49152; L_TT = L_X + 4096; L_M = L_X + 61440
L_ZB = L_WQ; L_OB = 0
sWS, sWQKV, sX, sWR, sWI, sWO, sOUT = [f"s[{i}:{i+3}]" for i in (24, 28, 32, 36, 40, 44, 48)]
S_WAVE, S_XCD, S_IDX, S_H, S_R, S_W4 = "s56", "s57", "s58", "s59", "s60", "s61"
S_NONCE = "s[62:63]"
S_TO, S_BAR = "s64", "s65"
T0, T1, T2, T3, T4, T5 = "s66", "s67", "s68", "s69", "s22", "s23"
STAMP0 = 84

ZREADY = 24

def f2u(x): return struct.unpack("<I", struct.pack("<f", x))[0]
def lit(x): return "0x%08x" % f2u(x)
def V(a, n=1): return f"v{a}" if n == 1 else f"v[{a}:{a+n-1}]"

def srd(a, name, lo, size):
    i = int(name[2:name.index(":")])
    a(f"s_mov_b32 s{i}, s{lo}\ns_mov_b32 s{i+1}, s{lo+1}\ns_mov_b32 s{i+2}, {size}\ns_mov_b32 s{i+3}, 0x20000")

ROLE = [0]
def stamp(a, i, fine=0):
    if cfg.probe >= 0:
        if fine == cfg.fine and cfg.probe == ROLE[0] * 100 + i:
            a("s_memrealtime s[96:97]\ns_waitcnt lgkmcnt(0)")
        return
    if cfg.fine in (1, 2) and not fine and 3 <= i <= 11: return
    if cfg.fine == 4 and not fine and i in (1, 2, 3, 4, 5, 10, 11, 13): return
    if fine and cfg.fine != fine: return
    if cfg.stamps:
        a(f"s_memtime s[100:101]\ns_waitcnt lgkmcnt(0)\ns_mov_b32 s{STAMP0+i}, s100")

def st0():
    o = f"s_add_u32 s20, s20, {cfg.wsoff << 20}\ns_addc_u32 s21, s21, 0\n" if cfg.wsoff else ""
    return o + (f"s_mov_b32 s{STAMP0+15}, s100\ns_mov_b32 s{STAMP0}, s38" if cfg.stamps else "")

def dump_stamps(a, vt):
    if cfg.probe >= 0:
        if cfg.probe // 100 == ROLE[0]:
            L = a.lab("pr")
            if cfg.pxcd >= 0: a(f"s_cmp_lg_u32 {S_XCD}, {cfg.pxcd}\ns_cbranch_scc1 {L}x")
            if cfg.ptype: a(f"s_cmp_eq_u32 {S_LC}, 7\ns_cbranch_scc{cfg.ptype - 1} {L}x")
            if cfg.probe % 100 == 99: a("s_mov_b32 s96, s100")
            a(f"s_sub_u32 s96, s96, s100\ns_cmp_gt_u32 s96, 4000\ns_cselect_b32 s96, 0, s96\ns_add_u32 s96, s96, 2600\n{L}:\ns_memrealtime s[98:99]\ns_waitcnt lgkmcnt(0)\ns_sub_u32 s98, s98, s100\ns_cmp_lt_u32 s98, s96\ns_cbranch_scc1 {L}\n{L}x:")
        return
    if cfg.span:
        a(f"s_waitcnt vmcnt(0)\ns_memrealtime s[98:99]\ns_lshl_b32 {T0}, s2, 3\ns_add_u32 {T0}, {T0}, {S_WAVE}\ns_lshl_b32 {T0}, {T0}, 3\ns_add_u32 {T0}, {T0}, {STAMP}\ns_waitcnt lgkmcnt(0)")
        a(f"v_mov_b32 v{vt}, s100\nv_mov_b32 v{vt+1}, s98\nv_mov_b32 v{vt+2}, 0\ns_mov_b64 exec, 1\nbuffer_store_dwordx2 {V(vt,2)}, v{vt+2}, {sWS}, {T0} offen\ns_mov_b64 exec, -1")
    if not cfg.stamps: return
    a(f"s_memrealtime s[100:101]\ns_waitcnt lgkmcnt(0)\ns_mov_b32 s{STAMP0+14}, s100")
    if cfg.dbgwave >= 0:
        L = a.lab("nodbg")
        a(f"s_lshl_b32 {T0}, s2, 3\ns_add_u32 {T0}, {T0}, {S_WAVE}\ns_cmp_lg_u32 {T0}, {cfg.dbgwave}\ns_cbranch_scc1 {L}")
        a(f"v_mov_b32 v{vt+4}, 0\ns_mov_b64 exec, 1")
        for i in range(1, 16):
            a(f"s_sub_u32 {T1}, s{STAMP0+i}, s{STAMP0 + (15 if i >= 14 else 0)}\nv_mov_b32 v{vt}, {T1}\nglobal_store_dword v{vt+4}, v{vt}, s[18:19] offset:{4*i}")
        a(f"s_mov_b64 exec, -1\n{L}:")
    a(f"s_lshl_b32 {T0}, s2, 3\ns_add_u32 {T0}, {T0}, {S_WAVE}\ns_lshl_b32 {T0}, {T0}, 7\ns_add_u32 {T0}, {T0}, {STAMP}")
    a(f"v_mov_b32 v{vt+4}, 0\ns_mov_b64 exec, 1")
    for q in range(4):
        for i in range(4): a(f"v_mov_b32 v{vt+i}, s{STAMP0+4*q+i}")
        a(f"buffer_store_dwordx4 {V(vt,4)}, v{vt+4}, {sWS}, {T0} offen offset:{16*q}")
    a("s_mov_b64 exec, -1")

def padto(a, ticks):
    L = a.lab("pad")
    a(f"{L}:\ns_memrealtime s[100:101]\ns_waitcnt lgkmcnt(0)\ns_sub_u32 s100, s100, s{STAMP0+15}\ns_cmp_lt_u32 s100, {ticks}\ns_cbranch_scc1 {L}")

def poll_issue(vaddr, soff, vt, n):
    return f"""v_mov_b32 v{vt}, 0
v_mov_b32 v{vt+1}, 0
s_bfm_b64 exec, {n}, 0
buffer_atomic_or_x2 {V(vt,2)}, {vaddr}, {sWS}, {soff} offen sc0 sc1
s_mov_b64 exec, -1"""

def poll_check(vt, n):
    return f"v_cmp_ne_u64 vcc, {S_NONCE}, {V(vt,2)}\ns_and_b32 vcc_lo, vcc_lo, {hex((1 << n) - 1)}"

def poll(a, vaddr, soff, vt, n, code, sleep=2):
    L, Dn = a.lab("poll"), a.lab("polld")
    a(f"""s_mov_b32 {S_TO}, {cfg.poll_limit}
{L}:
{poll_issue(vaddr, soff, vt, n)}
s_waitcnt vmcnt(0)
{poll_check(vt, n)}
s_cbranch_scc0 {Dn}
s_sleep {sleep}
s_sub_u32 {S_TO}, {S_TO}, 1
s_cbranch_scc0 {L}
s_mov_b32 {S_TO}, {code}
s_branch L_fail
{Dn}:""")

def publish_wg(a, vsync, vone, off, vt, soff, vn, last=3):
    L = a.lab("pub")
    a(f"""s_mov_b64 exec, 1
ds_add_rtn_u32 v{vt}, {vsync}, {vone} offset:{off}
s_waitcnt lgkmcnt(0)
v_readfirstlane_b32 {T0}, v{vt}
s_cmp_eq_u32 {T0}, {last}
s_cselect_b64 exec, 1, 0
buffer_store_dwordx2 {V(vn,2)}, v{vn+2}, {sWS}, {soff} offen sc1
s_mov_b64 exec, -1""")

def flag(a, soff, vt):
    a(f"""v_mov_b32 v{vt}, s62
v_mov_b32 v{vt+1}, s63
v_mov_b32 v{vt+2}, 0
s_mov_b64 exec, 1
buffer_store_dwordx2 {V(vt,2)}, v{vt+2}, {sWS}, {soff} offen sc1
s_mov_b64 exec, -1""")

def flag2(a, soff, vn):
    a(f"s_mov_b64 exec, 1\nbuffer_store_dwordx2 {V(vn,2)}, v{vn+2}, {sWS}, {soff} offen sc1\ns_mov_b64 exec, -1")

def lwait(a, vsync, vt, target, code, sleep=0, off=0):
    L, Dn = a.lab("lw"), a.lab("lwd")
    a(f"""s_mov_b32 {S_TO}, {cfg.poll_limit * 8}
{L}:
ds_read_b32 v{vt}, {vsync} offset:{off}
s_waitcnt lgkmcnt(0)
v_readfirstlane_b32 {T0}, v{vt}
s_cmp_ge_u32 {T0}, {target}
s_cbranch_scc1 {Dn}
{"s_sleep %d" % sleep if sleep else ""}
s_sub_u32 {S_TO}, {S_TO}, 1
s_cbranch_scc0 {L}
s_mov_b32 {S_TO}, {code}
s_branch L_fail
{Dn}:""")

def lbar(a, vsync, vone, vt, code, sleep=0):
    L, Dn = a.lab("lb"), a.lab("lbd")
    a(f"""s_add_u32 {S_BAR}, {S_BAR}, 4
s_mov_b64 exec, 1
ds_add_u32 {vsync}, {vone}
s_mov_b64 exec, -1
s_mov_b32 {S_TO}, {cfg.poll_limit * 8}
{L}:
ds_read_b32 v{vt}, {vsync}
s_waitcnt lgkmcnt(0)
v_readfirstlane_b32 {T0}, v{vt}
s_cmp_ge_u32 {T0}, {S_BAR}
s_cbranch_scc1 {Dn}
{"s_sleep %d" % sleep if sleep else ""}
s_sub_u32 {S_TO}, {S_TO}, 1
s_cbranch_scc0 {L}
s_mov_b32 {S_TO}, {code}
s_branch L_fail
{Dn}:""")

def mfma(d, A, B, C=None):
    return f"v_mfma_f32_32x32x16_bf16 {V(d,16)}, {V(A,4)}, {V(B,4)}, {'0' if C is None else V(C,16)}"

def pk2(a, op, d, x, y, z=None, neg="", scalar=False):
    srcs = [x, y] + ([z] if z is not None else [])
    if not scalar:
        m = "[" + ",".join("1" if str(i) in neg else "0" for i in range(len(srcs))) + "]"
        a(f"v_pk_{op}_f32 {V(d,2)}, " + ", ".join(V(r,2) for r in srcs) + (f" neg_lo:{m} neg_hi:{m}" if neg else ""))
        return
    for q in range(2):
        if op == "add" and neg == "1": a(f"v_sub_f32 v{d+q}, v{x+q}, v{y+q}")
        else: a(f"v_{op}_f32 v{d+q}, " + ", ".join(("-" if str(i) in neg else "") + f"v{r+q}" for i, r in enumerate(srcs)))

def mod7(a, s, t):
    a(f"s_mul_i32 {t}, {s}, 9363\ns_lshr_b32 {t}, {t}, 16\ns_mul_i32 {t}, {t}, 7\ns_sub_u32 {s}, {s}, {t}")

def x_read_addrs(a, v0, vl, base_s, t):
    a(f"""v_and_b32 v{t}, 31, {vl}
v_lshrrev_b32 v{t+1}, 5, {vl}
v_bfe_u32 v{t+2}, {vl}, 1, 3
v_xor_b32 v{t+1}, v{t+1}, v{t+2}
v_lshlrev_b32 v{t}, 7, v{t}
v_add_u32 v{t}, {base_s}, v{t}""")
    for mm in range(4):
        a(f"v_xor_b32 v{t+2}, {2*mm}, v{t+1}\nv_lshl_add_u32 v{v0+mm}, v{t+2}, 4, v{t}")


S_HH, S_RR, S_J, S_P0, S_LC = "s52", "s53", "s54", "s55", "s3"

def prologue(a):
    a(f"""s_cmp_ge_u32 s2, 256
s_cbranch_scc1 L_end
s_load_dwordx16 s[4:19], s[0:1], 0
s_load_dwordx2 s[20:21], s[0:1], 64""")
    if cfg.span or cfg.probe >= 0: a("s_memrealtime s[100:101]")
    if cfg.stamps:
        a(f"s_memtime s[38:39]\ns_memrealtime s[100:101]")
        for i in range(1, 15): a(f"s_mov_b32 s{STAMP0+i}, 0")
    a(f"""s_lshr_b32 {S_IDX}, s2, 3
s_getpc_b64 s[70:71]
L_pc:
v_lshrrev_b32 v3, 5, v0
v_lshl_add_u32 v3, {S_IDX}, 4, v3
v_lshlrev_b32 v3, 7, v3
v_min_u32 v3, L_codeend-L_pc-4, v3
global_load_dword v255, v3, s[70:71]
v_lshrrev_b32 v2, 6, v0
v_and_b32 v1, 63, v0
v_readfirstlane_b32 {S_WAVE}, v2
s_and_b32 {S_XCD}, s2, 7
s_and_b32 {S_HH}, {S_IDX}, 7
s_lshr_b32 {S_RR}, {S_IDX}, 3
s_and_b32 {T5}, {S_XCD}, 1
s_lshl_b32 {S_H}, {T5}, 3
s_add_u32 {S_H}, {S_H}, {S_HH}
s_lshl_b32 {T0}, {S_HH}, 2
s_cmp_eq_u32 {T5}, 0
s_cselect_b32 {S_LC}, 0x67543210, s2
s_cselect_b32 {S_LC}, {S_LC}, 0x65432170
s_lshr_b32 {S_LC}, {S_LC}, {T0}
s_and_b32 {S_LC}, {S_LC}, 7
s_and_b32 {S_W4}, {S_WAVE}, 3
s_cmp_ge_u32 {S_WAVE}, 4
s_cbranch_scc1 L_roleA""")

def nonce(a):
    a(f"""s_waitcnt lgkmcnt(0)
s_mul_i32 s62, s62, 0x9E3779B1
s_add_u32 s62, s62, 0x7F4A7C15
s_mul_i32 s63, s63, 0x85EBCA6D
s_add_u32 s63, s63, 0x165667B1""")

def role_B(a):
    X = 16; ACC = 128; WB = 160; PK = 224
    KVSC = ("sc1", "sc0 sc1", "sc1 nt", "sc0 sc1 nt")[cfg.kvsc]
    SC = 70
    S_XL, S_TILE, S_I = "s77", "s78", "s79"
    TO = 36
    S_WM, S_WO, S_DM, S_DO = "s80", "s81", "s82", "s83"
    a(f"""s_setprio 3
s_mul_i32 {S_J}, {T5}, 7
s_add_u32 {S_J}, {S_J}, {S_LC}
v_lshrrev_b32 v8, 3, v1
v_and_b32 v9, 7, v1
v_mul_u32_u24 v2, 2688, v8
v_bfe_u32 v3, v1, 4, 1
v_lshlrev_b32 v3, 2, v3
v_xor_b32 v3, v9, v3
v_lshl_add_u32 v2, v3, 4, v2
s_lshl_b32 {T0}, {S_J}, 7
s_mul_i32 {T1}, {S_W4}, {8*2688}
s_add_u32 {T0}, {T0}, {T1}
s_add_u32 {T0}, {T0}, 896
v_add_u32 v2, {T0}, v2
s_lshl_b32 {T2}, {S_RR}, 3
s_lshr_b32 {T0}, {0xD66D0770 if cfg.wrot else 0x70707070}, {T2}
s_bfe_u32 {T1}, {T0}, 0x40004
s_and_b32 {T0}, {T0}, 15
s_lshl_b32 {T3}, {S_W4}, 10
s_lshl_b32 {T2}, {T0}, 12
s_add_u32 m0, {T2}, {T3}
s_mul_i32 {S_I}, {T0}, {32*2688}
s_lshl_b32 {T2}, {T1}, 12
s_add_u32 {S_WM}, {T2}, {T3}
s_mul_i32 {S_WO}, {T1}, {32*2688}
s_cmp_ge_u32 {S_RR}, {2 if cfg.wrot else 4}
s_cselect_b32 {T0}, -1, 1
s_lshl_b32 {S_DM}, {T0}, 12
s_mul_i32 {S_DO}, {T0}, {32*2688}
s_cmp_eq_u32 {S_LC}, 7
s_cselect_b32 s30, 0, {448 * 2688}
s_mov_b32 s31, 0x20000
s_waitcnt lgkmcnt(0)
{st0()}
s_mov_b64 s[28:29], s[12:13]""")
    def x_m0(i, j): return f"s_add_u32 m0, {S_XL}, {(i%4)*4096 + j*1024}"
    def x_ld(i, j): return f"buffer_load_dwordx4 v{4+j}, {sX}, s{SC+i} offen{' nt' if cfg.ntb else ''} lds"
    def sc_next(i): return f"s_add_u32 s{SC+i}, s{SC+i-1}, 128\ns_cmp_eq_u32 s{SC+i}, 896\ns_cselect_b32 s{SC+i}, 0, s{SC+i}"
    def w_base(i): return f"v_lshl_add_u32 v12, s{SC+i}, 6, v14\nv_xor_b32 v13, 64, v12"
    def setup_x():
        a(f"""s_mov_b32 s34, {2048*896}
s_mov_b32 s35, 0x20000
s_lshr_b32 {S_R}, {S_XCD}, 1
s_lshl_b32 {S_R}, {S_R}, 2
s_add_u32 {S_R}, {S_R}, {S_RR}
s_lshl_b32 {S_TILE}, {S_R}, 2
s_add_u32 {S_TILE}, {S_TILE}, {S_W4}
v_lshrrev_b32 v10, 4, v1
v_xor_b32 v10, v9, v10
v_xor_b32 v11, 4, v10
v_mul_u32_u24 v12, 896, v8
s_mul_i32 {T2}, {S_TILE}, {32*896}
v_add_u32 v12, {T2}, v12
v_lshl_add_u32 v4, v10, 4, v12
v_lshl_add_u32 v5, v11, 4, v12
v_add_u32 v5, {8*896}, v5
v_add_u32 v6, {16*896}, v4
v_add_u32 v7, {16*896}, v5
s_lshl_b32 {T2}, {S_HH}, 2
s_lshr_b32 s{SC}, {cfg.xrot}, {T2}
s_and_b32 s{SC}, s{SC}, 7
s_lshl_b32 s{SC}, s{SC}, 7
s_lshl_b32 {S_XL}, {S_W4}, 14
s_add_u32 {S_XL}, {S_XL}, {L_X}""")
        a("s_mov_b64 s[32:33], s[10:11]")
    def setup2():
        for i in range(1, 7): a(sc_next(i))
        x_read_addrs(a, 8, "v1", S_XL, 12)
        srd(a, sWS, 20, WS_SIZE)
        a(f"""v_lshrrev_b32 v12, 5, v1
v_lshlrev_b32 v12, 3, v12
v_bfe_u32 v13, v1, 2, 2
v_add_u32 v12, v12, v13
v_bfe_u32 v13, v1, 4, 1
v_lshlrev_b32 v13, 5, v13
v_and_b32 v18, 1, v1
v_bfe_u32 v19, v1, 1, 1
v_lshl_add_u32 v15, v18, 4, v13
v_lshl_add_u32 v15, v19, 3, v15
v_lshl_add_u32 v14, v18, 3, v13
v_lshl_add_u32 v14, v19, 4, v14
s_cmp_eq_u32 {T5}, 1
s_cselect_b64 vcc, -1, 0
v_cndmask_b32 v14, v15, v14, vcc
v_lshl_add_u32 v15, v12, 6, v15
v_add_u32 v15, {L_WQ}, v15
v_bfe_u32 v13, v1, 3, 1
v_lshl_add_u32 v14, v13, 6, v14
v_lshl_add_u32 v14, v12, 7, v14""")
        a(f"""v_lshrrev_b32 v253, 2, v1
v_mul_u32_u24 v253, 2688, v253
v_and_b32 v254, 3, v1
v_lshl_add_u32 v253, v254, 4, v253
s_mul_i32 {S_P0}, {S_H}, 7
s_lshr_b32 {S_P0}, {S_P0}, 1
s_lshl_b32 s80, {S_P0}, 4
s_mul_i32 s81, {S_W4}, {16*2688}
s_add_u32 s80, s80, s81
v_add_u32 v253, s80, v253
s_lshl_b32 s80, {S_W4}, 10
s_add_u32 s80, s80, {L_WQ}
s_and_b32 s81, {S_P0}, 7
s_cmp_gt_u32 s81, 4
s_cselect_b32 s81, 1, 0
s_nop 0""")
        a(w_base(0))
        a(f"v_mov_b32 v250, {L_SYNC}\nv_mov_b32 v251, 1\nv_mov_b32 v246, 0\ns_mov_b32 {S_BAR}, 0")
    VK, VV, VF, VL = 240, 241, 242, 243
    PG = ["s4", "s5", "s6", "s7"]; S_FL = "s8"
    def setup3():
        a(f"""v_lshlrev_b32 v{VL}, 4, v1
s_lshl_b32 {T0}, {S_P0}, 9
v_add_u32 v{VK}, {T0}, v{VL}
s_lshl_b32 {T0}, {S_H}, 11
s_add_u32 {T0}, {T0}, {VOFF}
v_add_u32 v{VV}, {T0}, v{VL}
s_lshr_b32 {T1}, {S_P0}, 3
s_add_u32 {T0}, {S_P0}, 3
s_lshr_b32 {T0}, {T0}, 3
s_sub_u32 {T0}, {T0}, {T1}
v_and_b32 v{VF}, 1, v1
v_mul_u32_u24 v{VF}, {T0}, v{VF}
v_bfe_u32 v18, v1, 1, 1
v_mul_u32_u24 v18, 7, v18
v_add_u32 v{VF}, v{VF}, v18
v_lshlrev_b32 v{VF}, 7, v{VF}
s_lshl_b32 {T0}, {S_W4}, 4
s_add_u32 {T0}, {T0}, {T1}
s_lshl_b32 {T0}, {T0}, 7
s_add_u32 {T3}, {T0}, {FKV}
s_lshr_b32 {T2}, {S_R}, 2
s_lshl_b32 {T2}, {T2}, 3
s_lshr_b32 {T2}, {cfg.gtab if cfg.gtab > 1 else 0x934E39E4}, {T2}
s_mul_i32 {T1}, {S_W4}, {4*TS}
s_add_u32 {T1}, {T1}, {KV}""")
        for p in range(4): a(f"s_add_u32 {T0}, {S_RR}, {p}\ns_and_b32 {T0}, {T0}, 3\ns_mul_i32 s{TO+12+p}, {T0}, {TS}")
        for g in range(4):
            a(f"s_bfe_u32 {T0}, {T2}, {0x20000 + 2*g}\ns_lshl_b32 {PG[g]}, {T0}, 13\ns_add_u32 {PG[g]}, {PG[g]}, {T3}\ns_mul_i32 {T0}, {T0}, {16*TS}\ns_add_u32 {T0}, {T0}, {T1}")
            for p in range(4):
                a(f"s_add_u32 s{TO+4*g+p}, {T0}, " + (f"{p*TS}" if (g == 0 or cfg.kvrot == 0) else f"s{TO+12+p}"))
        a(f"""s_cmp_eq_u32 {S_LC}, 7
s_cselect_b32 {T1}, 15, {S_J}
s_lshl_b32 {T0}, {S_R}, 4
s_add_u32 {T0}, {T0}, {T1}
s_lshl_b32 {T0}, {T0}, 7
s_add_u32 {S_FL}, {T0}, {FKV}""")
    stamp(a, 3, 2)
    XE = cfg.xearly
    def mid():
        stamp(a, 4, 2)
        a("s_barrier")
        if cfg.fine != 2: a(f"s_load_dwordx2 s[62:63], s[20:21], {EPOCH}")
        stamp(a, 5, 2)
    for i in range(14):
        a(f"buffer_load_dwordx4 v2, {sWQKV}, {S_I} offen lds")
        if i == 6:
            if XE:
                setup_x()
                for j in range(4): a(x_m0(0, j)); a("s_nop 0"); a(x_ld(0, j))
                mid()
            a(f"s_mov_b32 m0, {S_WM}\ns_mov_b32 {S_I}, {S_WO}")
            if XE: setup2(); setup3()
        elif i < 13: a(f"s_add_u32 m0, m0, {S_DM}\ns_add_u32 {S_I}, {S_I}, {S_DO}")
        if i == 10 and not XE:
            mid(); setup_x(); setup2(); setup3()
    stamp(a, 8, 2)
    a(f"s_waitcnt vmcnt({cfg.wfair})")
    stamp(a, 10, 2)
    for c in range(XE, 2 + XE):
        for j in range(4): a(x_m0(c, j)); a("s_nop 0"); a(x_ld(c, j))
    stamp(a, 11, 2)
    if cfg.fine == 2: a(f"s_load_dwordx2 s[62:63], s[20:21], {EPOCH}")
    nonce(a)
    a("v_mov_b32 v244, s62\nv_mov_b32 v245, s63\nds_write_b64 v250, v[244:245] offset:64")
    def w_base(i): return f"v_lshl_add_u32 v12, s{SC+i}, 6, v14\nv_xor_b32 v13, 64, v12"
    def wq(i): return f"s_add_u32 m0, s80, {i*4096}\ns_mul_i32 s82, s{SC+i}, {64*21}\nbuffer_load_dwordx4 v253, {sWQKV}, s82 offen lds"
    a(f"s_mov_b32 s30, {448 * 2688}")
    def w_reads(i):
        out = []
        for mm in range(4):
            for ct in range(2):
                for hf in range(2):
                    d = WB + (i % 2) * 32 + mm * 8 + ct * 4 + hf * 2
                    out.append(f"ds_read_b64_tr_b16 {V(d,2)}, v{12+ct} offset:{mm*2048 + hf*512}")
        return out
    def x_reads(i):
        return [f"ds_read_b128 {V(X+16*i+4*mm,4)}, v{8+mm} offset:{(i%4)*4096}" for mm in range(4)]
    a(f"""s_waitcnt vmcnt(8)""")
    stamp(a, 1)
    a(f"s_mov_b64 exec, 1\nds_add_u32 v250, v251\ns_mov_b64 exec, -1")
    for j in range(2): a(x_m0(2 + XE, j)); a("s_nop 0"); a(x_ld(2 + XE, j))
    lwait(a, "v250", 252, 4, 19)
    stamp(a, 3, 1)
    wr0 = w_reads(0)
    for s_ in wr0[:8]: a(s_)
    if not XE: a("s_waitcnt vmcnt(6)")
    for s_ in x_reads(0) + wr0[8:]: a(s_)
    a(f"s_cmp_eq_u32 {T5}, 1\ns_cbranch_scc1 L_kvV")
    for var in ("K", "V"):
        if var == "V": a("L_kvV:")
        late = [f"s_mul_i32 {T4}, {S_TILE}, {TS}", f"s_add_u32 {T4}, {T4}, {KV}", "v_lshlrev_b32 v7, 4, v1"]
        if var == "K":
            late += [f"s_lshl_b32 {T0}, {S_LC}, 12", f"s_add_u32 {T4}, {T4}, {T0}"]
        else:
            late += f"""s_lshl_b32 {T1}, {S_LC}, 6
v_and_b32 v4, 31, v1
v_add_u32 v4, {T1}, v4                    ; col (ct0)
v_add_u32 v5, 32, v4
v_lshrrev_b32 v3, 5, v1
v_lshlrev_b32 v3, 9, v3
v_add_u32 v3, {VOFF}, v3""".split("\n")
            for r in (4, 5):
                late += f"""v_mul_u32_u24 v2, 2341, v{r}
v_lshrrev_b32 v2, 16, v2
v_mul_u32_u24 v2, {2048 - 28*16}, v2
v_lshl_add_u32 v{r}, v{r}, 4, v2
v_add_u32 v{r}, v{r}, v3""".split("\n")
            late += f"""s_lshl_b32 {T1}, {S_LC}, 2
s_lshr_b32 {T2}, 0xDB96420, {T1}
s_and_b32 {T2}, {T2}, 15                  ; first head that ends in this line-column
s_lshr_b32 {T3}, 0x3223222, {T1}
s_and_b32 {T3}, {T3}, 15
s_lshl_b32 {T3}, {T3}, 4
v_lshrrev_b32 v6, 2, v1
v_lshlrev_b32 v6, 9, v6
v_and_b32 v2, 3, v1
v_lshl_add_u32 v6, v2, 4, v6
s_lshl_b32 {T2}, {T2}, 11
s_add_u32 {T2}, {T2}, {VOFF + 28*16}
v_add_u32 v6, {T2}, v6
v_cmp_eq_u32 vcc, 0, v2
v_mov_b32 v2, 0x3f803f80
s_nop 0
v_cndmask_b32 v236, 0, v2, vcc
v_cndmask_b32 v237, 0, v2, vcc
v_cndmask_b32 v238, 0, v2, vcc
v_cndmask_b32 v239, 0, v2, vcc""".split("\n")
        for i in range(7):
            a("s_waitcnt lgkmcnt(0)")
            stamp(a, 4 + i, 1)
            fill = [[] for _ in range(8)]
            pre = [[] for _ in range(8)]
            if i == 0:
                dq = [(c, j) for c in range(1, 7) for j in range(4)]
                issued_q = dq[:6 + 4*XE]; dq = dq[6 + 4*XE:]
            def take(g):
                if dq and dq[0][0] <= i + 4:
                    e = dq.pop(0); issued_q.append(e)
                    pre[g].append(x_m0(*e)); fill[g].insert(0, x_ld(*e))
            had = bool(dq)
            if i + 1 < 7:
                wr = w_reads(i + 1)
                fill[0] += [w_base(i + 1)] + wr[0:3]
                fill[1] += wr[3:8]; fill[2] += wr[8:12]; fill[3] += wr[12:16]
                for g in ((0, 1, 2, 3, 4) if i == 0 and not XE else (0,)): take(g)
                if i == 4:
                    fill[1].append("s_cmp_eq_u32 s81, 1\ns_cselect_b64 exec, -1, 0\n" + "\n".join(wq(q) for q in range(cfg.wqe)) + "\ns_mov_b64 exec, -1")
                    issued_q += [(99, q) for q in range(cfg.wqe)]
                last = max(q for q, e in enumerate(issued_q) if e[0] == i + 1)
                fill[4] += [f"s_waitcnt vmcnt({len(issued_q) - 1 - last})"] + x_reads(i + 1)
            for g in range(5, 8): take(g)
            if i == 4:
                assert not had
                fill[0].insert(0, "s_mov_b64 exec, 1\nds_add_u32 v250, v251 offset:8\ns_mov_b64 exec, -1")
            if not had:
                for g in range(5 if i < 6 else 0, 8):
                    for q in range(6):
                        if late: fill[g].append(late.pop(0))
            for mm in range(4):
                for ct in range(2):
                    xr = X + 16*i + 4*mm; wr_ = WB + (i % 2) * 32 + mm * 8 + ct * 4
                    c = None if (i == 0 and mm == 0) else ACC + 16*ct
                    for s_ in pre[2*mm + ct]: a(s_)
                    a(mfma(ACC + 16*ct, wr_, xr, c) if var == "K" else mfma(ACC + 16*ct, xr, wr_, c))
                    for s_ in fill[2*mm + ct]: a(s_)
        assert not late
        stamp(a, 11, 1)
        a(f"s_cmp_eq_u32 {S_LC}, 7\ns_cbranch_scc1 L_kvnone")
        if var == "V":
            a(f"s_bfm_b64 exec, {T3}, 0\nbuffer_store_dwordx4 v[236:239], v6, {sWS}, {T4} offen sc1\ns_mov_b64 exec, -1")
        for ct in range(2):
            for j in range(2):
                for q in range(4):
                    z = 8*ct + 4*j + q
                    a(f"v_cvt_pk_bf16_f32 v{PK+z}, v{ACC+2*z}, v{ACC+2*z+1}")
                if var == "K":
                    a(f"buffer_store_dwordx4 {V(PK+8*ct+4*j,4)}, v7, {sWS}, {T4} offen offset:{ct*2048+j*1024} {KVSC}")
                else:
                    a(f"buffer_store_dwordx4 {V(PK+8*ct+4*j,4)}, v{4+ct}, {sWS}, {T4} offen offset:{j*1024} {KVSC}")
        if var == "K": a("s_branch L_kvdone\nL_kvnone:\ns_waitcnt vmcnt(0)\ns_branch L_kvdone")
    a("L_kvdone:\ns_mov_b64 exec, 1\nds_add_u32 v250, v251\ns_mov_b64 exec, -1")
    stamp(a, 2)
    NB = cfg.nbuf
    Q = 16; O = 48; SA = 112; KVB = 144; P0 = KVB + 16*NB; P1 = P0 + 4
    assert P1 + 4 <= 240
    QP = 224
    S_LD = "s9"
    def kv_loads(t, so=None):
        b = KVB + 16 * (t % NB); so = so or f"s{TO + (t if not cfg.hack or t < cfg.hack else t % cfg.hack)}"
        return [f"buffer_load_dwordx4 {V(b+4*j,4)}, v{VK if j < 2 else VV}, {sWS}, {so} offen offset:{(j%2)*1024} sc1" for j in range(4)]
    PV = 254; QA = (4, 6, 8, 9)
    pl = poll_issue(f"v{VF}", PG[0], PV, 4)
    QW = 176
    def qsync(target):
        a("s_mov_b64 exec, 1\nds_add_u32 v250, v251 offset:4\ns_mov_b64 exec, -1")
        lwait(a, "v250", 5, target, 14, off=4)
    def qmma(c0, c1, issue, check):
        rd = [f"ds_read_b64_tr_b16 {V(QW+(i%3)*16+mm*4+hf*2,2)}, v15 offset:{i*4096+mm*1024+hf*256}" for i in range(c0, c1) for mm in range(4) for hf in range(2)]
        iss = min(len(rd), 12)
        for s_ in rd[:iss]: a(s_)
        for m in range(4 * (c1 - c0)):
            a(f"s_waitcnt lgkmcnt({iss - (2*m + 2)})")
            a(mfma(ACC, QW + ((c0 + m // 4) % 3) * 16 + 4*(m % 4), X + 16*c0 + 4*m, None if c0 + m == 0 else ACC))
            for s_ in rd[iss:iss+2]: a(s_)
            iss = min(len(rd), iss + 2)
            if m == issue: a(pl)
            if m == check:
                Lf, Lg = a.lab("pf"), a.lab("pg")
                a(f"s_waitcnt vmcnt(0)\n{poll_check(PV, 4)}\ns_cbranch_scc1 {Lf}\ns_mov_b32 {S_LD}, 1")
                for t in range(2):
                    for s_ in kv_loads(t): a(s_)
                a(f"s_branch {Lg}\n{Lf}:\n{pl}\n{Lg}:")
    S_OB, S_FO, S_LO, S_HI, S_CL, S_M0 = "s10", "s11", "s12", "s13", "s14", "s[76:77]"
    def addrs():
        a(f"""s_lshl_b32 {S_OB}, {S_TILE}, 4
s_add_u32 {S_OB}, {S_OB}, {S_H}
s_lshl_b32 {S_OB}, {S_OB}, 11
s_add_u32 {S_OB}, {S_OB}, {OBUF}
s_lshl_b32 {S_FO}, {S_R}, 4
s_add_u32 {S_FO}, {S_FO}, {S_H}
s_lshl_b32 {S_FO}, {S_FO}, 7
s_add_u32 {S_FO}, {S_FO}, {FO}
s_mov_b32 {S_LO}, {lit(2.0**-40)}
s_mov_b32 {S_HI}, {lit(2.0**30)}
s_movk_i32 {S_CL}, 0x1f8
s_cmp_eq_u32 {S_W4}, 0
s_cselect_b64 {S_M0}, 1, 0
v_mov_b32 v2, v250
v_mov_b32 v3, 1
v_mov_b32 v7, v{VL}
v_mov_b32 v248, {lit(28 ** -0.5 * math.log2(math.e))}
v_mov_b32 v249, v248""")
        for i in range(4):
            a(f"""s_add_u32 {T0}, {S_W4}, {i+1}
s_and_b32 {T0}, {T0}, 3
s_lshl_b32 {T1}, {T0}, 11
s_add_u32 {T1}, {T1}, {L_Q}
v_add_u32 v{QA[i]}, {T1}, v7
s_mul_i32 {T0}, {T0}, 12288
s_add_u32 {T0}, {T0}, {(i%3)*4096 + L_RED}
v_add_u32 v{10+i}, {T0}, v7""")
    def publish(n):
        a(f"s_waitcnt vmcnt({n})")
        publish_wg(a, "v250", "v251", 16, 5, S_FL, 244)
        stamp(a, 3)
        a("s_waitcnt vmcnt(1)")
    E = cfg.wqe
    a(f"s_mov_b32 {S_LD}, 0\ns_cmp_eq_u32 s81, 1\ns_cbranch_scc1 L_qtwo")
    S_M0 = "s[82:83]" if cfg.xafirst else S_M0
    if cfg.xafirst:
        addrs()
        if cfg.wqdel: a(f"s_sleep {cfg.wqdel}")
        for i in range(7): a(wq(i).replace("s82", T0))
    else:
        for i in range(7): a(wq(i))
        addrs()
    publish(7)
    qsync(4)
    stamp(a, 4)
    qmma(0, 7, cfg.m1, cfg.m2)
    a("s_branch L_qdone\nL_qtwo:\ns_waitcnt vmcnt(4)")
    qsync(4)
    for i in range(E, 7): a(wq(i))
    qmma(0, E, -1, -1)
    addrs()
    publish(7 - E)
    qsync(8)
    stamp(a, 4)
    qmma(E, 7, 0, 4 * (7 - E) - 1)
    a("L_qdone:")
    stamp(a, 5)
    a(f"s_bitcmp1_b32 {S_H}, 0")
    for hf in range(2):
        for q in range(8*hf, 8*hf+8, 2): pk2(a, "mul", ACC+q, ACC+q, 248, scalar=cfg.nopk & 1)
        for q in range(4*hf, 4*hf+4): a(f"v_cvt_pk_bf16_f32 v{QP+q}, v{ACC+2*q}, v{ACC+2*q+1}")
        if hf == 0: a(f"s_cselect_b32 exec_lo, -1, 0\ns_mov_b32 exec_hi, 0\nv_mov_b32 v{QP}, 0\nv_mov_b32 v{QP+1}, 0\ns_mov_b64 exec, -1")
        else: a(f"s_cselect_b32 exec_hi, 0, -1\ns_mov_b32 exec_lo, 0\nv_mov_b32 v{QP+6}, 0\nv_mov_b32 v{QP+7}, 0\ns_mov_b64 exec, -1")
        a(f"ds_write_b128 v9, {V(QP+4*hf,4)} offset:{1024*hf}")
    a(f"""s_mov_b64 exec, 1
ds_add_u32 v2, v3
s_mov_b64 exec, -1
s_cmp_eq_u32 {S_LD}, 1
s_cbranch_scc1 L_kvloaded
s_waitcnt vmcnt(0)
{poll_check(PV, 4)}
s_cbranch_scc0 L_kvready""")
    poll(a, f"v{VF}", PG[0], PV, 4, 1, sleep=2)
    a("L_kvready:")
    for t in range(2):
        for s_ in kv_loads(t): a(s_)
    a("L_kvloaded:\ns_mov_b64 exec, 1\nds_add_u32 v2, v3 offset:12\ns_mov_b64 exec, -1")
    stamp(a, 6)
    if cfg.fine == 6:
        a(f"s_lshl_b32 {T0}, {S_LD}, 10\ns_add_u32 s{STAMP0+1}, s{STAMP0}, {T0}\ns_sub_u32 {T0}, {cfg.poll_limit}, {S_TO}\ns_cmp_gt_u32 {T0}, 100\ns_cselect_b32 {T0}, -1, {T0}\ns_add_u32 {T0}, {T0}, 1\ns_lshl_b32 {T0}, {T0}, 10\ns_add_u32 s{STAMP0+2}, s{STAMP0}, {T0}")
    lwait(a, "v2", 5, 12, 15)
    a(f"s_mov_b32 {S_BAR}, 12")
    for i in range(4):
        a(f"ds_read_b128 {V(Q+8*i,4)}, v{QA[i]}\nds_read_b128 {V(Q+8*i+4,4)}, v{QA[i]} offset:1024")
    stamp(a, 7)
    a("s_waitcnt vmcnt(6) lgkmcnt(6)\ns_setprio 0")
    if cfg.padmid: padto(a, cfg.padmid)
    stamp(a, 8)
    a(mfma(SA, KVB, Q)); a(mfma(SA, KVB + 4, Q + 4, SA))
    a("s_waitcnt vmcnt(4) lgkmcnt(0)\ns_nop 9\n.p2align 3")
    sched = {}
    issued = 2
    for t in range(16):
        for i in (1, 2):
            if (i == 1 or t % cfg.ramp == 0) and issued <= min(15, t + NB - 1):
                sched[(t, i)] = issued; issued += 1
    first = {g: min(k for k, v in sched.items() if v == 4*g) for g in (1, 2, 3)}
    pollat = {(k[0] - 1, 0): g for g, k in first.items()}
    vq = [("t", 1)] * 4
    def after(tag): return len(vq) - 1 - max(q for q, e in enumerate(vq) if e == tag)
    assert NB >= 5
    units = [(t, i) for t in range(12) for i in range(4)] + [(t, i) for i in range(4) for t in range(12, 16)]
    firstuse = {}
    for n, (t, i) in enumerate(units): firstuse.setdefault(t, n)
    waitat = {n - 2: t for t, n in firstuse.items() if t > 0}
    kb = lambda tt: KVB + 16 * (tt % NB)
    redw = lambda i, q: f"ds_write_b128 v{10+i}, {V(O+16*i+4*q,4)} offset:{q*1024}"
    for n, (t, i) in enumerate(units):
        if n % 8 == 0 and n: stamp(a, n // 8, 3)
        cur = SA + 16 * (n % 2); nxt = SA + 16 * ((n + 1) % 2)
        ms = [None] * 4
        if n < 63:
            tn, inx = units[n + 1]
            ms[0] = mfma(nxt, kb(tn), Q + 8*inx); ms[1] = mfma(nxt, kb(tn) + 4, Q + 8*inx + 4, nxt)
        if n > 0:
            tp, ip = units[n - 1]
            ms[2] = mfma(O + 16*ip, kb(tp) + 12, P1, O + 16*ip)
        ms[3] = mfma(O + 16*i, kb(t) + 8, P0, None if t == 0 else O + 16*i)
        side = [None] * 4
        key = (n // 4, n % 4)
        if key in sched:
            assert n < 48
            tl = sched[key]
            if tl % 4 == 0:
                g = tl // 4
                a(f"s_waitcnt vmcnt({after(('p', g))})\nv_cmp_ne_u64 vcc, {S_NONCE}, v[14:15]\ns_cbranch_vccnz L_gate{g}\nL_gated{g}:\ns_nop 0")
            side = kv_loads(tl); vq += [("t", tl)] * 4
        if key in pollat:
            g = pollat[key]
            side[0] = f"buffer_load_dwordx2 v[14:15], v{VF}, {sWS}, {PG[g]} offen sc1"; vq.append(("p", g))
        sig = "\ns_mov_b64 exec, 1\nds_add_u32 v2, v3\ns_mov_b64 exec, -1"
        rdr = lambda q: f"ds_read_b128 {V(O+4*q,4)}, v13 offset:{q*1024}"
        if 53 <= n <= 56: side[1] = redw(0, n - 53)
        if n in (57, 58): side[1] = redw(1, 2*(n - 57)); side[3] = redw(1, 2*(n - 57) + 1) + (sig if n == 58 else "")
        if n == 60: side[1] = "ds_read_b32 v5, v2"
        if n == 61:
            a(f"s_waitcnt lgkmcnt(0)\nv_readfirstlane_b32 {T0}, v5\ns_cmp_ge_u32 {T0}, 16\ns_cbranch_scc0 L_redw\nL_redd:")
        if n in (61, 62):
            k_ = n - 61
            side = [redw(2, 2*k_), rdr(4*k_) + "\n" + rdr(4*k_+1), redw(2, 2*k_+1) + (sig if k_ else ""), rdr(4*k_+2) + "\n" + rdr(4*k_+3)]
        if n == 63: side[2] = "ds_read2_b32 v[4:5], v2 offset0:34 offset1:0"
        if n == cfg.bhi: side[0] = "s_setprio 3\ns_nop 0" + ("\n" + side[0] if side[0] else "")
        for p in range(4):
            if ms[p]: a(ms[p])
            if side[p]: a(side[p])
            for e in range(4):
                if n in waitat and p == 3 and e == 3:
                    a(f"s_waitcnt vmcnt({after(('t', waitat[n]))})\nv_exp_f32_e64 v{cur+4*p+e}, v{cur+4*p+e}")
                else:
                    a(f"v_exp_f32 v{cur+4*p+e}, v{cur+4*p+e}")
            pk = (P0, P0 + 2, P1, P1 + 2)[p]
            a(f"v_cvt_pk_bf16_f32 v{pk}, v{cur+4*p}, v{cur+4*p+1}\nv_cvt_pk_bf16_f32 v{pk+1}, v{cur+4*p+2}, v{cur+4*p+3}")
    a(f"s_waitcnt lgkmcnt(0)\nv_readfirstlane_b32 {T0}, v5\nv_readfirstlane_b32 {T1}, v4")
    a(mfma(O + 48, kb(15) + 12, P1, O + 48))
    a(f"s_add_u32 {T1}, {T1}, {12 if cfg.ohint and not cfg.noA else 20}\ns_min_u32 {T0}, {T0}, {T1}\ns_cmp_ge_u32 {T0}, 20\ns_cbranch_scc0 L_redw2\nL_redd2:")
    for q in range(8, 12): a(f"ds_read_b128 {V(O+4*q,4)}, v13 offset:{q*1024}")
    a("s_mov_b64 exec, 1\nds_add_u32 v2, v3")
    if cfg.ohint: a(f"s_mov_b64 exec, {S_M0}\nbuffer_store_dwordx2 v[244:245], v246, {sWS}, {S_FO} offen sc1")
    a("s_mov_b64 exec, -1")
    stamp(a, 9)
    OO = O + 48
    sc_ = cfg.nopk & 2
    for q in range(0, 16, 2): pk2(a, "add", O+q, O+q, O+16+q, scalar=sc_)
    for q in range(0, 16, 2): pk2(a, "add", OO+q, OO+q, O+q, scalar=sc_)
    a("s_waitcnt lgkmcnt(1)")
    for q in (12, 0, 2, 4, 6, 8, 10, 14): pk2(a, "add", OO+q, OO+q, O+32+q, scalar=sc_)
    a(f"""v_mov_b32 v10, v{OO+12}
v_mov_b32 v11, v{OO+12}
v_mul_f32 v12, v{OO}, v{OO+1}
v_mul_f32 v13, v{OO+2}, v{OO+3}
v_permlane32_swap_b32 v10, v11
v_fma_f32 v12, v{OO+4}, v{OO+5}, v12
v_fma_f32 v13, v{OO+6}, v{OO+7}, v13
v_rcp_f32 v10, v11
v_fma_f32 v12, v{OO+8}, v{OO+9}, v12
v_fma_f32 v13, v{OO+10}, v{OO+11}, v13
v_cmp_le_f32 s[70:71], {S_LO}, v11
v_fma_f32 v12, v{OO+12}, v{OO+13}, v12
v_fma_f32 v13, v{OO+14}, v{OO+15}, v13
v_cmp_ge_f32 s[72:73], {S_HI}, v11
v_add_f32 v12, v12, v13
v_cmp_class_f32 vcc, v12, {S_CL}
s_and_b64 s[70:71], s[70:71], s[72:73]
s_and_b64 vcc, vcc, s[70:71]
s_cmp_eq_u64 vcc, exec""")
    if cfg.force_fb: a("s_cmp_eq_u32 0, 1")
    a(f"s_cbranch_scc0 L_fallback\nL_fbdone:\nv_mov_b32 v11, v10")
    for hf in range(2):
        for q in range(8*hf, 8*hf+8, 2): pk2(a, "mul", OO+q, OO+q, 10, scalar=sc_)
        for q in range(4*hf, 4*hf+4): a(f"v_cvt_pk_bf16_f32 v{O+q}, v{OO+2*q}, v{OO+2*q+1}")
        if hf: a(f"s_mov_b32 exec_lo, 0\nv_mov_b32 v{O+6}, 0\ns_mov_b32 exec_lo, -1")
        if cfg.ohint: a(f"v_min_u32 v{O+4*hf}, -2, v{O+4*hf}")
        a(f"buffer_store_dwordx4 {V(O+4*hf,4)}, v7, {sWS}, {S_OB} offen offset:{1024*hf} sc1")
    stamp(a, 10)
    S_BP, S_CNT, S_DT = "s70", "s71", "s72"
    GS = 144; GC = 176; ZR = 196; G = 16; OL = 196; AR = 128
    S_O0, S_O1, S_FH, S_RT, S_CLM = "s73", "s74", "s75", "s76", "s77"
    a(f"""s_lshl_b32 {S_BP}, {S_XCD}, 3
s_lshr_b32 {T0}, {S_IDX}, 2
s_add_u32 {S_BP}, {S_BP}, {T0}
s_and_b32 {T1}, {S_IDX}, 3
s_cmp_ge_u32 {T1}, 2
s_cselect_b32 {S_CNT}, 3, 4
s_lshl_b32 {S_DT}, {T1}, 2
s_cmp_eq_u32 {T1}, 3
s_cselect_b32 {S_DT}, 11, {S_DT}
s_add_u32 {S_DT}, {S_DT}, {S_W4}
s_cmp_ge_u32 {S_W4}, {S_CNT}
s_cbranch_scc1 L_bend
s_setprio {cfg.fprio}
v_bfe_u32 v5, v1, 2, 1
v_lshlrev_b32 v5, 4, v5
v_bfe_u32 v6, v1, 3, 2
v_lshl_add_u32 v5, v6, 2, v5
v_and_b32 v6, 3, v1
v_add_u32 v5, v5, v6
s_lshl_b32 {T0}, {S_DT}, 5
v_add_u32 v5, {T0}, v5                    ; d
v_lshlrev_b32 v9, 31, v5
v_xor_b32 v9, 0.5, v9                     ; 0.5*(-1)^d
v_cvt_f32_u32 v5, v5
v_mul_f32 v5, {lit(1/448)}, v5
v_lshrrev_b32 v4, 5, v1
v_cvt_f32_u32 v6, v4
v_mul_f32 v6, v5, v6
v_mul_f32 v6, 4.0, v6
v_mul_f32 v{GC}, {lit(16.0)}, v5
v_cos_f32 v{GC}, v{GC}""")
    for j in range(16): a(f"v_fmamk_f32 v{GS+j}, v5, {lit(float(16*(j//8) + 8*((j%8)//4) + j%4))}, v6")
    a(f"v_add_f32 v{GC}, v{GC}, v{GC}")
    for j in range(16): a(f"v_sin_f32_e64 v{GS+16+j}, -v{GS+j}\nv_cos_f32 v{GS+j}, v{GS+j}")
    a(f"v_mov_b32 v{GC+1}, v{GC}")
    def ggen(q0, q1):
        a(".p2align 3")
        for q in range(q0, q1):
            rho = q % 2; st = q // 2
            cur = GS + 16*rho + 8*(st % 2); oth = GS + 16*rho + 8*((st + 1) % 2); gp = G + 4*q
            if st >= 2:
                for z in range(0, 8, 2):
                    pk2(a, "fma", cur+z, GC, oth+z, cur+z, neg="2", scalar=cfg.nopk & 8)
            for z in range(4): a(f"v_cvt_pk_bf16_f32 v{gp+z}, v{cur+2*z}, v{cur+2*z+1}")
            if st == 0:
                a(f"s_mov_b32 exec_hi, 0\nv_cvt_pk_bf16_f32 v{gp}, {'v9' if rho else '0.5'}, v{cur+1}\ns_mov_b32 exec_hi, -1")
    ggen(0, 28)
    stamp(a, 11)
    srd(a, sOUT, 16, 2048 * 1792)
    a(f"""v_add_u32 v8, {L_ZB}, v7
s_mul_i32 {T4}, {S_BP}, 1792
s_lshl_b32 {T1}, {S_DT}, 6
s_add_u32 {T4}, {T4}, {T1}""")
    if cfg.cost & 2:
        a(f"""s_lshl_b32 {T1}, {S_W4}, 11
s_add_u32 {T1}, {T1}, {L_Q}
v_and_b32 v10, 31, v1
v_lshlrev_b32 v10, 6, v10
v_lshl_add_u32 v10, v4, 5, v10
v_add_u32 v10, {T1}, v10
v_add_u32 v11, {T1}, v7
v_lshrrev_b32 v6, 2, v1
v_mul_u32_u24 v6, {64*1792}, v6
v_and_b32 v12, 3, v1
v_lshl_add_u32 v6, v12, 4, v6
s_add_u32 {T3}, {T4}, {16*64*1792}""")
    else:
        a(f"v_and_b32 v6, 31, v1\nv_mul_u32_u24 v6, {64*1792}, v6\nv_lshl_add_u32 v6, v4, 5, v6")
    lwait(a, "v2", 5, 4, 17, off=132)
    stamp(a, 13)
    order = [4*(q//4) + 2*(q % 2) + ((q//2) % 2) for q in range(28)]
    for q in range(8): a(f"ds_read_b128 {V(ZR+4*q,4)}, v8 offset:{order[q]*1024}")
    for p in range(28):
        a(f"s_waitcnt lgkmcnt({min(7, 27-p)})")
        a(mfma(AR, G + 4*p, ZR + 4*(p % 8), None if p == 0 else AR))
        if p + 8 < 28: a(f"ds_read_b128 {V(ZR+4*(p%8),4)}, v8 offset:{order[p+8]*1024}")
    osc = ("", " sc1", " nt", " sc0 sc1", " sc1 nt")[cfg.outsc]
    if cfg.odefer and not cfg.noA: lwait(a, "v2", 5, 4, 36, sleep=2, off=20)
    for hf in range(2):
        for q in range(4*hf, 4*hf+4): a(f"v_cvt_pk_bf16_f32 v{GS+q}, v{AR+2*q}, v{AR+2*q+1}")
        if cfg.cost & 2: a(f"ds_write_b128 v10, {V(GS+4*hf,4)} offset:{16*hf}")
        else: a(f"buffer_store_dwordx4 {V(GS+4*hf,4)}, v6, {sOUT}, {T4} offen offset:{16*hf}{osc}")
    if cfg.cost & 2:
        a(f"""ds_read_b128 {V(GS+8,4)}, v11
ds_read_b128 {V(GS+12,4)}, v11 offset:1024
s_waitcnt lgkmcnt(1)
buffer_store_dwordx4 {V(GS+8,4)}, v6, {sOUT}, {T4} offen{osc}
s_waitcnt lgkmcnt(0)
buffer_store_dwordx4 {V(GS+12,4)}, v6, {sOUT}, {T3} offen{osc}""")
    a("L_bend:")
    stamp(a, 12)
    dump_stamps(a, 240)
    a("s_endpgm")
    a("L_redw:")
    lwait(a, "v2", 5, 16, 2)
    a("s_branch L_redd\nL_redw2:")
    lwait(a, "v2", 5, 20, 2)
    if cfg.ohint and not cfg.noA: lwait(a, "v2", 5, 8, 39, sleep=1, off=136)
    a("s_branch L_redd2")
    for g in (1, 2, 3):
        a(f"L_gate{g}:")
        poll(a, f"v{VF}", PG[g], 14, 4, 25, sleep=2)
        a(f"s_branch L_gated{g}")
    a("L_fallback:")
    QO = Q + 24; KB = KVB; M = 15; S_SO = "s70"
    a(f"v_mov_b32 v{M}, 0xff800000\ns_mov_b32 {S_SO}, {KV}\nL_fb1:")
    for s_ in kv_loads(0, S_SO)[:2]: a(s_)
    a(f"s_add_u32 {S_SO}, {S_SO}, {TS}\ns_waitcnt vmcnt(0)")
    a(mfma(SA, KB, QO)); a(mfma(SA, KB + 4, QO + 4, SA))
    for q in range(0, 16, 2): a(f"v_max3_f32 v{M}, v{M}, v{SA+q}, v{SA+q+1}")
    a(f"""s_cmp_lt_u32 {S_SO}, {KV + 64*TS}
s_cbranch_scc1 L_fb1
v_mov_b32 v14, v{M}
v_permlane32_swap_b32 v14, v{M}
v_max_f32 v{M}, v14, v{M}
s_mov_b32 {S_SO}, {KV}""")
    for q in range(16): a(f"v_mov_b32 v{OO+q}, 0")
    a("L_fb2:")
    for s_ in kv_loads(0, S_SO): a(s_)
    a(f"s_add_u32 {S_SO}, {S_SO}, {TS}\ns_waitcnt vmcnt(0)")
    a(mfma(SA, KB, QO)); a(mfma(SA, KB + 4, QO + 4, SA))
    for q in range(16): a(f"v_sub_f32 v{SA+q}, v{SA+q}, v{M}")
    for q in range(16): a(f"v_exp_f32 v{SA+q}, v{SA+q}")
    for q in range(8): a(f"v_cvt_pk_bf16_f32 v{P0+q}, v{SA+2*q}, v{SA+2*q+1}")
    a(mfma(OO, KB + 8, P0, OO)); a(mfma(OO, KB + 12, P1, OO))
    a(f"""s_cmp_lt_u32 {S_SO}, {KV + 64*TS}
s_cbranch_scc1 L_fb2
v_mov_b32 v10, v{OO+12}
v_mov_b32 v11, v{OO+12}
v_permlane32_swap_b32 v10, v11
v_rcp_f32 v10, v11
s_branch L_fbdone""")

def role_A(a):
    FB = 16; GS0 = 48; M = 72; F = 88; ACC = 200; TMP = 216
    S_BP = "s78"
    S_CG, S_CNT, S_CB, S_DT, S_TASK, S_K1 = "s79", "s80", "s81", "s82", "s83", "s73"
    S_B, S_KT16 = S_BP, S_DT
    (PN, _, _, P_TST, P_W, P_F1, P_TLD, P_TBW, P_TBR, P_TTW, P_TTR, P_UST, P_F2, P_WOD, P_WOR, P_WOR2,
     P_ZW0, P_ZW1, P_PF, P_BC, P_PS, _, P_LS, P_DUM) = range(232, 256)
    sc = 1.0 / (2048 * 448)
    def albar(code): lbar(a, "v14", "v15", P_LS, code, sleep=1)
    def burst(items, th):
        a("s_setprio 0")
        for q, it in enumerate(items):
            if q >= th: a(f"s_waitcnt vmcnt({th-1})")
            a(it)
        a(f"s_setprio {cfg.aprio}")
    SB = "s[74:75]"
    def stage_arrive(k):
        L = a.lab("arr")
        a(f"""s_waitcnt vmcnt(0)
s_mov_b64 exec, 1
ds_add_rtn_u32 v{P_LS}, v14, v15 offset:8
s_mov_b64 exec, -1
s_waitcnt lgkmcnt(0)
v_readfirstlane_b32 {T0}, v{P_LS}
s_cmp_eq_u32 {T0}, {4*k+3}
s_cbranch_scc0 {L}
s_mov_b32 {T0}, 1
s_lshl_b32 {T1}, {S_XCD}, 7
s_add_u32 {T1}, {T1}, {k*1024}
s_atomic_add {T0}, {SB}, {T1} glc
s_waitcnt lgkmcnt(0)
s_sub_u32 {T0}, {T0}, s62
s_cmp_eq_u32 {T0}, 31
s_cbranch_scc0 {L}
s_mov_b32 {T1}, {FA1 + 2048 + k*8192}
s_mov_b64 exec, {-1 if cfg.allpoll else 0xffff}
buffer_atomic_add v15, v{P_PF}, {sWS}, {T1} offen sc1
s_mov_b64 exec, -1
{L}:""")
    def stage_wait(k, pre):
        if cfg.ko & 4:
            a("s_waitcnt lgkmcnt(0)"); return
        L, L2, L3 = a.lab("sw"), a.lab("sw"), a.lab("sw")
        if not cfg.allpoll: a(f"s_cmp_eq_u32 {S_W4}, 0\ns_cbranch_scc0 {L2}")
        a(f"""s_and_b32 {T1}, s2, 15
s_lshl_b32 {T2}, {S_W4}, 4
s_add_u32 {T1}, {T1}, {T2}
s_lshl_b32 {T1}, {T1}, 7
s_add_u32 {T1}, {T1}, {2048 + k*8192}
s_add_u32 {T2}, s62, 8
s_mov_b32 {S_TO}, {cfg.poll_limit}
s_waitcnt lgkmcnt(0)
s_sleep {pre}
{L}:
s_mov_b32 {T0}, 0
s_atomic_or {T0}, {SB}, {T1} glc
s_waitcnt lgkmcnt(0)
s_cmp_eq_u32 {T0}, {T2}
s_cbranch_scc1 {L}d
s_sleep {cfg.bsleep}
s_sub_u32 {S_TO}, {S_TO}, 1
s_cbranch_scc0 {L}
s_mov_b32 {S_TO}, 32
s_branch L_fail
{L}d:""")
        if cfg.allpoll: return
        a(f"s_mov_b64 exec, 1\nds_add_u32 v14, v15 offset:12\ns_mov_b64 exec, -1\ns_branch {L3}\n{L2}:")
        lwait(a, "v14", P_LS, k + 1, 33, sleep=cfg.lsl, off=12)
        a(f"{L3}:")
    def pace():
        if cfg.pace: a(f"s_sleep {cfg.pace}")
    a(f"""L_roleA:
v_mov_b32 v3, 0
v_mov_b32 v2, {L_SYNC}
ds_write2_b32 v2, v3, v3 offset0:0 offset1:32
ds_write2_b32 v2, v3, v3 offset0:1 offset1:2
ds_write2_b32 v2, v3, v3 offset0:3 offset1:33
ds_write2_b32 v2, v3, v3 offset0:4 offset1:34
ds_write2_b32 v2, v3, v3 offset0:5 offset1:35
ds_write2_b32 v2, v3, v3 offset0:8 offset1:9
ds_write2_b32 v2, v3, v3 offset0:10 offset1:11
s_setprio {cfg.aprio}
s_mov_b32 {S_BAR}, 0
s_lshl_b32 {S_BP}, {S_XCD}, 3
s_lshr_b32 {T0}, {S_IDX}, 2
s_add_u32 {S_BP}, {S_BP}, {T0}
s_and_b32 {S_CG}, {S_IDX}, 3
s_cmp_ge_u32 {S_CG}, 2
s_cselect_b32 {S_CNT}, 3, 4
s_lshl_b32 {S_CB}, {S_CG}, 2
s_cmp_eq_u32 {S_CG}, 3
s_cselect_b32 {S_CB}, 11, {S_CB}
s_add_u32 {S_DT}, {S_CB}, {S_W4}
v_and_b32 v2, 31, v1                      ; v2 = lane%32
v_lshrrev_b32 v3, 5, v1                   ; v3 = half
v_cvt_f32_u32 v4, v3
s_waitcnt lgkmcnt(0)
{st0()}""")
    if cfg.touch:
        tl = [["s[10:11], 0", "s[4:5], 0", "s[6:7], 0"], ["s[20:21], s76", "s[8:9], 0", "s[14:15], 0"],
              ["s[20:21], s77", "s[16:17], 0", "s[16:17], s76"], ["s[20:21], s74", "s[20:21], s75"]]
        a(f"s_cmp_ge_u32 {S_IDX}, {cfg.touch}\ns_cbranch_scc1 L_tch\ns_mov_b32 s76, 0x200000\ns_mov_b32 s77, 0x600000\ns_mov_b32 s74, 0x400000\ns_mov_b32 s75, 0x800000")
        for w in range(4):
            a(f"s_cmp_lg_u32 {S_W4}, {w}\ns_cbranch_scc1 L_tch{w}")
            for t_ in tl[w]: a(f"s_load_dword s72, {t_}")
            a(f"L_tch{w}:")
        a("L_tch:")
    def angles(n, vstep, vbase, offs, dst=TMP):
        for j in range(n): a(f"v_fmamk_f32 v{dst+j}, {vstep}, {lit(float(offs[j]))}, {vbase}")
    def gen_F():
        A0 = TMP; A1 = TMP + 8; C2 = TMP + 16
        a(f"""v_and_b32 v5, 15, v1
s_lshl_b32 {T0}, {S_KT16}, 4
v_add_u32 v5, {T0}, v5                    ; k
v_bfe_u32 v6, v1, 4, 1
v_lshl_add_u32 v7, v5, 1, v6
v_cmp_eq_u32 vcc, 1, v7
v_mov_b32 v7, 224
v_cndmask_b32 v5, v5, v7, vcc
v_cndmask_b32 v6, v6, 0, vcc
v_cvt_f32_u32 v5, v5
v_cvt_f32_u32 v6, v6
v_mul_f32 v5, {lit(1/448)}, v5            ; kf
v_mul_f32 v6, {lit(0.25)}, v6
v_mul_f32 v7, v5, v4
v_fmamk_f32 v6, v7, {lit(8.0)}, v6
v_mul_f32 v{C2}, {lit(16.0)}, v5
v_cos_f32 v{C2}, v{C2}""")
        angles(16, "v5", "v6", [j % 8 + 16 * (j // 8) for j in range(16)])
        a(f"v_add_f32 v{C2}, v{C2}, v{C2}")
        for j in range(16): a(f"v_cos_f32 v{A0+j}, v{A0+j}")
        a(f"v_mov_b32 v{C2+1}, v{C2}\ns_barrier\n.p2align 3")
        for m in range(28):
            cur = A0 if m % 2 == 0 else A1; oth = A1 if m % 2 == 0 else A0
            if m >= 2:
                for q in range(0, 8, 2):
                    a(f"v_pk_fma_f32 {V(cur+q,2)}, {V(C2,2)}, {V(oth+q,2)}, {V(cur+q,2)} neg_lo:[0,0,1] neg_hi:[0,0,1]")
            for q in range(4): a(f"v_cvt_pk_bf16_f32 v{F+4*m+q}, v{cur+2*q}, v{cur+2*q+1}")
    def gen_M():
        a(f"""v_cvt_f32_u32 v5, v2
s_and_b32 {T0}, {S_W4}, 1
s_lshl_b32 {T0}, {T0}, 10
s_add_u32 {T0}, {T0}, {S_B}
v_lshl_add_u32 v6, v3, 8, {T0}
v_cvt_f32_u32 v6, v6
v_mul_f32 v6, v6, v5
s_cmp_ge_u32 {S_W4}, 2
s_cselect_b32 {T0}, {lit(0.25)}, 0
v_mov_b32 v7, {T0}
v_fmamk_f32 v6, v6, {lit(1/2048)}, v7
v_mul_f32 v5, {lit(1/32)}, v5""")
        angles(8, "v5", "v6", [8*(j//4) + j%4 for j in range(8)])
        for j in range(8): a(f"v_cos_f32 v{TMP+j}, v{TMP+j}")
        for q in range(4): a(f"v_cvt_pk_bf16_f32 v{ACC+8+q}, v{TMP+2*q}, v{TMP+2*q+1}")
    def gen_MS():
        a(f"""v_lshlrev_b32 v5, 6, v2
v_add_u32 v5, {S_BP}, v5
v_cvt_f32_u32 v5, v5
v_mul_f32 v5, {lit(1/2048)}, v5
s_lshl_b32 {T0}, {S_W4}, 3
v_lshl_add_u32 v6, v3, 2, {T0}
v_cvt_f32_u32 v6, v6
v_mul_f32 v6, v5, v6""")
        angles(4, "v5", "v6", range(4), TMP + 8)
        for j in range(4): a(f"v_cos_f32 v{TMP+2*j}, v{TMP+8+j}\nv_sin_f32 v{TMP+2*j+1}, v{TMP+8+j}")
        a(f"v_mov_b32 v6, {lit(2*sc)}\nv_mov_b32 v7, v6")
        for j in range(4): pk2(a, "mul", TMP+2*j, TMP+2*j, 6, scalar=cfg.nopk & 16)
        for j in range(4):
            a(f"v_cvt_pk_bf16_f32 v{48+j}, v{TMP+2*j}, v{TMP+2*j+1}\nv_cvt_pk_bf16_f32 v{52+j}, v{TMP+2*j+1}, -v{TMP+2*j}")
    def gen_FB():
        a(f"""v_and_b32 v5, 15, v1
s_lshl_b32 {T0}, {S_W4}, 4
v_add_u32 v5, {T0}, v5
v_cvt_f32_u32 v5, v5
v_mul_f32 v5, {lit(1/64)}, v5
v_bfe_u32 v6, v1, 4, 1
v_cvt_f32_u32 v6, v6
v_mul_f32 v6, {lit(0.25)}, v6
v_mul_f32 v7, v5, v4
v_fmamk_f32 v6, v7, {lit(4.0)}, v6""")
        C2 = TMP + 16
        a(f"v_mul_f32 v{C2}, {lit(8.0)}, v5\nv_cos_f32 v{C2}, v{C2}")
        angles(8, "v5", "v6", [8*(j//4) + j%4 for j in range(8)], TMP + 20)
        a(f"v_add_f32 v{C2}, v{C2}, v{C2}")
        for j in range(8): a(f"v_cos_f32 v{TMP+2*j}, v{TMP+20+j}\nv_sin_f32 v{TMP+2*j+1}, v{TMP+20+j}")
        a(f"v_mov_b32 v{C2+1}, v{C2}")
        for m in range(8):
            cur = TMP + 8*(m % 2); oth = TMP + 8*((m + 1) % 2)
            if m >= 2:
                for q in range(0, 8, 2):
                    pk2(a, "fma", cur+q, C2, oth+q, cur+q, neg="2", scalar=cfg.nopk & 16)
            for q in range(4): a(f"v_cvt_pk_bf16_f32 v{FB+4*m+q}, v{cur+2*q}, v{cur+2*q+1}")
    def gen_addr():
        a(f"""v_mov_b32 v{PN+2}, 0
v_lshlrev_b32 v7, 4, v1                   ; v7 = lane*16
v_and_b32 v6, 3, v1
v_lshrrev_b32 v5, 2, v1
v_lshlrev_b32 v5, 16, v5
v_lshl_add_u32 v{P_TST}, v6, 4, v5
s_lshl_b32 {T1}, {S_W4}, 11
s_add_u32 {T0}, {T1}, {L_TT}
v_add_u32 v{P_TTR}, {T0}, v7
v_lshlrev_b32 v5, 6, v2
v_lshl_add_u32 v5, v3, 4, v5
v_add_u32 v{P_TTW}, {T0}, v5
s_lshl_b32 {S_TASK}, {S_XCD}, 5
s_add_u32 {S_TASK}, {S_TASK}, {S_IDX}
s_lshr_b32 {T0}, {S_TASK}, 3
s_lshl_b32 {T2}, {S_W4}, 9
s_add_u32 {T0}, {T0}, {T2}
s_mul_i32 {T0}, {T0}, 225
s_lshl_b32 {T2}, {S_HH}, 5
s_add_u32 {T0}, {T0}, {T2}
v_mul_u32_u24 v5, {128*225}, v3
v_add3_u32 v5, v5, v2, {T0}
v_lshlrev_b32 v{P_W}, 1, v5
v_bfe_u32 v12, v1, 4, 1
v_lshlrev_b32 v5, 2, v2
v_lshl_add_u32 v{P_TLD}, v3, 9, v5
v_lshl_add_u32 v{P_UST}, v3, 17, v5
v_lshl_add_u32 v{P_F2}, v3, 18, v5
v_add_u32 v{P_TBR}, {L_TB}, v7
v_add_u32 v{P_TBW}, {T1}, v{P_TBR}
s_add_u32 {S_K1}, {S_W4}, 3
s_cmp_eq_u32 {S_W4}, 0
s_cselect_b32 {S_K1}, 7, {S_K1}
s_lshl_b32 {T0}, {S_W4}, 12
v_add_u32 v{P_ZW0}, {T0}, v{P_TBR}
s_lshl_b32 {T0}, {S_K1}, 12
v_add_u32 v{P_ZW1}, {T0}, v{P_TBR}
v_bfe_u32 v13, v1, 2, 2
v_lshrrev_b32 v5, 4, v1
v_xor_b32 v{P_WOD}, v13, v5
s_sub_u32 {T0}, {S_CNT}, 1
v_min_u32 v{P_WOD}, {T0}, v{P_WOD}
v_add_u32 v{P_WOD}, {S_CB}, v{P_WOD}
v_lshlrev_b32 v{P_WOD}, 6, v{P_WOD}
v_mul_u32_u24 v5, 896, v5
v_add_u32 v5, v5, v{P_WOD}
v_lshl_add_u32 v5, v6, 4, v5
s_mul_i32 {T0}, {S_W4}, {4*896}
v_add_u32 v{P_WOD}, {T0}, v5
v_xor_b32 v5, {S_W4}, v13
v_lshlrev_b32 v5, 6, v5
v_lshl_add_u32 v5, v13, 8, v5
v_and_b32 v6, 1, v1
v_lshl_add_u32 v5, v6, 5, v5
v_lshl_add_u32 v5, v12, 4, v5
v_bfe_u32 v6, v1, 1, 1
v_lshl_add_u32 v5, v6, 3, v5
v_add_u32 v{P_WOR2}, {L_X}, v5
v_lshl_add_u32 v{P_WOR}, v3, 10, v{P_WOR2}""")
    pieces = [gen_F, gen_FB, gen_M, gen_MS, gen_addr]
    assert cfg.pre >= 1
    def wq_warm():
        a(f"""s_cmp_eq_u32 {S_LC}, 7
s_cbranch_scc0 L_pf1
v_mul_u32_u24 v5, 2688, v1
s_mul_i32 {T0}, {T5}, 3
s_add_u32 {T0}, {T0}, {S_RR}
s_lshl_b32 {T0}, {T0}, 7
s_mul_i32 {T1}, {S_W4}, {128*2688}
s_add_u32 {T0}, {T0}, {T1}
s_add_u32 {T1}, {T0}, {64*2688}
buffer_load_dword v{P_DUM}, v5, {sWQKV}, {T0} offen
buffer_load_dword v{P_DUM}, v5, {sWQKV}, {T1} offen
L_pf1:""")
    def xa_warm():
        a(f"""s_cmp_eq_u32 {S_LC}, 7
s_cbranch_scc0 L_pf6
v_lshlrev_b32 v5, 7, v1
s_lshl_b32 {T0}, {S_RR}, 2
s_add_u32 {T0}, {T0}, {S_W4}
s_mul_i32 {T0}, {T0}, {2*64*896}
s_mul_i32 {T1}, {S_XCD}, {8*896}
s_add_u32 {T0}, {T0}, {T1}
s_add_u32 {T1}, {T0}, {64*896}
s_bfm_b64 exec, 56, 0
buffer_load_dword v{P_DUM}, v5, {sX}, {T0} offen
buffer_load_dword v{P_DUM}, v5, {sX}, {T1} offen
s_mov_b64 exec, -1
L_pf6:""")
    def kv_touch():
        srd(a, sWS, 20, WS_SIZE)
        a(f"""s_lshl_b32 {T0}, s2, 2
s_add_u32 {T0}, {T0}, {S_W4}
s_mul_i32 {T0}, {T0}, {30*128}
s_add_u32 {T0}, {T0}, {KV}
v_lshlrev_b32 v5, {6 if cfg.kvt64 else 7}, v1
v_mov_b32 v6, 0
s_bfm_b64 exec, {60 if cfg.kvt64 else 30}, 0
buffer_atomic_or v6, v5, {sWS}, {T0} offen sc1
s_mov_b64 exec, -1""")
    if cfg.kvt == 9: kv_touch()
    def mall_warm():
        a(f"""s_cmp_eq_u32 {S_LC}, 7
s_cbranch_scc0 L_pf7
s_lshl_b32 {T0}, {S_XCD}, 4
s_lshl_b32 {T1}, {S_RR}, 2
s_add_u32 {T0}, {T0}, {T1}
s_add_u32 {T0}, {T0}, {S_W4}
v_lshlrev_b32 v5, 7, v1""")
        if cfg.mw & 1:
            a(f"""v_lshrrev_b32 v6, 3, v1
v_mul_u32_u24 v6, 2688, v6
v_and_b32 v7, 7, v1
v_min_u32 v7, 6, v7
v_lshl_add_u32 v6, v7, 7, v6
s_mul_i32 {T1}, {T0}, {4*2688}
s_mov_b64 exec, 0xffffffff
buffer_load_dword v{P_DUM}, v6, {sWQKV}, {T1} offen""")
        if cfg.mw & 2: a(f"s_mul_i32 {T1}, {T0}, {25*128}\ns_bfm_b64 exec, 25, 0\nbuffer_load_dword v{P_DUM}, v5, {sWO}, {T1} offen")
        if cfg.mw & 4: a(f"s_mul_i32 {T1}, {T0}, {57*128}\ns_bfm_b64 exec, 57, 0\nbuffer_load_dword v{P_DUM}, v5, {sWR}, {T1} offen")
        if cfg.mw & 8: a(f"s_mul_i32 {T1}, {T0}, {57*128}\ns_bfm_b64 exec, 57, 0\nbuffer_load_dword v{P_DUM}, v5, {sWI}, {T1} offen")
        if cfg.mw & 16: a(f"s_mul_i32 {T1}, {T0}, {112*128}\ns_bfm_b64 exec, 56, 0\nbuffer_load_dword v{P_DUM}, v5, {sX}, {T1} offen")
        a("s_mov_b64 exec, -1\nL_pf7:")
    if cfg.spf:
        a(f"""s_lshl_b32 {T0}, s2, 2
s_add_u32 {T0}, {T0}, {S_W4}
s_mul_i32 {T1}, {T0}, {14*128}
s_add_u32 s76, s4, {T1}
s_addc_u32 s77, s5, 0
s_mul_i32 {T1}, {T0}, 900
s_add_u32 s70, s6, {T1}
s_addc_u32 s71, s7, 0
s_add_u32 s74, s8, {T1}
s_addc_u32 s75, s9, 0""")
    n0 = len(a.L)
    for q in range(cfg.pre):
        pieces.pop(0)()
        if q == 0:
            srd(a, sWQKV, 12, 448 * 2688); srd(a, sX, 4, 0 if cfg.ko & 16 else 2048 * 896)
            srd(a, sWR, 6, 0 if cfg.ko & 1 else 2048 * 450); srd(a, sWI, 8, 0 if cfg.ko & 1 else 2048 * 450); srd(a, sWO, 14, 0 if cfg.ko & 2 else 448 * 896)
        if cfg.mw and cfg.mwpos == q + 1: mall_warm()
        if cfg.kvt == q + 1: kv_touch()
        if cfg.xawarm == q + 1: xa_warm()
        if cfg.wqwarm == q + 1: wq_warm()
    if cfg.spf:
        from asmlib import Ins
        pf = [f"s_load_dword s72, s[76:77], {q*128}" for q in range(14)]
        if cfg.spf >= 2: pf += [f"s_load_dword s72, s[{b}:{b+1}], {q*128}" for q in range(7) for b in (70, 74)]
        lo = n0 + cfg.spf0; hi = len(a.L)
        for q in reversed(range(len(pf))): a.L.insert(lo + (hi - lo) * q // len(pf), Ins(pf[q]))
    stamp(a, 1)
    srd(a, sWS, 20, WS_SIZE)
    srd(a, sOUT, 16, 2048 * 1792)
    S_XA, S_WQL, S_WQG = "s70", "s71", "s72"
    XD = 70
    a(f"""v_lshrrev_b32 v6, 3, v1
v_and_b32 v5, 7, v1
v_lshrrev_b32 v8, 4, v1
v_xor_b32 v5, v5, v8
s_and_b32 {T0}, {S_W4}, 1
s_lshl_b32 {T0}, {T0}, 2
v_xor_b32 v5, {T0}, v5
v_mul_u32_u24 v6, {64*896}, v6
s_mul_i32 {T1}, {S_W4}, {8*64*896}
s_mul_i32 {T2}, {S_B}, 896
s_add_u32 {T1}, {T1}, {T2}
v_add_u32 v6, {T1}, v6
v_lshl_add_u32 v{XD}, v5, 4, v6
s_lshl_b32 {T0}, {S_W4}, 10
s_add_u32 {S_XA}, {T0}, {L_X}
s_mov_b32 {T2}, {L_X}""")
    x_read_addrs(a, 8, "v1", T2, TMP)
    a(f"""v_mov_b32 v14, {L_SYNC+128}
v_mov_b32 v15, 1
v_mov_b32 v{P_BC}, {L_SYNC}
s_lshl_b32 {T1}, {S_CG}, 1""")
    lwait(a, f"v{P_BC}", P_LS, 4, 34, sleep=1)
    a(f"""ds_read_b64 {V(PN,2)}, v{P_BC} offset:64
v_lshlrev_b32 v{P_PF}, 7, v1
s_add_u32 s74, s20, {FA1}
s_addc_u32 s75, s21, 0
s_waitcnt lgkmcnt(0)
v_readfirstlane_b32 s62, v{PN}
v_readfirstlane_b32 s63, v{PN+1}
s_lshl_b32 {T0}, s2, 2
s_add_u32 {T0}, {T0}, {S_W4}
s_cmp_lg_u32 {T0}, 0
s_cbranch_scc1 L_noinit
s_mov_b32 {T0}, {FA1}
buffer_store_dwordx2 {V(PN,2)}, v{P_PF}, {sWS}, {T0} offen offset:2048 sc1
s_mov_b32 {T2}, {FA1 + 8192}
buffer_store_dwordx2 {V(PN,2)}, v{P_PF}, {sWS}, {T2} offen offset:2048 sc1
s_mov_b64 exec, 0xff00
buffer_store_dwordx2 {V(PN,2)}, v{P_PF}, {sWS}, {T0} offen sc1
s_waitcnt vmcnt(0)
s_mov_b64 exec, 0xff
buffer_store_dwordx2 {V(PN,2)}, v{P_PF}, {sWS}, {T0} offen sc1
s_mov_b64 exec, -1
L_noinit:""")
    def wpull():
        L1, L2 = a.lab("wp"), a.lab("wp")
        a(f"""s_lshl_b32 {T2}, {S_IDX}, 1
s_lshr_b32 {T3}, {S_W4}, 1
s_add_u32 {T2}, {T2}, {T3}
s_mul_i32 {T2}, {T2}, 14400
s_mul_i32 {T3}, {S_XCD}, 1800
s_add_u32 {T2}, {T2}, {T3}
s_mov_b64 exec, 0x7fff
s_bitcmp1_b32 {S_W4}, 0
s_cbranch_scc1 {L1}
buffer_load_ushort v{P_DUM}, v{P_PF}, {sWR}, {T2} offen{' nt' if cfg.ntp else ''}
s_branch {L2}
{L1}:
buffer_load_ushort v{P_DUM}, v{P_PF}, {sWI}, {T2} offen{' nt' if cfg.ntp else ''}
{L2}:
s_mov_b64 exec, -1""")
    stamp(a, 2)
    if cfg.wpf == 2: wpull()
    lwait(a, f"v{P_BC}", P_LS, 4 if cfg.kvt != 7 else 1, 20, sleep=1, off=8)
    if cfg.kvt in (7, 8): kv_touch()
    if cfg.xas:
        a(f"s_mul_i32 {T2}, {S_H}, 7\ns_bfe_u32 {T2}, {T2}, 0x30001\ns_cmp_gt_u32 {T2}, 4\ns_cbranch_scc0 L_xago")
        lwait(a, f"v{P_BC}", P_LS, 4 * cfg.xas, 30, sleep=1, off=4)
        a("L_xago:")
    for c in range(7):
        if c == cfg.xae:
            if cfg.wpf == 1: wpull()
            if cfg.xalate == 1: lwait(a, f"v{P_BC}", P_LS, 4, 38, sleep=1, off=12)
            elif cfg.xalate == 2: lwait(a, f"v{P_BC}", P_LS, 9, 38, sleep=1)
            elif cfg.xafirst: lwait(a, f"v{P_BC}", P_LS, 8, 38)
            else: lwait(a, f"v{P_BC}", P_LS, 4, 38, sleep=1, off=16)
        a(f"""s_add_u32 {T2}, {T1}, 1
s_lshr_b32 {T3}, {T2}, 1
s_lshl_b32 {T3}, {T3}, 14
s_and_b32 {T4}, {T1}, 1
s_lshl_b32 {T4}, {T4}, 12
s_sub_u32 {T3}, {T3}, {T4}
s_add_u32 m0, {S_XA}, {T3}
s_lshl_b32 {T4}, {T1}, 7
buffer_load_dwordx4 v{XD}, {sX}, {T4} offen{' nt' if cfg.nta else ''} lds
s_cmp_eq_u32 {T2}, 7
s_cselect_b32 {T1}, 0, {T2}""")
    if cfg.wpf == 4: wpull()
    for p_ in pieces: p_()
    pieces = []
    assert not pieces
    a(f"""v_add_u32 v13, {L_M}, v7
s_lshl_b32 {T0}, {S_W4}, 10
v_add_u32 v5, {T0}, v13
ds_write_b128 v5, {V(ACC+8,4)}
s_cmp_eq_u32 {S_W4}, 0
s_cbranch_scc0 L_chkd
s_lshl_b32 {T1}, {S_XCD}, 7
s_mov_b32 {S_TO}, {cfg.poll_limit}
L_chk:
s_load_dwordx2 s[76:77], {SB}, {T1} glc
s_waitcnt lgkmcnt(0)
s_sub_u32 s76, s76, s62
s_lshr_b32 s76, s76, 5
s_xor_b32 s77, s77, s63
s_or_b32 s76, s76, s77
s_cbranch_scc0 L_chkd
s_sleep 4
s_sub_u32 {S_TO}, {S_TO}, 1
s_cbranch_scc0 L_chk
s_mov_b32 {S_TO}, 35
s_branch L_fail
L_chkd:""")
    WW = 136 if cfg.woearly else 72; AC = 152; FR = 168; TP = 200
    wl = []
    for r in range(8):
        wl.append(f"s_mov_b32 {T0}, {14400*(8*(r//4) + r%4)}\nbuffer_load_short_d16_hi v{WW+r}, v{P_W}, {sWR}, {T0} offen{' nt' if cfg.ntw else ''}")
        wl.append(f"buffer_load_short_d16_hi v{WW+8+r}, v{P_W}, {sWI}, {T0} offen{' nt' if cfg.ntw else ''}")
    if cfg.wearly:
        for s_ in wl: a(s_)
        a("s_waitcnt vmcnt(16)")
    else: a(f"s_waitcnt vmcnt({1 if cfg.wpf == 4 else 0})")
    stamp(a, 3)
    if cfg.noA == 1:
        a(f"s_mov_b64 exec, 1\nds_add_u32 v14, v15 offset:4\ns_mov_b64 exec, -1")
        stamp(a, 12); dump_stamps(a, 16); a("s_endpgm")
    albar(16)
    RG = cfg.ring
    def xreg(m): return (TMP + 4*m if m < 4 else 72 + 4*(m - 4)) if m < RG else F + 4*(m - RG)
    def xr(m): return f"ds_read_b128 {V(xreg(m),4)}, v{8+m%4} offset:{((m//4+1)>>1)*16384 - ((m//4)&1)*4096}"
    assert not (cfg.wearly and RG > 4)
    for m in range(RG): a(xr(m))
    P1 = F; P2 = F + 16; XP = TMP; M = F + 32
    if cfg.mprio == 0: a("s_setprio 0")
    nds = RG
    for m in range(28):
        a(f"s_waitcnt lgkmcnt({nds - m - 1})")
        a(mfma(ACC, xreg(m), F + 4*m, None if m == 0 else ACC))
        if m + RG < 28: a(xr(m + RG)); nds += 1
        elif m >= 24: a(f"ds_read_b128 {V(M+4*(m-24),4)}, v13 offset:{(m-24)*1024}"); nds += 1
    a(f"s_setprio {cfg.aprio}")
    lwait(a, f"v{P_BC}", P_LS, 8, 27, sleep=1)
    a(f"""s_lshl_b32 {T0}, {S_W4}, 11
s_add_u32 {T0}, {T0}, {L_MS}
v_add_u32 v5, {T0}, v7
ds_write_b128 v5, v[48:51]
ds_write_b128 v5, v[52:55] offset:1024
s_lshr_b32 {T0}, {S_KT16}, 1
s_lshl_b32 {T0}, {T0}, 13
s_lshl_b32 {T1}, {S_B}, 7
s_add_u32 {T1}, {T1}, {TBUF}
s_add_u32 {T0}, {T0}, {T1}
s_and_b32 {T2}, {S_KT16}, 1
s_lshl_b32 {T2}, {T2}, 6
s_add_u32 {T0}, {T0}, {T2}
s_add_u32 {T2}, {T0}, {16*65536}
s_cmp_ge_u32 {S_W4}, {S_CNT}
s_cbranch_scc1 L_a1done
s_waitcnt lgkmcnt(0)""")
    for q in range(8): a(f"v_cvt_pk_bf16_f32 v{XP+q}, v{ACC+2*q}, v{ACC+2*q+1}")
    a(mfma(P1, XP, M)); a(mfma(P2, XP, M + 8)); a(mfma(P1, XP + 4, M + 4, P1)); a(mfma(P2, XP + 4, M + 12, P2))
    for r in range(0, 8, 2):
        pk2(a, "add", ACC+r, P1+r, P2+r+8, neg="1", scalar=cfg.nopk & 4); pk2(a, "add", ACC+8+r, P1+r+8, P2+r, scalar=cfg.nopk & 4)
    for r in range(8): a(f"v_cvt_pk_bf16_f32 v{XP+8+r}, v{ACC+r}, v{ACC+8+r}")
    a(f"""s_cmp_lg_u32 {S_KT16}, 0
s_cbranch_scc1 L_a1st
s_mov_b32 exec_hi, 0
v_cvt_pk_bf16_f32 v{XP+8}, v{P1}, v{P2}
v_cvt_pk_bf16_f32 v6, v{P1+8}, v{P2+8}
v_lshlrev_b32 v5, 16, v2
s_mov_b32 exec_hi, -1
L_a1st:
ds_write_b128 v{P_TTW}, {V(XP+8,4)}
ds_write_b128 v{P_TTW}, {V(XP+12,4)} offset:32
ds_read_b128 {V(XP,4)}, v{P_TTR}
ds_read_b128 {V(XP+4,4)}, v{P_TTR} offset:1024
s_mov_b32 {T4}, {T0}
s_waitcnt lgkmcnt(0)""")
    stamp(a, 1, 5)
    if cfg.tdefer: lwait(a, f"v{P_BC}", P_LS, 4, 28, sleep=1, off=12)
    if cfg.tdelay: a(f"s_sleep {cfg.tdelay}")
    if cfg.tstag:
        for q in (1, 2, 3): a(f"s_cmp_lt_u32 {S_W4}, {q}\ns_cbranch_scc1 L_tst\ns_sleep {cfg.tstag}")
        a("L_tst:")
    a(f"""s_cmp_lg_u32 {S_KT16}, 0
s_cbranch_scc1 L_a1st2
s_mov_b32 exec_hi, 0
s_add_u32 {T1}, {T1}, {7*8192}
buffer_store_dword v6, v5, {sWS}, {T1} offen sc1
s_mov_b32 exec_hi, -1
L_a1st2:
{"s_branch L_a1done" if cfg.ko & 8 else ""}
buffer_store_dwordx4 {V(XP,4)}, v{P_TST}, {sWS}, {T4} offen sc1
{"s_sleep %d" % (cfg.tstag // 2) if cfg.tstag else ""}
buffer_store_dwordx4 {V(XP+4,4)}, v{P_TST}, {sWS}, {T2} offen sc1
L_a1done:""")
    stage_arrive(0)
    stamp(a, 4)
    lwait(a, f"v{P_BC}", P_LS, 4, 29, sleep=1, off=12)
    if cfg.wdelay: a(f"s_sleep {cfg.wdelay}")
    if cfg.wpf == 3: wpull()
    if not cfg.wearly and not cfg.wlate: burst([x + (f"\ns_sleep {cfg.wpace}" if cfg.wpace else "") for x in wl], cfg.th_w)
    if cfg.wopf and not cfg.wolate:
        burst([f"""s_lshl_b32 {T0}, {S_IDX}, 2
s_add_u32 {T0}, {T0}, {S_W4}
s_mul_i32 {T0}, {T0}, {25*128}
s_bfm_b64 exec, 25, 0
buffer_load_dword v{P_DUM}, v{P_PF}, {sWO}, {T0} offen
s_mov_b64 exec, -1"""], 1)
    if cfg.ohint:
        for q in range(4): a(f"v_mov_b32 v{TP+q}, -1")
        a(f"""s_lshr_b32 {T0}, {S_XCD}, 1
s_lshl_b32 {T0}, {T0}, 2
s_add_u32 {T0}, {T0}, {S_RR}
s_lshl_b32 {T0}, {T0}, 2
s_add_u32 {T0}, {T0}, {S_W4}
s_lshl_b32 {T0}, {T0}, 4
s_add_u32 {T0}, {T0}, {S_H}
s_lshl_b32 {T0}, {T0}, 11
s_add_u32 {T0}, {T0}, {OBUF}""")
        a(f"s_mov_b32 s72, {T0}")
        marks = [f"buffer_store_dwordx4 {V(TP,4)}, v7, {sWS}, s72 offen offset:{1024*q} sc1" for q in range(2)]
        if not cfg.wolate: burst(marks, 2)
    WO = 72
    S_WOL = "s70"
    a(f"s_lshl_b32 {S_WOL}, {S_W4}, 10\ns_add_u32 {S_WOL}, {S_WOL}, {L_X}")
    def wo_list(rnd):
        return [f"s_add_u32 m0, {S_WOL}, {i*4096}\ns_mov_b32 s71, {(rnd*224 + i*16)*896}\nbuffer_load_dwordx4 v{P_WOD}, {sWO}, s71 offen lds" for i in range(14)]
    def ride(q, n=1):
        it = [q.pop(0) for _ in range(min(n, len(q)))]
        if it: burst(it, n)
        pace()
    def wo_rd(f, d, r1, r2):
        hl, mu = f // 2, f % 2
        return [f"ds_read_b64_tr_b16 {V(d+2*sec,2)}, v{r2 if (mu and sec) else r1} offset:{(28*hl + 16*mu + 8*sec)*256}" for sec in range(2)]
    def wo_reads(h):
        for f in range(16):
            for s_ in wo_rd(f, WO + 64*h + 4*f, P_WOR, P_WOR2): a(s_)
    assert cfg.allpoll
    if cfg.woearly:
        assert cfg.wlate and not cfg.wolate
        lwait(a, "v14", P_LS, 4, 45, sleep=2, off=8)
        burst(wo_list(0), cfg.th_wo)
        a("s_waitcnt vmcnt(0)")
        albar(46)
        wo_reads(0)
    stamp(a, 5)
    stage_wait(0, cfg.a2wait)
    a(f"s_lshl_b32 {T1}, {S_W4}, 11")
    stamp(a, 6)
    a(f"""s_lshl_b32 {T0}, {S_TASK}, 13
s_add_u32 {T0}, {T0}, {T1}
s_add_u32 {T0}, {T0}, {TBUF}""")
    burst([f"buffer_load_dword v{FR+q}, v{P_TLD}, {sWS}, {T0} offen offset:{(q//4)*1024 + (q%4)*128} sc1" for q in range(8)], 8)
    a(f"s_waitcnt vmcnt(0)\nds_write_b128 v{P_TBW}, {V(FR,4)}\nds_write_b128 v{P_TBW}, {V(FR+4,4)} offset:1024" if not cfg.wlate else "")
    if cfg.wlate:
        burst(wl, 24)
        a(f"s_waitcnt vmcnt(16)\nds_write_b128 v{P_TBW}, {V(FR,4)}\nds_write_b128 v{P_TBW}, {V(FR+4,4)} offset:1024")
    stamp(a, 1, 4)
    albar(6)
    stamp(a, 2, 4)
    def dft64(base):
        for m in range(8): a(f"ds_read_b128 {V(FR+4*m,4)}, v{P_TBR} offset:{base + m*1024}")
        if cfg.mprio == 0: a("s_setprio 0")
        for m in range(8):
            a(f"s_waitcnt lgkmcnt({7-m})")
            a(mfma(AC, FB + 4*m, FR + 4*m, None if m == 0 else AC))
            if cfg.mprio: ride(woq)
            elif woq: a(woq.pop(0))
        a(f"s_setprio {cfg.aprio}")
    woq = marks if cfg.wolate else wo_list(1 if cfg.woearly else 0)
    dft64(0)
    a(f"s_waitcnt vmcnt({2 if cfg.wolate else 8})\ns_cmp_eq_u32 {S_HH}, 7\ns_cbranch_scc0 L_a2nx")
    for r in range(8):
        a(f"v_mov_b32 v{TP}, v{WW+r}\nv_xor_b32 v{WW+r}, 0x80000000, v{WW+8+r}\nv_mov_b32 v{WW+8+r}, v{TP}")
    a("L_a2nx:")
    for r in range(0, 8, 2):
        a(f"""v_pk_mul_f32 {V(FR+r,2)}, {V(AC+r,2)}, {V(WW+r,2)}
v_pk_mul_f32 {V(FR+8+r,2)}, {V(AC+r,2)}, {V(WW+8+r,2)}
v_pk_fma_f32 {V(FR+r,2)}, {V(AC+8+r,2)}, {V(WW+8+r,2)}, {V(FR+r,2)} neg_lo:[1,0,0] neg_hi:[1,0,0]
v_pk_fma_f32 {V(FR+8+r,2)}, {V(AC+8+r,2)}, {V(WW+r,2)}, {V(FR+8+r,2)} neg_lo:[1,0,1] neg_hi:[1,0,1]
v_cvt_pk_bf16_f32 v{TP+r}, v{FR+r}, v{FR+8+r}
v_cvt_pk_bf16_f32 v{TP+r+1}, v{FR+r+1}, v{FR+8+r+1}""")
    a(f"ds_write_b128 v{P_TBW}, {V(TP,4)} offset:8192\nds_write_b128 v{P_TBW}, {V(TP+4,4)} offset:9216")
    stamp(a, 3, 4)
    albar(7)
    stamp(a, 4, 4)
    dft64(8192)
    if cfg.uinp:
        a(f"s_lshl_b32 {T0}, {S_TASK}, 13\ns_lshl_b32 {T1}, {S_W4}, 11\ns_add_u32 {T0}, {T0}, {T1}\ns_add_u32 {T0}, {T0}, {TBUF}")
    else:
        a(f"""s_lshl_b32 {T0}, {S_HH}, 12
s_lshr_b32 {T1}, {S_TASK}, 3
s_lshl_b32 {T1}, {T1}, 7
s_add_u32 {T0}, {T0}, {T1}
s_add_u32 {T0}, {T0}, {UBUF}
s_lshl_b32 {T1}, {S_W4}, 19
s_add_u32 {T0}, {T0}, {T1}""")
    for r in range(8): a(f"v_cvt_pk_bf16_f32 v{TP+r}, v{AC+r}, v{AC+8+r}")
    stamp(a, 5, 4)
    a(f"s_cmp_eq_u32 {S_HH}, {S_HH if cfg.ko & 8 else 7}\ns_cselect_b32 exec_lo, 1, -1\ns_cselect_b32 exec_hi, 1, -1")
    if cfg.uinp:
        burst([f"buffer_store_dword v{TP+r}, v{P_TLD}, {sWS}, {T0} offen offset:{(r//4)*1024 + (r%4)*128} sc1" for r in range(8)], 8)
    else:
        burst([f"s_add_u32 {T1}, {T0}, {(8*(r//4) + r%4) * USTR}\nbuffer_store_dword v{TP+r}, v{P_UST}, {sWS}, {T1} offen sc1" for r in range(8)], 8)
    a("s_mov_b64 exec, -1")
    stage_arrive(1)
    stamp(a, 7)
    U0 = 16; U1 = 32; AR = 200; AI = 216
    MSR = [48, 52, 56, 60, 64, 68, 232, 240]
    if cfg.wolate:
        burst(wo_list(0), cfg.th_wo)
        a("s_waitcnt vmcnt(0)")
    albar(4)
    wo_reads(1 if cfg.woearly else 0)
    for q in range(8): a(f"ds_read_b128 {V(MSR[q],4)}, v7 offset:{L_MS + q*1024}")
    if not cfg.woearly:
        albar(24)
        if not cfg.wolate: burst(wo_list(1), cfg.th_wo)
    stage_wait(1, 0 if cfg.wolate else cfg.a3wait)
    stamp(a, 8)
    if cfg.uinp:
        a(f"""s_lshl_b32 {T0}, {S_BP}, 7
s_add_u32 {T0}, {T0}, {TBUF}
s_lshl_b32 {T1}, {S_W4}, 13
s_lshl_b32 {T3}, {S_K1}, 13
s_add_u32 {T2}, {T0}, {T3}
s_add_u32 {T1}, {T0}, {T1}""")
        burst([f"s_add_u32 {T0}, {T1 if q < 16 else T2}, {(8*((q%16)//4) + q%4) * 65536}\nbuffer_load_dword v{U0+q}, v{P_F2}, {sWS}, {T0} offen sc1" for q in range(32)], cfg.th_u)
    else:
        a(f"""s_lshl_b32 {T0}, {S_BP}, 15
s_add_u32 {T0}, {T0}, {UBUF}
s_lshl_b32 {T1}, {S_W4}, 12
s_lshl_b32 {T3}, {S_K1}, 12
s_add_u32 {T2}, {T0}, {T3}
s_add_u32 {T1}, {T0}, {T1}""")
        burst([f"buffer_load_dword v{U0+q}, v{P_TLD}, {sWS}, {T1 if q < 16 else T2} offen offset:{((q%16)//4)*1024 + (q%4)*128} sc1" for q in range(32)], cfg.th_u)
    if cfg.wolate: burst(wo_list(1), 46)
    elif not cfg.woearly:
        a("s_waitcnt vmcnt(32)")
        albar(10)
        wo_reads(1)
    stamp(a, 11, 4)
    a(f"""s_lshl_b32 {T4}, {S_BP}, 2
s_add_u32 {T4}, {T4}, {S_W4}
s_lshl_b32 {T3}, {T4}, 13
s_add_u32 {T3}, {T3}, {OBUF}
s_add_u32 {T2}, {T3}, 4096
s_and_b32 {T4}, {S_BP}, 60
s_add_u32 {T4}, {T4}, {S_W4}
s_lshl_b32 {T4}, {T4}, 9
s_add_u32 {T4}, {T4}, {FO}
s_lshl_b32 {T1}, {S_W4}, 13
v_add_u32 v9, {T1}, v7""")
    def step6(ur, ui, va, last):
        if last and cfg.apoll: a(poll_issue(f"v{P_PF}", T4, P_PS, 4))
        if cfg.mprio == 0: a("s_setprio 0")
        for m in range(4):
            a(mfma(AR, ur + 4*m, MSR[2*m], None if m == 0 else AR))
            if cfg.pace6: a(f"s_sleep {cfg.pace6}")
            a(mfma(AI, ui + 4*m, MSR[2*m+1], None if m == 0 else AI))
            if cfg.pace6: a(f"s_sleep {cfg.pace6}")
        a(f"s_setprio {cfg.aprio}")
        for q in range(16):
            a(f"v_cvt_pk_bf16_f32 v{ur+q}, v{AR+2*q}, v{AR+2*q+1}")
            if q % 4 == 3: a(f"ds_write_b128 v{va}, {V(ur+q-3,4)} offset:{(q//4)*1024}")
    if cfg.s6late: lwait(a, f"v{P_BC}", P_LS, 20, 37, sleep=2)
    a(f"s_waitcnt vmcnt({14 if cfg.wolate else 0})\ns_cmp_eq_u32 {S_W4}, 0\ns_cbranch_scc1 L_a3w0")
    step6(U0, U0, P_ZW0, False)
    step6(U1, U1, P_ZW1, True)
    a(f"s_branch L_a3z\nL_a3w0:\ns_mov_b32 exec_lo, -2\ns_mov_b32 exec_hi, -2")
    for q in range(16): a(f"v_mov_b32 v{U1+q}, v{U0+q}")
    a("s_mov_b64 exec, -1")
    step6(U0, U1, P_ZW0, True)
    a("L_a3z:\ns_mov_b64 exec, 1\nds_add_u32 v14, v15 offset:4\ns_mov_b64 exec, -1")
    stamp(a, 9)
    if cfg.wolate:
        a(f"s_waitcnt vmcnt({1 if cfg.apoll else 0})")
        lbar(a, "v14", "v15", P_LS, 10)
        wo_reads(1)
    osc = ("", " sc1", " nt", " sc0 sc1", " sc1 nt")[cfg.outsc]
    stamp(a, 10)
    a(f"s_mov_b32 s71, {cfg.poll_limit}")
    if cfg.apoll: a(f"s_waitcnt vmcnt(0)\n{poll_check(P_PS, 4)}\ns_cbranch_scc0 L_aoload")
    poll(a, f"v{P_PF}", T4, P_PS, 4, 42, sleep=cfg.osleep)
    a("L_aoload:")
    for q in range(8):
        a(f"buffer_load_dwordx4 {V(16+4*q,4)}, v7, {sWS}, {T3 if q < 4 else T2} offen offset:{(q%4)*1024} sc1")
    stamp(a, 13)
    lwait(a, f"v{P_BC}", P_LS, 24, 43, sleep=1)
    for q in range(8):
        a(f"s_waitcnt vmcnt({7-q})\nds_write_b128 v9, {V(16+4*q,4)} offset:{L_OB + q*1024}")
        if q == 2: a("v_max3_u32 v5, v16, v20, v24")
        if q in (4, 6): a(f"v_max3_u32 v5, v5, v{12+4*q}, v{16+4*q}")
    a(f"""v_max_u32 v5, v5, v44
v_cmp_eq_u32 vcc, -1, v5
s_cbranch_vccz L_aogot
s_sleep 6
s_sub_u32 s71, s71, 1
s_cbranch_scc0 L_aoload
s_mov_b32 {S_TO}, 44
s_branch L_fail
L_aogot:
s_mov_b64 exec, 1
ds_add_u32 v{P_BC}, v15 offset:20
s_mov_b64 exec, -1""")
    a(f"""s_mul_i32 {T4}, {S_BP}, {32*1792}
s_lshl_b32 {T1}, {S_DT}, 6
s_add_u32 {T4}, {T4}, {T1}
s_add_u32 {T4}, {T4}, 896
s_add_u32 {T3}, {T4}, {16*1792}""")
    lwait(a, f"v{P_BC}", P_LS, 4, 12, off=20)
    a(f"s_cmp_ge_u32 {S_W4}, {S_CNT}\ns_cbranch_scc1 L_b3done")
    stamp(a, 11)
    OR = 216
    def zr(s_): return f"ds_read_b128 {V(OR+4*(s_%8),4)}, v7 offset:{L_OB + s_*1024}"
    for s_ in range(8): a(zr(s_))
    if cfg.cost & 1:
        a(f"""s_lshl_b32 {T1}, {S_W4}, 11
s_add_u32 {T1}, {T1}, {L_X}
v_lshlrev_b32 v10, 6, v2
v_lshl_add_u32 v10, v3, 5, v10
v_add_u32 v10, {T1}, v10
v_add_u32 v11, {T1}, v7
v_lshrrev_b32 v5, 2, v1
v_mul_u32_u24 v5, 1792, v5
v_and_b32 v12, 3, v1
v_lshl_add_u32 v5, v12, 4, v5""")
    else:
        a("v_mul_u32_u24 v5, 1792, v2\nv_lshl_add_u32 v5, v3, 5, v5")
    for s_ in range(32):
        a(f"s_waitcnt lgkmcnt({min(7, 31-s_)})")
        a(mfma(AR, WO + 4*s_, OR + 4*(s_ % 8), None if s_ == 0 else AR))
        if s_ + 8 < 32: a(zr(s_ + 8))
    for hf in range(2):
        for q in range(4*hf, 4*hf+4): a(f"v_cvt_pk_bf16_f32 v{48+q}, v{AR+2*q}, v{AR+2*q+1}")
        if cfg.cost & 1: a(f"ds_write_b128 v10, {V(48+4*hf,4)} offset:{16*hf}")
        else: a(f"buffer_store_dwordx4 {V(48+4*hf,4)}, v5, {sOUT}, {T4} offen offset:{16*hf}{osc}")
    if cfg.cost & 1:
        a(f"""ds_read_b128 v[56:59], v11
ds_read_b128 v[60:63], v11 offset:1024
s_waitcnt lgkmcnt(1)
buffer_store_dwordx4 v[56:59], v5, {sOUT}, {T4} offen{osc}
s_waitcnt lgkmcnt(0)
buffer_store_dwordx4 v[60:63], v5, {sOUT}, {T3} offen{osc}""")
    a("L_b3done:")
    a(f"""s_lshl_b32 {T0}, s2, 2
s_add_u32 {T0}, {T0}, {S_W4}
s_cmp_lg_u32 {T0}, 0
s_cbranch_scc1 L_noep
s_mov_b32 {T0}, {EPOCH}""")
    flag(a, T0, 10)
    a("L_noep:")
    if cfg.padend: padto(a, cfg.padend)
    stamp(a, 12)
    dump_stamps(a, 16)
    a("s_endpgm")

def build():
    nh = cfg.nh; xh = 16 // nh
    for wg in range(256):
        xcd, idx = wg & 7, wg >> 3
        h = (xcd % xh) * nh + idx % nh
        assert nh == 8
    a = Asm()
    prologue(a); role_B(a); ROLE[0] = 1; role_A(a)
    a(f"""L_fail:
v_mov_b32 v0, 0
v_mov_b32 v1, {S_TO}
global_store_dword v0, v1, s[18:19]
L_end:
s_endpgm
L_codeend:""")
    a.pad()
    import os
    ref = "cdna_kernels/" + NAME + ".s.ref"
    hdr = open(ref).read().split("; Override launch")[0] if os.path.exists(ref) else ""
    s = hdr + f"; @launch grid=(256,1,1) block=(512,1,1) lds={LDS_SIZE}\n"
    s += f""".amdgcn_target "amdgcn-amd-amdhsa--gfx950"
.text
.globl {NAME}_kernel
.p2align 8
.type {NAME}_kernel,@function
{NAME}_kernel:
""" + a.text() + f""".section .rodata,"a"
.p2align 6
.amdhsa_kernel {NAME}_kernel
  .amdhsa_next_free_vgpr 256
  .amdhsa_next_free_sgpr 102
  .amdhsa_accum_offset 256
  .amdhsa_group_segment_fixed_size 0
  .amdhsa_kernarg_size 72
  .amdhsa_user_sgpr_count 2
  .amdhsa_user_sgpr_kernarg_segment_ptr 1
  .amdhsa_system_sgpr_workgroup_id_x 1
.end_amdhsa_kernel
"""
    return s

if __name__ == "__main__":
    out = sys.argv[1]
    for kv in sys.argv[2:]:
        k, v = kv.split("=")
        setattr(cfg, k, type(getattr(cfg, k))(int(v)))
    open(out, "w").write(build())
```

```python
import sys, math, struct
from asmlib import Asm

NAME = "concat_heads__spectral_gfnet__softmax_full_mha__prompt"

class Cfg:
    nh = 8
    stamps = False
    poll_limit = 1 << 17
    noA = 0
    pxcd = -1
    ptype = 0
    kvsc = 1
    kvt = 0
    kvt64 = 0
    kvs = 0
    kvs0 = 60
    kvsn = 30
    probe = -1
    span = 0
    fine = 0
    padend = 0
    padmid = 0
    dbgwave = -1
    nbuf = 5
    wearly = 0
    touch = 0
    wdelay = 30
    tdelay = 0
    s6late = 0
    lsl = 4
    odefer = 0
    a2wait = 8
    a3wait = 0
    kvwait = 8
    kvrot = 3
    m1 = 12
    ramp = 1
    gate = 2
    wqe = 3
    wqp = 7
    tdefer = 1
    m2 = 27
    xas = 0
    xae = 0
    bhi = 56
    ohint = 1
    wlate = 1
    allpoll = 1
    otry = 1
    gsplit = 8
    claim = 1
    btry = 0
    pace6 = 0
    wolate = 0
    wsoff = 0
    mprio = 0
    xawarm = 0
    wpace = 0
    tstag = 0
    xafirst = 0
    mw = 3
    mwpos = 1
    wqdel = 0
    ring = 8
    apoll = 1
    osleep = 2
    fprio = 0
    nta = 1
    ntw = 1
    ntb = 0
    bsleep = 2
    qst = 0x133
    wopf = 0
    uinp = 1
    woearly = 0
    hack = 0
    ko = 0
    xalate = 0
    ntp = 1
    cost = 3
    nopk = 23
    gtab = 2981409204
    kvp = 1
    owait = 4
    xrot = 0x06543210
    wrot = 1
    pace = 1
    xadefer = 0
    wpf = 0
    outsc = 3
    wqwarm = 0
    th_wo = 14
    th_u = 32
    th_wq = 2
    wqearly = 1
    th_w = 17
    th_xa = 4
    wfair = 8
    xearly = 1
    spf = 0
    spf0 = 150
    pre = 5
    aprio = 2
    force_fb = False
cfg = Cfg()

EPOCH = 0
KV = 0x20000; TS = 61440; VOFF = 28672
OBUF = 0x400000
TBUF = 0x600000
UBUF = 0x800000; USTR = 32768
FKV = 0x8000; FA1 = 0x1000; FO = 0x10000
STAMP = 0xB00000
WS_SIZE = 0x1000000
L_W = 0; L_WQ = 57344; L_X = 86016; L_Q = 151552; L_SYNC = 159744
LDS_SIZE = 160000
L_RED = 0
L_TB = L_WQ; L_YB = L_WQ + 8192; L_MS = 49152; L_TT = L_X + 4096; L_M = L_X + 61440
L_ZB = L_WQ; L_OB = 0
sWS, sWQKV, sX, sWR, sWI, sWO, sOUT = [f"s[{i}:{i+3}]" for i in (24, 28, 32, 36, 40, 44, 48)]
S_WAVE, S_XCD, S_IDX, S_H, S_R, S_W4 = "s56", "s57", "s58", "s59", "s60", "s61"
S_NONCE = "s[62:63]"
S_TO, S_BAR = "s64", "s65"
T0, T1, T2, T3, T4, T5 = "s66", "s67", "s68", "s69", "s22", "s23"
STAMP0 = 84

ZREADY = 24

def f2u(x): return struct.unpack("<I", struct.pack("<f", x))[0]
def lit(x): return "0x%08x" % f2u(x)
def V(a, n=1): return f"v{a}" if n == 1 else f"v[{a}:{a+n-1}]"

def srd(a, name, lo, size):
    i = int(name[2:name.index(":")])
    a(f"s_mov_b32 s{i}, s{lo}\ns_mov_b32 s{i+1}, s{lo+1}\ns_mov_b32 s{i+2}, {size}\ns_mov_b32 s{i+3}, 0x20000")

ROLE = [0]
def stamp(a, i, fine=0):
    if cfg.probe >= 0:
        if fine == cfg.fine and cfg.probe == ROLE[0] * 100 + i:
            a("s_memrealtime s[96:97]\ns_waitcnt lgkmcnt(0)")
        return
    if cfg.fine in (1, 2) and not fine and 3 <= i <= 11: return
    if cfg.fine == 4 and not fine and i in (1, 2, 3, 4, 5, 10, 11, 13): return
    if fine and cfg.fine != fine: return
    if cfg.stamps:
        a(f"s_memtime s[100:101]\ns_waitcnt lgkmcnt(0)\ns_mov_b32 s{STAMP0+i}, s100")

def st0():
    o = f"s_add_u32 s20, s20, {cfg.wsoff << 20}\ns_addc_u32 s21, s21, 0\n" if cfg.wsoff else ""
    return o + (f"s_mov_b32 s{STAMP0+15}, s100\ns_mov_b32 s{STAMP0}, s38" if cfg.stamps else "")

def dump_stamps(a, vt):
    if cfg.probe >= 0:
        if cfg.probe // 100 == ROLE[0]:
            L = a.lab("pr")
            if cfg.pxcd >= 0: a(f"s_cmp_lg_u32 {S_XCD}, {cfg.pxcd}\ns_cbranch_scc1 {L}x")
            if cfg.ptype: a(f"s_cmp_eq_u32 {S_LC}, 7\ns_cbranch_scc{cfg.ptype - 1} {L}x")
            if cfg.probe % 100 == 99: a("s_mov_b32 s96, s100")
            a(f"s_sub_u32 s96, s96, s100\ns_cmp_gt_u32 s96, 4000\ns_cselect_b32 s96, 0, s96\ns_add_u32 s96, s96, 2600\n{L}:\ns_memrealtime s[98:99]\ns_waitcnt lgkmcnt(0)\ns_sub_u32 s98, s98, s100\ns_cmp_lt_u32 s98, s96\ns_cbranch_scc1 {L}\n{L}x:")
        return
    if cfg.span:
        a(f"s_waitcnt vmcnt(0)\ns_memrealtime s[98:99]\ns_lshl_b32 {T0}, s2, 3\ns_add_u32 {T0}, {T0}, {S_WAVE}\ns_lshl_b32 {T0}, {T0}, 3\ns_add_u32 {T0}, {T0}, {STAMP}\ns_waitcnt lgkmcnt(0)")
        a(f"v_mov_b32 v{vt}, s100\nv_mov_b32 v{vt+1}, s98\nv_mov_b32 v{vt+2}, 0\ns_mov_b64 exec, 1\nbuffer_store_dwordx2 {V(vt,2)}, v{vt+2}, {sWS}, {T0} offen\ns_mov_b64 exec, -1")
    if not cfg.stamps: return
    a(f"s_memrealtime s[100:101]\ns_waitcnt lgkmcnt(0)\ns_mov_b32 s{STAMP0+14}, s100")
    if cfg.dbgwave >= 0:
        L = a.lab("nodbg")
        a(f"s_lshl_b32 {T0}, s2, 3\ns_add_u32 {T0}, {T0}, {S_WAVE}\ns_cmp_lg_u32 {T0}, {cfg.dbgwave}\ns_cbranch_scc1 {L}")
        a(f"v_mov_b32 v{vt+4}, 0\ns_mov_b64 exec, 1")
        for i in range(1, 16):
            a(f"s_sub_u32 {T1}, s{STAMP0+i}, s{STAMP0 + (15 if i >= 14 else 0)}\nv_mov_b32 v{vt}, {T1}\nglobal_store_dword v{vt+4}, v{vt}, s[18:19] offset:{4*i}")
        a(f"s_mov_b64 exec, -1\n{L}:")
    a(f"s_lshl_b32 {T0}, s2, 3\ns_add_u32 {T0}, {T0}, {S_WAVE}\ns_lshl_b32 {T0}, {T0}, 7\ns_add_u32 {T0}, {T0}, {STAMP}")
    a(f"v_mov_b32 v{vt+4}, 0\ns_mov_b64 exec, 1")
    for q in range(4):
        for i in range(4): a(f"v_mov_b32 v{vt+i}, s{STAMP0+4*q+i}")
        a(f"buffer_store_dwordx4 {V(vt,4)}, v{vt+4}, {sWS}, {T0} offen offset:{16*q}")
    a("s_mov_b64 exec, -1")

def padto(a, ticks):
    L = a.lab("pad")
    a(f"{L}:\ns_memrealtime s[100:101]\ns_waitcnt lgkmcnt(0)\ns_sub_u32 s100, s100, s{STAMP0+15}\ns_cmp_lt_u32 s100, {ticks}\ns_cbranch_scc1 {L}")

def poll_issue(vaddr, soff, vt, n):
    return f"""v_mov_b32 v{vt}, 0
v_mov_b32 v{vt+1}, 0
s_bfm_b64 exec, {n}, 0
buffer_atomic_or_x2 {V(vt,2)}, {vaddr}, {sWS}, {soff} offen sc0 sc1
s_mov_b64 exec, -1"""

def poll_check(vt, n):
    return f"v_cmp_ne_u64 vcc, {S_NONCE}, {V(vt,2)}\ns_and_b32 vcc_lo, vcc_lo, {hex((1 << n) - 1)}"

def poll(a, vaddr, soff, vt, n, code, sleep=2):
    L, Dn = a.lab("poll"), a.lab("polld")
    a(f"""s_mov_b32 {S_TO}, {cfg.poll_limit}
{L}:
{poll_issue(vaddr, soff, vt, n)}
s_waitcnt vmcnt(0)
{poll_check(vt, n)}
s_cbranch_scc0 {Dn}
s_sleep {sleep}
s_sub_u32 {S_TO}, {S_TO}, 1
s_cbranch_scc0 {L}
s_mov_b32 {S_TO}, {code}
s_branch L_fail
{Dn}:""")

def publish_wg(a, vsync, vone, off, vt, soff, vn, last=3):
    L = a.lab("pub")
    a(f"""s_mov_b64 exec, 1
ds_add_rtn_u32 v{vt}, {vsync}, {vone} offset:{off}
s_waitcnt lgkmcnt(0)
v_readfirstlane_b32 {T0}, v{vt}
s_cmp_eq_u32 {T0}, {last}
s_cselect_b64 exec, 1, 0
buffer_store_dwordx2 {V(vn,2)}, v{vn+2}, {sWS}, {soff} offen sc1
s_mov_b64 exec, -1""")

def flag(a, soff, vt):
    a(f"""v_mov_b32 v{vt}, s62
v_mov_b32 v{vt+1}, s63
v_mov_b32 v{vt+2}, 0
s_mov_b64 exec, 1
buffer_store_dwordx2 {V(vt,2)}, v{vt+2}, {sWS}, {soff} offen sc1
s_mov_b64 exec, -1""")

def flag2(a, soff, vn):
    a(f"s_mov_b64 exec, 1\nbuffer_store_dwordx2 {V(vn,2)}, v{vn+2}, {sWS}, {soff} offen sc1\ns_mov_b64 exec, -1")

def lwait(a, vsync, vt, target, code, sleep=0, off=0):
    L, Dn = a.lab("lw"), a.lab("lwd")
    a(f"""s_mov_b32 {S_TO}, {cfg.poll_limit * 8}
{L}:
ds_read_b32 v{vt}, {vsync} offset:{off}
s_waitcnt lgkmcnt(0)
v_readfirstlane_b32 {T0}, v{vt}
s_cmp_ge_u32 {T0}, {target}
s_cbranch_scc1 {Dn}
{"s_sleep %d" % sleep if sleep else ""}
s_sub_u32 {S_TO}, {S_TO}, 1
s_cbranch_scc0 {L}
s_mov_b32 {S_TO}, {code}
s_branch L_fail
{Dn}:""")

def lbar(a, vsync, vone, vt, code, sleep=0):
    L, Dn = a.lab("lb"), a.lab("lbd")
    a(f"""s_add_u32 {S_BAR}, {S_BAR}, 4
s_mov_b64 exec, 1
ds_add_u32 {vsync}, {vone}
s_mov_b64 exec, -1
s_mov_b32 {S_TO}, {cfg.poll_limit * 8}
{L}:
ds_read_b32 v{vt}, {vsync}
s_waitcnt lgkmcnt(0)
v_readfirstlane_b32 {T0}, v{vt}
s_cmp_ge_u32 {T0}, {S_BAR}
s_cbranch_scc1 {Dn}
{"s_sleep %d" % sleep if sleep else ""}
s_sub_u32 {S_TO}, {S_TO}, 1
s_cbranch_scc0 {L}
s_mov_b32 {S_TO}, {code}
s_branch L_fail
{Dn}:""")

def mfma(d, A, B, C=None):
    return f"v_mfma_f32_32x32x16_bf16 {V(d,16)}, {V(A,4)}, {V(B,4)}, {'0' if C is None else V(C,16)}"

def pk2(a, op, d, x, y, z=None, neg="", scalar=False):
    srcs = [x, y] + ([z] if z is not None else [])
    if not scalar:
        m = "[" + ",".join("1" if str(i) in neg else "0" for i in range(len(srcs))) + "]"
        a(f"v_pk_{op}_f32 {V(d,2)}, " + ", ".join(V(r,2) for r in srcs) + (f" neg_lo:{m} neg_hi:{m}" if neg else ""))
        return
    for q in range(2):
        if op == "add" and neg == "1": a(f"v_sub_f32 v{d+q}, v{x+q}, v{y+q}")
        else: a(f"v_{op}_f32 v{d+q}, " + ", ".join(("-" if str(i) in neg else "") + f"v{r+q}" for i, r in enumerate(srcs)))

def mod7(a, s, t):
    a(f"s_mul_i32 {t}, {s}, 9363\ns_lshr_b32 {t}, {t}, 16\ns_mul_i32 {t}, {t}, 7\ns_sub_u32 {s}, {s}, {t}")

def x_read_addrs(a, v0, vl, base_s, t):
    a(f"""v_and_b32 v{t}, 31, {vl}
v_lshrrev_b32 v{t+1}, 5, {vl}
v_bfe_u32 v{t+2}, {vl}, 1, 3
v_xor_b32 v{t+1}, v{t+1}, v{t+2}
v_lshlrev_b32 v{t}, 7, v{t}
v_add_u32 v{t}, {base_s}, v{t}""")
    for mm in range(4):
        a(f"v_xor_b32 v{t+2}, {2*mm}, v{t+1}\nv_lshl_add_u32 v{v0+mm}, v{t+2}, 4, v{t}")


S_HH, S_RR, S_J, S_P0, S_LC = "s52", "s53", "s54", "s55", "s3"

def prologue(a):
    a(f"""s_cmp_ge_u32 s2, 256
s_cbranch_scc1 L_end
s_load_dwordx16 s[4:19], s[0:1], 0
s_load_dwordx2 s[20:21], s[0:1], 64""")
    if cfg.span or cfg.probe >= 0: a("s_memrealtime s[100:101]")
    if cfg.stamps:
        a(f"s_memtime s[38:39]\ns_memrealtime s[100:101]")
        for i in range(1, 15): a(f"s_mov_b32 s{STAMP0+i}, 0")
    a(f"""s_lshr_b32 {S_IDX}, s2, 3
s_getpc_b64 s[70:71]
L_pc:
v_lshrrev_b32 v3, 5, v0
v_lshl_add_u32 v3, {S_IDX}, 4, v3
v_lshlrev_b32 v3, 7, v3
v_min_u32 v3, L_codeend-L_pc-4, v3
global_load_dword v255, v3, s[70:71]
v_lshrrev_b32 v2, 6, v0
v_and_b32 v1, 63, v0
v_readfirstlane_b32 {S_WAVE}, v2
s_and_b32 {S_XCD}, s2, 7
s_and_b32 {S_HH}, {S_IDX}, 7
s_lshr_b32 {S_RR}, {S_IDX}, 3
s_and_b32 {T5}, {S_XCD}, 1
s_lshl_b32 {S_H}, {T5}, 3
s_add_u32 {S_H}, {S_H}, {S_HH}
s_lshl_b32 {T0}, {S_HH}, 2
s_cmp_eq_u32 {T5}, 0
s_cselect_b32 {S_LC}, 0x67543210, s2
s_cselect_b32 {S_LC}, {S_LC}, 0x65432170
s_lshr_b32 {S_LC}, {S_LC}, {T0}
s_and_b32 {S_LC}, {S_LC}, 7
s_and_b32 {S_W4}, {S_WAVE}, 3
s_cmp_ge_u32 {S_WAVE}, 4
s_cbranch_scc1 L_roleA""")

def nonce(a):
    a(f"""s_waitcnt lgkmcnt(0)
s_mul_i32 s62, s62, 0x9E3779B1
s_add_u32 s62, s62, 0x7F4A7C15
s_mul_i32 s63, s63, 0x85EBCA6D
s_add_u32 s63, s63, 0x165667B1""")

def role_B(a):
    X = 16; ACC = 128; WB = 160; PK = 224
    KVSC = ("sc1", "sc0 sc1", "sc1 nt", "sc0 sc1 nt")[cfg.kvsc]
    SC = 70
    S_XL, S_TILE, S_I = "s77", "s78", "s79"
    TO = 36
    S_WM, S_WO, S_DM, S_DO = "s80", "s81", "s82", "s83"
    a(f"""s_setprio 3
s_mul_i32 {S_J}, {T5}, 7
s_add_u32 {S_J}, {S_J}, {S_LC}
v_lshrrev_b32 v8, 3, v1
v_and_b32 v9, 7, v1
v_mul_u32_u24 v2, 2688, v8
v_bfe_u32 v3, v1, 4, 1
v_lshlrev_b32 v3, 2, v3
v_xor_b32 v3, v9, v3
v_lshl_add_u32 v2, v3, 4, v2
s_lshl_b32 {T0}, {S_J}, 7
s_mul_i32 {T1}, {S_W4}, {8*2688}
s_add_u32 {T0}, {T0}, {T1}
s_add_u32 {T0}, {T0}, 896
v_add_u32 v2, {T0}, v2
s_lshl_b32 {T2}, {S_RR}, 3
s_lshr_b32 {T0}, {0xD66D0770 if cfg.wrot else 0x70707070}, {T2}
s_bfe_u32 {T1}, {T0}, 0x40004
s_and_b32 {T0}, {T0}, 15
s_lshl_b32 {T3}, {S_W4}, 10
s_lshl_b32 {T2}, {T0}, 12
s_add_u32 m0, {T2}, {T3}
s_mul_i32 {S_I}, {T0}, {32*2688}
s_lshl_b32 {T2}, {T1}, 12
s_add_u32 {S_WM}, {T2}, {T3}
s_mul_i32 {S_WO}, {T1}, {32*2688}
s_cmp_ge_u32 {S_RR}, {2 if cfg.wrot else 4}
s_cselect_b32 {T0}, -1, 1
s_lshl_b32 {S_DM}, {T0}, 12
s_mul_i32 {S_DO}, {T0}, {32*2688}
s_cmp_eq_u32 {S_LC}, 7
s_cselect_b32 s30, 0, {448 * 2688}
s_mov_b32 s31, 0x20000
s_waitcnt lgkmcnt(0)
{st0()}
s_mov_b64 s[28:29], s[12:13]""")
    def x_m0(i, j): return f"s_add_u32 m0, {S_XL}, {(i%4)*4096 + j*1024}"
    def x_ld(i, j): return f"buffer_load_dwordx4 v{4+j}, {sX}, s{SC+i} offen{' nt' if cfg.ntb else ''} lds"
    def sc_next(i): return f"s_add_u32 s{SC+i}, s{SC+i-1}, 128\ns_cmp_eq_u32 s{SC+i}, 896\ns_cselect_b32 s{SC+i}, 0, s{SC+i}"
    def w_base(i): return f"v_lshl_add_u32 v12, s{SC+i}, 6, v14\nv_xor_b32 v13, 64, v12"
    def setup_x():
        a(f"""s_mov_b32 s34, {2048*896}
s_mov_b32 s35, 0x20000
s_lshr_b32 {S_R}, {S_XCD}, 1
s_lshl_b32 {S_R}, {S_R}, 2
s_add_u32 {S_R}, {S_R}, {S_RR}
s_lshl_b32 {S_TILE}, {S_R}, 2
s_add_u32 {S_TILE}, {S_TILE}, {S_W4}
v_lshrrev_b32 v10, 4, v1
v_xor_b32 v10, v9, v10
v_xor_b32 v11, 4, v10
v_mul_u32_u24 v12, 896, v8
s_mul_i32 {T2}, {S_TILE}, {32*896}
v_add_u32 v12, {T2}, v12
v_lshl_add_u32 v4, v10, 4, v12
v_lshl_add_u32 v5, v11, 4, v12
v_add_u32 v5, {8*896}, v5
v_add_u32 v6, {16*896}, v4
v_add_u32 v7, {16*896}, v5
s_lshl_b32 {T2}, {S_HH}, 2
s_lshr_b32 s{SC}, {cfg.xrot}, {T2}
s_and_b32 s{SC}, s{SC}, 7
s_lshl_b32 s{SC}, s{SC}, 7
s_lshl_b32 {S_XL}, {S_W4}, 14
s_add_u32 {S_XL}, {S_XL}, {L_X}""")
        a("s_mov_b64 s[32:33], s[10:11]")
    def setup2():
        for i in range(1, 7): a(sc_next(i))
        x_read_addrs(a, 8, "v1", S_XL, 12)
        srd(a, sWS, 20, WS_SIZE)
        a(f"""v_lshrrev_b32 v12, 5, v1
v_lshlrev_b32 v12, 3, v12
v_bfe_u32 v13, v1, 2, 2
v_add_u32 v12, v12, v13
v_bfe_u32 v13, v1, 4, 1
v_lshlrev_b32 v13, 5, v13
v_and_b32 v18, 1, v1
v_bfe_u32 v19, v1, 1, 1
v_lshl_add_u32 v15, v18, 4, v13
v_lshl_add_u32 v15, v19, 3, v15
v_lshl_add_u32 v14, v18, 3, v13
v_lshl_add_u32 v14, v19, 4, v14
s_cmp_eq_u32 {T5}, 1
s_cselect_b64 vcc, -1, 0
v_cndmask_b32 v14, v15, v14, vcc
v_lshl_add_u32 v15, v12, 6, v15
v_add_u32 v15, {L_WQ}, v15
v_bfe_u32 v13, v1, 3, 1
v_lshl_add_u32 v14, v13, 6, v14
v_lshl_add_u32 v14, v12, 7, v14""")
        a(f"""v_lshrrev_b32 v253, 2, v1
v_mul_u32_u24 v253, 2688, v253
v_and_b32 v254, 3, v1
v_lshl_add_u32 v253, v254, 4, v253
s_mul_i32 {S_P0}, {S_H}, 7
s_lshr_b32 {S_P0}, {S_P0}, 1
s_lshl_b32 s80, {S_P0}, 4
s_mul_i32 s81, {S_W4}, {16*2688}
s_add_u32 s80, s80, s81
v_add_u32 v253, s80, v253
s_lshl_b32 s80, {S_W4}, 10
s_add_u32 s80, s80, {L_WQ}
s_and_b32 s81, {S_P0}, 7
s_cmp_gt_u32 s81, 4
s_cselect_b32 s81, 1, 0
s_nop 0""")
        a(w_base(0))
        a(f"v_mov_b32 v250, {L_SYNC}\nv_mov_b32 v251, 1\nv_mov_b32 v246, 0\ns_mov_b32 {S_BAR}, 0")
    VK, VV, VF, VL = 240, 241, 242, 243
    PG = ["s4", "s5", "s6", "s7"]; S_FL = "s8"
    def setup3():
        a(f"""v_lshlrev_b32 v{VL}, 4, v1
s_lshl_b32 {T0}, {S_P0}, 9
v_add_u32 v{VK}, {T0}, v{VL}
s_lshl_b32 {T0}, {S_H}, 11
s_add_u32 {T0}, {T0}, {VOFF}
v_add_u32 v{VV}, {T0}, v{VL}
s_lshr_b32 {T1}, {S_P0}, 3
s_add_u32 {T0}, {S_P0}, 3
s_lshr_b32 {T0}, {T0}, 3
s_sub_u32 {T0}, {T0}, {T1}
v_and_b32 v{VF}, 1, v1
v_mul_u32_u24 v{VF}, {T0}, v{VF}
v_bfe_u32 v18, v1, 1, 1
v_mul_u32_u24 v18, 7, v18
v_add_u32 v{VF}, v{VF}, v18
v_lshlrev_b32 v{VF}, 7, v{VF}
s_lshl_b32 {T0}, {S_W4}, 4
s_add_u32 {T0}, {T0}, {T1}
s_lshl_b32 {T0}, {T0}, 7
s_add_u32 {T3}, {T0}, {FKV}
s_lshr_b32 {T2}, {S_R}, 2
s_lshl_b32 {T2}, {T2}, 3
s_lshr_b32 {T2}, {cfg.gtab if cfg.gtab > 1 else 0x934E39E4}, {T2}
s_mul_i32 {T1}, {S_W4}, {4*TS}
s_add_u32 {T1}, {T1}, {KV}""")
        for p in range(4): a(f"s_add_u32 {T0}, {S_RR}, {p}\ns_and_b32 {T0}, {T0}, 3\ns_mul_i32 s{TO+12+p}, {T0}, {TS}")
        for g in range(4):
            a(f"s_bfe_u32 {T0}, {T2}, {0x20000 + 2*g}\ns_lshl_b32 {PG[g]}, {T0}, 13\ns_add_u32 {PG[g]}, {PG[g]}, {T3}\ns_mul_i32 {T0}, {T0}, {16*TS}\ns_add_u32 {T0}, {T0}, {T1}")
            for p in range(4):
                a(f"s_add_u32 s{TO+4*g+p}, {T0}, " + (f"{p*TS}" if (g == 0 or cfg.kvrot == 0) else f"s{TO+12+p}"))
        a(f"""s_cmp_eq_u32 {S_LC}, 7
s_cselect_b32 {T1}, 15, {S_J}
s_lshl_b32 {T0}, {S_R}, 4
s_add_u32 {T0}, {T0}, {T1}
s_lshl_b32 {T0}, {T0}, 7
s_add_u32 {S_FL}, {T0}, {FKV}""")
    stamp(a, 3, 2)
    XE = cfg.xearly
    def mid():
        stamp(a, 4, 2)
        a("s_barrier")
        if cfg.fine != 2: a(f"s_load_dwordx2 s[62:63], s[20:21], {EPOCH}")
        stamp(a, 5, 2)
    for i in range(14):
        a(f"buffer_load_dwordx4 v2, {sWQKV}, {S_I} offen lds")
        if i == 6:
            if XE:
                setup_x()
                for j in range(4): a(x_m0(0, j)); a("s_nop 0"); a(x_ld(0, j))
                mid()
            a(f"s_mov_b32 m0, {S_WM}\ns_mov_b32 {S_I}, {S_WO}")
            if XE: setup2(); setup3()
        elif i < 13: a(f"s_add_u32 m0, m0, {S_DM}\ns_add_u32 {S_I}, {S_I}, {S_DO}")
        if i == 10 and not XE:
            mid(); setup_x(); setup2(); setup3()
    stamp(a, 8, 2)
    a(f"s_waitcnt vmcnt({cfg.wfair})")
    stamp(a, 10, 2)
    for c in range(XE, 2 + XE):
        for j in range(4): a(x_m0(c, j)); a("s_nop 0"); a(x_ld(c, j))
    stamp(a, 11, 2)
    if cfg.fine == 2: a(f"s_load_dwordx2 s[62:63], s[20:21], {EPOCH}")
    nonce(a)
    a("v_mov_b32 v244, s62\nv_mov_b32 v245, s63\nds_write_b64 v250, v[244:245] offset:64")
    def w_base(i): return f"v_lshl_add_u32 v12, s{SC+i}, 6, v14\nv_xor_b32 v13, 64, v12"
    def wq(i): return f"s_add_u32 m0, s80, {i*4096}\ns_mul_i32 s82, s{SC+i}, {64*21}\nbuffer_load_dwordx4 v253, {sWQKV}, s82 offen lds"
    a(f"s_mov_b32 s30, {448 * 2688}")
    def w_reads(i):
        out = []
        for mm in range(4):
            for ct in range(2):
                for hf in range(2):
                    d = WB + (i % 2) * 32 + mm * 8 + ct * 4 + hf * 2
                    out.append(f"ds_read_b64_tr_b16 {V(d,2)}, v{12+ct} offset:{mm*2048 + hf*512}")
        return out
    def x_reads(i):
        return [f"ds_read_b128 {V(X+16*i+4*mm,4)}, v{8+mm} offset:{(i%4)*4096}" for mm in range(4)]
    a(f"""s_waitcnt vmcnt(8)""")
    stamp(a, 1)
    a(f"s_mov_b64 exec, 1\nds_add_u32 v250, v251\ns_mov_b64 exec, -1")
    for j in range(2): a(x_m0(2 + XE, j)); a("s_nop 0"); a(x_ld(2 + XE, j))
    lwait(a, "v250", 252, 4, 19)
    stamp(a, 3, 1)
    wr0 = w_reads(0)
    for s_ in wr0[:8]: a(s_)
    if not XE: a("s_waitcnt vmcnt(6)")
    for s_ in x_reads(0) + wr0[8:]: a(s_)
    a(f"s_cmp_eq_u32 {T5}, 1\ns_cbranch_scc1 L_kvV")
    for var in ("K", "V"):
        if var == "V": a("L_kvV:")
        late = [f"s_mul_i32 {T4}, {S_TILE}, {TS}", f"s_add_u32 {T4}, {T4}, {KV}", "v_lshlrev_b32 v7, 4, v1"]
        if var == "K":
            late += [f"s_lshl_b32 {T0}, {S_LC}, 12", f"s_add_u32 {T4}, {T4}, {T0}"]
        else:
            late += f"""s_lshl_b32 {T1}, {S_LC}, 6
v_and_b32 v4, 31, v1
v_add_u32 v4, {T1}, v4                    ; col (ct0)
v_add_u32 v5, 32, v4
v_lshrrev_b32 v3, 5, v1
v_lshlrev_b32 v3, 9, v3
v_add_u32 v3, {VOFF}, v3""".split("\n")
            for r in (4, 5):
                late += f"""v_mul_u32_u24 v2, 2341, v{r}
v_lshrrev_b32 v2, 16, v2
v_mul_u32_u24 v2, {2048 - 28*16}, v2
v_lshl_add_u32 v{r}, v{r}, 4, v2
v_add_u32 v{r}, v{r}, v3""".split("\n")
            late += f"""s_lshl_b32 {T1}, {S_LC}, 2
s_lshr_b32 {T2}, 0xDB96420, {T1}
s_and_b32 {T2}, {T2}, 15                  ; first head that ends in this line-column
s_lshr_b32 {T3}, 0x3223222, {T1}
s_and_b32 {T3}, {T3}, 15
s_lshl_b32 {T3}, {T3}, 4
v_lshrrev_b32 v6, 2, v1
v_lshlrev_b32 v6, 9, v6
v_and_b32 v2, 3, v1
v_lshl_add_u32 v6, v2, 4, v6
s_lshl_b32 {T2}, {T2}, 11
s_add_u32 {T2}, {T2}, {VOFF + 28*16}
v_add_u32 v6, {T2}, v6
v_cmp_eq_u32 vcc, 0, v2
v_mov_b32 v2, 0x3f803f80
s_nop 0
v_cndmask_b32 v236, 0, v2, vcc
v_cndmask_b32 v237, 0, v2, vcc
v_cndmask_b32 v238, 0, v2, vcc
v_cndmask_b32 v239, 0, v2, vcc""".split("\n")
        for i in range(7):
            a("s_waitcnt lgkmcnt(0)")
            stamp(a, 4 + i, 1)
            fill = [[] for _ in range(8)]
            pre = [[] for _ in range(8)]
            if i == 0:
                dq = [(c, j) for c in range(1, 7) for j in range(4)]
                issued_q = dq[:6 + 4*XE]; dq = dq[6 + 4*XE:]
            def take(g):
                if dq and dq[0][0] <= i + 4:
                    e = dq.pop(0); issued_q.append(e)
                    pre[g].append(x_m0(*e)); fill[g].insert(0, x_ld(*e))
            had = bool(dq)
            if i + 1 < 7:
                wr = w_reads(i + 1)
                fill[0] += [w_base(i + 1)] + wr[0:3]
                fill[1] += wr[3:8]; fill[2] += wr[8:12]; fill[3] += wr[12:16]
                for g in ((0, 1, 2, 3, 4) if i == 0 and not XE else (0,)): take(g)
                if i == 4:
                    fill[1].append("s_cmp_eq_u32 s81, 1\ns_cselect_b64 exec, -1, 0\n" + "\n".join(wq(q) for q in range(cfg.wqe)) + "\ns_mov_b64 exec, -1")
                    issued_q += [(99, q) for q in range(cfg.wqe)]
                last = max(q for q, e in enumerate(issued_q) if e[0] == i + 1)
                fill[4] += [f"s_waitcnt vmcnt({len(issued_q) - 1 - last})"] + x_reads(i + 1)
            for g in range(5, 8): take(g)
            if i == 4:
                assert not had
                fill[0].insert(0, "s_mov_b64 exec, 1\nds_add_u32 v250, v251 offset:8\ns_mov_b64 exec, -1")
            if not had:
                for g in range(5 if i < 6 else 0, 8):
                    for q in range(6):
                        if late: fill[g].append(late.pop(0))
            for mm in range(4):
                for ct in range(2):
                    xr = X + 16*i + 4*mm; wr_ = WB + (i % 2) * 32 + mm * 8 + ct * 4
                    c = None if (i == 0 and mm == 0) else ACC + 16*ct
                    for s_ in pre[2*mm + ct]: a(s_)
                    a(mfma(ACC + 16*ct, wr_, xr, c) if var == "K" else mfma(ACC + 16*ct, xr, wr_, c))
                    for s_ in fill[2*mm + ct]: a(s_)
        assert not late
        stamp(a, 11, 1)
        a(f"s_cmp_eq_u32 {S_LC}, 7\ns_cbranch_scc1 L_kvnone")
        if var == "V":
            a(f"s_bfm_b64 exec, {T3}, 0\nbuffer_store_dwordx4 v[236:239], v6, {sWS}, {T4} offen sc1\ns_mov_b64 exec, -1")
        for ct in range(2):
            for j in range(2):
                for q in range(4):
                    z = 8*ct + 4*j + q
                    a(f"v_cvt_pk_bf16_f32 v{PK+z}, v{ACC+2*z}, v{ACC+2*z+1}")
                if var == "K":
                    a(f"buffer_store_dwordx4 {V(PK+8*ct+4*j,4)}, v7, {sWS}, {T4} offen offset:{ct*2048+j*1024} {KVSC}")
                else:
                    a(f"buffer_store_dwordx4 {V(PK+8*ct+4*j,4)}, v{4+ct}, {sWS}, {T4} offen offset:{j*1024} {KVSC}")
        if var == "K": a("s_branch L_kvdone\nL_kvnone:\ns_waitcnt vmcnt(0)\ns_branch L_kvdone")
    a("L_kvdone:\ns_mov_b64 exec, 1\nds_add_u32 v250, v251\ns_mov_b64 exec, -1")
    stamp(a, 2)
    NB = cfg.nbuf
    Q = 16; O = 48; SA = 112; KVB = 144; P0 = KVB + 16*NB; P1 = P0 + 4
    assert P1 + 4 <= 240
    QP = 224
    S_LD = "s9"
    def kv_loads(t, so=None):
        b = KVB + 16 * (t % NB); so = so or f"s{TO + (t if not cfg.hack or t < cfg.hack else t % cfg.hack)}"
        return [f"buffer_load_dwordx4 {V(b+4*j,4)}, v{VK if j < 2 else VV}, {sWS}, {so} offen offset:{(j%2)*1024} sc1" for j in range(4)]
    PV = 254; QA = (4, 6, 8, 9)
    pl = poll_issue(f"v{VF}", PG[0], PV, 4)
    QW = 176
    def qsync(target):
        a("s_mov_b64 exec, 1\nds_add_u32 v250, v251 offset:4\ns_mov_b64 exec, -1")
        lwait(a, "v250", 5, target, 14, off=4)
    def qmma(c0, c1, issue, check):
        rd = [f"ds_read_b64_tr_b16 {V(QW+(i%3)*16+mm*4+hf*2,2)}, v15 offset:{i*4096+mm*1024+hf*256}" for i in range(c0, c1) for mm in range(4) for hf in range(2)]
        iss = min(len(rd), 12)
        for s_ in rd[:iss]: a(s_)
        for m in range(4 * (c1 - c0)):
            a(f"s_waitcnt lgkmcnt({iss - (2*m + 2)})")
            a(mfma(ACC, QW + ((c0 + m // 4) % 3) * 16 + 4*(m % 4), X + 16*c0 + 4*m, None if c0 + m == 0 else ACC))
            for s_ in rd[iss:iss+2]: a(s_)
            iss = min(len(rd), iss + 2)
            if m == issue: a(pl)
            if m == check:
                Lf, Lg = a.lab("pf"), a.lab("pg")
                a(f"s_waitcnt vmcnt(0)\n{poll_check(PV, 4)}\ns_cbranch_scc1 {Lf}\ns_mov_b32 {S_LD}, 1")
                for t in range(2):
                    for s_ in kv_loads(t): a(s_)
                a(f"s_branch {Lg}\n{Lf}:\n{pl}\n{Lg}:")
    S_OB, S_FO, S_LO, S_HI, S_CL, S_M0 = "s10", "s11", "s12", "s13", "s14", "s[76:77]"
    def addrs():
        a(f"""s_lshl_b32 {S_OB}, {S_TILE}, 4
s_add_u32 {S_OB}, {S_OB}, {S_H}
s_lshl_b32 {S_OB}, {S_OB}, 11
s_add_u32 {S_OB}, {S_OB}, {OBUF}
s_lshl_b32 {S_FO}, {S_R}, 4
s_add_u32 {S_FO}, {S_FO}, {S_H}
s_lshl_b32 {S_FO}, {S_FO}, 7
s_add_u32 {S_FO}, {S_FO}, {FO}
s_mov_b32 {S_LO}, {lit(2.0**-40)}
s_mov_b32 {S_HI}, {lit(2.0**30)}
s_movk_i32 {S_CL}, 0x1f8
s_cmp_eq_u32 {S_W4}, 0
s_cselect_b64 {S_M0}, 1, 0
v_mov_b32 v2, v250
v_mov_b32 v3, 1
v_mov_b32 v7, v{VL}
v_mov_b32 v248, {lit(28 ** -0.5 * math.log2(math.e))}
v_mov_b32 v249, v248""")
        for i in range(4):
            a(f"""s_add_u32 {T0}, {S_W4}, {i+1}
s_and_b32 {T0}, {T0}, 3
s_lshl_b32 {T1}, {T0}, 11
s_add_u32 {T1}, {T1}, {L_Q}
v_add_u32 v{QA[i]}, {T1}, v7
s_mul_i32 {T0}, {T0}, 12288
s_add_u32 {T0}, {T0}, {(i%3)*4096 + L_RED}
v_add_u32 v{10+i}, {T0}, v7""")
    def publish(n):
        a(f"s_waitcnt vmcnt({n})")
        publish_wg(a, "v250", "v251", 16, 5, S_FL, 244)
        stamp(a, 3)
        a("s_waitcnt vmcnt(1)")
    E = cfg.wqe
    a(f"s_mov_b32 {S_LD}, 0\ns_cmp_eq_u32 s81, 1\ns_cbranch_scc1 L_qtwo")
    S_M0 = "s[82:83]" if cfg.xafirst else S_M0
    if cfg.xafirst:
        addrs()
        if cfg.wqdel: a(f"s_sleep {cfg.wqdel}")
        for i in range(7): a(wq(i).replace("s82", T0))
    else:
        for i in range(7): a(wq(i))
        addrs()
    publish(7)
    qsync(4)
    stamp(a, 4)
    qmma(0, 7, cfg.m1, cfg.m2)
    a("s_branch L_qdone\nL_qtwo:\ns_waitcnt vmcnt(4)")
    qsync(4)
    for i in range(E, 7): a(wq(i))
    qmma(0, E, -1, -1)
    addrs()
    publish(7 - E)
    qsync(8)
    stamp(a, 4)
    qmma(E, 7, 0, 4 * (7 - E) - 1)
    a("L_qdone:")
    stamp(a, 5)
    a(f"s_bitcmp1_b32 {S_H}, 0")
    for hf in range(2):
        for q in range(8*hf, 8*hf+8, 2): pk2(a, "mul", ACC+q, ACC+q, 248, scalar=cfg.nopk & 1)
        for q in range(4*hf, 4*hf+4): a(f"v_cvt_pk_bf16_f32 v{QP+q}, v{ACC+2*q}, v{ACC+2*q+1}")
        if hf == 0: a(f"s_cselect_b32 exec_lo, -1, 0\ns_mov_b32 exec_hi, 0\nv_mov_b32 v{QP}, 0\nv_mov_b32 v{QP+1}, 0\ns_mov_b64 exec, -1")
        else: a(f"s_cselect_b32 exec_hi, 0, -1\ns_mov_b32 exec_lo, 0\nv_mov_b32 v{QP+6}, 0\nv_mov_b32 v{QP+7}, 0\ns_mov_b64 exec, -1")
        a(f"ds_write_b128 v9, {V(QP+4*hf,4)} offset:{1024*hf}")
    a(f"""s_mov_b64 exec, 1
ds_add_u32 v2, v3
s_mov_b64 exec, -1
s_cmp_eq_u32 {S_LD}, 1
s_cbranch_scc1 L_kvloaded
s_waitcnt vmcnt(0)
{poll_check(PV, 4)}
s_cbranch_scc0 L_kvready""")
    poll(a, f"v{VF}", PG[0], PV, 4, 1, sleep=2)
    a("L_kvready:")
    for t in range(2):
        for s_ in kv_loads(t): a(s_)
    a("L_kvloaded:\ns_mov_b64 exec, 1\nds_add_u32 v2, v3 offset:12\ns_mov_b64 exec, -1")
    stamp(a, 6)
    if cfg.fine == 6:
        a(f"s_lshl_b32 {T0}, {S_LD}, 10\ns_add_u32 s{STAMP0+1}, s{STAMP0}, {T0}\ns_sub_u32 {T0}, {cfg.poll_limit}, {S_TO}\ns_cmp_gt_u32 {T0}, 100\ns_cselect_b32 {T0}, -1, {T0}\ns_add_u32 {T0}, {T0}, 1\ns_lshl_b32 {T0}, {T0}, 10\ns_add_u32 s{STAMP0+2}, s{STAMP0}, {T0}")
    lwait(a, "v2", 5, 12, 15)
    a(f"s_mov_b32 {S_BAR}, 12")
    for i in range(4):
        a(f"ds_read_b128 {V(Q+8*i,4)}, v{QA[i]}\nds_read_b128 {V(Q+8*i+4,4)}, v{QA[i]} offset:1024")
    stamp(a, 7)
    a("s_waitcnt vmcnt(6) lgkmcnt(6)\ns_setprio 0")
    if cfg.padmid: padto(a, cfg.padmid)
    stamp(a, 8)
    a(mfma(SA, KVB, Q)); a(mfma(SA, KVB + 4, Q + 4, SA))
    a("s_waitcnt vmcnt(4) lgkmcnt(0)\ns_nop 9\n.p2align 3")
    sched = {}
    issued = 2
    for t in range(16):
        for i in (1, 2):
            if (i == 1 or t % cfg.ramp == 0) and issued <= min(15, t + NB - 1):
                sched[(t, i)] = issued; issued += 1
    first = {g: min(k for k, v in sched.items() if v == 4*g) for g in (1, 2, 3)}
    pollat = {(k[0] - 1, 0): g for g, k in first.items()}
    vq = [("t", 1)] * 4
    def after(tag): return len(vq) - 1 - max(q for q, e in enumerate(vq) if e == tag)
    assert NB >= 5
    units = [(t, i) for t in range(12) for i in range(4)] + [(t, i) for i in range(4) for t in range(12, 16)]
    firstuse = {}
    for n, (t, i) in enumerate(units): firstuse.setdefault(t, n)
    waitat = {n - 2: t for t, n in firstuse.items() if t > 0}
    kb = lambda tt: KVB + 16 * (tt % NB)
    redw = lambda i, q: f"ds_write_b128 v{10+i}, {V(O+16*i+4*q,4)} offset:{q*1024}"
    for n, (t, i) in enumerate(units):
        if n % 8 == 0 and n: stamp(a, n // 8, 3)
        cur = SA + 16 * (n % 2); nxt = SA + 16 * ((n + 1) % 2)
        ms = [None] * 4
        if n < 63:
            tn, inx = units[n + 1]
            ms[0] = mfma(nxt, kb(tn), Q + 8*inx); ms[1] = mfma(nxt, kb(tn) + 4, Q + 8*inx + 4, nxt)
        if n > 0:
            tp, ip = units[n - 1]
            ms[2] = mfma(O + 16*ip, kb(tp) + 12, P1, O + 16*ip)
        ms[3] = mfma(O + 16*i, kb(t) + 8, P0, None if t == 0 else O + 16*i)
        side = [None] * 4
        key = (n // 4, n % 4)
        if key in sched:
            assert n < 48
            tl = sched[key]
            if tl % 4 == 0:
                g = tl // 4
                a(f"s_waitcnt vmcnt({after(('p', g))})\nv_cmp_ne_u64 vcc, {S_NONCE}, v[14:15]\ns_cbranch_vccnz L_gate{g}\nL_gated{g}:\ns_nop 0")
            side = kv_loads(tl); vq += [("t", tl)] * 4
        if key in pollat:
            g = pollat[key]
            side[0] = f"buffer_load_dwordx2 v[14:15], v{VF}, {sWS}, {PG[g]} offen sc1"; vq.append(("p", g))
        sig = "\ns_mov_b64 exec, 1\nds_add_u32 v2, v3\ns_mov_b64 exec, -1"
        rdr = lambda q: f"ds_read_b128 {V(O+4*q,4)}, v13 offset:{q*1024}"
        if 53 <= n <= 56: side[1] = redw(0, n - 53)
        if n in (57, 58): side[1] = redw(1, 2*(n - 57)); side[3] = redw(1, 2*(n - 57) + 1) + (sig if n == 58 else "")
        if n == 60: side[1] = "ds_read_b32 v5, v2"
        if n == 61:
            a(f"s_waitcnt lgkmcnt(0)\nv_readfirstlane_b32 {T0}, v5\ns_cmp_ge_u32 {T0}, 16\ns_cbranch_scc0 L_redw\nL_redd:")
        if n in (61, 62):
            k_ = n - 61
            side = [redw(2, 2*k_), rdr(4*k_) + "\n" + rdr(4*k_+1), redw(2, 2*k_+1) + (sig if k_ else ""), rdr(4*k_+2) + "\n" + rdr(4*k_+3)]
        if n == 63: side[2] = "ds_read2_b32 v[4:5], v2 offset0:34 offset1:0"
        if n == cfg.bhi: side[0] = "s_setprio 3\ns_nop 0" + ("\n" + side[0] if side[0] else "")
        for p in range(4):
            if ms[p]: a(ms[p])
            if side[p]: a(side[p])
            for e in range(4):
                if n in waitat and p == 3 and e == 3:
                    a(f"s_waitcnt vmcnt({after(('t', waitat[n]))})\nv_exp_f32_e64 v{cur+4*p+e}, v{cur+4*p+e}")
                else:
                    a(f"v_exp_f32 v{cur+4*p+e}, v{cur+4*p+e}")
            pk = (P0, P0 + 2, P1, P1 + 2)[p]
            a(f"v_cvt_pk_bf16_f32 v{pk}, v{cur+4*p}, v{cur+4*p+1}\nv_cvt_pk_bf16_f32 v{pk+1}, v{cur+4*p+2}, v{cur+4*p+3}")
    a(f"s_waitcnt lgkmcnt(0)\nv_readfirstlane_b32 {T0}, v5\nv_readfirstlane_b32 {T1}, v4")
    a(mfma(O + 48, kb(15) + 12, P1, O + 48))
    a(f"s_add_u32 {T1}, {T1}, {12 if cfg.ohint and not cfg.noA else 20}\ns_min_u32 {T0}, {T0}, {T1}\ns_cmp_ge_u32 {T0}, 20\ns_cbranch_scc0 L_redw2\nL_redd2:")
    for q in range(8, 12): a(f"ds_read_b128 {V(O+4*q,4)}, v13 offset:{q*1024}")
    a("s_mov_b64 exec, 1\nds_add_u32 v2, v3")
    if cfg.ohint: a(f"s_mov_b64 exec, {S_M0}\nbuffer_store_dwordx2 v[244:245], v246, {sWS}, {S_FO} offen sc1")
    a("s_mov_b64 exec, -1")
    stamp(a, 9)
    OO = O + 48
    sc_ = cfg.nopk & 2
    for q in range(0, 16, 2): pk2(a, "add", O+q, O+q, O+16+q, scalar=sc_)
    for q in range(0, 16, 2): pk2(a, "add", OO+q, OO+q, O+q, scalar=sc_)
    a("s_waitcnt lgkmcnt(1)")
    for q in (12, 0, 2, 4, 6, 8, 10, 14): pk2(a, "add", OO+q, OO+q, O+32+q, scalar=sc_)
    a(f"""v_mov_b32 v10, v{OO+12}
v_mov_b32 v11, v{OO+12}
v_mul_f32 v12, v{OO}, v{OO+1}
v_mul_f32 v13, v{OO+2}, v{OO+3}
v_permlane32_swap_b32 v10, v11
v_fma_f32 v12, v{OO+4}, v{OO+5}, v12
v_fma_f32 v13, v{OO+6}, v{OO+7}, v13
v_rcp_f32 v10, v11
v_fma_f32 v12, v{OO+8}, v{OO+9}, v12
v_fma_f32 v13, v{OO+10}, v{OO+11}, v13
v_cmp_le_f32 s[70:71], {S_LO}, v11
v_fma_f32 v12, v{OO+12}, v{OO+13}, v12
v_fma_f32 v13, v{OO+14}, v{OO+15}, v13
v_cmp_ge_f32 s[72:73], {S_HI}, v11
v_add_f32 v12, v12, v13
v_cmp_class_f32 vcc, v12, {S_CL}
s_and_b64 s[70:71], s[70:71], s[72:73]
s_and_b64 vcc, vcc, s[70:71]
s_cmp_eq_u64 vcc, exec""")
    if cfg.force_fb: a("s_cmp_eq_u32 0, 1")
    a(f"s_cbranch_scc0 L_fallback\nL_fbdone:\nv_mov_b32 v11, v10")
    for hf in range(2):
        for q in range(8*hf, 8*hf+8, 2): pk2(a, "mul", OO+q, OO+q, 10, scalar=sc_)
        for q in range(4*hf, 4*hf+4): a(f"v_cvt_pk_bf16_f32 v{O+q}, v{OO+2*q}, v{OO+2*q+1}")
        if hf: a(f"s_mov_b32 exec_lo, 0\nv_mov_b32 v{O+6}, 0\ns_mov_b32 exec_lo, -1")
        if cfg.ohint: a(f"v_min_u32 v{O+4*hf}, -2, v{O+4*hf}")
        a(f"buffer_store_dwordx4 {V(O+4*hf,4)}, v7, {sWS}, {S_OB} offen offset:{1024*hf} sc1")
    stamp(a, 10)
    S_BP, S_CNT, S_DT = "s70", "s71", "s72"
    GS = 144; GC = 176; ZR = 196; G = 16; OL = 196; AR = 128
    S_O0, S_O1, S_FH, S_RT, S_CLM = "s73", "s74", "s75", "s76", "s77"
    a(f"""s_lshl_b32 {S_BP}, {S_XCD}, 3
s_lshr_b32 {T0}, {S_IDX}, 2
s_add_u32 {S_BP}, {S_BP}, {T0}
s_and_b32 {T1}, {S_IDX}, 3
s_cmp_ge_u32 {T1}, 2
s_cselect_b32 {S_CNT}, 3, 4
s_lshl_b32 {S_DT}, {T1}, 2
s_cmp_eq_u32 {T1}, 3
s_cselect_b32 {S_DT}, 11, {S_DT}
s_add_u32 {S_DT}, {S_DT}, {S_W4}
s_cmp_ge_u32 {S_W4}, {S_CNT}
s_cbranch_scc1 L_bend
s_setprio {cfg.fprio}
v_bfe_u32 v5, v1, 2, 1
v_lshlrev_b32 v5, 4, v5
v_bfe_u32 v6, v1, 3, 2
v_lshl_add_u32 v5, v6, 2, v5
v_and_b32 v6, 3, v1
v_add_u32 v5, v5, v6
s_lshl_b32 {T0}, {S_DT}, 5
v_add_u32 v5, {T0}, v5                    ; d
v_lshlrev_b32 v9, 31, v5
v_xor_b32 v9, 0.5, v9                     ; 0.5*(-1)^d
v_cvt_f32_u32 v5, v5
v_mul_f32 v5, {lit(1/448)}, v5
v_lshrrev_b32 v4, 5, v1
v_cvt_f32_u32 v6, v4
v_mul_f32 v6, v5, v6
v_mul_f32 v6, 4.0, v6
v_mul_f32 v{GC}, {lit(16.0)}, v5
v_cos_f32 v{GC}, v{GC}""")
    for j in range(16): a(f"v_fmamk_f32 v{GS+j}, v5, {lit(float(16*(j//8) + 8*((j%8)//4) + j%4))}, v6")
    a(f"v_add_f32 v{GC}, v{GC}, v{GC}")
    for j in range(16): a(f"v_sin_f32_e64 v{GS+16+j}, -v{GS+j}\nv_cos_f32 v{GS+j}, v{GS+j}")
    a(f"v_mov_b32 v{GC+1}, v{GC}")
    def ggen(q0, q1):
        a(".p2align 3")
        for q in range(q0, q1):
            rho = q % 2; st = q // 2
            cur = GS + 16*rho + 8*(st % 2); oth = GS + 16*rho + 8*((st + 1) % 2); gp = G + 4*q
            if st >= 2:
                for z in range(0, 8, 2):
                    pk2(a, "fma", cur+z, GC, oth+z, cur+z, neg="2", scalar=cfg.nopk & 8)
            for z in range(4): a(f"v_cvt_pk_bf16_f32 v{gp+z}, v{cur+2*z}, v{cur+2*z+1}")
            if st == 0:
                a(f"s_mov_b32 exec_hi, 0\nv_cvt_pk_bf16_f32 v{gp}, {'v9' if rho else '0.5'}, v{cur+1}\ns_mov_b32 exec_hi, -1")
    ggen(0, 28)
    stamp(a, 11)
    srd(a, sOUT, 16, 2048 * 1792)
    a(f"""v_add_u32 v8, {L_ZB}, v7
s_mul_i32 {T4}, {S_BP}, 1792
s_lshl_b32 {T1}, {S_DT}, 6
s_add_u32 {T4}, {T4}, {T1}""")
    if cfg.cost & 2:
        a(f"""s_lshl_b32 {T1}, {S_W4}, 11
s_add_u32 {T1}, {T1}, {L_Q}
v_and_b32 v10, 31, v1
v_lshlrev_b32 v10, 6, v10
v_lshl_add_u32 v10, v4, 5, v10
v_add_u32 v10, {T1}, v10
v_add_u32 v11, {T1}, v7
v_lshrrev_b32 v6, 2, v1
v_mul_u32_u24 v6, {64*1792}, v6
v_and_b32 v12, 3, v1
v_lshl_add_u32 v6, v12, 4, v6
s_add_u32 {T3}, {T4}, {16*64*1792}""")
    else:
        a(f"v_and_b32 v6, 31, v1\nv_mul_u32_u24 v6, {64*1792}, v6\nv_lshl_add_u32 v6, v4, 5, v6")
    lwait(a, "v2", 5, 4, 17, off=132)
    stamp(a, 13)
    order = [4*(q//4) + 2*(q % 2) + ((q//2) % 2) for q in range(28)]
    for q in range(8): a(f"ds_read_b128 {V(ZR+4*q,4)}, v8 offset:{order[q]*1024}")
    for p in range(28):
        a(f"s_waitcnt lgkmcnt({min(7, 27-p)})")
        a(mfma(AR, G + 4*p, ZR + 4*(p % 8), None if p == 0 else AR))
        if p + 8 < 28: a(f"ds_read_b128 {V(ZR+4*(p%8),4)}, v8 offset:{order[p+8]*1024}")
    osc = ("", " sc1", " nt", " sc0 sc1", " sc1 nt")[cfg.outsc]
    if cfg.odefer and not cfg.noA: lwait(a, "v2", 5, 4, 36, sleep=2, off=20)
    for hf in range(2):
        for q in range(4*hf, 4*hf+4): a(f"v_cvt_pk_bf16_f32 v{GS+q}, v{AR+2*q}, v{AR+2*q+1}")
        if cfg.cost & 2: a(f"ds_write_b128 v10, {V(GS+4*hf,4)} offset:{16*hf}")
        else: a(f"buffer_store_dwordx4 {V(GS+4*hf,4)}, v6, {sOUT}, {T4} offen offset:{16*hf}{osc}")
    if cfg.cost & 2:
        a(f"""ds_read_b128 {V(GS+8,4)}, v11
ds_read_b128 {V(GS+12,4)}, v11 offset:1024
s_waitcnt lgkmcnt(1)
buffer_store_dwordx4 {V(GS+8,4)}, v6, {sOUT}, {T4} offen{osc}
s_waitcnt lgkmcnt(0)
buffer_store_dwordx4 {V(GS+12,4)}, v6, {sOUT}, {T3} offen{osc}""")
    a("L_bend:")
    stamp(a, 12)
    dump_stamps(a, 240)
    a("s_endpgm")
    a("L_redw:")
    lwait(a, "v2", 5, 16, 2)
    a("s_branch L_redd\nL_redw2:")
    lwait(a, "v2", 5, 20, 2)
    if cfg.ohint and not cfg.noA: lwait(a, "v2", 5, 8, 39, sleep=1, off=136)
    a("s_branch L_redd2")
    for g in (1, 2, 3):
        a(f"L_gate{g}:")
        poll(a, f"v{VF}", PG[g], 14, 4, 25, sleep=2)
        a(f"s_branch L_gated{g}")
    a("L_fallback:")
    QO = Q + 24; KB = KVB; M = 15; S_SO = "s70"
    a(f"v_mov_b32 v{M}, 0xff800000\ns_mov_b32 {S_SO}, {KV}\nL_fb1:")
    for s_ in kv_loads(0, S_SO)[:2]: a(s_)
    a(f"s_add_u32 {S_SO}, {S_SO}, {TS}\ns_waitcnt vmcnt(0)")
    a(mfma(SA, KB, QO)); a(mfma(SA, KB + 4, QO + 4, SA))
    for q in range(0, 16, 2): a(f"v_max3_f32 v{M}, v{M}, v{SA+q}, v{SA+q+1}")
    a(f"""s_cmp_lt_u32 {S_SO}, {KV + 64*TS}
s_cbranch_scc1 L_fb1
v_mov_b32 v14, v{M}
v_permlane32_swap_b32 v14, v{M}
v_max_f32 v{M}, v14, v{M}
s_mov_b32 {S_SO}, {KV}""")
    for q in range(16): a(f"v_mov_b32 v{OO+q}, 0")
    a("L_fb2:")
    for s_ in kv_loads(0, S_SO): a(s_)
    a(f"s_add_u32 {S_SO}, {S_SO}, {TS}\ns_waitcnt vmcnt(0)")
    a(mfma(SA, KB, QO)); a(mfma(SA, KB + 4, QO + 4, SA))
    for q in range(16): a(f"v_sub_f32 v{SA+q}, v{SA+q}, v{M}")
    for q in range(16): a(f"v_exp_f32 v{SA+q}, v{SA+q}")
    for q in range(8): a(f"v_cvt_pk_bf16_f32 v{P0+q}, v{SA+2*q}, v{SA+2*q+1}")
    a(mfma(OO, KB + 8, P0, OO)); a(mfma(OO, KB + 12, P1, OO))
    a(f"""s_cmp_lt_u32 {S_SO}, {KV + 64*TS}
s_cbranch_scc1 L_fb2
v_mov_b32 v10, v{OO+12}
v_mov_b32 v11, v{OO+12}
v_permlane32_swap_b32 v10, v11
v_rcp_f32 v10, v11
s_branch L_fbdone""")

def role_A(a):
    FB = 16; GS0 = 48; M = 72; F = 88; ACC = 200; TMP = 216
    S_BP = "s78"
    S_CG, S_CNT, S_CB, S_DT, S_TASK, S_K1 = "s79", "s80", "s81", "s82", "s83", "s73"
    S_B, S_KT16 = S_BP, S_DT
    (PN, _, _, P_TST, P_W, P_F1, P_TLD, P_TBW, P_TBR, P_TTW, P_TTR, P_UST, P_F2, P_WOD, P_WOR, P_WOR2,
     P_ZW0, P_ZW1, P_PF, P_BC, P_PS, _, P_LS, P_DUM) = range(232, 256)
    sc = 1.0 / (2048 * 448)
    def albar(code): lbar(a, "v14", "v15", P_LS, code, sleep=1)
    def burst(items, th):
        a("s_setprio 0")
        for q, it in enumerate(items):
            if q >= th: a(f"s_waitcnt vmcnt({th-1})")
            a(it)
        a(f"s_setprio {cfg.aprio}")
    SB = "s[74:75]"
    def stage_arrive(k):
        L = a.lab("arr")
        a(f"""s_waitcnt vmcnt(0)
s_mov_b64 exec, 1
ds_add_rtn_u32 v{P_LS}, v14, v15 offset:8
s_mov_b64 exec, -1
s_waitcnt lgkmcnt(0)
v_readfirstlane_b32 {T0}, v{P_LS}
s_cmp_eq_u32 {T0}, {4*k+3}
s_cbranch_scc0 {L}
s_mov_b32 {T0}, 1
s_lshl_b32 {T1}, {S_XCD}, 7
s_add_u32 {T1}, {T1}, {k*1024}
s_atomic_add {T0}, {SB}, {T1} glc
s_waitcnt lgkmcnt(0)
s_sub_u32 {T0}, {T0}, s62
s_cmp_eq_u32 {T0}, 31
s_cbranch_scc0 {L}
s_mov_b32 {T1}, {FA1 + 2048 + k*8192}
s_mov_b64 exec, {-1 if cfg.allpoll else 0xffff}
buffer_atomic_add v15, v{P_PF}, {sWS}, {T1} offen sc1
s_mov_b64 exec, -1
{L}:""")
    def stage_wait(k, pre):
        if cfg.ko & 4:
            a("s_waitcnt lgkmcnt(0)"); return
        L, L2, L3 = a.lab("sw"), a.lab("sw"), a.lab("sw")
        if not cfg.allpoll: a(f"s_cmp_eq_u32 {S_W4}, 0\ns_cbranch_scc0 {L2}")
        a(f"""s_and_b32 {T1}, s2, 15
s_lshl_b32 {T2}, {S_W4}, 4
s_add_u32 {T1}, {T1}, {T2}
s_lshl_b32 {T1}, {T1}, 7
s_add_u32 {T1}, {T1}, {2048 + k*8192}
s_add_u32 {T2}, s62, 8
s_mov_b32 {S_TO}, {cfg.poll_limit}
s_waitcnt lgkmcnt(0)
s_sleep {pre}
{L}:
s_mov_b32 {T0}, 0
s_atomic_or {T0}, {SB}, {T1} glc
s_waitcnt lgkmcnt(0)
s_cmp_eq_u32 {T0}, {T2}
s_cbranch_scc1 {L}d
s_sleep {cfg.bsleep}
s_sub_u32 {S_TO}, {S_TO}, 1
s_cbranch_scc0 {L}
s_mov_b32 {S_TO}, 32
s_branch L_fail
{L}d:""")
        if cfg.allpoll: return
        a(f"s_mov_b64 exec, 1\nds_add_u32 v14, v15 offset:12\ns_mov_b64 exec, -1\ns_branch {L3}\n{L2}:")
        lwait(a, "v14", P_LS, k + 1, 33, sleep=cfg.lsl, off=12)
        a(f"{L3}:")
    def pace():
        if cfg.pace: a(f"s_sleep {cfg.pace}")
    a(f"""L_roleA:
v_mov_b32 v3, 0
v_mov_b32 v2, {L_SYNC}
ds_write2_b32 v2, v3, v3 offset0:0 offset1:32
ds_write2_b32 v2, v3, v3 offset0:1 offset1:2
ds_write2_b32 v2, v3, v3 offset0:3 offset1:33
ds_write2_b32 v2, v3, v3 offset0:4 offset1:34
ds_write2_b32 v2, v3, v3 offset0:5 offset1:35
ds_write2_b32 v2, v3, v3 offset0:8 offset1:9
ds_write2_b32 v2, v3, v3 offset0:10 offset1:11
s_setprio {cfg.aprio}
s_mov_b32 {S_BAR}, 0
s_lshl_b32 {S_BP}, {S_XCD}, 3
s_lshr_b32 {T0}, {S_IDX}, 2
s_add_u32 {S_BP}, {S_BP}, {T0}
s_and_b32 {S_CG}, {S_IDX}, 3
s_cmp_ge_u32 {S_CG}, 2
s_cselect_b32 {S_CNT}, 3, 4
s_lshl_b32 {S_CB}, {S_CG}, 2
s_cmp_eq_u32 {S_CG}, 3
s_cselect_b32 {S_CB}, 11, {S_CB}
s_add_u32 {S_DT}, {S_CB}, {S_W4}
v_and_b32 v2, 31, v1                      ; v2 = lane%32
v_lshrrev_b32 v3, 5, v1                   ; v3 = half
v_cvt_f32_u32 v4, v3
s_waitcnt lgkmcnt(0)
{st0()}""")
    if cfg.touch:
        tl = [["s[10:11], 0", "s[4:5], 0", "s[6:7], 0"], ["s[20:21], s76", "s[8:9], 0", "s[14:15], 0"],
              ["s[20:21], s77", "s[16:17], 0", "s[16:17], s76"], ["s[20:21], s74", "s[20:21], s75"]]
        a(f"s_cmp_ge_u32 {S_IDX}, {cfg.touch}\ns_cbranch_scc1 L_tch\ns_mov_b32 s76, 0x200000\ns_mov_b32 s77, 0x600000\ns_mov_b32 s74, 0x400000\ns_mov_b32 s75, 0x800000")
        for w in range(4):
            a(f"s_cmp_lg_u32 {S_W4}, {w}\ns_cbranch_scc1 L_tch{w}")
            for t_ in tl[w]: a(f"s_load_dword s72, {t_}")
            a(f"L_tch{w}:")
        a("L_tch:")
    def angles(n, vstep, vbase, offs, dst=TMP):
        for j in range(n): a(f"v_fmamk_f32 v{dst+j}, {vstep}, {lit(float(offs[j]))}, {vbase}")
    def gen_F():
        A0 = TMP; A1 = TMP + 8; C2 = TMP + 16
        a(f"""v_and_b32 v5, 15, v1
s_lshl_b32 {T0}, {S_KT16}, 4
v_add_u32 v5, {T0}, v5                    ; k
v_bfe_u32 v6, v1, 4, 1
v_lshl_add_u32 v7, v5, 1, v6
v_cmp_eq_u32 vcc, 1, v7
v_mov_b32 v7, 224
v_cndmask_b32 v5, v5, v7, vcc
v_cndmask_b32 v6, v6, 0, vcc
v_cvt_f32_u32 v5, v5
v_cvt_f32_u32 v6, v6
v_mul_f32 v5, {lit(1/448)}, v5            ; kf
v_mul_f32 v6, {lit(0.25)}, v6
v_mul_f32 v7, v5, v4
v_fmamk_f32 v6, v7, {lit(8.0)}, v6
v_mul_f32 v{C2}, {lit(16.0)}, v5
v_cos_f32 v{C2}, v{C2}""")
        angles(16, "v5", "v6", [j % 8 + 16 * (j // 8) for j in range(16)])
        a(f"v_add_f32 v{C2}, v{C2}, v{C2}")
        for j in range(16): a(f"v_cos_f32 v{A0+j}, v{A0+j}")
        a(f"v_mov_b32 v{C2+1}, v{C2}\ns_barrier\n.p2align 3")
        for m in range(28):
            cur = A0 if m % 2 == 0 else A1; oth = A1 if m % 2 == 0 else A0
            if m >= 2:
                for q in range(0, 8, 2):
                    a(f"v_pk_fma_f32 {V(cur+q,2)}, {V(C2,2)}, {V(oth+q,2)}, {V(cur+q,2)} neg_lo:[0,0,1] neg_hi:[0,0,1]")
            for q in range(4): a(f"v_cvt_pk_bf16_f32 v{F+4*m+q}, v{cur+2*q}, v{cur+2*q+1}")
    def gen_M():
        a(f"""v_cvt_f32_u32 v5, v2
s_and_b32 {T0}, {S_W4}, 1
s_lshl_b32 {T0}, {T0}, 10
s_add_u32 {T0}, {T0}, {S_B}
v_lshl_add_u32 v6, v3, 8, {T0}
v_cvt_f32_u32 v6, v6
v_mul_f32 v6, v6, v5
s_cmp_ge_u32 {S_W4}, 2
s_cselect_b32 {T0}, {lit(0.25)}, 0
v_mov_b32 v7, {T0}
v_fmamk_f32 v6, v6, {lit(1/2048)}, v7
v_mul_f32 v5, {lit(1/32)}, v5""")
        angles(8, "v5", "v6", [8*(j//4) + j%4 for j in range(8)])
        for j in range(8): a(f"v_cos_f32 v{TMP+j}, v{TMP+j}")
        for q in range(4): a(f"v_cvt_pk_bf16_f32 v{ACC+8+q}, v{TMP+2*q}, v{TMP+2*q+1}")
    def gen_MS():
        a(f"""v_lshlrev_b32 v5, 6, v2
v_add_u32 v5, {S_BP}, v5
v_cvt_f32_u32 v5, v5
v_mul_f32 v5, {lit(1/2048)}, v5
s_lshl_b32 {T0}, {S_W4}, 3
v_lshl_add_u32 v6, v3, 2, {T0}
v_cvt_f32_u32 v6, v6
v_mul_f32 v6, v5, v6""")
        angles(4, "v5", "v6", range(4), TMP + 8)
        for j in range(4): a(f"v_cos_f32 v{TMP+2*j}, v{TMP+8+j}\nv_sin_f32 v{TMP+2*j+1}, v{TMP+8+j}")
        a(f"v_mov_b32 v6, {lit(2*sc)}\nv_mov_b32 v7, v6")
        for j in range(4): pk2(a, "mul", TMP+2*j, TMP+2*j, 6, scalar=cfg.nopk & 16)
        for j in range(4):
            a(f"v_cvt_pk_bf16_f32 v{48+j}, v{TMP+2*j}, v{TMP+2*j+1}\nv_cvt_pk_bf16_f32 v{52+j}, v{TMP+2*j+1}, -v{TMP+2*j}")
    def gen_FB():
        a(f"""v_and_b32 v5, 15, v1
s_lshl_b32 {T0}, {S_W4}, 4
v_add_u32 v5, {T0}, v5
v_cvt_f32_u32 v5, v5
v_mul_f32 v5, {lit(1/64)}, v5
v_bfe_u32 v6, v1, 4, 1
v_cvt_f32_u32 v6, v6
v_mul_f32 v6, {lit(0.25)}, v6
v_mul_f32 v7, v5, v4
v_fmamk_f32 v6, v7, {lit(4.0)}, v6""")
        C2 = TMP + 16
        a(f"v_mul_f32 v{C2}, {lit(8.0)}, v5\nv_cos_f32 v{C2}, v{C2}")
        angles(8, "v5", "v6", [8*(j//4) + j%4 for j in range(8)], TMP + 20)
        a(f"v_add_f32 v{C2}, v{C2}, v{C2}")
        for j in range(8): a(f"v_cos_f32 v{TMP+2*j}, v{TMP+20+j}\nv_sin_f32 v{TMP+2*j+1}, v{TMP+20+j}")
        a(f"v_mov_b32 v{C2+1}, v{C2}")
        for m in range(8):
            cur = TMP + 8*(m % 2); oth = TMP + 8*((m + 1) % 2)
            if m >= 2:
                for q in range(0, 8, 2):
                    pk2(a, "fma", cur+q, C2, oth+q, cur+q, neg="2", scalar=cfg.nopk & 16)
            for q in range(4): a(f"v_cvt_pk_bf16_f32 v{FB+4*m+q}, v{cur+2*q}, v{cur+2*q+1}")
    def gen_addr():
        a(f"""v_mov_b32 v{PN+2}, 0
v_lshlrev_b32 v7, 4, v1                   ; v7 = lane*16
v_and_b32 v6, 3, v1
v_lshrrev_b32 v5, 2, v1
v_lshlrev_b32 v5, 16, v5
v_lshl_add_u32 v{P_TST}, v6, 4, v5
s_lshl_b32 {T1}, {S_W4}, 11
s_add_u32 {T0}, {T1}, {L_TT}
v_add_u32 v{P_TTR}, {T0}, v7
v_lshlrev_b32 v5, 6, v2
v_lshl_add_u32 v5, v3, 4, v5
v_add_u32 v{P_TTW}, {T0}, v5
s_lshl_b32 {S_TASK}, {S_XCD}, 5
s_add_u32 {S_TASK}, {S_TASK}, {S_IDX}
s_lshr_b32 {T0}, {S_TASK}, 3
s_lshl_b32 {T2}, {S_W4}, 9
s_add_u32 {T0}, {T0}, {T2}
s_mul_i32 {T0}, {T0}, 225
s_lshl_b32 {T2}, {S_HH}, 5
s_add_u32 {T0}, {T0}, {T2}
v_mul_u32_u24 v5, {128*225}, v3
v_add3_u32 v5, v5, v2, {T0}
v_lshlrev_b32 v{P_W}, 1, v5
v_bfe_u32 v12, v1, 4, 1
v_lshlrev_b32 v5, 2, v2
v_lshl_add_u32 v{P_TLD}, v3, 9, v5
v_lshl_add_u32 v{P_UST}, v3, 17, v5
v_lshl_add_u32 v{P_F2}, v3, 18, v5
v_add_u32 v{P_TBR}, {L_TB}, v7
v_add_u32 v{P_TBW}, {T1}, v{P_TBR}
s_add_u32 {S_K1}, {S_W4}, 3
s_cmp_eq_u32 {S_W4}, 0
s_cselect_b32 {S_K1}, 7, {S_K1}
s_lshl_b32 {T0}, {S_W4}, 12
v_add_u32 v{P_ZW0}, {T0}, v{P_TBR}
s_lshl_b32 {T0}, {S_K1}, 12
v_add_u32 v{P_ZW1}, {T0}, v{P_TBR}
v_bfe_u32 v13, v1, 2, 2
v_lshrrev_b32 v5, 4, v1
v_xor_b32 v{P_WOD}, v13, v5
s_sub_u32 {T0}, {S_CNT}, 1
v_min_u32 v{P_WOD}, {T0}, v{P_WOD}
v_add_u32 v{P_WOD}, {S_CB}, v{P_WOD}
v_lshlrev_b32 v{P_WOD}, 6, v{P_WOD}
v_mul_u32_u24 v5, 896, v5
v_add_u32 v5, v5, v{P_WOD}
v_lshl_add_u32 v5, v6, 4, v5
s_mul_i32 {T0}, {S_W4}, {4*896}
v_add_u32 v{P_WOD}, {T0}, v5
v_xor_b32 v5, {S_W4}, v13
v_lshlrev_b32 v5, 6, v5
v_lshl_add_u32 v5, v13, 8, v5
v_and_b32 v6, 1, v1
v_lshl_add_u32 v5, v6, 5, v5
v_lshl_add_u32 v5, v12, 4, v5
v_bfe_u32 v6, v1, 1, 1
v_lshl_add_u32 v5, v6, 3, v5
v_add_u32 v{P_WOR2}, {L_X}, v5
v_lshl_add_u32 v{P_WOR}, v3, 10, v{P_WOR2}""")
    pieces = [gen_F, gen_FB, gen_M, gen_MS, gen_addr]
    assert cfg.pre >= 1
    def wq_warm():
        a(f"""s_cmp_eq_u32 {S_LC}, 7
s_cbranch_scc0 L_pf1
v_mul_u32_u24 v5, 2688, v1
s_mul_i32 {T0}, {T5}, 3
s_add_u32 {T0}, {T0}, {S_RR}
s_lshl_b32 {T0}, {T0}, 7
s_mul_i32 {T1}, {S_W4}, {128*2688}
s_add_u32 {T0}, {T0}, {T1}
s_add_u32 {T1}, {T0}, {64*2688}
buffer_load_dword v{P_DUM}, v5, {sWQKV}, {T0} offen
buffer_load_dword v{P_DUM}, v5, {sWQKV}, {T1} offen
L_pf1:""")
    def xa_warm():
        a(f"""s_cmp_eq_u32 {S_LC}, 7
s_cbranch_scc0 L_pf6
v_lshlrev_b32 v5, 7, v1
s_lshl_b32 {T0}, {S_RR}, 2
s_add_u32 {T0}, {T0}, {S_W4}
s_mul_i32 {T0}, {T0}, {2*64*896}
s_mul_i32 {T1}, {S_XCD}, {8*896}
s_add_u32 {T0}, {T0}, {T1}
s_add_u32 {T1}, {T0}, {64*896}
s_bfm_b64 exec, 56, 0
buffer_load_dword v{P_DUM}, v5, {sX}, {T0} offen
buffer_load_dword v{P_DUM}, v5, {sX}, {T1} offen
s_mov_b64 exec, -1
L_pf6:""")
    def kv_touch():
        srd(a, sWS, 20, WS_SIZE)
        a(f"""s_lshl_b32 {T0}, s2, 2
s_add_u32 {T0}, {T0}, {S_W4}
s_mul_i32 {T0}, {T0}, {30*128}
s_add_u32 {T0}, {T0}, {KV}
v_lshlrev_b32 v5, {6 if cfg.kvt64 else 7}, v1
v_mov_b32 v6, 0
s_bfm_b64 exec, {60 if cfg.kvt64 else 30 - (cfg.kvsn if cfg.kvs else 0)}, {cfg.kvsn if cfg.kvs else 0}
buffer_atomic_or v6, v5, {sWS}, {T0} offen sc1
s_mov_b64 exec, -1""")
    if cfg.kvt == 9: kv_touch()
    def mall_warm():
        a(f"""s_cmp_eq_u32 {S_LC}, 7
s_cbranch_scc0 L_pf7
s_lshl_b32 {T0}, {S_XCD}, 4
s_lshl_b32 {T1}, {S_RR}, 2
s_add_u32 {T0}, {T0}, {T1}
s_add_u32 {T0}, {T0}, {S_W4}
v_lshlrev_b32 v5, 7, v1""")
        if cfg.mw & 1:
            a(f"""v_lshrrev_b32 v6, 3, v1
v_mul_u32_u24 v6, 2688, v6
v_and_b32 v7, 7, v1
v_min_u32 v7, 6, v7
v_lshl_add_u32 v6, v7, 7, v6
s_mul_i32 {T1}, {T0}, {4*2688}
s_mov_b64 exec, 0xffffffff
buffer_load_dword v{P_DUM}, v6, {sWQKV}, {T1} offen""")
        if cfg.mw & 2: a(f"s_mul_i32 {T1}, {T0}, {25*128}\ns_bfm_b64 exec, 25, 0\nbuffer_load_dword v{P_DUM}, v5, {sWO}, {T1} offen")
        if cfg.mw & 4: a(f"s_mul_i32 {T1}, {T0}, {57*128}\ns_bfm_b64 exec, 57, 0\nbuffer_load_dword v{P_DUM}, v5, {sWR}, {T1} offen")
        if cfg.mw & 8: a(f"s_mul_i32 {T1}, {T0}, {57*128}\ns_bfm_b64 exec, 57, 0\nbuffer_load_dword v{P_DUM}, v5, {sWI}, {T1} offen")
        if cfg.mw & 16: a(f"s_mul_i32 {T1}, {T0}, {112*128}\ns_bfm_b64 exec, 56, 0\nbuffer_load_dword v{P_DUM}, v5, {sX}, {T1} offen")
        a("s_mov_b64 exec, -1\nL_pf7:")
    if cfg.spf:
        a(f"""s_lshl_b32 {T0}, s2, 2
s_add_u32 {T0}, {T0}, {S_W4}
s_mul_i32 {T1}, {T0}, {14*128}
s_add_u32 s76, s4, {T1}
s_addc_u32 s77, s5, 0
s_mul_i32 {T1}, {T0}, 900
s_add_u32 s70, s6, {T1}
s_addc_u32 s71, s7, 0
s_add_u32 s74, s8, {T1}
s_addc_u32 s75, s9, 0""")
    if cfg.kvs:
        srd(a, sWS, 20, WS_SIZE)
        a(f"""s_lshl_b32 s72, s2, 2
s_add_u32 s72, s72, {S_W4}
s_mul_i32 s72, s72, {30*128}
s_add_u32 s72, s72, {KV}
v_lshlrev_b32 v12, 7, v1
v_mov_b32 v13, 0""")
    n0 = len(a.L)
    for q in range(cfg.pre):
        if q == 4: n1 = len(a.L)
        pieces.pop(0)()
        if q == 0:
            srd(a, sWQKV, 12, 448 * 2688); srd(a, sX, 4, 0 if cfg.ko & 16 else 2048 * 896)
            srd(a, sWR, 6, 0 if cfg.ko & 1 else 2048 * 450); srd(a, sWI, 8, 0 if cfg.ko & 1 else 2048 * 450); srd(a, sWO, 14, 0 if cfg.ko & 2 else 448 * 896)
        if cfg.mw and cfg.mwpos == q + 1: mall_warm()
        if cfg.kvt == q + 1: kv_touch()
        if cfg.xawarm == q + 1: xa_warm()
        if cfg.wqwarm == q + 1: wq_warm()
    if cfg.kvs:
        from asmlib import Ins
        per = cfg.kvsn // cfg.kvs
        lo = n0 + cfg.kvs0; hi = n1
        for q in reversed(range(cfg.kvs)):
            at = lo + (hi - lo) * q // cfg.kvs
            while a.L[at].kind not in ("valu",) or a.L[at-1].kind not in ("valu",): at += 1
            a.L[at:at] = [Ins(f"s_bfm_b64 exec, {per}, {q*per}"), Ins(f"buffer_atomic_or v13, v12, {sWS}, s72 offen sc1"), Ins("s_mov_b64 exec, -1")]
    if cfg.spf:
        from asmlib import Ins
        pf = [f"s_load_dword s72, s[76:77], {q*128}" for q in range(14)]
        if cfg.spf >= 2: pf += [f"s_load_dword s72, s[{b}:{b+1}], {q*128}" for q in range(7) for b in (70, 74)]
        lo = n0 + cfg.spf0; hi = len(a.L)
        for q in reversed(range(len(pf))): a.L.insert(lo + (hi - lo) * q // len(pf), Ins(pf[q]))
    stamp(a, 1)
    srd(a, sWS, 20, WS_SIZE)
    srd(a, sOUT, 16, 2048 * 1792)
    S_XA, S_WQL, S_WQG = "s70", "s71", "s72"
    XD = 70
    a(f"""v_lshrrev_b32 v6, 3, v1
v_and_b32 v5, 7, v1
v_lshrrev_b32 v8, 4, v1
v_xor_b32 v5, v5, v8
s_and_b32 {T0}, {S_W4}, 1
s_lshl_b32 {T0}, {T0}, 2
v_xor_b32 v5, {T0}, v5
v_mul_u32_u24 v6, {64*896}, v6
s_mul_i32 {T1}, {S_W4}, {8*64*896}
s_mul_i32 {T2}, {S_B}, 896
s_add_u32 {T1}, {T1}, {T2}
v_add_u32 v6, {T1}, v6
v_lshl_add_u32 v{XD}, v5, 4, v6
s_lshl_b32 {T0}, {S_W4}, 10
s_add_u32 {S_XA}, {T0}, {L_X}
s_mov_b32 {T2}, {L_X}""")
    x_read_addrs(a, 8, "v1", T2, TMP)
    a(f"""v_mov_b32 v14, {L_SYNC+128}
v_mov_b32 v15, 1
v_mov_b32 v{P_BC}, {L_SYNC}
s_lshl_b32 {T1}, {S_CG}, 1""")
    lwait(a, f"v{P_BC}", P_LS, 4, 34, sleep=1)
    a(f"""ds_read_b64 {V(PN,2)}, v{P_BC} offset:64
v_lshlrev_b32 v{P_PF}, 7, v1
s_add_u32 s74, s20, {FA1}
s_addc_u32 s75, s21, 0
s_waitcnt lgkmcnt(0)
v_readfirstlane_b32 s62, v{PN}
v_readfirstlane_b32 s63, v{PN+1}
s_lshl_b32 {T0}, s2, 2
s_add_u32 {T0}, {T0}, {S_W4}
s_cmp_lg_u32 {T0}, 0
s_cbranch_scc1 L_noinit
s_mov_b32 {T0}, {FA1}
buffer_store_dwordx2 {V(PN,2)}, v{P_PF}, {sWS}, {T0} offen offset:2048 sc1
s_mov_b32 {T2}, {FA1 + 8192}
buffer_store_dwordx2 {V(PN,2)}, v{P_PF}, {sWS}, {T2} offen offset:2048 sc1
s_mov_b64 exec, 0xff00
buffer_store_dwordx2 {V(PN,2)}, v{P_PF}, {sWS}, {T0} offen sc1
s_waitcnt vmcnt(0)
s_mov_b64 exec, 0xff
buffer_store_dwordx2 {V(PN,2)}, v{P_PF}, {sWS}, {T0} offen sc1
s_mov_b64 exec, -1
L_noinit:""")
    def wpull():
        L1, L2 = a.lab("wp"), a.lab("wp")
        a(f"""s_lshl_b32 {T2}, {S_IDX}, 1
s_lshr_b32 {T3}, {S_W4}, 1
s_add_u32 {T2}, {T2}, {T3}
s_mul_i32 {T2}, {T2}, 14400
s_mul_i32 {T3}, {S_XCD}, 1800
s_add_u32 {T2}, {T2}, {T3}
s_mov_b64 exec, 0x7fff
s_bitcmp1_b32 {S_W4}, 0
s_cbranch_scc1 {L1}
buffer_load_ushort v{P_DUM}, v{P_PF}, {sWR}, {T2} offen{' nt' if cfg.ntp else ''}
s_branch {L2}
{L1}:
buffer_load_ushort v{P_DUM}, v{P_PF}, {sWI}, {T2} offen{' nt' if cfg.ntp else ''}
{L2}:
s_mov_b64 exec, -1""")
    stamp(a, 2)
    if cfg.wpf == 2: wpull()
    lwait(a, f"v{P_BC}", P_LS, 4 if cfg.kvt != 7 else 1, 20, sleep=1, off=8)
    if cfg.kvt in (7, 8): kv_touch()
    if cfg.xas:
        a(f"s_mul_i32 {T2}, {S_H}, 7\ns_bfe_u32 {T2}, {T2}, 0x30001\ns_cmp_gt_u32 {T2}, 4\ns_cbranch_scc0 L_xago")
        lwait(a, f"v{P_BC}", P_LS, 4 * cfg.xas, 30, sleep=1, off=4)
        a("L_xago:")
    for c in range(7):
        if c == cfg.xae:
            if cfg.wpf == 1: wpull()
            if cfg.xalate == 1: lwait(a, f"v{P_BC}", P_LS, 4, 38, sleep=1, off=12)
            elif cfg.xalate == 2: lwait(a, f"v{P_BC}", P_LS, 9, 38, sleep=1)
            elif cfg.xafirst: lwait(a, f"v{P_BC}", P_LS, 8, 38)
            else: lwait(a, f"v{P_BC}", P_LS, 4, 38, sleep=1, off=16)
        a(f"""s_add_u32 {T2}, {T1}, 1
s_lshr_b32 {T3}, {T2}, 1
s_lshl_b32 {T3}, {T3}, 14
s_and_b32 {T4}, {T1}, 1
s_lshl_b32 {T4}, {T4}, 12
s_sub_u32 {T3}, {T3}, {T4}
s_add_u32 m0, {S_XA}, {T3}
s_lshl_b32 {T4}, {T1}, 7
buffer_load_dwordx4 v{XD}, {sX}, {T4} offen{' nt' if cfg.nta else ''} lds
s_cmp_eq_u32 {T2}, 7
s_cselect_b32 {T1}, 0, {T2}""")
    if cfg.wpf == 4: wpull()
    for p_ in pieces: p_()
    pieces = []
    assert not pieces
    a(f"""v_add_u32 v13, {L_M}, v7
s_lshl_b32 {T0}, {S_W4}, 10
v_add_u32 v5, {T0}, v13
ds_write_b128 v5, {V(ACC+8,4)}
s_cmp_eq_u32 {S_W4}, 0
s_cbranch_scc0 L_chkd
s_lshl_b32 {T1}, {S_XCD}, 7
s_mov_b32 {S_TO}, {cfg.poll_limit}
L_chk:
s_load_dwordx2 s[76:77], {SB}, {T1} glc
s_waitcnt lgkmcnt(0)
s_sub_u32 s76, s76, s62
s_lshr_b32 s76, s76, 5
s_xor_b32 s77, s77, s63
s_or_b32 s76, s76, s77
s_cbranch_scc0 L_chkd
s_sleep 4
s_sub_u32 {S_TO}, {S_TO}, 1
s_cbranch_scc0 L_chk
s_mov_b32 {S_TO}, 35
s_branch L_fail
L_chkd:""")
    WW = 136 if cfg.woearly else 72; AC = 152; FR = 168; TP = 200
    wl = []
    for r in range(8):
        wl.append(f"s_mov_b32 {T0}, {14400*(8*(r//4) + r%4)}\nbuffer_load_short_d16_hi v{WW+r}, v{P_W}, {sWR}, {T0} offen{' nt' if cfg.ntw else ''}")
        wl.append(f"buffer_load_short_d16_hi v{WW+8+r}, v{P_W}, {sWI}, {T0} offen{' nt' if cfg.ntw else ''}")
    if cfg.wearly:
        for s_ in wl: a(s_)
        a("s_waitcnt vmcnt(16)")
    else: a(f"s_waitcnt vmcnt({1 if cfg.wpf == 4 else 0})")
    stamp(a, 3)
    if cfg.noA == 1:
        a(f"s_mov_b64 exec, 1\nds_add_u32 v14, v15 offset:4\ns_mov_b64 exec, -1")
        stamp(a, 12); dump_stamps(a, 16); a("s_endpgm")
    albar(16)
    RG = cfg.ring
    def xreg(m): return (TMP + 4*m if m < 4 else 72 + 4*(m - 4)) if m < RG else F + 4*(m - RG)
    def xr(m): return f"ds_read_b128 {V(xreg(m),4)}, v{8+m%4} offset:{((m//4+1)>>1)*16384 - ((m//4)&1)*4096}"
    assert not (cfg.wearly and RG > 4)
    for m in range(RG): a(xr(m))
    P1 = F; P2 = F + 16; XP = TMP; M = F + 32
    if cfg.mprio == 0: a("s_setprio 0")
    nds = RG
    for m in range(28):
        a(f"s_waitcnt lgkmcnt({nds - m - 1})")
        a(mfma(ACC, xreg(m), F + 4*m, None if m == 0 else ACC))
        if m + RG < 28: a(xr(m + RG)); nds += 1
        elif m >= 24: a(f"ds_read_b128 {V(M+4*(m-24),4)}, v13 offset:{(m-24)*1024}"); nds += 1
    a(f"s_setprio {cfg.aprio}")
    lwait(a, f"v{P_BC}", P_LS, 8, 27, sleep=1)
    a(f"""s_lshl_b32 {T0}, {S_W4}, 11
s_add_u32 {T0}, {T0}, {L_MS}
v_add_u32 v5, {T0}, v7
ds_write_b128 v5, v[48:51]
ds_write_b128 v5, v[52:55] offset:1024
s_lshr_b32 {T0}, {S_KT16}, 1
s_lshl_b32 {T0}, {T0}, 13
s_lshl_b32 {T1}, {S_B}, 7
s_add_u32 {T1}, {T1}, {TBUF}
s_add_u32 {T0}, {T0}, {T1}
s_and_b32 {T2}, {S_KT16}, 1
s_lshl_b32 {T2}, {T2}, 6
s_add_u32 {T0}, {T0}, {T2}
s_add_u32 {T2}, {T0}, {16*65536}
s_cmp_ge_u32 {S_W4}, {S_CNT}
s_cbranch_scc1 L_a1done
s_waitcnt lgkmcnt(0)""")
    for q in range(8): a(f"v_cvt_pk_bf16_f32 v{XP+q}, v{ACC+2*q}, v{ACC+2*q+1}")
    a(mfma(P1, XP, M)); a(mfma(P2, XP, M + 8)); a(mfma(P1, XP + 4, M + 4, P1)); a(mfma(P2, XP + 4, M + 12, P2))
    for r in range(0, 8, 2):
        pk2(a, "add", ACC+r, P1+r, P2+r+8, neg="1", scalar=cfg.nopk & 4); pk2(a, "add", ACC+8+r, P1+r+8, P2+r, scalar=cfg.nopk & 4)
    for r in range(8): a(f"v_cvt_pk_bf16_f32 v{XP+8+r}, v{ACC+r}, v{ACC+8+r}")
    a(f"""s_cmp_lg_u32 {S_KT16}, 0
s_cbranch_scc1 L_a1st
s_mov_b32 exec_hi, 0
v_cvt_pk_bf16_f32 v{XP+8}, v{P1}, v{P2}
v_cvt_pk_bf16_f32 v6, v{P1+8}, v{P2+8}
v_lshlrev_b32 v5, 16, v2
s_mov_b32 exec_hi, -1
L_a1st:
ds_write_b128 v{P_TTW}, {V(XP+8,4)}
ds_write_b128 v{P_TTW}, {V(XP+12,4)} offset:32
ds_read_b128 {V(XP,4)}, v{P_TTR}
ds_read_b128 {V(XP+4,4)}, v{P_TTR} offset:1024
s_mov_b32 {T4}, {T0}
s_waitcnt lgkmcnt(0)""")
    stamp(a, 1, 5)
    if cfg.tdefer: lwait(a, f"v{P_BC}", P_LS, 4, 28, sleep=1, off=12)
    if cfg.tdelay: a(f"s_sleep {cfg.tdelay}")
    if cfg.tstag:
        for q in (1, 2, 3): a(f"s_cmp_lt_u32 {S_W4}, {q}\ns_cbranch_scc1 L_tst\ns_sleep {cfg.tstag}")
        a("L_tst:")
    a(f"""s_cmp_lg_u32 {S_KT16}, 0
s_cbranch_scc1 L_a1st2
s_mov_b32 exec_hi, 0
s_add_u32 {T1}, {T1}, {7*8192}
buffer_store_dword v6, v5, {sWS}, {T1} offen sc1
s_mov_b32 exec_hi, -1
L_a1st2:
{"s_branch L_a1done" if cfg.ko & 8 else ""}
buffer_store_dwordx4 {V(XP,4)}, v{P_TST}, {sWS}, {T4} offen sc1
{"s_sleep %d" % (cfg.tstag // 2) if cfg.tstag else ""}
buffer_store_dwordx4 {V(XP+4,4)}, v{P_TST}, {sWS}, {T2} offen sc1
L_a1done:""")
    stage_arrive(0)
    stamp(a, 4)
    lwait(a, f"v{P_BC}", P_LS, 4, 29, sleep=1, off=12)
    if cfg.wdelay: a(f"s_sleep {cfg.wdelay}")
    if cfg.wpf == 3: wpull()
    if not cfg.wearly and not cfg.wlate: burst([x + (f"\ns_sleep {cfg.wpace}" if cfg.wpace else "") for x in wl], cfg.th_w)
    if cfg.wopf and not cfg.wolate:
        burst([f"""s_lshl_b32 {T0}, {S_IDX}, 2
s_add_u32 {T0}, {T0}, {S_W4}
s_mul_i32 {T0}, {T0}, {25*128}
s_bfm_b64 exec, 25, 0
buffer_load_dword v{P_DUM}, v{P_PF}, {sWO}, {T0} offen
s_mov_b64 exec, -1"""], 1)
    if cfg.ohint:
        for q in range(4): a(f"v_mov_b32 v{TP+q}, -1")
        a(f"""s_lshr_b32 {T0}, {S_XCD}, 1
s_lshl_b32 {T0}, {T0}, 2
s_add_u32 {T0}, {T0}, {S_RR}
s_lshl_b32 {T0}, {T0}, 2
s_add_u32 {T0}, {T0}, {S_W4}
s_lshl_b32 {T0}, {T0}, 4
s_add_u32 {T0}, {T0}, {S_H}
s_lshl_b32 {T0}, {T0}, 11
s_add_u32 {T0}, {T0}, {OBUF}""")
        a(f"s_mov_b32 s72, {T0}")
        marks = [f"buffer_store_dwordx4 {V(TP,4)}, v7, {sWS}, s72 offen offset:{1024*q} sc1" for q in range(2)]
        if not cfg.wolate: burst(marks, 2)
    WO = 72
    S_WOL = "s70"
    a(f"s_lshl_b32 {S_WOL}, {S_W4}, 10\ns_add_u32 {S_WOL}, {S_WOL}, {L_X}")
    def wo_list(rnd):
        return [f"s_add_u32 m0, {S_WOL}, {i*4096}\ns_mov_b32 s71, {(rnd*224 + i*16)*896}\nbuffer_load_dwordx4 v{P_WOD}, {sWO}, s71 offen lds" for i in range(14)]
    def ride(q, n=1):
        it = [q.pop(0) for _ in range(min(n, len(q)))]
        if it: burst(it, n)
        pace()
    def wo_rd(f, d, r1, r2):
        hl, mu = f // 2, f % 2
        return [f"ds_read_b64_tr_b16 {V(d+2*sec,2)}, v{r2 if (mu and sec) else r1} offset:{(28*hl + 16*mu + 8*sec)*256}" for sec in range(2)]
    def wo_reads(h):
        for f in range(16):
            for s_ in wo_rd(f, WO + 64*h + 4*f, P_WOR, P_WOR2): a(s_)
    assert cfg.allpoll
    if cfg.woearly:
        assert cfg.wlate and not cfg.wolate
        lwait(a, "v14", P_LS, 4, 45, sleep=2, off=8)
        burst(wo_list(0), cfg.th_wo)
        a("s_waitcnt vmcnt(0)")
        albar(46)
        wo_reads(0)
    stamp(a, 5)
    stage_wait(0, cfg.a2wait)
    a(f"s_lshl_b32 {T1}, {S_W4}, 11")
    stamp(a, 6)
    a(f"""s_lshl_b32 {T0}, {S_TASK}, 13
s_add_u32 {T0}, {T0}, {T1}
s_add_u32 {T0}, {T0}, {TBUF}""")
    burst([f"buffer_load_dword v{FR+q}, v{P_TLD}, {sWS}, {T0} offen offset:{(q//4)*1024 + (q%4)*128} sc1" for q in range(8)], 8)
    a(f"s_waitcnt vmcnt(0)\nds_write_b128 v{P_TBW}, {V(FR,4)}\nds_write_b128 v{P_TBW}, {V(FR+4,4)} offset:1024" if not cfg.wlate else "")
    if cfg.wlate:
        burst(wl, 24)
        a(f"s_waitcnt vmcnt(16)\nds_write_b128 v{P_TBW}, {V(FR,4)}\nds_write_b128 v{P_TBW}, {V(FR+4,4)} offset:1024")
    stamp(a, 1, 4)
    albar(6)
    stamp(a, 2, 4)
    def dft64(base):
        for m in range(8): a(f"ds_read_b128 {V(FR+4*m,4)}, v{P_TBR} offset:{base + m*1024}")
        if cfg.mprio == 0: a("s_setprio 0")
        for m in range(8):
            a(f"s_waitcnt lgkmcnt({7-m})")
            a(mfma(AC, FB + 4*m, FR + 4*m, None if m == 0 else AC))
            if cfg.mprio: ride(woq)
            elif woq: a(woq.pop(0))
        a(f"s_setprio {cfg.aprio}")
    woq = marks if cfg.wolate else wo_list(1 if cfg.woearly else 0)
    dft64(0)
    a(f"s_waitcnt vmcnt({2 if cfg.wolate else 8})\ns_cmp_eq_u32 {S_HH}, 7\ns_cbranch_scc0 L_a2nx")
    for r in range(8):
        a(f"v_mov_b32 v{TP}, v{WW+r}\nv_xor_b32 v{WW+r}, 0x80000000, v{WW+8+r}\nv_mov_b32 v{WW+8+r}, v{TP}")
    a("L_a2nx:")
    for r in range(0, 8, 2):
        a(f"""v_pk_mul_f32 {V(FR+r,2)}, {V(AC+r,2)}, {V(WW+r,2)}
v_pk_mul_f32 {V(FR+8+r,2)}, {V(AC+r,2)}, {V(WW+8+r,2)}
v_pk_fma_f32 {V(FR+r,2)}, {V(AC+8+r,2)}, {V(WW+8+r,2)}, {V(FR+r,2)} neg_lo:[1,0,0] neg_hi:[1,0,0]
v_pk_fma_f32 {V(FR+8+r,2)}, {V(AC+8+r,2)}, {V(WW+r,2)}, {V(FR+8+r,2)} neg_lo:[1,0,1] neg_hi:[1,0,1]
v_cvt_pk_bf16_f32 v{TP+r}, v{FR+r}, v{FR+8+r}
v_cvt_pk_bf16_f32 v{TP+r+1}, v{FR+r+1}, v{FR+8+r+1}""")
    a(f"ds_write_b128 v{P_TBW}, {V(TP,4)} offset:8192\nds_write_b128 v{P_TBW}, {V(TP+4,4)} offset:9216")
    stamp(a, 3, 4)
    albar(7)
    stamp(a, 4, 4)
    dft64(8192)
    if cfg.uinp:
        a(f"s_lshl_b32 {T0}, {S_TASK}, 13\ns_lshl_b32 {T1}, {S_W4}, 11\ns_add_u32 {T0}, {T0}, {T1}\ns_add_u32 {T0}, {T0}, {TBUF}")
    else:
        a(f"""s_lshl_b32 {T0}, {S_HH}, 12
s_lshr_b32 {T1}, {S_TASK}, 3
s_lshl_b32 {T1}, {T1}, 7
s_add_u32 {T0}, {T0}, {T1}
s_add_u32 {T0}, {T0}, {UBUF}
s_lshl_b32 {T1}, {S_W4}, 19
s_add_u32 {T0}, {T0}, {T1}""")
    for r in range(8): a(f"v_cvt_pk_bf16_f32 v{TP+r}, v{AC+r}, v{AC+8+r}")
    stamp(a, 5, 4)
    a(f"s_cmp_eq_u32 {S_HH}, {S_HH if cfg.ko & 8 else 7}\ns_cselect_b32 exec_lo, 1, -1\ns_cselect_b32 exec_hi, 1, -1")
    if cfg.uinp:
        burst([f"buffer_store_dword v{TP+r}, v{P_TLD}, {sWS}, {T0} offen offset:{(r//4)*1024 + (r%4)*128} sc1" for r in range(8)], 8)
    else:
        burst([f"s_add_u32 {T1}, {T0}, {(8*(r//4) + r%4) * USTR}\nbuffer_store_dword v{TP+r}, v{P_UST}, {sWS}, {T1} offen sc1" for r in range(8)], 8)
    a("s_mov_b64 exec, -1")
    stage_arrive(1)
    stamp(a, 7)
    U0 = 16; U1 = 32; AR = 200; AI = 216
    MSR = [48, 52, 56, 60, 64, 68, 232, 240]
    if cfg.wolate:
        burst(wo_list(0), cfg.th_wo)
        a("s_waitcnt vmcnt(0)")
    albar(4)
    wo_reads(1 if cfg.woearly else 0)
    for q in range(8): a(f"ds_read_b128 {V(MSR[q],4)}, v7 offset:{L_MS + q*1024}")
    if not cfg.woearly:
        albar(24)
        if not cfg.wolate: burst(wo_list(1), cfg.th_wo)
    stage_wait(1, 0 if cfg.wolate else cfg.a3wait)
    stamp(a, 8)
    if cfg.uinp:
        a(f"""s_lshl_b32 {T0}, {S_BP}, 7
s_add_u32 {T0}, {T0}, {TBUF}
s_lshl_b32 {T1}, {S_W4}, 13
s_lshl_b32 {T3}, {S_K1}, 13
s_add_u32 {T2}, {T0}, {T3}
s_add_u32 {T1}, {T0}, {T1}""")
        burst([f"s_add_u32 {T0}, {T1 if q < 16 else T2}, {(8*((q%16)//4) + q%4) * 65536}\nbuffer_load_dword v{U0+q}, v{P_F2}, {sWS}, {T0} offen sc1" for q in range(32)], cfg.th_u)
    else:
        a(f"""s_lshl_b32 {T0}, {S_BP}, 15
s_add_u32 {T0}, {T0}, {UBUF}
s_lshl_b32 {T1}, {S_W4}, 12
s_lshl_b32 {T3}, {S_K1}, 12
s_add_u32 {T2}, {T0}, {T3}
s_add_u32 {T1}, {T0}, {T1}""")
        burst([f"buffer_load_dword v{U0+q}, v{P_TLD}, {sWS}, {T1 if q < 16 else T2} offen offset:{((q%16)//4)*1024 + (q%4)*128} sc1" for q in range(32)], cfg.th_u)
    if cfg.wolate: burst(wo_list(1), 46)
    elif not cfg.woearly:
        a("s_waitcnt vmcnt(32)")
        albar(10)
        wo_reads(1)
    stamp(a, 11, 4)
    a(f"""s_lshl_b32 {T4}, {S_BP}, 2
s_add_u32 {T4}, {T4}, {S_W4}
s_lshl_b32 {T3}, {T4}, 13
s_add_u32 {T3}, {T3}, {OBUF}
s_add_u32 {T2}, {T3}, 4096
s_and_b32 {T4}, {S_BP}, 60
s_add_u32 {T4}, {T4}, {S_W4}
s_lshl_b32 {T4}, {T4}, 9
s_add_u32 {T4}, {T4}, {FO}
s_lshl_b32 {T1}, {S_W4}, 13
v_add_u32 v9, {T1}, v7""")
    def step6(ur, ui, va, last):
        if last and cfg.apoll: a(poll_issue(f"v{P_PF}", T4, P_PS, 4))
        if cfg.mprio == 0: a("s_setprio 0")
        for m in range(4):
            a(mfma(AR, ur + 4*m, MSR[2*m], None if m == 0 else AR))
            if cfg.pace6: a(f"s_sleep {cfg.pace6}")
            a(mfma(AI, ui + 4*m, MSR[2*m+1], None if m == 0 else AI))
            if cfg.pace6: a(f"s_sleep {cfg.pace6}")
        a(f"s_setprio {cfg.aprio}")
        for q in range(16):
            a(f"v_cvt_pk_bf16_f32 v{ur+q}, v{AR+2*q}, v{AR+2*q+1}")
            if q % 4 == 3: a(f"ds_write_b128 v{va}, {V(ur+q-3,4)} offset:{(q//4)*1024}")
    if cfg.s6late: lwait(a, f"v{P_BC}", P_LS, 20, 37, sleep=2)
    a(f"s_waitcnt vmcnt({14 if cfg.wolate else 0})\ns_cmp_eq_u32 {S_W4}, 0\ns_cbranch_scc1 L_a3w0")
    step6(U0, U0, P_ZW0, False)
    step6(U1, U1, P_ZW1, True)
    a(f"s_branch L_a3z\nL_a3w0:\ns_mov_b32 exec_lo, -2\ns_mov_b32 exec_hi, -2")
    for q in range(16): a(f"v_mov_b32 v{U1+q}, v{U0+q}")
    a("s_mov_b64 exec, -1")
    step6(U0, U1, P_ZW0, True)
    a("L_a3z:\ns_mov_b64 exec, 1\nds_add_u32 v14, v15 offset:4\ns_mov_b64 exec, -1")
    stamp(a, 9)
    if cfg.wolate:
        a(f"s_waitcnt vmcnt({1 if cfg.apoll else 0})")
        lbar(a, "v14", "v15", P_LS, 10)
        wo_reads(1)
    osc = ("", " sc1", " nt", " sc0 sc1", " sc1 nt")[cfg.outsc]
    stamp(a, 10)
    a(f"s_mov_b32 s71, {cfg.poll_limit}")
    if cfg.apoll: a(f"s_waitcnt vmcnt(0)\n{poll_check(P_PS, 4)}\ns_cbranch_scc0 L_aoload")
    poll(a, f"v{P_PF}", T4, P_PS, 4, 42, sleep=cfg.osleep)
    a("L_aoload:")
    for q in range(8):
        a(f"buffer_load_dwordx4 {V(16+4*q,4)}, v7, {sWS}, {T3 if q < 4 else T2} offen offset:{(q%4)*1024} sc1")
    stamp(a, 13)
    lwait(a, f"v{P_BC}", P_LS, 24, 43, sleep=1)
    for q in range(8):
        a(f"s_waitcnt vmcnt({7-q})\nds_write_b128 v9, {V(16+4*q,4)} offset:{L_OB + q*1024}")
        if q == 2: a("v_max3_u32 v5, v16, v20, v24")
        if q in (4, 6): a(f"v_max3_u32 v5, v5, v{12+4*q}, v{16+4*q}")
    a(f"""v_max_u32 v5, v5, v44
v_cmp_eq_u32 vcc, -1, v5
s_cbranch_vccz L_aogot
s_sleep 6
s_sub_u32 s71, s71, 1
s_cbranch_scc0 L_aoload
s_mov_b32 {S_TO}, 44
s_branch L_fail
L_aogot:
s_mov_b64 exec, 1
ds_add_u32 v{P_BC}, v15 offset:20
s_mov_b64 exec, -1""")
    a(f"""s_mul_i32 {T4}, {S_BP}, {32*1792}
s_lshl_b32 {T1}, {S_DT}, 6
s_add_u32 {T4}, {T4}, {T1}
s_add_u32 {T4}, {T4}, 896
s_add_u32 {T3}, {T4}, {16*1792}""")
    lwait(a, f"v{P_BC}", P_LS, 4, 12, off=20)
    a(f"s_cmp_ge_u32 {S_W4}, {S_CNT}\ns_cbranch_scc1 L_b3done")
    stamp(a, 11)
    OR = 216
    def zr(s_): return f"ds_read_b128 {V(OR+4*(s_%8),4)}, v7 offset:{L_OB + s_*1024}"
    for s_ in range(8): a(zr(s_))
    if cfg.cost & 1:
        a(f"""s_lshl_b32 {T1}, {S_W4}, 11
s_add_u32 {T1}, {T1}, {L_X}
v_lshlrev_b32 v10, 6, v2
v_lshl_add_u32 v10, v3, 5, v10
v_add_u32 v10, {T1}, v10
v_add_u32 v11, {T1}, v7
v_lshrrev_b32 v5, 2, v1
v_mul_u32_u24 v5, 1792, v5
v_and_b32 v12, 3, v1
v_lshl_add_u32 v5, v12, 4, v5""")
    else:
        a("v_mul_u32_u24 v5, 1792, v2\nv_lshl_add_u32 v5, v3, 5, v5")
    for s_ in range(32):
        a(f"s_waitcnt lgkmcnt({min(7, 31-s_)})")
        a(mfma(AR, WO + 4*s_, OR + 4*(s_ % 8), None if s_ == 0 else AR))
        if s_ + 8 < 32: a(zr(s_ + 8))
    for hf in range(2):
        for q in range(4*hf, 4*hf+4): a(f"v_cvt_pk_bf16_f32 v{48+q}, v{AR+2*q}, v{AR+2*q+1}")
        if cfg.cost & 1: a(f"ds_write_b128 v10, {V(48+4*hf,4)} offset:{16*hf}")
        else: a(f"buffer_store_dwordx4 {V(48+4*hf,4)}, v5, {sOUT}, {T4} offen offset:{16*hf}{osc}")
    if cfg.cost & 1:
        a(f"""ds_read_b128 v[56:59], v11
ds_read_b128 v[60:63], v11 offset:1024
s_waitcnt lgkmcnt(1)
buffer_store_dwordx4 v[56:59], v5, {sOUT}, {T4} offen{osc}
s_waitcnt lgkmcnt(0)
buffer_store_dwordx4 v[60:63], v5, {sOUT}, {T3} offen{osc}""")
    a("L_b3done:")
    a(f"""s_lshl_b32 {T0}, s2, 2
s_add_u32 {T0}, {T0}, {S_W4}
s_cmp_lg_u32 {T0}, 0
s_cbranch_scc1 L_noep
s_mov_b32 {T0}, {EPOCH}""")
    flag(a, T0, 10)
    a("L_noep:")
    if cfg.padend: padto(a, cfg.padend)
    stamp(a, 12)
    dump_stamps(a, 16)
    a("s_endpgm")

def build():
    nh = cfg.nh; xh = 16 // nh
    for wg in range(256):
        xcd, idx = wg & 7, wg >> 3
        h = (xcd % xh) * nh + idx % nh
        assert nh == 8
    a = Asm()
    prologue(a); role_B(a); ROLE[0] = 1; role_A(a)
    a(f"""L_fail:
v_mov_b32 v0, 0
v_mov_b32 v1, {S_TO}
global_store_dword v0, v1, s[18:19]
L_end:
s_endpgm
L_codeend:""")
    a.pad()
    import os
    ref = "cdna_kernels/" + NAME + ".s.ref"
    hdr = open(ref).read().split("; Override launch")[0] if os.path.exists(ref) else ""
    s = hdr + f"; @launch grid=(256,1,1) block=(512,1,1) lds={LDS_SIZE}\n"
    s += f""".amdgcn_target "amdgcn-amd-amdhsa--gfx950"
.text
.globl {NAME}_kernel
.p2align 8
.type {NAME}_kernel,@function
{NAME}_kernel:
""" + a.text() + f""".section .rodata,"a"
.p2align 6
.amdhsa_kernel {NAME}_kernel
  .amdhsa_next_free_vgpr 256
  .amdhsa_next_free_sgpr 102
  .amdhsa_accum_offset 256
  .amdhsa_group_segment_fixed_size 0
  .amdhsa_kernarg_size 72
  .amdhsa_user_sgpr_count 2
  .amdhsa_user_sgpr_kernarg_segment_ptr 1
  .amdhsa_system_sgpr_workgroup_id_x 1
.end_amdhsa_kernel
"""
    return s

if __name__ == "__main__":
    out = sys.argv[1]
    for kv in sys.argv[2:]:
        k, v = kv.split("=")
        setattr(cfg, k, type(getattr(cfg, k))(int(v)))
    open(out, "w").write(build())
```

```python
import sys, math, struct
from asmlib import Asm

NAME = "concat_heads__spectral_gfnet__softmax_full_mha__prompt"

class Cfg:
    nh = 8
    stamps = False
    poll_limit = 1 << 17
    noA = 0
    pxcd = -1
    ptype = 0
    kvsc = 1
    kvt = 0
    kvt64 = 0
    diagrot = 0
    kvs = 0
    kvs0 = 60
    kvsn = 30
    probe = -1
    span = 0
    fine = 0
    padend = 0
    padmid = 0
    dbgwave = -1
    nbuf = 5
    wearly = 0
    touch = 0
    wdelay = 30
    tdelay = 0
    s6late = 0
    lsl = 4
    odefer = 0
    a2wait = 8
    a3wait = 0
    kvwait = 8
    kvrot = 3
    m1 = 12
    ramp = 1
    gate = 2
    wqe = 3
    wqp = 7
    tdefer = 1
    m2 = 27
    xas = 0
    xae = 0
    bhi = 56
    ohint = 1
    wlate = 1
    allpoll = 1
    otry = 1
    gsplit = 8
    claim = 1
    btry = 0
    pace6 = 0
    wolate = 0
    wsoff = 0
    mprio = 0
    xawarm = 0
    wpace = 0
    tstag = 0
    xafirst = 0
    mw = 3
    mwpos = 1
    wqdel = 0
    ring = 8
    apoll = 1
    osleep = 2
    fprio = 0
    nta = 1
    ntw = 1
    ntb = 0
    bsleep = 2
    qst = 0x133
    wopf = 0
    uinp = 1
    woearly = 0
    hack = 0
    ko = 0
    xalate = 0
    ntp = 1
    cost = 3
    nopk = 23
    gtab = 2981409204
    kvp = 1
    owait = 4
    xrot = 0x06543210
    wrot = 1
    pace = 1
    xadefer = 0
    wpf = 0
    outsc = 3
    wqwarm = 0
    th_wo = 14
    th_u = 32
    th_wq = 2
    wqearly = 1
    th_w = 17
    th_xa = 4
    wfair = 8
    xearly = 1
    spf = 0
    spf0 = 150
    pre = 5
    aprio = 2
    force_fb = False
cfg = Cfg()

EPOCH = 0
KV = 0x20000; TS = 61440; VOFF = 28672
OBUF = 0x400000
TBUF = 0x600000
UBUF = 0x800000; USTR = 32768
FKV = 0x8000; FA1 = 0x1000; FO = 0x10000
STAMP = 0xB00000
WS_SIZE = 0x1000000
L_W = 0; L_WQ = 57344; L_X = 86016; L_Q = 151552; L_SYNC = 159744
LDS_SIZE = 160000
L_RED = 0
L_TB = L_WQ; L_YB = L_WQ + 8192; L_MS = 49152; L_TT = L_X + 4096; L_M = L_X + 61440
L_ZB = L_WQ; L_OB = 0
sWS, sWQKV, sX, sWR, sWI, sWO, sOUT = [f"s[{i}:{i+3}]" for i in (24, 28, 32, 36, 40, 44, 48)]
S_WAVE, S_XCD, S_IDX, S_H, S_R, S_W4 = "s56", "s57", "s58", "s59", "s60", "s61"
S_NONCE = "s[62:63]"
S_TO, S_BAR = "s64", "s65"
T0, T1, T2, T3, T4, T5 = "s66", "s67", "s68", "s69", "s22", "s23"
STAMP0 = 84

ZREADY = 24

def f2u(x): return struct.unpack("<I", struct.pack("<f", x))[0]
def lit(x): return "0x%08x" % f2u(x)
def V(a, n=1): return f"v{a}" if n == 1 else f"v[{a}:{a+n-1}]"

def srd(a, name, lo, size):
    i = int(name[2:name.index(":")])
    a(f"s_mov_b32 s{i}, s{lo}\ns_mov_b32 s{i+1}, s{lo+1}\ns_mov_b32 s{i+2}, {size}\ns_mov_b32 s{i+3}, 0x20000")

ROLE = [0]
def stamp(a, i, fine=0):
    if cfg.probe >= 0:
        if fine == cfg.fine and cfg.probe == ROLE[0] * 100 + i:
            a("s_memrealtime s[96:97]\ns_waitcnt lgkmcnt(0)")
        return
    if cfg.fine in (1, 2) and not fine and 3 <= i <= 11: return
    if cfg.fine == 4 and not fine and i in (1, 2, 3, 4, 5, 10, 11, 13): return
    if fine and cfg.fine != fine: return
    if cfg.stamps:
        a(f"s_memtime s[100:101]\ns_waitcnt lgkmcnt(0)\ns_mov_b32 s{STAMP0+i}, s100")

def st0():
    o = f"s_add_u32 s20, s20, {cfg.wsoff << 20}\ns_addc_u32 s21, s21, 0\n" if cfg.wsoff else ""
    return o + (f"s_mov_b32 s{STAMP0+15}, s100\ns_mov_b32 s{STAMP0}, s38" if cfg.stamps else "")

def dump_stamps(a, vt):
    if cfg.probe >= 0:
        if cfg.probe // 100 == ROLE[0]:
            L = a.lab("pr")
            if cfg.pxcd >= 0: a(f"s_cmp_lg_u32 {S_XCD}, {cfg.pxcd}\ns_cbranch_scc1 {L}x")
            if cfg.ptype: a(f"s_cmp_eq_u32 {S_LC}, 7\ns_cbranch_scc{cfg.ptype - 1} {L}x")
            if cfg.probe % 100 == 99: a("s_mov_b32 s96, s100")
            a(f"s_sub_u32 s96, s96, s100\ns_cmp_gt_u32 s96, 4000\ns_cselect_b32 s96, 0, s96\ns_add_u32 s96, s96, 2600\n{L}:\ns_memrealtime s[98:99]\ns_waitcnt lgkmcnt(0)\ns_sub_u32 s98, s98, s100\ns_cmp_lt_u32 s98, s96\ns_cbranch_scc1 {L}\n{L}x:")
        return
    if cfg.span:
        a(f"s_waitcnt vmcnt(0)\ns_memrealtime s[98:99]\ns_lshl_b32 {T0}, s2, 3\ns_add_u32 {T0}, {T0}, {S_WAVE}\ns_lshl_b32 {T0}, {T0}, 3\ns_add_u32 {T0}, {T0}, {STAMP}\ns_waitcnt lgkmcnt(0)")
        a(f"v_mov_b32 v{vt}, s100\nv_mov_b32 v{vt+1}, s98\nv_mov_b32 v{vt+2}, 0\ns_mov_b64 exec, 1\nbuffer_store_dwordx2 {V(vt,2)}, v{vt+2}, {sWS}, {T0} offen\ns_mov_b64 exec, -1")
    if not cfg.stamps: return
    a(f"s_memrealtime s[100:101]\ns_waitcnt lgkmcnt(0)\ns_mov_b32 s{STAMP0+14}, s100")
    if cfg.dbgwave >= 0:
        L = a.lab("nodbg")
        a(f"s_lshl_b32 {T0}, s2, 3\ns_add_u32 {T0}, {T0}, {S_WAVE}\ns_cmp_lg_u32 {T0}, {cfg.dbgwave}\ns_cbranch_scc1 {L}")
        a(f"v_mov_b32 v{vt+4}, 0\ns_mov_b64 exec, 1")
        for i in range(1, 16):
            a(f"s_sub_u32 {T1}, s{STAMP0+i}, s{STAMP0 + (15 if i >= 14 else 0)}\nv_mov_b32 v{vt}, {T1}\nglobal_store_dword v{vt+4}, v{vt}, s[18:19] offset:{4*i}")
        a(f"s_mov_b64 exec, -1\n{L}:")
    a(f"s_lshl_b32 {T0}, s2, 3\ns_add_u32 {T0}, {T0}, {S_WAVE}\ns_lshl_b32 {T0}, {T0}, 7\ns_add_u32 {T0}, {T0}, {STAMP}")
    a(f"v_mov_b32 v{vt+4}, 0\ns_mov_b64 exec, 1")
    for q in range(4):
        for i in range(4): a(f"v_mov_b32 v{vt+i}, s{STAMP0+4*q+i}")
        a(f"buffer_store_dwordx4 {V(vt,4)}, v{vt+4}, {sWS}, {T0} offen offset:{16*q}")
    a("s_mov_b64 exec, -1")

def padto(a, ticks):
    L = a.lab("pad")
    a(f"{L}:\ns_memrealtime s[100:101]\ns_waitcnt lgkmcnt(0)\ns_sub_u32 s100, s100, s{STAMP0+15}\ns_cmp_lt_u32 s100, {ticks}\ns_cbranch_scc1 {L}")

def poll_issue(vaddr, soff, vt, n):
    return f"""v_mov_b32 v{vt}, 0
v_mov_b32 v{vt+1}, 0
s_bfm_b64 exec, {n}, 0
buffer_atomic_or_x2 {V(vt,2)}, {vaddr}, {sWS}, {soff} offen sc0 sc1
s_mov_b64 exec, -1"""

def poll_check(vt, n):
    return f"v_cmp_ne_u64 vcc, {S_NONCE}, {V(vt,2)}\ns_and_b32 vcc_lo, vcc_lo, {hex((1 << n) - 1)}"

def poll(a, vaddr, soff, vt, n, code, sleep=2):
    L, Dn = a.lab("poll"), a.lab("polld")
    a(f"""s_mov_b32 {S_TO}, {cfg.poll_limit}
{L}:
{poll_issue(vaddr, soff, vt, n)}
s_waitcnt vmcnt(0)
{poll_check(vt, n)}
s_cbranch_scc0 {Dn}
s_sleep {sleep}
s_sub_u32 {S_TO}, {S_TO}, 1
s_cbranch_scc0 {L}
s_mov_b32 {S_TO}, {code}
s_branch L_fail
{Dn}:""")

def publish_wg(a, vsync, vone, off, vt, soff, vn, last=3):
    L = a.lab("pub")
    a(f"""s_mov_b64 exec, 1
ds_add_rtn_u32 v{vt}, {vsync}, {vone} offset:{off}
s_waitcnt lgkmcnt(0)
v_readfirstlane_b32 {T0}, v{vt}
s_cmp_eq_u32 {T0}, {last}
s_cselect_b64 exec, 1, 0
buffer_store_dwordx2 {V(vn,2)}, v{vn+2}, {sWS}, {soff} offen sc1
s_mov_b64 exec, -1""")

def flag(a, soff, vt):
    a(f"""v_mov_b32 v{vt}, s62
v_mov_b32 v{vt+1}, s63
v_mov_b32 v{vt+2}, 0
s_mov_b64 exec, 1
buffer_store_dwordx2 {V(vt,2)}, v{vt+2}, {sWS}, {soff} offen sc1
s_mov_b64 exec, -1""")

def flag2(a, soff, vn):
    a(f"s_mov_b64 exec, 1\nbuffer_store_dwordx2 {V(vn,2)}, v{vn+2}, {sWS}, {soff} offen sc1\ns_mov_b64 exec, -1")

def lwait(a, vsync, vt, target, code, sleep=0, off=0):
    L, Dn = a.lab("lw"), a.lab("lwd")
    a(f"""s_mov_b32 {S_TO}, {cfg.poll_limit * 8}
{L}:
ds_read_b32 v{vt}, {vsync} offset:{off}
s_waitcnt lgkmcnt(0)
v_readfirstlane_b32 {T0}, v{vt}
s_cmp_ge_u32 {T0}, {target}
s_cbranch_scc1 {Dn}
{"s_sleep %d" % sleep if sleep else ""}
s_sub_u32 {S_TO}, {S_TO}, 1
s_cbranch_scc0 {L}
s_mov_b32 {S_TO}, {code}
s_branch L_fail
{Dn}:""")

def lbar(a, vsync, vone, vt, code, sleep=0):
    L, Dn = a.lab("lb"), a.lab("lbd")
    a(f"""s_add_u32 {S_BAR}, {S_BAR}, 4
s_mov_b64 exec, 1
ds_add_u32 {vsync}, {vone}
s_mov_b64 exec, -1
s_mov_b32 {S_TO}, {cfg.poll_limit * 8}
{L}:
ds_read_b32 v{vt}, {vsync}
s_waitcnt lgkmcnt(0)
v_readfirstlane_b32 {T0}, v{vt}
s_cmp_ge_u32 {T0}, {S_BAR}
s_cbranch_scc1 {Dn}
{"s_sleep %d" % sleep if sleep else ""}
s_sub_u32 {S_TO}, {S_TO}, 1
s_cbranch_scc0 {L}
s_mov_b32 {S_TO}, {code}
s_branch L_fail
{Dn}:""")

def mfma(d, A, B, C=None):
    return f"v_mfma_f32_32x32x16_bf16 {V(d,16)}, {V(A,4)}, {V(B,4)}, {'0' if C is None else V(C,16)}"

def pk2(a, op, d, x, y, z=None, neg="", scalar=False):
    srcs = [x, y] + ([z] if z is not None else [])
    if not scalar:
        m = "[" + ",".join("1" if str(i) in neg else "0" for i in range(len(srcs))) + "]"
        a(f"v_pk_{op}_f32 {V(d,2)}, " + ", ".join(V(r,2) for r in srcs) + (f" neg_lo:{m} neg_hi:{m}" if neg else ""))
        return
    for q in range(2):
        if op == "add" and neg == "1": a(f"v_sub_f32 v{d+q}, v{x+q}, v{y+q}")
        else: a(f"v_{op}_f32 v{d+q}, " + ", ".join(("-" if str(i) in neg else "") + f"v{r+q}" for i, r in enumerate(srcs)))

def mod7(a, s, t):
    a(f"s_mul_i32 {t}, {s}, 9363\ns_lshr_b32 {t}, {t}, 16\ns_mul_i32 {t}, {t}, 7\ns_sub_u32 {s}, {s}, {t}")

def x_read_addrs(a, v0, vl, base_s, t):
    a(f"""v_and_b32 v{t}, 31, {vl}
v_lshrrev_b32 v{t+1}, 5, {vl}
v_bfe_u32 v{t+2}, {vl}, 1, 3
v_xor_b32 v{t+1}, v{t+1}, v{t+2}
v_lshlrev_b32 v{t}, 7, v{t}
v_add_u32 v{t}, {base_s}, v{t}""")
    for mm in range(4):
        a(f"v_xor_b32 v{t+2}, {2*mm}, v{t+1}\nv_lshl_add_u32 v{v0+mm}, v{t+2}, 4, v{t}")


S_HH, S_RR, S_J, S_P0, S_LC = "s52", "s53", "s54", "s55", "s3"

def prologue(a):
    a(f"""s_cmp_ge_u32 s2, 256
s_cbranch_scc1 L_end
s_load_dwordx16 s[4:19], s[0:1], 0
s_load_dwordx2 s[20:21], s[0:1], 64""")
    if cfg.span or cfg.probe >= 0: a("s_memrealtime s[100:101]")
    if cfg.stamps:
        a(f"s_memtime s[38:39]\ns_memrealtime s[100:101]")
        for i in range(1, 15): a(f"s_mov_b32 s{STAMP0+i}, 0")
    a(f"""s_lshr_b32 {S_IDX}, s2, 3
s_getpc_b64 s[70:71]
L_pc:
v_lshrrev_b32 v3, 5, v0
v_lshl_add_u32 v3, {S_IDX}, 4, v3
v_lshlrev_b32 v3, 7, v3
v_min_u32 v3, L_codeend-L_pc-4, v3
global_load_dword v255, v3, s[70:71]
v_lshrrev_b32 v2, 6, v0
v_and_b32 v1, 63, v0
v_readfirstlane_b32 {S_WAVE}, v2
s_and_b32 {S_XCD}, s2, 7
s_and_b32 {S_HH}, {S_IDX}, 7
s_lshr_b32 {S_RR}, {S_IDX}, 3
s_and_b32 {T5}, {S_XCD}, 1
s_lshl_b32 {S_H}, {T5}, 3
s_add_u32 {S_H}, {S_H}, {S_HH}
s_lshl_b32 {T0}, {S_HH}, 2
s_cmp_eq_u32 {T5}, 0
s_cselect_b32 {S_LC}, 0x67543210, s2
s_cselect_b32 {S_LC}, {S_LC}, 0x65432170
s_lshr_b32 {S_LC}, {S_LC}, {T0}
s_and_b32 {S_LC}, {S_LC}, 7
s_and_b32 {S_W4}, {S_WAVE}, 3
s_cmp_ge_u32 {S_WAVE}, 4
s_cbranch_scc1 L_roleA""")

def nonce(a):
    a(f"""s_waitcnt lgkmcnt(0)
s_mul_i32 s62, s62, 0x9E3779B1
s_add_u32 s62, s62, 0x7F4A7C15
s_mul_i32 s63, s63, 0x85EBCA6D
s_add_u32 s63, s63, 0x165667B1""")

def role_B(a):
    X = 16; ACC = 128; WB = 160; PK = 224
    KVSC = ("sc1", "sc0 sc1", "sc1 nt", "sc0 sc1 nt")[cfg.kvsc]
    SC = 70
    S_XL, S_TILE, S_I = "s77", "s78", "s79"
    TO = 36
    S_WM, S_WO, S_DM, S_DO = "s80", "s81", "s82", "s83"
    a(f"""s_setprio 3
s_mul_i32 {S_J}, {T5}, 7
s_add_u32 {S_J}, {S_J}, {S_LC}
v_lshrrev_b32 v8, 3, v1
v_and_b32 v9, 7, v1
v_mul_u32_u24 v2, 2688, v8
v_bfe_u32 v3, v1, 4, 1
v_lshlrev_b32 v3, 2, v3
v_xor_b32 v3, v9, v3
v_lshl_add_u32 v2, v3, 4, v2
s_lshl_b32 {T0}, {S_J}, 7
s_mul_i32 {T1}, {S_W4}, {8*2688}
s_add_u32 {T0}, {T0}, {T1}
s_add_u32 {T0}, {T0}, 896
v_add_u32 v2, {T0}, v2
s_lshl_b32 {T2}, {S_RR}, 3
s_lshr_b32 {T0}, {0xD66D0770 if cfg.wrot else 0x70707070}, {T2}
s_bfe_u32 {T1}, {T0}, 0x40004
s_and_b32 {T0}, {T0}, 15
s_lshl_b32 {T3}, {S_W4}, 10
s_lshl_b32 {T2}, {T0}, 12
s_add_u32 m0, {T2}, {T3}
s_mul_i32 {S_I}, {T0}, {32*2688}
s_lshl_b32 {T2}, {T1}, 12
s_add_u32 {S_WM}, {T2}, {T3}
s_mul_i32 {S_WO}, {T1}, {32*2688}
s_cmp_ge_u32 {S_RR}, {2 if cfg.wrot else 4}
s_cselect_b32 {T0}, -1, 1
s_lshl_b32 {S_DM}, {T0}, 12
s_mul_i32 {S_DO}, {T0}, {32*2688}
s_cmp_eq_u32 {S_LC}, 7
s_cselect_b32 s30, 0, {448 * 2688}
s_mov_b32 s31, 0x20000
s_waitcnt lgkmcnt(0)
{st0()}
s_mov_b64 s[28:29], s[12:13]""")
    def x_m0(i, j): return f"s_add_u32 m0, {S_XL}, {(i%4)*4096 + j*1024}"
    def x_ld(i, j): return f"buffer_load_dwordx4 v{4+j}, {sX}, s{SC+i} offen{' nt' if cfg.ntb else ''} lds"
    def sc_next(i): return f"s_add_u32 s{SC+i}, s{SC+i-1}, 128\ns_cmp_eq_u32 s{SC+i}, 896\ns_cselect_b32 s{SC+i}, 0, s{SC+i}"
    def w_base(i): return f"v_lshl_add_u32 v12, s{SC+i}, 6, v14\nv_xor_b32 v13, 64, v12"
    def setup_x():
        a(f"""s_mov_b32 s34, {2048*896}
s_mov_b32 s35, 0x20000
s_lshr_b32 {S_R}, {S_XCD}, 1
s_lshl_b32 {S_R}, {S_R}, 2
s_add_u32 {S_R}, {S_R}, {S_RR}
s_lshl_b32 {S_TILE}, {S_R}, 2
s_add_u32 {S_TILE}, {S_TILE}, {S_W4}
v_lshrrev_b32 v10, 4, v1
v_xor_b32 v10, v9, v10
v_xor_b32 v11, 4, v10
v_mul_u32_u24 v12, 896, v8
s_mul_i32 {T2}, {S_TILE}, {32*896}
v_add_u32 v12, {T2}, v12
v_lshl_add_u32 v4, v10, 4, v12
v_lshl_add_u32 v5, v11, 4, v12
v_add_u32 v5, {8*896}, v5
v_add_u32 v6, {16*896}, v4
v_add_u32 v7, {16*896}, v5
s_lshl_b32 {T2}, {S_HH}, 2
s_lshr_b32 s{SC}, {cfg.xrot}, {T2}
s_and_b32 s{SC}, s{SC}, 7
s_lshl_b32 s{SC}, s{SC}, 7
s_lshl_b32 {S_XL}, {S_W4}, 14
s_add_u32 {S_XL}, {S_XL}, {L_X}""")
        a("s_mov_b64 s[32:33], s[10:11]")
    def setup2():
        for i in range(1, 7): a(sc_next(i))
        x_read_addrs(a, 8, "v1", S_XL, 12)
        srd(a, sWS, 20, WS_SIZE)
        a(f"""v_lshrrev_b32 v12, 5, v1
v_lshlrev_b32 v12, 3, v12
v_bfe_u32 v13, v1, 2, 2
v_add_u32 v12, v12, v13
v_bfe_u32 v13, v1, 4, 1
v_lshlrev_b32 v13, 5, v13
v_and_b32 v18, 1, v1
v_bfe_u32 v19, v1, 1, 1
v_lshl_add_u32 v15, v18, 4, v13
v_lshl_add_u32 v15, v19, 3, v15
v_lshl_add_u32 v14, v18, 3, v13
v_lshl_add_u32 v14, v19, 4, v14
s_cmp_eq_u32 {T5}, 1
s_cselect_b64 vcc, -1, 0
v_cndmask_b32 v14, v15, v14, vcc
v_lshl_add_u32 v15, v12, 6, v15
v_add_u32 v15, {L_WQ}, v15
v_bfe_u32 v13, v1, 3, 1
v_lshl_add_u32 v14, v13, 6, v14
v_lshl_add_u32 v14, v12, 7, v14""")
        a(f"""v_lshrrev_b32 v253, 2, v1
v_mul_u32_u24 v253, 2688, v253
v_and_b32 v254, 3, v1
v_lshl_add_u32 v253, v254, 4, v253
s_mul_i32 {S_P0}, {S_H}, 7
s_lshr_b32 {S_P0}, {S_P0}, 1
s_lshl_b32 s80, {S_P0}, 4
s_mul_i32 s81, {S_W4}, {16*2688}
s_add_u32 s80, s80, s81
v_add_u32 v253, s80, v253
s_lshl_b32 s80, {S_W4}, 10
s_add_u32 s80, s80, {L_WQ}
s_and_b32 s81, {S_P0}, 7
s_cmp_gt_u32 s81, 4
s_cselect_b32 s81, 1, 0
s_nop 0""")
        a(w_base(0))
        a(f"v_mov_b32 v250, {L_SYNC}\nv_mov_b32 v251, 1\nv_mov_b32 v246, 0\ns_mov_b32 {S_BAR}, 0")
    VK, VV, VF, VL = 240, 241, 242, 243
    PG = ["s4", "s5", "s6", "s7"]; S_FL = "s8"
    def setup3():
        a(f"""v_lshlrev_b32 v{VL}, 4, v1
s_lshl_b32 {T0}, {S_P0}, 9
v_add_u32 v{VK}, {T0}, v{VL}
s_lshl_b32 {T0}, {S_H}, 11
s_add_u32 {T0}, {T0}, {VOFF}
v_add_u32 v{VV}, {T0}, v{VL}
s_lshr_b32 {T1}, {S_P0}, 3
s_add_u32 {T0}, {S_P0}, 3
s_lshr_b32 {T0}, {T0}, 3
s_sub_u32 {T0}, {T0}, {T1}
v_and_b32 v{VF}, 1, v1
v_mul_u32_u24 v{VF}, {T0}, v{VF}
v_bfe_u32 v18, v1, 1, 1
v_mul_u32_u24 v18, 7, v18
v_add_u32 v{VF}, v{VF}, v18
v_lshlrev_b32 v{VF}, 7, v{VF}
s_lshl_b32 {T0}, {S_W4}, 4
s_add_u32 {T0}, {T0}, {T1}
s_lshl_b32 {T0}, {T0}, 7
s_add_u32 {T3}, {T0}, {FKV}
s_lshr_b32 {T2}, {S_R}, 2
s_lshl_b32 {T2}, {T2}, 3
s_lshr_b32 {T2}, {cfg.gtab if cfg.gtab > 1 else 0x934E39E4}, {T2}
s_mul_i32 {T1}, {S_W4}, {4*TS}
s_add_u32 {T1}, {T1}, {KV}""")
        for p in range(4): a(f"s_add_u32 {T0}, {S_RR}, {p}\ns_and_b32 {T0}, {T0}, 3\ns_mul_i32 s{TO+12+p}, {T0}, {TS}")
        for g in range(4):
            a(f"s_bfe_u32 {T0}, {T2}, {0x20000 + 2*g}\ns_lshl_b32 {PG[g]}, {T0}, 13\ns_add_u32 {PG[g]}, {PG[g]}, {T3}\ns_mul_i32 {T0}, {T0}, {16*TS}\ns_add_u32 {T0}, {T0}, {T1}")
            for p in range(4):
                a(f"s_add_u32 s{TO+4*g+p}, {T0}, " + (f"{p*TS}" if (g == 0 or cfg.kvrot == 0) else f"s{TO+12+p}"))
        a(f"""s_cmp_eq_u32 {S_LC}, 7
s_cselect_b32 {T1}, 15, {S_J}
s_lshl_b32 {T0}, {S_R}, 4
s_add_u32 {T0}, {T0}, {T1}
s_lshl_b32 {T0}, {T0}, 7
s_add_u32 {S_FL}, {T0}, {FKV}""")
    stamp(a, 3, 2)
    XE = cfg.xearly
    def mid():
        stamp(a, 4, 2)
        a("s_barrier")
        if cfg.fine != 2: a(f"s_load_dwordx2 s[62:63], s[20:21], {EPOCH}")
        stamp(a, 5, 2)
    for i in range(14):
        a(f"buffer_load_dwordx4 v2, {sWQKV}, {S_I} offen lds")
        if i == 6:
            if XE:
                setup_x()
                for j in range(4): a(x_m0(0, j)); a("s_nop 0"); a(x_ld(0, j))
                mid()
            a(f"s_mov_b32 m0, {S_WM}\ns_mov_b32 {S_I}, {S_WO}")
            if XE: setup2(); setup3()
        elif i < 13: a(f"s_add_u32 m0, m0, {S_DM}\ns_add_u32 {S_I}, {S_I}, {S_DO}")
        if i == 10 and not XE:
            mid(); setup_x(); setup2(); setup3()
    stamp(a, 8, 2)
    a(f"s_waitcnt vmcnt({cfg.wfair})")
    stamp(a, 10, 2)
    for c in range(XE, 2 + XE):
        for j in range(4): a(x_m0(c, j)); a("s_nop 0"); a(x_ld(c, j))
    stamp(a, 11, 2)
    if cfg.fine == 2: a(f"s_load_dwordx2 s[62:63], s[20:21], {EPOCH}")
    nonce(a)
    if cfg.diagrot: a(f"s_lshr_b32 {T0}, s62, 28\ns_lshl_b32 {T0}, {T0}, 24\ns_add_u32 s24, s20, {T0}\ns_addc_u32 s25, s21, 0")
    a("v_mov_b32 v244, s62\nv_mov_b32 v245, s63\nds_write_b64 v250, v[244:245] offset:64")
    def w_base(i): return f"v_lshl_add_u32 v12, s{SC+i}, 6, v14\nv_xor_b32 v13, 64, v12"
    def wq(i): return f"s_add_u32 m0, s80, {i*4096}\ns_mul_i32 s82, s{SC+i}, {64*21}\nbuffer_load_dwordx4 v253, {sWQKV}, s82 offen lds"
    a(f"s_mov_b32 s30, {448 * 2688}")
    def w_reads(i):
        out = []
        for mm in range(4):
            for ct in range(2):
                for hf in range(2):
                    d = WB + (i % 2) * 32 + mm * 8 + ct * 4 + hf * 2
                    out.append(f"ds_read_b64_tr_b16 {V(d,2)}, v{12+ct} offset:{mm*2048 + hf*512}")
        return out
    def x_reads(i):
        return [f"ds_read_b128 {V(X+16*i+4*mm,4)}, v{8+mm} offset:{(i%4)*4096}" for mm in range(4)]
    a(f"""s_waitcnt vmcnt(8)""")
    stamp(a, 1)
    a(f"s_mov_b64 exec, 1\nds_add_u32 v250, v251\ns_mov_b64 exec, -1")
    for j in range(2): a(x_m0(2 + XE, j)); a("s_nop 0"); a(x_ld(2 + XE, j))
    lwait(a, "v250", 252, 4, 19)
    stamp(a, 3, 1)
    wr0 = w_reads(0)
    for s_ in wr0[:8]: a(s_)
    if not XE: a("s_waitcnt vmcnt(6)")
    for s_ in x_reads(0) + wr0[8:]: a(s_)
    a(f"s_cmp_eq_u32 {T5}, 1\ns_cbranch_scc1 L_kvV")
    for var in ("K", "V"):
        if var == "V": a("L_kvV:")
        late = [f"s_mul_i32 {T4}, {S_TILE}, {TS}", f"s_add_u32 {T4}, {T4}, {KV}", "v_lshlrev_b32 v7, 4, v1"]
        if var == "K":
            late += [f"s_lshl_b32 {T0}, {S_LC}, 12", f"s_add_u32 {T4}, {T4}, {T0}"]
        else:
            late += f"""s_lshl_b32 {T1}, {S_LC}, 6
v_and_b32 v4, 31, v1
v_add_u32 v4, {T1}, v4                    ; col (ct0)
v_add_u32 v5, 32, v4
v_lshrrev_b32 v3, 5, v1
v_lshlrev_b32 v3, 9, v3
v_add_u32 v3, {VOFF}, v3""".split("\n")
            for r in (4, 5):
                late += f"""v_mul_u32_u24 v2, 2341, v{r}
v_lshrrev_b32 v2, 16, v2
v_mul_u32_u24 v2, {2048 - 28*16}, v2
v_lshl_add_u32 v{r}, v{r}, 4, v2
v_add_u32 v{r}, v{r}, v3""".split("\n")
            late += f"""s_lshl_b32 {T1}, {S_LC}, 2
s_lshr_b32 {T2}, 0xDB96420, {T1}
s_and_b32 {T2}, {T2}, 15                  ; first head that ends in this line-column
s_lshr_b32 {T3}, 0x3223222, {T1}
s_and_b32 {T3}, {T3}, 15
s_lshl_b32 {T3}, {T3}, 4
v_lshrrev_b32 v6, 2, v1
v_lshlrev_b32 v6, 9, v6
v_and_b32 v2, 3, v1
v_lshl_add_u32 v6, v2, 4, v6
s_lshl_b32 {T2}, {T2}, 11
s_add_u32 {T2}, {T2}, {VOFF + 28*16}
v_add_u32 v6, {T2}, v6
v_cmp_eq_u32 vcc, 0, v2
v_mov_b32 v2, 0x3f803f80
s_nop 0
v_cndmask_b32 v236, 0, v2, vcc
v_cndmask_b32 v237, 0, v2, vcc
v_cndmask_b32 v238, 0, v2, vcc
v_cndmask_b32 v239, 0, v2, vcc""".split("\n")
        for i in range(7):
            a("s_waitcnt lgkmcnt(0)")
            stamp(a, 4 + i, 1)
            fill = [[] for _ in range(8)]
            pre = [[] for _ in range(8)]
            if i == 0:
                dq = [(c, j) for c in range(1, 7) for j in range(4)]
                issued_q = dq[:6 + 4*XE]; dq = dq[6 + 4*XE:]
            def take(g):
                if dq and dq[0][0] <= i + 4:
                    e = dq.pop(0); issued_q.append(e)
                    pre[g].append(x_m0(*e)); fill[g].insert(0, x_ld(*e))
            had = bool(dq)
            if i + 1 < 7:
                wr = w_reads(i + 1)
                fill[0] += [w_base(i + 1)] + wr[0:3]
                fill[1] += wr[3:8]; fill[2] += wr[8:12]; fill[3] += wr[12:16]
                for g in ((0, 1, 2, 3, 4) if i == 0 and not XE else (0,)): take(g)
                if i == 4:
                    fill[1].append("s_cmp_eq_u32 s81, 1\ns_cselect_b64 exec, -1, 0\n" + "\n".join(wq(q) for q in range(cfg.wqe)) + "\ns_mov_b64 exec, -1")
                    issued_q += [(99, q) for q in range(cfg.wqe)]
                last = max(q for q, e in enumerate(issued_q) if e[0] == i + 1)
                fill[4] += [f"s_waitcnt vmcnt({len(issued_q) - 1 - last})"] + x_reads(i + 1)
            for g in range(5, 8): take(g)
            if i == 4:
                assert not had
                fill[0].insert(0, "s_mov_b64 exec, 1\nds_add_u32 v250, v251 offset:8\ns_mov_b64 exec, -1")
            if not had:
                for g in range(5 if i < 6 else 0, 8):
                    for q in range(6):
                        if late: fill[g].append(late.pop(0))
            for mm in range(4):
                for ct in range(2):
                    xr = X + 16*i + 4*mm; wr_ = WB + (i % 2) * 32 + mm * 8 + ct * 4
                    c = None if (i == 0 and mm == 0) else ACC + 16*ct
                    for s_ in pre[2*mm + ct]: a(s_)
                    a(mfma(ACC + 16*ct, wr_, xr, c) if var == "K" else mfma(ACC + 16*ct, xr, wr_, c))
                    for s_ in fill[2*mm + ct]: a(s_)
        assert not late
        stamp(a, 11, 1)
        a(f"s_cmp_eq_u32 {S_LC}, 7\ns_cbranch_scc1 L_kvnone")
        if var == "V":
            a(f"s_bfm_b64 exec, {T3}, 0\nbuffer_store_dwordx4 v[236:239], v6, {sWS}, {T4} offen sc1\ns_mov_b64 exec, -1")
        for ct in range(2):
            for j in range(2):
                for q in range(4):
                    z = 8*ct + 4*j + q
                    a(f"v_cvt_pk_bf16_f32 v{PK+z}, v{ACC+2*z}, v{ACC+2*z+1}")
                if var == "K":
                    a(f"buffer_store_dwordx4 {V(PK+8*ct+4*j,4)}, v7, {sWS}, {T4} offen offset:{ct*2048+j*1024} {KVSC}")
                else:
                    a(f"buffer_store_dwordx4 {V(PK+8*ct+4*j,4)}, v{4+ct}, {sWS}, {T4} offen offset:{j*1024} {KVSC}")
        if var == "K": a("s_branch L_kvdone\nL_kvnone:\ns_waitcnt vmcnt(0)\ns_branch L_kvdone")
    a("L_kvdone:\ns_mov_b64 exec, 1\nds_add_u32 v250, v251\ns_mov_b64 exec, -1")
    stamp(a, 2)
    NB = cfg.nbuf
    Q = 16; O = 48; SA = 112; KVB = 144; P0 = KVB + 16*NB; P1 = P0 + 4
    assert P1 + 4 <= 240
    QP = 224
    S_LD = "s9"
    def kv_loads(t, so=None):
        b = KVB + 16 * (t % NB); so = so or f"s{TO + (t if not cfg.hack or t < cfg.hack else t % cfg.hack)}"
        return [f"buffer_load_dwordx4 {V(b+4*j,4)}, v{VK if j < 2 else VV}, {sWS}, {so} offen offset:{(j%2)*1024} sc1" for j in range(4)]
    PV = 254; QA = (4, 6, 8, 9)
    pl = poll_issue(f"v{VF}", PG[0], PV, 4)
    QW = 176
    def qsync(target):
        a("s_mov_b64 exec, 1\nds_add_u32 v250, v251 offset:4\ns_mov_b64 exec, -1")
        lwait(a, "v250", 5, target, 14, off=4)
    def qmma(c0, c1, issue, check):
        rd = [f"ds_read_b64_tr_b16 {V(QW+(i%3)*16+mm*4+hf*2,2)}, v15 offset:{i*4096+mm*1024+hf*256}" for i in range(c0, c1) for mm in range(4) for hf in range(2)]
        iss = min(len(rd), 12)
        for s_ in rd[:iss]: a(s_)
        for m in range(4 * (c1 - c0)):
            a(f"s_waitcnt lgkmcnt({iss - (2*m + 2)})")
            a(mfma(ACC, QW + ((c0 + m // 4) % 3) * 16 + 4*(m % 4), X + 16*c0 + 4*m, None if c0 + m == 0 else ACC))
            for s_ in rd[iss:iss+2]: a(s_)
            iss = min(len(rd), iss + 2)
            if m == issue: a(pl)
            if m == check:
                Lf, Lg = a.lab("pf"), a.lab("pg")
                a(f"s_waitcnt vmcnt(0)\n{poll_check(PV, 4)}\ns_cbranch_scc1 {Lf}\ns_mov_b32 {S_LD}, 1")
                for t in range(2):
                    for s_ in kv_loads(t): a(s_)
                a(f"s_branch {Lg}\n{Lf}:\n{pl}\n{Lg}:")
    S_OB, S_FO, S_LO, S_HI, S_CL, S_M0 = "s10", "s11", "s12", "s13", "s14", "s[76:77]"
    def addrs():
        a(f"""s_lshl_b32 {S_OB}, {S_TILE}, 4
s_add_u32 {S_OB}, {S_OB}, {S_H}
s_lshl_b32 {S_OB}, {S_OB}, 11
s_add_u32 {S_OB}, {S_OB}, {OBUF}
s_lshl_b32 {S_FO}, {S_R}, 4
s_add_u32 {S_FO}, {S_FO}, {S_H}
s_lshl_b32 {S_FO}, {S_FO}, 7
s_add_u32 {S_FO}, {S_FO}, {FO}
s_mov_b32 {S_LO}, {lit(2.0**-40)}
s_mov_b32 {S_HI}, {lit(2.0**30)}
s_movk_i32 {S_CL}, 0x1f8
s_cmp_eq_u32 {S_W4}, 0
s_cselect_b64 {S_M0}, 1, 0
v_mov_b32 v2, v250
v_mov_b32 v3, 1
v_mov_b32 v7, v{VL}
v_mov_b32 v248, {lit(28 ** -0.5 * math.log2(math.e))}
v_mov_b32 v249, v248""")
        for i in range(4):
            a(f"""s_add_u32 {T0}, {S_W4}, {i+1}
s_and_b32 {T0}, {T0}, 3
s_lshl_b32 {T1}, {T0}, 11
s_add_u32 {T1}, {T1}, {L_Q}
v_add_u32 v{QA[i]}, {T1}, v7
s_mul_i32 {T0}, {T0}, 12288
s_add_u32 {T0}, {T0}, {(i%3)*4096 + L_RED}
v_add_u32 v{10+i}, {T0}, v7""")
    def publish(n):
        a(f"s_waitcnt vmcnt({n})")
        publish_wg(a, "v250", "v251", 16, 5, S_FL, 244)
        stamp(a, 3)
        a("s_waitcnt vmcnt(1)")
    E = cfg.wqe
    a(f"s_mov_b32 {S_LD}, 0\ns_cmp_eq_u32 s81, 1\ns_cbranch_scc1 L_qtwo")
    S_M0 = "s[82:83]" if cfg.xafirst else S_M0
    if cfg.xafirst:
        addrs()
        if cfg.wqdel: a(f"s_sleep {cfg.wqdel}")
        for i in range(7): a(wq(i).replace("s82", T0))
    else:
        for i in range(7): a(wq(i))
        addrs()
    publish(7)
    qsync(4)
    stamp(a, 4)
    qmma(0, 7, cfg.m1, cfg.m2)
    a("s_branch L_qdone\nL_qtwo:\ns_waitcnt vmcnt(4)")
    qsync(4)
    for i in range(E, 7): a(wq(i))
    qmma(0, E, -1, -1)
    addrs()
    publish(7 - E)
    qsync(8)
    stamp(a, 4)
    qmma(E, 7, 0, 4 * (7 - E) - 1)
    a("L_qdone:")
    stamp(a, 5)
    a(f"s_bitcmp1_b32 {S_H}, 0")
    for hf in range(2):
        for q in range(8*hf, 8*hf+8, 2): pk2(a, "mul", ACC+q, ACC+q, 248, scalar=cfg.nopk & 1)
        for q in range(4*hf, 4*hf+4): a(f"v_cvt_pk_bf16_f32 v{QP+q}, v{ACC+2*q}, v{ACC+2*q+1}")
        if hf == 0: a(f"s_cselect_b32 exec_lo, -1, 0\ns_mov_b32 exec_hi, 0\nv_mov_b32 v{QP}, 0\nv_mov_b32 v{QP+1}, 0\ns_mov_b64 exec, -1")
        else: a(f"s_cselect_b32 exec_hi, 0, -1\ns_mov_b32 exec_lo, 0\nv_mov_b32 v{QP+6}, 0\nv_mov_b32 v{QP+7}, 0\ns_mov_b64 exec, -1")
        a(f"ds_write_b128 v9, {V(QP+4*hf,4)} offset:{1024*hf}")
    a(f"""s_mov_b64 exec, 1
ds_add_u32 v2, v3
s_mov_b64 exec, -1
s_cmp_eq_u32 {S_LD}, 1
s_cbranch_scc1 L_kvloaded
s_waitcnt vmcnt(0)
{poll_check(PV, 4)}
s_cbranch_scc0 L_kvready""")
    poll(a, f"v{VF}", PG[0], PV, 4, 1, sleep=2)
    a("L_kvready:")
    for t in range(2):
        for s_ in kv_loads(t): a(s_)
    a("L_kvloaded:\ns_mov_b64 exec, 1\nds_add_u32 v2, v3 offset:12\ns_mov_b64 exec, -1")
    stamp(a, 6)
    if cfg.fine == 6:
        a(f"s_lshl_b32 {T0}, {S_LD}, 10\ns_add_u32 s{STAMP0+1}, s{STAMP0}, {T0}\ns_sub_u32 {T0}, {cfg.poll_limit}, {S_TO}\ns_cmp_gt_u32 {T0}, 100\ns_cselect_b32 {T0}, -1, {T0}\ns_add_u32 {T0}, {T0}, 1\ns_lshl_b32 {T0}, {T0}, 10\ns_add_u32 s{STAMP0+2}, s{STAMP0}, {T0}")
    lwait(a, "v2", 5, 12, 15)
    a(f"s_mov_b32 {S_BAR}, 12")
    for i in range(4):
        a(f"ds_read_b128 {V(Q+8*i,4)}, v{QA[i]}\nds_read_b128 {V(Q+8*i+4,4)}, v{QA[i]} offset:1024")
    stamp(a, 7)
    a("s_waitcnt vmcnt(6) lgkmcnt(6)\ns_setprio 0")
    if cfg.padmid: padto(a, cfg.padmid)
    stamp(a, 8)
    a(mfma(SA, KVB, Q)); a(mfma(SA, KVB + 4, Q + 4, SA))
    a("s_waitcnt vmcnt(4) lgkmcnt(0)\ns_nop 9\n.p2align 3")
    sched = {}
    issued = 2
    for t in range(16):
        for i in (1, 2):
            if (i == 1 or t % cfg.ramp == 0) and issued <= min(15, t + NB - 1):
                sched[(t, i)] = issued; issued += 1
    first = {g: min(k for k, v in sched.items() if v == 4*g) for g in (1, 2, 3)}
    pollat = {(k[0] - 1, 0): g for g, k in first.items()}
    vq = [("t", 1)] * 4
    def after(tag): return len(vq) - 1 - max(q for q, e in enumerate(vq) if e == tag)
    assert NB >= 5
    units = [(t, i) for t in range(12) for i in range(4)] + [(t, i) for i in range(4) for t in range(12, 16)]
    firstuse = {}
    for n, (t, i) in enumerate(units): firstuse.setdefault(t, n)
    waitat = {n - 2: t for t, n in firstuse.items() if t > 0}
    kb = lambda tt: KVB + 16 * (tt % NB)
    redw = lambda i, q: f"ds_write_b128 v{10+i}, {V(O+16*i+4*q,4)} offset:{q*1024}"
    for n, (t, i) in enumerate(units):
        if n % 8 == 0 and n: stamp(a, n // 8, 3)
        cur = SA + 16 * (n % 2); nxt = SA + 16 * ((n + 1) % 2)
        ms = [None] * 4
        if n < 63:
            tn, inx = units[n + 1]
            ms[0] = mfma(nxt, kb(tn), Q + 8*inx); ms[1] = mfma(nxt, kb(tn) + 4, Q + 8*inx + 4, nxt)
        if n > 0:
            tp, ip = units[n - 1]
            ms[2] = mfma(O + 16*ip, kb(tp) + 12, P1, O + 16*ip)
        ms[3] = mfma(O + 16*i, kb(t) + 8, P0, None if t == 0 else O + 16*i)
        side = [None] * 4
        key = (n // 4, n % 4)
        if key in sched:
            assert n < 48
            tl = sched[key]
            if tl % 4 == 0:
                g = tl // 4
                a(f"s_waitcnt vmcnt({after(('p', g))})\nv_cmp_ne_u64 vcc, {S_NONCE}, v[14:15]\ns_cbranch_vccnz L_gate{g}\nL_gated{g}:\ns_nop 0")
            side = kv_loads(tl); vq += [("t", tl)] * 4
        if key in pollat:
            g = pollat[key]
            side[0] = f"buffer_load_dwordx2 v[14:15], v{VF}, {sWS}, {PG[g]} offen sc1"; vq.append(("p", g))
        sig = "\ns_mov_b64 exec, 1\nds_add_u32 v2, v3\ns_mov_b64 exec, -1"
        rdr = lambda q: f"ds_read_b128 {V(O+4*q,4)}, v13 offset:{q*1024}"
        if 53 <= n <= 56: side[1] = redw(0, n - 53)
        if n in (57, 58): side[1] = redw(1, 2*(n - 57)); side[3] = redw(1, 2*(n - 57) + 1) + (sig if n == 58 else "")
        if n == 60: side[1] = "ds_read_b32 v5, v2"
        if n == 61:
            a(f"s_waitcnt lgkmcnt(0)\nv_readfirstlane_b32 {T0}, v5\ns_cmp_ge_u32 {T0}, 16\ns_cbranch_scc0 L_redw\nL_redd:")
        if n in (61, 62):
            k_ = n - 61
            side = [redw(2, 2*k_), rdr(4*k_) + "\n" + rdr(4*k_+1), redw(2, 2*k_+1) + (sig if k_ else ""), rdr(4*k_+2) + "\n" + rdr(4*k_+3)]
        if n == 63: side[2] = "ds_read2_b32 v[4:5], v2 offset0:34 offset1:0"
        if n == cfg.bhi: side[0] = "s_setprio 3\ns_nop 0" + ("\n" + side[0] if side[0] else "")
        for p in range(4):
            if ms[p]: a(ms[p])
            if side[p]: a(side[p])
            for e in range(4):
                if n in waitat and p == 3 and e == 3:
                    a(f"s_waitcnt vmcnt({after(('t', waitat[n]))})\nv_exp_f32_e64 v{cur+4*p+e}, v{cur+4*p+e}")
                else:
                    a(f"v_exp_f32 v{cur+4*p+e}, v{cur+4*p+e}")
            pk = (P0, P0 + 2, P1, P1 + 2)[p]
            a(f"v_cvt_pk_bf16_f32 v{pk}, v{cur+4*p}, v{cur+4*p+1}\nv_cvt_pk_bf16_f32 v{pk+1}, v{cur+4*p+2}, v{cur+4*p+3}")
    a(f"s_waitcnt lgkmcnt(0)\nv_readfirstlane_b32 {T0}, v5\nv_readfirstlane_b32 {T1}, v4")
    a(mfma(O + 48, kb(15) + 12, P1, O + 48))
    a(f"s_add_u32 {T1}, {T1}, {12 if cfg.ohint and not cfg.noA else 20}\ns_min_u32 {T0}, {T0}, {T1}\ns_cmp_ge_u32 {T0}, 20\ns_cbranch_scc0 L_redw2\nL_redd2:")
    for q in range(8, 12): a(f"ds_read_b128 {V(O+4*q,4)}, v13 offset:{q*1024}")
    a("s_mov_b64 exec, 1\nds_add_u32 v2, v3")
    if cfg.ohint: a(f"s_mov_b64 exec, {S_M0}\nbuffer_store_dwordx2 v[244:245], v246, {sWS}, {S_FO} offen sc1")
    a("s_mov_b64 exec, -1")
    stamp(a, 9)
    OO = O + 48
    sc_ = cfg.nopk & 2
    for q in range(0, 16, 2): pk2(a, "add", O+q, O+q, O+16+q, scalar=sc_)
    for q in range(0, 16, 2): pk2(a, "add", OO+q, OO+q, O+q, scalar=sc_)
    a("s_waitcnt lgkmcnt(1)")
    for q in (12, 0, 2, 4, 6, 8, 10, 14): pk2(a, "add", OO+q, OO+q, O+32+q, scalar=sc_)
    a(f"""v_mov_b32 v10, v{OO+12}
v_mov_b32 v11, v{OO+12}
v_mul_f32 v12, v{OO}, v{OO+1}
v_mul_f32 v13, v{OO+2}, v{OO+3}
v_permlane32_swap_b32 v10, v11
v_fma_f32 v12, v{OO+4}, v{OO+5}, v12
v_fma_f32 v13, v{OO+6}, v{OO+7}, v13
v_rcp_f32 v10, v11
v_fma_f32 v12, v{OO+8}, v{OO+9}, v12
v_fma_f32 v13, v{OO+10}, v{OO+11}, v13
v_cmp_le_f32 s[70:71], {S_LO}, v11
v_fma_f32 v12, v{OO+12}, v{OO+13}, v12
v_fma_f32 v13, v{OO+14}, v{OO+15}, v13
v_cmp_ge_f32 s[72:73], {S_HI}, v11
v_add_f32 v12, v12, v13
v_cmp_class_f32 vcc, v12, {S_CL}
s_and_b64 s[70:71], s[70:71], s[72:73]
s_and_b64 vcc, vcc, s[70:71]
s_cmp_eq_u64 vcc, exec""")
    if cfg.force_fb: a("s_cmp_eq_u32 0, 1")
    a(f"s_cbranch_scc0 L_fallback\nL_fbdone:\nv_mov_b32 v11, v10")
    for hf in range(2):
        for q in range(8*hf, 8*hf+8, 2): pk2(a, "mul", OO+q, OO+q, 10, scalar=sc_)
        for q in range(4*hf, 4*hf+4): a(f"v_cvt_pk_bf16_f32 v{O+q}, v{OO+2*q}, v{OO+2*q+1}")
        if hf: a(f"s_mov_b32 exec_lo, 0\nv_mov_b32 v{O+6}, 0\ns_mov_b32 exec_lo, -1")
        if cfg.ohint: a(f"v_min_u32 v{O+4*hf}, -2, v{O+4*hf}")
        a(f"buffer_store_dwordx4 {V(O+4*hf,4)}, v7, {sWS}, {S_OB} offen offset:{1024*hf} sc1")
    stamp(a, 10)
    S_BP, S_CNT, S_DT = "s70", "s71", "s72"
    GS = 144; GC = 176; ZR = 196; G = 16; OL = 196; AR = 128
    S_O0, S_O1, S_FH, S_RT, S_CLM = "s73", "s74", "s75", "s76", "s77"
    a(f"""s_lshl_b32 {S_BP}, {S_XCD}, 3
s_lshr_b32 {T0}, {S_IDX}, 2
s_add_u32 {S_BP}, {S_BP}, {T0}
s_and_b32 {T1}, {S_IDX}, 3
s_cmp_ge_u32 {T1}, 2
s_cselect_b32 {S_CNT}, 3, 4
s_lshl_b32 {S_DT}, {T1}, 2
s_cmp_eq_u32 {T1}, 3
s_cselect_b32 {S_DT}, 11, {S_DT}
s_add_u32 {S_DT}, {S_DT}, {S_W4}
s_cmp_ge_u32 {S_W4}, {S_CNT}
s_cbranch_scc1 L_bend
s_setprio {cfg.fprio}
v_bfe_u32 v5, v1, 2, 1
v_lshlrev_b32 v5, 4, v5
v_bfe_u32 v6, v1, 3, 2
v_lshl_add_u32 v5, v6, 2, v5
v_and_b32 v6, 3, v1
v_add_u32 v5, v5, v6
s_lshl_b32 {T0}, {S_DT}, 5
v_add_u32 v5, {T0}, v5                    ; d
v_lshlrev_b32 v9, 31, v5
v_xor_b32 v9, 0.5, v9                     ; 0.5*(-1)^d
v_cvt_f32_u32 v5, v5
v_mul_f32 v5, {lit(1/448)}, v5
v_lshrrev_b32 v4, 5, v1
v_cvt_f32_u32 v6, v4
v_mul_f32 v6, v5, v6
v_mul_f32 v6, 4.0, v6
v_mul_f32 v{GC}, {lit(16.0)}, v5
v_cos_f32 v{GC}, v{GC}""")
    for j in range(16): a(f"v_fmamk_f32 v{GS+j}, v5, {lit(float(16*(j//8) + 8*((j%8)//4) + j%4))}, v6")
    a(f"v_add_f32 v{GC}, v{GC}, v{GC}")
    for j in range(16): a(f"v_sin_f32_e64 v{GS+16+j}, -v{GS+j}\nv_cos_f32 v{GS+j}, v{GS+j}")
    a(f"v_mov_b32 v{GC+1}, v{GC}")
    def ggen(q0, q1):
        a(".p2align 3")
        for q in range(q0, q1):
            rho = q % 2; st = q // 2
            cur = GS + 16*rho + 8*(st % 2); oth = GS + 16*rho + 8*((st + 1) % 2); gp = G + 4*q
            if st >= 2:
                for z in range(0, 8, 2):
                    pk2(a, "fma", cur+z, GC, oth+z, cur+z, neg="2", scalar=cfg.nopk & 8)
            for z in range(4): a(f"v_cvt_pk_bf16_f32 v{gp+z}, v{cur+2*z}, v{cur+2*z+1}")
            if st == 0:
                a(f"s_mov_b32 exec_hi, 0\nv_cvt_pk_bf16_f32 v{gp}, {'v9' if rho else '0.5'}, v{cur+1}\ns_mov_b32 exec_hi, -1")
    ggen(0, 28)
    stamp(a, 11)
    srd(a, sOUT, 16, 2048 * 1792)
    a(f"""v_add_u32 v8, {L_ZB}, v7
s_mul_i32 {T4}, {S_BP}, 1792
s_lshl_b32 {T1}, {S_DT}, 6
s_add_u32 {T4}, {T4}, {T1}""")
    if cfg.cost & 2:
        a(f"""s_lshl_b32 {T1}, {S_W4}, 11
s_add_u32 {T1}, {T1}, {L_Q}
v_and_b32 v10, 31, v1
v_lshlrev_b32 v10, 6, v10
v_lshl_add_u32 v10, v4, 5, v10
v_add_u32 v10, {T1}, v10
v_add_u32 v11, {T1}, v7
v_lshrrev_b32 v6, 2, v1
v_mul_u32_u24 v6, {64*1792}, v6
v_and_b32 v12, 3, v1
v_lshl_add_u32 v6, v12, 4, v6
s_add_u32 {T3}, {T4}, {16*64*1792}""")
    else:
        a(f"v_and_b32 v6, 31, v1\nv_mul_u32_u24 v6, {64*1792}, v6\nv_lshl_add_u32 v6, v4, 5, v6")
    lwait(a, "v2", 5, 4, 17, off=132)
    stamp(a, 13)
    order = [4*(q//4) + 2*(q % 2) + ((q//2) % 2) for q in range(28)]
    for q in range(8): a(f"ds_read_b128 {V(ZR+4*q,4)}, v8 offset:{order[q]*1024}")
    for p in range(28):
        a(f"s_waitcnt lgkmcnt({min(7, 27-p)})")
        a(mfma(AR, G + 4*p, ZR + 4*(p % 8), None if p == 0 else AR))
        if p + 8 < 28: a(f"ds_read_b128 {V(ZR+4*(p%8),4)}, v8 offset:{order[p+8]*1024}")
    osc = ("", " sc1", " nt", " sc0 sc1", " sc1 nt")[cfg.outsc]
    if cfg.odefer and not cfg.noA: lwait(a, "v2", 5, 4, 36, sleep=2, off=20)
    for hf in range(2):
        for q in range(4*hf, 4*hf+4): a(f"v_cvt_pk_bf16_f32 v{GS+q}, v{AR+2*q}, v{AR+2*q+1}")
        if cfg.cost & 2: a(f"ds_write_b128 v10, {V(GS+4*hf,4)} offset:{16*hf}")
        else: a(f"buffer_store_dwordx4 {V(GS+4*hf,4)}, v6, {sOUT}, {T4} offen offset:{16*hf}{osc}")
    if cfg.cost & 2:
        a(f"""ds_read_b128 {V(GS+8,4)}, v11
ds_read_b128 {V(GS+12,4)}, v11 offset:1024
s_waitcnt lgkmcnt(1)
buffer_store_dwordx4 {V(GS+8,4)}, v6, {sOUT}, {T4} offen{osc}
s_waitcnt lgkmcnt(0)
buffer_store_dwordx4 {V(GS+12,4)}, v6, {sOUT}, {T3} offen{osc}""")
    a("L_bend:")
    stamp(a, 12)
    dump_stamps(a, 240)
    a("s_endpgm")
    a("L_redw:")
    lwait(a, "v2", 5, 16, 2)
    a("s_branch L_redd\nL_redw2:")
    lwait(a, "v2", 5, 20, 2)
    if cfg.ohint and not cfg.noA: lwait(a, "v2", 5, 8, 39, sleep=1, off=136)
    a("s_branch L_redd2")
    for g in (1, 2, 3):
        a(f"L_gate{g}:")
        poll(a, f"v{VF}", PG[g], 14, 4, 25, sleep=2)
        a(f"s_branch L_gated{g}")
    a("L_fallback:")
    QO = Q + 24; KB = KVB; M = 15; S_SO = "s70"
    a(f"v_mov_b32 v{M}, 0xff800000\ns_mov_b32 {S_SO}, {KV}\nL_fb1:")
    for s_ in kv_loads(0, S_SO)[:2]: a(s_)
    a(f"s_add_u32 {S_SO}, {S_SO}, {TS}\ns_waitcnt vmcnt(0)")
    a(mfma(SA, KB, QO)); a(mfma(SA, KB + 4, QO + 4, SA))
    for q in range(0, 16, 2): a(f"v_max3_f32 v{M}, v{M}, v{SA+q}, v{SA+q+1}")
    a(f"""s_cmp_lt_u32 {S_SO}, {KV + 64*TS}
s_cbranch_scc1 L_fb1
v_mov_b32 v14, v{M}
v_permlane32_swap_b32 v14, v{M}
v_max_f32 v{M}, v14, v{M}
s_mov_b32 {S_SO}, {KV}""")
    for q in range(16): a(f"v_mov_b32 v{OO+q}, 0")
    a("L_fb2:")
    for s_ in kv_loads(0, S_SO): a(s_)
    a(f"s_add_u32 {S_SO}, {S_SO}, {TS}\ns_waitcnt vmcnt(0)")
    a(mfma(SA, KB, QO)); a(mfma(SA, KB + 4, QO + 4, SA))
    for q in range(16): a(f"v_sub_f32 v{SA+q}, v{SA+q}, v{M}")
    for q in range(16): a(f"v_exp_f32 v{SA+q}, v{SA+q}")
    for q in range(8): a(f"v_cvt_pk_bf16_f32 v{P0+q}, v{SA+2*q}, v{SA+2*q+1}")
    a(mfma(OO, KB + 8, P0, OO)); a(mfma(OO, KB + 12, P1, OO))
    a(f"""s_cmp_lt_u32 {S_SO}, {KV + 64*TS}
s_cbranch_scc1 L_fb2
v_mov_b32 v10, v{OO+12}
v_mov_b32 v11, v{OO+12}
v_permlane32_swap_b32 v10, v11
v_rcp_f32 v10, v11
s_branch L_fbdone""")

def role_A(a):
    FB = 16; GS0 = 48; M = 72; F = 88; ACC = 200; TMP = 216
    S_BP = "s78"
    S_CG, S_CNT, S_CB, S_DT, S_TASK, S_K1 = "s79", "s80", "s81", "s82", "s83", "s73"
    S_B, S_KT16 = S_BP, S_DT
    (PN, _, _, P_TST, P_W, P_F1, P_TLD, P_TBW, P_TBR, P_TTW, P_TTR, P_UST, P_F2, P_WOD, P_WOR, P_WOR2,
     P_ZW0, P_ZW1, P_PF, P_BC, P_PS, _, P_LS, P_DUM) = range(232, 256)
    sc = 1.0 / (2048 * 448)
    def albar(code): lbar(a, "v14", "v15", P_LS, code, sleep=1)
    def burst(items, th):
        a("s_setprio 0")
        for q, it in enumerate(items):
            if q >= th: a(f"s_waitcnt vmcnt({th-1})")
            a(it)
        a(f"s_setprio {cfg.aprio}")
    SB = "s[74:75]"
    def stage_arrive(k):
        L = a.lab("arr")
        a(f"""s_waitcnt vmcnt(0)
s_mov_b64 exec, 1
ds_add_rtn_u32 v{P_LS}, v14, v15 offset:8
s_mov_b64 exec, -1
s_waitcnt lgkmcnt(0)
v_readfirstlane_b32 {T0}, v{P_LS}
s_cmp_eq_u32 {T0}, {4*k+3}
s_cbranch_scc0 {L}
s_mov_b32 {T0}, 1
s_lshl_b32 {T1}, {S_XCD}, 7
s_add_u32 {T1}, {T1}, {k*1024}
s_atomic_add {T0}, {SB}, {T1} glc
s_waitcnt lgkmcnt(0)
s_sub_u32 {T0}, {T0}, s62
s_cmp_eq_u32 {T0}, 31
s_cbranch_scc0 {L}
s_mov_b32 {T1}, {FA1 + 2048 + k*8192}
s_mov_b64 exec, {-1 if cfg.allpoll else 0xffff}
buffer_atomic_add v15, v{P_PF}, {sWS}, {T1} offen sc1
s_mov_b64 exec, -1
{L}:""")
    def stage_wait(k, pre):
        if cfg.ko & 4:
            a("s_waitcnt lgkmcnt(0)"); return
        L, L2, L3 = a.lab("sw"), a.lab("sw"), a.lab("sw")
        if not cfg.allpoll: a(f"s_cmp_eq_u32 {S_W4}, 0\ns_cbranch_scc0 {L2}")
        a(f"""s_and_b32 {T1}, s2, 15
s_lshl_b32 {T2}, {S_W4}, 4
s_add_u32 {T1}, {T1}, {T2}
s_lshl_b32 {T1}, {T1}, 7
s_add_u32 {T1}, {T1}, {2048 + k*8192}
s_add_u32 {T2}, s62, 8
s_mov_b32 {S_TO}, {cfg.poll_limit}
s_waitcnt lgkmcnt(0)
s_sleep {pre}
{L}:
s_mov_b32 {T0}, 0
s_atomic_or {T0}, {SB}, {T1} glc
s_waitcnt lgkmcnt(0)
s_cmp_eq_u32 {T0}, {T2}
s_cbranch_scc1 {L}d
s_sleep {cfg.bsleep}
s_sub_u32 {S_TO}, {S_TO}, 1
s_cbranch_scc0 {L}
s_mov_b32 {S_TO}, 32
s_branch L_fail
{L}d:""")
        if cfg.allpoll: return
        a(f"s_mov_b64 exec, 1\nds_add_u32 v14, v15 offset:12\ns_mov_b64 exec, -1\ns_branch {L3}\n{L2}:")
        lwait(a, "v14", P_LS, k + 1, 33, sleep=cfg.lsl, off=12)
        a(f"{L3}:")
    def pace():
        if cfg.pace: a(f"s_sleep {cfg.pace}")
    a(f"""L_roleA:
v_mov_b32 v3, 0
v_mov_b32 v2, {L_SYNC}
ds_write2_b32 v2, v3, v3 offset0:0 offset1:32
ds_write2_b32 v2, v3, v3 offset0:1 offset1:2
ds_write2_b32 v2, v3, v3 offset0:3 offset1:33
ds_write2_b32 v2, v3, v3 offset0:4 offset1:34
ds_write2_b32 v2, v3, v3 offset0:5 offset1:35
ds_write2_b32 v2, v3, v3 offset0:8 offset1:9
ds_write2_b32 v2, v3, v3 offset0:10 offset1:11
s_setprio {cfg.aprio}
s_mov_b32 {S_BAR}, 0
s_lshl_b32 {S_BP}, {S_XCD}, 3
s_lshr_b32 {T0}, {S_IDX}, 2
s_add_u32 {S_BP}, {S_BP}, {T0}
s_and_b32 {S_CG}, {S_IDX}, 3
s_cmp_ge_u32 {S_CG}, 2
s_cselect_b32 {S_CNT}, 3, 4
s_lshl_b32 {S_CB}, {S_CG}, 2
s_cmp_eq_u32 {S_CG}, 3
s_cselect_b32 {S_CB}, 11, {S_CB}
s_add_u32 {S_DT}, {S_CB}, {S_W4}
v_and_b32 v2, 31, v1                      ; v2 = lane%32
v_lshrrev_b32 v3, 5, v1                   ; v3 = half
v_cvt_f32_u32 v4, v3
s_waitcnt lgkmcnt(0)
{st0()}""")
    if cfg.touch:
        tl = [["s[10:11], 0", "s[4:5], 0", "s[6:7], 0"], ["s[20:21], s76", "s[8:9], 0", "s[14:15], 0"],
              ["s[20:21], s77", "s[16:17], 0", "s[16:17], s76"], ["s[20:21], s74", "s[20:21], s75"]]
        a(f"s_cmp_ge_u32 {S_IDX}, {cfg.touch}\ns_cbranch_scc1 L_tch\ns_mov_b32 s76, 0x200000\ns_mov_b32 s77, 0x600000\ns_mov_b32 s74, 0x400000\ns_mov_b32 s75, 0x800000")
        for w in range(4):
            a(f"s_cmp_lg_u32 {S_W4}, {w}\ns_cbranch_scc1 L_tch{w}")
            for t_ in tl[w]: a(f"s_load_dword s72, {t_}")
            a(f"L_tch{w}:")
        a("L_tch:")
    def angles(n, vstep, vbase, offs, dst=TMP):
        for j in range(n): a(f"v_fmamk_f32 v{dst+j}, {vstep}, {lit(float(offs[j]))}, {vbase}")
    def gen_F():
        A0 = TMP; A1 = TMP + 8; C2 = TMP + 16
        a(f"""v_and_b32 v5, 15, v1
s_lshl_b32 {T0}, {S_KT16}, 4
v_add_u32 v5, {T0}, v5                    ; k
v_bfe_u32 v6, v1, 4, 1
v_lshl_add_u32 v7, v5, 1, v6
v_cmp_eq_u32 vcc, 1, v7
v_mov_b32 v7, 224
v_cndmask_b32 v5, v5, v7, vcc
v_cndmask_b32 v6, v6, 0, vcc
v_cvt_f32_u32 v5, v5
v_cvt_f32_u32 v6, v6
v_mul_f32 v5, {lit(1/448)}, v5            ; kf
v_mul_f32 v6, {lit(0.25)}, v6
v_mul_f32 v7, v5, v4
v_fmamk_f32 v6, v7, {lit(8.0)}, v6
v_mul_f32 v{C2}, {lit(16.0)}, v5
v_cos_f32 v{C2}, v{C2}""")
        angles(16, "v5", "v6", [j % 8 + 16 * (j // 8) for j in range(16)])
        a(f"v_add_f32 v{C2}, v{C2}, v{C2}")
        for j in range(16): a(f"v_cos_f32 v{A0+j}, v{A0+j}")
        a(f"v_mov_b32 v{C2+1}, v{C2}\ns_barrier\n.p2align 3")
        for m in range(28):
            cur = A0 if m % 2 == 0 else A1; oth = A1 if m % 2 == 0 else A0
            if m >= 2:
                for q in range(0, 8, 2):
                    a(f"v_pk_fma_f32 {V(cur+q,2)}, {V(C2,2)}, {V(oth+q,2)}, {V(cur+q,2)} neg_lo:[0,0,1] neg_hi:[0,0,1]")
            for q in range(4): a(f"v_cvt_pk_bf16_f32 v{F+4*m+q}, v{cur+2*q}, v{cur+2*q+1}")
    def gen_M():
        a(f"""v_cvt_f32_u32 v5, v2
s_and_b32 {T0}, {S_W4}, 1
s_lshl_b32 {T0}, {T0}, 10
s_add_u32 {T0}, {T0}, {S_B}
v_lshl_add_u32 v6, v3, 8, {T0}
v_cvt_f32_u32 v6, v6
v_mul_f32 v6, v6, v5
s_cmp_ge_u32 {S_W4}, 2
s_cselect_b32 {T0}, {lit(0.25)}, 0
v_mov_b32 v7, {T0}
v_fmamk_f32 v6, v6, {lit(1/2048)}, v7
v_mul_f32 v5, {lit(1/32)}, v5""")
        angles(8, "v5", "v6", [8*(j//4) + j%4 for j in range(8)])
        for j in range(8): a(f"v_cos_f32 v{TMP+j}, v{TMP+j}")
        for q in range(4): a(f"v_cvt_pk_bf16_f32 v{ACC+8+q}, v{TMP+2*q}, v{TMP+2*q+1}")
    def gen_MS():
        a(f"""v_lshlrev_b32 v5, 6, v2
v_add_u32 v5, {S_BP}, v5
v_cvt_f32_u32 v5, v5
v_mul_f32 v5, {lit(1/2048)}, v5
s_lshl_b32 {T0}, {S_W4}, 3
v_lshl_add_u32 v6, v3, 2, {T0}
v_cvt_f32_u32 v6, v6
v_mul_f32 v6, v5, v6""")
        angles(4, "v5", "v6", range(4), TMP + 8)
        for j in range(4): a(f"v_cos_f32 v{TMP+2*j}, v{TMP+8+j}\nv_sin_f32 v{TMP+2*j+1}, v{TMP+8+j}")
        a(f"v_mov_b32 v6, {lit(2*sc)}\nv_mov_b32 v7, v6")
        for j in range(4): pk2(a, "mul", TMP+2*j, TMP+2*j, 6, scalar=cfg.nopk & 16)
        for j in range(4):
            a(f"v_cvt_pk_bf16_f32 v{48+j}, v{TMP+2*j}, v{TMP+2*j+1}\nv_cvt_pk_bf16_f32 v{52+j}, v{TMP+2*j+1}, -v{TMP+2*j}")
    def gen_FB():
        a(f"""v_and_b32 v5, 15, v1
s_lshl_b32 {T0}, {S_W4}, 4
v_add_u32 v5, {T0}, v5
v_cvt_f32_u32 v5, v5
v_mul_f32 v5, {lit(1/64)}, v5
v_bfe_u32 v6, v1, 4, 1
v_cvt_f32_u32 v6, v6
v_mul_f32 v6, {lit(0.25)}, v6
v_mul_f32 v7, v5, v4
v_fmamk_f32 v6, v7, {lit(4.0)}, v6""")
        C2 = TMP + 16
        a(f"v_mul_f32 v{C2}, {lit(8.0)}, v5\nv_cos_f32 v{C2}, v{C2}")
        angles(8, "v5", "v6", [8*(j//4) + j%4 for j in range(8)], TMP + 20)
        a(f"v_add_f32 v{C2}, v{C2}, v{C2}")
        for j in range(8): a(f"v_cos_f32 v{TMP+2*j}, v{TMP+20+j}\nv_sin_f32 v{TMP+2*j+1}, v{TMP+20+j}")
        a(f"v_mov_b32 v{C2+1}, v{C2}")
        for m in range(8):
            cur = TMP + 8*(m % 2); oth = TMP + 8*((m + 1) % 2)
            if m >= 2:
                for q in range(0, 8, 2):
                    pk2(a, "fma", cur+q, C2, oth+q, cur+q, neg="2", scalar=cfg.nopk & 16)
            for q in range(4): a(f"v_cvt_pk_bf16_f32 v{FB+4*m+q}, v{cur+2*q}, v{cur+2*q+1}")
    def gen_addr():
        a(f"""v_mov_b32 v{PN+2}, 0
v_lshlrev_b32 v7, 4, v1                   ; v7 = lane*16
v_and_b32 v6, 3, v1
v_lshrrev_b32 v5, 2, v1
v_lshlrev_b32 v5, 16, v5
v_lshl_add_u32 v{P_TST}, v6, 4, v5
s_lshl_b32 {T1}, {S_W4}, 11
s_add_u32 {T0}, {T1}, {L_TT}
v_add_u32 v{P_TTR}, {T0}, v7
v_lshlrev_b32 v5, 6, v2
v_lshl_add_u32 v5, v3, 4, v5
v_add_u32 v{P_TTW}, {T0}, v5
s_lshl_b32 {S_TASK}, {S_XCD}, 5
s_add_u32 {S_TASK}, {S_TASK}, {S_IDX}
s_lshr_b32 {T0}, {S_TASK}, 3
s_lshl_b32 {T2}, {S_W4}, 9
s_add_u32 {T0}, {T0}, {T2}
s_mul_i32 {T0}, {T0}, 225
s_lshl_b32 {T2}, {S_HH}, 5
s_add_u32 {T0}, {T0}, {T2}
v_mul_u32_u24 v5, {128*225}, v3
v_add3_u32 v5, v5, v2, {T0}
v_lshlrev_b32 v{P_W}, 1, v5
v_bfe_u32 v12, v1, 4, 1
v_lshlrev_b32 v5, 2, v2
v_lshl_add_u32 v{P_TLD}, v3, 9, v5
v_lshl_add_u32 v{P_UST}, v3, 17, v5
v_lshl_add_u32 v{P_F2}, v3, 18, v5
v_add_u32 v{P_TBR}, {L_TB}, v7
v_add_u32 v{P_TBW}, {T1}, v{P_TBR}
s_add_u32 {S_K1}, {S_W4}, 3
s_cmp_eq_u32 {S_W4}, 0
s_cselect_b32 {S_K1}, 7, {S_K1}
s_lshl_b32 {T0}, {S_W4}, 12
v_add_u32 v{P_ZW0}, {T0}, v{P_TBR}
s_lshl_b32 {T0}, {S_K1}, 12
v_add_u32 v{P_ZW1}, {T0}, v{P_TBR}
v_bfe_u32 v13, v1, 2, 2
v_lshrrev_b32 v5, 4, v1
v_xor_b32 v{P_WOD}, v13, v5
s_sub_u32 {T0}, {S_CNT}, 1
v_min_u32 v{P_WOD}, {T0}, v{P_WOD}
v_add_u32 v{P_WOD}, {S_CB}, v{P_WOD}
v_lshlrev_b32 v{P_WOD}, 6, v{P_WOD}
v_mul_u32_u24 v5, 896, v5
v_add_u32 v5, v5, v{P_WOD}
v_lshl_add_u32 v5, v6, 4, v5
s_mul_i32 {T0}, {S_W4}, {4*896}
v_add_u32 v{P_WOD}, {T0}, v5
v_xor_b32 v5, {S_W4}, v13
v_lshlrev_b32 v5, 6, v5
v_lshl_add_u32 v5, v13, 8, v5
v_and_b32 v6, 1, v1
v_lshl_add_u32 v5, v6, 5, v5
v_lshl_add_u32 v5, v12, 4, v5
v_bfe_u32 v6, v1, 1, 1
v_lshl_add_u32 v5, v6, 3, v5
v_add_u32 v{P_WOR2}, {L_X}, v5
v_lshl_add_u32 v{P_WOR}, v3, 10, v{P_WOR2}""")
    pieces = [gen_F, gen_FB, gen_M, gen_MS, gen_addr]
    assert cfg.pre >= 1
    def wq_warm():
        a(f"""s_cmp_eq_u32 {S_LC}, 7
s_cbranch_scc0 L_pf1
v_mul_u32_u24 v5, 2688, v1
s_mul_i32 {T0}, {T5}, 3
s_add_u32 {T0}, {T0}, {S_RR}
s_lshl_b32 {T0}, {T0}, 7
s_mul_i32 {T1}, {S_W4}, {128*2688}
s_add_u32 {T0}, {T0}, {T1}
s_add_u32 {T1}, {T0}, {64*2688}
buffer_load_dword v{P_DUM}, v5, {sWQKV}, {T0} offen
buffer_load_dword v{P_DUM}, v5, {sWQKV}, {T1} offen
L_pf1:""")
    def xa_warm():
        a(f"""s_cmp_eq_u32 {S_LC}, 7
s_cbranch_scc0 L_pf6
v_lshlrev_b32 v5, 7, v1
s_lshl_b32 {T0}, {S_RR}, 2
s_add_u32 {T0}, {T0}, {S_W4}
s_mul_i32 {T0}, {T0}, {2*64*896}
s_mul_i32 {T1}, {S_XCD}, {8*896}
s_add_u32 {T0}, {T0}, {T1}
s_add_u32 {T1}, {T0}, {64*896}
s_bfm_b64 exec, 56, 0
buffer_load_dword v{P_DUM}, v5, {sX}, {T0} offen
buffer_load_dword v{P_DUM}, v5, {sX}, {T1} offen
s_mov_b64 exec, -1
L_pf6:""")
    def kv_touch():
        srd(a, sWS, 20, WS_SIZE)
        a(f"""s_lshl_b32 {T0}, s2, 2
s_add_u32 {T0}, {T0}, {S_W4}
s_mul_i32 {T0}, {T0}, {30*128}
s_add_u32 {T0}, {T0}, {KV}
v_lshlrev_b32 v5, {6 if cfg.kvt64 else 7}, v1
v_mov_b32 v6, 0
s_bfm_b64 exec, {60 if cfg.kvt64 else 30 - (cfg.kvsn if cfg.kvs else 0)}, {cfg.kvsn if cfg.kvs else 0}
buffer_atomic_or v6, v5, {sWS}, {T0} offen sc1
s_mov_b64 exec, -1""")
    if cfg.kvt == 9: kv_touch()
    def mall_warm():
        a(f"""s_cmp_eq_u32 {S_LC}, 7
s_cbranch_scc0 L_pf7
s_lshl_b32 {T0}, {S_XCD}, 4
s_lshl_b32 {T1}, {S_RR}, 2
s_add_u32 {T0}, {T0}, {T1}
s_add_u32 {T0}, {T0}, {S_W4}
v_lshlrev_b32 v5, 7, v1""")
        if cfg.mw & 1:
            a(f"""v_lshrrev_b32 v6, 3, v1
v_mul_u32_u24 v6, 2688, v6
v_and_b32 v7, 7, v1
v_min_u32 v7, 6, v7
v_lshl_add_u32 v6, v7, 7, v6
s_mul_i32 {T1}, {T0}, {4*2688}
s_mov_b64 exec, 0xffffffff
buffer_load_dword v{P_DUM}, v6, {sWQKV}, {T1} offen""")
        if cfg.mw & 2: a(f"s_mul_i32 {T1}, {T0}, {25*128}\ns_bfm_b64 exec, 25, 0\nbuffer_load_dword v{P_DUM}, v5, {sWO}, {T1} offen")
        if cfg.mw & 4: a(f"s_mul_i32 {T1}, {T0}, {57*128}\ns_bfm_b64 exec, 57, 0\nbuffer_load_dword v{P_DUM}, v5, {sWR}, {T1} offen")
        if cfg.mw & 8: a(f"s_mul_i32 {T1}, {T0}, {57*128}\ns_bfm_b64 exec, 57, 0\nbuffer_load_dword v{P_DUM}, v5, {sWI}, {T1} offen")
        if cfg.mw & 16: a(f"s_mul_i32 {T1}, {T0}, {112*128}\ns_bfm_b64 exec, 56, 0\nbuffer_load_dword v{P_DUM}, v5, {sX}, {T1} offen")
        a("s_mov_b64 exec, -1\nL_pf7:")
    if cfg.spf:
        a(f"""s_lshl_b32 {T0}, s2, 2
s_add_u32 {T0}, {T0}, {S_W4}
s_mul_i32 {T1}, {T0}, {14*128}
s_add_u32 s76, s4, {T1}
s_addc_u32 s77, s5, 0
s_mul_i32 {T1}, {T0}, 900
s_add_u32 s70, s6, {T1}
s_addc_u32 s71, s7, 0
s_add_u32 s74, s8, {T1}
s_addc_u32 s75, s9, 0""")
    if cfg.kvs:
        srd(a, sWS, 20, WS_SIZE)
        a(f"""s_lshl_b32 s72, s2, 2
s_add_u32 s72, s72, {S_W4}
s_mul_i32 s72, s72, {30*128}
s_add_u32 s72, s72, {KV}
v_lshlrev_b32 v12, 7, v1
v_mov_b32 v13, 0""")
    n0 = len(a.L)
    for q in range(cfg.pre):
        if q == 4: n1 = len(a.L)
        pieces.pop(0)()
        if q == 0:
            srd(a, sWQKV, 12, 448 * 2688); srd(a, sX, 4, 0 if cfg.ko & 16 else 2048 * 896)
            srd(a, sWR, 6, 0 if cfg.ko & 1 else 2048 * 450); srd(a, sWI, 8, 0 if cfg.ko & 1 else 2048 * 450); srd(a, sWO, 14, 0 if cfg.ko & 2 else 448 * 896)
        if cfg.mw and cfg.mwpos == q + 1: mall_warm()
        if cfg.kvt == q + 1: kv_touch()
        if cfg.xawarm == q + 1: xa_warm()
        if cfg.wqwarm == q + 1: wq_warm()
    if cfg.kvs:
        from asmlib import Ins
        per = cfg.kvsn // cfg.kvs
        lo = n0 + cfg.kvs0; hi = n1
        for q in reversed(range(cfg.kvs)):
            at = lo + (hi - lo) * q // cfg.kvs
            while a.L[at].kind not in ("valu",) or a.L[at-1].kind not in ("valu",): at += 1
            a.L[at:at] = [Ins(f"s_bfm_b64 exec, {per}, {q*per}"), Ins(f"buffer_atomic_or v13, v12, {sWS}, s72 offen sc1"), Ins("s_mov_b64 exec, -1")]
    if cfg.spf:
        from asmlib import Ins
        pf = [f"s_load_dword s72, s[76:77], {q*128}" for q in range(14)]
        if cfg.spf >= 2: pf += [f"s_load_dword s72, s[{b}:{b+1}], {q*128}" for q in range(7) for b in (70, 74)]
        lo = n0 + cfg.spf0; hi = len(a.L)
        for q in reversed(range(len(pf))): a.L.insert(lo + (hi - lo) * q // len(pf), Ins(pf[q]))
    stamp(a, 1)
    srd(a, sWS, 20, WS_SIZE)
    srd(a, sOUT, 16, 2048 * 1792)
    S_XA, S_WQL, S_WQG = "s70", "s71", "s72"
    XD = 70
    a(f"""v_lshrrev_b32 v6, 3, v1
v_and_b32 v5, 7, v1
v_lshrrev_b32 v8, 4, v1
v_xor_b32 v5, v5, v8
s_and_b32 {T0}, {S_W4}, 1
s_lshl_b32 {T0}, {T0}, 2
v_xor_b32 v5, {T0}, v5
v_mul_u32_u24 v6, {64*896}, v6
s_mul_i32 {T1}, {S_W4}, {8*64*896}
s_mul_i32 {T2}, {S_B}, 896
s_add_u32 {T1}, {T1}, {T2}
v_add_u32 v6, {T1}, v6
v_lshl_add_u32 v{XD}, v5, 4, v6
s_lshl_b32 {T0}, {S_W4}, 10
s_add_u32 {S_XA}, {T0}, {L_X}
s_mov_b32 {T2}, {L_X}""")
    x_read_addrs(a, 8, "v1", T2, TMP)
    a(f"""v_mov_b32 v14, {L_SYNC+128}
v_mov_b32 v15, 1
v_mov_b32 v{P_BC}, {L_SYNC}
s_lshl_b32 {T1}, {S_CG}, 1""")
    lwait(a, f"v{P_BC}", P_LS, 4, 34, sleep=1)
    a(f"""ds_read_b64 {V(PN,2)}, v{P_BC} offset:64
v_lshlrev_b32 v{P_PF}, 7, v1
s_add_u32 s74, s20, {FA1}
s_addc_u32 s75, s21, 0
s_waitcnt lgkmcnt(0)
v_readfirstlane_b32 s62, v{PN}
v_readfirstlane_b32 s63, v{PN+1}
{f"s_lshr_b32 {T0}, s62, 28; s_lshl_b32 {T0}, {T0}, 24; s_add_u32 s24, s20, {T0}; s_addc_u32 s25, s21, 0; s_add_u32 s74, s74, {T0}; s_addc_u32 s75, s75, 0".replace("; ", chr(10)) if cfg.diagrot else ""}
s_lshl_b32 {T0}, s2, 2
s_add_u32 {T0}, {T0}, {S_W4}
s_cmp_lg_u32 {T0}, 0
s_cbranch_scc1 L_noinit
s_mov_b32 {T0}, {FA1}
buffer_store_dwordx2 {V(PN,2)}, v{P_PF}, {sWS}, {T0} offen offset:2048 sc1
s_mov_b32 {T2}, {FA1 + 8192}
buffer_store_dwordx2 {V(PN,2)}, v{P_PF}, {sWS}, {T2} offen offset:2048 sc1
s_mov_b64 exec, 0xff00
buffer_store_dwordx2 {V(PN,2)}, v{P_PF}, {sWS}, {T0} offen sc1
s_waitcnt vmcnt(0)
s_mov_b64 exec, 0xff
buffer_store_dwordx2 {V(PN,2)}, v{P_PF}, {sWS}, {T0} offen sc1
s_mov_b64 exec, -1
L_noinit:""")
    def wpull():
        L1, L2 = a.lab("wp"), a.lab("wp")
        a(f"""s_lshl_b32 {T2}, {S_IDX}, 1
s_lshr_b32 {T3}, {S_W4}, 1
s_add_u32 {T2}, {T2}, {T3}
s_mul_i32 {T2}, {T2}, 14400
s_mul_i32 {T3}, {S_XCD}, 1800
s_add_u32 {T2}, {T2}, {T3}
s_mov_b64 exec, 0x7fff
s_bitcmp1_b32 {S_W4}, 0
s_cbranch_scc1 {L1}
buffer_load_ushort v{P_DUM}, v{P_PF}, {sWR}, {T2} offen{' nt' if cfg.ntp else ''}
s_branch {L2}
{L1}:
buffer_load_ushort v{P_DUM}, v{P_PF}, {sWI}, {T2} offen{' nt' if cfg.ntp else ''}
{L2}:
s_mov_b64 exec, -1""")
    stamp(a, 2)
    if cfg.wpf == 2: wpull()
    lwait(a, f"v{P_BC}", P_LS, 4 if cfg.kvt != 7 else 1, 20, sleep=1, off=8)
    if cfg.kvt in (7, 8): kv_touch()
    if cfg.xas:
        a(f"s_mul_i32 {T2}, {S_H}, 7\ns_bfe_u32 {T2}, {T2}, 0x30001\ns_cmp_gt_u32 {T2}, 4\ns_cbranch_scc0 L_xago")
        lwait(a, f"v{P_BC}", P_LS, 4 * cfg.xas, 30, sleep=1, off=4)
        a("L_xago:")
    for c in range(7):
        if c == cfg.xae:
            if cfg.wpf == 1: wpull()
            if cfg.xalate == 1: lwait(a, f"v{P_BC}", P_LS, 4, 38, sleep=1, off=12)
            elif cfg.xalate == 2: lwait(a, f"v{P_BC}", P_LS, 9, 38, sleep=1)
            elif cfg.xafirst: lwait(a, f"v{P_BC}", P_LS, 8, 38)
            else: lwait(a, f"v{P_BC}", P_LS, 4, 38, sleep=1, off=16)
        a(f"""s_add_u32 {T2}, {T1}, 1
s_lshr_b32 {T3}, {T2}, 1
s_lshl_b32 {T3}, {T3}, 14
s_and_b32 {T4}, {T1}, 1
s_lshl_b32 {T4}, {T4}, 12
s_sub_u32 {T3}, {T3}, {T4}
s_add_u32 m0, {S_XA}, {T3}
s_lshl_b32 {T4}, {T1}, 7
buffer_load_dwordx4 v{XD}, {sX}, {T4} offen{' nt' if cfg.nta else ''} lds
s_cmp_eq_u32 {T2}, 7
s_cselect_b32 {T1}, 0, {T2}""")
    if cfg.wpf == 4: wpull()
    for p_ in pieces: p_()
    pieces = []
    assert not pieces
    a(f"""v_add_u32 v13, {L_M}, v7
s_lshl_b32 {T0}, {S_W4}, 10
v_add_u32 v5, {T0}, v13
ds_write_b128 v5, {V(ACC+8,4)}
s_cmp_eq_u32 {S_W4}, 0
s_cbranch_scc0 L_chkd
s_lshl_b32 {T1}, {S_XCD}, 7
s_mov_b32 {S_TO}, {cfg.poll_limit}
L_chk:
s_load_dwordx2 s[76:77], {SB}, {T1} glc
s_waitcnt lgkmcnt(0)
s_sub_u32 s76, s76, s62
s_lshr_b32 s76, s76, 5
s_xor_b32 s77, s77, s63
s_or_b32 s76, s76, s77
s_cbranch_scc0 L_chkd
s_sleep 4
s_sub_u32 {S_TO}, {S_TO}, 1
s_cbranch_scc0 L_chk
s_mov_b32 {S_TO}, 35
s_branch L_fail
L_chkd:""")
    WW = 136 if cfg.woearly else 72; AC = 152; FR = 168; TP = 200
    wl = []
    for r in range(8):
        wl.append(f"s_mov_b32 {T0}, {14400*(8*(r//4) + r%4)}\nbuffer_load_short_d16_hi v{WW+r}, v{P_W}, {sWR}, {T0} offen{' nt' if cfg.ntw else ''}")
        wl.append(f"buffer_load_short_d16_hi v{WW+8+r}, v{P_W}, {sWI}, {T0} offen{' nt' if cfg.ntw else ''}")
    if cfg.wearly:
        for s_ in wl: a(s_)
        a("s_waitcnt vmcnt(16)")
    else: a(f"s_waitcnt vmcnt({1 if cfg.wpf == 4 else 0})")
    stamp(a, 3)
    if cfg.noA == 1:
        a(f"s_mov_b64 exec, 1\nds_add_u32 v14, v15 offset:4\ns_mov_b64 exec, -1")
        stamp(a, 12); dump_stamps(a, 16); a("s_endpgm")
    albar(16)
    RG = cfg.ring
    def xreg(m): return (TMP + 4*m if m < 4 else 72 + 4*(m - 4)) if m < RG else F + 4*(m - RG)
    def xr(m): return f"ds_read_b128 {V(xreg(m),4)}, v{8+m%4} offset:{((m//4+1)>>1)*16384 - ((m//4)&1)*4096}"
    assert not (cfg.wearly and RG > 4)
    for m in range(RG): a(xr(m))
    P1 = F; P2 = F + 16; XP = TMP; M = F + 32
    if cfg.mprio == 0: a("s_setprio 0")
    nds = RG
    for m in range(28):
        a(f"s_waitcnt lgkmcnt({nds - m - 1})")
        a(mfma(ACC, xreg(m), F + 4*m, None if m == 0 else ACC))
        if m + RG < 28: a(xr(m + RG)); nds += 1
        elif m >= 24: a(f"ds_read_b128 {V(M+4*(m-24),4)}, v13 offset:{(m-24)*1024}"); nds += 1
    a(f"s_setprio {cfg.aprio}")
    lwait(a, f"v{P_BC}", P_LS, 8, 27, sleep=1)
    a(f"""s_lshl_b32 {T0}, {S_W4}, 11
s_add_u32 {T0}, {T0}, {L_MS}
v_add_u32 v5, {T0}, v7
ds_write_b128 v5, v[48:51]
ds_write_b128 v5, v[52:55] offset:1024
s_lshr_b32 {T0}, {S_KT16}, 1
s_lshl_b32 {T0}, {T0}, 13
s_lshl_b32 {T1}, {S_B}, 7
s_add_u32 {T1}, {T1}, {TBUF}
s_add_u32 {T0}, {T0}, {T1}
s_and_b32 {T2}, {S_KT16}, 1
s_lshl_b32 {T2}, {T2}, 6
s_add_u32 {T0}, {T0}, {T2}
s_add_u32 {T2}, {T0}, {16*65536}
s_cmp_ge_u32 {S_W4}, {S_CNT}
s_cbranch_scc1 L_a1done
s_waitcnt lgkmcnt(0)""")
    for q in range(8): a(f"v_cvt_pk_bf16_f32 v{XP+q}, v{ACC+2*q}, v{ACC+2*q+1}")
    a(mfma(P1, XP, M)); a(mfma(P2, XP, M + 8)); a(mfma(P1, XP + 4, M + 4, P1)); a(mfma(P2, XP + 4, M + 12, P2))
    for r in range(0, 8, 2):
        pk2(a, "add", ACC+r, P1+r, P2+r+8, neg="1", scalar=cfg.nopk & 4); pk2(a, "add", ACC+8+r, P1+r+8, P2+r, scalar=cfg.nopk & 4)
    for r in range(8): a(f"v_cvt_pk_bf16_f32 v{XP+8+r}, v{ACC+r}, v{ACC+8+r}")
    a(f"""s_cmp_lg_u32 {S_KT16}, 0
s_cbranch_scc1 L_a1st
s_mov_b32 exec_hi, 0
v_cvt_pk_bf16_f32 v{XP+8}, v{P1}, v{P2}
v_cvt_pk_bf16_f32 v6, v{P1+8}, v{P2+8}
v_lshlrev_b32 v5, 16, v2
s_mov_b32 exec_hi, -1
L_a1st:
ds_write_b128 v{P_TTW}, {V(XP+8,4)}
ds_write_b128 v{P_TTW}, {V(XP+12,4)} offset:32
ds_read_b128 {V(XP,4)}, v{P_TTR}
ds_read_b128 {V(XP+4,4)}, v{P_TTR} offset:1024
s_mov_b32 {T4}, {T0}
s_waitcnt lgkmcnt(0)""")
    stamp(a, 1, 5)
    if cfg.tdefer: lwait(a, f"v{P_BC}", P_LS, 4, 28, sleep=1, off=12)
    if cfg.tdelay: a(f"s_sleep {cfg.tdelay}")
    if cfg.tstag:
        for q in (1, 2, 3): a(f"s_cmp_lt_u32 {S_W4}, {q}\ns_cbranch_scc1 L_tst\ns_sleep {cfg.tstag}")
        a("L_tst:")
    a(f"""s_cmp_lg_u32 {S_KT16}, 0
s_cbranch_scc1 L_a1st2
s_mov_b32 exec_hi, 0
s_add_u32 {T1}, {T1}, {7*8192}
buffer_store_dword v6, v5, {sWS}, {T1} offen sc1
s_mov_b32 exec_hi, -1
L_a1st2:
{"s_branch L_a1done" if cfg.ko & 8 else ""}
buffer_store_dwordx4 {V(XP,4)}, v{P_TST}, {sWS}, {T4} offen sc1
{"s_sleep %d" % (cfg.tstag // 2) if cfg.tstag else ""}
buffer_store_dwordx4 {V(XP+4,4)}, v{P_TST}, {sWS}, {T2} offen sc1
L_a1done:""")
    stage_arrive(0)
    stamp(a, 4)
    lwait(a, f"v{P_BC}", P_LS, 4, 29, sleep=1, off=12)
    if cfg.wdelay: a(f"s_sleep {cfg.wdelay}")
    if cfg.wpf == 3: wpull()
    if not cfg.wearly and not cfg.wlate: burst([x + (f"\ns_sleep {cfg.wpace}" if cfg.wpace else "") for x in wl], cfg.th_w)
    if cfg.wopf and not cfg.wolate:
        burst([f"""s_lshl_b32 {T0}, {S_IDX}, 2
s_add_u32 {T0}, {T0}, {S_W4}
s_mul_i32 {T0}, {T0}, {25*128}
s_bfm_b64 exec, 25, 0
buffer_load_dword v{P_DUM}, v{P_PF}, {sWO}, {T0} offen
s_mov_b64 exec, -1"""], 1)
    if cfg.ohint:
        for q in range(4): a(f"v_mov_b32 v{TP+q}, -1")
        a(f"""s_lshr_b32 {T0}, {S_XCD}, 1
s_lshl_b32 {T0}, {T0}, 2
s_add_u32 {T0}, {T0}, {S_RR}
s_lshl_b32 {T0}, {T0}, 2
s_add_u32 {T0}, {T0}, {S_W4}
s_lshl_b32 {T0}, {T0}, 4
s_add_u32 {T0}, {T0}, {S_H}
s_lshl_b32 {T0}, {T0}, 11
s_add_u32 {T0}, {T0}, {OBUF}""")
        a(f"s_mov_b32 s72, {T0}")
        marks = [f"buffer_store_dwordx4 {V(TP,4)}, v7, {sWS}, s72 offen offset:{1024*q} sc1" for q in range(2)]
        if not cfg.wolate: burst(marks, 2)
    WO = 72
    S_WOL = "s70"
    a(f"s_lshl_b32 {S_WOL}, {S_W4}, 10\ns_add_u32 {S_WOL}, {S_WOL}, {L_X}")
    def wo_list(rnd):
        return [f"s_add_u32 m0, {S_WOL}, {i*4096}\ns_mov_b32 s71, {(rnd*224 + i*16)*896}\nbuffer_load_dwordx4 v{P_WOD}, {sWO}, s71 offen lds" for i in range(14)]
    def ride(q, n=1):
        it = [q.pop(0) for _ in range(min(n, len(q)))]
        if it: burst(it, n)
        pace()
    def wo_rd(f, d, r1, r2):
        hl, mu = f // 2, f % 2
        return [f"ds_read_b64_tr_b16 {V(d+2*sec,2)}, v{r2 if (mu and sec) else r1} offset:{(28*hl + 16*mu + 8*sec)*256}" for sec in range(2)]
    def wo_reads(h):
        for f in range(16):
            for s_ in wo_rd(f, WO + 64*h + 4*f, P_WOR, P_WOR2): a(s_)
    assert cfg.allpoll
    if cfg.woearly:
        assert cfg.wlate and not cfg.wolate
        lwait(a, "v14", P_LS, 4, 45, sleep=2, off=8)
        burst(wo_list(0), cfg.th_wo)
        a("s_waitcnt vmcnt(0)")
        albar(46)
        wo_reads(0)
    stamp(a, 5)
    stage_wait(0, cfg.a2wait)
    a(f"s_lshl_b32 {T1}, {S_W4}, 11")
    stamp(a, 6)
    a(f"""s_lshl_b32 {T0}, {S_TASK}, 13
s_add_u32 {T0}, {T0}, {T1}
s_add_u32 {T0}, {T0}, {TBUF}""")
    burst([f"buffer_load_dword v{FR+q}, v{P_TLD}, {sWS}, {T0} offen offset:{(q//4)*1024 + (q%4)*128} sc1" for q in range(8)], 8)
    a(f"s_waitcnt vmcnt(0)\nds_write_b128 v{P_TBW}, {V(FR,4)}\nds_write_b128 v{P_TBW}, {V(FR+4,4)} offset:1024" if not cfg.wlate else "")
    if cfg.wlate:
        burst(wl, 24)
        a(f"s_waitcnt vmcnt(16)\nds_write_b128 v{P_TBW}, {V(FR,4)}\nds_write_b128 v{P_TBW}, {V(FR+4,4)} offset:1024")
    stamp(a, 1, 4)
    albar(6)
    stamp(a, 2, 4)
    def dft64(base):
        for m in range(8): a(f"ds_read_b128 {V(FR+4*m,4)}, v{P_TBR} offset:{base + m*1024}")
        if cfg.mprio == 0: a("s_setprio 0")
        for m in range(8):
            a(f"s_waitcnt lgkmcnt({7-m})")
            a(mfma(AC, FB + 4*m, FR + 4*m, None if m == 0 else AC))
            if cfg.mprio: ride(woq)
            elif woq: a(woq.pop(0))
        a(f"s_setprio {cfg.aprio}")
    woq = marks if cfg.wolate else wo_list(1 if cfg.woearly else 0)
    dft64(0)
    a(f"s_waitcnt vmcnt({2 if cfg.wolate else 8})\ns_cmp_eq_u32 {S_HH}, 7\ns_cbranch_scc0 L_a2nx")
    for r in range(8):
        a(f"v_mov_b32 v{TP}, v{WW+r}\nv_xor_b32 v{WW+r}, 0x80000000, v{WW+8+r}\nv_mov_b32 v{WW+8+r}, v{TP}")
    a("L_a2nx:")
    for r in range(0, 8, 2):
        a(f"""v_pk_mul_f32 {V(FR+r,2)}, {V(AC+r,2)}, {V(WW+r,2)}
v_pk_mul_f32 {V(FR+8+r,2)}, {V(AC+r,2)}, {V(WW+8+r,2)}
v_pk_fma_f32 {V(FR+r,2)}, {V(AC+8+r,2)}, {V(WW+8+r,2)}, {V(FR+r,2)} neg_lo:[1,0,0] neg_hi:[1,0,0]
v_pk_fma_f32 {V(FR+8+r,2)}, {V(AC+8+r,2)}, {V(WW+r,2)}, {V(FR+8+r,2)} neg_lo:[1,0,1] neg_hi:[1,0,1]
v_cvt_pk_bf16_f32 v{TP+r}, v{FR+r}, v{FR+8+r}
v_cvt_pk_bf16_f32 v{TP+r+1}, v{FR+r+1}, v{FR+8+r+1}""")
    a(f"ds_write_b128 v{P_TBW}, {V(TP,4)} offset:8192\nds_write_b128 v{P_TBW}, {V(TP+4,4)} offset:9216")
    stamp(a, 3, 4)
    albar(7)
    stamp(a, 4, 4)
    dft64(8192)
    if cfg.uinp:
        a(f"s_lshl_b32 {T0}, {S_TASK}, 13\ns_lshl_b32 {T1}, {S_W4}, 11\ns_add_u32 {T0}, {T0}, {T1}\ns_add_u32 {T0}, {T0}, {TBUF}")
    else:
        a(f"""s_lshl_b32 {T0}, {S_HH}, 12
s_lshr_b32 {T1}, {S_TASK}, 3
s_lshl_b32 {T1}, {T1}, 7
s_add_u32 {T0}, {T0}, {T1}
s_add_u32 {T0}, {T0}, {UBUF}
s_lshl_b32 {T1}, {S_W4}, 19
s_add_u32 {T0}, {T0}, {T1}""")
    for r in range(8): a(f"v_cvt_pk_bf16_f32 v{TP+r}, v{AC+r}, v{AC+8+r}")
    stamp(a, 5, 4)
    a(f"s_cmp_eq_u32 {S_HH}, {S_HH if cfg.ko & 8 else 7}\ns_cselect_b32 exec_lo, 1, -1\ns_cselect_b32 exec_hi, 1, -1")
    if cfg.uinp:
        burst([f"buffer_store_dword v{TP+r}, v{P_TLD}, {sWS}, {T0} offen offset:{(r//4)*1024 + (r%4)*128} sc1" for r in range(8)], 8)
    else:
        burst([f"s_add_u32 {T1}, {T0}, {(8*(r//4) + r%4) * USTR}\nbuffer_store_dword v{TP+r}, v{P_UST}, {sWS}, {T1} offen sc1" for r in range(8)], 8)
    a("s_mov_b64 exec, -1")
    stage_arrive(1)
    stamp(a, 7)
    U0 = 16; U1 = 32; AR = 200; AI = 216
    MSR = [48, 52, 56, 60, 64, 68, 232, 240]
    if cfg.wolate:
        burst(wo_list(0), cfg.th_wo)
        a("s_waitcnt vmcnt(0)")
    albar(4)
    wo_reads(1 if cfg.woearly else 0)
    for q in range(8): a(f"ds_read_b128 {V(MSR[q],4)}, v7 offset:{L_MS + q*1024}")
    if not cfg.woearly:
        albar(24)
        if not cfg.wolate: burst(wo_list(1), cfg.th_wo)
    stage_wait(1, 0 if cfg.wolate else cfg.a3wait)
    stamp(a, 8)
    if cfg.uinp:
        a(f"""s_lshl_b32 {T0}, {S_BP}, 7
s_add_u32 {T0}, {T0}, {TBUF}
s_lshl_b32 {T1}, {S_W4}, 13
s_lshl_b32 {T3}, {S_K1}, 13
s_add_u32 {T2}, {T0}, {T3}
s_add_u32 {T1}, {T0}, {T1}""")
        burst([f"s_add_u32 {T0}, {T1 if q < 16 else T2}, {(8*((q%16)//4) + q%4) * 65536}\nbuffer_load_dword v{U0+q}, v{P_F2}, {sWS}, {T0} offen sc1" for q in range(32)], cfg.th_u)
    else:
        a(f"""s_lshl_b32 {T0}, {S_BP}, 15
s_add_u32 {T0}, {T0}, {UBUF}
s_lshl_b32 {T1}, {S_W4}, 12
s_lshl_b32 {T3}, {S_K1}, 12
s_add_u32 {T2}, {T0}, {T3}
s_add_u32 {T1}, {T0}, {T1}""")
        burst([f"buffer_load_dword v{U0+q}, v{P_TLD}, {sWS}, {T1 if q < 16 else T2} offen offset:{((q%16)//4)*1024 + (q%4)*128} sc1" for q in range(32)], cfg.th_u)
    if cfg.wolate: burst(wo_list(1), 46)
    elif not cfg.woearly:
        a("s_waitcnt vmcnt(32)")
        albar(10)
        wo_reads(1)
    stamp(a, 11, 4)
    a(f"""s_lshl_b32 {T4}, {S_BP}, 2
s_add_u32 {T4}, {T4}, {S_W4}
s_lshl_b32 {T3}, {T4}, 13
s_add_u32 {T3}, {T3}, {OBUF}
s_add_u32 {T2}, {T3}, 4096
s_and_b32 {T4}, {S_BP}, 60
s_add_u32 {T4}, {T4}, {S_W4}
s_lshl_b32 {T4}, {T4}, 9
s_add_u32 {T4}, {T4}, {FO}
s_lshl_b32 {T1}, {S_W4}, 13
v_add_u32 v9, {T1}, v7""")
    def step6(ur, ui, va, last):
        if last and cfg.apoll: a(poll_issue(f"v{P_PF}", T4, P_PS, 4))
        if cfg.mprio == 0: a("s_setprio 0")
        for m in range(4):
            a(mfma(AR, ur + 4*m, MSR[2*m], None if m == 0 else AR))
            if cfg.pace6: a(f"s_sleep {cfg.pace6}")
            a(mfma(AI, ui + 4*m, MSR[2*m+1], None if m == 0 else AI))
            if cfg.pace6: a(f"s_sleep {cfg.pace6}")
        a(f"s_setprio {cfg.aprio}")
        for q in range(16):
            a(f"v_cvt_pk_bf16_f32 v{ur+q}, v{AR+2*q}, v{AR+2*q+1}")
            if q % 4 == 3: a(f"ds_write_b128 v{va}, {V(ur+q-3,4)} offset:{(q//4)*1024}")
    if cfg.s6late: lwait(a, f"v{P_BC}", P_LS, 20, 37, sleep=2)
    a(f"s_waitcnt vmcnt({14 if cfg.wolate else 0})\ns_cmp_eq_u32 {S_W4}, 0\ns_cbranch_scc1 L_a3w0")
    step6(U0, U0, P_ZW0, False)
    step6(U1, U1, P_ZW1, True)
    a(f"s_branch L_a3z\nL_a3w0:\ns_mov_b32 exec_lo, -2\ns_mov_b32 exec_hi, -2")
    for q in range(16): a(f"v_mov_b32 v{U1+q}, v{U0+q}")
    a("s_mov_b64 exec, -1")
    step6(U0, U1, P_ZW0, True)
    a("L_a3z:\ns_mov_b64 exec, 1\nds_add_u32 v14, v15 offset:4\ns_mov_b64 exec, -1")
    stamp(a, 9)
    if cfg.wolate:
        a(f"s_waitcnt vmcnt({1 if cfg.apoll else 0})")
        lbar(a, "v14", "v15", P_LS, 10)
        wo_reads(1)
    osc = ("", " sc1", " nt", " sc0 sc1", " sc1 nt")[cfg.outsc]
    stamp(a, 10)
    a(f"s_mov_b32 s71, {cfg.poll_limit}")
    if cfg.apoll: a(f"s_waitcnt vmcnt(0)\n{poll_check(P_PS, 4)}\ns_cbranch_scc0 L_aoload")
    poll(a, f"v{P_PF}", T4, P_PS, 4, 42, sleep=cfg.osleep)
    a("L_aoload:")
    for q in range(8):
        a(f"buffer_load_dwordx4 {V(16+4*q,4)}, v7, {sWS}, {T3 if q < 4 else T2} offen offset:{(q%4)*1024} sc1")
    stamp(a, 13)
    lwait(a, f"v{P_BC}", P_LS, 24, 43, sleep=1)
    for q in range(8):
        a(f"s_waitcnt vmcnt({7-q})\nds_write_b128 v9, {V(16+4*q,4)} offset:{L_OB + q*1024}")
        if q == 2: a("v_max3_u32 v5, v16, v20, v24")
        if q in (4, 6): a(f"v_max3_u32 v5, v5, v{12+4*q}, v{16+4*q}")
    a(f"""v_max_u32 v5, v5, v44
v_cmp_eq_u32 vcc, -1, v5
s_cbranch_vccz L_aogot
s_sleep 6
s_sub_u32 s71, s71, 1
s_cbranch_scc0 L_aoload
s_mov_b32 {S_TO}, 44
s_branch L_fail
L_aogot:
s_mov_b64 exec, 1
ds_add_u32 v{P_BC}, v15 offset:20
s_mov_b64 exec, -1""")
    a(f"""s_mul_i32 {T4}, {S_BP}, {32*1792}
s_lshl_b32 {T1}, {S_DT}, 6
s_add_u32 {T4}, {T4}, {T1}
s_add_u32 {T4}, {T4}, 896
s_add_u32 {T3}, {T4}, {16*1792}""")
    lwait(a, f"v{P_BC}", P_LS, 4, 12, off=20)
    a(f"s_cmp_ge_u32 {S_W4}, {S_CNT}\ns_cbranch_scc1 L_b3done")
    stamp(a, 11)
    OR = 216
    def zr(s_): return f"ds_read_b128 {V(OR+4*(s_%8),4)}, v7 offset:{L_OB + s_*1024}"
    for s_ in range(8): a(zr(s_))
    if cfg.cost & 1:
        a(f"""s_lshl_b32 {T1}, {S_W4}, 11
s_add_u32 {T1}, {T1}, {L_X}
v_lshlrev_b32 v10, 6, v2
v_lshl_add_u32 v10, v3, 5, v10
v_add_u32 v10, {T1}, v10
v_add_u32 v11, {T1}, v7
v_lshrrev_b32 v5, 2, v1
v_mul_u32_u24 v5, 1792, v5
v_and_b32 v12, 3, v1
v_lshl_add_u32 v5, v12, 4, v5""")
    else:
        a("v_mul_u32_u24 v5, 1792, v2\nv_lshl_add_u32 v5, v3, 5, v5")
    for s_ in range(32):
        a(f"s_waitcnt lgkmcnt({min(7, 31-s_)})")
        a(mfma(AR, WO + 4*s_, OR + 4*(s_ % 8), None if s_ == 0 else AR))
        if s_ + 8 < 32: a(zr(s_ + 8))
    for hf in range(2):
        for q in range(4*hf, 4*hf+4): a(f"v_cvt_pk_bf16_f32 v{48+q}, v{AR+2*q}, v{AR+2*q+1}")
        if cfg.cost & 1: a(f"ds_write_b128 v10, {V(48+4*hf,4)} offset:{16*hf}")
        else: a(f"buffer_store_dwordx4 {V(48+4*hf,4)}, v5, {sOUT}, {T4} offen offset:{16*hf}{osc}")
    if cfg.cost & 1:
        a(f"""ds_read_b128 v[56:59], v11
ds_read_b128 v[60:63], v11 offset:1024
s_waitcnt lgkmcnt(1)
buffer_store_dwordx4 v[56:59], v5, {sOUT}, {T4} offen{osc}
s_waitcnt lgkmcnt(0)
buffer_store_dwordx4 v[60:63], v5, {sOUT}, {T3} offen{osc}""")
    a("L_b3done:")
    a(f"""s_lshl_b32 {T0}, s2, 2
s_add_u32 {T0}, {T0}, {S_W4}
s_cmp_lg_u32 {T0}, 0
s_cbranch_scc1 L_noep
s_mov_b32 {T0}, {EPOCH}""")
    if cfg.diagrot: a("s_mov_b64 s[24:25], s[20:21]")
    flag(a, T0, 10)
    a("L_noep:")
    if cfg.padend: padto(a, cfg.padend)
    stamp(a, 12)
    dump_stamps(a, 16)
    a("s_endpgm")

def build():
    nh = cfg.nh; xh = 16 // nh
    for wg in range(256):
        xcd, idx = wg & 7, wg >> 3
        h = (xcd % xh) * nh + idx % nh
        assert nh == 8
    a = Asm()
    prologue(a); role_B(a); ROLE[0] = 1; role_A(a)
    a(f"""L_fail:
v_mov_b32 v0, 0
v_mov_b32 v1, {S_TO}
global_store_dword v0, v1, s[18:19]
L_end:
s_endpgm
L_codeend:""")
    a.pad()
    import os
    ref = "cdna_kernels/" + NAME + ".s.ref"
    hdr = open(ref).read().split("; Override launch")[0] if os.path.exists(ref) else ""
    s = hdr + f"; @launch grid=(256,1,1) block=(512,1,1) lds={LDS_SIZE}\n"
    s += f""".amdgcn_target "amdgcn-amd-amdhsa--gfx950"
.text
.globl {NAME}_kernel
.p2align 8
.type {NAME}_kernel,@function
{NAME}_kernel:
""" + a.text() + f""".section .rodata,"a"
.p2align 6
.amdhsa_kernel {NAME}_kernel
  .amdhsa_next_free_vgpr 256
  .amdhsa_next_free_sgpr 102
  .amdhsa_accum_offset 256
  .amdhsa_group_segment_fixed_size 0
  .amdhsa_kernarg_size 72
  .amdhsa_user_sgpr_count 2
  .amdhsa_user_sgpr_kernarg_segment_ptr 1
  .amdhsa_system_sgpr_workgroup_id_x 1
.end_amdhsa_kernel
"""
    return s

if __name__ == "__main__":
    out = sys.argv[1]
    for kv in sys.argv[2:]:
        k, v = kv.split("=")
        setattr(cfg, k, type(getattr(cfg, k))(int(v)))
    open(out, "w").write(build())
```

```python
import sys, math, struct
from asmlib import Asm

NAME = "concat_heads__spectral_gfnet__softmax_full_mha__prompt"

class Cfg:
    nh = 8
    stamps = False
    poll_limit = 1 << 17
    noA = 0
    pxcd = -1
    ptype = 0
    kvsc = 1
    kvt = 0
    kvt64 = 0
    kvld = 0
    kvi = 0
    kvipos = 1
    diagrot = 0
    kvs = 0
    kvs0 = 60
    kvsn = 30
    probe = -1
    span = 0
    fine = 0
    padend = 0
    padmid = 0
    dbgwave = -1
    nbuf = 5
    wearly = 0
    touch = 0
    wdelay = 30
    tdelay = 0
    s6late = 0
    lsl = 4
    odefer = 0
    a2wait = 8
    a3wait = 0
    kvwait = 8
    kvrot = 3
    m1 = 12
    ramp = 1
    gate = 2
    wqe = 3
    wqp = 7
    tdefer = 1
    m2 = 27
    xas = 0
    xae = 0
    bhi = 56
    ohint = 1
    wlate = 1
    allpoll = 1
    otry = 1
    gsplit = 8
    claim = 1
    btry = 0
    pace6 = 0
    wolate = 0
    wsoff = 0
    mprio = 0
    xawarm = 0
    wpace = 0
    tstag = 0
    xafirst = 0
    mw = 3
    mwpos = 1
    wqdel = 0
    ring = 8
    apoll = 1
    osleep = 2
    fprio = 0
    nta = 1
    ntw = 1
    ntb = 0
    bsleep = 2
    qst = 0x133
    wopf = 0
    uinp = 1
    woearly = 0
    hack = 0
    ko = 0
    xalate = 0
    ntp = 1
    cost = 3
    nopk = 23
    gtab = 2981409204
    kvp = 1
    owait = 4
    xrot = 0x06543210
    wrot = 1
    pace = 1
    xadefer = 0
    wpf = 0
    outsc = 3
    wqwarm = 0
    th_wo = 14
    th_u = 32
    th_wq = 2
    wqearly = 1
    th_w = 17
    th_xa = 4
    wfair = 8
    xearly = 1
    spf = 0
    spf0 = 150
    pre = 5
    aprio = 2
    force_fb = False
cfg = Cfg()

EPOCH = 0
KV = 0x20000; TS = 61440; VOFF = 28672
OBUF = 0x400000
TBUF = 0x600000
UBUF = 0x800000; USTR = 32768
FKV = 0x8000; FA1 = 0x1000; FO = 0x10000
STAMP = 0xB00000
WS_SIZE = 0x1000000
L_W = 0; L_WQ = 57344; L_X = 86016; L_Q = 151552; L_SYNC = 159744
LDS_SIZE = 160000
L_RED = 0
L_TB = L_WQ; L_YB = L_WQ + 8192; L_MS = 49152; L_TT = L_X + 4096; L_M = L_X + 61440
L_ZB = L_WQ; L_OB = 0
sWS, sWQKV, sX, sWR, sWI, sWO, sOUT = [f"s[{i}:{i+3}]" for i in (24, 28, 32, 36, 40, 44, 48)]
S_WAVE, S_XCD, S_IDX, S_H, S_R, S_W4 = "s56", "s57", "s58", "s59", "s60", "s61"
S_NONCE = "s[62:63]"
S_TO, S_BAR = "s64", "s65"
T0, T1, T2, T3, T4, T5 = "s66", "s67", "s68", "s69", "s22", "s23"
STAMP0 = 84

ZREADY = 24

def f2u(x): return struct.unpack("<I", struct.pack("<f", x))[0]
def lit(x): return "0x%08x" % f2u(x)
def V(a, n=1): return f"v{a}" if n == 1 else f"v[{a}:{a+n-1}]"

def srd(a, name, lo, size):
    i = int(name[2:name.index(":")])
    a(f"s_mov_b32 s{i}, s{lo}\ns_mov_b32 s{i+1}, s{lo+1}\ns_mov_b32 s{i+2}, {size}\ns_mov_b32 s{i+3}, 0x20000")

ROLE = [0]
def stamp(a, i, fine=0):
    if cfg.probe >= 0:
        if fine == cfg.fine and cfg.probe == ROLE[0] * 100 + i:
            a("s_memrealtime s[96:97]\ns_waitcnt lgkmcnt(0)")
        return
    if cfg.fine in (1, 2) and not fine and 3 <= i <= 11: return
    if cfg.fine == 4 and not fine and i in (1, 2, 3, 4, 5, 10, 11, 13): return
    if fine and cfg.fine != fine: return
    if cfg.stamps:
        a(f"s_memtime s[100:101]\ns_waitcnt lgkmcnt(0)\ns_mov_b32 s{STAMP0+i}, s100")

def st0():
    o = f"s_add_u32 s20, s20, {cfg.wsoff << 20}\ns_addc_u32 s21, s21, 0\n" if cfg.wsoff else ""
    return o + (f"s_mov_b32 s{STAMP0+15}, s100\ns_mov_b32 s{STAMP0}, s38" if cfg.stamps else "")

def dump_stamps(a, vt):
    if cfg.probe >= 0:
        if cfg.probe // 100 == ROLE[0]:
            L = a.lab("pr")
            if cfg.pxcd >= 0: a(f"s_cmp_lg_u32 {S_XCD}, {cfg.pxcd}\ns_cbranch_scc1 {L}x")
            if cfg.ptype: a(f"s_cmp_eq_u32 {S_LC}, 7\ns_cbranch_scc{cfg.ptype - 1} {L}x")
            if cfg.probe % 100 == 99: a("s_mov_b32 s96, s100")
            a(f"s_sub_u32 s96, s96, s100\ns_cmp_gt_u32 s96, 4000\ns_cselect_b32 s96, 0, s96\ns_add_u32 s96, s96, 2600\n{L}:\ns_memrealtime s[98:99]\ns_waitcnt lgkmcnt(0)\ns_sub_u32 s98, s98, s100\ns_cmp_lt_u32 s98, s96\ns_cbranch_scc1 {L}\n{L}x:")
        return
    if cfg.span:
        a(f"s_waitcnt vmcnt(0)\ns_memrealtime s[98:99]\ns_lshl_b32 {T0}, s2, 3\ns_add_u32 {T0}, {T0}, {S_WAVE}\ns_lshl_b32 {T0}, {T0}, 3\ns_add_u32 {T0}, {T0}, {STAMP}\ns_waitcnt lgkmcnt(0)")
        a(f"v_mov_b32 v{vt}, s100\nv_mov_b32 v{vt+1}, s98\nv_mov_b32 v{vt+2}, 0\ns_mov_b64 exec, 1\nbuffer_store_dwordx2 {V(vt,2)}, v{vt+2}, {sWS}, {T0} offen\ns_mov_b64 exec, -1")
    if not cfg.stamps: return
    a(f"s_memrealtime s[100:101]\ns_waitcnt lgkmcnt(0)\ns_mov_b32 s{STAMP0+14}, s100")
    if cfg.dbgwave >= 0:
        L = a.lab("nodbg")
        a(f"s_lshl_b32 {T0}, s2, 3\ns_add_u32 {T0}, {T0}, {S_WAVE}\ns_cmp_lg_u32 {T0}, {cfg.dbgwave}\ns_cbranch_scc1 {L}")
        a(f"v_mov_b32 v{vt+4}, 0\ns_mov_b64 exec, 1")
        for i in range(1, 16):
            a(f"s_sub_u32 {T1}, s{STAMP0+i}, s{STAMP0 + (15 if i >= 14 else 0)}\nv_mov_b32 v{vt}, {T1}\nglobal_store_dword v{vt+4}, v{vt}, s[18:19] offset:{4*i}")
        a(f"s_mov_b64 exec, -1\n{L}:")
    a(f"s_lshl_b32 {T0}, s2, 3\ns_add_u32 {T0}, {T0}, {S_WAVE}\ns_lshl_b32 {T0}, {T0}, 7\ns_add_u32 {T0}, {T0}, {STAMP}")
    a(f"v_mov_b32 v{vt+4}, 0\ns_mov_b64 exec, 1")
    for q in range(4):
        for i in range(4): a(f"v_mov_b32 v{vt+i}, s{STAMP0+4*q+i}")
        a(f"buffer_store_dwordx4 {V(vt,4)}, v{vt+4}, {sWS}, {T0} offen offset:{16*q}")
    a("s_mov_b64 exec, -1")

def padto(a, ticks):
    L = a.lab("pad")
    a(f"{L}:\ns_memrealtime s[100:101]\ns_waitcnt lgkmcnt(0)\ns_sub_u32 s100, s100, s{STAMP0+15}\ns_cmp_lt_u32 s100, {ticks}\ns_cbranch_scc1 {L}")

def poll_issue(vaddr, soff, vt, n):
    return f"""v_mov_b32 v{vt}, 0
v_mov_b32 v{vt+1}, 0
s_bfm_b64 exec, {n}, 0
buffer_atomic_or_x2 {V(vt,2)}, {vaddr}, {sWS}, {soff} offen sc0 sc1
s_mov_b64 exec, -1"""

def poll_check(vt, n):
    return f"v_cmp_ne_u64 vcc, {S_NONCE}, {V(vt,2)}\ns_and_b32 vcc_lo, vcc_lo, {hex((1 << n) - 1)}"

def poll(a, vaddr, soff, vt, n, code, sleep=2):
    L, Dn = a.lab("poll"), a.lab("polld")
    a(f"""s_mov_b32 {S_TO}, {cfg.poll_limit}
{L}:
{poll_issue(vaddr, soff, vt, n)}
s_waitcnt vmcnt(0)
{poll_check(vt, n)}
s_cbranch_scc0 {Dn}
s_sleep {sleep}
s_sub_u32 {S_TO}, {S_TO}, 1
s_cbranch_scc0 {L}
s_mov_b32 {S_TO}, {code}
s_branch L_fail
{Dn}:""")

def publish_wg(a, vsync, vone, off, vt, soff, vn, last=3):
    L = a.lab("pub")
    a(f"""s_mov_b64 exec, 1
ds_add_rtn_u32 v{vt}, {vsync}, {vone} offset:{off}
s_waitcnt lgkmcnt(0)
v_readfirstlane_b32 {T0}, v{vt}
s_cmp_eq_u32 {T0}, {last}
s_cselect_b64 exec, 1, 0
buffer_store_dwordx2 {V(vn,2)}, v{vn+2}, {sWS}, {soff} offen sc1
s_mov_b64 exec, -1""")

def flag(a, soff, vt):
    a(f"""v_mov_b32 v{vt}, s62
v_mov_b32 v{vt+1}, s63
v_mov_b32 v{vt+2}, 0
s_mov_b64 exec, 1
buffer_store_dwordx2 {V(vt,2)}, v{vt+2}, {sWS}, {soff} offen sc1
s_mov_b64 exec, -1""")

def flag2(a, soff, vn):
    a(f"s_mov_b64 exec, 1\nbuffer_store_dwordx2 {V(vn,2)}, v{vn+2}, {sWS}, {soff} offen sc1\ns_mov_b64 exec, -1")

def lwait(a, vsync, vt, target, code, sleep=0, off=0):
    L, Dn = a.lab("lw"), a.lab("lwd")
    a(f"""s_mov_b32 {S_TO}, {cfg.poll_limit * 8}
{L}:
ds_read_b32 v{vt}, {vsync} offset:{off}
s_waitcnt lgkmcnt(0)
v_readfirstlane_b32 {T0}, v{vt}
s_cmp_ge_u32 {T0}, {target}
s_cbranch_scc1 {Dn}
{"s_sleep %d" % sleep if sleep else ""}
s_sub_u32 {S_TO}, {S_TO}, 1
s_cbranch_scc0 {L}
s_mov_b32 {S_TO}, {code}
s_branch L_fail
{Dn}:""")

def lbar(a, vsync, vone, vt, code, sleep=0):
    L, Dn = a.lab("lb"), a.lab("lbd")
    a(f"""s_add_u32 {S_BAR}, {S_BAR}, 4
s_mov_b64 exec, 1
ds_add_u32 {vsync}, {vone}
s_mov_b64 exec, -1
s_mov_b32 {S_TO}, {cfg.poll_limit * 8}
{L}:
ds_read_b32 v{vt}, {vsync}
s_waitcnt lgkmcnt(0)
v_readfirstlane_b32 {T0}, v{vt}
s_cmp_ge_u32 {T0}, {S_BAR}
s_cbranch_scc1 {Dn}
{"s_sleep %d" % sleep if sleep else ""}
s_sub_u32 {S_TO}, {S_TO}, 1
s_cbranch_scc0 {L}
s_mov_b32 {S_TO}, {code}
s_branch L_fail
{Dn}:""")

def mfma(d, A, B, C=None):
    return f"v_mfma_f32_32x32x16_bf16 {V(d,16)}, {V(A,4)}, {V(B,4)}, {'0' if C is None else V(C,16)}"

def pk2(a, op, d, x, y, z=None, neg="", scalar=False):
    srcs = [x, y] + ([z] if z is not None else [])
    if not scalar:
        m = "[" + ",".join("1" if str(i) in neg else "0" for i in range(len(srcs))) + "]"
        a(f"v_pk_{op}_f32 {V(d,2)}, " + ", ".join(V(r,2) for r in srcs) + (f" neg_lo:{m} neg_hi:{m}" if neg else ""))
        return
    for q in range(2):
        if op == "add" and neg == "1": a(f"v_sub_f32 v{d+q}, v{x+q}, v{y+q}")
        else: a(f"v_{op}_f32 v{d+q}, " + ", ".join(("-" if str(i) in neg else "") + f"v{r+q}" for i, r in enumerate(srcs)))

def mod7(a, s, t):
    a(f"s_mul_i32 {t}, {s}, 9363\ns_lshr_b32 {t}, {t}, 16\ns_mul_i32 {t}, {t}, 7\ns_sub_u32 {s}, {s}, {t}")

def x_read_addrs(a, v0, vl, base_s, t):
    a(f"""v_and_b32 v{t}, 31, {vl}
v_lshrrev_b32 v{t+1}, 5, {vl}
v_bfe_u32 v{t+2}, {vl}, 1, 3
v_xor_b32 v{t+1}, v{t+1}, v{t+2}
v_lshlrev_b32 v{t}, 7, v{t}
v_add_u32 v{t}, {base_s}, v{t}""")
    for mm in range(4):
        a(f"v_xor_b32 v{t+2}, {2*mm}, v{t+1}\nv_lshl_add_u32 v{v0+mm}, v{t+2}, 4, v{t}")


S_HH, S_RR, S_J, S_P0, S_LC = "s52", "s53", "s54", "s55", "s3"

def prologue(a):
    a(f"""s_cmp_ge_u32 s2, 256
s_cbranch_scc1 L_end
s_load_dwordx16 s[4:19], s[0:1], 0
s_load_dwordx2 s[20:21], s[0:1], 64""")
    if cfg.span or cfg.probe >= 0: a("s_memrealtime s[100:101]")
    if cfg.stamps:
        a(f"s_memtime s[38:39]\ns_memrealtime s[100:101]")
        for i in range(1, 15): a(f"s_mov_b32 s{STAMP0+i}, 0")
    a(f"""s_lshr_b32 {S_IDX}, s2, 3
s_getpc_b64 s[70:71]
L_pc:
v_lshrrev_b32 v3, 5, v0
v_lshl_add_u32 v3, {S_IDX}, 4, v3
v_lshlrev_b32 v3, 7, v3
v_min_u32 v3, L_codeend-L_pc-4, v3
global_load_dword v255, v3, s[70:71]
v_lshrrev_b32 v2, 6, v0
v_and_b32 v1, 63, v0
v_readfirstlane_b32 {S_WAVE}, v2
s_and_b32 {S_XCD}, s2, 7
s_and_b32 {S_HH}, {S_IDX}, 7
s_lshr_b32 {S_RR}, {S_IDX}, 3
s_and_b32 {T5}, {S_XCD}, 1
s_lshl_b32 {S_H}, {T5}, 3
s_add_u32 {S_H}, {S_H}, {S_HH}
s_lshl_b32 {T0}, {S_HH}, 2
s_cmp_eq_u32 {T5}, 0
s_cselect_b32 {S_LC}, 0x67543210, s2
s_cselect_b32 {S_LC}, {S_LC}, 0x65432170
s_lshr_b32 {S_LC}, {S_LC}, {T0}
s_and_b32 {S_LC}, {S_LC}, 7
s_and_b32 {S_W4}, {S_WAVE}, 3
s_cmp_ge_u32 {S_WAVE}, 4
s_cbranch_scc1 L_roleA""")

def nonce(a):
    a(f"""s_waitcnt lgkmcnt(0)
s_mul_i32 s62, s62, 0x9E3779B1
s_add_u32 s62, s62, 0x7F4A7C15
s_mul_i32 s63, s63, 0x85EBCA6D
s_add_u32 s63, s63, 0x165667B1""")

def role_B(a):
    X = 16; ACC = 128; WB = 160; PK = 224
    KVLD = ("sc1", "sc1 nt", "sc0 sc1", "sc0 sc1 nt")[cfg.kvld]
    KVSC = ("sc1", "sc0 sc1", "sc1 nt", "sc0 sc1 nt")[cfg.kvsc]
    SC = 70
    S_XL, S_TILE, S_I = "s77", "s78", "s79"
    TO = 36
    S_WM, S_WO, S_DM, S_DO = "s80", "s81", "s82", "s83"
    a(f"""s_setprio 3
s_mul_i32 {S_J}, {T5}, 7
s_add_u32 {S_J}, {S_J}, {S_LC}
v_lshrrev_b32 v8, 3, v1
v_and_b32 v9, 7, v1
v_mul_u32_u24 v2, 2688, v8
v_bfe_u32 v3, v1, 4, 1
v_lshlrev_b32 v3, 2, v3
v_xor_b32 v3, v9, v3
v_lshl_add_u32 v2, v3, 4, v2
s_lshl_b32 {T0}, {S_J}, 7
s_mul_i32 {T1}, {S_W4}, {8*2688}
s_add_u32 {T0}, {T0}, {T1}
s_add_u32 {T0}, {T0}, 896
v_add_u32 v2, {T0}, v2
s_lshl_b32 {T2}, {S_RR}, 3
s_lshr_b32 {T0}, {0xD66D0770 if cfg.wrot else 0x70707070}, {T2}
s_bfe_u32 {T1}, {T0}, 0x40004
s_and_b32 {T0}, {T0}, 15
s_lshl_b32 {T3}, {S_W4}, 10
s_lshl_b32 {T2}, {T0}, 12
s_add_u32 m0, {T2}, {T3}
s_mul_i32 {S_I}, {T0}, {32*2688}
s_lshl_b32 {T2}, {T1}, 12
s_add_u32 {S_WM}, {T2}, {T3}
s_mul_i32 {S_WO}, {T1}, {32*2688}
s_cmp_ge_u32 {S_RR}, {2 if cfg.wrot else 4}
s_cselect_b32 {T0}, -1, 1
s_lshl_b32 {S_DM}, {T0}, 12
s_mul_i32 {S_DO}, {T0}, {32*2688}
s_cmp_eq_u32 {S_LC}, 7
s_cselect_b32 s30, 0, {448 * 2688}
s_mov_b32 s31, 0x20000
s_waitcnt lgkmcnt(0)
{st0()}
s_mov_b64 s[28:29], s[12:13]""")
    def x_m0(i, j): return f"s_add_u32 m0, {S_XL}, {(i%4)*4096 + j*1024}"
    def x_ld(i, j): return f"buffer_load_dwordx4 v{4+j}, {sX}, s{SC+i} offen{' nt' if cfg.ntb else ''} lds"
    def sc_next(i): return f"s_add_u32 s{SC+i}, s{SC+i-1}, 128\ns_cmp_eq_u32 s{SC+i}, 896\ns_cselect_b32 s{SC+i}, 0, s{SC+i}"
    def w_base(i): return f"v_lshl_add_u32 v12, s{SC+i}, 6, v14\nv_xor_b32 v13, 64, v12"
    def setup_x():
        a(f"""s_mov_b32 s34, {2048*896}
s_mov_b32 s35, 0x20000
s_lshr_b32 {S_R}, {S_XCD}, 1
s_lshl_b32 {S_R}, {S_R}, 2
s_add_u32 {S_R}, {S_R}, {S_RR}
s_lshl_b32 {S_TILE}, {S_R}, 2
s_add_u32 {S_TILE}, {S_TILE}, {S_W4}
v_lshrrev_b32 v10, 4, v1
v_xor_b32 v10, v9, v10
v_xor_b32 v11, 4, v10
v_mul_u32_u24 v12, 896, v8
s_mul_i32 {T2}, {S_TILE}, {32*896}
v_add_u32 v12, {T2}, v12
v_lshl_add_u32 v4, v10, 4, v12
v_lshl_add_u32 v5, v11, 4, v12
v_add_u32 v5, {8*896}, v5
v_add_u32 v6, {16*896}, v4
v_add_u32 v7, {16*896}, v5
s_lshl_b32 {T2}, {S_HH}, 2
s_lshr_b32 s{SC}, {cfg.xrot}, {T2}
s_and_b32 s{SC}, s{SC}, 7
s_lshl_b32 s{SC}, s{SC}, 7
s_lshl_b32 {S_XL}, {S_W4}, 14
s_add_u32 {S_XL}, {S_XL}, {L_X}""")
        a("s_mov_b64 s[32:33], s[10:11]")
    def setup2():
        for i in range(1, 7): a(sc_next(i))
        x_read_addrs(a, 8, "v1", S_XL, 12)
        srd(a, sWS, 20, WS_SIZE)
        a(f"""v_lshrrev_b32 v12, 5, v1
v_lshlrev_b32 v12, 3, v12
v_bfe_u32 v13, v1, 2, 2
v_add_u32 v12, v12, v13
v_bfe_u32 v13, v1, 4, 1
v_lshlrev_b32 v13, 5, v13
v_and_b32 v18, 1, v1
v_bfe_u32 v19, v1, 1, 1
v_lshl_add_u32 v15, v18, 4, v13
v_lshl_add_u32 v15, v19, 3, v15
v_lshl_add_u32 v14, v18, 3, v13
v_lshl_add_u32 v14, v19, 4, v14
s_cmp_eq_u32 {T5}, 1
s_cselect_b64 vcc, -1, 0
v_cndmask_b32 v14, v15, v14, vcc
v_lshl_add_u32 v15, v12, 6, v15
v_add_u32 v15, {L_WQ}, v15
v_bfe_u32 v13, v1, 3, 1
v_lshl_add_u32 v14, v13, 6, v14
v_lshl_add_u32 v14, v12, 7, v14""")
        a(f"""v_lshrrev_b32 v253, 2, v1
v_mul_u32_u24 v253, 2688, v253
v_and_b32 v254, 3, v1
v_lshl_add_u32 v253, v254, 4, v253
s_mul_i32 {S_P0}, {S_H}, 7
s_lshr_b32 {S_P0}, {S_P0}, 1
s_lshl_b32 s80, {S_P0}, 4
s_mul_i32 s81, {S_W4}, {16*2688}
s_add_u32 s80, s80, s81
v_add_u32 v253, s80, v253
s_lshl_b32 s80, {S_W4}, 10
s_add_u32 s80, s80, {L_WQ}
s_and_b32 s81, {S_P0}, 7
s_cmp_gt_u32 s81, 4
s_cselect_b32 s81, 1, 0
s_nop 0""")
        a(w_base(0))
        a(f"v_mov_b32 v250, {L_SYNC}\nv_mov_b32 v251, 1\nv_mov_b32 v246, 0\ns_mov_b32 {S_BAR}, 0")
    VK, VV, VF, VL = 240, 241, 242, 243
    PG = ["s4", "s5", "s6", "s7"]; S_FL = "s8"
    def setup3():
        a(f"""v_lshlrev_b32 v{VL}, 4, v1
s_lshl_b32 {T0}, {S_P0}, 9
v_add_u32 v{VK}, {T0}, v{VL}
s_lshl_b32 {T0}, {S_H}, 11
s_add_u32 {T0}, {T0}, {VOFF}
v_add_u32 v{VV}, {T0}, v{VL}
s_lshr_b32 {T1}, {S_P0}, 3
s_add_u32 {T0}, {S_P0}, 3
s_lshr_b32 {T0}, {T0}, 3
s_sub_u32 {T0}, {T0}, {T1}
v_and_b32 v{VF}, 1, v1
v_mul_u32_u24 v{VF}, {T0}, v{VF}
v_bfe_u32 v18, v1, 1, 1
v_mul_u32_u24 v18, 7, v18
v_add_u32 v{VF}, v{VF}, v18
v_lshlrev_b32 v{VF}, 7, v{VF}
s_lshl_b32 {T0}, {S_W4}, 4
s_add_u32 {T0}, {T0}, {T1}
s_lshl_b32 {T0}, {T0}, 7
s_add_u32 {T3}, {T0}, {FKV}
s_lshr_b32 {T2}, {S_R}, 2
s_lshl_b32 {T2}, {T2}, 3
s_lshr_b32 {T2}, {cfg.gtab if cfg.gtab > 1 else 0x934E39E4}, {T2}
s_mul_i32 {T1}, {S_W4}, {4*TS}
s_add_u32 {T1}, {T1}, {KV}""")
        for p in range(4): a(f"s_add_u32 {T0}, {S_RR}, {p}\ns_and_b32 {T0}, {T0}, 3\ns_mul_i32 s{TO+12+p}, {T0}, {TS}")
        for g in range(4):
            a(f"s_bfe_u32 {T0}, {T2}, {0x20000 + 2*g}\ns_lshl_b32 {PG[g]}, {T0}, 13\ns_add_u32 {PG[g]}, {PG[g]}, {T3}\ns_mul_i32 {T0}, {T0}, {16*TS}\ns_add_u32 {T0}, {T0}, {T1}")
            for p in range(4):
                a(f"s_add_u32 s{TO+4*g+p}, {T0}, " + (f"{p*TS}" if (g == 0 or cfg.kvrot == 0) else f"s{TO+12+p}"))
        a(f"""s_cmp_eq_u32 {S_LC}, 7
s_cselect_b32 {T1}, 15, {S_J}
s_lshl_b32 {T0}, {S_R}, 4
s_add_u32 {T0}, {T0}, {T1}
s_lshl_b32 {T0}, {T0}, 7
s_add_u32 {S_FL}, {T0}, {FKV}""")
    stamp(a, 3, 2)
    XE = cfg.xearly
    def mid():
        stamp(a, 4, 2)
        a("s_barrier")
        if cfg.fine != 2: a(f"s_load_dwordx2 s[62:63], s[20:21], {EPOCH}")
        stamp(a, 5, 2)
    for i in range(14):
        a(f"buffer_load_dwordx4 v2, {sWQKV}, {S_I} offen lds")
        if i == 6:
            if XE:
                setup_x()
                for j in range(4): a(x_m0(0, j)); a("s_nop 0"); a(x_ld(0, j))
                mid()
            a(f"s_mov_b32 m0, {S_WM}\ns_mov_b32 {S_I}, {S_WO}")
            if XE: setup2(); setup3()
        elif i < 13: a(f"s_add_u32 m0, m0, {S_DM}\ns_add_u32 {S_I}, {S_I}, {S_DO}")
        if i == 10 and not XE:
            mid(); setup_x(); setup2(); setup3()
    stamp(a, 8, 2)
    a(f"s_waitcnt vmcnt({cfg.wfair})")
    stamp(a, 10, 2)
    for c in range(XE, 2 + XE):
        for j in range(4): a(x_m0(c, j)); a("s_nop 0"); a(x_ld(c, j))
    stamp(a, 11, 2)
    if cfg.fine == 2: a(f"s_load_dwordx2 s[62:63], s[20:21], {EPOCH}")
    nonce(a)
    if cfg.diagrot: a(f"s_lshr_b32 {T0}, s62, 28\ns_lshl_b32 {T0}, {T0}, 24\ns_add_u32 s24, s20, {T0}\ns_addc_u32 s25, s21, 0")
    a("v_mov_b32 v244, s62\nv_mov_b32 v245, s63\nds_write_b64 v250, v[244:245] offset:64")
    def w_base(i): return f"v_lshl_add_u32 v12, s{SC+i}, 6, v14\nv_xor_b32 v13, 64, v12"
    def wq(i): return f"s_add_u32 m0, s80, {i*4096}\ns_mul_i32 s82, s{SC+i}, {64*21}\nbuffer_load_dwordx4 v253, {sWQKV}, s82 offen lds"
    a(f"s_mov_b32 s30, {448 * 2688}")
    def w_reads(i):
        out = []
        for mm in range(4):
            for ct in range(2):
                for hf in range(2):
                    d = WB + (i % 2) * 32 + mm * 8 + ct * 4 + hf * 2
                    out.append(f"ds_read_b64_tr_b16 {V(d,2)}, v{12+ct} offset:{mm*2048 + hf*512}")
        return out
    def x_reads(i):
        return [f"ds_read_b128 {V(X+16*i+4*mm,4)}, v{8+mm} offset:{(i%4)*4096}" for mm in range(4)]
    a(f"""s_waitcnt vmcnt(8)""")
    stamp(a, 1)
    a(f"s_mov_b64 exec, 1\nds_add_u32 v250, v251\ns_mov_b64 exec, -1")
    for j in range(2): a(x_m0(2 + XE, j)); a("s_nop 0"); a(x_ld(2 + XE, j))
    lwait(a, "v250", 252, 4, 19)
    stamp(a, 3, 1)
    wr0 = w_reads(0)
    for s_ in wr0[:8]: a(s_)
    if not XE: a("s_waitcnt vmcnt(6)")
    for s_ in x_reads(0) + wr0[8:]: a(s_)
    a(f"s_cmp_eq_u32 {T5}, 1\ns_cbranch_scc1 L_kvV")
    for var in ("K", "V"):
        if var == "V": a("L_kvV:")
        late = [f"s_mul_i32 {T4}, {S_TILE}, {TS}", f"s_add_u32 {T4}, {T4}, {KV}", "v_lshlrev_b32 v7, 4, v1"]
        if var == "K":
            late += [f"s_lshl_b32 {T0}, {S_LC}, 12", f"s_add_u32 {T4}, {T4}, {T0}"]
        else:
            late += f"""s_lshl_b32 {T1}, {S_LC}, 6
v_and_b32 v4, 31, v1
v_add_u32 v4, {T1}, v4                    ; col (ct0)
v_add_u32 v5, 32, v4
v_lshrrev_b32 v3, 5, v1
v_lshlrev_b32 v3, 9, v3
v_add_u32 v3, {VOFF}, v3""".split("\n")
            for r in (4, 5):
                late += f"""v_mul_u32_u24 v2, 2341, v{r}
v_lshrrev_b32 v2, 16, v2
v_mul_u32_u24 v2, {2048 - 28*16}, v2
v_lshl_add_u32 v{r}, v{r}, 4, v2
v_add_u32 v{r}, v{r}, v3""".split("\n")
            late += f"""s_lshl_b32 {T1}, {S_LC}, 2
s_lshr_b32 {T2}, 0xDB96420, {T1}
s_and_b32 {T2}, {T2}, 15                  ; first head that ends in this line-column
s_lshr_b32 {T3}, 0x3223222, {T1}
s_and_b32 {T3}, {T3}, 15
s_lshl_b32 {T3}, {T3}, 4
v_lshrrev_b32 v6, 2, v1
v_lshlrev_b32 v6, 9, v6
v_and_b32 v2, 3, v1
v_lshl_add_u32 v6, v2, 4, v6
s_lshl_b32 {T2}, {T2}, 11
s_add_u32 {T2}, {T2}, {VOFF + 28*16}
v_add_u32 v6, {T2}, v6
v_cmp_eq_u32 vcc, 0, v2
v_mov_b32 v2, 0x3f803f80
s_nop 0
v_cndmask_b32 v236, 0, v2, vcc
v_cndmask_b32 v237, 0, v2, vcc
v_cndmask_b32 v238, 0, v2, vcc
v_cndmask_b32 v239, 0, v2, vcc""".split("\n")
        for i in range(7):
            a("s_waitcnt lgkmcnt(0)")
            stamp(a, 4 + i, 1)
            fill = [[] for _ in range(8)]
            pre = [[] for _ in range(8)]
            if i == 0:
                dq = [(c, j) for c in range(1, 7) for j in range(4)]
                issued_q = dq[:6 + 4*XE]; dq = dq[6 + 4*XE:]
            def take(g):
                if dq and dq[0][0] <= i + 4:
                    e = dq.pop(0); issued_q.append(e)
                    pre[g].append(x_m0(*e)); fill[g].insert(0, x_ld(*e))
            had = bool(dq)
            if i + 1 < 7:
                wr = w_reads(i + 1)
                fill[0] += [w_base(i + 1)] + wr[0:3]
                fill[1] += wr[3:8]; fill[2] += wr[8:12]; fill[3] += wr[12:16]
                for g in ((0, 1, 2, 3, 4) if i == 0 and not XE else (0,)): take(g)
                if i == 4:
                    fill[1].append("s_cmp_eq_u32 s81, 1\ns_cselect_b64 exec, -1, 0\n" + "\n".join(wq(q) for q in range(cfg.wqe)) + "\ns_mov_b64 exec, -1")
                    issued_q += [(99, q) for q in range(cfg.wqe)]
                last = max(q for q, e in enumerate(issued_q) if e[0] == i + 1)
                fill[4] += [f"s_waitcnt vmcnt({len(issued_q) - 1 - last})"] + x_reads(i + 1)
            for g in range(5, 8): take(g)
            if i == 4:
                assert not had
                fill[0].insert(0, "s_mov_b64 exec, 1\nds_add_u32 v250, v251 offset:8\ns_mov_b64 exec, -1")
            if not had:
                for g in range(5 if i < 6 else 0, 8):
                    for q in range(6):
                        if late: fill[g].append(late.pop(0))
            for mm in range(4):
                for ct in range(2):
                    xr = X + 16*i + 4*mm; wr_ = WB + (i % 2) * 32 + mm * 8 + ct * 4
                    c = None if (i == 0 and mm == 0) else ACC + 16*ct
                    for s_ in pre[2*mm + ct]: a(s_)
                    a(mfma(ACC + 16*ct, wr_, xr, c) if var == "K" else mfma(ACC + 16*ct, xr, wr_, c))
                    for s_ in fill[2*mm + ct]: a(s_)
        assert not late
        stamp(a, 11, 1)
        a(f"s_cmp_eq_u32 {S_LC}, 7\ns_cbranch_scc1 L_kvnone")
        if var == "V":
            a(f"s_bfm_b64 exec, {T3}, 0\nbuffer_store_dwordx4 v[236:239], v6, {sWS}, {T4} offen sc1\ns_mov_b64 exec, -1")
        for ct in range(2):
            for j in range(2):
                for q in range(4):
                    z = 8*ct + 4*j + q
                    a(f"v_cvt_pk_bf16_f32 v{PK+z}, v{ACC+2*z}, v{ACC+2*z+1}")
                if var == "K":
                    a(f"buffer_store_dwordx4 {V(PK+8*ct+4*j,4)}, v7, {sWS}, {T4} offen offset:{ct*2048+j*1024} {KVSC}")
                else:
                    a(f"buffer_store_dwordx4 {V(PK+8*ct+4*j,4)}, v{4+ct}, {sWS}, {T4} offen offset:{j*1024} {KVSC}")
        if var == "K": a("s_branch L_kvdone\nL_kvnone:\ns_waitcnt vmcnt(0)\ns_branch L_kvdone")
    a("L_kvdone:\ns_mov_b64 exec, 1\nds_add_u32 v250, v251\ns_mov_b64 exec, -1")
    stamp(a, 2)
    NB = cfg.nbuf
    Q = 16; O = 48; SA = 112; KVB = 144; P0 = KVB + 16*NB; P1 = P0 + 4
    assert P1 + 4 <= 240
    QP = 224
    S_LD = "s9"
    def kv_loads(t, so=None):
        b = KVB + 16 * (t % NB); so = so or f"s{TO + (t if not cfg.hack or t < cfg.hack else t % cfg.hack)}"
        return [f"buffer_load_dwordx4 {V(b+4*j,4)}, v{VK if j < 2 else VV}, {sWS}, {so} offen offset:{(j%2)*1024} {KVLD}" for j in range(4)]
    PV = 254; QA = (4, 6, 8, 9)
    pl = poll_issue(f"v{VF}", PG[0], PV, 4)
    QW = 176
    def qsync(target):
        a("s_mov_b64 exec, 1\nds_add_u32 v250, v251 offset:4\ns_mov_b64 exec, -1")
        lwait(a, "v250", 5, target, 14, off=4)
    def qmma(c0, c1, issue, check):
        rd = [f"ds_read_b64_tr_b16 {V(QW+(i%3)*16+mm*4+hf*2,2)}, v15 offset:{i*4096+mm*1024+hf*256}" for i in range(c0, c1) for mm in range(4) for hf in range(2)]
        iss = min(len(rd), 12)
        for s_ in rd[:iss]: a(s_)
        for m in range(4 * (c1 - c0)):
            a(f"s_waitcnt lgkmcnt({iss - (2*m + 2)})")
            a(mfma(ACC, QW + ((c0 + m // 4) % 3) * 16 + 4*(m % 4), X + 16*c0 + 4*m, None if c0 + m == 0 else ACC))
            for s_ in rd[iss:iss+2]: a(s_)
            iss = min(len(rd), iss + 2)
            if m == issue: a(pl)
            if m == check:
                Lf, Lg = a.lab("pf"), a.lab("pg")
                a(f"s_waitcnt vmcnt(0)\n{poll_check(PV, 4)}\ns_cbranch_scc1 {Lf}\ns_mov_b32 {S_LD}, 1")
                for t in range(2):
                    for s_ in kv_loads(t): a(s_)
                a(f"s_branch {Lg}\n{Lf}:\n{pl}\n{Lg}:")
    S_OB, S_FO, S_LO, S_HI, S_CL, S_M0 = "s10", "s11", "s12", "s13", "s14", "s[76:77]"
    def addrs():
        a(f"""s_lshl_b32 {S_OB}, {S_TILE}, 4
s_add_u32 {S_OB}, {S_OB}, {S_H}
s_lshl_b32 {S_OB}, {S_OB}, 11
s_add_u32 {S_OB}, {S_OB}, {OBUF}
s_lshl_b32 {S_FO}, {S_R}, 4
s_add_u32 {S_FO}, {S_FO}, {S_H}
s_lshl_b32 {S_FO}, {S_FO}, 7
s_add_u32 {S_FO}, {S_FO}, {FO}
s_mov_b32 {S_LO}, {lit(2.0**-40)}
s_mov_b32 {S_HI}, {lit(2.0**30)}
s_movk_i32 {S_CL}, 0x1f8
s_cmp_eq_u32 {S_W4}, 0
s_cselect_b64 {S_M0}, 1, 0
v_mov_b32 v2, v250
v_mov_b32 v3, 1
v_mov_b32 v7, v{VL}
v_mov_b32 v248, {lit(28 ** -0.5 * math.log2(math.e))}
v_mov_b32 v249, v248""")
        for i in range(4):
            a(f"""s_add_u32 {T0}, {S_W4}, {i+1}
s_and_b32 {T0}, {T0}, 3
s_lshl_b32 {T1}, {T0}, 11
s_add_u32 {T1}, {T1}, {L_Q}
v_add_u32 v{QA[i]}, {T1}, v7
s_mul_i32 {T0}, {T0}, 12288
s_add_u32 {T0}, {T0}, {(i%3)*4096 + L_RED}
v_add_u32 v{10+i}, {T0}, v7""")
    def publish(n):
        a(f"s_waitcnt vmcnt({n})")
        publish_wg(a, "v250", "v251", 16, 5, S_FL, 244)
        stamp(a, 3)
        a("s_waitcnt vmcnt(1)")
    E = cfg.wqe
    a(f"s_mov_b32 {S_LD}, 0\ns_cmp_eq_u32 s81, 1\ns_cbranch_scc1 L_qtwo")
    S_M0 = "s[82:83]" if cfg.xafirst else S_M0
    if cfg.xafirst:
        addrs()
        if cfg.wqdel: a(f"s_sleep {cfg.wqdel}")
        for i in range(7): a(wq(i).replace("s82", T0))
    else:
        for i in range(7): a(wq(i))
        addrs()
    publish(7)
    qsync(4)
    stamp(a, 4)
    qmma(0, 7, cfg.m1, cfg.m2)
    a("s_branch L_qdone\nL_qtwo:\ns_waitcnt vmcnt(4)")
    qsync(4)
    for i in range(E, 7): a(wq(i))
    qmma(0, E, -1, -1)
    addrs()
    publish(7 - E)
    qsync(8)
    stamp(a, 4)
    qmma(E, 7, 0, 4 * (7 - E) - 1)
    a("L_qdone:")
    stamp(a, 5)
    a(f"s_bitcmp1_b32 {S_H}, 0")
    for hf in range(2):
        for q in range(8*hf, 8*hf+8, 2): pk2(a, "mul", ACC+q, ACC+q, 248, scalar=cfg.nopk & 1)
        for q in range(4*hf, 4*hf+4): a(f"v_cvt_pk_bf16_f32 v{QP+q}, v{ACC+2*q}, v{ACC+2*q+1}")
        if hf == 0: a(f"s_cselect_b32 exec_lo, -1, 0\ns_mov_b32 exec_hi, 0\nv_mov_b32 v{QP}, 0\nv_mov_b32 v{QP+1}, 0\ns_mov_b64 exec, -1")
        else: a(f"s_cselect_b32 exec_hi, 0, -1\ns_mov_b32 exec_lo, 0\nv_mov_b32 v{QP+6}, 0\nv_mov_b32 v{QP+7}, 0\ns_mov_b64 exec, -1")
        a(f"ds_write_b128 v9, {V(QP+4*hf,4)} offset:{1024*hf}")
    a(f"""s_mov_b64 exec, 1
ds_add_u32 v2, v3
s_mov_b64 exec, -1
s_cmp_eq_u32 {S_LD}, 1
s_cbranch_scc1 L_kvloaded
s_waitcnt vmcnt(0)
{poll_check(PV, 4)}
s_cbranch_scc0 L_kvready""")
    poll(a, f"v{VF}", PG[0], PV, 4, 1, sleep=2)
    a("L_kvready:")
    for t in range(2):
        for s_ in kv_loads(t): a(s_)
    a("L_kvloaded:\ns_mov_b64 exec, 1\nds_add_u32 v2, v3 offset:12\ns_mov_b64 exec, -1")
    stamp(a, 6)
    if cfg.fine == 6:
        a(f"s_lshl_b32 {T0}, {S_LD}, 10\ns_add_u32 s{STAMP0+1}, s{STAMP0}, {T0}\ns_sub_u32 {T0}, {cfg.poll_limit}, {S_TO}\ns_cmp_gt_u32 {T0}, 100\ns_cselect_b32 {T0}, -1, {T0}\ns_add_u32 {T0}, {T0}, 1\ns_lshl_b32 {T0}, {T0}, 10\ns_add_u32 s{STAMP0+2}, s{STAMP0}, {T0}")
    lwait(a, "v2", 5, 12, 15)
    a(f"s_mov_b32 {S_BAR}, 12")
    for i in range(4):
        a(f"ds_read_b128 {V(Q+8*i,4)}, v{QA[i]}\nds_read_b128 {V(Q+8*i+4,4)}, v{QA[i]} offset:1024")
    stamp(a, 7)
    a("s_waitcnt vmcnt(6) lgkmcnt(6)\ns_setprio 0")
    if cfg.padmid: padto(a, cfg.padmid)
    stamp(a, 8)
    a(mfma(SA, KVB, Q)); a(mfma(SA, KVB + 4, Q + 4, SA))
    a("s_waitcnt vmcnt(4) lgkmcnt(0)\ns_nop 9\n.p2align 3")
    sched = {}
    issued = 2
    for t in range(16):
        for i in (1, 2):
            if (i == 1 or t % cfg.ramp == 0) and issued <= min(15, t + NB - 1):
                sched[(t, i)] = issued; issued += 1
    first = {g: min(k for k, v in sched.items() if v == 4*g) for g in (1, 2, 3)}
    pollat = {(k[0] - 1, 0): g for g, k in first.items()}
    vq = [("t", 1)] * 4
    def after(tag): return len(vq) - 1 - max(q for q, e in enumerate(vq) if e == tag)
    assert NB >= 5
    units = [(t, i) for t in range(12) for i in range(4)] + [(t, i) for i in range(4) for t in range(12, 16)]
    firstuse = {}
    for n, (t, i) in enumerate(units): firstuse.setdefault(t, n)
    waitat = {n - 2: t for t, n in firstuse.items() if t > 0}
    kb = lambda tt: KVB + 16 * (tt % NB)
    redw = lambda i, q: f"ds_write_b128 v{10+i}, {V(O+16*i+4*q,4)} offset:{q*1024}"
    for n, (t, i) in enumerate(units):
        if n % 8 == 0 and n: stamp(a, n // 8, 3)
        cur = SA + 16 * (n % 2); nxt = SA + 16 * ((n + 1) % 2)
        ms = [None] * 4
        if n < 63:
            tn, inx = units[n + 1]
            ms[0] = mfma(nxt, kb(tn), Q + 8*inx); ms[1] = mfma(nxt, kb(tn) + 4, Q + 8*inx + 4, nxt)
        if n > 0:
            tp, ip = units[n - 1]
            ms[2] = mfma(O + 16*ip, kb(tp) + 12, P1, O + 16*ip)
        ms[3] = mfma(O + 16*i, kb(t) + 8, P0, None if t == 0 else O + 16*i)
        side = [None] * 4
        key = (n // 4, n % 4)
        if key in sched:
            assert n < 48
            tl = sched[key]
            if tl % 4 == 0:
                g = tl // 4
                a(f"s_waitcnt vmcnt({after(('p', g))})\nv_cmp_ne_u64 vcc, {S_NONCE}, v[14:15]\ns_cbranch_vccnz L_gate{g}\nL_gated{g}:\ns_nop 0")
            side = kv_loads(tl); vq += [("t", tl)] * 4
        if key in pollat:
            g = pollat[key]
            side[0] = f"buffer_load_dwordx2 v[14:15], v{VF}, {sWS}, {PG[g]} offen sc1"; vq.append(("p", g))
        sig = "\ns_mov_b64 exec, 1\nds_add_u32 v2, v3\ns_mov_b64 exec, -1"
        rdr = lambda q: f"ds_read_b128 {V(O+4*q,4)}, v13 offset:{q*1024}"
        if 53 <= n <= 56: side[1] = redw(0, n - 53)
        if n in (57, 58): side[1] = redw(1, 2*(n - 57)); side[3] = redw(1, 2*(n - 57) + 1) + (sig if n == 58 else "")
        if n == 60: side[1] = "ds_read_b32 v5, v2"
        if n == 61:
            a(f"s_waitcnt lgkmcnt(0)\nv_readfirstlane_b32 {T0}, v5\ns_cmp_ge_u32 {T0}, 16\ns_cbranch_scc0 L_redw\nL_redd:")
        if n in (61, 62):
            k_ = n - 61
            side = [redw(2, 2*k_), rdr(4*k_) + "\n" + rdr(4*k_+1), redw(2, 2*k_+1) + (sig if k_ else ""), rdr(4*k_+2) + "\n" + rdr(4*k_+3)]
        if n == 63: side[2] = "ds_read2_b32 v[4:5], v2 offset0:34 offset1:0"
        if n == cfg.bhi: side[0] = "s_setprio 3\ns_nop 0" + ("\n" + side[0] if side[0] else "")
        for p in range(4):
            if ms[p]: a(ms[p])
            if side[p]: a(side[p])
            for e in range(4):
                if n in waitat and p == 3 and e == 3:
                    a(f"s_waitcnt vmcnt({after(('t', waitat[n]))})\nv_exp_f32_e64 v{cur+4*p+e}, v{cur+4*p+e}")
                else:
                    a(f"v_exp_f32 v{cur+4*p+e}, v{cur+4*p+e}")
            pk = (P0, P0 + 2, P1, P1 + 2)[p]
            a(f"v_cvt_pk_bf16_f32 v{pk}, v{cur+4*p}, v{cur+4*p+1}\nv_cvt_pk_bf16_f32 v{pk+1}, v{cur+4*p+2}, v{cur+4*p+3}")
    a(f"s_waitcnt lgkmcnt(0)\nv_readfirstlane_b32 {T0}, v5\nv_readfirstlane_b32 {T1}, v4")
    a(mfma(O + 48, kb(15) + 12, P1, O + 48))
    a(f"s_add_u32 {T1}, {T1}, {12 if cfg.ohint and not cfg.noA else 20}\ns_min_u32 {T0}, {T0}, {T1}\ns_cmp_ge_u32 {T0}, 20\ns_cbranch_scc0 L_redw2\nL_redd2:")
    for q in range(8, 12): a(f"ds_read_b128 {V(O+4*q,4)}, v13 offset:{q*1024}")
    a("s_mov_b64 exec, 1\nds_add_u32 v2, v3")
    if cfg.ohint: a(f"s_mov_b64 exec, {S_M0}\nbuffer_store_dwordx2 v[244:245], v246, {sWS}, {S_FO} offen sc1")
    a("s_mov_b64 exec, -1")
    stamp(a, 9)
    OO = O + 48
    sc_ = cfg.nopk & 2
    for q in range(0, 16, 2): pk2(a, "add", O+q, O+q, O+16+q, scalar=sc_)
    for q in range(0, 16, 2): pk2(a, "add", OO+q, OO+q, O+q, scalar=sc_)
    a("s_waitcnt lgkmcnt(1)")
    for q in (12, 0, 2, 4, 6, 8, 10, 14): pk2(a, "add", OO+q, OO+q, O+32+q, scalar=sc_)
    a(f"""v_mov_b32 v10, v{OO+12}
v_mov_b32 v11, v{OO+12}
v_mul_f32 v12, v{OO}, v{OO+1}
v_mul_f32 v13, v{OO+2}, v{OO+3}
v_permlane32_swap_b32 v10, v11
v_fma_f32 v12, v{OO+4}, v{OO+5}, v12
v_fma_f32 v13, v{OO+6}, v{OO+7}, v13
v_rcp_f32 v10, v11
v_fma_f32 v12, v{OO+8}, v{OO+9}, v12
v_fma_f32 v13, v{OO+10}, v{OO+11}, v13
v_cmp_le_f32 s[70:71], {S_LO}, v11
v_fma_f32 v12, v{OO+12}, v{OO+13}, v12
v_fma_f32 v13, v{OO+14}, v{OO+15}, v13
v_cmp_ge_f32 s[72:73], {S_HI}, v11
v_add_f32 v12, v12, v13
v_cmp_class_f32 vcc, v12, {S_CL}
s_and_b64 s[70:71], s[70:71], s[72:73]
s_and_b64 vcc, vcc, s[70:71]
s_cmp_eq_u64 vcc, exec""")
    if cfg.force_fb: a("s_cmp_eq_u32 0, 1")
    a(f"s_cbranch_scc0 L_fallback\nL_fbdone:\nv_mov_b32 v11, v10")
    for hf in range(2):
        for q in range(8*hf, 8*hf+8, 2): pk2(a, "mul", OO+q, OO+q, 10, scalar=sc_)
        for q in range(4*hf, 4*hf+4): a(f"v_cvt_pk_bf16_f32 v{O+q}, v{OO+2*q}, v{OO+2*q+1}")
        if hf: a(f"s_mov_b32 exec_lo, 0\nv_mov_b32 v{O+6}, 0\ns_mov_b32 exec_lo, -1")
        if cfg.ohint: a(f"v_min_u32 v{O+4*hf}, -2, v{O+4*hf}")
        a(f"buffer_store_dwordx4 {V(O+4*hf,4)}, v7, {sWS}, {S_OB} offen offset:{1024*hf} sc1")
    stamp(a, 10)
    S_BP, S_CNT, S_DT = "s70", "s71", "s72"
    GS = 144; GC = 176; ZR = 196; G = 16; OL = 196; AR = 128
    S_O0, S_O1, S_FH, S_RT, S_CLM = "s73", "s74", "s75", "s76", "s77"
    a(f"""s_lshl_b32 {S_BP}, {S_XCD}, 3
s_lshr_b32 {T0}, {S_IDX}, 2
s_add_u32 {S_BP}, {S_BP}, {T0}
s_and_b32 {T1}, {S_IDX}, 3
s_cmp_ge_u32 {T1}, 2
s_cselect_b32 {S_CNT}, 3, 4
s_lshl_b32 {S_DT}, {T1}, 2
s_cmp_eq_u32 {T1}, 3
s_cselect_b32 {S_DT}, 11, {S_DT}
s_add_u32 {S_DT}, {S_DT}, {S_W4}
s_cmp_ge_u32 {S_W4}, {S_CNT}
s_cbranch_scc1 L_bend
s_setprio {cfg.fprio}
v_bfe_u32 v5, v1, 2, 1
v_lshlrev_b32 v5, 4, v5
v_bfe_u32 v6, v1, 3, 2
v_lshl_add_u32 v5, v6, 2, v5
v_and_b32 v6, 3, v1
v_add_u32 v5, v5, v6
s_lshl_b32 {T0}, {S_DT}, 5
v_add_u32 v5, {T0}, v5                    ; d
v_lshlrev_b32 v9, 31, v5
v_xor_b32 v9, 0.5, v9                     ; 0.5*(-1)^d
v_cvt_f32_u32 v5, v5
v_mul_f32 v5, {lit(1/448)}, v5
v_lshrrev_b32 v4, 5, v1
v_cvt_f32_u32 v6, v4
v_mul_f32 v6, v5, v6
v_mul_f32 v6, 4.0, v6
v_mul_f32 v{GC}, {lit(16.0)}, v5
v_cos_f32 v{GC}, v{GC}""")
    for j in range(16): a(f"v_fmamk_f32 v{GS+j}, v5, {lit(float(16*(j//8) + 8*((j%8)//4) + j%4))}, v6")
    a(f"v_add_f32 v{GC}, v{GC}, v{GC}")
    for j in range(16): a(f"v_sin_f32_e64 v{GS+16+j}, -v{GS+j}\nv_cos_f32 v{GS+j}, v{GS+j}")
    a(f"v_mov_b32 v{GC+1}, v{GC}")
    def ggen(q0, q1):
        a(".p2align 3")
        for q in range(q0, q1):
            rho = q % 2; st = q // 2
            cur = GS + 16*rho + 8*(st % 2); oth = GS + 16*rho + 8*((st + 1) % 2); gp = G + 4*q
            if st >= 2:
                for z in range(0, 8, 2):
                    pk2(a, "fma", cur+z, GC, oth+z, cur+z, neg="2", scalar=cfg.nopk & 8)
            for z in range(4): a(f"v_cvt_pk_bf16_f32 v{gp+z}, v{cur+2*z}, v{cur+2*z+1}")
            if st == 0:
                a(f"s_mov_b32 exec_hi, 0\nv_cvt_pk_bf16_f32 v{gp}, {'v9' if rho else '0.5'}, v{cur+1}\ns_mov_b32 exec_hi, -1")
    ggen(0, 28)
    stamp(a, 11)
    srd(a, sOUT, 16, 2048 * 1792)
    a(f"""v_add_u32 v8, {L_ZB}, v7
s_mul_i32 {T4}, {S_BP}, 1792
s_lshl_b32 {T1}, {S_DT}, 6
s_add_u32 {T4}, {T4}, {T1}""")
    if cfg.cost & 2:
        a(f"""s_lshl_b32 {T1}, {S_W4}, 11
s_add_u32 {T1}, {T1}, {L_Q}
v_and_b32 v10, 31, v1
v_lshlrev_b32 v10, 6, v10
v_lshl_add_u32 v10, v4, 5, v10
v_add_u32 v10, {T1}, v10
v_add_u32 v11, {T1}, v7
v_lshrrev_b32 v6, 2, v1
v_mul_u32_u24 v6, {64*1792}, v6
v_and_b32 v12, 3, v1
v_lshl_add_u32 v6, v12, 4, v6
s_add_u32 {T3}, {T4}, {16*64*1792}""")
    else:
        a(f"v_and_b32 v6, 31, v1\nv_mul_u32_u24 v6, {64*1792}, v6\nv_lshl_add_u32 v6, v4, 5, v6")
    lwait(a, "v2", 5, 4, 17, off=132)
    stamp(a, 13)
    order = [4*(q//4) + 2*(q % 2) + ((q//2) % 2) for q in range(28)]
    for q in range(8): a(f"ds_read_b128 {V(ZR+4*q,4)}, v8 offset:{order[q]*1024}")
    for p in range(28):
        a(f"s_waitcnt lgkmcnt({min(7, 27-p)})")
        a(mfma(AR, G + 4*p, ZR + 4*(p % 8), None if p == 0 else AR))
        if p + 8 < 28: a(f"ds_read_b128 {V(ZR+4*(p%8),4)}, v8 offset:{order[p+8]*1024}")
    osc = ("", " sc1", " nt", " sc0 sc1", " sc1 nt")[cfg.outsc]
    if cfg.odefer and not cfg.noA: lwait(a, "v2", 5, 4, 36, sleep=2, off=20)
    for hf in range(2):
        for q in range(4*hf, 4*hf+4): a(f"v_cvt_pk_bf16_f32 v{GS+q}, v{AR+2*q}, v{AR+2*q+1}")
        if cfg.cost & 2: a(f"ds_write_b128 v10, {V(GS+4*hf,4)} offset:{16*hf}")
        else: a(f"buffer_store_dwordx4 {V(GS+4*hf,4)}, v6, {sOUT}, {T4} offen offset:{16*hf}{osc}")
    if cfg.cost & 2:
        a(f"""ds_read_b128 {V(GS+8,4)}, v11
ds_read_b128 {V(GS+12,4)}, v11 offset:1024
s_waitcnt lgkmcnt(1)
buffer_store_dwordx4 {V(GS+8,4)}, v6, {sOUT}, {T4} offen{osc}
s_waitcnt lgkmcnt(0)
buffer_store_dwordx4 {V(GS+12,4)}, v6, {sOUT}, {T3} offen{osc}""")
    a("L_bend:")
    stamp(a, 12)
    dump_stamps(a, 240)
    a("s_endpgm")
    a("L_redw:")
    lwait(a, "v2", 5, 16, 2)
    a("s_branch L_redd\nL_redw2:")
    lwait(a, "v2", 5, 20, 2)
    if cfg.ohint and not cfg.noA: lwait(a, "v2", 5, 8, 39, sleep=1, off=136)
    a("s_branch L_redd2")
    for g in (1, 2, 3):
        a(f"L_gate{g}:")
        poll(a, f"v{VF}", PG[g], 14, 4, 25, sleep=2)
        a(f"s_branch L_gated{g}")
    a("L_fallback:")
    QO = Q + 24; KB = KVB; M = 15; S_SO = "s70"
    a(f"v_mov_b32 v{M}, 0xff800000\ns_mov_b32 {S_SO}, {KV}\nL_fb1:")
    for s_ in kv_loads(0, S_SO)[:2]: a(s_)
    a(f"s_add_u32 {S_SO}, {S_SO}, {TS}\ns_waitcnt vmcnt(0)")
    a(mfma(SA, KB, QO)); a(mfma(SA, KB + 4, QO + 4, SA))
    for q in range(0, 16, 2): a(f"v_max3_f32 v{M}, v{M}, v{SA+q}, v{SA+q+1}")
    a(f"""s_cmp_lt_u32 {S_SO}, {KV + 64*TS}
s_cbranch_scc1 L_fb1
v_mov_b32 v14, v{M}
v_permlane32_swap_b32 v14, v{M}
v_max_f32 v{M}, v14, v{M}
s_mov_b32 {S_SO}, {KV}""")
    for q in range(16): a(f"v_mov_b32 v{OO+q}, 0")
    a("L_fb2:")
    for s_ in kv_loads(0, S_SO): a(s_)
    a(f"s_add_u32 {S_SO}, {S_SO}, {TS}\ns_waitcnt vmcnt(0)")
    a(mfma(SA, KB, QO)); a(mfma(SA, KB + 4, QO + 4, SA))
    for q in range(16): a(f"v_sub_f32 v{SA+q}, v{SA+q}, v{M}")
    for q in range(16): a(f"v_exp_f32 v{SA+q}, v{SA+q}")
    for q in range(8): a(f"v_cvt_pk_bf16_f32 v{P0+q}, v{SA+2*q}, v{SA+2*q+1}")
    a(mfma(OO, KB + 8, P0, OO)); a(mfma(OO, KB + 12, P1, OO))
    a(f"""s_cmp_lt_u32 {S_SO}, {KV + 64*TS}
s_cbranch_scc1 L_fb2
v_mov_b32 v10, v{OO+12}
v_mov_b32 v11, v{OO+12}
v_permlane32_swap_b32 v10, v11
v_rcp_f32 v10, v11
s_branch L_fbdone""")

def role_A(a):
    FB = 16; GS0 = 48; M = 72; F = 88; ACC = 200; TMP = 216
    S_BP = "s78"
    S_CG, S_CNT, S_CB, S_DT, S_TASK, S_K1 = "s79", "s80", "s81", "s82", "s83", "s73"
    S_B, S_KT16 = S_BP, S_DT
    (PN, _, _, P_TST, P_W, P_F1, P_TLD, P_TBW, P_TBR, P_TTW, P_TTR, P_UST, P_F2, P_WOD, P_WOR, P_WOR2,
     P_ZW0, P_ZW1, P_PF, P_BC, P_PS, _, P_LS, P_DUM) = range(232, 256)
    sc = 1.0 / (2048 * 448)
    def albar(code): lbar(a, "v14", "v15", P_LS, code, sleep=1)
    def burst(items, th):
        a("s_setprio 0")
        for q, it in enumerate(items):
            if q >= th: a(f"s_waitcnt vmcnt({th-1})")
            a(it)
        a(f"s_setprio {cfg.aprio}")
    SB = "s[74:75]"
    def stage_arrive(k):
        L = a.lab("arr")
        a(f"""s_waitcnt vmcnt(0)
s_mov_b64 exec, 1
ds_add_rtn_u32 v{P_LS}, v14, v15 offset:8
s_mov_b64 exec, -1
s_waitcnt lgkmcnt(0)
v_readfirstlane_b32 {T0}, v{P_LS}
s_cmp_eq_u32 {T0}, {4*k+3}
s_cbranch_scc0 {L}
s_mov_b32 {T0}, 1
s_lshl_b32 {T1}, {S_XCD}, 7
s_add_u32 {T1}, {T1}, {k*1024}
s_atomic_add {T0}, {SB}, {T1} glc
s_waitcnt lgkmcnt(0)
s_sub_u32 {T0}, {T0}, s62
s_cmp_eq_u32 {T0}, 31
s_cbranch_scc0 {L}
s_mov_b32 {T1}, {FA1 + 2048 + k*8192}
s_mov_b64 exec, {-1 if cfg.allpoll else 0xffff}
buffer_atomic_add v15, v{P_PF}, {sWS}, {T1} offen sc1
s_mov_b64 exec, -1
{L}:""")
    def stage_wait(k, pre):
        if cfg.ko & 4:
            a("s_waitcnt lgkmcnt(0)"); return
        L, L2, L3 = a.lab("sw"), a.lab("sw"), a.lab("sw")
        if not cfg.allpoll: a(f"s_cmp_eq_u32 {S_W4}, 0\ns_cbranch_scc0 {L2}")
        a(f"""s_and_b32 {T1}, s2, 15
s_lshl_b32 {T2}, {S_W4}, 4
s_add_u32 {T1}, {T1}, {T2}
s_lshl_b32 {T1}, {T1}, 7
s_add_u32 {T1}, {T1}, {2048 + k*8192}
s_add_u32 {T2}, s62, 8
s_mov_b32 {S_TO}, {cfg.poll_limit}
s_waitcnt lgkmcnt(0)
s_sleep {pre}
{L}:
s_mov_b32 {T0}, 0
s_atomic_or {T0}, {SB}, {T1} glc
s_waitcnt lgkmcnt(0)
s_cmp_eq_u32 {T0}, {T2}
s_cbranch_scc1 {L}d
s_sleep {cfg.bsleep}
s_sub_u32 {S_TO}, {S_TO}, 1
s_cbranch_scc0 {L}
s_mov_b32 {S_TO}, 32
s_branch L_fail
{L}d:""")
        if cfg.allpoll: return
        a(f"s_mov_b64 exec, 1\nds_add_u32 v14, v15 offset:12\ns_mov_b64 exec, -1\ns_branch {L3}\n{L2}:")
        lwait(a, "v14", P_LS, k + 1, 33, sleep=cfg.lsl, off=12)
        a(f"{L3}:")
    def pace():
        if cfg.pace: a(f"s_sleep {cfg.pace}")
    a(f"""L_roleA:
v_mov_b32 v3, 0
v_mov_b32 v2, {L_SYNC}
ds_write2_b32 v2, v3, v3 offset0:0 offset1:32
ds_write2_b32 v2, v3, v3 offset0:1 offset1:2
ds_write2_b32 v2, v3, v3 offset0:3 offset1:33
ds_write2_b32 v2, v3, v3 offset0:4 offset1:34
ds_write2_b32 v2, v3, v3 offset0:5 offset1:35
ds_write2_b32 v2, v3, v3 offset0:8 offset1:9
ds_write2_b32 v2, v3, v3 offset0:10 offset1:11
s_setprio {cfg.aprio}
s_mov_b32 {S_BAR}, 0
s_lshl_b32 {S_BP}, {S_XCD}, 3
s_lshr_b32 {T0}, {S_IDX}, 2
s_add_u32 {S_BP}, {S_BP}, {T0}
s_and_b32 {S_CG}, {S_IDX}, 3
s_cmp_ge_u32 {S_CG}, 2
s_cselect_b32 {S_CNT}, 3, 4
s_lshl_b32 {S_CB}, {S_CG}, 2
s_cmp_eq_u32 {S_CG}, 3
s_cselect_b32 {S_CB}, 11, {S_CB}
s_add_u32 {S_DT}, {S_CB}, {S_W4}
v_and_b32 v2, 31, v1                      ; v2 = lane%32
v_lshrrev_b32 v3, 5, v1                   ; v3 = half
v_cvt_f32_u32 v4, v3
s_waitcnt lgkmcnt(0)
{st0()}""")
    if cfg.touch:
        tl = [["s[10:11], 0", "s[4:5], 0", "s[6:7], 0"], ["s[20:21], s76", "s[8:9], 0", "s[14:15], 0"],
              ["s[20:21], s77", "s[16:17], 0", "s[16:17], s76"], ["s[20:21], s74", "s[20:21], s75"]]
        a(f"s_cmp_ge_u32 {S_IDX}, {cfg.touch}\ns_cbranch_scc1 L_tch\ns_mov_b32 s76, 0x200000\ns_mov_b32 s77, 0x600000\ns_mov_b32 s74, 0x400000\ns_mov_b32 s75, 0x800000")
        for w in range(4):
            a(f"s_cmp_lg_u32 {S_W4}, {w}\ns_cbranch_scc1 L_tch{w}")
            for t_ in tl[w]: a(f"s_load_dword s72, {t_}")
            a(f"L_tch{w}:")
        a("L_tch:")
    def angles(n, vstep, vbase, offs, dst=TMP):
        for j in range(n): a(f"v_fmamk_f32 v{dst+j}, {vstep}, {lit(float(offs[j]))}, {vbase}")
    def gen_F():
        A0 = TMP; A1 = TMP + 8; C2 = TMP + 16
        a(f"""v_and_b32 v5, 15, v1
s_lshl_b32 {T0}, {S_KT16}, 4
v_add_u32 v5, {T0}, v5                    ; k
v_bfe_u32 v6, v1, 4, 1
v_lshl_add_u32 v7, v5, 1, v6
v_cmp_eq_u32 vcc, 1, v7
v_mov_b32 v7, 224
v_cndmask_b32 v5, v5, v7, vcc
v_cndmask_b32 v6, v6, 0, vcc
v_cvt_f32_u32 v5, v5
v_cvt_f32_u32 v6, v6
v_mul_f32 v5, {lit(1/448)}, v5            ; kf
v_mul_f32 v6, {lit(0.25)}, v6
v_mul_f32 v7, v5, v4
v_fmamk_f32 v6, v7, {lit(8.0)}, v6
v_mul_f32 v{C2}, {lit(16.0)}, v5
v_cos_f32 v{C2}, v{C2}""")
        angles(16, "v5", "v6", [j % 8 + 16 * (j // 8) for j in range(16)])
        a(f"v_add_f32 v{C2}, v{C2}, v{C2}")
        for j in range(16): a(f"v_cos_f32 v{A0+j}, v{A0+j}")
        a(f"v_mov_b32 v{C2+1}, v{C2}\ns_barrier\n.p2align 3")
        for m in range(28):
            cur = A0 if m % 2 == 0 else A1; oth = A1 if m % 2 == 0 else A0
            if m >= 2:
                for q in range(0, 8, 2):
                    a(f"v_pk_fma_f32 {V(cur+q,2)}, {V(C2,2)}, {V(oth+q,2)}, {V(cur+q,2)} neg_lo:[0,0,1] neg_hi:[0,0,1]")
            for q in range(4): a(f"v_cvt_pk_bf16_f32 v{F+4*m+q}, v{cur+2*q}, v{cur+2*q+1}")
    def gen_M():
        a(f"""v_cvt_f32_u32 v5, v2
s_and_b32 {T0}, {S_W4}, 1
s_lshl_b32 {T0}, {T0}, 10
s_add_u32 {T0}, {T0}, {S_B}
v_lshl_add_u32 v6, v3, 8, {T0}
v_cvt_f32_u32 v6, v6
v_mul_f32 v6, v6, v5
s_cmp_ge_u32 {S_W4}, 2
s_cselect_b32 {T0}, {lit(0.25)}, 0
v_mov_b32 v7, {T0}
v_fmamk_f32 v6, v6, {lit(1/2048)}, v7
v_mul_f32 v5, {lit(1/32)}, v5""")
        angles(8, "v5", "v6", [8*(j//4) + j%4 for j in range(8)])
        for j in range(8): a(f"v_cos_f32 v{TMP+j}, v{TMP+j}")
        for q in range(4): a(f"v_cvt_pk_bf16_f32 v{ACC+8+q}, v{TMP+2*q}, v{TMP+2*q+1}")
    def gen_MS():
        a(f"""v_lshlrev_b32 v5, 6, v2
v_add_u32 v5, {S_BP}, v5
v_cvt_f32_u32 v5, v5
v_mul_f32 v5, {lit(1/2048)}, v5
s_lshl_b32 {T0}, {S_W4}, 3
v_lshl_add_u32 v6, v3, 2, {T0}
v_cvt_f32_u32 v6, v6
v_mul_f32 v6, v5, v6""")
        angles(4, "v5", "v6", range(4), TMP + 8)
        for j in range(4): a(f"v_cos_f32 v{TMP+2*j}, v{TMP+8+j}\nv_sin_f32 v{TMP+2*j+1}, v{TMP+8+j}")
        a(f"v_mov_b32 v6, {lit(2*sc)}\nv_mov_b32 v7, v6")
        for j in range(4): pk2(a, "mul", TMP+2*j, TMP+2*j, 6, scalar=cfg.nopk & 16)
        for j in range(4):
            a(f"v_cvt_pk_bf16_f32 v{48+j}, v{TMP+2*j}, v{TMP+2*j+1}\nv_cvt_pk_bf16_f32 v{52+j}, v{TMP+2*j+1}, -v{TMP+2*j}")
    def gen_FB():
        a(f"""v_and_b32 v5, 15, v1
s_lshl_b32 {T0}, {S_W4}, 4
v_add_u32 v5, {T0}, v5
v_cvt_f32_u32 v5, v5
v_mul_f32 v5, {lit(1/64)}, v5
v_bfe_u32 v6, v1, 4, 1
v_cvt_f32_u32 v6, v6
v_mul_f32 v6, {lit(0.25)}, v6
v_mul_f32 v7, v5, v4
v_fmamk_f32 v6, v7, {lit(4.0)}, v6""")
        C2 = TMP + 16
        a(f"v_mul_f32 v{C2}, {lit(8.0)}, v5\nv_cos_f32 v{C2}, v{C2}")
        angles(8, "v5", "v6", [8*(j//4) + j%4 for j in range(8)], TMP + 20)
        a(f"v_add_f32 v{C2}, v{C2}, v{C2}")
        for j in range(8): a(f"v_cos_f32 v{TMP+2*j}, v{TMP+20+j}\nv_sin_f32 v{TMP+2*j+1}, v{TMP+20+j}")
        a(f"v_mov_b32 v{C2+1}, v{C2}")
        for m in range(8):
            cur = TMP + 8*(m % 2); oth = TMP + 8*((m + 1) % 2)
            if m >= 2:
                for q in range(0, 8, 2):
                    pk2(a, "fma", cur+q, C2, oth+q, cur+q, neg="2", scalar=cfg.nopk & 16)
            for q in range(4): a(f"v_cvt_pk_bf16_f32 v{FB+4*m+q}, v{cur+2*q}, v{cur+2*q+1}")
    def gen_addr():
        a(f"""v_mov_b32 v{PN+2}, 0
v_lshlrev_b32 v7, 4, v1                   ; v7 = lane*16
v_and_b32 v6, 3, v1
v_lshrrev_b32 v5, 2, v1
v_lshlrev_b32 v5, 16, v5
v_lshl_add_u32 v{P_TST}, v6, 4, v5
s_lshl_b32 {T1}, {S_W4}, 11
s_add_u32 {T0}, {T1}, {L_TT}
v_add_u32 v{P_TTR}, {T0}, v7
v_lshlrev_b32 v5, 6, v2
v_lshl_add_u32 v5, v3, 4, v5
v_add_u32 v{P_TTW}, {T0}, v5
s_lshl_b32 {S_TASK}, {S_XCD}, 5
s_add_u32 {S_TASK}, {S_TASK}, {S_IDX}
s_lshr_b32 {T0}, {S_TASK}, 3
s_lshl_b32 {T2}, {S_W4}, 9
s_add_u32 {T0}, {T0}, {T2}
s_mul_i32 {T0}, {T0}, 225
s_lshl_b32 {T2}, {S_HH}, 5
s_add_u32 {T0}, {T0}, {T2}
v_mul_u32_u24 v5, {128*225}, v3
v_add3_u32 v5, v5, v2, {T0}
v_lshlrev_b32 v{P_W}, 1, v5
v_bfe_u32 v12, v1, 4, 1
v_lshlrev_b32 v5, 2, v2
v_lshl_add_u32 v{P_TLD}, v3, 9, v5
v_lshl_add_u32 v{P_UST}, v3, 17, v5
v_lshl_add_u32 v{P_F2}, v3, 18, v5
v_add_u32 v{P_TBR}, {L_TB}, v7
v_add_u32 v{P_TBW}, {T1}, v{P_TBR}
s_add_u32 {S_K1}, {S_W4}, 3
s_cmp_eq_u32 {S_W4}, 0
s_cselect_b32 {S_K1}, 7, {S_K1}
s_lshl_b32 {T0}, {S_W4}, 12
v_add_u32 v{P_ZW0}, {T0}, v{P_TBR}
s_lshl_b32 {T0}, {S_K1}, 12
v_add_u32 v{P_ZW1}, {T0}, v{P_TBR}
v_bfe_u32 v13, v1, 2, 2
v_lshrrev_b32 v5, 4, v1
v_xor_b32 v{P_WOD}, v13, v5
s_sub_u32 {T0}, {S_CNT}, 1
v_min_u32 v{P_WOD}, {T0}, v{P_WOD}
v_add_u32 v{P_WOD}, {S_CB}, v{P_WOD}
v_lshlrev_b32 v{P_WOD}, 6, v{P_WOD}
v_mul_u32_u24 v5, 896, v5
v_add_u32 v5, v5, v{P_WOD}
v_lshl_add_u32 v5, v6, 4, v5
s_mul_i32 {T0}, {S_W4}, {4*896}
v_add_u32 v{P_WOD}, {T0}, v5
v_xor_b32 v5, {S_W4}, v13
v_lshlrev_b32 v5, 6, v5
v_lshl_add_u32 v5, v13, 8, v5
v_and_b32 v6, 1, v1
v_lshl_add_u32 v5, v6, 5, v5
v_lshl_add_u32 v5, v12, 4, v5
v_bfe_u32 v6, v1, 1, 1
v_lshl_add_u32 v5, v6, 3, v5
v_add_u32 v{P_WOR2}, {L_X}, v5
v_lshl_add_u32 v{P_WOR}, v3, 10, v{P_WOR2}""")
    pieces = [gen_F, gen_FB, gen_M, gen_MS, gen_addr]
    assert cfg.pre >= 1
    def wq_warm():
        a(f"""s_cmp_eq_u32 {S_LC}, 7
s_cbranch_scc0 L_pf1
v_mul_u32_u24 v5, 2688, v1
s_mul_i32 {T0}, {T5}, 3
s_add_u32 {T0}, {T0}, {S_RR}
s_lshl_b32 {T0}, {T0}, 7
s_mul_i32 {T1}, {S_W4}, {128*2688}
s_add_u32 {T0}, {T0}, {T1}
s_add_u32 {T1}, {T0}, {64*2688}
buffer_load_dword v{P_DUM}, v5, {sWQKV}, {T0} offen
buffer_load_dword v{P_DUM}, v5, {sWQKV}, {T1} offen
L_pf1:""")
    def xa_warm():
        a(f"""s_cmp_eq_u32 {S_LC}, 7
s_cbranch_scc0 L_pf6
v_lshlrev_b32 v5, 7, v1
s_lshl_b32 {T0}, {S_RR}, 2
s_add_u32 {T0}, {T0}, {S_W4}
s_mul_i32 {T0}, {T0}, {2*64*896}
s_mul_i32 {T1}, {S_XCD}, {8*896}
s_add_u32 {T0}, {T0}, {T1}
s_add_u32 {T1}, {T0}, {64*896}
s_bfm_b64 exec, 56, 0
buffer_load_dword v{P_DUM}, v5, {sX}, {T0} offen
buffer_load_dword v{P_DUM}, v5, {sX}, {T1} offen
s_mov_b64 exec, -1
L_pf6:""")
    def kv_touch():
        srd(a, sWS, 20, WS_SIZE)
        a(f"""s_lshl_b32 {T0}, s2, 2
s_add_u32 {T0}, {T0}, {S_W4}
s_mul_i32 {T0}, {T0}, {30*128}
s_add_u32 {T0}, {T0}, {KV}
v_lshlrev_b32 v5, {6 if cfg.kvt64 else 7}, v1
v_mov_b32 v6, 0
s_bfm_b64 exec, {60 if cfg.kvt64 else 30 - (cfg.kvsn if cfg.kvs else 0)}, {cfg.kvsn if cfg.kvs else 0}
buffer_atomic_or v6, v5, {sWS}, {T0} offen sc1
s_mov_b64 exec, -1""")
    if cfg.kvt == 9: kv_touch()
    def kvi_touch():
        srd(a, sWS, 20, WS_SIZE)
        a(f"""s_cmp_eq_u32 {S_LC}, 7
s_cbranch_scc0 L_pf8
s_lshl_b32 {T0}, {S_XCD}, 4
s_lshl_b32 {T1}, {S_RR}, 2
s_add_u32 {T0}, {T0}, {T1}
s_add_u32 {T0}, {T0}, {S_W4}
s_mul_i32 {T0}, {T0}, {240*128}
s_add_u32 {T0}, {T0}, {KV}
v_lshlrev_b32 v5, 9, v1
v_mov_b32 v6, 0
s_bfm_b64 exec, 60, 0""")
        for q in range(cfg.kvi): a(f"buffer_atomic_or v6, v5, {sWS}, {T0} offen offset:{128*q} sc1")
        a("s_mov_b64 exec, -1\nL_pf8:")
    if cfg.kvi and cfg.kvipos == 0: kvi_touch()
    def mall_warm():
        a(f"""s_cmp_eq_u32 {S_LC}, 7
s_cbranch_scc0 L_pf7
s_lshl_b32 {T0}, {S_XCD}, 4
s_lshl_b32 {T1}, {S_RR}, 2
s_add_u32 {T0}, {T0}, {T1}
s_add_u32 {T0}, {T0}, {S_W4}
v_lshlrev_b32 v5, 7, v1""")
        if cfg.mw & 1:
            a(f"""v_lshrrev_b32 v6, 3, v1
v_mul_u32_u24 v6, 2688, v6
v_and_b32 v7, 7, v1
v_min_u32 v7, 6, v7
v_lshl_add_u32 v6, v7, 7, v6
s_mul_i32 {T1}, {T0}, {4*2688}
s_mov_b64 exec, 0xffffffff
buffer_load_dword v{P_DUM}, v6, {sWQKV}, {T1} offen""")
        if cfg.mw & 2: a(f"s_mul_i32 {T1}, {T0}, {25*128}\ns_bfm_b64 exec, 25, 0\nbuffer_load_dword v{P_DUM}, v5, {sWO}, {T1} offen")
        if cfg.mw & 4: a(f"s_mul_i32 {T1}, {T0}, {57*128}\ns_bfm_b64 exec, 57, 0\nbuffer_load_dword v{P_DUM}, v5, {sWR}, {T1} offen")
        if cfg.mw & 8: a(f"s_mul_i32 {T1}, {T0}, {57*128}\ns_bfm_b64 exec, 57, 0\nbuffer_load_dword v{P_DUM}, v5, {sWI}, {T1} offen")
        if cfg.mw & 16: a(f"s_mul_i32 {T1}, {T0}, {112*128}\ns_bfm_b64 exec, 56, 0\nbuffer_load_dword v{P_DUM}, v5, {sX}, {T1} offen")
        a("s_mov_b64 exec, -1\nL_pf7:")
    if cfg.spf:
        a(f"""s_lshl_b32 {T0}, s2, 2
s_add_u32 {T0}, {T0}, {S_W4}
s_mul_i32 {T1}, {T0}, {14*128}
s_add_u32 s76, s4, {T1}
s_addc_u32 s77, s5, 0
s_mul_i32 {T1}, {T0}, 900
s_add_u32 s70, s6, {T1}
s_addc_u32 s71, s7, 0
s_add_u32 s74, s8, {T1}
s_addc_u32 s75, s9, 0""")
    if cfg.kvs:
        srd(a, sWS, 20, WS_SIZE)
        a(f"""s_lshl_b32 s72, s2, 2
s_add_u32 s72, s72, {S_W4}
s_mul_i32 s72, s72, {30*128}
s_add_u32 s72, s72, {KV}
v_lshlrev_b32 v12, 7, v1
v_mov_b32 v13, 0""")
    n0 = len(a.L)
    for q in range(cfg.pre):
        if q == 4: n1 = len(a.L)
        pieces.pop(0)()
        if q == 0:
            srd(a, sWQKV, 12, 448 * 2688); srd(a, sX, 4, 0 if cfg.ko & 16 else 2048 * 896)
            srd(a, sWR, 6, 0 if cfg.ko & 1 else 2048 * 450); srd(a, sWI, 8, 0 if cfg.ko & 1 else 2048 * 450); srd(a, sWO, 14, 0 if cfg.ko & 2 else 448 * 896)
        if cfg.mw and cfg.mwpos == q + 1: mall_warm()
        if cfg.kvt == q + 1: kv_touch()
        if cfg.kvi and cfg.kvipos == q + 1: kvi_touch()
        if cfg.xawarm == q + 1: xa_warm()
        if cfg.wqwarm == q + 1: wq_warm()
    if cfg.kvs:
        from asmlib import Ins
        per = cfg.kvsn // cfg.kvs
        lo = n0 + cfg.kvs0; hi = n1
        for q in reversed(range(cfg.kvs)):
            at = lo + (hi - lo) * q // cfg.kvs
            while a.L[at].kind not in ("valu",) or a.L[at-1].kind not in ("valu",): at += 1
            a.L[at:at] = [Ins(f"s_bfm_b64 exec, {per}, {q*per}"), Ins(f"buffer_atomic_or v13, v12, {sWS}, s72 offen sc1"), Ins("s_mov_b64 exec, -1")]
    if cfg.spf:
        from asmlib import Ins
        pf = [f"s_load_dword s72, s[76:77], {q*128}" for q in range(14)]
        if cfg.spf >= 2: pf += [f"s_load_dword s72, s[{b}:{b+1}], {q*128}" for q in range(7) for b in (70, 74)]
        lo = n0 + cfg.spf0; hi = len(a.L)
        for q in reversed(range(len(pf))): a.L.insert(lo + (hi - lo) * q // len(pf), Ins(pf[q]))
    stamp(a, 1)
    srd(a, sWS, 20, WS_SIZE)
    srd(a, sOUT, 16, 2048 * 1792)
    S_XA, S_WQL, S_WQG = "s70", "s71", "s72"
    XD = 70
    a(f"""v_lshrrev_b32 v6, 3, v1
v_and_b32 v5, 7, v1
v_lshrrev_b32 v8, 4, v1
v_xor_b32 v5, v5, v8
s_and_b32 {T0}, {S_W4}, 1
s_lshl_b32 {T0}, {T0}, 2
v_xor_b32 v5, {T0}, v5
v_mul_u32_u24 v6, {64*896}, v6
s_mul_i32 {T1}, {S_W4}, {8*64*896}
s_mul_i32 {T2}, {S_B}, 896
s_add_u32 {T1}, {T1}, {T2}
v_add_u32 v6, {T1}, v6
v_lshl_add_u32 v{XD}, v5, 4, v6
s_lshl_b32 {T0}, {S_W4}, 10
s_add_u32 {S_XA}, {T0}, {L_X}
s_mov_b32 {T2}, {L_X}""")
    x_read_addrs(a, 8, "v1", T2, TMP)
    a(f"""v_mov_b32 v14, {L_SYNC+128}
v_mov_b32 v15, 1
v_mov_b32 v{P_BC}, {L_SYNC}
s_lshl_b32 {T1}, {S_CG}, 1""")
    lwait(a, f"v{P_BC}", P_LS, 4, 34, sleep=1)
    a(f"""ds_read_b64 {V(PN,2)}, v{P_BC} offset:64
v_lshlrev_b32 v{P_PF}, 7, v1
s_add_u32 s74, s20, {FA1}
s_addc_u32 s75, s21, 0
s_waitcnt lgkmcnt(0)
v_readfirstlane_b32 s62, v{PN}
v_readfirstlane_b32 s63, v{PN+1}
{f"s_lshr_b32 {T0}, s62, 28; s_lshl_b32 {T0}, {T0}, 24; s_add_u32 s24, s20, {T0}; s_addc_u32 s25, s21, 0; s_add_u32 s74, s74, {T0}; s_addc_u32 s75, s75, 0".replace("; ", chr(10)) if cfg.diagrot else ""}
s_lshl_b32 {T0}, s2, 2
s_add_u32 {T0}, {T0}, {S_W4}
s_cmp_lg_u32 {T0}, 0
s_cbranch_scc1 L_noinit
s_mov_b32 {T0}, {FA1}
buffer_store_dwordx2 {V(PN,2)}, v{P_PF}, {sWS}, {T0} offen offset:2048 sc1
s_mov_b32 {T2}, {FA1 + 8192}
buffer_store_dwordx2 {V(PN,2)}, v{P_PF}, {sWS}, {T2} offen offset:2048 sc1
s_mov_b64 exec, 0xff00
buffer_store_dwordx2 {V(PN,2)}, v{P_PF}, {sWS}, {T0} offen sc1
s_waitcnt vmcnt(0)
s_mov_b64 exec, 0xff
buffer_store_dwordx2 {V(PN,2)}, v{P_PF}, {sWS}, {T0} offen sc1
s_mov_b64 exec, -1
L_noinit:""")
    def wpull():
        L1, L2 = a.lab("wp"), a.lab("wp")
        a(f"""s_lshl_b32 {T2}, {S_IDX}, 1
s_lshr_b32 {T3}, {S_W4}, 1
s_add_u32 {T2}, {T2}, {T3}
s_mul_i32 {T2}, {T2}, 14400
s_mul_i32 {T3}, {S_XCD}, 1800
s_add_u32 {T2}, {T2}, {T3}
s_mov_b64 exec, 0x7fff
s_bitcmp1_b32 {S_W4}, 0
s_cbranch_scc1 {L1}
buffer_load_ushort v{P_DUM}, v{P_PF}, {sWR}, {T2} offen{' nt' if cfg.ntp else ''}
s_branch {L2}
{L1}:
buffer_load_ushort v{P_DUM}, v{P_PF}, {sWI}, {T2} offen{' nt' if cfg.ntp else ''}
{L2}:
s_mov_b64 exec, -1""")
    stamp(a, 2)
    if cfg.wpf == 2: wpull()
    lwait(a, f"v{P_BC}", P_LS, 4 if cfg.kvt != 7 else 1, 20, sleep=1, off=8)
    if cfg.kvt in (7, 8): kv_touch()
    if cfg.xas:
        a(f"s_mul_i32 {T2}, {S_H}, 7\ns_bfe_u32 {T2}, {T2}, 0x30001\ns_cmp_gt_u32 {T2}, 4\ns_cbranch_scc0 L_xago")
        lwait(a, f"v{P_BC}", P_LS, 4 * cfg.xas, 30, sleep=1, off=4)
        a("L_xago:")
    for c in range(7):
        if c == cfg.xae:
            if cfg.wpf == 1: wpull()
            if cfg.xalate == 1: lwait(a, f"v{P_BC}", P_LS, 4, 38, sleep=1, off=12)
            elif cfg.xalate == 2: lwait(a, f"v{P_BC}", P_LS, 9, 38, sleep=1)
            elif cfg.xafirst: lwait(a, f"v{P_BC}", P_LS, 8, 38)
            else: lwait(a, f"v{P_BC}", P_LS, 4, 38, sleep=1, off=16)
        a(f"""s_add_u32 {T2}, {T1}, 1
s_lshr_b32 {T3}, {T2}, 1
s_lshl_b32 {T3}, {T3}, 14
s_and_b32 {T4}, {T1}, 1
s_lshl_b32 {T4}, {T4}, 12
s_sub_u32 {T3}, {T3}, {T4}
s_add_u32 m0, {S_XA}, {T3}
s_lshl_b32 {T4}, {T1}, 7
buffer_load_dwordx4 v{XD}, {sX}, {T4} offen{' nt' if cfg.nta else ''} lds
s_cmp_eq_u32 {T2}, 7
s_cselect_b32 {T1}, 0, {T2}""")
    if cfg.wpf == 4: wpull()
    for p_ in pieces: p_()
    pieces = []
    assert not pieces
    a(f"""v_add_u32 v13, {L_M}, v7
s_lshl_b32 {T0}, {S_W4}, 10
v_add_u32 v5, {T0}, v13
ds_write_b128 v5, {V(ACC+8,4)}
s_cmp_eq_u32 {S_W4}, 0
s_cbranch_scc0 L_chkd
s_lshl_b32 {T1}, {S_XCD}, 7
s_mov_b32 {S_TO}, {cfg.poll_limit}
L_chk:
s_load_dwordx2 s[76:77], {SB}, {T1} glc
s_waitcnt lgkmcnt(0)
s_sub_u32 s76, s76, s62
s_lshr_b32 s76, s76, 5
s_xor_b32 s77, s77, s63
s_or_b32 s76, s76, s77
s_cbranch_scc0 L_chkd
s_sleep 4
s_sub_u32 {S_TO}, {S_TO}, 1
s_cbranch_scc0 L_chk
s_mov_b32 {S_TO}, 35
s_branch L_fail
L_chkd:""")
    WW = 136 if cfg.woearly else 72; AC = 152; FR = 168; TP = 200
    wl = []
    for r in range(8):
        wl.append(f"s_mov_b32 {T0}, {14400*(8*(r//4) + r%4)}\nbuffer_load_short_d16_hi v{WW+r}, v{P_W}, {sWR}, {T0} offen{' nt' if cfg.ntw else ''}")
        wl.append(f"buffer_load_short_d16_hi v{WW+8+r}, v{P_W}, {sWI}, {T0} offen{' nt' if cfg.ntw else ''}")
    if cfg.wearly:
        for s_ in wl: a(s_)
        a("s_waitcnt vmcnt(16)")
    else: a(f"s_waitcnt vmcnt({1 if cfg.wpf == 4 else 0})")
    stamp(a, 3)
    if cfg.noA == 1:
        a(f"s_mov_b64 exec, 1\nds_add_u32 v14, v15 offset:4\ns_mov_b64 exec, -1")
        stamp(a, 12); dump_stamps(a, 16); a("s_endpgm")
    albar(16)
    RG = cfg.ring
    def xreg(m): return (TMP + 4*m if m < 4 else 72 + 4*(m - 4)) if m < RG else F + 4*(m - RG)
    def xr(m): return f"ds_read_b128 {V(xreg(m),4)}, v{8+m%4} offset:{((m//4+1)>>1)*16384 - ((m//4)&1)*4096}"
    assert not (cfg.wearly and RG > 4)
    for m in range(RG): a(xr(m))
    P1 = F; P2 = F + 16; XP = TMP; M = F + 32
    if cfg.mprio == 0: a("s_setprio 0")
    nds = RG
    for m in range(28):
        a(f"s_waitcnt lgkmcnt({nds - m - 1})")
        a(mfma(ACC, xreg(m), F + 4*m, None if m == 0 else ACC))
        if m + RG < 28: a(xr(m + RG)); nds += 1
        elif m >= 24: a(f"ds_read_b128 {V(M+4*(m-24),4)}, v13 offset:{(m-24)*1024}"); nds += 1
    a(f"s_setprio {cfg.aprio}")
    lwait(a, f"v{P_BC}", P_LS, 8, 27, sleep=1)
    a(f"""s_lshl_b32 {T0}, {S_W4}, 11
s_add_u32 {T0}, {T0}, {L_MS}
v_add_u32 v5, {T0}, v7
ds_write_b128 v5, v[48:51]
ds_write_b128 v5, v[52:55] offset:1024
s_lshr_b32 {T0}, {S_KT16}, 1
s_lshl_b32 {T0}, {T0}, 13
s_lshl_b32 {T1}, {S_B}, 7
s_add_u32 {T1}, {T1}, {TBUF}
s_add_u32 {T0}, {T0}, {T1}
s_and_b32 {T2}, {S_KT16}, 1
s_lshl_b32 {T2}, {T2}, 6
s_add_u32 {T0}, {T0}, {T2}
s_add_u32 {T2}, {T0}, {16*65536}
s_cmp_ge_u32 {S_W4}, {S_CNT}
s_cbranch_scc1 L_a1done
s_waitcnt lgkmcnt(0)""")
    for q in range(8): a(f"v_cvt_pk_bf16_f32 v{XP+q}, v{ACC+2*q}, v{ACC+2*q+1}")
    a(mfma(P1, XP, M)); a(mfma(P2, XP, M + 8)); a(mfma(P1, XP + 4, M + 4, P1)); a(mfma(P2, XP + 4, M + 12, P2))
    for r in range(0, 8, 2):
        pk2(a, "add", ACC+r, P1+r, P2+r+8, neg="1", scalar=cfg.nopk & 4); pk2(a, "add", ACC+8+r, P1+r+8, P2+r, scalar=cfg.nopk & 4)
    for r in range(8): a(f"v_cvt_pk_bf16_f32 v{XP+8+r}, v{ACC+r}, v{ACC+8+r}")
    a(f"""s_cmp_lg_u32 {S_KT16}, 0
s_cbranch_scc1 L_a1st
s_mov_b32 exec_hi, 0
v_cvt_pk_bf16_f32 v{XP+8}, v{P1}, v{P2}
v_cvt_pk_bf16_f32 v6, v{P1+8}, v{P2+8}
v_lshlrev_b32 v5, 16, v2
s_mov_b32 exec_hi, -1
L_a1st:
ds_write_b128 v{P_TTW}, {V(XP+8,4)}
ds_write_b128 v{P_TTW}, {V(XP+12,4)} offset:32
ds_read_b128 {V(XP,4)}, v{P_TTR}
ds_read_b128 {V(XP+4,4)}, v{P_TTR} offset:1024
s_mov_b32 {T4}, {T0}
s_waitcnt lgkmcnt(0)""")
    stamp(a, 1, 5)
    if cfg.tdefer: lwait(a, f"v{P_BC}", P_LS, 4, 28, sleep=1, off=12)
    if cfg.tdelay: a(f"s_sleep {cfg.tdelay}")
    if cfg.tstag:
        for q in (1, 2, 3): a(f"s_cmp_lt_u32 {S_W4}, {q}\ns_cbranch_scc1 L_tst\ns_sleep {cfg.tstag}")
        a("L_tst:")
    a(f"""s_cmp_lg_u32 {S_KT16}, 0
s_cbranch_scc1 L_a1st2
s_mov_b32 exec_hi, 0
s_add_u32 {T1}, {T1}, {7*8192}
buffer_store_dword v6, v5, {sWS}, {T1} offen sc1
s_mov_b32 exec_hi, -1
L_a1st2:
{"s_branch L_a1done" if cfg.ko & 8 else ""}
buffer_store_dwordx4 {V(XP,4)}, v{P_TST}, {sWS}, {T4} offen sc1
{"s_sleep %d" % (cfg.tstag // 2) if cfg.tstag else ""}
buffer_store_dwordx4 {V(XP+4,4)}, v{P_TST}, {sWS}, {T2} offen sc1
L_a1done:""")
    stage_arrive(0)
    stamp(a, 4)
    lwait(a, f"v{P_BC}", P_LS, 4, 29, sleep=1, off=12)
    if cfg.wdelay: a(f"s_sleep {cfg.wdelay}")
    if cfg.wpf == 3: wpull()
    if not cfg.wearly and not cfg.wlate: burst([x + (f"\ns_sleep {cfg.wpace}" if cfg.wpace else "") for x in wl], cfg.th_w)
    if cfg.wopf and not cfg.wolate:
        burst([f"""s_lshl_b32 {T0}, {S_IDX}, 2
s_add_u32 {T0}, {T0}, {S_W4}
s_mul_i32 {T0}, {T0}, {25*128}
s_bfm_b64 exec, 25, 0
buffer_load_dword v{P_DUM}, v{P_PF}, {sWO}, {T0} offen
s_mov_b64 exec, -1"""], 1)
    if cfg.ohint:
        for q in range(4): a(f"v_mov_b32 v{TP+q}, -1")
        a(f"""s_lshr_b32 {T0}, {S_XCD}, 1
s_lshl_b32 {T0}, {T0}, 2
s_add_u32 {T0}, {T0}, {S_RR}
s_lshl_b32 {T0}, {T0}, 2
s_add_u32 {T0}, {T0}, {S_W4}
s_lshl_b32 {T0}, {T0}, 4
s_add_u32 {T0}, {T0}, {S_H}
s_lshl_b32 {T0}, {T0}, 11
s_add_u32 {T0}, {T0}, {OBUF}""")
        a(f"s_mov_b32 s72, {T0}")
        marks = [f"buffer_store_dwordx4 {V(TP,4)}, v7, {sWS}, s72 offen offset:{1024*q} sc1" for q in range(2)]
        if not cfg.wolate: burst(marks, 2)
    WO = 72
    S_WOL = "s70"
    a(f"s_lshl_b32 {S_WOL}, {S_W4}, 10\ns_add_u32 {S_WOL}, {S_WOL}, {L_X}")
    def wo_list(rnd):
        return [f"s_add_u32 m0, {S_WOL}, {i*4096}\ns_mov_b32 s71, {(rnd*224 + i*16)*896}\nbuffer_load_dwordx4 v{P_WOD}, {sWO}, s71 offen lds" for i in range(14)]
    def ride(q, n=1):
        it = [q.pop(0) for _ in range(min(n, len(q)))]
        if it: burst(it, n)
        pace()
    def wo_rd(f, d, r1, r2):
        hl, mu = f // 2, f % 2
        return [f"ds_read_b64_tr_b16 {V(d+2*sec,2)}, v{r2 if (mu and sec) else r1} offset:{(28*hl + 16*mu + 8*sec)*256}" for sec in range(2)]
    def wo_reads(h):
        for f in range(16):
            for s_ in wo_rd(f, WO + 64*h + 4*f, P_WOR, P_WOR2): a(s_)
    assert cfg.allpoll
    if cfg.woearly:
        assert cfg.wlate and not cfg.wolate
        lwait(a, "v14", P_LS, 4, 45, sleep=2, off=8)
        burst(wo_list(0), cfg.th_wo)
        a("s_waitcnt vmcnt(0)")
        albar(46)
        wo_reads(0)
    stamp(a, 5)
    stage_wait(0, cfg.a2wait)
    a(f"s_lshl_b32 {T1}, {S_W4}, 11")
    stamp(a, 6)
    a(f"""s_lshl_b32 {T0}, {S_TASK}, 13
s_add_u32 {T0}, {T0}, {T1}
s_add_u32 {T0}, {T0}, {TBUF}""")
    burst([f"buffer_load_dword v{FR+q}, v{P_TLD}, {sWS}, {T0} offen offset:{(q//4)*1024 + (q%4)*128} sc1" for q in range(8)], 8)
    a(f"s_waitcnt vmcnt(0)\nds_write_b128 v{P_TBW}, {V(FR,4)}\nds_write_b128 v{P_TBW}, {V(FR+4,4)} offset:1024" if not cfg.wlate else "")
    if cfg.wlate:
        burst(wl, 24)
        a(f"s_waitcnt vmcnt(16)\nds_write_b128 v{P_TBW}, {V(FR,4)}\nds_write_b128 v{P_TBW}, {V(FR+4,4)} offset:1024")
    stamp(a, 1, 4)
    albar(6)
    stamp(a, 2, 4)
    def dft64(base):
        for m in range(8): a(f"ds_read_b128 {V(FR+4*m,4)}, v{P_TBR} offset:{base + m*1024}")
        if cfg.mprio == 0: a("s_setprio 0")
        for m in range(8):
            a(f"s_waitcnt lgkmcnt({7-m})")
            a(mfma(AC, FB + 4*m, FR + 4*m, None if m == 0 else AC))
            if cfg.mprio: ride(woq)
            elif woq: a(woq.pop(0))
        a(f"s_setprio {cfg.aprio}")
    woq = marks if cfg.wolate else wo_list(1 if cfg.woearly else 0)
    dft64(0)
    a(f"s_waitcnt vmcnt({2 if cfg.wolate else 8})\ns_cmp_eq_u32 {S_HH}, 7\ns_cbranch_scc0 L_a2nx")
    for r in range(8):
        a(f"v_mov_b32 v{TP}, v{WW+r}\nv_xor_b32 v{WW+r}, 0x80000000, v{WW+8+r}\nv_mov_b32 v{WW+8+r}, v{TP}")
    a("L_a2nx:")
    for r in range(0, 8, 2):
        a(f"""v_pk_mul_f32 {V(FR+r,2)}, {V(AC+r,2)}, {V(WW+r,2)}
v_pk_mul_f32 {V(FR+8+r,2)}, {V(AC+r,2)}, {V(WW+8+r,2)}
v_pk_fma_f32 {V(FR+r,2)}, {V(AC+8+r,2)}, {V(WW+8+r,2)}, {V(FR+r,2)} neg_lo:[1,0,0] neg_hi:[1,0,0]
v_pk_fma_f32 {V(FR+8+r,2)}, {V(AC+8+r,2)}, {V(WW+r,2)}, {V(FR+8+r,2)} neg_lo:[1,0,1] neg_hi:[1,0,1]
v_cvt_pk_bf16_f32 v{TP+r}, v{FR+r}, v{FR+8+r}
v_cvt_pk_bf16_f32 v{TP+r+1}, v{FR+r+1}, v{FR+8+r+1}""")
    a(f"ds_write_b128 v{P_TBW}, {V(TP,4)} offset:8192\nds_write_b128 v{P_TBW}, {V(TP+4,4)} offset:9216")
    stamp(a, 3, 4)
    albar(7)
    stamp(a, 4, 4)
    dft64(8192)
    if cfg.uinp:
        a(f"s_lshl_b32 {T0}, {S_TASK}, 13\ns_lshl_b32 {T1}, {S_W4}, 11\ns_add_u32 {T0}, {T0}, {T1}\ns_add_u32 {T0}, {T0}, {TBUF}")
    else:
        a(f"""s_lshl_b32 {T0}, {S_HH}, 12
s_lshr_b32 {T1}, {S_TASK}, 3
s_lshl_b32 {T1}, {T1}, 7
s_add_u32 {T0}, {T0}, {T1}
s_add_u32 {T0}, {T0}, {UBUF}
s_lshl_b32 {T1}, {S_W4}, 19
s_add_u32 {T0}, {T0}, {T1}""")
    for r in range(8): a(f"v_cvt_pk_bf16_f32 v{TP+r}, v{AC+r}, v{AC+8+r}")
    stamp(a, 5, 4)
    a(f"s_cmp_eq_u32 {S_HH}, {S_HH if cfg.ko & 8 else 7}\ns_cselect_b32 exec_lo, 1, -1\ns_cselect_b32 exec_hi, 1, -1")
    if cfg.uinp:
        burst([f"buffer_store_dword v{TP+r}, v{P_TLD}, {sWS}, {T0} offen offset:{(r//4)*1024 + (r%4)*128} sc1" for r in range(8)], 8)
    else:
        burst([f"s_add_u32 {T1}, {T0}, {(8*(r//4) + r%4) * USTR}\nbuffer_store_dword v{TP+r}, v{P_UST}, {sWS}, {T1} offen sc1" for r in range(8)], 8)
    a("s_mov_b64 exec, -1")
    stage_arrive(1)
    stamp(a, 7)
    U0 = 16; U1 = 32; AR = 200; AI = 216
    MSR = [48, 52, 56, 60, 64, 68, 232, 240]
    if cfg.wolate:
        burst(wo_list(0), cfg.th_wo)
        a("s_waitcnt vmcnt(0)")
    albar(4)
    wo_reads(1 if cfg.woearly else 0)
    for q in range(8): a(f"ds_read_b128 {V(MSR[q],4)}, v7 offset:{L_MS + q*1024}")
    if not cfg.woearly:
        albar(24)
        if not cfg.wolate: burst(wo_list(1), cfg.th_wo)
    stage_wait(1, 0 if cfg.wolate else cfg.a3wait)
    stamp(a, 8)
    if cfg.uinp:
        a(f"""s_lshl_b32 {T0}, {S_BP}, 7
s_add_u32 {T0}, {T0}, {TBUF}
s_lshl_b32 {T1}, {S_W4}, 13
s_lshl_b32 {T3}, {S_K1}, 13
s_add_u32 {T2}, {T0}, {T3}
s_add_u32 {T1}, {T0}, {T1}""")
        burst([f"s_add_u32 {T0}, {T1 if q < 16 else T2}, {(8*((q%16)//4) + q%4) * 65536}\nbuffer_load_dword v{U0+q}, v{P_F2}, {sWS}, {T0} offen sc1" for q in range(32)], cfg.th_u)
    else:
        a(f"""s_lshl_b32 {T0}, {S_BP}, 15
s_add_u32 {T0}, {T0}, {UBUF}
s_lshl_b32 {T1}, {S_W4}, 12
s_lshl_b32 {T3}, {S_K1}, 12
s_add_u32 {T2}, {T0}, {T3}
s_add_u32 {T1}, {T0}, {T1}""")
        burst([f"buffer_load_dword v{U0+q}, v{P_TLD}, {sWS}, {T1 if q < 16 else T2} offen offset:{((q%16)//4)*1024 + (q%4)*128} sc1" for q in range(32)], cfg.th_u)
    if cfg.wolate: burst(wo_list(1), 46)
    elif not cfg.woearly:
        a("s_waitcnt vmcnt(32)")
        albar(10)
        wo_reads(1)
    stamp(a, 11, 4)
    a(f"""s_lshl_b32 {T4}, {S_BP}, 2
s_add_u32 {T4}, {T4}, {S_W4}
s_lshl_b32 {T3}, {T4}, 13
s_add_u32 {T3}, {T3}, {OBUF}
s_add_u32 {T2}, {T3}, 4096
s_and_b32 {T4}, {S_BP}, 60
s_add_u32 {T4}, {T4}, {S_W4}
s_lshl_b32 {T4}, {T4}, 9
s_add_u32 {T4}, {T4}, {FO}
s_lshl_b32 {T1}, {S_W4}, 13
v_add_u32 v9, {T1}, v7""")
    def step6(ur, ui, va, last):
        if last and cfg.apoll: a(poll_issue(f"v{P_PF}", T4, P_PS, 4))
        if cfg.mprio == 0: a("s_setprio 0")
        for m in range(4):
            a(mfma(AR, ur + 4*m, MSR[2*m], None if m == 0 else AR))
            if cfg.pace6: a(f"s_sleep {cfg.pace6}")
            a(mfma(AI, ui + 4*m, MSR[2*m+1], None if m == 0 else AI))
            if cfg.pace6: a(f"s_sleep {cfg.pace6}")
        a(f"s_setprio {cfg.aprio}")
        for q in range(16):
            a(f"v_cvt_pk_bf16_f32 v{ur+q}, v{AR+2*q}, v{AR+2*q+1}")
            if q % 4 == 3: a(f"ds_write_b128 v{va}, {V(ur+q-3,4)} offset:{(q//4)*1024}")
    if cfg.s6late: lwait(a, f"v{P_BC}", P_LS, 20, 37, sleep=2)
    a(f"s_waitcnt vmcnt({14 if cfg.wolate else 0})\ns_cmp_eq_u32 {S_W4}, 0\ns_cbranch_scc1 L_a3w0")
    step6(U0, U0, P_ZW0, False)
    step6(U1, U1, P_ZW1, True)
    a(f"s_branch L_a3z\nL_a3w0:\ns_mov_b32 exec_lo, -2\ns_mov_b32 exec_hi, -2")
    for q in range(16): a(f"v_mov_b32 v{U1+q}, v{U0+q}")
    a("s_mov_b64 exec, -1")
    step6(U0, U1, P_ZW0, True)
    a("L_a3z:\ns_mov_b64 exec, 1\nds_add_u32 v14, v15 offset:4\ns_mov_b64 exec, -1")
    stamp(a, 9)
    if cfg.wolate:
        a(f"s_waitcnt vmcnt({1 if cfg.apoll else 0})")
        lbar(a, "v14", "v15", P_LS, 10)
        wo_reads(1)
    osc = ("", " sc1", " nt", " sc0 sc1", " sc1 nt")[cfg.outsc]
    stamp(a, 10)
    a(f"s_mov_b32 s71, {cfg.poll_limit}")
    if cfg.apoll: a(f"s_waitcnt vmcnt(0)\n{poll_check(P_PS, 4)}\ns_cbranch_scc0 L_aoload")
    poll(a, f"v{P_PF}", T4, P_PS, 4, 42, sleep=cfg.osleep)
    a("L_aoload:")
    for q in range(8):
        a(f"buffer_load_dwordx4 {V(16+4*q,4)}, v7, {sWS}, {T3 if q < 4 else T2} offen offset:{(q%4)*1024} sc1")
    stamp(a, 13)
    lwait(a, f"v{P_BC}", P_LS, 24, 43, sleep=1)
    for q in range(8):
        a(f"s_waitcnt vmcnt({7-q})\nds_write_b128 v9, {V(16+4*q,4)} offset:{L_OB + q*1024}")
        if q == 2: a("v_max3_u32 v5, v16, v20, v24")
        if q in (4, 6): a(f"v_max3_u32 v5, v5, v{12+4*q}, v{16+4*q}")
    a(f"""v_max_u32 v5, v5, v44
v_cmp_eq_u32 vcc, -1, v5
s_cbranch_vccz L_aogot
s_sleep 6
s_sub_u32 s71, s71, 1
s_cbranch_scc0 L_aoload
s_mov_b32 {S_TO}, 44
s_branch L_fail
L_aogot:
s_mov_b64 exec, 1
ds_add_u32 v{P_BC}, v15 offset:20
s_mov_b64 exec, -1""")
    a(f"""s_mul_i32 {T4}, {S_BP}, {32*1792}
s_lshl_b32 {T1}, {S_DT}, 6
s_add_u32 {T4}, {T4}, {T1}
s_add_u32 {T4}, {T4}, 896
s_add_u32 {T3}, {T4}, {16*1792}""")
    lwait(a, f"v{P_BC}", P_LS, 4, 12, off=20)
    a(f"s_cmp_ge_u32 {S_W4}, {S_CNT}\ns_cbranch_scc1 L_b3done")
    stamp(a, 11)
    OR = 216
    def zr(s_): return f"ds_read_b128 {V(OR+4*(s_%8),4)}, v7 offset:{L_OB + s_*1024}"
    for s_ in range(8): a(zr(s_))
    if cfg.cost & 1:
        a(f"""s_lshl_b32 {T1}, {S_W4}, 11
s_add_u32 {T1}, {T1}, {L_X}
v_lshlrev_b32 v10, 6, v2
v_lshl_add_u32 v10, v3, 5, v10
v_add_u32 v10, {T1}, v10
v_add_u32 v11, {T1}, v7
v_lshrrev_b32 v5, 2, v1
v_mul_u32_u24 v5, 1792, v5
v_and_b32 v12, 3, v1
v_lshl_add_u32 v5, v12, 4, v5""")
    else:
        a("v_mul_u32_u24 v5, 1792, v2\nv_lshl_add_u32 v5, v3, 5, v5")
    for s_ in range(32):
        a(f"s_waitcnt lgkmcnt({min(7, 31-s_)})")
        a(mfma(AR, WO + 4*s_, OR + 4*(s_ % 8), None if s_ == 0 else AR))
        if s_ + 8 < 32: a(zr(s_ + 8))
    for hf in range(2):
        for q in range(4*hf, 4*hf+4): a(f"v_cvt_pk_bf16_f32 v{48+q}, v{AR+2*q}, v{AR+2*q+1}")
        if cfg.cost & 1: a(f"ds_write_b128 v10, {V(48+4*hf,4)} offset:{16*hf}")
        else: a(f"buffer_store_dwordx4 {V(48+4*hf,4)}, v5, {sOUT}, {T4} offen offset:{16*hf}{osc}")
    if cfg.cost & 1:
        a(f"""ds_read_b128 v[56:59], v11
ds_read_b128 v[60:63], v11 offset:1024
s_waitcnt lgkmcnt(1)
buffer_store_dwordx4 v[56:59], v5, {sOUT}, {T4} offen{osc}
s_waitcnt lgkmcnt(0)
buffer_store_dwordx4 v[60:63], v5, {sOUT}, {T3} offen{osc}""")
    a("L_b3done:")
    a(f"""s_lshl_b32 {T0}, s2, 2
s_add_u32 {T0}, {T0}, {S_W4}
s_cmp_lg_u32 {T0}, 0
s_cbranch_scc1 L_noep
s_mov_b32 {T0}, {EPOCH}""")
    if cfg.diagrot: a("s_mov_b64 s[24:25], s[20:21]")
    flag(a, T0, 10)
    a("L_noep:")
    if cfg.padend: padto(a, cfg.padend)
    stamp(a, 12)
    dump_stamps(a, 16)
    a("s_endpgm")

def build():
    nh = cfg.nh; xh = 16 // nh
    for wg in range(256):
        xcd, idx = wg & 7, wg >> 3
        h = (xcd % xh) * nh + idx % nh
        assert nh == 8
    a = Asm()
    prologue(a); role_B(a); ROLE[0] = 1; role_A(a)
    a(f"""L_fail:
v_mov_b32 v0, 0
v_mov_b32 v1, {S_TO}
global_store_dword v0, v1, s[18:19]
L_end:
s_endpgm
L_codeend:""")
    a.pad()
    import os
    ref = "cdna_kernels/" + NAME + ".s.ref"
    hdr = open(ref).read().split("; Override launch")[0] if os.path.exists(ref) else ""
    s = hdr + f"; @launch grid=(256,1,1) block=(512,1,1) lds={LDS_SIZE}\n"
    s += f""".amdgcn_target "amdgcn-amd-amdhsa--gfx950"
.text
.globl {NAME}_kernel
.p2align 8
.type {NAME}_kernel,@function
{NAME}_kernel:
""" + a.text() + f""".section .rodata,"a"
.p2align 6
.amdhsa_kernel {NAME}_kernel
  .amdhsa_next_free_vgpr 256
  .amdhsa_next_free_sgpr 102
  .amdhsa_accum_offset 256
  .amdhsa_group_segment_fixed_size 0
  .amdhsa_kernarg_size 72
  .amdhsa_user_sgpr_count 2
  .amdhsa_user_sgpr_kernarg_segment_ptr 1
  .amdhsa_system_sgpr_workgroup_id_x 1
.end_amdhsa_kernel
"""
    return s

if __name__ == "__main__":
    out = sys.argv[1]
    for kv in sys.argv[2:]:
        k, v = kv.split("=")
        setattr(cfg, k, type(getattr(cfg, k))(int(v)))
    open(out, "w").write(build())
```

```python
import sys, math, struct
from asmlib import Asm

NAME = "concat_heads__spectral_gfnet__softmax_full_mha__prompt"

class Cfg:
    nh = 8
    stamps = False
    poll_limit = 1 << 17
    noA = 0
    pxcd = -1
    ptype = 0
    kvsc = 1
    kvt = 0
    kvt64 = 0
    kvld = 0
    kvi = 0
    kvipos = 1
    diagrot = 0
    kvs = 0
    kvs0 = 60
    kvsn = 30
    probe = -1
    span = 0
    fine = 0
    padend = 0
    padmid = 0
    dbgwave = -1
    nbuf = 5
    wearly = 0
    touch = 0
    wdelay = 30
    tdelay = 0
    s6late = 0
    lsl = 4
    odefer = 0
    a2wait = 8
    a3wait = 0
    kvwait = 8
    kvrot = 3
    m1 = 12
    ramp = 1
    gate = 2
    wqe = 3
    wqp = 7
    tdefer = 1
    m2 = 27
    xas = 0
    xae = 0
    bhi = 56
    ohint = 1
    wlate = 1
    allpoll = 1
    otry = 1
    gsplit = 8
    claim = 1
    btry = 0
    pace6 = 0
    wolate = 0
    wsoff = 0
    mprio = 0
    xawarm = 0
    wpace = 0
    tstag = 0
    xafirst = 0
    mw = 3
    mwpos = 1
    wqdel = 0
    ring = 8
    apoll = 1
    osleep = 2
    fprio = 0
    nta = 1
    ntw = 1
    ntb = 0
    bsleep = 2
    qst = 0x133
    wopf = 0
    uinp = 1
    woearly = 0
    hack = 0
    ko = 0
    xalate = 0
    ntp = 1
    cost = 3
    nopk = 23
    gtab = 2981409204
    kvp = 1
    owait = 4
    xrot = 0x06543210
    wrot = 1
    pace = 1
    xadefer = 0
    wpf = 0
    outsc = 3
    wqwarm = 0
    th_wo = 14
    th_u = 32
    th_wq = 2
    wqearly = 1
    th_w = 17
    th_xa = 4
    wfair = 8
    xearly = 1
    spf = 0
    spf0 = 150
    pre = 5
    aprio = 2
    force_fb = False
cfg = Cfg()

EPOCH = 0
KV = 0x20000; TS = 61440; VOFF = 28672
OBUF = 0x400000
TBUF = 0x600000
UBUF = 0x800000; USTR = 32768
FKV = 0x8000; FA1 = 0x1000; FO = 0x10000
STAMP = 0xB00000
WS_SIZE = 0x1000000
L_W = 0; L_WQ = 57344; L_X = 86016; L_Q = 151552; L_SYNC = 159744
LDS_SIZE = 160000
L_RED = 0
L_TB = L_WQ; L_YB = L_WQ + 8192; L_MS = 49152; L_TT = L_X + 4096; L_M = L_X + 61440
L_ZB = L_WQ; L_OB = 0
sWS, sWQKV, sX, sWR, sWI, sWO, sOUT = [f"s[{i}:{i+3}]" for i in (24, 28, 32, 36, 40, 44, 48)]
S_WAVE, S_XCD, S_IDX, S_H, S_R, S_W4 = "s56", "s57", "s58", "s59", "s60", "s61"
S_NONCE = "s[62:63]"
S_TO, S_BAR = "s64", "s65"
T0, T1, T2, T3, T4, T5 = "s66", "s67", "s68", "s69", "s22", "s23"
STAMP0 = 84

ZREADY = 24

def f2u(x): return struct.unpack("<I", struct.pack("<f", x))[0]
def lit(x): return "0x%08x" % f2u(x)
def V(a, n=1): return f"v{a}" if n == 1 else f"v[{a}:{a+n-1}]"

def srd(a, name, lo, size):
    i = int(name[2:name.index(":")])
    a(f"s_mov_b32 s{i}, s{lo}\ns_mov_b32 s{i+1}, s{lo+1}\ns_mov_b32 s{i+2}, {size}\ns_mov_b32 s{i+3}, 0x20000")

ROLE = [0]
def stamp(a, i, fine=0):
    if cfg.probe >= 0:
        if fine == cfg.fine and cfg.probe == ROLE[0] * 100 + i:
            a("s_memrealtime s[96:97]\ns_waitcnt lgkmcnt(0)\ns_nop 0")
        return
    if cfg.fine in (1, 2) and not fine and 3 <= i <= 11: return
    if cfg.fine == 4 and not fine and i in (1, 2, 3, 4, 5, 10, 11, 13): return
    if fine and cfg.fine != fine: return
    if cfg.stamps:
        a(f"s_memtime s[100:101]\ns_waitcnt lgkmcnt(0)\ns_mov_b32 s{STAMP0+i}, s100")

def st0():
    o = f"s_add_u32 s20, s20, {cfg.wsoff << 20}\ns_addc_u32 s21, s21, 0\n" if cfg.wsoff else ""
    return o + (f"s_mov_b32 s{STAMP0+15}, s100\ns_mov_b32 s{STAMP0}, s38" if cfg.stamps else "")

def dump_stamps(a, vt):
    if cfg.probe >= 0:
        if cfg.probe // 100 == ROLE[0]:
            L = a.lab("pr")
            if cfg.pxcd >= 0: a(f"s_cmp_lg_u32 {S_XCD}, {cfg.pxcd}\ns_cbranch_scc1 {L}x")
            if cfg.ptype: a(f"s_cmp_eq_u32 {S_LC}, 7\ns_cbranch_scc{cfg.ptype - 1} {L}x")
            if cfg.probe % 100 == 99: a("s_mov_b32 s96, s100")
            a(f"s_sub_u32 s96, s96, s100\ns_cmp_gt_u32 s96, 4000\ns_cselect_b32 s96, 0, s96\ns_add_u32 s96, s96, 2600\n{L}:\ns_memrealtime s[98:99]\ns_waitcnt lgkmcnt(0)\ns_sub_u32 s98, s98, s100\ns_cmp_lt_u32 s98, s96\ns_cbranch_scc1 {L}\n{L}x:")
        return
    if cfg.span:
        a(f"s_waitcnt vmcnt(0)\ns_memrealtime s[98:99]\ns_lshl_b32 {T0}, s2, 3\ns_add_u32 {T0}, {T0}, {S_WAVE}\ns_lshl_b32 {T0}, {T0}, 3\ns_add_u32 {T0}, {T0}, {STAMP}\ns_waitcnt lgkmcnt(0)")
        a(f"v_mov_b32 v{vt}, s100\nv_mov_b32 v{vt+1}, s98\nv_mov_b32 v{vt+2}, 0\ns_mov_b64 exec, 1\nbuffer_store_dwordx2 {V(vt,2)}, v{vt+2}, {sWS}, {T0} offen\ns_mov_b64 exec, -1")
    if not cfg.stamps: return
    a(f"s_memrealtime s[100:101]\ns_waitcnt lgkmcnt(0)\ns_mov_b32 s{STAMP0+14}, s100")
    if cfg.dbgwave >= 0:
        L = a.lab("nodbg")
        a(f"s_lshl_b32 {T0}, s2, 3\ns_add_u32 {T0}, {T0}, {S_WAVE}\ns_cmp_lg_u32 {T0}, {cfg.dbgwave}\ns_cbranch_scc1 {L}")
        a(f"v_mov_b32 v{vt+4}, 0\ns_mov_b64 exec, 1")
        for i in range(1, 16):
            a(f"s_sub_u32 {T1}, s{STAMP0+i}, s{STAMP0 + (15 if i >= 14 else 0)}\nv_mov_b32 v{vt}, {T1}\nglobal_store_dword v{vt+4}, v{vt}, s[18:19] offset:{4*i}")
        a(f"s_mov_b64 exec, -1\n{L}:")
    a(f"s_lshl_b32 {T0}, s2, 3\ns_add_u32 {T0}, {T0}, {S_WAVE}\ns_lshl_b32 {T0}, {T0}, 7\ns_add_u32 {T0}, {T0}, {STAMP}")
    a(f"v_mov_b32 v{vt+4}, 0\ns_mov_b64 exec, 1")
    for q in range(4):
        for i in range(4): a(f"v_mov_b32 v{vt+i}, s{STAMP0+4*q+i}")
        a(f"buffer_store_dwordx4 {V(vt,4)}, v{vt+4}, {sWS}, {T0} offen offset:{16*q}")
    a("s_mov_b64 exec, -1")

def padto(a, ticks):
    L = a.lab("pad")
    a(f"{L}:\ns_memrealtime s[100:101]\ns_waitcnt lgkmcnt(0)\ns_sub_u32 s100, s100, s{STAMP0+15}\ns_cmp_lt_u32 s100, {ticks}\ns_cbranch_scc1 {L}")

def poll_issue(vaddr, soff, vt, n):
    return f"""v_mov_b32 v{vt}, 0
v_mov_b32 v{vt+1}, 0
s_bfm_b64 exec, {n}, 0
buffer_atomic_or_x2 {V(vt,2)}, {vaddr}, {sWS}, {soff} offen sc0 sc1
s_mov_b64 exec, -1"""

def poll_check(vt, n):
    return f"v_cmp_ne_u64 vcc, {S_NONCE}, {V(vt,2)}\ns_and_b32 vcc_lo, vcc_lo, {hex((1 << n) - 1)}"

def poll(a, vaddr, soff, vt, n, code, sleep=2):
    L, Dn = a.lab("poll"), a.lab("polld")
    a(f"""s_mov_b32 {S_TO}, {cfg.poll_limit}
{L}:
{poll_issue(vaddr, soff, vt, n)}
s_waitcnt vmcnt(0)
{poll_check(vt, n)}
s_cbranch_scc0 {Dn}
s_sleep {sleep}
s_sub_u32 {S_TO}, {S_TO}, 1
s_cbranch_scc0 {L}
s_mov_b32 {S_TO}, {code}
s_branch L_fail
{Dn}:""")

def publish_wg(a, vsync, vone, off, vt, soff, vn, last=3):
    L = a.lab("pub")
    a(f"""s_mov_b64 exec, 1
ds_add_rtn_u32 v{vt}, {vsync}, {vone} offset:{off}
s_waitcnt lgkmcnt(0)
v_readfirstlane_b32 {T0}, v{vt}
s_cmp_eq_u32 {T0}, {last}
s_cselect_b64 exec, 1, 0
buffer_store_dwordx2 {V(vn,2)}, v{vn+2}, {sWS}, {soff} offen sc1
s_mov_b64 exec, -1""")

def flag(a, soff, vt):
    a(f"""v_mov_b32 v{vt}, s62
v_mov_b32 v{vt+1}, s63
v_mov_b32 v{vt+2}, 0
s_mov_b64 exec, 1
buffer_store_dwordx2 {V(vt,2)}, v{vt+2}, {sWS}, {soff} offen sc1
s_mov_b64 exec, -1""")

def flag2(a, soff, vn):
    a(f"s_mov_b64 exec, 1\nbuffer_store_dwordx2 {V(vn,2)}, v{vn+2}, {sWS}, {soff} offen sc1\ns_mov_b64 exec, -1")

def lwait(a, vsync, vt, target, code, sleep=0, off=0):
    L, Dn = a.lab("lw"), a.lab("lwd")
    a(f"""s_mov_b32 {S_TO}, {cfg.poll_limit * 8}
{L}:
ds_read_b32 v{vt}, {vsync} offset:{off}
s_waitcnt lgkmcnt(0)
v_readfirstlane_b32 {T0}, v{vt}
s_cmp_ge_u32 {T0}, {target}
s_cbranch_scc1 {Dn}
{"s_sleep %d" % sleep if sleep else ""}
s_sub_u32 {S_TO}, {S_TO}, 1
s_cbranch_scc0 {L}
s_mov_b32 {S_TO}, {code}
s_branch L_fail
{Dn}:""")

def lbar(a, vsync, vone, vt, code, sleep=0):
    L, Dn = a.lab("lb"), a.lab("lbd")
    a(f"""s_add_u32 {S_BAR}, {S_BAR}, 4
s_mov_b64 exec, 1
ds_add_u32 {vsync}, {vone}
s_mov_b64 exec, -1
s_mov_b32 {S_TO}, {cfg.poll_limit * 8}
{L}:
ds_read_b32 v{vt}, {vsync}
s_waitcnt lgkmcnt(0)
v_readfirstlane_b32 {T0}, v{vt}
s_cmp_ge_u32 {T0}, {S_BAR}
s_cbranch_scc1 {Dn}
{"s_sleep %d" % sleep if sleep else ""}
s_sub_u32 {S_TO}, {S_TO}, 1
s_cbranch_scc0 {L}
s_mov_b32 {S_TO}, {code}
s_branch L_fail
{Dn}:""")

def mfma(d, A, B, C=None):
    return f"v_mfma_f32_32x32x16_bf16 {V(d,16)}, {V(A,4)}, {V(B,4)}, {'0' if C is None else V(C,16)}"

def pk2(a, op, d, x, y, z=None, neg="", scalar=False):
    srcs = [x, y] + ([z] if z is not None else [])
    if not scalar:
        m = "[" + ",".join("1" if str(i) in neg else "0" for i in range(len(srcs))) + "]"
        a(f"v_pk_{op}_f32 {V(d,2)}, " + ", ".join(V(r,2) for r in srcs) + (f" neg_lo:{m} neg_hi:{m}" if neg else ""))
        return
    for q in range(2):
        if op == "add" and neg == "1": a(f"v_sub_f32 v{d+q}, v{x+q}, v{y+q}")
        else: a(f"v_{op}_f32 v{d+q}, " + ", ".join(("-" if str(i) in neg else "") + f"v{r+q}" for i, r in enumerate(srcs)))

def mod7(a, s, t):
    a(f"s_mul_i32 {t}, {s}, 9363\ns_lshr_b32 {t}, {t}, 16\ns_mul_i32 {t}, {t}, 7\ns_sub_u32 {s}, {s}, {t}")

def x_read_addrs(a, v0, vl, base_s, t):
    a(f"""v_and_b32 v{t}, 31, {vl}
v_lshrrev_b32 v{t+1}, 5, {vl}
v_bfe_u32 v{t+2}, {vl}, 1, 3
v_xor_b32 v{t+1}, v{t+1}, v{t+2}
v_lshlrev_b32 v{t}, 7, v{t}
v_add_u32 v{t}, {base_s}, v{t}""")
    for mm in range(4):
        a(f"v_xor_b32 v{t+2}, {2*mm}, v{t+1}\nv_lshl_add_u32 v{v0+mm}, v{t+2}, 4, v{t}")


S_HH, S_RR, S_J, S_P0, S_LC = "s52", "s53", "s54", "s55", "s3"

def prologue(a):
    a(f"""s_cmp_ge_u32 s2, 256
s_cbranch_scc1 L_end
s_load_dwordx16 s[4:19], s[0:1], 0
s_load_dwordx2 s[20:21], s[0:1], 64""")
    if cfg.span or cfg.probe >= 0: a("s_memrealtime s[100:101]")
    if cfg.stamps:
        a(f"s_memtime s[38:39]\ns_memrealtime s[100:101]")
        for i in range(1, 15): a(f"s_mov_b32 s{STAMP0+i}, 0")
    a(f"""s_lshr_b32 {S_IDX}, s2, 3
s_getpc_b64 s[70:71]
L_pc:
v_lshrrev_b32 v3, 5, v0
v_lshl_add_u32 v3, {S_IDX}, 4, v3
v_lshlrev_b32 v3, 7, v3
v_min_u32 v3, L_codeend-L_pc-4, v3
global_load_dword v255, v3, s[70:71]
v_lshrrev_b32 v2, 6, v0
v_and_b32 v1, 63, v0
v_readfirstlane_b32 {S_WAVE}, v2
s_and_b32 {S_XCD}, s2, 7
s_and_b32 {S_HH}, {S_IDX}, 7
s_lshr_b32 {S_RR}, {S_IDX}, 3
s_and_b32 {T5}, {S_XCD}, 1
s_lshl_b32 {S_H}, {T5}, 3
s_add_u32 {S_H}, {S_H}, {S_HH}
s_lshl_b32 {T0}, {S_HH}, 2
s_cmp_eq_u32 {T5}, 0
s_cselect_b32 {S_LC}, 0x67543210, s2
s_cselect_b32 {S_LC}, {S_LC}, 0x65432170
s_lshr_b32 {S_LC}, {S_LC}, {T0}
s_and_b32 {S_LC}, {S_LC}, 7
s_and_b32 {S_W4}, {S_WAVE}, 3
s_cmp_ge_u32 {S_WAVE}, 4
s_cbranch_scc1 L_roleA""")

def nonce(a):
    a(f"""s_waitcnt lgkmcnt(0)
s_mul_i32 s62, s62, 0x9E3779B1
s_add_u32 s62, s62, 0x7F4A7C15
s_mul_i32 s63, s63, 0x85EBCA6D
s_add_u32 s63, s63, 0x165667B1""")

def role_B(a):
    X = 16; ACC = 128; WB = 160; PK = 224
    KVLD = ("sc1", "sc1 nt", "sc0 sc1", "sc0 sc1 nt")[cfg.kvld]
    KVSC = ("sc1", "sc0 sc1", "sc1 nt", "sc0 sc1 nt")[cfg.kvsc]
    SC = 70
    S_XL, S_TILE, S_I = "s77", "s78", "s79"
    TO = 36
    S_WM, S_WO, S_DM, S_DO = "s80", "s81", "s82", "s83"
    a(f"""s_setprio 3
s_mul_i32 {S_J}, {T5}, 7
s_add_u32 {S_J}, {S_J}, {S_LC}
v_lshrrev_b32 v8, 3, v1
v_and_b32 v9, 7, v1
v_mul_u32_u24 v2, 2688, v8
v_bfe_u32 v3, v1, 4, 1
v_lshlrev_b32 v3, 2, v3
v_xor_b32 v3, v9, v3
v_lshl_add_u32 v2, v3, 4, v2
s_lshl_b32 {T0}, {S_J}, 7
s_mul_i32 {T1}, {S_W4}, {8*2688}
s_add_u32 {T0}, {T0}, {T1}
s_add_u32 {T0}, {T0}, 896
v_add_u32 v2, {T0}, v2
s_lshl_b32 {T2}, {S_RR}, 3
s_lshr_b32 {T0}, {0xD66D0770 if cfg.wrot else 0x70707070}, {T2}
s_bfe_u32 {T1}, {T0}, 0x40004
s_and_b32 {T0}, {T0}, 15
s_lshl_b32 {T3}, {S_W4}, 10
s_lshl_b32 {T2}, {T0}, 12
s_add_u32 m0, {T2}, {T3}
s_mul_i32 {S_I}, {T0}, {32*2688}
s_lshl_b32 {T2}, {T1}, 12
s_add_u32 {S_WM}, {T2}, {T3}
s_mul_i32 {S_WO}, {T1}, {32*2688}
s_cmp_ge_u32 {S_RR}, {2 if cfg.wrot else 4}
s_cselect_b32 {T0}, -1, 1
s_lshl_b32 {S_DM}, {T0}, 12
s_mul_i32 {S_DO}, {T0}, {32*2688}
s_cmp_eq_u32 {S_LC}, 7
s_cselect_b32 s30, 0, {448 * 2688}
s_mov_b32 s31, 0x20000
s_waitcnt lgkmcnt(0)
{st0()}
s_mov_b64 s[28:29], s[12:13]""")
    def x_m0(i, j): return f"s_add_u32 m0, {S_XL}, {(i%4)*4096 + j*1024}"
    def x_ld(i, j): return f"buffer_load_dwordx4 v{4+j}, {sX}, s{SC+i} offen{' nt' if cfg.ntb else ''} lds"
    def sc_next(i): return f"s_add_u32 s{SC+i}, s{SC+i-1}, 128\ns_cmp_eq_u32 s{SC+i}, 896\ns_cselect_b32 s{SC+i}, 0, s{SC+i}"
    def w_base(i): return f"v_lshl_add_u32 v12, s{SC+i}, 6, v14\nv_xor_b32 v13, 64, v12"
    def setup_x():
        a(f"""s_mov_b32 s34, {2048*896}
s_mov_b32 s35, 0x20000
s_lshr_b32 {S_R}, {S_XCD}, 1
s_lshl_b32 {S_R}, {S_R}, 2
s_add_u32 {S_R}, {S_R}, {S_RR}
s_lshl_b32 {S_TILE}, {S_R}, 2
s_add_u32 {S_TILE}, {S_TILE}, {S_W4}
v_lshrrev_b32 v10, 4, v1
v_xor_b32 v10, v9, v10
v_xor_b32 v11, 4, v10
v_mul_u32_u24 v12, 896, v8
s_mul_i32 {T2}, {S_TILE}, {32*896}
v_add_u32 v12, {T2}, v12
v_lshl_add_u32 v4, v10, 4, v12
v_lshl_add_u32 v5, v11, 4, v12
v_add_u32 v5, {8*896}, v5
v_add_u32 v6, {16*896}, v4
v_add_u32 v7, {16*896}, v5
s_lshl_b32 {T2}, {S_HH}, 2
s_lshr_b32 s{SC}, {cfg.xrot}, {T2}
s_and_b32 s{SC}, s{SC}, 7
s_lshl_b32 s{SC}, s{SC}, 7
s_lshl_b32 {S_XL}, {S_W4}, 14
s_add_u32 {S_XL}, {S_XL}, {L_X}""")
        a("s_mov_b64 s[32:33], s[10:11]")
    def setup2():
        for i in range(1, 7): a(sc_next(i))
        x_read_addrs(a, 8, "v1", S_XL, 12)
        srd(a, sWS, 20, WS_SIZE)
        a(f"""v_lshrrev_b32 v12, 5, v1
v_lshlrev_b32 v12, 3, v12
v_bfe_u32 v13, v1, 2, 2
v_add_u32 v12, v12, v13
v_bfe_u32 v13, v1, 4, 1
v_lshlrev_b32 v13, 5, v13
v_and_b32 v18, 1, v1
v_bfe_u32 v19, v1, 1, 1
v_lshl_add_u32 v15, v18, 4, v13
v_lshl_add_u32 v15, v19, 3, v15
v_lshl_add_u32 v14, v18, 3, v13
v_lshl_add_u32 v14, v19, 4, v14
s_cmp_eq_u32 {T5}, 1
s_cselect_b64 vcc, -1, 0
v_cndmask_b32 v14, v15, v14, vcc
v_lshl_add_u32 v15, v12, 6, v15
v_add_u32 v15, {L_WQ}, v15
v_bfe_u32 v13, v1, 3, 1
v_lshl_add_u32 v14, v13, 6, v14
v_lshl_add_u32 v14, v12, 7, v14""")
        a(f"""v_lshrrev_b32 v253, 2, v1
v_mul_u32_u24 v253, 2688, v253
v_and_b32 v254, 3, v1
v_lshl_add_u32 v253, v254, 4, v253
s_mul_i32 {S_P0}, {S_H}, 7
s_lshr_b32 {S_P0}, {S_P0}, 1
s_lshl_b32 s80, {S_P0}, 4
s_mul_i32 s81, {S_W4}, {16*2688}
s_add_u32 s80, s80, s81
v_add_u32 v253, s80, v253
s_lshl_b32 s80, {S_W4}, 10
s_add_u32 s80, s80, {L_WQ}
s_and_b32 s81, {S_P0}, 7
s_cmp_gt_u32 s81, 4
s_cselect_b32 s81, 1, 0
s_nop 0""")
        a(w_base(0))
        a(f"v_mov_b32 v250, {L_SYNC}\nv_mov_b32 v251, 1\nv_mov_b32 v246, 0\ns_mov_b32 {S_BAR}, 0")
    VK, VV, VF, VL = 240, 241, 242, 243
    PG = ["s4", "s5", "s6", "s7"]; S_FL = "s8"
    def setup3():
        a(f"""v_lshlrev_b32 v{VL}, 4, v1
s_lshl_b32 {T0}, {S_P0}, 9
v_add_u32 v{VK}, {T0}, v{VL}
s_lshl_b32 {T0}, {S_H}, 11
s_add_u32 {T0}, {T0}, {VOFF}
v_add_u32 v{VV}, {T0}, v{VL}
s_lshr_b32 {T1}, {S_P0}, 3
s_add_u32 {T0}, {S_P0}, 3
s_lshr_b32 {T0}, {T0}, 3
s_sub_u32 {T0}, {T0}, {T1}
v_and_b32 v{VF}, 1, v1
v_mul_u32_u24 v{VF}, {T0}, v{VF}
v_bfe_u32 v18, v1, 1, 1
v_mul_u32_u24 v18, 7, v18
v_add_u32 v{VF}, v{VF}, v18
v_lshlrev_b32 v{VF}, 7, v{VF}
s_lshl_b32 {T0}, {S_W4}, 4
s_add_u32 {T0}, {T0}, {T1}
s_lshl_b32 {T0}, {T0}, 7
s_add_u32 {T3}, {T0}, {FKV}
s_lshr_b32 {T2}, {S_R}, 2
s_lshl_b32 {T2}, {T2}, 3
s_lshr_b32 {T2}, {cfg.gtab if cfg.gtab > 1 else 0x934E39E4}, {T2}
s_mul_i32 {T1}, {S_W4}, {4*TS}
s_add_u32 {T1}, {T1}, {KV}""")
        for p in range(4): a(f"s_add_u32 {T0}, {S_RR}, {p}\ns_and_b32 {T0}, {T0}, 3\ns_mul_i32 s{TO+12+p}, {T0}, {TS}")
        for g in range(4):
            a(f"s_bfe_u32 {T0}, {T2}, {0x20000 + 2*g}\ns_lshl_b32 {PG[g]}, {T0}, 13\ns_add_u32 {PG[g]}, {PG[g]}, {T3}\ns_mul_i32 {T0}, {T0}, {16*TS}\ns_add_u32 {T0}, {T0}, {T1}")
            for p in range(4):
                a(f"s_add_u32 s{TO+4*g+p}, {T0}, " + (f"{p*TS}" if (g == 0 or cfg.kvrot == 0) else f"s{TO+12+p}"))
        a(f"""s_cmp_eq_u32 {S_LC}, 7
s_cselect_b32 {T1}, 15, {S_J}
s_lshl_b32 {T0}, {S_R}, 4
s_add_u32 {T0}, {T0}, {T1}
s_lshl_b32 {T0}, {T0}, 7
s_add_u32 {S_FL}, {T0}, {FKV}""")
    stamp(a, 3, 2)
    XE = cfg.xearly
    def mid():
        stamp(a, 4, 2)
        a("s_barrier")
        if cfg.fine != 2: a(f"s_load_dwordx2 s[62:63], s[20:21], {EPOCH}")
        stamp(a, 5, 2)
    for i in range(14):
        a(f"buffer_load_dwordx4 v2, {sWQKV}, {S_I} offen lds")
        if i == 6:
            if XE:
                setup_x()
                for j in range(4): a(x_m0(0, j)); a("s_nop 0"); a(x_ld(0, j))
                mid()
            a(f"s_mov_b32 m0, {S_WM}\ns_mov_b32 {S_I}, {S_WO}")
            if XE: setup2(); setup3()
        elif i < 13: a(f"s_add_u32 m0, m0, {S_DM}\ns_add_u32 {S_I}, {S_I}, {S_DO}")
        if i == 10 and not XE:
            mid(); setup_x(); setup2(); setup3()
    stamp(a, 8, 2)
    a(f"s_waitcnt vmcnt({cfg.wfair})")
    stamp(a, 10, 2)
    for c in range(XE, 2 + XE):
        for j in range(4): a(x_m0(c, j)); a("s_nop 0"); a(x_ld(c, j))
    stamp(a, 11, 2)
    if cfg.fine == 2: a(f"s_load_dwordx2 s[62:63], s[20:21], {EPOCH}")
    nonce(a)
    if cfg.diagrot: a(f"s_lshr_b32 {T0}, s62, 28\ns_lshl_b32 {T0}, {T0}, 24\ns_add_u32 s24, s20, {T0}\ns_addc_u32 s25, s21, 0")
    a("v_mov_b32 v244, s62\nv_mov_b32 v245, s63\nds_write_b64 v250, v[244:245] offset:64")
    def w_base(i): return f"v_lshl_add_u32 v12, s{SC+i}, 6, v14\nv_xor_b32 v13, 64, v12"
    def wq(i): return f"s_add_u32 m0, s80, {i*4096}\ns_mul_i32 s82, s{SC+i}, {64*21}\nbuffer_load_dwordx4 v253, {sWQKV}, s82 offen lds"
    a(f"s_mov_b32 s30, {448 * 2688}")
    def w_reads(i):
        out = []
        for mm in range(4):
            for ct in range(2):
                for hf in range(2):
                    d = WB + (i % 2) * 32 + mm * 8 + ct * 4 + hf * 2
                    out.append(f"ds_read_b64_tr_b16 {V(d,2)}, v{12+ct} offset:{mm*2048 + hf*512}")
        return out
    def x_reads(i):
        return [f"ds_read_b128 {V(X+16*i+4*mm,4)}, v{8+mm} offset:{(i%4)*4096}" for mm in range(4)]
    a(f"""s_waitcnt vmcnt(8)""")
    stamp(a, 1)
    a(f"s_mov_b64 exec, 1\nds_add_u32 v250, v251\ns_mov_b64 exec, -1")
    for j in range(2): a(x_m0(2 + XE, j)); a("s_nop 0"); a(x_ld(2 + XE, j))
    lwait(a, "v250", 252, 4, 19)
    stamp(a, 3, 1)
    wr0 = w_reads(0)
    for s_ in wr0[:8]: a(s_)
    if not XE: a("s_waitcnt vmcnt(6)")
    for s_ in x_reads(0) + wr0[8:]: a(s_)
    a(f"s_cmp_eq_u32 {T5}, 1\ns_cbranch_scc1 L_kvV")
    for var in ("K", "V"):
        if var == "V": a("L_kvV:")
        late = [f"s_mul_i32 {T4}, {S_TILE}, {TS}", f"s_add_u32 {T4}, {T4}, {KV}", "v_lshlrev_b32 v7, 4, v1"]
        if var == "K":
            late += [f"s_lshl_b32 {T0}, {S_LC}, 12", f"s_add_u32 {T4}, {T4}, {T0}"]
        else:
            late += f"""s_lshl_b32 {T1}, {S_LC}, 6
v_and_b32 v4, 31, v1
v_add_u32 v4, {T1}, v4                    ; col (ct0)
v_add_u32 v5, 32, v4
v_lshrrev_b32 v3, 5, v1
v_lshlrev_b32 v3, 9, v3
v_add_u32 v3, {VOFF}, v3""".split("\n")
            for r in (4, 5):
                late += f"""v_mul_u32_u24 v2, 2341, v{r}
v_lshrrev_b32 v2, 16, v2
v_mul_u32_u24 v2, {2048 - 28*16}, v2
v_lshl_add_u32 v{r}, v{r}, 4, v2
v_add_u32 v{r}, v{r}, v3""".split("\n")
            late += f"""s_lshl_b32 {T1}, {S_LC}, 2
s_lshr_b32 {T2}, 0xDB96420, {T1}
s_and_b32 {T2}, {T2}, 15                  ; first head that ends in this line-column
s_lshr_b32 {T3}, 0x3223222, {T1}
s_and_b32 {T3}, {T3}, 15
s_lshl_b32 {T3}, {T3}, 4
v_lshrrev_b32 v6, 2, v1
v_lshlrev_b32 v6, 9, v6
v_and_b32 v2, 3, v1
v_lshl_add_u32 v6, v2, 4, v6
s_lshl_b32 {T2}, {T2}, 11
s_add_u32 {T2}, {T2}, {VOFF + 28*16}
v_add_u32 v6, {T2}, v6
v_cmp_eq_u32 vcc, 0, v2
v_mov_b32 v2, 0x3f803f80
s_nop 0
v_cndmask_b32 v236, 0, v2, vcc
v_cndmask_b32 v237, 0, v2, vcc
v_cndmask_b32 v238, 0, v2, vcc
v_cndmask_b32 v239, 0, v2, vcc""".split("\n")
        for i in range(7):
            a("s_waitcnt lgkmcnt(0)")
            stamp(a, 4 + i, 1)
            fill = [[] for _ in range(8)]
            pre = [[] for _ in range(8)]
            if i == 0:
                dq = [(c, j) for c in range(1, 7) for j in range(4)]
                issued_q = dq[:6 + 4*XE]; dq = dq[6 + 4*XE:]
            def take(g):
                if dq and dq[0][0] <= i + 4:
                    e = dq.pop(0); issued_q.append(e)
                    pre[g].append(x_m0(*e)); fill[g].insert(0, x_ld(*e))
            had = bool(dq)
            if i + 1 < 7:
                wr = w_reads(i + 1)
                fill[0] += [w_base(i + 1)] + wr[0:3]
                fill[1] += wr[3:8]; fill[2] += wr[8:12]; fill[3] += wr[12:16]
                for g in ((0, 1, 2, 3, 4) if i == 0 and not XE else (0,)): take(g)
                if i == 4:
                    fill[1].append("s_cmp_eq_u32 s81, 1\ns_cselect_b64 exec, -1, 0\n" + "\n".join(wq(q) for q in range(cfg.wqe)) + "\ns_mov_b64 exec, -1")
                    issued_q += [(99, q) for q in range(cfg.wqe)]
                last = max(q for q, e in enumerate(issued_q) if e[0] == i + 1)
                fill[4] += [f"s_waitcnt vmcnt({len(issued_q) - 1 - last})"] + x_reads(i + 1)
            for g in range(5, 8): take(g)
            if i == 4:
                assert not had
                fill[0].insert(0, "s_mov_b64 exec, 1\nds_add_u32 v250, v251 offset:8\ns_mov_b64 exec, -1")
            if not had:
                for g in range(5 if i < 6 else 0, 8):
                    for q in range(6):
                        if late: fill[g].append(late.pop(0))
            for mm in range(4):
                for ct in range(2):
                    xr = X + 16*i + 4*mm; wr_ = WB + (i % 2) * 32 + mm * 8 + ct * 4
                    c = None if (i == 0 and mm == 0) else ACC + 16*ct
                    for s_ in pre[2*mm + ct]: a(s_)
                    a(mfma(ACC + 16*ct, wr_, xr, c) if var == "K" else mfma(ACC + 16*ct, xr, wr_, c))
                    for s_ in fill[2*mm + ct]: a(s_)
        assert not late
        stamp(a, 11, 1)
        a(f"s_cmp_eq_u32 {S_LC}, 7\ns_cbranch_scc1 L_kvnone")
        if var == "V":
            a(f"s_bfm_b64 exec, {T3}, 0\nbuffer_store_dwordx4 v[236:239], v6, {sWS}, {T4} offen sc1\ns_mov_b64 exec, -1")
        for ct in range(2):
            for j in range(2):
                for q in range(4):
                    z = 8*ct + 4*j + q
                    a(f"v_cvt_pk_bf16_f32 v{PK+z}, v{ACC+2*z}, v{ACC+2*z+1}")
                if var == "K":
                    a(f"buffer_store_dwordx4 {V(PK+8*ct+4*j,4)}, v7, {sWS}, {T4} offen offset:{ct*2048+j*1024} {KVSC}")
                else:
                    a(f"buffer_store_dwordx4 {V(PK+8*ct+4*j,4)}, v{4+ct}, {sWS}, {T4} offen offset:{j*1024} {KVSC}")
        if var == "K": a("s_branch L_kvdone\nL_kvnone:\ns_waitcnt vmcnt(0)\ns_branch L_kvdone")
    a("L_kvdone:\ns_mov_b64 exec, 1\nds_add_u32 v250, v251\ns_mov_b64 exec, -1")
    stamp(a, 2)
    NB = cfg.nbuf
    Q = 16; O = 48; SA = 112; KVB = 144; P0 = KVB + 16*NB; P1 = P0 + 4
    assert P1 + 4 <= 240
    QP = 224
    S_LD = "s9"
    def kv_loads(t, so=None):
        b = KVB + 16 * (t % NB); so = so or f"s{TO + (t if not cfg.hack or t < cfg.hack else t % cfg.hack)}"
        return [f"buffer_load_dwordx4 {V(b+4*j,4)}, v{VK if j < 2 else VV}, {sWS}, {so} offen offset:{(j%2)*1024} {KVLD}" for j in range(4)]
    PV = 254; QA = (4, 6, 8, 9)
    pl = poll_issue(f"v{VF}", PG[0], PV, 4)
    QW = 176
    def qsync(target):
        a("s_mov_b64 exec, 1\nds_add_u32 v250, v251 offset:4\ns_mov_b64 exec, -1")
        lwait(a, "v250", 5, target, 14, off=4)
    def qmma(c0, c1, issue, check):
        rd = [f"ds_read_b64_tr_b16 {V(QW+(i%3)*16+mm*4+hf*2,2)}, v15 offset:{i*4096+mm*1024+hf*256}" for i in range(c0, c1) for mm in range(4) for hf in range(2)]
        iss = min(len(rd), 12)
        for s_ in rd[:iss]: a(s_)
        for m in range(4 * (c1 - c0)):
            a(f"s_waitcnt lgkmcnt({iss - (2*m + 2)})")
            a(mfma(ACC, QW + ((c0 + m // 4) % 3) * 16 + 4*(m % 4), X + 16*c0 + 4*m, None if c0 + m == 0 else ACC))
            for s_ in rd[iss:iss+2]: a(s_)
            iss = min(len(rd), iss + 2)
            if m == issue: a(pl)
            if m == check:
                Lf, Lg = a.lab("pf"), a.lab("pg")
                a(f"s_waitcnt vmcnt(0)\n{poll_check(PV, 4)}\ns_cbranch_scc1 {Lf}\ns_mov_b32 {S_LD}, 1")
                for t in range(2):
                    for s_ in kv_loads(t): a(s_)
                a(f"s_branch {Lg}\n{Lf}:\n{pl}\n{Lg}:")
    S_OB, S_FO, S_LO, S_HI, S_CL, S_M0 = "s10", "s11", "s12", "s13", "s14", "s[76:77]"
    def addrs():
        a(f"""s_lshl_b32 {S_OB}, {S_TILE}, 4
s_add_u32 {S_OB}, {S_OB}, {S_H}
s_lshl_b32 {S_OB}, {S_OB}, 11
s_add_u32 {S_OB}, {S_OB}, {OBUF}
s_lshl_b32 {S_FO}, {S_R}, 4
s_add_u32 {S_FO}, {S_FO}, {S_H}
s_lshl_b32 {S_FO}, {S_FO}, 7
s_add_u32 {S_FO}, {S_FO}, {FO}
s_mov_b32 {S_LO}, {lit(2.0**-40)}
s_mov_b32 {S_HI}, {lit(2.0**30)}
s_movk_i32 {S_CL}, 0x1f8
s_cmp_eq_u32 {S_W4}, 0
s_cselect_b64 {S_M0}, 1, 0
v_mov_b32 v2, v250
v_mov_b32 v3, 1
v_mov_b32 v7, v{VL}
v_mov_b32 v248, {lit(28 ** -0.5 * math.log2(math.e))}
v_mov_b32 v249, v248""")
        for i in range(4):
            a(f"""s_add_u32 {T0}, {S_W4}, {i+1}
s_and_b32 {T0}, {T0}, 3
s_lshl_b32 {T1}, {T0}, 11
s_add_u32 {T1}, {T1}, {L_Q}
v_add_u32 v{QA[i]}, {T1}, v7
s_mul_i32 {T0}, {T0}, 12288
s_add_u32 {T0}, {T0}, {(i%3)*4096 + L_RED}
v_add_u32 v{10+i}, {T0}, v7""")
    def publish(n):
        a(f"s_waitcnt vmcnt({n})")
        publish_wg(a, "v250", "v251", 16, 5, S_FL, 244)
        stamp(a, 3)
        a("s_waitcnt vmcnt(1)")
    E = cfg.wqe
    a(f"s_mov_b32 {S_LD}, 0\ns_cmp_eq_u32 s81, 1\ns_cbranch_scc1 L_qtwo")
    S_M0 = "s[82:83]" if cfg.xafirst else S_M0
    if cfg.xafirst:
        addrs()
        if cfg.wqdel: a(f"s_sleep {cfg.wqdel}")
        for i in range(7): a(wq(i).replace("s82", T0))
    else:
        for i in range(7): a(wq(i))
        addrs()
    publish(7)
    qsync(4)
    stamp(a, 4)
    qmma(0, 7, cfg.m1, cfg.m2)
    a("s_branch L_qdone\nL_qtwo:\ns_waitcnt vmcnt(4)")
    qsync(4)
    for i in range(E, 7): a(wq(i))
    qmma(0, E, -1, -1)
    addrs()
    publish(7 - E)
    qsync(8)
    stamp(a, 4)
    qmma(E, 7, 0, 4 * (7 - E) - 1)
    a("L_qdone:")
    stamp(a, 5)
    a(f"s_bitcmp1_b32 {S_H}, 0")
    for hf in range(2):
        for q in range(8*hf, 8*hf+8, 2): pk2(a, "mul", ACC+q, ACC+q, 248, scalar=cfg.nopk & 1)
        for q in range(4*hf, 4*hf+4): a(f"v_cvt_pk_bf16_f32 v{QP+q}, v{ACC+2*q}, v{ACC+2*q+1}")
        if hf == 0: a(f"s_cselect_b32 exec_lo, -1, 0\ns_mov_b32 exec_hi, 0\nv_mov_b32 v{QP}, 0\nv_mov_b32 v{QP+1}, 0\ns_mov_b64 exec, -1")
        else: a(f"s_cselect_b32 exec_hi, 0, -1\ns_mov_b32 exec_lo, 0\nv_mov_b32 v{QP+6}, 0\nv_mov_b32 v{QP+7}, 0\ns_mov_b64 exec, -1")
        a(f"ds_write_b128 v9, {V(QP+4*hf,4)} offset:{1024*hf}")
    a(f"""s_mov_b64 exec, 1
ds_add_u32 v2, v3
s_mov_b64 exec, -1
s_cmp_eq_u32 {S_LD}, 1
s_cbranch_scc1 L_kvloaded
s_waitcnt vmcnt(0)
{poll_check(PV, 4)}
s_cbranch_scc0 L_kvready""")
    poll(a, f"v{VF}", PG[0], PV, 4, 1, sleep=2)
    a("L_kvready:")
    for t in range(2):
        for s_ in kv_loads(t): a(s_)
    a("L_kvloaded:\ns_mov_b64 exec, 1\nds_add_u32 v2, v3 offset:12\ns_mov_b64 exec, -1")
    stamp(a, 6)
    if cfg.fine == 6:
        a(f"s_lshl_b32 {T0}, {S_LD}, 10\ns_add_u32 s{STAMP0+1}, s{STAMP0}, {T0}\ns_sub_u32 {T0}, {cfg.poll_limit}, {S_TO}\ns_cmp_gt_u32 {T0}, 100\ns_cselect_b32 {T0}, -1, {T0}\ns_add_u32 {T0}, {T0}, 1\ns_lshl_b32 {T0}, {T0}, 10\ns_add_u32 s{STAMP0+2}, s{STAMP0}, {T0}")
    lwait(a, "v2", 5, 12, 15)
    a(f"s_mov_b32 {S_BAR}, 12")
    for i in range(4):
        a(f"ds_read_b128 {V(Q+8*i,4)}, v{QA[i]}\nds_read_b128 {V(Q+8*i+4,4)}, v{QA[i]} offset:1024")
    stamp(a, 7)
    a("s_waitcnt vmcnt(6) lgkmcnt(6)\ns_setprio 0")
    if cfg.padmid: padto(a, cfg.padmid)
    stamp(a, 8)
    a(mfma(SA, KVB, Q)); a(mfma(SA, KVB + 4, Q + 4, SA))
    a("s_waitcnt vmcnt(4) lgkmcnt(0)\ns_nop 9\n.p2align 3")
    sched = {}
    issued = 2
    for t in range(16):
        for i in (1, 2):
            if (i == 1 or t % cfg.ramp == 0) and issued <= min(15, t + NB - 1):
                sched[(t, i)] = issued; issued += 1
    first = {g: min(k for k, v in sched.items() if v == 4*g) for g in (1, 2, 3)}
    pollat = {(k[0] - 1, 0): g for g, k in first.items()}
    vq = [("t", 1)] * 4
    def after(tag): return len(vq) - 1 - max(q for q, e in enumerate(vq) if e == tag)
    assert NB >= 5
    units = [(t, i) for t in range(12) for i in range(4)] + [(t, i) for i in range(4) for t in range(12, 16)]
    firstuse = {}
    for n, (t, i) in enumerate(units): firstuse.setdefault(t, n)
    waitat = {n - 2: t for t, n in firstuse.items() if t > 0}
    kb = lambda tt: KVB + 16 * (tt % NB)
    redw = lambda i, q: f"ds_write_b128 v{10+i}, {V(O+16*i+4*q,4)} offset:{q*1024}"
    for n, (t, i) in enumerate(units):
        if n % 8 == 0 and n: stamp(a, n // 8, 3)
        if n == 60: stamp(a, 1, 7)
        if n == 62: stamp(a, 2, 7)
        cur = SA + 16 * (n % 2); nxt = SA + 16 * ((n + 1) % 2)
        ms = [None] * 4
        if n < 63:
            tn, inx = units[n + 1]
            ms[0] = mfma(nxt, kb(tn), Q + 8*inx); ms[1] = mfma(nxt, kb(tn) + 4, Q + 8*inx + 4, nxt)
        if n > 0:
            tp, ip = units[n - 1]
            ms[2] = mfma(O + 16*ip, kb(tp) + 12, P1, O + 16*ip)
        ms[3] = mfma(O + 16*i, kb(t) + 8, P0, None if t == 0 else O + 16*i)
        side = [None] * 4
        key = (n // 4, n % 4)
        if key in sched:
            assert n < 48
            tl = sched[key]
            if tl % 4 == 0:
                g = tl // 4
                a(f"s_waitcnt vmcnt({after(('p', g))})\nv_cmp_ne_u64 vcc, {S_NONCE}, v[14:15]\ns_cbranch_vccnz L_gate{g}\nL_gated{g}:\ns_nop 0")
            side = kv_loads(tl); vq += [("t", tl)] * 4
        if key in pollat:
            g = pollat[key]
            side[0] = f"buffer_load_dwordx2 v[14:15], v{VF}, {sWS}, {PG[g]} offen sc1"; vq.append(("p", g))
        sig = "\ns_mov_b64 exec, 1\nds_add_u32 v2, v3\ns_mov_b64 exec, -1"
        rdr = lambda q: f"ds_read_b128 {V(O+4*q,4)}, v13 offset:{q*1024}"
        if 53 <= n <= 56: side[1] = redw(0, n - 53)
        if n in (57, 58): side[1] = redw(1, 2*(n - 57)); side[3] = redw(1, 2*(n - 57) + 1) + (sig if n == 58 else "")
        if n == 60: side[1] = "ds_read_b32 v5, v2"
        if n == 61:
            a(f"s_waitcnt lgkmcnt(0)\nv_readfirstlane_b32 {T0}, v5\ns_cmp_ge_u32 {T0}, 16\ns_cbranch_scc0 L_redw\nL_redd:")
        if n in (61, 62):
            k_ = n - 61
            side = [redw(2, 2*k_), rdr(4*k_) + "\n" + rdr(4*k_+1), redw(2, 2*k_+1) + (sig if k_ else ""), rdr(4*k_+2) + "\n" + rdr(4*k_+3)]
        if n == 63: side[2] = "ds_read2_b32 v[4:5], v2 offset0:34 offset1:0"
        if n == cfg.bhi: side[0] = "s_setprio 3\ns_nop 0" + ("\n" + side[0] if side[0] else "")
        for p in range(4):
            if ms[p]: a(ms[p])
            if side[p]: a(side[p])
            for e in range(4):
                if n in waitat and p == 3 and e == 3:
                    a(f"s_waitcnt vmcnt({after(('t', waitat[n]))})\nv_exp_f32_e64 v{cur+4*p+e}, v{cur+4*p+e}")
                else:
                    a(f"v_exp_f32 v{cur+4*p+e}, v{cur+4*p+e}")
            pk = (P0, P0 + 2, P1, P1 + 2)[p]
            a(f"v_cvt_pk_bf16_f32 v{pk}, v{cur+4*p}, v{cur+4*p+1}\nv_cvt_pk_bf16_f32 v{pk+1}, v{cur+4*p+2}, v{cur+4*p+3}")
    stamp(a, 3, 7)
    a(f"s_waitcnt lgkmcnt(0)\nv_readfirstlane_b32 {T0}, v5\nv_readfirstlane_b32 {T1}, v4")
    a(mfma(O + 48, kb(15) + 12, P1, O + 48))
    a(f"s_add_u32 {T1}, {T1}, {12 if cfg.ohint and not cfg.noA else 20}\ns_min_u32 {T0}, {T0}, {T1}\ns_cmp_ge_u32 {T0}, 20\ns_cbranch_scc0 L_redw2\nL_redd2:")
    stamp(a, 4, 7)
    for q in range(8, 12): a(f"ds_read_b128 {V(O+4*q,4)}, v13 offset:{q*1024}")
    a("s_mov_b64 exec, 1\nds_add_u32 v2, v3")
    if cfg.ohint: a(f"s_mov_b64 exec, {S_M0}\nbuffer_store_dwordx2 v[244:245], v246, {sWS}, {S_FO} offen sc1")
    a("s_mov_b64 exec, -1")
    stamp(a, 9)
    OO = O + 48
    sc_ = cfg.nopk & 2
    for q in range(0, 16, 2): pk2(a, "add", O+q, O+q, O+16+q, scalar=sc_)
    for q in range(0, 16, 2): pk2(a, "add", OO+q, OO+q, O+q, scalar=sc_)
    a("s_waitcnt lgkmcnt(1)")
    for q in (12, 0, 2, 4, 6, 8, 10, 14): pk2(a, "add", OO+q, OO+q, O+32+q, scalar=sc_)
    a(f"""v_mov_b32 v10, v{OO+12}
v_mov_b32 v11, v{OO+12}
v_mul_f32 v12, v{OO}, v{OO+1}
v_mul_f32 v13, v{OO+2}, v{OO+3}
v_permlane32_swap_b32 v10, v11
v_fma_f32 v12, v{OO+4}, v{OO+5}, v12
v_fma_f32 v13, v{OO+6}, v{OO+7}, v13
v_rcp_f32 v10, v11
v_fma_f32 v12, v{OO+8}, v{OO+9}, v12
v_fma_f32 v13, v{OO+10}, v{OO+11}, v13
v_cmp_le_f32 s[70:71], {S_LO}, v11
v_fma_f32 v12, v{OO+12}, v{OO+13}, v12
v_fma_f32 v13, v{OO+14}, v{OO+15}, v13
v_cmp_ge_f32 s[72:73], {S_HI}, v11
v_add_f32 v12, v12, v13
v_cmp_class_f32 vcc, v12, {S_CL}
s_and_b64 s[70:71], s[70:71], s[72:73]
s_and_b64 vcc, vcc, s[70:71]
s_cmp_eq_u64 vcc, exec""")
    if cfg.force_fb: a("s_cmp_eq_u32 0, 1")
    a(f"s_cbranch_scc0 L_fallback\nL_fbdone:\nv_mov_b32 v11, v10")
    for hf in range(2):
        for q in range(8*hf, 8*hf+8, 2): pk2(a, "mul", OO+q, OO+q, 10, scalar=sc_)
        for q in range(4*hf, 4*hf+4): a(f"v_cvt_pk_bf16_f32 v{O+q}, v{OO+2*q}, v{OO+2*q+1}")
        if hf: a(f"s_mov_b32 exec_lo, 0\nv_mov_b32 v{O+6}, 0\ns_mov_b32 exec_lo, -1")
        if cfg.ohint: a(f"v_min_u32 v{O+4*hf}, -2, v{O+4*hf}")
        a(f"buffer_store_dwordx4 {V(O+4*hf,4)}, v7, {sWS}, {S_OB} offen offset:{1024*hf} sc1")
    stamp(a, 10)
    S_BP, S_CNT, S_DT = "s70", "s71", "s72"
    GS = 144; GC = 176; ZR = 196; G = 16; OL = 196; AR = 128
    S_O0, S_O1, S_FH, S_RT, S_CLM = "s73", "s74", "s75", "s76", "s77"
    a(f"""s_lshl_b32 {S_BP}, {S_XCD}, 3
s_lshr_b32 {T0}, {S_IDX}, 2
s_add_u32 {S_BP}, {S_BP}, {T0}
s_and_b32 {T1}, {S_IDX}, 3
s_cmp_ge_u32 {T1}, 2
s_cselect_b32 {S_CNT}, 3, 4
s_lshl_b32 {S_DT}, {T1}, 2
s_cmp_eq_u32 {T1}, 3
s_cselect_b32 {S_DT}, 11, {S_DT}
s_add_u32 {S_DT}, {S_DT}, {S_W4}
s_cmp_ge_u32 {S_W4}, {S_CNT}
s_cbranch_scc1 L_bend
s_setprio {cfg.fprio}
v_bfe_u32 v5, v1, 2, 1
v_lshlrev_b32 v5, 4, v5
v_bfe_u32 v6, v1, 3, 2
v_lshl_add_u32 v5, v6, 2, v5
v_and_b32 v6, 3, v1
v_add_u32 v5, v5, v6
s_lshl_b32 {T0}, {S_DT}, 5
v_add_u32 v5, {T0}, v5                    ; d
v_lshlrev_b32 v9, 31, v5
v_xor_b32 v9, 0.5, v9                     ; 0.5*(-1)^d
v_cvt_f32_u32 v5, v5
v_mul_f32 v5, {lit(1/448)}, v5
v_lshrrev_b32 v4, 5, v1
v_cvt_f32_u32 v6, v4
v_mul_f32 v6, v5, v6
v_mul_f32 v6, 4.0, v6
v_mul_f32 v{GC}, {lit(16.0)}, v5
v_cos_f32 v{GC}, v{GC}""")
    for j in range(16): a(f"v_fmamk_f32 v{GS+j}, v5, {lit(float(16*(j//8) + 8*((j%8)//4) + j%4))}, v6")
    a(f"v_add_f32 v{GC}, v{GC}, v{GC}")
    for j in range(16): a(f"v_sin_f32_e64 v{GS+16+j}, -v{GS+j}\nv_cos_f32 v{GS+j}, v{GS+j}")
    a(f"v_mov_b32 v{GC+1}, v{GC}")
    def ggen(q0, q1):
        a(".p2align 3")
        for q in range(q0, q1):
            rho = q % 2; st = q // 2
            cur = GS + 16*rho + 8*(st % 2); oth = GS + 16*rho + 8*((st + 1) % 2); gp = G + 4*q
            if st >= 2:
                for z in range(0, 8, 2):
                    pk2(a, "fma", cur+z, GC, oth+z, cur+z, neg="2", scalar=cfg.nopk & 8)
            for z in range(4): a(f"v_cvt_pk_bf16_f32 v{gp+z}, v{cur+2*z}, v{cur+2*z+1}")
            if st == 0:
                a(f"s_mov_b32 exec_hi, 0\nv_cvt_pk_bf16_f32 v{gp}, {'v9' if rho else '0.5'}, v{cur+1}\ns_mov_b32 exec_hi, -1")
    ggen(0, 28)
    stamp(a, 11)
    srd(a, sOUT, 16, 2048 * 1792)
    a(f"""v_add_u32 v8, {L_ZB}, v7
s_mul_i32 {T4}, {S_BP}, 1792
s_lshl_b32 {T1}, {S_DT}, 6
s_add_u32 {T4}, {T4}, {T1}""")
    if cfg.cost & 2:
        a(f"""s_lshl_b32 {T1}, {S_W4}, 11
s_add_u32 {T1}, {T1}, {L_Q}
v_and_b32 v10, 31, v1
v_lshlrev_b32 v10, 6, v10
v_lshl_add_u32 v10, v4, 5, v10
v_add_u32 v10, {T1}, v10
v_add_u32 v11, {T1}, v7
v_lshrrev_b32 v6, 2, v1
v_mul_u32_u24 v6, {64*1792}, v6
v_and_b32 v12, 3, v1
v_lshl_add_u32 v6, v12, 4, v6
s_add_u32 {T3}, {T4}, {16*64*1792}""")
    else:
        a(f"v_and_b32 v6, 31, v1\nv_mul_u32_u24 v6, {64*1792}, v6\nv_lshl_add_u32 v6, v4, 5, v6")
    lwait(a, "v2", 5, 4, 17, off=132)
    stamp(a, 13)
    order = [4*(q//4) + 2*(q % 2) + ((q//2) % 2) for q in range(28)]
    for q in range(8): a(f"ds_read_b128 {V(ZR+4*q,4)}, v8 offset:{order[q]*1024}")
    for p in range(28):
        a(f"s_waitcnt lgkmcnt({min(7, 27-p)})")
        a(mfma(AR, G + 4*p, ZR + 4*(p % 8), None if p == 0 else AR))
        if p + 8 < 28: a(f"ds_read_b128 {V(ZR+4*(p%8),4)}, v8 offset:{order[p+8]*1024}")
    osc = ("", " sc1", " nt", " sc0 sc1", " sc1 nt")[cfg.outsc]
    if cfg.odefer and not cfg.noA: lwait(a, "v2", 5, 4, 36, sleep=2, off=20)
    for hf in range(2):
        for q in range(4*hf, 4*hf+4): a(f"v_cvt_pk_bf16_f32 v{GS+q}, v{AR+2*q}, v{AR+2*q+1}")
        if cfg.cost & 2: a(f"ds_write_b128 v10, {V(GS+4*hf,4)} offset:{16*hf}")
        else: a(f"buffer_store_dwordx4 {V(GS+4*hf,4)}, v6, {sOUT}, {T4} offen offset:{16*hf}{osc}")
    if cfg.cost & 2:
        a(f"""ds_read_b128 {V(GS+8,4)}, v11
ds_read_b128 {V(GS+12,4)}, v11 offset:1024
s_waitcnt lgkmcnt(1)
buffer_store_dwordx4 {V(GS+8,4)}, v6, {sOUT}, {T4} offen{osc}
s_waitcnt lgkmcnt(0)
buffer_store_dwordx4 {V(GS+12,4)}, v6, {sOUT}, {T3} offen{osc}""")
    a("L_bend:")
    stamp(a, 12)
    dump_stamps(a, 240)
    a("s_endpgm")
    a("L_redw:")
    lwait(a, "v2", 5, 16, 2)
    a("s_branch L_redd\nL_redw2:")
    lwait(a, "v2", 5, 20, 2)
    if cfg.ohint and not cfg.noA: lwait(a, "v2", 5, 8, 39, sleep=1, off=136)
    a("s_branch L_redd2")
    for g in (1, 2, 3):
        a(f"L_gate{g}:")
        poll(a, f"v{VF}", PG[g], 14, 4, 25, sleep=2)
        a(f"s_branch L_gated{g}")
    a("L_fallback:")
    QO = Q + 24; KB = KVB; M = 15; S_SO = "s70"
    a(f"v_mov_b32 v{M}, 0xff800000\ns_mov_b32 {S_SO}, {KV}\nL_fb1:")
    for s_ in kv_loads(0, S_SO)[:2]: a(s_)
    a(f"s_add_u32 {S_SO}, {S_SO}, {TS}\ns_waitcnt vmcnt(0)")
    a(mfma(SA, KB, QO)); a(mfma(SA, KB + 4, QO + 4, SA))
    for q in range(0, 16, 2): a(f"v_max3_f32 v{M}, v{M}, v{SA+q}, v{SA+q+1}")
    a(f"""s_cmp_lt_u32 {S_SO}, {KV + 64*TS}
s_cbranch_scc1 L_fb1
v_mov_b32 v14, v{M}
v_permlane32_swap_b32 v14, v{M}
v_max_f32 v{M}, v14, v{M}
s_mov_b32 {S_SO}, {KV}""")
    for q in range(16): a(f"v_mov_b32 v{OO+q}, 0")
    a("L_fb2:")
    for s_ in kv_loads(0, S_SO): a(s_)
    a(f"s_add_u32 {S_SO}, {S_SO}, {TS}\ns_waitcnt vmcnt(0)")
    a(mfma(SA, KB, QO)); a(mfma(SA, KB + 4, QO + 4, SA))
    for q in range(16): a(f"v_sub_f32 v{SA+q}, v{SA+q}, v{M}")
    for q in range(16): a(f"v_exp_f32 v{SA+q}, v{SA+q}")
    for q in range(8): a(f"v_cvt_pk_bf16_f32 v{P0+q}, v{SA+2*q}, v{SA+2*q+1}")
    a(mfma(OO, KB + 8, P0, OO)); a(mfma(OO, KB + 12, P1, OO))
    a(f"""s_cmp_lt_u32 {S_SO}, {KV + 64*TS}
s_cbranch_scc1 L_fb2
v_mov_b32 v10, v{OO+12}
v_mov_b32 v11, v{OO+12}
v_permlane32_swap_b32 v10, v11
v_rcp_f32 v10, v11
s_branch L_fbdone""")

def role_A(a):
    FB = 16; GS0 = 48; M = 72; F = 88; ACC = 200; TMP = 216
    S_BP = "s78"
    S_CG, S_CNT, S_CB, S_DT, S_TASK, S_K1 = "s79", "s80", "s81", "s82", "s83", "s73"
    S_B, S_KT16 = S_BP, S_DT
    (PN, _, _, P_TST, P_W, P_F1, P_TLD, P_TBW, P_TBR, P_TTW, P_TTR, P_UST, P_F2, P_WOD, P_WOR, P_WOR2,
     P_ZW0, P_ZW1, P_PF, P_BC, P_PS, _, P_LS, P_DUM) = range(232, 256)
    sc = 1.0 / (2048 * 448)
    def albar(code): lbar(a, "v14", "v15", P_LS, code, sleep=1)
    def burst(items, th):
        a("s_setprio 0")
        for q, it in enumerate(items):
            if q >= th: a(f"s_waitcnt vmcnt({th-1})")
            a(it)
        a(f"s_setprio {cfg.aprio}")
    SB = "s[74:75]"
    def stage_arrive(k):
        L = a.lab("arr")
        a(f"""s_waitcnt vmcnt(0)
s_mov_b64 exec, 1
ds_add_rtn_u32 v{P_LS}, v14, v15 offset:8
s_mov_b64 exec, -1
s_waitcnt lgkmcnt(0)
v_readfirstlane_b32 {T0}, v{P_LS}
s_cmp_eq_u32 {T0}, {4*k+3}
s_cbranch_scc0 {L}
s_mov_b32 {T0}, 1
s_lshl_b32 {T1}, {S_XCD}, 7
s_add_u32 {T1}, {T1}, {k*1024}
s_atomic_add {T0}, {SB}, {T1} glc
s_waitcnt lgkmcnt(0)
s_sub_u32 {T0}, {T0}, s62
s_cmp_eq_u32 {T0}, 31
s_cbranch_scc0 {L}
s_mov_b32 {T1}, {FA1 + 2048 + k*8192}
s_mov_b64 exec, {-1 if cfg.allpoll else 0xffff}
buffer_atomic_add v15, v{P_PF}, {sWS}, {T1} offen sc1
s_mov_b64 exec, -1
{L}:""")
    def stage_wait(k, pre):
        if cfg.ko & 4:
            a("s_waitcnt lgkmcnt(0)"); return
        L, L2, L3 = a.lab("sw"), a.lab("sw"), a.lab("sw")
        if not cfg.allpoll: a(f"s_cmp_eq_u32 {S_W4}, 0\ns_cbranch_scc0 {L2}")
        a(f"""s_and_b32 {T1}, s2, 15
s_lshl_b32 {T2}, {S_W4}, 4
s_add_u32 {T1}, {T1}, {T2}
s_lshl_b32 {T1}, {T1}, 7
s_add_u32 {T1}, {T1}, {2048 + k*8192}
s_add_u32 {T2}, s62, 8
s_mov_b32 {S_TO}, {cfg.poll_limit}
s_waitcnt lgkmcnt(0)
s_sleep {pre}
{L}:
s_mov_b32 {T0}, 0
s_atomic_or {T0}, {SB}, {T1} glc
s_waitcnt lgkmcnt(0)
s_cmp_eq_u32 {T0}, {T2}
s_cbranch_scc1 {L}d
s_sleep {cfg.bsleep}
s_sub_u32 {S_TO}, {S_TO}, 1
s_cbranch_scc0 {L}
s_mov_b32 {S_TO}, 32
s_branch L_fail
{L}d:""")
        if cfg.allpoll: return
        a(f"s_mov_b64 exec, 1\nds_add_u32 v14, v15 offset:12\ns_mov_b64 exec, -1\ns_branch {L3}\n{L2}:")
        lwait(a, "v14", P_LS, k + 1, 33, sleep=cfg.lsl, off=12)
        a(f"{L3}:")
    def pace():
        if cfg.pace: a(f"s_sleep {cfg.pace}")
    a(f"""L_roleA:
v_mov_b32 v3, 0
v_mov_b32 v2, {L_SYNC}
ds_write2_b32 v2, v3, v3 offset0:0 offset1:32
ds_write2_b32 v2, v3, v3 offset0:1 offset1:2
ds_write2_b32 v2, v3, v3 offset0:3 offset1:33
ds_write2_b32 v2, v3, v3 offset0:4 offset1:34
ds_write2_b32 v2, v3, v3 offset0:5 offset1:35
ds_write2_b32 v2, v3, v3 offset0:8 offset1:9
ds_write2_b32 v2, v3, v3 offset0:10 offset1:11
s_setprio {cfg.aprio}
s_mov_b32 {S_BAR}, 0
s_lshl_b32 {S_BP}, {S_XCD}, 3
s_lshr_b32 {T0}, {S_IDX}, 2
s_add_u32 {S_BP}, {S_BP}, {T0}
s_and_b32 {S_CG}, {S_IDX}, 3
s_cmp_ge_u32 {S_CG}, 2
s_cselect_b32 {S_CNT}, 3, 4
s_lshl_b32 {S_CB}, {S_CG}, 2
s_cmp_eq_u32 {S_CG}, 3
s_cselect_b32 {S_CB}, 11, {S_CB}
s_add_u32 {S_DT}, {S_CB}, {S_W4}
v_and_b32 v2, 31, v1                      ; v2 = lane%32
v_lshrrev_b32 v3, 5, v1                   ; v3 = half
v_cvt_f32_u32 v4, v3
s_waitcnt lgkmcnt(0)
{st0()}""")
    if cfg.touch:
        tl = [["s[10:11], 0", "s[4:5], 0", "s[6:7], 0"], ["s[20:21], s76", "s[8:9], 0", "s[14:15], 0"],
              ["s[20:21], s77", "s[16:17], 0", "s[16:17], s76"], ["s[20:21], s74", "s[20:21], s75"]]
        a(f"s_cmp_ge_u32 {S_IDX}, {cfg.touch}\ns_cbranch_scc1 L_tch\ns_mov_b32 s76, 0x200000\ns_mov_b32 s77, 0x600000\ns_mov_b32 s74, 0x400000\ns_mov_b32 s75, 0x800000")
        for w in range(4):
            a(f"s_cmp_lg_u32 {S_W4}, {w}\ns_cbranch_scc1 L_tch{w}")
            for t_ in tl[w]: a(f"s_load_dword s72, {t_}")
            a(f"L_tch{w}:")
        a("L_tch:")
    def angles(n, vstep, vbase, offs, dst=TMP):
        for j in range(n): a(f"v_fmamk_f32 v{dst+j}, {vstep}, {lit(float(offs[j]))}, {vbase}")
    def gen_F():
        A0 = TMP; A1 = TMP + 8; C2 = TMP + 16
        a(f"""v_and_b32 v5, 15, v1
s_lshl_b32 {T0}, {S_KT16}, 4
v_add_u32 v5, {T0}, v5                    ; k
v_bfe_u32 v6, v1, 4, 1
v_lshl_add_u32 v7, v5, 1, v6
v_cmp_eq_u32 vcc, 1, v7
v_mov_b32 v7, 224
v_cndmask_b32 v5, v5, v7, vcc
v_cndmask_b32 v6, v6, 0, vcc
v_cvt_f32_u32 v5, v5
v_cvt_f32_u32 v6, v6
v_mul_f32 v5, {lit(1/448)}, v5            ; kf
v_mul_f32 v6, {lit(0.25)}, v6
v_mul_f32 v7, v5, v4
v_fmamk_f32 v6, v7, {lit(8.0)}, v6
v_mul_f32 v{C2}, {lit(16.0)}, v5
v_cos_f32 v{C2}, v{C2}""")
        angles(16, "v5", "v6", [j % 8 + 16 * (j // 8) for j in range(16)])
        a(f"v_add_f32 v{C2}, v{C2}, v{C2}")
        for j in range(16): a(f"v_cos_f32 v{A0+j}, v{A0+j}")
        a(f"v_mov_b32 v{C2+1}, v{C2}\ns_barrier\n.p2align 3")
        for m in range(28):
            cur = A0 if m % 2 == 0 else A1; oth = A1 if m % 2 == 0 else A0
            if m >= 2:
                for q in range(0, 8, 2):
                    a(f"v_pk_fma_f32 {V(cur+q,2)}, {V(C2,2)}, {V(oth+q,2)}, {V(cur+q,2)} neg_lo:[0,0,1] neg_hi:[0,0,1]")
            for q in range(4): a(f"v_cvt_pk_bf16_f32 v{F+4*m+q}, v{cur+2*q}, v{cur+2*q+1}")
    def gen_M():
        a(f"""v_cvt_f32_u32 v5, v2
s_and_b32 {T0}, {S_W4}, 1
s_lshl_b32 {T0}, {T0}, 10
s_add_u32 {T0}, {T0}, {S_B}
v_lshl_add_u32 v6, v3, 8, {T0}
v_cvt_f32_u32 v6, v6
v_mul_f32 v6, v6, v5
s_cmp_ge_u32 {S_W4}, 2
s_cselect_b32 {T0}, {lit(0.25)}, 0
v_mov_b32 v7, {T0}
v_fmamk_f32 v6, v6, {lit(1/2048)}, v7
v_mul_f32 v5, {lit(1/32)}, v5""")
        angles(8, "v5", "v6", [8*(j//4) + j%4 for j in range(8)])
        for j in range(8): a(f"v_cos_f32 v{TMP+j}, v{TMP+j}")
        for q in range(4): a(f"v_cvt_pk_bf16_f32 v{ACC+8+q}, v{TMP+2*q}, v{TMP+2*q+1}")
    def gen_MS():
        a(f"""v_lshlrev_b32 v5, 6, v2
v_add_u32 v5, {S_BP}, v5
v_cvt_f32_u32 v5, v5
v_mul_f32 v5, {lit(1/2048)}, v5
s_lshl_b32 {T0}, {S_W4}, 3
v_lshl_add_u32 v6, v3, 2, {T0}
v_cvt_f32_u32 v6, v6
v_mul_f32 v6, v5, v6""")
        angles(4, "v5", "v6", range(4), TMP + 8)
        for j in range(4): a(f"v_cos_f32 v{TMP+2*j}, v{TMP+8+j}\nv_sin_f32 v{TMP+2*j+1}, v{TMP+8+j}")
        a(f"v_mov_b32 v6, {lit(2*sc)}\nv_mov_b32 v7, v6")
        for j in range(4): pk2(a, "mul", TMP+2*j, TMP+2*j, 6, scalar=cfg.nopk & 16)
        for j in range(4):
            a(f"v_cvt_pk_bf16_f32 v{48+j}, v{TMP+2*j}, v{TMP+2*j+1}\nv_cvt_pk_bf16_f32 v{52+j}, v{TMP+2*j+1}, -v{TMP+2*j}")
    def gen_FB():
        a(f"""v_and_b32 v5, 15, v1
s_lshl_b32 {T0}, {S_W4}, 4
v_add_u32 v5, {T0}, v5
v_cvt_f32_u32 v5, v5
v_mul_f32 v5, {lit(1/64)}, v5
v_bfe_u32 v6, v1, 4, 1
v_cvt_f32_u32 v6, v6
v_mul_f32 v6, {lit(0.25)}, v6
v_mul_f32 v7, v5, v4
v_fmamk_f32 v6, v7, {lit(4.0)}, v6""")
        C2 = TMP + 16
        a(f"v_mul_f32 v{C2}, {lit(8.0)}, v5\nv_cos_f32 v{C2}, v{C2}")
        angles(8, "v5", "v6", [8*(j//4) + j%4 for j in range(8)], TMP + 20)
        a(f"v_add_f32 v{C2}, v{C2}, v{C2}")
        for j in range(8): a(f"v_cos_f32 v{TMP+2*j}, v{TMP+20+j}\nv_sin_f32 v{TMP+2*j+1}, v{TMP+20+j}")
        a(f"v_mov_b32 v{C2+1}, v{C2}")
        for m in range(8):
            cur = TMP + 8*(m % 2); oth = TMP + 8*((m + 1) % 2)
            if m >= 2:
                for q in range(0, 8, 2):
                    pk2(a, "fma", cur+q, C2, oth+q, cur+q, neg="2", scalar=cfg.nopk & 16)
            for q in range(4): a(f"v_cvt_pk_bf16_f32 v{FB+4*m+q}, v{cur+2*q}, v{cur+2*q+1}")
    def gen_addr():
        a(f"""v_mov_b32 v{PN+2}, 0
v_lshlrev_b32 v7, 4, v1                   ; v7 = lane*16
v_and_b32 v6, 3, v1
v_lshrrev_b32 v5, 2, v1
v_lshlrev_b32 v5, 16, v5
v_lshl_add_u32 v{P_TST}, v6, 4, v5
s_lshl_b32 {T1}, {S_W4}, 11
s_add_u32 {T0}, {T1}, {L_TT}
v_add_u32 v{P_TTR}, {T0}, v7
v_lshlrev_b32 v5, 6, v2
v_lshl_add_u32 v5, v3, 4, v5
v_add_u32 v{P_TTW}, {T0}, v5
s_lshl_b32 {S_TASK}, {S_XCD}, 5
s_add_u32 {S_TASK}, {S_TASK}, {S_IDX}
s_lshr_b32 {T0}, {S_TASK}, 3
s_lshl_b32 {T2}, {S_W4}, 9
s_add_u32 {T0}, {T0}, {T2}
s_mul_i32 {T0}, {T0}, 225
s_lshl_b32 {T2}, {S_HH}, 5
s_add_u32 {T0}, {T0}, {T2}
v_mul_u32_u24 v5, {128*225}, v3
v_add3_u32 v5, v5, v2, {T0}
v_lshlrev_b32 v{P_W}, 1, v5
v_bfe_u32 v12, v1, 4, 1
v_lshlrev_b32 v5, 2, v2
v_lshl_add_u32 v{P_TLD}, v3, 9, v5
v_lshl_add_u32 v{P_UST}, v3, 17, v5
v_lshl_add_u32 v{P_F2}, v3, 18, v5
v_add_u32 v{P_TBR}, {L_TB}, v7
v_add_u32 v{P_TBW}, {T1}, v{P_TBR}
s_add_u32 {S_K1}, {S_W4}, 3
s_cmp_eq_u32 {S_W4}, 0
s_cselect_b32 {S_K1}, 7, {S_K1}
s_lshl_b32 {T0}, {S_W4}, 12
v_add_u32 v{P_ZW0}, {T0}, v{P_TBR}
s_lshl_b32 {T0}, {S_K1}, 12
v_add_u32 v{P_ZW1}, {T0}, v{P_TBR}
v_bfe_u32 v13, v1, 2, 2
v_lshrrev_b32 v5, 4, v1
v_xor_b32 v{P_WOD}, v13, v5
s_sub_u32 {T0}, {S_CNT}, 1
v_min_u32 v{P_WOD}, {T0}, v{P_WOD}
v_add_u32 v{P_WOD}, {S_CB}, v{P_WOD}
v_lshlrev_b32 v{P_WOD}, 6, v{P_WOD}
v_mul_u32_u24 v5, 896, v5
v_add_u32 v5, v5, v{P_WOD}
v_lshl_add_u32 v5, v6, 4, v5
s_mul_i32 {T0}, {S_W4}, {4*896}
v_add_u32 v{P_WOD}, {T0}, v5
v_xor_b32 v5, {S_W4}, v13
v_lshlrev_b32 v5, 6, v5
v_lshl_add_u32 v5, v13, 8, v5
v_and_b32 v6, 1, v1
v_lshl_add_u32 v5, v6, 5, v5
v_lshl_add_u32 v5, v12, 4, v5
v_bfe_u32 v6, v1, 1, 1
v_lshl_add_u32 v5, v6, 3, v5
v_add_u32 v{P_WOR2}, {L_X}, v5
v_lshl_add_u32 v{P_WOR}, v3, 10, v{P_WOR2}""")
    pieces = [gen_F, gen_FB, gen_M, gen_MS, gen_addr]
    assert cfg.pre >= 1
    def wq_warm():
        a(f"""s_cmp_eq_u32 {S_LC}, 7
s_cbranch_scc0 L_pf1
v_mul_u32_u24 v5, 2688, v1
s_mul_i32 {T0}, {T5}, 3
s_add_u32 {T0}, {T0}, {S_RR}
s_lshl_b32 {T0}, {T0}, 7
s_mul_i32 {T1}, {S_W4}, {128*2688}
s_add_u32 {T0}, {T0}, {T1}
s_add_u32 {T1}, {T0}, {64*2688}
buffer_load_dword v{P_DUM}, v5, {sWQKV}, {T0} offen
buffer_load_dword v{P_DUM}, v5, {sWQKV}, {T1} offen
L_pf1:""")
    def xa_warm():
        a(f"""s_cmp_eq_u32 {S_LC}, 7
s_cbranch_scc0 L_pf6
v_lshlrev_b32 v5, 7, v1
s_lshl_b32 {T0}, {S_RR}, 2
s_add_u32 {T0}, {T0}, {S_W4}
s_mul_i32 {T0}, {T0}, {2*64*896}
s_mul_i32 {T1}, {S_XCD}, {8*896}
s_add_u32 {T0}, {T0}, {T1}
s_add_u32 {T1}, {T0}, {64*896}
s_bfm_b64 exec, 56, 0
buffer_load_dword v{P_DUM}, v5, {sX}, {T0} offen
buffer_load_dword v{P_DUM}, v5, {sX}, {T1} offen
s_mov_b64 exec, -1
L_pf6:""")
    def kv_touch():
        srd(a, sWS, 20, WS_SIZE)
        a(f"""s_lshl_b32 {T0}, s2, 2
s_add_u32 {T0}, {T0}, {S_W4}
s_mul_i32 {T0}, {T0}, {30*128}
s_add_u32 {T0}, {T0}, {KV}
v_lshlrev_b32 v5, {6 if cfg.kvt64 else 7}, v1
v_mov_b32 v6, 0
s_bfm_b64 exec, {60 if cfg.kvt64 else 30 - (cfg.kvsn if cfg.kvs else 0)}, {cfg.kvsn if cfg.kvs else 0}
buffer_atomic_or v6, v5, {sWS}, {T0} offen sc1
s_mov_b64 exec, -1""")
    if cfg.kvt == 9: kv_touch()
    def kvi_touch():
        srd(a, sWS, 20, WS_SIZE)
        a(f"""s_cmp_eq_u32 {S_LC}, 7
s_cbranch_scc0 L_pf8
s_lshl_b32 {T0}, {S_XCD}, 4
s_lshl_b32 {T1}, {S_RR}, 2
s_add_u32 {T0}, {T0}, {T1}
s_add_u32 {T0}, {T0}, {S_W4}
s_mul_i32 {T0}, {T0}, {240*128}
s_add_u32 {T0}, {T0}, {KV}
v_lshlrev_b32 v5, 9, v1
v_mov_b32 v6, 0
s_bfm_b64 exec, 60, 0""")
        for q in range(cfg.kvi): a(f"buffer_atomic_or v6, v5, {sWS}, {T0} offen offset:{128*q} sc1")
        a("s_mov_b64 exec, -1\nL_pf8:")
    if cfg.kvi and cfg.kvipos == 0: kvi_touch()
    def mall_warm():
        a(f"""s_cmp_eq_u32 {S_LC}, 7
s_cbranch_scc0 L_pf7
s_lshl_b32 {T0}, {S_XCD}, 4
s_lshl_b32 {T1}, {S_RR}, 2
s_add_u32 {T0}, {T0}, {T1}
s_add_u32 {T0}, {T0}, {S_W4}
v_lshlrev_b32 v5, 7, v1""")
        if cfg.mw & 1:
            a(f"""v_lshrrev_b32 v6, 3, v1
v_mul_u32_u24 v6, 2688, v6
v_and_b32 v7, 7, v1
v_min_u32 v7, 6, v7
v_lshl_add_u32 v6, v7, 7, v6
s_mul_i32 {T1}, {T0}, {4*2688}
s_mov_b64 exec, 0xffffffff
buffer_load_dword v{P_DUM}, v6, {sWQKV}, {T1} offen""")
        if cfg.mw & 2: a(f"s_mul_i32 {T1}, {T0}, {25*128}\ns_bfm_b64 exec, 25, 0\nbuffer_load_dword v{P_DUM}, v5, {sWO}, {T1} offen")
        if cfg.mw & 4: a(f"s_mul_i32 {T1}, {T0}, {57*128}\ns_bfm_b64 exec, 57, 0\nbuffer_load_dword v{P_DUM}, v5, {sWR}, {T1} offen")
        if cfg.mw & 8: a(f"s_mul_i32 {T1}, {T0}, {57*128}\ns_bfm_b64 exec, 57, 0\nbuffer_load_dword v{P_DUM}, v5, {sWI}, {T1} offen")
        if cfg.mw & 16: a(f"s_mul_i32 {T1}, {T0}, {112*128}\ns_bfm_b64 exec, 56, 0\nbuffer_load_dword v{P_DUM}, v5, {sX}, {T1} offen")
        a("s_mov_b64 exec, -1\nL_pf7:")
    if cfg.spf:
        a(f"""s_lshl_b32 {T0}, s2, 2
s_add_u32 {T0}, {T0}, {S_W4}
s_mul_i32 {T1}, {T0}, {14*128}
s_add_u32 s76, s4, {T1}
s_addc_u32 s77, s5, 0
s_mul_i32 {T1}, {T0}, 900
s_add_u32 s70, s6, {T1}
s_addc_u32 s71, s7, 0
s_add_u32 s74, s8, {T1}
s_addc_u32 s75, s9, 0""")
    if cfg.kvs:
        srd(a, sWS, 20, WS_SIZE)
        a(f"""s_lshl_b32 s72, s2, 2
s_add_u32 s72, s72, {S_W4}
s_mul_i32 s72, s72, {30*128}
s_add_u32 s72, s72, {KV}
v_lshlrev_b32 v12, 7, v1
v_mov_b32 v13, 0""")
    n0 = len(a.L)
    for q in range(cfg.pre):
        if q == 4: n1 = len(a.L)
        pieces.pop(0)()
        if q == 0:
            srd(a, sWQKV, 12, 448 * 2688); srd(a, sX, 4, 0 if cfg.ko & 16 else 2048 * 896)
            srd(a, sWR, 6, 0 if cfg.ko & 1 else 2048 * 450); srd(a, sWI, 8, 0 if cfg.ko & 1 else 2048 * 450); srd(a, sWO, 14, 0 if cfg.ko & 2 else 448 * 896)
        if cfg.mw and cfg.mwpos == q + 1: mall_warm()
        if cfg.kvt == q + 1: kv_touch()
        if cfg.kvi and cfg.kvipos == q + 1: kvi_touch()
        if cfg.xawarm == q + 1: xa_warm()
        if cfg.wqwarm == q + 1: wq_warm()
    if cfg.kvs:
        from asmlib import Ins
        per = cfg.kvsn // cfg.kvs
        lo = n0 + cfg.kvs0; hi = n1
        for q in reversed(range(cfg.kvs)):
            at = lo + (hi - lo) * q // cfg.kvs
            while a.L[at].kind not in ("valu",) or a.L[at-1].kind not in ("valu",): at += 1
            a.L[at:at] = [Ins(f"s_bfm_b64 exec, {per}, {q*per}"), Ins(f"buffer_atomic_or v13, v12, {sWS}, s72 offen sc1"), Ins("s_mov_b64 exec, -1")]
    if cfg.spf:
        from asmlib import Ins
        pf = [f"s_load_dword s72, s[76:77], {q*128}" for q in range(14)]
        if cfg.spf >= 2: pf += [f"s_load_dword s72, s[{b}:{b+1}], {q*128}" for q in range(7) for b in (70, 74)]
        lo = n0 + cfg.spf0; hi = len(a.L)
        for q in reversed(range(len(pf))): a.L.insert(lo + (hi - lo) * q // len(pf), Ins(pf[q]))
    stamp(a, 1)
    srd(a, sWS, 20, WS_SIZE)
    srd(a, sOUT, 16, 2048 * 1792)
    S_XA, S_WQL, S_WQG = "s70", "s71", "s72"
    XD = 70
    a(f"""v_lshrrev_b32 v6, 3, v1
v_and_b32 v5, 7, v1
v_lshrrev_b32 v8, 4, v1
v_xor_b32 v5, v5, v8
s_and_b32 {T0}, {S_W4}, 1
s_lshl_b32 {T0}, {T0}, 2
v_xor_b32 v5, {T0}, v5
v_mul_u32_u24 v6, {64*896}, v6
s_mul_i32 {T1}, {S_W4}, {8*64*896}
s_mul_i32 {T2}, {S_B}, 896
s_add_u32 {T1}, {T1}, {T2}
v_add_u32 v6, {T1}, v6
v_lshl_add_u32 v{XD}, v5, 4, v6
s_lshl_b32 {T0}, {S_W4}, 10
s_add_u32 {S_XA}, {T0}, {L_X}
s_mov_b32 {T2}, {L_X}""")
    x_read_addrs(a, 8, "v1", T2, TMP)
    a(f"""v_mov_b32 v14, {L_SYNC+128}
v_mov_b32 v15, 1
v_mov_b32 v{P_BC}, {L_SYNC}
s_lshl_b32 {T1}, {S_CG}, 1""")
    lwait(a, f"v{P_BC}", P_LS, 4, 34, sleep=1)
    a(f"""ds_read_b64 {V(PN,2)}, v{P_BC} offset:64
v_lshlrev_b32 v{P_PF}, 7, v1
s_add_u32 s74, s20, {FA1}
s_addc_u32 s75, s21, 0
s_waitcnt lgkmcnt(0)
v_readfirstlane_b32 s62, v{PN}
v_readfirstlane_b32 s63, v{PN+1}
{f"s_lshr_b32 {T0}, s62, 28; s_lshl_b32 {T0}, {T0}, 24; s_add_u32 s24, s20, {T0}; s_addc_u32 s25, s21, 0; s_add_u32 s74, s74, {T0}; s_addc_u32 s75, s75, 0".replace("; ", chr(10)) if cfg.diagrot else ""}
s_lshl_b32 {T0}, s2, 2
s_add_u32 {T0}, {T0}, {S_W4}
s_cmp_lg_u32 {T0}, 0
s_cbranch_scc1 L_noinit
s_mov_b32 {T0}, {FA1}
buffer_store_dwordx2 {V(PN,2)}, v{P_PF}, {sWS}, {T0} offen offset:2048 sc1
s_mov_b32 {T2}, {FA1 + 8192}
buffer_store_dwordx2 {V(PN,2)}, v{P_PF}, {sWS}, {T2} offen offset:2048 sc1
s_mov_b64 exec, 0xff00
buffer_store_dwordx2 {V(PN,2)}, v{P_PF}, {sWS}, {T0} offen sc1
s_waitcnt vmcnt(0)
s_mov_b64 exec, 0xff
buffer_store_dwordx2 {V(PN,2)}, v{P_PF}, {sWS}, {T0} offen sc1
s_mov_b64 exec, -1
L_noinit:""")
    def wpull():
        L1, L2 = a.lab("wp"), a.lab("wp")
        a(f"""s_lshl_b32 {T2}, {S_IDX}, 1
s_lshr_b32 {T3}, {S_W4}, 1
s_add_u32 {T2}, {T2}, {T3}
s_mul_i32 {T2}, {T2}, 14400
s_mul_i32 {T3}, {S_XCD}, 1800
s_add_u32 {T2}, {T2}, {T3}
s_mov_b64 exec, 0x7fff
s_bitcmp1_b32 {S_W4}, 0
s_cbranch_scc1 {L1}
buffer_load_ushort v{P_DUM}, v{P_PF}, {sWR}, {T2} offen{' nt' if cfg.ntp else ''}
s_branch {L2}
{L1}:
buffer_load_ushort v{P_DUM}, v{P_PF}, {sWI}, {T2} offen{' nt' if cfg.ntp else ''}
{L2}:
s_mov_b64 exec, -1""")
    stamp(a, 2)
    if cfg.wpf == 2: wpull()
    lwait(a, f"v{P_BC}", P_LS, 4 if cfg.kvt != 7 else 1, 20, sleep=1, off=8)
    if cfg.kvt in (7, 8): kv_touch()
    if cfg.xas:
        a(f"s_mul_i32 {T2}, {S_H}, 7\ns_bfe_u32 {T2}, {T2}, 0x30001\ns_cmp_gt_u32 {T2}, 4\ns_cbranch_scc0 L_xago")
        lwait(a, f"v{P_BC}", P_LS, 4 * cfg.xas, 30, sleep=1, off=4)
        a("L_xago:")
    for c in range(7):
        if c == cfg.xae:
            if cfg.wpf == 1: wpull()
            if cfg.xalate == 1: lwait(a, f"v{P_BC}", P_LS, 4, 38, sleep=1, off=12)
            elif cfg.xalate == 2: lwait(a, f"v{P_BC}", P_LS, 9, 38, sleep=1)
            elif cfg.xafirst: lwait(a, f"v{P_BC}", P_LS, 8, 38)
            else: lwait(a, f"v{P_BC}", P_LS, 4, 38, sleep=1, off=16)
        a(f"""s_add_u32 {T2}, {T1}, 1
s_lshr_b32 {T3}, {T2}, 1
s_lshl_b32 {T3}, {T3}, 14
s_and_b32 {T4}, {T1}, 1
s_lshl_b32 {T4}, {T4}, 12
s_sub_u32 {T3}, {T3}, {T4}
s_add_u32 m0, {S_XA}, {T3}
s_lshl_b32 {T4}, {T1}, 7
buffer_load_dwordx4 v{XD}, {sX}, {T4} offen{' nt' if cfg.nta else ''} lds
s_cmp_eq_u32 {T2}, 7
s_cselect_b32 {T1}, 0, {T2}""")
    if cfg.wpf == 4: wpull()
    for p_ in pieces: p_()
    pieces = []
    assert not pieces
    a(f"""v_add_u32 v13, {L_M}, v7
s_lshl_b32 {T0}, {S_W4}, 10
v_add_u32 v5, {T0}, v13
ds_write_b128 v5, {V(ACC+8,4)}
s_cmp_eq_u32 {S_W4}, 0
s_cbranch_scc0 L_chkd
s_lshl_b32 {T1}, {S_XCD}, 7
s_mov_b32 {S_TO}, {cfg.poll_limit}
L_chk:
s_load_dwordx2 s[76:77], {SB}, {T1} glc
s_waitcnt lgkmcnt(0)
s_sub_u32 s76, s76, s62
s_lshr_b32 s76, s76, 5
s_xor_b32 s77, s77, s63
s_or_b32 s76, s76, s77
s_cbranch_scc0 L_chkd
s_sleep 4
s_sub_u32 {S_TO}, {S_TO}, 1
s_cbranch_scc0 L_chk
s_mov_b32 {S_TO}, 35
s_branch L_fail
L_chkd:""")
    WW = 136 if cfg.woearly else 72; AC = 152; FR = 168; TP = 200
    wl = []
    for r in range(8):
        wl.append(f"s_mov_b32 {T0}, {14400*(8*(r//4) + r%4)}\nbuffer_load_short_d16_hi v{WW+r}, v{P_W}, {sWR}, {T0} offen{' nt' if cfg.ntw else ''}")
        wl.append(f"buffer_load_short_d16_hi v{WW+8+r}, v{P_W}, {sWI}, {T0} offen{' nt' if cfg.ntw else ''}")
    if cfg.wearly:
        for s_ in wl: a(s_)
        a("s_waitcnt vmcnt(16)")
    else: a(f"s_waitcnt vmcnt({1 if cfg.wpf == 4 else 0})")
    stamp(a, 3)
    if cfg.noA == 1:
        a(f"s_mov_b64 exec, 1\nds_add_u32 v14, v15 offset:4\ns_mov_b64 exec, -1")
        stamp(a, 12); dump_stamps(a, 16); a("s_endpgm")
    albar(16)
    RG = cfg.ring
    def xreg(m): return (TMP + 4*m if m < 4 else 72 + 4*(m - 4)) if m < RG else F + 4*(m - RG)
    def xr(m): return f"ds_read_b128 {V(xreg(m),4)}, v{8+m%4} offset:{((m//4+1)>>1)*16384 - ((m//4)&1)*4096}"
    assert not (cfg.wearly and RG > 4)
    for m in range(RG): a(xr(m))
    P1 = F; P2 = F + 16; XP = TMP; M = F + 32
    if cfg.mprio == 0: a("s_setprio 0")
    nds = RG
    for m in range(28):
        a(f"s_waitcnt lgkmcnt({nds - m - 1})")
        a(mfma(ACC, xreg(m), F + 4*m, None if m == 0 else ACC))
        if m + RG < 28: a(xr(m + RG)); nds += 1
        elif m >= 24: a(f"ds_read_b128 {V(M+4*(m-24),4)}, v13 offset:{(m-24)*1024}"); nds += 1
    a(f"s_setprio {cfg.aprio}")
    lwait(a, f"v{P_BC}", P_LS, 8, 27, sleep=1)
    a(f"""s_lshl_b32 {T0}, {S_W4}, 11
s_add_u32 {T0}, {T0}, {L_MS}
v_add_u32 v5, {T0}, v7
ds_write_b128 v5, v[48:51]
ds_write_b128 v5, v[52:55] offset:1024
s_lshr_b32 {T0}, {S_KT16}, 1
s_lshl_b32 {T0}, {T0}, 13
s_lshl_b32 {T1}, {S_B}, 7
s_add_u32 {T1}, {T1}, {TBUF}
s_add_u32 {T0}, {T0}, {T1}
s_and_b32 {T2}, {S_KT16}, 1
s_lshl_b32 {T2}, {T2}, 6
s_add_u32 {T0}, {T0}, {T2}
s_add_u32 {T2}, {T0}, {16*65536}
s_cmp_ge_u32 {S_W4}, {S_CNT}
s_cbranch_scc1 L_a1done
s_waitcnt lgkmcnt(0)""")
    for q in range(8): a(f"v_cvt_pk_bf16_f32 v{XP+q}, v{ACC+2*q}, v{ACC+2*q+1}")
    a(mfma(P1, XP, M)); a(mfma(P2, XP, M + 8)); a(mfma(P1, XP + 4, M + 4, P1)); a(mfma(P2, XP + 4, M + 12, P2))
    for r in range(0, 8, 2):
        pk2(a, "add", ACC+r, P1+r, P2+r+8, neg="1", scalar=cfg.nopk & 4); pk2(a, "add", ACC+8+r, P1+r+8, P2+r, scalar=cfg.nopk & 4)
    for r in range(8): a(f"v_cvt_pk_bf16_f32 v{XP+8+r}, v{ACC+r}, v{ACC+8+r}")
    a(f"""s_cmp_lg_u32 {S_KT16}, 0
s_cbranch_scc1 L_a1st
s_mov_b32 exec_hi, 0
v_cvt_pk_bf16_f32 v{XP+8}, v{P1}, v{P2}
v_cvt_pk_bf16_f32 v6, v{P1+8}, v{P2+8}
v_lshlrev_b32 v5, 16, v2
s_mov_b32 exec_hi, -1
L_a1st:
ds_write_b128 v{P_TTW}, {V(XP+8,4)}
ds_write_b128 v{P_TTW}, {V(XP+12,4)} offset:32
ds_read_b128 {V(XP,4)}, v{P_TTR}
ds_read_b128 {V(XP+4,4)}, v{P_TTR} offset:1024
s_mov_b32 {T4}, {T0}
s_waitcnt lgkmcnt(0)""")
    stamp(a, 1, 5)
    if cfg.tdefer: lwait(a, f"v{P_BC}", P_LS, 4, 28, sleep=1, off=12)
    if cfg.tdelay: a(f"s_sleep {cfg.tdelay}")
    if cfg.tstag:
        for q in (1, 2, 3): a(f"s_cmp_lt_u32 {S_W4}, {q}\ns_cbranch_scc1 L_tst\ns_sleep {cfg.tstag}")
        a("L_tst:")
    a(f"""s_cmp_lg_u32 {S_KT16}, 0
s_cbranch_scc1 L_a1st2
s_mov_b32 exec_hi, 0
s_add_u32 {T1}, {T1}, {7*8192}
buffer_store_dword v6, v5, {sWS}, {T1} offen sc1
s_mov_b32 exec_hi, -1
L_a1st2:
{"s_branch L_a1done" if cfg.ko & 8 else ""}
buffer_store_dwordx4 {V(XP,4)}, v{P_TST}, {sWS}, {T4} offen sc1
{"s_sleep %d" % (cfg.tstag // 2) if cfg.tstag else ""}
buffer_store_dwordx4 {V(XP+4,4)}, v{P_TST}, {sWS}, {T2} offen sc1
L_a1done:""")
    stage_arrive(0)
    stamp(a, 4)
    lwait(a, f"v{P_BC}", P_LS, 4, 29, sleep=1, off=12)
    if cfg.wdelay: a(f"s_sleep {cfg.wdelay}")
    if cfg.wpf == 3: wpull()
    if not cfg.wearly and not cfg.wlate: burst([x + (f"\ns_sleep {cfg.wpace}" if cfg.wpace else "") for x in wl], cfg.th_w)
    if cfg.wopf and not cfg.wolate:
        burst([f"""s_lshl_b32 {T0}, {S_IDX}, 2
s_add_u32 {T0}, {T0}, {S_W4}
s_mul_i32 {T0}, {T0}, {25*128}
s_bfm_b64 exec, 25, 0
buffer_load_dword v{P_DUM}, v{P_PF}, {sWO}, {T0} offen
s_mov_b64 exec, -1"""], 1)
    if cfg.ohint:
        for q in range(4): a(f"v_mov_b32 v{TP+q}, -1")
        a(f"""s_lshr_b32 {T0}, {S_XCD}, 1
s_lshl_b32 {T0}, {T0}, 2
s_add_u32 {T0}, {T0}, {S_RR}
s_lshl_b32 {T0}, {T0}, 2
s_add_u32 {T0}, {T0}, {S_W4}
s_lshl_b32 {T0}, {T0}, 4
s_add_u32 {T0}, {T0}, {S_H}
s_lshl_b32 {T0}, {T0}, 11
s_add_u32 {T0}, {T0}, {OBUF}""")
        a(f"s_mov_b32 s72, {T0}")
        marks = [f"buffer_store_dwordx4 {V(TP,4)}, v7, {sWS}, s72 offen offset:{1024*q} sc1" for q in range(2)]
        if not cfg.wolate: burst(marks, 2)
    WO = 72
    S_WOL = "s70"
    a(f"s_lshl_b32 {S_WOL}, {S_W4}, 10\ns_add_u32 {S_WOL}, {S_WOL}, {L_X}")
    def wo_list(rnd):
        return [f"s_add_u32 m0, {S_WOL}, {i*4096}\ns_mov_b32 s71, {(rnd*224 + i*16)*896}\nbuffer_load_dwordx4 v{P_WOD}, {sWO}, s71 offen lds" for i in range(14)]
    def ride(q, n=1):
        it = [q.pop(0) for _ in range(min(n, len(q)))]
        if it: burst(it, n)
        pace()
    def wo_rd(f, d, r1, r2):
        hl, mu = f // 2, f % 2
        return [f"ds_read_b64_tr_b16 {V(d+2*sec,2)}, v{r2 if (mu and sec) else r1} offset:{(28*hl + 16*mu + 8*sec)*256}" for sec in range(2)]
    def wo_reads(h):
        for f in range(16):
            for s_ in wo_rd(f, WO + 64*h + 4*f, P_WOR, P_WOR2): a(s_)
    assert cfg.allpoll
    if cfg.woearly:
        assert cfg.wlate and not cfg.wolate
        lwait(a, "v14", P_LS, 4, 45, sleep=2, off=8)
        burst(wo_list(0), cfg.th_wo)
        a("s_waitcnt vmcnt(0)")
        albar(46)
        wo_reads(0)
    stamp(a, 5)
    stage_wait(0, cfg.a2wait)
    a(f"s_lshl_b32 {T1}, {S_W4}, 11")
    stamp(a, 6)
    a(f"""s_lshl_b32 {T0}, {S_TASK}, 13
s_add_u32 {T0}, {T0}, {T1}
s_add_u32 {T0}, {T0}, {TBUF}""")
    burst([f"buffer_load_dword v{FR+q}, v{P_TLD}, {sWS}, {T0} offen offset:{(q//4)*1024 + (q%4)*128} sc1" for q in range(8)], 8)
    a(f"s_waitcnt vmcnt(0)\nds_write_b128 v{P_TBW}, {V(FR,4)}\nds_write_b128 v{P_TBW}, {V(FR+4,4)} offset:1024" if not cfg.wlate else "")
    if cfg.wlate:
        burst(wl, 24)
        a(f"s_waitcnt vmcnt(16)\nds_write_b128 v{P_TBW}, {V(FR,4)}\nds_write_b128 v{P_TBW}, {V(FR+4,4)} offset:1024")
    stamp(a, 1, 4)
    albar(6)
    stamp(a, 2, 4)
    def dft64(base):
        for m in range(8): a(f"ds_read_b128 {V(FR+4*m,4)}, v{P_TBR} offset:{base + m*1024}")
        if cfg.mprio == 0: a("s_setprio 0")
        for m in range(8):
            a(f"s_waitcnt lgkmcnt({7-m})")
            a(mfma(AC, FB + 4*m, FR + 4*m, None if m == 0 else AC))
            if cfg.mprio: ride(woq)
            elif woq: a(woq.pop(0))
        a(f"s_setprio {cfg.aprio}")
    woq = marks if cfg.wolate else wo_list(1 if cfg.woearly else 0)
    dft64(0)
    a(f"s_waitcnt vmcnt({2 if cfg.wolate else 8})\ns_cmp_eq_u32 {S_HH}, 7\ns_cbranch_scc0 L_a2nx")
    for r in range(8):
        a(f"v_mov_b32 v{TP}, v{WW+r}\nv_xor_b32 v{WW+r}, 0x80000000, v{WW+8+r}\nv_mov_b32 v{WW+8+r}, v{TP}")
    a("L_a2nx:")
    for r in range(0, 8, 2):
        a(f"""v_pk_mul_f32 {V(FR+r,2)}, {V(AC+r,2)}, {V(WW+r,2)}
v_pk_mul_f32 {V(FR+8+r,2)}, {V(AC+r,2)}, {V(WW+8+r,2)}
v_pk_fma_f32 {V(FR+r,2)}, {V(AC+8+r,2)}, {V(WW+8+r,2)}, {V(FR+r,2)} neg_lo:[1,0,0] neg_hi:[1,0,0]
v_pk_fma_f32 {V(FR+8+r,2)}, {V(AC+8+r,2)}, {V(WW+r,2)}, {V(FR+8+r,2)} neg_lo:[1,0,1] neg_hi:[1,0,1]
v_cvt_pk_bf16_f32 v{TP+r}, v{FR+r}, v{FR+8+r}
v_cvt_pk_bf16_f32 v{TP+r+1}, v{FR+r+1}, v{FR+8+r+1}""")
    a(f"ds_write_b128 v{P_TBW}, {V(TP,4)} offset:8192\nds_write_b128 v{P_TBW}, {V(TP+4,4)} offset:9216")
    stamp(a, 3, 4)
    albar(7)
    stamp(a, 4, 4)
    dft64(8192)
    if cfg.uinp:
        a(f"s_lshl_b32 {T0}, {S_TASK}, 13\ns_lshl_b32 {T1}, {S_W4}, 11\ns_add_u32 {T0}, {T0}, {T1}\ns_add_u32 {T0}, {T0}, {TBUF}")
    else:
        a(f"""s_lshl_b32 {T0}, {S_HH}, 12
s_lshr_b32 {T1}, {S_TASK}, 3
s_lshl_b32 {T1}, {T1}, 7
s_add_u32 {T0}, {T0}, {T1}
s_add_u32 {T0}, {T0}, {UBUF}
s_lshl_b32 {T1}, {S_W4}, 19
s_add_u32 {T0}, {T0}, {T1}""")
    for r in range(8): a(f"v_cvt_pk_bf16_f32 v{TP+r}, v{AC+r}, v{AC+8+r}")
    stamp(a, 5, 4)
    a(f"s_cmp_eq_u32 {S_HH}, {S_HH if cfg.ko & 8 else 7}\ns_cselect_b32 exec_lo, 1, -1\ns_cselect_b32 exec_hi, 1, -1")
    if cfg.uinp:
        burst([f"buffer_store_dword v{TP+r}, v{P_TLD}, {sWS}, {T0} offen offset:{(r//4)*1024 + (r%4)*128} sc1" for r in range(8)], 8)
    else:
        burst([f"s_add_u32 {T1}, {T0}, {(8*(r//4) + r%4) * USTR}\nbuffer_store_dword v{TP+r}, v{P_UST}, {sWS}, {T1} offen sc1" for r in range(8)], 8)
    a("s_mov_b64 exec, -1")
    stage_arrive(1)
    stamp(a, 7)
    U0 = 16; U1 = 32; AR = 200; AI = 216
    MSR = [48, 52, 56, 60, 64, 68, 232, 240]
    if cfg.wolate:
        burst(wo_list(0), cfg.th_wo)
        a("s_waitcnt vmcnt(0)")
    albar(4)
    wo_reads(1 if cfg.woearly else 0)
    for q in range(8): a(f"ds_read_b128 {V(MSR[q],4)}, v7 offset:{L_MS + q*1024}")
    if not cfg.woearly:
        albar(24)
        if not cfg.wolate: burst(wo_list(1), cfg.th_wo)
    stage_wait(1, 0 if cfg.wolate else cfg.a3wait)
    stamp(a, 8)
    if cfg.uinp:
        a(f"""s_lshl_b32 {T0}, {S_BP}, 7
s_add_u32 {T0}, {T0}, {TBUF}
s_lshl_b32 {T1}, {S_W4}, 13
s_lshl_b32 {T3}, {S_K1}, 13
s_add_u32 {T2}, {T0}, {T3}
s_add_u32 {T1}, {T0}, {T1}""")
        burst([f"s_add_u32 {T0}, {T1 if q < 16 else T2}, {(8*((q%16)//4) + q%4) * 65536}\nbuffer_load_dword v{U0+q}, v{P_F2}, {sWS}, {T0} offen sc1" for q in range(32)], cfg.th_u)
    else:
        a(f"""s_lshl_b32 {T0}, {S_BP}, 15
s_add_u32 {T0}, {T0}, {UBUF}
s_lshl_b32 {T1}, {S_W4}, 12
s_lshl_b32 {T3}, {S_K1}, 12
s_add_u32 {T2}, {T0}, {T3}
s_add_u32 {T1}, {T0}, {T1}""")
        burst([f"buffer_load_dword v{U0+q}, v{P_TLD}, {sWS}, {T1 if q < 16 else T2} offen offset:{((q%16)//4)*1024 + (q%4)*128} sc1" for q in range(32)], cfg.th_u)
    if cfg.wolate: burst(wo_list(1), 46)
    elif not cfg.woearly:
        a("s_waitcnt vmcnt(32)")
        albar(10)
        wo_reads(1)
    stamp(a, 11, 4)
    a(f"""s_lshl_b32 {T4}, {S_BP}, 2
s_add_u32 {T4}, {T4}, {S_W4}
s_lshl_b32 {T3}, {T4}, 13
s_add_u32 {T3}, {T3}, {OBUF}
s_add_u32 {T2}, {T3}, 4096
s_and_b32 {T4}, {S_BP}, 60
s_add_u32 {T4}, {T4}, {S_W4}
s_lshl_b32 {T4}, {T4}, 9
s_add_u32 {T4}, {T4}, {FO}
s_lshl_b32 {T1}, {S_W4}, 13
v_add_u32 v9, {T1}, v7""")
    def step6(ur, ui, va, last):
        if last and cfg.apoll: a(poll_issue(f"v{P_PF}", T4, P_PS, 4))
        if cfg.mprio == 0: a("s_setprio 0")
        for m in range(4):
            a(mfma(AR, ur + 4*m, MSR[2*m], None if m == 0 else AR))
            if cfg.pace6: a(f"s_sleep {cfg.pace6}")
            a(mfma(AI, ui + 4*m, MSR[2*m+1], None if m == 0 else AI))
            if cfg.pace6: a(f"s_sleep {cfg.pace6}")
        a(f"s_setprio {cfg.aprio}")
        for q in range(16):
            a(f"v_cvt_pk_bf16_f32 v{ur+q}, v{AR+2*q}, v{AR+2*q+1}")
            if q % 4 == 3: a(f"ds_write_b128 v{va}, {V(ur+q-3,4)} offset:{(q//4)*1024}")
    if cfg.s6late: lwait(a, f"v{P_BC}", P_LS, 20, 37, sleep=2)
    a(f"s_waitcnt vmcnt({14 if cfg.wolate else 0})\ns_cmp_eq_u32 {S_W4}, 0\ns_cbranch_scc1 L_a3w0")
    step6(U0, U0, P_ZW0, False)
    step6(U1, U1, P_ZW1, True)
    a(f"s_branch L_a3z\nL_a3w0:\ns_mov_b32 exec_lo, -2\ns_mov_b32 exec_hi, -2")
    for q in range(16): a(f"v_mov_b32 v{U1+q}, v{U0+q}")
    a("s_mov_b64 exec, -1")
    step6(U0, U1, P_ZW0, True)
    a("L_a3z:\ns_mov_b64 exec, 1\nds_add_u32 v14, v15 offset:4\ns_mov_b64 exec, -1")
    stamp(a, 9)
    if cfg.wolate:
        a(f"s_waitcnt vmcnt({1 if cfg.apoll else 0})")
        lbar(a, "v14", "v15", P_LS, 10)
        wo_reads(1)
    osc = ("", " sc1", " nt", " sc0 sc1", " sc1 nt")[cfg.outsc]
    stamp(a, 10)
    a(f"s_mov_b32 s71, {cfg.poll_limit}")
    if cfg.apoll: a(f"s_waitcnt vmcnt(0)\n{poll_check(P_PS, 4)}\ns_cbranch_scc0 L_aoload")
    poll(a, f"v{P_PF}", T4, P_PS, 4, 42, sleep=cfg.osleep)
    a("L_aoload:")
    for q in range(8):
        a(f"buffer_load_dwordx4 {V(16+4*q,4)}, v7, {sWS}, {T3 if q < 4 else T2} offen offset:{(q%4)*1024} sc1")
    stamp(a, 13)
    lwait(a, f"v{P_BC}", P_LS, 24, 43, sleep=1)
    for q in range(8):
        a(f"s_waitcnt vmcnt({7-q})\nds_write_b128 v9, {V(16+4*q,4)} offset:{L_OB + q*1024}")
        if q == 2: a("v_max3_u32 v5, v16, v20, v24")
        if q in (4, 6): a(f"v_max3_u32 v5, v5, v{12+4*q}, v{16+4*q}")
    a(f"""v_max_u32 v5, v5, v44
v_cmp_eq_u32 vcc, -1, v5
s_cbranch_vccz L_aogot
s_sleep 6
s_sub_u32 s71, s71, 1
s_cbranch_scc0 L_aoload
s_mov_b32 {S_TO}, 44
s_branch L_fail
L_aogot:
s_mov_b64 exec, 1
ds_add_u32 v{P_BC}, v15 offset:20
s_mov_b64 exec, -1""")
    a(f"""s_mul_i32 {T4}, {S_BP}, {32*1792}
s_lshl_b32 {T1}, {S_DT}, 6
s_add_u32 {T4}, {T4}, {T1}
s_add_u32 {T4}, {T4}, 896
s_add_u32 {T3}, {T4}, {16*1792}""")
    lwait(a, f"v{P_BC}", P_LS, 4, 12, off=20)
    a(f"s_cmp_ge_u32 {S_W4}, {S_CNT}\ns_cbranch_scc1 L_b3done")
    stamp(a, 11)
    OR = 216
    def zr(s_): return f"ds_read_b128 {V(OR+4*(s_%8),4)}, v7 offset:{L_OB + s_*1024}"
    for s_ in range(8): a(zr(s_))
    if cfg.cost & 1:
        a(f"""s_lshl_b32 {T1}, {S_W4}, 11
s_add_u32 {T1}, {T1}, {L_X}
v_lshlrev_b32 v10, 6, v2
v_lshl_add_u32 v10, v3, 5, v10
v_add_u32 v10, {T1}, v10
v_add_u32 v11, {T1}, v7
v_lshrrev_b32 v5, 2, v1
v_mul_u32_u24 v5, 1792, v5
v_and_b32 v12, 3, v1
v_lshl_add_u32 v5, v12, 4, v5""")
    else:
        a("v_mul_u32_u24 v5, 1792, v2\nv_lshl_add_u32 v5, v3, 5, v5")
    for s_ in range(32):
        a(f"s_waitcnt lgkmcnt({min(7, 31-s_)})")
        a(mfma(AR, WO + 4*s_, OR + 4*(s_ % 8), None if s_ == 0 else AR))
        if s_ + 8 < 32: a(zr(s_ + 8))
    for hf in range(2):
        for q in range(4*hf, 4*hf+4): a(f"v_cvt_pk_bf16_f32 v{48+q}, v{AR+2*q}, v{AR+2*q+1}")
        if cfg.cost & 1: a(f"ds_write_b128 v10, {V(48+4*hf,4)} offset:{16*hf}")
        else: a(f"buffer_store_dwordx4 {V(48+4*hf,4)}, v5, {sOUT}, {T4} offen offset:{16*hf}{osc}")
    if cfg.cost & 1:
        a(f"""ds_read_b128 v[56:59], v11
ds_read_b128 v[60:63], v11 offset:1024
s_waitcnt lgkmcnt(1)
buffer_store_dwordx4 v[56:59], v5, {sOUT}, {T4} offen{osc}
s_waitcnt lgkmcnt(0)
buffer_store_dwordx4 v[60:63], v5, {sOUT}, {T3} offen{osc}""")
    a("L_b3done:")
    a(f"""s_lshl_b32 {T0}, s2, 2
s_add_u32 {T0}, {T0}, {S_W4}
s_cmp_lg_u32 {T0}, 0
s_cbranch_scc1 L_noep
s_mov_b32 {T0}, {EPOCH}""")
    if cfg.diagrot: a("s_mov_b64 s[24:25], s[20:21]")
    flag(a, T0, 10)
    a("L_noep:")
    if cfg.padend: padto(a, cfg.padend)
    stamp(a, 12)
    dump_stamps(a, 16)
    a("s_endpgm")

def build():
    nh = cfg.nh; xh = 16 // nh
    for wg in range(256):
        xcd, idx = wg & 7, wg >> 3
        h = (xcd % xh) * nh + idx % nh
        assert nh == 8
    a = Asm()
    prologue(a); role_B(a); ROLE[0] = 1; role_A(a)
    a(f"""L_fail:
v_mov_b32 v0, 0
v_mov_b32 v1, {S_TO}
global_store_dword v0, v1, s[18:19]
L_end:
s_endpgm
L_codeend:""")
    a.pad()
    import os
    ref = "cdna_kernels/" + NAME + ".s.ref"
    hdr = open(ref).read().split("; Override launch")[0] if os.path.exists(ref) else ""
    s = hdr + f"; @launch grid=(256,1,1) block=(512,1,1) lds={LDS_SIZE}\n"
    s += f""".amdgcn_target "amdgcn-amd-amdhsa--gfx950"
.text
.globl {NAME}_kernel
.p2align 8
.type {NAME}_kernel,@function
{NAME}_kernel:
""" + a.text() + f""".section .rodata,"a"
.p2align 6
.amdhsa_kernel {NAME}_kernel
  .amdhsa_next_free_vgpr 256
  .amdhsa_next_free_sgpr 102
  .amdhsa_accum_offset 256
  .amdhsa_group_segment_fixed_size 0
  .amdhsa_kernarg_size 72
  .amdhsa_user_sgpr_count 2
  .amdhsa_user_sgpr_kernarg_segment_ptr 1
  .amdhsa_system_sgpr_workgroup_id_x 1
.end_amdhsa_kernel
"""
    return s

if __name__ == "__main__":
    out = sys.argv[1]
    for kv in sys.argv[2:]:
        k, v = kv.split("=")
        setattr(cfg, k, type(getattr(cfg, k))(int(v)))
    open(out, "w").write(build())
```

```python
import sys, math, struct
from asmlib import Asm

NAME = "concat_heads__spectral_gfnet__softmax_full_mha__prompt"

class Cfg:
    nh = 8
    stamps = False
    poll_limit = 1 << 17
    noA = 0
    pxcd = -1
    pa = 8
    pb = 9
    psh = 0
    ptype = 0
    kvsc = 1
    kvt = 0
    kvt64 = 0
    kvld = 0
    kvi = 0
    kvipos = 1
    diagrot = 0
    kvs = 0
    kvs0 = 60
    kvsn = 30
    probe = -1
    span = 0
    fine = 0
    padend = 0
    padmid = 0
    dbgwave = -1
    nbuf = 5
    wearly = 0
    touch = 0
    wdelay = 30
    tdelay = 0
    s6late = 0
    lsl = 4
    odefer = 0
    a2wait = 8
    a3wait = 0
    kvwait = 8
    kvrot = 3
    m1 = 12
    ramp = 1
    gate = 2
    wqe = 3
    wqp = 7
    tdefer = 1
    m2 = 27
    xas = 0
    xae = 0
    bhi = 56
    ohint = 1
    wlate = 1
    allpoll = 1
    otry = 1
    gsplit = 8
    claim = 1
    btry = 0
    pace6 = 0
    wolate = 0
    wsoff = 0
    mprio = 0
    xawarm = 0
    wpace = 0
    tstag = 0
    xafirst = 0
    mw = 3
    mwpos = 1
    wqdel = 0
    ring = 8
    apoll = 1
    osleep = 2
    fprio = 0
    nta = 1
    ntw = 1
    ntb = 0
    bsleep = 2
    qst = 0x133
    wopf = 0
    uinp = 1
    woearly = 0
    hack = 0
    ko = 0
    xalate = 0
    ntp = 1
    cost = 3
    nopk = 23
    gtab = 2981409204
    kvp = 1
    owait = 4
    xrot = 0x06543210
    wrot = 1
    pace = 1
    xadefer = 0
    wpf = 0
    outsc = 3
    wqwarm = 0
    th_wo = 14
    th_u = 32
    th_wq = 2
    wqearly = 1
    th_w = 17
    th_xa = 4
    wfair = 8
    xearly = 1
    spf = 0
    spf0 = 150
    pre = 5
    aprio = 2
    force_fb = False
cfg = Cfg()

EPOCH = 0
KV = 0x20000; TS = 61440; VOFF = 28672
OBUF = 0x400000
TBUF = 0x600000
UBUF = 0x800000; USTR = 32768
FKV = 0x8000; FA1 = 0x1000; FO = 0x10000
STAMP = 0xB00000
WS_SIZE = 0x1000000
L_W = 0; L_WQ = 57344; L_X = 86016; L_Q = 151552; L_SYNC = 159744
LDS_SIZE = 160000
L_RED = 0
L_TB = L_WQ; L_YB = L_WQ + 8192; L_MS = 49152; L_TT = L_X + 4096; L_M = L_X + 61440
L_ZB = L_WQ; L_OB = 0
sWS, sWQKV, sX, sWR, sWI, sWO, sOUT = [f"s[{i}:{i+3}]" for i in (24, 28, 32, 36, 40, 44, 48)]
S_WAVE, S_XCD, S_IDX, S_H, S_R, S_W4 = "s56", "s57", "s58", "s59", "s60", "s61"
S_NONCE = "s[62:63]"
S_TO, S_BAR = "s64", "s65"
T0, T1, T2, T3, T4, T5 = "s66", "s67", "s68", "s69", "s22", "s23"
STAMP0 = 84

ZREADY = 24

def f2u(x): return struct.unpack("<I", struct.pack("<f", x))[0]
def lit(x): return "0x%08x" % f2u(x)
def V(a, n=1): return f"v{a}" if n == 1 else f"v[{a}:{a+n-1}]"

def srd(a, name, lo, size):
    i = int(name[2:name.index(":")])
    a(f"s_mov_b32 s{i}, s{lo}\ns_mov_b32 s{i+1}, s{lo+1}\ns_mov_b32 s{i+2}, {size}\ns_mov_b32 s{i+3}, 0x20000")

ROLE = [0]
def stamp(a, i, fine=0):
    if cfg.probe in (50, 51) and ROLE[0] == 0:
        op = "s_memrealtime" if cfg.probe == 50 else "s_memtime"
        if (i, fine) == (cfg.pa, cfg.fine): a(f"{op} s[94:95]\ns_waitcnt lgkmcnt(0)\ns_nop 0")
        if (i, fine) == (cfg.pb, cfg.fine):
            a(f"{op} s[96:97]\ns_waitcnt lgkmcnt(0)\ns_sub_u32 s96, s96, s94")
            a(f"s_lshl_b32 s96, s96, {cfg.psh}" if cfg.probe == 50 else f"s_lshr_b32 s96, s96, {4 - cfg.psh}")
            a("s_add_u32 s96, s96, s100")
        return
    if cfg.probe >= 0:
        if fine == cfg.fine and cfg.probe == ROLE[0] * 100 + i:
            a("s_memrealtime s[96:97]\ns_waitcnt lgkmcnt(0)\ns_nop 0")
        return
    if cfg.fine in (1, 2) and not fine and 3 <= i <= 11: return
    if cfg.fine == 4 and not fine and i in (1, 2, 3, 4, 5, 10, 11, 13): return
    if fine and cfg.fine != fine: return
    if cfg.stamps:
        a(f"s_memtime s[100:101]\ns_waitcnt lgkmcnt(0)\ns_mov_b32 s{STAMP0+i}, s100")

def st0():
    o = f"s_add_u32 s20, s20, {cfg.wsoff << 20}\ns_addc_u32 s21, s21, 0\n" if cfg.wsoff else ""
    return o + (f"s_mov_b32 s{STAMP0+15}, s100\ns_mov_b32 s{STAMP0}, s38" if cfg.stamps else "")

def dump_stamps(a, vt):
    if cfg.probe >= 0:
        if cfg.probe // 100 == ROLE[0]:
            L = a.lab("pr")
            if cfg.pxcd >= 0: a(f"s_cmp_lg_u32 {S_XCD}, {cfg.pxcd}\ns_cbranch_scc1 {L}x")
            if cfg.ptype: a(f"s_cmp_eq_u32 {S_LC}, 7\ns_cbranch_scc{cfg.ptype - 1} {L}x")
            if cfg.probe % 100 == 99: a("s_mov_b32 s96, s100")
            a(f"s_sub_u32 s96, s96, s100\ns_cmp_gt_u32 s96, 4000\ns_cselect_b32 s96, 0, s96\ns_add_u32 s96, s96, 2600\n{L}:\ns_memrealtime s[98:99]\ns_waitcnt lgkmcnt(0)\ns_sub_u32 s98, s98, s100\ns_cmp_lt_u32 s98, s96\ns_cbranch_scc1 {L}\n{L}x:")
        return
    if cfg.span:
        a(f"s_waitcnt vmcnt(0)\ns_memrealtime s[98:99]\ns_lshl_b32 {T0}, s2, 3\ns_add_u32 {T0}, {T0}, {S_WAVE}\ns_lshl_b32 {T0}, {T0}, 3\ns_add_u32 {T0}, {T0}, {STAMP}\ns_waitcnt lgkmcnt(0)")
        a(f"v_mov_b32 v{vt}, s100\nv_mov_b32 v{vt+1}, s98\nv_mov_b32 v{vt+2}, 0\ns_mov_b64 exec, 1\nbuffer_store_dwordx2 {V(vt,2)}, v{vt+2}, {sWS}, {T0} offen\ns_mov_b64 exec, -1")
    if not cfg.stamps: return
    a(f"s_memrealtime s[100:101]\ns_waitcnt lgkmcnt(0)\ns_mov_b32 s{STAMP0+14}, s100")
    if cfg.dbgwave >= 0:
        L = a.lab("nodbg")
        a(f"s_lshl_b32 {T0}, s2, 3\ns_add_u32 {T0}, {T0}, {S_WAVE}\ns_cmp_lg_u32 {T0}, {cfg.dbgwave}\ns_cbranch_scc1 {L}")
        a(f"v_mov_b32 v{vt+4}, 0\ns_mov_b64 exec, 1")
        for i in range(1, 16):
            a(f"s_sub_u32 {T1}, s{STAMP0+i}, s{STAMP0 + (15 if i >= 14 else 0)}\nv_mov_b32 v{vt}, {T1}\nglobal_store_dword v{vt+4}, v{vt}, s[18:19] offset:{4*i}")
        a(f"s_mov_b64 exec, -1\n{L}:")
    a(f"s_lshl_b32 {T0}, s2, 3\ns_add_u32 {T0}, {T0}, {S_WAVE}\ns_lshl_b32 {T0}, {T0}, 7\ns_add_u32 {T0}, {T0}, {STAMP}")
    a(f"v_mov_b32 v{vt+4}, 0\ns_mov_b64 exec, 1")
    for q in range(4):
        for i in range(4): a(f"v_mov_b32 v{vt+i}, s{STAMP0+4*q+i}")
        a(f"buffer_store_dwordx4 {V(vt,4)}, v{vt+4}, {sWS}, {T0} offen offset:{16*q}")
    a("s_mov_b64 exec, -1")

def padto(a, ticks):
    L = a.lab("pad")
    a(f"{L}:\ns_memrealtime s[100:101]\ns_waitcnt lgkmcnt(0)\ns_sub_u32 s100, s100, s{STAMP0+15}\ns_cmp_lt_u32 s100, {ticks}\ns_cbranch_scc1 {L}")

def poll_issue(vaddr, soff, vt, n):
    return f"""v_mov_b32 v{vt}, 0
v_mov_b32 v{vt+1}, 0
s_bfm_b64 exec, {n}, 0
buffer_atomic_or_x2 {V(vt,2)}, {vaddr}, {sWS}, {soff} offen sc0 sc1
s_mov_b64 exec, -1"""

def poll_check(vt, n):
    return f"v_cmp_ne_u64 vcc, {S_NONCE}, {V(vt,2)}\ns_and_b32 vcc_lo, vcc_lo, {hex((1 << n) - 1)}"

def poll(a, vaddr, soff, vt, n, code, sleep=2):
    L, Dn = a.lab("poll"), a.lab("polld")
    a(f"""s_mov_b32 {S_TO}, {cfg.poll_limit}
{L}:
{poll_issue(vaddr, soff, vt, n)}
s_waitcnt vmcnt(0)
{poll_check(vt, n)}
s_cbranch_scc0 {Dn}
s_sleep {sleep}
s_sub_u32 {S_TO}, {S_TO}, 1
s_cbranch_scc0 {L}
s_mov_b32 {S_TO}, {code}
s_branch L_fail
{Dn}:""")

def publish_wg(a, vsync, vone, off, vt, soff, vn, last=3):
    L = a.lab("pub")
    a(f"""s_mov_b64 exec, 1
ds_add_rtn_u32 v{vt}, {vsync}, {vone} offset:{off}
s_waitcnt lgkmcnt(0)
v_readfirstlane_b32 {T0}, v{vt}
s_cmp_eq_u32 {T0}, {last}
s_cselect_b64 exec, 1, 0
buffer_store_dwordx2 {V(vn,2)}, v{vn+2}, {sWS}, {soff} offen sc1
s_mov_b64 exec, -1""")

def flag(a, soff, vt):
    a(f"""v_mov_b32 v{vt}, s62
v_mov_b32 v{vt+1}, s63
v_mov_b32 v{vt+2}, 0
s_mov_b64 exec, 1
buffer_store_dwordx2 {V(vt,2)}, v{vt+2}, {sWS}, {soff} offen sc1
s_mov_b64 exec, -1""")

def flag2(a, soff, vn):
    a(f"s_mov_b64 exec, 1\nbuffer_store_dwordx2 {V(vn,2)}, v{vn+2}, {sWS}, {soff} offen sc1\ns_mov_b64 exec, -1")

def lwait(a, vsync, vt, target, code, sleep=0, off=0):
    L, Dn = a.lab("lw"), a.lab("lwd")
    a(f"""s_mov_b32 {S_TO}, {cfg.poll_limit * 8}
{L}:
ds_read_b32 v{vt}, {vsync} offset:{off}
s_waitcnt lgkmcnt(0)
v_readfirstlane_b32 {T0}, v{vt}
s_cmp_ge_u32 {T0}, {target}
s_cbranch_scc1 {Dn}
{"s_sleep %d" % sleep if sleep else ""}
s_sub_u32 {S_TO}, {S_TO}, 1
s_cbranch_scc0 {L}
s_mov_b32 {S_TO}, {code}
s_branch L_fail
{Dn}:""")

def lbar(a, vsync, vone, vt, code, sleep=0):
    L, Dn = a.lab("lb"), a.lab("lbd")
    a(f"""s_add_u32 {S_BAR}, {S_BAR}, 4
s_mov_b64 exec, 1
ds_add_u32 {vsync}, {vone}
s_mov_b64 exec, -1
s_mov_b32 {S_TO}, {cfg.poll_limit * 8}
{L}:
ds_read_b32 v{vt}, {vsync}
s_waitcnt lgkmcnt(0)
v_readfirstlane_b32 {T0}, v{vt}
s_cmp_ge_u32 {T0}, {S_BAR}
s_cbranch_scc1 {Dn}
{"s_sleep %d" % sleep if sleep else ""}
s_sub_u32 {S_TO}, {S_TO}, 1
s_cbranch_scc0 {L}
s_mov_b32 {S_TO}, {code}
s_branch L_fail
{Dn}:""")

def mfma(d, A, B, C=None):
    return f"v_mfma_f32_32x32x16_bf16 {V(d,16)}, {V(A,4)}, {V(B,4)}, {'0' if C is None else V(C,16)}"

def pk2(a, op, d, x, y, z=None, neg="", scalar=False):
    srcs = [x, y] + ([z] if z is not None else [])
    if not scalar:
        m = "[" + ",".join("1" if str(i) in neg else "0" for i in range(len(srcs))) + "]"
        a(f"v_pk_{op}_f32 {V(d,2)}, " + ", ".join(V(r,2) for r in srcs) + (f" neg_lo:{m} neg_hi:{m}" if neg else ""))
        return
    for q in range(2):
        if op == "add" and neg == "1": a(f"v_sub_f32 v{d+q}, v{x+q}, v{y+q}")
        else: a(f"v_{op}_f32 v{d+q}, " + ", ".join(("-" if str(i) in neg else "") + f"v{r+q}" for i, r in enumerate(srcs)))

def mod7(a, s, t):
    a(f"s_mul_i32 {t}, {s}, 9363\ns_lshr_b32 {t}, {t}, 16\ns_mul_i32 {t}, {t}, 7\ns_sub_u32 {s}, {s}, {t}")

def x_read_addrs(a, v0, vl, base_s, t):
    a(f"""v_and_b32 v{t}, 31, {vl}
v_lshrrev_b32 v{t+1}, 5, {vl}
v_bfe_u32 v{t+2}, {vl}, 1, 3
v_xor_b32 v{t+1}, v{t+1}, v{t+2}
v_lshlrev_b32 v{t}, 7, v{t}
v_add_u32 v{t}, {base_s}, v{t}""")
    for mm in range(4):
        a(f"v_xor_b32 v{t+2}, {2*mm}, v{t+1}\nv_lshl_add_u32 v{v0+mm}, v{t+2}, 4, v{t}")


S_HH, S_RR, S_J, S_P0, S_LC = "s52", "s53", "s54", "s55", "s3"

def prologue(a):
    a(f"""s_cmp_ge_u32 s2, 256
s_cbranch_scc1 L_end
s_load_dwordx16 s[4:19], s[0:1], 0
s_load_dwordx2 s[20:21], s[0:1], 64""")
    if cfg.span or cfg.probe >= 0: a("s_memrealtime s[100:101]")
    if cfg.stamps:
        a(f"s_memtime s[38:39]\ns_memrealtime s[100:101]")
        for i in range(1, 15): a(f"s_mov_b32 s{STAMP0+i}, 0")
    a(f"""s_lshr_b32 {S_IDX}, s2, 3
s_getpc_b64 s[70:71]
L_pc:
v_lshrrev_b32 v3, 5, v0
v_lshl_add_u32 v3, {S_IDX}, 4, v3
v_lshlrev_b32 v3, 7, v3
v_min_u32 v3, L_codeend-L_pc-4, v3
global_load_dword v255, v3, s[70:71]
v_lshrrev_b32 v2, 6, v0
v_and_b32 v1, 63, v0
v_readfirstlane_b32 {S_WAVE}, v2
s_and_b32 {S_XCD}, s2, 7
s_and_b32 {S_HH}, {S_IDX}, 7
s_lshr_b32 {S_RR}, {S_IDX}, 3
s_and_b32 {T5}, {S_XCD}, 1
s_lshl_b32 {S_H}, {T5}, 3
s_add_u32 {S_H}, {S_H}, {S_HH}
s_lshl_b32 {T0}, {S_HH}, 2
s_cmp_eq_u32 {T5}, 0
s_cselect_b32 {S_LC}, 0x67543210, s2
s_cselect_b32 {S_LC}, {S_LC}, 0x65432170
s_lshr_b32 {S_LC}, {S_LC}, {T0}
s_and_b32 {S_LC}, {S_LC}, 7
s_and_b32 {S_W4}, {S_WAVE}, 3
s_cmp_ge_u32 {S_WAVE}, 4
s_cbranch_scc1 L_roleA""")

def nonce(a):
    a(f"""s_waitcnt lgkmcnt(0)
s_mul_i32 s62, s62, 0x9E3779B1
s_add_u32 s62, s62, 0x7F4A7C15
s_mul_i32 s63, s63, 0x85EBCA6D
s_add_u32 s63, s63, 0x165667B1""")

def role_B(a):
    X = 16; ACC = 128; WB = 160; PK = 224
    KVLD = ("sc1", "sc1 nt", "sc0 sc1", "sc0 sc1 nt")[cfg.kvld]
    KVSC = ("sc1", "sc0 sc1", "sc1 nt", "sc0 sc1 nt")[cfg.kvsc]
    SC = 70
    S_XL, S_TILE, S_I = "s77", "s78", "s79"
    TO = 36
    S_WM, S_WO, S_DM, S_DO = "s80", "s81", "s82", "s83"
    a(f"""s_setprio 3
s_mul_i32 {S_J}, {T5}, 7
s_add_u32 {S_J}, {S_J}, {S_LC}
v_lshrrev_b32 v8, 3, v1
v_and_b32 v9, 7, v1
v_mul_u32_u24 v2, 2688, v8
v_bfe_u32 v3, v1, 4, 1
v_lshlrev_b32 v3, 2, v3
v_xor_b32 v3, v9, v3
v_lshl_add_u32 v2, v3, 4, v2
s_lshl_b32 {T0}, {S_J}, 7
s_mul_i32 {T1}, {S_W4}, {8*2688}
s_add_u32 {T0}, {T0}, {T1}
s_add_u32 {T0}, {T0}, 896
v_add_u32 v2, {T0}, v2
s_lshl_b32 {T2}, {S_RR}, 3
s_lshr_b32 {T0}, {0xD66D0770 if cfg.wrot else 0x70707070}, {T2}
s_bfe_u32 {T1}, {T0}, 0x40004
s_and_b32 {T0}, {T0}, 15
s_lshl_b32 {T3}, {S_W4}, 10
s_lshl_b32 {T2}, {T0}, 12
s_add_u32 m0, {T2}, {T3}
s_mul_i32 {S_I}, {T0}, {32*2688}
s_lshl_b32 {T2}, {T1}, 12
s_add_u32 {S_WM}, {T2}, {T3}
s_mul_i32 {S_WO}, {T1}, {32*2688}
s_cmp_ge_u32 {S_RR}, {2 if cfg.wrot else 4}
s_cselect_b32 {T0}, -1, 1
s_lshl_b32 {S_DM}, {T0}, 12
s_mul_i32 {S_DO}, {T0}, {32*2688}
s_cmp_eq_u32 {S_LC}, 7
s_cselect_b32 s30, 0, {448 * 2688}
s_mov_b32 s31, 0x20000
s_waitcnt lgkmcnt(0)
{st0()}
s_mov_b64 s[28:29], s[12:13]""")
    def x_m0(i, j): return f"s_add_u32 m0, {S_XL}, {(i%4)*4096 + j*1024}"
    def x_ld(i, j): return f"buffer_load_dwordx4 v{4+j}, {sX}, s{SC+i} offen{' nt' if cfg.ntb else ''} lds"
    def sc_next(i): return f"s_add_u32 s{SC+i}, s{SC+i-1}, 128\ns_cmp_eq_u32 s{SC+i}, 896\ns_cselect_b32 s{SC+i}, 0, s{SC+i}"
    def w_base(i): return f"v_lshl_add_u32 v12, s{SC+i}, 6, v14\nv_xor_b32 v13, 64, v12"
    def setup_x():
        a(f"""s_mov_b32 s34, {2048*896}
s_mov_b32 s35, 0x20000
s_lshr_b32 {S_R}, {S_XCD}, 1
s_lshl_b32 {S_R}, {S_R}, 2
s_add_u32 {S_R}, {S_R}, {S_RR}
s_lshl_b32 {S_TILE}, {S_R}, 2
s_add_u32 {S_TILE}, {S_TILE}, {S_W4}
v_lshrrev_b32 v10, 4, v1
v_xor_b32 v10, v9, v10
v_xor_b32 v11, 4, v10
v_mul_u32_u24 v12, 896, v8
s_mul_i32 {T2}, {S_TILE}, {32*896}
v_add_u32 v12, {T2}, v12
v_lshl_add_u32 v4, v10, 4, v12
v_lshl_add_u32 v5, v11, 4, v12
v_add_u32 v5, {8*896}, v5
v_add_u32 v6, {16*896}, v4
v_add_u32 v7, {16*896}, v5
s_lshl_b32 {T2}, {S_HH}, 2
s_lshr_b32 s{SC}, {cfg.xrot}, {T2}
s_and_b32 s{SC}, s{SC}, 7
s_lshl_b32 s{SC}, s{SC}, 7
s_lshl_b32 {S_XL}, {S_W4}, 14
s_add_u32 {S_XL}, {S_XL}, {L_X}""")
        a("s_mov_b64 s[32:33], s[10:11]")
    def setup2():
        for i in range(1, 7): a(sc_next(i))
        x_read_addrs(a, 8, "v1", S_XL, 12)
        srd(a, sWS, 20, WS_SIZE)
        a(f"""v_lshrrev_b32 v12, 5, v1
v_lshlrev_b32 v12, 3, v12
v_bfe_u32 v13, v1, 2, 2
v_add_u32 v12, v12, v13
v_bfe_u32 v13, v1, 4, 1
v_lshlrev_b32 v13, 5, v13
v_and_b32 v18, 1, v1
v_bfe_u32 v19, v1, 1, 1
v_lshl_add_u32 v15, v18, 4, v13
v_lshl_add_u32 v15, v19, 3, v15
v_lshl_add_u32 v14, v18, 3, v13
v_lshl_add_u32 v14, v19, 4, v14
s_cmp_eq_u32 {T5}, 1
s_cselect_b64 vcc, -1, 0
v_cndmask_b32 v14, v15, v14, vcc
v_lshl_add_u32 v15, v12, 6, v15
v_add_u32 v15, {L_WQ}, v15
v_bfe_u32 v13, v1, 3, 1
v_lshl_add_u32 v14, v13, 6, v14
v_lshl_add_u32 v14, v12, 7, v14""")
        a(f"""v_lshrrev_b32 v253, 2, v1
v_mul_u32_u24 v253, 2688, v253
v_and_b32 v254, 3, v1
v_lshl_add_u32 v253, v254, 4, v253
s_mul_i32 {S_P0}, {S_H}, 7
s_lshr_b32 {S_P0}, {S_P0}, 1
s_lshl_b32 s80, {S_P0}, 4
s_mul_i32 s81, {S_W4}, {16*2688}
s_add_u32 s80, s80, s81
v_add_u32 v253, s80, v253
s_lshl_b32 s80, {S_W4}, 10
s_add_u32 s80, s80, {L_WQ}
s_and_b32 s81, {S_P0}, 7
s_cmp_gt_u32 s81, 4
s_cselect_b32 s81, 1, 0
s_nop 0""")
        a(w_base(0))
        a(f"v_mov_b32 v250, {L_SYNC}\nv_mov_b32 v251, 1\nv_mov_b32 v246, 0\ns_mov_b32 {S_BAR}, 0")
    VK, VV, VF, VL = 240, 241, 242, 243
    PG = ["s4", "s5", "s6", "s7"]; S_FL = "s8"
    def setup3():
        a(f"""v_lshlrev_b32 v{VL}, 4, v1
s_lshl_b32 {T0}, {S_P0}, 9
v_add_u32 v{VK}, {T0}, v{VL}
s_lshl_b32 {T0}, {S_H}, 11
s_add_u32 {T0}, {T0}, {VOFF}
v_add_u32 v{VV}, {T0}, v{VL}
s_lshr_b32 {T1}, {S_P0}, 3
s_add_u32 {T0}, {S_P0}, 3
s_lshr_b32 {T0}, {T0}, 3
s_sub_u32 {T0}, {T0}, {T1}
v_and_b32 v{VF}, 1, v1
v_mul_u32_u24 v{VF}, {T0}, v{VF}
v_bfe_u32 v18, v1, 1, 1
v_mul_u32_u24 v18, 7, v18
v_add_u32 v{VF}, v{VF}, v18
v_lshlrev_b32 v{VF}, 7, v{VF}
s_lshl_b32 {T0}, {S_W4}, 4
s_add_u32 {T0}, {T0}, {T1}
s_lshl_b32 {T0}, {T0}, 7
s_add_u32 {T3}, {T0}, {FKV}
s_lshr_b32 {T2}, {S_R}, 2
s_lshl_b32 {T2}, {T2}, 3
s_lshr_b32 {T2}, {cfg.gtab if cfg.gtab > 1 else 0x934E39E4}, {T2}
s_mul_i32 {T1}, {S_W4}, {4*TS}
s_add_u32 {T1}, {T1}, {KV}""")
        for p in range(4): a(f"s_add_u32 {T0}, {S_RR}, {p}\ns_and_b32 {T0}, {T0}, 3\ns_mul_i32 s{TO+12+p}, {T0}, {TS}")
        for g in range(4):
            a(f"s_bfe_u32 {T0}, {T2}, {0x20000 + 2*g}\ns_lshl_b32 {PG[g]}, {T0}, 13\ns_add_u32 {PG[g]}, {PG[g]}, {T3}\ns_mul_i32 {T0}, {T0}, {16*TS}\ns_add_u32 {T0}, {T0}, {T1}")
            for p in range(4):
                a(f"s_add_u32 s{TO+4*g+p}, {T0}, " + (f"{p*TS}" if (g == 0 or cfg.kvrot == 0) else f"s{TO+12+p}"))
        a(f"""s_cmp_eq_u32 {S_LC}, 7
s_cselect_b32 {T1}, 15, {S_J}
s_lshl_b32 {T0}, {S_R}, 4
s_add_u32 {T0}, {T0}, {T1}
s_lshl_b32 {T0}, {T0}, 7
s_add_u32 {S_FL}, {T0}, {FKV}""")
    stamp(a, 3, 2)
    XE = cfg.xearly
    def mid():
        stamp(a, 4, 2)
        a("s_barrier")
        if cfg.fine != 2: a(f"s_load_dwordx2 s[62:63], s[20:21], {EPOCH}")
        stamp(a, 5, 2)
    for i in range(14):
        a(f"buffer_load_dwordx4 v2, {sWQKV}, {S_I} offen lds")
        if i == 6:
            if XE:
                setup_x()
                for j in range(4): a(x_m0(0, j)); a("s_nop 0"); a(x_ld(0, j))
                mid()
            a(f"s_mov_b32 m0, {S_WM}\ns_mov_b32 {S_I}, {S_WO}")
            if XE: setup2(); setup3()
        elif i < 13: a(f"s_add_u32 m0, m0, {S_DM}\ns_add_u32 {S_I}, {S_I}, {S_DO}")
        if i == 10 and not XE:
            mid(); setup_x(); setup2(); setup3()
    stamp(a, 8, 2)
    a(f"s_waitcnt vmcnt({cfg.wfair})")
    stamp(a, 10, 2)
    for c in range(XE, 2 + XE):
        for j in range(4): a(x_m0(c, j)); a("s_nop 0"); a(x_ld(c, j))
    stamp(a, 11, 2)
    if cfg.fine == 2: a(f"s_load_dwordx2 s[62:63], s[20:21], {EPOCH}")
    nonce(a)
    if cfg.diagrot: a(f"s_lshr_b32 {T0}, s62, 28\ns_lshl_b32 {T0}, {T0}, 24\ns_add_u32 s24, s20, {T0}\ns_addc_u32 s25, s21, 0")
    a("v_mov_b32 v244, s62\nv_mov_b32 v245, s63\nds_write_b64 v250, v[244:245] offset:64")
    def w_base(i): return f"v_lshl_add_u32 v12, s{SC+i}, 6, v14\nv_xor_b32 v13, 64, v12"
    def wq(i): return f"s_add_u32 m0, s80, {i*4096}\ns_mul_i32 s82, s{SC+i}, {64*21}\nbuffer_load_dwordx4 v253, {sWQKV}, s82 offen lds"
    a(f"s_mov_b32 s30, {448 * 2688}")
    def w_reads(i):
        out = []
        for mm in range(4):
            for ct in range(2):
                for hf in range(2):
                    d = WB + (i % 2) * 32 + mm * 8 + ct * 4 + hf * 2
                    out.append(f"ds_read_b64_tr_b16 {V(d,2)}, v{12+ct} offset:{mm*2048 + hf*512}")
        return out
    def x_reads(i):
        return [f"ds_read_b128 {V(X+16*i+4*mm,4)}, v{8+mm} offset:{(i%4)*4096}" for mm in range(4)]
    a(f"""s_waitcnt vmcnt(8)""")
    stamp(a, 1)
    a(f"s_mov_b64 exec, 1\nds_add_u32 v250, v251\ns_mov_b64 exec, -1")
    for j in range(2): a(x_m0(2 + XE, j)); a("s_nop 0"); a(x_ld(2 + XE, j))
    lwait(a, "v250", 252, 4, 19)
    stamp(a, 3, 1)
    wr0 = w_reads(0)
    for s_ in wr0[:8]: a(s_)
    if not XE: a("s_waitcnt vmcnt(6)")
    for s_ in x_reads(0) + wr0[8:]: a(s_)
    a(f"s_cmp_eq_u32 {T5}, 1\ns_cbranch_scc1 L_kvV")
    for var in ("K", "V"):
        if var == "V": a("L_kvV:")
        late = [f"s_mul_i32 {T4}, {S_TILE}, {TS}", f"s_add_u32 {T4}, {T4}, {KV}", "v_lshlrev_b32 v7, 4, v1"]
        if var == "K":
            late += [f"s_lshl_b32 {T0}, {S_LC}, 12", f"s_add_u32 {T4}, {T4}, {T0}"]
        else:
            late += f"""s_lshl_b32 {T1}, {S_LC}, 6
v_and_b32 v4, 31, v1
v_add_u32 v4, {T1}, v4                    ; col (ct0)
v_add_u32 v5, 32, v4
v_lshrrev_b32 v3, 5, v1
v_lshlrev_b32 v3, 9, v3
v_add_u32 v3, {VOFF}, v3""".split("\n")
            for r in (4, 5):
                late += f"""v_mul_u32_u24 v2, 2341, v{r}
v_lshrrev_b32 v2, 16, v2
v_mul_u32_u24 v2, {2048 - 28*16}, v2
v_lshl_add_u32 v{r}, v{r}, 4, v2
v_add_u32 v{r}, v{r}, v3""".split("\n")
            late += f"""s_lshl_b32 {T1}, {S_LC}, 2
s_lshr_b32 {T2}, 0xDB96420, {T1}
s_and_b32 {T2}, {T2}, 15                  ; first head that ends in this line-column
s_lshr_b32 {T3}, 0x3223222, {T1}
s_and_b32 {T3}, {T3}, 15
s_lshl_b32 {T3}, {T3}, 4
v_lshrrev_b32 v6, 2, v1
v_lshlrev_b32 v6, 9, v6
v_and_b32 v2, 3, v1
v_lshl_add_u32 v6, v2, 4, v6
s_lshl_b32 {T2}, {T2}, 11
s_add_u32 {T2}, {T2}, {VOFF + 28*16}
v_add_u32 v6, {T2}, v6
v_cmp_eq_u32 vcc, 0, v2
v_mov_b32 v2, 0x3f803f80
s_nop 0
v_cndmask_b32 v236, 0, v2, vcc
v_cndmask_b32 v237, 0, v2, vcc
v_cndmask_b32 v238, 0, v2, vcc
v_cndmask_b32 v239, 0, v2, vcc""".split("\n")
        for i in range(7):
            a("s_waitcnt lgkmcnt(0)")
            stamp(a, 4 + i, 1)
            fill = [[] for _ in range(8)]
            pre = [[] for _ in range(8)]
            if i == 0:
                dq = [(c, j) for c in range(1, 7) for j in range(4)]
                issued_q = dq[:6 + 4*XE]; dq = dq[6 + 4*XE:]
            def take(g):
                if dq and dq[0][0] <= i + 4:
                    e = dq.pop(0); issued_q.append(e)
                    pre[g].append(x_m0(*e)); fill[g].insert(0, x_ld(*e))
            had = bool(dq)
            if i + 1 < 7:
                wr = w_reads(i + 1)
                fill[0] += [w_base(i + 1)] + wr[0:3]
                fill[1] += wr[3:8]; fill[2] += wr[8:12]; fill[3] += wr[12:16]
                for g in ((0, 1, 2, 3, 4) if i == 0 and not XE else (0,)): take(g)
                if i == 4:
                    fill[1].append("s_cmp_eq_u32 s81, 1\ns_cselect_b64 exec, -1, 0\n" + "\n".join(wq(q) for q in range(cfg.wqe)) + "\ns_mov_b64 exec, -1")
                    issued_q += [(99, q) for q in range(cfg.wqe)]
                last = max(q for q, e in enumerate(issued_q) if e[0] == i + 1)
                fill[4] += [f"s_waitcnt vmcnt({len(issued_q) - 1 - last})"] + x_reads(i + 1)
            for g in range(5, 8): take(g)
            if i == 4:
                assert not had
                fill[0].insert(0, "s_mov_b64 exec, 1\nds_add_u32 v250, v251 offset:8\ns_mov_b64 exec, -1")
            if not had:
                for g in range(5 if i < 6 else 0, 8):
                    for q in range(6):
                        if late: fill[g].append(late.pop(0))
            for mm in range(4):
                for ct in range(2):
                    xr = X + 16*i + 4*mm; wr_ = WB + (i % 2) * 32 + mm * 8 + ct * 4
                    c = None if (i == 0 and mm == 0) else ACC + 16*ct
                    for s_ in pre[2*mm + ct]: a(s_)
                    a(mfma(ACC + 16*ct, wr_, xr, c) if var == "K" else mfma(ACC + 16*ct, xr, wr_, c))
                    for s_ in fill[2*mm + ct]: a(s_)
        assert not late
        stamp(a, 11, 1)
        a(f"s_cmp_eq_u32 {S_LC}, 7\ns_cbranch_scc1 L_kvnone")
        if var == "V":
            a(f"s_bfm_b64 exec, {T3}, 0\nbuffer_store_dwordx4 v[236:239], v6, {sWS}, {T4} offen sc1\ns_mov_b64 exec, -1")
        for ct in range(2):
            for j in range(2):
                for q in range(4):
                    z = 8*ct + 4*j + q
                    a(f"v_cvt_pk_bf16_f32 v{PK+z}, v{ACC+2*z}, v{ACC+2*z+1}")
                if var == "K":
                    a(f"buffer_store_dwordx4 {V(PK+8*ct+4*j,4)}, v7, {sWS}, {T4} offen offset:{ct*2048+j*1024} {KVSC}")
                else:
                    a(f"buffer_store_dwordx4 {V(PK+8*ct+4*j,4)}, v{4+ct}, {sWS}, {T4} offen offset:{j*1024} {KVSC}")
        if var == "K": a("s_branch L_kvdone\nL_kvnone:\ns_waitcnt vmcnt(0)\ns_branch L_kvdone")
    a("L_kvdone:\ns_mov_b64 exec, 1\nds_add_u32 v250, v251\ns_mov_b64 exec, -1")
    stamp(a, 2)
    NB = cfg.nbuf
    Q = 16; O = 48; SA = 112; KVB = 144; P0 = KVB + 16*NB; P1 = P0 + 4
    assert P1 + 4 <= 240
    QP = 224
    S_LD = "s9"
    def kv_loads(t, so=None):
        b = KVB + 16 * (t % NB); so = so or f"s{TO + (t if not cfg.hack or t < cfg.hack else t % cfg.hack)}"
        return [f"buffer_load_dwordx4 {V(b+4*j,4)}, v{VK if j < 2 else VV}, {sWS}, {so} offen offset:{(j%2)*1024} {KVLD}" for j in range(4)]
    PV = 254; QA = (4, 6, 8, 9)
    pl = poll_issue(f"v{VF}", PG[0], PV, 4)
    QW = 176
    def qsync(target):
        a("s_mov_b64 exec, 1\nds_add_u32 v250, v251 offset:4\ns_mov_b64 exec, -1")
        lwait(a, "v250", 5, target, 14, off=4)
    def qmma(c0, c1, issue, check):
        rd = [f"ds_read_b64_tr_b16 {V(QW+(i%3)*16+mm*4+hf*2,2)}, v15 offset:{i*4096+mm*1024+hf*256}" for i in range(c0, c1) for mm in range(4) for hf in range(2)]
        iss = min(len(rd), 12)
        for s_ in rd[:iss]: a(s_)
        for m in range(4 * (c1 - c0)):
            a(f"s_waitcnt lgkmcnt({iss - (2*m + 2)})")
            a(mfma(ACC, QW + ((c0 + m // 4) % 3) * 16 + 4*(m % 4), X + 16*c0 + 4*m, None if c0 + m == 0 else ACC))
            for s_ in rd[iss:iss+2]: a(s_)
            iss = min(len(rd), iss + 2)
            if m == issue: a(pl)
            if m == check:
                Lf, Lg = a.lab("pf"), a.lab("pg")
                a(f"s_waitcnt vmcnt(0)\n{poll_check(PV, 4)}\ns_cbranch_scc1 {Lf}\ns_mov_b32 {S_LD}, 1")
                for t in range(2):
                    for s_ in kv_loads(t): a(s_)
                a(f"s_branch {Lg}\n{Lf}:\n{pl}\n{Lg}:")
    S_OB, S_FO, S_LO, S_HI, S_CL, S_M0 = "s10", "s11", "s12", "s13", "s14", "s[76:77]"
    def addrs():
        a(f"""s_lshl_b32 {S_OB}, {S_TILE}, 4
s_add_u32 {S_OB}, {S_OB}, {S_H}
s_lshl_b32 {S_OB}, {S_OB}, 11
s_add_u32 {S_OB}, {S_OB}, {OBUF}
s_lshl_b32 {S_FO}, {S_R}, 4
s_add_u32 {S_FO}, {S_FO}, {S_H}
s_lshl_b32 {S_FO}, {S_FO}, 7
s_add_u32 {S_FO}, {S_FO}, {FO}
s_mov_b32 {S_LO}, {lit(2.0**-40)}
s_mov_b32 {S_HI}, {lit(2.0**30)}
s_movk_i32 {S_CL}, 0x1f8
s_cmp_eq_u32 {S_W4}, 0
s_cselect_b64 {S_M0}, 1, 0
v_mov_b32 v2, v250
v_mov_b32 v3, 1
v_mov_b32 v7, v{VL}
v_mov_b32 v248, {lit(28 ** -0.5 * math.log2(math.e))}
v_mov_b32 v249, v248""")
        for i in range(4):
            a(f"""s_add_u32 {T0}, {S_W4}, {i+1}
s_and_b32 {T0}, {T0}, 3
s_lshl_b32 {T1}, {T0}, 11
s_add_u32 {T1}, {T1}, {L_Q}
v_add_u32 v{QA[i]}, {T1}, v7
s_mul_i32 {T0}, {T0}, 12288
s_add_u32 {T0}, {T0}, {(i%3)*4096 + L_RED}
v_add_u32 v{10+i}, {T0}, v7""")
    def publish(n):
        a(f"s_waitcnt vmcnt({n})")
        publish_wg(a, "v250", "v251", 16, 5, S_FL, 244)
        stamp(a, 3)
        a("s_waitcnt vmcnt(1)")
    E = cfg.wqe
    a(f"s_mov_b32 {S_LD}, 0\ns_cmp_eq_u32 s81, 1\ns_cbranch_scc1 L_qtwo")
    S_M0 = "s[82:83]" if cfg.xafirst else S_M0
    if cfg.xafirst:
        addrs()
        if cfg.wqdel: a(f"s_sleep {cfg.wqdel}")
        for i in range(7): a(wq(i).replace("s82", T0))
    else:
        for i in range(7): a(wq(i))
        addrs()
    publish(7)
    qsync(4)
    stamp(a, 4)
    qmma(0, 7, cfg.m1, cfg.m2)
    a("s_branch L_qdone\nL_qtwo:\ns_waitcnt vmcnt(4)")
    qsync(4)
    for i in range(E, 7): a(wq(i))
    qmma(0, E, -1, -1)
    addrs()
    publish(7 - E)
    qsync(8)
    stamp(a, 4)
    qmma(E, 7, 0, 4 * (7 - E) - 1)
    a("L_qdone:")
    stamp(a, 5)
    a(f"s_bitcmp1_b32 {S_H}, 0")
    for hf in range(2):
        for q in range(8*hf, 8*hf+8, 2): pk2(a, "mul", ACC+q, ACC+q, 248, scalar=cfg.nopk & 1)
        for q in range(4*hf, 4*hf+4): a(f"v_cvt_pk_bf16_f32 v{QP+q}, v{ACC+2*q}, v{ACC+2*q+1}")
        if hf == 0: a(f"s_cselect_b32 exec_lo, -1, 0\ns_mov_b32 exec_hi, 0\nv_mov_b32 v{QP}, 0\nv_mov_b32 v{QP+1}, 0\ns_mov_b64 exec, -1")
        else: a(f"s_cselect_b32 exec_hi, 0, -1\ns_mov_b32 exec_lo, 0\nv_mov_b32 v{QP+6}, 0\nv_mov_b32 v{QP+7}, 0\ns_mov_b64 exec, -1")
        a(f"ds_write_b128 v9, {V(QP+4*hf,4)} offset:{1024*hf}")
    a(f"""s_mov_b64 exec, 1
ds_add_u32 v2, v3
s_mov_b64 exec, -1
s_cmp_eq_u32 {S_LD}, 1
s_cbranch_scc1 L_kvloaded
s_waitcnt vmcnt(0)
{poll_check(PV, 4)}
s_cbranch_scc0 L_kvready""")
    poll(a, f"v{VF}", PG[0], PV, 4, 1, sleep=2)
    a("L_kvready:")
    for t in range(2):
        for s_ in kv_loads(t): a(s_)
    a("L_kvloaded:\ns_mov_b64 exec, 1\nds_add_u32 v2, v3 offset:12\ns_mov_b64 exec, -1")
    stamp(a, 6)
    if cfg.fine == 6:
        a(f"s_lshl_b32 {T0}, {S_LD}, 10\ns_add_u32 s{STAMP0+1}, s{STAMP0}, {T0}\ns_sub_u32 {T0}, {cfg.poll_limit}, {S_TO}\ns_cmp_gt_u32 {T0}, 100\ns_cselect_b32 {T0}, -1, {T0}\ns_add_u32 {T0}, {T0}, 1\ns_lshl_b32 {T0}, {T0}, 10\ns_add_u32 s{STAMP0+2}, s{STAMP0}, {T0}")
    lwait(a, "v2", 5, 12, 15)
    a(f"s_mov_b32 {S_BAR}, 12")
    for i in range(4):
        a(f"ds_read_b128 {V(Q+8*i,4)}, v{QA[i]}\nds_read_b128 {V(Q+8*i+4,4)}, v{QA[i]} offset:1024")
    stamp(a, 7)
    a("s_waitcnt vmcnt(6) lgkmcnt(6)\ns_setprio 0")
    if cfg.padmid: padto(a, cfg.padmid)
    stamp(a, 8)
    a(mfma(SA, KVB, Q)); a(mfma(SA, KVB + 4, Q + 4, SA))
    a("s_waitcnt vmcnt(4) lgkmcnt(0)\ns_nop 9\n.p2align 3")
    sched = {}
    issued = 2
    for t in range(16):
        for i in (1, 2):
            if (i == 1 or t % cfg.ramp == 0) and issued <= min(15, t + NB - 1):
                sched[(t, i)] = issued; issued += 1
    first = {g: min(k for k, v in sched.items() if v == 4*g) for g in (1, 2, 3)}
    pollat = {(k[0] - 1, 0): g for g, k in first.items()}
    vq = [("t", 1)] * 4
    def after(tag): return len(vq) - 1 - max(q for q, e in enumerate(vq) if e == tag)
    assert NB >= 5
    units = [(t, i) for t in range(12) for i in range(4)] + [(t, i) for i in range(4) for t in range(12, 16)]
    firstuse = {}
    for n, (t, i) in enumerate(units): firstuse.setdefault(t, n)
    waitat = {n - 2: t for t, n in firstuse.items() if t > 0}
    kb = lambda tt: KVB + 16 * (tt % NB)
    redw = lambda i, q: f"ds_write_b128 v{10+i}, {V(O+16*i+4*q,4)} offset:{q*1024}"
    for n, (t, i) in enumerate(units):
        if n % 8 == 0 and n: stamp(a, n // 8, 3)
        if n == 60: stamp(a, 1, 7)
        if n == 62: stamp(a, 2, 7)
        cur = SA + 16 * (n % 2); nxt = SA + 16 * ((n + 1) % 2)
        ms = [None] * 4
        if n < 63:
            tn, inx = units[n + 1]
            ms[0] = mfma(nxt, kb(tn), Q + 8*inx); ms[1] = mfma(nxt, kb(tn) + 4, Q + 8*inx + 4, nxt)
        if n > 0:
            tp, ip = units[n - 1]
            ms[2] = mfma(O + 16*ip, kb(tp) + 12, P1, O + 16*ip)
        ms[3] = mfma(O + 16*i, kb(t) + 8, P0, None if t == 0 else O + 16*i)
        side = [None] * 4
        key = (n // 4, n % 4)
        if key in sched:
            assert n < 48
            tl = sched[key]
            if tl % 4 == 0:
                g = tl // 4
                a(f"s_waitcnt vmcnt({after(('p', g))})\nv_cmp_ne_u64 vcc, {S_NONCE}, v[14:15]\ns_cbranch_vccnz L_gate{g}\nL_gated{g}:\ns_nop 0")
            side = kv_loads(tl); vq += [("t", tl)] * 4
        if key in pollat:
            g = pollat[key]
            side[0] = f"buffer_load_dwordx2 v[14:15], v{VF}, {sWS}, {PG[g]} offen sc1"; vq.append(("p", g))
        sig = "\ns_mov_b64 exec, 1\nds_add_u32 v2, v3\ns_mov_b64 exec, -1"
        rdr = lambda q: f"ds_read_b128 {V(O+4*q,4)}, v13 offset:{q*1024}"
        if 53 <= n <= 56: side[1] = redw(0, n - 53)
        if n in (57, 58): side[1] = redw(1, 2*(n - 57)); side[3] = redw(1, 2*(n - 57) + 1) + (sig if n == 58 else "")
        if n == 60: side[1] = "ds_read_b32 v5, v2"
        if n == 61:
            a(f"s_waitcnt lgkmcnt(0)\nv_readfirstlane_b32 {T0}, v5\ns_cmp_ge_u32 {T0}, 16\ns_cbranch_scc0 L_redw\nL_redd:")
        if n in (61, 62):
            k_ = n - 61
            side = [redw(2, 2*k_), rdr(4*k_) + "\n" + rdr(4*k_+1), redw(2, 2*k_+1) + (sig if k_ else ""), rdr(4*k_+2) + "\n" + rdr(4*k_+3)]
        if n == 63: side[2] = "ds_read2_b32 v[4:5], v2 offset0:34 offset1:0"
        if n == cfg.bhi: side[0] = "s_setprio 3\ns_nop 0" + ("\n" + side[0] if side[0] else "")
        for p in range(4):
            if ms[p]: a(ms[p])
            if side[p]: a(side[p])
            for e in range(4):
                if n in waitat and p == 3 and e == 3:
                    a(f"s_waitcnt vmcnt({after(('t', waitat[n]))})\nv_exp_f32_e64 v{cur+4*p+e}, v{cur+4*p+e}")
                else:
                    a(f"v_exp_f32 v{cur+4*p+e}, v{cur+4*p+e}")
            pk = (P0, P0 + 2, P1, P1 + 2)[p]
            a(f"v_cvt_pk_bf16_f32 v{pk}, v{cur+4*p}, v{cur+4*p+1}\nv_cvt_pk_bf16_f32 v{pk+1}, v{cur+4*p+2}, v{cur+4*p+3}")
    stamp(a, 3, 7)
    a(f"s_waitcnt lgkmcnt(0)\nv_readfirstlane_b32 {T0}, v5\nv_readfirstlane_b32 {T1}, v4")
    a(mfma(O + 48, kb(15) + 12, P1, O + 48))
    a(f"s_add_u32 {T1}, {T1}, {12 if cfg.ohint and not cfg.noA else 20}\ns_min_u32 {T0}, {T0}, {T1}\ns_cmp_ge_u32 {T0}, 20\ns_cbranch_scc0 L_redw2\nL_redd2:")
    stamp(a, 4, 7)
    for q in range(8, 12): a(f"ds_read_b128 {V(O+4*q,4)}, v13 offset:{q*1024}")
    a("s_mov_b64 exec, 1\nds_add_u32 v2, v3")
    if cfg.ohint: a(f"s_mov_b64 exec, {S_M0}\nbuffer_store_dwordx2 v[244:245], v246, {sWS}, {S_FO} offen sc1")
    a("s_mov_b64 exec, -1")
    stamp(a, 9)
    OO = O + 48
    sc_ = cfg.nopk & 2
    for q in range(0, 16, 2): pk2(a, "add", O+q, O+q, O+16+q, scalar=sc_)
    for q in range(0, 16, 2): pk2(a, "add", OO+q, OO+q, O+q, scalar=sc_)
    a("s_waitcnt lgkmcnt(1)")
    for q in (12, 0, 2, 4, 6, 8, 10, 14): pk2(a, "add", OO+q, OO+q, O+32+q, scalar=sc_)
    a(f"""v_mov_b32 v10, v{OO+12}
v_mov_b32 v11, v{OO+12}
v_mul_f32 v12, v{OO}, v{OO+1}
v_mul_f32 v13, v{OO+2}, v{OO+3}
v_permlane32_swap_b32 v10, v11
v_fma_f32 v12, v{OO+4}, v{OO+5}, v12
v_fma_f32 v13, v{OO+6}, v{OO+7}, v13
v_rcp_f32 v10, v11
v_fma_f32 v12, v{OO+8}, v{OO+9}, v12
v_fma_f32 v13, v{OO+10}, v{OO+11}, v13
v_cmp_le_f32 s[70:71], {S_LO}, v11
v_fma_f32 v12, v{OO+12}, v{OO+13}, v12
v_fma_f32 v13, v{OO+14}, v{OO+15}, v13
v_cmp_ge_f32 s[72:73], {S_HI}, v11
v_add_f32 v12, v12, v13
v_cmp_class_f32 vcc, v12, {S_CL}
s_and_b64 s[70:71], s[70:71], s[72:73]
s_and_b64 vcc, vcc, s[70:71]
s_cmp_eq_u64 vcc, exec""")
    if cfg.force_fb: a("s_cmp_eq_u32 0, 1")
    a(f"s_cbranch_scc0 L_fallback\nL_fbdone:\nv_mov_b32 v11, v10")
    for hf in range(2):
        for q in range(8*hf, 8*hf+8, 2): pk2(a, "mul", OO+q, OO+q, 10, scalar=sc_)
        for q in range(4*hf, 4*hf+4): a(f"v_cvt_pk_bf16_f32 v{O+q}, v{OO+2*q}, v{OO+2*q+1}")
        if hf: a(f"s_mov_b32 exec_lo, 0\nv_mov_b32 v{O+6}, 0\ns_mov_b32 exec_lo, -1")
        if cfg.ohint: a(f"v_min_u32 v{O+4*hf}, -2, v{O+4*hf}")
        a(f"buffer_store_dwordx4 {V(O+4*hf,4)}, v7, {sWS}, {S_OB} offen offset:{1024*hf} sc1")
    stamp(a, 10)
    S_BP, S_CNT, S_DT = "s70", "s71", "s72"
    GS = 144; GC = 176; ZR = 196; G = 16; OL = 196; AR = 128
    S_O0, S_O1, S_FH, S_RT, S_CLM = "s73", "s74", "s75", "s76", "s77"
    a(f"""s_lshl_b32 {S_BP}, {S_XCD}, 3
s_lshr_b32 {T0}, {S_IDX}, 2
s_add_u32 {S_BP}, {S_BP}, {T0}
s_and_b32 {T1}, {S_IDX}, 3
s_cmp_ge_u32 {T1}, 2
s_cselect_b32 {S_CNT}, 3, 4
s_lshl_b32 {S_DT}, {T1}, 2
s_cmp_eq_u32 {T1}, 3
s_cselect_b32 {S_DT}, 11, {S_DT}
s_add_u32 {S_DT}, {S_DT}, {S_W4}
s_cmp_ge_u32 {S_W4}, {S_CNT}
s_cbranch_scc1 L_bend
s_setprio {cfg.fprio}
v_bfe_u32 v5, v1, 2, 1
v_lshlrev_b32 v5, 4, v5
v_bfe_u32 v6, v1, 3, 2
v_lshl_add_u32 v5, v6, 2, v5
v_and_b32 v6, 3, v1
v_add_u32 v5, v5, v6
s_lshl_b32 {T0}, {S_DT}, 5
v_add_u32 v5, {T0}, v5                    ; d
v_lshlrev_b32 v9, 31, v5
v_xor_b32 v9, 0.5, v9                     ; 0.5*(-1)^d
v_cvt_f32_u32 v5, v5
v_mul_f32 v5, {lit(1/448)}, v5
v_lshrrev_b32 v4, 5, v1
v_cvt_f32_u32 v6, v4
v_mul_f32 v6, v5, v6
v_mul_f32 v6, 4.0, v6
v_mul_f32 v{GC}, {lit(16.0)}, v5
v_cos_f32 v{GC}, v{GC}""")
    for j in range(16): a(f"v_fmamk_f32 v{GS+j}, v5, {lit(float(16*(j//8) + 8*((j%8)//4) + j%4))}, v6")
    a(f"v_add_f32 v{GC}, v{GC}, v{GC}")
    for j in range(16): a(f"v_sin_f32_e64 v{GS+16+j}, -v{GS+j}\nv_cos_f32 v{GS+j}, v{GS+j}")
    a(f"v_mov_b32 v{GC+1}, v{GC}")
    def ggen(q0, q1):
        a(".p2align 3")
        for q in range(q0, q1):
            rho = q % 2; st = q // 2
            cur = GS + 16*rho + 8*(st % 2); oth = GS + 16*rho + 8*((st + 1) % 2); gp = G + 4*q
            if st >= 2:
                for z in range(0, 8, 2):
                    pk2(a, "fma", cur+z, GC, oth+z, cur+z, neg="2", scalar=cfg.nopk & 8)
            for z in range(4): a(f"v_cvt_pk_bf16_f32 v{gp+z}, v{cur+2*z}, v{cur+2*z+1}")
            if st == 0:
                a(f"s_mov_b32 exec_hi, 0\nv_cvt_pk_bf16_f32 v{gp}, {'v9' if rho else '0.5'}, v{cur+1}\ns_mov_b32 exec_hi, -1")
    ggen(0, 28)
    stamp(a, 11)
    srd(a, sOUT, 16, 2048 * 1792)
    a(f"""v_add_u32 v8, {L_ZB}, v7
s_mul_i32 {T4}, {S_BP}, 1792
s_lshl_b32 {T1}, {S_DT}, 6
s_add_u32 {T4}, {T4}, {T1}""")
    if cfg.cost & 2:
        a(f"""s_lshl_b32 {T1}, {S_W4}, 11
s_add_u32 {T1}, {T1}, {L_Q}
v_and_b32 v10, 31, v1
v_lshlrev_b32 v10, 6, v10
v_lshl_add_u32 v10, v4, 5, v10
v_add_u32 v10, {T1}, v10
v_add_u32 v11, {T1}, v7
v_lshrrev_b32 v6, 2, v1
v_mul_u32_u24 v6, {64*1792}, v6
v_and_b32 v12, 3, v1
v_lshl_add_u32 v6, v12, 4, v6
s_add_u32 {T3}, {T4}, {16*64*1792}""")
    else:
        a(f"v_and_b32 v6, 31, v1\nv_mul_u32_u24 v6, {64*1792}, v6\nv_lshl_add_u32 v6, v4, 5, v6")
    lwait(a, "v2", 5, 4, 17, off=132)
    stamp(a, 13)
    order = [4*(q//4) + 2*(q % 2) + ((q//2) % 2) for q in range(28)]
    for q in range(8): a(f"ds_read_b128 {V(ZR+4*q,4)}, v8 offset:{order[q]*1024}")
    for p in range(28):
        a(f"s_waitcnt lgkmcnt({min(7, 27-p)})")
        a(mfma(AR, G + 4*p, ZR + 4*(p % 8), None if p == 0 else AR))
        if p + 8 < 28: a(f"ds_read_b128 {V(ZR+4*(p%8),4)}, v8 offset:{order[p+8]*1024}")
    osc = ("", " sc1", " nt", " sc0 sc1", " sc1 nt")[cfg.outsc]
    if cfg.odefer and not cfg.noA: lwait(a, "v2", 5, 4, 36, sleep=2, off=20)
    for hf in range(2):
        for q in range(4*hf, 4*hf+4): a(f"v_cvt_pk_bf16_f32 v{GS+q}, v{AR+2*q}, v{AR+2*q+1}")
        if cfg.cost & 2: a(f"ds_write_b128 v10, {V(GS+4*hf,4)} offset:{16*hf}")
        else: a(f"buffer_store_dwordx4 {V(GS+4*hf,4)}, v6, {sOUT}, {T4} offen offset:{16*hf}{osc}")
    if cfg.cost & 2:
        a(f"""ds_read_b128 {V(GS+8,4)}, v11
ds_read_b128 {V(GS+12,4)}, v11 offset:1024
s_waitcnt lgkmcnt(1)
buffer_store_dwordx4 {V(GS+8,4)}, v6, {sOUT}, {T4} offen{osc}
s_waitcnt lgkmcnt(0)
buffer_store_dwordx4 {V(GS+12,4)}, v6, {sOUT}, {T3} offen{osc}""")
    a("L_bend:")
    stamp(a, 12)
    dump_stamps(a, 240)
    a("s_endpgm")
    a("L_redw:")
    lwait(a, "v2", 5, 16, 2)
    a("s_branch L_redd\nL_redw2:")
    lwait(a, "v2", 5, 20, 2)
    if cfg.ohint and not cfg.noA: lwait(a, "v2", 5, 8, 39, sleep=1, off=136)
    a("s_branch L_redd2")
    for g in (1, 2, 3):
        a(f"L_gate{g}:")
        poll(a, f"v{VF}", PG[g], 14, 4, 25, sleep=2)
        a(f"s_branch L_gated{g}")
    a("L_fallback:")
    QO = Q + 24; KB = KVB; M = 15; S_SO = "s70"
    a(f"v_mov_b32 v{M}, 0xff800000\ns_mov_b32 {S_SO}, {KV}\nL_fb1:")
    for s_ in kv_loads(0, S_SO)[:2]: a(s_)
    a(f"s_add_u32 {S_SO}, {S_SO}, {TS}\ns_waitcnt vmcnt(0)")
    a(mfma(SA, KB, QO)); a(mfma(SA, KB + 4, QO + 4, SA))
    for q in range(0, 16, 2): a(f"v_max3_f32 v{M}, v{M}, v{SA+q}, v{SA+q+1}")
    a(f"""s_cmp_lt_u32 {S_SO}, {KV + 64*TS}
s_cbranch_scc1 L_fb1
v_mov_b32 v14, v{M}
v_permlane32_swap_b32 v14, v{M}
v_max_f32 v{M}, v14, v{M}
s_mov_b32 {S_SO}, {KV}""")
    for q in range(16): a(f"v_mov_b32 v{OO+q}, 0")
    a("L_fb2:")
    for s_ in kv_loads(0, S_SO): a(s_)
    a(f"s_add_u32 {S_SO}, {S_SO}, {TS}\ns_waitcnt vmcnt(0)")
    a(mfma(SA, KB, QO)); a(mfma(SA, KB + 4, QO + 4, SA))
    for q in range(16): a(f"v_sub_f32 v{SA+q}, v{SA+q}, v{M}")
    for q in range(16): a(f"v_exp_f32 v{SA+q}, v{SA+q}")
    for q in range(8): a(f"v_cvt_pk_bf16_f32 v{P0+q}, v{SA+2*q}, v{SA+2*q+1}")
    a(mfma(OO, KB + 8, P0, OO)); a(mfma(OO, KB + 12, P1, OO))
    a(f"""s_cmp_lt_u32 {S_SO}, {KV + 64*TS}
s_cbranch_scc1 L_fb2
v_mov_b32 v10, v{OO+12}
v_mov_b32 v11, v{OO+12}
v_permlane32_swap_b32 v10, v11
v_rcp_f32 v10, v11
s_branch L_fbdone""")

def role_A(a):
    FB = 16; GS0 = 48; M = 72; F = 88; ACC = 200; TMP = 216
    S_BP = "s78"
    S_CG, S_CNT, S_CB, S_DT, S_TASK, S_K1 = "s79", "s80", "s81", "s82", "s83", "s73"
    S_B, S_KT16 = S_BP, S_DT
    (PN, _, _, P_TST, P_W, P_F1, P_TLD, P_TBW, P_TBR, P_TTW, P_TTR, P_UST, P_F2, P_WOD, P_WOR, P_WOR2,
     P_ZW0, P_ZW1, P_PF, P_BC, P_PS, _, P_LS, P_DUM) = range(232, 256)
    sc = 1.0 / (2048 * 448)
    def albar(code): lbar(a, "v14", "v15", P_LS, code, sleep=1)
    def burst(items, th):
        a("s_setprio 0")
        for q, it in enumerate(items):
            if q >= th: a(f"s_waitcnt vmcnt({th-1})")
            a(it)
        a(f"s_setprio {cfg.aprio}")
    SB = "s[74:75]"
    def stage_arrive(k):
        L = a.lab("arr")
        a(f"""s_waitcnt vmcnt(0)
s_mov_b64 exec, 1
ds_add_rtn_u32 v{P_LS}, v14, v15 offset:8
s_mov_b64 exec, -1
s_waitcnt lgkmcnt(0)
v_readfirstlane_b32 {T0}, v{P_LS}
s_cmp_eq_u32 {T0}, {4*k+3}
s_cbranch_scc0 {L}
s_mov_b32 {T0}, 1
s_lshl_b32 {T1}, {S_XCD}, 7
s_add_u32 {T1}, {T1}, {k*1024}
s_atomic_add {T0}, {SB}, {T1} glc
s_waitcnt lgkmcnt(0)
s_sub_u32 {T0}, {T0}, s62
s_cmp_eq_u32 {T0}, 31
s_cbranch_scc0 {L}
s_mov_b32 {T1}, {FA1 + 2048 + k*8192}
s_mov_b64 exec, {-1 if cfg.allpoll else 0xffff}
buffer_atomic_add v15, v{P_PF}, {sWS}, {T1} offen sc1
s_mov_b64 exec, -1
{L}:""")
    def stage_wait(k, pre):
        if cfg.ko & 4:
            a("s_waitcnt lgkmcnt(0)"); return
        L, L2, L3 = a.lab("sw"), a.lab("sw"), a.lab("sw")
        if not cfg.allpoll: a(f"s_cmp_eq_u32 {S_W4}, 0\ns_cbranch_scc0 {L2}")
        a(f"""s_and_b32 {T1}, s2, 15
s_lshl_b32 {T2}, {S_W4}, 4
s_add_u32 {T1}, {T1}, {T2}
s_lshl_b32 {T1}, {T1}, 7
s_add_u32 {T1}, {T1}, {2048 + k*8192}
s_add_u32 {T2}, s62, 8
s_mov_b32 {S_TO}, {cfg.poll_limit}
s_waitcnt lgkmcnt(0)
s_sleep {pre}
{L}:
s_mov_b32 {T0}, 0
s_atomic_or {T0}, {SB}, {T1} glc
s_waitcnt lgkmcnt(0)
s_cmp_eq_u32 {T0}, {T2}
s_cbranch_scc1 {L}d
s_sleep {cfg.bsleep}
s_sub_u32 {S_TO}, {S_TO}, 1
s_cbranch_scc0 {L}
s_mov_b32 {S_TO}, 32
s_branch L_fail
{L}d:""")
        if cfg.allpoll: return
        a(f"s_mov_b64 exec, 1\nds_add_u32 v14, v15 offset:12\ns_mov_b64 exec, -1\ns_branch {L3}\n{L2}:")
        lwait(a, "v14", P_LS, k + 1, 33, sleep=cfg.lsl, off=12)
        a(f"{L3}:")
    def pace():
        if cfg.pace: a(f"s_sleep {cfg.pace}")
    a(f"""L_roleA:
v_mov_b32 v3, 0
v_mov_b32 v2, {L_SYNC}
ds_write2_b32 v2, v3, v3 offset0:0 offset1:32
ds_write2_b32 v2, v3, v3 offset0:1 offset1:2
ds_write2_b32 v2, v3, v3 offset0:3 offset1:33
ds_write2_b32 v2, v3, v3 offset0:4 offset1:34
ds_write2_b32 v2, v3, v3 offset0:5 offset1:35
ds_write2_b32 v2, v3, v3 offset0:8 offset1:9
ds_write2_b32 v2, v3, v3 offset0:10 offset1:11
s_setprio {cfg.aprio}
s_mov_b32 {S_BAR}, 0
s_lshl_b32 {S_BP}, {S_XCD}, 3
s_lshr_b32 {T0}, {S_IDX}, 2
s_add_u32 {S_BP}, {S_BP}, {T0}
s_and_b32 {S_CG}, {S_IDX}, 3
s_cmp_ge_u32 {S_CG}, 2
s_cselect_b32 {S_CNT}, 3, 4
s_lshl_b32 {S_CB}, {S_CG}, 2
s_cmp_eq_u32 {S_CG}, 3
s_cselect_b32 {S_CB}, 11, {S_CB}
s_add_u32 {S_DT}, {S_CB}, {S_W4}
v_and_b32 v2, 31, v1                      ; v2 = lane%32
v_lshrrev_b32 v3, 5, v1                   ; v3 = half
v_cvt_f32_u32 v4, v3
s_waitcnt lgkmcnt(0)
{st0()}""")
    if cfg.touch:
        tl = [["s[10:11], 0", "s[4:5], 0", "s[6:7], 0"], ["s[20:21], s76", "s[8:9], 0", "s[14:15], 0"],
              ["s[20:21], s77", "s[16:17], 0", "s[16:17], s76"], ["s[20:21], s74", "s[20:21], s75"]]
        a(f"s_cmp_ge_u32 {S_IDX}, {cfg.touch}\ns_cbranch_scc1 L_tch\ns_mov_b32 s76, 0x200000\ns_mov_b32 s77, 0x600000\ns_mov_b32 s74, 0x400000\ns_mov_b32 s75, 0x800000")
        for w in range(4):
            a(f"s_cmp_lg_u32 {S_W4}, {w}\ns_cbranch_scc1 L_tch{w}")
            for t_ in tl[w]: a(f"s_load_dword s72, {t_}")
            a(f"L_tch{w}:")
        a("L_tch:")
    def angles(n, vstep, vbase, offs, dst=TMP):
        for j in range(n): a(f"v_fmamk_f32 v{dst+j}, {vstep}, {lit(float(offs[j]))}, {vbase}")
    def gen_F():
        A0 = TMP; A1 = TMP + 8; C2 = TMP + 16
        a(f"""v_and_b32 v5, 15, v1
s_lshl_b32 {T0}, {S_KT16}, 4
v_add_u32 v5, {T0}, v5                    ; k
v_bfe_u32 v6, v1, 4, 1
v_lshl_add_u32 v7, v5, 1, v6
v_cmp_eq_u32 vcc, 1, v7
v_mov_b32 v7, 224
v_cndmask_b32 v5, v5, v7, vcc
v_cndmask_b32 v6, v6, 0, vcc
v_cvt_f32_u32 v5, v5
v_cvt_f32_u32 v6, v6
v_mul_f32 v5, {lit(1/448)}, v5            ; kf
v_mul_f32 v6, {lit(0.25)}, v6
v_mul_f32 v7, v5, v4
v_fmamk_f32 v6, v7, {lit(8.0)}, v6
v_mul_f32 v{C2}, {lit(16.0)}, v5
v_cos_f32 v{C2}, v{C2}""")
        angles(16, "v5", "v6", [j % 8 + 16 * (j // 8) for j in range(16)])
        a(f"v_add_f32 v{C2}, v{C2}, v{C2}")
        for j in range(16): a(f"v_cos_f32 v{A0+j}, v{A0+j}")
        a(f"v_mov_b32 v{C2+1}, v{C2}\ns_barrier\n.p2align 3")
        for m in range(28):
            cur = A0 if m % 2 == 0 else A1; oth = A1 if m % 2 == 0 else A0
            if m >= 2:
                for q in range(0, 8, 2):
                    a(f"v_pk_fma_f32 {V(cur+q,2)}, {V(C2,2)}, {V(oth+q,2)}, {V(cur+q,2)} neg_lo:[0,0,1] neg_hi:[0,0,1]")
            for q in range(4): a(f"v_cvt_pk_bf16_f32 v{F+4*m+q}, v{cur+2*q}, v{cur+2*q+1}")
    def gen_M():
        a(f"""v_cvt_f32_u32 v5, v2
s_and_b32 {T0}, {S_W4}, 1
s_lshl_b32 {T0}, {T0}, 10
s_add_u32 {T0}, {T0}, {S_B}
v_lshl_add_u32 v6, v3, 8, {T0}
v_cvt_f32_u32 v6, v6
v_mul_f32 v6, v6, v5
s_cmp_ge_u32 {S_W4}, 2
s_cselect_b32 {T0}, {lit(0.25)}, 0
v_mov_b32 v7, {T0}
v_fmamk_f32 v6, v6, {lit(1/2048)}, v7
v_mul_f32 v5, {lit(1/32)}, v5""")
        angles(8, "v5", "v6", [8*(j//4) + j%4 for j in range(8)])
        for j in range(8): a(f"v_cos_f32 v{TMP+j}, v{TMP+j}")
        for q in range(4): a(f"v_cvt_pk_bf16_f32 v{ACC+8+q}, v{TMP+2*q}, v{TMP+2*q+1}")
    def gen_MS():
        a(f"""v_lshlrev_b32 v5, 6, v2
v_add_u32 v5, {S_BP}, v5
v_cvt_f32_u32 v5, v5
v_mul_f32 v5, {lit(1/2048)}, v5
s_lshl_b32 {T0}, {S_W4}, 3
v_lshl_add_u32 v6, v3, 2, {T0}
v_cvt_f32_u32 v6, v6
v_mul_f32 v6, v5, v6""")
        angles(4, "v5", "v6", range(4), TMP + 8)
        for j in range(4): a(f"v_cos_f32 v{TMP+2*j}, v{TMP+8+j}\nv_sin_f32 v{TMP+2*j+1}, v{TMP+8+j}")
        a(f"v_mov_b32 v6, {lit(2*sc)}\nv_mov_b32 v7, v6")
        for j in range(4): pk2(a, "mul", TMP+2*j, TMP+2*j, 6, scalar=cfg.nopk & 16)
        for j in range(4):
            a(f"v_cvt_pk_bf16_f32 v{48+j}, v{TMP+2*j}, v{TMP+2*j+1}\nv_cvt_pk_bf16_f32 v{52+j}, v{TMP+2*j+1}, -v{TMP+2*j}")
    def gen_FB():
        a(f"""v_and_b32 v5, 15, v1
s_lshl_b32 {T0}, {S_W4}, 4
v_add_u32 v5, {T0}, v5
v_cvt_f32_u32 v5, v5
v_mul_f32 v5, {lit(1/64)}, v5
v_bfe_u32 v6, v1, 4, 1
v_cvt_f32_u32 v6, v6
v_mul_f32 v6, {lit(0.25)}, v6
v_mul_f32 v7, v5, v4
v_fmamk_f32 v6, v7, {lit(4.0)}, v6""")
        C2 = TMP + 16
        a(f"v_mul_f32 v{C2}, {lit(8.0)}, v5\nv_cos_f32 v{C2}, v{C2}")
        angles(8, "v5", "v6", [8*(j//4) + j%4 for j in range(8)], TMP + 20)
        a(f"v_add_f32 v{C2}, v{C2}, v{C2}")
        for j in range(8): a(f"v_cos_f32 v{TMP+2*j}, v{TMP+20+j}\nv_sin_f32 v{TMP+2*j+1}, v{TMP+20+j}")
        a(f"v_mov_b32 v{C2+1}, v{C2}")
        for m in range(8):
            cur = TMP + 8*(m % 2); oth = TMP + 8*((m + 1) % 2)
            if m >= 2:
                for q in range(0, 8, 2):
                    pk2(a, "fma", cur+q, C2, oth+q, cur+q, neg="2", scalar=cfg.nopk & 16)
            for q in range(4): a(f"v_cvt_pk_bf16_f32 v{FB+4*m+q}, v{cur+2*q}, v{cur+2*q+1}")
    def gen_addr():
        a(f"""v_mov_b32 v{PN+2}, 0
v_lshlrev_b32 v7, 4, v1                   ; v7 = lane*16
v_and_b32 v6, 3, v1
v_lshrrev_b32 v5, 2, v1
v_lshlrev_b32 v5, 16, v5
v_lshl_add_u32 v{P_TST}, v6, 4, v5
s_lshl_b32 {T1}, {S_W4}, 11
s_add_u32 {T0}, {T1}, {L_TT}
v_add_u32 v{P_TTR}, {T0}, v7
v_lshlrev_b32 v5, 6, v2
v_lshl_add_u32 v5, v3, 4, v5
v_add_u32 v{P_TTW}, {T0}, v5
s_lshl_b32 {S_TASK}, {S_XCD}, 5
s_add_u32 {S_TASK}, {S_TASK}, {S_IDX}
s_lshr_b32 {T0}, {S_TASK}, 3
s_lshl_b32 {T2}, {S_W4}, 9
s_add_u32 {T0}, {T0}, {T2}
s_mul_i32 {T0}, {T0}, 225
s_lshl_b32 {T2}, {S_HH}, 5
s_add_u32 {T0}, {T0}, {T2}
v_mul_u32_u24 v5, {128*225}, v3
v_add3_u32 v5, v5, v2, {T0}
v_lshlrev_b32 v{P_W}, 1, v5
v_bfe_u32 v12, v1, 4, 1
v_lshlrev_b32 v5, 2, v2
v_lshl_add_u32 v{P_TLD}, v3, 9, v5
v_lshl_add_u32 v{P_UST}, v3, 17, v5
v_lshl_add_u32 v{P_F2}, v3, 18, v5
v_add_u32 v{P_TBR}, {L_TB}, v7
v_add_u32 v{P_TBW}, {T1}, v{P_TBR}
s_add_u32 {S_K1}, {S_W4}, 3
s_cmp_eq_u32 {S_W4}, 0
s_cselect_b32 {S_K1}, 7, {S_K1}
s_lshl_b32 {T0}, {S_W4}, 12
v_add_u32 v{P_ZW0}, {T0}, v{P_TBR}
s_lshl_b32 {T0}, {S_K1}, 12
v_add_u32 v{P_ZW1}, {T0}, v{P_TBR}
v_bfe_u32 v13, v1, 2, 2
v_lshrrev_b32 v5, 4, v1
v_xor_b32 v{P_WOD}, v13, v5
s_sub_u32 {T0}, {S_CNT}, 1
v_min_u32 v{P_WOD}, {T0}, v{P_WOD}
v_add_u32 v{P_WOD}, {S_CB}, v{P_WOD}
v_lshlrev_b32 v{P_WOD}, 6, v{P_WOD}
v_mul_u32_u24 v5, 896, v5
v_add_u32 v5, v5, v{P_WOD}
v_lshl_add_u32 v5, v6, 4, v5
s_mul_i32 {T0}, {S_W4}, {4*896}
v_add_u32 v{P_WOD}, {T0}, v5
v_xor_b32 v5, {S_W4}, v13
v_lshlrev_b32 v5, 6, v5
v_lshl_add_u32 v5, v13, 8, v5
v_and_b32 v6, 1, v1
v_lshl_add_u32 v5, v6, 5, v5
v_lshl_add_u32 v5, v12, 4, v5
v_bfe_u32 v6, v1, 1, 1
v_lshl_add_u32 v5, v6, 3, v5
v_add_u32 v{P_WOR2}, {L_X}, v5
v_lshl_add_u32 v{P_WOR}, v3, 10, v{P_WOR2}""")
    pieces = [gen_F, gen_FB, gen_M, gen_MS, gen_addr]
    assert cfg.pre >= 1
    def wq_warm():
        a(f"""s_cmp_eq_u32 {S_LC}, 7
s_cbranch_scc0 L_pf1
v_mul_u32_u24 v5, 2688, v1
s_mul_i32 {T0}, {T5}, 3
s_add_u32 {T0}, {T0}, {S_RR}
s_lshl_b32 {T0}, {T0}, 7
s_mul_i32 {T1}, {S_W4}, {128*2688}
s_add_u32 {T0}, {T0}, {T1}
s_add_u32 {T1}, {T0}, {64*2688}
buffer_load_dword v{P_DUM}, v5, {sWQKV}, {T0} offen
buffer_load_dword v{P_DUM}, v5, {sWQKV}, {T1} offen
L_pf1:""")
    def xa_warm():
        a(f"""s_cmp_eq_u32 {S_LC}, 7
s_cbranch_scc0 L_pf6
v_lshlrev_b32 v5, 7, v1
s_lshl_b32 {T0}, {S_RR}, 2
s_add_u32 {T0}, {T0}, {S_W4}
s_mul_i32 {T0}, {T0}, {2*64*896}
s_mul_i32 {T1}, {S_XCD}, {8*896}
s_add_u32 {T0}, {T0}, {T1}
s_add_u32 {T1}, {T0}, {64*896}
s_bfm_b64 exec, 56, 0
buffer_load_dword v{P_DUM}, v5, {sX}, {T0} offen
buffer_load_dword v{P_DUM}, v5, {sX}, {T1} offen
s_mov_b64 exec, -1
L_pf6:""")
    def kv_touch():
        srd(a, sWS, 20, WS_SIZE)
        a(f"""s_lshl_b32 {T0}, s2, 2
s_add_u32 {T0}, {T0}, {S_W4}
s_mul_i32 {T0}, {T0}, {30*128}
s_add_u32 {T0}, {T0}, {KV}
v_lshlrev_b32 v5, {6 if cfg.kvt64 else 7}, v1
v_mov_b32 v6, 0
s_bfm_b64 exec, {60 if cfg.kvt64 else 30 - (cfg.kvsn if cfg.kvs else 0)}, {cfg.kvsn if cfg.kvs else 0}
buffer_atomic_or v6, v5, {sWS}, {T0} offen sc1
s_mov_b64 exec, -1""")
    if cfg.kvt == 9: kv_touch()
    def kvi_touch():
        srd(a, sWS, 20, WS_SIZE)
        a(f"""s_cmp_eq_u32 {S_LC}, 7
s_cbranch_scc0 L_pf8
s_lshl_b32 {T0}, {S_XCD}, 4
s_lshl_b32 {T1}, {S_RR}, 2
s_add_u32 {T0}, {T0}, {T1}
s_add_u32 {T0}, {T0}, {S_W4}
s_mul_i32 {T0}, {T0}, {240*128}
s_add_u32 {T0}, {T0}, {KV}
v_lshlrev_b32 v5, 9, v1
v_mov_b32 v6, 0
s_bfm_b64 exec, 60, 0""")
        for q in range(cfg.kvi): a(f"buffer_atomic_or v6, v5, {sWS}, {T0} offen offset:{128*q} sc1")
        a("s_mov_b64 exec, -1\nL_pf8:")
    if cfg.kvi and cfg.kvipos == 0: kvi_touch()
    def mall_warm():
        a(f"""s_cmp_eq_u32 {S_LC}, 7
s_cbranch_scc0 L_pf7
s_lshl_b32 {T0}, {S_XCD}, 4
s_lshl_b32 {T1}, {S_RR}, 2
s_add_u32 {T0}, {T0}, {T1}
s_add_u32 {T0}, {T0}, {S_W4}
v_lshlrev_b32 v5, 7, v1""")
        if cfg.mw & 1:
            a(f"""v_lshrrev_b32 v6, 3, v1
v_mul_u32_u24 v6, 2688, v6
v_and_b32 v7, 7, v1
v_min_u32 v7, 6, v7
v_lshl_add_u32 v6, v7, 7, v6
s_mul_i32 {T1}, {T0}, {4*2688}
s_mov_b64 exec, 0xffffffff
buffer_load_dword v{P_DUM}, v6, {sWQKV}, {T1} offen""")
        if cfg.mw & 2: a(f"s_mul_i32 {T1}, {T0}, {25*128}\ns_bfm_b64 exec, 25, 0\nbuffer_load_dword v{P_DUM}, v5, {sWO}, {T1} offen")
        if cfg.mw & 4: a(f"s_mul_i32 {T1}, {T0}, {57*128}\ns_bfm_b64 exec, 57, 0\nbuffer_load_dword v{P_DUM}, v5, {sWR}, {T1} offen")
        if cfg.mw & 8: a(f"s_mul_i32 {T1}, {T0}, {57*128}\ns_bfm_b64 exec, 57, 0\nbuffer_load_dword v{P_DUM}, v5, {sWI}, {T1} offen")
        if cfg.mw & 16: a(f"s_mul_i32 {T1}, {T0}, {112*128}\ns_bfm_b64 exec, 56, 0\nbuffer_load_dword v{P_DUM}, v5, {sX}, {T1} offen")
        a("s_mov_b64 exec, -1\nL_pf7:")
    if cfg.spf:
        a(f"""s_lshl_b32 {T0}, s2, 2
s_add_u32 {T0}, {T0}, {S_W4}
s_mul_i32 {T1}, {T0}, {14*128}
s_add_u32 s76, s4, {T1}
s_addc_u32 s77, s5, 0
s_mul_i32 {T1}, {T0}, 900
s_add_u32 s70, s6, {T1}
s_addc_u32 s71, s7, 0
s_add_u32 s74, s8, {T1}
s_addc_u32 s75, s9, 0""")
    if cfg.kvs:
        srd(a, sWS, 20, WS_SIZE)
        a(f"""s_lshl_b32 s72, s2, 2
s_add_u32 s72, s72, {S_W4}
s_mul_i32 s72, s72, {30*128}
s_add_u32 s72, s72, {KV}
v_lshlrev_b32 v12, 7, v1
v_mov_b32 v13, 0""")
    n0 = len(a.L)
    for q in range(cfg.pre):
        if q == 4: n1 = len(a.L)
        pieces.pop(0)()
        if q == 0:
            srd(a, sWQKV, 12, 448 * 2688); srd(a, sX, 4, 0 if cfg.ko & 16 else 2048 * 896)
            srd(a, sWR, 6, 0 if cfg.ko & 1 else 2048 * 450); srd(a, sWI, 8, 0 if cfg.ko & 1 else 2048 * 450); srd(a, sWO, 14, 0 if cfg.ko & 2 else 448 * 896)
        if cfg.mw and cfg.mwpos == q + 1: mall_warm()
        if cfg.kvt == q + 1: kv_touch()
        if cfg.kvi and cfg.kvipos == q + 1: kvi_touch()
        if cfg.xawarm == q + 1: xa_warm()
        if cfg.wqwarm == q + 1: wq_warm()
    if cfg.kvs:
        from asmlib import Ins
        per = cfg.kvsn // cfg.kvs
        lo = n0 + cfg.kvs0; hi = n1
        for q in reversed(range(cfg.kvs)):
            at = lo + (hi - lo) * q // cfg.kvs
            while a.L[at].kind not in ("valu",) or a.L[at-1].kind not in ("valu",): at += 1
            a.L[at:at] = [Ins(f"s_bfm_b64 exec, {per}, {q*per}"), Ins(f"buffer_atomic_or v13, v12, {sWS}, s72 offen sc1"), Ins("s_mov_b64 exec, -1")]
    if cfg.spf:
        from asmlib import Ins
        pf = [f"s_load_dword s72, s[76:77], {q*128}" for q in range(14)]
        if cfg.spf >= 2: pf += [f"s_load_dword s72, s[{b}:{b+1}], {q*128}" for q in range(7) for b in (70, 74)]
        lo = n0 + cfg.spf0; hi = len(a.L)
        for q in reversed(range(len(pf))): a.L.insert(lo + (hi - lo) * q // len(pf), Ins(pf[q]))
    stamp(a, 1)
    srd(a, sWS, 20, WS_SIZE)
    srd(a, sOUT, 16, 2048 * 1792)
    S_XA, S_WQL, S_WQG = "s70", "s71", "s72"
    XD = 70
    a(f"""v_lshrrev_b32 v6, 3, v1
v_and_b32 v5, 7, v1
v_lshrrev_b32 v8, 4, v1
v_xor_b32 v5, v5, v8
s_and_b32 {T0}, {S_W4}, 1
s_lshl_b32 {T0}, {T0}, 2
v_xor_b32 v5, {T0}, v5
v_mul_u32_u24 v6, {64*896}, v6
s_mul_i32 {T1}, {S_W4}, {8*64*896}
s_mul_i32 {T2}, {S_B}, 896
s_add_u32 {T1}, {T1}, {T2}
v_add_u32 v6, {T1}, v6
v_lshl_add_u32 v{XD}, v5, 4, v6
s_lshl_b32 {T0}, {S_W4}, 10
s_add_u32 {S_XA}, {T0}, {L_X}
s_mov_b32 {T2}, {L_X}""")
    x_read_addrs(a, 8, "v1", T2, TMP)
    a(f"""v_mov_b32 v14, {L_SYNC+128}
v_mov_b32 v15, 1
v_mov_b32 v{P_BC}, {L_SYNC}
s_lshl_b32 {T1}, {S_CG}, 1""")
    lwait(a, f"v{P_BC}", P_LS, 4, 34, sleep=1)
    a(f"""ds_read_b64 {V(PN,2)}, v{P_BC} offset:64
v_lshlrev_b32 v{P_PF}, 7, v1
s_add_u32 s74, s20, {FA1}
s_addc_u32 s75, s21, 0
s_waitcnt lgkmcnt(0)
v_readfirstlane_b32 s62, v{PN}
v_readfirstlane_b32 s63, v{PN+1}
{f"s_lshr_b32 {T0}, s62, 28; s_lshl_b32 {T0}, {T0}, 24; s_add_u32 s24, s20, {T0}; s_addc_u32 s25, s21, 0; s_add_u32 s74, s74, {T0}; s_addc_u32 s75, s75, 0".replace("; ", chr(10)) if cfg.diagrot else ""}
s_lshl_b32 {T0}, s2, 2
s_add_u32 {T0}, {T0}, {S_W4}
s_cmp_lg_u32 {T0}, 0
s_cbranch_scc1 L_noinit
s_mov_b32 {T0}, {FA1}
buffer_store_dwordx2 {V(PN,2)}, v{P_PF}, {sWS}, {T0} offen offset:2048 sc1
s_mov_b32 {T2}, {FA1 + 8192}
buffer_store_dwordx2 {V(PN,2)}, v{P_PF}, {sWS}, {T2} offen offset:2048 sc1
s_mov_b64 exec, 0xff00
buffer_store_dwordx2 {V(PN,2)}, v{P_PF}, {sWS}, {T0} offen sc1
s_waitcnt vmcnt(0)
s_mov_b64 exec, 0xff
buffer_store_dwordx2 {V(PN,2)}, v{P_PF}, {sWS}, {T0} offen sc1
s_mov_b64 exec, -1
L_noinit:""")
    def wpull():
        L1, L2 = a.lab("wp"), a.lab("wp")
        a(f"""s_lshl_b32 {T2}, {S_IDX}, 1
s_lshr_b32 {T3}, {S_W4}, 1
s_add_u32 {T2}, {T2}, {T3}
s_mul_i32 {T2}, {T2}, 14400
s_mul_i32 {T3}, {S_XCD}, 1800
s_add_u32 {T2}, {T2}, {T3}
s_mov_b64 exec, 0x7fff
s_bitcmp1_b32 {S_W4}, 0
s_cbranch_scc1 {L1}
buffer_load_ushort v{P_DUM}, v{P_PF}, {sWR}, {T2} offen{' nt' if cfg.ntp else ''}
s_branch {L2}
{L1}:
buffer_load_ushort v{P_DUM}, v{P_PF}, {sWI}, {T2} offen{' nt' if cfg.ntp else ''}
{L2}:
s_mov_b64 exec, -1""")
    stamp(a, 2)
    if cfg.wpf == 2: wpull()
    lwait(a, f"v{P_BC}", P_LS, 4 if cfg.kvt != 7 else 1, 20, sleep=1, off=8)
    if cfg.kvt in (7, 8): kv_touch()
    if cfg.xas:
        a(f"s_mul_i32 {T2}, {S_H}, 7\ns_bfe_u32 {T2}, {T2}, 0x30001\ns_cmp_gt_u32 {T2}, 4\ns_cbranch_scc0 L_xago")
        lwait(a, f"v{P_BC}", P_LS, 4 * cfg.xas, 30, sleep=1, off=4)
        a("L_xago:")
    for c in range(7):
        if c == cfg.xae:
            if cfg.wpf == 1: wpull()
            if cfg.xalate == 1: lwait(a, f"v{P_BC}", P_LS, 4, 38, sleep=1, off=12)
            elif cfg.xalate == 2: lwait(a, f"v{P_BC}", P_LS, 9, 38, sleep=1)
            elif cfg.xafirst: lwait(a, f"v{P_BC}", P_LS, 8, 38)
            else: lwait(a, f"v{P_BC}", P_LS, 4, 38, sleep=1, off=16)
        a(f"""s_add_u32 {T2}, {T1}, 1
s_lshr_b32 {T3}, {T2}, 1
s_lshl_b32 {T3}, {T3}, 14
s_and_b32 {T4}, {T1}, 1
s_lshl_b32 {T4}, {T4}, 12
s_sub_u32 {T3}, {T3}, {T4}
s_add_u32 m0, {S_XA}, {T3}
s_lshl_b32 {T4}, {T1}, 7
buffer_load_dwordx4 v{XD}, {sX}, {T4} offen{' nt' if cfg.nta else ''} lds
s_cmp_eq_u32 {T2}, 7
s_cselect_b32 {T1}, 0, {T2}""")
    if cfg.wpf == 4: wpull()
    for p_ in pieces: p_()
    pieces = []
    assert not pieces
    a(f"""v_add_u32 v13, {L_M}, v7
s_lshl_b32 {T0}, {S_W4}, 10
v_add_u32 v5, {T0}, v13
ds_write_b128 v5, {V(ACC+8,4)}
s_cmp_eq_u32 {S_W4}, 0
s_cbranch_scc0 L_chkd
s_lshl_b32 {T1}, {S_XCD}, 7
s_mov_b32 {S_TO}, {cfg.poll_limit}
L_chk:
s_load_dwordx2 s[76:77], {SB}, {T1} glc
s_waitcnt lgkmcnt(0)
s_sub_u32 s76, s76, s62
s_lshr_b32 s76, s76, 5
s_xor_b32 s77, s77, s63
s_or_b32 s76, s76, s77
s_cbranch_scc0 L_chkd
s_sleep 4
s_sub_u32 {S_TO}, {S_TO}, 1
s_cbranch_scc0 L_chk
s_mov_b32 {S_TO}, 35
s_branch L_fail
L_chkd:""")
    WW = 136 if cfg.woearly else 72; AC = 152; FR = 168; TP = 200
    wl = []
    for r in range(8):
        wl.append(f"s_mov_b32 {T0}, {14400*(8*(r//4) + r%4)}\nbuffer_load_short_d16_hi v{WW+r}, v{P_W}, {sWR}, {T0} offen{' nt' if cfg.ntw else ''}")
        wl.append(f"buffer_load_short_d16_hi v{WW+8+r}, v{P_W}, {sWI}, {T0} offen{' nt' if cfg.ntw else ''}")
    if cfg.wearly:
        for s_ in wl: a(s_)
        a("s_waitcnt vmcnt(16)")
    else: a(f"s_waitcnt vmcnt({1 if cfg.wpf == 4 else 0})")
    stamp(a, 3)
    if cfg.noA == 1:
        a(f"s_mov_b64 exec, 1\nds_add_u32 v14, v15 offset:4\ns_mov_b64 exec, -1")
        stamp(a, 12); dump_stamps(a, 16); a("s_endpgm")
    albar(16)
    RG = cfg.ring
    def xreg(m): return (TMP + 4*m if m < 4 else 72 + 4*(m - 4)) if m < RG else F + 4*(m - RG)
    def xr(m): return f"ds_read_b128 {V(xreg(m),4)}, v{8+m%4} offset:{((m//4+1)>>1)*16384 - ((m//4)&1)*4096}"
    assert not (cfg.wearly and RG > 4)
    for m in range(RG): a(xr(m))
    P1 = F; P2 = F + 16; XP = TMP; M = F + 32
    if cfg.mprio == 0: a("s_setprio 0")
    nds = RG
    for m in range(28):
        a(f"s_waitcnt lgkmcnt({nds - m - 1})")
        a(mfma(ACC, xreg(m), F + 4*m, None if m == 0 else ACC))
        if m + RG < 28: a(xr(m + RG)); nds += 1
        elif m >= 24: a(f"ds_read_b128 {V(M+4*(m-24),4)}, v13 offset:{(m-24)*1024}"); nds += 1
    a(f"s_setprio {cfg.aprio}")
    lwait(a, f"v{P_BC}", P_LS, 8, 27, sleep=1)
    a(f"""s_lshl_b32 {T0}, {S_W4}, 11
s_add_u32 {T0}, {T0}, {L_MS}
v_add_u32 v5, {T0}, v7
ds_write_b128 v5, v[48:51]
ds_write_b128 v5, v[52:55] offset:1024
s_lshr_b32 {T0}, {S_KT16}, 1
s_lshl_b32 {T0}, {T0}, 13
s_lshl_b32 {T1}, {S_B}, 7
s_add_u32 {T1}, {T1}, {TBUF}
s_add_u32 {T0}, {T0}, {T1}
s_and_b32 {T2}, {S_KT16}, 1
s_lshl_b32 {T2}, {T2}, 6
s_add_u32 {T0}, {T0}, {T2}
s_add_u32 {T2}, {T0}, {16*65536}
s_cmp_ge_u32 {S_W4}, {S_CNT}
s_cbranch_scc1 L_a1done
s_waitcnt lgkmcnt(0)""")
    for q in range(8): a(f"v_cvt_pk_bf16_f32 v{XP+q}, v{ACC+2*q}, v{ACC+2*q+1}")
    a(mfma(P1, XP, M)); a(mfma(P2, XP, M + 8)); a(mfma(P1, XP + 4, M + 4, P1)); a(mfma(P2, XP + 4, M + 12, P2))
    for r in range(0, 8, 2):
        pk2(a, "add", ACC+r, P1+r, P2+r+8, neg="1", scalar=cfg.nopk & 4); pk2(a, "add", ACC+8+r, P1+r+8, P2+r, scalar=cfg.nopk & 4)
    for r in range(8): a(f"v_cvt_pk_bf16_f32 v{XP+8+r}, v{ACC+r}, v{ACC+8+r}")
    a(f"""s_cmp_lg_u32 {S_KT16}, 0
s_cbranch_scc1 L_a1st
s_mov_b32 exec_hi, 0
v_cvt_pk_bf16_f32 v{XP+8}, v{P1}, v{P2}
v_cvt_pk_bf16_f32 v6, v{P1+8}, v{P2+8}
v_lshlrev_b32 v5, 16, v2
s_mov_b32 exec_hi, -1
L_a1st:
ds_write_b128 v{P_TTW}, {V(XP+8,4)}
ds_write_b128 v{P_TTW}, {V(XP+12,4)} offset:32
ds_read_b128 {V(XP,4)}, v{P_TTR}
ds_read_b128 {V(XP+4,4)}, v{P_TTR} offset:1024
s_mov_b32 {T4}, {T0}
s_waitcnt lgkmcnt(0)""")
    stamp(a, 1, 5)
    if cfg.tdefer: lwait(a, f"v{P_BC}", P_LS, 4, 28, sleep=1, off=12)
    if cfg.tdelay: a(f"s_sleep {cfg.tdelay}")
    if cfg.tstag:
        for q in (1, 2, 3): a(f"s_cmp_lt_u32 {S_W4}, {q}\ns_cbranch_scc1 L_tst\ns_sleep {cfg.tstag}")
        a("L_tst:")
    a(f"""s_cmp_lg_u32 {S_KT16}, 0
s_cbranch_scc1 L_a1st2
s_mov_b32 exec_hi, 0
s_add_u32 {T1}, {T1}, {7*8192}
buffer_store_dword v6, v5, {sWS}, {T1} offen sc1
s_mov_b32 exec_hi, -1
L_a1st2:
{"s_branch L_a1done" if cfg.ko & 8 else ""}
buffer_store_dwordx4 {V(XP,4)}, v{P_TST}, {sWS}, {T4} offen sc1
{"s_sleep %d" % (cfg.tstag // 2) if cfg.tstag else ""}
buffer_store_dwordx4 {V(XP+4,4)}, v{P_TST}, {sWS}, {T2} offen sc1
L_a1done:""")
    stage_arrive(0)
    stamp(a, 4)
    lwait(a, f"v{P_BC}", P_LS, 4, 29, sleep=1, off=12)
    if cfg.wdelay: a(f"s_sleep {cfg.wdelay}")
    if cfg.wpf == 3: wpull()
    if not cfg.wearly and not cfg.wlate: burst([x + (f"\ns_sleep {cfg.wpace}" if cfg.wpace else "") for x in wl], cfg.th_w)
    if cfg.wopf and not cfg.wolate:
        burst([f"""s_lshl_b32 {T0}, {S_IDX}, 2
s_add_u32 {T0}, {T0}, {S_W4}
s_mul_i32 {T0}, {T0}, {25*128}
s_bfm_b64 exec, 25, 0
buffer_load_dword v{P_DUM}, v{P_PF}, {sWO}, {T0} offen
s_mov_b64 exec, -1"""], 1)
    if cfg.ohint:
        for q in range(4): a(f"v_mov_b32 v{TP+q}, -1")
        a(f"""s_lshr_b32 {T0}, {S_XCD}, 1
s_lshl_b32 {T0}, {T0}, 2
s_add_u32 {T0}, {T0}, {S_RR}
s_lshl_b32 {T0}, {T0}, 2
s_add_u32 {T0}, {T0}, {S_W4}
s_lshl_b32 {T0}, {T0}, 4
s_add_u32 {T0}, {T0}, {S_H}
s_lshl_b32 {T0}, {T0}, 11
s_add_u32 {T0}, {T0}, {OBUF}""")
        a(f"s_mov_b32 s72, {T0}")
        marks = [f"buffer_store_dwordx4 {V(TP,4)}, v7, {sWS}, s72 offen offset:{1024*q} sc1" for q in range(2)]
        if not cfg.wolate: burst(marks, 2)
    WO = 72
    S_WOL = "s70"
    a(f"s_lshl_b32 {S_WOL}, {S_W4}, 10\ns_add_u32 {S_WOL}, {S_WOL}, {L_X}")
    def wo_list(rnd):
        return [f"s_add_u32 m0, {S_WOL}, {i*4096}\ns_mov_b32 s71, {(rnd*224 + i*16)*896}\nbuffer_load_dwordx4 v{P_WOD}, {sWO}, s71 offen lds" for i in range(14)]
    def ride(q, n=1):
        it = [q.pop(0) for _ in range(min(n, len(q)))]
        if it: burst(it, n)
        pace()
    def wo_rd(f, d, r1, r2):
        hl, mu = f // 2, f % 2
        return [f"ds_read_b64_tr_b16 {V(d+2*sec,2)}, v{r2 if (mu and sec) else r1} offset:{(28*hl + 16*mu + 8*sec)*256}" for sec in range(2)]
    def wo_reads(h):
        for f in range(16):
            for s_ in wo_rd(f, WO + 64*h + 4*f, P_WOR, P_WOR2): a(s_)
    assert cfg.allpoll
    if cfg.woearly:
        assert cfg.wlate and not cfg.wolate
        lwait(a, "v14", P_LS, 4, 45, sleep=2, off=8)
        burst(wo_list(0), cfg.th_wo)
        a("s_waitcnt vmcnt(0)")
        albar(46)
        wo_reads(0)
    stamp(a, 5)
    stage_wait(0, cfg.a2wait)
    a(f"s_lshl_b32 {T1}, {S_W4}, 11")
    stamp(a, 6)
    a(f"""s_lshl_b32 {T0}, {S_TASK}, 13
s_add_u32 {T0}, {T0}, {T1}
s_add_u32 {T0}, {T0}, {TBUF}""")
    burst([f"buffer_load_dword v{FR+q}, v{P_TLD}, {sWS}, {T0} offen offset:{(q//4)*1024 + (q%4)*128} sc1" for q in range(8)], 8)
    a(f"s_waitcnt vmcnt(0)\nds_write_b128 v{P_TBW}, {V(FR,4)}\nds_write_b128 v{P_TBW}, {V(FR+4,4)} offset:1024" if not cfg.wlate else "")
    if cfg.wlate:
        burst(wl, 24)
        a(f"s_waitcnt vmcnt(16)\nds_write_b128 v{P_TBW}, {V(FR,4)}\nds_write_b128 v{P_TBW}, {V(FR+4,4)} offset:1024")
    stamp(a, 1, 4)
    albar(6)
    stamp(a, 2, 4)
    def dft64(base):
        for m in range(8): a(f"ds_read_b128 {V(FR+4*m,4)}, v{P_TBR} offset:{base + m*1024}")
        if cfg.mprio == 0: a("s_setprio 0")
        for m in range(8):
            a(f"s_waitcnt lgkmcnt({7-m})")
            a(mfma(AC, FB + 4*m, FR + 4*m, None if m == 0 else AC))
            if cfg.mprio: ride(woq)
            elif woq: a(woq.pop(0))
        a(f"s_setprio {cfg.aprio}")
    woq = marks if cfg.wolate else wo_list(1 if cfg.woearly else 0)
    dft64(0)
    a(f"s_waitcnt vmcnt({2 if cfg.wolate else 8})\ns_cmp_eq_u32 {S_HH}, 7\ns_cbranch_scc0 L_a2nx")
    for r in range(8):
        a(f"v_mov_b32 v{TP}, v{WW+r}\nv_xor_b32 v{WW+r}, 0x80000000, v{WW+8+r}\nv_mov_b32 v{WW+8+r}, v{TP}")
    a("L_a2nx:")
    for r in range(0, 8, 2):
        a(f"""v_pk_mul_f32 {V(FR+r,2)}, {V(AC+r,2)}, {V(WW+r,2)}
v_pk_mul_f32 {V(FR+8+r,2)}, {V(AC+r,2)}, {V(WW+8+r,2)}
v_pk_fma_f32 {V(FR+r,2)}, {V(AC+8+r,2)}, {V(WW+8+r,2)}, {V(FR+r,2)} neg_lo:[1,0,0] neg_hi:[1,0,0]
v_pk_fma_f32 {V(FR+8+r,2)}, {V(AC+8+r,2)}, {V(WW+r,2)}, {V(FR+8+r,2)} neg_lo:[1,0,1] neg_hi:[1,0,1]
v_cvt_pk_bf16_f32 v{TP+r}, v{FR+r}, v{FR+8+r}
v_cvt_pk_bf16_f32 v{TP+r+1}, v{FR+r+1}, v{FR+8+r+1}""")
    a(f"ds_write_b128 v{P_TBW}, {V(TP,4)} offset:8192\nds_write_b128 v{P_TBW}, {V(TP+4,4)} offset:9216")
    stamp(a, 3, 4)
    albar(7)
    stamp(a, 4, 4)
    dft64(8192)
    if cfg.uinp:
        a(f"s_lshl_b32 {T0}, {S_TASK}, 13\ns_lshl_b32 {T1}, {S_W4}, 11\ns_add_u32 {T0}, {T0}, {T1}\ns_add_u32 {T0}, {T0}, {TBUF}")
    else:
        a(f"""s_lshl_b32 {T0}, {S_HH}, 12
s_lshr_b32 {T1}, {S_TASK}, 3
s_lshl_b32 {T1}, {T1}, 7
s_add_u32 {T0}, {T0}, {T1}
s_add_u32 {T0}, {T0}, {UBUF}
s_lshl_b32 {T1}, {S_W4}, 19
s_add_u32 {T0}, {T0}, {T1}""")
    for r in range(8): a(f"v_cvt_pk_bf16_f32 v{TP+r}, v{AC+r}, v{AC+8+r}")
    stamp(a, 5, 4)
    a(f"s_cmp_eq_u32 {S_HH}, {S_HH if cfg.ko & 8 else 7}\ns_cselect_b32 exec_lo, 1, -1\ns_cselect_b32 exec_hi, 1, -1")
    if cfg.uinp:
        burst([f"buffer_store_dword v{TP+r}, v{P_TLD}, {sWS}, {T0} offen offset:{(r//4)*1024 + (r%4)*128} sc1" for r in range(8)], 8)
    else:
        burst([f"s_add_u32 {T1}, {T0}, {(8*(r//4) + r%4) * USTR}\nbuffer_store_dword v{TP+r}, v{P_UST}, {sWS}, {T1} offen sc1" for r in range(8)], 8)
    a("s_mov_b64 exec, -1")
    stage_arrive(1)
    stamp(a, 7)
    U0 = 16; U1 = 32; AR = 200; AI = 216
    MSR = [48, 52, 56, 60, 64, 68, 232, 240]
    if cfg.wolate:
        burst(wo_list(0), cfg.th_wo)
        a("s_waitcnt vmcnt(0)")
    albar(4)
    wo_reads(1 if cfg.woearly else 0)
    for q in range(8): a(f"ds_read_b128 {V(MSR[q],4)}, v7 offset:{L_MS + q*1024}")
    if not cfg.woearly:
        albar(24)
        if not cfg.wolate: burst(wo_list(1), cfg.th_wo)
    stage_wait(1, 0 if cfg.wolate else cfg.a3wait)
    stamp(a, 8)
    if cfg.uinp:
        a(f"""s_lshl_b32 {T0}, {S_BP}, 7
s_add_u32 {T0}, {T0}, {TBUF}
s_lshl_b32 {T1}, {S_W4}, 13
s_lshl_b32 {T3}, {S_K1}, 13
s_add_u32 {T2}, {T0}, {T3}
s_add_u32 {T1}, {T0}, {T1}""")
        burst([f"s_add_u32 {T0}, {T1 if q < 16 else T2}, {(8*((q%16)//4) + q%4) * 65536}\nbuffer_load_dword v{U0+q}, v{P_F2}, {sWS}, {T0} offen sc1" for q in range(32)], cfg.th_u)
    else:
        a(f"""s_lshl_b32 {T0}, {S_BP}, 15
s_add_u32 {T0}, {T0}, {UBUF}
s_lshl_b32 {T1}, {S_W4}, 12
s_lshl_b32 {T3}, {S_K1}, 12
s_add_u32 {T2}, {T0}, {T3}
s_add_u32 {T1}, {T0}, {T1}""")
        burst([f"buffer_load_dword v{U0+q}, v{P_TLD}, {sWS}, {T1 if q < 16 else T2} offen offset:{((q%16)//4)*1024 + (q%4)*128} sc1" for q in range(32)], cfg.th_u)
    if cfg.wolate: burst(wo_list(1), 46)
    elif not cfg.woearly:
        a("s_waitcnt vmcnt(32)")
        albar(10)
        wo_reads(1)
    stamp(a, 11, 4)
    a(f"""s_lshl_b32 {T4}, {S_BP}, 2
s_add_u32 {T4}, {T4}, {S_W4}
s_lshl_b32 {T3}, {T4}, 13
s_add_u32 {T3}, {T3}, {OBUF}
s_add_u32 {T2}, {T3}, 4096
s_and_b32 {T4}, {S_BP}, 60
s_add_u32 {T4}, {T4}, {S_W4}
s_lshl_b32 {T4}, {T4}, 9
s_add_u32 {T4}, {T4}, {FO}
s_lshl_b32 {T1}, {S_W4}, 13
v_add_u32 v9, {T1}, v7""")
    def step6(ur, ui, va, last):
        if last and cfg.apoll: a(poll_issue(f"v{P_PF}", T4, P_PS, 4))
        if cfg.mprio == 0: a("s_setprio 0")
        for m in range(4):
            a(mfma(AR, ur + 4*m, MSR[2*m], None if m == 0 else AR))
            if cfg.pace6: a(f"s_sleep {cfg.pace6}")
            a(mfma(AI, ui + 4*m, MSR[2*m+1], None if m == 0 else AI))
            if cfg.pace6: a(f"s_sleep {cfg.pace6}")
        a(f"s_setprio {cfg.aprio}")
        for q in range(16):
            a(f"v_cvt_pk_bf16_f32 v{ur+q}, v{AR+2*q}, v{AR+2*q+1}")
            if q % 4 == 3: a(f"ds_write_b128 v{va}, {V(ur+q-3,4)} offset:{(q//4)*1024}")
    if cfg.s6late: lwait(a, f"v{P_BC}", P_LS, 20, 37, sleep=2)
    a(f"s_waitcnt vmcnt({14 if cfg.wolate else 0})\ns_cmp_eq_u32 {S_W4}, 0\ns_cbranch_scc1 L_a3w0")
    step6(U0, U0, P_ZW0, False)
    step6(U1, U1, P_ZW1, True)
    a(f"s_branch L_a3z\nL_a3w0:\ns_mov_b32 exec_lo, -2\ns_mov_b32 exec_hi, -2")
    for q in range(16): a(f"v_mov_b32 v{U1+q}, v{U0+q}")
    a("s_mov_b64 exec, -1")
    step6(U0, U1, P_ZW0, True)
    a("L_a3z:\ns_mov_b64 exec, 1\nds_add_u32 v14, v15 offset:4\ns_mov_b64 exec, -1")
    stamp(a, 9)
    if cfg.wolate:
        a(f"s_waitcnt vmcnt({1 if cfg.apoll else 0})")
        lbar(a, "v14", "v15", P_LS, 10)
        wo_reads(1)
    osc = ("", " sc1", " nt", " sc0 sc1", " sc1 nt")[cfg.outsc]
    stamp(a, 10)
    a(f"s_mov_b32 s71, {cfg.poll_limit}")
    if cfg.apoll: a(f"s_waitcnt vmcnt(0)\n{poll_check(P_PS, 4)}\ns_cbranch_scc0 L_aoload")
    poll(a, f"v{P_PF}", T4, P_PS, 4, 42, sleep=cfg.osleep)
    a("L_aoload:")
    for q in range(8):
        a(f"buffer_load_dwordx4 {V(16+4*q,4)}, v7, {sWS}, {T3 if q < 4 else T2} offen offset:{(q%4)*1024} sc1")
    stamp(a, 13)
    lwait(a, f"v{P_BC}", P_LS, 24, 43, sleep=1)
    for q in range(8):
        a(f"s_waitcnt vmcnt({7-q})\nds_write_b128 v9, {V(16+4*q,4)} offset:{L_OB + q*1024}")
        if q == 2: a("v_max3_u32 v5, v16, v20, v24")
        if q in (4, 6): a(f"v_max3_u32 v5, v5, v{12+4*q}, v{16+4*q}")
    a(f"""v_max_u32 v5, v5, v44
v_cmp_eq_u32 vcc, -1, v5
s_cbranch_vccz L_aogot
s_sleep 6
s_sub_u32 s71, s71, 1
s_cbranch_scc0 L_aoload
s_mov_b32 {S_TO}, 44
s_branch L_fail
L_aogot:
s_mov_b64 exec, 1
ds_add_u32 v{P_BC}, v15 offset:20
s_mov_b64 exec, -1""")
    a(f"""s_mul_i32 {T4}, {S_BP}, {32*1792}
s_lshl_b32 {T1}, {S_DT}, 6
s_add_u32 {T4}, {T4}, {T1}
s_add_u32 {T4}, {T4}, 896
s_add_u32 {T3}, {T4}, {16*1792}""")
    lwait(a, f"v{P_BC}", P_LS, 4, 12, off=20)
    a(f"s_cmp_ge_u32 {S_W4}, {S_CNT}\ns_cbranch_scc1 L_b3done")
    stamp(a, 11)
    OR = 216
    def zr(s_): return f"ds_read_b128 {V(OR+4*(s_%8),4)}, v7 offset:{L_OB + s_*1024}"
    for s_ in range(8): a(zr(s_))
    if cfg.cost & 1:
        a(f"""s_lshl_b32 {T1}, {S_W4}, 11
s_add_u32 {T1}, {T1}, {L_X}
v_lshlrev_b32 v10, 6, v2
v_lshl_add_u32 v10, v3, 5, v10
v_add_u32 v10, {T1}, v10
v_add_u32 v11, {T1}, v7
v_lshrrev_b32 v5, 2, v1
v_mul_u32_u24 v5, 1792, v5
v_and_b32 v12, 3, v1
v_lshl_add_u32 v5, v12, 4, v5""")
    else:
        a("v_mul_u32_u24 v5, 1792, v2\nv_lshl_add_u32 v5, v3, 5, v5")
    for s_ in range(32):
        a(f"s_waitcnt lgkmcnt({min(7, 31-s_)})")
        a(mfma(AR, WO + 4*s_, OR + 4*(s_ % 8), None if s_ == 0 else AR))
        if s_ + 8 < 32: a(zr(s_ + 8))
    for hf in range(2):
        for q in range(4*hf, 4*hf+4): a(f"v_cvt_pk_bf16_f32 v{48+q}, v{AR+2*q}, v{AR+2*q+1}")
        if cfg.cost & 1: a(f"ds_write_b128 v10, {V(48+4*hf,4)} offset:{16*hf}")
        else: a(f"buffer_store_dwordx4 {V(48+4*hf,4)}, v5, {sOUT}, {T4} offen offset:{16*hf}{osc}")
    if cfg.cost & 1:
        a(f"""ds_read_b128 v[56:59], v11
ds_read_b128 v[60:63], v11 offset:1024
s_waitcnt lgkmcnt(1)
buffer_store_dwordx4 v[56:59], v5, {sOUT}, {T4} offen{osc}
s_waitcnt lgkmcnt(0)
buffer_store_dwordx4 v[60:63], v5, {sOUT}, {T3} offen{osc}""")
    a("L_b3done:")
    a(f"""s_lshl_b32 {T0}, s2, 2
s_add_u32 {T0}, {T0}, {S_W4}
s_cmp_lg_u32 {T0}, 0
s_cbranch_scc1 L_noep
s_mov_b32 {T0}, {EPOCH}""")
    if cfg.diagrot: a("s_mov_b64 s[24:25], s[20:21]")
    flag(a, T0, 10)
    a("L_noep:")
    if cfg.padend: padto(a, cfg.padend)
    stamp(a, 12)
    dump_stamps(a, 16)
    a("s_endpgm")

def build():
    nh = cfg.nh; xh = 16 // nh
    for wg in range(256):
        xcd, idx = wg & 7, wg >> 3
        h = (xcd % xh) * nh + idx % nh
        assert nh == 8
    a = Asm()
    prologue(a); role_B(a); ROLE[0] = 1; role_A(a)
    a(f"""L_fail:
v_mov_b32 v0, 0
v_mov_b32 v1, {S_TO}
global_store_dword v0, v1, s[18:19]
L_end:
s_endpgm
L_codeend:""")
    a.pad()
    import os
    ref = "cdna_kernels/" + NAME + ".s.ref"
    hdr = open(ref).read().split("; Override launch")[0] if os.path.exists(ref) else ""
    s = hdr + f"; @launch grid=(256,1,1) block=(512,1,1) lds={LDS_SIZE}\n"
    s += f""".amdgcn_target "amdgcn-amd-amdhsa--gfx950"
.text
.globl {NAME}_kernel
.p2align 8
.type {NAME}_kernel,@function
{NAME}_kernel:
""" + a.text() + f""".section .rodata,"a"
.p2align 6
.amdhsa_kernel {NAME}_kernel
  .amdhsa_next_free_vgpr 256
  .amdhsa_next_free_sgpr 102
  .amdhsa_accum_offset 256
  .amdhsa_group_segment_fixed_size 0
  .amdhsa_kernarg_size 72
  .amdhsa_user_sgpr_count 2
  .amdhsa_user_sgpr_kernarg_segment_ptr 1
  .amdhsa_system_sgpr_workgroup_id_x 1
.end_amdhsa_kernel
"""
    return s

if __name__ == "__main__":
    out = sys.argv[1]
    for kv in sys.argv[2:]:
        k, v = kv.split("=")
        setattr(cfg, k, type(getattr(cfg, k))(int(v)))
    open(out, "w").write(build())
```
